```python
import torch

def _softmax(x, axis=-1):
    return torch.softmax(x, dim=axis)

def _gelu(x):
    return torch.nn.functional.gelu(x, approximate='tanh')

def _silu(x):
    return torch.nn.functional.silu(x)

def _sigmoid(x):
    return torch.sigmoid(x)

def _layernorm(x, axis=-1, eps=1e-05):
    m = x.mean(dim=axis, keepdim=True)
    v = x.var(dim=axis, keepdim=True, unbiased=False)
    return (x - m) / torch.sqrt(v + eps)

def _scatter_add(tgt, idx, src, axis=0):
    return tgt.clone().index_add_(axis, idx, src)

def _segment_sum(src, seg, n):
    out = torch.zeros((n,) + src.shape[1:], dtype=src.dtype)
    return out.index_add_(0, seg, src)

def _pad(x, pw):
    flat = tuple((v for pair in reversed(pw) for v in pair))
    return torch.nn.functional.pad(x, flat)
kernel_name = 'concat_heads__linear_attn_block__memory_aug_recurrent_mem_tr__prompt'

def setup_inputs():

    _w = lambda a: (lambda t: t.to(torch.bfloat16) if t.is_floating_point() else t)(torch.as_tensor(a))

    def _A_setup():
        B, S, D = (1, 2048, 1024)
        return {'x': _w((lambda *s: torch.randn(*s, dtype=torch.bfloat16) * 0.05)(B, S, D)), 'wqkv': _w((lambda *s: torch.randn(*s, dtype=torch.bfloat16) * 1.6)(D, 3 * D)), 'wo': _w((lambda *s: torch.randn(*s, dtype=torch.bfloat16) * 0.05)(D, D))}
    _A_in = _A_setup()

    def _B_setup():
        B, S, Dm = (1, 2048, 1024)
        H, Dh = (32, 128)
        M, seg = (8, 32)
        seg = min(seg, S)
        S = S // seg * seg
        return {'x': _w((lambda *s: torch.randn(*s, dtype=torch.bfloat16) * 0.05)(B, S, Dm)), 'mem0': _w((lambda *s: torch.randn(*s, dtype=torch.bfloat16) * 0.8)(B, M, Dm)), 'Wq': _w((lambda *s: torch.randn(*s, dtype=torch.bfloat16) * 1.6)(Dm, H, Dh) * Dm ** (-0.5)), 'Wk': _w((lambda *s: torch.randn(*s, dtype=torch.bfloat16) * 1.6)(Dm, H, Dh) * Dm ** (-0.5)), 'Wv': _w((lambda *s: torch.randn(*s, dtype=torch.bfloat16) * 0.8)(Dm, H, Dh) * Dm ** (-0.5)), 'Wo': _w((lambda *s: torch.randn(*s, dtype=torch.bfloat16) * 0.8)(H, Dh, Dm) * (H * Dh) ** (-0.5)), 'seg_len': seg}
    _B_in = _B_setup()
    return {'A_x': _A_in['x'], 'A_wqkv': _A_in['wqkv'], 'A_wo': _A_in['wo'], 'B_x': _B_in['x'], 'B_mem0': _B_in['mem0'], 'B_Wq': _B_in['Wq'], 'B_Wk': _B_in['Wk'], 'B_Wv': _B_in['Wv'], 'B_Wo': _B_in['Wo'], 'B_seg_len': _B_in['seg_len']}

def reference(A_x, A_wqkv, A_wo, B_x, B_mem0, B_Wq, B_Wk, B_Wv, B_Wo, B_seg_len):

    def _A_ref(x, wqkv, wo):
        B, S, D = x.shape
        H = 32
        Dh = D // H
        qkv = (lambda x, *d: x.permute(*d))((x @ wqkv).reshape(B, S, 3, H, Dh), 2, 0, 3, 1, 4)
        q, k, v = (qkv[0], qkv[1], qkv[2])
        phi = lambda t: torch.where(t > 0, t + 1, torch.exp(t)) + 1e-06
        pq, pk = (phi(q), phi(k))
        kv = torch.einsum('bhsd,bhse->bhde', pk, v)
        z = torch.einsum('bhsd->bhd', pk)
        num = torch.einsum('bhqd,bhde->bhqe', pq, kv)
        den = torch.einsum('bhqd,bhd->bhq', pq, z)[..., None] + 1e-06
        o = num / den
        return (lambda x, *d: x.permute(*d))(o, 0, 2, 1, 3).reshape(B, S, D) @ wo

    def _B_ref(x, mem0, Wq, Wk, Wv, Wo, seg_len):
        B, S, Dm = x.shape
        H, Dh = (Wq.shape[1], Wq.shape[2])
        M = mem0.shape[1]
        scale = Dh ** (-0.5)
        n_seg = S // seg_len
        L = M + seg_len
        idx = torch.arange(L)
        mask = (idx[:, None] < M) | (idx[:, None] >= idx[None, :])
        mem = mem0
        outs = []
        for s in range(n_seg):
            xs = x[:, s * seg_len:(s + 1) * seg_len, :].clone()
            h = torch.concatenate([mem, xs], axis=1)
            q = torch.einsum('btd,dhe->bhte', h, Wq)
            k = torch.einsum('btd,dhe->bhte', h, Wk)
            v = torch.einsum('btd,dhe->bhte', h, Wv)
            scores = torch.einsum('bhqe,bhke->bhqk', q, k) * scale
            scores = torch.where(mask[None, None], scores, -1000000000.0)
            p = _softmax(scores, axis=-1)
            o = torch.einsum('bhqk,bhke->bhqe', p, v)
            o = torch.einsum('bhte,hed->btd', o, Wo)
            mem = o[:, :M, :].clone()
            outs.append(o[:, M:, :])
        return torch.concatenate(outs, axis=1)
    a = _A_ref(A_x, A_wqkv, A_wo)
    b = _B_ref(B_x, B_mem0, B_Wq, B_Wk, B_Wv, B_Wo, B_seg_len)
    return torch.concatenate([a, b], axis=-1)
```

```python
class Asm:
    def __init__(self):
        self.lines = []
        self.nlab = 0
    def __call__(self, s=""):
        for ln in s.split("\n"):
            self.lines.append("    " + ln.strip() if ln.strip() and not ln.strip().endswith(":") else ln.strip())
    def raw(self, s):
        self.lines.append(s)
    def label(self, name):
        self.lines.append(name + ":")
    def newlabel(self, base="L"):
        self.nlab += 1
        return f"{base}_{self.nlab}"
    def text(self):
        return "\n".join(self.lines) + "\n"

def kernel_begin(a, name):
    a.raw(f".globl {name}")
    a.raw(".p2align 8")
    a.raw(f".type {name},@function")
    a.raw(f"{name}:")

def kernel_desc(name, vgpr=256, sgpr=102, accum=256, kernarg=104):
    return f""".p2align 6
.amdhsa_kernel {name}
  .amdhsa_next_free_vgpr {vgpr}
  .amdhsa_next_free_sgpr {sgpr}
  .amdhsa_accum_offset {accum}
  .amdhsa_group_segment_fixed_size 0
  .amdhsa_kernarg_size {kernarg}
  .amdhsa_user_sgpr_count 2
  .amdhsa_user_sgpr_kernarg_segment_ptr 1
  .amdhsa_system_sgpr_workgroup_id_x 1
.end_amdhsa_kernel
"""
```

```python
from asmgen import *

def acc(tt, ft): return 32 + (tt*8 + ft)*4
def R(p, b, n=4): return f"{p}[{b}:{b+n-1}]"

def dma_ops(slot, flag="", MT=4):
    ops = []
    for i in range(2 if MT == 4 else 1):
        ld = f"global_load_lds_dwordx4 v{2+i}, s[60:61] {flag}"
        if MT == 1: ld = "s_mov_b64 exec, s[78:79]\n" + ld + "\ns_mov_b64 exec, -1"
        ops.append([f"s_add_u32 m0, s76, {slot*16384 + i*1024}", "s_nop 0", ld])
    for i in range(2):
        ops.append([f"s_add_u32 m0, s67, {65536 + slot*16384 + i*1024}", "s_nop 0", f"global_load_lds_dwordx4 v{4+i}, s[62:63]"])
    return ops
ADV = ["s_add_u32 s60, s60, s64", "s_addc_u32 s61, s61, 0", "s_add_u32 s62, s62, s65", "s_addc_u32 s63, s63, 0"]

def a_read(buf, tt, slot, MT=4): return f"ds_read_b128 {R('a', buf*16 + tt*4)}, v6 offset:{slot*16384 + tt*(4096//MT)}"
def w_read(ft, lo, slot): return f"ds_read_b64_tr_b16 {R('a', 32 + ft*4 + lo*2, 2)}, v{8+ft} offset:{slot*16384 + lo*2048}"

def stage(a, slot, orient, dma, wait, refill, MT=4, aflag=""):
    buf = slot & 1
    if wait is not None:
        a(f"s_waitcnt vmcnt({wait})"); a("s_barrier")
    d = dma_ops((slot + 3) & 3, aflag, MT) if dma else []
    ns = (slot + 1) & 3
    for ft in range(8):
        a("s_waitcnt lgkmcnt(8)" if refill else "s_waitcnt lgkmcnt(0)") if (refill or ft == 0) else None
        if MT == 1 and ft < len(d): a(d[ft][0])
        for tt in range(MT):
            D = R('v', acc(tt, ft)); W = R('a', 32 + ft*4); X = R('a', buf*16 + tt*4)
            a(f"v_mfma_f32_16x16x32_bf16 {D}, {W}, {X}, {D}" if orient == 'T' else f"v_mfma_f32_16x16x32_bf16 {D}, {X}, {W}, {D}")
            if MT > 1 and tt == 0 and ft < len(d):
                a(d[ft][0])
            if tt == min(1, MT - 1) and ft < len(d):
                a(d[ft][2])
            if tt == min(1, MT - 1) and ft == 4 and dma:
                for x in ADV: a(x)
            if tt == max(MT - 2, 0) and refill and ft < MT:
                a(a_read(buf ^ 1, ft, ns, MT))
        if refill:
            a(w_read(ft, 0, ns)); a(w_read(ft, 1, ns))

def emit_core(a, name, orient, MT=4, aflag=""):
    nd = 4 if MT == 4 else 3
    a.label(name)
    a("s_barrier")
    for st in range(3):
        d = dma_ops(st, aflag, MT)
        for op in d:
            for x in op: a(x)
        for x in ADV: a(x)
    for tt in range(MT):
        for i in range(32): a(f"v_mov_b32 v{acc(tt, 0) + i}, 0")
    a(f"s_waitcnt vmcnt({2*nd})"); a("s_barrier")
    for tt in range(MT): a(a_read(0, tt, 0, MT))
    for ft in range(8):
        a(w_read(ft, 0, 0)); a(w_read(ft, 1, 0))
        if ft == 3: a("s_waitcnt lgkmcnt(4)")
    a("s_waitcnt lgkmcnt(0)")
    a.label(name + "_loop")
    for slot in range(4): stage(a, slot, orient, True, nd, True, MT, aflag)
    a("s_sub_u32 s66, s66, 1"); a("s_cmp_lg_u32 s66, 0"); a(f"s_cbranch_scc1 {name}_loop")
    stage(a, 0, orient, True, nd, True, MT, aflag)
    stage(a, 1, orient, False, nd, True, MT)
    stage(a, 2, orient, False, 0, True, MT)
    stage(a, 3, orient, False, None, False, MT)
    a("s_nop 7")
    a("s_setpc_b64 s[68:69]")

def call(a, name):
    lab = a.newlabel("call")
    a("s_getpc_b64 s[70:71]")
    a.label(lab)
    a(f"s_add_u32 s70, s70, {name}-{lab}")
    a("s_addc_u32 s71, s71, 0") if False else a(f"s_addc_u32 s71, s71, ({name}-{lab})>>32")
    a("s_swappc_b64 s[68:69], s[70:71]")

def setup_common(a, MT=4):
    a("s_lshl_b32 s67, s75, 11")
    a("s_and_b32 s72, s75, 3"); a("s_lshr_b32 s73, s75, 2")
    a("v_lshrrev_b32 v16, 4, v0"); a("v_bfe_u32 v17, v0, 2, 2")
    a("v_lshl_add_u32 v18, v16, 3, v17"); a("v_lshlrev_b32 v18, 9, v18")
    a("v_and_b32 v19, 3, v0"); a("v_lshl_add_u32 v18, v19, 3, v18")
    a("s_lshl_b32 s74, s73, 8"); a("s_add_u32 s74, s74, 65536"); a("v_add_u32 v18, s74, v18")
    a("v_and_b32 v16, 1, v16"); a("v_lshl_add_u32 v17, v16, 2, v17"); a("v_lshlrev_b32 v17, 5, v17")
    a("v_add_u32 v8, v18, v17")
    for ft in range(1, 8): a(f"v_xor_b32 v{8+ft}, {ft*32}, v8")

def setup_a_rowmajor(a, lda, MT=4):
    a("v_lshrrev_b32 v16, 2, v0"); a("v_lshrrev_b32 v17, 4, v0"); a("v_sub_u32 v17, 0, v17"); a("v_xor_b32 v17, v17, v0"); a("v_and_b32 v17, 3, v17")
    a(f"s_lshl_b32 s74, s75, {5 if MT == 4 else 4}"); a("v_add_u32 v16, s74, v16")
    a(f"s_mov_b32 s74, {lda}"); a("v_mul_lo_u32 v16, v16, s74"); a("v_lshl_add_u32 v2, v17, 4, v16")
    a(f"v_add_u32 v3, {16*lda}, v2")
    a("v_and_b32 v16, 15, v0"); a("v_bfe_u32 v17, v0, 2, 2"); a("v_sub_u32 v17, 0, v17"); a("v_lshrrev_b32 v18, 4, v0"); a("v_xor_b32 v17, v17, v18"); a("v_and_b32 v17, 3, v17")
    a("v_lshlrev_b32 v16, 6, v16"); a("v_lshl_add_u32 v6, v17, 4, v16")
    a("s_lshl_b32 s74, s72, 12"); a("v_add_u32 v6, s74, v6")
    a("s_mov_b32 s64, 64"); a("s_mov_b32 s76, s67")

def setup_w(a, ldw, colmap=None):
    for i in range(2):
        a("v_lshrrev_b32 v16, 5, v0"); a("s_lshl_b32 s74, s75, 2"); a(f"s_add_u32 s74, s74, {2*i}"); a("v_add_u32 v16, s74, v16")
        a("v_and_b32 v17, 3, v16"); a("v_bfe_u32 v18, v16, 3, 1"); a("v_lshl_add_u32 v17, v18, 2, v17"); a("v_lshlrev_b32 v17, 1, v17")
        a("v_and_b32 v18, 31, v0"); a("v_xor_b32 v17, v17, v18")
        if colmap is None: a("v_lshlrev_b32 v17, 4, v17")
        else: colmap(a, 17)
        a(f"s_mov_b32 s74, {ldw}"); a("v_mul_lo_u32 v16, v16, s74"); a(f"v_add_u32 v{4+i}, v16, v17")
    a(f"s_mov_b32 s65, {32*ldw}")

def epi_frag_store(a, base, flag, MT=4):
    n = 0
    for tt in range(MT):
        for jj in range(4):
            t = 24 + (n & 1)*4; n += 1
            b = acc(tt, 2*jj)
            for i in range(4): a(f"v_cvt_pk_bf16_f32 v{t+i}, v{b+2*i}, v{b+2*i+1}")
            a(f"global_store_dwordx4 v{20+tt}, {R('v', t)}, {base} offset:{jj*1024} {flag}")

def setup_a_frag(a, tstride, MT=4):
    a("v_lshlrev_b32 v16, 4, v0")
    if MT == 4:
        a(f"s_mul_i32 s74, s75, {2*tstride}"); a("s_mov_b32 s76, s67")
    elif MT == 2:
        a(f"s_mul_i32 s74, s75, {tstride}"); a("s_mov_b32 s76, s67")
    else:
        a("s_lshr_b32 s76, s75, 1"); a(f"s_mul_i32 s74, s76, {tstride}"); a("s_lshl_b32 s76, s76, 12")
        a("s_bitcmp1_b32 s75, 0"); a("s_cselect_b32 s78, 0, -1"); a("s_cselect_b32 s79, -1, 0")
    a("v_add_u32 v2, s74, v16"); a(f"v_add_u32 v3, {tstride}, v2")
    a("s_lshl_b32 s74, s72, 12"); a("v_add_u32 v6, s74, v16")
    a("s_mov_b32 s64, 1024")

def lane_chunk(a, dst, tmp):
    a(f"v_bfe_u32 v{dst}, v0, 4, 1"); a(f"v_lshlrev_b32 v{dst}, 1, v{dst}"); a(f"v_lshrrev_b32 v{tmp}, 5, v0"); a(f"v_add_u32 v{dst}, v{dst}, v{tmp}")

def pack_swap(a, t, b):
    for i in range(4): a(f"v_cvt_pk_bf16_f32 v{t+i}, v{b+2*i}, v{b+2*i+1}")
    a("s_nop 0")
    a(f"v_permlane16_swap_b32 v{t}, v{t+2}"); a(f"v_permlane16_swap_b32 v{t+1}, v{t+3}")

def epi_out_store(a, base, MT=4):
    n = 0
    for tt in range(MT):
        for jj in range(4):
            t = 24 + (n & 1)*4; n += 1
            pack_swap(a, t, acc(tt, 2*jj))
            a(f"global_store_dwordx4 v{20+tt}, {R('v', t)}, {base} offset:{jj*64}")
```

```python
from asmgen import *

WS_WIN   = 0
WS_QKVM  = 4 << 20
WS_KX    = 16 << 20
WS_VX    = 32 << 20
MEMOFF   = 1 << 20
L_PART = 0
L_P    = 24576
L_SEL  = 26624
L_FLAG = 27648
L_KX   = 131072
L_VX   = 147456
SPIN_MAX = 400000
NSTEP = 64

def emit_spin_guard(a, loop, fail):
    a("s_add_u32 s24, s24, 1")
    a(f"s_cmp_lt_u32 s24, {SPIN_MAX}")
    a(f"s_cbranch_scc1 {loop}")
    a(f"s_branch {fail}")

def stamp(a, prof, k):
    if not prof: return
    if prof == 3 and k != 7: return
    if prof == 2:
        lab = a.newlabel("st")
        a("s_cmp_lg_u32 s22, " + ("31" if k == 7 else "30")); a(f"s_cbranch_scc1 {lab}")
        a("s_memrealtime s[56:57]"); a("s_waitcnt lgkmcnt(0)"); a("s_and_b32 s56, s56, 0xffffff"); a("s_lshl_b32 s57, s24, 24"); a(f"s_or_b32 s{60+k}, s56, s57")
        a.label(lab)
        return
    a("s_memtime s[56:57]"); a("s_waitcnt lgkmcnt(0)")
    a("s_sub_u32 s58, s56, s59"); a(f"s_add_u32 s{60+k}, s{60+k}, s58"); a("s_mov_b32 s59, s56")

OPT = set()
PAR0 = dict(DM=1, MGAP=2, DR=1, RGAP=2, RACK=1, MACK=1, RDEL=0, MDEL=0, XDEL=0)
PAR = dict(PAR0)
DBG_KVREADY = 64
def emit_rec(a, pfx, prof=False, plain=True, kvwait=False):
    L = lambda n: f"{pfx}_{n}"
    pl = "" if plain else "sc1"
    a("s_load_dwordx8 s[4:11], s[0:1], 40")
    a("s_load_dwordx2 s[12:13], s[0:1], 32")
    a("s_load_dwordx2 s[14:15], s[0:1], 88")
    a("s_load_dwordx2 s[16:17], s[0:1], 96")
    a("v_lshrrev_b32 v1, 6, v0")
    a("v_and_b32 v0, 63, v0")
    a("s_lshl_b32 s20, s18, 2"); a("s_add_u32 s20, s20, s19")
    a("v_readfirstlane_b32 s21, v1")
    a("v_lshlrev_b32 v6, 4, v0")
    a("s_mov_b32 s24, 0")
    a("s_waitcnt lgkmcnt(0)")
    a("s_add_u32 s26, s16, 0x1fffff"); a("s_addc_u32 s27, s17, 0"); a("s_and_b32 s26, s26, 0xffe00000")
    a("s_lshl_b32 s36, s25, 13"); a("s_add_u32 s26, s26, s36")
    a("v_mov_b32 v8, v6"); a("v_add_u32 v9, 0x1000, v6")
    a("v_mov_b32 v14, v8"); a("v_mov_b32 v15, v9")
    a("s_cmp_eq_u32 s21, 4")
    a(f"s_mov_b32 s36, {WS_KX}"); a(f"s_mov_b32 s37, {L_KX}")
    a(f"s_cbranch_scc1 {L('isk')}")
    a(f"s_mov_b32 s36, {WS_VX}"); a(f"s_mov_b32 s37, {L_VX}")
    a.label(L('isk'))
    a("s_add_u32 s38, s16, s36"); a("s_addc_u32 s39, s17, 0")
    a("s_lshl_b32 s36, s18, 13"); a("s_add_u32 s38, s38, s36"); a("s_addc_u32 s39, s39, 0")
    def xdma(base, ldsreg, vb=8):
        for kt in range(2):
            a(f"s_add_u32 m0, {ldsreg}, {kt*4096}")
            a("s_nop 0")
            for jj in range(4):
                a(f"global_load_lds_dwordx4 v{vb+kt}, {base} offset:{jj*1024} sc1")
    def kv_poll(tag, blkreg):
        a(f"s_lshl_b32 s52, {blkreg}, 2"); a("v_mov_b32 v17, s52")
        a.label(L(tag))
        a(f"global_load_dword v16, v17, s[14:15] offset:{DBG_KVREADY} sc1"); a("s_waitcnt vmcnt(0)")
        a("v_cmp_ne_u32 vcc, 32, v16"); a(f"s_cbranch_vccz {L(tag + 'ok')}")
        a("s_sleep 4")
        emit_spin_guard(a, L(tag), L('fail'))
        a.label(L(tag + 'ok'))
    a("v_lshrrev_b32 v10, 2, v0"); a("v_lshlrev_b32 v10, 13, v10"); a("v_and_b32 v11, 3, v0"); a("v_lshl_add_u32 v10, v11, 4, v10")
    a("s_lshl_b32 s36, s21, 20")
    a("s_lshl_b32 s42, s20, 6")
    a("s_add_u32 s36, s36, s42")
    a("v_add_u32 v10, s36, v10")
    a("s_lshl_b32 s43, s21, 14")
    def wdma(base, buf):
        a("v_mov_b32 v11, v10")
        for i in range(8):
            a(f"s_add_u32 m0, s43, {buf*8192 + i*1024}")
            a("s_nop 0")
            a(f"global_load_lds_dwordx4 v11, {base}")
            if i < 7: a("v_add_u32 v11, 0x20000, v11")
    wdma("s[4:5]", 0); wdma("s[6:7]", 1)
    a("v_lshrrev_b32 v12, 5, v0"); a("v_lshlrev_b32 v12, 4, v12")
    a("v_bfe_u32 v13, v0, 4, 1"); a("v_lshl_add_u32 v12, v13, 2, v12")
    a("v_bfe_u32 v13, v0, 2, 1"); a("v_add_u32 v12, v12, v13")
    a("v_bfe_u32 v13, v0, 3, 1"); a("v_lshl_add_u32 v12, v13, 3, v12")
    a("v_lshlrev_b32 v12, 6, v12"); a("v_and_b32 v13, 3, v0"); a("v_lshl_add_u32 v12, v13, 3, v12")
    a("v_add_u32 v12, s43, v12")
    def wread(typ, buf):
        for t in range(2):
            for ks in range(2):
                for pp in range(4):
                    hi, lo = pp >> 1, pp & 1
                    reg = ((typ*2 + t)*2 + ks)*8 + pp*2
                    off = buf*8192 + (64*ks + 32*hi + 2*lo)*64 + t*32
                    a(f"ds_read_b64_tr_b16 a[{reg}:{reg+1}], v12 offset:{off}")
                a("s_waitcnt lgkmcnt(4)")
        a("s_waitcnt lgkmcnt(0)")
    a("s_waitcnt vmcnt(8)"); wread(0, 0)
    wdma("s[8:9]", 0)
    a("s_waitcnt vmcnt(8)"); wread(1, 1)
    a("v_lshrrev_b32 v10, 3, v0"); a("v_lshlrev_b32 v10, 11, v10"); a("v_and_b32 v11, 7, v0"); a("v_lshl_add_u32 v10, v11, 4, v10")
    a("s_lshl_b32 s36, s18, 18"); a("s_lshl_b32 s42, s19, 9"); a("s_add_u32 s36, s36, s42")
    a("s_and_b32 s42, s21, 3"); a("s_lshl_b32 s42, s42, 7"); a("s_add_u32 s36, s36, s42")
    a("v_add_u32 v10, s36, v10")
    def odma(half):
        a(f"v_add_u32 v11, {half*64*2048}, v10")
        for i in range(8):
            a(f"s_add_u32 m0, s43, {half*8192 + i*1024}")
            a("s_nop 0")
            a("global_load_lds_dwordx4 v11, s[10:11]")
            if i < 7: a("v_add_u32 v11, 0x4000, v11")
    a("s_cmp_lt_u32 s21, 4"); a(f"s_cbranch_scc0 {L('wv_only')}")
    odma(1)
    a("s_waitcnt vmcnt(8)"); wread(2, 0)
    odma(0)
    a("v_lshrrev_b32 v12, 2, v0")
    a("v_lshlrev_b32 v12, 7, v12"); a("v_and_b32 v13, 3, v0"); a("v_lshl_add_u32 v12, v13, 4, v12"); a("v_add_u32 v12, s43, v12")
    a("s_waitcnt vmcnt(0)")
    def wo_reg(ct, jj):
        return f"v[{96+(ct*4+jj)*4}:{96+(ct*4+jj)*4+3}]"
    for ct in range(4):
        for jj in range(4):
            for lo in range(2):
                base = 96 + (ct*4 + jj)*4 + lo*2
                off = (32*jj + 16*lo)*128 + (ct >> 1)*64 + (ct & 1)*8
                a(f"ds_read_b64_tr_b16 v[{base}:{base+1}], v12 offset:{off}")
        a("s_waitcnt lgkmcnt(0)")
    a(f"s_branch {L('wdone')}")
    a.label(L('wv_only'))
    a("s_waitcnt vmcnt(0)"); wread(2, 0)
    a.label(L('wdone'))

    a("s_and_b32 s36, s21, 3"); a("s_lshl_b32 s36, s36, 11"); a("s_lshr_b32 s42, s21, 2"); a("s_lshl_b32 s42, s42, 14"); a("s_add_u32 s36, s36, s42")
    a("v_add_u32 v1, s36, v6")
    a("v_and_b32 v2, 8, v0"); a("v_cmp_eq_u32 vcc, 0, v2"); a("v_mov_b32 v2, 0xeeee"); a("v_mov_b32 v3, 0x4444"); a("s_nop 1")
    a("v_cndmask_b32 v2, v2, v3, vcc")
    a("v_bfe_u32 v3, v0, 4, 1"); a("v_lshlrev_b32 v3, 9, v3"); a("v_lshrrev_b32 v4, 5, v0"); a("v_lshl_add_u32 v3, v4, 8, v3")
    a("v_and_b32 v4, 15, v0"); a("v_lshl_add_u32 v3, v4, 4, v3"); a("s_mul_i32 s36, s21, 3072"); a("v_add_u32 v3, s36, v3")
    a("s_lshl_b32 s36, s21, 9"); a("v_lshlrev_b32 v4, 3, v0"); a("v_add_u32 v4, s36, v4")
    a("v_and_b32 v5, 1, v0"); a("v_lshlrev_b32 v5, 1, v5"); a("v_bfe_u32 v7, v0, 1, 1"); a("v_add_u32 v5, v5, v7"); a("v_lshlrev_b32 v5, 4, v5")
    a("v_bfe_u32 v7, v0, 2, 1"); a("v_lshl_add_u32 v5, v7, 2, v5"); a("v_lshrrev_b32 v7, 5, v0"); a("v_lshl_add_u32 v5, v7, 3, v5")
    a("s_lshl_b32 s36, s19, 10"); a("s_lshl_b32 s42, s21, 6"); a("s_add_u32 s36, s36, s42")
    a("s_lshl_b32 s44, s19, 9"); a("s_add_u32 s44, s44, s42"); a("s_add_u32 s44, s44, 3840")
    a("s_cmp_lt_u32 s21, 4"); a("s_cselect_b32 s36, s36, s44"); a("s_cselect_b32 s42, 8, 7")
    a("v_bfe_u32 v7, v0, 3, 2"); a("v_lshlrev_b32 v7, s42, v7"); a("v_add_u32 v5, v5, v7")
    a("v_add_u32 v5, s36, v5")
    a("s_mov_b32 s40, 0x33333333"); a("s_mov_b32 s41, 0x33333333")
    a(f"s_add_u32 s28, s26, {MEMOFF}"); a("s_addc_u32 s29, s27, 0")
    a(f"s_add_u32 s30, s26, {MEMOFF + 32768}"); a("s_addc_u32 s31, s27, 0")
    a(f"s_add_u32 s32, s16, {WS_QKVM}"); a("s_addc_u32 s33, s17, 0"); a("s_mul_i32 s36, s18, 6144"); a("s_add_u32 s32, s32, s36"); a("s_addc_u32 s33, s33, 0")
    a("s_mov_b32 s22, 0"); a("s_mov_b32 s51, 1")
    a("s_and_b32 s45, s20, 63"); a("s_lshl_b32 s45, s45, 7"); a("s_lshr_b32 s36, s20, 6"); a("s_lshl_b32 s36, s36, 14"); a("s_add_u32 s45, s45, s36")

    a("s_cmp_lt_u32 s21, 4"); a(f"s_cbranch_scc1 {L('setup_vo')}")
    a("s_cmp_eq_u32 s21, 6"); a(f"s_cbranch_scc1 {L('setup_sm')}")
    a("s_cmp_eq_u32 s21, 7"); a(f"s_cbranch_scc1 {L('setup_m')}")
    a("s_and_b32 s36, s20, 1"); a("s_lshl_b32 s36, s36, 12"); a("s_lshr_b32 s42, s20, 1"); a("s_lshl_b32 s42, s42, 14"); a("s_add_u32 s36, s36, s42")
    a("v_add_u32 v11, s36, v6")
    a("v_and_b32 v12, 7, v0"); a("v_lshlrev_b32 v12, 4, v12"); a("v_bfe_u32 v13, v0, 4, 1"); a("v_lshl_add_u32 v12, v13, 3, v12"); a("v_add_u32 v12, s45, v12")
    a("v_and_b32 v48, 1, v0"); a("v_lshlrev_b32 v48, 4, v48"); a("v_mov_b32 v49, 0x3f80"); a("v_lshlrev_b32 v48, v48, v49")
    a("v_bfe_u32 v49, v0, 1, 3")
    for q in range(4):
        a(f"v_cmp_eq_u32 vcc, {q}, v49"); a("s_nop 1"); a(f"v_cndmask_b32 v{68+q}, 0, v48, vcc")
    a(f"v_mov_b32 v14, {L_FLAG + 4}")
    a(f"v_mov_b32 v13, {L_P + 1024 + 8}")
    if kvwait:
        a("s_mov_b32 s36, 0"); kv_poll('kv0', "s36")
    xdma("s[38:39]", "s37")
    a("s_add_u32 s34, s38, 0x40000"); a("s_addc_u32 s35, s39, 0"); a("s_add_u32 s36, s37, 8192")
    xdma("s[34:35]", "s36")
    a("s_waitcnt vmcnt(0)"); a("s_barrier")
    a(f"s_branch {L('zero')}")

    a.label(L('setup_m'))
    a(f"v_mov_b32 v13, {L_FLAG}")
    a("v_add_u32 v8, s45, v6")
    a("s_lshl_b32 s36, s19, 10"); a("v_add_u32 v9, s36, v6")
    a("s_lshl_b32 s36, s19, 9"); a("s_add_u32 s36, s36, 4096"); a("v_and_b32 v10, 0x1ff, v6"); a("v_add_u32 v10, s36, v10")
    a("global_load_dwordx4 v[48:51], v9, s[32:33] sc1"); a("global_load_dwordx4 v[52:55], v10, s[32:33] sc1")
    a("v_lshlrev_b32 v11, 11, v0"); a("s_lshl_b32 s36, s20, 4"); a("v_add_u32 v11, s36, v11")
    a("s_mov_b64 exec, 0xff")
    a("global_load_dwordx4 v[56:59], v11, s[12:13]")
    a("s_waitcnt vmcnt(0)")
    for i in range(4): a(f"v_min_u32 v{56+i}, -2, v{56+i}")
    a("global_store_dwordx4 v8, v[56:59], s[28:29] sc1")
    a("s_mov_b64 exec, -1")
    for i in range(4): a(f"v_mov_b32 v{68+i}, -1")
    a("s_waitcnt vmcnt(0)"); a("s_barrier")
    a(f"s_branch {L('zero')}")

    a.label(L('setup_sm'))
    a("v_mov_b32 v8, v6")
    a(f"v_add_u32 v9, {L_P}, v6"); a(f"v_add_u32 v14, {L_KX}, v6")
    a("v_cmp_gt_u32 vcc, 32, v0"); a("v_mov_b32 v76, 0xff800000"); a("v_mov_b32 v77, 0"); a("s_nop 1")
    a("v_cndmask_b32 v76, v77, v76, vcc")
    for i in range(1, 4): a(f"v_mov_b32 v{76+i}, v76")
    a("s_mov_b32 s46, 0x3e0293ee")
    a("s_barrier")
    for i in range(4): a(f"v_mov_b32 v{84+i}, 0")
    a("ds_write_b128 v9, v[84:87] offset:1024")
    a(f"v_mov_b32 v10, {L_FLAG}"); a("ds_write_b64 v10, v[84:85]")
    for i in range(8): a(f"ds_read_b128 v[{96+4*i}:{99+4*i}], v14 offset:{1024*i}")
    a("v_xor_b32 v14, 0x2000, v14")
    a("s_setprio 2")
    a(f"s_branch {L('zero')}")

    a.label(L('setup_vo'))
    a("v_and_b32 v8, 7, v0"); a("v_lshlrev_b32 v8, 4, v8"); a("v_lshrrev_b32 v9, 4, v0"); a("v_lshl_add_u32 v8, v9, 7, v8"); a("v_add_u32 v8, 0x1000, v8")
    a("s_lshl_b32 s36, s19, 5"); a("s_lshl_b32 s42, s21, 3"); a("s_add_u32 s36, s36, s42")
    a("v_add_u32 v9, s36, v9"); a("v_and_b32 v10, 1, v9"); a("v_lshlrev_b32 v10, 12, v10"); a("v_lshrrev_b32 v9, 1, v9"); a("v_lshl_add_u32 v9, v9, 14, v10")
    a("v_and_b32 v10, 7, v0"); a("v_lshl_add_u32 v9, v10, 4, v9"); a("s_lshl_b32 s36, s18, 7"); a("v_add_u32 v9, s36, v9")
    a("v_add_u32 v10, 0x8000, v9")
    a(f"v_add_u32 v13, {L_P}, v6"); a(f"v_add_u32 v14, {L_VX}, v6")
    a("s_barrier")
    def u_load():
        for i in range(8): a(f"ds_read_b128 v[{16+4*i}:{19+4*i}], v14 offset:{1024*i}")
        a("v_xor_b32 v14, 0x2000, v14")
    def u_half(hf):
        for jj in range(4):
            for c2 in range(2):
                for kt in range(2):
                    d = 64 + (c2*2 + kt)*4
                    A = 16 + (kt*4 + jj)*4
                    a(f"v_mfma_f32_16x16x32_bf16 v[{d}:{d+3}], v[{A}:{A+3}], {wo_reg(2*hf+c2, jj)}, " + ("0" if jj == 0 else f"v[{d}:{d+3}]"))
        a("s_nop 7")
        for c2 in range(2):
            for kt in range(2):
                d = 64 + (c2*2 + kt)*4
                u = 80 + (2*hf + c2)*4 + kt*2
                a(f"v_cvt_pk_bf16_f32 v{u}, v{d}, v{d+1}"); a(f"v_cvt_pk_bf16_f32 v{u+1}, v{d+2}, v{d+3}")
    u_load(); a("s_waitcnt lgkmcnt(0)"); u_half(0); u_half(1)

    a.label(L('zero'))
    for i in range(24): a(f"v_mov_b32 v{24+i}, 0")
    if prof:
        for k in range(8): a(f"s_mov_b32 s{60+k}, 0")
        a("s_memtime s[56:57]"); a("s_waitcnt lgkmcnt(0)"); a("s_mov_b32 s59, s56")
    a.label(L('loop'))
    DM = PAR["DM"]
    for _ in range(PAR["MDEL"]): a("s_nop 15")
    msets = [16, 48, 56][:DM]
    def mload(b):
        a(f"global_load_dwordx4 v[{b}:{b+3}], v1, s[28:29] sc1")
        a(f"global_load_dwordx4 v[{b+4}:{b+7}], v1, s[28:29] offset:1024 sc1")
    for d in range(DM - 1):
        mload(msets[d])
        for _ in range(PAR["MGAP"]): a("s_nop 15")
    a.label(L('mpoll'))
    for d in range(DM):
        mload(msets[(d + DM - 1) % DM])
        a(f"s_waitcnt vmcnt({2*(DM-1)})")
        b = msets[d]
        a(f"v_max3_u32 v64, v{b}, v{b+1}, v{b+2}"); a(f"v_max3_u32 v65, v{b+3}, v{b+4}, v{b+5}"); a(f"v_max3_u32 v64, v64, v{b+6}, v{b+7}"); a("v_max_u32 v64, v64, v65")
        a("v_cmp_eq_u32 vcc, -1, v64")
        a(f"s_cbranch_vccz {L('memok%d' % d)}")
    emit_spin_guard(a, L('mpoll'), L('fail'))
    def pair(p): return [(2*p, 0), (2*p+1, 0), (2*p, 1), (2*p+1, 1)]
    def swp(p, i): a(f"v_permlane32_swap_b32 v{24+8*p+i}, v{28+8*p+i}")
    def add(p, i): a(f"v_add_f32 v{24+8*p+i}, v{24+8*p+i}, v{28+8*p+i}")
    for d in reversed(range(DM)):
        mb = msets[d]
        a.label(L('memok%d' % d))
        stamp(a, prof, 0)
        def sm(tt, ks):
            dd = 24 + tt*4; b = (tt*2 + ks)*8
            a(f"v_smfmac_f32_16x16x64_bf16 v[{dd}:{dd+3}], v[{mb+4*ks}:{mb+3+4*ks}], a[{b}:{b+7}], v2")
        for t, k in pair(0): sm(t, k)
        for t, k in pair(1): sm(t, k)
        a("s_nop 3")
        for i, (t, k) in enumerate(pair(2)):
            sm(t, k); swp(0, i)
            if i > 0: add(0, i-1)
        if d > 0: a(f"s_branch {L('p1tail')}")
    a.label(L('p1tail'))
    add(0, 3)
    a("ds_write_b128 v3, v[24:27]")
    for i in range(4): swp(1, i)
    for i in range(4): add(1, i)
    a("ds_write_b128 v3, v[32:35] offset:1024")
    for i in range(4): swp(2, i)
    for i in range(4): add(2, i)
    a("ds_write_b128 v3, v[40:43] offset:2048")
    a("s_waitcnt vmcnt(0) lgkmcnt(0)")
    a("s_barrier")
    stamp(a, prof, 1)
    a("s_cmp_eq_u32 s21, 6"); a(f"s_cbranch_scc1 {L('sm')}")
    a("s_cmp_eq_u32 s21, 7"); a(f"s_cbranch_scc1 {L('misc')}")
    for p in range(8): a(f"ds_read_b64 v[{48+2*p}:{49+2*p}], v4 offset:{3072*p}")
    a("s_waitcnt lgkmcnt(6)"); a("v_pk_add_f32 v[48:49], v[48:49], v[50:51]")
    a("s_waitcnt lgkmcnt(4)"); a("v_pk_add_f32 v[52:53], v[52:53], v[54:55]")
    a("s_waitcnt lgkmcnt(2)"); a("v_pk_add_f32 v[56:57], v[56:57], v[58:59]"); a("v_pk_add_f32 v[48:49], v[48:49], v[52:53]")
    a("s_waitcnt lgkmcnt(0)"); a("v_pk_add_f32 v[60:61], v[60:61], v[62:63]")
    a("v_pk_add_f32 v[48:49], v[48:49], v[56:57]")
    a("v_pk_add_f32 v[48:49], v[48:49], v[60:61]")
    a("v_cndmask_b32 v50, v48, v49, s[40:41]")
    a("s_nop 1")
    a("v_mov_b32_dpp v51, v50 quad_perm:[2,3,0,1] row_mask:0xf bank_mask:0xf")
    a("v_cndmask_b32 v52, v51, v48, s[40:41]")
    a("v_cndmask_b32 v53, v49, v51, s[40:41]")
    a("v_cvt_pk_bf16_f32 v7, v52, v53")
    a("v_min_u32 v7, -2, v7")
    a(f"s_cmp_eq_u32 s22, {NSTEP-1}"); a(f"s_cbranch_scc1 {L('last_pub')}")
    a(f"global_store_dword v5, v7, s[32:33] {pl}")
    a("s_cmp_lt_u32 s21, 4"); a(f"s_cbranch_scc0 {L('vpub')}")
    stamp(a, prof, 2)
    for i in range(4): a(f"v_mov_b32 v{44+i}, 0x3f803f80")
    a("s_add_u32 s47, s22, 1")
    a("s_and_b32 s23, s22, 1")
    a("s_waitcnt vmcnt(0)")
    a.label(L('vpoll'))
    for jj in range(4): a(f"global_load_dwordx4 v[{48+4*jj}:{51+4*jj}], v8, s[32:33] offset:{512*jj} sc1")
    a("s_waitcnt vmcnt(0)")
    def tm(ct, jj):
        d = 64 + ct*4
        a(f"v_mfma_f32_16x16x32_bf16 v[{d}:{d+3}], v[{48+4*jj}:{51+4*jj}], {wo_reg(ct, jj)}, " + ("0" if jj == 0 else f"v[{d}:{d+3}]"))
    tm(0, 0)
    a("v_max3_u32 v15, v48, v49, v50"); a("v_max3_u32 v16, v51, v52, v53"); a("v_max3_u32 v15, v15, v54, v55")
    tm(1, 0)
    a("v_max3_u32 v16, v16, v56, v57"); a("v_max3_u32 v15, v15, v58, v59"); a("v_max3_u32 v16, v16, v60, v61")
    tm(2, 0)
    a("v_max3_u32 v15, v15, v62, v63"); a("v_max_u32 v15, v15, v16")
    a("v_cmp_eq_u32 vcc, -1, v15")
    a(f"s_cbranch_vccz {L('vok')}")
    emit_spin_guard(a, L('vpoll'), L('fail'))
    a.label(L('vok'))
    tm(3, 0)
    for jj in range(1, 4):
        for ct in range(4): tm(ct, jj)
    a("s_nop 4")
    for ct in range(4):
        if ct == 3: a("s_nop 1")
        a(f"v_cvt_pk_bf16_f32 v{24+2*ct}, v{64+4*ct}, v{65+4*ct}"); a(f"v_cvt_pk_bf16_f32 v{25+2*ct}, v{66+4*ct}, v{67+4*ct}")
    if plain and "norestore" not in OPT: a("global_store_dword v5, v7, s[32:33] sc1")
    stamp(a, prof, 3)
    a("s_mov_b32 s36, 0")
    a.label(L('pspin'))
    a("ds_read_b128 v[36:39], v13 offset:1024")
    a("ds_read_b128 v[32:35], v13")
    a("s_add_u32 s36, s36, 1")
    a("s_waitcnt lgkmcnt(1)")
    a("v_cmp_ne_u32 vcc, s47, v38")
    a(f"s_cbranch_vccz {L('pok')}")
    a("s_and_b32 s42, s36, 15"); a(f"s_cbranch_scc1 {L('pspin')}")
    emit_spin_guard(a, L('pspin'), L('fail'))
    a.label(L('pok'))
    a("s_waitcnt lgkmcnt(0)")
    stamp(a, prof, 4)
    a("v_mfma_f32_16x16x32_bf16 v[40:43], v[44:47], v[32:35], 0")
    for ct in range(4):
        d = 64 + 4*ct
        a(f"v_mfma_f32_16x16x32_bf16 v[{d}:{d+3}], v[{80+4*ct}:{83+4*ct}], v[32:35], 0")
    a("s_nop 1")
    a("v_mfma_f32_16x16x16_bf16 v[40:43], v[44:45], v[36:37], v[40:43]")
    for ct in range(4):
        d = 64 + 4*ct
        a(f"v_mfma_f32_16x16x16_bf16 v[{d}:{d+3}], v[{24+2*ct}:{25+2*ct}], v[36:37], v[{d}:{d+3}]")
    a("s_nop 3")
    a("v_rcp_f32 v40, v40")
    a("s_mov_b32 exec_lo, 0x00ff00ff"); a("s_mov_b32 exec_hi, 0x00ff00ff")
    a("v_mov_b32 v41, v40")
    for pr in range(2):
        if pr == 1: a("s_nop 0")
        for c2 in range(2):
            d = 64 + 4*(2*pr + c2)
            a(f"v_pk_mul_f32 v[{d}:{d+1}], v[{d}:{d+1}], v[40:41]"); a(f"v_pk_mul_f32 v[{d+2}:{d+3}], v[{d+2}:{d+3}], v[40:41]")
        for c2 in range(2):
            d = 64 + 4*(2*pr + c2); o = 48 + 4*pr + 2*c2
            a(f"v_cvt_pk_bf16_f32 v{o}, v{d}, v{d+1}"); a(f"v_cvt_pk_bf16_f32 v{o+1}, v{d+2}, v{d+3}")
        for i in range(4): a(f"v_and_or_b32 v{48+4*pr+i}, v{48+4*pr+i}, -2, s23")
        a(f"global_store_dwordx4 v{9+pr}, v[{48+4*pr}:{51+4*pr}], s[26:27] sc1")
    a("s_mov_b64 exec, -1")
    stamp(a, prof, 5)
    a("s_cmp_eq_u32 s21, 0"); a(f"s_cbranch_scc0 {L('vo_u')}")
    if PAR["RACK"]: a("s_waitcnt vmcnt(0)")
    a("v_mov_b32 v15, s47"); a(f"v_mov_b32 v16, {L_FLAG + 4}"); a("ds_write_b32 v16, v15")
    a.label(L('vo_u'))
    u_load(); a("s_waitcnt lgkmcnt(0)")
    if "nou" not in OPT:
        u_half(0); u_half(1)
    a(f"s_branch {L('next')}")

    a.label(L('vpub'))
    if plain:
        a("s_add_u32 s47, s22, 1"); a("s_mov_b32 s36, 0")
        a.label(L('vwait'))
        a("ds_read_b32 v16, v13"); a("s_add_u32 s36, s36, 1"); a("s_waitcnt lgkmcnt(0)")
        a("v_cmp_ne_u32 vcc, s47, v16"); a(f"s_cbranch_vccz {L('vgo')}")
        a("s_cmp_lt_u32 s36, 24"); a(f"s_cbranch_scc1 {L('vwait')}")
        a.label(L('vgo'))
        if "norestore" not in OPT: a("global_store_dword v5, v7, s[32:33] sc1")
    a("s_cmp_eq_u32 s21, 4"); a(f"s_cbranch_scc0 {L('next')}")
    a("s_add_u32 s47, s22, 1"); a("s_and_b32 s23, s22, 1")
    a.label(L('rwait'))
    a("ds_read_b32 v16, v14"); a("s_waitcnt lgkmcnt(0)")
    a("v_cmp_ne_u32 vcc, s47, v16"); a(f"s_cbranch_vccz {L('rgo')}")
    emit_spin_guard(a, L('rwait'), L('fail'))
    a.label(L('rgo'))
    stamp(a, prof, 5)
    for _ in range(PAR["RDEL"]): a("s_nop 15")
    DR = PAR["DR"]
    rsets = [48, 80, 96, 112][:DR]
    def rload(b):
        for i in range(4): a(f"global_load_dwordx4 v[{b+4*i}:{b+3+4*i}], v11, s[26:27] offset:{1024*i} sc1")
    def rchk(op, b):
        a(f"v_mfma_f32_16x16x32_bf16 v[64:67], v[68:71], v[{b}:{b+3}], 0")
        a(f"v_bitop3_b32 v15, v{b}, v{b+1}, v{b+2} bitop3:{op}"); a(f"v_bitop3_b32 v72, v{b+3}, v{b+4}, v{b+5} bitop3:{op}")
        a(f"v_mfma_f32_16x16x32_bf16 v[64:67], v[68:71], v[{b+4}:{b+7}], v[64:67]")
        a(f"v_bitop3_b32 v15, v15, v{b+6}, v{b+7} bitop3:{op}"); a(f"v_bitop3_b32 v72, v72, v{b+8}, v{b+9} bitop3:{op}")
        a(f"v_mfma_f32_16x16x32_bf16 v[64:67], v[68:71], v[{b+8}:{b+11}], v[64:67]")
        a(f"v_bitop3_b32 v15, v15, v{b+10}, v{b+11} bitop3:{op}"); a(f"v_bitop3_b32 v72, v72, v{b+12}, v{b+13} bitop3:{op}")
        a(f"v_mfma_f32_16x16x32_bf16 v[64:67], v[68:71], v[{b+12}:{b+15}], v[64:67]")
        a(f"v_bitop3_b32 v15, v15, v{b+14}, v{b+15} bitop3:{op}"); a(f"v_bitop3_b32 v15, v15, v72, v72 bitop3:{op}")
        a("v_and_b32 v15, 1, v15")
        a("v_cmp_ne_u32 vcc, s23, v15")
        a(f"s_cbranch_vccz {L('rok')}")
    for d in range(DR - 1):
        rload(rsets[d])
        for _ in range(PAR["RGAP"]): a("s_nop 15")
    a("s_cmp_eq_u32 s23, 0"); a(f"s_cbranch_scc0 {L('rpoll1')}")
    for tg, op in ((0, "0xfe"), (1, "0x80")):
        a.label(L('rpoll%d' % tg))
        for d in range(DR):
            rload(rsets[(d + DR - 1) % DR])
            a(f"s_waitcnt vmcnt({4*(DR-1)})")
            rchk(op, rsets[d])
        emit_spin_guard(a, L('rpoll%d' % tg), L('fail'))
    a.label(L('rok'))
    a("s_nop 2")
    for i in range(4): a(f"v_add_f32_dpp v{72+i}, v{64+i}, v{64+i} row_ror:8 row_mask:0xf bank_mask:0xf")
    a("s_mov_b64 exec, 0x00ff00ff")
    a("v_cvt_pk_bf16_f32 v72, v72, v73"); a("v_cvt_pk_bf16_f32 v73, v74, v75")
    a("v_min_u32 v72, -2, v72"); a("v_min_u32 v73, -2, v73")
    a("global_store_dwordx2 v12, v[72:73], s[30:31] sc1")
    a("s_mov_b64 exec, -1")
    stamp(a, prof, 6)
    a(f"s_branch {L('next' if PAR['MACK'] else 'next_noack')}")

    a.label(L('misc'))
    a(f"s_cmp_eq_u32 s22, {NSTEP-1}"); a(f"s_cbranch_scc1 {L('end')}")
    a("s_add_u32 s47, s22, 1")
    a("s_add_u32 s36, s22, 2"); a("s_min_u32 s36, s36, 63"); a("s_lshl_b32 s36, s36, 18")
    a("s_add_u32 s34, s38, s36"); a("s_addc_u32 s35, s39, 0")
    a(f"s_sub_u32 s48, s34, {WS_VX - WS_KX}"); a("s_subb_u32 s49, s35, 0")
    a("s_and_b32 s36, s22, 1"); a("s_lshl_b32 s36, s36, 13"); a(f"s_add_u32 s50, s36, {L_KX}"); a(f"s_add_u32 s36, s36, {L_VX}")
    a.label(L('mwait'))
    a("ds_read_b32 v16, v13"); a("s_waitcnt lgkmcnt(0)")
    a("v_cmp_ne_u32 vcc, s47, v16"); a(f"s_cbranch_vccz {L('mgo')}")
    emit_spin_guard(a, L('mwait'), L('fail'))
    a.label(L('mgo'))
    if kvwait:
        a("s_add_u32 s53, s22, 2"); a("s_min_u32 s53, s53, 63"); a("s_lshr_b32 s53, s53, 3")
        a("s_cmp_lt_u32 s53, s51"); a(f"s_cbranch_scc1 {L('kvhave')}")
        kv_poll('kv1', "s53")
        a("s_add_u32 s51, s53, 1")
        a.label(L('kvhave'))
    if "nodma" not in OPT:
        xdma("s[48:49]", "s50", 14); xdma("s[34:35]", "s36", 14)
    a(f"s_add_u32 s34, s32, {32*6144}"); a("s_addc_u32 s35, s33, 0")
    a("global_load_dwordx4 v[48:51], v9, s[34:35] sc1"); a("global_load_dwordx4 v[52:55], v10, s[34:35] sc1")
    a("s_add_u32 s36, s22, 3"); a("s_and_b32 s36, s36, 3"); a("s_lshl_b32 s36, s36, 15"); a(f"s_add_u32 s36, s36, {MEMOFF}")
    a("s_add_u32 s34, s26, s36"); a("s_addc_u32 s35, s27, 0")
    a("s_mov_b64 exec, 0xff")
    a("global_store_dwordx4 v8, v[68:71], s[34:35] sc1")
    a("s_mov_b64 exec, -1")
    a(f"s_branch {L('next')}")

    a.label(L('sm'))
    a(f"s_cmp_eq_u32 s22, {NSTEP-1}"); a(f"s_cbranch_scc1 {L('end')}")
    a("s_add_u32 s47, s22, 1"); a("v_mov_b32 v86, s47")
    for _ in range(PAR["XDEL"]): a("s_nop 15")
    a.label(L('xpoll'))
    for jj in range(4): a(f"global_load_dwordx4 v[{48+4*jj}:{51+4*jj}], v8, s[32:33] offset:{1024*jj} sc1")
    a("s_waitcnt vmcnt(0)")
    def s_mfma(t, jj):
        X = f"v[{48+4*jj}:{51+4*jj}]"
        d = 64 + 4*t
        A = X if t == 2 else f"v[{96+(t*4+jj)*4}:{99+(t*4+jj)*4}]"
        C = f"v[{d}:{d+3}]" if jj else ("v[76:79]" if t == 2 else "0")
        a(f"v_mfma_f32_16x16x32_bf16 v[{d}:{d+3}], {A}, {X}, {C}")
    s_mfma(0, 0)
    a("v_max3_u32 v15, v48, v49, v50"); a("v_max3_u32 v16, v51, v52, v53"); a("v_max3_u32 v15, v15, v54, v55")
    s_mfma(1, 0)
    a("v_max3_u32 v16, v16, v56, v57"); a("v_max3_u32 v15, v15, v58, v59"); a("v_max3_u32 v16, v16, v60, v61")
    s_mfma(2, 0)
    a("v_max3_u32 v15, v15, v62, v63"); a("v_max_u32 v15, v15, v16")
    a("v_cmp_eq_u32 vcc, -1, v15")
    a(f"s_cbranch_vccz {L('xok')}")
    emit_spin_guard(a, L('xpoll'), L('fail'))
    a.label(L('xok'))
    stamp(a, prof, 2)
    for t in range(3):
        for jj in range(1, 4):
            s_mfma(t, jj)
            if t == 0 and jj == 1: a("ds_write_b32 v10, v86")
    a("s_nop 1")
    a("v_max3_f32 v16, v64, v65, v66"); a("v_max_f32 v16, v16, v67")
    a("s_nop 0")
    a("v_max3_f32 v16, v16, v68, v69"); a("v_max3_f32 v16, v16, v70, v71")
    a("s_nop 0")
    a("v_max3_f32 v16, v16, v72, v73"); a("v_max3_f32 v16, v16, v74, v75")
    a("v_mov_b32 v17, v16"); a("s_nop 1"); a("v_permlane16_swap_b32 v16, v17"); a("v_max_f32 v16, v16, v17")
    a("v_mov_b32 v17, v16"); a("s_nop 1"); a("v_permlane32_swap_b32 v16, v17"); a("v_max_f32 v16, v16, v17")
    a("v_mul_f32 v16, s46, v16")
    for i in range(12): a(f"v_fma_f32 v{64+i}, v{64+i}, s46, -v16")
    for i in range(8): a(f"v_exp_f32 v{64+i}, v{64+i}")
    for i in range(8, 12):
        a(f"v_exp_f32 v{64+i}, v{64+i}")
        k = i - 8
        a(f"v_cvt_pk_bf16_f32 v{80+k}, v{64+2*k}, v{65+2*k}")
    a("ds_write_b128 v9, v[80:83]")
    a("v_cvt_pk_bf16_f32 v84, v72, v73"); a("v_cvt_pk_bf16_f32 v85, v74, v75")
    a("ds_write_b128 v9, v[84:87] offset:1024")
    stamp(a, prof, 3)
    for i in range(8): a(f"ds_read_b128 v[{96+4*i}:{99+4*i}], v14 offset:{1024*i}")
    a("v_xor_b32 v14, 0x2000, v14")

    for nm in ('next', 'next_noack'):
        a.label(L(nm))
        for i in range(24): a(f"v_mov_b32 v{24+i}, 0")
        a("s_add_u32 s22, s22, 1")
        a("s_mov_b64 s[28:29], s[30:31]")
        a("s_add_u32 s36, s22, 1"); a("s_and_b32 s36, s36, 3"); a("s_lshl_b32 s36, s36, 15"); a(f"s_add_u32 s36, s36, {MEMOFF}")
        a("s_add_u32 s30, s26, s36"); a("s_addc_u32 s31, s27, 0")
        a(f"s_add_u32 s32, s32, {32*6144}"); a("s_addc_u32 s33, s33, 0")
        if nm == 'next': a("s_waitcnt vmcnt(0) lgkmcnt(0)")
        a("s_barrier")
        stamp(a, prof, 7)
        a(f"s_branch {L('loop')}")

    a.label(L('last_pub'))
    a("global_store_dword v5, v7, s[32:33] sc1")
    a(f"s_branch {L('end')}")
    a.label(L('fail'))
    a("v_mov_b32 v16, 0"); a("v_mov_b32 v17, 0xdead"); a("global_store_dword v16, v17, s[14:15] offset:252")
    a.label(L('end'))
    if prof:
        a("s_lshl_b32 s36, s20, 3"); a("s_add_u32 s36, s36, s21"); a("s_lshl_b32 s36, s36, 5"); a(f"s_add_u32 s36, s36, {200<<20}")
        a("v_mov_b32 v16, s36")
        for k in range(8): a(f"v_mov_b32 v{24+k}, s{60+k}")
        a("s_mov_b64 exec, 1")
        a("global_store_dwordx4 v16, v[24:27], s[16:17]"); a("global_store_dwordx4 v16, v[28:31], s[16:17] offset:16")
    a("s_endpgm")
```

```python
import sys, os
sys.path.insert(0, os.path.dirname(__file__))
from asmgen import *
import gemm, rec
from gemm import acc, R

NAME = "concat_heads__linear_attn_block__memory_aug_recurrent_mem_tr__prompt"
WS_O   = 48 << 20
WS_OA  = 64 << 20
WS_KVP = 68 << 20
WS_PAR = 70 << 20
D_OVF, D_AKV, D_KV, D_AO, D_O = 32, 36, 64, 96, 128
WSPIN = 400000
LOG2E = 0x3fb8aa3b
EPS = 0x358637bd
SCL = 0x3e0293ee


def load_ptrs(a):
    a("s_load_dwordx16 s[4:19], s[0:1], 0"); a("s_load_dwordx2 s[20:21], s[0:1], 64")
    a("s_load_dwordx4 s[24:27], s[0:1], 80"); a("s_load_dwordx2 s[28:29], s[0:1], 96")

def signal(a, off_sgpr_or_imm):
    lab = a.newlabel("sig")
    a("s_waitcnt vmcnt(0)"); a("s_barrier")
    a("s_cmp_lg_u32 s75, 0"); a(f"s_cbranch_scc1 {lab}")
    a(f"v_mov_b32 v16, {off_sgpr_or_imm}"); a("v_mov_b32 v17, 1")
    a("s_mov_b64 exec, 1")
    a("global_atomic_add v16, v17, s[26:27] sc1")
    a("s_mov_b64 exec, -1")
    a.label(lab)

def wait_cnt(a, off, target):
    lp, ok, done = a.newlabel("wl"), a.newlabel("wo"), a.newlabel("wd")
    a("s_cmp_lg_u32 s75, 0"); a(f"s_cbranch_scc1 {done}")
    a(f"v_mov_b32 v16, {off}")
    a.label(lp)
    a("global_load_dword v17, v16, s[26:27] sc1"); a("s_waitcnt vmcnt(0)")
    a(f"v_cmp_ne_u32 vcc, {target}, v17"); a(f"s_cbranch_vccz {ok}")
    a("s_sleep 8")
    a("s_add_u32 s46, s46, 1"); a(f"s_cmp_lt_u32 s46, {WSPIN}"); a(f"s_cbranch_scc1 {lp}")
    a("s_branch w_fail")
    a.label(ok)
    a("buffer_inv sc1"); a("s_waitcnt vmcnt(0)")
    a.label(done)
    a("s_barrier")

def phi(a, regs):
    for i in range(0, len(regs), 8):
        b = regs[i:i+8]
        for k, r in enumerate(b): a(f"v_mul_f32 v{16+k}, s40, v{r}")
        for k, r in enumerate(b): a(f"v_min_f32 v{16+k}, 0, v{16+k}")
        for k, r in enumerate(b): a(f"v_exp_f32 v{16+k}, v{16+k}")
        for k, r in enumerate(b): a(f"v_max_f32 v{r}, 0, v{r}")
        for k, r in enumerate(b): a(f"v_add_f32 v{r}, v{r}, v{16+k}")
        for k, r in enumerate(b): a(f"v_add_f32 v{r}, s41, v{r}")

def pack_frags(a):
    for tt in range(4):
        for jj in range(4):
            s = acc(tt, 2*jj); d = 32 + (tt*4 + jj)*4
            for i in range(4): a(f"v_cvt_pk_bf16_f32 v{d+i}, v{s+2*i}, v{s+2*i+1}")
def frag(tt, jj): return R('v', 32 + (tt*4 + jj)*4)

def task_g1(a):
    gemm.setup_a_rowmajor(a, 2048); gemm.setup_w(a, 8192)
    a("s_lshl_b32 s32, s31, 19"); a("s_add_u32 s60, s10, s32"); a("s_addc_u32 s61, s11, 0")
    a("s_cmp_lt_u32 s30, 16"); a("s_cselect_b32 s62, s16, s18"); a("s_cselect_b32 s63, s17, s19")
    a(f"s_cselect_b32 s33, {rec.WS_KX >> 20}, {rec.WS_VX >> 20}"); a("s_lshl_b32 s33, s33, 20")
    a("s_and_b32 s35, s30, 15"); a("s_lshl_b32 s32, s35, 9"); a("s_add_u32 s62, s62, s32"); a("s_addc_u32 s63, s63, 0")
    a("s_mov_b32 s66, 7")
    gemm.call(a, "core_T")
    a("s_lshl_b32 s32, s31, 3"); a("s_lshl_b32 s34, s72, 1"); a("s_add_u32 s32, s32, s34"); a("s_lshl_b32 s32, s32, 5")
    a("s_lshl_b32 s34, s35, 1"); a("s_add_u32 s32, s32, s34"); a("s_add_u32 s32, s32, s73"); a("s_lshl_b32 s32, s32, 13"); a("s_add_u32 s32, s32, s33")
    a("v_lshlrev_b32 v20, 4, v0"); a("v_add_u32 v20, s32, v20"); a("v_add_u32 v21, 0x1000, v20"); a("v_add_u32 v22, 0x40000, v20"); a("v_add_u32 v23, 0x41000, v20")
    gemm.epi_frag_store(a, "s[28:29]", "sc1")
    a("s_lshl_b32 s32, s31, 2"); a(f"s_add_u32 s32, s32, {D_KV}")
    signal(a, "s32")

def task_g4kv(a):
    def colmap(a, v):
        a(f"v_bfe_u32 v18, v{v}, 3, 1"); a("v_lshlrev_b32 v18, 11, v18")
        a(f"v_lshrrev_b32 v19, 4, v{v}"); a("v_lshl_add_u32 v18, v19, 7, v18")
        a(f"v_and_b32 v{v}, 7, v{v}"); a(f"v_lshl_add_u32 v{v}, v{v}, 4, v18")
    gemm.setup_a_rowmajor(a, 2048); gemm.setup_w(a, 6144, colmap)
    a("s_lshl_b32 s32, s31, 19"); a("s_add_u32 s60, s4, s32"); a("s_addc_u32 s61, s5, 0")
    a("s_lshl_b32 s32, s30, 8"); a("s_add_u32 s32, s32, 2048"); a("s_add_u32 s62, s6, s32"); a("s_addc_u32 s63, s7, 0")
    a("s_mov_b32 s66, 7")
    gemm.call(a, "core_N")
    a(f"s_mov_b32 s40, {LOG2E}"); a(f"s_mov_b32 s41, {EPS}")
    phi(a, [acc(tt, 0) + i for tt in range(4) for i in range(16)])
    for tp in range(2):
        for ft in range(8):
            x = acc(2*tp, ft); y = acc(2*tp+1, ft)
            a(f"v_cvt_pk_bf16_f32 v{x}, v{x}, v{x+1}"); a(f"v_cvt_pk_bf16_f32 v{x+1}, v{x+2}, v{x+3}")
            a(f"v_cvt_pk_bf16_f32 v{x+2}, v{y}, v{y+1}"); a(f"v_cvt_pk_bf16_f32 v{x+3}, v{y+2}, v{y+3}")
    for i in range(4): a(f"v_mov_b32 v{16+i}, 0x3f803f80")
    a("v_lshlrev_b32 v20, 4, v0"); a("s_mul_i32 s32, s73, 49152"); a("s_lshl_b32 s33, s72, 10"); a("s_add_u32 s32, s32, s33"); a("v_add_u32 v21, s32, v20")
    outb = lambda hd, et, dt: (64 if hd == 0 else 128) + (et*2 + dt)*4
    for tp in range(2):
        for hd in range(2):
            for et in range(3):
                for dt in range(2):
                    D = R('v', outb(hd, et, dt)); A = R('v', acc(2*tp, 2*hd + dt)); B = R('v', acc(2*tp, 4 + 2*hd + et)) if et < 2 else "v[16:19]"
                    a(f"v_mfma_f32_16x16x32_bf16 {D}, {A}, {B}, " + ("0" if tp == 0 else D))
    a("s_barrier")
    a("s_nop 7")
    for hd in range(2):
        for f in range(6):
            a(f"ds_write_b128 v21, {R('v', outb(hd, f >> 1, f & 1))} offset:{(hd*6 + f)*4096}")
    a("s_mul_i32 s32, s75, 12288"); a("v_add_u32 v21, s32, v20")
    a("s_waitcnt lgkmcnt(0)"); a("s_barrier")
    for k in range(3):
        for m in range(4): a(f"ds_read_b128 {R('v', 32 + (k*4 + m)*4)}, v21 offset:{k*4096 + m*1024}")
    a("s_lshl_b32 s32, s31, 5"); a("s_lshl_b32 s33, s30, 2"); a("s_add_u32 s32, s32, s33"); a("s_mul_i32 s32, s32, 6144")
    a("s_mul_i32 s33, s75, 3072"); a("s_add_u32 s32, s32, s33"); a(f"s_add_u32 s32, s32, {WS_KVP}"); a("v_add_u32 v22, s32, v20")
    a("s_waitcnt lgkmcnt(0)")
    for k in range(3):
        b = 32 + k*16
        for h in range(2):
            a(f"v_pk_add_f32 v[{b+2*h}:{b+2*h+1}], v[{b+2*h}:{b+2*h+1}], v[{b+4+2*h}:{b+5+2*h}]")
            a(f"v_pk_add_f32 v[{b+8+2*h}:{b+9+2*h}], v[{b+8+2*h}:{b+9+2*h}], v[{b+12+2*h}:{b+13+2*h}]")
        for h in range(2):
            a(f"v_pk_add_f32 v[{b+2*h}:{b+2*h+1}], v[{b+2*h}:{b+2*h+1}], v[{b+8+2*h}:{b+9+2*h}]")
        a(f"global_store_dwordx4 v22, {R('v', b)}, s[28:29] offset:{k*1024} sc1")
    signal(a, D_AKV)

def task_g4q(a):
    gemm.setup_a_rowmajor(a, 2048); gemm.setup_w(a, 6144)
    a("s_lshl_b32 s32, s31, 19"); a("s_add_u32 s60, s4, s32"); a("s_addc_u32 s61, s5, 0")
    a("s_lshl_b32 s32, s30, 9"); a("s_add_u32 s62, s6, s32"); a("s_addc_u32 s63, s7, 0")
    a("s_mov_b32 s66, 7")
    gemm.call(a, "core_T")
    a(f"s_mov_b32 s40, {LOG2E}"); a(f"s_mov_b32 s41, {EPS}")
    phi(a, list(range(32, 160)))
    pack_frags(a)
    wait_cnt(a, D_AKV, 64)
    a("v_lshlrev_b32 v16, 4, v0")
    for r in range(1, 8): a(f"v_add_u32 v{16+r}, {r*196608}, v16")
    a("s_lshl_b32 s32, s30, 3"); a("s_add_u32 s32, s32, s75"); a("s_mul_i32 s32, s32, 6144"); a(f"s_add_u32 s32, s32, {WS_KVP}")
    a("s_add_u32 s34, s28, s32"); a("s_addc_u32 s35, s29, 0")
    a("s_mul_i32 s32, s75, 3072"); a("v_add_u32 v24, s32, v16")
    for et in range(3):
        for r in range(8):
            for dt in range(2):
                a(f"global_load_dwordx4 {R('v', 96 + (r*2 + dt)*4)}, v{16+r}, s[34:35] offset:{dt*1024} sc1")
        a("s_add_u32 s34, s34, 2048"); a("s_addc_u32 s35, s35, 0")
        a("s_waitcnt vmcnt(0)")
        for step in (32, 16, 8):
            for i in range(0, step, 2):
                a(f"v_pk_add_f32 v[{96+i}:{97+i}], v[{96+i}:{97+i}], v[{96+step+i}:{97+step+i}]")
        for i in range(4): a(f"v_cvt_pk_bf16_f32 v{28+i}, v{96+2*i}, v{97+2*i}")
        a(f"ds_write_b128 v24, v[28:31] offset:{et*1024}")
    a("s_mul_i32 s32, s73, 12288"); a("v_add_u32 v24, s32, v16")
    a("s_waitcnt lgkmcnt(0)"); a("s_barrier")
    for i in range(12): a(f"ds_read_b128 {R('a', i*4)}, v24 offset:{i*1024}")
    gemm.lane_chunk(a, 25, 26)
    a("v_and_b32 v26, 15, v0"); a("v_lshl_add_u32 v25, v25, 4, v26"); a("v_lshlrev_b32 v25, 4, v25")
    a("s_lshl_b32 s32, s31, 4"); a("s_lshl_b32 s33, s72, 2"); a("s_add_u32 s32, s32, s33"); a("s_lshl_b32 s32, s32, 15")
    a("s_lshl_b32 s33, s30, 13"); a("s_add_u32 s32, s32, s33"); a("s_lshl_b32 s33, s73, 12"); a("s_add_u32 s32, s32, s33"); a(f"s_add_u32 s32, s32, {WS_OA}")
    a("v_add_u32 v20, s32, v25")
    for tt in range(1, 4): a(f"v_add_u32 v{20+tt}, {tt*32768}, v20")
    a("s_waitcnt lgkmcnt(0)")
    for hd in range(4):
        for tt in range(4):
            b = 96 + tt*12
            for et in (2, 0, 1):
                a(f"v_mfma_f32_16x16x32_bf16 {R('v', b + et*4)}, {R('a', (hd*3 + et)*4)}, {frag(tt, hd)}, 0")
        a("s_nop 7")
        for tt in range(4):
            b = 96 + tt*12
            a(f"v_add_f32 v{b+8}, s41, v{b+8}")
        for tt in range(4):
            b = 96 + tt*12
            a(f"v_rcp_f32 v{b+8}, v{b+8}")
        for tt in range(4):
            b = 96 + tt*12
            a(f"v_mov_b32 v{b+9}, v{b+8}")
            for i in range(0, 8, 2): a(f"v_pk_mul_f32 v[{b+i}:{b+i+1}], v[{b+i}:{b+i+1}], v[{b+8}:{b+9}]")
            t = 144 + tt*4
            gemm.pack_swap(a, t, b)
            a(f"global_store_dwordx4 v{20+tt}, {R('v', t)}, s[28:29] offset:{hd*1024} sc1")
    a("s_lshl_b32 s32, s31, 2"); a(f"s_add_u32 s32, s32, {D_AO}")
    signal(a, "s32")

def out_offsets(a, MT):
    gemm.lane_chunk(a, 25, 26)
    a("v_and_b32 v26, 15, v0"); a("v_lshlrev_b32 v26, 12, v26"); a("v_lshl_add_u32 v20, v25, 4, v26")
    a(f"s_mul_i32 s32, s72, {MT*16*4096}"); a("s_lshl_b32 s33, s73, 8"); a("s_add_u32 s32, s32, s33"); a("v_add_u32 v20, s32, v20")
    for tt in range(1, MT): a(f"v_add_u32 v{20+tt}, {tt*65536}, v20")

def task_g5(a):
    gemm.setup_a_frag(a, 32768); gemm.setup_w(a, 2048)
    a("s_lshl_b32 s32, s31, 2"); a(f"s_add_u32 s32, s32, {D_AO}")
    wait_cnt(a, "s32", 4)
    a("s_lshl_b32 s32, s31, 19"); a(f"s_add_u32 s32, s32, {WS_OA}"); a("s_add_u32 s60, s28, s32"); a("s_addc_u32 s61, s29, 0")
    a("s_lshl_b32 s32, s30, 9"); a("s_add_u32 s62, s8, s32"); a("s_addc_u32 s63, s9, 0")
    a("s_mov_b32 s66, 7")
    gemm.call(a, "core_T")
    out_offsets(a, 4)
    a("s_lshl_b32 s32, s31, 20"); a("s_lshl_b32 s33, s30, 9"); a("s_add_u32 s32, s32, s33"); a("s_add_u32 s34, s24, s32"); a("s_addc_u32 s35, s25, 0")
    gemm.epi_out_store(a, "s[34:35]")

def task_g3(a, core):
    gemm.setup_a_frag(a, 131072, 1); gemm.setup_w(a, 2048)
    a("s_lshl_b32 s32, s31, 19"); a(f"s_add_u32 s32, s32, {WS_O}"); a("s_add_u32 s60, s28, s32"); a("s_addc_u32 s61, s29, 0")
    a("s_lshl_b32 s32, s30, 9"); a("s_add_u32 s62, s20, s32"); a("s_addc_u32 s63, s21, 0")
    a("s_mov_b32 s66, 31")
    gemm.call(a, core)
    out_offsets(a, 1)
    a("s_lshl_b32 s32, s31, 18"); a("s_lshl_b32 s33, s30, 9"); a("s_add_u32 s32, s32, s33"); a("s_add_u32 s32, s32, 2048"); a("s_add_u32 s34, s24, s32"); a("s_addc_u32 s35, s25, 0")
    gemm.epi_out_store(a, "s[34:35]", 1)

def softmax_cols(a, regs, t):
    a(f"v_max3_f32 v{t}, v{regs[0]}, v{regs[1]}, v{regs[2]}")
    rest = regs[3:]
    while len(rest) >= 2:
        a(f"v_max3_f32 v{t}, v{t}, v{rest[0]}, v{rest[1]}"); rest = rest[2:]
    if rest: a(f"v_max_f32 v{t}, v{t}, v{rest[0]}")
    for sw in ("16", "32"):
        a(f"v_mov_b32 v{t+1}, v{t}"); a("s_nop 1"); a(f"v_permlane{sw}_swap_b32 v{t}, v{t+1}"); a(f"v_max_f32 v{t}, v{t}, v{t+1}")
    a(f"v_mul_f32 v{t}, s40, v{t}")
    for r in regs: a(f"v_fma_f32 v{r}, v{r}, s40, -v{t}")
    for r in regs: a(f"v_exp_f32 v{r}, v{r}")

def task_g2a(a):
    gemm.setup_a_rowmajor(a, 2048); gemm.setup_w(a, 8192)
    a("s_lshl_b32 s32, s31, 19"); a("s_add_u32 s60, s10, s32"); a("s_addc_u32 s61, s11, 0")
    a("s_lshl_b32 s32, s30, 9"); a("s_add_u32 s62, s14, s32"); a("s_addc_u32 s63, s15, 0")
    a("s_mov_b32 s66, 7")
    gemm.call(a, "core_T")
    a("s_lshl_b32 s32, s31, 2"); a(f"s_add_u32 s32, s32, {D_KV}")
    wait_cnt(a, "s32", 32)
    a("s_lshl_b32 s38, s31, 3"); a("s_lshl_b32 s33, s72, 1"); a("s_add_u32 s38, s38, s33"); a("s_mov_b32 s39, s38"); a("s_lshl_b32 s38, s38, 5")
    a("s_lshl_b32 s42, s30, 1"); a("s_add_u32 s42, s42, s73"); a("s_add_u32 s38, s38, s42")
    a("s_lshl_b32 s33, s38, 13"); a(f"s_add_u32 s33, s33, {rec.WS_KX}"); a("s_add_u32 s32, s28, s33"); a("s_addc_u32 s33, s29, 0")
    a(f"s_add_u32 s34, s32, {rec.WS_VX - rec.WS_KX}"); a("s_addc_u32 s35, s33, 0")
    a("v_lshlrev_b32 v16, 4, v0"); a("v_add_u32 v17, 0x1000, v16"); a("v_add_u32 v18, 0x40000, v16"); a("v_add_u32 v19, 0x41000, v16")
    a("s_mul_i32 s43, s75, 20480")
    for sg in range(2):
        for kt in range(2):
            for jj in range(4):
                a(f"global_load_dwordx4 {R('a', sg*32 + (kt*4 + jj)*4)}, v{16 + sg*2 + kt}, s[32:33] offset:{jj*1024} sc1")
            a(f"s_add_u32 m0, s43, {sg*10240 + kt*4096}"); a("s_nop 0")
            for jj in range(4):
                a(f"global_load_lds_dwordx4 v{16 + sg*2 + kt}, s[34:35] offset:{jj*1024} sc1")
    pack_frags(a)
    a("v_lshrrev_b32 v24, 4, v0"); a("v_lshlrev_b32 v24, 2, v24"); a("v_and_b32 v25, 15, v0"); a("v_mov_b32 v26, 0xff800000")
    for i in range(4):
        a(f"v_add_u32 v27, {i}, v24"); a("v_cmp_gt_u32 vcc, v27, v25"); a("s_nop 1"); a(f"v_cndmask_b32 v{96+i}, 0, v26, vcc")
    a("v_cmp_gt_u32 vcc, 32, v0"); a("s_nop 1")
    for i in range(4): a(f"v_cndmask_b32 v{100+i}, 0, v26, vcc")
    for i in range(4): a(f"v_mov_b32 v{104+i}, 0x3f803f80")
    a("v_and_b32 v24, 3, v0"); a("v_lshrrev_b32 v25, 2, v0")
    a("v_lshlrev_b32 v18, 4, v25"); a("v_lshl_add_u32 v18, v24, 8, v18"); a("v_add_u32 v18, s43, v18")
    a("v_and_b32 v25, 7, v25"); a("v_lshlrev_b32 v19, 4, v25"); a("v_lshl_add_u32 v19, v24, 7, v19"); a("v_add_u32 v19, s43, v19")
    a("v_add_u32 v20, s43, v16")
    gemm.lane_chunk(a, 21, 22)
    a("v_and_b32 v22, 15, v0"); a("v_lshl_add_u32 v21, v21, 4, v22"); a("v_lshlrev_b32 v21, 4, v21"); a("v_add_u32 v22, 0x20000, v21")
    a("s_lshl_b32 s36, s39, 18"); a("s_lshl_b32 s37, s42, 12"); a("s_add_u32 s36, s36, s37"); a(f"s_add_u32 s36, s36, {WS_O}")
    a("s_add_u32 s36, s28, s36"); a("s_addc_u32 s37, s29, 0")
    a("s_mul_i32 s32, s38, 6144"); a(f"s_add_u32 s32, s32, {rec.WS_QKVM}"); a("s_add_u32 s32, s28, s32"); a("s_addc_u32 s33, s29, 0")
    a(f"s_mov_b32 s40, {SCL}")
    for sg in range(2):
        lp, ok = a.newlabel("ap"), a.newlabel("ao")
        lo = sg*10240
        a.label(lp)
        for jj in range(4): a(f"global_load_dwordx4 {R('v', 108 + 4*jj)}, v16, s[32:33] offset:{jj*1024} sc1")
        for i in range(2): a(f"global_load_dwordx4 {R('v', 124 + 4*i)}, v17, s[32:33] offset:{i*1024} sc1")
        a("s_waitcnt vmcnt(0)")
        a("v_max3_u32 v23, v108, v109, v110")
        for r in range(111, 131, 2): a(f"v_max3_u32 v23, v23, v{r}, v{r+1}")
        a("v_max_u32 v23, v23, v131")
        a("v_cmp_eq_u32 vcc, -1, v23"); a(f"s_cbranch_vccz {ok}")
        a("s_sleep 16")
        a("s_add_u32 s46, s46, 1"); a(f"s_cmp_lt_u32 s46, {WSPIN}"); a(f"s_cbranch_scc1 {lp}")
        a("s_branch w_fail")
        a.label(ok)
        for i in range(2): a(f"ds_write_b128 v20, {R('v', 124 + 4*i)} offset:{lo + 8192 + i*1024}")
        tiles = [(132, 0, 0, "v[96:99]"), (136, 2, 0, "v[100:103]"), (140, 0, 1, "0"), (144, 1, 1, "v[96:99]"), (148, 2, 1, "v[100:103]")]
        for jj in range(4):
            for d, kt, qt, C in tiles:
                A = R('v', 108 + 4*jj) if kt == 2 else R('a', sg*32 + (kt*4 + jj)*4)
                a(f"v_mfma_f32_16x16x32_bf16 {R('v', d)}, {A}, {frag(2*sg + qt, jj)}, " + (C if jj == 0 else R('v', d)))
        def vread(jj):
            b = 64 + (jj & 1)*12
            for hf in range(2):
                for kt in range(2):
                    a(f"ds_read_b64_tr_b16 {R('a', b + hf*4 + kt*2, 2)}, v18 offset:{lo + kt*4096 + jj*1024 + hf*8}")
                a(f"ds_read_b64_tr_b16 {R('a', b + 8 + hf*2, 2)}, v19 offset:{lo + 8192 + jj*512 + hf*8}")
        vread(0)
        a("s_nop 3")
        softmax_cols(a, list(range(132, 140)), 23)
        softmax_cols(a, list(range(140, 152)), 23)
        a("s_nop 0")
        a("v_cvt_pk_bf16_f32 v108, v132, v133"); a("v_cvt_pk_bf16_f32 v109, v134, v135"); a("v_mov_b32 v110, 0"); a("v_mov_b32 v111, 0")
        a("v_cvt_pk_bf16_f32 v112, v136, v137"); a("v_cvt_pk_bf16_f32 v113, v138, v139")
        for i in range(4): a(f"v_cvt_pk_bf16_f32 v{116+i}, v{140+2*i}, v{141+2*i}")
        a("v_cvt_pk_bf16_f32 v114, v148, v149"); a("v_cvt_pk_bf16_f32 v115, v150, v151")
        P0 = ["v[108:111]", "v[116:119]"]; P1 = ["v[112:113]", "v[114:115]"]
        a("s_nop 1")
        for qt in range(2): a(f"v_mfma_f32_16x16x32_bf16 {R('v', 120 + 4*qt)}, v[104:107], {P0[qt]}, 0")
        a("s_nop 5")
        for qt in range(2): a(f"v_mfma_f32_16x16x16_bf16 {R('v', 120 + 4*qt)}, v[104:105], {P1[qt]}, {R('v', 120 + 4*qt)}")
        a("s_nop 7")
        a("v_rcp_f32 v24, v120"); a("v_rcp_f32 v26, v124"); a("s_nop 0"); a("v_mov_b32 v25, v24"); a("v_mov_b32 v27, v26")
        for jj in range(4):
            b = 64 + (jj & 1)*12
            if jj < 3:
                vread(jj + 1); a("s_waitcnt lgkmcnt(6)")
            else:
                a("s_waitcnt lgkmcnt(0)")
            for qt in range(2):
                for hf in range(2):
                    a(f"v_mfma_f32_16x16x32_bf16 {R('v', 132 + (qt*2 + hf)*4)}, {R('a', b + hf*4)}, {P0[qt]}, 0")
            a("s_nop 2")
            for qt in range(2):
                for hf in range(2):
                    D = R('v', 132 + (qt*2 + hf)*4)
                    a(f"v_mfma_f32_16x16x16_bf16 {D}, {R('a', b + 8 + hf*2, 2)}, {P1[qt]}, {D}")
            a("s_nop 7")
            for qt in range(2):
                o = 132 + qt*8
                for i in range(0, 8, 2): a(f"v_pk_mul_f32 v[{o+i}:{o+i+1}], v[{o+i}:{o+i+1}], v[{24+2*qt}:{25+2*qt}]")
                gemm.pack_swap(a, 152 + 4*qt, o)
                a(f"global_store_dwordx4 v{21+qt}, {R('v', 152 + 4*qt)}, s[36:37] offset:{jj*1024} sc1")
        if sg == 0:
            a(f"s_add_u32 s32, s32, {32*6144}"); a("s_addc_u32 s33, s33, 0"); a("s_add_u32 s36, s36, 0x40000"); a("s_addc_u32 s37, s37, 0")
    a("s_lshl_b32 s32, s31, 2"); a(f"s_add_u32 s32, s32, {D_O}")
    signal(a, "s32")

def emit_init(a):
    kernel_begin(a, "init_kernel")
    a("s_cmp_ge_u32 s2, 257"); a("s_cbranch_scc1 init_exit")
    a("s_load_dwordx2 s[4:5], s[0:1], 96")
    a("v_mov_b32 v4, -1"); a("v_mov_b32 v5, -1"); a("v_mov_b32 v6, -1"); a("v_mov_b32 v7, -1")
    a("s_cmp_eq_u32 s2, 256"); a("s_cbranch_scc1 init_cal")
    a("s_lshl_b32 s3, s2, 16"); a("v_lshl_add_u32 v1, v0, 4, s3")
    a("s_waitcnt lgkmcnt(0)")
    for i in range(16):
        a("global_store_dwordx4 v1, v[4:7], s[4:5]")
        if i < 15: a("v_add_u32 v1, 0x1000, v1")
    a("s_endpgm")
    a.label("init_cal")
    a("v_cmp_gt_u32 vcc, 64, v0"); a("s_and_saveexec_b64 s[8:9], vcc"); a("s_cbranch_execz init_exit")
    a("s_waitcnt lgkmcnt(0)")
    a("s_add_u32 s6, s4, 0x1fffff"); a("s_addc_u32 s7, s5, 0"); a("s_and_b32 s6, s6, 0xffe00000"); a("s_add_u32 s6, s6, 0x1f0000")
    a("s_mov_b64 exec, 1")
    a("s_mov_b32 s20, -1"); a("s_mov_b32 s21, -1")
    for rnd in range(2):
        for k in range(8):
            a(f"v_mov_b32 v1, {k*4096 + rnd*256}")
            a("s_memtime s[10:11]"); a("s_waitcnt lgkmcnt(0)")
            a("global_store_dword v1, v4, s[6:7] sc1"); a("s_waitcnt vmcnt(0)")
            a("s_memtime s[12:13]"); a("s_waitcnt lgkmcnt(0)")
            a("s_sub_u32 s12, s12, s10")
            r = 20 + ((k >> 1) & 1)
            a(f"s_min_u32 s{r}, s{r}, s12")
    a("s_getreg_b32 s14, hwreg(HW_REG_XCC_ID)"); a("s_bfe_u32 s14, s14, 0x10002")
    a("s_cmp_lt_u32 s21, s20"); a("s_cselect_b32 s15, 1, 0"); a("s_xor_b32 s15, s15, s14")
    a("v_mov_b32 v2, s15"); a(f"v_mov_b32 v1, {WS_PAR}")
    a("global_store_dword v1, v2, s[4:5]")
    a.label("init_exit")
    a("s_endpgm")

def emit_mega(a, prof=False):
    kernel_begin(a, NAME + "_kernel")
    a("s_cmp_ge_u32 s2, 256"); a("s_cbranch_scc1 w_exit")
    load_ptrs(a)
    a("s_getreg_b32 s44, hwreg(HW_REG_XCC_ID)"); a("s_and_b32 s44, s44, 7")
    a("v_lshrrev_b32 v1, 6, v0"); a("v_mov_b32 v2, 0"); a("s_mov_b32 s46, 0")
    a("v_readfirstlane_b32 s75, v1")
    a("s_waitcnt lgkmcnt(0)")
    a(f"s_add_u32 s30, s28, {WS_PAR}"); a("s_addc_u32 s31, s29, 0"); a("s_load_dword s47, s[30:31], 0")
    a("s_cmp_lg_u32 s75, 0"); a("s_cbranch_scc1 role_wait")
    a("s_lshl_b32 s32, s44, 2"); a("v_mov_b32 v3, s32"); a("v_mov_b32 v4, 1")
    a("s_mov_b64 exec, 1")
    a("global_atomic_add v5, v3, v4, s[26:27] sc0 sc1"); a("s_waitcnt vmcnt(0)")
    a("v_readfirstlane_b32 s45, v5")
    a("s_cmp_lt_u32 s45, 32"); a("s_cbranch_scc1 role_have")
    a(f"v_mov_b32 v3, {D_OVF}")
    a("global_atomic_add v5, v3, v4, s[26:27] sc0 sc1"); a("s_waitcnt vmcnt(0)")
    a("v_readfirstlane_b32 s45, v5")
    a.label("role_poll")
    a("global_load_dwordx4 v[8:11], v2, s[26:27] sc1"); a("global_load_dwordx4 v[12:15], v2, s[26:27] offset:16 sc1"); a("s_waitcnt vmcnt(0)")
    a("s_mov_b32 s33, 0")
    for i in range(8):
        a(f"v_readfirstlane_b32 s{34+i}, v{8+i}"); a(f"s_add_u32 s33, s33, s{34+i}")
    a("s_cmp_eq_u32 s33, 256"); a("s_cbranch_scc1 role_pick")
    a("s_sleep 8"); a("s_add_u32 s46, s46, 1"); a(f"s_cmp_lt_u32 s46, {WSPIN}"); a("s_cbranch_scc1 role_poll")
    a("s_mov_b64 exec, -1"); a("s_branch w_fail")
    a.label("role_pick")
    for i in range(8):
        a(f"s_min_u32 s33, s{34+i}, 32"); a("s_add_u32 s45, s45, s33"); a(f"s_mov_b32 s44, {i}")
        if i < 7:
            a("s_cmp_lt_u32 s45, 32"); a("s_cbranch_scc1 role_have"); a("s_sub_u32 s45, s45, 32")
    a.label("role_have")
    a("s_lshl_b32 s32, s44, 5"); a("s_or_b32 s32, s32, s45"); a("v_mov_b32 v3, s32")
    a("ds_write_b32 v2, v3")
    a("s_mov_b64 exec, -1")
    a.label("role_wait")
    a("s_waitcnt lgkmcnt(0)"); a("s_barrier")
    a("ds_read_b32 v3, v2"); a("s_waitcnt lgkmcnt(0)")
    a("v_readfirstlane_b32 s32, v3")
    a("s_barrier")
    a("s_and_b32 s45, s32, 31"); a("s_bfe_u32 s44, s32, 0x30005")
    a("s_cmp_ge_u32 s44, 4"); a("s_cbranch_scc1 worker")
    a("s_lshl_b32 s18, s44, 3"); a("s_lshr_b32 s19, s45, 2"); a("s_add_u32 s18, s18, s19"); a("s_and_b32 s19, s45, 3")
    a("s_and_b32 s25, s47, 1")
    rec.emit_rec(a, "rec", prof=prof, plain=True, kvwait=True)
    a.label("worker")
    a("s_sub_u32 s44, s44, 4")
    a("v_and_b32 v0, 63, v0")
    gemm.setup_common(a)
    a("s_lshl_b32 s30, s44, 3"); a("s_and_b32 s32, s45, 7"); a("s_add_u32 s30, s30, s32"); a("s_lshr_b32 s31, s45, 3")
    a.label("w_g1")
    task_g1(a)
    a("s_add_u32 s31, s31, 4"); a("s_cmp_lt_u32 s31, 8"); a("s_cbranch_scc1 w_g1")
    a("s_cmp_lt_u32 s45, 16"); a("s_cbranch_scc1 w_kv")
    a("s_cmp_lt_u32 s45, 24"); a("s_cbranch_scc1 w_q")
    a("s_bfe_u32 s31, s45, 0x10002")
    a.label("w_g2a")
    a("s_lshl_b32 s30, s44, 2"); a("s_and_b32 s32, s45, 3"); a("s_add_u32 s30, s30, s32")
    task_g2a(a)
    a("s_cmp_lt_u32 s45, 24"); a("s_cbranch_scc1 w_exit")
    a("s_mov_b32 s30, s44"); a("s_sub_u32 s31, s45, 24")
    task_g5(a)
    a("s_endpgm")
    a.label("w_kv")
    a("s_lshl_b32 s30, s44, 1"); a("s_and_b32 s32, s45, 1"); a("s_add_u32 s30, s30, s32"); a("s_lshr_b32 s31, s45, 1")
    task_g4kv(a)
    a("s_branch w_next")
    a.label("w_q")
    a("s_mov_b32 s30, s44"); a("s_sub_u32 s31, s45, 16")
    task_g4q(a)
    a.label("w_next")
    a("s_lshr_b32 s31, s45, 2"); a("s_add_u32 s31, s31, 2")
    a("s_branch w_g2a")
    a.label("w_fail")
    a("v_mov_b32 v16, 0"); a("v_mov_b32 v17, 0xdead"); a("global_store_dword v16, v17, s[26:27] offset:248")
    a.label("w_exit")
    a("s_endpgm")
    gemm.emit_core(a, "core_T", 'T')
    gemm.emit_core(a, "core_N", 'N')

def emit_g3(a):
    kernel_begin(a, "g3_kernel")
    a("s_cmp_ge_u32 s2, 128"); a("s_cbranch_scc1 g3_exit")
    load_ptrs(a)
    a("v_lshrrev_b32 v1, 6, v0"); a("v_and_b32 v0, 63, v0"); a("s_nop 0"); a("v_readfirstlane_b32 s75, v1")
    a("s_and_b32 s30, s2, 3"); a("s_lshr_b32 s31, s2, 2")
    gemm.setup_common(a)
    a("s_waitcnt lgkmcnt(0)")
    task_g3(a, "core_T1")
    a.label("g3_exit")
    a("s_endpgm")
    gemm.emit_core(a, "core_T1", 'T', MT=1)

def generate(prof=False):
    raw = open(f"cdna_kernels/{NAME}.s.ref").read().split("\n")
    hdr = []
    for l in raw:
        if not l.startswith(";") or "Override" in l: break
        hdr.append(l)
    a = Asm()
    emit_init(a); emit_mega(a, prof); emit_g3(a)
    s = "\n".join(hdr) + "\n"
    s += "; @launch kernel=init_kernel grid=(257,1,1) block=(256,1,1) lds=0\n"
    s += f"; @launch kernel={NAME}_kernel grid=(256,1,1) block=(512,1,1) lds=163840\n"
    s += "; @launch kernel=g3_kernel grid=(128,1,1) block=(512,1,1) lds=131072\n"
    s += '.amdgcn_target "amdgcn-amd-amdhsa--gfx950"\n.text\n' + a.text() + '.section .rodata,"a"\n'
    s += kernel_desc("init_kernel", vgpr=8, sgpr=32, accum=8) + kernel_desc(NAME + "_kernel", vgpr=256, accum=160) + kernel_desc("g3_kernel", vgpr=256, accum=160)
    return s

if __name__ == "__main__":
    out = sys.argv[1] if len(sys.argv) > 1 else f"cdna_kernels/{NAME}.s"
    open(out, "w").write(generate())
    print("wrote", out)
```

```python
from asmgen import *

def acc(tt, ft): return 32 + (tt*8 + ft)*4
def R(p, b, n=4): return f"{p}[{b}:{b+n-1}]"

EXP = set()
SIGNAL = True
def a_dma(pslot, MT, flag=""):
    ops = [[f"s_add_u32 m0, s76, {pslot*32768 + i*1024}", f"global_load_lds_dwordx4 v{28+i}, s[60:61] {flag}"] for i in range(MT)]
    if "noA" in EXP:
        for o in ops: o[1] = "s_nop 0"
    return ops
WFLAG = ""
def w_dma(slot):
    ops = [[f"s_add_u32 m0, s67, {65536 + slot*16384 + i*1024}", f"global_load_lds_dwordx4 v{4+i}, s[62:63] {WFLAG}"] for i in range(2)]
    if "noW" in EXP:
        for o in ops: o[1] = "s_nop 0"
    return ops
def adv(off, inc, span, cur, base):
    return [f"s_add_u32 s{off}, s{off}, s{inc}", f"s_cmp_ge_u32 s{off}, s{span}", f"s_cselect_b32 s{off}, 0, s{off}",
            f"s_add_u32 s{cur}, s{base}, s{off}", f"s_addc_u32 s{cur+1}, s{base+1}, 0"]
ADV_A = adv(84, 64, 86, 60, 80)
ADV_W = adv(85, 65, 87, 62, 82)

def a_read(buf, tt, slot, MT=4): return f"ds_read_b128 {R('a', buf*16 + tt*4)}, v{6 + (slot & 1)} offset:{(slot >> 1)*32768 + tt*2048}"
def wreg(ft, par): return 32 + ft*4 if (ft < 6 or par == 0) else 64 + (ft - 6)*4
WFRAG = False
def w_reads(ft, slot):
    if WFRAG: return [f"ds_read_b128 {R('a', wreg(ft, slot & 1))}, v27 offset:{slot*16384 + ft*1024}"]
    return [w_read(ft, 0, slot), w_read(ft, 1, slot)]
def w_read(ft, lo, slot): return f"ds_read_b64_tr_b16 {R('a', wreg(ft, slot & 1) + lo*2, 2)}, v{8+ft} offset:{slot*16384 + lo*2048}"

def touch_hook(a, name):
    for cnt, base in ((90, 92), (91, 94)):
        lp, no = f"{name}_t{cnt}", f"{name}_n{cnt}"
        a(f"s_cmp_eq_u32 s{cnt}, 0"); a(f"s_cbranch_scc1 {no}")
        a(f"s_mul_i32 s74, s96, s{cnt}"); a("s_lshl_b32 s74, s74, 10"); a("v_lshl_add_u32 v20, v0, 4, s74")
        a.label(lp)
        a(f"global_load_dwordx4 a[92:95], v20, s[{base}:{base+1}]")
        a("v_add_u32 v20, 0x400, v20")
        a(f"s_sub_u32 s{cnt}, s{cnt}, 1"); a(f"s_cmp_lg_u32 s{cnt}, 0"); a(f"s_cbranch_scc1 {lp}")
        a.label(no)

def stage(a, slot, orient, dma, wait, refill, MT=4, aflag="", hook=None):
    buf = slot & 1
    if wait is not None:
        a(f"s_waitcnt vmcnt({wait}) lgkmcnt(0)"); a("s_barrier")
    else:
        a("s_waitcnt lgkmcnt(0)")
    if hook: touch_hook(a, hook)
    d = []
    if dma:
        d = (a_dma(slot >> 1, MT, aflag) if slot & 1 else []) + w_dma(slot)
    ns = (slot + 1) & 3
    early = []
    if refill:
        early = [a_read(buf ^ 1, tt, ns, MT) for tt in range(MT)] + w_reads(6, ns) + w_reads(7, ns)
    for ft in range(8):
        if MT == 1 and ft < len(d): a(d[ft][0])
        if refill and ft in (3, 5): a("s_waitcnt lgkmcnt(6)")
        for tt in range(MT):
            D = R('v', acc(tt, ft)); W = R('a', wreg(ft, buf)); X = R('a', buf*16 + tt*4)
            a(f"v_mfma_f32_16x16x32_bf16 {D}, {W}, {X}, {D}" if orient == 'T' else f"v_mfma_f32_16x16x32_bf16 {D}, {X}, {W}, {D}")
            if MT > 1 and tt == 0 and ft < len(d):
                a(d[ft][0])
            if tt == min(1, MT - 1) and ft < len(d):
                a(d[ft][1])
            if tt == 0 and ft == 6 and dma:
                for x in ADV_W: a(x)
            if tt == 0 and ft == 7 and dma and slot & 1:
                for x in ADV_A: a(x)
            if early and (MT < 4 or tt in (0, 2)):
                a(early.pop(0))
        if refill and ft < 6:
            for x in w_reads(ft, ns): a(x)
    assert not early

def emit_core(a, name, orient, MT=4, aflag=""):
    a.label(name)
    a("s_mul_i32 s84, s77, s64"); a("s_mul_i32 s85, s77, s65"); a("s_lshl_b32 s85, s85, 1")
    a("s_add_u32 s86, s66, 1"); a("s_lshl_b32 s86, s86, 1"); a("s_mul_i32 s87, s86, s65"); a("s_lshl_b32 s87, s87, 1"); a("s_mul_i32 s86, s86, s64")
    a("s_add_u32 s60, s80, s84"); a("s_addc_u32 s61, s81, 0"); a("s_add_u32 s62, s82, s85"); a("s_addc_u32 s63, s83, 0")
    a("s_barrier")
    def issue(ops, advs):
        for m, ld in ops:
            a(m); a("s_nop 0"); a(ld)
        for x in advs: a(x)
    issue(a_dma(0, MT, aflag), ADV_A); issue(w_dma(0), ADV_W); issue(w_dma(1), ADV_W)
    issue(w_dma(2), ADV_W); issue(a_dma(1, MT, aflag), ADV_A); issue(w_dma(3), ADV_W)
    for tt in range(MT):
        for i in range(32): a(f"v_mov_b32 v{acc(tt, 0) + i}, 0")
    a(f"s_waitcnt vmcnt({6 + MT})"); a("s_barrier")
    if SIGNAL:
        a("s_cmp_eq_u32 s75, 0"); a("s_cselect_b32 s74, s89, 0"); a("s_mov_b32 s89, 0")
        a("s_cmp_eq_u32 s74, 0"); a(f"s_cbranch_scc1 {name}_ns")
        a("v_mov_b32 v16, s88"); a("v_mov_b32 v17, s74")
        a("s_mov_b64 exec, 1")
        a("global_atomic_add v16, v17, s[26:27] sc1")
        a("s_mov_b64 exec, -1")
        a.label(name + "_ns")
    for tt in range(MT): a(a_read(0, tt, 0, MT))
    for ft in range(8):
        for x in w_reads(ft, 0): a(x)
        if ft == 3: a("s_waitcnt lgkmcnt(4)")
    a.label(name + "_loop")
    for slot in range(4): stage(a, slot, orient, True, 4 if slot & 1 else 4 + MT, True, MT, aflag)
    a("s_sub_u32 s66, s66, 1"); a("s_cmp_lg_u32 s66, 0"); a(f"s_cbranch_scc1 {name}_loop")
    stage(a, 0, orient, False, 4 + MT, True, MT)
    stage(a, 1, orient, False, 2, True, MT)
    stage(a, 2, orient, False, 0, True, MT, hook=(name if MT == 3 else None))
    stage(a, 3, orient, False, None, False, MT)
    a("s_nop 7")
    a("s_setpc_b64 s[68:69]")

def call(a, name):
    lab = a.newlabel("call")
    a("s_getpc_b64 s[70:71]")
    a.label(lab)
    a(f"s_add_u32 s70, s70, {name}-{lab}")
    a("s_addc_u32 s71, s71, 0") if False else a(f"s_addc_u32 s71, s71, ({name}-{lab})>>32")
    a("s_swappc_b64 s[68:69], s[70:71]")

def setup_common(a, MT=4):
    a("s_lshl_b32 s67, s75, 11")
    a("s_and_b32 s72, s75, 3"); a("s_lshr_b32 s73, s75, 2")
    a("v_lshrrev_b32 v16, 4, v0"); a("v_bfe_u32 v17, v0, 2, 2")
    a("v_lshl_add_u32 v18, v16, 3, v17"); a("v_lshlrev_b32 v18, 9, v18")
    a("v_and_b32 v19, 3, v0"); a("v_lshl_add_u32 v18, v19, 3, v18")
    a("s_lshl_b32 s74, s73, 8"); a("s_add_u32 s74, s74, 65536"); a("v_add_u32 v18, s74, v18")
    a("v_and_b32 v16, 1, v16"); a("v_lshl_add_u32 v17, v16, 2, v17"); a("v_lshlrev_b32 v17, 5, v17")
    a("v_add_u32 v8, v18, v17")
    for ft in range(1, 8): a(f"v_xor_b32 v{8+ft}, {ft*32}, v8")

def setup_a_rowmajor(a, lda, MT=4):
    a(f"s_mul_i32 s76, s75, {MT*1024}")
    a(f"s_mov_b32 s74, {lda}")
    for i in range(MT):
        a("v_lshrrev_b32 v16, 3, v0"); a(f"s_mul_i32 s64, s75, {MT*8}"); a(f"s_add_u32 s64, s64, {i*8}"); a("v_add_u32 v16, s64, v16")
        a("v_lshrrev_b32 v17, 1, v16"); a("v_xor_b32 v17, v17, v0"); a("v_and_b32 v17, 7, v17")
        a("v_mul_lo_u32 v16, v16, s74"); a(f"v_lshl_add_u32 v{28+i}, v17, 4, v16")
    a("v_and_b32 v16, 15, v0"); a("v_lshrrev_b32 v17, 1, v16"); a("v_lshrrev_b32 v18, 4, v0"); a("v_xor_b32 v17, v17, v18")
    a("v_lshlrev_b32 v16, 7, v16"); a("v_lshl_add_u32 v6, v17, 4, v16")
    a(f"s_mul_i32 s74, s72, {MT*2048}"); a("v_add_u32 v6, s74, v6"); a("v_xor_b32 v7, 64, v6")
    a("s_mov_b32 s64, 128")

def setup_w(a, ldw, colmap=None):
    for i in range(2):
        a("v_lshrrev_b32 v16, 5, v0"); a("s_lshl_b32 s74, s75, 2"); a(f"s_add_u32 s74, s74, {2*i}"); a("v_add_u32 v16, s74, v16")
        a("v_and_b32 v17, 3, v16"); a("v_bfe_u32 v18, v16, 3, 1"); a("v_lshl_add_u32 v17, v18, 2, v17"); a("v_lshlrev_b32 v17, 1, v17")
        a("v_and_b32 v18, 31, v0"); a("v_xor_b32 v17, v17, v18")
        if colmap is None: a("v_lshlrev_b32 v17, 4, v17")
        else: colmap(a, 17)
        a(f"s_mov_b32 s74, {ldw}"); a("v_mul_lo_u32 v16, v16, s74"); a(f"v_add_u32 v{4+i}, v16, v17")
    a(f"s_mov_b32 s65, {32*ldw}")

def epi_frag_store(a, base, flag, MT=4, step=1024):
    n = 0
    for tt in range(MT):
        for jj in range(4):
            t = 24 + (n & 1)*4; n += 1
            b = acc(tt, 2*jj)
            for i in range(4): a(f"v_cvt_pk_bf16_f32 v{t+i}, v{b+2*i}, v{b+2*i+1}")
            a(f"global_store_dwordx4 v{20+tt}, {R('v', t)}, {base} offset:{jj*step} {flag}")

def setup_a_frag(a, tstride, MT=4):
    a("v_lshlrev_b32 v16, 4, v0")
    if MT == 4:
        a(f"s_mul_i32 s74, s75, {2*tstride}"); a("s_lshl_b32 s76, s75, 12")
        a("v_add_u32 v28, s74, v16"); a("v_add_u32 v29, 1024, v28"); a(f"v_add_u32 v30, {tstride}, v28"); a("v_add_u32 v31, 1024, v30")
    else:
        assert MT == 1
        a("s_lshr_b32 s74, s75, 1"); a(f"s_mul_i32 s74, s74, {tstride}"); a("s_and_b32 s76, s75, 1"); a("s_lshl_b32 s76, s76, 10"); a("s_add_u32 s74, s74, s76")
        a("v_add_u32 v28, s74, v16"); a("s_lshl_b32 s76, s75, 10")
    a(f"s_mul_i32 s74, s72, {MT*2048}"); a("v_add_u32 v6, s74, v16"); a("v_add_u32 v7, 1024, v6")
    a("s_mov_b32 s64, 2048")

def setup_w_frag(a, cgstride):
    a("v_lshlrev_b32 v16, 4, v0")
    a(f"s_mul_i32 s74, s75, {cgstride}"); a("v_add_u32 v4, s74, v16"); a("v_add_u32 v5, 1024, v4")
    a("s_lshl_b32 s74, s73, 13"); a("s_add_u32 s74, s74, 65536"); a("v_add_u32 v27, s74, v16")
    a("s_mov_b32 s65, 2048")

def lane_chunk(a, dst, tmp):
    a(f"v_bfe_u32 v{dst}, v0, 4, 1"); a(f"v_lshlrev_b32 v{dst}, 1, v{dst}"); a(f"v_lshrrev_b32 v{tmp}, 5, v0"); a(f"v_add_u32 v{dst}, v{dst}, v{tmp}")

def pack_swap(a, t, b):
    for i in range(4): a(f"v_cvt_pk_bf16_f32 v{t+i}, v{b+2*i}, v{b+2*i+1}")
    a("s_nop 0")
    a(f"v_permlane16_swap_b32 v{t}, v{t+2}"); a(f"v_permlane16_swap_b32 v{t+1}, v{t+3}")

def epi_out_store(a, base, MT=4, flag=""):
    n = 0
    for tt in range(MT):
        for jj in range(4):
            t = 24 + (n & 1)*4; n += 1
            pack_swap(a, t, acc(tt, 2*jj))
            a(f"global_store_dwordx4 v{20+tt}, {R('v', t)}, {base} offset:{jj*64} {flag}")
```

```python
from asmgen import *

WS_RING  = 1 << 20
WS_PROBE = 0x1f0000
WS_FLAG  = 0x1e0000
WS_MEMS  = 2 << 20
WS_KMVM  = 4 << 20
WS_KX    = 20 << 20
WS_VX    = 52 << 20
WS_WOT   = 108 << 20
WOT_W = 32768
WOT_CG = 8*WOT_W + 4096
L_PART = 0
L_P    = 24576
L_ZERO = 26624
L_SEL  = 28672
L_PARW = 7*16384
L_KX   = 131072
L_VX   = 147456
SPIN_MAX = 400000
NSTEP = 64
DBG_VOTE, DBG_CLR, DBG_PROG, DBG_KVREADY = 40, 44, 128, 64
KV_FULL = 128
PAR0 = dict(PF=1, RDEL=9, MDEL=8, DM=1, MGAP=3, PRIO=1, XD=2, XGAP=2, VDEL=7, PPRIO=2, XDEL=6, DR=2, RGAP=5, MACK=0)
PAR = dict(PAR0)
OPT = set()

def guard(a, loop, fail):
    a("s_add_u32 s24, s24, 1"); a(f"s_cmp_lt_u32 s24, {SPIN_MAX}"); a(f"s_cbranch_scc1 {loop}"); a(f"s_branch {fail}")

def pstamp(a, prof, k):
    if prof == 3:
        a("s_memrealtime s[56:57]"); a("s_waitcnt lgkmcnt(0)"); a(f"s_mov_b32 s{k}, s56")

def stamp(a, prof, k, at=None):
    if not prof: return
    if prof >= 3 and (k != 7 or prof > 3): return
    if prof == 2:
        lab = a.newlabel("st")
        a("s_cmp_lg_u32 s22, " + ("31" if (k == 7 or at) else "30")); a(f"s_cbranch_scc1 {lab}")
        a("s_memrealtime s[56:57]"); a("s_waitcnt lgkmcnt(0)"); a("s_and_b32 s56, s56, 0xffffff"); a("s_lshl_b32 s57, s24, 24"); a(f"s_or_b32 s{60+k}, s56, s57")
        a.label(lab)
        return
    a("s_memtime s[56:57]"); a("s_waitcnt lgkmcnt(0)")
    a("s_sub_u32 s58, s56, s59"); a(f"s_add_u32 s{60+k}, s{60+k}, s58"); a("s_mov_b32 s59, s56")

def fs(a, prof, k, which):
    if prof == which: a(f"s_memtime s[{66+2*k}:{67+2*k}]")

def near(a, dst, off, par="s25", wb=16, tmp="s36"):
    a(f"s_lshr_b32 {tmp}, {off}, 21"); a(f"s_xor_b32 {tmp}, {tmp}, {par}"); a(f"s_and_b32 {tmp}, {tmp}, 1"); a(f"s_lshl_b32 {tmp}, {tmp}, 13")
    a(f"s_add_u32 {tmp}, {tmp}, {off}"); a(f"s_add_u32 s{dst}, s{wb}, {tmp}"); a(f"s_addc_u32 s{dst+1}, s{wb+1}, 0")

def kv_word(a, dst, blk):
    a(f"s_add_u32 {dst}, {blk}, 1"); a(f"s_mul_i32 {dst}, {dst}, 11"); a(f"s_lshr_b32 {dst}, {dst}, 5"); a(f"s_lshl_b32 {dst}, {dst}, 2")

def tagchk(a, regs, tag, t0, t1, mf=()):
    op = "0x80" if tag else "0xfe"
    mf = list(mf)
    ops = [f"v_bitop3_b32 v{t0}, v{regs[0]}, v{regs[1]}, v{regs[2]} bitop3:{op}", f"v_bitop3_b32 v{t1}, v{regs[3]}, v{regs[4]}, v{regs[5]} bitop3:{op}"]
    rest = regs[6:]; k = 0
    while rest:
        t = (t0, t1)[k & 1]; k += 1
        ops.append(f"v_bitop3_b32 v{t}, v{t}, v{rest[0]}, v{rest[1]} bitop3:{op}"); rest = rest[2:]
    ops.append(f"v_bitop3_b32 v{t0}, v{t0}, v{t1}, 1 bitop3:" + ("0x80" if tag else "0xa8"))
    per = -(-len(ops) // max(len(mf), 1))
    for i, o in enumerate(ops):
        if mf and i % per == 0: a(mf.pop(0))
        a(o)
    for m in mf: a(m)
    a(f"v_cmp_ne_u32 vcc, {tag}, v{t0}")

def emit_rec(a, pfx, prof=False, kvwait=False):
    L = lambda n: f"{pfx}_{n}"
    FAIL = L('fail')
    a("s_load_dwordx8 s[4:11], s[0:1], 40")
    a("s_load_dwordx2 s[12:13], s[0:1], 32")
    a("s_load_dwordx2 s[14:15], s[0:1], 88")
    a("s_load_dwordx2 s[16:17], s[0:1], 96")
    a("v_lshrrev_b32 v1, 6, v0")
    a("v_and_b32 v0, 63, v0")
    a("s_lshl_b32 s20, s18, 2"); a("s_add_u32 s20, s20, s19")
    a("v_readfirstlane_b32 s21, v1")
    a("v_lshlrev_b32 v6, 4, v0")
    a("s_mov_b32 s24, 0")
    a("s_waitcnt lgkmcnt(0)")
    pstamp(a, prof, 90)
    a("s_add_u32 s16, s16, 0x1fffff"); a("s_addc_u32 s17, s17, 0"); a("s_and_b32 s16, s16, 0xffe00000")
    a("s_lshl_b32 s36, s18, 13"); a(f"s_add_u32 s36, s36, {WS_RING}"); a("s_add_u32 s32, s16, s36"); a("s_addc_u32 s33, s17, 0")
    a("s_and_b32 s45, s20, 63"); a("s_lshl_b32 s45, s45, 7"); a("s_lshr_b32 s36, s20, 6"); a("s_lshl_b32 s36, s36, 14"); a("s_add_u32 s45, s45, s36")
    a("s_and_b32 s44, s20, 1"); a("s_lshl_b32 s44, s44, 12"); a("s_lshr_b32 s42, s20, 1"); a("s_lshl_b32 s42, s42, 14"); a("s_add_u32 s44, s44, s42")
    a("v_mov_b32 v14, v6"); a("v_add_u32 v15, 0x1000, v6")
    a("s_lshl_b32 s36, s19, 10"); a("v_add_u32 v9, s36, v6")
    a("s_lshl_b32 s36, s19, 9"); a("s_add_u32 s36, s36, 4096"); a("v_and_b32 v8, 0x1ff, v6"); a("v_add_u32 v8, s36, v8")
    a("s_cmp_eq_u32 s21, 7"); a(f"s_cbranch_scc0 {L('noclr')}")
    for i in range(4): a(f"v_mov_b32 v{68+i}, -1")
    a("v_add_u32 v16, s44, v6"); a("v_add_u32 v17, 0x2000, v16")
    for p in range(2):
        for i in range(4): a(f"global_store_dwordx4 v{16+p}, v[68:71], s[16:17] offset:{1024*i} sc1")
    a("global_store_dwordx4 v9, v[68:71], s[32:33] sc1"); a("global_store_dwordx4 v8, v[68:71], s[32:33] sc1")
    a("v_bfe_u32 v16, v0, 3, 2"); a("v_lshlrev_b32 v16, 15, v16"); a("v_lshrrev_b32 v17, 5, v0"); a("v_lshl_add_u32 v16, v17, 13, v16")
    a("v_and_b32 v17, 7, v0"); a("v_lshl_add_u32 v16, v17, 4, v16"); a(f"s_add_u32 s36, s45, {WS_MEMS}"); a("v_add_u32 v16, s36, v16")
    for i in range(16):
        a("global_store_dwordx4 v16, v[68:71], s[16:17] sc1"); a("v_add_u32 v16, 0x20000, v16")
    a("s_lshl_b32 s36, s20, 7"); a(f"s_add_u32 s36, s36, {WS_FLAG}"); a("v_and_b32 v16, 0x70, v6"); a("v_add_u32 v16, s36, v16")
    a("global_store_dwordx4 v16, v[68:71], s[16:17] sc1")
    a("s_barrier")
    a("v_mov_b32 v17, 1"); a("v_mov_b32 v16, 0")
    a("s_waitcnt vmcnt(0)")
    a("s_mov_b64 exec, 1")
    a(f"global_atomic_add v16, v17, s[14:15] offset:{DBG_CLR} sc1")
    a("s_mov_b64 exec, -1")
    a(f"s_branch {L('clrd')}")
    a.label(L('noclr'))
    a("s_barrier")
    a.label(L('clrd'))
    def xdma(base, ldsreg):
        for kt in range(2):
            a(f"s_add_u32 m0, {ldsreg}, {kt*4096}")
            a("s_nop 0")
            for jj in range(4):
                a(f"global_load_lds_dwordx4 v{14+kt}, {base} offset:{jj*1024} sc1")
    def kv_poll(tag, blkreg):
        kv_word(a, "s52", blkreg); a("v_mov_b32 v17, s52")
        a.label(L(tag))
        a(f"global_load_dword v16, v17, s[14:15] offset:{DBG_KVREADY} sc1"); a("s_waitcnt vmcnt(0)")
        a(f"v_cmp_ne_u32 vcc, {KV_FULL}, v16"); a(f"s_cbranch_vccz {L(tag + 'ok')}")
        a("s_sleep 8")
        guard(a, L(tag), FAIL)
        a.label(L(tag + 'ok'))
    def kv_bases(segreg):
        a(f"s_lshl_b32 s42, {segreg}, 5"); a("s_add_u32 s42, s42, s18"); a("s_lshl_b32 s42, s42, 14"); a(f"s_add_u32 s42, s42, {WS_KX}")
        near(a, 48, "s42")
        a(f"s_add_u32 s34, s48, {WS_VX - WS_KX}"); a("s_addc_u32 s35, s49, 0")
    a("v_lshrrev_b32 v10, 2, v0"); a("v_lshlrev_b32 v10, 13, v10"); a("v_and_b32 v11, 3, v0"); a("v_lshl_add_u32 v10, v11, 4, v10")
    a("s_lshl_b32 s36, s21, 20"); a("s_lshl_b32 s42, s20, 6"); a("s_add_u32 s36, s36, s42"); a("v_add_u32 v10, s36, v10")
    a("s_lshl_b32 s43, s21, 14")
    def wdma(base, buf, nt="nt"):
        a("v_mov_b32 v11, v10")
        for i in range(8):
            a(f"s_add_u32 m0, s43, {buf*8192 + i*1024}")
            a("s_nop 0")
            a(f"global_load_lds_dwordx4 v11, {base} {nt}")
            if i < 7: a("v_add_u32 v11, 0x20000, v11")
    wdma("s[6:7]", 0, ""); wdma("s[8:9]", 1, "")
    a("v_lshrrev_b32 v12, 5, v0"); a("v_lshlrev_b32 v12, 4, v12")
    a("v_bfe_u32 v13, v0, 4, 1"); a("v_lshl_add_u32 v12, v13, 2, v12")
    a("v_bfe_u32 v13, v0, 2, 1"); a("v_add_u32 v12, v12, v13")
    a("v_bfe_u32 v13, v0, 3, 1"); a("v_lshl_add_u32 v12, v13, 3, v12")
    a("v_lshlrev_b32 v12, 6, v12"); a("v_and_b32 v13, 3, v0"); a("v_lshl_add_u32 v12, v13, 3, v12")
    a("v_add_u32 v12, s43, v12")
    def wread(typ, buf):
        for t in range(2):
            for ks in range(2):
                for pp in range(4):
                    hi, lo = pp >> 1, pp & 1
                    reg = ((typ*2 + t)*2 + ks)*8 + pp*2
                    off = buf*8192 + (64*ks + 32*hi + 2*lo)*64 + t*32
                    a(f"ds_read_b64_tr_b16 a[{reg}:{reg+1}], v12 offset:{off}")
                a("s_waitcnt lgkmcnt(4)")
        a("s_waitcnt lgkmcnt(0)")
    a("s_waitcnt vmcnt(8)")
    pstamp(a, prof, 91)
    wread(1, 0)
    wdma("s[4:5]", 0, "nt")
    a("s_waitcnt vmcnt(8)"); wread(2, 1)
    a("v_lshrrev_b32 v10, 3, v0"); a("v_lshlrev_b32 v10, 11, v10"); a("v_and_b32 v11, 7, v0"); a("v_lshl_add_u32 v10, v11, 4, v10")
    a("s_lshl_b32 s36, s18, 18"); a("s_lshl_b32 s42, s19, 9"); a("s_add_u32 s36, s36, s42")
    a("s_and_b32 s42, s21, 3"); a("s_lshl_b32 s42, s42, 7"); a("s_add_u32 s36, s36, s42")
    a("v_add_u32 v10, s36, v10")
    def odma(half):
        a(f"v_add_u32 v11, {half*64*2048}, v10")
        for i in range(8):
            a(f"s_add_u32 m0, s43, {half*8192 + i*1024}")
            a("s_nop 0")
            a("global_load_lds_dwordx4 v11, s[10:11] nt")
            if i < 7: a("v_add_u32 v11, 0x4000, v11")
    a("s_cmp_lt_u32 s21, 4"); a(f"s_cbranch_scc0 {L('wv_only')}")
    odma(1)
    a("s_waitcnt vmcnt(8)"); wread(0, 0)
    odma(0)
    a("v_lshrrev_b32 v12, 2, v0")
    a("v_lshlrev_b32 v12, 7, v12"); a("v_and_b32 v13, 3, v0"); a("v_lshl_add_u32 v12, v13, 4, v12"); a("v_add_u32 v12, s43, v12")
    a("s_waitcnt vmcnt(0)")
    def wo_reg(ct, jj):
        return f"v[{96+(ct*4+jj)*4}:{96+(ct*4+jj)*4+3}]"
    for ct in range(4):
        for jj in range(4):
            for lo in range(2):
                base = 96 + (ct*4 + jj)*4 + lo*2
                off = (32*jj + 16*lo)*128 + (ct >> 1)*64 + (ct & 1)*8
                a(f"ds_read_b64_tr_b16 v[{base}:{base+1}], v12 offset:{off}")
        a("s_waitcnt lgkmcnt(0)")
    a(f"s_branch {L('wdone')}")
    a.label(L('wv_only'))
    a("s_waitcnt vmcnt(0)"); wread(0, 0)
    a.label(L('wdone'))
    pstamp(a, prof, 89)

    a("s_load_dwordx2 s[34:35], s[0:1], 24")
    a("s_barrier")
    if kvwait and PAR["PF"]:
        a("s_lshl_b32 s36, s20, 3"); a("s_add_u32 s36, s36, s21"); a("s_mul_i32 s36, s36, 3072"); a(f"s_add_u32 s36, s36, {1 << 20}")
        a("v_add_u32 v20, s36, v6")
        a("s_waitcnt lgkmcnt(0)")
        for i in range(3): a(f"global_load_dwordx4 v[24:27], v20, s[34:35] offset:{i*1024}")
    a("s_waitcnt lgkmcnt(0)")
    if "nodump" in OPT: a(f"s_branch {L('nodump')}")
    a("s_cmp_lt_u32 s21, 4"); a(f"s_cbranch_scc0 {L('nodump')}")
    a("s_lshl_b32 s36, s19, 3"); a("s_lshl_b32 s42, s21, 1"); a("s_add_u32 s36, s36, s42"); a(f"s_mul_i32 s36, s36, {WOT_CG}")
    a("s_lshr_b32 s42, s18, 2"); a(f"s_mul_i32 s42, s42, {WOT_W}"); a("s_add_u32 s36, s36, s42")
    a("s_and_b32 s42, s18, 3"); a("s_lshl_b32 s42, s42, 13"); a("s_add_u32 s36, s36, s42"); a(f"s_add_u32 s36, s36, {WS_WOT}")
    a("v_add_u32 v20, s36, v6"); a("v_add_u32 v21, 0x1000, v20"); a(f"v_add_u32 v22, {WOT_CG}, v20"); a(f"v_add_u32 v23, {WOT_CG + 0x1000}, v20")
    for ct in range(4):
        for jj in range(4):
            a(f"global_store_dwordx4 v{20 + (ct >> 1)*2 + (jj >> 1)}, {wo_reg(ct, jj)}, s[16:17] offset:{(jj & 1)*2048 + (ct & 1)*1024} sc1")
    a.label(L('nodump'))
    a("s_cmp_eq_u32 s21, 7"); a(f"s_cbranch_scc0 {L('sync1')}")
    a("global_load_dwordx4 v[48:51], v9, s[32:33] sc1"); a("global_load_dwordx4 v[52:55], v8, s[32:33] sc1")
    a("v_and_b32 v11, 7, v0"); a("v_lshlrev_b32 v11, 11, v11"); a("s_lshl_b32 s36, s20, 4"); a("v_add_u32 v11, s36, v11")
    a("global_load_dwordx4 v[56:59], v11, s[12:13]")
    a("v_mov_b32 v17, 0"); a("s_lshr_b32 s36, s18, 3"); a("s_lshl_b32 s36, s36, 2"); a("v_mov_b32 v18, s36")
    a.label(L('clrw'))
    a(f"global_load_dwordx2 v[20:21], v17, s[14:15] offset:{DBG_VOTE} sc1"); a("s_waitcnt vmcnt(0)")
    a("v_readfirstlane_b32 s36, v20"); a("v_readfirstlane_b32 s37, v21")
    a("s_and_b32 s42, s36, 0xffff"); a("s_add_u32 s42, s42, s37"); a("s_cmp_eq_u32 s42, 384"); a(f"s_cbranch_scc1 {L('clrok')}")
    a("s_sleep 8")
    guard(a, L('clrw'), FAIL)
    a.label(L('clrok'))
    a("global_load_dword v21, v18, s[14:15] sc1")
    a("s_lshr_b32 s36, s36, 16"); a("s_cmp_gt_u32 s36, 64"); a("s_cselect_b32 s25, 1, 0")
    a("v_mov_b32 v20, s25"); a(f"v_mov_b32 v17, {L_PARW}")
    a(f"s_mov_b32 s42, {WS_MEMS}"); near(a, 34, "s42")
    a("v_add_u32 v11, s45, v6")
    a("s_mov_b64 exec, 0xff")
    for i in range(4): a(f"v_min_u32 v{56+i}, -2, v{56+i}")
    a("global_store_dwordx4 v11, v[56:59], s[34:35] sc1")
    a("s_mov_b64 exec, -1")
    a("s_waitcnt vmcnt(1)"); a("ds_write_b64 v17, v[20:21]")
    if kvwait:
        a("s_mov_b32 s53, 0"); kv_poll('kv0', "s53")
    for sg in range(2):
        a(f"s_mov_b32 s53, {sg}"); kv_bases("s53")
        a(f"s_mov_b32 s50, {L_KX + sg*8192}"); xdma("s[48:49]", "s50")
        a(f"s_mov_b32 s50, {L_VX + sg*8192}"); xdma("s[34:35]", "s50")
    a.label(L('sync1'))

    a("s_and_b32 s36, s21, 3"); a("s_lshl_b32 s36, s36, 11"); a("s_lshr_b32 s42, s21, 2"); a("s_lshl_b32 s42, s42, 14"); a("s_add_u32 s36, s36, s42")
    a("v_add_u32 v1, s36, v6")
    a("v_and_b32 v2, 8, v0"); a("v_cmp_eq_u32 vcc, 0, v2"); a("v_mov_b32 v2, 0xeeee"); a("v_mov_b32 v3, 0x4444"); a("s_nop 1")
    a("v_cndmask_b32 v2, v2, v3, vcc")
    a("s_mul_i32 s36, s21, 3072"); a("v_add_u32 v3, s36, v6")
    a("s_mov_b32 s22, 0"); a("s_mov_b32 s51, 1")
    a("s_waitcnt vmcnt(0) lgkmcnt(0)"); a("s_barrier")
    a(f"v_mov_b32 v24, {L_PARW}"); a("ds_read_b64 v[24:25], v24"); a("s_waitcnt lgkmcnt(0)")
    a("v_readfirstlane_b32 s25, v24"); a("v_readfirstlane_b32 s23, v25")
    a("s_and_b32 s25, s25, 1")
    if "safe" in OPT: a("s_mov_b32 s23, 0")
    a("s_lshl_b32 s36, s25, 13"); a("s_add_u32 s26, s16, s36"); a("s_addc_u32 s27, s17, 0")
    a(f"s_mov_b32 s42, {WS_MEMS}"); near(a, 28, "s42")
    a("s_lshr_b32 s38, s18, 1"); a("s_lshl_b32 s38, s38, 14"); a("s_and_b32 s36, s18, 1"); a("s_lshl_b32 s36, s36, 12"); a("s_add_u32 s38, s38, s36"); a(f"s_add_u32 s38, s38, {WS_KMVM}")
    near(a, 30, "s38")
    if prof:
        for k in range(8): a(f"s_mov_b32 s{60+k}, 0")
        a("s_memtime s[56:57]"); a("s_waitcnt lgkmcnt(0)"); a("s_mov_b32 s59, s56")
        pstamp(a, prof, 60)
    a("s_cmp_lt_u32 s21, 4"); a(f"s_cbranch_scc1 {L('setup_vo')}")
    a("s_cmp_eq_u32 s21, 6"); a(f"s_cbranch_scc1 {L('setup_sm')}")

    def zero_acc():
        for i in range(24): a(f"v_mov_b32 v{24+i}, 0")
    def pair(p): return [(2*p, 0), (2*p+1, 0), (2*p, 1), (2*p+1, 1)]
    def sm(tt, ks, mb):
        dd = 24 + tt*4; b = (tt*2 + ks)*8
        a(f"v_smfmac_f32_16x16x64_bf16 v[{dd}:{dd+3}], v[{mb+4*ks}:{mb+3+4*ks}], a[{b}:{b+7}], v2")
    def cv(p, i): a(f"v_cvt_pk_bf16_f32 v{24+8*p+i}, v{24+8*p+2*i}, v{25+8*p+2*i}")
    def mload(b):
        a(f"global_load_dwordx4 v[{b}:{b+3}], v1, s[28:29] sc1")
        a(f"global_load_dwordx4 v[{b+4}:{b+7}], v1, s[28:29] offset:1024 sc1")
    def mchk(b):
        a(f"v_max3_u32 v0, v{b}, v{b+1}, v{b+2}"); a(f"v_max3_u32 v7, v{b+3}, v{b+4}, v{b+5}"); a(f"v_max3_u32 v0, v0, v{b+6}, v{b+7}"); a("v_max_u32 v0, v0, v7")
        a("v_cmp_eq_u32 vcc, -1, v0")
    def p1_mm(mb):
        for t, k in pair(0): sm(t, k, mb)
        for t, k in pair(1): sm(t, k, mb)
        a("s_nop 3")
        for i, (t, k) in enumerate(pair(2)):
            cv(0, i)
            if i == 3: a("ds_write_b128 v3, v[24:27]")
            sm(t, k, mb)
    DM = PAR["DM"]

    def p1(name):
        if PAR["MDEL"]: a(f"s_sleep {PAR['MDEL']}")
        if DM == 2:
            mload(16)
            if PAR["MGAP"]: a(f"s_sleep {PAR['MGAP']}")
        a.label(L(name))
        mload(48 if DM == 2 else 16)
        a(f"s_waitcnt vmcnt({2*(DM-1)})")
        fs(a, prof, 0, 5)
        mchk(16)
        a(f"s_cbranch_vccnz {L(name + '_retry')}")
        stamp(a, prof, 0)
        fs(a, prof, 1, 5)
        p1_mm(16)
        a.label(L(name + '_j'))
        fs(a, prof, 3, 5)
        for i in range(4): cv(1, i)
        a("ds_write_b128 v3, v[32:35] offset:1024")
        fs(a, prof, 4, 5)
        a("s_nop 2")
        for i in range(4): cv(2, i)
        a("ds_write_b128 v3, v[40:43] offset:2048")
        fs(a, prof, 5, 5)
        a("s_waitcnt vmcnt(0) lgkmcnt(0)")
        fs(a, prof, 6, 5)
        a("s_barrier")
        fs(a, prof, 7, 5)
        if prof == 5: a("s_waitcnt lgkmcnt(0)")
        stamp(a, prof, 1)
    def p1_retry(name):
        a.label(L(name + '_retry'))
        if DM == 2:
            mload(16)
            a("s_waitcnt vmcnt(2)")
            mchk(48)
            a(f"s_cbranch_vccnz {L(name + '_g')}")
            stamp(a, prof, 0)
            p1_mm(48)
            a(f"s_branch {L(name + '_j')}")
            a.label(L(name + '_g'))
        guard(a, L(name), FAIL)

    def step_adv():
        zero_acc()
        a("s_add_u32 s22, s22, 1")
        a("s_add_u32 s28, s28, 0x8000"); a("s_addc_u32 s29, s29, 0")
        a("s_add_u32 s38, s38, 0x40000"); near(a, 30, "s38")
    def step_end():
        step_adv()
        a("s_waitcnt vmcnt(0) lgkmcnt(0)")
        a("s_barrier")
        stamp(a, prof, 7)

    a("s_sub_u32 s37, s21, 4"); a("s_min_u32 s37, s37, 2")
    a("s_lshl_b32 s36, s37, 10"); a("v_add_u32 v4, s36, v6")
    a("v_and_b32 v48, 1, v0"); a("v_lshlrev_b32 v48, 4, v48"); a("v_mov_b32 v49, 0x3f80"); a("v_lshlrev_b32 v48, v48, v49")
    a("v_bfe_u32 v49, v0, 3, 1"); a("v_bfe_u32 v50, v0, 1, 1"); a("v_lshl_add_u32 v49, v49, 1, v50")
    a("v_lshrrev_b32 v50, 2, v0"); a("v_xor_b32 v50, v50, v0"); a("v_and_b32 v50, 4, v50"); a("v_add_u32 v49, v49, v50")
    for q in range(4):
        a(f"v_cmp_eq_u32 vcc, {q}, v49"); a("s_nop 1"); a(f"v_cndmask_b32 v{84+q}, 0, v48, vcc")
    a("v_and_b32 v48, 7, v0"); a("v_lshlrev_b32 v48, 4, v48"); a("v_and_b32 v49, 8, v0"); a("v_lshrrev_b32 v50, 4, v0")
    a("v_add_u32 v51, v48, v49"); a("v_lshl_add_u32 v10, v50, 7, v51")
    a("s_lshl_b32 s36, s19, 9"); a("s_lshr_b32 s42, s37, 1"); a("s_lshl_b32 s42, s42, 11"); a("s_add_u32 s36, s36, s42"); a("v_add_u32 v10, s36, v10")
    a("v_lshl_add_u32 v5, v50, 8, v51"); a("s_lshl_b32 s36, s19, 10"); a("s_lshl_b32 s42, s37, 7"); a("s_add_u32 s36, s36, s42"); a("v_add_u32 v5, s36, v5")
    zero_acc()
    a(f"s_setprio {PAR['PPRIO']}")
    a("s_cmp_eq_u32 s21, 7"); a(f"s_cbranch_scc1 {L('setup_m')}")
    def reduce8():
        for w in range(8): a(f"ds_read_b128 v[{48+4*w}:{51+4*w}], v4 offset:{3072*w}")
        for w in range(8):
            a(f"s_waitcnt lgkmcnt({7-w})")
            a(f"v_mfma_f32_16x16x32_bf16 v[80:83], v[{48+4*w}:{51+4*w}], v[84:87], " + ("0" if w == 0 else "v[80:83]"))
    def pack_tag(tag, last):
        if last: a(f"s_cmp_eq_u32 s22, {NSTEP-1}")
        a("s_nop 6" if last else "s_nop 7")
        a("v_cvt_pk_bf16_f32 v88, v80, v81"); a("v_cvt_pk_bf16_f32 v89, v82, v83")
        if last: a(f"s_cbranch_scc1 {L(last)}")
        a("s_cmp_lt_u32 s23, 32")
        for i in range(2): a(f"v_or_b32 v{90+i}, 1, v{88+i}" if tag else f"v_and_b32 v{90+i}, -2, v{88+i}")
    a("v_add_u32 v11, s44, v6")
    a("v_and_b32 v15, 7, v0"); a("v_lshlrev_b32 v15, 4, v15"); a("v_bfe_u32 v48, v0, 4, 1"); a("v_lshl_add_u32 v15, v48, 3, v15"); a("v_add_u32 v15, s45, v15")
    a("v_and_b32 v48, 1, v0"); a("v_lshlrev_b32 v48, 4, v48"); a("v_mov_b32 v49, 0x3f80"); a("v_lshlrev_b32 v48, v48, v49")
    a("v_bfe_u32 v49, v0, 1, 3")
    for q in range(4):
        a(f"v_cmp_eq_u32 vcc, {q}, v49"); a("s_nop 1"); a(f"v_cndmask_b32 v{92+q}, 0, v48, vcc")
    DR = PAR["DR"]
    rsets = [96, 112, 128][:DR]
    def rload(b):
        for i in range(4): a(f"global_load_dwordx4 v[{b+4*i}:{b+3+4*i}], v11, s[26:27] offset:{1024*i} sc1")
    a.label(L('v_loop'))
    for tag in range(2):
        n = f"v{tag}"
        p1(n)
        reduce8()
        pack_tag(tag, 'last_pub' if tag == (NSTEP - 1) & 1 else None)
        a(f"s_cbranch_scc1 {L(n + '_wt')}")
        a("global_store_dwordx2 v5, v[90:91], s[32:33]")
        a.label(L(n + '_pd'))
        stamp(a, prof, 2)
        a("s_barrier")
        a("s_cmp_eq_u32 s21, 4"); a(f"s_cbranch_scc1 {L(n + '_red')}")
        if "nopers" not in OPT: a("global_store_dwordx2 v10, v[88:89], s[30:31] sc1")
        step_adv()
        a("s_waitcnt vmcnt(0)")
        a(f"s_branch {L(n + '_end')}")
        a.label(L(n + '_red'))
        step_adv()
        if PAR["RDEL"]: a(f"s_sleep {PAR['RDEL']}")
        stamp(a, prof, 5, 31)
        for d in range(DR - 1):
            rload(rsets[d])
            if PAR["RGAP"]: a(f"s_sleep {PAR['RGAP']}")
        a.label(L(n + '_rp'))
        for d in range(DR):
            rload(rsets[(d + DR - 1) % DR])
            a(f"s_waitcnt vmcnt({4*(DR-1)})")
            b = rsets[d]
            mf = [f"v_mfma_f32_16x16x32_bf16 v[64:67], v[92:95], v[{b+4*i}:{b+3+4*i}], " + ("0" if i == 0 else "v[64:67]") for i in range(4)]
            tagchk(a, list(range(b, b + 16)), tag, 73, 72, mf)
            a(f"s_cbranch_vccz {L(n + '_rok')}" if d < DR - 1 else f"s_cbranch_vccnz {L(n + '_rr')}")
        a.label(L(n + '_rok'))
        a("s_nop 3")
        for i in range(4): a(f"v_add_f32_dpp v{72+i}, v{64+i}, v{64+i} row_ror:8 row_mask:0xf bank_mask:0xf")
        a("s_mov_b64 exec, 0x00ff00ff")
        a("v_cvt_pk_bf16_f32 v76, v72, v73"); a("v_cvt_pk_bf16_f32 v77, v74, v75")
        a("v_min_u32 v76, -2, v76"); a("v_min_u32 v77, -2, v77")
        a("global_store_dwordx2 v15, v[76:77], s[28:29] sc1")
        a("s_mov_b64 exec, -1")
        stamp(a, prof, 6, 31)
        if PAR["MACK"]: a("s_waitcnt vmcnt(0)")
        a.label(L(n + '_end'))
        a("s_barrier")
        stamp(a, prof, 7)
    a(f"s_branch {L('v_loop')}")
    for tag in range(2):
        n = f"v{tag}"
        p1_retry(n)
        a.label(L(n + '_wt')); a("global_store_dwordx2 v5, v[90:91], s[32:33] sc1"); a(f"s_branch {L(n + '_pd')}")
        a.label(L(n + '_rr')); guard(a, L(n + '_rp'), FAIL)

    a.label(L('setup_m'))
    a("v_lshrrev_b32 v5, 5, v0"); a("v_lshl_add_u32 v5, v5, 8, v48"); a("v_bfe_u32 v50, v0, 3, 2"); a("v_lshl_add_u32 v5, v50, 2, v5")
    a("s_lshl_b32 s36, s19, 9"); a("s_add_u32 s36, s36, 4096"); a("v_add_u32 v5, s36, v5")
    a("v_mov_b32 v93, 0")
    def progress(tagname):
        a("s_cmp_eq_u32 s20, 0"); a(f"s_cbranch_scc0 {L(tagname)}")
        a("v_mov_b32 v92, s22")
        a("s_mov_b64 exec, 1")
        a(f"global_store_dword v93, v92, s[14:15] offset:{DBG_PROG} sc1")
        a("s_mov_b64 exec, -1")
        a.label(L(tagname))
    a.label(L('m_loop'))
    for tag in range(2):
        n = f"m{tag}"
        p1(n)
        reduce8()
        pack_tag(tag, 'fin_m' if tag == (NSTEP - 1) & 1 else None)
        a(f"s_cbranch_scc1 {L(n + '_wt')}")
        a("global_store_dword v5, v90, s[32:33]"); a("global_store_dword v5, v91, s[32:33] offset:128")
        a.label(L(n + '_pd'))
        a("s_barrier")
        if "nopers" not in OPT: a("global_store_dwordx2 v10, v[88:89], s[30:31] sc1")
        progress(n + '_pg')
        if kvwait:
            a("s_add_u32 s53, s22, 3"); a("s_min_u32 s53, s53, 63"); a("s_lshr_b32 s53, s53, 3")
            a("s_cmp_lt_u32 s53, s51"); a(f"s_cbranch_scc1 {L(n + '_kvh')}")
            kv_poll(n + '_kv', "s53")
            a("s_add_u32 s51, s53, 1")
            a.label(L(n + '_kvh'))
        step_end()
    a(f"s_branch {L('m_loop')}")
    for tag in range(2):
        n = f"m{tag}"
        p1_retry(n)
        a.label(L(n + '_wt'))
        a("global_store_dword v5, v90, s[32:33] sc1"); a("global_store_dword v5, v91, s[32:33] offset:128 sc1"); a(f"s_branch {L(n + '_pd')}")
    a.label(L('fin_m'))
    progress('pg_last')
    a(f"s_branch {L('last_pub')}")

    a.label(L('setup_sm'))
    a(f"v_add_u32 v14, {L_KX}, v6")
    a("v_and_b32 v16, 7, v0"); a("v_lshrrev_b32 v17, 4, v0"); a("v_lshl_add_u32 v9, v17, 3, v16"); a("v_lshlrev_b32 v9, 4, v9"); a("v_and_b32 v18, 8, v0"); a("v_add_u32 v9, v9, v18")
    a("v_and_b32 v17, 1, v17"); a("v_lshl_add_u32 v10, v17, 3, v16"); a("v_lshlrev_b32 v10, 4, v10")
    a("v_lshrrev_b32 v17, 5, v0"); a("v_lshl_add_u32 v10, v17, 2, v10"); a("v_lshrrev_b32 v18, 2, v18"); a("v_add_u32 v10, v10, v18")
    a("s_mov_b32 s46, 0x3e0293ee")
    for i in range(4): a(f"v_mov_b32 v{84+i}, 0")
    a(f"ds_write_b128 v6, v[84:87] offset:{L_ZERO}"); a(f"ds_write_b128 v6, v[84:87] offset:{L_ZERO + 1024}")
    def k_load():
        for i in range(8): a(f"ds_read_b128 v[{96+4*i}:{99+4*i}], v14 offset:{1024*i}")
        a("v_xor_b32 v14, 0x2000, v14")
    k_load()
    zero_acc()
    a("s_setprio 2")
    def xload(b):
        for jj in range(4): a(f"global_load_dwordx4 v[{b+4*jj}:{b+3+4*jj}], v6, s[32:33] offset:{1024*jj} sc1")
    def s_mfma(b, t, jj):
        X = f"v[{b+4*jj}:{b+3+4*jj}]"
        d = 64 + 4*t
        A = X if t == 2 else f"v[{96+(t*4+jj)*4}:{99+(t*4+jj)*4}]"
        return f"v_mfma_f32_16x16x32_bf16 v[{d}:{d+3}], {A}, {X}, " + (f"v[{d}:{d+3}]" if jj else "0")
    def s_head(b, tag):
        tagchk(a, list(range(b, b + 16)), tag, 15, 16, [s_mfma(b, 2, jj) for jj in range(3)])
    def s_rest(b):
        a(s_mfma(b, 2, 3))
        for jj in range(4): a(s_mfma(b, 1, jj))
        for jj in range(4): a(s_mfma(b, 0, jj))
    XD = PAR["XD"]
    a.label(L('s_loop'))
    for tag in range(2):
        n = f"s{tag}"
        p1(n)
        if tag == (NSTEP - 1) & 1:
            a(f"s_cmp_eq_u32 s22, {NSTEP-1}"); a(f"s_cbranch_scc1 {L('fin')}")
        if PAR["XDEL"]: a(f"s_sleep {PAR['XDEL']}")
        if XD == 2:
            xload(48)
            if PAR["XGAP"]: a(f"s_sleep {PAR['XGAP']}")
        a.label(L(n + '_xp'))
        xload(128 if XD == 2 else 48)
        a(f"s_waitcnt vmcnt({4*(XD-1)})")
        fs(a, prof, 0, 4)
        s_head(48, tag)
        a(f"s_cbranch_vccnz {L(n + '_xr')}")
        stamp(a, prof, 2)
        fs(a, prof, 1, 4)
        s_rest(48)
        a.label(L(n + '_xj'))
        fs(a, prof, 2, 4)
        dpp = "row_shr:8 row_mask:0xf bank_mask:0xc"
        a(f"v_mov_b32_dpp v72, v73 {dpp}"); a(f"v_mov_b32_dpp v74, v75 {dpp}")
        a("s_nop 1")
        a("v_permlane32_swap_b32 v72, v74")
        a("s_nop 2")
        for i in range(4): a(f"v_mov_b32_dpp v{64+i}, v{68+i} {dpp}")
        a("v_max3_f32 v16, v74, v64, v65"); a("v_max3_f32 v16, v16, v66, v67")
        fs(a, prof, 3, 4)
        a("s_nop 1"); a("v_max_f32_dpp v16, v16, v16 row_ror:8 row_mask:0xf bank_mask:0xf")
        a("v_mov_b32 v17, v16"); a("s_nop 1"); a("v_permlane16_swap_b32 v16, v17"); a("v_max_f32 v16, v16, v17")
        a("v_mov_b32 v17, v16"); a("s_nop 1"); a("v_permlane32_swap_b32 v16, v17"); a("v_max_f32 v16, v16, v17")
        fs(a, prof, 4, 4)
        a("v_mul_f32 v16, s46, v16")
        for rg in (74, 64, 65, 66, 67): a(f"v_fma_f32 v{rg}, v{rg}, s46, -v16")
        a("v_exp_f32 v74, v74"); a("v_exp_f32 v64, v64")
        a("v_cvt_pk_bf16_f32 v82, v74, v74")
        a("v_exp_f32 v65, v65")
        a(f"ds_write_b16 v10, v82 offset:{L_P + 1024}")
        a("v_exp_f32 v66, v66")
        a(f"ds_write_b16 v10, v82 offset:{L_P + 1280}")
        a("v_exp_f32 v67, v67")
        a("v_cvt_pk_bf16_f32 v80, v64, v65")
        a("v_cvt_pk_bf16_f32 v81, v66, v67")
        a(f"ds_write_b64 v9, v[80:81] offset:{L_P}")
        fs(a, prof, 5, 4)
        a("s_waitcnt lgkmcnt(0)"); fs(a, prof, 6, 4); a("s_barrier"); fs(a, prof, 7, 4)
        stamp(a, prof, 3)
        k_load()
        step_end()
    a(f"s_branch {L('s_loop')}")
    for tag in range(2):
        n = f"s{tag}"
        p1_retry(n)
        a.label(L(n + '_xr'))
        if XD == 2:
            xload(48)
            a("s_waitcnt vmcnt(4)")
            s_head(128, tag)
            a(f"s_cbranch_vccnz {L(n + '_xg')}")
            stamp(a, prof, 2)
            s_rest(128)
            a(f"s_branch {L(n + '_xj')}")
            a.label(L(n + '_xg'))
        guard(a, L(n + '_xp'), FAIL)

    a.label(L('setup_vo'))
    a("v_add_u32 v8, 0x1000, v6"); a("v_lshrrev_b32 v9, 4, v0")
    a("s_lshl_b32 s36, s19, 5"); a("s_lshl_b32 s42, s21, 3"); a("s_add_u32 s36, s36, s42")
    a("v_add_u32 v9, s36, v9"); a("v_bfe_u32 v11, v0, 3, 1"); a("v_lshl_add_u32 v9, v11, 2, v9")
    a("v_and_b32 v11, 1, v9"); a("v_lshlrev_b32 v11, 12, v11"); a("v_lshrrev_b32 v9, 1, v9"); a("v_lshl_add_u32 v9, v9, 14, v11")
    a("v_and_b32 v11, 7, v0"); a("v_lshl_add_u32 v9, v11, 4, v9"); a("s_lshl_b32 s36, s18, 7"); a("v_add_u32 v9, s36, v9")
    a("v_lshrrev_b32 v12, 4, v0"); a("v_and_b32 v13, 7, v0"); a("v_lshl_add_u32 v12, v12, 3, v13"); a("v_lshlrev_b32 v12, 4, v12"); a(f"v_add_u32 v12, {L_P}, v12"); a(f"v_mov_b32 v11, {L_ZERO}")
    a("v_and_b32 v13, 8, v0"); a("v_cmp_eq_u32 vcc, 0, v13"); a("s_nop 1")
    a("v_cndmask_b32 v13, v12, v11, vcc"); a("v_cndmask_b32 v12, v11, v12, vcc")
    a(f"v_add_u32 v14, {L_VX}, v6")
    a("s_lshr_b32 s36, s21, 1"); a(f"s_mul_i32 s54, s36, {WS_VX - WS_KX}"); a(f"s_mul_i32 s55, s36, {L_VX - L_KX}")
    a("s_and_b32 s36, s21, 1"); a("s_lshl_b32 s36, s36, 12"); a("s_add_u32 s54, s54, s36"); a("s_add_u32 s55, s55, s36"); a(f"s_add_u32 s55, s55, {L_KX}")
    a("s_lshl_b32 s36, s18, 14"); a("s_add_u32 s54, s54, s36"); a(f"s_add_u32 s54, s54, {WS_KX}")
    def u_load():
        for i in range(8): a(f"ds_read_b128 v[{16+4*i}:{19+4*i}], v14 offset:{1024*i}")
        a("v_xor_b32 v14, 0x2000, v14")
    def u_half(hf):
        for jj in range(4):
            for c2 in range(2):
                for kt in range(2):
                    d = 64 + (c2*2 + kt)*4
                    A = 16 + (kt*4 + jj)*4
                    a(f"v_mfma_f32_16x16x32_bf16 v[{d}:{d+3}], v[{A}:{A+3}], {wo_reg(2*hf+c2, jj)}, " + ("0" if jj == 0 else f"v[{d}:{d+3}]"))
        a("s_nop 7")
        for c2 in range(2):
            for kt in range(2):
                d = 64 + (c2*2 + kt)*4
                u = 80 + (2*hf + c2)*4 + kt*2
                a(f"v_cvt_pk_bf16_f32 v{u}, v{d}, v{d+1}"); a(f"v_cvt_pk_bf16_f32 v{u+1}, v{d+2}, v{d+3}")
    def vo_prep(tag, ahead):
        for i in range(4): a(f"v_mov_b32 v{56+i}, 0x3f803f80")
        for i in range(4): a(f"v_mov_b32 v{60+i}, 0x3f003f00")
        for i in range(16): a(f"v_mov_b32 v{64+i}, 0")
        a(f"s_add_u32 s53, s22, {2 + ahead}"); a("s_min_u32 s53, s53, 63"); a("s_lshl_b32 s53, s53, 19"); a("s_add_u32 s53, s53, s54"); near(a, 48, "s53")
        a(f"s_add_u32 m0, s55, {tag*8192}")
    u_load(); a("s_waitcnt lgkmcnt(0)"); u_half(0); u_half(1)
    vo_prep(0, 0)
    zero_acc()
    if PAR["PRIO"]: a("s_setprio 1")
    a.label(L('o_loop'))
    for tag in range(2):
        n = f"o{tag}"
        p1(n)
        if tag == (NSTEP - 1) & 1:
            a(f"s_cmp_eq_u32 s22, {NSTEP-1}"); a(f"s_cbranch_scc1 {L('fin')}")
        if PAR["VDEL"]: a(f"s_sleep {PAR['VDEL']}")
        a.label(L(n + '_vp'))
        for k in range(2): a(f"global_load_dwordx4 v[{48+4*k}:{51+4*k}], v8, s[32:33] offset:{1024*k} sc1")
        a("s_waitcnt vmcnt(0)")
        tagchk(a, list(range(48, 56)), tag, 17, 16)
        a(f"s_cbranch_vccnz {L(n + '_vr')}")
        for k in range(2):
            for ct in range(4):
                b = 96 + (ct*4 + 2*k)*4
                a(f"v_smfmac_f32_16x16x64_bf16 v[{64+4*ct}:{67+4*ct}], v[{48+4*k}:{51+4*k}], v[{b}:{b+7}], v2")
        a("s_nop 4")
        for ct in range(4):
            if ct == 3: a("s_nop 1")
            t = 24 + (ct & 1)*4 + (ct >> 1)*2
            a(f"v_cvt_pk_bf16_f32 v{t}, v{64+4*ct}, v{65+4*ct}"); a(f"v_cvt_pk_bf16_f32 v{t+1}, v{66+4*ct}, v{67+4*ct}")
        if "nodma" not in OPT:
            for jj in range(4): a(f"global_load_lds_dwordx4 v6, s[48:49] offset:{jj*1024} sc1")
        stamp(a, prof, 3)
        a("s_barrier")
        a("ds_read_b64 v[36:37], v12 offset:1024"); a("ds_read_b64 v[38:39], v13 offset:1024")
        a("ds_read_b128 v[32:35], v12"); a("ds_read_b128 v[48:51], v13")
        a("s_waitcnt lgkmcnt(2)")
        stamp(a, prof, 4)
        a("v_mfma_f32_16x16x32_bf16 v[40:43], v[60:63], v[36:39], 0")
        a("v_mfma_f32_16x16x32_bf16 v[64:67], v[24:27], v[36:39], 0")
        a("s_waitcnt lgkmcnt(0)")
        a("v_or_b32 v44, v32, v48"); a("v_or_b32 v45, v33, v49")
        a("v_or_b32 v46, v34, v50"); a("v_or_b32 v47, v35, v51")
        a("v_mfma_f32_16x16x32_bf16 v[68:71], v[28:31], v[36:39], 0")
        a("v_mfma_f32_16x16x32_bf16 v[64:67], v[80:83], v[32:35], v[64:67]")
        a("v_mfma_f32_16x16x32_bf16 v[40:43], v[56:59], v[44:47], v[40:43]")
        a("v_mfma_f32_16x16x32_bf16 v[68:71], v[84:87], v[32:35], v[68:71]")
        a("v_mfma_f32_16x16x32_bf16 v[64:67], v[88:91], v[48:51], v[64:67]")
        a("v_mfma_f32_16x16x32_bf16 v[68:71], v[92:95], v[48:51], v[68:71]")
        a("s_nop 4")
        a("v_rcp_f32 v40, v40")
        a("s_nop 0")
        for i in range(8): a(f"v_mul_f32 v{64+i}, v{64+i}, v40")
        for i in range(4): a(f"v_cvt_pk_bf16_f32 v{48+i}, v{64+2*i}, v{65+2*i}")
        for i in range(4): a(f"v_or_b32 v{48+i}, 1, v{48+i}" if tag else f"v_and_b32 v{48+i}, -2, v{48+i}")
        a("global_store_dwordx4 v9, v[48:51], s[26:27] sc1")
        stamp(a, prof, 5)
        u_load(); a("s_waitcnt lgkmcnt(0)"); u_half(0)
        u_half(1)
        vo_prep(tag ^ 1, 1)
        step_end()
    a(f"s_branch {L('o_loop')}")
    for tag in range(2):
        n = f"o{tag}"
        p1_retry(n)
        a.label(L(n + '_vr')); guard(a, L(n + '_vp'), FAIL)

    a.label(L('last_pub'))
    a("s_cmp_eq_u32 s21, 4"); a(f"s_cbranch_scc1 {L('fin')}")
    a("global_store_dwordx2 v10, v[88:89], s[30:31] sc1")
    a.label(L('fin'))
    a("s_waitcnt vmcnt(0)"); a("s_barrier")
    a("s_cmp_eq_u32 s21, 0"); a(f"s_cbranch_scc0 {L('end')}")
    a("s_lshl_b32 s36, s18, 7"); a("s_lshl_b32 s42, s19, 2"); a("s_add_u32 s36, s36, s42"); a(f"s_add_u32 s36, s36, {WS_FLAG + 8192}")
    a("v_mov_b32 v16, s36"); a("v_mov_b32 v17, 0")
    a("s_mov_b64 exec, 1")
    a("global_store_dword v16, v17, s[16:17] sc1")
    a("s_mov_b64 exec, -1")
    a(f"s_branch {L('end')}")
    a.label(FAIL)
    a("v_mov_b32 v16, 0"); a("v_mov_b32 v17, 0xdead"); a("global_store_dword v16, v17, s[14:15] offset:252")
    a.label(L('end'))
    if prof:
        if prof == 3:
            a("s_memrealtime s[56:57]"); a("s_waitcnt lgkmcnt(0)"); a("s_mov_b32 s61, s56"); a("s_mov_b32 s62, s25"); a("s_mov_b32 s63, s90"); a("s_mov_b32 s64, s91"); a("s_mov_b32 s65, s89")
        if prof > 3:
            a("s_waitcnt lgkmcnt(0)")
            for k in range(8): a(f"s_sub_u32 s{60+k if k < 6 else 84+k}, s{66+2*k}, s66")
            a("s_mov_b32 s66, s90"); a("s_mov_b32 s67, s91")
        a("s_lshl_b32 s36, s20, 3"); a("s_add_u32 s36, s36, s21"); a("s_lshl_b32 s36, s36, 5"); a(f"s_add_u32 s36, s36, {200<<20}")
        a("v_mov_b32 v16, s36")
        for k in range(8): a(f"v_mov_b32 v{24+k}, s{60+k}")
        a("s_mov_b64 exec, 1")
        a("global_store_dwordx4 v16, v[24:27], s[16:17]"); a("global_store_dwordx4 v16, v[28:31], s[16:17] offset:16")
    a("s_endpgm")
```

```python
import sys, os
sys.path.insert(0, os.path.dirname(__file__))
from asmgen import *
import gemm
import rec2 as rec
from gemm import acc, R

NAME = "concat_heads__linear_attn_block__memory_aug_recurrent_mem_tr__prompt"
WS_O   = 84 << 20
WS_OA  = 100 << 20
WS_KVP = 105 << 20
OA_T = 36864
D_OVF, D_AKV, D_KV, D_AO, D_O = 32, 36, 64, 96, 128
D_PROG = rec.DBG_PROG
WSPIN = 400000
LOG2E = 0x3fb8aa3b
EPS = 0x358637bd
SCL = 0x3e0293ee


def load_ptrs(a):
    a("s_load_dwordx16 s[4:19], s[0:1], 0"); a("s_load_dwordx2 s[20:21], s[0:1], 64")
    a("s_load_dwordx4 s[24:27], s[0:1], 80"); a("s_load_dwordx2 s[28:29], s[0:1], 96")

def signal(a, off_sgpr_or_imm, val=1):
    lab = a.newlabel("sig")
    a("s_waitcnt vmcnt(0)"); a("s_barrier")
    a("s_cmp_lg_u32 s75, 0"); a(f"s_cbranch_scc1 {lab}")
    a(f"v_mov_b32 v16, {off_sgpr_or_imm}"); a(f"v_mov_b32 v17, {val}")
    a("s_mov_b64 exec, 1")
    a("global_atomic_add v16, v17, s[26:27] sc1")
    a("s_mov_b64 exec, -1")
    a.label(lab)

def wait_cnt(a, off, target):
    lp, ok, done = a.newlabel("wl"), a.newlabel("wo"), a.newlabel("wd")
    a("s_cmp_lg_u32 s75, 0"); a(f"s_cbranch_scc1 {done}")
    a(f"v_mov_b32 v16, {off}")
    a.label(lp)
    a("global_load_dword v17, v16, s[26:27] sc1"); a("s_waitcnt vmcnt(0)")
    a(f"v_cmp_ne_u32 vcc, {target}, v17"); a(f"s_cbranch_vccz {ok}")
    a("s_sleep 8")
    a("s_add_u32 s46, s46, 1"); a(f"s_cmp_lt_u32 s46, {WSPIN}"); a(f"s_cbranch_scc1 {lp}")
    a("s_branch w_fail")
    a.label(ok)
    a("buffer_inv sc1"); a("s_waitcnt vmcnt(0)")
    a.label(done)
    a("s_barrier")

def learn_parity(a):
    lp, ok = a.newlabel("vl"), a.newlabel("vo")
    a("v_mov_b32 v16, 0")
    a.label(lp)
    a(f"global_load_dword v17, v16, s[26:27] offset:{rec.DBG_VOTE} sc1"); a("s_waitcnt vmcnt(0)")
    a("v_readfirstlane_b32 s22, v17"); a("s_and_b32 s32, s22, 0xffff"); a("s_cmp_eq_u32 s32, 256"); a(f"s_cbranch_scc1 {ok}")
    a("s_sleep 8")
    a("s_add_u32 s46, s46, 1"); a(f"s_cmp_lt_u32 s46, {WSPIN}"); a(f"s_cbranch_scc1 {lp}")
    a("s_branch w_fail")
    a.label(ok)
    a("s_lshr_b32 s22, s22, 16"); a("s_cmp_gt_u32 s22, 64"); a("s_cselect_b32 s22, 1, 0")

def phi(a, regs):
    for i in range(0, len(regs), 8):
        b = regs[i:i+8]
        for k, r in enumerate(b): a(f"v_mul_f32 v{16+k}, s40, v{r}")
        for k, r in enumerate(b): a(f"v_min_f32 v{16+k}, 0, v{16+k}")
        for k, r in enumerate(b): a(f"v_exp_f32 v{16+k}, v{16+k}")
        for k, r in enumerate(b): a(f"v_max_f32 v{r}, 0, v{r}")
        for k, r in enumerate(b): a(f"v_add_f32 v{r}, v{r}, v{16+k}")
        for k, r in enumerate(b): a(f"v_add_f32 v{r}, s41, v{r}")

def pack_frags(a):
    for tt in range(4):
        for jj in range(4):
            s = acc(tt, 2*jj); d = 32 + (tt*4 + jj)*4
            for i in range(4): a(f"v_cvt_pk_bf16_f32 v{d+i}, v{s+2*i}, v{s+2*i+1}")
def frag(tt, jj): return R('v', 32 + (tt*4 + jj)*4)

PROF = False
def wstamp(a, k):
    if not PROF: return
    lab = a.newlabel("ws")
    a("s_cmp_lg_u32 s75, 0"); a(f"s_cbranch_scc1 {lab}")
    a("s_memrealtime s[56:57]"); a("s_waitcnt lgkmcnt(0)")
    a("s_lshl_b32 s58, s44, 5"); a("s_add_u32 s58, s58, s45"); a("s_lshl_b32 s58, s58, 6"); a("s_lshl_b32 s57, s59, 2"); a("s_add_u32 s58, s58, s57"); a(f"s_add_u32 s58, s58, {201 << 20}")
    a("v_mov_b32 v16, s58"); a("v_mov_b32 v17, s56"); a("global_store_dword v16, v17, s[28:29]")
    a("s_memtime s[56:57]"); a("s_waitcnt lgkmcnt(0)"); a("v_mov_b32 v17, s56"); a("v_add_u32 v16, 0x100000, v16"); a("global_store_dword v16, v17, s[28:29]")
    a("s_add_u32 s59, s59, 1")
    a.label(lab)

ROT = False
def rot(a, rsh, csh):
    if not ROT:
        a("s_mov_b32 s77, 0"); return
    a(f"s_lshl_b32 s77, s31, {rsh}"); a(f"s_lshl_b32 s74, s30, {csh}"); a("s_add_u32 s77, s77, s74"); a("s_and_b32 s77, s77, 15")

def task_g1(a, MT, grp):
    gemm.setup_a_rowmajor(a, 2048, MT); gemm.setup_w(a, 8192)
    a("s_lshl_b32 s32, s31, 15"); a("s_add_u32 s80, s10, s32"); a("s_addc_u32 s81, s11, 0")
    a("s_cmp_lt_u32 s30, 16"); a("s_cselect_b32 s82, s16, s18"); a("s_cselect_b32 s83, s17, s19")
    a(f"s_cselect_b32 s33, {rec.WS_KX >> 20}, {rec.WS_VX >> 20}"); a("s_lshl_b32 s33, s33, 20")
    a("s_and_b32 s35, s30, 15"); a("s_lshl_b32 s32, s35, 9"); a("s_add_u32 s82, s82, s32"); a("s_addc_u32 s83, s83, 0")
    a("s_mov_b32 s66, 7"); a("s_mov_b32 s77, 0")
    gemm.call(a, "core_T" + ("" if MT == 4 else str(MT)))
    wstamp(a, 0)
    if grp == 0: learn_parity(a)
    a("s_lshl_b32 s34, s35, 1"); a("s_add_u32 s34, s34, s73"); a("s_lshl_b32 s34, s34, 14"); a("s_add_u32 s33, s33, s34")
    a(f"s_mul_i32 s36, s72, {MT}"); a("s_add_u32 s36, s36, s31")
    a("v_lshlrev_b32 v19, 4, v0")
    for tt in range(MT):
        a(f"s_add_u32 s32, s36, {tt}"); a("s_and_b32 s34, s32, 1"); a("s_lshl_b32 s34, s34, 12"); a("s_lshr_b32 s32, s32, 1"); a("s_lshl_b32 s32, s32, 19")
        a("s_add_u32 s32, s32, s34"); a("s_add_u32 s32, s32, s33")
        a("s_lshr_b32 s34, s32, 21"); a("s_xor_b32 s34, s34, s22"); a("s_and_b32 s34, s34, 1"); a("s_lshl_b32 s34, s34, 13"); a("s_add_u32 s32, s32, s34")
        a(f"v_add_u32 v{20+tt}, s32, v19")
    gemm.epi_frag_store(a, "s[28:29]", "sc1", MT)
    if grp == 0: signal(a, D_KV, 1)
    else:
        a(f"s_mov_b32 s88, {D_KV + 4*grp}"); a("s_mov_b32 s89, 1")

def task_g4kv(a):
    def colmap(a, v):
        a(f"v_bfe_u32 v18, v{v}, 3, 1"); a("v_lshlrev_b32 v18, 11, v18")
        a(f"v_lshrrev_b32 v19, 4, v{v}"); a("v_lshl_add_u32 v18, v19, 7, v18")
        a(f"v_and_b32 v{v}, 7, v{v}"); a(f"v_lshl_add_u32 v{v}, v{v}, 4, v18")
    gemm.setup_a_rowmajor(a, 2048); gemm.setup_w(a, 6144, colmap)
    a("s_lshl_b32 s32, s31, 19"); a("s_add_u32 s80, s4, s32"); a("s_addc_u32 s81, s5, 0")
    a("s_lshl_b32 s32, s30, 8"); a("s_add_u32 s32, s32, 2048"); a("s_add_u32 s82, s6, s32"); a("s_addc_u32 s83, s7, 0")
    a("s_mov_b32 s66, 7"); rot(a, 1, 2)
    gemm.call(a, "core_N")
    wstamp(a, 0)
    a(f"s_mov_b32 s40, {LOG2E}"); a(f"s_mov_b32 s41, {EPS}")
    phi(a, [acc(tt, 0) + i for tt in range(4) for i in range(16)])
    for tp in range(2):
        for ft in range(8):
            x = acc(2*tp, ft); y = acc(2*tp+1, ft)
            a(f"v_cvt_pk_bf16_f32 v{x}, v{x}, v{x+1}"); a(f"v_cvt_pk_bf16_f32 v{x+1}, v{x+2}, v{x+3}")
            a(f"v_cvt_pk_bf16_f32 v{x+2}, v{y}, v{y+1}"); a(f"v_cvt_pk_bf16_f32 v{x+3}, v{y+2}, v{y+3}")
    for i in range(4): a(f"v_mov_b32 v{16+i}, 0x3f803f80")
    a("v_lshlrev_b32 v20, 4, v0"); a("s_mul_i32 s32, s73, 49152"); a("s_lshl_b32 s33, s72, 10"); a("s_add_u32 s32, s32, s33"); a("v_add_u32 v21, s32, v20")
    outb = lambda hd, et, dt: (64 if hd == 0 else 128) + (et*2 + dt)*4
    for tp in range(2):
        for hd in range(2):
            for et in range(3):
                for dt in range(2):
                    D = R('v', outb(hd, et, dt)); A = R('v', acc(2*tp, 2*hd + dt)); B = R('v', acc(2*tp, 4 + 2*hd + et)) if et < 2 else "v[16:19]"
                    a(f"v_mfma_f32_16x16x32_bf16 {D}, {A}, {B}, " + ("0" if tp == 0 else D))
    a("s_barrier")
    a("s_nop 7")
    for hd in range(2):
        for f in range(6):
            a(f"ds_write_b128 v21, {R('v', outb(hd, f >> 1, f & 1))} offset:{(hd*6 + f)*4096}")
    a("s_mul_i32 s32, s75, 12288"); a("v_add_u32 v21, s32, v20")
    a("s_waitcnt lgkmcnt(0)"); a("s_barrier")
    for k in range(3):
        for m in range(4): a(f"ds_read_b128 {R('v', 32 + (k*4 + m)*4)}, v21 offset:{k*4096 + m*1024}")
    a("s_lshl_b32 s32, s31, 5"); a("s_lshl_b32 s33, s30, 2"); a("s_add_u32 s32, s32, s33"); a("s_mul_i32 s32, s32, 6144")
    a("s_mul_i32 s33, s75, 3072"); a("s_add_u32 s32, s32, s33"); a(f"s_add_u32 s32, s32, {WS_KVP}"); a("v_add_u32 v22, s32, v20")
    a("s_waitcnt lgkmcnt(0)")
    for k in range(3):
        b = 32 + k*16
        for h in range(2):
            a(f"v_pk_add_f32 v[{b+2*h}:{b+2*h+1}], v[{b+2*h}:{b+2*h+1}], v[{b+4+2*h}:{b+5+2*h}]")
            a(f"v_pk_add_f32 v[{b+8+2*h}:{b+9+2*h}], v[{b+8+2*h}:{b+9+2*h}], v[{b+12+2*h}:{b+13+2*h}]")
        for h in range(2):
            a(f"v_pk_add_f32 v[{b+2*h}:{b+2*h+1}], v[{b+2*h}:{b+2*h+1}], v[{b+8+2*h}:{b+9+2*h}]")
        a(f"global_store_dwordx4 v22, {R('v', b)}, s[28:29] offset:{k*1024} sc1")
    signal(a, D_AKV)

def task_g4q(a):
    gemm.setup_a_rowmajor(a, 2048); gemm.setup_w(a, 6144)
    a("s_lshl_b32 s32, s31, 19"); a("s_add_u32 s80, s4, s32"); a("s_addc_u32 s81, s5, 0")
    a("s_lshl_b32 s32, s30, 9"); a("s_add_u32 s82, s6, s32"); a("s_addc_u32 s83, s7, 0")
    a("s_mov_b32 s66, 7"); rot(a, 1, 2)
    gemm.call(a, "core_T")
    wstamp(a, 0)
    a(f"s_mov_b32 s40, {LOG2E}"); a(f"s_mov_b32 s41, {EPS}")
    phi(a, list(range(32, 160)))
    pack_frags(a)
    wstamp(a, 0)
    wait_cnt(a, D_AKV, 64)
    wstamp(a, 0)
    a("v_lshlrev_b32 v16, 4, v0")
    for r in range(1, 8): a(f"v_add_u32 v{16+r}, {r*196608}, v16")
    a("s_lshl_b32 s32, s30, 3"); a("s_add_u32 s32, s32, s75"); a("s_mul_i32 s32, s32, 6144"); a(f"s_add_u32 s32, s32, {WS_KVP}")
    a("s_add_u32 s34, s28, s32"); a("s_addc_u32 s35, s29, 0")
    a("s_mul_i32 s32, s75, 3072"); a("v_add_u32 v24, s32, v16")
    for et in range(3):
        for r in range(8):
            for dt in range(2):
                a(f"global_load_dwordx4 {R('v', 96 + (r*2 + dt)*4)}, v{16+r}, s[34:35] offset:{dt*1024} sc1")
        a("s_add_u32 s34, s34, 2048"); a("s_addc_u32 s35, s35, 0")
        a("s_waitcnt vmcnt(0)")
        for step in (32, 16, 8):
            for i in range(0, step, 2):
                a(f"v_pk_add_f32 v[{96+i}:{97+i}], v[{96+i}:{97+i}], v[{96+step+i}:{97+step+i}]")
        for i in range(4): a(f"v_cvt_pk_bf16_f32 v{28+i}, v{96+2*i}, v{97+2*i}")
        a(f"ds_write_b128 v24, v[28:31] offset:{et*1024}")
    a("s_mul_i32 s32, s73, 12288"); a("v_add_u32 v24, s32, v16")
    a("s_waitcnt lgkmcnt(0)"); a("s_barrier")
    for i in range(12): a(f"ds_read_b128 {R('a', i*4)}, v24 offset:{i*1024}")
    gemm.lane_chunk(a, 25, 26)
    a("v_and_b32 v26, 15, v0"); a("v_lshl_add_u32 v25, v25, 4, v26"); a("v_lshlrev_b32 v25, 4, v25")
    a("s_lshl_b32 s32, s31, 4"); a("s_lshl_b32 s33, s72, 2"); a("s_add_u32 s32, s32, s33"); a(f"s_mul_i32 s32, s32, {OA_T}")
    a("s_lshl_b32 s33, s30, 13"); a("s_add_u32 s32, s32, s33"); a("s_lshl_b32 s33, s73, 12"); a("s_add_u32 s32, s32, s33"); a(f"s_add_u32 s32, s32, {WS_OA}")
    a("v_add_u32 v20, s32, v25")
    for tt in range(1, 4): a(f"v_add_u32 v{20+tt}, {tt*OA_T}, v20")
    a("s_waitcnt lgkmcnt(0)")
    for hd in range(4):
        for tt in range(4):
            b = 96 + tt*12
            for et in (2, 0, 1):
                a(f"v_mfma_f32_16x16x32_bf16 {R('v', b + et*4)}, {R('a', (hd*3 + et)*4)}, {frag(tt, hd)}, 0")
        a("s_nop 7")
        for tt in range(4):
            b = 96 + tt*12
            a(f"v_add_f32 v{b+8}, s41, v{b+8}")
        for tt in range(4):
            b = 96 + tt*12
            a(f"v_rcp_f32 v{b+8}, v{b+8}")
        for tt in range(4):
            b = 96 + tt*12
            a(f"v_mov_b32 v{b+9}, v{b+8}")
            for i in range(0, 8, 2): a(f"v_pk_mul_f32 v[{b+i}:{b+i+1}], v[{b+i}:{b+i+1}], v[{b+8}:{b+9}]")
            t = 144 + tt*4
            gemm.pack_swap(a, t, b)
            a(f"global_store_dwordx4 v{20+tt}, {R('v', t)}, s[28:29] offset:{hd*1024} sc1")
    a("s_lshl_b32 s32, s31, 2"); a(f"s_add_u32 s32, s32, {D_AO}")
    signal(a, "s32")

def out_offsets(a, MT):
    gemm.lane_chunk(a, 25, 26)
    a("v_and_b32 v26, 15, v0"); a("v_lshlrev_b32 v26, 12, v26"); a("v_lshl_add_u32 v20, v25, 4, v26")
    a(f"s_mul_i32 s32, s72, {MT*16*4096}"); a("s_lshl_b32 s33, s73, 8"); a("s_add_u32 s32, s32, s33"); a("v_add_u32 v20, s32, v20")
    for tt in range(1, MT): a(f"v_add_u32 v{20+tt}, {tt*65536}, v20")

def task_g5(a):
    gemm.setup_a_frag(a, OA_T); gemm.setup_w(a, 2048)
    a("s_lshl_b32 s32, s31, 2"); a(f"s_add_u32 s32, s32, {D_AO}")
    wait_cnt(a, "s32", 4)
    wstamp(a, 0)
    a(f"s_mul_i32 s32, s31, {16*OA_T}"); a(f"s_add_u32 s32, s32, {WS_OA}"); a("s_add_u32 s80, s28, s32"); a("s_addc_u32 s81, s29, 0")
    a("s_lshl_b32 s32, s30, 9"); a("s_add_u32 s82, s8, s32"); a("s_addc_u32 s83, s9, 0")
    a("s_mov_b32 s66, 7"); rot(a, 1, 2)
    gemm.call(a, "core_T")
    wstamp(a, 0)
    out_offsets(a, 4)
    a("s_lshl_b32 s32, s31, 20"); a("s_lshl_b32 s33, s30, 9"); a("s_add_u32 s32, s32, s33"); a("s_add_u32 s34, s24, s32"); a("s_addc_u32 s35, s25, 0")
    gemm.epi_out_store(a, "s[34:35]")

def task_g3(a):
    gemm.setup_a_frag(a, 131072, 1); gemm.setup_w_frag(a, rec.WOT_CG)
    lp, ok, done = a.newlabel("fl"), a.newlabel("fo"), a.newlabel("fd")
    a("s_cmp_lg_u32 s75, 0"); a(f"s_cbranch_scc1 {ok}")
    a("s_lshl_b32 s32, s31, 8"); a(f"s_add_u32 s32, s32, {rec.WS_FLAG}"); a("v_lshl_add_u32 v16, v0, 2, s32")
    a.label(lp)
    a("global_load_dword v17, v16, s[28:29] sc1"); a("s_waitcnt vmcnt(0)")
    a("v_cmp_ne_u32 vcc, 0, v17"); a(f"s_cbranch_vccz {ok}")
    a("s_sleep 8")
    a("s_add_u32 s46, s46, 1"); a(f"s_cmp_lt_u32 s46, {WSPIN}"); a(f"s_cbranch_scc1 {lp}")
    a("s_branch w_fail")
    a.label(ok)
    wstamp(a, 0)
    a("s_lshl_b32 s32, s31, 19"); a(f"s_add_u32 s32, s32, {WS_O}"); a("s_add_u32 s80, s28, s32"); a("s_addc_u32 s81, s29, 0")
    a(f"s_mul_i32 s32, s30, {8*rec.WOT_CG}"); a(f"s_add_u32 s32, s32, {rec.WS_WOT}"); a("s_add_u32 s82, s28, s32"); a("s_addc_u32 s83, s29, 0")
    a("s_mov_b32 s66, 31"); a("s_mov_b32 s77, 0")
    gemm.call(a, "core_F1")
    a("v_and_b32 v26, 15, v0"); a("v_lshlrev_b32 v26, 12, v26"); a("v_lshrrev_b32 v25, 4, v0"); a("v_lshl_add_u32 v20, v25, 4, v26")
    a("s_lshl_b32 s32, s72, 16"); a("s_lshl_b32 s33, s73, 8"); a("s_add_u32 s32, s32, s33"); a("v_add_u32 v20, s32, v20")
    a("s_lshl_b32 s32, s31, 18"); a("s_lshl_b32 s33, s30, 9"); a("s_add_u32 s32, s32, s33"); a("s_add_u32 s32, s32, 2048"); a("s_add_u32 s34, s24, s32"); a("s_addc_u32 s35, s25, 0")
    gemm.epi_frag_store(a, "s[34:35]", "", 1, 64)

def softmax_cols(a, regs, t):
    a(f"v_max3_f32 v{t}, v{regs[0]}, v{regs[1]}, v{regs[2]}")
    rest = regs[3:]
    while len(rest) >= 2:
        a(f"v_max3_f32 v{t}, v{t}, v{rest[0]}, v{rest[1]}"); rest = rest[2:]
    if rest: a(f"v_max_f32 v{t}, v{t}, v{rest[0]}")
    for sw in ("16", "32"):
        a(f"v_mov_b32 v{t+1}, v{t}"); a("s_nop 1"); a(f"v_permlane{sw}_swap_b32 v{t}, v{t+1}"); a(f"v_max_f32 v{t}, v{t}, v{t+1}")
    a(f"v_mul_f32 v{t}, s40, v{t}")
    for r in regs: a(f"v_fma_f32 v{r}, v{r}, s40, -v{t}")
    for r in regs: a(f"v_exp_f32 v{r}, v{r}")

def task_g2a(a):
    gemm.setup_a_rowmajor(a, 2048); gemm.setup_w(a, 8192)
    a("s_lshl_b32 s32, s31, 19"); a("s_add_u32 s80, s10, s32"); a("s_addc_u32 s81, s11, 0")
    a("s_lshl_b32 s32, s30, 9"); a("s_add_u32 s82, s14, s32"); a("s_addc_u32 s83, s15, 0")
    a("s_mov_b32 s66, 7"); rot(a, 3, 0)
    gemm.call(a, "core_T")
    wstamp(a, 0)
    a("s_lshl_b32 s38, s31, 3"); a("s_lshl_b32 s33, s72, 1"); a("s_add_u32 s38, s38, s33"); a("s_mov_b32 s39, s38"); a("s_lshl_b32 s38, s38, 5")
    a("s_lshl_b32 s42, s30, 1"); a("s_add_u32 s42, s42, s73"); a("s_add_u32 s38, s38, s42")
    a("s_lshl_b32 s34, s38, 14"); a(f"s_add_u32 s34, s34, {rec.WS_KX}"); rec.near(a, 32, "s34", "s22", 28, "s35")
    a(f"s_add_u32 s34, s32, {rec.WS_VX - rec.WS_KX}"); a("s_addc_u32 s35, s33, 0")
    a("v_lshlrev_b32 v16, 4, v0"); a("v_add_u32 v17, 0x1000, v16"); a("v_add_u32 v18, 0x80000, v16"); a("v_add_u32 v19, 0x81000, v16")
    a("s_mul_i32 s43, s75, 20480")
    kp, kok = a.newlabel("kp"), a.newlabel("ko")
    rec.kv_word(a, "s47", "s31"); a("v_mov_b32 v22, s47"); a("v_mov_b32 v23, 0")
    a.label(kp)
    a(f"global_load_dword v26, v22, s[26:27] offset:{D_KV} sc1")
    a(f"global_load_dword v24, v23, s[26:27] offset:{D_PROG} sc1"); a("s_waitcnt vmcnt(0)")
    a(f"v_cmp_ne_u32 vcc, {rec.KV_FULL}, v26"); a(f"s_cbranch_vccz {kok}")
    a("s_sleep 12")
    a("s_add_u32 s46, s46, 1"); a(f"s_cmp_lt_u32 s46, {WSPIN}"); a(f"s_cbranch_scc1 {kp}")
    a("s_branch w_fail")
    a.label(kok)
    def take_progress():
        a("v_readfirstlane_b32 s48, v24"); a("s_nop 0")
        a("s_max_u32 s48, s48, 1"); a("s_sub_u32 s48, s48, 1")
    take_progress()
    a("s_barrier")
    def kv_loads(sg):
        for kt in range(2):
            for jj in range(4):
                a(f"global_load_dwordx4 {R('a', sg*32 + (kt*4 + jj)*4)}, v{16 + sg*2 + kt}, s[32:33] offset:{jj*1024} sc1")
            a(f"s_add_u32 m0, s43, {sg*10240 + kt*4096}"); a("s_nop 0")
            for jj in range(4):
                a(f"global_load_lds_dwordx4 v{16 + sg*2 + kt}, s[34:35] offset:{jj*1024} sc1")
    kv_loads(0)
    pack_frags(a)
    a("s_lshr_b32 s50, s38, 1"); a("s_lshl_b32 s50, s50, 14"); a("s_and_b32 s51, s38, 1"); a("s_lshl_b32 s51, s51, 12"); a("s_add_u32 s50, s50, s51"); a(f"s_add_u32 s50, s50, {rec.WS_KMVM}")
    rec.near(a, 52, "s50", "s22", 28, "s51")
    a("v_and_b32 v28, 7, v0"); a("v_lshlrev_b32 v28, 4, v28"); a("v_lshrrev_b32 v24, 4, v0"); a("v_lshl_add_u32 v28, v24, 7, v28")
    XB = (108, 32)
    def m_loads(sg):
        for jj in range(4): a(f"global_load_dwordx4 {R('v', XB[sg] + 4*jj)}, v28, s[52:53] offset:{jj*512} sc1")
        for i in range(2): a(f"global_load_dwordx4 {R('v', XB[sg] + 16 + 4*i)}, v16, s[52:53] offset:{2048 + i*1024} sc1")
        a("s_add_u32 s52, s52, 0x40000"); a("s_addc_u32 s53, s53, 0")
    def m_wait(seg):
        lp, ok, nf = a.newlabel("ap"), a.newlabel("ao"), a.newlabel("nf")
        a.label(lp)
        a(f"s_cmp_lt_u32 {seg}, s48"); a(f"s_cbranch_scc1 {ok}")
        a("s_cmp_lt_u32 s48, 61"); a(f"s_cbranch_scc1 {nf}")
        a("global_load_dwordx4 v[24:27], v31, s[28:29] sc1"); a("s_waitcnt vmcnt(0)")
        a("v_or3_b32 v24, v24, v25, v26"); a("v_or_b32 v24, v24, v27"); a("v_cmp_ne_u32 vcc, 0, v24"); a(f"s_cbranch_vccnz {nf}")
        a("s_mov_b32 s48, 64"); a(f"s_branch {ok}")
        a.label(nf)
        a("s_sleep 8")
        a(f"global_load_dword v24, v23, s[26:27] offset:{D_PROG} sc1"); a("s_waitcnt vmcnt(0)")
        take_progress()
        a("s_add_u32 s46, s46, 1"); a(f"s_cmp_lt_u32 s46, {WSPIN}"); a(f"s_cbranch_scc1 {lp}")
        a("s_branch w_fail")
        a.label(ok)
    def seg_signal(seg):
        a(f"s_lshl_b32 s47, {seg}, 7"); a("s_lshl_b32 s49, s42, 2"); a("s_add_u32 s47, s47, s49"); a(f"s_add_u32 s47, s47, {rec.WS_FLAG}"); a("v_mov_b32 v29, s47")
        a("s_waitcnt vmcnt(0)")
        a("s_mov_b64 exec, 1")
        a("global_store_dword v29, v23, s[28:29] sc1")
        a("s_mov_b64 exec, -1")
    a("s_lshl_b32 s47, s42, 7"); a(f"s_add_u32 s47, s47, {rec.WS_FLAG + 8192}"); a("v_mov_b32 v31, s47")
    early, late = a.newlabel("e0"), a.newlabel("l0")
    a("s_cmp_lt_u32 s39, s48"); a(f"s_cbranch_scc1 {early}")
    kv_loads(1); m_wait("s39"); m_loads(0)
    a("s_waitcnt vmcnt(0)")
    a(f"s_branch {late}")
    a.label(early)
    m_loads(0); kv_loads(1)
    a.label(late)
    a("v_lshrrev_b32 v24, 4, v0"); a("v_lshlrev_b32 v24, 2, v24"); a("v_and_b32 v25, 15, v0"); a("v_mov_b32 v26, 0xff800000")
    for i in range(4):
        a(f"v_add_u32 v27, {i}, v24"); a("v_cmp_gt_u32 vcc, v27, v25"); a("s_nop 1"); a(f"v_cndmask_b32 v{96+i}, 0, v26, vcc")
    a("v_cmp_gt_u32 vcc, 32, v0"); a("s_nop 1")
    for i in range(4): a(f"v_cndmask_b32 v{100+i}, 0, v26, vcc")
    for i in range(4): a(f"v_mov_b32 v{104+i}, 0x3f803f80")
    a("v_and_b32 v24, 3, v0"); a("v_lshrrev_b32 v25, 2, v0")
    a("v_lshlrev_b32 v18, 4, v25"); a("v_lshl_add_u32 v18, v24, 8, v18"); a("v_add_u32 v18, s43, v18")
    a("v_and_b32 v25, 7, v25"); a("v_lshlrev_b32 v19, 4, v25"); a("v_lshl_add_u32 v19, v24, 7, v19"); a("v_add_u32 v19, s43, v19")
    a("v_add_u32 v20, s43, v16")
    a("v_mov_b32 v21, v16"); a("v_add_u32 v22, 0x20000, v21")
    a("s_lshl_b32 s36, s39, 18"); a("s_lshl_b32 s37, s42, 12"); a("s_add_u32 s36, s36, s37"); a(f"s_add_u32 s36, s36, {WS_O}")
    a("s_add_u32 s36, s28, s36"); a("s_addc_u32 s37, s29, 0")
    a(f"s_mov_b32 s40, {SCL}")
    a("s_add_u32 s54, s39, 1")
    for sg in range(2):
        lo = sg*10240
        xb = XB[sg]
        if sg == 0:
            a("s_waitcnt vmcnt(16)")
        else:
            have = a.newlabel("h1")
            a("s_cmp_eq_u32 s55, 1"); a(f"s_cbranch_scc1 {have}")
            seg_signal("s39"); m_wait("s54"); m_loads(1)
            a("s_waitcnt vmcnt(0)")
            a.label(have)
            a("s_waitcnt vmcnt(8)")
        for i in range(2): a(f"ds_write_b128 v20, {R('v', xb + 16 + 4*i)} offset:{lo + 8192 + i*1024}")
        tiles = [(132, 0, 0, "v[96:99]"), (136, 2, 0, "v[100:103]"), (140, 0, 1, "0"), (144, 1, 1, "v[96:99]"), (148, 2, 1, "v[100:103]")]
        for jj in range(4):
            for d, kt, qt, C in tiles:
                A = R('v', xb + 4*jj) if kt == 2 else R('a', sg*32 + (kt*4 + jj)*4)
                a(f"v_mfma_f32_16x16x32_bf16 {R('v', d)}, {A}, {frag(2*sg + qt, jj)}, " + (C if jj == 0 else R('v', d)))
        if sg == 0:
            no = a.newlabel("n1")
            a("s_mov_b32 s55, 0")
            a("s_cmp_lt_u32 s54, s48"); a(f"s_cbranch_scc0 {no}")
            m_loads(1); a("s_mov_b32 s55, 1")
            a.label(no)
        def vread(jj):
            b = 64 + (jj & 1)*12
            for hf in range(2):
                for kt in range(2):
                    a(f"ds_read_b64_tr_b16 {R('a', b + hf*4 + kt*2, 2)}, v18 offset:{lo + kt*4096 + jj*1024 + hf*8}")
                a(f"ds_read_b64_tr_b16 {R('a', b + 8 + hf*2, 2)}, v19 offset:{lo + 8192 + jj*512 + hf*8}")
        vread(0)
        a("s_nop 3")
        softmax_cols(a, list(range(132, 140)), 24)
        softmax_cols(a, list(range(140, 152)), 24)
        a("s_nop 0")
        a("v_cvt_pk_bf16_f32 v108, v132, v133"); a("v_cvt_pk_bf16_f32 v109, v134, v135"); a("v_mov_b32 v110, 0"); a("v_mov_b32 v111, 0")
        a("v_cvt_pk_bf16_f32 v112, v136, v137"); a("v_cvt_pk_bf16_f32 v113, v138, v139")
        for i in range(4): a(f"v_cvt_pk_bf16_f32 v{116+i}, v{140+2*i}, v{141+2*i}")
        a("v_cvt_pk_bf16_f32 v114, v148, v149"); a("v_cvt_pk_bf16_f32 v115, v150, v151")
        P0 = ["v[108:111]", "v[116:119]"]; P1 = ["v[112:113]", "v[114:115]"]
        a("s_nop 1")
        for qt in range(2): a(f"v_mfma_f32_16x16x32_bf16 {R('v', 120 + 4*qt)}, v[104:107], {P0[qt]}, 0")
        a("s_nop 5")
        for qt in range(2): a(f"v_mfma_f32_16x16x16_bf16 {R('v', 120 + 4*qt)}, v[104:105], {P1[qt]}, {R('v', 120 + 4*qt)}")
        if sg == 1:
            done = a.newlabel("d0")
            a("s_cmp_eq_u32 s55, 1"); a(f"s_cbranch_scc0 {done}")
            seg_signal("s39")
            a.label(done)
        a("s_nop 7")
        a("v_rcp_f32 v24, v120"); a("v_rcp_f32 v26, v124"); a("s_nop 0"); a("v_mov_b32 v25, v24"); a("v_mov_b32 v27, v26")
        for jj in range(4):
            b = 64 + (jj & 1)*12
            if jj < 3:
                vread(jj + 1); a("s_waitcnt lgkmcnt(6)")
            else:
                a("s_waitcnt lgkmcnt(0)")
            for qt in range(2):
                for hf in range(2):
                    a(f"v_mfma_f32_16x16x32_bf16 {R('v', 132 + (qt*2 + hf)*4)}, {R('a', b + hf*4)}, {P0[qt]}, 0")
            a("s_nop 2")
            for qt in range(2):
                for hf in range(2):
                    D = R('v', 132 + (qt*2 + hf)*4)
                    a(f"v_mfma_f32_16x16x16_bf16 {D}, {R('a', b + 8 + hf*2, 2)}, {P1[qt]}, {D}")
            a("s_nop 7")
            for qt in range(2):
                o = 132 + qt*8
                for i in range(0, 8, 2): a(f"v_pk_mul_f32 v[{o+i}:{o+i+1}], v[{o+i}:{o+i+1}], v[{24+2*qt}:{25+2*qt}]")
                for i in range(4): a(f"v_cvt_pk_bf16_f32 v{152 + 4*qt + i}, v{o+2*i}, v{o+2*i+1}")
                a(f"global_store_dwordx4 v{21+qt}, {R('v', 152 + 4*qt)}, s[36:37] offset:{jj*1024} sc1")
        if sg == 0:
            a("s_add_u32 s36, s36, 0x40000"); a("s_addc_u32 s37, s37, 0")
    seg_signal("s54")

def sreg(i): return R('a', 4*i) if i < 24 else R('v', 128 + 4*(i - 24))
def task_stream(a):
    NS = 16
    a("s_lshl_b32 s43, s75, 14")
    a(f"s_mul_i32 s32, s45, {rec.WOT_CG}"); a(f"s_mul_i32 s33, s75, {rec.WOT_W}"); a("s_add_u32 s32, s32, s33"); a(f"s_add_u32 s32, s32, {rec.WS_WOT}")
    a("v_lshlrev_b32 v10, 4, v0"); a("v_add_u32 v2, s32, v10")
    for i in range(32):
        a(f"global_load_dwordx4 {sreg(i)}, v2, s[28:29] offset:{(i & 3)*1024} sc1")
        if i & 3 == 3: a("v_add_u32 v2, 0x1000, v2")
    a("v_add_u32 v2, s43, v10")
    for i in range(1, 4): a(f"v_add_u32 v{2+i}, {i*4096}, v2")
    for i in range(4): a(f"v_add_u32 v{6+i}, {131072 + i*4096}, v2")
    a("s_lshl_b32 s32, s75, 12"); a("v_add_u32 v11, s32, v10")
    a("v_lshrrev_b32 v13, 4, v0"); a("s_lshl_b32 s32, s75, 2"); a("v_add_u32 v13, s32, v13")
    a("v_and_b32 v12, 15, v13"); a("v_bfe_u32 v14, v0, 2, 2"); a("v_lshl_add_u32 v12, v14, 4, v12"); a("v_lshlrev_b32 v12, 4, v12")
    a("v_and_b32 v14, 1, v0"); a("v_lshl_add_u32 v12, v14, 3, v12"); a("v_bfe_u32 v14, v0, 1, 1"); a("v_lshl_add_u32 v12, v14, 10, v12")
    a("s_lshr_b32 s32, s75, 2"); a("s_lshl_b32 s32, s32, 11"); a("v_add_u32 v12, s32, v12")
    a("v_lshlrev_b32 v13, 12, v13"); a("v_and_b32 v14, 15, v0"); a("v_lshl_add_u32 v13, v14, 2, v13")
    a("s_lshl_b32 s33, s45, 6"); a("s_add_u32 s33, s33, 2048"); a("v_add_u32 v13, s33, v13")
    a("s_lshl_b32 s32, s45, 13"); a("s_lshl_b32 s33, s75, 10"); a("s_add_u32 s32, s32, s33"); a(f"s_add_u32 s32, s32, {WS_O}"); a("v_add_u32 v10, s32, v10")
    a("s_barrier")
    wstamp(a, 0)
    def touch():
        a("s_and_b32 s32, s31, 63"); a("s_lshl_b32 s32, s32, 18"); a("s_add_u32 s48, s28, s32"); a("s_addc_u32 s49, s29, 0")
        a("global_load_dwordx4 v[124:127], v10, s[48:49] sc1")
    def pick():
        a("s_ff1_i32_b64 s31, s[34:35]"); a("s_bitset0_b64 s[34:35], s31")
        a("s_and_b32 s32, s31, 63"); a("s_lshl_b32 s32, s32, 7"); a("v_add_u32 v14, s32, v96")
    def oload(k):
        tt, ks = k >> 4, k & 15
        a(f"global_load_dwordx4 {R('v', 32 + (k % NS)*4)}, v{2 + tt*4 + (ks >> 2)}, s[38:39] offset:{(ks & 3)*1024} sc1")
    def first_loads():
        a("s_lshl_b32 s32, s31, 18"); a(f"s_add_u32 s32, s32, {WS_O}"); a("s_add_u32 s38, s28, s32"); a("s_addc_u32 s39, s29, 0")
        for k in range(NS): oload(k)
    def finish():
        a("s_waitcnt lgkmcnt(0)"); a("s_barrier")
        for m in range(8): a(f"ds_read_b64 v[{16+2*m}:{17+2*m}], v12 offset:{m*4096}")
        a("s_lshl_b32 s32, s30, 17"); a("s_add_u32 s40, s24, s32"); a("s_addc_u32 s41, s25, 0")
        a("v_xor_b32 v11, 0x8000, v11"); a("v_xor_b32 v12, 0x8000, v12")
        a("s_waitcnt lgkmcnt(0)")
        for step in (8, 4, 2):
            for i in range(0, step, 2):
                a(f"v_pk_add_f32 v[{16+i}:{17+i}], v[{16+i}:{17+i}], v[{16+step+i}:{17+step+i}]")
        a("v_cvt_pk_bf16_f32 v1, v16, v17")
        a("global_store_dword v13, v1, s[40:41]")
    a("v_and_b32 v96, 31, v0"); a("v_lshlrev_b32 v96, 2, v96"); a(f"v_add_u32 v96, {rec.WS_FLAG}, v96")
    pick()
    a.label("st_wait")
    a("global_load_dword v15, v14, s[28:29] sc1"); a("s_waitcnt vmcnt(0)")
    a("v_cmp_ne_u32 vcc, 0, v15"); a("s_cbranch_vccz st_rdy")
    a("s_sleep 12")
    a("s_add_u32 s46, s46, 1"); a(f"s_cmp_lt_u32 s46, {WSPIN}"); a("s_cbranch_scc1 st_wait")
    a("s_branch w_fail")
    a.label("st_rdy")
    touch()
    first_loads()
    a.label("st_item")
    if PROF:
        a("s_and_b32 s32, s31, 7"); a("s_cmp_lg_u32 s32, 1"); a("s_cbranch_scc1 st_nos")
        a("s_cmp_gt_u32 s59, 13"); a("s_cbranch_scc1 st_nos")
        wstamp(a, 0)
        a.label("st_nos")
    a("s_mov_b32 s30, s31")
    pick()
    a("global_load_dword v15, v14, s[28:29] sc1")
    touch()
    def mm(k, wait):
        tt, ks = k >> 4, k & 15
        a(f"s_waitcnt vmcnt({wait})")
        for ct in range(2):
            D = R('v', 16 + (tt*2 + ct)*4)
            a(f"v_mfma_f32_16x16x32_bf16 {D}, {sreg(ks*2 + ct)}, {R('v', 32 + (k % NS)*4)}, " + ("0" if ks == 0 else D))
    def park():
        a("s_nop 7")
        for f in range(4): a(f"ds_write_b128 v11, {R('v', 16 + f*4)} offset:{f*1024}")
    for k in range(16):
        mm(k, 17); oload(k + 16)
    a("s_waitcnt vmcnt(17)")
    a("v_cmp_ne_u32 vcc, 0, v15")
    a("s_cmp_lt_i32 s31, 0"); a("s_cbranch_scc1 st_slow")
    a("s_cbranch_vccnz st_slow")
    a("s_lshl_b32 s32, s31, 18"); a(f"s_add_u32 s32, s32, {WS_O}"); a("s_add_u32 s38, s28, s32"); a("s_addc_u32 s39, s29, 0")
    for k in range(16, 32):
        mm(k, 15); oload(k - 16)
    park(); finish()
    a("s_branch st_item")
    a.label("st_slow")
    for k in range(16, 32): mm(k, 31 - k)
    park(); finish()
    a("s_cmp_lt_i32 s31, 0"); a("s_cbranch_scc0 st_wait")

def emit_mega(a, prof=False):
    kernel_begin(a, NAME + "_kernel")
    a("s_cmp_ge_u32 s2, 256"); a("s_cbranch_scc1 w_exit")
    load_ptrs(a)
    a("s_getreg_b32 s44, hwreg(HW_REG_XCC_ID)"); a("s_and_b32 s44, s44, 7")
    a("v_lshrrev_b32 v1, 6, v0"); a("v_mov_b32 v2, 0"); a("s_mov_b32 s46, 0")
    a("v_readfirstlane_b32 s75, v1")
    a("s_waitcnt lgkmcnt(0)")
    a("s_add_u32 s28, s28, 0x1fffff"); a("s_addc_u32 s29, s29, 0"); a("s_and_b32 s28, s28, 0xffe00000")
    a("s_cmp_eq_u32 s75, 1"); a("s_cbranch_scc0 no_probe")
    a("s_mov_b32 s47, 0")
    a("s_cmp_lt_u32 s44, 4"); a("s_cbranch_scc0 probe_done")
    a(f"s_add_u32 s30, s28, {rec.WS_PROBE}"); a("s_addc_u32 s31, s29, 0")
    a("s_lshr_b32 s32, s2, 5"); a("s_and_b32 s33, s32, 1"); a("s_lshr_b32 s32, s32, 1"); a("s_lshl_b32 s32, s32, 2"); a("s_add_u32 s32, s32, s33"); a("s_lshl_b32 s32, s32, 12")
    a("s_and_b32 s33, s2, 31"); a("s_lshl_b32 s33, s33, 7"); a("s_add_u32 s32, s32, s33")
    a("v_mov_b32 v3, s32"); a("v_add_u32 v4, 0x2000, v3")
    a("s_mov_b64 exec, 1")
    a("global_store_dword v3, v2, s[30:31] sc1"); a("global_store_dword v4, v2, s[30:31] sc1"); a("s_waitcnt vmcnt(0)")
    for k in range(2):
        a("s_memtime s[34:35]"); a("s_waitcnt lgkmcnt(0)")
        a(f"global_store_dword v{3+k}, v2, s[30:31] sc1"); a("s_waitcnt vmcnt(0)")
        a("s_memtime s[36:37]"); a("s_waitcnt lgkmcnt(0)")
        a(f"s_sub_u32 s{38+k}, s36, s34")
    a("s_mov_b64 exec, -1")
    a("s_cmp_lt_u32 s39, s38"); a("s_cselect_b32 s47, 1, 0")
    a.label("probe_done")
    a("v_mov_b32 v3, s47"); a("ds_write_b32 v2, v3 offset:4")
    a.label("no_probe")
    a("s_cmp_lg_u32 s75, 0"); a("s_cbranch_scc1 role_wait")
    a("s_lshl_b32 s32, s44, 2"); a("v_mov_b32 v3, s32"); a("v_mov_b32 v4, 1")
    a("s_mov_b64 exec, 1")
    a("global_atomic_add v5, v3, v4, s[26:27] sc0 sc1"); a("s_waitcnt vmcnt(0)")
    a("v_readfirstlane_b32 s45, v5")
    a("s_cmp_lt_u32 s45, 32"); a("s_cbranch_scc1 role_have")
    a(f"v_mov_b32 v3, {D_OVF}")
    a("global_atomic_add v5, v3, v4, s[26:27] sc0 sc1"); a("s_waitcnt vmcnt(0)")
    a("v_readfirstlane_b32 s45, v5")
    a.label("role_poll")
    a("global_load_dwordx4 v[8:11], v2, s[26:27] sc1"); a("global_load_dwordx4 v[12:15], v2, s[26:27] offset:16 sc1"); a("s_waitcnt vmcnt(0)")
    a("s_mov_b32 s33, 0")
    for i in range(8):
        a(f"v_readfirstlane_b32 s{34+i}, v{8+i}"); a(f"s_add_u32 s33, s33, s{34+i}")
    a("s_cmp_eq_u32 s33, 256"); a("s_cbranch_scc1 role_pick")
    a("s_sleep 8"); a("s_add_u32 s46, s46, 1"); a(f"s_cmp_lt_u32 s46, {WSPIN}"); a("s_cbranch_scc1 role_poll")
    a("s_mov_b64 exec, -1"); a("s_branch w_fail")
    a.label("role_pick")
    for i in range(8):
        a(f"s_min_u32 s33, s{34+i}, 32"); a("s_add_u32 s45, s45, s33"); a(f"s_mov_b32 s44, {i}")
        if i < 7:
            a("s_cmp_lt_u32 s45, 32"); a("s_cbranch_scc1 role_have"); a("s_sub_u32 s45, s45, 32")
    a.label("role_have")
    a("s_lshl_b32 s32, s44, 5"); a("s_or_b32 s32, s32, s45"); a("v_mov_b32 v3, s32")
    a("ds_write_b32 v2, v3")
    a("s_mov_b64 exec, -1")
    a.label("role_wait")
    a("s_waitcnt lgkmcnt(0)"); a("s_barrier")
    a("ds_read_b64 v[4:5], v2"); a("s_waitcnt lgkmcnt(0)")
    a("v_readfirstlane_b32 s32, v4"); a("v_readfirstlane_b32 s47, v5")
    a("s_cmp_lg_u32 s75, 0"); a("s_cbranch_scc1 voted")
    a("s_and_b32 s47, s47, 1"); a("s_lshl_b32 s47, s47, 16"); a("s_or_b32 s47, s47, 1"); a("v_mov_b32 v3, s47")
    a("s_mov_b64 exec, 1")
    a(f"global_atomic_add v2, v3, s[26:27] offset:{rec.DBG_VOTE} sc1")
    a("s_mov_b64 exec, -1")
    a.label("voted")
    a("s_barrier")
    a("s_and_b32 s45, s32, 31"); a("s_bfe_u32 s44, s32, 0x30005")
    a("s_cmp_ge_u32 s44, 4"); a("s_cbranch_scc1 worker")
    a("s_lshl_b32 s18, s44, 3"); a("s_lshr_b32 s19, s45, 2"); a("s_add_u32 s18, s18, s19"); a("s_and_b32 s19, s45, 3")
    rec.emit_rec(a, "rec", prof=prof, kvwait=True)
    a.label("worker")
    a("s_sub_u32 s44, s44, 4")
    a("v_and_b32 v0, 63, v0")
    gemm.setup_common(a)
    a("s_mov_b32 s88, 0"); a("s_mov_b32 s89, 0")
    a("s_mov_b32 s59, 0") if PROF else None
    wstamp(a, 0)
    a("s_lshl_b32 s30, s44, 3"); a("s_and_b32 s32, s45, 7"); a("s_add_u32 s30, s30, s32")
    a("s_lshl_b32 s96, s44, 5"); a("s_add_u32 s96, s96, s45"); a("s_lshl_b32 s96, s96, 3"); a("s_add_u32 s96, s96, s75")
    for grp, (MT, first) in enumerate(((2, 0), (3, 32), (3, 80))):
        a("s_lshr_b32 s31, s45, 3"); a(f"s_mul_i32 s31, s31, {4*MT}"); a(f"s_add_u32 s31, s31, {first}")
        if grp == 1:
            a("s_mov_b32 s90, 8"); a("s_mov_b64 s[92:93], s[14:15]"); a("s_mov_b32 s91, 2"); a("s_mov_b64 s[94:95], s[8:9]")
        if grp == 2:
            a("s_mov_b32 s90, 4"); a("s_mov_b64 s[92:93], s[4:5]"); a("s_mov_b32 s91, 6"); a("s_mov_b64 s[94:95], s[6:7]")
        task_g1(a, MT, grp)
        wstamp(a, 0)
    a("s_cmp_eq_u32 s44, 0"); a("s_cbranch_scc1 w_g2a")
    a("s_cmp_eq_u32 s44, 3"); a("s_cbranch_scc1 w_q")
    a("s_sub_u32 s30, s44, 1"); a("s_lshl_b32 s30, s30, 2"); a("s_and_b32 s32, s45, 3"); a("s_add_u32 s30, s30, s32"); a("s_lshr_b32 s31, s45, 2")
    task_g4kv(a)
    wstamp(a, 0)
    a("s_cmp_eq_u32 s44, 1"); a("s_cbranch_scc1 w_g2a")
    a("s_and_b32 s30, s45, 3"); a("s_lshr_b32 s31, s45, 2")
    task_g5(a)
    wstamp(a, 0)
    a("s_branch w_g2a")
    a.label("w_q")
    a("s_and_b32 s30, s45, 3"); a("s_lshr_b32 s31, s45, 2")
    task_g4q(a)
    wstamp(a, 0)
    a.label("w_g2a")
    a("s_and_b32 s30, s45, 15"); a("s_lshr_b32 s31, s45, 4"); a("s_lshr_b32 s32, s44, 1"); a("s_xor_b32 s32, s32, s44"); a("s_lshl_b32 s32, s32, 1"); a("s_add_u32 s31, s31, s32")
    task_g2a(a)
    wstamp(a, 0)
    a("s_cmp_eq_u32 s44, 2"); a("s_cbranch_scc1 w_exit")
    a("s_and_b32 s31, s31, 6"); a("s_lshl_b32 s31, s31, 2"); a("s_lshr_b32 s32, s45, 2"); a("s_add_u32 s31, s31, s32"); a("s_and_b32 s30, s45, 3")
    task_g3(a)
    wstamp(a, 0)
    a("s_cmp_eq_u32 s44, 3"); a("s_cbranch_scc1 w_exit")
    a("s_mov_b32 s34, 0"); a("s_cmp_eq_u32 s44, 0"); a("s_mov_b32 s35, 0xaaaa0000"); a("s_cselect_b32 s35, 0x55550000, s35")
    task_stream(a)
    wstamp(a, 0)
    a("s_endpgm")
    a.label("w_fail")
    a("v_mov_b32 v16, 0"); a("v_mov_b32 v17, 0xdead"); a("global_store_dword v16, v17, s[26:27] offset:248")
    a.label("w_exit")
    a("s_endpgm")
    gemm.emit_core(a, "core_T", 'T')
    gemm.emit_core(a, "core_N", 'N')
    gemm.emit_core(a, "core_T3", 'T', MT=3)
    gemm.emit_core(a, "core_T2", 'T', MT=2)
    gemm.WFLAG = "sc1"; gemm.WFRAG = True
    gemm.emit_core(a, "core_F1", 'T', MT=1, aflag="sc1")
    gemm.WFLAG = ""; gemm.WFRAG = False

def generate(prof=False):
    global PROF
    PROF = bool(prof)
    raw = open(f"cdna_kernels/{NAME}.s.ref").read().split("\n")
    hdr = []
    for l in raw:
        if not l.startswith(";") or "Override" in l: break
        hdr.append(l)
    a = Asm()
    emit_mega(a, prof)
    s = "\n".join(hdr) + "\n"
    s += f"; @launch kernel={NAME}_kernel grid=(256,1,1) block=(512,1,1) lds=163840\n"
    s += '.amdgcn_target "amdgcn-amd-amdhsa--gfx950"\n.text\n' + a.text() + '.section .rodata,"a"\n'
    s += kernel_desc(NAME + "_kernel", vgpr=256, accum=160)
    return s

if __name__ == "__main__":
    out = sys.argv[1] if len(sys.argv) > 1 else f"cdna_kernels/{NAME}.s"
    open(out, "w").write(generate())
    print("wrote", out)
```

```python
from asmgen import *

WS_RING  = 1 << 20
WS_PROBE = 0x1f0000
WS_FLAG  = 0x1e0000
WS_MEMS  = 2 << 20
WS_KMVM  = 4 << 20
WS_KX    = 20 << 20
WS_VX    = 52 << 20
WS_WOT   = 108 << 20
WOT_W = 32768
WOT_CG = 8*WOT_W + 4096
L_PART = 0
L_P    = 24576
L_ZERO = 26624
L_SEL  = 28672
L_PARW = 7*16384
L_KX   = 131072
L_VX   = 147456
SPIN_MAX = 400000
NSTEP = 64
DBG_VOTE, DBG_CLR, DBG_PROG, DBG_KVREADY = 40, 44, 128, 64
KV_FULL = 128
PAR0 = dict(PF=1, RDEL=9, MDEL=8, DM=1, MGAP=3, PRIO=1, XD=2, XGAP=2, VDEL=7, PPRIO=2, XDEL=6, DR=2, RGAP=5, MACK=0)
PAR = dict(PAR0)
OPT = set()

def guard(a, loop, fail):
    a("s_add_u32 s24, s24, 1"); a(f"s_cmp_lt_u32 s24, {SPIN_MAX}"); a(f"s_cbranch_scc1 {loop}"); a(f"s_branch {fail}")

def pstamp(a, prof, k):
    if prof == 3:
        a("s_memrealtime s[56:57]"); a("s_waitcnt lgkmcnt(0)"); a(f"s_mov_b32 s{k}, s56")

def stamp(a, prof, k, at=None):
    if not prof: return
    if prof >= 3 and (k != 7 or prof > 3): return
    if prof == 2:
        lab = a.newlabel("st")
        a("s_cmp_lg_u32 s22, " + ("31" if (k == 7 or at) else "30")); a(f"s_cbranch_scc1 {lab}")
        a("s_memrealtime s[56:57]"); a("s_waitcnt lgkmcnt(0)"); a("s_and_b32 s56, s56, 0xffffff"); a("s_lshl_b32 s57, s24, 24"); a(f"s_or_b32 s{60+k}, s56, s57")
        a.label(lab)
        return
    a("s_memtime s[56:57]"); a("s_waitcnt lgkmcnt(0)")
    a("s_sub_u32 s58, s56, s59"); a(f"s_add_u32 s{60+k}, s{60+k}, s58"); a("s_mov_b32 s59, s56")

def fs(a, prof, k, which):
    if prof == which: a(f"s_memtime s[{66+2*k}:{67+2*k}]")

def near(a, dst, off, par="s25", wb=16, tmp="s36"):
    a(f"s_lshr_b32 {tmp}, {off}, 21"); a(f"s_xor_b32 {tmp}, {tmp}, {par}"); a(f"s_and_b32 {tmp}, {tmp}, 1"); a(f"s_lshl_b32 {tmp}, {tmp}, 13")
    a(f"s_add_u32 {tmp}, {tmp}, {off}"); a(f"s_add_u32 s{dst}, s{wb}, {tmp}"); a(f"s_addc_u32 s{dst+1}, s{wb+1}, 0")

def kv_word(a, dst, blk):
    a(f"s_add_u32 {dst}, {blk}, 1"); a(f"s_mul_i32 {dst}, {dst}, 11"); a(f"s_lshr_b32 {dst}, {dst}, 5"); a(f"s_lshl_b32 {dst}, {dst}, 2")

def tagchk(a, regs, tag, t0, t1, mf=()):
    op = "0x80" if tag else "0xfe"
    mf = list(mf)
    ops = [f"v_bitop3_b32 v{t0}, v{regs[0]}, v{regs[1]}, v{regs[2]} bitop3:{op}", f"v_bitop3_b32 v{t1}, v{regs[3]}, v{regs[4]}, v{regs[5]} bitop3:{op}"]
    rest = regs[6:]; k = 0
    while rest:
        t = (t0, t1)[k & 1]; k += 1
        ops.append(f"v_bitop3_b32 v{t}, v{t}, v{rest[0]}, v{rest[1]} bitop3:{op}"); rest = rest[2:]
    ops.append(f"v_bitop3_b32 v{t0}, v{t0}, v{t1}, 1 bitop3:" + ("0x80" if tag else "0xa8"))
    per = -(-len(ops) // max(len(mf), 1))
    for i, o in enumerate(ops):
        if mf and i % per == 0: a(mf.pop(0))
        a(o)
    for m in mf: a(m)
    a(f"v_cmp_ne_u32 vcc, {tag}, v{t0}")

def emit_rec(a, pfx, prof=False, kvwait=False):
    L = lambda n: f"{pfx}_{n}"
    FAIL = L('fail')
    a("s_load_dwordx8 s[4:11], s[0:1], 40")
    a("s_load_dwordx2 s[12:13], s[0:1], 32")
    a("s_load_dwordx2 s[14:15], s[0:1], 88")
    a("s_load_dwordx2 s[16:17], s[0:1], 96")
    a("v_lshrrev_b32 v1, 6, v0")
    a("v_and_b32 v0, 63, v0")
    a("s_lshl_b32 s20, s18, 2"); a("s_add_u32 s20, s20, s19")
    a("v_readfirstlane_b32 s21, v1")
    a("v_lshlrev_b32 v6, 4, v0")
    a("s_mov_b32 s24, 0")
    a("s_waitcnt lgkmcnt(0)")
    pstamp(a, prof, 90)
    if "diag" in OPT: pstamp(a, 3, 97)
    a("s_add_u32 s16, s16, 0x1fffff"); a("s_addc_u32 s17, s17, 0"); a("s_and_b32 s16, s16, 0xffe00000")
    a("s_lshl_b32 s36, s18, 13"); a(f"s_add_u32 s36, s36, {WS_RING}"); a("s_add_u32 s32, s16, s36"); a("s_addc_u32 s33, s17, 0")
    a("s_and_b32 s45, s20, 63"); a("s_lshl_b32 s45, s45, 7"); a("s_lshr_b32 s36, s20, 6"); a("s_lshl_b32 s36, s36, 14"); a("s_add_u32 s45, s45, s36")
    a("s_and_b32 s44, s20, 1"); a("s_lshl_b32 s44, s44, 12"); a("s_lshr_b32 s42, s20, 1"); a("s_lshl_b32 s42, s42, 14"); a("s_add_u32 s44, s44, s42")
    a("v_mov_b32 v14, v6"); a("v_add_u32 v15, 0x1000, v6")
    a("s_lshl_b32 s36, s19, 10"); a("v_add_u32 v9, s36, v6")
    a("s_lshl_b32 s36, s19, 9"); a("s_add_u32 s36, s36, 4096"); a("v_and_b32 v8, 0x1ff, v6"); a("v_add_u32 v8, s36, v8")
    a("s_cmp_eq_u32 s21, 7"); a(f"s_cbranch_scc0 {L('noclr')}")
    for i in range(4): a(f"v_mov_b32 v{68+i}, -1")
    a("v_add_u32 v16, s44, v6"); a("v_add_u32 v17, 0x2000, v16")
    for p in range(2):
        for i in range(4): a(f"global_store_dwordx4 v{16+p}, v[68:71], s[16:17] offset:{1024*i} sc1")
    a("global_store_dwordx4 v9, v[68:71], s[32:33] sc1"); a("global_store_dwordx4 v8, v[68:71], s[32:33] sc1")
    a("v_bfe_u32 v16, v0, 3, 2"); a("v_lshlrev_b32 v16, 15, v16"); a("v_lshrrev_b32 v17, 5, v0"); a("v_lshl_add_u32 v16, v17, 13, v16")
    a("v_and_b32 v17, 7, v0"); a("v_lshl_add_u32 v16, v17, 4, v16"); a(f"s_add_u32 s36, s45, {WS_MEMS}"); a("v_add_u32 v16, s36, v16")
    for i in range(16):
        a("global_store_dwordx4 v16, v[68:71], s[16:17] sc1"); a("v_add_u32 v16, 0x20000, v16")
    a("s_lshl_b32 s36, s20, 7"); a(f"s_add_u32 s36, s36, {WS_FLAG}"); a("v_and_b32 v16, 0x70, v6"); a("v_add_u32 v16, s36, v16")
    a("global_store_dwordx4 v16, v[68:71], s[16:17] sc1")
    a("s_barrier")
    a("v_mov_b32 v17, 1"); a("v_mov_b32 v16, 0")
    a("s_waitcnt vmcnt(0)")
    a("s_mov_b64 exec, 1")
    a(f"global_atomic_add v16, v17, s[14:15] offset:{DBG_CLR} sc1")
    a("s_mov_b64 exec, -1")
    a(f"s_branch {L('clrd')}")
    a.label(L('noclr'))
    a("s_barrier")
    a.label(L('clrd'))
    def xdma(base, ldsreg):
        for kt in range(2):
            a(f"s_add_u32 m0, {ldsreg}, {kt*4096}")
            a("s_nop 0")
            for jj in range(4):
                a(f"global_load_lds_dwordx4 v{14+kt}, {base} offset:{jj*1024} sc1")
    def kv_poll(tag, blkreg):
        kv_word(a, "s52", blkreg); a("v_mov_b32 v17, s52")
        a.label(L(tag))
        a(f"global_load_dword v16, v17, s[14:15] offset:{DBG_KVREADY} sc1"); a("s_waitcnt vmcnt(0)")
        a(f"v_cmp_ne_u32 vcc, {KV_FULL}, v16"); a(f"s_cbranch_vccz {L(tag + 'ok')}")
        a("s_sleep 8")
        guard(a, L(tag), FAIL)
        a.label(L(tag + 'ok'))
    def kv_bases(segreg):
        a(f"s_lshl_b32 s42, {segreg}, 5"); a("s_add_u32 s42, s42, s18"); a("s_lshl_b32 s42, s42, 14"); a(f"s_add_u32 s42, s42, {WS_KX}")
        near(a, 48, "s42")
        a(f"s_add_u32 s34, s48, {WS_VX - WS_KX}"); a("s_addc_u32 s35, s49, 0")
    a("v_lshrrev_b32 v10, 2, v0"); a("v_lshlrev_b32 v10, 13, v10"); a("v_and_b32 v11, 3, v0"); a("v_lshl_add_u32 v10, v11, 4, v10")
    a("s_lshl_b32 s36, s21, 20"); a("s_lshl_b32 s42, s20, 6"); a("s_add_u32 s36, s36, s42"); a("v_add_u32 v10, s36, v10")
    a("s_lshl_b32 s43, s21, 14")
    def wdma(base, buf, nt="nt"):
        a("v_mov_b32 v11, v10")
        for i in range(8):
            a(f"s_add_u32 m0, s43, {buf*8192 + i*1024}")
            a("s_nop 0")
            a(f"global_load_lds_dwordx4 v11, {base} {nt}")
            if i < 7: a("v_add_u32 v11, 0x20000, v11")
    wdma("s[6:7]", 0, ""); wdma("s[8:9]", 1, "")
    a("v_lshrrev_b32 v12, 5, v0"); a("v_lshlrev_b32 v12, 4, v12")
    a("v_bfe_u32 v13, v0, 4, 1"); a("v_lshl_add_u32 v12, v13, 2, v12")
    a("v_bfe_u32 v13, v0, 2, 1"); a("v_add_u32 v12, v12, v13")
    a("v_bfe_u32 v13, v0, 3, 1"); a("v_lshl_add_u32 v12, v13, 3, v12")
    a("v_lshlrev_b32 v12, 6, v12"); a("v_and_b32 v13, 3, v0"); a("v_lshl_add_u32 v12, v13, 3, v12")
    a("v_add_u32 v12, s43, v12")
    def wread(typ, buf):
        for t in range(2):
            for ks in range(2):
                for pp in range(4):
                    hi, lo = pp >> 1, pp & 1
                    reg = ((typ*2 + t)*2 + ks)*8 + pp*2
                    off = buf*8192 + (64*ks + 32*hi + 2*lo)*64 + t*32
                    a(f"ds_read_b64_tr_b16 a[{reg}:{reg+1}], v12 offset:{off}")
                a("s_waitcnt lgkmcnt(4)")
        a("s_waitcnt lgkmcnt(0)")
    a("s_waitcnt vmcnt(8)")
    pstamp(a, prof, 91)
    wread(1, 0)
    wdma("s[4:5]", 0, "nt")
    a("s_waitcnt vmcnt(8)"); wread(2, 1)
    a("v_lshrrev_b32 v10, 3, v0"); a("v_lshlrev_b32 v10, 11, v10"); a("v_and_b32 v11, 7, v0"); a("v_lshl_add_u32 v10, v11, 4, v10")
    a("s_lshl_b32 s36, s18, 18"); a("s_lshl_b32 s42, s19, 9"); a("s_add_u32 s36, s36, s42")
    a("s_and_b32 s42, s21, 3"); a("s_lshl_b32 s42, s42, 7"); a("s_add_u32 s36, s36, s42")
    a("v_add_u32 v10, s36, v10")
    def odma(half):
        a(f"v_add_u32 v11, {half*64*2048}, v10")
        for i in range(8):
            a(f"s_add_u32 m0, s43, {half*8192 + i*1024}")
            a("s_nop 0")
            a("global_load_lds_dwordx4 v11, s[10:11] nt")
            if i < 7: a("v_add_u32 v11, 0x4000, v11")
    a("s_cmp_lt_u32 s21, 4"); a(f"s_cbranch_scc0 {L('wv_only')}")
    odma(1)
    a("s_waitcnt vmcnt(8)"); wread(0, 0)
    odma(0)
    a("v_lshrrev_b32 v12, 2, v0")
    a("v_lshlrev_b32 v12, 7, v12"); a("v_and_b32 v13, 3, v0"); a("v_lshl_add_u32 v12, v13, 4, v12"); a("v_add_u32 v12, s43, v12")
    a("s_waitcnt vmcnt(0)")
    def wo_reg(ct, jj):
        return f"v[{96+(ct*4+jj)*4}:{96+(ct*4+jj)*4+3}]"
    for ct in range(4):
        for jj in range(4):
            for lo in range(2):
                base = 96 + (ct*4 + jj)*4 + lo*2
                off = (32*jj + 16*lo)*128 + (ct >> 1)*64 + (ct & 1)*8
                a(f"ds_read_b64_tr_b16 v[{base}:{base+1}], v12 offset:{off}")
        a("s_waitcnt lgkmcnt(0)")
    a(f"s_branch {L('wdone')}")
    a.label(L('wv_only'))
    a("s_waitcnt vmcnt(0)"); wread(0, 0)
    a.label(L('wdone'))
    pstamp(a, prof, 89)

    a("s_load_dwordx2 s[34:35], s[0:1], 24")
    a("s_barrier")
    if kvwait and PAR["PF"]:
        a("s_lshl_b32 s36, s20, 3"); a("s_add_u32 s36, s36, s21"); a("s_mul_i32 s36, s36, 3072"); a(f"s_add_u32 s36, s36, {1 << 20}")
        a("v_add_u32 v20, s36, v6")
        a("s_waitcnt lgkmcnt(0)")
        for i in range(3): a(f"global_load_dwordx4 v[24:27], v20, s[34:35] offset:{i*1024}")
    a("s_waitcnt lgkmcnt(0)")
    if "nodump" in OPT: a(f"s_branch {L('nodump')}")
    a("s_cmp_lt_u32 s21, 4"); a(f"s_cbranch_scc0 {L('nodump')}")
    a("s_lshl_b32 s36, s19, 3"); a("s_lshl_b32 s42, s21, 1"); a("s_add_u32 s36, s36, s42"); a(f"s_mul_i32 s36, s36, {WOT_CG}")
    a("s_lshr_b32 s42, s18, 2"); a(f"s_mul_i32 s42, s42, {WOT_W}"); a("s_add_u32 s36, s36, s42")
    a("s_and_b32 s42, s18, 3"); a("s_lshl_b32 s42, s42, 13"); a("s_add_u32 s36, s36, s42"); a(f"s_add_u32 s36, s36, {WS_WOT}")
    a("v_add_u32 v20, s36, v6"); a("v_add_u32 v21, 0x1000, v20"); a(f"v_add_u32 v22, {WOT_CG}, v20"); a(f"v_add_u32 v23, {WOT_CG + 0x1000}, v20")
    for ct in range(4):
        for jj in range(4):
            a(f"global_store_dwordx4 v{20 + (ct >> 1)*2 + (jj >> 1)}, {wo_reg(ct, jj)}, s[16:17] offset:{(jj & 1)*2048 + (ct & 1)*1024} sc1")
    a.label(L('nodump'))
    a("s_cmp_eq_u32 s21, 7"); a(f"s_cbranch_scc0 {L('sync1')}")
    a("global_load_dwordx4 v[48:51], v9, s[32:33] sc1"); a("global_load_dwordx4 v[52:55], v8, s[32:33] sc1")
    a("v_and_b32 v11, 7, v0"); a("v_lshlrev_b32 v11, 11, v11"); a("s_lshl_b32 s36, s20, 4"); a("v_add_u32 v11, s36, v11")
    a("global_load_dwordx4 v[56:59], v11, s[12:13]")
    a("v_mov_b32 v17, 0"); a("s_lshr_b32 s36, s18, 3"); a("s_lshl_b32 s36, s36, 2"); a("v_mov_b32 v18, s36")
    a.label(L('clrw'))
    a(f"global_load_dwordx2 v[20:21], v17, s[14:15] offset:{DBG_VOTE} sc1"); a("s_waitcnt vmcnt(0)")
    a("v_readfirstlane_b32 s36, v20"); a("v_readfirstlane_b32 s37, v21")
    a("s_and_b32 s42, s36, 0xffff"); a("s_add_u32 s42, s42, s37"); a("s_cmp_eq_u32 s42, 384"); a(f"s_cbranch_scc1 {L('clrok')}")
    a("s_sleep 8")
    guard(a, L('clrw'), FAIL)
    a.label(L('clrok'))
    a("global_load_dword v21, v18, s[14:15] sc1")
    a("s_lshr_b32 s36, s36, 16"); a("s_cmp_gt_u32 s36, 64"); a("s_cselect_b32 s25, 1, 0")
    a("v_mov_b32 v20, s25"); a(f"v_mov_b32 v17, {L_PARW}")
    a(f"s_mov_b32 s42, {WS_MEMS}"); near(a, 34, "s42")
    a("v_add_u32 v11, s45, v6")
    a("s_mov_b64 exec, 0xff")
    for i in range(4): a(f"v_min_u32 v{56+i}, -2, v{56+i}")
    a("global_store_dwordx4 v11, v[56:59], s[34:35] sc1")
    a("s_mov_b64 exec, -1")
    a("s_waitcnt vmcnt(1)"); a("ds_write_b64 v17, v[20:21]")
    if kvwait:
        a("s_mov_b32 s53, 0"); kv_poll('kv0', "s53")
    for sg in range(2):
        a(f"s_mov_b32 s53, {sg}"); kv_bases("s53")
        a(f"s_mov_b32 s50, {L_KX + sg*8192}"); xdma("s[48:49]", "s50")
        a(f"s_mov_b32 s50, {L_VX + sg*8192}"); xdma("s[34:35]", "s50")
    a.label(L('sync1'))

    a("s_and_b32 s36, s21, 3"); a("s_lshl_b32 s36, s36, 11"); a("s_lshr_b32 s42, s21, 2"); a("s_lshl_b32 s42, s42, 14"); a("s_add_u32 s36, s36, s42")
    a("v_add_u32 v1, s36, v6")
    a("v_and_b32 v2, 8, v0"); a("v_cmp_eq_u32 vcc, 0, v2"); a("v_mov_b32 v2, 0xeeee"); a("v_mov_b32 v3, 0x4444"); a("s_nop 1")
    a("v_cndmask_b32 v2, v2, v3, vcc")
    a("s_mul_i32 s36, s21, 3072"); a("v_add_u32 v3, s36, v6")
    a("s_mov_b32 s22, 0"); a("s_mov_b32 s51, 1")
    a("s_waitcnt vmcnt(0) lgkmcnt(0)"); a("s_barrier")
    a(f"v_mov_b32 v24, {L_PARW}"); a("ds_read_b64 v[24:25], v24"); a("s_waitcnt lgkmcnt(0)")
    a("v_readfirstlane_b32 s25, v24"); a("v_readfirstlane_b32 s23, v25")
    a("s_and_b32 s25, s25, 1")
    if "safe" in OPT: a("s_mov_b32 s23, 0")
    a("s_lshl_b32 s36, s25, 13"); a("s_add_u32 s26, s16, s36"); a("s_addc_u32 s27, s17, 0")
    a(f"s_mov_b32 s42, {WS_MEMS}"); near(a, 28, "s42")
    a("s_lshr_b32 s38, s18, 1"); a("s_lshl_b32 s38, s38, 14"); a("s_and_b32 s36, s18, 1"); a("s_lshl_b32 s36, s36, 12"); a("s_add_u32 s38, s38, s36"); a(f"s_add_u32 s38, s38, {WS_KMVM}")
    near(a, 30, "s38")
    if "diag" in OPT: pstamp(a, 3, 98)
    if prof:
        for k in range(8): a(f"s_mov_b32 s{60+k}, 0")
        a("s_memtime s[56:57]"); a("s_waitcnt lgkmcnt(0)"); a("s_mov_b32 s59, s56")
        pstamp(a, prof, 60)
    a("s_cmp_lt_u32 s21, 4"); a(f"s_cbranch_scc1 {L('setup_vo')}")
    a("s_cmp_eq_u32 s21, 6"); a(f"s_cbranch_scc1 {L('setup_sm')}")

    def zero_acc():
        for i in range(24): a(f"v_mov_b32 v{24+i}, 0")
    def pair(p): return [(2*p, 0), (2*p+1, 0), (2*p, 1), (2*p+1, 1)]
    def sm(tt, ks, mb):
        dd = 24 + tt*4; b = (tt*2 + ks)*8
        a(f"v_smfmac_f32_16x16x64_bf16 v[{dd}:{dd+3}], v[{mb+4*ks}:{mb+3+4*ks}], a[{b}:{b+7}], v2")
    def cv(p, i): a(f"v_cvt_pk_bf16_f32 v{24+8*p+i}, v{24+8*p+2*i}, v{25+8*p+2*i}")
    def mload(b):
        a(f"global_load_dwordx4 v[{b}:{b+3}], v1, s[28:29] sc1")
        a(f"global_load_dwordx4 v[{b+4}:{b+7}], v1, s[28:29] offset:1024 sc1")
    def mchk(b):
        a(f"v_max3_u32 v0, v{b}, v{b+1}, v{b+2}"); a(f"v_max3_u32 v7, v{b+3}, v{b+4}, v{b+5}"); a(f"v_max3_u32 v0, v0, v{b+6}, v{b+7}"); a("v_max_u32 v0, v0, v7")
        a("v_cmp_eq_u32 vcc, -1, v0")
    def p1_mm(mb):
        for t, k in pair(0): sm(t, k, mb)
        for t, k in pair(1): sm(t, k, mb)
        a("s_nop 3")
        for i, (t, k) in enumerate(pair(2)):
            cv(0, i)
            if i == 3: a("ds_write_b128 v3, v[24:27]")
            sm(t, k, mb)
    DM = PAR["DM"]

    def p1(name):
        if PAR["MDEL"]: a(f"s_sleep {PAR['MDEL']}")
        if DM == 2:
            mload(16)
            if PAR["MGAP"]: a(f"s_sleep {PAR['MGAP']}")
        a.label(L(name))
        mload(48 if DM == 2 else 16)
        a(f"s_waitcnt vmcnt({2*(DM-1)})")
        fs(a, prof, 0, 5)
        mchk(16)
        a(f"s_cbranch_vccnz {L(name + '_retry')}")
        stamp(a, prof, 0)
        fs(a, prof, 1, 5)
        p1_mm(16)
        a.label(L(name + '_j'))
        fs(a, prof, 3, 5)
        for i in range(4): cv(1, i)
        a("ds_write_b128 v3, v[32:35] offset:1024")
        fs(a, prof, 4, 5)
        a("s_nop 2")
        for i in range(4): cv(2, i)
        a("ds_write_b128 v3, v[40:43] offset:2048")
        fs(a, prof, 5, 5)
        a("s_waitcnt vmcnt(0) lgkmcnt(0)")
        fs(a, prof, 6, 5)
        a("s_barrier")
        fs(a, prof, 7, 5)
        if prof == 5: a("s_waitcnt lgkmcnt(0)")
        stamp(a, prof, 1)
    def p1_retry(name):
        a.label(L(name + '_retry'))
        if DM == 2:
            mload(16)
            a("s_waitcnt vmcnt(2)")
            mchk(48)
            a(f"s_cbranch_vccnz {L(name + '_g')}")
            stamp(a, prof, 0)
            p1_mm(48)
            a(f"s_branch {L(name + '_j')}")
            a.label(L(name + '_g'))
        guard(a, L(name), FAIL)

    def step_adv():
        zero_acc()
        a("s_add_u32 s22, s22, 1")
        a("s_add_u32 s28, s28, 0x8000"); a("s_addc_u32 s29, s29, 0")
        a("s_add_u32 s38, s38, 0x40000"); near(a, 30, "s38")
    def step_end():
        step_adv()
        a("s_waitcnt vmcnt(0) lgkmcnt(0)")
        a("s_barrier")
        stamp(a, prof, 7)

    a("s_sub_u32 s37, s21, 4"); a("s_min_u32 s37, s37, 2")
    a("s_lshl_b32 s36, s37, 10"); a("v_add_u32 v4, s36, v6")
    a("v_and_b32 v48, 1, v0"); a("v_lshlrev_b32 v48, 4, v48"); a("v_mov_b32 v49, 0x3f80"); a("v_lshlrev_b32 v48, v48, v49")
    a("v_bfe_u32 v49, v0, 3, 1"); a("v_bfe_u32 v50, v0, 1, 1"); a("v_lshl_add_u32 v49, v49, 1, v50")
    a("v_lshrrev_b32 v50, 2, v0"); a("v_xor_b32 v50, v50, v0"); a("v_and_b32 v50, 4, v50"); a("v_add_u32 v49, v49, v50")
    for q in range(4):
        a(f"v_cmp_eq_u32 vcc, {q}, v49"); a("s_nop 1"); a(f"v_cndmask_b32 v{84+q}, 0, v48, vcc")
    a("v_and_b32 v48, 7, v0"); a("v_lshlrev_b32 v48, 4, v48"); a("v_and_b32 v49, 8, v0"); a("v_lshrrev_b32 v50, 4, v0")
    a("v_add_u32 v51, v48, v49"); a("v_lshl_add_u32 v10, v50, 7, v51")
    a("s_lshl_b32 s36, s19, 9"); a("s_lshr_b32 s42, s37, 1"); a("s_lshl_b32 s42, s42, 11"); a("s_add_u32 s36, s36, s42"); a("v_add_u32 v10, s36, v10")
    a("v_lshl_add_u32 v5, v50, 8, v51"); a("s_lshl_b32 s36, s19, 10"); a("s_lshl_b32 s42, s37, 7"); a("s_add_u32 s36, s36, s42"); a("v_add_u32 v5, s36, v5")
    zero_acc()
    a(f"s_setprio {PAR['PPRIO']}")
    a("s_cmp_eq_u32 s21, 7"); a(f"s_cbranch_scc1 {L('setup_m')}")
    def reduce8():
        for w in range(8): a(f"ds_read_b128 v[{48+4*w}:{51+4*w}], v4 offset:{3072*w}")
        for w in range(8):
            a(f"s_waitcnt lgkmcnt({7-w})")
            a(f"v_mfma_f32_16x16x32_bf16 v[80:83], v[{48+4*w}:{51+4*w}], v[84:87], " + ("0" if w == 0 else "v[80:83]"))
    def pack_tag(tag, last):
        if last: a(f"s_cmp_eq_u32 s22, {NSTEP-1}")
        a("s_nop 6" if last else "s_nop 7")
        a("v_cvt_pk_bf16_f32 v88, v80, v81"); a("v_cvt_pk_bf16_f32 v89, v82, v83")
        if last: a(f"s_cbranch_scc1 {L(last)}")
        a("s_cmp_lt_u32 s23, 32")
        for i in range(2): a(f"v_or_b32 v{90+i}, 1, v{88+i}" if tag else f"v_and_b32 v{90+i}, -2, v{88+i}")
    a("v_add_u32 v11, s44, v6")
    a("v_and_b32 v15, 7, v0"); a("v_lshlrev_b32 v15, 4, v15"); a("v_bfe_u32 v48, v0, 4, 1"); a("v_lshl_add_u32 v15, v48, 3, v15"); a("v_add_u32 v15, s45, v15")
    a("v_and_b32 v48, 1, v0"); a("v_lshlrev_b32 v48, 4, v48"); a("v_mov_b32 v49, 0x3f80"); a("v_lshlrev_b32 v48, v48, v49")
    a("v_bfe_u32 v49, v0, 1, 3")
    for q in range(4):
        a(f"v_cmp_eq_u32 vcc, {q}, v49"); a("s_nop 1"); a(f"v_cndmask_b32 v{92+q}, 0, v48, vcc")
    DR = PAR["DR"]
    rsets = [96, 112, 128][:DR]
    def rload(b):
        for i in range(4): a(f"global_load_dwordx4 v[{b+4*i}:{b+3+4*i}], v11, s[26:27] offset:{1024*i} sc1")
    a.label(L('v_loop'))
    for tag in range(2):
        n = f"v{tag}"
        p1(n)
        reduce8()
        pack_tag(tag, 'last_pub' if tag == (NSTEP - 1) & 1 else None)
        a(f"s_cbranch_scc1 {L(n + '_wt')}")
        a("global_store_dwordx2 v5, v[90:91], s[32:33]")
        a.label(L(n + '_pd'))
        stamp(a, prof, 2)
        a("s_barrier")
        a("s_cmp_eq_u32 s21, 4"); a(f"s_cbranch_scc1 {L(n + '_red')}")
        if "nopers" not in OPT: a("global_store_dwordx2 v10, v[88:89], s[30:31] sc1")
        step_adv()
        a("s_waitcnt vmcnt(0)")
        a(f"s_branch {L(n + '_end')}")
        a.label(L(n + '_red'))
        step_adv()
        if PAR["RDEL"]: a(f"s_sleep {PAR['RDEL']}")
        stamp(a, prof, 5, 31)
        for d in range(DR - 1):
            rload(rsets[d])
            if PAR["RGAP"]: a(f"s_sleep {PAR['RGAP']}")
        a.label(L(n + '_rp'))
        for d in range(DR):
            rload(rsets[(d + DR - 1) % DR])
            a(f"s_waitcnt vmcnt({4*(DR-1)})")
            b = rsets[d]
            mf = [f"v_mfma_f32_16x16x32_bf16 v[64:67], v[92:95], v[{b+4*i}:{b+3+4*i}], " + ("0" if i == 0 else "v[64:67]") for i in range(4)]
            tagchk(a, list(range(b, b + 16)), tag, 73, 72, mf)
            a(f"s_cbranch_vccz {L(n + '_rok')}" if d < DR - 1 else f"s_cbranch_vccnz {L(n + '_rr')}")
        a.label(L(n + '_rok'))
        a("s_nop 3")
        for i in range(4): a(f"v_add_f32_dpp v{72+i}, v{64+i}, v{64+i} row_ror:8 row_mask:0xf bank_mask:0xf")
        a("s_mov_b64 exec, 0x00ff00ff")
        a("v_cvt_pk_bf16_f32 v76, v72, v73"); a("v_cvt_pk_bf16_f32 v77, v74, v75")
        a("v_min_u32 v76, -2, v76"); a("v_min_u32 v77, -2, v77")
        a("global_store_dwordx2 v15, v[76:77], s[28:29] sc1")
        a("s_mov_b64 exec, -1")
        stamp(a, prof, 6, 31)
        if PAR["MACK"]: a("s_waitcnt vmcnt(0)")
        a.label(L(n + '_end'))
        a("s_barrier")
        stamp(a, prof, 7)
    a(f"s_branch {L('v_loop')}")
    for tag in range(2):
        n = f"v{tag}"
        p1_retry(n)
        a.label(L(n + '_wt')); a("global_store_dwordx2 v5, v[90:91], s[32:33] sc1"); a(f"s_branch {L(n + '_pd')}")
        a.label(L(n + '_rr')); guard(a, L(n + '_rp'), FAIL)

    a.label(L('setup_m'))
    a("v_lshrrev_b32 v5, 5, v0"); a("v_lshl_add_u32 v5, v5, 8, v48"); a("v_bfe_u32 v50, v0, 3, 2"); a("v_lshl_add_u32 v5, v50, 2, v5")
    a("s_lshl_b32 s36, s19, 9"); a("s_add_u32 s36, s36, 4096"); a("v_add_u32 v5, s36, v5")
    a("v_mov_b32 v93, 0")
    def progress(tagname):
        a("s_cmp_eq_u32 s20, 0"); a(f"s_cbranch_scc0 {L(tagname)}")
        a("v_mov_b32 v92, s22")
        a("s_mov_b64 exec, 1")
        a(f"global_store_dword v93, v92, s[14:15] offset:{DBG_PROG} sc1")
        a("s_mov_b64 exec, -1")
        a.label(L(tagname))
    a.label(L('m_loop'))
    for tag in range(2):
        n = f"m{tag}"
        p1(n)
        reduce8()
        pack_tag(tag, 'fin_m' if tag == (NSTEP - 1) & 1 else None)
        a(f"s_cbranch_scc1 {L(n + '_wt')}")
        a("global_store_dword v5, v90, s[32:33]"); a("global_store_dword v5, v91, s[32:33] offset:128")
        a.label(L(n + '_pd'))
        a("s_barrier")
        if "nopers" not in OPT: a("global_store_dwordx2 v10, v[88:89], s[30:31] sc1")
        progress(n + '_pg')
        if kvwait:
            a("s_add_u32 s53, s22, 3"); a("s_min_u32 s53, s53, 63"); a("s_lshr_b32 s53, s53, 3")
            a("s_cmp_lt_u32 s53, s51"); a(f"s_cbranch_scc1 {L(n + '_kvh')}")
            kv_poll(n + '_kv', "s53")
            a("s_add_u32 s51, s53, 1")
            a.label(L(n + '_kvh'))
        step_end()
    a(f"s_branch {L('m_loop')}")
    for tag in range(2):
        n = f"m{tag}"
        p1_retry(n)
        a.label(L(n + '_wt'))
        a("global_store_dword v5, v90, s[32:33] sc1"); a("global_store_dword v5, v91, s[32:33] offset:128 sc1"); a(f"s_branch {L(n + '_pd')}")
    a.label(L('fin_m'))
    progress('pg_last')
    a(f"s_branch {L('last_pub')}")

    a.label(L('setup_sm'))
    a(f"v_add_u32 v14, {L_KX}, v6")
    a("v_and_b32 v16, 7, v0"); a("v_lshrrev_b32 v17, 4, v0"); a("v_lshl_add_u32 v9, v17, 3, v16"); a("v_lshlrev_b32 v9, 4, v9"); a("v_and_b32 v18, 8, v0"); a("v_add_u32 v9, v9, v18")
    a("v_and_b32 v17, 1, v17"); a("v_lshl_add_u32 v10, v17, 3, v16"); a("v_lshlrev_b32 v10, 4, v10")
    a("v_lshrrev_b32 v17, 5, v0"); a("v_lshl_add_u32 v10, v17, 2, v10"); a("v_lshrrev_b32 v18, 2, v18"); a("v_add_u32 v10, v10, v18")
    a("s_mov_b32 s46, 0x3e0293ee")
    for i in range(4): a(f"v_mov_b32 v{84+i}, 0")
    a(f"ds_write_b128 v6, v[84:87] offset:{L_ZERO}"); a(f"ds_write_b128 v6, v[84:87] offset:{L_ZERO + 1024}")
    def k_load():
        for i in range(8): a(f"ds_read_b128 v[{96+4*i}:{99+4*i}], v14 offset:{1024*i}")
        a("v_xor_b32 v14, 0x2000, v14")
    k_load()
    zero_acc()
    a("s_setprio 2")
    def xload(b):
        for jj in range(4): a(f"global_load_dwordx4 v[{b+4*jj}:{b+3+4*jj}], v6, s[32:33] offset:{1024*jj} sc1")
    def s_mfma(b, t, jj):
        X = f"v[{b+4*jj}:{b+3+4*jj}]"
        d = 64 + 4*t
        A = X if t == 2 else f"v[{96+(t*4+jj)*4}:{99+(t*4+jj)*4}]"
        return f"v_mfma_f32_16x16x32_bf16 v[{d}:{d+3}], {A}, {X}, " + (f"v[{d}:{d+3}]" if jj else "0")
    def s_head(b, tag):
        tagchk(a, list(range(b, b + 16)), tag, 15, 16, [s_mfma(b, 2, jj) for jj in range(3)])
    def s_rest(b):
        a(s_mfma(b, 2, 3))
        for jj in range(4): a(s_mfma(b, 1, jj))
        for jj in range(4): a(s_mfma(b, 0, jj))
    XD = PAR["XD"]
    a.label(L('s_loop'))
    for tag in range(2):
        n = f"s{tag}"
        p1(n)
        if tag == (NSTEP - 1) & 1:
            a(f"s_cmp_eq_u32 s22, {NSTEP-1}"); a(f"s_cbranch_scc1 {L('fin')}")
        if PAR["XDEL"]: a(f"s_sleep {PAR['XDEL']}")
        if XD == 2:
            xload(48)
            if PAR["XGAP"]: a(f"s_sleep {PAR['XGAP']}")
        a.label(L(n + '_xp'))
        xload(128 if XD == 2 else 48)
        a(f"s_waitcnt vmcnt({4*(XD-1)})")
        fs(a, prof, 0, 4)
        s_head(48, tag)
        a(f"s_cbranch_vccnz {L(n + '_xr')}")
        stamp(a, prof, 2)
        fs(a, prof, 1, 4)
        s_rest(48)
        a.label(L(n + '_xj'))
        fs(a, prof, 2, 4)
        dpp = "row_shr:8 row_mask:0xf bank_mask:0xc"
        a(f"v_mov_b32_dpp v72, v73 {dpp}"); a(f"v_mov_b32_dpp v74, v75 {dpp}")
        a("s_nop 1")
        a("v_permlane32_swap_b32 v72, v74")
        a("s_nop 2")
        for i in range(4): a(f"v_mov_b32_dpp v{64+i}, v{68+i} {dpp}")
        a("v_max3_f32 v16, v74, v64, v65"); a("v_max3_f32 v16, v16, v66, v67")
        fs(a, prof, 3, 4)
        a("s_nop 1"); a("v_max_f32_dpp v16, v16, v16 row_ror:8 row_mask:0xf bank_mask:0xf")
        a("v_mov_b32 v17, v16"); a("s_nop 1"); a("v_permlane16_swap_b32 v16, v17"); a("v_max_f32 v16, v16, v17")
        a("v_mov_b32 v17, v16"); a("s_nop 1"); a("v_permlane32_swap_b32 v16, v17"); a("v_max_f32 v16, v16, v17")
        fs(a, prof, 4, 4)
        a("v_mul_f32 v16, s46, v16")
        for rg in (74, 64, 65, 66, 67): a(f"v_fma_f32 v{rg}, v{rg}, s46, -v16")
        a("v_exp_f32 v74, v74"); a("v_exp_f32 v64, v64")
        a("v_cvt_pk_bf16_f32 v82, v74, v74")
        a("v_exp_f32 v65, v65")
        a(f"ds_write_b16 v10, v82 offset:{L_P + 1024}")
        a("v_exp_f32 v66, v66")
        a(f"ds_write_b16 v10, v82 offset:{L_P + 1280}")
        a("v_exp_f32 v67, v67")
        a("v_cvt_pk_bf16_f32 v80, v64, v65")
        a("v_cvt_pk_bf16_f32 v81, v66, v67")
        a(f"ds_write_b64 v9, v[80:81] offset:{L_P}")
        fs(a, prof, 5, 4)
        a("s_waitcnt lgkmcnt(0)"); fs(a, prof, 6, 4); a("s_barrier"); fs(a, prof, 7, 4)
        stamp(a, prof, 3)
        k_load()
        step_end()
    a(f"s_branch {L('s_loop')}")
    for tag in range(2):
        n = f"s{tag}"
        p1_retry(n)
        a.label(L(n + '_xr'))
        if XD == 2:
            xload(48)
            a("s_waitcnt vmcnt(4)")
            s_head(128, tag)
            a(f"s_cbranch_vccnz {L(n + '_xg')}")
            stamp(a, prof, 2)
            s_rest(128)
            a(f"s_branch {L(n + '_xj')}")
            a.label(L(n + '_xg'))
        guard(a, L(n + '_xp'), FAIL)

    a.label(L('setup_vo'))
    a("v_add_u32 v8, 0x1000, v6"); a("v_lshrrev_b32 v9, 4, v0")
    a("s_lshl_b32 s36, s19, 5"); a("s_lshl_b32 s42, s21, 3"); a("s_add_u32 s36, s36, s42")
    a("v_add_u32 v9, s36, v9"); a("v_bfe_u32 v11, v0, 3, 1"); a("v_lshl_add_u32 v9, v11, 2, v9")
    a("v_and_b32 v11, 1, v9"); a("v_lshlrev_b32 v11, 12, v11"); a("v_lshrrev_b32 v9, 1, v9"); a("v_lshl_add_u32 v9, v9, 14, v11")
    a("v_and_b32 v11, 7, v0"); a("v_lshl_add_u32 v9, v11, 4, v9"); a("s_lshl_b32 s36, s18, 7"); a("v_add_u32 v9, s36, v9")
    a("v_lshrrev_b32 v12, 4, v0"); a("v_and_b32 v13, 7, v0"); a("v_lshl_add_u32 v12, v12, 3, v13"); a("v_lshlrev_b32 v12, 4, v12"); a(f"v_add_u32 v12, {L_P}, v12"); a(f"v_mov_b32 v11, {L_ZERO}")
    a("v_and_b32 v13, 8, v0"); a("v_cmp_eq_u32 vcc, 0, v13"); a("s_nop 1")
    a("v_cndmask_b32 v13, v12, v11, vcc"); a("v_cndmask_b32 v12, v11, v12, vcc")
    a(f"v_add_u32 v14, {L_VX}, v6")
    a("s_lshr_b32 s36, s21, 1"); a(f"s_mul_i32 s54, s36, {WS_VX - WS_KX}"); a(f"s_mul_i32 s55, s36, {L_VX - L_KX}")
    a("s_and_b32 s36, s21, 1"); a("s_lshl_b32 s36, s36, 12"); a("s_add_u32 s54, s54, s36"); a("s_add_u32 s55, s55, s36"); a(f"s_add_u32 s55, s55, {L_KX}")
    a("s_lshl_b32 s36, s18, 14"); a("s_add_u32 s54, s54, s36"); a(f"s_add_u32 s54, s54, {WS_KX}")
    def u_load():
        for i in range(8): a(f"ds_read_b128 v[{16+4*i}:{19+4*i}], v14 offset:{1024*i}")
        a("v_xor_b32 v14, 0x2000, v14")
    def u_half(hf):
        for jj in range(4):
            for c2 in range(2):
                for kt in range(2):
                    d = 64 + (c2*2 + kt)*4
                    A = 16 + (kt*4 + jj)*4
                    a(f"v_mfma_f32_16x16x32_bf16 v[{d}:{d+3}], v[{A}:{A+3}], {wo_reg(2*hf+c2, jj)}, " + ("0" if jj == 0 else f"v[{d}:{d+3}]"))
        a("s_nop 7")
        for c2 in range(2):
            for kt in range(2):
                d = 64 + (c2*2 + kt)*4
                u = 80 + (2*hf + c2)*4 + kt*2
                a(f"v_cvt_pk_bf16_f32 v{u}, v{d}, v{d+1}"); a(f"v_cvt_pk_bf16_f32 v{u+1}, v{d+2}, v{d+3}")
    def vo_prep(tag, ahead):
        for i in range(4): a(f"v_mov_b32 v{56+i}, 0x3f803f80")
        for i in range(4): a(f"v_mov_b32 v{60+i}, 0x3f003f00")
        for i in range(16): a(f"v_mov_b32 v{64+i}, 0")
        a(f"s_add_u32 s53, s22, {2 + ahead}"); a("s_min_u32 s53, s53, 63"); a("s_lshl_b32 s53, s53, 19"); a("s_add_u32 s53, s53, s54"); near(a, 48, "s53")
        a(f"s_add_u32 m0, s55, {tag*8192}")
    u_load(); a("s_waitcnt lgkmcnt(0)"); u_half(0); u_half(1)
    vo_prep(0, 0)
    zero_acc()
    if PAR["PRIO"]: a("s_setprio 1")
    a.label(L('o_loop'))
    for tag in range(2):
        n = f"o{tag}"
        p1(n)
        if tag == (NSTEP - 1) & 1:
            a(f"s_cmp_eq_u32 s22, {NSTEP-1}"); a(f"s_cbranch_scc1 {L('fin')}")
        if PAR["VDEL"]: a(f"s_sleep {PAR['VDEL']}")
        a.label(L(n + '_vp'))
        for k in range(2): a(f"global_load_dwordx4 v[{48+4*k}:{51+4*k}], v8, s[32:33] offset:{1024*k} sc1")
        a("s_waitcnt vmcnt(0)")
        tagchk(a, list(range(48, 56)), tag, 17, 16)
        a(f"s_cbranch_vccnz {L(n + '_vr')}")
        for k in range(2):
            for ct in range(4):
                b = 96 + (ct*4 + 2*k)*4
                a(f"v_smfmac_f32_16x16x64_bf16 v[{64+4*ct}:{67+4*ct}], v[{48+4*k}:{51+4*k}], v[{b}:{b+7}], v2")
        a("s_nop 4")
        for ct in range(4):
            if ct == 3: a("s_nop 1")
            t = 24 + (ct & 1)*4 + (ct >> 1)*2
            a(f"v_cvt_pk_bf16_f32 v{t}, v{64+4*ct}, v{65+4*ct}"); a(f"v_cvt_pk_bf16_f32 v{t+1}, v{66+4*ct}, v{67+4*ct}")
        if "nodma" not in OPT:
            for jj in range(4): a(f"global_load_lds_dwordx4 v6, s[48:49] offset:{jj*1024} sc1")
        stamp(a, prof, 3)
        a("s_barrier")
        a("ds_read_b64 v[36:37], v12 offset:1024"); a("ds_read_b64 v[38:39], v13 offset:1024")
        a("ds_read_b128 v[32:35], v12"); a("ds_read_b128 v[48:51], v13")
        a("s_waitcnt lgkmcnt(2)")
        stamp(a, prof, 4)
        a("v_mfma_f32_16x16x32_bf16 v[40:43], v[60:63], v[36:39], 0")
        a("v_mfma_f32_16x16x32_bf16 v[64:67], v[24:27], v[36:39], 0")
        a("s_waitcnt lgkmcnt(0)")
        a("v_or_b32 v44, v32, v48"); a("v_or_b32 v45, v33, v49")
        a("v_or_b32 v46, v34, v50"); a("v_or_b32 v47, v35, v51")
        a("v_mfma_f32_16x16x32_bf16 v[68:71], v[28:31], v[36:39], 0")
        a("v_mfma_f32_16x16x32_bf16 v[64:67], v[80:83], v[32:35], v[64:67]")
        a("v_mfma_f32_16x16x32_bf16 v[40:43], v[56:59], v[44:47], v[40:43]")
        a("v_mfma_f32_16x16x32_bf16 v[68:71], v[84:87], v[32:35], v[68:71]")
        a("v_mfma_f32_16x16x32_bf16 v[64:67], v[88:91], v[48:51], v[64:67]")
        a("v_mfma_f32_16x16x32_bf16 v[68:71], v[92:95], v[48:51], v[68:71]")
        a("s_nop 4")
        a("v_rcp_f32 v40, v40")
        a("s_nop 0")
        for i in range(8): a(f"v_mul_f32 v{64+i}, v{64+i}, v40")
        for i in range(4): a(f"v_cvt_pk_bf16_f32 v{48+i}, v{64+2*i}, v{65+2*i}")
        for i in range(4): a(f"v_or_b32 v{48+i}, 1, v{48+i}" if tag else f"v_and_b32 v{48+i}, -2, v{48+i}")
        a("global_store_dwordx4 v9, v[48:51], s[26:27] sc1")
        stamp(a, prof, 5)
        u_load(); a("s_waitcnt lgkmcnt(0)"); u_half(0)
        u_half(1)
        vo_prep(tag ^ 1, 1)
        step_end()
    a(f"s_branch {L('o_loop')}")
    for tag in range(2):
        n = f"o{tag}"
        p1_retry(n)
        a.label(L(n + '_vr')); guard(a, L(n + '_vp'), FAIL)

    a.label(L('last_pub'))
    a("s_cmp_eq_u32 s21, 4"); a(f"s_cbranch_scc1 {L('fin')}")
    a("global_store_dwordx2 v10, v[88:89], s[30:31] sc1")
    a.label(L('fin'))
    a("s_waitcnt vmcnt(0)"); a("s_barrier")
    a("s_cmp_eq_u32 s21, 0"); a(f"s_cbranch_scc0 {L('end')}")
    a("s_lshl_b32 s36, s18, 7"); a("s_lshl_b32 s42, s19, 2"); a("s_add_u32 s36, s36, s42"); a(f"s_add_u32 s36, s36, {WS_FLAG + 8192}")
    a("v_mov_b32 v16, s36"); a("v_mov_b32 v17, 0")
    a("s_mov_b64 exec, 1")
    a("global_store_dword v16, v17, s[16:17] sc1")
    a("s_mov_b64 exec, -1")
    if "span" in OPT:
        a("s_and_b32 s98, s20, 15"); a("s_cmp_lg_u32 s98, 0"); a(f"s_cbranch_scc1 {L('end')}")
        a("s_memrealtime s[98:99]"); a("s_waitcnt lgkmcnt(0)"); a("v_mov_b32 v5, s98"); a("v_mov_b32 v2, 0")
        a("s_mov_b64 exec, 1"); a("global_atomic_umax v2, v5, s[14:15] offset:56 sc1"); a("s_mov_b64 exec, -1")
    if "diag" in OPT:
        a("s_cmp_eq_u32 s20, 0"); a(f"s_cbranch_scc0 {L('end')}")
        a("s_memrealtime s[56:57]"); a("s_waitcnt lgkmcnt(0)"); a("s_sub_u32 s70, s56, s98"); a("s_sub_u32 s71, s98, s97")
        a("s_mov_b64 exec, 1")
        a("s_mov_b32 s72, 0"); a("s_mov_b32 s73, 0"); a("s_mov_b32 s74, 0"); a("v_mov_b32 v18, 0")
        a.label(L('dg'))
        for k in range(2):
            a("s_lshl_b32 s36, s74, 21"); a(f"s_add_u32 s36, s36, {0x10000 + k*0x2000}"); a("v_mov_b32 v16, s36")
            for rep in range(2):
                a("s_memtime s[56:57]"); a("s_waitcnt lgkmcnt(0)")
                a("global_atomic_or v17, v16, v18, s[16:17] sc0 sc1"); a("s_waitcnt vmcnt(0)")
                a("s_memtime s[58:59]"); a("s_waitcnt lgkmcnt(0)")
            a(f"s_sub_u32 s{76+k}, s58, s56")
        a("s_cmp_lt_u32 s77, s76"); a("s_cselect_b32 s78, 1, 0"); a("s_mov_b32 s79, 0"); a("s_lshl_b64 s[78:79], s[78:79], s74"); a("s_or_b64 s[72:73], s[72:73], s[78:79]")
        a("s_add_u32 s74, s74, 1"); a("s_cmp_lt_u32 s74, 64"); a(f"s_cbranch_scc1 {L('dg')}")
        for k in range(4): a(f"v_mov_b32 v{20+k}, s{70+k}")
        a("global_store_dwordx4 v18, v[20:23], s[14:15] offset:48")
        a("s_mov_b64 exec, -1")
    a(f"s_branch {L('end')}")
    a.label(FAIL)
    a("v_mov_b32 v16, 0"); a("v_mov_b32 v17, 0xdead"); a("global_store_dword v16, v17, s[14:15] offset:252")
    a.label(L('end'))
    if prof:
        if prof == 3:
            a("s_memrealtime s[56:57]"); a("s_waitcnt lgkmcnt(0)"); a("s_mov_b32 s61, s56"); a("s_mov_b32 s62, s25"); a("s_mov_b32 s63, s90"); a("s_mov_b32 s64, s91"); a("s_mov_b32 s65, s89")
        if prof > 3:
            a("s_waitcnt lgkmcnt(0)")
            for k in range(8): a(f"s_sub_u32 s{60+k if k < 6 else 84+k}, s{66+2*k}, s66")
            a("s_mov_b32 s66, s90"); a("s_mov_b32 s67, s91")
        a("s_lshl_b32 s36, s20, 3"); a("s_add_u32 s36, s36, s21"); a("s_lshl_b32 s36, s36, 5"); a(f"s_add_u32 s36, s36, {200<<20}")
        a("v_mov_b32 v16, s36")
        for k in range(8): a(f"v_mov_b32 v{24+k}, s{60+k}")
        a("s_mov_b64 exec, 1")
        a("global_store_dwordx4 v16, v[24:27], s[16:17]"); a("global_store_dwordx4 v16, v[28:31], s[16:17] offset:16")
    a("s_endpgm")
```

```python
import sys, os
sys.path.insert(0, os.path.dirname(__file__))
from asmgen import *
import gemm
import rec2 as rec
from gemm import acc, R

NAME = "concat_heads__linear_attn_block__memory_aug_recurrent_mem_tr__prompt"
WS_O   = 84 << 20
WS_OA  = 100 << 20
WS_KVP = 105 << 20
OA_T = 36864
D_OVF, D_AKV, D_KV, D_AO, D_O = 32, 36, 64, 96, 128
D_PROG = rec.DBG_PROG
WSPIN = 400000
LOG2E = 0x3fb8aa3b
EPS = 0x358637bd
SCL = 0x3e0293ee


def load_ptrs(a):
    a("s_load_dwordx16 s[4:19], s[0:1], 0"); a("s_load_dwordx2 s[20:21], s[0:1], 64")
    a("s_load_dwordx4 s[24:27], s[0:1], 80"); a("s_load_dwordx2 s[28:29], s[0:1], 96")

def signal(a, off_sgpr_or_imm, val=1):
    lab = a.newlabel("sig")
    a("s_waitcnt vmcnt(0)"); a("s_barrier")
    a("s_cmp_lg_u32 s75, 0"); a(f"s_cbranch_scc1 {lab}")
    a(f"v_mov_b32 v16, {off_sgpr_or_imm}"); a(f"v_mov_b32 v17, {val}")
    a("s_mov_b64 exec, 1")
    a("global_atomic_add v16, v17, s[26:27] sc1")
    a("s_mov_b64 exec, -1")
    a.label(lab)

def wait_cnt(a, off, target):
    lp, ok, done = a.newlabel("wl"), a.newlabel("wo"), a.newlabel("wd")
    a("s_cmp_lg_u32 s75, 0"); a(f"s_cbranch_scc1 {done}")
    a(f"v_mov_b32 v16, {off}")
    a.label(lp)
    a("global_load_dword v17, v16, s[26:27] sc1"); a("s_waitcnt vmcnt(0)")
    a(f"v_cmp_ne_u32 vcc, {target}, v17"); a(f"s_cbranch_vccz {ok}")
    a("s_sleep 8")
    a("s_add_u32 s46, s46, 1"); a(f"s_cmp_lt_u32 s46, {WSPIN}"); a(f"s_cbranch_scc1 {lp}")
    a("s_branch w_fail")
    a.label(ok)
    a("buffer_inv sc1"); a("s_waitcnt vmcnt(0)")
    a.label(done)
    a("s_barrier")

def learn_parity(a):
    lp, ok = a.newlabel("vl"), a.newlabel("vo")
    a("v_mov_b32 v16, 0")
    a.label(lp)
    a(f"global_load_dword v17, v16, s[26:27] offset:{rec.DBG_VOTE} sc1"); a("s_waitcnt vmcnt(0)")
    a("v_readfirstlane_b32 s22, v17"); a("s_and_b32 s32, s22, 0xffff"); a("s_cmp_eq_u32 s32, 256"); a(f"s_cbranch_scc1 {ok}")
    a("s_sleep 8")
    a("s_add_u32 s46, s46, 1"); a(f"s_cmp_lt_u32 s46, {WSPIN}"); a(f"s_cbranch_scc1 {lp}")
    a("s_branch w_fail")
    a.label(ok)
    a("s_lshr_b32 s22, s22, 16"); a("s_cmp_gt_u32 s22, 64"); a("s_cselect_b32 s22, 1, 0")

def phi(a, regs):
    for i in range(0, len(regs), 8):
        b = regs[i:i+8]
        for k, r in enumerate(b): a(f"v_mul_f32 v{16+k}, s40, v{r}")
        for k, r in enumerate(b): a(f"v_min_f32 v{16+k}, 0, v{16+k}")
        for k, r in enumerate(b): a(f"v_exp_f32 v{16+k}, v{16+k}")
        for k, r in enumerate(b): a(f"v_max_f32 v{r}, 0, v{r}")
        for k, r in enumerate(b): a(f"v_add_f32 v{r}, v{r}, v{16+k}")
        for k, r in enumerate(b): a(f"v_add_f32 v{r}, s41, v{r}")

def pack_frags(a):
    for tt in range(4):
        for jj in range(4):
            s = acc(tt, 2*jj); d = 32 + (tt*4 + jj)*4
            for i in range(4): a(f"v_cvt_pk_bf16_f32 v{d+i}, v{s+2*i}, v{s+2*i+1}")
def frag(tt, jj): return R('v', 32 + (tt*4 + jj)*4)

PROF = False
def wstamp(a, k):
    if not PROF: return
    lab = a.newlabel("ws")
    a("s_cmp_lg_u32 s75, 0"); a(f"s_cbranch_scc1 {lab}")
    a("s_memrealtime s[56:57]"); a("s_waitcnt lgkmcnt(0)")
    a("s_lshl_b32 s58, s44, 5"); a("s_add_u32 s58, s58, s45"); a("s_lshl_b32 s58, s58, 6"); a("s_lshl_b32 s57, s59, 2"); a("s_add_u32 s58, s58, s57"); a(f"s_add_u32 s58, s58, {201 << 20}")
    a("v_mov_b32 v16, s58"); a("v_mov_b32 v17, s56"); a("global_store_dword v16, v17, s[28:29]")
    a("s_memtime s[56:57]"); a("s_waitcnt lgkmcnt(0)"); a("v_mov_b32 v17, s56"); a("v_add_u32 v16, 0x100000, v16"); a("global_store_dword v16, v17, s[28:29]")
    a("s_add_u32 s59, s59, 1")
    a.label(lab)

ROT = False
def rot(a, rsh, csh):
    if not ROT:
        a("s_mov_b32 s77, 0"); return
    a(f"s_lshl_b32 s77, s31, {rsh}"); a(f"s_lshl_b32 s74, s30, {csh}"); a("s_add_u32 s77, s77, s74"); a("s_and_b32 s77, s77, 15")

def task_g1(a, MT, grp):
    gemm.setup_a_rowmajor(a, 2048, MT); gemm.setup_w(a, 8192)
    a("s_lshl_b32 s32, s31, 15"); a("s_add_u32 s80, s10, s32"); a("s_addc_u32 s81, s11, 0")
    a("s_cmp_lt_u32 s30, 16"); a("s_cselect_b32 s82, s16, s18"); a("s_cselect_b32 s83, s17, s19")
    a(f"s_cselect_b32 s33, {rec.WS_KX >> 20}, {rec.WS_VX >> 20}"); a("s_lshl_b32 s33, s33, 20")
    a("s_and_b32 s35, s30, 15"); a("s_lshl_b32 s32, s35, 9"); a("s_add_u32 s82, s82, s32"); a("s_addc_u32 s83, s83, 0")
    a("s_mov_b32 s66, 7"); a("s_mov_b32 s77, 0")
    gemm.call(a, "core_T" + ("" if MT == 4 else str(MT)))
    wstamp(a, 0)
    if grp == 0: learn_parity(a)
    a("s_lshl_b32 s34, s35, 1"); a("s_add_u32 s34, s34, s73"); a("s_lshl_b32 s34, s34, 14"); a("s_add_u32 s33, s33, s34")
    a(f"s_mul_i32 s36, s72, {MT}"); a("s_add_u32 s36, s36, s31")
    a("v_lshlrev_b32 v19, 4, v0")
    for tt in range(MT):
        a(f"s_add_u32 s32, s36, {tt}"); a("s_and_b32 s34, s32, 1"); a("s_lshl_b32 s34, s34, 12"); a("s_lshr_b32 s32, s32, 1"); a("s_lshl_b32 s32, s32, 19")
        a("s_add_u32 s32, s32, s34"); a("s_add_u32 s32, s32, s33")
        a("s_lshr_b32 s34, s32, 21"); a("s_xor_b32 s34, s34, s22"); a("s_and_b32 s34, s34, 1"); a("s_lshl_b32 s34, s34, 13"); a("s_add_u32 s32, s32, s34")
        a(f"v_add_u32 v{20+tt}, s32, v19")
    gemm.epi_frag_store(a, "s[28:29]", "sc1", MT)
    if grp == 0: signal(a, D_KV, 1)
    else:
        a(f"s_mov_b32 s88, {D_KV + 4*grp}"); a("s_mov_b32 s89, 1")

def task_g4kv(a):
    def colmap(a, v):
        a(f"v_bfe_u32 v18, v{v}, 3, 1"); a("v_lshlrev_b32 v18, 11, v18")
        a(f"v_lshrrev_b32 v19, 4, v{v}"); a("v_lshl_add_u32 v18, v19, 7, v18")
        a(f"v_and_b32 v{v}, 7, v{v}"); a(f"v_lshl_add_u32 v{v}, v{v}, 4, v18")
    gemm.setup_a_rowmajor(a, 2048); gemm.setup_w(a, 6144, colmap)
    a("s_lshl_b32 s32, s31, 19"); a("s_add_u32 s80, s4, s32"); a("s_addc_u32 s81, s5, 0")
    a("s_lshl_b32 s32, s30, 8"); a("s_add_u32 s32, s32, 2048"); a("s_add_u32 s82, s6, s32"); a("s_addc_u32 s83, s7, 0")
    a("s_mov_b32 s66, 7"); rot(a, 1, 2)
    gemm.call(a, "core_N")
    wstamp(a, 0)
    a(f"s_mov_b32 s40, {LOG2E}"); a(f"s_mov_b32 s41, {EPS}")
    phi(a, [acc(tt, 0) + i for tt in range(4) for i in range(16)])
    for tp in range(2):
        for ft in range(8):
            x = acc(2*tp, ft); y = acc(2*tp+1, ft)
            a(f"v_cvt_pk_bf16_f32 v{x}, v{x}, v{x+1}"); a(f"v_cvt_pk_bf16_f32 v{x+1}, v{x+2}, v{x+3}")
            a(f"v_cvt_pk_bf16_f32 v{x+2}, v{y}, v{y+1}"); a(f"v_cvt_pk_bf16_f32 v{x+3}, v{y+2}, v{y+3}")
    for i in range(4): a(f"v_mov_b32 v{16+i}, 0x3f803f80")
    a("v_lshlrev_b32 v20, 4, v0"); a("s_mul_i32 s32, s73, 49152"); a("s_lshl_b32 s33, s72, 10"); a("s_add_u32 s32, s32, s33"); a("v_add_u32 v21, s32, v20")
    outb = lambda hd, et, dt: (64 if hd == 0 else 128) + (et*2 + dt)*4
    for tp in range(2):
        for hd in range(2):
            for et in range(3):
                for dt in range(2):
                    D = R('v', outb(hd, et, dt)); A = R('v', acc(2*tp, 2*hd + dt)); B = R('v', acc(2*tp, 4 + 2*hd + et)) if et < 2 else "v[16:19]"
                    a(f"v_mfma_f32_16x16x32_bf16 {D}, {A}, {B}, " + ("0" if tp == 0 else D))
    a("s_barrier")
    a("s_nop 7")
    for hd in range(2):
        for f in range(6):
            a(f"ds_write_b128 v21, {R('v', outb(hd, f >> 1, f & 1))} offset:{(hd*6 + f)*4096}")
    a("s_mul_i32 s32, s75, 12288"); a("v_add_u32 v21, s32, v20")
    a("s_waitcnt lgkmcnt(0)"); a("s_barrier")
    for k in range(3):
        for m in range(4): a(f"ds_read_b128 {R('v', 32 + (k*4 + m)*4)}, v21 offset:{k*4096 + m*1024}")
    a("s_lshl_b32 s32, s31, 5"); a("s_lshl_b32 s33, s30, 2"); a("s_add_u32 s32, s32, s33"); a("s_mul_i32 s32, s32, 6144")
    a("s_mul_i32 s33, s75, 3072"); a("s_add_u32 s32, s32, s33"); a(f"s_add_u32 s32, s32, {WS_KVP}"); a("v_add_u32 v22, s32, v20")
    a("s_waitcnt lgkmcnt(0)")
    for k in range(3):
        b = 32 + k*16
        for h in range(2):
            a(f"v_pk_add_f32 v[{b+2*h}:{b+2*h+1}], v[{b+2*h}:{b+2*h+1}], v[{b+4+2*h}:{b+5+2*h}]")
            a(f"v_pk_add_f32 v[{b+8+2*h}:{b+9+2*h}], v[{b+8+2*h}:{b+9+2*h}], v[{b+12+2*h}:{b+13+2*h}]")
        for h in range(2):
            a(f"v_pk_add_f32 v[{b+2*h}:{b+2*h+1}], v[{b+2*h}:{b+2*h+1}], v[{b+8+2*h}:{b+9+2*h}]")
        a(f"global_store_dwordx4 v22, {R('v', b)}, s[28:29] offset:{k*1024} sc1")
    signal(a, D_AKV)

def task_g4q(a):
    gemm.setup_a_rowmajor(a, 2048); gemm.setup_w(a, 6144)
    a("s_lshl_b32 s32, s31, 19"); a("s_add_u32 s80, s4, s32"); a("s_addc_u32 s81, s5, 0")
    a("s_lshl_b32 s32, s30, 9"); a("s_add_u32 s82, s6, s32"); a("s_addc_u32 s83, s7, 0")
    a("s_mov_b32 s66, 7"); rot(a, 1, 2)
    gemm.call(a, "core_T")
    wstamp(a, 0)
    a(f"s_mov_b32 s40, {LOG2E}"); a(f"s_mov_b32 s41, {EPS}")
    phi(a, list(range(32, 160)))
    pack_frags(a)
    wstamp(a, 0)
    wait_cnt(a, D_AKV, 64)
    wstamp(a, 0)
    a("v_lshlrev_b32 v16, 4, v0")
    for r in range(1, 8): a(f"v_add_u32 v{16+r}, {r*196608}, v16")
    a("s_lshl_b32 s32, s30, 3"); a("s_add_u32 s32, s32, s75"); a("s_mul_i32 s32, s32, 6144"); a(f"s_add_u32 s32, s32, {WS_KVP}")
    a("s_add_u32 s34, s28, s32"); a("s_addc_u32 s35, s29, 0")
    a("s_mul_i32 s32, s75, 3072"); a("v_add_u32 v24, s32, v16")
    for et in range(3):
        for r in range(8):
            for dt in range(2):
                a(f"global_load_dwordx4 {R('v', 96 + (r*2 + dt)*4)}, v{16+r}, s[34:35] offset:{dt*1024} sc1")
        a("s_add_u32 s34, s34, 2048"); a("s_addc_u32 s35, s35, 0")
        a("s_waitcnt vmcnt(0)")
        for step in (32, 16, 8):
            for i in range(0, step, 2):
                a(f"v_pk_add_f32 v[{96+i}:{97+i}], v[{96+i}:{97+i}], v[{96+step+i}:{97+step+i}]")
        for i in range(4): a(f"v_cvt_pk_bf16_f32 v{28+i}, v{96+2*i}, v{97+2*i}")
        a(f"ds_write_b128 v24, v[28:31] offset:{et*1024}")
    a("s_mul_i32 s32, s73, 12288"); a("v_add_u32 v24, s32, v16")
    a("s_waitcnt lgkmcnt(0)"); a("s_barrier")
    for i in range(12): a(f"ds_read_b128 {R('a', i*4)}, v24 offset:{i*1024}")
    gemm.lane_chunk(a, 25, 26)
    a("v_and_b32 v26, 15, v0"); a("v_lshl_add_u32 v25, v25, 4, v26"); a("v_lshlrev_b32 v25, 4, v25")
    a("s_lshl_b32 s32, s31, 4"); a("s_lshl_b32 s33, s72, 2"); a("s_add_u32 s32, s32, s33"); a(f"s_mul_i32 s32, s32, {OA_T}")
    a("s_lshl_b32 s33, s30, 13"); a("s_add_u32 s32, s32, s33"); a("s_lshl_b32 s33, s73, 12"); a("s_add_u32 s32, s32, s33"); a(f"s_add_u32 s32, s32, {WS_OA}")
    a("v_add_u32 v20, s32, v25")
    for tt in range(1, 4): a(f"v_add_u32 v{20+tt}, {tt*OA_T}, v20")
    a("s_waitcnt lgkmcnt(0)")
    for hd in range(4):
        for tt in range(4):
            b = 96 + tt*12
            for et in (2, 0, 1):
                a(f"v_mfma_f32_16x16x32_bf16 {R('v', b + et*4)}, {R('a', (hd*3 + et)*4)}, {frag(tt, hd)}, 0")
        a("s_nop 7")
        for tt in range(4):
            b = 96 + tt*12
            a(f"v_add_f32 v{b+8}, s41, v{b+8}")
        for tt in range(4):
            b = 96 + tt*12
            a(f"v_rcp_f32 v{b+8}, v{b+8}")
        for tt in range(4):
            b = 96 + tt*12
            a(f"v_mov_b32 v{b+9}, v{b+8}")
            for i in range(0, 8, 2): a(f"v_pk_mul_f32 v[{b+i}:{b+i+1}], v[{b+i}:{b+i+1}], v[{b+8}:{b+9}]")
            t = 144 + tt*4
            gemm.pack_swap(a, t, b)
            a(f"global_store_dwordx4 v{20+tt}, {R('v', t)}, s[28:29] offset:{hd*1024} sc1")
    a("s_lshl_b32 s32, s31, 2"); a(f"s_add_u32 s32, s32, {D_AO}")
    signal(a, "s32")

def out_offsets(a, MT):
    gemm.lane_chunk(a, 25, 26)
    a("v_and_b32 v26, 15, v0"); a("v_lshlrev_b32 v26, 12, v26"); a("v_lshl_add_u32 v20, v25, 4, v26")
    a(f"s_mul_i32 s32, s72, {MT*16*4096}"); a("s_lshl_b32 s33, s73, 8"); a("s_add_u32 s32, s32, s33"); a("v_add_u32 v20, s32, v20")
    for tt in range(1, MT): a(f"v_add_u32 v{20+tt}, {tt*65536}, v20")

def task_g5(a):
    gemm.setup_a_frag(a, OA_T); gemm.setup_w(a, 2048)
    a("s_lshl_b32 s32, s31, 2"); a(f"s_add_u32 s32, s32, {D_AO}")
    wait_cnt(a, "s32", 4)
    wstamp(a, 0)
    a(f"s_mul_i32 s32, s31, {16*OA_T}"); a(f"s_add_u32 s32, s32, {WS_OA}"); a("s_add_u32 s80, s28, s32"); a("s_addc_u32 s81, s29, 0")
    a("s_lshl_b32 s32, s30, 9"); a("s_add_u32 s82, s8, s32"); a("s_addc_u32 s83, s9, 0")
    a("s_mov_b32 s66, 7"); rot(a, 1, 2)
    gemm.call(a, "core_T")
    wstamp(a, 0)
    out_offsets(a, 4)
    a("s_lshl_b32 s32, s31, 20"); a("s_lshl_b32 s33, s30, 9"); a("s_add_u32 s32, s32, s33"); a("s_add_u32 s34, s24, s32"); a("s_addc_u32 s35, s25, 0")
    gemm.epi_out_store(a, "s[34:35]")

def task_g3(a):
    gemm.setup_a_frag(a, 131072, 1); gemm.setup_w_frag(a, rec.WOT_CG)
    lp, ok, done = a.newlabel("fl"), a.newlabel("fo"), a.newlabel("fd")
    a("s_cmp_lg_u32 s75, 0"); a(f"s_cbranch_scc1 {ok}")
    a("s_lshl_b32 s32, s31, 8"); a(f"s_add_u32 s32, s32, {rec.WS_FLAG}"); a("v_lshl_add_u32 v16, v0, 2, s32")
    a.label(lp)
    a("global_load_dword v17, v16, s[28:29] sc1"); a("s_waitcnt vmcnt(0)")
    a("v_cmp_ne_u32 vcc, 0, v17"); a(f"s_cbranch_vccz {ok}")
    a("s_sleep 8")
    a("s_add_u32 s46, s46, 1"); a(f"s_cmp_lt_u32 s46, {WSPIN}"); a(f"s_cbranch_scc1 {lp}")
    a("s_branch w_fail")
    a.label(ok)
    wstamp(a, 0)
    a("s_lshl_b32 s32, s31, 19"); a(f"s_add_u32 s32, s32, {WS_O}"); a("s_add_u32 s80, s28, s32"); a("s_addc_u32 s81, s29, 0")
    a(f"s_mul_i32 s32, s30, {8*rec.WOT_CG}"); a(f"s_add_u32 s32, s32, {rec.WS_WOT}"); a("s_add_u32 s82, s28, s32"); a("s_addc_u32 s83, s29, 0")
    a("s_mov_b32 s66, 31"); a("s_mov_b32 s77, 0")
    gemm.call(a, "core_F1")
    a("v_and_b32 v26, 15, v0"); a("v_lshlrev_b32 v26, 12, v26"); a("v_lshrrev_b32 v25, 4, v0"); a("v_lshl_add_u32 v20, v25, 4, v26")
    a("s_lshl_b32 s32, s72, 16"); a("s_lshl_b32 s33, s73, 8"); a("s_add_u32 s32, s32, s33"); a("v_add_u32 v20, s32, v20")
    a("s_lshl_b32 s32, s31, 18"); a("s_lshl_b32 s33, s30, 9"); a("s_add_u32 s32, s32, s33"); a("s_add_u32 s32, s32, 2048"); a("s_add_u32 s34, s24, s32"); a("s_addc_u32 s35, s25, 0")
    gemm.epi_frag_store(a, "s[34:35]", "", 1, 64)

def softmax_cols(a, regs, t):
    a(f"v_max3_f32 v{t}, v{regs[0]}, v{regs[1]}, v{regs[2]}")
    rest = regs[3:]
    while len(rest) >= 2:
        a(f"v_max3_f32 v{t}, v{t}, v{rest[0]}, v{rest[1]}"); rest = rest[2:]
    if rest: a(f"v_max_f32 v{t}, v{t}, v{rest[0]}")
    for sw in ("16", "32"):
        a(f"v_mov_b32 v{t+1}, v{t}"); a("s_nop 1"); a(f"v_permlane{sw}_swap_b32 v{t}, v{t+1}"); a(f"v_max_f32 v{t}, v{t}, v{t+1}")
    a(f"v_mul_f32 v{t}, s40, v{t}")
    for r in regs: a(f"v_fma_f32 v{r}, v{r}, s40, -v{t}")
    for r in regs: a(f"v_exp_f32 v{r}, v{r}")

def task_g2a(a):
    gemm.setup_a_rowmajor(a, 2048); gemm.setup_w(a, 8192)
    a("s_lshl_b32 s32, s31, 19"); a("s_add_u32 s80, s10, s32"); a("s_addc_u32 s81, s11, 0")
    a("s_lshl_b32 s32, s30, 9"); a("s_add_u32 s82, s14, s32"); a("s_addc_u32 s83, s15, 0")
    a("s_mov_b32 s66, 7"); rot(a, 3, 0)
    gemm.call(a, "core_T")
    wstamp(a, 0)
    a("s_lshl_b32 s38, s31, 3"); a("s_lshl_b32 s33, s72, 1"); a("s_add_u32 s38, s38, s33"); a("s_mov_b32 s39, s38"); a("s_lshl_b32 s38, s38, 5")
    a("s_lshl_b32 s42, s30, 1"); a("s_add_u32 s42, s42, s73"); a("s_add_u32 s38, s38, s42")
    a("s_lshl_b32 s34, s38, 14"); a(f"s_add_u32 s34, s34, {rec.WS_KX}"); rec.near(a, 32, "s34", "s22", 28, "s35")
    a(f"s_add_u32 s34, s32, {rec.WS_VX - rec.WS_KX}"); a("s_addc_u32 s35, s33, 0")
    a("v_lshlrev_b32 v16, 4, v0"); a("v_add_u32 v17, 0x1000, v16"); a("v_add_u32 v18, 0x80000, v16"); a("v_add_u32 v19, 0x81000, v16")
    a("s_mul_i32 s43, s75, 20480")
    kp, kok = a.newlabel("kp"), a.newlabel("ko")
    rec.kv_word(a, "s47", "s31"); a("v_mov_b32 v22, s47"); a("v_mov_b32 v23, 0")
    a.label(kp)
    a(f"global_load_dword v26, v22, s[26:27] offset:{D_KV} sc1")
    a(f"global_load_dword v24, v23, s[26:27] offset:{D_PROG} sc1"); a("s_waitcnt vmcnt(0)")
    a(f"v_cmp_ne_u32 vcc, {rec.KV_FULL}, v26"); a(f"s_cbranch_vccz {kok}")
    a("s_sleep 12")
    a("s_add_u32 s46, s46, 1"); a(f"s_cmp_lt_u32 s46, {WSPIN}"); a(f"s_cbranch_scc1 {kp}")
    a("s_branch w_fail")
    a.label(kok)
    def take_progress():
        a("v_readfirstlane_b32 s48, v24"); a("s_nop 0")
        a("s_max_u32 s48, s48, 1"); a("s_sub_u32 s48, s48, 1")
    take_progress()
    a("s_barrier")
    def kv_loads(sg):
        for kt in range(2):
            for jj in range(4):
                a(f"global_load_dwordx4 {R('a', sg*32 + (kt*4 + jj)*4)}, v{16 + sg*2 + kt}, s[32:33] offset:{jj*1024} sc1")
            a(f"s_add_u32 m0, s43, {sg*10240 + kt*4096}"); a("s_nop 0")
            for jj in range(4):
                a(f"global_load_lds_dwordx4 v{16 + sg*2 + kt}, s[34:35] offset:{jj*1024} sc1")
    kv_loads(0)
    pack_frags(a)
    a("s_lshr_b32 s50, s38, 1"); a("s_lshl_b32 s50, s50, 14"); a("s_and_b32 s51, s38, 1"); a("s_lshl_b32 s51, s51, 12"); a("s_add_u32 s50, s50, s51"); a(f"s_add_u32 s50, s50, {rec.WS_KMVM}")
    rec.near(a, 52, "s50", "s22", 28, "s51")
    a("v_and_b32 v28, 7, v0"); a("v_lshlrev_b32 v28, 4, v28"); a("v_lshrrev_b32 v24, 4, v0"); a("v_lshl_add_u32 v28, v24, 7, v28")
    XB = (108, 32)
    def m_loads(sg):
        for jj in range(4): a(f"global_load_dwordx4 {R('v', XB[sg] + 4*jj)}, v28, s[52:53] offset:{jj*512} sc1")
        for i in range(2): a(f"global_load_dwordx4 {R('v', XB[sg] + 16 + 4*i)}, v16, s[52:53] offset:{2048 + i*1024} sc1")
        a("s_add_u32 s52, s52, 0x40000"); a("s_addc_u32 s53, s53, 0")
    def m_wait(seg):
        lp, ok, nf = a.newlabel("ap"), a.newlabel("ao"), a.newlabel("nf")
        a.label(lp)
        a(f"s_cmp_lt_u32 {seg}, s48"); a(f"s_cbranch_scc1 {ok}")
        a("s_cmp_lt_u32 s48, 61"); a(f"s_cbranch_scc1 {nf}")
        a("global_load_dwordx4 v[24:27], v31, s[28:29] sc1"); a("s_waitcnt vmcnt(0)")
        a("v_or3_b32 v24, v24, v25, v26"); a("v_or_b32 v24, v24, v27"); a("v_cmp_ne_u32 vcc, 0, v24"); a(f"s_cbranch_vccnz {nf}")
        a("s_mov_b32 s48, 64"); a(f"s_branch {ok}")
        a.label(nf)
        a("s_sleep 8")
        a(f"global_load_dword v24, v23, s[26:27] offset:{D_PROG} sc1"); a("s_waitcnt vmcnt(0)")
        take_progress()
        a("s_add_u32 s46, s46, 1"); a(f"s_cmp_lt_u32 s46, {WSPIN}"); a(f"s_cbranch_scc1 {lp}")
        a("s_branch w_fail")
        a.label(ok)
    def seg_signal(seg):
        a(f"s_lshl_b32 s47, {seg}, 7"); a("s_lshl_b32 s49, s42, 2"); a("s_add_u32 s47, s47, s49"); a(f"s_add_u32 s47, s47, {rec.WS_FLAG}"); a("v_mov_b32 v29, s47")
        a("s_waitcnt vmcnt(0)")
        a("s_mov_b64 exec, 1")
        a("global_store_dword v29, v23, s[28:29] sc1")
        a("s_mov_b64 exec, -1")
    a("s_lshl_b32 s47, s42, 7"); a(f"s_add_u32 s47, s47, {rec.WS_FLAG + 8192}"); a("v_mov_b32 v31, s47")
    early, late = a.newlabel("e0"), a.newlabel("l0")
    a("s_cmp_lt_u32 s39, s48"); a(f"s_cbranch_scc1 {early}")
    kv_loads(1); m_wait("s39"); m_loads(0)
    a("s_waitcnt vmcnt(0)")
    a(f"s_branch {late}")
    a.label(early)
    m_loads(0); kv_loads(1)
    a.label(late)
    a("v_lshrrev_b32 v24, 4, v0"); a("v_lshlrev_b32 v24, 2, v24"); a("v_and_b32 v25, 15, v0"); a("v_mov_b32 v26, 0xff800000")
    for i in range(4):
        a(f"v_add_u32 v27, {i}, v24"); a("v_cmp_gt_u32 vcc, v27, v25"); a("s_nop 1"); a(f"v_cndmask_b32 v{96+i}, 0, v26, vcc")
    a("v_cmp_gt_u32 vcc, 32, v0"); a("s_nop 1")
    for i in range(4): a(f"v_cndmask_b32 v{100+i}, 0, v26, vcc")
    for i in range(4): a(f"v_mov_b32 v{104+i}, 0x3f803f80")
    a("v_and_b32 v24, 3, v0"); a("v_lshrrev_b32 v25, 2, v0")
    a("v_lshlrev_b32 v18, 4, v25"); a("v_lshl_add_u32 v18, v24, 8, v18"); a("v_add_u32 v18, s43, v18")
    a("v_and_b32 v25, 7, v25"); a("v_lshlrev_b32 v19, 4, v25"); a("v_lshl_add_u32 v19, v24, 7, v19"); a("v_add_u32 v19, s43, v19")
    a("v_add_u32 v20, s43, v16")
    a("v_mov_b32 v21, v16"); a("v_add_u32 v22, 0x20000, v21")
    a("s_lshl_b32 s36, s39, 18"); a("s_lshl_b32 s37, s42, 12"); a("s_add_u32 s36, s36, s37"); a(f"s_add_u32 s36, s36, {WS_O}")
    a("s_add_u32 s36, s28, s36"); a("s_addc_u32 s37, s29, 0")
    a(f"s_mov_b32 s40, {SCL}")
    a("s_add_u32 s54, s39, 1")
    for sg in range(2):
        lo = sg*10240
        xb = XB[sg]
        if sg == 0:
            a("s_waitcnt vmcnt(16)")
        else:
            have = a.newlabel("h1")
            a("s_cmp_eq_u32 s55, 1"); a(f"s_cbranch_scc1 {have}")
            seg_signal("s39"); m_wait("s54"); m_loads(1)
            a("s_waitcnt vmcnt(0)")
            a.label(have)
            a("s_waitcnt vmcnt(8)")
        for i in range(2): a(f"ds_write_b128 v20, {R('v', xb + 16 + 4*i)} offset:{lo + 8192 + i*1024}")
        tiles = [(132, 0, 0, "v[96:99]"), (136, 2, 0, "v[100:103]"), (140, 0, 1, "0"), (144, 1, 1, "v[96:99]"), (148, 2, 1, "v[100:103]")]
        for jj in range(4):
            for d, kt, qt, C in tiles:
                A = R('v', xb + 4*jj) if kt == 2 else R('a', sg*32 + (kt*4 + jj)*4)
                a(f"v_mfma_f32_16x16x32_bf16 {R('v', d)}, {A}, {frag(2*sg + qt, jj)}, " + (C if jj == 0 else R('v', d)))
        if sg == 0:
            no = a.newlabel("n1")
            a("s_mov_b32 s55, 0")
            a("s_cmp_lt_u32 s54, s48"); a(f"s_cbranch_scc0 {no}")
            m_loads(1); a("s_mov_b32 s55, 1")
            a.label(no)
        def vread(jj):
            b = 64 + (jj & 1)*12
            for hf in range(2):
                for kt in range(2):
                    a(f"ds_read_b64_tr_b16 {R('a', b + hf*4 + kt*2, 2)}, v18 offset:{lo + kt*4096 + jj*1024 + hf*8}")
                a(f"ds_read_b64_tr_b16 {R('a', b + 8 + hf*2, 2)}, v19 offset:{lo + 8192 + jj*512 + hf*8}")
        vread(0)
        a("s_nop 3")
        softmax_cols(a, list(range(132, 140)), 24)
        softmax_cols(a, list(range(140, 152)), 24)
        a("s_nop 0")
        a("v_cvt_pk_bf16_f32 v108, v132, v133"); a("v_cvt_pk_bf16_f32 v109, v134, v135"); a("v_mov_b32 v110, 0"); a("v_mov_b32 v111, 0")
        a("v_cvt_pk_bf16_f32 v112, v136, v137"); a("v_cvt_pk_bf16_f32 v113, v138, v139")
        for i in range(4): a(f"v_cvt_pk_bf16_f32 v{116+i}, v{140+2*i}, v{141+2*i}")
        a("v_cvt_pk_bf16_f32 v114, v148, v149"); a("v_cvt_pk_bf16_f32 v115, v150, v151")
        P0 = ["v[108:111]", "v[116:119]"]; P1 = ["v[112:113]", "v[114:115]"]
        a("s_nop 1")
        for qt in range(2): a(f"v_mfma_f32_16x16x32_bf16 {R('v', 120 + 4*qt)}, v[104:107], {P0[qt]}, 0")
        a("s_nop 5")
        for qt in range(2): a(f"v_mfma_f32_16x16x16_bf16 {R('v', 120 + 4*qt)}, v[104:105], {P1[qt]}, {R('v', 120 + 4*qt)}")
        if sg == 1:
            done = a.newlabel("d0")
            a("s_cmp_eq_u32 s55, 1"); a(f"s_cbranch_scc0 {done}")
            seg_signal("s39")
            a.label(done)
        a("s_nop 7")
        a("v_rcp_f32 v24, v120"); a("v_rcp_f32 v26, v124"); a("s_nop 0"); a("v_mov_b32 v25, v24"); a("v_mov_b32 v27, v26")
        for jj in range(4):
            b = 64 + (jj & 1)*12
            if jj < 3:
                vread(jj + 1); a("s_waitcnt lgkmcnt(6)")
            else:
                a("s_waitcnt lgkmcnt(0)")
            for qt in range(2):
                for hf in range(2):
                    a(f"v_mfma_f32_16x16x32_bf16 {R('v', 132 + (qt*2 + hf)*4)}, {R('a', b + hf*4)}, {P0[qt]}, 0")
            a("s_nop 2")
            for qt in range(2):
                for hf in range(2):
                    D = R('v', 132 + (qt*2 + hf)*4)
                    a(f"v_mfma_f32_16x16x16_bf16 {D}, {R('a', b + 8 + hf*2, 2)}, {P1[qt]}, {D}")
            a("s_nop 7")
            for qt in range(2):
                o = 132 + qt*8
                for i in range(0, 8, 2): a(f"v_pk_mul_f32 v[{o+i}:{o+i+1}], v[{o+i}:{o+i+1}], v[{24+2*qt}:{25+2*qt}]")
                for i in range(4): a(f"v_cvt_pk_bf16_f32 v{152 + 4*qt + i}, v{o+2*i}, v{o+2*i+1}")
                a(f"global_store_dwordx4 v{21+qt}, {R('v', 152 + 4*qt)}, s[36:37] offset:{jj*1024} sc1")
        if sg == 0:
            a("s_add_u32 s36, s36, 0x40000"); a("s_addc_u32 s37, s37, 0")
    seg_signal("s54")

def sreg(i): return R('a', 4*i) if i < 24 else R('v', 128 + 4*(i - 24))
def task_stream(a):
    NS = 16
    a("s_lshl_b32 s43, s75, 14")
    a(f"s_mul_i32 s32, s45, {rec.WOT_CG}"); a(f"s_mul_i32 s33, s75, {rec.WOT_W}"); a("s_add_u32 s32, s32, s33"); a(f"s_add_u32 s32, s32, {rec.WS_WOT}")
    a("v_lshlrev_b32 v10, 4, v0"); a("v_add_u32 v2, s32, v10")
    for i in range(32):
        a(f"global_load_dwordx4 {sreg(i)}, v2, s[28:29] offset:{(i & 3)*1024} sc1")
        if i & 3 == 3: a("v_add_u32 v2, 0x1000, v2")
    a("v_add_u32 v2, s43, v10")
    for i in range(1, 4): a(f"v_add_u32 v{2+i}, {i*4096}, v2")
    for i in range(4): a(f"v_add_u32 v{6+i}, {131072 + i*4096}, v2")
    a("s_lshl_b32 s32, s75, 12"); a("v_add_u32 v11, s32, v10")
    a("v_lshrrev_b32 v13, 4, v0"); a("s_lshl_b32 s32, s75, 2"); a("v_add_u32 v13, s32, v13")
    a("v_and_b32 v12, 15, v13"); a("v_bfe_u32 v14, v0, 2, 2"); a("v_lshl_add_u32 v12, v14, 4, v12"); a("v_lshlrev_b32 v12, 4, v12")
    a("v_and_b32 v14, 1, v0"); a("v_lshl_add_u32 v12, v14, 3, v12"); a("v_bfe_u32 v14, v0, 1, 1"); a("v_lshl_add_u32 v12, v14, 10, v12")
    a("s_lshr_b32 s32, s75, 2"); a("s_lshl_b32 s32, s32, 11"); a("v_add_u32 v12, s32, v12")
    a("v_lshlrev_b32 v13, 12, v13"); a("v_and_b32 v14, 15, v0"); a("v_lshl_add_u32 v13, v14, 2, v13")
    a("s_lshl_b32 s33, s45, 6"); a("s_add_u32 s33, s33, 2048"); a("v_add_u32 v13, s33, v13")
    a("s_lshl_b32 s32, s45, 13"); a("s_lshl_b32 s33, s75, 10"); a("s_add_u32 s32, s32, s33"); a(f"s_add_u32 s32, s32, {WS_O}"); a("v_add_u32 v10, s32, v10")
    a("s_barrier")
    wstamp(a, 0)
    def touch():
        a("s_and_b32 s32, s31, 63"); a("s_lshl_b32 s32, s32, 18"); a("s_add_u32 s48, s28, s32"); a("s_addc_u32 s49, s29, 0")
        a("global_load_dwordx4 v[124:127], v10, s[48:49] sc1")
    def pick():
        a("s_ff1_i32_b64 s31, s[34:35]"); a("s_bitset0_b64 s[34:35], s31")
        a("s_and_b32 s32, s31, 63"); a("s_lshl_b32 s32, s32, 7"); a("v_add_u32 v14, s32, v96")
    def oload(k):
        tt, ks = k >> 4, k & 15
        a(f"global_load_dwordx4 {R('v', 32 + (k % NS)*4)}, v{2 + tt*4 + (ks >> 2)}, s[38:39] offset:{(ks & 3)*1024} sc1")
    def first_loads():
        a("s_lshl_b32 s32, s31, 18"); a(f"s_add_u32 s32, s32, {WS_O}"); a("s_add_u32 s38, s28, s32"); a("s_addc_u32 s39, s29, 0")
        for k in range(NS): oload(k)
    def finish():
        a("s_waitcnt lgkmcnt(0)"); a("s_barrier")
        for m in range(8): a(f"ds_read_b64 v[{16+2*m}:{17+2*m}], v12 offset:{m*4096}")
        a("s_lshl_b32 s32, s30, 17"); a("s_add_u32 s40, s24, s32"); a("s_addc_u32 s41, s25, 0")
        a("v_xor_b32 v11, 0x8000, v11"); a("v_xor_b32 v12, 0x8000, v12")
        a("s_waitcnt lgkmcnt(0)")
        for step in (8, 4, 2):
            for i in range(0, step, 2):
                a(f"v_pk_add_f32 v[{16+i}:{17+i}], v[{16+i}:{17+i}], v[{16+step+i}:{17+step+i}]")
        a("v_cvt_pk_bf16_f32 v1, v16, v17")
        a("global_store_dword v13, v1, s[40:41]")
    a("v_and_b32 v96, 31, v0"); a("v_lshlrev_b32 v96, 2, v96"); a(f"v_add_u32 v96, {rec.WS_FLAG}, v96")
    pick()
    a.label("st_wait")
    a("global_load_dword v15, v14, s[28:29] sc1"); a("s_waitcnt vmcnt(0)")
    a("v_cmp_ne_u32 vcc, 0, v15"); a("s_cbranch_vccz st_rdy")
    a("s_sleep 12")
    a("s_add_u32 s46, s46, 1"); a(f"s_cmp_lt_u32 s46, {WSPIN}"); a("s_cbranch_scc1 st_wait")
    a("s_branch w_fail")
    a.label("st_rdy")
    touch()
    first_loads()
    a.label("st_item")
    if PROF:
        a("s_and_b32 s32, s31, 7"); a("s_cmp_lg_u32 s32, 1"); a("s_cbranch_scc1 st_nos")
        a("s_cmp_gt_u32 s59, 13"); a("s_cbranch_scc1 st_nos")
        wstamp(a, 0)
        a.label("st_nos")
    a("s_mov_b32 s30, s31")
    pick()
    a("global_load_dword v15, v14, s[28:29] sc1")
    touch()
    def mm(k, wait):
        tt, ks = k >> 4, k & 15
        a(f"s_waitcnt vmcnt({wait})")
        for ct in range(2):
            D = R('v', 16 + (tt*2 + ct)*4)
            a(f"v_mfma_f32_16x16x32_bf16 {D}, {sreg(ks*2 + ct)}, {R('v', 32 + (k % NS)*4)}, " + ("0" if ks == 0 else D))
    def park():
        a("s_nop 7")
        for f in range(4): a(f"ds_write_b128 v11, {R('v', 16 + f*4)} offset:{f*1024}")
    for k in range(16):
        mm(k, 17); oload(k + 16)
    a("s_waitcnt vmcnt(17)")
    a("v_cmp_ne_u32 vcc, 0, v15")
    a("s_cmp_lt_i32 s31, 0"); a("s_cbranch_scc1 st_slow")
    a("s_cbranch_vccnz st_slow")
    a("s_lshl_b32 s32, s31, 18"); a(f"s_add_u32 s32, s32, {WS_O}"); a("s_add_u32 s38, s28, s32"); a("s_addc_u32 s39, s29, 0")
    for k in range(16, 32):
        mm(k, 15); oload(k - 16)
    park(); finish()
    a("s_branch st_item")
    a.label("st_slow")
    for k in range(16, 32): mm(k, 31 - k)
    park(); finish()
    a("s_cmp_lt_i32 s31, 0"); a("s_cbranch_scc0 st_wait")

def emit_mega(a, prof=False):
    kernel_begin(a, NAME + "_kernel")
    a("s_cmp_ge_u32 s2, 256"); a("s_cbranch_scc1 w_exit")
    load_ptrs(a)
    a("s_getreg_b32 s44, hwreg(HW_REG_XCC_ID)"); a("s_and_b32 s44, s44, 7")
    a("v_lshrrev_b32 v1, 6, v0"); a("v_mov_b32 v2, 0"); a("s_mov_b32 s46, 0")
    a("v_readfirstlane_b32 s75, v1")
    a("s_waitcnt lgkmcnt(0)")
    a("s_add_u32 s28, s28, 0x1fffff"); a("s_addc_u32 s29, s29, 0"); a("s_and_b32 s28, s28, 0xffe00000")
    a("s_cmp_eq_u32 s75, 1"); a("s_cbranch_scc0 no_probe")
    a("s_mov_b32 s47, 0")
    a("s_cmp_lt_u32 s44, 4"); a("s_cbranch_scc0 probe_done")
    a(f"s_add_u32 s30, s28, {rec.WS_PROBE}"); a("s_addc_u32 s31, s29, 0")
    a("s_lshr_b32 s32, s2, 5"); a("s_and_b32 s33, s32, 1"); a("s_lshr_b32 s32, s32, 1"); a("s_lshl_b32 s32, s32, 2"); a("s_add_u32 s32, s32, s33"); a("s_lshl_b32 s32, s32, 12")
    a("s_and_b32 s33, s2, 31"); a("s_lshl_b32 s33, s33, 7"); a("s_add_u32 s32, s32, s33")
    a("v_mov_b32 v3, s32")
    a("s_mov_b64 exec, 1")
    a("s_mov_b32 s38, -1"); a("s_mov_b32 s39, -1"); a("s_mov_b32 s40, 6")
    a.label("probe_loop")
    a("s_memtime s[34:35]"); a("s_waitcnt lgkmcnt(0)")
    a("global_store_dword v3, v2, s[30:31] sc1"); a("s_waitcnt vmcnt(0)")
    a("s_memtime s[36:37]"); a("s_waitcnt lgkmcnt(0)")
    a("s_sub_u32 s36, s36, s34"); a("s_min_u32 s36, s36, s38"); a("s_mov_b32 s38, s39"); a("s_mov_b32 s39, s36")
    a("v_xor_b32 v3, 0x2000, v3")
    a("s_sub_u32 s40, s40, 1"); a("s_cmp_lg_u32 s40, 0"); a("s_cbranch_scc1 probe_loop")
    a("s_mov_b64 exec, -1")
    a("s_cmp_lt_u32 s39, s38"); a("s_cselect_b32 s47, 1, 0")
    a.label("probe_done")
    a("v_mov_b32 v3, s47"); a("ds_write_b32 v2, v3 offset:4")
    a.label("no_probe")
    a("s_cmp_lg_u32 s75, 0"); a("s_cbranch_scc1 role_wait")
    a("s_lshl_b32 s32, s44, 2"); a("v_mov_b32 v3, s32"); a("v_mov_b32 v4, 1")
    a("s_mov_b64 exec, 1")
    a("global_atomic_add v5, v3, v4, s[26:27] sc0 sc1"); a("s_waitcnt vmcnt(0)")
    a("v_readfirstlane_b32 s45, v5")
    a("s_cmp_lt_u32 s45, 32"); a("s_cbranch_scc1 role_have")
    a(f"v_mov_b32 v3, {D_OVF}")
    a("global_atomic_add v5, v3, v4, s[26:27] sc0 sc1"); a("s_waitcnt vmcnt(0)")
    a("v_readfirstlane_b32 s45, v5")
    a.label("role_poll")
    a("global_load_dwordx4 v[8:11], v2, s[26:27] sc1"); a("global_load_dwordx4 v[12:15], v2, s[26:27] offset:16 sc1"); a("s_waitcnt vmcnt(0)")
    a("s_mov_b32 s33, 0")
    for i in range(8):
        a(f"v_readfirstlane_b32 s{34+i}, v{8+i}"); a(f"s_add_u32 s33, s33, s{34+i}")
    a("s_cmp_eq_u32 s33, 256"); a("s_cbranch_scc1 role_pick")
    a("s_sleep 8"); a("s_add_u32 s46, s46, 1"); a(f"s_cmp_lt_u32 s46, {WSPIN}"); a("s_cbranch_scc1 role_poll")
    a("s_mov_b64 exec, -1"); a("s_branch w_fail")
    a.label("role_pick")
    for i in range(8):
        a(f"s_min_u32 s33, s{34+i}, 32"); a("s_add_u32 s45, s45, s33"); a(f"s_mov_b32 s44, {i}")
        if i < 7:
            a("s_cmp_lt_u32 s45, 32"); a("s_cbranch_scc1 role_have"); a("s_sub_u32 s45, s45, 32")
    a.label("role_have")
    a("s_lshl_b32 s32, s44, 5"); a("s_or_b32 s32, s32, s45"); a("v_mov_b32 v3, s32")
    a("ds_write_b32 v2, v3")
    a("s_mov_b64 exec, -1")
    a.label("role_wait")
    a("s_waitcnt lgkmcnt(0)"); a("s_barrier")
    a("ds_read_b64 v[4:5], v2"); a("s_waitcnt lgkmcnt(0)")
    a("v_readfirstlane_b32 s32, v4"); a("v_readfirstlane_b32 s47, v5")
    a("s_cmp_lg_u32 s75, 0"); a("s_cbranch_scc1 voted")
    a("s_and_b32 s47, s47, 1"); a("s_lshl_b32 s47, s47, 16"); a("s_or_b32 s47, s47, 1"); a("v_mov_b32 v3, s47")
    a("s_mov_b64 exec, 1")
    a(f"global_atomic_add v2, v3, s[26:27] offset:{rec.DBG_VOTE} sc1")
    a("s_mov_b64 exec, -1")
    a.label("voted")
    a("s_barrier")
    a("s_and_b32 s45, s32, 31"); a("s_bfe_u32 s44, s32, 0x30005")
    a("s_cmp_ge_u32 s44, 4"); a("s_cbranch_scc1 worker")
    a("s_lshl_b32 s18, s44, 3"); a("s_lshr_b32 s19, s45, 2"); a("s_add_u32 s18, s18, s19"); a("s_and_b32 s19, s45, 3")
    rec.emit_rec(a, "rec", prof=prof, kvwait=True)
    a.label("worker")
    a("s_sub_u32 s44, s44, 4")
    a("v_and_b32 v0, 63, v0")
    gemm.setup_common(a)
    a("s_mov_b32 s88, 0"); a("s_mov_b32 s89, 0")
    a("s_mov_b32 s59, 0") if PROF else None
    wstamp(a, 0)
    a("s_lshl_b32 s30, s44, 3"); a("s_and_b32 s32, s45, 7"); a("s_add_u32 s30, s30, s32")
    a("s_lshl_b32 s96, s44, 5"); a("s_add_u32 s96, s96, s45"); a("s_lshl_b32 s96, s96, 3"); a("s_add_u32 s96, s96, s75")
    for grp, (MT, first) in enumerate(((2, 0), (3, 32), (3, 80))):
        a("s_lshr_b32 s31, s45, 3"); a(f"s_mul_i32 s31, s31, {4*MT}"); a(f"s_add_u32 s31, s31, {first}")
        if grp == 1:
            a("s_mov_b32 s90, 8"); a("s_mov_b64 s[92:93], s[14:15]"); a("s_mov_b32 s91, 2"); a("s_mov_b64 s[94:95], s[8:9]")
        if grp == 2:
            a("s_mov_b32 s90, 4"); a("s_mov_b64 s[92:93], s[4:5]"); a("s_mov_b32 s91, 6"); a("s_mov_b64 s[94:95], s[6:7]")
        task_g1(a, MT, grp)
        wstamp(a, 0)
    a("s_cmp_eq_u32 s44, 0"); a("s_cbranch_scc1 w_g2a")
    a("s_cmp_eq_u32 s44, 3"); a("s_cbranch_scc1 w_q")
    a("s_sub_u32 s30, s44, 1"); a("s_lshl_b32 s30, s30, 2"); a("s_and_b32 s32, s45, 3"); a("s_add_u32 s30, s30, s32"); a("s_lshr_b32 s31, s45, 2")
    task_g4kv(a)
    wstamp(a, 0)
    a("s_cmp_eq_u32 s44, 1"); a("s_cbranch_scc1 w_g2a")
    a("s_and_b32 s30, s45, 3"); a("s_lshr_b32 s31, s45, 2")
    task_g5(a)
    wstamp(a, 0)
    a("s_branch w_g2a")
    a.label("w_q")
    a("s_and_b32 s30, s45, 3"); a("s_lshr_b32 s31, s45, 2")
    task_g4q(a)
    wstamp(a, 0)
    a.label("w_g2a")
    a("s_and_b32 s30, s45, 15"); a("s_lshr_b32 s31, s45, 4"); a("s_lshr_b32 s32, s44, 1"); a("s_xor_b32 s32, s32, s44"); a("s_lshl_b32 s32, s32, 1"); a("s_add_u32 s31, s31, s32")
    task_g2a(a)
    wstamp(a, 0)
    a("s_cmp_eq_u32 s44, 2"); a("s_cbranch_scc1 w_exit")
    a("s_and_b32 s31, s31, 6"); a("s_lshl_b32 s31, s31, 2"); a("s_lshr_b32 s32, s45, 2"); a("s_add_u32 s31, s31, s32"); a("s_and_b32 s30, s45, 3")
    task_g3(a)
    wstamp(a, 0)
    a("s_cmp_eq_u32 s44, 3"); a("s_cbranch_scc1 w_exit")
    a("s_mov_b32 s34, 0"); a("s_cmp_eq_u32 s44, 0"); a("s_mov_b32 s35, 0xaaaa0000"); a("s_cselect_b32 s35, 0x55550000, s35")
    task_stream(a)
    wstamp(a, 0)
    a("s_endpgm")
    a.label("w_fail")
    a("v_mov_b32 v16, 0"); a("v_mov_b32 v17, 0xdead"); a("global_store_dword v16, v17, s[26:27] offset:248")
    a.label("w_exit")
    a("s_endpgm")
    gemm.emit_core(a, "core_T", 'T')
    gemm.emit_core(a, "core_N", 'N')
    gemm.emit_core(a, "core_T3", 'T', MT=3)
    gemm.emit_core(a, "core_T2", 'T', MT=2)
    gemm.WFLAG = "sc1"; gemm.WFRAG = True
    gemm.emit_core(a, "core_F1", 'T', MT=1, aflag="sc1")
    gemm.WFLAG = ""; gemm.WFRAG = False

def generate(prof=False):
    global PROF
    PROF = bool(prof)
    raw = open(f"cdna_kernels/{NAME}.s.ref").read().split("\n")
    hdr = []
    for l in raw:
        if not l.startswith(";") or "Override" in l: break
        hdr.append(l)
    a = Asm()
    emit_mega(a, prof)
    s = "\n".join(hdr) + "\n"
    s += f"; @launch kernel={NAME}_kernel grid=(256,1,1) block=(512,1,1) lds=163840\n"
    s += '.amdgcn_target "amdgcn-amd-amdhsa--gfx950"\n.text\n' + a.text() + '.section .rodata,"a"\n'
    s += kernel_desc(NAME + "_kernel", vgpr=256, accum=160)
    return s

if __name__ == "__main__":
    out = sys.argv[1] if len(sys.argv) > 1 else f"cdna_kernels/{NAME}.s"
    open(out, "w").write(generate())
    print("wrote", out)
```

```python
import sys, os
sys.path.insert(0, os.path.dirname(__file__))
from asmgen import *
import gemm
import rec2 as rec
from gemm import acc, R

NAME = "concat_heads__linear_attn_block__memory_aug_recurrent_mem_tr__prompt"
WS_O   = 84 << 20
WS_OA  = 100 << 20
WS_KVP = 105 << 20
OA_T = 36864
D_OVF, D_AKV, D_KV, D_AO, D_O = 32, 36, 64, 96, 128
D_PROG = rec.DBG_PROG
WSPIN = 400000
LOG2E = 0x3fb8aa3b
EPS = 0x358637bd
SCL = 0x3e0293ee


def load_ptrs(a):
    a("s_load_dwordx16 s[4:19], s[0:1], 0"); a("s_load_dwordx2 s[20:21], s[0:1], 64")
    a("s_load_dwordx4 s[24:27], s[0:1], 80"); a("s_load_dwordx2 s[28:29], s[0:1], 96")

def signal(a, off_sgpr_or_imm, val=1):
    lab = a.newlabel("sig")
    a("s_waitcnt vmcnt(0)"); a("s_barrier")
    a("s_cmp_lg_u32 s75, 0"); a(f"s_cbranch_scc1 {lab}")
    a(f"v_mov_b32 v16, {off_sgpr_or_imm}"); a(f"v_mov_b32 v17, {val}")
    a("s_mov_b64 exec, 1")
    a("global_atomic_add v16, v17, s[26:27] sc1")
    a("s_mov_b64 exec, -1")
    a.label(lab)

def wait_cnt(a, off, target):
    lp, ok, done = a.newlabel("wl"), a.newlabel("wo"), a.newlabel("wd")
    a("s_cmp_lg_u32 s75, 0"); a(f"s_cbranch_scc1 {done}")
    a(f"v_mov_b32 v16, {off}")
    a.label(lp)
    a("global_load_dword v17, v16, s[26:27] sc1"); a("s_waitcnt vmcnt(0)")
    a(f"v_cmp_ne_u32 vcc, {target}, v17"); a(f"s_cbranch_vccz {ok}")
    a("s_sleep 8")
    a("s_add_u32 s46, s46, 1"); a(f"s_cmp_lt_u32 s46, {WSPIN}"); a(f"s_cbranch_scc1 {lp}")
    a("s_branch w_fail")
    a.label(ok)
    a("buffer_inv sc1"); a("s_waitcnt vmcnt(0)")
    a.label(done)
    a("s_barrier")

def learn_parity(a):
    lp, ok = a.newlabel("vl"), a.newlabel("vo")
    a("v_mov_b32 v16, 0")
    a.label(lp)
    a(f"global_load_dword v17, v16, s[26:27] offset:{rec.DBG_VOTE} sc1"); a("s_waitcnt vmcnt(0)")
    a("v_readfirstlane_b32 s22, v17"); a("s_and_b32 s32, s22, 0xffff"); a("s_cmp_eq_u32 s32, 256"); a(f"s_cbranch_scc1 {ok}")
    a("s_sleep 8")
    a("s_add_u32 s46, s46, 1"); a(f"s_cmp_lt_u32 s46, {WSPIN}"); a(f"s_cbranch_scc1 {lp}")
    a("s_branch w_fail")
    a.label(ok)
    a("s_lshr_b32 s22, s22, 16"); a("s_cmp_gt_u32 s22, 64"); a("s_cselect_b32 s22, 1, 0")

def phi(a, regs):
    for i in range(0, len(regs), 8):
        b = regs[i:i+8]
        for k, r in enumerate(b): a(f"v_mul_f32 v{16+k}, s40, v{r}")
        for k, r in enumerate(b): a(f"v_min_f32 v{16+k}, 0, v{16+k}")
        for k, r in enumerate(b): a(f"v_exp_f32 v{16+k}, v{16+k}")
        for k, r in enumerate(b): a(f"v_max_f32 v{r}, 0, v{r}")
        for k, r in enumerate(b): a(f"v_add_f32 v{r}, v{r}, v{16+k}")
        for k, r in enumerate(b): a(f"v_add_f32 v{r}, s41, v{r}")

def pack_frags(a):
    for tt in range(4):
        for jj in range(4):
            s = acc(tt, 2*jj); d = 32 + (tt*4 + jj)*4
            for i in range(4): a(f"v_cvt_pk_bf16_f32 v{d+i}, v{s+2*i}, v{s+2*i+1}")
def frag(tt, jj): return R('v', 32 + (tt*4 + jj)*4)

PROF = False
def wstamp(a, k):
    if not PROF: return
    lab = a.newlabel("ws")
    a("s_cmp_lg_u32 s75, 0"); a(f"s_cbranch_scc1 {lab}")
    a("s_memrealtime s[56:57]"); a("s_waitcnt lgkmcnt(0)")
    a("s_lshl_b32 s58, s44, 5"); a("s_add_u32 s58, s58, s45"); a("s_lshl_b32 s58, s58, 6"); a("s_lshl_b32 s57, s59, 2"); a("s_add_u32 s58, s58, s57"); a(f"s_add_u32 s58, s58, {201 << 20}")
    a("v_mov_b32 v16, s58"); a("v_mov_b32 v17, s56"); a("global_store_dword v16, v17, s[28:29]")
    a("s_memtime s[56:57]"); a("s_waitcnt lgkmcnt(0)"); a("v_mov_b32 v17, s56"); a("v_add_u32 v16, 0x100000, v16"); a("global_store_dword v16, v17, s[28:29]")
    a("s_add_u32 s59, s59, 1")
    a.label(lab)

ROT = False
def rot(a, rsh, csh):
    if not ROT:
        a("s_mov_b32 s77, 0"); return
    a(f"s_lshl_b32 s77, s31, {rsh}"); a(f"s_lshl_b32 s74, s30, {csh}"); a("s_add_u32 s77, s77, s74"); a("s_and_b32 s77, s77, 15")

def task_g1(a, MT, grp):
    gemm.setup_a_rowmajor(a, 2048, MT); gemm.setup_w(a, 8192)
    a("s_lshl_b32 s32, s31, 15"); a("s_add_u32 s80, s10, s32"); a("s_addc_u32 s81, s11, 0")
    a("s_cmp_lt_u32 s30, 16"); a("s_cselect_b32 s82, s16, s18"); a("s_cselect_b32 s83, s17, s19")
    a(f"s_cselect_b32 s33, {rec.WS_KX >> 20}, {rec.WS_VX >> 20}"); a("s_lshl_b32 s33, s33, 20")
    a("s_and_b32 s35, s30, 15"); a("s_lshl_b32 s32, s35, 9"); a("s_add_u32 s82, s82, s32"); a("s_addc_u32 s83, s83, 0")
    a("s_mov_b32 s66, 7"); a("s_mov_b32 s77, 0")
    gemm.call(a, "core_T" + ("" if MT == 4 else str(MT)))
    wstamp(a, 0)
    if grp == 0: learn_parity(a)
    a("s_lshl_b32 s34, s35, 1"); a("s_add_u32 s34, s34, s73"); a("s_lshl_b32 s34, s34, 14"); a("s_add_u32 s33, s33, s34")
    a(f"s_mul_i32 s36, s72, {MT}"); a("s_add_u32 s36, s36, s31")
    a("v_lshlrev_b32 v19, 4, v0")
    for tt in range(MT):
        a(f"s_add_u32 s32, s36, {tt}"); a("s_and_b32 s34, s32, 1"); a("s_lshl_b32 s34, s34, 12"); a("s_lshr_b32 s32, s32, 1"); a("s_lshl_b32 s32, s32, 19")
        a("s_add_u32 s32, s32, s34"); a("s_add_u32 s32, s32, s33")
        a("s_lshr_b32 s34, s32, 21"); a("s_xor_b32 s34, s34, s22"); a("s_and_b32 s34, s34, 1"); a("s_lshl_b32 s34, s34, 13"); a("s_add_u32 s32, s32, s34")
        a(f"v_add_u32 v{20+tt}, s32, v19")
    gemm.epi_frag_store(a, "s[28:29]", "sc1", MT)
    if grp == 0: signal(a, D_KV, 1)
    else:
        a(f"s_mov_b32 s88, {D_KV + 4*grp}"); a("s_mov_b32 s89, 1")

def task_g4kv(a):
    def colmap(a, v):
        a(f"v_bfe_u32 v18, v{v}, 3, 1"); a("v_lshlrev_b32 v18, 11, v18")
        a(f"v_lshrrev_b32 v19, 4, v{v}"); a("v_lshl_add_u32 v18, v19, 7, v18")
        a(f"v_and_b32 v{v}, 7, v{v}"); a(f"v_lshl_add_u32 v{v}, v{v}, 4, v18")
    gemm.setup_a_rowmajor(a, 2048); gemm.setup_w(a, 6144, colmap)
    a("s_lshl_b32 s32, s31, 19"); a("s_add_u32 s80, s4, s32"); a("s_addc_u32 s81, s5, 0")
    a("s_lshl_b32 s32, s30, 8"); a("s_add_u32 s32, s32, 2048"); a("s_add_u32 s82, s6, s32"); a("s_addc_u32 s83, s7, 0")
    a("s_mov_b32 s66, 7"); rot(a, 1, 2)
    gemm.call(a, "core_N")
    wstamp(a, 0)
    a(f"s_mov_b32 s40, {LOG2E}"); a(f"s_mov_b32 s41, {EPS}")
    phi(a, [acc(tt, 0) + i for tt in range(4) for i in range(16)])
    for tp in range(2):
        for ft in range(8):
            x = acc(2*tp, ft); y = acc(2*tp+1, ft)
            a(f"v_cvt_pk_bf16_f32 v{x}, v{x}, v{x+1}"); a(f"v_cvt_pk_bf16_f32 v{x+1}, v{x+2}, v{x+3}")
            a(f"v_cvt_pk_bf16_f32 v{x+2}, v{y}, v{y+1}"); a(f"v_cvt_pk_bf16_f32 v{x+3}, v{y+2}, v{y+3}")
    for i in range(4): a(f"v_mov_b32 v{16+i}, 0x3f803f80")
    a("v_lshlrev_b32 v20, 4, v0"); a("s_mul_i32 s32, s73, 49152"); a("s_lshl_b32 s33, s72, 10"); a("s_add_u32 s32, s32, s33"); a("v_add_u32 v21, s32, v20")
    outb = lambda hd, et, dt: (64 if hd == 0 else 128) + (et*2 + dt)*4
    for tp in range(2):
        for hd in range(2):
            for et in range(3):
                for dt in range(2):
                    D = R('v', outb(hd, et, dt)); A = R('v', acc(2*tp, 2*hd + dt)); B = R('v', acc(2*tp, 4 + 2*hd + et)) if et < 2 else "v[16:19]"
                    a(f"v_mfma_f32_16x16x32_bf16 {D}, {A}, {B}, " + ("0" if tp == 0 else D))
    a("s_barrier")
    a("s_nop 7")
    for hd in range(2):
        for f in range(6):
            a(f"ds_write_b128 v21, {R('v', outb(hd, f >> 1, f & 1))} offset:{(hd*6 + f)*4096}")
    a("s_mul_i32 s32, s75, 12288"); a("v_add_u32 v21, s32, v20")
    a("s_waitcnt lgkmcnt(0)"); a("s_barrier")
    for k in range(3):
        for m in range(4): a(f"ds_read_b128 {R('v', 32 + (k*4 + m)*4)}, v21 offset:{k*4096 + m*1024}")
    a("s_lshl_b32 s32, s31, 5"); a("s_lshl_b32 s33, s30, 2"); a("s_add_u32 s32, s32, s33"); a("s_mul_i32 s32, s32, 6144")
    a("s_mul_i32 s33, s75, 3072"); a("s_add_u32 s32, s32, s33"); a(f"s_add_u32 s32, s32, {WS_KVP}"); a("v_add_u32 v22, s32, v20")
    a("s_waitcnt lgkmcnt(0)")
    for k in range(3):
        b = 32 + k*16
        for h in range(2):
            a(f"v_pk_add_f32 v[{b+2*h}:{b+2*h+1}], v[{b+2*h}:{b+2*h+1}], v[{b+4+2*h}:{b+5+2*h}]")
            a(f"v_pk_add_f32 v[{b+8+2*h}:{b+9+2*h}], v[{b+8+2*h}:{b+9+2*h}], v[{b+12+2*h}:{b+13+2*h}]")
        for h in range(2):
            a(f"v_pk_add_f32 v[{b+2*h}:{b+2*h+1}], v[{b+2*h}:{b+2*h+1}], v[{b+8+2*h}:{b+9+2*h}]")
        a(f"global_store_dwordx4 v22, {R('v', b)}, s[28:29] offset:{k*1024} sc1")
    signal(a, D_AKV)

def task_g4q(a):
    gemm.setup_a_rowmajor(a, 2048); gemm.setup_w(a, 6144)
    a("s_lshl_b32 s32, s31, 19"); a("s_add_u32 s80, s4, s32"); a("s_addc_u32 s81, s5, 0")
    a("s_lshl_b32 s32, s30, 9"); a("s_add_u32 s82, s6, s32"); a("s_addc_u32 s83, s7, 0")
    a("s_mov_b32 s66, 7"); rot(a, 1, 2)
    gemm.call(a, "core_T")
    wstamp(a, 0)
    a(f"s_mov_b32 s40, {LOG2E}"); a(f"s_mov_b32 s41, {EPS}")
    phi(a, list(range(32, 160)))
    pack_frags(a)
    wstamp(a, 0)
    wait_cnt(a, D_AKV, 64)
    wstamp(a, 0)
    a("v_lshlrev_b32 v16, 4, v0")
    for r in range(1, 8): a(f"v_add_u32 v{16+r}, {r*196608}, v16")
    a("s_lshl_b32 s32, s30, 3"); a("s_add_u32 s32, s32, s75"); a("s_mul_i32 s32, s32, 6144"); a(f"s_add_u32 s32, s32, {WS_KVP}")
    a("s_add_u32 s34, s28, s32"); a("s_addc_u32 s35, s29, 0")
    a("s_mul_i32 s32, s75, 3072"); a("v_add_u32 v24, s32, v16")
    for et in range(3):
        for r in range(8):
            for dt in range(2):
                a(f"global_load_dwordx4 {R('v', 96 + (r*2 + dt)*4)}, v{16+r}, s[34:35] offset:{dt*1024} sc1")
        a("s_add_u32 s34, s34, 2048"); a("s_addc_u32 s35, s35, 0")
        a("s_waitcnt vmcnt(0)")
        for step in (32, 16, 8):
            for i in range(0, step, 2):
                a(f"v_pk_add_f32 v[{96+i}:{97+i}], v[{96+i}:{97+i}], v[{96+step+i}:{97+step+i}]")
        for i in range(4): a(f"v_cvt_pk_bf16_f32 v{28+i}, v{96+2*i}, v{97+2*i}")
        a(f"ds_write_b128 v24, v[28:31] offset:{et*1024}")
    a("s_mul_i32 s32, s73, 12288"); a("v_add_u32 v24, s32, v16")
    a("s_waitcnt lgkmcnt(0)"); a("s_barrier")
    for i in range(12): a(f"ds_read_b128 {R('a', i*4)}, v24 offset:{i*1024}")
    gemm.lane_chunk(a, 25, 26)
    a("v_and_b32 v26, 15, v0"); a("v_lshl_add_u32 v25, v25, 4, v26"); a("v_lshlrev_b32 v25, 4, v25")
    a("s_lshl_b32 s32, s31, 4"); a("s_lshl_b32 s33, s72, 2"); a("s_add_u32 s32, s32, s33"); a(f"s_mul_i32 s32, s32, {OA_T}")
    a("s_lshl_b32 s33, s30, 13"); a("s_add_u32 s32, s32, s33"); a("s_lshl_b32 s33, s73, 12"); a("s_add_u32 s32, s32, s33"); a(f"s_add_u32 s32, s32, {WS_OA}")
    a("v_add_u32 v20, s32, v25")
    for tt in range(1, 4): a(f"v_add_u32 v{20+tt}, {tt*OA_T}, v20")
    a("s_waitcnt lgkmcnt(0)")
    for hd in range(4):
        for tt in range(4):
            b = 96 + tt*12
            for et in (2, 0, 1):
                a(f"v_mfma_f32_16x16x32_bf16 {R('v', b + et*4)}, {R('a', (hd*3 + et)*4)}, {frag(tt, hd)}, 0")
        a("s_nop 7")
        for tt in range(4):
            b = 96 + tt*12
            a(f"v_add_f32 v{b+8}, s41, v{b+8}")
        for tt in range(4):
            b = 96 + tt*12
            a(f"v_rcp_f32 v{b+8}, v{b+8}")
        for tt in range(4):
            b = 96 + tt*12
            a(f"v_mov_b32 v{b+9}, v{b+8}")
            for i in range(0, 8, 2): a(f"v_pk_mul_f32 v[{b+i}:{b+i+1}], v[{b+i}:{b+i+1}], v[{b+8}:{b+9}]")
            t = 144 + tt*4
            gemm.pack_swap(a, t, b)
            a(f"global_store_dwordx4 v{20+tt}, {R('v', t)}, s[28:29] offset:{hd*1024} sc1")
    a("s_lshl_b32 s32, s31, 2"); a(f"s_add_u32 s32, s32, {D_AO}")
    signal(a, "s32")

def out_offsets(a, MT):
    gemm.lane_chunk(a, 25, 26)
    a("v_and_b32 v26, 15, v0"); a("v_lshlrev_b32 v26, 12, v26"); a("v_lshl_add_u32 v20, v25, 4, v26")
    a(f"s_mul_i32 s32, s72, {MT*16*4096}"); a("s_lshl_b32 s33, s73, 8"); a("s_add_u32 s32, s32, s33"); a("v_add_u32 v20, s32, v20")
    for tt in range(1, MT): a(f"v_add_u32 v{20+tt}, {tt*65536}, v20")

def task_g5(a):
    gemm.setup_a_frag(a, OA_T); gemm.setup_w(a, 2048)
    a("s_lshl_b32 s32, s31, 2"); a(f"s_add_u32 s32, s32, {D_AO}")
    wait_cnt(a, "s32", 4)
    wstamp(a, 0)
    a(f"s_mul_i32 s32, s31, {16*OA_T}"); a(f"s_add_u32 s32, s32, {WS_OA}"); a("s_add_u32 s80, s28, s32"); a("s_addc_u32 s81, s29, 0")
    a("s_lshl_b32 s32, s30, 9"); a("s_add_u32 s82, s8, s32"); a("s_addc_u32 s83, s9, 0")
    a("s_mov_b32 s66, 7"); rot(a, 1, 2)
    gemm.call(a, "core_T")
    wstamp(a, 0)
    out_offsets(a, 4)
    a("s_lshl_b32 s32, s31, 20"); a("s_lshl_b32 s33, s30, 9"); a("s_add_u32 s32, s32, s33"); a("s_add_u32 s34, s24, s32"); a("s_addc_u32 s35, s25, 0")
    gemm.epi_out_store(a, "s[34:35]", 4, "" if "outpl" in rec.OPT else "sc1")

def task_g3(a):
    gemm.setup_a_frag(a, 131072, 1); gemm.setup_w_frag(a, rec.WOT_CG)
    lp, ok, done = a.newlabel("fl"), a.newlabel("fo"), a.newlabel("fd")
    a("s_cmp_lg_u32 s75, 0"); a(f"s_cbranch_scc1 {ok}")
    a("s_lshl_b32 s32, s31, 8"); a(f"s_add_u32 s32, s32, {rec.WS_FLAG}"); a("v_lshl_add_u32 v16, v0, 2, s32")
    a.label(lp)
    a("global_load_dword v17, v16, s[28:29] sc1"); a("s_waitcnt vmcnt(0)")
    a("v_cmp_ne_u32 vcc, 0, v17"); a(f"s_cbranch_vccz {ok}")
    a("s_sleep 8")
    a("s_add_u32 s46, s46, 1"); a(f"s_cmp_lt_u32 s46, {WSPIN}"); a(f"s_cbranch_scc1 {lp}")
    a("s_branch w_fail")
    a.label(ok)
    wstamp(a, 0)
    a("s_lshl_b32 s32, s31, 19"); a(f"s_add_u32 s32, s32, {WS_O}"); a("s_add_u32 s80, s28, s32"); a("s_addc_u32 s81, s29, 0")
    a(f"s_mul_i32 s32, s30, {8*rec.WOT_CG}"); a(f"s_add_u32 s32, s32, {rec.WS_WOT}"); a("s_add_u32 s82, s28, s32"); a("s_addc_u32 s83, s29, 0")
    a("s_mov_b32 s66, 31"); a("s_mov_b32 s77, 0")
    gemm.call(a, "core_F1")
    a("v_and_b32 v26, 15, v0"); a("v_lshlrev_b32 v26, 12, v26"); a("v_lshrrev_b32 v25, 4, v0"); a("v_lshl_add_u32 v20, v25, 4, v26")
    a("s_lshl_b32 s32, s72, 16"); a("s_lshl_b32 s33, s73, 8"); a("s_add_u32 s32, s32, s33"); a("v_add_u32 v20, s32, v20")
    a("s_lshl_b32 s32, s31, 18"); a("s_lshl_b32 s33, s30, 9"); a("s_add_u32 s32, s32, s33"); a("s_add_u32 s32, s32, 2048"); a("s_add_u32 s34, s24, s32"); a("s_addc_u32 s35, s25, 0")
    gemm.epi_frag_store(a, "s[34:35]", "" if "outpl" in rec.OPT else "sc1", 1, 64)

def softmax_cols(a, regs, t):
    a(f"v_max3_f32 v{t}, v{regs[0]}, v{regs[1]}, v{regs[2]}")
    rest = regs[3:]
    while len(rest) >= 2:
        a(f"v_max3_f32 v{t}, v{t}, v{rest[0]}, v{rest[1]}"); rest = rest[2:]
    if rest: a(f"v_max_f32 v{t}, v{t}, v{rest[0]}")
    for sw in ("16", "32"):
        a(f"v_mov_b32 v{t+1}, v{t}"); a("s_nop 1"); a(f"v_permlane{sw}_swap_b32 v{t}, v{t+1}"); a(f"v_max_f32 v{t}, v{t}, v{t+1}")
    a(f"v_mul_f32 v{t}, s40, v{t}")
    for r in regs: a(f"v_fma_f32 v{r}, v{r}, s40, -v{t}")
    for r in regs: a(f"v_exp_f32 v{r}, v{r}")

def task_g2a(a):
    gemm.setup_a_rowmajor(a, 2048); gemm.setup_w(a, 8192)
    a("s_lshl_b32 s32, s31, 19"); a("s_add_u32 s80, s10, s32"); a("s_addc_u32 s81, s11, 0")
    a("s_lshl_b32 s32, s30, 9"); a("s_add_u32 s82, s14, s32"); a("s_addc_u32 s83, s15, 0")
    a("s_mov_b32 s66, 7"); rot(a, 3, 0)
    gemm.call(a, "core_T")
    wstamp(a, 0)
    a("s_lshl_b32 s38, s31, 3"); a("s_lshl_b32 s33, s72, 1"); a("s_add_u32 s38, s38, s33"); a("s_mov_b32 s39, s38"); a("s_lshl_b32 s38, s38, 5")
    a("s_lshl_b32 s42, s30, 1"); a("s_add_u32 s42, s42, s73"); a("s_add_u32 s38, s38, s42")
    a("s_lshl_b32 s34, s38, 14"); a(f"s_add_u32 s34, s34, {rec.WS_KX}"); rec.near(a, 32, "s34", "s22", 28, "s35")
    a(f"s_add_u32 s34, s32, {rec.WS_VX - rec.WS_KX}"); a("s_addc_u32 s35, s33, 0")
    a("v_lshlrev_b32 v16, 4, v0"); a("v_add_u32 v17, 0x1000, v16"); a("v_add_u32 v18, 0x80000, v16"); a("v_add_u32 v19, 0x81000, v16")
    a("s_mul_i32 s43, s75, 20480")
    kp, kok = a.newlabel("kp"), a.newlabel("ko")
    rec.kv_word(a, "s47", "s31"); a("v_mov_b32 v22, s47"); a("v_mov_b32 v23, 0")
    a.label(kp)
    a(f"global_load_dword v26, v22, s[26:27] offset:{D_KV} sc1")
    a(f"global_load_dword v24, v23, s[26:27] offset:{D_PROG} sc1"); a("s_waitcnt vmcnt(0)")
    a(f"v_cmp_ne_u32 vcc, {rec.KV_FULL}, v26"); a(f"s_cbranch_vccz {kok}")
    a("s_sleep 12")
    a("s_add_u32 s46, s46, 1"); a(f"s_cmp_lt_u32 s46, {WSPIN}"); a(f"s_cbranch_scc1 {kp}")
    a("s_branch w_fail")
    a.label(kok)
    def take_progress():
        a("v_readfirstlane_b32 s48, v24"); a("s_nop 0")
        a("s_max_u32 s48, s48, 1"); a("s_sub_u32 s48, s48, 1")
    take_progress()
    a("s_barrier")
    def kv_loads(sg):
        for kt in range(2):
            for jj in range(4):
                a(f"global_load_dwordx4 {R('a', sg*32 + (kt*4 + jj)*4)}, v{16 + sg*2 + kt}, s[32:33] offset:{jj*1024} sc1")
            a(f"s_add_u32 m0, s43, {sg*10240 + kt*4096}"); a("s_nop 0")
            for jj in range(4):
                a(f"global_load_lds_dwordx4 v{16 + sg*2 + kt}, s[34:35] offset:{jj*1024} sc1")
    kv_loads(0)
    pack_frags(a)
    a("s_lshr_b32 s50, s38, 1"); a("s_lshl_b32 s50, s50, 14"); a("s_and_b32 s51, s38, 1"); a("s_lshl_b32 s51, s51, 12"); a("s_add_u32 s50, s50, s51"); a(f"s_add_u32 s50, s50, {rec.WS_KMVM}")
    rec.near(a, 52, "s50", "s22", 28, "s51")
    a("v_and_b32 v28, 7, v0"); a("v_lshlrev_b32 v28, 4, v28"); a("v_lshrrev_b32 v24, 4, v0"); a("v_lshl_add_u32 v28, v24, 7, v28")
    XB = (108, 32)
    def m_loads(sg):
        for jj in range(4): a(f"global_load_dwordx4 {R('v', XB[sg] + 4*jj)}, v28, s[52:53] offset:{jj*512} sc1")
        for i in range(2): a(f"global_load_dwordx4 {R('v', XB[sg] + 16 + 4*i)}, v16, s[52:53] offset:{2048 + i*1024} sc1")
        a("s_add_u32 s52, s52, 0x40000"); a("s_addc_u32 s53, s53, 0")
    def m_wait(seg):
        lp, ok, nf = a.newlabel("ap"), a.newlabel("ao"), a.newlabel("nf")
        a.label(lp)
        a(f"s_cmp_lt_u32 {seg}, s48"); a(f"s_cbranch_scc1 {ok}")
        a("s_cmp_lt_u32 s48, 61"); a(f"s_cbranch_scc1 {nf}")
        a("global_load_dwordx4 v[24:27], v31, s[28:29] sc1"); a("s_waitcnt vmcnt(0)")
        a("v_or3_b32 v24, v24, v25, v26"); a("v_or_b32 v24, v24, v27"); a("v_cmp_ne_u32 vcc, 0, v24"); a(f"s_cbranch_vccnz {nf}")
        a("s_mov_b32 s48, 64"); a(f"s_branch {ok}")
        a.label(nf)
        a("s_sleep 8")
        a(f"global_load_dword v24, v23, s[26:27] offset:{D_PROG} sc1"); a("s_waitcnt vmcnt(0)")
        take_progress()
        a("s_add_u32 s46, s46, 1"); a(f"s_cmp_lt_u32 s46, {WSPIN}"); a(f"s_cbranch_scc1 {lp}")
        a("s_branch w_fail")
        a.label(ok)
    def seg_signal(seg):
        a(f"s_lshl_b32 s47, {seg}, 7"); a("s_lshl_b32 s49, s42, 2"); a("s_add_u32 s47, s47, s49"); a(f"s_add_u32 s47, s47, {rec.WS_FLAG}"); a("v_mov_b32 v29, s47")
        a("s_waitcnt vmcnt(0)")
        a("s_mov_b64 exec, 1")
        a("global_store_dword v29, v23, s[28:29] sc1")
        a("s_mov_b64 exec, -1")
    a("s_lshl_b32 s47, s42, 7"); a(f"s_add_u32 s47, s47, {rec.WS_FLAG + 8192}"); a("v_mov_b32 v31, s47")
    early, late = a.newlabel("e0"), a.newlabel("l0")
    a("s_cmp_lt_u32 s39, s48"); a(f"s_cbranch_scc1 {early}")
    kv_loads(1); m_wait("s39"); m_loads(0)
    a("s_waitcnt vmcnt(0)")
    a(f"s_branch {late}")
    a.label(early)
    m_loads(0); kv_loads(1)
    a.label(late)
    a("v_lshrrev_b32 v24, 4, v0"); a("v_lshlrev_b32 v24, 2, v24"); a("v_and_b32 v25, 15, v0"); a("v_mov_b32 v26, 0xff800000")
    for i in range(4):
        a(f"v_add_u32 v27, {i}, v24"); a("v_cmp_gt_u32 vcc, v27, v25"); a("s_nop 1"); a(f"v_cndmask_b32 v{96+i}, 0, v26, vcc")
    a("v_cmp_gt_u32 vcc, 32, v0"); a("s_nop 1")
    for i in range(4): a(f"v_cndmask_b32 v{100+i}, 0, v26, vcc")
    for i in range(4): a(f"v_mov_b32 v{104+i}, 0x3f803f80")
    a("v_and_b32 v24, 3, v0"); a("v_lshrrev_b32 v25, 2, v0")
    a("v_lshlrev_b32 v18, 4, v25"); a("v_lshl_add_u32 v18, v24, 8, v18"); a("v_add_u32 v18, s43, v18")
    a("v_and_b32 v25, 7, v25"); a("v_lshlrev_b32 v19, 4, v25"); a("v_lshl_add_u32 v19, v24, 7, v19"); a("v_add_u32 v19, s43, v19")
    a("v_add_u32 v20, s43, v16")
    a("v_mov_b32 v21, v16"); a("v_add_u32 v22, 0x20000, v21")
    a("s_lshl_b32 s36, s39, 18"); a("s_lshl_b32 s37, s42, 12"); a("s_add_u32 s36, s36, s37"); a(f"s_add_u32 s36, s36, {WS_O}")
    a("s_add_u32 s36, s28, s36"); a("s_addc_u32 s37, s29, 0")
    a(f"s_mov_b32 s40, {SCL}")
    a("s_add_u32 s54, s39, 1")
    for sg in range(2):
        lo = sg*10240
        xb = XB[sg]
        if sg == 0:
            a("s_waitcnt vmcnt(16)")
        else:
            have = a.newlabel("h1")
            a("s_cmp_eq_u32 s55, 1"); a(f"s_cbranch_scc1 {have}")
            seg_signal("s39"); m_wait("s54"); m_loads(1)
            a("s_waitcnt vmcnt(0)")
            a.label(have)
            a("s_waitcnt vmcnt(8)")
        for i in range(2): a(f"ds_write_b128 v20, {R('v', xb + 16 + 4*i)} offset:{lo + 8192 + i*1024}")
        tiles = [(132, 0, 0, "v[96:99]"), (136, 2, 0, "v[100:103]"), (140, 0, 1, "0"), (144, 1, 1, "v[96:99]"), (148, 2, 1, "v[100:103]")]
        for jj in range(4):
            for d, kt, qt, C in tiles:
                A = R('v', xb + 4*jj) if kt == 2 else R('a', sg*32 + (kt*4 + jj)*4)
                a(f"v_mfma_f32_16x16x32_bf16 {R('v', d)}, {A}, {frag(2*sg + qt, jj)}, " + (C if jj == 0 else R('v', d)))
        if sg == 0:
            no = a.newlabel("n1")
            a("s_mov_b32 s55, 0")
            a("s_cmp_lt_u32 s54, s48"); a(f"s_cbranch_scc0 {no}")
            m_loads(1); a("s_mov_b32 s55, 1")
            a.label(no)
        def vread(jj):
            b = 64 + (jj & 1)*12
            for hf in range(2):
                for kt in range(2):
                    a(f"ds_read_b64_tr_b16 {R('a', b + hf*4 + kt*2, 2)}, v18 offset:{lo + kt*4096 + jj*1024 + hf*8}")
                a(f"ds_read_b64_tr_b16 {R('a', b + 8 + hf*2, 2)}, v19 offset:{lo + 8192 + jj*512 + hf*8}")
        vread(0)
        a("s_nop 3")
        softmax_cols(a, list(range(132, 140)), 24)
        softmax_cols(a, list(range(140, 152)), 24)
        a("s_nop 0")
        a("v_cvt_pk_bf16_f32 v108, v132, v133"); a("v_cvt_pk_bf16_f32 v109, v134, v135"); a("v_mov_b32 v110, 0"); a("v_mov_b32 v111, 0")
        a("v_cvt_pk_bf16_f32 v112, v136, v137"); a("v_cvt_pk_bf16_f32 v113, v138, v139")
        for i in range(4): a(f"v_cvt_pk_bf16_f32 v{116+i}, v{140+2*i}, v{141+2*i}")
        a("v_cvt_pk_bf16_f32 v114, v148, v149"); a("v_cvt_pk_bf16_f32 v115, v150, v151")
        P0 = ["v[108:111]", "v[116:119]"]; P1 = ["v[112:113]", "v[114:115]"]
        a("s_nop 1")
        for qt in range(2): a(f"v_mfma_f32_16x16x32_bf16 {R('v', 120 + 4*qt)}, v[104:107], {P0[qt]}, 0")
        a("s_nop 5")
        for qt in range(2): a(f"v_mfma_f32_16x16x16_bf16 {R('v', 120 + 4*qt)}, v[104:105], {P1[qt]}, {R('v', 120 + 4*qt)}")
        if sg == 1:
            done = a.newlabel("d0")
            a("s_cmp_eq_u32 s55, 1"); a(f"s_cbranch_scc0 {done}")
            seg_signal("s39")
            a.label(done)
        a("s_nop 7")
        a("v_rcp_f32 v24, v120"); a("v_rcp_f32 v26, v124"); a("s_nop 0"); a("v_mov_b32 v25, v24"); a("v_mov_b32 v27, v26")
        for jj in range(4):
            b = 64 + (jj & 1)*12
            if jj < 3:
                vread(jj + 1); a("s_waitcnt lgkmcnt(6)")
            else:
                a("s_waitcnt lgkmcnt(0)")
            for qt in range(2):
                for hf in range(2):
                    a(f"v_mfma_f32_16x16x32_bf16 {R('v', 132 + (qt*2 + hf)*4)}, {R('a', b + hf*4)}, {P0[qt]}, 0")
            a("s_nop 2")
            for qt in range(2):
                for hf in range(2):
                    D = R('v', 132 + (qt*2 + hf)*4)
                    a(f"v_mfma_f32_16x16x16_bf16 {D}, {R('a', b + 8 + hf*2, 2)}, {P1[qt]}, {D}")
            a("s_nop 7")
            for qt in range(2):
                o = 132 + qt*8
                for i in range(0, 8, 2): a(f"v_pk_mul_f32 v[{o+i}:{o+i+1}], v[{o+i}:{o+i+1}], v[{24+2*qt}:{25+2*qt}]")
                for i in range(4): a(f"v_cvt_pk_bf16_f32 v{152 + 4*qt + i}, v{o+2*i}, v{o+2*i+1}")
                a(f"global_store_dwordx4 v{21+qt}, {R('v', 152 + 4*qt)}, s[36:37] offset:{jj*1024} sc1")
        if sg == 0:
            a("s_add_u32 s36, s36, 0x40000"); a("s_addc_u32 s37, s37, 0")
    seg_signal("s54")

def sreg(i): return R('a', 4*i) if i < 24 else R('v', 128 + 4*(i - 24))
def task_stream(a):
    NS = 16
    a("s_lshl_b32 s43, s75, 14")
    a(f"s_mul_i32 s32, s45, {rec.WOT_CG}"); a(f"s_mul_i32 s33, s75, {rec.WOT_W}"); a("s_add_u32 s32, s32, s33"); a(f"s_add_u32 s32, s32, {rec.WS_WOT}")
    a("v_lshlrev_b32 v10, 4, v0"); a("v_add_u32 v2, s32, v10")
    for i in range(32):
        a(f"global_load_dwordx4 {sreg(i)}, v2, s[28:29] offset:{(i & 3)*1024} sc1")
        if i & 3 == 3: a("v_add_u32 v2, 0x1000, v2")
    a("v_add_u32 v2, s43, v10")
    for i in range(1, 4): a(f"v_add_u32 v{2+i}, {i*4096}, v2")
    for i in range(4): a(f"v_add_u32 v{6+i}, {131072 + i*4096}, v2")
    a("s_lshl_b32 s32, s75, 12"); a("v_add_u32 v11, s32, v10")
    a("v_lshrrev_b32 v13, 4, v0"); a("s_lshl_b32 s32, s75, 2"); a("v_add_u32 v13, s32, v13")
    a("v_and_b32 v12, 15, v13"); a("v_bfe_u32 v14, v0, 2, 2"); a("v_lshl_add_u32 v12, v14, 4, v12"); a("v_lshlrev_b32 v12, 4, v12")
    a("v_and_b32 v14, 1, v0"); a("v_lshl_add_u32 v12, v14, 3, v12"); a("v_bfe_u32 v14, v0, 1, 1"); a("v_lshl_add_u32 v12, v14, 10, v12")
    a("s_lshr_b32 s32, s75, 2"); a("s_lshl_b32 s32, s32, 11"); a("v_add_u32 v12, s32, v12")
    a("v_lshlrev_b32 v13, 12, v13"); a("v_and_b32 v14, 15, v0"); a("v_lshl_add_u32 v13, v14, 2, v13")
    a("s_lshl_b32 s33, s45, 6"); a("s_add_u32 s33, s33, 2048"); a("v_add_u32 v13, s33, v13")
    a("s_lshl_b32 s32, s45, 13"); a("s_lshl_b32 s33, s75, 10"); a("s_add_u32 s32, s32, s33"); a(f"s_add_u32 s32, s32, {WS_O}"); a("v_add_u32 v10, s32, v10")
    a("s_barrier")
    wstamp(a, 0)
    def touch():
        a("s_and_b32 s32, s31, 63"); a("s_lshl_b32 s32, s32, 18"); a("s_add_u32 s48, s28, s32"); a("s_addc_u32 s49, s29, 0")
        a("global_load_dwordx4 v[124:127], v10, s[48:49] sc1")
    def pick():
        a("s_ff1_i32_b64 s31, s[34:35]"); a("s_bitset0_b64 s[34:35], s31")
        a("s_and_b32 s32, s31, 63"); a("s_lshl_b32 s32, s32, 7"); a("v_add_u32 v14, s32, v96")
    def oload(k):
        tt, ks = k >> 4, k & 15
        a(f"global_load_dwordx4 {R('v', 32 + (k % NS)*4)}, v{2 + tt*4 + (ks >> 2)}, s[38:39] offset:{(ks & 3)*1024} sc1")
    def first_loads():
        a("s_lshl_b32 s32, s31, 18"); a(f"s_add_u32 s32, s32, {WS_O}"); a("s_add_u32 s38, s28, s32"); a("s_addc_u32 s39, s29, 0")
        for k in range(NS): oload(k)
    def finish():
        a("s_waitcnt lgkmcnt(0)"); a("s_barrier")
        for m in range(8): a(f"ds_read_b64 v[{16+2*m}:{17+2*m}], v12 offset:{m*4096}")
        a("s_lshl_b32 s32, s30, 17"); a("s_add_u32 s40, s24, s32"); a("s_addc_u32 s41, s25, 0")
        a("v_xor_b32 v11, 0x8000, v11"); a("v_xor_b32 v12, 0x8000, v12")
        a("s_waitcnt lgkmcnt(0)")
        for step in (8, 4, 2):
            for i in range(0, step, 2):
                a(f"v_pk_add_f32 v[{16+i}:{17+i}], v[{16+i}:{17+i}], v[{16+step+i}:{17+step+i}]")
        a("v_cvt_pk_bf16_f32 v1, v16, v17")
        a("global_store_dword v13, v1, s[40:41]")
    a("v_and_b32 v96, 31, v0"); a("v_lshlrev_b32 v96, 2, v96"); a(f"v_add_u32 v96, {rec.WS_FLAG}, v96")
    pick()
    a.label("st_wait")
    a("global_load_dword v15, v14, s[28:29] sc1"); a("s_waitcnt vmcnt(0)")
    a("v_cmp_ne_u32 vcc, 0, v15"); a("s_cbranch_vccz st_rdy")
    a("s_sleep 12")
    a("s_add_u32 s46, s46, 1"); a(f"s_cmp_lt_u32 s46, {WSPIN}"); a("s_cbranch_scc1 st_wait")
    a("s_branch w_fail")
    a.label("st_rdy")
    touch()
    first_loads()
    a.label("st_item")
    if PROF:
        a("s_and_b32 s32, s31, 7"); a("s_cmp_lg_u32 s32, 1"); a("s_cbranch_scc1 st_nos")
        a("s_cmp_gt_u32 s59, 13"); a("s_cbranch_scc1 st_nos")
        wstamp(a, 0)
        a.label("st_nos")
    a("s_mov_b32 s30, s31")
    pick()
    a("global_load_dword v15, v14, s[28:29] sc1")
    touch()
    def mm(k, wait):
        tt, ks = k >> 4, k & 15
        a(f"s_waitcnt vmcnt({wait})")
        for ct in range(2):
            D = R('v', 16 + (tt*2 + ct)*4)
            a(f"v_mfma_f32_16x16x32_bf16 {D}, {sreg(ks*2 + ct)}, {R('v', 32 + (k % NS)*4)}, " + ("0" if ks == 0 else D))
    def park():
        a("s_nop 7")
        for f in range(4): a(f"ds_write_b128 v11, {R('v', 16 + f*4)} offset:{f*1024}")
    for k in range(16):
        mm(k, 17); oload(k + 16)
    a("s_waitcnt vmcnt(17)")
    a("v_cmp_ne_u32 vcc, 0, v15")
    a("s_cmp_lt_i32 s31, 0"); a("s_cbranch_scc1 st_slow")
    a("s_cbranch_vccnz st_slow")
    a("s_lshl_b32 s32, s31, 18"); a(f"s_add_u32 s32, s32, {WS_O}"); a("s_add_u32 s38, s28, s32"); a("s_addc_u32 s39, s29, 0")
    for k in range(16, 32):
        mm(k, 15); oload(k - 16)
    park(); finish()
    a("s_branch st_item")
    a.label("st_slow")
    for k in range(16, 32): mm(k, 31 - k)
    park(); finish()
    a("s_cmp_lt_i32 s31, 0"); a("s_cbranch_scc0 st_wait")

def emit_mega(a, prof=False):
    kernel_begin(a, NAME + "_kernel")
    a("s_cmp_ge_u32 s2, 256"); a("s_cbranch_scc1 w_exit")
    if "span" in rec.OPT: a("s_memrealtime s[100:101]")
    load_ptrs(a)
    a("s_getreg_b32 s44, hwreg(HW_REG_XCC_ID)"); a("s_and_b32 s44, s44, 7")
    a("v_lshrrev_b32 v1, 6, v0"); a("v_mov_b32 v2, 0"); a("s_mov_b32 s46, 0")
    a("v_readfirstlane_b32 s75, v1")
    a("s_waitcnt lgkmcnt(0)")
    a("s_add_u32 s28, s28, 0x1fffff"); a("s_addc_u32 s29, s29, 0"); a("s_and_b32 s28, s28, 0xffe00000")
    a("s_cmp_eq_u32 s75, 1"); a("s_cbranch_scc0 no_probe")
    a("s_mov_b32 s47, 0")
    a("s_cmp_lt_u32 s44, 4"); a("s_cbranch_scc0 probe_done")
    a(f"s_add_u32 s30, s28, {rec.WS_PROBE}"); a("s_addc_u32 s31, s29, 0")
    a("s_lshr_b32 s32, s2, 5"); a("s_and_b32 s33, s32, 1"); a("s_lshr_b32 s32, s32, 1"); a("s_lshl_b32 s32, s32, 2"); a("s_add_u32 s32, s32, s33"); a("s_lshl_b32 s32, s32, 12")
    a("s_and_b32 s33, s2, 31"); a("s_lshl_b32 s33, s33, 7"); a("s_add_u32 s32, s32, s33")
    a("v_mov_b32 v3, s32")
    a("s_mov_b64 exec, 1")
    a("s_mov_b32 s38, -1"); a("s_mov_b32 s39, -1"); a("s_mov_b32 s40, 6")
    a.label("probe_loop")
    a("s_memtime s[34:35]"); a("s_waitcnt lgkmcnt(0)")
    a("global_store_dword v3, v2, s[30:31] sc1"); a("s_waitcnt vmcnt(0)")
    a("s_memtime s[36:37]"); a("s_waitcnt lgkmcnt(0)")
    a("s_sub_u32 s36, s36, s34"); a("s_min_u32 s36, s36, s38"); a("s_mov_b32 s38, s39"); a("s_mov_b32 s39, s36")
    a("v_xor_b32 v3, 0x2000, v3")
    a("s_sub_u32 s40, s40, 1"); a("s_cmp_lg_u32 s40, 0"); a("s_cbranch_scc1 probe_loop")
    a("s_mov_b64 exec, -1")
    a("s_cmp_lt_u32 s39, s38"); a("s_cselect_b32 s47, 1, 0")
    a.label("probe_done")
    a("v_mov_b32 v3, s47"); a("ds_write_b32 v2, v3 offset:4")
    a.label("no_probe")
    a("s_cmp_lg_u32 s75, 0"); a("s_cbranch_scc1 role_wait")
    a("s_lshl_b32 s32, s44, 2"); a("v_mov_b32 v3, s32"); a("v_mov_b32 v4, 1")
    a("s_mov_b64 exec, 1")
    a("global_atomic_add v5, v3, v4, s[26:27] sc0 sc1"); a("s_waitcnt vmcnt(0)")
    a("v_readfirstlane_b32 s45, v5")
    a("s_cmp_lt_u32 s45, 32"); a("s_cbranch_scc1 role_have")
    a(f"v_mov_b32 v3, {D_OVF}")
    a("global_atomic_add v5, v3, v4, s[26:27] sc0 sc1"); a("s_waitcnt vmcnt(0)")
    a("v_readfirstlane_b32 s45, v5")
    a.label("role_poll")
    a("global_load_dwordx4 v[8:11], v2, s[26:27] sc1"); a("global_load_dwordx4 v[12:15], v2, s[26:27] offset:16 sc1"); a("s_waitcnt vmcnt(0)")
    a("s_mov_b32 s33, 0")
    for i in range(8):
        a(f"v_readfirstlane_b32 s{34+i}, v{8+i}"); a(f"s_add_u32 s33, s33, s{34+i}")
    a("s_cmp_eq_u32 s33, 256"); a("s_cbranch_scc1 role_pick")
    a("s_sleep 8"); a("s_add_u32 s46, s46, 1"); a(f"s_cmp_lt_u32 s46, {WSPIN}"); a("s_cbranch_scc1 role_poll")
    a("s_mov_b64 exec, -1"); a("s_branch w_fail")
    a.label("role_pick")
    for i in range(8):
        a(f"s_min_u32 s33, s{34+i}, 32"); a("s_add_u32 s45, s45, s33"); a(f"s_mov_b32 s44, {i}")
        if i < 7:
            a("s_cmp_lt_u32 s45, 32"); a("s_cbranch_scc1 role_have"); a("s_sub_u32 s45, s45, 32")
    a.label("role_have")
    a("s_lshl_b32 s32, s44, 5"); a("s_or_b32 s32, s32, s45"); a("v_mov_b32 v3, s32")
    a("ds_write_b32 v2, v3")
    a("s_mov_b64 exec, -1")
    a.label("role_wait")
    a("s_waitcnt lgkmcnt(0)"); a("s_barrier")
    a("ds_read_b64 v[4:5], v2"); a("s_waitcnt lgkmcnt(0)")
    a("v_readfirstlane_b32 s32, v4"); a("v_readfirstlane_b32 s47, v5")
    a("s_cmp_lg_u32 s75, 0"); a("s_cbranch_scc1 voted")
    a("s_and_b32 s47, s47, 1"); a("s_lshl_b32 s47, s47, 16"); a("s_or_b32 s47, s47, 1"); a("v_mov_b32 v3, s47")
    a("s_mov_b64 exec, 1")
    a(f"global_atomic_add v2, v3, s[26:27] offset:{rec.DBG_VOTE} sc1")
    a("s_mov_b64 exec, -1")
    a.label("voted")
    a("s_barrier")
    if "span" in rec.OPT:
        a("s_and_b32 s98, s2, 0x38"); a("s_or_b32 s98, s98, s75"); a("s_cmp_lg_u32 s98, 0"); a("s_cbranch_scc1 span1")
        a("s_memrealtime s[98:99]"); a("s_waitcnt lgkmcnt(0)"); a("s_not_b32 s100, s100"); a("v_mov_b32 v4, s100"); a("v_mov_b32 v5, s98")
        a("s_mov_b64 exec, 1"); a("global_atomic_umax v2, v4, s[26:27] offset:48 sc1"); a("global_atomic_umax v2, v5, s[26:27] offset:52 sc1"); a("s_mov_b64 exec, -1")
        a.label("span1")
    a("s_and_b32 s45, s32, 31"); a("s_bfe_u32 s44, s32, 0x30005")
    a("s_cmp_ge_u32 s44, 4"); a("s_cbranch_scc1 worker")
    a("s_lshl_b32 s18, s44, 3"); a("s_lshr_b32 s19, s45, 2"); a("s_add_u32 s18, s18, s19"); a("s_and_b32 s19, s45, 3")
    rec.emit_rec(a, "rec", prof=prof, kvwait=True)
    a.label("worker")
    a("s_sub_u32 s44, s44, 4")
    a("v_and_b32 v0, 63, v0")
    gemm.setup_common(a)
    a("s_mov_b32 s88, 0"); a("s_mov_b32 s89, 0")
    a("s_mov_b32 s59, 0") if PROF else None
    wstamp(a, 0)
    a("s_lshl_b32 s30, s44, 3"); a("s_and_b32 s32, s45, 7"); a("s_add_u32 s30, s30, s32")
    a("s_lshl_b32 s96, s44, 5"); a("s_add_u32 s96, s96, s45"); a("s_lshl_b32 s96, s96, 3"); a("s_add_u32 s96, s96, s75")
    for grp, (MT, first) in enumerate(((2, 0), (3, 32), (3, 80))):
        a("s_lshr_b32 s31, s45, 3"); a(f"s_mul_i32 s31, s31, {4*MT}"); a(f"s_add_u32 s31, s31, {first}")
        if grp == 1:
            a("s_mov_b32 s90, 8"); a("s_mov_b64 s[92:93], s[14:15]"); a("s_mov_b32 s91, 2"); a("s_mov_b64 s[94:95], s[8:9]")
        if grp == 2:
            a("s_mov_b32 s90, 4"); a("s_mov_b64 s[92:93], s[4:5]"); a("s_mov_b32 s91, 6"); a("s_mov_b64 s[94:95], s[6:7]")
        task_g1(a, MT, grp)
        wstamp(a, 0)
    a("s_cmp_eq_u32 s44, 0"); a("s_cbranch_scc1 w_g2a")
    a("s_cmp_eq_u32 s44, 3"); a("s_cbranch_scc1 w_q")
    a("s_sub_u32 s30, s44, 1"); a("s_lshl_b32 s30, s30, 2"); a("s_and_b32 s32, s45, 3"); a("s_add_u32 s30, s30, s32"); a("s_lshr_b32 s31, s45, 2")
    task_g4kv(a)
    wstamp(a, 0)
    a("s_cmp_eq_u32 s44, 1"); a("s_cbranch_scc1 w_g2a")
    a("s_and_b32 s30, s45, 3"); a("s_lshr_b32 s31, s45, 2")
    task_g5(a)
    wstamp(a, 0)
    a("s_branch w_g2a")
    a.label("w_q")
    a("s_and_b32 s30, s45, 3"); a("s_lshr_b32 s31, s45, 2")
    task_g4q(a)
    wstamp(a, 0)
    a.label("w_g2a")
    a("s_and_b32 s30, s45, 15"); a("s_lshr_b32 s31, s45, 4"); a("s_lshr_b32 s32, s44, 1"); a("s_xor_b32 s32, s32, s44"); a("s_lshl_b32 s32, s32, 1"); a("s_add_u32 s31, s31, s32")
    task_g2a(a)
    wstamp(a, 0)
    a("s_cmp_eq_u32 s44, 2"); a("s_cbranch_scc1 w_exit")
    a("s_and_b32 s31, s31, 6"); a("s_lshl_b32 s31, s31, 2"); a("s_lshr_b32 s32, s45, 2"); a("s_add_u32 s31, s31, s32"); a("s_and_b32 s30, s45, 3")
    task_g3(a)
    wstamp(a, 0)
    a("s_cmp_eq_u32 s44, 3"); a("s_cbranch_scc1 w_exit")
    a("s_mov_b32 s34, 0"); a("s_cmp_eq_u32 s44, 0"); a("s_mov_b32 s35, 0xaaaa0000"); a("s_cselect_b32 s35, 0x55550000, s35")
    task_stream(a)
    wstamp(a, 0)
    if "span" in rec.OPT:
        a("s_and_b32 s98, s45, 7"); a("s_or_b32 s98, s98, s75"); a("s_cmp_lg_u32 s98, 0"); a("s_cbranch_scc1 w_exit")
        a("s_waitcnt vmcnt(0)"); a("s_memrealtime s[98:99]"); a("s_waitcnt lgkmcnt(0)"); a("v_mov_b32 v5, s98"); a("v_mov_b32 v2, 0")
        a("s_mov_b64 exec, 1"); a("global_atomic_umax v2, v5, s[26:27] offset:60 sc1")
    a("s_endpgm")
    a.label("w_fail")
    a("v_mov_b32 v16, 0"); a("v_mov_b32 v17, 0xdead"); a("global_store_dword v16, v17, s[26:27] offset:248")
    a.label("w_exit")
    a("s_endpgm")
    gemm.emit_core(a, "core_T", 'T')
    gemm.emit_core(a, "core_N", 'N')
    gemm.emit_core(a, "core_T3", 'T', MT=3)
    gemm.emit_core(a, "core_T2", 'T', MT=2)
    gemm.WFLAG = "sc1"; gemm.WFRAG = True
    gemm.emit_core(a, "core_F1", 'T', MT=1, aflag="sc1")
    gemm.WFLAG = ""; gemm.WFRAG = False

def generate(prof=False):
    global PROF
    PROF = bool(prof)
    raw = open(f"cdna_kernels/{NAME}.s.ref").read().split("\n")
    hdr = []
    for l in raw:
        if not l.startswith(";") or "Override" in l: break
        hdr.append(l)
    a = Asm()
    emit_mega(a, prof)
    s = "\n".join(hdr) + "\n"
    s += f"; @launch kernel={NAME}_kernel grid=(256,1,1) block=(512,1,1) lds=163840\n"
    s += '.amdgcn_target "amdgcn-amd-amdhsa--gfx950"\n.text\n' + a.text() + '.section .rodata,"a"\n'
    s += kernel_desc(NAME + "_kernel", vgpr=256, accum=160)
    return s

if __name__ == "__main__":
    out = sys.argv[1] if len(sys.argv) > 1 else f"cdna_kernels/{NAME}.s"
    open(out, "w").write(generate())
    print("wrote", out)
```

```python
from asmgen import *

def acc(tt, ft): return 32 + (tt*8 + ft)*4
def R(p, b, n=4): return f"{p}[{b}:{b+n-1}]"

EXP = set()
SIGNAL = True
def a_dma(pslot, MT, flag=""):
    ops = [[f"s_add_u32 m0, s76, {pslot*32768 + i*1024}", f"global_load_lds_dwordx4 v{28+i}, s[60:61] {flag}"] for i in range(MT)]
    if "noA" in EXP:
        for o in ops: o[1] = "s_nop 0"
    return ops
WFLAG = ""
def w_dma(slot):
    ops = [[f"s_add_u32 m0, s67, {65536 + slot*16384 + i*1024}", f"global_load_lds_dwordx4 v{4+i}, s[62:63] {WFLAG}"] for i in range(2)]
    if "noW" in EXP:
        for o in ops: o[1] = "s_nop 0"
    return ops
def adv(off, inc, mask, cur, base):
    return [f"s_or_b32 s{off}, s{off}, s{mask}", f"s_add_u32 s{off}, s{off}, s{inc}", f"s_andn2_b32 s{off}, s{off}, s{mask}",
            f"s_add_u32 s{cur}, s{base}, s{off}", f"s_addc_u32 s{cur+1}, s{base+1}, 0"]
ADV_A = adv(84, 64, 86, 60, 80)
ADV_W = adv(85, 65, 87, 62, 82)

def a_read(buf, tt, slot, MT=4): return f"ds_read_b128 {R('a', buf*16 + tt*4)}, v{6 + (slot & 1)} offset:{(slot >> 1)*32768 + tt*2048}"
def wreg(ft, par): return 32 + ft*4 if (ft < 6 or par == 0) else 64 + (ft - 6)*4
WFRAG = False
def w_reads(ft, slot):
    if WFRAG: return [f"ds_read_b128 {R('a', wreg(ft, slot & 1))}, v27 offset:{slot*16384 + ft*1024}"]
    return [w_read(ft, 0, slot), w_read(ft, 1, slot)]
def w_read(ft, lo, slot): return f"ds_read_b64_tr_b16 {R('a', wreg(ft, slot & 1) + lo*2, 2)}, v{8+ft} offset:{slot*16384 + lo*2048}"

def touch_hook(a, name):
    for cnt, base in ((90, 92), (91, 94)):
        lp, no = f"{name}_t{cnt}", f"{name}_n{cnt}"
        a(f"s_cmp_eq_u32 s{cnt}, 0"); a(f"s_cbranch_scc1 {no}")
        a(f"s_mul_i32 s74, s96, s{cnt}"); a("s_lshl_b32 s74, s74, 10"); a("v_lshl_add_u32 v20, v0, 4, s74")
        a.label(lp)
        a(f"global_load_dwordx4 a[92:95], v20, s[{base}:{base+1}]")
        a("v_add_u32 v20, 0x400, v20")
        a(f"s_sub_u32 s{cnt}, s{cnt}, 1"); a(f"s_cmp_lg_u32 s{cnt}, 0"); a(f"s_cbranch_scc1 {lp}")
        a.label(no)

def stage(a, slot, orient, dma, wait, refill, MT=4, aflag="", hook=None):
    buf = slot & 1
    if wait is not None:
        a(f"s_waitcnt vmcnt({wait}) lgkmcnt(0)"); a("s_barrier")
    else:
        a("s_waitcnt lgkmcnt(0)")
    if hook and (MT == 3 or orient == 'N'): touch_hook(a, hook)
    if hook and MT == 2:
        a("v_mov_b32 v16, 0"); a("global_load_dwordx2 v[18:19], v16, s[26:27] offset:40 sc1")
    d = []
    if dma:
        d = (a_dma(slot >> 1, MT, aflag) if slot & 1 else []) + w_dma(slot)
    ns = (slot + 1) & 3
    early = []
    if refill:
        early = [a_read(buf ^ 1, tt, ns, MT) for tt in range(MT)] + w_reads(6, ns) + w_reads(7, ns)
    for ft in range(8):
        if MT == 1 and ft < len(d): a(d[ft][0])
        if refill and ft in (3, 5): a("s_waitcnt lgkmcnt(6)")
        for tt in range(MT):
            D = R('v', acc(tt, ft)); W = R('a', wreg(ft, buf)); X = R('a', buf*16 + tt*4)
            a(f"v_mfma_f32_16x16x32_bf16 {D}, {W}, {X}, {D}" if orient == 'T' else f"v_mfma_f32_16x16x32_bf16 {D}, {X}, {W}, {D}")
            if MT > 1 and tt == 0 and ft < len(d):
                a(d[ft][0])
            if tt == min(1, MT - 1) and ft < len(d):
                a(d[ft][1])
            if tt == 0 and ft == 6 and dma:
                for x in ADV_W: a(x)
            if tt == 0 and ft == 7 and dma and slot & 1:
                for x in ADV_A: a(x)
            if early and (MT < 4 or tt in (0, 2)):
                a(early.pop(0))
        if refill and ft < 6:
            for x in w_reads(ft, ns): a(x)
    assert not early

def emit_core(a, name, orient, MT=4, aflag=""):
    a.label(name)
    a("s_mov_b32 s84, 0"); a("s_mov_b32 s85, 0")
    a("s_mov_b64 s[60:61], s[80:81]"); a("s_mov_b64 s[62:63], s[82:83]")
    a("s_barrier")
    def issue(ops, advs):
        for m, ld in ops:
            a(m); a("s_nop 0"); a(ld)
        for x in advs: a(x)
    issue(a_dma(0, MT, aflag), ADV_A); issue(w_dma(0), ADV_W); issue(w_dma(1), ADV_W)
    issue(w_dma(2), ADV_W); issue(a_dma(1, MT, aflag), ADV_A); issue(w_dma(3), ADV_W)
    for tt in range(MT):
        for i in range(32): a(f"v_mov_b32 v{acc(tt, 0) + i}, 0")
    a(f"s_waitcnt vmcnt({6 + MT})"); a("s_barrier")
    if SIGNAL:
        a("s_cmp_eq_u32 s75, 0"); a("s_cselect_b32 s74, s89, 0"); a("s_mov_b32 s89, 0")
        a("s_cmp_eq_u32 s74, 0"); a(f"s_cbranch_scc1 {name}_ns")
        a("v_mov_b32 v16, s88"); a("v_mov_b32 v17, 0")
        a("s_mov_b64 exec, 1")
        a("global_store_dword v16, v17, s[28:29] sc1")
        a("s_mov_b64 exec, -1")
        a.label(name + "_ns")
    for tt in range(MT): a(a_read(0, tt, 0, MT))
    for ft in range(8):
        for x in w_reads(ft, 0): a(x)
        if ft == 3: a("s_waitcnt lgkmcnt(4)")
    a.label(name + "_loop")
    for slot in range(4): stage(a, slot, orient, True, 4 if slot & 1 else 4 + MT, True, MT, aflag)
    a("s_sub_u32 s66, s66, 1"); a("s_cmp_lg_u32 s66, 0"); a(f"s_cbranch_scc1 {name}_loop")
    stage(a, 0, orient, False, 4 + MT, True, MT)
    stage(a, 1, orient, False, 2, True, MT)
    stage(a, 2, orient, False, 0, True, MT, hook=name)
    stage(a, 3, orient, False, None, False, MT)
    a("s_nop 7")
    a("s_setpc_b64 s[68:69]")

def call(a, name):
    lab = a.newlabel("call")
    a("s_getpc_b64 s[70:71]")
    a.label(lab)
    a(f"s_add_u32 s70, s70, {name}-{lab}")
    a("s_addc_u32 s71, s71, 0") if False else a(f"s_addc_u32 s71, s71, ({name}-{lab})>>32")
    a("s_swappc_b64 s[68:69], s[70:71]")

def setup_common(a, MT=4):
    a("s_lshl_b32 s67, s75, 11")
    a("s_and_b32 s72, s75, 3"); a("s_lshr_b32 s73, s75, 2")
    a("v_lshrrev_b32 v16, 4, v0"); a("v_bfe_u32 v17, v0, 2, 2")
    a("v_lshl_add_u32 v18, v16, 3, v17"); a("v_lshlrev_b32 v18, 9, v18")
    a("v_and_b32 v19, 3, v0"); a("v_lshl_add_u32 v18, v19, 3, v18")
    a("s_lshl_b32 s74, s73, 8"); a("s_add_u32 s74, s74, 65536"); a("v_add_u32 v18, s74, v18")
    a("v_and_b32 v16, 1, v16"); a("v_lshl_add_u32 v17, v16, 2, v17"); a("v_lshlrev_b32 v17, 5, v17")
    a("v_add_u32 v8, v18, v17")
    for ft in range(1, 8): a(f"v_xor_b32 v{8+ft}, {ft*32}, v8")

def setup_a_rowmajor(a, lda, MT=4):
    a(f"s_mul_i32 s76, s75, {MT*1024}")
    a(f"s_mov_b32 s74, {lda}")
    for i in range(MT):
        a("v_lshrrev_b32 v16, 3, v0"); a(f"s_mul_i32 s64, s75, {MT*8}"); a(f"s_add_u32 s64, s64, {i*8}"); a("v_add_u32 v16, s64, v16")
        a("v_lshrrev_b32 v17, 1, v16"); a("v_xor_b32 v17, v17, v0"); a("v_and_b32 v17, 7, v17")
        a("v_mul_lo_u32 v16, v16, s74"); a(f"v_lshl_add_u32 v{28+i}, v17, 4, v16")
    a("v_and_b32 v16, 15, v0"); a("v_lshrrev_b32 v17, 1, v16"); a("v_lshrrev_b32 v18, 4, v0"); a("v_xor_b32 v17, v17, v18")
    a("v_lshlrev_b32 v16, 7, v16"); a("v_lshl_add_u32 v6, v17, 4, v16")
    a(f"s_mul_i32 s74, s72, {MT*2048}"); a("v_add_u32 v6, s74, v6"); a("v_xor_b32 v7, 64, v6")
    a("s_mov_b32 s64, 128"); a("s_mov_b32 s86, 0")

def setup_w(a, ldw, colmap=None):
    for i in range(2):
        a("v_lshrrev_b32 v16, 5, v0"); a("s_lshl_b32 s74, s75, 2"); a(f"s_add_u32 s74, s74, {2*i}"); a("v_add_u32 v16, s74, v16")
        a("v_and_b32 v17, 3, v16"); a("v_bfe_u32 v18, v16, 3, 1"); a("v_lshl_add_u32 v17, v18, 2, v17"); a("v_lshlrev_b32 v17, 1, v17")
        a("v_and_b32 v18, 31, v0"); a("v_xor_b32 v17, v17, v18")
        if colmap is None: a("v_lshlrev_b32 v17, 4, v17")
        else: colmap(a, 17)
        a(f"s_mov_b32 s74, {ldw}"); a("v_mul_lo_u32 v16, v16, s74"); a(f"v_add_u32 v{4+i}, v16, v17")
    a(f"s_mov_b32 s65, {32*ldw}"); a("s_mov_b32 s87, 0")

def epi_frag_store(a, base, flag, MT=4, step=1024):
    n = 0
    for tt in range(MT):
        for jj in range(4):
            t = 24 + (n & 1)*4; n += 1
            b = acc(tt, 2*jj)
            for i in range(4): a(f"v_cvt_pk_bf16_f32 v{t+i}, v{b+2*i}, v{b+2*i+1}")
            a(f"global_store_dwordx4 v{20+tt}, {R('v', t)}, {base} offset:{jj*step} {flag}")

def setup_a_frag(a, tstride, MT=4):
    a("v_lshlrev_b32 v16, 4, v0")
    if MT == 4:
        a(f"s_mul_i32 s74, s75, {2*tstride}"); a("s_lshl_b32 s76, s75, 12")
        a("v_add_u32 v28, s74, v16"); a("v_add_u32 v29, 1024, v28"); a(f"v_add_u32 v30, {tstride}, v28"); a("v_add_u32 v31, 1024, v30")
    else:
        assert MT == 1
        a("s_lshr_b32 s74, s75, 1"); a(f"s_mul_i32 s74, s74, {tstride}"); a("s_and_b32 s76, s75, 1"); a("s_lshl_b32 s76, s76, 10"); a("s_add_u32 s74, s74, s76")
        a("v_add_u32 v28, s74, v16"); a("s_lshl_b32 s76, s75, 10")
    a(f"s_mul_i32 s74, s72, {MT*2048}"); a("v_add_u32 v6, s74, v16"); a("v_add_u32 v7, 1024, v6")
    a("s_mov_b32 s64, 2048"); a("s_mov_b32 s86, 0x2000")

def setup_w_frag(a, woff):
    a("v_lshlrev_b32 v16, 4, v0")
    a(f"v_add_u32 v4, {woff}, v16"); a("v_add_u32 v5, 1024, v4")
    a("s_lshl_b32 s74, s73, 13"); a("s_add_u32 s74, s74, 65536"); a("v_add_u32 v27, s74, v16")
    a("s_mov_b32 s65, 2048"); a("s_mov_b32 s87, 0x2000")

def lane_chunk(a, dst, tmp):
    a(f"v_bfe_u32 v{dst}, v0, 4, 1"); a(f"v_lshlrev_b32 v{dst}, 1, v{dst}"); a(f"v_lshrrev_b32 v{tmp}, 5, v0"); a(f"v_add_u32 v{dst}, v{dst}, v{tmp}")

def pack_swap(a, t, b):
    for i in range(4): a(f"v_cvt_pk_bf16_f32 v{t+i}, v{b+2*i}, v{b+2*i+1}")
    a("s_nop 0")
    a(f"v_permlane16_swap_b32 v{t}, v{t+2}"); a(f"v_permlane16_swap_b32 v{t+1}, v{t+3}")

def epi_out_store(a, base, MT=4, flag=""):
    n = 0
    for tt in range(MT):
        for jj in range(4):
            t = 24 + (n & 1)*4; n += 1
            pack_swap(a, t, acc(tt, 2*jj))
            a(f"global_store_dwordx4 v{20+tt}, {R('v', t)}, {base} offset:{jj*64} {flag}")
```

```python
from asmgen import *

WS_RING  = 1 << 20
WS_PROBE = 0x1f0000
WS_FLAG  = 0x1e0000
WS_MEMS  = 2 << 20
WS_KMVM  = 4 << 20
WS_KX    = 20 << 20
WS_VX    = 52 << 20
WS_WOT   = 126 << 20
WOT_CG = 1 << 19
L_PART = 0
L_P    = 24576
L_ZERO = 26624
L_SEL  = 28672
L_PARW = 7*16384
L_KX   = 131072
L_VX   = 147456
SPIN_MAX = 400000
NSTEP = 64
DBG_VOTE, DBG_CLR, DBG_PROG = 40, 44, 192
PAR0 = dict(KFAR=1, VFAR=1, RDEL=9, MDEL=8, DM=1, MGAP=3, PRIO=1, XD=2, XGAP=2, VDEL=7, PPRIO=2, XDEL=6, DR=2, RGAP=5, MACK=0)
PAR = dict(PAR0)
OPT = set()

def guard(a, loop, fail):
    a("s_add_u32 s24, s24, 1"); a(f"s_cmp_lt_u32 s24, {SPIN_MAX}"); a(f"s_cbranch_scc1 {loop}"); a(f"s_branch {fail}")

def pstamp(a, prof, k):
    if prof == 3:
        a("s_memrealtime s[56:57]"); a("s_waitcnt lgkmcnt(0)"); a(f"s_mov_b32 s{k}, s56")

def stamp(a, prof, k, at=None):
    if not prof: return
    if prof >= 3 and (k != 7 or prof > 3): return
    if prof == 2:
        lab = a.newlabel("st")
        a("s_cmp_lg_u32 s22, " + ("31" if (k == 7 or at) else "30")); a(f"s_cbranch_scc1 {lab}")
        a("s_memrealtime s[56:57]"); a("s_waitcnt lgkmcnt(0)"); a("s_and_b32 s56, s56, 0xffffff"); a("s_lshl_b32 s57, s24, 24"); a(f"s_or_b32 s{60+k}, s56, s57")
        a.label(lab)
        return
    a("s_memtime s[56:57]"); a("s_waitcnt lgkmcnt(0)")
    a("s_sub_u32 s58, s56, s59"); a(f"s_add_u32 s{60+k}, s{60+k}, s58"); a("s_mov_b32 s59, s56")

def fs(a, prof, k, which):
    if prof == which: a(f"s_memtime s[{66+2*k}:{67+2*k}]")

def near_bit(a, tmp, off, par, kv=False):
    flip = kv and PAR["KFAR"] != PAR["VFAR"]
    if flip: a(f"s_cmp_ge_u32 {off}, {WS_VX}"); a(f"s_addc_u32 {tmp}, {par}, {PAR['KFAR']}"); a(f"s_lshl_b32 {tmp}, {tmp}, 21"); a(f"s_xor_b32 {tmp}, {tmp}, {off}"); a(f"s_lshr_b32 {tmp}, {tmp}, 21")
    else:
        a(f"s_lshr_b32 {tmp}, {off}, 21"); a(f"s_xor_b32 {tmp}, {tmp}, {par}")
        if kv and PAR["KFAR"]: a(f"s_xor_b32 {tmp}, {tmp}, 1")
    a(f"s_and_b32 {tmp}, {tmp}, 1"); a(f"s_lshl_b32 {tmp}, {tmp}, 13")

def near(a, dst, off, par="s25", wb=16, tmp="s36", kv=False):
    near_bit(a, tmp, off, par, kv)
    a(f"s_add_u32 {tmp}, {tmp}, {off}"); a(f"s_add_u32 s{dst}, s{wb}, {tmp}"); a(f"s_addc_u32 s{dst+1}, s{wb+1}, 0")

def v_from_k(a, v, k):
    a(f"s_add_u32 s{v}, s{k}, {WS_VX - WS_KX}"); a(f"s_addc_u32 s{v+1}, s{k+1}, 0")
    if PAR["KFAR"] != PAR["VFAR"]: a(f"s_xor_b32 s{v}, s{v}, 0x2000")

def kv_tile(a, dst, seg, tmp):
    a(f"s_sub_u32 {tmp}, {seg}, 16"); a(f"s_mul_i32 {tmp}, {tmp}, 43"); a(f"s_lshr_b32 {tmp}, {tmp}, 8"); a(f"s_add_u32 {tmp}, {tmp}, 4")
    a(f"s_lshr_b32 {dst}, {seg}, 2"); a(f"s_cmp_lt_u32 {dst}, 4"); a(f"s_cselect_b32 {dst}, {dst}, {tmp}")

def tagchk(a, regs, tag, t0, t1, mf=()):
    op = "0x80" if tag else "0xfe"
    mf = list(mf)
    ops = [f"v_bitop3_b32 v{t0}, v{regs[0]}, v{regs[1]}, v{regs[2]} bitop3:{op}", f"v_bitop3_b32 v{t1}, v{regs[3]}, v{regs[4]}, v{regs[5]} bitop3:{op}"]
    rest = regs[6:]; k = 0
    while rest:
        t = (t0, t1)[k & 1]; k += 1
        ops.append(f"v_bitop3_b32 v{t}, v{t}, v{rest[0]}, v{rest[1]} bitop3:{op}"); rest = rest[2:]
    ops.append(f"v_bitop3_b32 v{t0}, v{t0}, v{t1}, 1 bitop3:" + ("0x80" if tag else "0xa8"))
    per = -(-len(ops) // max(len(mf), 1))
    for i, o in enumerate(ops):
        if mf and i % per == 0: a(mf.pop(0))
        a(o)
    for m in mf: a(m)
    a(f"v_cmp_ne_u32 vcc, {tag}, v{t0}")

def emit_rec(a, pfx, prof=False, kvwait=False):
    L = lambda n: f"{pfx}_{n}"
    FAIL = L('fail')
    a("s_load_dwordx8 s[4:11], s[0:1], 40")
    a("s_load_dwordx2 s[12:13], s[0:1], 32")
    a("s_load_dwordx2 s[14:15], s[0:1], 88")
    a("s_load_dwordx2 s[16:17], s[0:1], 96")
    a("v_lshrrev_b32 v1, 6, v0")
    a("v_and_b32 v0, 63, v0")
    a("s_lshl_b32 s20, s18, 2"); a("s_add_u32 s20, s20, s19")
    a("v_readfirstlane_b32 s21, v1")
    a("v_lshlrev_b32 v6, 4, v0")
    a("s_mov_b32 s24, 0")
    a("s_waitcnt lgkmcnt(0)")
    pstamp(a, prof, 90)
    if "diag" in OPT: pstamp(a, 3, 97)
    a("s_add_u32 s16, s16, 0x1fffff"); a("s_addc_u32 s17, s17, 0"); a("s_and_b32 s16, s16, 0xffe00000")
    a("s_lshl_b32 s36, s18, 13"); a(f"s_add_u32 s36, s36, {WS_RING}"); a("s_add_u32 s32, s16, s36"); a("s_addc_u32 s33, s17, 0")
    a("s_and_b32 s45, s20, 63"); a("s_lshl_b32 s45, s45, 7"); a("s_lshr_b32 s36, s20, 6"); a("s_lshl_b32 s36, s36, 14"); a("s_add_u32 s45, s45, s36")
    a("s_and_b32 s44, s20, 1"); a("s_lshl_b32 s44, s44, 12"); a("s_lshr_b32 s42, s20, 1"); a("s_lshl_b32 s42, s42, 14"); a("s_add_u32 s44, s44, s42")
    a("v_mov_b32 v14, v6"); a("v_add_u32 v15, 0x1000, v6")
    a("s_lshl_b32 s36, s19, 10"); a("v_add_u32 v9, s36, v6")
    a("s_lshl_b32 s36, s19, 9"); a("s_add_u32 s36, s36, 4096"); a("v_and_b32 v8, 0x1ff, v6"); a("v_add_u32 v8, s36, v8")
    a("s_cmp_eq_u32 s21, 7"); a(f"s_cbranch_scc0 {L('noclr')}")
    for i in range(4): a(f"v_mov_b32 v{68+i}, -1")
    a("v_add_u32 v16, s44, v6"); a("v_add_u32 v17, 0x2000, v16")
    for p in range(2):
        for i in range(4): a(f"global_store_dwordx4 v{16+p}, v[68:71], s[16:17] offset:{1024*i} sc1")
    a("global_store_dwordx4 v9, v[68:71], s[32:33] sc1"); a("global_store_dwordx4 v8, v[68:71], s[32:33] sc1")
    a("v_bfe_u32 v16, v0, 3, 2"); a("v_lshlrev_b32 v16, 15, v16"); a("v_lshrrev_b32 v17, 5, v0"); a("v_lshl_add_u32 v16, v17, 13, v16")
    a("v_and_b32 v17, 7, v0"); a("v_lshl_add_u32 v16, v17, 4, v16"); a(f"s_add_u32 s36, s45, {WS_MEMS}"); a("v_add_u32 v16, s36, v16")
    for i in range(16):
        a("global_store_dwordx4 v16, v[68:71], s[16:17] sc1"); a("v_add_u32 v16, 0x20000, v16")
    a("s_lshl_b32 s36, s20, 7"); a(f"s_add_u32 s36, s36, {WS_FLAG}"); a("v_and_b32 v16, 0x70, v6"); a("v_add_u32 v16, s36, v16")
    a("global_store_dwordx4 v16, v[68:71], s[16:17] sc1")
    a("s_barrier")
    a("v_mov_b32 v17, 1"); a("v_mov_b32 v16, 0")
    a("s_waitcnt vmcnt(0)")
    a("s_mov_b64 exec, 1")
    a(f"global_atomic_add v16, v17, s[14:15] offset:{DBG_CLR} sc1")
    a("s_mov_b64 exec, -1")
    a(f"s_branch {L('clrd')}")
    a.label(L('noclr'))
    a("s_barrier")
    a.label(L('clrd'))
    def xdma(base, ldsreg):
        for kt in range(2):
            a(f"s_add_u32 m0, {ldsreg}, {kt*4096}")
            a("s_nop 0")
            for jj in range(4):
                a(f"global_load_lds_dwordx4 v{14+kt}, {base} offset:{jj*1024} sc1")
    def kv_poll(tag, tile):
        a(f"s_lshl_b32 s52, {tile}, 7"); a("s_lshr_b32 s36, s18, 1"); a("s_lshl_b32 s36, s36, 2"); a("s_add_u32 s52, s52, s36"); a(f"s_add_u32 s52, s52, {WS_FLAG + 96*128}")
        a("v_mov_b32 v17, s52")
        a.label(L(tag))
        a("global_load_dword v16, v17, s[16:17] sc1"); a("global_load_dword v18, v17, s[16:17] offset:64 sc1"); a("s_waitcnt vmcnt(0)")
        a("v_or_b32 v16, v16, v18")
        a("v_cmp_ne_u32 vcc, 0, v16"); a(f"s_cbranch_vccz {L(tag + 'ok')}")
        a("s_sleep 4")
        guard(a, L(tag), FAIL)
        a.label(L(tag + 'ok'))
    def kv_bases(segreg):
        a(f"s_lshl_b32 s42, {segreg}, 5"); a("s_add_u32 s42, s42, s18"); a("s_lshl_b32 s42, s42, 14"); a(f"s_add_u32 s42, s42, {WS_KX}")
        near(a, 48, "s42", kv=True)
        v_from_k(a, 34, 48)
    a("v_lshrrev_b32 v10, 2, v0"); a("v_lshlrev_b32 v10, 13, v10"); a("v_and_b32 v11, 3, v0"); a("v_lshl_add_u32 v10, v11, 4, v10")
    a("s_lshl_b32 s36, s21, 20"); a("s_lshl_b32 s42, s20, 6"); a("s_add_u32 s36, s36, s42"); a("v_add_u32 v10, s36, v10")
    a("s_lshl_b32 s43, s21, 14")
    def wdma(base, buf, nt="nt"):
        a("v_mov_b32 v11, v10")
        for i in range(8):
            a(f"s_add_u32 m0, s43, {buf*8192 + i*1024}")
            a("s_nop 0")
            a(f"global_load_lds_dwordx4 v11, {base} {nt}")
            if i < 7: a("v_add_u32 v11, 0x20000, v11")
    wdma("s[6:7]", 0, ""); wdma("s[8:9]", 1, "")
    a("v_lshrrev_b32 v12, 5, v0"); a("v_lshlrev_b32 v12, 4, v12")
    a("v_bfe_u32 v13, v0, 4, 1"); a("v_lshl_add_u32 v12, v13, 2, v12")
    a("v_bfe_u32 v13, v0, 2, 1"); a("v_add_u32 v12, v12, v13")
    a("v_bfe_u32 v13, v0, 3, 1"); a("v_lshl_add_u32 v12, v13, 3, v12")
    a("v_lshlrev_b32 v12, 6, v12"); a("v_and_b32 v13, 3, v0"); a("v_lshl_add_u32 v12, v13, 3, v12")
    a("v_add_u32 v12, s43, v12")
    def wread(typ, buf):
        for t in range(2):
            for ks in range(2):
                for pp in range(4):
                    hi, lo = pp >> 1, pp & 1
                    reg = ((typ*2 + t)*2 + ks)*8 + pp*2
                    off = buf*8192 + (64*ks + 32*hi + 2*lo)*64 + t*32
                    a(f"ds_read_b64_tr_b16 a[{reg}:{reg+1}], v12 offset:{off}")
                a("s_waitcnt lgkmcnt(4)")
        a("s_waitcnt lgkmcnt(0)")
    a("s_waitcnt vmcnt(8)")
    pstamp(a, prof, 91)
    wread(1, 0)
    wdma("s[4:5]", 0, "nt")
    a("s_waitcnt vmcnt(8)"); wread(2, 1)
    a("v_lshrrev_b32 v10, 3, v0"); a("v_lshlrev_b32 v10, 11, v10"); a("v_and_b32 v11, 7, v0"); a("v_lshl_add_u32 v10, v11, 4, v10")
    a("s_lshl_b32 s36, s18, 18"); a("s_lshl_b32 s42, s19, 9"); a("s_add_u32 s36, s36, s42")
    a("s_and_b32 s42, s21, 3"); a("s_lshl_b32 s42, s42, 7"); a("s_add_u32 s36, s36, s42")
    a("v_add_u32 v10, s36, v10")
    def odma(half):
        a(f"v_add_u32 v11, {half*64*2048}, v10")
        for i in range(8):
            a(f"s_add_u32 m0, s43, {half*8192 + i*1024}")
            a("s_nop 0")
            a("global_load_lds_dwordx4 v11, s[10:11] nt")
            if i < 7: a("v_add_u32 v11, 0x4000, v11")
    a("s_cmp_lt_u32 s21, 4"); a(f"s_cbranch_scc0 {L('wv_only')}")
    odma(1)
    a("s_waitcnt vmcnt(8)"); wread(0, 0)
    odma(0)
    a("v_lshrrev_b32 v12, 2, v0")
    a("v_lshlrev_b32 v12, 7, v12"); a("v_and_b32 v13, 3, v0"); a("v_lshl_add_u32 v12, v13, 4, v12"); a("v_add_u32 v12, s43, v12")
    a("s_waitcnt vmcnt(0)")
    def wo_reg(ct, jj):
        return f"v[{96+(ct*4+jj)*4}:{96+(ct*4+jj)*4+3}]"
    for ct in range(4):
        for jj in range(4):
            for lo in range(2):
                base = 96 + (ct*4 + jj)*4 + lo*2
                off = (32*jj + 16*lo)*128 + (ct >> 1)*64 + (ct & 1)*8
                a(f"ds_read_b64_tr_b16 v[{base}:{base+1}], v12 offset:{off}")
        a("s_waitcnt lgkmcnt(0)")
    a(f"s_branch {L('wdone')}")
    a.label(L('wv_only'))
    a("s_waitcnt vmcnt(0)"); wread(0, 0)
    a.label(L('wdone'))
    pstamp(a, prof, 89)

    a("s_cmp_eq_u32 s21, 7"); a(f"s_cbranch_scc0 {L('sync1')}")
    a("global_load_dwordx4 v[48:51], v9, s[32:33] sc1"); a("global_load_dwordx4 v[52:55], v8, s[32:33] sc1")
    a("v_and_b32 v11, 7, v0"); a("v_lshlrev_b32 v11, 11, v11"); a("s_lshl_b32 s36, s20, 4"); a("v_add_u32 v11, s36, v11")
    a("global_load_dwordx4 v[56:59], v11, s[12:13]")
    a("v_mov_b32 v17, 0"); a("s_lshr_b32 s36, s18, 3"); a("s_lshl_b32 s36, s36, 2"); a("v_mov_b32 v18, s36")
    a.label(L('clrw'))
    a(f"global_load_dwordx2 v[20:21], v17, s[14:15] offset:{DBG_VOTE} sc1"); a("s_waitcnt vmcnt(0)")
    a("v_readfirstlane_b32 s36, v20"); a("v_readfirstlane_b32 s37, v21")
    a("s_and_b32 s42, s36, 0xffff"); a("s_add_u32 s42, s42, s37"); a("s_cmp_eq_u32 s42, 256"); a(f"s_cbranch_scc1 {L('clrok')}")
    a("s_sleep 8")
    guard(a, L('clrw'), FAIL)
    a.label(L('clrok'))
    a("global_load_dword v21, v18, s[14:15] sc1")
    a("s_lshr_b32 s36, s36, 16"); a("s_cmp_gt_u32 s36, 64"); a("s_cselect_b32 s25, 1, 0")
    a("v_mov_b32 v20, s25"); a(f"v_mov_b32 v17, {L_PARW}")
    a(f"s_mov_b32 s42, {WS_MEMS}"); near(a, 34, "s42")
    a("v_add_u32 v11, s45, v6")
    a("s_mov_b64 exec, 0xff")
    for i in range(4): a(f"v_min_u32 v{56+i}, -2, v{56+i}")
    a("global_store_dwordx4 v11, v[56:59], s[34:35] sc1")
    a("s_mov_b64 exec, -1")
    a("s_waitcnt vmcnt(1)"); a("ds_write_b64 v17, v[20:21]")
    if kvwait:
        a("s_mov_b32 s53, 0"); kv_poll('kv0', "s53")
    for sg in range(2):
        a(f"s_mov_b32 s53, {sg}"); kv_bases("s53")
        a(f"s_mov_b32 s50, {L_KX + sg*8192}"); xdma("s[48:49]", "s50")
        a(f"s_mov_b32 s50, {L_VX + sg*8192}"); xdma("s[34:35]", "s50")
    a.label(L('sync1'))

    a("s_and_b32 s36, s21, 3"); a("s_lshl_b32 s36, s36, 11"); a("s_lshr_b32 s42, s21, 2"); a("s_lshl_b32 s42, s42, 14"); a("s_add_u32 s36, s36, s42")
    a("v_add_u32 v1, s36, v6")
    a("v_and_b32 v2, 8, v0"); a("v_cmp_eq_u32 vcc, 0, v2"); a("v_mov_b32 v2, 0xeeee"); a("v_mov_b32 v3, 0x4444"); a("s_nop 1")
    a("v_cndmask_b32 v2, v2, v3, vcc")
    a("s_mul_i32 s36, s21, 3072"); a("v_add_u32 v3, s36, v6")
    a("s_mov_b32 s22, 0"); a("s_mov_b32 s51, 1")
    a("s_waitcnt vmcnt(0) lgkmcnt(0)"); a("s_barrier")
    a(f"v_mov_b32 v24, {L_PARW}"); a("ds_read_b64 v[24:25], v24"); a("s_waitcnt lgkmcnt(0)")
    a("v_readfirstlane_b32 s25, v24"); a("v_readfirstlane_b32 s23, v25")
    a("s_and_b32 s25, s25, 1")
    if "safe" in OPT: a("s_mov_b32 s23, 0")
    a("s_lshl_b32 s36, s25, 13"); a("s_add_u32 s26, s16, s36"); a("s_addc_u32 s27, s17, 0")
    a(f"s_mov_b32 s42, {WS_MEMS}"); near(a, 28, "s42")
    a("s_lshr_b32 s38, s18, 1"); a("s_lshl_b32 s38, s38, 14"); a("s_and_b32 s36, s18, 1"); a("s_lshl_b32 s36, s36, 12"); a("s_add_u32 s38, s38, s36"); a(f"s_add_u32 s38, s38, {WS_KMVM}")
    near(a, 30, "s38")
    if "diag" in OPT: pstamp(a, 3, 98)
    if prof:
        for k in range(8): a(f"s_mov_b32 s{60+k}, 0")
        a("s_memtime s[56:57]"); a("s_waitcnt lgkmcnt(0)"); a("s_mov_b32 s59, s56")
        pstamp(a, prof, 60)
    a("s_cmp_lt_u32 s21, 4"); a(f"s_cbranch_scc1 {L('setup_vo')}")
    a("s_cmp_eq_u32 s21, 6"); a(f"s_cbranch_scc1 {L('setup_sm')}")

    def head_word(val):
        a(f"v_mov_b32 v95, {val}")
        a("s_lshl_b32 s36, s18, 7"); a("s_lshl_b32 s42, s19, 2"); a("s_add_u32 s36, s36, s42"); a(f"s_add_u32 s36, s36, {WS_FLAG + 8192}")
        a("v_mov_b32 v94, s36")
        a("s_mov_b64 exec, 1")
        a("global_store_dword v94, v95, s[16:17] sc1")
        a("s_mov_b64 exec, -1")
    def zero_acc():
        for i in range(24): a(f"v_mov_b32 v{24+i}, 0")
    def pair(p): return [(2*p, 0), (2*p+1, 0), (2*p, 1), (2*p+1, 1)]
    def sm(tt, ks, mb):
        dd = 24 + tt*4; b = (tt*2 + ks)*8
        a(f"v_smfmac_f32_16x16x64_bf16 v[{dd}:{dd+3}], v[{mb+4*ks}:{mb+3+4*ks}], a[{b}:{b+7}], v2")
    def cv(p, i): a(f"v_cvt_pk_bf16_f32 v{24+8*p+i}, v{24+8*p+2*i}, v{25+8*p+2*i}")
    def mload(b):
        a(f"global_load_dwordx4 v[{b}:{b+3}], v1, s[28:29] sc1")
        a(f"global_load_dwordx4 v[{b+4}:{b+7}], v1, s[28:29] offset:1024 sc1")
    def mchk(b):
        a(f"v_max3_u32 v0, v{b}, v{b+1}, v{b+2}"); a(f"v_max3_u32 v7, v{b+3}, v{b+4}, v{b+5}"); a(f"v_max3_u32 v0, v0, v{b+6}, v{b+7}"); a("v_max_u32 v0, v0, v7")
        a("v_cmp_eq_u32 vcc, -1, v0")
    def p1_mm(mb):
        for t, k in pair(0): sm(t, k, mb)
        for t, k in pair(1): sm(t, k, mb)
        a("s_nop 3")
        for i, (t, k) in enumerate(pair(2)):
            cv(0, i)
            if i == 3: a("ds_write_b128 v3, v[24:27]")
            sm(t, k, mb)
    DM = PAR["DM"]

    def p1(name):
        if PAR["MDEL"]: a(f"s_sleep {PAR['MDEL']}")
        if DM == 2:
            mload(16)
            if PAR["MGAP"]: a(f"s_sleep {PAR['MGAP']}")
        a.label(L(name))
        mload(48 if DM == 2 else 16)
        a(f"s_waitcnt vmcnt({2*(DM-1)})")
        fs(a, prof, 0, 5)
        mchk(16)
        a(f"s_cbranch_vccnz {L(name + '_retry')}")
        stamp(a, prof, 0)
        fs(a, prof, 1, 5)
        p1_mm(16)
        a.label(L(name + '_j'))
        fs(a, prof, 3, 5)
        for i in range(4): cv(1, i)
        a("ds_write_b128 v3, v[32:35] offset:1024")
        fs(a, prof, 4, 5)
        a("s_nop 2")
        for i in range(4): cv(2, i)
        a("ds_write_b128 v3, v[40:43] offset:2048")
        fs(a, prof, 5, 5)
        a("s_waitcnt vmcnt(0) lgkmcnt(0)")
        fs(a, prof, 6, 5)
        a("s_barrier")
        fs(a, prof, 7, 5)
        if prof == 5: a("s_waitcnt lgkmcnt(0)")
        stamp(a, prof, 1)
    def p1_retry(name):
        a.label(L(name + '_retry'))
        if DM == 2:
            mload(16)
            a("s_waitcnt vmcnt(2)")
            mchk(48)
            a(f"s_cbranch_vccnz {L(name + '_g')}")
            stamp(a, prof, 0)
            p1_mm(48)
            a(f"s_branch {L(name + '_j')}")
            a.label(L(name + '_g'))
        guard(a, L(name), FAIL)

    def step_adv():
        zero_acc()
        a("s_add_u32 s22, s22, 1")
        a("s_add_u32 s28, s28, 0x8000"); a("s_addc_u32 s29, s29, 0")
        a("s_add_u32 s38, s38, 0x40000"); near(a, 30, "s38")
    def step_end():
        step_adv()
        a("s_waitcnt vmcnt(0) lgkmcnt(0)")
        a("s_barrier")
        stamp(a, prof, 7)

    a("s_sub_u32 s37, s21, 4"); a("s_min_u32 s37, s37, 2")
    a("s_lshl_b32 s36, s37, 10"); a("v_add_u32 v4, s36, v6")
    a("v_and_b32 v48, 1, v0"); a("v_lshlrev_b32 v48, 4, v48"); a("v_mov_b32 v49, 0x3f80"); a("v_lshlrev_b32 v48, v48, v49")
    a("v_bfe_u32 v49, v0, 3, 1"); a("v_bfe_u32 v50, v0, 1, 1"); a("v_lshl_add_u32 v49, v49, 1, v50")
    a("v_lshrrev_b32 v50, 2, v0"); a("v_xor_b32 v50, v50, v0"); a("v_and_b32 v50, 4, v50"); a("v_add_u32 v49, v49, v50")
    for q in range(4):
        a(f"v_cmp_eq_u32 vcc, {q}, v49"); a("s_nop 1"); a(f"v_cndmask_b32 v{84+q}, 0, v48, vcc")
    a("v_and_b32 v48, 7, v0"); a("v_lshlrev_b32 v48, 4, v48"); a("v_and_b32 v49, 8, v0"); a("v_lshrrev_b32 v50, 4, v0")
    a("v_add_u32 v51, v48, v49"); a("v_lshl_add_u32 v10, v50, 7, v51")
    a("s_lshl_b32 s36, s19, 9"); a("s_lshr_b32 s42, s37, 1"); a("s_lshl_b32 s42, s42, 11"); a("s_add_u32 s36, s36, s42"); a("v_add_u32 v10, s36, v10")
    a("v_lshl_add_u32 v5, v50, 8, v51"); a("s_lshl_b32 s36, s19, 10"); a("s_lshl_b32 s42, s37, 7"); a("s_add_u32 s36, s36, s42"); a("v_add_u32 v5, s36, v5")
    zero_acc()
    a(f"s_setprio {PAR['PPRIO']}")
    a("s_cmp_eq_u32 s21, 7"); a(f"s_cbranch_scc1 {L('setup_m')}")
    def reduce8():
        for w in range(8): a(f"ds_read_b128 v[{48+4*w}:{51+4*w}], v4 offset:{3072*w}")
        for w in range(8):
            a(f"s_waitcnt lgkmcnt({7-w})")
            a(f"v_mfma_f32_16x16x32_bf16 v[80:83], v[{48+4*w}:{51+4*w}], v[84:87], " + ("0" if w == 0 else "v[80:83]"))
    def pack_tag(tag, last):
        if last: a(f"s_cmp_eq_u32 s22, {NSTEP-1}")
        a("s_nop 6" if last else "s_nop 7")
        a("v_cvt_pk_bf16_f32 v88, v80, v81"); a("v_cvt_pk_bf16_f32 v89, v82, v83")
        if last: a(f"s_cbranch_scc1 {L(last)}")
        a("s_cmp_lt_u32 s23, 32")
        for i in range(2): a(f"v_or_b32 v{90+i}, 1, v{88+i}" if tag else f"v_and_b32 v{90+i}, -2, v{88+i}")
    a("v_add_u32 v11, s44, v6")
    a("v_and_b32 v15, 7, v0"); a("v_lshlrev_b32 v15, 4, v15"); a("v_bfe_u32 v48, v0, 4, 1"); a("v_lshl_add_u32 v15, v48, 3, v15"); a("v_add_u32 v15, s45, v15")
    a("v_and_b32 v48, 1, v0"); a("v_lshlrev_b32 v48, 4, v48"); a("v_mov_b32 v49, 0x3f80"); a("v_lshlrev_b32 v48, v48, v49")
    a("v_bfe_u32 v49, v0, 1, 3")
    for q in range(4):
        a(f"v_cmp_eq_u32 vcc, {q}, v49"); a("s_nop 1"); a(f"v_cndmask_b32 v{92+q}, 0, v48, vcc")
    DR = PAR["DR"]
    rsets = [96, 112, 128][:DR]
    def rload(b):
        for i in range(4): a(f"global_load_dwordx4 v[{b+4*i}:{b+3+4*i}], v11, s[26:27] offset:{1024*i} sc1")
    a.label(L('v_loop'))
    for tag in range(2):
        n = f"v{tag}"
        p1(n)
        reduce8()
        pack_tag(tag, 'last_pub' if tag == (NSTEP - 1) & 1 else None)
        a(f"s_cbranch_scc1 {L(n + '_wt')}")
        a("global_store_dwordx2 v5, v[90:91], s[32:33]")
        a.label(L(n + '_pd'))
        stamp(a, prof, 2)
        a("s_barrier")
        a("s_cmp_eq_u32 s21, 4"); a(f"s_cbranch_scc1 {L(n + '_red')}")
        if "nopers" not in OPT: a("global_store_dwordx2 v10, v[88:89], s[30:31] sc1")
        step_adv()
        a("s_waitcnt vmcnt(0)")
        a(f"s_branch {L(n + '_end')}")
        a.label(L(n + '_red'))
        step_adv()
        if PAR["RDEL"]: a(f"s_sleep {PAR['RDEL']}")
        stamp(a, prof, 5, 31)
        for d in range(DR - 1):
            rload(rsets[d])
            if PAR["RGAP"]: a(f"s_sleep {PAR['RGAP']}")
        a.label(L(n + '_rp'))
        for d in range(DR):
            rload(rsets[(d + DR - 1) % DR])
            a(f"s_waitcnt vmcnt({4*(DR-1)})")
            b = rsets[d]
            mf = [f"v_mfma_f32_16x16x32_bf16 v[64:67], v[92:95], v[{b+4*i}:{b+3+4*i}], " + ("0" if i == 0 else "v[64:67]") for i in range(4)]
            tagchk(a, list(range(b, b + 16)), tag, 73, 72, mf)
            a(f"s_cbranch_vccz {L(n + '_rok')}" if d < DR - 1 else f"s_cbranch_vccnz {L(n + '_rr')}")
        a.label(L(n + '_rok'))
        a("s_nop 3")
        for i in range(4): a(f"v_add_f32_dpp v{72+i}, v{64+i}, v{64+i} row_ror:8 row_mask:0xf bank_mask:0xf")
        a("s_mov_b64 exec, 0x00ff00ff")
        a("v_cvt_pk_bf16_f32 v76, v72, v73"); a("v_cvt_pk_bf16_f32 v77, v74, v75")
        a("v_min_u32 v76, -2, v76"); a("v_min_u32 v77, -2, v77")
        a("global_store_dwordx2 v15, v[76:77], s[28:29] sc1")
        a("s_mov_b64 exec, -1")
        stamp(a, prof, 6, 31)
        if PAR["MACK"]: a("s_waitcnt vmcnt(0)")
        a.label(L(n + '_end'))
        a("s_barrier")
        stamp(a, prof, 7)
    a(f"s_branch {L('v_loop')}")
    for tag in range(2):
        n = f"v{tag}"
        p1_retry(n)
        a.label(L(n + '_wt')); a("global_store_dwordx2 v5, v[90:91], s[32:33] sc1"); a(f"s_branch {L(n + '_pd')}")
        a.label(L(n + '_rr')); guard(a, L(n + '_rp'), FAIL)

    a.label(L('setup_m'))
    a("v_lshrrev_b32 v5, 5, v0"); a("v_lshl_add_u32 v5, v5, 8, v48"); a("v_bfe_u32 v50, v0, 3, 2"); a("v_lshl_add_u32 v5, v50, 2, v5")
    a("s_lshl_b32 s36, s19, 9"); a("s_add_u32 s36, s36, 4096"); a("v_add_u32 v5, s36, v5")
    a("v_mov_b32 v93, 0")
    def progress(tagname):
        a("s_cmp_eq_u32 s20, 0"); a(f"s_cbranch_scc0 {L(tagname)}")
        a("v_mov_b32 v92, s22")
        a("s_mov_b64 exec, 1")
        a(f"global_store_dword v93, v92, s[14:15] offset:{DBG_PROG} sc1")
        a("s_mov_b64 exec, -1")
        a.label(L(tagname))
    a.label(L('m_loop'))
    for tag in range(2):
        n = f"m{tag}"
        p1(n)
        reduce8()
        pack_tag(tag, 'fin_m' if tag == (NSTEP - 1) & 1 else None)
        a(f"s_cbranch_scc1 {L(n + '_wt')}")
        a("global_store_dword v5, v90, s[32:33]"); a("global_store_dword v5, v91, s[32:33] offset:128")
        a.label(L(n + '_pd'))
        a("s_barrier")
        if "nopers" not in OPT: a("global_store_dwordx2 v10, v[88:89], s[30:31] sc1")
        progress(n + '_pg')
        if kvwait:
            a("s_add_u32 s53, s22, 3"); a("s_min_u32 s53, s53, 63"); kv_tile(a, "s53", "s53", "s36")
            a("s_cmp_lt_u32 s53, s51"); a(f"s_cbranch_scc1 {L(n + '_kvh')}")
            kv_poll(n + '_kv', "s53")
            a("s_add_u32 s51, s53, 1")
            a.label(L(n + '_kvh'))
        step_end()
        a(f"s_cmp_ge_u32 s22, {NSTEP - 3}"); a(f"s_cbranch_scc1 {L(n + '_hp')}")
        a.label(L(n + '_hd'))
    a(f"s_branch {L('m_loop')}")
    for tag in range(2):
        n = f"m{tag}"
        p1_retry(n)
        a.label(L(n + '_wt'))
        a("global_store_dword v5, v90, s[32:33] sc1"); a("global_store_dword v5, v91, s[32:33] offset:128 sc1"); a(f"s_branch {L(n + '_pd')}")
        a.label(L(n + '_hp'))
        a("s_sub_u32 s36, s22, 1"); head_word("s36"); a(f"s_branch {L(n + '_hd')}")
    a.label(L('fin_m'))
    progress('pg_last')
    a(f"s_branch {L('last_pub')}")

    a.label(L('setup_sm'))
    a(f"v_add_u32 v14, {L_KX}, v6")
    a("v_and_b32 v16, 7, v0"); a("v_lshrrev_b32 v17, 4, v0"); a("v_lshl_add_u32 v9, v17, 3, v16"); a("v_lshlrev_b32 v9, 4, v9"); a("v_and_b32 v18, 8, v0"); a("v_add_u32 v9, v9, v18")
    a("v_and_b32 v17, 1, v17"); a("v_lshl_add_u32 v10, v17, 3, v16"); a("v_lshlrev_b32 v10, 4, v10")
    a("v_lshrrev_b32 v17, 5, v0"); a("v_lshl_add_u32 v10, v17, 2, v10"); a("v_lshrrev_b32 v18, 2, v18"); a("v_add_u32 v10, v10, v18")
    a("s_mov_b32 s46, 0x3e0293ee")
    for i in range(4): a(f"v_mov_b32 v{84+i}, 0")
    a(f"ds_write_b128 v6, v[84:87] offset:{L_ZERO}"); a(f"ds_write_b128 v6, v[84:87] offset:{L_ZERO + 1024}")
    def k_load():
        for i in range(8): a(f"ds_read_b128 v[{96+4*i}:{99+4*i}], v14 offset:{1024*i}")
        a("v_xor_b32 v14, 0x2000, v14")
    k_load()
    zero_acc()
    a("s_setprio 2")
    def xload(b):
        for jj in range(4): a(f"global_load_dwordx4 v[{b+4*jj}:{b+3+4*jj}], v6, s[32:33] offset:{1024*jj} sc1")
    def s_mfma(b, t, jj):
        X = f"v[{b+4*jj}:{b+3+4*jj}]"
        d = 64 + 4*t
        A = X if t == 2 else f"v[{96+(t*4+jj)*4}:{99+(t*4+jj)*4}]"
        return f"v_mfma_f32_16x16x32_bf16 v[{d}:{d+3}], {A}, {X}, " + (f"v[{d}:{d+3}]" if jj else "0")
    def s_head(b, tag):
        tagchk(a, list(range(b, b + 16)), tag, 15, 16, [s_mfma(b, 2, jj) for jj in range(3)])
    def s_rest(b):
        a(s_mfma(b, 2, 3))
        for jj in range(4): a(s_mfma(b, 1, jj))
        for jj in range(4): a(s_mfma(b, 0, jj))
    XD = PAR["XD"]
    a.label(L('s_loop'))
    for tag in range(2):
        n = f"s{tag}"
        p1(n)
        if tag == (NSTEP - 1) & 1:
            a(f"s_cmp_eq_u32 s22, {NSTEP-1}"); a(f"s_cbranch_scc1 {L('fin')}")
        if PAR["XDEL"]: a(f"s_sleep {PAR['XDEL']}")
        if XD == 2:
            xload(48)
            if PAR["XGAP"]: a(f"s_sleep {PAR['XGAP']}")
        a.label(L(n + '_xp'))
        xload(128 if XD == 2 else 48)
        a(f"s_waitcnt vmcnt({4*(XD-1)})")
        fs(a, prof, 0, 4)
        s_head(48, tag)
        a(f"s_cbranch_vccnz {L(n + '_xr')}")
        stamp(a, prof, 2)
        fs(a, prof, 1, 4)
        s_rest(48)
        a.label(L(n + '_xj'))
        fs(a, prof, 2, 4)
        dpp = "row_shr:8 row_mask:0xf bank_mask:0xc"
        a(f"v_mov_b32_dpp v72, v73 {dpp}"); a(f"v_mov_b32_dpp v74, v75 {dpp}")
        a("s_nop 1")
        a("v_permlane32_swap_b32 v72, v74")
        a("s_nop 2")
        for i in range(4): a(f"v_mov_b32_dpp v{64+i}, v{68+i} {dpp}")
        a("v_max3_f32 v16, v74, v64, v65"); a("v_max3_f32 v16, v16, v66, v67")
        fs(a, prof, 3, 4)
        a("s_nop 1"); a("v_max_f32_dpp v16, v16, v16 row_ror:8 row_mask:0xf bank_mask:0xf")
        a("v_mov_b32 v17, v16"); a("s_nop 1"); a("v_permlane16_swap_b32 v16, v17"); a("v_max_f32 v16, v16, v17")
        a("v_mov_b32 v17, v16"); a("s_nop 1"); a("v_permlane32_swap_b32 v16, v17"); a("v_max_f32 v16, v16, v17")
        fs(a, prof, 4, 4)
        a("v_mul_f32 v16, s46, v16")
        for rg in (74, 64, 65, 66, 67): a(f"v_fma_f32 v{rg}, v{rg}, s46, -v16")
        a("v_exp_f32 v74, v74"); a("v_exp_f32 v64, v64")
        a("v_cvt_pk_bf16_f32 v82, v74, v74")
        a("v_exp_f32 v65, v65")
        a(f"ds_write_b16 v10, v82 offset:{L_P + 1024}")
        a("v_exp_f32 v66, v66")
        a(f"ds_write_b16 v10, v82 offset:{L_P + 1280}")
        a("v_exp_f32 v67, v67")
        a("v_cvt_pk_bf16_f32 v80, v64, v65")
        a("v_cvt_pk_bf16_f32 v81, v66, v67")
        a(f"ds_write_b64 v9, v[80:81] offset:{L_P}")
        fs(a, prof, 5, 4)
        a("s_waitcnt lgkmcnt(0)"); fs(a, prof, 6, 4); a("s_barrier"); fs(a, prof, 7, 4)
        stamp(a, prof, 3)
        k_load()
        step_end()
    a(f"s_branch {L('s_loop')}")
    for tag in range(2):
        n = f"s{tag}"
        p1_retry(n)
        a.label(L(n + '_xr'))
        if XD == 2:
            xload(48)
            a("s_waitcnt vmcnt(4)")
            s_head(128, tag)
            a(f"s_cbranch_vccnz {L(n + '_xg')}")
            stamp(a, prof, 2)
            s_rest(128)
            a(f"s_branch {L(n + '_xj')}")
            a.label(L(n + '_xg'))
        guard(a, L(n + '_xp'), FAIL)

    a.label(L('setup_vo'))
    a("v_add_u32 v8, 0x1000, v6"); a("v_lshrrev_b32 v9, 4, v0")
    a("s_lshl_b32 s36, s19, 5"); a("s_lshl_b32 s42, s21, 3"); a("s_add_u32 s36, s36, s42")
    a("v_add_u32 v9, s36, v9"); a("v_bfe_u32 v11, v0, 3, 1"); a("v_lshl_add_u32 v9, v11, 2, v9")
    a("v_and_b32 v11, 1, v9"); a("v_lshlrev_b32 v11, 12, v11"); a("v_lshrrev_b32 v9, 1, v9"); a("v_lshl_add_u32 v9, v9, 14, v11")
    a("v_and_b32 v11, 7, v0"); a("v_lshl_add_u32 v9, v11, 4, v9"); a("s_lshl_b32 s36, s18, 7"); a("v_add_u32 v9, s36, v9")
    a("v_lshrrev_b32 v12, 4, v0"); a("v_and_b32 v13, 7, v0"); a("v_lshl_add_u32 v12, v12, 3, v13"); a("v_lshlrev_b32 v12, 4, v12"); a(f"v_add_u32 v12, {L_P}, v12"); a(f"v_mov_b32 v11, {L_ZERO}")
    a("v_and_b32 v13, 8, v0"); a("v_cmp_eq_u32 vcc, 0, v13"); a("s_nop 1")
    a("v_cndmask_b32 v13, v12, v11, vcc"); a("v_cndmask_b32 v12, v11, v12, vcc")
    a(f"v_add_u32 v14, {L_VX}, v6")
    a("s_lshr_b32 s36, s21, 1"); a(f"s_mul_i32 s54, s36, {WS_VX - WS_KX}"); a(f"s_mul_i32 s55, s36, {L_VX - L_KX}")
    a("s_and_b32 s36, s21, 1"); a("s_lshl_b32 s36, s36, 12"); a("s_add_u32 s54, s54, s36"); a("s_add_u32 s55, s55, s36"); a(f"s_add_u32 s55, s55, {L_KX}")
    a("s_lshl_b32 s36, s18, 14"); a("s_add_u32 s54, s54, s36"); a(f"s_add_u32 s54, s54, {WS_KX}")
    a("s_lshl_b32 s36, s19, 3"); a("s_lshl_b32 s42, s21, 1"); a("s_add_u32 s36, s36, s42"); a(f"s_mul_i32 s36, s36, {WOT_CG}")
    a("s_lshl_b32 s42, s18, 14"); a("s_add_u32 s36, s36, s42"); a(f"s_add_u32 s36, s36, {WS_WOT}")
    near_bit(a, "s42", "s36", "s25", True); a("s_add_u32 s36, s36, s42"); a("v_add_u32 v10, s36, v6")
    def u_load():
        for i in range(8): a(f"ds_read_b128 v[{16+4*i}:{19+4*i}], v14 offset:{1024*i}")
        a("v_xor_b32 v14, 0x2000, v14")
    def u_half(hf):
        for jj in range(4):
            for c2 in range(2):
                for kt in range(2):
                    d = 64 + (c2*2 + kt)*4
                    A = 16 + (kt*4 + jj)*4
                    a(f"v_mfma_f32_16x16x32_bf16 v[{d}:{d+3}], v[{A}:{A+3}], {wo_reg(2*hf+c2, jj)}, " + ("0" if jj == 0 else f"v[{d}:{d+3}]"))
        a("s_nop 7")
        for c2 in range(2):
            for kt in range(2):
                d = 64 + (c2*2 + kt)*4
                u = 80 + (2*hf + c2)*4 + kt*2
                a(f"v_cvt_pk_bf16_f32 v{u}, v{d}, v{d+1}"); a(f"v_cvt_pk_bf16_f32 v{u+1}, v{d+2}, v{d+3}")
    def vo_prep(tag, ahead):
        for i in range(4): a(f"v_mov_b32 v{56+i}, 0x3f803f80")
        for i in range(4): a(f"v_mov_b32 v{60+i}, 0x3f003f00")
        for i in range(16): a(f"v_mov_b32 v{64+i}, 0")
        a(f"s_add_u32 s53, s22, {2 + ahead}"); a("s_min_u32 s53, s53, 63"); a("s_lshl_b32 s53, s53, 19"); a("s_add_u32 s53, s53, s54"); near(a, 48, "s53", kv=True)
        a(f"s_add_u32 m0, s55, {tag*8192}")
    u_load(); a("s_waitcnt lgkmcnt(0)"); u_half(0); u_half(1)
    vo_prep(0, 0)
    zero_acc()
    if PAR["PRIO"]: a("s_setprio 1")
    a.label(L('o_loop'))
    for tag in range(2):
        n = f"o{tag}"
        p1(n)
        if tag == (NSTEP - 1) & 1:
            a(f"s_cmp_eq_u32 s22, {NSTEP-1}"); a(f"s_cbranch_scc1 {L('fin')}")
        if PAR["VDEL"]: a(f"s_sleep {PAR['VDEL']}")
        a.label(L(n + '_vp'))
        for k in range(2): a(f"global_load_dwordx4 v[{48+4*k}:{51+4*k}], v8, s[32:33] offset:{1024*k} sc1")
        a("s_waitcnt vmcnt(0)")
        tagchk(a, list(range(48, 56)), tag, 17, 16)
        a(f"s_cbranch_vccnz {L(n + '_vr')}")
        for k in range(2):
            for ct in range(4):
                b = 96 + (ct*4 + 2*k)*4
                a(f"v_smfmac_f32_16x16x64_bf16 v[{64+4*ct}:{67+4*ct}], v[{48+4*k}:{51+4*k}], v[{b}:{b+7}], v2")
        a("s_nop 4")
        for ct in range(4):
            if ct == 3: a("s_nop 1")
            t = 24 + (ct & 1)*4 + (ct >> 1)*2
            a(f"v_cvt_pk_bf16_f32 v{t}, v{64+4*ct}, v{65+4*ct}"); a(f"v_cvt_pk_bf16_f32 v{t+1}, v{66+4*ct}, v{67+4*ct}")
        if "nodma" not in OPT:
            for jj in range(4): a(f"global_load_lds_dwordx4 v6, s[48:49] offset:{jj*1024} sc1")
        a("s_cmp_lt_u32 s22, 16"); a(f"s_cbranch_scc1 {L(n + '_dump')}")
        a.label(L(n + '_dd'))
        stamp(a, prof, 3)
        a("s_barrier")
        a("ds_read_b64 v[36:37], v12 offset:1024"); a("ds_read_b64 v[38:39], v13 offset:1024")
        a("ds_read_b128 v[32:35], v12"); a("ds_read_b128 v[48:51], v13")
        a("s_waitcnt lgkmcnt(2)")
        stamp(a, prof, 4)
        a("v_mfma_f32_16x16x32_bf16 v[40:43], v[60:63], v[36:39], 0")
        a("v_mfma_f32_16x16x32_bf16 v[64:67], v[24:27], v[36:39], 0")
        a("s_waitcnt lgkmcnt(0)")
        a("v_or_b32 v44, v32, v48"); a("v_or_b32 v45, v33, v49")
        a("v_or_b32 v46, v34, v50"); a("v_or_b32 v47, v35, v51")
        a("v_mfma_f32_16x16x32_bf16 v[68:71], v[28:31], v[36:39], 0")
        a("v_mfma_f32_16x16x32_bf16 v[64:67], v[80:83], v[32:35], v[64:67]")
        a("v_mfma_f32_16x16x32_bf16 v[40:43], v[56:59], v[44:47], v[40:43]")
        a("v_mfma_f32_16x16x32_bf16 v[68:71], v[84:87], v[32:35], v[68:71]")
        a("v_mfma_f32_16x16x32_bf16 v[64:67], v[88:91], v[48:51], v[64:67]")
        a("v_mfma_f32_16x16x32_bf16 v[68:71], v[92:95], v[48:51], v[68:71]")
        a("s_nop 4")
        a("v_rcp_f32 v40, v40")
        a("s_nop 0")
        for i in range(8): a(f"v_mul_f32 v{64+i}, v{64+i}, v40")
        for i in range(4): a(f"v_cvt_pk_bf16_f32 v{48+i}, v{64+2*i}, v{65+2*i}")
        for i in range(4): a(f"v_or_b32 v{48+i}, 1, v{48+i}" if tag else f"v_and_b32 v{48+i}, -2, v{48+i}")
        a("global_store_dwordx4 v9, v[48:51], s[26:27] sc1")
        stamp(a, prof, 5)
        u_load(); a("s_waitcnt lgkmcnt(0)"); u_half(0)
        u_half(1)
        vo_prep(tag ^ 1, 1)
        step_end()
    a(f"s_branch {L('o_loop')}")
    for tag in range(2):
        n = f"o{tag}"
        p1_retry(n)
        a.label(L(n + '_vr')); guard(a, L(n + '_vp'), FAIL)
        a.label(L(n + '_dump'))
        a("s_lshr_b32 s36, s22, 3"); a(f"s_mul_i32 s36, s36, {WOT_CG}"); a("s_and_b32 s42, s22, 3"); a("s_lshl_b32 s42, s42, 11"); a("s_add_u32 s36, s36, s42")
        a("s_and_b32 s42, s22, 4"); a("s_lshl_b32 s42, s42, 8"); a("s_add_u32 s36, s36, s42"); a("v_add_u32 v19, s36, v10")
        a("s_lshl_b32 s42, s22, 2")
        a("s_set_gpr_idx_on s42, gpr_idx(SRC0)"); a("s_nop 0")
        for i in range(4): a(f"v_mov_b32 v{20+i}, v{96+i}")
        a("s_set_gpr_idx_off")
        a("global_store_dwordx4 v19, v[20:23], s[16:17] sc1")
        a(f"s_branch {L(n + '_dd')}")

    a.label(L('last_pub'))
    a("s_cmp_eq_u32 s21, 4"); a(f"s_cbranch_scc1 {L('fin')}")
    a("global_store_dwordx2 v10, v[88:89], s[30:31] sc1")
    a.label(L('fin'))
    a("s_waitcnt vmcnt(0)"); a("s_barrier")
    a("s_cmp_eq_u32 s21, 0"); a(f"s_cbranch_scc0 {L('end')}")
    head_word(str(NSTEP - 1))
    if "span" in OPT:
        a("s_and_b32 s98, s20, 15"); a("s_cmp_lg_u32 s98, 0"); a(f"s_cbranch_scc1 {L('end')}")
        a("s_memrealtime s[98:99]"); a("s_waitcnt lgkmcnt(0)"); a("v_mov_b32 v5, s98"); a("v_mov_b32 v2, 0")
        a("s_mov_b64 exec, 1"); a("global_atomic_umax v2, v5, s[14:15] offset:56 sc1"); a("s_mov_b64 exec, -1")
    if "diag" in OPT:
        a("s_cmp_eq_u32 s20, 0"); a(f"s_cbranch_scc0 {L('end')}")
        a("s_memrealtime s[56:57]"); a("s_waitcnt lgkmcnt(0)"); a("s_sub_u32 s70, s56, s98"); a("s_sub_u32 s71, s98, s97")
        a("s_mov_b64 exec, 1")
        a("s_mov_b32 s72, 0"); a("s_mov_b32 s73, 0"); a("s_mov_b32 s74, 0"); a("v_mov_b32 v18, 0")
        a.label(L('dg'))
        for k in range(2):
            a("s_lshl_b32 s36, s74, 21"); a(f"s_add_u32 s36, s36, {0x10000 + k*0x2000}"); a("v_mov_b32 v16, s36")
            for rep in range(2):
                a("s_memtime s[56:57]"); a("s_waitcnt lgkmcnt(0)")
                a("global_atomic_or v17, v16, v18, s[16:17] sc0 sc1"); a("s_waitcnt vmcnt(0)")
                a("s_memtime s[58:59]"); a("s_waitcnt lgkmcnt(0)")
            a(f"s_sub_u32 s{76+k}, s58, s56")
        a("s_cmp_lt_u32 s77, s76"); a("s_cselect_b32 s78, 1, 0"); a("s_mov_b32 s79, 0"); a("s_lshl_b64 s[78:79], s[78:79], s74"); a("s_or_b64 s[72:73], s[72:73], s[78:79]")
        a("s_add_u32 s74, s74, 1"); a("s_cmp_lt_u32 s74, 64"); a(f"s_cbranch_scc1 {L('dg')}")
        for k in range(4): a(f"v_mov_b32 v{20+k}, s{70+k}")
        a("global_store_dwordx4 v18, v[20:23], s[14:15] offset:48")
        a("s_mov_b64 exec, -1")
    a(f"s_branch {L('end')}")
    a.label(FAIL)
    a("v_mov_b32 v16, 0"); a("v_mov_b32 v17, 0xdead"); a("global_store_dword v16, v17, s[14:15] offset:252")
    a.label(L('end'))
    if prof:
        if prof == 3:
            a("s_memrealtime s[56:57]"); a("s_waitcnt lgkmcnt(0)"); a("s_mov_b32 s61, s56"); a("s_mov_b32 s62, s25"); a("s_mov_b32 s63, s90"); a("s_mov_b32 s64, s91"); a("s_mov_b32 s65, s89")
        if prof > 3:
            a("s_waitcnt lgkmcnt(0)")
            for k in range(8): a(f"s_sub_u32 s{60+k if k < 6 else 84+k}, s{66+2*k}, s66")
            a("s_mov_b32 s66, s90"); a("s_mov_b32 s67, s91")
        a("s_lshl_b32 s36, s20, 3"); a("s_add_u32 s36, s36, s21"); a("s_lshl_b32 s36, s36, 5"); a(f"s_add_u32 s36, s36, {200<<20}")
        a("v_mov_b32 v16, s36")
        for k in range(8): a(f"v_mov_b32 v{24+k}, s{60+k}")
        a("s_mov_b64 exec, 1")
        a("global_store_dwordx4 v16, v[24:27], s[16:17]"); a("global_store_dwordx4 v16, v[28:31], s[16:17] offset:16")
    a("s_endpgm")
```

```python
import sys, os
sys.path.insert(0, os.path.dirname(__file__))
from asmgen import *
import gemm
import rec2 as rec
from gemm import acc, R

NAME = "concat_heads__linear_attn_block__memory_aug_recurrent_mem_tr__prompt"
WS_O   = 84 << 20
WS_OA  = 116 << 20
WS_KVP = 124 << 20
OA_T = 65536
D_OVF, D_AKV, D_KV, D_AO, D_O = 32, 36, 64, 96, 128
D_PROG = rec.DBG_PROG
WSPIN = 400000
SET1 = 0xaa480000
LOG2E = 0x3fb8aa3b
EPS = 0x358637bd
SCL = 0x3e0293ee


def load_ptrs(a):
    a("s_load_dwordx16 s[4:19], s[0:1], 0"); a("s_load_dwordx2 s[20:21], s[0:1], 64")
    a("s_load_dwordx4 s[24:27], s[0:1], 80"); a("s_load_dwordx2 s[28:29], s[0:1], 96")

def signal(a, off_sgpr_or_imm, val=1):
    lab = a.newlabel("sig")
    a("s_waitcnt vmcnt(0)"); a("s_barrier")
    a("s_cmp_lg_u32 s75, 0"); a(f"s_cbranch_scc1 {lab}")
    a(f"v_mov_b32 v16, {off_sgpr_or_imm}"); a(f"v_mov_b32 v17, {val}")
    a("s_mov_b64 exec, 1")
    a("global_atomic_add v16, v17, s[26:27] sc1")
    a("s_mov_b64 exec, -1")
    a.label(lab)

def wait_cnt(a, off, target):
    lp, ok, done = a.newlabel("wl"), a.newlabel("wo"), a.newlabel("wd")
    a("s_cmp_lg_u32 s75, 0"); a(f"s_cbranch_scc1 {done}")
    a(f"v_mov_b32 v16, {off}")
    a.label(lp)
    a("global_load_dword v17, v16, s[26:27] sc1"); a("s_waitcnt vmcnt(0)")
    a(f"v_cmp_ne_u32 vcc, {target}, v17"); a(f"s_cbranch_vccz {ok}")
    a("s_sleep 8")
    a("s_add_u32 s46, s46, 1"); a(f"s_cmp_lt_u32 s46, {WSPIN}"); a(f"s_cbranch_scc1 {lp}")
    a("s_branch w_fail")
    a.label(ok)
    a("buffer_inv sc1"); a("s_waitcnt vmcnt(0)")
    a.label(done)
    a("s_barrier")

def learn_parity(a):
    lp, ok = a.newlabel("vl"), a.newlabel("vo")
    a.label(lp)
    a("s_waitcnt vmcnt(0)")
    a("v_readfirstlane_b32 s22, v18"); a("v_readfirstlane_b32 s34, v19")
    a("s_and_b32 s32, s22, 0xffff"); a("s_add_u32 s32, s32, s34"); a("s_cmp_eq_u32 s32, 256"); a(f"s_cbranch_scc1 {ok}")
    a("s_sleep 8")
    a(f"global_load_dwordx2 v[18:19], v16, s[26:27] offset:{rec.DBG_VOTE} sc1")
    a("s_add_u32 s46, s46, 1"); a(f"s_cmp_lt_u32 s46, {WSPIN}"); a(f"s_cbranch_scc1 {lp}")
    a("s_branch w_fail")
    a.label(ok)
    a("s_lshr_b32 s22, s22, 16"); a("s_cmp_gt_u32 s22, 64"); a("s_cselect_b32 s22, 1, 0")

def phi(a, regs):
    for i in range(0, len(regs), 8):
        b = regs[i:i+8]
        for k, r in enumerate(b): a(f"v_mul_f32 v{16+k}, s40, v{r}")
        for k, r in enumerate(b): a(f"v_min_f32 v{16+k}, 0, v{16+k}")
        for k, r in enumerate(b): a(f"v_exp_f32 v{16+k}, v{16+k}")
        for k, r in enumerate(b): a(f"v_max_f32 v{r}, 0, v{r}")
        for k, r in enumerate(b): a(f"v_add_f32 v{r}, v{r}, v{16+k}")
        for k, r in enumerate(b): a(f"v_add_f32 v{r}, s41, v{r}")

def pack_frags(a):
    for tt in range(4):
        for jj in range(4):
            s = acc(tt, 2*jj); d = 32 + (tt*4 + jj)*4
            for i in range(4): a(f"v_cvt_pk_bf16_f32 v{d+i}, v{s+2*i}, v{s+2*i+1}")
def frag(tt, jj): return R('v', 32 + (tt*4 + jj)*4)

PROF = False
def wstamp(a, k):
    if not PROF: return
    lab = a.newlabel("ws")
    a("s_cmp_lg_u32 s75, 0"); a(f"s_cbranch_scc1 {lab}")
    a("s_memrealtime s[56:57]"); a("s_waitcnt lgkmcnt(0)")
    a("s_lshl_b32 s58, s44, 5"); a("s_add_u32 s58, s58, s45"); a("s_lshl_b32 s58, s58, 6"); a("s_lshl_b32 s57, s59, 2"); a("s_add_u32 s58, s58, s57"); a(f"s_add_u32 s58, s58, {201 << 20}")
    a("v_mov_b32 v16, s58"); a("v_mov_b32 v17, s56"); a("global_store_dword v16, v17, s[28:29]")
    a("s_memtime s[56:57]"); a("s_waitcnt lgkmcnt(0)"); a("v_mov_b32 v17, s56"); a("v_add_u32 v16, 0x100000, v16"); a("global_store_dword v16, v17, s[28:29]")
    a("s_add_u32 s59, s59, 1")
    a.label(lab)

def wside(a, dst, off, tmp):
    rec.near(a, dst, off, "s22", 28, tmp, kv=True)

def task_g1(a, MT, grp):
    gemm.setup_a_rowmajor(a, 2048, MT); gemm.setup_w(a, 8192)
    a("s_lshl_b32 s32, s31, 15"); a("s_add_u32 s80, s10, s32"); a("s_addc_u32 s81, s11, 0")
    a("s_cmp_lt_u32 s30, 16"); a("s_cselect_b32 s82, s16, s18"); a("s_cselect_b32 s83, s17, s19")
    a(f"s_cselect_b32 s33, {rec.WS_KX >> 20}, {rec.WS_VX >> 20}"); a("s_lshl_b32 s33, s33, 20")
    a("s_and_b32 s35, s30, 15"); a("s_lshl_b32 s32, s35, 9"); a("s_add_u32 s82, s82, s32"); a("s_addc_u32 s83, s83, 0")
    a("s_mov_b32 s66, 7")
    gemm.call(a, "core_T" + ("" if MT == 4 else str(MT)))
    if grp == 0: learn_parity(a)
    wstamp(a, 0)
    a("s_lshl_b32 s34, s35, 1"); a("s_add_u32 s34, s34, s73"); a("s_lshl_b32 s34, s34, 14"); a("s_add_u32 s33, s33, s34")
    a(f"s_mul_i32 s36, s72, {MT}"); a("s_add_u32 s36, s36, s31")
    a("v_lshlrev_b32 v19, 4, v0")
    for tt in range(MT):
        a(f"s_add_u32 s32, s36, {tt}"); a("s_and_b32 s34, s32, 1"); a("s_lshl_b32 s34, s34, 12"); a("s_lshr_b32 s32, s32, 1"); a("s_lshl_b32 s32, s32, 19")
        a("s_add_u32 s32, s32, s34"); a("s_add_u32 s32, s32, s33")
        rec.near_bit(a, "s34", "s32", "s22", True); a("s_add_u32 s32, s32, s34")
        a(f"v_add_u32 v{20+tt}, s32, v19")
    gemm.epi_frag_store(a, "s[28:29]", "sc1", MT)
    a("s_lshr_b32 s88, s45, 3"); a("s_lshl_b32 s88, s88, 7"); a("s_lshl_b32 s32, s30, 2"); a("s_add_u32 s88, s88, s32"); a(f"s_add_u32 s88, s88, {rec.WS_FLAG + (96 + 4*grp)*128}")
    if grp == 0:
        lab = a.newlabel("sig")
        a("s_waitcnt vmcnt(0)"); a("s_barrier")
        a("s_cmp_lg_u32 s75, 0"); a(f"s_cbranch_scc1 {lab}")
        a("v_mov_b32 v16, s88"); a("v_mov_b32 v17, 0")
        a("s_mov_b64 exec, 1"); a("global_store_dword v16, v17, s[28:29] sc1"); a("s_mov_b64 exec, -1")
        a.label(lab)
        a("s_mul_i32 s32, s96, 3072"); a(f"s_add_u32 s32, s32, {1 << 20}"); a("v_lshl_add_u32 v20, v0, 4, s32")
        for i in range(3): a(f"global_load_dwordx4 a[92:95], v20, s[10:11] offset:{i*1024}")
    else:
        a("s_mov_b32 s89, 1")

def task_g4kv(a):
    def colmap(a, v):
        a(f"v_bfe_u32 v18, v{v}, 3, 1"); a("v_lshlrev_b32 v18, 11, v18")
        a(f"v_lshrrev_b32 v19, 4, v{v}"); a("v_lshl_add_u32 v18, v19, 7, v18")
        a(f"v_and_b32 v{v}, 7, v{v}"); a(f"v_lshl_add_u32 v{v}, v{v}, 4, v18")
    gemm.setup_a_rowmajor(a, 2048); gemm.setup_w(a, 6144, colmap)
    a("s_lshl_b32 s32, s31, 19"); a("s_add_u32 s80, s4, s32"); a("s_addc_u32 s81, s5, 0")
    a("s_lshl_b32 s32, s30, 8"); a("s_add_u32 s32, s32, 2048"); a("s_add_u32 s82, s6, s32"); a("s_addc_u32 s83, s7, 0")
    a("s_mov_b32 s66, 7")
    gemm.call(a, "core_N")
    wstamp(a, 0)
    a(f"s_mov_b32 s40, {LOG2E}"); a(f"s_mov_b32 s41, {EPS}")
    phi(a, [acc(tt, 0) + i for tt in range(4) for i in range(16)])
    for tp in range(2):
        for ft in range(8):
            x = acc(2*tp, ft); y = acc(2*tp+1, ft)
            a(f"v_cvt_pk_bf16_f32 v{x}, v{x}, v{x+1}"); a(f"v_cvt_pk_bf16_f32 v{x+1}, v{x+2}, v{x+3}")
            a(f"v_cvt_pk_bf16_f32 v{x+2}, v{y}, v{y+1}"); a(f"v_cvt_pk_bf16_f32 v{x+3}, v{y+2}, v{y+3}")
    for i in range(4): a(f"v_mov_b32 v{16+i}, 0x3f803f80")
    a("v_lshlrev_b32 v20, 4, v0"); a("s_mul_i32 s32, s73, 49152"); a("s_lshl_b32 s33, s72, 10"); a("s_add_u32 s32, s32, s33"); a("v_add_u32 v21, s32, v20")
    outb = lambda hd, et, dt: (64 if hd == 0 else 128) + (et*2 + dt)*4
    for tp in range(2):
        for hd in range(2):
            for et in range(3):
                for dt in range(2):
                    D = R('v', outb(hd, et, dt)); A = R('v', acc(2*tp, 2*hd + dt)); B = R('v', acc(2*tp, 4 + 2*hd + et)) if et < 2 else "v[16:19]"
                    a(f"v_mfma_f32_16x16x32_bf16 {D}, {A}, {B}, " + ("0" if tp == 0 else D))
    a("s_barrier")
    a("s_nop 7")
    for hd in range(2):
        for f in range(6):
            a(f"ds_write_b128 v21, {R('v', outb(hd, f >> 1, f & 1))} offset:{(hd*6 + f)*4096}")
    a("s_mul_i32 s32, s75, 12288"); a("v_add_u32 v21, s32, v20")
    a("s_waitcnt lgkmcnt(0)"); a("s_barrier")
    for k in range(3):
        for m in range(4): a(f"ds_read_b128 {R('v', 32 + (k*4 + m)*4)}, v21 offset:{k*4096 + m*1024}")
    a("s_lshl_b32 s32, s31, 5"); a("s_lshl_b32 s33, s30, 2"); a("s_add_u32 s32, s32, s33"); a("s_mul_i32 s32, s32, 6144")
    a("s_mul_i32 s33, s75, 3072"); a("s_add_u32 s32, s32, s33"); a(f"s_add_u32 s32, s32, {WS_KVP}"); a("v_add_u32 v22, s32, v20")
    a("s_waitcnt lgkmcnt(0)")
    for k in range(3):
        b = 32 + k*16
        for h in range(2):
            a(f"v_pk_add_f32 v[{b+2*h}:{b+2*h+1}], v[{b+2*h}:{b+2*h+1}], v[{b+4+2*h}:{b+5+2*h}]")
            a(f"v_pk_add_f32 v[{b+8+2*h}:{b+9+2*h}], v[{b+8+2*h}:{b+9+2*h}], v[{b+12+2*h}:{b+13+2*h}]")
        for h in range(2):
            a(f"v_pk_add_f32 v[{b+2*h}:{b+2*h+1}], v[{b+2*h}:{b+2*h+1}], v[{b+8+2*h}:{b+9+2*h}]")
        a(f"global_store_dwordx4 v22, {R('v', b)}, s[28:29] offset:{k*1024} sc1")
    signal(a, D_AKV)

def task_g4q(a):
    gemm.setup_a_rowmajor(a, 2048); gemm.setup_w(a, 6144)
    a("s_lshl_b32 s32, s31, 19"); a("s_add_u32 s80, s4, s32"); a("s_addc_u32 s81, s5, 0")
    a("s_lshl_b32 s32, s30, 9"); a("s_add_u32 s82, s6, s32"); a("s_addc_u32 s83, s7, 0")
    a("s_mov_b32 s66, 7")
    gemm.call(a, "core_T")
    wstamp(a, 0)
    a(f"s_mov_b32 s40, {LOG2E}"); a(f"s_mov_b32 s41, {EPS}")
    phi(a, list(range(32, 160)))
    pack_frags(a)
    wstamp(a, 0)
    wait_cnt(a, D_AKV, 64)
    wstamp(a, 0)
    a("v_lshlrev_b32 v16, 4, v0")
    for r in range(1, 8): a(f"v_add_u32 v{16+r}, {r*196608}, v16")
    a("s_lshl_b32 s32, s30, 3"); a("s_add_u32 s32, s32, s75"); a("s_mul_i32 s32, s32, 6144"); a(f"s_add_u32 s32, s32, {WS_KVP}")
    a("s_add_u32 s34, s28, s32"); a("s_addc_u32 s35, s29, 0")
    a("s_mul_i32 s32, s75, 3072"); a("v_add_u32 v24, s32, v16")
    for et in range(3):
        for r in range(8):
            for dt in range(2):
                a(f"global_load_dwordx4 {R('v', 96 + (r*2 + dt)*4)}, v{16+r}, s[34:35] offset:{dt*1024} sc1")
        a("s_add_u32 s34, s34, 2048"); a("s_addc_u32 s35, s35, 0")
        a("s_waitcnt vmcnt(0)")
        for step in (32, 16, 8):
            for i in range(0, step, 2):
                a(f"v_pk_add_f32 v[{96+i}:{97+i}], v[{96+i}:{97+i}], v[{96+step+i}:{97+step+i}]")
        for i in range(4): a(f"v_cvt_pk_bf16_f32 v{28+i}, v{96+2*i}, v{97+2*i}")
        a(f"ds_write_b128 v24, v[28:31] offset:{et*1024}")
    a("s_mul_i32 s32, s73, 12288"); a("v_add_u32 v24, s32, v16")
    a("s_waitcnt lgkmcnt(0)"); a("s_barrier")
    for i in range(12): a(f"ds_read_b128 {R('a', i*4)}, v24 offset:{i*1024}")
    gemm.lane_chunk(a, 25, 26)
    a("v_and_b32 v26, 15, v0"); a("v_lshl_add_u32 v25, v25, 4, v26"); a("v_lshlrev_b32 v25, 4, v25")
    a("s_lshl_b32 s32, s31, 4"); a("s_lshl_b32 s33, s72, 2"); a("s_add_u32 s32, s32, s33"); a(f"s_mul_i32 s32, s32, {OA_T}")
    a("s_lshl_b32 s33, s30, 14"); a("s_add_u32 s32, s32, s33"); a("s_lshl_b32 s33, s73, 12"); a("s_add_u32 s32, s32, s33"); a(f"s_add_u32 s32, s32, {WS_OA}")
    rec.near_bit(a, "s33", "s32", "s22", True); a("s_add_u32 s32, s32, s33")
    a("v_add_u32 v20, s32, v25")
    for tt in range(1, 4): a(f"v_add_u32 v{20+tt}, {tt*OA_T}, v20")
    a("s_waitcnt lgkmcnt(0)")
    for hd in range(4):
        for tt in range(4):
            b = 96 + tt*12
            for et in (2, 0, 1):
                a(f"v_mfma_f32_16x16x32_bf16 {R('v', b + et*4)}, {R('a', (hd*3 + et)*4)}, {frag(tt, hd)}, 0")
        a("s_nop 7")
        for tt in range(4):
            b = 96 + tt*12
            a(f"v_add_f32 v{b+8}, s41, v{b+8}")
        for tt in range(4):
            b = 96 + tt*12
            a(f"v_rcp_f32 v{b+8}, v{b+8}")
        for tt in range(4):
            b = 96 + tt*12
            a(f"v_mov_b32 v{b+9}, v{b+8}")
            for i in range(0, 8, 2): a(f"v_pk_mul_f32 v[{b+i}:{b+i+1}], v[{b+i}:{b+i+1}], v[{b+8}:{b+9}]")
            t = 144 + tt*4
            gemm.pack_swap(a, t, b)
            a(f"global_store_dwordx4 v{20+tt}, {R('v', t)}, s[28:29] offset:{hd*1024} sc1")
    a("s_lshl_b32 s32, s31, 2"); a(f"s_add_u32 s32, s32, {D_AO}")
    signal(a, "s32")

def out_offsets(a, MT):
    gemm.lane_chunk(a, 25, 26)
    a("v_and_b32 v26, 15, v0"); a("v_lshlrev_b32 v26, 12, v26"); a("v_lshl_add_u32 v20, v25, 4, v26")
    a(f"s_mul_i32 s32, s72, {MT*16*4096}"); a("s_lshl_b32 s33, s73, 8"); a("s_add_u32 s32, s32, s33"); a("v_add_u32 v20, s32, v20")
    for tt in range(1, MT): a(f"v_add_u32 v{20+tt}, {tt*65536}, v20")

def task_g5(a):
    gemm.setup_a_frag(a, OA_T); gemm.setup_w(a, 2048)
    a("s_lshl_b32 s32, s31, 2"); a(f"s_add_u32 s32, s32, {D_AO}")
    wait_cnt(a, "s32", 4)
    wstamp(a, 0)
    a(f"s_mul_i32 s32, s31, {16*OA_T}"); a(f"s_add_u32 s32, s32, {WS_OA}"); wside(a, 80, "s32", "s33")
    a("s_lshl_b32 s32, s30, 9"); a("s_add_u32 s82, s8, s32"); a("s_addc_u32 s83, s9, 0")
    a("s_mov_b32 s66, 7")
    gemm.call(a, "core_T")
    wstamp(a, 0)
    out_offsets(a, 4)
    a("s_lshl_b32 s32, s31, 20"); a("s_lshl_b32 s33, s30, 9"); a("s_add_u32 s32, s32, s33"); a("s_add_u32 s34, s24, s32"); a("s_addc_u32 s35, s25, 0")
    gemm.epi_out_store(a, "s[34:35]", 4, "" if "outpl" in rec.OPT else "sc1")

def task_g3(a):
    a("s_lshl_b32 s32, s30, 3"); a("s_add_u32 s32, s32, s75"); a("s_lshl_b32 s32, s32, 19"); a(f"s_add_u32 s32, s32, {rec.WS_WOT}")
    rec.near_bit(a, "s33", "s32", "s22", True); a("s_add_u32 s32, s32, s33")
    gemm.setup_a_frag(a, 262144, 1); gemm.setup_w_frag(a, "s32")
    lp, ok, done = a.newlabel("fl"), a.newlabel("fo"), a.newlabel("fd")
    a("s_cmp_lg_u32 s75, 0"); a(f"s_cbranch_scc1 {ok}")
    a("s_lshl_b32 s32, s31, 8"); a(f"s_add_u32 s32, s32, {rec.WS_FLAG}"); a("v_lshl_add_u32 v16, v0, 2, s32"); a("v_mov_b32 v18, 0")
    a.label(lp)
    a("global_load_dword v17, v16, s[28:29] sc1"); a(f"global_load_dword v19, v18, s[26:27] offset:{D_PROG} sc1"); a("s_waitcnt vmcnt(0)")
    a("v_cmp_gt_u32 vcc, 18, v19"); a("s_nop 1"); a("v_cndmask_b32 v17, v17, v16, vcc")
    a("v_cmp_ne_u32 vcc, 0, v17"); a(f"s_cbranch_vccz {ok}")
    a("s_sleep 8")
    a("s_add_u32 s46, s46, 1"); a(f"s_cmp_lt_u32 s46, {WSPIN}"); a(f"s_cbranch_scc1 {lp}")
    a("s_branch w_fail")
    a.label(ok)
    wstamp(a, 0)
    a("s_lshl_b32 s32, s31, 20"); a(f"s_add_u32 s32, s32, {WS_O}"); wside(a, 80, "s32", "s33")
    a("s_mov_b64 s[82:83], s[28:29]")
    a("s_mov_b32 s66, 31")
    gemm.call(a, "core_F1")
    a("v_and_b32 v26, 15, v0"); a("v_lshlrev_b32 v26, 12, v26"); a("v_lshrrev_b32 v25, 4, v0"); a("v_lshl_add_u32 v20, v25, 4, v26")
    a("s_lshl_b32 s32, s72, 16"); a("s_lshl_b32 s33, s73, 8"); a("s_add_u32 s32, s32, s33"); a("v_add_u32 v20, s32, v20")
    a("s_lshl_b32 s32, s31, 18"); a("s_lshl_b32 s33, s30, 9"); a("s_add_u32 s32, s32, s33"); a("s_add_u32 s32, s32, 2048"); a("s_add_u32 s34, s24, s32"); a("s_addc_u32 s35, s25, 0")
    gemm.epi_frag_store(a, "s[34:35]", "" if "outpl" in rec.OPT else "sc1", 1, 64)

def softmax_cols(a, regs, t):
    a(f"v_max3_f32 v{t}, v{regs[0]}, v{regs[1]}, v{regs[2]}")
    rest = regs[3:]
    while len(rest) >= 2:
        a(f"v_max3_f32 v{t}, v{t}, v{rest[0]}, v{rest[1]}"); rest = rest[2:]
    if rest: a(f"v_max_f32 v{t}, v{t}, v{rest[0]}")
    for sw in ("16", "32"):
        a(f"v_mov_b32 v{t+1}, v{t}"); a("s_nop 1"); a(f"v_permlane{sw}_swap_b32 v{t}, v{t+1}"); a(f"v_max_f32 v{t}, v{t}, v{t+1}")
    a(f"v_mul_f32 v{t}, s40, v{t}")
    for r in regs: a(f"v_fma_f32 v{r}, v{r}, s40, -v{t}")
    for r in regs: a(f"v_exp_f32 v{r}, v{r}")

def task_g2a(a):
    gemm.setup_a_rowmajor(a, 2048); gemm.setup_w(a, 8192)
    a("s_lshl_b32 s32, s31, 19"); a("s_add_u32 s80, s10, s32"); a("s_addc_u32 s81, s11, 0")
    a("s_lshl_b32 s32, s30, 9"); a("s_add_u32 s82, s14, s32"); a("s_addc_u32 s83, s15, 0")
    a("s_mov_b32 s66, 7")
    gemm.call(a, "core_T")
    wstamp(a, 0)
    a("s_lshl_b32 s38, s31, 3"); a("s_lshl_b32 s33, s72, 1"); a("s_add_u32 s38, s38, s33"); a("s_mov_b32 s39, s38"); a("s_lshl_b32 s38, s38, 5")
    a("s_lshl_b32 s42, s30, 1"); a("s_add_u32 s42, s42, s73"); a("s_add_u32 s38, s38, s42")
    a("s_lshl_b32 s34, s38, 14"); a(f"s_add_u32 s34, s34, {rec.WS_KX}"); rec.near(a, 32, "s34", "s22", 28, "s35", kv=True)
    rec.v_from_k(a, 34, 32)
    a("v_lshlrev_b32 v16, 4, v0"); a("v_add_u32 v17, 0x1000, v16"); a("v_add_u32 v18, 0x80000, v16"); a("v_add_u32 v19, 0x81000, v16")
    a("s_mul_i32 s43, s75, 20480")
    kp, kok = a.newlabel("kp"), a.newlabel("ko")
    rec.kv_tile(a, "s47", "s39", "s48"); a("s_lshl_b32 s47, s47, 7"); a("s_lshl_b32 s48, s30, 2"); a("s_add_u32 s47, s47, s48"); a(f"s_add_u32 s47, s47, {rec.WS_FLAG + 96*128}")
    a("v_mov_b32 v22, s47"); a("v_mov_b32 v23, 0")
    a.label(kp)
    a("global_load_dword v26, v22, s[28:29] sc1"); a("global_load_dword v27, v22, s[28:29] offset:64 sc1")
    a(f"global_load_dword v24, v23, s[26:27] offset:{D_PROG} sc1"); a("s_waitcnt vmcnt(0)")
    a("v_or_b32 v26, v26, v27"); a("v_cmp_ne_u32 vcc, 0, v26"); a(f"s_cbranch_vccz {kok}")
    a("s_sleep 12")
    a("s_add_u32 s46, s46, 1"); a(f"s_cmp_lt_u32 s46, {WSPIN}"); a(f"s_cbranch_scc1 {kp}")
    a("s_branch w_fail")
    a.label(kok)
    def take_progress():
        a("v_readfirstlane_b32 s48, v24"); a("s_nop 0")
        a("s_max_u32 s48, s48, 1"); a("s_sub_u32 s48, s48, 1")
    take_progress()
    a("s_barrier")
    def m_wait(seg):
        lp, ok, nf = a.newlabel("ap"), a.newlabel("ao"), a.newlabel("nf")
        a.label(lp)
        a(f"s_cmp_lt_u32 {seg}, s48"); a(f"s_cbranch_scc1 {ok}")
        a("s_cmp_lt_u32 s48, 59"); a(f"s_cbranch_scc1 {nf}")
        a("s_sleep 2")
        a("global_load_dwordx4 v[24:27], v31, s[28:29] sc1"); a("s_waitcnt vmcnt(0)")
        a("v_min3_i32 v24, v24, v25, v26"); a("v_min_i32 v24, v24, v27"); a("s_nop 0"); a("v_readfirstlane_b32 s49, v24")
        a("s_add_u32 s49, s49, 1"); a("s_max_u32 s48, s48, s49")
        a("s_add_u32 s46, s46, 1"); a(f"s_cmp_lt_u32 s46, {WSPIN}"); a(f"s_cbranch_scc1 {lp}")
        a("s_branch w_fail")
        a.label(nf)
        a("s_sleep 8")
        a(f"global_load_dword v24, v23, s[26:27] offset:{D_PROG} sc1"); a("s_waitcnt vmcnt(0)")
        take_progress()
        a("s_add_u32 s46, s46, 1"); a(f"s_cmp_lt_u32 s46, {WSPIN}"); a(f"s_cbranch_scc1 {lp}")
        a("s_branch w_fail")
        a.label(ok)
    def kv_loads(sg):
        for kt in range(2):
            for jj in range(4):
                a(f"global_load_dwordx4 {R('a', sg*32 + (kt*4 + jj)*4)}, v{16 + sg*2 + kt}, s[32:33] offset:{jj*1024} sc1")
            a(f"s_add_u32 m0, s43, {sg*10240 + kt*4096}"); a("s_nop 0")
            for jj in range(4):
                a(f"global_load_lds_dwordx4 v{16 + sg*2 + kt}, s[34:35] offset:{jj*1024} sc1")
    a("s_lshl_b32 s47, s42, 7"); a(f"s_add_u32 s47, s47, {rec.WS_FLAG + 8192}"); a("v_mov_b32 v31, s47")
    a("s_max_u32 s54, s39, 3"); a("s_sub_u32 s54, s54, 3")
    m_wait("s54")
    kv_loads(0)
    pack_frags(a)
    a("s_lshr_b32 s50, s38, 1"); a("s_lshl_b32 s50, s50, 14"); a("s_and_b32 s51, s38, 1"); a("s_lshl_b32 s51, s51, 12"); a("s_add_u32 s50, s50, s51"); a(f"s_add_u32 s50, s50, {rec.WS_KMVM}")
    rec.near(a, 52, "s50", "s22", 28, "s51")
    a("v_and_b32 v28, 7, v0"); a("v_lshlrev_b32 v28, 4, v28"); a("v_lshrrev_b32 v24, 4, v0"); a("v_lshl_add_u32 v28, v24, 7, v28")
    XB = (108, 32)
    def m_loads(sg):
        for jj in range(4): a(f"global_load_dwordx4 {R('v', XB[sg] + 4*jj)}, v28, s[52:53] offset:{jj*512} sc1")
        for i in range(2): a(f"global_load_dwordx4 {R('v', XB[sg] + 16 + 4*i)}, v16, s[52:53] offset:{2048 + i*1024} sc1")
        a("s_add_u32 s52, s52, 0x40000"); a("s_addc_u32 s53, s53, 0")
    def seg_signal(seg):
        a(f"s_lshl_b32 s47, {seg}, 7"); a("s_lshl_b32 s49, s42, 2"); a("s_add_u32 s47, s47, s49"); a(f"s_add_u32 s47, s47, {rec.WS_FLAG}"); a("v_mov_b32 v29, s47")
        a("s_waitcnt vmcnt(0)")
        a("s_mov_b64 exec, 1")
        a("global_store_dword v29, v23, s[28:29] sc1")
        a("s_mov_b64 exec, -1")
    early, late = a.newlabel("e0"), a.newlabel("l0")
    a("s_cmp_lt_u32 s39, s48"); a(f"s_cbranch_scc1 {early}")
    kv_loads(1); m_wait("s39"); m_loads(0)
    a("s_waitcnt vmcnt(0)")
    a(f"s_branch {late}")
    a.label(early)
    m_loads(0); kv_loads(1)
    a.label(late)
    a("v_lshrrev_b32 v24, 4, v0"); a("v_lshlrev_b32 v24, 2, v24"); a("v_and_b32 v25, 15, v0"); a("v_mov_b32 v26, 0xff800000")
    for i in range(4):
        a(f"v_add_u32 v27, {i}, v24"); a("v_cmp_gt_u32 vcc, v27, v25"); a("s_nop 1"); a(f"v_cndmask_b32 v{96+i}, 0, v26, vcc")
    a("v_cmp_gt_u32 vcc, 32, v0"); a("s_nop 1")
    for i in range(4): a(f"v_cndmask_b32 v{100+i}, 0, v26, vcc")
    for i in range(4): a(f"v_mov_b32 v{104+i}, 0x3f803f80")
    a("v_and_b32 v24, 3, v0"); a("v_lshrrev_b32 v25, 2, v0")
    a("v_lshlrev_b32 v18, 4, v25"); a("v_lshl_add_u32 v18, v24, 8, v18"); a("v_add_u32 v18, s43, v18")
    a("v_and_b32 v25, 7, v25"); a("v_lshlrev_b32 v19, 4, v25"); a("v_lshl_add_u32 v19, v24, 7, v19"); a("v_add_u32 v19, s43, v19")
    a("v_add_u32 v20, s43, v16")
    a("v_mov_b32 v21, v16"); a("v_add_u32 v22, 0x40000, v21")
    a("s_lshl_b32 s50, s39, 19"); a("s_lshl_b32 s51, s30, 14"); a("s_add_u32 s50, s50, s51"); a("s_lshl_b32 s51, s73, 12"); a("s_add_u32 s50, s50, s51"); a(f"s_add_u32 s50, s50, {WS_O}")
    wside(a, 36, "s50", "s51")
    a(f"s_mov_b32 s40, {SCL}")
    a("s_add_u32 s54, s39, 1")
    for sg in range(2):
        lo = sg*10240
        xb = XB[sg]
        if sg == 0:
            a("s_waitcnt vmcnt(16)")
        else:
            have = a.newlabel("h1")
            a("s_cmp_eq_u32 s55, 1"); a(f"s_cbranch_scc1 {have}")
            seg_signal("s39"); m_wait("s54"); m_loads(1)
            a("s_waitcnt vmcnt(0)")
            a.label(have)
            a("s_waitcnt vmcnt(8)")
        for i in range(2): a(f"ds_write_b128 v20, {R('v', xb + 16 + 4*i)} offset:{lo + 8192 + i*1024}")
        tiles = [(132, 0, 0, "v[96:99]"), (136, 2, 0, "v[100:103]"), (140, 0, 1, "0"), (144, 1, 1, "v[96:99]"), (148, 2, 1, "v[100:103]")]
        for jj in range(4):
            for d, kt, qt, C in tiles:
                A = R('v', xb + 4*jj) if kt == 2 else R('a', sg*32 + (kt*4 + jj)*4)
                a(f"v_mfma_f32_16x16x32_bf16 {R('v', d)}, {A}, {frag(2*sg + qt, jj)}, " + (C if jj == 0 else R('v', d)))
        if sg == 0:
            no = a.newlabel("n1")
            a("s_mov_b32 s55, 0")
            a("s_cmp_lt_u32 s54, s48"); a(f"s_cbranch_scc0 {no}")
            m_loads(1); a("s_mov_b32 s55, 1")
            a.label(no)
        def vread(jj):
            b = 64 + (jj & 1)*12
            for hf in range(2):
                for kt in range(2):
                    a(f"ds_read_b64_tr_b16 {R('a', b + hf*4 + kt*2, 2)}, v18 offset:{lo + kt*4096 + jj*1024 + hf*8}")
                a(f"ds_read_b64_tr_b16 {R('a', b + 8 + hf*2, 2)}, v19 offset:{lo + 8192 + jj*512 + hf*8}")
        vread(0)
        a("s_nop 3")
        softmax_cols(a, list(range(132, 140)), 24)
        softmax_cols(a, list(range(140, 152)), 24)
        a("s_nop 0")
        a("v_cvt_pk_bf16_f32 v108, v132, v133"); a("v_cvt_pk_bf16_f32 v109, v134, v135"); a("v_mov_b32 v110, 0"); a("v_mov_b32 v111, 0")
        a("v_cvt_pk_bf16_f32 v112, v136, v137"); a("v_cvt_pk_bf16_f32 v113, v138, v139")
        for i in range(4): a(f"v_cvt_pk_bf16_f32 v{116+i}, v{140+2*i}, v{141+2*i}")
        a("v_cvt_pk_bf16_f32 v114, v148, v149"); a("v_cvt_pk_bf16_f32 v115, v150, v151")
        P0 = ["v[108:111]", "v[116:119]"]; P1 = ["v[112:113]", "v[114:115]"]
        a("s_nop 1")
        for qt in range(2): a(f"v_mfma_f32_16x16x32_bf16 {R('v', 120 + 4*qt)}, v[104:107], {P0[qt]}, 0")
        a("s_nop 5")
        for qt in range(2): a(f"v_mfma_f32_16x16x16_bf16 {R('v', 120 + 4*qt)}, v[104:105], {P1[qt]}, {R('v', 120 + 4*qt)}")
        if sg == 1:
            done = a.newlabel("d0")
            a("s_cmp_eq_u32 s55, 1"); a(f"s_cbranch_scc0 {done}")
            seg_signal("s39")
            a.label(done)
        a("s_nop 7")
        a("v_rcp_f32 v24, v120"); a("v_rcp_f32 v26, v124"); a("s_nop 0"); a("v_mov_b32 v25, v24"); a("v_mov_b32 v27, v26")
        for jj in range(4):
            b = 64 + (jj & 1)*12
            if jj < 3:
                vread(jj + 1); a("s_waitcnt lgkmcnt(6)")
            else:
                a("s_waitcnt lgkmcnt(0)")
            for qt in range(2):
                for hf in range(2):
                    a(f"v_mfma_f32_16x16x32_bf16 {R('v', 132 + (qt*2 + hf)*4)}, {R('a', b + hf*4)}, {P0[qt]}, 0")
            a("s_nop 2")
            for qt in range(2):
                for hf in range(2):
                    D = R('v', 132 + (qt*2 + hf)*4)
                    a(f"v_mfma_f32_16x16x16_bf16 {D}, {R('a', b + 8 + hf*2, 2)}, {P1[qt]}, {D}")
            a("s_nop 7")
            for qt in range(2):
                o = 132 + qt*8
                for i in range(0, 8, 2): a(f"v_pk_mul_f32 v[{o+i}:{o+i+1}], v[{o+i}:{o+i+1}], v[{24+2*qt}:{25+2*qt}]")
                for i in range(4): a(f"v_cvt_pk_bf16_f32 v{152 + 4*qt + i}, v{o+2*i}, v{o+2*i+1}")
                a(f"global_store_dwordx4 v{21+qt}, {R('v', 152 + 4*qt)}, s[36:37] offset:{jj*1024} sc1")
        if sg == 0:
            a("s_add_u32 s36, s36, 0x80000"); a("s_addc_u32 s37, s37, 0")
    seg_signal("s54")

def sreg(i): return R('a', 4*i) if i < 24 else R('v', 128 + 4*(i - 24))
def task_stream(a):
    NS = 16
    a("s_lshl_b32 s43, s75, 15")
    a("s_lshl_b32 s32, s45, 19"); a("s_lshl_b32 s33, s75, 16"); a("s_add_u32 s32, s32, s33"); a(f"s_add_u32 s32, s32, {rec.WS_WOT}")
    rec.near_bit(a, "s33", "s32", "s22", True); a("s_add_u32 s32, s32, s33")
    a("v_lshlrev_b32 v10, 4, v0"); a("v_add_u32 v2, s32, v10")
    for i in range(32):
        a(f"global_load_dwordx4 {sreg(i)}, v2, s[28:29] offset:{(i & 3)*1024} sc1")
        if i & 3 == 3: a(f"v_add_u32 v2, {0x3000 if i & 4 else 0x1000}, v2")
    a("v_add_u32 v2, s43, v10")
    for i in range(1, 4): a(f"v_add_u32 v{2+i}, {(i & 1)*4096 + (i >> 1)*16384}, v2")
    for i in range(4): a(f"v_add_u32 v{6+i}, {262144 + (i & 1)*4096 + (i >> 1)*16384}, v2")
    a("s_lshl_b32 s32, s75, 12"); a("v_add_u32 v11, s32, v10")
    a("v_lshrrev_b32 v13, 4, v0"); a("s_lshl_b32 s32, s75, 2"); a("v_add_u32 v13, s32, v13")
    a("v_and_b32 v12, 15, v13"); a("v_bfe_u32 v14, v0, 2, 2"); a("v_lshl_add_u32 v12, v14, 4, v12"); a("v_lshlrev_b32 v12, 4, v12")
    a("v_and_b32 v14, 1, v0"); a("v_lshl_add_u32 v12, v14, 3, v12"); a("v_bfe_u32 v14, v0, 1, 1"); a("v_lshl_add_u32 v12, v14, 10, v12")
    a("s_lshr_b32 s32, s75, 2"); a("s_lshl_b32 s32, s32, 11"); a("v_add_u32 v12, s32, v12")
    a("v_lshlrev_b32 v13, 12, v13"); a("v_and_b32 v14, 15, v0"); a("v_lshl_add_u32 v13, v14, 2, v13")
    a("s_lshl_b32 s33, s45, 6"); a("s_add_u32 s33, s33, 2048"); a("v_add_u32 v13, s33, v13")
    a("s_lshl_b32 s32, s45, 14"); a("s_lshl_b32 s33, s75, 10"); a("s_add_u32 s32, s32, s33"); a("v_add_u32 v10, s32, v10")
    a("s_barrier")
    wstamp(a, 0)
    def touch():
        a("s_and_b32 s32, s31, 63"); a("s_lshl_b32 s32, s32, 19"); a(f"s_add_u32 s32, s32, {WS_O}"); wside(a, 48, "s32", "s33")
        a("global_load_dwordx4 v[124:127], v10, s[48:49] sc1")
    def pick():
        a("s_ff1_i32_b64 s31, s[34:35]"); a("s_bitset0_b64 s[34:35], s31")
        a("s_and_b32 s32, s31, 63"); a("s_lshl_b32 s32, s32, 7"); a("v_add_u32 v14, s32, v96")
    def oload(k):
        tt, ks = k >> 4, k & 15
        a(f"global_load_dwordx4 {R('v', 32 + (k % NS)*4)}, v{2 + tt*4 + (ks >> 2)}, s[38:39] offset:{(ks & 3)*1024} sc1")
    def first_loads():
        a("s_mov_b64 s[38:39], s[48:49]")
        for k in range(NS): oload(k)
    def finish():
        a("s_waitcnt lgkmcnt(0)"); a("s_barrier")
        for m in range(8): a(f"ds_read_b64 v[{16+2*m}:{17+2*m}], v12 offset:{m*4096}")
        a("s_lshl_b32 s32, s30, 17"); a("s_add_u32 s40, s24, s32"); a("s_addc_u32 s41, s25, 0")
        a("v_xor_b32 v11, 0x8000, v11"); a("v_xor_b32 v12, 0x8000, v12")
        a("s_waitcnt lgkmcnt(0)")
        for step in (8, 4, 2):
            for i in range(0, step, 2):
                a(f"v_pk_add_f32 v[{16+i}:{17+i}], v[{16+i}:{17+i}], v[{16+step+i}:{17+step+i}]")
        a("v_cvt_pk_bf16_f32 v1, v16, v17")
        a("global_store_dword v13, v1, s[40:41]")
    a("v_and_b32 v96, 31, v0"); a("v_lshlrev_b32 v96, 2, v96"); a(f"v_add_u32 v96, {rec.WS_FLAG}, v96")
    pick()
    a.label("st_wait")
    a("global_load_dword v15, v14, s[28:29] sc1"); a("s_waitcnt vmcnt(0)")
    a("v_cmp_ne_u32 vcc, 0, v15"); a("s_cbranch_vccz st_rdy")
    a("s_sleep 4")
    a("s_add_u32 s46, s46, 1"); a(f"s_cmp_lt_u32 s46, {WSPIN}"); a("s_cbranch_scc1 st_wait")
    a("s_branch w_fail")
    a.label("st_rdy")
    touch()
    first_loads()
    a.label("st_item")
    if PROF:
        a("s_and_b32 s32, s31, 7"); a("s_cmp_lg_u32 s32, 1"); a("s_cbranch_scc1 st_nos")
        a("s_cmp_gt_u32 s59, 13"); a("s_cbranch_scc1 st_nos")
        wstamp(a, 0)
        a.label("st_nos")
    a("s_mov_b32 s30, s31")
    pick()
    a("global_load_dword v15, v14, s[28:29] sc1")
    touch()
    def mm(k, wait):
        tt, ks = k >> 4, k & 15
        a(f"s_waitcnt vmcnt({wait})")
        for ct in range(2):
            D = R('v', 16 + (tt*2 + ct)*4)
            a(f"v_mfma_f32_16x16x32_bf16 {D}, {sreg(ks*2 + ct)}, {R('v', 32 + (k % NS)*4)}, " + ("0" if ks == 0 else D))
    def park():
        a("s_nop 7")
        for f in range(4): a(f"ds_write_b128 v11, {R('v', 16 + f*4)} offset:{f*1024}")
    for k in range(16):
        mm(k, 17); oload(k + 16)
    a("s_waitcnt vmcnt(17)")
    a("v_cmp_ne_u32 vcc, 0, v15")
    a("s_cmp_lt_i32 s31, 0"); a("s_cbranch_scc1 st_slow")
    a("s_cbranch_vccnz st_slow")
    a("s_mov_b64 s[38:39], s[48:49]")
    for k in range(16, 32):
        mm(k, 15); oload(k - 16)
    park(); finish()
    a("s_branch st_item")
    a.label("st_slow")
    for k in range(16, 32): mm(k, 31 - k)
    park(); finish()
    a("s_cmp_lt_i32 s31, 0"); a("s_cbranch_scc0 st_wait")

def emit_mega(a, prof=False):
    kernel_begin(a, NAME + "_kernel")
    a("s_cmp_ge_u32 s2, 256"); a("s_cbranch_scc1 w_exit")
    if "span" in rec.OPT: a("s_memrealtime s[100:101]")
    load_ptrs(a)
    a("s_getreg_b32 s44, hwreg(HW_REG_XCC_ID)"); a("s_and_b32 s44, s44, 7")
    a("v_lshrrev_b32 v1, 6, v0"); a("v_mov_b32 v2, 0"); a("s_mov_b32 s46, 0")
    a("v_readfirstlane_b32 s75, v1")
    a("s_waitcnt lgkmcnt(0)")
    a("s_add_u32 s28, s28, 0x1fffff"); a("s_addc_u32 s29, s29, 0"); a("s_and_b32 s28, s28, 0xffe00000")
    a("s_cmp_eq_u32 s75, 1"); a("s_cbranch_scc0 no_probe")
    a("s_mov_b32 s47, 0")
    a("s_cmp_lt_u32 s44, 4"); a("s_cbranch_scc0 probe_done")
    a(f"s_add_u32 s30, s28, {rec.WS_PROBE}"); a("s_addc_u32 s31, s29, 0")
    a("s_lshr_b32 s32, s2, 5"); a("s_and_b32 s33, s32, 1"); a("s_lshr_b32 s32, s32, 1"); a("s_lshl_b32 s32, s32, 2"); a("s_add_u32 s32, s32, s33"); a("s_lshl_b32 s32, s32, 12")
    a("s_and_b32 s33, s2, 31"); a("s_lshl_b32 s33, s33, 7"); a("s_add_u32 s32, s32, s33")
    a("v_mov_b32 v3, s32")
    a("s_mov_b64 exec, 1")
    a("s_mov_b32 s38, -1"); a("s_mov_b32 s39, -1"); a("s_mov_b32 s40, 6")
    a.label("probe_loop")
    a("s_memtime s[34:35]"); a("s_waitcnt lgkmcnt(0)")
    a("global_store_dword v3, v2, s[30:31] sc1"); a("s_waitcnt vmcnt(0)")
    a("s_memtime s[36:37]"); a("s_waitcnt lgkmcnt(0)")
    a("s_sub_u32 s36, s36, s34"); a("s_min_u32 s36, s36, s38"); a("s_mov_b32 s38, s39"); a("s_mov_b32 s39, s36")
    a("v_xor_b32 v3, 0x2000, v3")
    a("s_sub_u32 s40, s40, 1"); a("s_cmp_lg_u32 s40, 0"); a("s_cbranch_scc1 probe_loop")
    a("s_mov_b64 exec, -1")
    a("s_cmp_lt_u32 s39, s38"); a("s_cselect_b32 s47, 1, 0")
    a.label("probe_done")
    a("v_mov_b32 v3, s47"); a("ds_write_b32 v2, v3 offset:4")
    a.label("no_probe")
    a("s_cmp_lg_u32 s75, 0"); a("s_cbranch_scc1 role_wait")
    a("s_and_b32 s32, s44, 3"); a("s_lshl_b32 s32, s32, 2"); a("s_and_b32 s33, s44, 4"); a("s_lshl_b32 s33, s33, 5"); a("s_add_u32 s32, s32, s33")
    a("v_mov_b32 v3, s32"); a("v_mov_b32 v4, 1")
    a("s_mov_b64 exec, 1")
    a("global_atomic_add v5, v3, v4, s[26:27] sc0 sc1"); a("s_waitcnt vmcnt(0)")
    a("v_readfirstlane_b32 s45, v5")
    a("s_cmp_lt_u32 s45, 32"); a("s_cbranch_scc1 role_have")
    a(f"v_mov_b32 v3, {D_OVF}")
    a("global_atomic_add v5, v3, v4, s[26:27] sc0 sc1"); a("s_waitcnt vmcnt(0)")
    a("v_readfirstlane_b32 s45, v5")
    a.label("role_poll")
    a("global_load_dwordx4 v[8:11], v2, s[26:27] sc1"); a("global_load_dwordx4 v[12:15], v2, s[26:27] offset:128 sc1"); a("s_waitcnt vmcnt(0)")
    a("s_mov_b32 s33, 0")
    for i in range(8):
        a(f"v_readfirstlane_b32 s{34+i}, v{8+i}"); a(f"s_add_u32 s33, s33, s{34+i}")
    a("s_cmp_eq_u32 s33, 256"); a("s_cbranch_scc1 role_pick")
    a("s_sleep 8"); a("s_add_u32 s46, s46, 1"); a(f"s_cmp_lt_u32 s46, {WSPIN}"); a("s_cbranch_scc1 role_poll")
    a("s_mov_b64 exec, -1"); a("s_branch w_fail")
    a.label("role_pick")
    for i in range(8):
        a(f"s_min_u32 s33, s{34+i}, 32"); a("s_add_u32 s45, s45, s33"); a(f"s_mov_b32 s44, {i}")
        if i < 7:
            a("s_cmp_lt_u32 s45, 32"); a("s_cbranch_scc1 role_have"); a("s_sub_u32 s45, s45, 32")
    a.label("role_have")
    a("s_lshl_b32 s32, s44, 5"); a("s_or_b32 s32, s32, s45"); a("v_mov_b32 v3, s32")
    a("ds_write_b32 v2, v3")
    a("s_mov_b64 exec, -1")
    a.label("role_wait")
    a("s_waitcnt lgkmcnt(0)"); a("s_barrier")
    a("ds_read_b64 v[4:5], v2"); a("s_waitcnt lgkmcnt(0)")
    a("v_readfirstlane_b32 s32, v4"); a("v_readfirstlane_b32 s47, v5")
    a("s_cmp_lg_u32 s75, 0"); a("s_cbranch_scc1 voted")
    a("s_cmp_ge_u32 s32, 128"); a("s_cbranch_scc1 voted")
    a("s_and_b32 s47, s47, 1"); a("s_lshl_b32 s47, s47, 16"); a("s_or_b32 s47, s47, 1"); a("v_mov_b32 v3, s47")
    a("s_mov_b64 exec, 1")
    a(f"global_atomic_add v2, v3, s[26:27] offset:{rec.DBG_VOTE} sc1")
    a("s_mov_b64 exec, -1")
    a.label("voted")
    a("s_barrier")
    if "span" in rec.OPT:
        a("s_and_b32 s98, s2, 0x38"); a("s_or_b32 s98, s98, s75"); a("s_cmp_lg_u32 s98, 0"); a("s_cbranch_scc1 span1")
        a("s_memrealtime s[98:99]"); a("s_waitcnt lgkmcnt(0)"); a("s_not_b32 s100, s100"); a("v_mov_b32 v4, s100"); a("v_mov_b32 v5, s98")
        a("s_mov_b64 exec, 1"); a("global_atomic_umax v2, v4, s[26:27] offset:48 sc1"); a("global_atomic_umax v2, v5, s[26:27] offset:52 sc1"); a("s_mov_b64 exec, -1")
        a.label("span1")
    a("s_and_b32 s45, s32, 31"); a("s_bfe_u32 s44, s32, 0x30005")
    a("s_cmp_ge_u32 s44, 4"); a("s_cbranch_scc1 worker")
    a("s_lshl_b32 s18, s44, 3"); a("s_lshr_b32 s19, s45, 2"); a("s_add_u32 s18, s18, s19"); a("s_and_b32 s19, s45, 3")
    rec.emit_rec(a, "rec", prof=prof, kvwait=True)
    a.label("worker")
    a("s_sub_u32 s44, s44, 4")
    a("v_and_b32 v0, 63, v0")
    gemm.setup_common(a)
    a("s_mov_b32 s88, 0"); a("s_mov_b32 s89, 0")
    a("s_mov_b32 s59, 0") if PROF else None
    wstamp(a, 0)
    a("s_lshl_b32 s96, s44, 5"); a("s_add_u32 s96, s96, s45"); a("s_lshl_b32 s96, s96, 3"); a("s_add_u32 s96, s96, s75")
    def g1(grp):
        MT, first = ((2, 0), (3, 32), (3, 80))[grp]
        a("s_lshl_b32 s30, s44, 3"); a("s_and_b32 s32, s45, 7"); a("s_add_u32 s30, s30, s32")
        a("s_lshr_b32 s31, s45, 3"); a(f"s_mul_i32 s31, s31, {4*MT}"); a(f"s_add_u32 s31, s31, {first}")
        task_g1(a, MT, grp)
        wstamp(a, 0)
    g1(0)
    a("s_mov_b32 s90, 4"); a("s_mov_b64 s[92:93], s[4:5]"); a("s_mov_b32 s91, 6"); a("s_mov_b64 s[94:95], s[6:7]")
    g1(1)
    a("s_mov_b32 s90, 8"); a("s_mov_b64 s[92:93], s[14:15]"); a("s_mov_b32 s91, 2"); a("s_mov_b64 s[94:95], s[8:9]")
    a("s_bitcmp1_b32 s44, 0"); a("s_cbranch_scc0 w_g1c")
    a("s_lshr_b32 s30, s44, 1"); a("s_lshl_b32 s30, s30, 2"); a("s_and_b32 s32, s45, 3"); a("s_add_u32 s30, s30, s32"); a("s_lshr_b32 s31, s45, 2")
    task_g4kv(a)
    wstamp(a, 0)
    a.label("w_g1c")
    g1(2)
    a("s_cmp_eq_u32 s44, 2"); a("s_cbranch_scc0 w_g2a")
    a("s_and_b32 s30, s45, 3"); a("s_lshr_b32 s31, s45, 2")
    task_g4q(a)
    wstamp(a, 0)
    task_g5(a)
    wstamp(a, 0)
    a.label("w_g2a")
    a("s_and_b32 s30, s45, 15"); a("s_lshr_b32 s31, s45, 4"); a("s_lshr_b32 s32, s44, 1"); a("s_xor_b32 s32, s32, s44"); a("s_lshl_b32 s32, s32, 1"); a("s_add_u32 s31, s31, s32")
    task_g2a(a)
    wstamp(a, 0)
    a("s_cmp_eq_u32 s44, 2"); a("s_cbranch_scc1 w_exit")
    a("s_and_b32 s31, s31, 6"); a("s_lshl_b32 s31, s31, 2"); a("s_lshr_b32 s32, s45, 2"); a("s_add_u32 s31, s31, s32"); a("s_and_b32 s30, s45, 3")
    task_g3(a)
    wstamp(a, 0)
    a("s_cmp_eq_u32 s44, 3"); a("s_cbranch_scc1 w_exit")
    a("s_mov_b32 s34, 0"); a("s_cmp_eq_u32 s44, 0"); a(f"s_mov_b32 s35, {SET1:#x}"); a(f"s_cselect_b32 s35, {0xffff0000 ^ SET1:#x}, s35")
    task_stream(a)
    wstamp(a, 0)
    if "span" in rec.OPT:
        a("s_and_b32 s98, s45, 7"); a("s_or_b32 s98, s98, s75"); a("s_cmp_lg_u32 s98, 0"); a("s_cbranch_scc1 w_exit")
        a("s_waitcnt vmcnt(0)"); a("s_memrealtime s[98:99]"); a("s_waitcnt lgkmcnt(0)"); a("v_mov_b32 v5, s98"); a("v_mov_b32 v2, 0")
        a("s_mov_b64 exec, 1"); a("global_atomic_umax v2, v5, s[26:27] offset:60 sc1")
    a("s_endpgm")
    a.label("w_fail")
    a("v_mov_b32 v16, 0"); a("v_mov_b32 v17, 0xdead"); a("global_store_dword v16, v17, s[26:27] offset:248")
    a.label("w_exit")
    a("s_endpgm")
    gemm.emit_core(a, "core_T", 'T')
    gemm.emit_core(a, "core_N", 'N')
    gemm.emit_core(a, "core_T3", 'T', MT=3)
    gemm.emit_core(a, "core_T2", 'T', MT=2)
    gemm.WFLAG = "sc1"; gemm.WFRAG = True
    gemm.emit_core(a, "core_F1", 'T', MT=1, aflag="sc1")
    gemm.WFLAG = ""; gemm.WFRAG = False

def generate(prof=False):
    global PROF
    PROF = bool(prof)
    raw = open(f"cdna_kernels/{NAME}.s.ref").read().split("\n")
    hdr = []
    for l in raw:
        if not l.startswith(";") or "Override" in l: break
        hdr.append(l)
    a = Asm()
    emit_mega(a, prof)
    s = "\n".join(hdr) + "\n"
    s += f"; @launch kernel={NAME}_kernel grid=(256,1,1) block=(512,1,1) lds=163840\n"
    s += '.amdgcn_target "amdgcn-amd-amdhsa--gfx950"\n.text\n' + a.text() + '.section .rodata,"a"\n'
    s += kernel_desc(NAME + "_kernel", vgpr=256, accum=160)
    return s

if __name__ == "__main__":
    out = sys.argv[1] if len(sys.argv) > 1 else f"cdna_kernels/{NAME}.s"
    open(out, "w").write(generate())
    print("wrote", out)
```

```python
from asmgen import *

def acc(tt, ft): return 32 + (tt*8 + ft)*4
def R(p, b, n=4): return f"{p}[{b}:{b+n-1}]"

EXP = set()
SIGNAL = True
def a_dma(pslot, MT, flag=""):
    ops = [[f"s_add_u32 m0, s76, {pslot*32768 + i*1024}", f"global_load_lds_dwordx4 v{28+i}, s[60:61] {flag}"] for i in range(MT)]
    if "noA" in EXP:
        for o in ops: o[1] = "s_nop 0"
    return ops
WFLAG = ""
def w_dma(slot):
    ops = [[f"s_add_u32 m0, s67, {65536 + slot*16384 + i*1024}", f"global_load_lds_dwordx4 v{4+i}, s[62:63] {WFLAG}"] for i in range(2)]
    if "noW" in EXP:
        for o in ops: o[1] = "s_nop 0"
    return ops
def adv(off, inc, mask, cur, base, x):
    ops = [f"s_or_b32 s{off}, s{off}, s{mask}", f"s_add_u32 s{off}, s{off}, s{inc}", f"s_andn2_b32 s{off}, s{off}, s{mask}"]
    if WFRAG: ops += [f"s_xor_b32 s{cur}, s{off}, s{x}", f"s_add_u32 s{cur}, s{base}, s{cur}"]
    else: ops += [f"s_add_u32 s{cur}, s{base}, s{off}"]
    return ops + [f"s_addc_u32 s{cur+1}, s{base+1}, 0"]
def ADVA(): return adv(84, 64, 86, 60, 80, 78)
def ADVW(): return adv(85, 65, 87, 62, 82, 79)

def a_read(buf, tt, slot, MT=4): return f"ds_read_b128 {R('a', buf*16 + tt*4)}, v{6 + (slot & 1)} offset:{(slot >> 1)*32768 + tt*2048}"
def wreg(ft, par): return 32 + ft*4 if (ft < 6 or par == 0) else 64 + (ft - 6)*4
WFRAG = False
def w_reads(ft, slot):
    if WFRAG: return [f"ds_read_b128 {R('a', wreg(ft, slot & 1))}, v27 offset:{slot*16384 + ft*1024}"]
    return [w_read(ft, 0, slot), w_read(ft, 1, slot)]
def w_read(ft, lo, slot): return f"ds_read_b64_tr_b16 {R('a', wreg(ft, slot & 1) + lo*2, 2)}, v{8+ft} offset:{slot*16384 + lo*2048}"

def touch_hook(a, name):
    for cnt, base in ((90, 92), (91, 94)):
        lp, no = f"{name}_t{cnt}", f"{name}_n{cnt}"
        a(f"s_cmp_eq_u32 s{cnt}, 0"); a(f"s_cbranch_scc1 {no}")
        a(f"s_mul_i32 s74, s96, s{cnt}"); a("s_lshl_b32 s74, s74, 10"); a("v_lshl_add_u32 v20, v0, 4, s74")
        a.label(lp)
        a(f"global_load_dwordx4 a[92:95], v20, s[{base}:{base+1}]")
        a("v_add_u32 v20, 0x400, v20")
        a(f"s_sub_u32 s{cnt}, s{cnt}, 1"); a(f"s_cmp_lg_u32 s{cnt}, 0"); a(f"s_cbranch_scc1 {lp}")
        a.label(no)

def stage(a, slot, orient, dma, wait, refill, MT=4, aflag="", hook=None):
    buf = slot & 1
    if wait is not None:
        a(f"s_waitcnt vmcnt({wait}) lgkmcnt(0)"); a("s_barrier")
    else:
        a("s_waitcnt lgkmcnt(0)")
    if hook and (MT == 3 or orient == 'N'): touch_hook(a, hook)
    if hook and MT == 2 and not WFRAG:
        a("v_mov_b32 v16, 0"); a("global_load_dwordx2 v[18:19], v16, s[26:27] offset:40 sc1")
    d = []
    if dma:
        d = (a_dma(slot >> 1, MT, aflag) if slot & 1 else []) + w_dma(slot)
    ns = (slot + 1) & 3
    early = []
    if refill:
        early = [a_read(buf ^ 1, tt, ns, MT) for tt in range(MT)] + w_reads(6, ns) + w_reads(7, ns)
    for ft in range(8):
        if MT == 1 and ft < len(d): a(d[ft][0])
        if refill and ft in (3, 5): a("s_waitcnt lgkmcnt(6)")
        for tt in range(MT):
            D = R('v', acc(tt, ft)); W = R('a', wreg(ft, buf)); X = R('a', buf*16 + tt*4)
            a(f"v_mfma_f32_16x16x32_bf16 {D}, {W}, {X}, {D}" if orient == 'T' else f"v_mfma_f32_16x16x32_bf16 {D}, {X}, {W}, {D}")
            if MT > 1 and tt == 0 and ft < len(d):
                a(d[ft][0])
            if tt == min(1, MT - 1) and ft < len(d):
                a(d[ft][1])
            if tt == 0 and ft == 6 and dma:
                for x in ADVW(): a(x)
            if tt == 0 and ft == 7 and dma and slot & 1:
                for x in ADVA(): a(x)
            if early and (MT < 4 or tt in (0, 2)):
                a(early.pop(0))
        if refill and ft < 6:
            for x in w_reads(ft, ns): a(x)
    assert not early

def emit_core(a, name, orient, MT=4, aflag=""):
    a.label(name)
    a("s_mov_b32 s84, 0"); a("s_mov_b32 s85, 0")
    if WFRAG:
        a("s_add_u32 s60, s80, s78"); a("s_addc_u32 s61, s81, 0"); a("s_add_u32 s62, s82, s79"); a("s_addc_u32 s63, s83, 0")
    else:
        a("s_mov_b64 s[60:61], s[80:81]"); a("s_mov_b64 s[62:63], s[82:83]")
    a("s_barrier")
    def issue(ops, advs):
        for m, ld in ops:
            a(m); a("s_nop 0"); a(ld)
        for x in advs: a(x)
    issue(a_dma(0, MT, aflag), ADVA()); issue(w_dma(0), ADVW()); issue(w_dma(1), ADVW())
    issue(w_dma(2), ADVW()); issue(a_dma(1, MT, aflag), ADVA()); issue(w_dma(3), ADVW())
    for tt in range(MT):
        for i in range(32): a(f"v_mov_b32 v{acc(tt, 0) + i}, 0")
    a(f"s_waitcnt vmcnt({6 + MT})"); a("s_barrier")
    if SIGNAL:
        a("s_cmp_eq_u32 s75, 0"); a("s_cselect_b32 s74, s89, 0"); a("s_mov_b32 s89, 0")
        a("s_cmp_eq_u32 s74, 0"); a(f"s_cbranch_scc1 {name}_ns")
        a("v_mov_b32 v16, s88"); a("v_mov_b32 v17, 0")
        a("s_mov_b64 exec, 1")
        a("global_store_dword v16, v17, s[28:29] sc1")
        a("s_mov_b64 exec, -1")
        a.label(name + "_ns")
    for tt in range(MT): a(a_read(0, tt, 0, MT))
    for ft in range(8):
        for x in w_reads(ft, 0): a(x)
        if ft == 3: a("s_waitcnt lgkmcnt(4)")
    a.label(name + "_loop")
    for slot in range(4): stage(a, slot, orient, True, 4 if slot & 1 else 4 + MT, True, MT, aflag)
    a("s_sub_u32 s66, s66, 1"); a("s_cmp_lg_u32 s66, 0"); a(f"s_cbranch_scc1 {name}_loop")
    stage(a, 0, orient, False, 4 + MT, True, MT)
    stage(a, 1, orient, False, 2, True, MT)
    stage(a, 2, orient, False, 0, True, MT, hook=name)
    stage(a, 3, orient, False, None, False, MT)
    a("s_nop 7")
    a("s_setpc_b64 s[68:69]")

def call(a, name):
    lab = a.newlabel("call")
    a("s_getpc_b64 s[70:71]")
    a.label(lab)
    a(f"s_add_u32 s70, s70, {name}-{lab}")
    a("s_addc_u32 s71, s71, 0") if False else a(f"s_addc_u32 s71, s71, ({name}-{lab})>>32")
    a("s_swappc_b64 s[68:69], s[70:71]")

def setup_common(a, MT=4):
    a("s_lshl_b32 s67, s75, 11")
    a("s_and_b32 s72, s75, 3"); a("s_lshr_b32 s73, s75, 2")
    a("v_lshrrev_b32 v16, 4, v0"); a("v_bfe_u32 v17, v0, 2, 2")
    a("v_lshl_add_u32 v18, v16, 3, v17"); a("v_lshlrev_b32 v18, 9, v18")
    a("v_and_b32 v19, 3, v0"); a("v_lshl_add_u32 v18, v19, 3, v18")
    a("s_lshl_b32 s74, s73, 8"); a("s_add_u32 s74, s74, 65536"); a("v_add_u32 v18, s74, v18")
    a("v_and_b32 v16, 1, v16"); a("v_lshl_add_u32 v17, v16, 2, v17"); a("v_lshlrev_b32 v17, 5, v17")
    a("v_add_u32 v8, v18, v17")
    for ft in range(1, 8): a(f"v_xor_b32 v{8+ft}, {ft*32}, v8")

def setup_a_rowmajor(a, lda, MT=4):
    a(f"s_mul_i32 s76, s75, {MT*1024}")
    a(f"s_mov_b32 s74, {lda}")
    for i in range(MT):
        a("v_lshrrev_b32 v16, 3, v0"); a(f"s_mul_i32 s64, s75, {MT*8}"); a(f"s_add_u32 s64, s64, {i*8}"); a("v_add_u32 v16, s64, v16")
        a("v_lshrrev_b32 v17, 1, v16"); a("v_xor_b32 v17, v17, v0"); a("v_and_b32 v17, 7, v17")
        a("v_mul_lo_u32 v16, v16, s74"); a(f"v_lshl_add_u32 v{28+i}, v17, 4, v16")
    a("v_and_b32 v16, 15, v0"); a("v_lshrrev_b32 v17, 1, v16"); a("v_lshrrev_b32 v18, 4, v0"); a("v_xor_b32 v17, v17, v18")
    a("v_lshlrev_b32 v16, 7, v16"); a("v_lshl_add_u32 v6, v17, 4, v16")
    a(f"s_mul_i32 s74, s72, {MT*2048}"); a("v_add_u32 v6, s74, v6"); a("v_xor_b32 v7, 64, v6")
    a("s_mov_b32 s64, 128"); a("s_mov_b32 s86, 0")

def setup_w(a, ldw, colmap=None):
    for i in range(2):
        a("v_lshrrev_b32 v16, 5, v0"); a("s_lshl_b32 s74, s75, 2"); a(f"s_add_u32 s74, s74, {2*i}"); a("v_add_u32 v16, s74, v16")
        a("v_and_b32 v17, 3, v16"); a("v_bfe_u32 v18, v16, 3, 1"); a("v_lshl_add_u32 v17, v18, 2, v17"); a("v_lshlrev_b32 v17, 1, v17")
        a("v_and_b32 v18, 31, v0"); a("v_xor_b32 v17, v17, v18")
        if colmap is None: a("v_lshlrev_b32 v17, 4, v17")
        else: colmap(a, 17)
        a(f"s_mov_b32 s74, {ldw}"); a("v_mul_lo_u32 v16, v16, s74"); a(f"v_add_u32 v{4+i}, v16, v17")
    a(f"s_mov_b32 s65, {32*ldw}"); a("s_mov_b32 s87, 0")

def epi_frag_store(a, base, flag, MT=4, step=1024):
    n = 0
    for tt in range(MT):
        for jj in range(4):
            t = 24 + (n & 1)*4; n += 1
            b = acc(tt, 2*jj)
            for i in range(4): a(f"v_cvt_pk_bf16_f32 v{t+i}, v{b+2*i}, v{b+2*i+1}")
            a(f"global_store_dwordx4 v{20+tt}, {R('v', t)}, {base} offset:{jj*step} {flag}")

def setup_a_frag(a, tstride, MT=4):
    a("v_lshlrev_b32 v16, 4, v0")
    if MT == 4:
        a(f"s_mul_i32 s74, s75, {2*tstride}"); a("s_lshl_b32 s76, s75, 12")
        a("v_add_u32 v28, s74, v16"); a("v_add_u32 v29, 1024, v28"); a(f"v_add_u32 v30, {tstride}, v28"); a("v_add_u32 v31, 1024, v30")
    elif MT == 2:
        a(f"s_mul_i32 s74, s75, {tstride}"); a("s_lshl_b32 s76, s75, 11")
        a("v_add_u32 v28, s74, v16"); a("v_add_u32 v29, 1024, v28")
    else:
        assert MT == 1
        a("s_lshr_b32 s74, s75, 1"); a(f"s_mul_i32 s74, s74, {tstride}"); a("s_and_b32 s76, s75, 1"); a("s_lshl_b32 s76, s76, 10"); a("s_add_u32 s74, s74, s76")
        a("v_add_u32 v28, s74, v16"); a("s_lshl_b32 s76, s75, 10")
    a(f"s_mul_i32 s74, s72, {MT*2048}"); a("v_add_u32 v6, s74, v16"); a("v_add_u32 v7, 1024, v6")
    a("s_mov_b32 s64, 2048"); a("s_mov_b32 s86, 0x2000")

def setup_w_frag(a, woff):
    a("v_lshlrev_b32 v16, 4, v0")
    a(f"v_add_u32 v4, {woff}, v16"); a("v_add_u32 v5, 1024, v4")
    a("s_lshl_b32 s74, s73, 13"); a("s_add_u32 s74, s74, 65536"); a("v_add_u32 v27, s74, v16")
    a("s_mov_b32 s65, 2048"); a("s_mov_b32 s87, 0x2000")

def lane_chunk(a, dst, tmp):
    a(f"v_bfe_u32 v{dst}, v0, 4, 1"); a(f"v_lshlrev_b32 v{dst}, 1, v{dst}"); a(f"v_lshrrev_b32 v{tmp}, 5, v0"); a(f"v_add_u32 v{dst}, v{dst}, v{tmp}")

def pack_swap(a, t, b):
    for i in range(4): a(f"v_cvt_pk_bf16_f32 v{t+i}, v{b+2*i}, v{b+2*i+1}")
    a("s_nop 0")
    a(f"v_permlane16_swap_b32 v{t}, v{t+2}"); a(f"v_permlane16_swap_b32 v{t+1}, v{t+3}")

def epi_out_store(a, base, MT=4, flag=""):
    n = 0
    for tt in range(MT):
        for jj in range(4):
            t = 24 + (n & 1)*4; n += 1
            pack_swap(a, t, acc(tt, 2*jj))
            a(f"global_store_dwordx4 v{20+tt}, {R('v', t)}, {base} offset:{jj*64} {flag}")
```

```python
from asmgen import *

WS_RING  = 1 << 20
WS_PROBE = 0x1f0000
WS_FLAG2 = 0x1d8000
WS_FLAG  = 0x1e0000
WS_MEMS  = 2 << 20
WS_KMVM  = 4 << 20
WS_KX    = 20 << 20
WS_VX    = 52 << 20
WS_WOT   = 126 << 20
WOT_CG = 1 << 19
L_PART = 0
L_P    = 24576
L_ZERO = 26624
L_SEL  = 28672
L_PARW = 7*16384
L_KX   = 131072
L_VX   = 147456
SPIN_MAX = 400000
NSTEP = 64
DBG_VOTE, DBG_CLR, DBG_PROG = 40, 44, 192
PAR0 = dict(KFAR=1, VFAR=1, RDEL=10, MDEL=7, DM=1, MGAP=3, PRIO=1, XD=2, XGAP=1, VDEL=10, PPRIO=2, XDEL=7, DR=2, RGAP=5, MACK=0)
PAR = dict(PAR0)
OPT = set()

def guard(a, loop, fail):
    a("s_add_u32 s24, s24, 1"); a(f"s_cmp_lt_u32 s24, {SPIN_MAX}"); a(f"s_cbranch_scc1 {loop}"); a(f"s_branch {fail}")

def pstamp(a, prof, k):
    if prof == 3:
        a("s_memrealtime s[56:57]"); a("s_waitcnt lgkmcnt(0)"); a(f"s_mov_b32 s{k}, s56")

def stamp(a, prof, k, at=None):
    if not prof: return
    if prof >= 3 and (k != 7 or prof > 3): return
    if prof == 2:
        lab = a.newlabel("st")
        a("s_cmp_lg_u32 s22, " + ("31" if (k == 7 or at) else "30")); a(f"s_cbranch_scc1 {lab}")
        a("s_memrealtime s[56:57]"); a("s_waitcnt lgkmcnt(0)"); a("s_and_b32 s56, s56, 0xffffff"); a("s_lshl_b32 s57, s24, 24"); a(f"s_or_b32 s{60+k}, s56, s57")
        a.label(lab)
        return
    a("s_memtime s[56:57]"); a("s_waitcnt lgkmcnt(0)")
    a("s_sub_u32 s58, s56, s59"); a(f"s_add_u32 s{60+k}, s{60+k}, s58"); a("s_mov_b32 s59, s56")

def fs(a, prof, k, which):
    if prof == which: a(f"s_memtime s[{66+2*k}:{67+2*k}]")

def near_bit(a, tmp, off, par, kv=False):
    flip = kv and PAR["KFAR"] != PAR["VFAR"]
    if flip: a(f"s_cmp_ge_u32 {off}, {WS_VX}"); a(f"s_addc_u32 {tmp}, {par}, {PAR['KFAR']}"); a(f"s_lshl_b32 {tmp}, {tmp}, 21"); a(f"s_xor_b32 {tmp}, {tmp}, {off}"); a(f"s_lshr_b32 {tmp}, {tmp}, 21")
    else:
        a(f"s_lshr_b32 {tmp}, {off}, 21"); a(f"s_xor_b32 {tmp}, {tmp}, {par}")
        if kv and PAR["KFAR"]: a(f"s_xor_b32 {tmp}, {tmp}, 1")
    a(f"s_and_b32 {tmp}, {tmp}, 1"); a(f"s_lshl_b32 {tmp}, {tmp}, 13")

def near(a, dst, off, par="s25", wb=16, tmp="s36", kv=False):
    near_bit(a, tmp, off, par, kv)
    a(f"s_add_u32 {tmp}, {tmp}, {off}"); a(f"s_add_u32 s{dst}, s{wb}, {tmp}"); a(f"s_addc_u32 s{dst+1}, s{wb+1}, 0")

def v_from_k(a, v, k):
    a(f"s_add_u32 s{v}, s{k}, {WS_VX - WS_KX}"); a(f"s_addc_u32 s{v+1}, s{k+1}, 0")
    if PAR["KFAR"] != PAR["VFAR"]: a(f"s_xor_b32 s{v}, s{v}, 0x2000")

def kv_tile(a, dst, seg, tmp):
    a(f"s_sub_u32 {tmp}, {seg}, 16"); a(f"s_mul_i32 {tmp}, {tmp}, 43"); a(f"s_lshr_b32 {tmp}, {tmp}, 8"); a(f"s_add_u32 {tmp}, {tmp}, 4")
    a(f"s_lshr_b32 {dst}, {seg}, 2"); a(f"s_cmp_lt_u32 {dst}, 4"); a(f"s_cselect_b32 {dst}, {dst}, {tmp}")

def tagchk(a, regs, tag, t0, t1, mf=()):
    op = "0x80" if tag else "0xfe"
    mf = list(mf)
    ops = [f"v_bitop3_b32 v{t0}, v{regs[0]}, v{regs[1]}, v{regs[2]} bitop3:{op}", f"v_bitop3_b32 v{t1}, v{regs[3]}, v{regs[4]}, v{regs[5]} bitop3:{op}"]
    rest = regs[6:]; k = 0
    while rest:
        t = (t0, t1)[k & 1]; k += 1
        ops.append(f"v_bitop3_b32 v{t}, v{t}, v{rest[0]}, v{rest[1]} bitop3:{op}"); rest = rest[2:]
    ops.append(f"v_bitop3_b32 v{t0}, v{t0}, v{t1}, 1 bitop3:" + ("0x80" if tag else "0xa8"))
    per = -(-len(ops) // max(len(mf), 1))
    for i, o in enumerate(ops):
        if mf and i % per == 0: a(mf.pop(0))
        a(o)
    for m in mf: a(m)
    a(f"v_cmp_ne_u32 vcc, {tag}, v{t0}")

def emit_rec(a, pfx, prof=False, kvwait=False):
    L = lambda n: f"{pfx}_{n}"
    FAIL = L('fail')
    a("s_load_dwordx8 s[4:11], s[0:1], 40")
    a("s_load_dwordx2 s[12:13], s[0:1], 32")
    a("s_load_dwordx2 s[14:15], s[0:1], 88")
    a("s_load_dwordx2 s[16:17], s[0:1], 96")
    a("v_lshrrev_b32 v1, 6, v0")
    a("v_and_b32 v0, 63, v0")
    a("s_lshl_b32 s20, s18, 2"); a("s_add_u32 s20, s20, s19")
    a("v_readfirstlane_b32 s21, v1")
    a("v_lshlrev_b32 v6, 4, v0")
    a("s_mov_b32 s24, 0")
    a("s_waitcnt lgkmcnt(0)")
    pstamp(a, prof, 90)
    if "diag" in OPT: pstamp(a, 3, 97)
    a("s_add_u32 s16, s16, 0x1fffff"); a("s_addc_u32 s17, s17, 0"); a("s_and_b32 s16, s16, 0xffe00000")
    a("s_lshl_b32 s36, s18, 13"); a(f"s_add_u32 s36, s36, {WS_RING}"); a("s_add_u32 s32, s16, s36"); a("s_addc_u32 s33, s17, 0")
    a("s_and_b32 s45, s20, 63"); a("s_lshl_b32 s45, s45, 7"); a("s_lshr_b32 s36, s20, 6"); a("s_lshl_b32 s36, s36, 14"); a("s_add_u32 s45, s45, s36")
    a("s_and_b32 s44, s20, 1"); a("s_lshl_b32 s44, s44, 12"); a("s_lshr_b32 s42, s20, 1"); a("s_lshl_b32 s42, s42, 14"); a("s_add_u32 s44, s44, s42")
    a("v_mov_b32 v14, v6"); a("v_add_u32 v15, 0x1000, v6")
    a("s_lshl_b32 s36, s19, 10"); a("v_add_u32 v9, s36, v6")
    a("s_lshl_b32 s36, s19, 9"); a("s_add_u32 s36, s36, 4096"); a("v_and_b32 v8, 0x1ff, v6"); a("v_add_u32 v8, s36, v8")
    a("s_cmp_eq_u32 s21, 7"); a(f"s_cbranch_scc0 {L('noclr')}")
    for i in range(4): a(f"v_mov_b32 v{68+i}, -1")
    a("v_add_u32 v16, s44, v6"); a("v_add_u32 v17, 0x2000, v16")
    for p in range(2):
        for i in range(4): a(f"global_store_dwordx4 v{16+p}, v[68:71], s[16:17] offset:{1024*i} sc1")
    a("global_store_dwordx4 v9, v[68:71], s[32:33] sc1"); a("global_store_dwordx4 v8, v[68:71], s[32:33] sc1")
    a("v_bfe_u32 v16, v0, 3, 2"); a("v_lshlrev_b32 v16, 15, v16"); a("v_lshrrev_b32 v17, 5, v0"); a("v_lshl_add_u32 v16, v17, 13, v16")
    a("v_and_b32 v17, 7, v0"); a("v_lshl_add_u32 v16, v17, 4, v16"); a(f"s_add_u32 s36, s45, {WS_MEMS}"); a("v_add_u32 v16, s36, v16")
    for i in range(16):
        a("global_store_dwordx4 v16, v[68:71], s[16:17] sc1"); a("v_add_u32 v16, 0x20000, v16")
    a("s_lshl_b32 s36, s20, 7"); a(f"s_add_u32 s36, s36, {WS_FLAG}"); a("v_and_b32 v16, 0x70, v6"); a("v_add_u32 v16, s36, v16")
    a("global_store_dwordx4 v16, v[68:71], s[16:17] sc1")
    a(f"v_subrev_u32 v16, {WS_FLAG - WS_FLAG2}, v16")
    a("global_store_dwordx4 v16, v[68:71], s[16:17] sc1")
    a("s_barrier")
    a("v_mov_b32 v17, 1"); a("v_mov_b32 v16, 0")
    a("s_waitcnt vmcnt(0)")
    a("s_mov_b64 exec, 1")
    a(f"global_atomic_add v16, v17, s[14:15] offset:{DBG_CLR} sc1")
    a("s_mov_b64 exec, -1")
    a(f"s_branch {L('clrd')}")
    a.label(L('noclr'))
    a("s_barrier")
    a.label(L('clrd'))
    def xdma(base, ldsreg):
        for kt in range(2):
            a(f"s_add_u32 m0, {ldsreg}, {kt*4096}")
            a("s_nop 0")
            for jj in range(4):
                a(f"global_load_lds_dwordx4 v{14+kt}, {base} offset:{jj*1024} sc1")
    def kv_poll(tag, tile):
        a(f"s_lshl_b32 s52, {tile}, 7"); a("s_lshr_b32 s36, s18, 1"); a("s_lshl_b32 s36, s36, 2"); a("s_add_u32 s52, s52, s36"); a(f"s_add_u32 s52, s52, {WS_FLAG + 96*128}")
        a("v_mov_b32 v17, s52")
        a.label(L(tag))
        a("global_load_dword v16, v17, s[16:17] sc1"); a("global_load_dword v18, v17, s[16:17] offset:64 sc1"); a("s_waitcnt vmcnt(0)")
        a("v_or_b32 v16, v16, v18")
        a("v_cmp_ne_u32 vcc, 0, v16"); a(f"s_cbranch_vccz {L(tag + 'ok')}")
        a("s_sleep 4")
        guard(a, L(tag), FAIL)
        a.label(L(tag + 'ok'))
    def kv_bases(segreg):
        a(f"s_lshl_b32 s42, {segreg}, 5"); a("s_add_u32 s42, s42, s18"); a("s_lshl_b32 s42, s42, 14"); a(f"s_add_u32 s42, s42, {WS_KX}")
        near(a, 48, "s42", kv=True)
        v_from_k(a, 34, 48)
    a("v_lshrrev_b32 v10, 2, v0"); a("v_lshlrev_b32 v10, 13, v10"); a("v_and_b32 v11, 3, v0"); a("v_lshl_add_u32 v10, v11, 4, v10")
    a("s_lshl_b32 s36, s21, 20"); a("s_lshl_b32 s42, s20, 6"); a("s_add_u32 s36, s36, s42"); a("v_add_u32 v10, s36, v10")
    a("s_lshl_b32 s43, s21, 14")
    def wdma(base, buf, nt="nt"):
        a("v_mov_b32 v11, v10")
        for i in range(8):
            a(f"s_add_u32 m0, s43, {buf*8192 + i*1024}")
            a("s_nop 0")
            a(f"global_load_lds_dwordx4 v11, {base} {nt}")
            if i < 7: a("v_add_u32 v11, 0x20000, v11")
    wdma("s[6:7]", 0, ""); wdma("s[8:9]", 1, "")
    a("v_lshrrev_b32 v12, 5, v0"); a("v_lshlrev_b32 v12, 4, v12")
    a("v_bfe_u32 v13, v0, 4, 1"); a("v_lshl_add_u32 v12, v13, 2, v12")
    a("v_bfe_u32 v13, v0, 2, 1"); a("v_add_u32 v12, v12, v13")
    a("v_bfe_u32 v13, v0, 3, 1"); a("v_lshl_add_u32 v12, v13, 3, v12")
    a("v_lshlrev_b32 v12, 6, v12"); a("v_and_b32 v13, 3, v0"); a("v_lshl_add_u32 v12, v13, 3, v12")
    a("v_add_u32 v12, s43, v12")
    def wread(typ, buf):
        for t in range(2):
            for ks in range(2):
                for pp in range(4):
                    hi, lo = pp >> 1, pp & 1
                    reg = ((typ*2 + t)*2 + ks)*8 + pp*2
                    off = buf*8192 + (64*ks + 32*hi + 2*lo)*64 + t*32
                    a(f"ds_read_b64_tr_b16 a[{reg}:{reg+1}], v12 offset:{off}")
                a("s_waitcnt lgkmcnt(4)")
        a("s_waitcnt lgkmcnt(0)")
    a("s_waitcnt vmcnt(8)")
    pstamp(a, prof, 91)
    wread(1, 0)
    wdma("s[4:5]", 0, "nt")
    a("s_waitcnt vmcnt(8)"); wread(2, 1)
    a("v_lshrrev_b32 v10, 3, v0"); a("v_lshlrev_b32 v10, 11, v10"); a("v_and_b32 v11, 7, v0"); a("v_lshl_add_u32 v10, v11, 4, v10")
    a("s_lshl_b32 s36, s18, 18"); a("s_lshl_b32 s42, s19, 9"); a("s_add_u32 s36, s36, s42")
    a("s_and_b32 s42, s21, 3"); a("s_lshl_b32 s42, s42, 7"); a("s_add_u32 s36, s36, s42")
    a("v_add_u32 v10, s36, v10")
    def odma(half):
        a(f"v_add_u32 v11, {half*64*2048}, v10")
        for i in range(8):
            a(f"s_add_u32 m0, s43, {half*8192 + i*1024}")
            a("s_nop 0")
            a("global_load_lds_dwordx4 v11, s[10:11] nt")
            if i < 7: a("v_add_u32 v11, 0x4000, v11")
    a("s_cmp_lt_u32 s21, 4"); a(f"s_cbranch_scc0 {L('wv_only')}")
    odma(1)
    a("s_waitcnt vmcnt(8)"); wread(0, 0)
    odma(0)
    a("v_lshrrev_b32 v12, 2, v0")
    a("v_lshlrev_b32 v12, 7, v12"); a("v_and_b32 v13, 3, v0"); a("v_lshl_add_u32 v12, v13, 4, v12"); a("v_add_u32 v12, s43, v12")
    a("s_waitcnt vmcnt(0)")
    def wo_reg(ct, jj):
        return f"v[{96+(ct*4+jj)*4}:{96+(ct*4+jj)*4+3}]"
    for ct in range(4):
        for jj in range(4):
            for lo in range(2):
                base = 96 + (ct*4 + jj)*4 + lo*2
                off = (32*jj + 16*lo)*128 + (ct >> 1)*64 + (ct & 1)*8
                a(f"ds_read_b64_tr_b16 v[{base}:{base+1}], v12 offset:{off}")
        a("s_waitcnt lgkmcnt(0)")
    a(f"s_branch {L('wdone')}")
    a.label(L('wv_only'))
    a("s_waitcnt vmcnt(0)"); wread(0, 0)
    a.label(L('wdone'))
    pstamp(a, prof, 89)

    a("s_cmp_eq_u32 s21, 7"); a(f"s_cbranch_scc0 {L('sync1')}")
    a("global_load_dwordx4 v[48:51], v9, s[32:33] sc1"); a("global_load_dwordx4 v[52:55], v8, s[32:33] sc1")
    a("v_and_b32 v11, 7, v0"); a("v_lshlrev_b32 v11, 11, v11"); a("s_lshl_b32 s36, s20, 4"); a("v_add_u32 v11, s36, v11")
    a("global_load_dwordx4 v[56:59], v11, s[12:13]")
    a("v_mov_b32 v17, 0"); a("s_lshr_b32 s36, s18, 3"); a("s_lshl_b32 s36, s36, 2"); a("v_mov_b32 v18, s36")
    a.label(L('clrw'))
    a(f"global_load_dwordx2 v[20:21], v17, s[14:15] offset:{DBG_VOTE} sc1"); a("s_waitcnt vmcnt(0)")
    a("v_readfirstlane_b32 s36, v20"); a("v_readfirstlane_b32 s37, v21")
    a("s_and_b32 s42, s36, 0xffff"); a("s_add_u32 s42, s42, s37"); a("s_cmp_eq_u32 s42, 256"); a(f"s_cbranch_scc1 {L('clrok')}")
    a("s_sleep 8")
    guard(a, L('clrw'), FAIL)
    a.label(L('clrok'))
    a("global_load_dword v21, v18, s[14:15] sc1")
    a("s_lshr_b32 s36, s36, 16"); a("s_cmp_gt_u32 s36, 64"); a("s_cselect_b32 s25, 1, 0")
    a("v_mov_b32 v20, s25"); a(f"v_mov_b32 v17, {L_PARW}")
    a(f"s_mov_b32 s42, {WS_MEMS}"); near(a, 34, "s42")
    a("v_add_u32 v11, s45, v6")
    a("s_mov_b64 exec, 0xff")
    for i in range(4): a(f"v_min_u32 v{56+i}, -2, v{56+i}")
    a("global_store_dwordx4 v11, v[56:59], s[34:35] sc1")
    a("s_mov_b64 exec, -1")
    a("s_waitcnt vmcnt(1)"); a("ds_write_b64 v17, v[20:21]")
    if kvwait:
        a("s_mov_b32 s53, 0"); kv_poll('kv0', "s53")
    for sg in range(2):
        a(f"s_mov_b32 s53, {sg}"); kv_bases("s53")
        a(f"s_mov_b32 s50, {L_KX + sg*8192}"); xdma("s[48:49]", "s50")
        a(f"s_mov_b32 s50, {L_VX + sg*8192}"); xdma("s[34:35]", "s50")
    a.label(L('sync1'))

    a("s_and_b32 s36, s21, 3"); a("s_lshl_b32 s36, s36, 11"); a("s_lshr_b32 s42, s21, 2"); a("s_lshl_b32 s42, s42, 14"); a("s_add_u32 s36, s36, s42")
    a("v_add_u32 v1, s36, v6")
    a("v_and_b32 v2, 8, v0"); a("v_cmp_eq_u32 vcc, 0, v2"); a("v_mov_b32 v2, 0xeeee"); a("v_mov_b32 v3, 0x4444"); a("s_nop 1")
    a("v_cndmask_b32 v2, v2, v3, vcc")
    a("s_mul_i32 s36, s21, 3072"); a("v_add_u32 v3, s36, v6")
    a("s_mov_b32 s22, 0"); a("s_mov_b32 s51, 1")
    a("s_waitcnt vmcnt(0) lgkmcnt(0)"); a("s_barrier")
    a(f"v_mov_b32 v24, {L_PARW}"); a("ds_read_b64 v[24:25], v24"); a("s_waitcnt lgkmcnt(0)")
    a("v_readfirstlane_b32 s25, v24"); a("v_readfirstlane_b32 s23, v25")
    a("s_and_b32 s25, s25, 1")
    if "safe" in OPT: a("s_mov_b32 s23, 0")
    a("s_lshl_b32 s36, s25, 13"); a("s_add_u32 s26, s16, s36"); a("s_addc_u32 s27, s17, 0")
    a(f"s_mov_b32 s42, {WS_MEMS}"); near(a, 28, "s42")
    a("s_lshr_b32 s38, s18, 1"); a("s_lshl_b32 s38, s38, 14"); a("s_and_b32 s36, s18, 1"); a("s_lshl_b32 s36, s36, 12"); a("s_add_u32 s38, s38, s36"); a(f"s_add_u32 s38, s38, {WS_KMVM}")
    near(a, 30, "s38")
    if "diag" in OPT: pstamp(a, 3, 98)
    if prof:
        for k in range(8): a(f"s_mov_b32 s{60+k}, 0")
        a("s_memtime s[56:57]"); a("s_waitcnt lgkmcnt(0)"); a("s_mov_b32 s59, s56")
        pstamp(a, prof, 60)
    a("s_cmp_lt_u32 s21, 4"); a(f"s_cbranch_scc1 {L('setup_vo')}")
    a("s_cmp_eq_u32 s21, 6"); a(f"s_cbranch_scc1 {L('setup_sm')}")

    def head_word(val):
        a(f"v_mov_b32 v95, {val}")
        a("s_lshl_b32 s36, s18, 7"); a("s_lshl_b32 s42, s19, 2"); a("s_add_u32 s36, s36, s42"); a(f"s_add_u32 s36, s36, {WS_FLAG + 8192}")
        a("v_mov_b32 v94, s36")
        a("s_mov_b64 exec, 1")
        a("global_store_dword v94, v95, s[16:17] sc1")
        a("s_mov_b64 exec, -1")
    def zero_acc():
        for i in range(24): a(f"v_mov_b32 v{24+i}, 0")
    def pair(p): return [(2*p, 0), (2*p+1, 0), (2*p, 1), (2*p+1, 1)]
    def sm(tt, ks, mb):
        dd = 24 + tt*4; b = (tt*2 + ks)*8
        a(f"v_smfmac_f32_16x16x64_bf16 v[{dd}:{dd+3}], v[{mb+4*ks}:{mb+3+4*ks}], a[{b}:{b+7}], v2")
    def cv(p, i): a(f"v_cvt_pk_bf16_f32 v{24+8*p+i}, v{24+8*p+2*i}, v{25+8*p+2*i}")
    def mload(b):
        a(f"global_load_dwordx4 v[{b}:{b+3}], v1, s[28:29] sc1")
        a(f"global_load_dwordx4 v[{b+4}:{b+7}], v1, s[28:29] offset:1024 sc1")
    def mchk(b):
        a(f"v_max3_u32 v0, v{b}, v{b+1}, v{b+2}"); a(f"v_max3_u32 v7, v{b+3}, v{b+4}, v{b+5}"); a(f"v_max3_u32 v0, v0, v{b+6}, v{b+7}"); a("v_max_u32 v0, v0, v7")
        a("v_cmp_eq_u32 vcc, -1, v0")
    def p1_mm(mb):
        for t, k in pair(0): sm(t, k, mb)
        for t, k in pair(1): sm(t, k, mb)
        a("s_nop 3")
        for i, (t, k) in enumerate(pair(2)):
            cv(0, i)
            if i == 3: a("ds_write_b128 v3, v[24:27]")
            sm(t, k, mb)
    DM = PAR["DM"]

    def p1(name):
        if PAR["MDEL"]: a(f"s_sleep {PAR['MDEL']}")
        if DM == 2:
            mload(16)
            if PAR["MGAP"]: a(f"s_sleep {PAR['MGAP']}")
        a.label(L(name))
        mload(48 if DM == 2 else 16)
        a(f"s_waitcnt vmcnt({2*(DM-1)})")
        fs(a, prof, 0, 5)
        mchk(16)
        a(f"s_cbranch_vccnz {L(name + '_retry')}")
        stamp(a, prof, 0)
        fs(a, prof, 1, 5)
        p1_mm(16)
        a.label(L(name + '_j'))
        fs(a, prof, 3, 5)
        for i in range(4): cv(1, i)
        a("ds_write_b128 v3, v[32:35] offset:1024")
        fs(a, prof, 4, 5)
        a("s_nop 2")
        for i in range(4): cv(2, i)
        a("ds_write_b128 v3, v[40:43] offset:2048")
        fs(a, prof, 5, 5)
        a("s_waitcnt vmcnt(0) lgkmcnt(0)")
        fs(a, prof, 6, 5)
        a("s_barrier")
        fs(a, prof, 7, 5)
        if prof == 5: a("s_waitcnt lgkmcnt(0)")
        stamp(a, prof, 1)
    def p1_retry(name):
        a.label(L(name + '_retry'))
        if DM == 2:
            mload(16)
            a("s_waitcnt vmcnt(2)")
            mchk(48)
            a(f"s_cbranch_vccnz {L(name + '_g')}")
            stamp(a, prof, 0)
            p1_mm(48)
            a(f"s_branch {L(name + '_j')}")
            a.label(L(name + '_g'))
        guard(a, L(name), FAIL)

    def step_adv():
        zero_acc()
        a("s_add_u32 s22, s22, 1")
        a("s_add_u32 s28, s28, 0x8000"); a("s_addc_u32 s29, s29, 0")
        a("s_add_u32 s38, s38, 0x40000"); near(a, 30, "s38")
    def step_end():
        step_adv()
        a("s_waitcnt vmcnt(0) lgkmcnt(0)")
        a("s_barrier")
        stamp(a, prof, 7)

    a("s_sub_u32 s37, s21, 4"); a("s_min_u32 s37, s37, 2")
    a("s_lshl_b32 s36, s37, 10"); a("v_add_u32 v4, s36, v6")
    a("v_and_b32 v48, 1, v0"); a("v_lshlrev_b32 v48, 4, v48"); a("v_mov_b32 v49, 0x3f80"); a("v_lshlrev_b32 v48, v48, v49")
    a("v_bfe_u32 v49, v0, 3, 1"); a("v_bfe_u32 v50, v0, 1, 1"); a("v_lshl_add_u32 v49, v49, 1, v50")
    a("v_lshrrev_b32 v50, 2, v0"); a("v_xor_b32 v50, v50, v0"); a("v_and_b32 v50, 4, v50"); a("v_add_u32 v49, v49, v50")
    for q in range(4):
        a(f"v_cmp_eq_u32 vcc, {q}, v49"); a("s_nop 1"); a(f"v_cndmask_b32 v{84+q}, 0, v48, vcc")
    a("v_and_b32 v48, 7, v0"); a("v_lshlrev_b32 v48, 4, v48"); a("v_and_b32 v49, 8, v0"); a("v_lshrrev_b32 v50, 4, v0")
    a("v_add_u32 v51, v48, v49"); a("v_lshl_add_u32 v10, v50, 7, v51")
    a("s_lshl_b32 s36, s19, 9"); a("s_lshr_b32 s42, s37, 1"); a("s_lshl_b32 s42, s42, 11"); a("s_add_u32 s36, s36, s42"); a("v_add_u32 v10, s36, v10")
    a("v_lshl_add_u32 v5, v50, 8, v51"); a("s_lshl_b32 s36, s19, 10"); a("s_lshl_b32 s42, s37, 7"); a("s_add_u32 s36, s36, s42"); a("v_add_u32 v5, s36, v5")
    zero_acc()
    a(f"s_setprio {PAR['PPRIO']}")
    a("s_cmp_eq_u32 s21, 7"); a(f"s_cbranch_scc1 {L('setup_m')}")
    def reduce8():
        for w in range(8): a(f"ds_read_b128 v[{48+4*w}:{51+4*w}], v4 offset:{3072*w}")
        for w in range(8):
            a(f"s_waitcnt lgkmcnt({7-w})")
            a(f"v_mfma_f32_16x16x32_bf16 v[80:83], v[{48+4*w}:{51+4*w}], v[84:87], " + ("0" if w == 0 else "v[80:83]"))
    def pack_tag(tag, last):
        if last: a(f"s_cmp_eq_u32 s22, {NSTEP-1}")
        a("s_nop 6" if last else "s_nop 7")
        a("v_cvt_pk_bf16_f32 v88, v80, v81"); a("v_cvt_pk_bf16_f32 v89, v82, v83")
        if last: a(f"s_cbranch_scc1 {L(last)}")
        a("s_cmp_lt_u32 s23, 32")
        for i in range(2): a(f"v_or_b32 v{90+i}, 1, v{88+i}" if tag else f"v_and_b32 v{90+i}, -2, v{88+i}")
    a("v_add_u32 v11, s44, v6")
    a("v_and_b32 v15, 7, v0"); a("v_lshlrev_b32 v15, 4, v15"); a("v_bfe_u32 v48, v0, 4, 1"); a("v_lshl_add_u32 v15, v48, 3, v15"); a("v_add_u32 v15, s45, v15")
    a("v_and_b32 v48, 1, v0"); a("v_lshlrev_b32 v48, 4, v48"); a("v_mov_b32 v49, 0x3f80"); a("v_lshlrev_b32 v48, v48, v49")
    a("v_bfe_u32 v49, v0, 1, 3")
    for q in range(4):
        a(f"v_cmp_eq_u32 vcc, {q}, v49"); a("s_nop 1"); a(f"v_cndmask_b32 v{92+q}, 0, v48, vcc")
    DR = PAR["DR"]
    rsets = [96, 112, 128][:DR]
    def rload(b):
        for i in range(4): a(f"global_load_dwordx4 v[{b+4*i}:{b+3+4*i}], v11, s[26:27] offset:{1024*i} sc1")
    a.label(L('v_loop'))
    for tag in range(2):
        n = f"v{tag}"
        p1(n)
        reduce8()
        pack_tag(tag, 'last_pub' if tag == (NSTEP - 1) & 1 else None)
        a(f"s_cbranch_scc1 {L(n + '_wt')}")
        a("global_store_dwordx2 v5, v[90:91], s[32:33]")
        a.label(L(n + '_pd'))
        stamp(a, prof, 2)
        a("s_barrier")
        a("s_cmp_eq_u32 s21, 4"); a(f"s_cbranch_scc1 {L(n + '_red')}")
        if "nopers" not in OPT: a("global_store_dwordx2 v10, v[88:89], s[30:31] sc1")
        if prof == 3:
            a("s_memrealtime s[56:57]"); a("s_memtime s[92:93]"); a("s_waitcnt lgkmcnt(0)"); a("s_mov_b32 m0, s22"); a("s_nop 0"); a("v_writelane_b32 v150, s56, m0"); a("v_writelane_b32 v151, s92, m0")
        step_adv()
        a("s_waitcnt vmcnt(0)")
        a(f"s_branch {L(n + '_end')}")
        a.label(L(n + '_red'))
        step_adv()
        if PAR["RDEL"]: a(f"s_sleep {PAR['RDEL']}")
        stamp(a, prof, 5, 31)
        for d in range(DR - 1):
            rload(rsets[d])
            if PAR["RGAP"]: a(f"s_sleep {PAR['RGAP']}")
        a.label(L(n + '_rp'))
        for d in range(DR):
            rload(rsets[(d + DR - 1) % DR])
            a(f"s_waitcnt vmcnt({4*(DR-1)})")
            b = rsets[d]
            mf = [f"v_mfma_f32_16x16x32_bf16 v[64:67], v[92:95], v[{b+4*i}:{b+3+4*i}], " + ("0" if i == 0 else "v[64:67]") for i in range(4)]
            tagchk(a, list(range(b, b + 16)), tag, 73, 72, mf)
            a(f"s_cbranch_vccz {L(n + '_rok')}" if d < DR - 1 else f"s_cbranch_vccnz {L(n + '_rr')}")
        a.label(L(n + '_rok'))
        a("s_nop 3")
        for i in range(4): a(f"v_add_f32_dpp v{72+i}, v{64+i}, v{64+i} row_ror:8 row_mask:0xf bank_mask:0xf")
        a("s_mov_b64 exec, 0x00ff00ff")
        a("v_cvt_pk_bf16_f32 v76, v72, v73"); a("v_cvt_pk_bf16_f32 v77, v74, v75")
        a("v_min_u32 v76, -2, v76"); a("v_min_u32 v77, -2, v77")
        a("global_store_dwordx2 v15, v[76:77], s[28:29] sc1")
        a("s_mov_b64 exec, -1")
        stamp(a, prof, 6, 31)
        if PAR["MACK"]: a("s_waitcnt vmcnt(0)")
        a.label(L(n + '_end'))
        a("s_barrier")
        stamp(a, prof, 7)
    a(f"s_branch {L('v_loop')}")
    for tag in range(2):
        n = f"v{tag}"
        p1_retry(n)
        a.label(L(n + '_wt')); a("global_store_dwordx2 v5, v[90:91], s[32:33] sc1"); a(f"s_branch {L(n + '_pd')}")
        a.label(L(n + '_rr')); guard(a, L(n + '_rp'), FAIL)

    a.label(L('setup_m'))
    a("v_lshrrev_b32 v5, 5, v0"); a("v_lshl_add_u32 v5, v5, 8, v48"); a("v_bfe_u32 v50, v0, 3, 2"); a("v_lshl_add_u32 v5, v50, 2, v5")
    a("s_lshl_b32 s36, s19, 9"); a("s_add_u32 s36, s36, 4096"); a("v_add_u32 v5, s36, v5")
    a("v_mov_b32 v93, 0")
    def progress(tagname):
        a("s_cmp_eq_u32 s20, 0"); a(f"s_cbranch_scc0 {L(tagname)}")
        a("v_mov_b32 v92, s22")
        a("s_mov_b64 exec, 1")
        a(f"global_store_dword v93, v92, s[14:15] offset:{DBG_PROG} sc1")
        a("s_mov_b64 exec, -1")
        a.label(L(tagname))
    a.label(L('m_loop'))
    for tag in range(2):
        n = f"m{tag}"
        p1(n)
        reduce8()
        pack_tag(tag, 'fin_m' if tag == (NSTEP - 1) & 1 else None)
        a(f"s_cbranch_scc1 {L(n + '_wt')}")
        a("global_store_dword v5, v90, s[32:33]"); a("global_store_dword v5, v91, s[32:33] offset:128")
        a.label(L(n + '_pd'))
        a("s_barrier")
        if "nopers" not in OPT: a("global_store_dwordx2 v10, v[88:89], s[30:31] sc1")
        progress(n + '_pg')
        if kvwait:
            a("s_add_u32 s53, s22, 3"); a("s_min_u32 s53, s53, 63"); kv_tile(a, "s53", "s53", "s36")
            a("s_cmp_lt_u32 s53, s51"); a(f"s_cbranch_scc1 {L(n + '_kvh')}")
            kv_poll(n + '_kv', "s53")
            a("s_add_u32 s51, s53, 1")
            a.label(L(n + '_kvh'))
        step_end()
        a(f"s_cmp_ge_u32 s22, {NSTEP - 3}"); a(f"s_cbranch_scc1 {L(n + '_hp')}")
        a.label(L(n + '_hd'))
    a(f"s_branch {L('m_loop')}")
    for tag in range(2):
        n = f"m{tag}"
        p1_retry(n)
        a.label(L(n + '_wt'))
        a("global_store_dword v5, v90, s[32:33] sc1"); a("global_store_dword v5, v91, s[32:33] offset:128 sc1"); a(f"s_branch {L(n + '_pd')}")
        a.label(L(n + '_hp'))
        a("s_sub_u32 s36, s22, 1"); head_word("s36"); a(f"s_branch {L(n + '_hd')}")
    a.label(L('fin_m'))
    progress('pg_last')
    a(f"s_branch {L('last_pub')}")

    a.label(L('setup_sm'))
    a(f"v_add_u32 v14, {L_KX}, v6")
    a("v_and_b32 v16, 7, v0"); a("v_lshrrev_b32 v17, 4, v0"); a("v_lshl_add_u32 v9, v17, 3, v16"); a("v_lshlrev_b32 v9, 4, v9"); a("v_and_b32 v18, 8, v0"); a("v_add_u32 v9, v9, v18")
    a("v_and_b32 v17, 1, v17"); a("v_lshl_add_u32 v10, v17, 3, v16"); a("v_lshlrev_b32 v10, 4, v10")
    a("v_lshrrev_b32 v17, 5, v0"); a("v_lshl_add_u32 v10, v17, 2, v10"); a("v_lshrrev_b32 v18, 2, v18"); a("v_add_u32 v10, v10, v18")
    a("s_mov_b32 s46, 0x3e0293ee")
    for i in range(4): a(f"v_mov_b32 v{84+i}, 0")
    a(f"ds_write_b128 v6, v[84:87] offset:{L_ZERO}"); a(f"ds_write_b128 v6, v[84:87] offset:{L_ZERO + 1024}")
    def k_load():
        for i in range(8): a(f"ds_read_b128 v[{96+4*i}:{99+4*i}], v14 offset:{1024*i}")
        a("v_xor_b32 v14, 0x2000, v14")
    k_load()
    zero_acc()
    a("s_setprio 2")
    def xload(b):
        for jj in range(4): a(f"global_load_dwordx4 v[{b+4*jj}:{b+3+4*jj}], v6, s[32:33] offset:{1024*jj} sc1")
    def s_mfma(b, t, jj):
        X = f"v[{b+4*jj}:{b+3+4*jj}]"
        d = 64 + 4*t
        A = X if t == 2 else f"v[{96+(t*4+jj)*4}:{99+(t*4+jj)*4}]"
        return f"v_mfma_f32_16x16x32_bf16 v[{d}:{d+3}], {A}, {X}, " + (f"v[{d}:{d+3}]" if jj else "0")
    def s_head(b, tag):
        tagchk(a, list(range(b, b + 16)), tag, 15, 16, [s_mfma(b, 2, jj) for jj in range(3)])
    def s_rest(b):
        a(s_mfma(b, 2, 3))
        for jj in range(4): a(s_mfma(b, 1, jj))
        for jj in range(4): a(s_mfma(b, 0, jj))
    XD = PAR["XD"]
    a.label(L('s_loop'))
    for tag in range(2):
        n = f"s{tag}"
        p1(n)
        if tag == (NSTEP - 1) & 1:
            a(f"s_cmp_eq_u32 s22, {NSTEP-1}"); a(f"s_cbranch_scc1 {L('fin')}")
        if PAR["XDEL"]: a(f"s_sleep {PAR['XDEL']}")
        if XD == 2:
            xload(48)
            if PAR["XGAP"]: a(f"s_sleep {PAR['XGAP']}")
        a.label(L(n + '_xp'))
        xload(128 if XD == 2 else 48)
        a(f"s_waitcnt vmcnt({4*(XD-1)})")
        fs(a, prof, 0, 4)
        s_head(48, tag)
        a(f"s_cbranch_vccnz {L(n + '_xr')}")
        stamp(a, prof, 2)
        fs(a, prof, 1, 4)
        s_rest(48)
        a.label(L(n + '_xj'))
        fs(a, prof, 2, 4)
        dpp = "row_shr:8 row_mask:0xf bank_mask:0xc"
        a(f"v_mov_b32_dpp v72, v73 {dpp}"); a(f"v_mov_b32_dpp v74, v75 {dpp}")
        a("s_nop 1")
        a("v_permlane32_swap_b32 v72, v74")
        a("s_nop 2")
        for i in range(4): a(f"v_mov_b32_dpp v{64+i}, v{68+i} {dpp}")
        a("v_max3_f32 v16, v74, v64, v65"); a("v_max3_f32 v16, v16, v66, v67")
        fs(a, prof, 3, 4)
        a("s_nop 1"); a("v_max_f32_dpp v16, v16, v16 row_ror:8 row_mask:0xf bank_mask:0xf")
        a("v_mov_b32 v17, v16"); a("s_nop 1"); a("v_permlane16_swap_b32 v16, v17"); a("v_max_f32 v16, v16, v17")
        a("v_mov_b32 v17, v16"); a("s_nop 1"); a("v_permlane32_swap_b32 v16, v17"); a("v_max_f32 v16, v16, v17")
        fs(a, prof, 4, 4)
        a("v_mul_f32 v16, s46, v16")
        for rg in (74, 64, 65, 66, 67): a(f"v_fma_f32 v{rg}, v{rg}, s46, -v16")
        a("v_exp_f32 v74, v74"); a("v_exp_f32 v64, v64")
        a("v_cvt_pk_bf16_f32 v82, v74, v74")
        a("v_exp_f32 v65, v65")
        a(f"ds_write_b16 v10, v82 offset:{L_P + 1024}")
        a("v_exp_f32 v66, v66")
        a(f"ds_write_b16 v10, v82 offset:{L_P + 1280}")
        a("v_exp_f32 v67, v67")
        a("v_cvt_pk_bf16_f32 v80, v64, v65")
        a("v_cvt_pk_bf16_f32 v81, v66, v67")
        a(f"ds_write_b64 v9, v[80:81] offset:{L_P}")
        fs(a, prof, 5, 4)
        a("s_waitcnt lgkmcnt(0)"); fs(a, prof, 6, 4); a("s_barrier"); fs(a, prof, 7, 4)
        stamp(a, prof, 3)
        k_load()
        step_end()
    a(f"s_branch {L('s_loop')}")
    for tag in range(2):
        n = f"s{tag}"
        p1_retry(n)
        a.label(L(n + '_xr'))
        if XD == 2:
            xload(48)
            a("s_waitcnt vmcnt(4)")
            s_head(128, tag)
            a(f"s_cbranch_vccnz {L(n + '_xg')}")
            stamp(a, prof, 2)
            s_rest(128)
            a(f"s_branch {L(n + '_xj')}")
            a.label(L(n + '_xg'))
        guard(a, L(n + '_xp'), FAIL)

    a.label(L('setup_vo'))
    a("v_add_u32 v8, 0x1000, v6"); a("v_lshrrev_b32 v9, 4, v0")
    a("s_lshl_b32 s36, s19, 5"); a("s_lshl_b32 s42, s21, 3"); a("s_add_u32 s36, s36, s42")
    a("v_add_u32 v9, s36, v9"); a("v_bfe_u32 v11, v0, 3, 1"); a("v_lshl_add_u32 v9, v11, 2, v9")
    a("v_and_b32 v11, 1, v9"); a("v_lshlrev_b32 v11, 12, v11"); a("v_lshrrev_b32 v9, 1, v9"); a("v_lshl_add_u32 v9, v9, 14, v11")
    a("v_and_b32 v11, 7, v0"); a("v_lshl_add_u32 v9, v11, 4, v9"); a("s_lshl_b32 s36, s18, 7"); a("v_add_u32 v9, s36, v9")
    a("v_lshrrev_b32 v12, 4, v0"); a("v_and_b32 v13, 7, v0"); a("v_lshl_add_u32 v12, v12, 3, v13"); a("v_lshlrev_b32 v12, 4, v12"); a(f"v_add_u32 v12, {L_P}, v12"); a(f"v_mov_b32 v11, {L_ZERO}")
    a("v_and_b32 v13, 8, v0"); a("v_cmp_eq_u32 vcc, 0, v13"); a("s_nop 1")
    a("v_cndmask_b32 v13, v12, v11, vcc"); a("v_cndmask_b32 v12, v11, v12, vcc")
    a(f"v_add_u32 v14, {L_VX}, v6")
    a("s_lshr_b32 s36, s21, 1"); a(f"s_mul_i32 s54, s36, {WS_VX - WS_KX}"); a(f"s_mul_i32 s55, s36, {L_VX - L_KX}")
    a("s_and_b32 s36, s21, 1"); a("s_lshl_b32 s36, s36, 12"); a("s_add_u32 s54, s54, s36"); a("s_add_u32 s55, s55, s36"); a(f"s_add_u32 s55, s55, {L_KX}")
    a("s_lshl_b32 s36, s18, 14"); a("s_add_u32 s54, s54, s36"); a(f"s_add_u32 s54, s54, {WS_KX}")
    def u_load():
        for i in range(8): a(f"ds_read_b128 v[{16+4*i}:{19+4*i}], v14 offset:{1024*i}")
        a("v_xor_b32 v14, 0x2000, v14")
    def u_half(hf):
        for jj in range(4):
            for c2 in range(2):
                for kt in range(2):
                    d = 64 + (c2*2 + kt)*4
                    A = 16 + (kt*4 + jj)*4
                    a(f"v_mfma_f32_16x16x32_bf16 v[{d}:{d+3}], v[{A}:{A+3}], {wo_reg(2*hf+c2, jj)}, " + ("0" if jj == 0 else f"v[{d}:{d+3}]"))
        a("s_nop 7")
        for c2 in range(2):
            for kt in range(2):
                d = 64 + (c2*2 + kt)*4
                u = 80 + (2*hf + c2)*4 + kt*2
                a(f"v_cvt_pk_bf16_f32 v{u}, v{d}, v{d+1}"); a(f"v_cvt_pk_bf16_f32 v{u+1}, v{d+2}, v{d+3}")
    def vo_prep(tag, ahead):
        for i in range(4): a(f"v_mov_b32 v{56+i}, 0x3f803f80")
        for i in range(4): a(f"v_mov_b32 v{60+i}, 0x3f003f00")
        for i in range(16): a(f"v_mov_b32 v{64+i}, 0")
        a(f"s_add_u32 s53, s22, {2 + ahead}"); a("s_min_u32 s53, s53, 63"); a("s_lshl_b32 s53, s53, 19"); a("s_add_u32 s53, s53, s54"); near(a, 48, "s53", kv=True)
        a(f"s_add_u32 m0, s55, {tag*8192}")
    u_load(); a("s_waitcnt lgkmcnt(0)"); u_half(0); u_half(1)
    vo_prep(0, 0)
    zero_acc()
    if PAR["PRIO"]: a("s_setprio 1")
    a.label(L('o_loop'))
    for tag in range(2):
        n = f"o{tag}"
        p1(n)
        if tag == (NSTEP - 1) & 1:
            a(f"s_cmp_eq_u32 s22, {NSTEP-1}"); a(f"s_cbranch_scc1 {L('fin')}")
        if PAR["VDEL"]: a(f"s_sleep {PAR['VDEL']}")
        a.label(L(n + '_vp'))
        for k in range(2): a(f"global_load_dwordx4 v[{48+4*k}:{51+4*k}], v8, s[32:33] offset:{1024*k} sc1")
        a("s_waitcnt vmcnt(0)")
        tagchk(a, list(range(48, 56)), tag, 17, 16)
        a(f"s_cbranch_vccnz {L(n + '_vr')}")
        for k in range(2):
            for ct in range(4):
                b = 96 + (ct*4 + 2*k)*4
                a(f"v_smfmac_f32_16x16x64_bf16 v[{64+4*ct}:{67+4*ct}], v[{48+4*k}:{51+4*k}], v[{b}:{b+7}], v2")
        a("s_nop 4")
        for ct in range(4):
            if ct == 3: a("s_nop 1")
            t = 24 + (ct & 1)*4 + (ct >> 1)*2
            a(f"v_cvt_pk_bf16_f32 v{t}, v{64+4*ct}, v{65+4*ct}"); a(f"v_cvt_pk_bf16_f32 v{t+1}, v{66+4*ct}, v{67+4*ct}")
        if "nodma" not in OPT:
            for jj in range(4): a(f"global_load_lds_dwordx4 v6, s[48:49] offset:{jj*1024} sc1")
        stamp(a, prof, 3)
        a("s_barrier")
        a("ds_read_b64 v[36:37], v12 offset:1024"); a("ds_read_b64 v[38:39], v13 offset:1024")
        a("ds_read_b128 v[32:35], v12"); a("ds_read_b128 v[48:51], v13")
        a("s_waitcnt lgkmcnt(2)")
        stamp(a, prof, 4)
        a("v_mfma_f32_16x16x32_bf16 v[40:43], v[60:63], v[36:39], 0")
        a("v_mfma_f32_16x16x32_bf16 v[64:67], v[24:27], v[36:39], 0")
        a("s_waitcnt lgkmcnt(0)")
        a("v_or_b32 v44, v32, v48"); a("v_or_b32 v45, v33, v49")
        a("v_or_b32 v46, v34, v50"); a("v_or_b32 v47, v35, v51")
        a("v_mfma_f32_16x16x32_bf16 v[68:71], v[28:31], v[36:39], 0")
        a("v_mfma_f32_16x16x32_bf16 v[64:67], v[80:83], v[32:35], v[64:67]")
        a("v_mfma_f32_16x16x32_bf16 v[40:43], v[56:59], v[44:47], v[40:43]")
        a("v_mfma_f32_16x16x32_bf16 v[68:71], v[84:87], v[32:35], v[68:71]")
        a("v_mfma_f32_16x16x32_bf16 v[64:67], v[88:91], v[48:51], v[64:67]")
        a("v_mfma_f32_16x16x32_bf16 v[68:71], v[92:95], v[48:51], v[68:71]")
        a("s_nop 4")
        a("v_rcp_f32 v40, v40")
        a("s_nop 0")
        for i in range(8): a(f"v_mul_f32 v{64+i}, v{64+i}, v40")
        for i in range(4): a(f"v_cvt_pk_bf16_f32 v{48+i}, v{64+2*i}, v{65+2*i}")
        for i in range(4): a(f"v_or_b32 v{48+i}, 1, v{48+i}" if tag else f"v_and_b32 v{48+i}, -2, v{48+i}")
        a("global_store_dwordx4 v9, v[48:51], s[26:27] sc1")
        stamp(a, prof, 5)
        u_load(); a("s_waitcnt lgkmcnt(0)"); u_half(0)
        u_half(1)
        vo_prep(tag ^ 1, 1)
        step_end()
    a(f"s_branch {L('o_loop')}")
    for tag in range(2):
        n = f"o{tag}"
        p1_retry(n)
        a.label(L(n + '_vr')); guard(a, L(n + '_vp'), FAIL)

    a.label(L('last_pub'))
    a("s_cmp_eq_u32 s21, 4"); a(f"s_cbranch_scc1 {L('fin')}")
    a("global_store_dwordx2 v10, v[88:89], s[30:31] sc1")
    a.label(L('fin'))
    a("s_waitcnt vmcnt(0)"); a("s_barrier")
    a("s_cmp_eq_u32 s21, 0"); a(f"s_cbranch_scc0 {L('end')}")
    head_word(str(NSTEP - 1))
    if "span" in OPT:
        a("s_and_b32 s98, s20, 15"); a("s_cmp_lg_u32 s98, 0"); a(f"s_cbranch_scc1 {L('end')}")
        a("s_memrealtime s[98:99]"); a("s_waitcnt lgkmcnt(0)"); a("v_mov_b32 v5, s98"); a("v_mov_b32 v2, 0")
        a("s_mov_b64 exec, 1"); a("global_atomic_umax v2, v5, s[14:15] offset:56 sc1"); a("s_mov_b64 exec, -1")
    if "diag" in OPT:
        a("s_cmp_eq_u32 s20, 0"); a(f"s_cbranch_scc0 {L('end')}")
        a("s_memrealtime s[56:57]"); a("s_waitcnt lgkmcnt(0)"); a("s_sub_u32 s70, s56, s98"); a("s_sub_u32 s71, s98, s97")
        a("s_mov_b64 exec, 1")
        a("s_mov_b32 s72, 0"); a("s_mov_b32 s73, 0"); a("s_mov_b32 s74, 0"); a("v_mov_b32 v18, 0")
        a.label(L('dg'))
        for k in range(2):
            a("s_lshl_b32 s36, s74, 21"); a(f"s_add_u32 s36, s36, {0x10000 + k*0x2000}"); a("v_mov_b32 v16, s36")
            for rep in range(2):
                a("s_memtime s[56:57]"); a("s_waitcnt lgkmcnt(0)")
                a("global_atomic_or v17, v16, v18, s[16:17] sc0 sc1"); a("s_waitcnt vmcnt(0)")
                a("s_memtime s[58:59]"); a("s_waitcnt lgkmcnt(0)")
            a(f"s_sub_u32 s{76+k}, s58, s56")
        a("s_cmp_lt_u32 s77, s76"); a("s_cselect_b32 s78, 1, 0"); a("s_mov_b32 s79, 0"); a("s_lshl_b64 s[78:79], s[78:79], s74"); a("s_or_b64 s[72:73], s[72:73], s[78:79]")
        a("s_add_u32 s74, s74, 1"); a("s_cmp_lt_u32 s74, 64"); a(f"s_cbranch_scc1 {L('dg')}")
        for k in range(4): a(f"v_mov_b32 v{20+k}, s{70+k}")
        a("global_store_dwordx4 v18, v[20:23], s[14:15] offset:48")
        a("s_mov_b64 exec, -1")
    a(f"s_branch {L('end')}")
    a.label(FAIL)
    a("v_mov_b32 v16, 0"); a("v_mov_b32 v17, 0xdead"); a("global_store_dword v16, v17, s[14:15] offset:252")
    a.label(L('end'))
    if prof:
        if prof == 3:
            a("s_memrealtime s[56:57]"); a("s_waitcnt lgkmcnt(0)"); a("s_mov_b32 s61, s56"); a("s_mov_b32 s62, s25"); a("s_mov_b32 s63, s90"); a("s_mov_b32 s64, s91"); a("s_mov_b32 s65, s89")
        if prof == 3:
            a("s_cmp_eq_u32 s21, 5"); a(f"s_cbranch_scc0 {L('nost')}")
            a("s_lshl_b32 s36, s20, 9"); a(f"s_add_u32 s36, s36, {203<<20}"); a("v_lshrrev_b32 v16, 1, v6"); a("v_add_u32 v16, s36, v16")
            a("global_store_dwordx2 v16, v[150:151], s[16:17]")
            a.label(L('nost'))
        if prof > 3:
            a("s_waitcnt lgkmcnt(0)")
            for k in range(8): a(f"s_sub_u32 s{60+k if k < 6 else 84+k}, s{66+2*k}, s66")
            a("s_mov_b32 s66, s90"); a("s_mov_b32 s67, s91")
        a("s_lshl_b32 s36, s20, 3"); a("s_add_u32 s36, s36, s21"); a("s_lshl_b32 s36, s36, 5"); a(f"s_add_u32 s36, s36, {200<<20}")
        a("v_mov_b32 v16, s36")
        for k in range(8): a(f"v_mov_b32 v{24+k}, s{60+k}")
        a("s_mov_b64 exec, 1")
        a("global_store_dwordx4 v16, v[24:27], s[16:17]"); a("global_store_dwordx4 v16, v[28:31], s[16:17] offset:16")
    a("s_endpgm")
```

```python
import sys, os
sys.path.insert(0, os.path.dirname(__file__))
from asmgen import *
import gemm
import rec2 as rec
from gemm import acc, R

NAME = "concat_heads__linear_attn_block__memory_aug_recurrent_mem_tr__prompt"
WS_O   = 84 << 20
WS_OA  = 116 << 20
WS_KVP = 124 << 20
OA_T = 65536
D_OVF, D_AKV, D_KV, D_AO, D_O = 32, 36, 64, 96, 128
D_PROG = rec.DBG_PROG
WSPIN = 400000
EARLYKV = True
SA = 12
def setmask(k): return sum(1 << t for t in range(32) if (t < SA and k == 0) or (t >= SA and (t - SA + 1) % 3 == k))
LOG2E = 0x3fb8aa3b
EPS = 0x358637bd
SCL = 0x3e0293ee


def load_ptrs(a):
    a("s_load_dwordx16 s[4:19], s[0:1], 0"); a("s_load_dwordx2 s[20:21], s[0:1], 64")
    a("s_load_dwordx4 s[24:27], s[0:1], 80"); a("s_load_dwordx2 s[28:29], s[0:1], 96")

def signal(a, off_sgpr_or_imm, val=1):
    lab = a.newlabel("sig")
    a("s_waitcnt vmcnt(0)"); a("s_barrier")
    a("s_cmp_lg_u32 s75, 0"); a(f"s_cbranch_scc1 {lab}")
    a(f"v_mov_b32 v16, {off_sgpr_or_imm}"); a(f"v_mov_b32 v17, {val}")
    a("s_mov_b64 exec, 1")
    a("global_atomic_add v16, v17, s[26:27] sc1")
    a("s_mov_b64 exec, -1")
    a.label(lab)

def wait_cnt(a, off, target):
    lp, ok, done = a.newlabel("wl"), a.newlabel("wo"), a.newlabel("wd")
    a("s_cmp_lg_u32 s75, 0"); a(f"s_cbranch_scc1 {done}")
    a(f"v_mov_b32 v16, {off}")
    a.label(lp)
    a("global_load_dword v17, v16, s[26:27] sc1"); a("s_waitcnt vmcnt(0)")
    a(f"v_cmp_ne_u32 vcc, {target}, v17"); a(f"s_cbranch_vccz {ok}")
    a("s_sleep 8")
    a("s_add_u32 s46, s46, 1"); a(f"s_cmp_lt_u32 s46, {WSPIN}"); a(f"s_cbranch_scc1 {lp}")
    a("s_branch w_fail")
    a.label(ok)
    a("buffer_inv sc1"); a("s_waitcnt vmcnt(0)")
    a.label(done)
    a("s_barrier")

def learn_parity(a):
    lp, ok = a.newlabel("vl"), a.newlabel("vo")
    a.label(lp)
    a("s_waitcnt vmcnt(0)")
    a("v_readfirstlane_b32 s22, v18"); a("v_readfirstlane_b32 s34, v19")
    a("s_and_b32 s32, s22, 0xffff"); a("s_add_u32 s32, s32, s34"); a("s_cmp_eq_u32 s32, 256"); a(f"s_cbranch_scc1 {ok}")
    a("s_sleep 8")
    a(f"global_load_dwordx2 v[18:19], v16, s[26:27] offset:{rec.DBG_VOTE} sc1")
    a("s_add_u32 s46, s46, 1"); a(f"s_cmp_lt_u32 s46, {WSPIN}"); a(f"s_cbranch_scc1 {lp}")
    a("s_branch w_fail")
    a.label(ok)
    a("s_lshr_b32 s22, s22, 16"); a("s_cmp_gt_u32 s22, 64"); a("s_cselect_b32 s22, 1, 0")

def phi(a, regs):
    for i in range(0, len(regs), 8):
        b = regs[i:i+8]
        for k, r in enumerate(b): a(f"v_mul_f32 v{16+k}, s40, v{r}")
        for k, r in enumerate(b): a(f"v_min_f32 v{16+k}, 0, v{16+k}")
        for k, r in enumerate(b): a(f"v_exp_f32 v{16+k}, v{16+k}")
        for k, r in enumerate(b): a(f"v_max_f32 v{r}, 0, v{r}")
        for k, r in enumerate(b): a(f"v_add_f32 v{r}, v{r}, v{16+k}")
        for k, r in enumerate(b): a(f"v_add_f32 v{r}, s41, v{r}")

def pack_frags(a):
    for tt in range(4):
        for jj in range(4):
            s = acc(tt, 2*jj); d = 32 + (tt*4 + jj)*4
            for i in range(4): a(f"v_cvt_pk_bf16_f32 v{d+i}, v{s+2*i}, v{s+2*i+1}")
def frag(tt, jj): return R('v', 32 + (tt*4 + jj)*4)

PROF = False
def wstamp(a, k):
    if not PROF: return
    lab = a.newlabel("ws")
    a("s_cmp_lg_u32 s75, 0"); a(f"s_cbranch_scc1 {lab}")
    a("s_memrealtime s[56:57]"); a("s_waitcnt lgkmcnt(0)")
    a("s_lshl_b32 s58, s97, 6"); a("s_lshl_b32 s57, s59, 2"); a("s_add_u32 s58, s58, s57"); a(f"s_add_u32 s58, s58, {201 << 20}")
    a("v_mov_b32 v16, s58"); a("v_mov_b32 v17, s56"); a("global_store_dword v16, v17, s[28:29]")
    a("s_memtime s[56:57]"); a("s_waitcnt lgkmcnt(0)"); a("v_mov_b32 v17, s56"); a("v_add_u32 v16, 0x100000, v16"); a("global_store_dword v16, v17, s[28:29]")
    a("s_add_u32 s59, s59, 1")
    a.label(lab)

def tstamp(a, ev, v0=126, v1=127):
    if not PROF: return
    a("s_memrealtime s[56:57]"); a("s_waitcnt lgkmcnt(0)")
    a("s_lshl_b32 s58, s96, 2"); a(f"s_add_u32 s58, s58, {(204 << 20) + ev*8192}")
    a(f"v_mov_b32 v{v0}, s58"); a(f"v_mov_b32 v{v1}, s56"); a(f"global_store_dword v{v0}, v{v1}, s[28:29]")

def wside(a, dst, off, tmp):
    rec.near(a, dst, off, "s22", 28, tmp, kv=True)

def task_g1(a, MT, grp):
    gemm.setup_a_rowmajor(a, 2048, MT); gemm.setup_w(a, 8192)
    a("s_lshl_b32 s32, s31, 15"); a("s_add_u32 s80, s10, s32"); a("s_addc_u32 s81, s11, 0")
    a("s_cmp_lt_u32 s30, 16"); a("s_cselect_b32 s82, s16, s18"); a("s_cselect_b32 s83, s17, s19")
    a(f"s_cselect_b32 s33, {rec.WS_KX >> 20}, {rec.WS_VX >> 20}"); a("s_lshl_b32 s33, s33, 20")
    a("s_and_b32 s35, s30, 15"); a("s_lshl_b32 s32, s35, 9"); a("s_add_u32 s82, s82, s32"); a("s_addc_u32 s83, s83, 0")
    a("s_mov_b32 s66, 7")
    gemm.call(a, "core_T" + ("" if MT == 4 else str(MT)))
    if grp == 0: learn_parity(a)
    wstamp(a, 0)
    a("s_lshl_b32 s34, s35, 1"); a("s_add_u32 s34, s34, s73"); a("s_lshl_b32 s34, s34, 14"); a("s_add_u32 s33, s33, s34")
    a(f"s_mul_i32 s36, s72, {MT}"); a("s_add_u32 s36, s36, s31")
    a("v_lshlrev_b32 v19, 4, v0")
    for tt in range(MT):
        a(f"s_add_u32 s32, s36, {tt}"); a("s_and_b32 s34, s32, 1"); a("s_lshl_b32 s34, s34, 12"); a("s_lshr_b32 s32, s32, 1"); a("s_lshl_b32 s32, s32, 19")
        a("s_add_u32 s32, s32, s34"); a("s_add_u32 s32, s32, s33")
        rec.near_bit(a, "s34", "s32", "s22", True); a("s_add_u32 s32, s32, s34")
        a(f"v_add_u32 v{20+tt}, s32, v19")
    gemm.epi_frag_store(a, "s[28:29]", "sc1", MT)
    a("s_lshl_b32 s88, s44, 7"); a("s_lshl_b32 s32, s30, 2"); a("s_add_u32 s88, s88, s32"); a(f"s_add_u32 s88, s88, {rec.WS_FLAG + (96 + 4*grp)*128}")
    if grp == 0:
        lab = a.newlabel("sig")
        a("s_waitcnt vmcnt(0)"); a("s_barrier")
        a("s_cmp_lg_u32 s75, 0"); a(f"s_cbranch_scc1 {lab}")
        a("v_mov_b32 v16, s88"); a("v_mov_b32 v17, 0")
        a("s_mov_b64 exec, 1"); a("global_store_dword v16, v17, s[28:29] sc1"); a("s_mov_b64 exec, -1")
        a.label(lab)
        a("s_mul_i32 s32, s96, 3072"); a(f"s_add_u32 s32, s32, {1 << 20}"); a("v_lshl_add_u32 v20, v0, 4, s32")
        for i in range(3): a(f"global_load_dwordx4 a[92:95], v20, s[10:11] offset:{i*1024}")
    else:
        a("s_mov_b32 s89, 1")

def task_g4kv(a):
    def colmap(a, v):
        a(f"v_bfe_u32 v18, v{v}, 3, 1"); a("v_lshlrev_b32 v18, 11, v18")
        a(f"v_lshrrev_b32 v19, 4, v{v}"); a("v_lshl_add_u32 v18, v19, 7, v18")
        a(f"v_and_b32 v{v}, 7, v{v}"); a(f"v_lshl_add_u32 v{v}, v{v}, 4, v18")
    gemm.setup_a_rowmajor(a, 2048); gemm.setup_w(a, 6144, colmap)
    a("s_lshl_b32 s32, s31, 19"); a("s_add_u32 s80, s4, s32"); a("s_addc_u32 s81, s5, 0")
    a("s_lshl_b32 s32, s30, 8"); a("s_add_u32 s32, s32, 2048"); a("s_add_u32 s82, s6, s32"); a("s_addc_u32 s83, s7, 0")
    a("s_mov_b32 s66, 7")
    gemm.call(a, "core_N")
    wstamp(a, 0)
    a(f"s_mov_b32 s40, {LOG2E}"); a(f"s_mov_b32 s41, {EPS}")
    phi(a, [acc(tt, 0) + i for tt in range(4) for i in range(16)])
    for tp in range(2):
        for ft in range(8):
            x = acc(2*tp, ft); y = acc(2*tp+1, ft)
            a(f"v_cvt_pk_bf16_f32 v{x}, v{x}, v{x+1}"); a(f"v_cvt_pk_bf16_f32 v{x+1}, v{x+2}, v{x+3}")
            a(f"v_cvt_pk_bf16_f32 v{x+2}, v{y}, v{y+1}"); a(f"v_cvt_pk_bf16_f32 v{x+3}, v{y+2}, v{y+3}")
    for i in range(4): a(f"v_mov_b32 v{16+i}, 0x3f803f80")
    a("v_lshlrev_b32 v20, 4, v0"); a("s_mul_i32 s32, s73, 49152"); a("s_lshl_b32 s33, s72, 10"); a("s_add_u32 s32, s32, s33"); a("v_add_u32 v21, s32, v20")
    outb = lambda hd, et, dt: (64 if hd == 0 else 128) + (et*2 + dt)*4
    for tp in range(2):
        for hd in range(2):
            for et in range(3):
                for dt in range(2):
                    D = R('v', outb(hd, et, dt)); A = R('v', acc(2*tp, 2*hd + dt)); B = R('v', acc(2*tp, 4 + 2*hd + et)) if et < 2 else "v[16:19]"
                    a(f"v_mfma_f32_16x16x32_bf16 {D}, {A}, {B}, " + ("0" if tp == 0 else D))
    a("s_barrier")
    a("s_nop 7")
    for hd in range(2):
        for f in range(6):
            a(f"ds_write_b128 v21, {R('v', outb(hd, f >> 1, f & 1))} offset:{(hd*6 + f)*4096}")
    a("s_mul_i32 s32, s75, 12288"); a("v_add_u32 v21, s32, v20")
    a("s_waitcnt lgkmcnt(0)"); a("s_barrier")
    for k in range(3):
        for m in range(4): a(f"ds_read_b128 {R('v', 32 + (k*4 + m)*4)}, v21 offset:{k*4096 + m*1024}")
    a("s_lshl_b32 s32, s31, 5"); a("s_lshl_b32 s33, s30, 2"); a("s_add_u32 s32, s32, s33"); a("s_mul_i32 s32, s32, 6144")
    a("s_mul_i32 s33, s75, 3072"); a("s_add_u32 s32, s32, s33"); a(f"s_add_u32 s32, s32, {WS_KVP}"); a("v_add_u32 v22, s32, v20")
    a("s_waitcnt lgkmcnt(0)")
    for k in range(3):
        b = 32 + k*16
        for h in range(2):
            a(f"v_pk_add_f32 v[{b+2*h}:{b+2*h+1}], v[{b+2*h}:{b+2*h+1}], v[{b+4+2*h}:{b+5+2*h}]")
            a(f"v_pk_add_f32 v[{b+8+2*h}:{b+9+2*h}], v[{b+8+2*h}:{b+9+2*h}], v[{b+12+2*h}:{b+13+2*h}]")
        for h in range(2):
            a(f"v_pk_add_f32 v[{b+2*h}:{b+2*h+1}], v[{b+2*h}:{b+2*h+1}], v[{b+8+2*h}:{b+9+2*h}]")
        a(f"global_store_dwordx4 v22, {R('v', b)}, s[28:29] offset:{k*1024} sc1")
    signal(a, D_AKV)

def task_g4q(a):
    gemm.setup_a_rowmajor(a, 2048); gemm.setup_w(a, 6144)
    a("s_lshl_b32 s32, s31, 19"); a("s_add_u32 s80, s4, s32"); a("s_addc_u32 s81, s5, 0")
    a("s_lshl_b32 s32, s30, 9"); a("s_add_u32 s82, s6, s32"); a("s_addc_u32 s83, s7, 0")
    a("s_mov_b32 s66, 7")
    gemm.call(a, "core_T")
    wstamp(a, 0)
    a(f"s_mov_b32 s40, {LOG2E}"); a(f"s_mov_b32 s41, {EPS}")
    phi(a, list(range(32, 160)))
    pack_frags(a)
    wstamp(a, 0)
    wait_cnt(a, D_AKV, 64)
    wstamp(a, 0)
    a("v_lshlrev_b32 v16, 4, v0")
    for r in range(1, 8): a(f"v_add_u32 v{16+r}, {r*196608}, v16")
    a("s_lshl_b32 s32, s30, 3"); a("s_add_u32 s32, s32, s75"); a("s_mul_i32 s32, s32, 6144"); a(f"s_add_u32 s32, s32, {WS_KVP}")
    a("s_add_u32 s34, s28, s32"); a("s_addc_u32 s35, s29, 0")
    a("s_mul_i32 s32, s75, 3072"); a("v_add_u32 v24, s32, v16")
    for et in range(3):
        for r in range(8):
            for dt in range(2):
                a(f"global_load_dwordx4 {R('v', 96 + (r*2 + dt)*4)}, v{16+r}, s[34:35] offset:{dt*1024} sc1")
        a("s_add_u32 s34, s34, 2048"); a("s_addc_u32 s35, s35, 0")
        a("s_waitcnt vmcnt(0)")
        for step in (32, 16, 8):
            for i in range(0, step, 2):
                a(f"v_pk_add_f32 v[{96+i}:{97+i}], v[{96+i}:{97+i}], v[{96+step+i}:{97+step+i}]")
        for i in range(4): a(f"v_cvt_pk_bf16_f32 v{28+i}, v{96+2*i}, v{97+2*i}")
        a(f"ds_write_b128 v24, v[28:31] offset:{et*1024}")
    a("s_mul_i32 s32, s73, 12288"); a("v_add_u32 v24, s32, v16")
    a("s_waitcnt lgkmcnt(0)"); a("s_barrier")
    for i in range(12): a(f"ds_read_b128 {R('a', i*4)}, v24 offset:{i*1024}")
    gemm.lane_chunk(a, 25, 26)
    a("v_and_b32 v26, 15, v0"); a("v_lshl_add_u32 v25, v25, 4, v26"); a("v_lshlrev_b32 v25, 4, v25")
    a("s_lshl_b32 s32, s31, 4"); a("s_lshl_b32 s33, s72, 2"); a("s_add_u32 s32, s32, s33"); a(f"s_mul_i32 s32, s32, {OA_T}")
    a("s_lshl_b32 s33, s30, 14"); a("s_add_u32 s32, s32, s33"); a("s_lshl_b32 s33, s73, 12"); a("s_add_u32 s32, s32, s33"); a(f"s_add_u32 s32, s32, {WS_OA}")
    rec.near_bit(a, "s33", "s32", "s22", True); a("s_add_u32 s32, s32, s33")
    a("v_add_u32 v20, s32, v25")
    for tt in range(1, 4): a(f"v_add_u32 v{20+tt}, {tt*OA_T}, v20")
    a("s_waitcnt lgkmcnt(0)")
    for hd in range(4):
        for tt in range(4):
            b = 96 + tt*12
            for et in (2, 0, 1):
                a(f"v_mfma_f32_16x16x32_bf16 {R('v', b + et*4)}, {R('a', (hd*3 + et)*4)}, {frag(tt, hd)}, 0")
        a("s_nop 7")
        for tt in range(4):
            b = 96 + tt*12
            a(f"v_add_f32 v{b+8}, s41, v{b+8}")
        for tt in range(4):
            b = 96 + tt*12
            a(f"v_rcp_f32 v{b+8}, v{b+8}")
        for tt in range(4):
            b = 96 + tt*12
            a(f"v_mov_b32 v{b+9}, v{b+8}")
            for i in range(0, 8, 2): a(f"v_pk_mul_f32 v[{b+i}:{b+i+1}], v[{b+i}:{b+i+1}], v[{b+8}:{b+9}]")
            t = 144 + tt*4
            gemm.pack_swap(a, t, b)
            a(f"global_store_dwordx4 v{20+tt}, {R('v', t)}, s[28:29] offset:{hd*1024} sc1")
    a("s_lshl_b32 s32, s31, 2"); a(f"s_add_u32 s32, s32, {D_AO}")
    signal(a, "s32")

def out_offsets(a, MT):
    gemm.lane_chunk(a, 25, 26)
    a("v_and_b32 v26, 15, v0"); a("v_lshlrev_b32 v26, 12, v26"); a("v_lshl_add_u32 v20, v25, 4, v26")
    a(f"s_mul_i32 s32, s72, {MT*16*4096}"); a("s_lshl_b32 s33, s73, 8"); a("s_add_u32 s32, s32, s33"); a("v_add_u32 v20, s32, v20")
    for tt in range(1, MT): a(f"v_add_u32 v{20+tt}, {tt*65536}, v20")

def task_g5(a):
    gemm.setup_a_frag(a, OA_T); gemm.setup_w(a, 2048)
    a("s_lshl_b32 s32, s31, 2"); a(f"s_add_u32 s32, s32, {D_AO}")
    wait_cnt(a, "s32", 4)
    wstamp(a, 0)
    a(f"s_mul_i32 s32, s31, {16*OA_T}"); a(f"s_add_u32 s32, s32, {WS_OA}"); wside(a, 80, "s32", "s33")
    a("s_lshl_b32 s32, s30, 9"); a("s_add_u32 s82, s8, s32"); a("s_addc_u32 s83, s9, 0")
    a("s_mov_b32 s66, 7")
    gemm.call(a, "core_T")
    wstamp(a, 0)
    out_offsets(a, 4)
    a("s_lshl_b32 s32, s31, 20"); a("s_lshl_b32 s33, s30, 9"); a("s_add_u32 s32, s32, s33"); a("s_add_u32 s34, s24, s32"); a("s_addc_u32 s35, s25, 0")
    gemm.epi_out_store(a, "s[34:35]", 4, "" if "outpl" in rec.OPT else "sc1")

def task_wot(a):
    a("s_barrier")
    a("v_lshrrev_b32 v2, 4, v0"); a("v_lshlrev_b32 v2, 11, v2"); a("v_and_b32 v3, 15, v0"); a("v_lshl_add_u32 v2, v3, 4, v2")
    a("s_lshl_b32 s32, s30, 18"); a("s_lshl_b32 s33, s31, 17"); a("s_add_u32 s32, s32, s33"); a("s_lshl_b32 s33, s75, 8"); a("s_add_u32 s32, s32, s33"); a("v_add_u32 v2, s32, v2")
    a("s_lshl_b32 s43, s75, 14")
    for i in range(16):
        a(f"s_add_u32 m0, s43, {i*1024}"); a("s_nop 0")
        a("global_load_lds_dwordx4 v2, s[20:21]")
        a("v_add_u32 v2, 0x2000, v2")
    a("v_lshrrev_b32 v3, 2, v0"); a("v_lshlrev_b32 v3, 8, v3"); a("v_and_b32 v16, 3, v0"); a("v_lshl_add_u32 v3, v16, 4, v3"); a("v_add_u32 v3, s43, v3")
    a("s_lshl_b32 s32, s75, 21"); a("s_lshl_b32 s33, s30, 14"); a("s_add_u32 s32, s32, s33"); a("s_lshl_b32 s33, s31, 12"); a("s_add_u32 s32, s32, s33"); a(f"s_add_u32 s32, s32, {rec.WS_WOT}")
    wside(a, 34, "s32", "s33")
    a("v_lshlrev_b32 v20, 4, v0")
    for i in range(1, 4): a(f"v_add_u32 v{20+i}, {i*rec.WOT_CG}, v20")
    a("s_waitcnt vmcnt(0)")
    for cgl in range(4):
        for jl in range(2):
            for ct in range(2):
                b = 32 + ((cgl*2 + jl)*2 + ct)*4
                for lo in range(2):
                    a(f"ds_read_b64_tr_b16 {R('v', b + 2*lo, 2)}, v3 offset:{(32*jl + 16*lo)*256 + cgl*64 + ct*8}")
        a("s_waitcnt lgkmcnt(0)")
        for jl in range(2):
            for ct in range(2):
                a(f"global_store_dwordx4 v{20+cgl}, {R('v', 32 + ((cgl*2 + jl)*2 + ct)*4)}, s[34:35] offset:{jl*2048 + ct*1024} sc1")
    lab = a.newlabel("sig")
    a("s_waitcnt vmcnt(0)"); a("s_barrier")
    a("s_cmp_lg_u32 s75, 0"); a(f"s_cbranch_scc1 {lab}")
    a("s_lshl_b32 s32, s31, 7"); a("s_lshl_b32 s33, s30, 2"); a("s_add_u32 s32, s32, s33"); a(f"s_add_u32 s32, s32, {rec.WS_FLAG + 108*128}")
    a("v_mov_b32 v16, s32"); a("v_mov_b32 v17, 0")
    a("s_mov_b64 exec, 1"); a("global_store_dword v16, v17, s[28:29] sc1"); a("s_mov_b64 exec, -1")
    a.label(lab)

def task_g3(a, MT):
    sh = MT - 1
    a("s_lshl_b32 s32, s30, 3"); a("s_add_u32 s32, s32, s75"); a("s_lshl_b32 s32, s32, 19"); a(f"s_add_u32 s32, s32, {rec.WS_WOT}")
    rec.near_bit(a, "s33", "s32", "s22", True); a("s_add_u32 s32, s32, s33")
    gemm.setup_a_frag(a, 262144, MT); gemm.setup_w_frag(a, "s32")
    wot_wait(a)
    lp, ok = a.newlabel("fl"), a.newlabel("fo")
    a("s_cmp_lg_u32 s75, 0"); a(f"s_cbranch_scc1 {ok}")
    a(f"s_lshl_b32 s32, s31, {8 + sh}"); a(f"s_add_u32 s32, s32, {rec.WS_FLAG}"); a("v_lshl_add_u32 v16, v0, 2, s32")
    a.label(lp)
    a("global_load_dword v17, v16, s[28:29] sc1"); a(f"global_load_dword v19, v16, s[28:29] offset:{256*sh} sc1"); a("s_waitcnt vmcnt(0)")
    a("v_or_b32 v17, v17, v19")
    a("v_cmp_ne_u32 vcc, 0, v17"); a(f"s_cbranch_vccz {ok}")
    a("s_sleep 8")
    a("s_add_u32 s46, s46, 1"); a(f"s_cmp_lt_u32 s46, {WSPIN}"); a(f"s_cbranch_scc1 {lp}")
    a("s_branch w_fail")
    a.label(ok)
    wstamp(a, 0)
    a(f"s_lshl_b32 s32, s31, {20 + sh}"); a(f"s_add_u32 s32, s32, {WS_O}"); wside(a, 80, "s32", "s33")
    a("s_mov_b64 s[82:83], s[28:29]")
    a("s_mov_b32 s66, 31")
    a("s_add_u32 s32, s31, s30"); a("s_and_b32 s78, s32, 3"); a("s_lshl_b32 s78, s78, 11"); a("s_and_b32 s33, s32, 4"); a("s_lshl_b32 s33, s33, 12"); a("s_or_b32 s78, s78, s33")
    a("s_and_b32 s79, s32, 1"); a("s_lshl_b32 s79, s79, 12"); a("s_and_b32 s33, s32, 6"); a("s_lshl_b32 s33, s33, 13"); a("s_or_b32 s79, s79, s33")
    gemm.call(a, f"core_F{MT}")
    a("v_and_b32 v26, 15, v0"); a("v_lshlrev_b32 v26, 12, v26"); a("v_lshrrev_b32 v25, 4, v0"); a("v_lshl_add_u32 v20, v25, 4, v26")
    a(f"s_lshl_b32 s32, s72, {16 + sh}"); a("s_lshl_b32 s33, s73, 8"); a("s_add_u32 s32, s32, s33"); a("v_add_u32 v20, s32, v20"); a("v_add_u32 v21, 0x10000, v20")
    a(f"s_lshl_b32 s32, s31, {18 + sh}"); a("s_lshl_b32 s33, s30, 9"); a("s_add_u32 s32, s32, s33"); a("s_add_u32 s32, s32, 2048"); a("s_add_u32 s34, s24, s32"); a("s_addc_u32 s35, s25, 0")
    gemm.epi_frag_store(a, "s[34:35]", "sc1", MT, 64)

def softmax_cols(a, regs, t):
    a(f"v_max3_f32 v{t}, v{regs[0]}, v{regs[1]}, v{regs[2]}")
    rest = regs[3:]
    while len(rest) >= 2:
        a(f"v_max3_f32 v{t}, v{t}, v{rest[0]}, v{rest[1]}"); rest = rest[2:]
    if rest: a(f"v_max_f32 v{t}, v{t}, v{rest[0]}")
    for sw in ("16", "32"):
        a(f"v_mov_b32 v{t+1}, v{t}"); a("s_nop 1"); a(f"v_permlane{sw}_swap_b32 v{t}, v{t+1}"); a(f"v_max_f32 v{t}, v{t}, v{t+1}")
    a(f"v_mul_f32 v{t}, s40, v{t}")
    for r in regs: a(f"v_fma_f32 v{r}, v{r}, s40, -v{t}")
    for r in regs: a(f"v_exp_f32 v{r}, v{r}")

def task_g2a(a):
    gemm.setup_a_rowmajor(a, 2048); gemm.setup_w(a, 8192)
    a("s_lshl_b32 s32, s31, 19"); a("s_add_u32 s80, s10, s32"); a("s_addc_u32 s81, s11, 0")
    a("s_lshl_b32 s32, s30, 9"); a("s_add_u32 s82, s14, s32"); a("s_addc_u32 s83, s15, 0")
    a("s_mov_b32 s66, 7")
    gemm.call(a, "core_T")
    wstamp(a, 0)
    a("s_lshl_b32 s38, s31, 3"); a("s_lshl_b32 s33, s72, 1"); a("s_add_u32 s38, s38, s33"); a("s_mov_b32 s39, s38"); a("s_lshl_b32 s38, s38, 5")
    a("s_lshl_b32 s42, s30, 1"); a("s_add_u32 s42, s42, s73"); a("s_add_u32 s38, s38, s42")
    a("s_lshl_b32 s34, s38, 14"); a(f"s_add_u32 s34, s34, {rec.WS_KX}"); rec.near(a, 32, "s34", "s22", 28, "s35", kv=True)
    rec.v_from_k(a, 34, 32)
    a("v_lshlrev_b32 v16, 4, v0"); a("v_add_u32 v17, 0x1000, v16"); a("v_add_u32 v18, 0x80000, v16"); a("v_add_u32 v19, 0x81000, v16")
    a("s_mul_i32 s43, s75, 20480")
    kp, kok = a.newlabel("kp"), a.newlabel("ko")
    rec.kv_tile(a, "s47", "s39", "s48"); a("s_lshl_b32 s47, s47, 7"); a("s_lshl_b32 s48, s30, 2"); a("s_add_u32 s47, s47, s48"); a(f"s_add_u32 s47, s47, {rec.WS_FLAG + 96*128}")
    a("v_mov_b32 v22, s47"); a("v_mov_b32 v23, 0")
    a.label(kp)
    a("global_load_dword v26, v22, s[28:29] sc1"); a("global_load_dword v27, v22, s[28:29] offset:64 sc1")
    a(f"global_load_dword v24, v23, s[26:27] offset:{D_PROG} sc1"); a("s_waitcnt vmcnt(0)")
    a("v_or_b32 v26, v26, v27"); a("v_cmp_ne_u32 vcc, 0, v26"); a(f"s_cbranch_vccz {kok}")
    a("s_sleep 12")
    a("s_add_u32 s46, s46, 1"); a(f"s_cmp_lt_u32 s46, {WSPIN}"); a(f"s_cbranch_scc1 {kp}")
    a("s_branch w_fail")
    a.label(kok)
    def take_progress():
        a("v_readfirstlane_b32 s48, v24"); a("s_nop 0")
        a("s_max_u32 s48, s48, 1"); a("s_sub_u32 s48, s48, 1")
    take_progress()
    a("s_barrier")
    def m_wait(seg):
        lp, ok, nf = a.newlabel("ap"), a.newlabel("ao"), a.newlabel("nf")
        a.label(lp)
        a(f"s_cmp_lt_u32 {seg}, s48"); a(f"s_cbranch_scc1 {ok}")
        a("s_cmp_lt_u32 s48, 59"); a(f"s_cbranch_scc1 {nf}")
        a("s_sleep 2")
        a("global_load_dwordx4 v[24:27], v31, s[28:29] sc1"); a("s_waitcnt vmcnt(0)")
        a("v_min3_i32 v24, v24, v25, v26"); a("v_min_i32 v24, v24, v27"); a("s_nop 0"); a("v_readfirstlane_b32 s49, v24")
        a("s_add_u32 s49, s49, 1"); a("s_max_u32 s48, s48, s49")
        a("s_add_u32 s46, s46, 1"); a(f"s_cmp_lt_u32 s46, {WSPIN}"); a(f"s_cbranch_scc1 {lp}")
        a("s_branch w_fail")
        a.label(nf)
        a("s_sleep 8")
        a(f"global_load_dword v24, v23, s[26:27] offset:{D_PROG} sc1"); a("s_waitcnt vmcnt(0)")
        take_progress()
        a("s_add_u32 s46, s46, 1"); a(f"s_cmp_lt_u32 s46, {WSPIN}"); a(f"s_cbranch_scc1 {lp}")
        a("s_branch w_fail")
        a.label(ok)
    def kv_loads(sg):
        for kt in range(2):
            for jj in range(4):
                a(f"global_load_dwordx4 {R('a', sg*32 + (kt*4 + jj)*4)}, v{16 + sg*2 + kt}, s[32:33] offset:{jj*1024} sc1")
            a(f"s_add_u32 m0, s43, {sg*10240 + kt*4096}"); a("s_nop 0")
            for jj in range(4):
                a(f"global_load_lds_dwordx4 v{16 + sg*2 + kt}, s[34:35] offset:{jj*1024} sc1")
    a("s_lshl_b32 s47, s42, 7"); a(f"s_add_u32 s47, s47, {rec.WS_FLAG + 8192}"); a("v_mov_b32 v31, s47")
    a("s_max_u32 s54, s39, 5"); a("s_sub_u32 s54, s54, 5")
    m_wait("s54")
    kv_loads(0)
    pack_frags(a)
    a("s_lshr_b32 s50, s38, 1"); a("s_lshl_b32 s50, s50, 14"); a("s_and_b32 s51, s38, 1"); a("s_lshl_b32 s51, s51, 12"); a("s_add_u32 s50, s50, s51"); a(f"s_add_u32 s50, s50, {rec.WS_KMVM}")
    rec.near(a, 52, "s50", "s22", 28, "s51")
    a("v_and_b32 v28, 7, v0"); a("v_lshlrev_b32 v28, 4, v28"); a("v_lshrrev_b32 v24, 4, v0"); a("v_lshl_add_u32 v28, v24, 7, v28")
    XB = (108, 32)
    def m_loads(sg):
        for jj in range(4): a(f"global_load_dwordx4 {R('v', XB[sg] + 4*jj)}, v28, s[52:53] offset:{jj*512} sc1")
        for i in range(2): a(f"global_load_dwordx4 {R('v', XB[sg] + 16 + 4*i)}, v16, s[52:53] offset:{2048 + i*1024} sc1")
        a("s_add_u32 s52, s52, 0x40000"); a("s_addc_u32 s53, s53, 0")
    def seg_signal(seg):
        a(f"s_lshl_b32 s47, {seg}, 7"); a("s_lshl_b32 s49, s42, 2"); a("s_add_u32 s47, s47, s49"); a(f"s_add_u32 s47, s47, {rec.WS_FLAG}")
        a(f"s_lshl_b32 s50, {seg}, 10"); a("s_lshr_b32 s49, s42, 2"); a("s_lshl_b32 s49, s49, 7"); a("s_add_u32 s50, s50, s49"); a("s_and_b32 s49, s42, 3"); a("s_lshl_b32 s49, s49, 2")
        a("s_add_u32 s50, s50, s49"); a(f"s_add_u32 s50, s50, {rec.WS_FLAG2 - 48*1024}")
        a(f"s_cmp_ge_u32 {seg}, 48"); a("s_cselect_b32 s47, s50, s47"); a("v_mov_b32 v29, s47")
        a("s_waitcnt vmcnt(0)")
        a("s_mov_b64 exec, 1")
        a("global_store_dword v29, v23, s[28:29] sc1")
        a("s_mov_b64 exec, -1")
    early, late = a.newlabel("e0"), a.newlabel("l0")
    a("s_cmp_lt_u32 s39, s48"); a(f"s_cbranch_scc1 {early}")
    kv_loads(1); m_wait("s39"); m_loads(0)
    a("s_waitcnt vmcnt(0)")
    a(f"s_branch {late}")
    a.label(early)
    m_loads(0); kv_loads(1)
    a.label(late)
    a("v_lshrrev_b32 v24, 4, v0"); a("v_lshlrev_b32 v24, 2, v24"); a("v_and_b32 v25, 15, v0"); a("v_mov_b32 v26, 0xff800000")
    for i in range(4):
        a(f"v_add_u32 v27, {i}, v24"); a("v_cmp_gt_u32 vcc, v27, v25"); a("s_nop 1"); a(f"v_cndmask_b32 v{96+i}, 0, v26, vcc")
    a("v_cmp_gt_u32 vcc, 32, v0"); a("s_nop 1")
    for i in range(4): a(f"v_cndmask_b32 v{100+i}, 0, v26, vcc")
    for i in range(4): a(f"v_mov_b32 v{104+i}, 0x3f803f80")
    a("v_and_b32 v24, 3, v0"); a("v_lshrrev_b32 v25, 2, v0")
    a("v_lshlrev_b32 v18, 4, v25"); a("v_lshl_add_u32 v18, v24, 8, v18"); a("v_add_u32 v18, s43, v18")
    a("v_and_b32 v25, 7, v25"); a("v_lshlrev_b32 v19, 4, v25"); a("v_lshl_add_u32 v19, v24, 7, v19"); a("v_add_u32 v19, s43, v19")
    a("v_add_u32 v20, s43, v16")
    a("v_mov_b32 v21, v16"); a("v_add_u32 v22, 0x40000, v21")
    a("s_lshl_b32 s50, s39, 19"); a("s_lshl_b32 s51, s30, 14"); a("s_add_u32 s50, s50, s51"); a("s_lshl_b32 s51, s73, 12"); a("s_add_u32 s50, s50, s51"); a(f"s_add_u32 s50, s50, {WS_O}")
    wside(a, 36, "s50", "s51")
    a(f"s_mov_b32 s40, {SCL}")
    a("s_add_u32 s54, s39, 1")
    for sg in range(2):
        lo = sg*10240
        xb = XB[sg]
        if sg == 0:
            a("s_waitcnt vmcnt(16)")
        else:
            have = a.newlabel("h1")
            a("s_cmp_eq_u32 s55, 1"); a(f"s_cbranch_scc1 {have}")
            seg_signal("s39"); m_wait("s54"); tstamp(a, 0, 2, 3); m_loads(1)
            a("s_waitcnt vmcnt(0)"); tstamp(a, 1, 2, 3)
            a.label(have)
            a("s_waitcnt vmcnt(8)")
        for i in range(2): a(f"ds_write_b128 v20, {R('v', xb + 16 + 4*i)} offset:{lo + 8192 + i*1024}")
        tiles = [(132, 0, 0, "v[96:99]"), (136, 2, 0, "v[100:103]"), (140, 0, 1, "0"), (144, 1, 1, "v[96:99]"), (148, 2, 1, "v[100:103]")]
        for jj in range(4):
            for d, kt, qt, C in tiles:
                A = R('v', xb + 4*jj) if kt == 2 else R('a', sg*32 + (kt*4 + jj)*4)
                a(f"v_mfma_f32_16x16x32_bf16 {R('v', d)}, {A}, {frag(2*sg + qt, jj)}, " + (C if jj == 0 else R('v', d)))
        if sg == 0:
            no = a.newlabel("n1")
            a("s_mov_b32 s55, 0")
            a("s_cmp_lt_u32 s54, s48"); a(f"s_cbranch_scc0 {no}")
            m_loads(1); a("s_mov_b32 s55, 1")
            a.label(no)
        def vread(jj):
            b = 64 + (jj & 1)*12
            for hf in range(2):
                for kt in range(2):
                    a(f"ds_read_b64_tr_b16 {R('a', b + hf*4 + kt*2, 2)}, v18 offset:{lo + kt*4096 + jj*1024 + hf*8}")
                a(f"ds_read_b64_tr_b16 {R('a', b + 8 + hf*2, 2)}, v19 offset:{lo + 8192 + jj*512 + hf*8}")
        vread(0)
        a("s_nop 3")
        softmax_cols(a, list(range(132, 140)), 24)
        softmax_cols(a, list(range(140, 152)), 24)
        a("s_nop 0")
        a("v_cvt_pk_bf16_f32 v108, v132, v133"); a("v_cvt_pk_bf16_f32 v109, v134, v135"); a("v_mov_b32 v110, 0"); a("v_mov_b32 v111, 0")
        a("v_cvt_pk_bf16_f32 v112, v136, v137"); a("v_cvt_pk_bf16_f32 v113, v138, v139")
        for i in range(4): a(f"v_cvt_pk_bf16_f32 v{116+i}, v{140+2*i}, v{141+2*i}")
        a("v_cvt_pk_bf16_f32 v114, v148, v149"); a("v_cvt_pk_bf16_f32 v115, v150, v151")
        P0 = ["v[108:111]", "v[116:119]"]; P1 = ["v[112:113]", "v[114:115]"]
        a("s_nop 1")
        for qt in range(2): a(f"v_mfma_f32_16x16x32_bf16 {R('v', 120 + 4*qt)}, v[104:107], {P0[qt]}, 0")
        a("s_nop 5")
        for qt in range(2): a(f"v_mfma_f32_16x16x16_bf16 {R('v', 120 + 4*qt)}, v[104:105], {P1[qt]}, {R('v', 120 + 4*qt)}")
        if sg == 1:
            done = a.newlabel("d0")
            a("s_cmp_eq_u32 s55, 1"); a(f"s_cbranch_scc0 {done}")
            seg_signal("s39")
            a.label(done)
        a("s_nop 7")
        a("v_rcp_f32 v24, v120"); a("v_rcp_f32 v26, v124"); a("s_nop 0"); a("v_mov_b32 v25, v24"); a("v_mov_b32 v27, v26")
        for jj in range(4):
            b = 64 + (jj & 1)*12
            if jj < 3:
                vread(jj + 1); a("s_waitcnt lgkmcnt(6)")
            else:
                a("s_waitcnt lgkmcnt(0)")
            for qt in range(2):
                for hf in range(2):
                    a(f"v_mfma_f32_16x16x32_bf16 {R('v', 132 + (qt*2 + hf)*4)}, {R('a', b + hf*4)}, {P0[qt]}, 0")
            a("s_nop 2")
            for qt in range(2):
                for hf in range(2):
                    D = R('v', 132 + (qt*2 + hf)*4)
                    a(f"v_mfma_f32_16x16x16_bf16 {D}, {R('a', b + 8 + hf*2, 2)}, {P1[qt]}, {D}")
            a("s_nop 7")
            for qt in range(2):
                o = 132 + qt*8
                for i in range(0, 8, 2): a(f"v_pk_mul_f32 v[{o+i}:{o+i+1}], v[{o+i}:{o+i+1}], v[{24+2*qt}:{25+2*qt}]")
                for i in range(4): a(f"v_cvt_pk_bf16_f32 v{152 + 4*qt + i}, v{o+2*i}, v{o+2*i+1}")
                a(f"global_store_dwordx4 v{21+qt}, {R('v', 152 + 4*qt)}, s[36:37] offset:{jj*1024} sc1")
        if sg == 0:
            a("s_add_u32 s36, s36, 0x80000"); a("s_addc_u32 s37, s37, 0")
    tstamp(a, 2, 2, 3)
    seg_signal("s54")
    tstamp(a, 3, 2, 3)

def sreg(i): return R('a', 4*i) if i < 24 else R('v', 128 + 4*(i - 24))
def wot_wait(a):
    lp, ok = a.newlabel("tl"), a.newlabel("to")
    a("s_cmp_lg_u32 s75, 0"); a(f"s_cbranch_scc1 {ok}")
    a("v_lshlrev_b32 v18, 2, v0"); a(f"v_add_u32 v18, {rec.WS_FLAG + 108*128}, v18")
    a.label(lp)
    a("global_load_dword v19, v18, s[28:29] sc1"); a("s_waitcnt vmcnt(0)")
    a("v_cmp_ne_u32 vcc, 0, v19"); a(f"s_cbranch_vccz {ok}")
    a("s_sleep 8")
    a("s_add_u32 s46, s46, 1"); a(f"s_cmp_lt_u32 s46, {WSPIN}"); a(f"s_cbranch_scc1 {lp}")
    a("s_branch w_fail")
    a.label(ok)

def task_stream(a):
    wot_wait(a)
    a("s_barrier")
    a("s_lshl_b32 s43, s75, 15")
    a("s_lshl_b32 s32, s45, 19"); a("s_lshl_b32 s33, s75, 16"); a("s_add_u32 s32, s32, s33"); a(f"s_add_u32 s32, s32, {rec.WS_WOT}")
    rec.near_bit(a, "s33", "s32", "s22", True); a("s_add_u32 s32, s32, s33")
    a("s_add_u32 s36, s75, s45"); a("s_and_b32 s36, s36, 3")
    a("v_lshlrev_b32 v10, 4, v0"); a("v_add_u32 v6, s32, v10"); a("s_lshl_b32 s33, s36, 14"); a("v_xor_b32 v6, s33, v6")
    for i in range(32):
        if i & 3 == 0: a(f"v_xor_b32 v2, {(i >> 3)*16384 + ((i >> 2) & 1)*4096}, v6")
        a(f"global_load_dwordx4 {sreg(i)}, v2, s[28:29] offset:{(i & 3)*1024} sc1")
    a("s_and_b32 s33, s36, 1"); a("s_lshl_b32 s33, s33, 12"); a("s_add_u32 s32, s43, s33"); a("s_lshr_b32 s33, s36, 1"); a("s_lshl_b32 s33, s33, 14"); a("s_add_u32 s32, s32, s33")
    a("v_add_u32 v2, s32, v10")
    for i in range(1, 4): a(f"v_xor_b32 v{2+i}, {(i & 1)*4096 + (i >> 1)*16384}, v2")
    a("s_lshl_b32 s32, s75, 11"); a("v_add_u32 v11, s32, v10")
    a("v_lshrrev_b32 v13, 4, v0"); a("s_and_b32 s32, s75, 3"); a("s_lshl_b32 s32, s32, 2"); a("v_add_u32 v13, s32, v13")
    a("v_bfe_u32 v14, v0, 2, 2"); a("v_lshl_add_u32 v12, v14, 4, v13"); a("v_lshlrev_b32 v12, 4, v12")
    a("v_and_b32 v14, 1, v0"); a("v_lshl_add_u32 v12, v14, 3, v12"); a("v_bfe_u32 v14, v0, 1, 1"); a("v_lshl_add_u32 v12, v14, 10, v12")
    a("v_lshlrev_b32 v13, 12, v13"); a("v_and_b32 v14, 15, v0"); a("v_lshl_add_u32 v13, v14, 2, v13")
    a("s_lshl_b32 s33, s45, 6"); a(f"s_add_u32 s33, s33, {2048 + 96*65536}"); a("v_add_u32 v13, s33, v13")
    a("s_and_b32 s32, s45, 3"); a("s_lshl_b32 s32, s32, 11"); a("s_bfe_u32 s33, s45, 0x10002"); a("s_lshl_b32 s33, s33, 14"); a("s_add_u32 s32, s32, s33"); a("s_add_u32 s32, s32, s43")
    a("v_and_b32 v10, 31, v0"); a("v_lshl_add_u32 v10, v10, 6, s32")
    a("v_and_b32 v9, 3, v0"); a("v_lshlrev_b32 v9, 2, v9"); a("s_lshl_b32 s32, s75, 7"); a(f"s_add_u32 s32, s32, {rec.WS_FLAG2}"); a("v_add_u32 v9, s32, v9")
    a("v_mov_b32 v8, 0"); a(f"v_mov_b32 v6, {rec.WS_FLAG + 127*128}")
    wstamp(a, 0)
    def pick(dst):
        a(f"s_ff1_i32_b32 {dst}, s34"); a(f"s_bitset0_b32 s34, {dst}")
    def base(dst, item):
        a(f"s_and_b32 s32, {item}, 31"); a("s_lshl_b32 s32, s32, 18"); a(f"s_add_u32 s32, s32, {WS_O + 96*262144}"); wside(a, dst, "s32", "s33")
    def poll(item):
        a(f"s_bfe_u32 s32, {item}, 0x40001"); a("s_lshl_b32 s32, s32, 10"); a("v_add_u32 v14, s32, v9")
        a("global_load_dword v15, v14, s[28:29] sc1")
    def look(item, touch):
        lab, j = a.newlabel("lk"), a.newlabel("lj")
        a(f"global_load_dword v7, v8, s[26:27] offset:{D_PROG} sc1")
        a(f"s_bfe_u32 s32, {item}, 0x40001"); a("s_add_u32 s32, s32, 51"); a("s_min_u32 s32, s32, 63"); a("s_cmp_le_u32 s32, s37"); a(f"s_cbranch_scc1 {lab}")
        a("global_load_dword v15, v6, s[28:29] sc1")
        if touch: a("global_load_dword v124, v10, s[38:39] sc1")
        a(f"s_branch {j}")
        a.label(lab)
        poll(item)
        if touch:
            base(48, item); a("global_load_dword v124, v10, s[48:49] sc1")
        a.label(j)
    def oload(k):
        a(f"global_load_dwordx4 {R('v', 32 + k*4)}, v{2 + (k >> 2)}, s[38:39] offset:{(k & 3)*1024} sc1")
    def finish(item):
        lab = a.newlabel("fn")
        a("s_waitcnt lgkmcnt(0)"); a("s_barrier")
        a("s_cmp_lt_u32 s75, 4"); a(f"s_cbranch_scc0 {lab}")
        for m in range(8): a(f"ds_read_b64 v[{100+2*m}:{101+2*m}], v12 offset:{m*2048}")
        a(f"s_lshl_b32 s32, {item}, 16"); a("s_add_u32 s40, s24, s32"); a("s_addc_u32 s41, s25, 0")
        a("v_xor_b32 v12, 0x4000, v12")
        a("s_waitcnt lgkmcnt(0)")
        for step in (8, 4, 2):
            for i in range(0, step, 2):
                a(f"v_pk_add_f32 v[{100+i}:{101+i}], v[{100+i}:{101+i}], v[{100+step+i}:{101+step+i}]")
        a("v_cvt_pk_bf16_f32 v1, v100, v101")
        a("global_store_dword v13, v1, s[40:41]")
        a.label(lab)
    def pending():
        lab = a.newlabel("pd")
        a("s_cmp_lt_i32 s35, 0"); a(f"s_cbranch_scc1 {lab}")
        finish("s35")
        a.label(lab)
    def mm(k, wait):
        a(f"s_waitcnt vmcnt({wait})")
        for ct in range(2):
            D = R('v', 16 + ct*4)
            a(f"v_mfma_f32_16x16x32_bf16 {D}, {sreg(k*2 + ct)}, {R('v', 32 + k*4)}, " + ("0" if k == 0 else D))
    def park():
        a("s_nop 7")
        for f in range(2): a(f"ds_write_b128 v11, {R('v', 16 + f*4)} offset:{f*1024}")
        a("v_xor_b32 v11, 0x4000, v11")
    pick("s31"); pick("s36")
    a("s_mov_b32 s37, 0")
    a.label("st_wait")
    a("s_lshr_b32 s32, s31, 1"); a("s_add_u32 s32, s32, 49"); a("s_min_u32 s32, s32, 63"); a("s_cmp_le_u32 s32, s37"); a("s_cbranch_scc1 st_near")
    a("s_sleep 6")
    a(f"global_load_dword v7, v8, s[26:27] offset:{D_PROG} sc1"); a("s_waitcnt vmcnt(0)")
    a("v_readfirstlane_b32 s37, v7")
    a("s_branch st_more")
    a.label("st_near")
    poll("s31"); a("s_waitcnt vmcnt(0)")
    a("v_cmp_ne_u32 vcc, 0, v15"); a("s_cbranch_vccz st_rdy")
    a("s_sleep 4")
    a.label("st_more")
    a("s_add_u32 s46, s46, 1"); a(f"s_cmp_lt_u32 s46, {WSPIN}"); a("s_cbranch_scc1 st_wait")
    a("s_branch w_fail")
    a.label("st_rdy")
    tstamp(a, 4)
    base(38, "s31")
    a("global_load_dword v124, v10, s[38:39] sc1")
    a("s_xor_b32 s32, s31, s36"); a("s_cmp_eq_u32 s32, 1"); a("s_cbranch_scc1 st_same")
    look("s36", False)
    a.label("st_same")
    for k in range(16): oload(k)
    a("s_mov_b32 s35, -1")
    a.label("st_item")
    a("s_mov_b32 s30, s31"); a("s_mov_b32 s31, s36"); pick("s36")
    a("s_waitcnt vmcnt(16)")
    a("v_cmp_ne_u32 vcc, 0, v15"); a("v_readfirstlane_b32 s37, v7")
    a("s_cmp_lt_i32 s31, 0"); a("s_cbranch_scc1 st_slow")
    a("s_cbranch_vccnz st_slow")
    base(38, "s31")
    look("s36", True)
    for k in range(16):
        mm(k, 18); oload(k)
        if k == 3: pending()
    park()
    a("s_mov_b32 s35, s30")
    a("s_branch st_item")
    a.label("st_slow")
    pending()
    for k in range(16): mm(k, 15 - k)
    tstamp(a, 5)
    park(); finish("s30")
    tstamp(a, 6)
    a("s_cmp_lt_i32 s31, 0"); a("s_cbranch_scc0 st_wait")

def emit_mega(a, prof=False):
    kernel_begin(a, NAME + "_kernel")
    a("s_cmp_ge_u32 s2, 256"); a("s_cbranch_scc1 w_exit")
    if "span" in rec.OPT: a("s_memrealtime s[100:101]")
    load_ptrs(a)
    a("s_getreg_b32 s44, hwreg(HW_REG_XCC_ID)"); a("s_and_b32 s44, s44, 7")
    a("v_lshrrev_b32 v1, 6, v0"); a("v_mov_b32 v2, 0"); a("s_mov_b32 s46, 0")
    a("v_readfirstlane_b32 s75, v1")
    a("s_waitcnt lgkmcnt(0)")
    a("s_add_u32 s28, s28, 0x1fffff"); a("s_addc_u32 s29, s29, 0"); a("s_and_b32 s28, s28, 0xffe00000")
    if "nowarm" not in rec.OPT:
        a("s_cmp_eq_u32 s75, 2"); a("s_cbranch_scc0 no_warm")
        a("s_getpc_b64 s[30:31]")
        a.label("warm_pc")
        a("s_lshr_b32 s32, s2, 3"); a("s_lshl_b32 s32, s32, 12"); a("v_and_b32 v3, 63, v0"); a("v_lshl_add_u32 v3, v3, 6, s32")
        a("v_min_u32 v3, code_end-warm_pc-4, v3"); a("v_and_b32 v3, -4, v3")
        a("global_load_dword a95, v3, s[30:31]")
        a.label("no_warm")
    a("s_cmp_eq_u32 s75, 1"); a("s_cbranch_scc0 no_probe")
    a("s_mov_b32 s47, 0")
    a("s_cmp_lt_u32 s44, 4"); a("s_cbranch_scc0 probe_done")
    a(f"s_add_u32 s30, s28, {rec.WS_PROBE}"); a("s_addc_u32 s31, s29, 0")
    a("s_lshr_b32 s32, s2, 5"); a("s_and_b32 s33, s32, 1"); a("s_lshr_b32 s32, s32, 1"); a("s_lshl_b32 s32, s32, 2"); a("s_add_u32 s32, s32, s33"); a("s_lshl_b32 s32, s32, 12")
    a("s_and_b32 s33, s2, 31"); a("s_lshl_b32 s33, s33, 7"); a("s_add_u32 s32, s32, s33")
    a("v_mov_b32 v3, s32")
    a("s_mov_b64 exec, 1")
    a("s_mov_b32 s38, -1"); a("s_mov_b32 s39, -1"); a("s_mov_b32 s40, 6")
    a.label("probe_loop")
    a("s_memtime s[34:35]"); a("s_waitcnt lgkmcnt(0)")
    a("global_store_dword v3, v2, s[30:31] sc1"); a("s_waitcnt vmcnt(0)")
    a("s_memtime s[36:37]"); a("s_waitcnt lgkmcnt(0)")
    a("s_sub_u32 s36, s36, s34"); a("s_min_u32 s36, s36, s38"); a("s_mov_b32 s38, s39"); a("s_mov_b32 s39, s36")
    a("v_xor_b32 v3, 0x2000, v3")
    a("s_sub_u32 s40, s40, 1"); a("s_cmp_lg_u32 s40, 0"); a("s_cbranch_scc1 probe_loop")
    a("s_mov_b64 exec, -1")
    a("s_cmp_lt_u32 s39, s38"); a("s_cselect_b32 s47, 1, 0")
    a.label("probe_done")
    a("v_mov_b32 v3, s47"); a("ds_write_b32 v2, v3 offset:4")
    a.label("no_probe")
    a("s_cmp_lg_u32 s75, 0"); a("s_cbranch_scc1 role_wait")
    a("s_and_b32 s32, s44, 3"); a("s_lshl_b32 s32, s32, 2"); a("s_and_b32 s33, s44, 4"); a("s_lshl_b32 s33, s33, 5"); a("s_add_u32 s32, s32, s33")
    a("v_mov_b32 v3, s32"); a("v_mov_b32 v4, 1")
    a("s_mov_b64 exec, 1")
    a("global_atomic_add v5, v3, v4, s[26:27] sc0 sc1"); a("s_waitcnt vmcnt(0)")
    a("v_readfirstlane_b32 s45, v5")
    a("s_cmp_lt_u32 s45, 32"); a("s_cbranch_scc1 role_have")
    a(f"v_mov_b32 v3, {D_OVF}")
    a("global_atomic_add v5, v3, v4, s[26:27] sc0 sc1"); a("s_waitcnt vmcnt(0)")
    a("v_readfirstlane_b32 s45, v5")
    a.label("role_poll")
    a("global_load_dwordx4 v[8:11], v2, s[26:27] sc1"); a("global_load_dwordx4 v[12:15], v2, s[26:27] offset:128 sc1"); a("s_waitcnt vmcnt(0)")
    a("s_mov_b32 s33, 0")
    for i in range(8):
        a(f"v_readfirstlane_b32 s{34+i}, v{8+i}"); a(f"s_add_u32 s33, s33, s{34+i}")
    a("s_cmp_eq_u32 s33, 256"); a("s_cbranch_scc1 role_pick")
    a("s_sleep 8"); a("s_add_u32 s46, s46, 1"); a(f"s_cmp_lt_u32 s46, {WSPIN}"); a("s_cbranch_scc1 role_poll")
    a("s_mov_b64 exec, -1"); a("s_branch w_fail")
    a.label("role_pick")
    for i in range(8):
        a(f"s_min_u32 s33, s{34+i}, 32"); a("s_add_u32 s45, s45, s33"); a(f"s_mov_b32 s44, {i}")
        if i < 7:
            a("s_cmp_lt_u32 s45, 32"); a("s_cbranch_scc1 role_have"); a("s_sub_u32 s45, s45, 32")
    a.label("role_have")
    a("s_lshl_b32 s32, s44, 5"); a("s_or_b32 s32, s32, s45"); a("v_mov_b32 v3, s32")
    a("ds_write_b32 v2, v3")
    a("s_mov_b64 exec, -1")
    a.label("role_wait")
    a("s_waitcnt lgkmcnt(0)"); a("s_barrier")
    a("ds_read_b64 v[4:5], v2"); a("s_waitcnt lgkmcnt(0)")
    a("v_readfirstlane_b32 s32, v4"); a("v_readfirstlane_b32 s47, v5")
    a("s_cmp_lg_u32 s75, 0"); a("s_cbranch_scc1 voted")
    a("s_cmp_ge_u32 s32, 128"); a("s_cbranch_scc1 voted")
    a("s_and_b32 s47, s47, 1"); a("s_lshl_b32 s47, s47, 16"); a("s_or_b32 s47, s47, 1"); a("v_mov_b32 v3, s47")
    a("s_mov_b64 exec, 1")
    a(f"global_atomic_add v2, v3, s[26:27] offset:{rec.DBG_VOTE} sc1")
    a("s_mov_b64 exec, -1")
    a.label("voted")
    a("s_barrier")
    if "span" in rec.OPT:
        a("s_and_b32 s98, s2, 0x38"); a("s_or_b32 s98, s98, s75"); a("s_cmp_lg_u32 s98, 0"); a("s_cbranch_scc1 span1")
        a("s_memrealtime s[98:99]"); a("s_waitcnt lgkmcnt(0)"); a("s_not_b32 s100, s100"); a("v_mov_b32 v4, s100"); a("v_mov_b32 v5, s98")
        a("s_mov_b64 exec, 1"); a("global_atomic_umax v2, v4, s[26:27] offset:48 sc1"); a("global_atomic_umax v2, v5, s[26:27] offset:52 sc1"); a("s_mov_b64 exec, -1")
        a.label("span1")
    a("s_and_b32 s45, s32, 31"); a("s_bfe_u32 s44, s32, 0x30005")
    a("s_cmp_ge_u32 s44, 4"); a("s_cbranch_scc1 worker")
    a("s_lshl_b32 s18, s44, 3"); a("s_lshr_b32 s19, s45, 2"); a("s_add_u32 s18, s18, s19"); a("s_and_b32 s19, s45, 3")
    rec.emit_rec(a, "rec", prof=prof, kvwait=True)
    a.label("worker")
    a("s_sub_u32 s44, s44, 4")
    a("v_and_b32 v0, 63, v0")
    gemm.setup_common(a)
    a("s_mov_b32 s88, 0"); a("s_mov_b32 s89, 0")
    a("s_mov_b32 s59, 0") if PROF else None
    a("s_lshl_b32 s96, s44, 5"); a("s_add_u32 s96, s96, s45"); a("s_lshl_b32 s96, s96, 3"); a("s_add_u32 s96, s96, s75")
    a("s_lshl_b32 s32, s44, 3"); a("s_lshr_b32 s44, s45, 3"); a("s_and_b32 s45, s45, 7"); a("s_add_u32 s45, s45, s32")
    if PROF: a("s_lshl_b32 s97, s44, 5"); a("s_add_u32 s97, s97, s45")
    wstamp(a, 0)
    def g1(grp):
        MT, first = ((2, 0), (3, 32), (3, 80))[grp]
        a("s_mov_b32 s30, s45"); a(f"s_mul_i32 s31, s44, {4*MT}"); a(f"s_add_u32 s31, s31, {first}")
        task_g1(a, MT, grp)
        wstamp(a, 0)
    def tile_2x4():
        a("s_bfe_u32 s30, s45, 0x10003"); a("s_lshl_b32 s30, s30, 1"); a("s_and_b32 s32, s45, 1"); a("s_add_u32 s30, s30, s32")
        a("s_lshr_b32 s31, s45, 4"); a("s_lshl_b32 s31, s31, 2"); a("s_bfe_u32 s32, s45, 0x20001"); a("s_add_u32 s31, s31, s32")
    g1(0)
    a("s_mov_b32 s90, 4"); a("s_mov_b64 s[92:93], s[4:5]"); a("s_mov_b32 s91, 6"); a("s_mov_b64 s[94:95], s[6:7]")
    g1(1)
    a("s_mov_b32 s90, 8"); a("s_mov_b64 s[92:93], s[14:15]"); a("s_mov_b32 s91, 2"); a("s_mov_b64 s[94:95], s[8:9]")
    if not EARLYKV: g1(2)
    a("s_bitcmp1_b32 s44, 0"); a("s_cbranch_scc0 w_g1c")
    tile_2x4()
    a("s_lshr_b32 s32, s44, 1"); a("s_lshl_b32 s32, s32, 2"); a("s_add_u32 s30, s30, s32")
    task_g4kv(a)
    wstamp(a, 0)
    a.label("w_g1c")
    if EARLYKV: g1(2)
    a("s_bitcmp1_b32 s44, 0"); a("s_cbranch_scc1 w_g2a")
    a("s_cmp_eq_u32 s44, 2"); a("s_cbranch_scc1 w_q")
    a("s_mov_b32 s30, s45"); a("s_mov_b32 s31, 0")
    a.label("w_wot")
    task_wot(a)
    a("s_add_u32 s31, s31, 1"); a("s_cmp_lt_u32 s31, 2"); a("s_cbranch_scc1 w_wot")
    wstamp(a, 0)
    a("s_branch w_g2a")
    a.label("w_q")
    tile_2x4()
    task_g4q(a)
    wstamp(a, 0)
    a.label("w_g2a")
    a("s_lshr_b32 s30, s45, 1"); a("s_and_b32 s31, s45, 1"); a("s_lshr_b32 s32, s44, 1"); a("s_xor_b32 s32, s32, s44"); a("s_lshl_b32 s32, s32, 1"); a("s_add_u32 s31, s31, s32")
    task_g2a(a)
    wstamp(a, 0)
    a("s_cmp_eq_u32 s44, 0"); a("s_cbranch_scc1 w_g5")
    a("s_cmp_eq_u32 s44, 2"); a("s_cbranch_scc1 w_set2")
    a("s_lshr_b32 s30, s45, 3")
    a("s_cmp_eq_u32 s44, 3"); a("s_cbranch_scc1 w_f1")
    a("s_and_b32 s31, s45, 7")
    task_g3(a, 2)
    wstamp(a, 0)
    a(f"s_mov_b32 s34, {setmask(1):#x}")
    a("s_branch w_stream")
    a.label("w_f1")
    a("s_lshl_b32 s31, s31, 2"); a("s_bfe_u32 s32, s45, 0x20001"); a("s_add_u32 s31, s31, s32")
    task_g3(a, 1)
    wstamp(a, 0)
    a.label("w_set2")
    a("s_bitcmp1_b32 s45, 0"); a("s_cbranch_scc1 w_exit")
    a("s_and_b32 s32, s44, 1"); a("s_add_u32 s45, s45, s32")
    a(f"s_mov_b32 s34, {setmask(2):#x}")
    a("s_branch w_stream")
    a.label("w_g5")
    tile_2x4()
    task_g5(a)
    wstamp(a, 0)
    a(f"s_mov_b32 s34, {setmask(0):#x}")
    a.label("w_stream")
    task_stream(a)
    wstamp(a, 0)
    if "span" in rec.OPT:
        a("s_and_b32 s98, s45, 7"); a("s_or_b32 s98, s98, s75"); a("s_cmp_lg_u32 s98, 0"); a("s_cbranch_scc1 w_exit")
        a("s_waitcnt vmcnt(0)"); a("s_memrealtime s[98:99]"); a("s_waitcnt lgkmcnt(0)"); a("v_mov_b32 v5, s98"); a("v_mov_b32 v2, 0")
        a("s_mov_b64 exec, 1"); a("global_atomic_umax v2, v5, s[26:27] offset:60 sc1")
    a("s_endpgm")
    a.label("w_fail")
    a("v_mov_b32 v16, 0"); a("v_mov_b32 v17, 0xdead"); a("global_store_dword v16, v17, s[26:27] offset:248")
    a.label("w_exit")
    a("s_endpgm")
    gemm.emit_core(a, "core_T", 'T')
    gemm.emit_core(a, "core_N", 'N')
    gemm.emit_core(a, "core_T3", 'T', MT=3)
    gemm.emit_core(a, "core_T2", 'T', MT=2)
    gemm.WFLAG = "sc1"; gemm.WFRAG = True
    gemm.emit_core(a, "core_F1", 'T', MT=1, aflag="sc1")
    gemm.emit_core(a, "core_F2", 'T', MT=2, aflag="sc1")
    gemm.WFLAG = ""; gemm.WFRAG = False
    a.label("code_end")

def generate(prof=False):
    global PROF
    PROF = bool(prof)
    raw = open(f"cdna_kernels/{NAME}.s.ref").read().split("\n")
    hdr = []
    for l in raw:
        if not l.startswith(";") or "Override" in l: break
        hdr.append(l)
    a = Asm()
    emit_mega(a, prof)
    s = "\n".join(hdr) + "\n"
    s += f"; @launch kernel={NAME}_kernel grid=(256,1,1) block=(512,1,1) lds=163840\n"
    s += '.amdgcn_target "amdgcn-amd-amdhsa--gfx950"\n.text\n' + a.text() + '.section .rodata,"a"\n'
    s += kernel_desc(NAME + "_kernel", vgpr=256, accum=160)
    return s

if __name__ == "__main__":
    out = sys.argv[1] if len(sys.argv) > 1 else f"cdna_kernels/{NAME}.s"
    open(out, "w").write(generate())
    print("wrote", out)
```

```python
from asmgen import *

def acc(tt, ft): return 32 + (tt*8 + ft)*4
def R(p, b, n=4): return f"{p}[{b}:{b+n-1}]"

EXP = set()
SIGNAL = True
def a_dma(pslot, MT, flag=""):
    ops = [[f"s_add_u32 m0, s76, {pslot*32768 + i*1024}", f"global_load_lds_dwordx4 v{28+i}, s[60:61] {flag}"] for i in range(MT)]
    if "noA" in EXP:
        for o in ops: o[1] = "s_nop 0"
    return ops
WFLAG = ""
def w_dma(slot):
    ops = [[f"s_add_u32 m0, s67, {65536 + slot*16384 + i*1024}", f"global_load_lds_dwordx4 v{4+i}, s[62:63] {WFLAG}"] for i in range(2)]
    if "noW" in EXP:
        for o in ops: o[1] = "s_nop 0"
    return ops
def adv(off, inc, mask, cur, base, x):
    ops = [f"s_or_b32 s{off}, s{off}, s{mask}", f"s_add_u32 s{off}, s{off}, s{inc}", f"s_andn2_b32 s{off}, s{off}, s{mask}"]
    if WFRAG: ops += [f"s_xor_b32 s{cur}, s{off}, s{x}", f"s_add_u32 s{cur}, s{base}, s{cur}"]
    else: ops += [f"s_add_u32 s{cur}, s{base}, s{off}"]
    return ops + [f"s_addc_u32 s{cur+1}, s{base+1}, 0"]
def ADVA(): return adv(84, 64, 86, 60, 80, 78)
def ADVW(): return adv(85, 65, 87, 62, 82, 79)

def a_read(buf, tt, slot, MT=4): return f"ds_read_b128 {R('a', buf*16 + tt*4)}, v{6 + (slot & 1)} offset:{(slot >> 1)*32768 + tt*2048}"
def wreg(ft, par): return 32 + ft*4 if (ft < 6 or par == 0) else 64 + (ft - 6)*4
WFRAG = False
def w_reads(ft, slot):
    if WFRAG: return [f"ds_read_b128 {R('a', wreg(ft, slot & 1))}, v27 offset:{slot*16384 + ft*1024}"]
    return [w_read(ft, 0, slot), w_read(ft, 1, slot)]
def w_read(ft, lo, slot): return f"ds_read_b64_tr_b16 {R('a', wreg(ft, slot & 1) + lo*2, 2)}, v{8+ft} offset:{slot*16384 + lo*2048}"

EXT = 12
NT = 3
def cwait(a, n, flag, extra, tail=" lgkmcnt(0)"):
    l1, l2 = a.newlabel("cw"), a.newlabel("cw")
    a(f"s_cmp_eq_u32 s{flag}, 0"); a(f"s_cbranch_scc1 {l1}")
    a(f"s_waitcnt vmcnt({n + extra}){tail}"); a(f"s_branch {l2}")
    a.label(l1); a(f"s_waitcnt vmcnt({n}){tail}")
    a.label(l2)

def stage(a, slot, orient, dma, wait, refill, MT=4, aflag="", hook=None, flag=None):
    buf = slot & 1
    if wait is not None:
        if flag: cwait(a, wait, *flag)
        else: a(f"s_waitcnt vmcnt({wait}) lgkmcnt(0)")
        a("s_barrier")
    else:
        a("s_waitcnt lgkmcnt(0)")
    if hook: hook()
    d = []
    if dma:
        d = (a_dma(slot >> 1, MT, aflag) if slot & 1 else []) + w_dma(slot)
    ns = (slot + 1) & 3
    early = []
    if refill:
        early = [a_read(buf ^ 1, tt, ns, MT) for tt in range(MT)] + w_reads(6, ns) + w_reads(7, ns)
    for ft in range(8):
        if MT == 1 and ft < len(d): a(d[ft][0])
        if refill and ft in (3, 5): a("s_waitcnt lgkmcnt(6)")
        for tt in range(MT):
            D = R('v', acc(tt, ft)); W = R('a', wreg(ft, buf)); X = R('a', buf*16 + tt*4)
            a(f"v_mfma_f32_16x16x32_bf16 {D}, {W}, {X}, {D}" if orient == 'T' else f"v_mfma_f32_16x16x32_bf16 {D}, {X}, {W}, {D}")
            if MT > 1 and tt == 0 and ft < len(d):
                a(d[ft][0])
            if tt == min(1, MT - 1) and ft < len(d):
                a(d[ft][1])
            if tt == 0 and ft == 6 and dma:
                for x in ADVW(): a(x)
            if tt == 0 and ft == 7 and dma and slot & 1:
                for x in ADVA(): a(x)
            if early and (MT < 4 or tt in (0, 2)):
                a(early.pop(0))
        if refill and ft < 6:
            for x in w_reads(ft, ns): a(x)
    assert not early

def prologue(a, MT, aflag=""):
    a("s_mov_b32 s84, 0"); a("s_mov_b32 s85, 0")
    if WFRAG:
        a("s_add_u32 s60, s80, s78"); a("s_addc_u32 s61, s81, 0"); a("s_add_u32 s62, s82, s79"); a("s_addc_u32 s63, s83, 0")
    else:
        a("s_mov_b64 s[60:61], s[80:81]"); a("s_mov_b64 s[62:63], s[82:83]")
    a("s_barrier")
    def issue(ops, advs):
        for m, ld in ops:
            a(m); a("s_nop 0"); a(ld)
        for x in advs: a(x)
    issue(a_dma(0, MT, aflag), ADVA()); issue(w_dma(0), ADVW()); issue(w_dma(1), ADVW())
    issue(w_dma(2), ADVW()); issue(a_dma(1, MT, aflag), ADVA()); issue(w_dma(3), ADVW())

def pending_stores(a):
    lab = a.newlabel("ps")
    a("s_cmp_eq_u32 s77, 0"); a(f"s_cbranch_scc1 {lab}")
    epi_frag_store(a, "s[28:29]", "sc1", 3)
    a.label(lab)

def emit_core(a, name, orient, MT=4, aflag=""):
    plain = not WFRAG
    a.label(name)
    prologue(a, MT, aflag)
    if plain and MT >= 3: pending_stores(a)
    a.label(name + "_m")
    for tt in range(MT):
        for i in range(32): a(f"v_mov_b32 v{acc(tt, 0) + i}, 0")
    f77 = (77, EXT) if plain else None
    f98 = (98, NT) if plain else None
    if plain: cwait(a, 6 + MT, 77, EXT, "")
    else: a(f"s_waitcnt vmcnt({6 + MT})")
    a("s_barrier")
    for tt in range(MT): a(a_read(0, tt, 0, MT))
    for ft in range(8):
        for x in w_reads(ft, 0): a(x)
        if ft == 3: a("s_waitcnt lgkmcnt(4)")
    def signal():
        a("s_mov_b32 s77, 0")
        a("s_cmp_eq_u32 s89, 0"); a(f"s_cbranch_scc1 {name}_ns")
        a("s_mov_b32 s89, 0")
        a("s_cmp_eq_u32 s75, 0"); a(f"s_cbranch_scc0 {name}_ns")
        a("v_mov_b32 v16, s88"); a("v_mov_b32 v17, 0")
        a("s_mov_b64 exec, 1")
        a("global_store_dword v16, v17, s[28:29] sc1")
        a("s_mov_b64 exec, -1")
        a.label(name + "_ns")
    def touch():
        a("s_cmp_eq_u32 s98, 0"); a(f"s_cbranch_scc1 {name}_nt")
        a("v_lshlrev_b32 v20, 6, v0")
        for i in range(NT): a(f"v_min_u32 v{21+i}, s{99+i}, v20")
        for i in range(NT): a(f"global_load_dword a95, v{21+i}, s[{90+2*i}:{91+2*i}]")
        a.label(name + "_nt")
    def vote():
        a("s_mov_b32 s98, 0")
        if MT == 2:
            a("v_mov_b32 v16, 0"); a("global_load_dwordx2 v[18:19], v16, s[26:27] offset:40 sc1")
    a.label(name + "_loop")
    for slot in range(4):
        stage(a, slot, orient, True, 4 if slot & 1 else 4 + MT, True, MT, aflag,
              hook=(signal if slot == 3 and plain else None), flag=(f77 if slot < 3 else None))
    a("s_sub_u32 s66, s66, 1"); a("s_cmp_lg_u32 s66, 0"); a(f"s_cbranch_scc1 {name}_loop")
    stage(a, 0, orient, False, 4 + MT, True, MT, hook=(touch if plain else None))
    stage(a, 1, orient, False, 2, True, MT, flag=f98)
    stage(a, 2, orient, False, 0, True, MT, hook=(vote if plain else None), flag=f98)
    stage(a, 3, orient, False, None, False, MT)
    a("s_nop 7")
    a("s_setpc_b64 s[68:69]")

def call(a, name):
    lab = a.newlabel("call")
    a("s_getpc_b64 s[70:71]")
    a.label(lab)
    a(f"s_add_u32 s70, s70, {name}-{lab}")
    a("s_addc_u32 s71, s71, 0") if False else a(f"s_addc_u32 s71, s71, ({name}-{lab})>>32")
    a("s_swappc_b64 s[68:69], s[70:71]")

def setup_common(a, MT=4):
    a("s_lshl_b32 s67, s75, 11")
    a("s_and_b32 s72, s75, 3"); a("s_lshr_b32 s73, s75, 2")
    a("v_lshrrev_b32 v16, 4, v0"); a("v_bfe_u32 v17, v0, 2, 2")
    a("v_lshl_add_u32 v18, v16, 3, v17"); a("v_lshlrev_b32 v18, 9, v18")
    a("v_and_b32 v19, 3, v0"); a("v_lshl_add_u32 v18, v19, 3, v18")
    a("s_lshl_b32 s74, s73, 8"); a("s_add_u32 s74, s74, 65536"); a("v_add_u32 v18, s74, v18")
    a("v_and_b32 v16, 1, v16"); a("v_lshl_add_u32 v17, v16, 2, v17"); a("v_lshlrev_b32 v17, 5, v17")
    a("v_add_u32 v8, v18, v17")
    for ft in range(1, 8): a(f"v_xor_b32 v{8+ft}, {ft*32}, v8")

def setup_a_rowmajor(a, lda, MT=4, wrow="s75"):
    a(f"s_mul_i32 s76, s75, {MT*1024}")
    a(f"s_mov_b32 s74, {lda}")
    for i in range(MT):
        a("v_lshrrev_b32 v16, 3, v0"); a(f"s_mul_i32 s64, {wrow}, {MT*8}"); a(f"s_add_u32 s64, s64, {i*8}"); a("v_add_u32 v16, s64, v16")
        a("v_lshrrev_b32 v17, 1, v16"); a("v_xor_b32 v17, v17, v0"); a("v_and_b32 v17, 7, v17")
        a("v_mul_lo_u32 v16, v16, s74"); a(f"v_lshl_add_u32 v{28+i}, v17, 4, v16")
    a("v_and_b32 v16, 15, v0"); a("v_lshrrev_b32 v17, 1, v16"); a("v_lshrrev_b32 v18, 4, v0"); a("v_xor_b32 v17, v17, v18")
    a("v_lshlrev_b32 v16, 7, v16"); a("v_lshl_add_u32 v6, v17, 4, v16")
    a(f"s_mul_i32 s74, s72, {MT*2048}"); a("v_add_u32 v6, s74, v6"); a("v_xor_b32 v7, 64, v6")
    a("s_mov_b32 s64, 128"); a("s_mov_b32 s86, 0")

def setup_w(a, ldw, colmap=None):
    for i in range(2):
        a("v_lshrrev_b32 v16, 5, v0"); a("s_lshl_b32 s74, s75, 2"); a(f"s_add_u32 s74, s74, {2*i}"); a("v_add_u32 v16, s74, v16")
        a("v_and_b32 v17, 3, v16"); a("v_bfe_u32 v18, v16, 3, 1"); a("v_lshl_add_u32 v17, v18, 2, v17"); a("v_lshlrev_b32 v17, 1, v17")
        a("v_and_b32 v18, 31, v0"); a("v_xor_b32 v17, v17, v18")
        if colmap is None: a("v_lshlrev_b32 v17, 4, v17")
        else: colmap(a, 17)
        a(f"s_mov_b32 s74, {ldw}"); a("v_mul_lo_u32 v16, v16, s74"); a(f"v_add_u32 v{4+i}, v16, v17")
    a(f"s_mov_b32 s65, {32*ldw}"); a("s_mov_b32 s87, 0")

def epi_frag_store(a, base, flag, MT=4, step=1024):
    n = 0
    for tt in range(MT):
        for jj in range(4):
            t = (24, 16)[n & 1]; n += 1
            b = acc(tt, 2*jj)
            for i in range(4): a(f"v_cvt_pk_bf16_f32 v{t+i}, v{b+2*i}, v{b+2*i+1}")
            a(f"global_store_dwordx4 v{20+tt}, {R('v', t)}, {base} offset:{jj*step} {flag}")

def setup_a_frag(a, tstride, MT=4):
    a("v_lshlrev_b32 v16, 4, v0")
    if MT == 4:
        a(f"s_mul_i32 s74, s75, {2*tstride}"); a("s_lshl_b32 s76, s75, 12")
        a("v_add_u32 v28, s74, v16"); a("v_add_u32 v29, 1024, v28"); a(f"v_add_u32 v30, {tstride}, v28"); a("v_add_u32 v31, 1024, v30")
    elif MT == 2:
        a(f"s_mul_i32 s74, s75, {tstride}"); a("s_lshl_b32 s76, s75, 11")
        a("v_add_u32 v28, s74, v16"); a("v_add_u32 v29, 1024, v28")
    else:
        assert MT == 1
        a("s_lshr_b32 s74, s75, 1"); a(f"s_mul_i32 s74, s74, {tstride}"); a("s_and_b32 s76, s75, 1"); a("s_lshl_b32 s76, s76, 10"); a("s_add_u32 s74, s74, s76")
        a("v_add_u32 v28, s74, v16"); a("s_lshl_b32 s76, s75, 10")
    a(f"s_mul_i32 s74, s72, {MT*2048}"); a("v_add_u32 v6, s74, v16"); a("v_add_u32 v7, 1024, v6")
    a("s_mov_b32 s64, 2048"); a("s_mov_b32 s86, 0x2000")

def setup_w_frag(a, woff):
    a("v_lshlrev_b32 v16, 4, v0")
    a(f"v_add_u32 v4, {woff}, v16"); a("v_add_u32 v5, 1024, v4")
    a("s_lshl_b32 s74, s73, 13"); a("s_add_u32 s74, s74, 65536"); a("v_add_u32 v27, s74, v16")
    a("s_mov_b32 s65, 2048"); a("s_mov_b32 s87, 0x2000")

def lane_chunk(a, dst, tmp):
    a(f"v_bfe_u32 v{dst}, v0, 4, 1"); a(f"v_lshlrev_b32 v{dst}, 1, v{dst}"); a(f"v_lshrrev_b32 v{tmp}, 5, v0"); a(f"v_add_u32 v{dst}, v{dst}, v{tmp}")

def pack_swap(a, t, b):
    for i in range(4): a(f"v_cvt_pk_bf16_f32 v{t+i}, v{b+2*i}, v{b+2*i+1}")
    a("s_nop 0")
    a(f"v_permlane16_swap_b32 v{t}, v{t+2}"); a(f"v_permlane16_swap_b32 v{t+1}, v{t+3}")

def epi_out_store(a, base, MT=4, flag=""):
    n = 0
    for tt in range(MT):
        for jj in range(4):
            t = 24 + (n & 1)*4; n += 1
            pack_swap(a, t, acc(tt, 2*jj))
            a(f"global_store_dwordx4 v{20+tt}, {R('v', t)}, {base} offset:{jj*64} {flag}")
```

```python
from asmgen import *

WS_RING  = 1 << 20
WS_PROBE = 0x1f0000
WS_FLAG2 = 0x1d8000
WS_FLAG  = 0x1e0000
WS_MEMS  = 2 << 20
WS_KMVM  = 4 << 20
WS_KX    = 20 << 20
WS_VX    = 52 << 20
WS_WOT   = 126 << 20
WOT_CG = 1 << 19
L_PART = 0
L_P    = 24576
L_ZERO = 26624
L_SEL  = 28672
L_PARW = 7*16384
L_KX   = 131072
L_VX   = 147456
SPIN_MAX = 400000
NSTEP = 64
DBG_VOTE, DBG_CLR, DBG_PROG = 40, 44, 192
PAR0 = dict(SPLITB=1, KFAR=1, VFAR=1, RDEL=10, MDEL=7, DM=1, MGAP=3, PRIO=1, XD=2, XGAP=1, VDEL=10, PPRIO=2, XDEL=7, DR=2, RGAP=5, MACK=0)
PAR = dict(PAR0)
OPT = set()

def guard(a, loop, fail):
    a("s_add_u32 s24, s24, 1"); a(f"s_cmp_lt_u32 s24, {SPIN_MAX}"); a(f"s_cbranch_scc1 {loop}"); a(f"s_branch {fail}")

def pstamp(a, prof, k):
    if prof == 3:
        a("s_memrealtime s[56:57]"); a("s_waitcnt lgkmcnt(0)"); a(f"s_mov_b32 s{k}, s56")

def stamp(a, prof, k, at=None):
    if not prof: return
    if prof >= 3 and (k != 7 or prof > 3): return
    if prof == 2:
        lab = a.newlabel("st")
        a("s_cmp_lg_u32 s22, " + ("31" if (k == 7 or at) else "30")); a(f"s_cbranch_scc1 {lab}")
        a("s_memrealtime s[56:57]"); a("s_waitcnt lgkmcnt(0)"); a("s_and_b32 s56, s56, 0xffffff"); a("s_lshl_b32 s57, s24, 24"); a(f"s_or_b32 s{60+k}, s56, s57")
        a.label(lab)
        return
    a("s_memtime s[56:57]"); a("s_waitcnt lgkmcnt(0)")
    a("s_sub_u32 s58, s56, s59"); a(f"s_add_u32 s{60+k}, s{60+k}, s58"); a("s_mov_b32 s59, s56")

def fs(a, prof, k, which):
    if prof == which: a(f"s_memtime s[{66+2*k}:{67+2*k}]")

def near_bit(a, tmp, off, par, kv=False):
    flip = kv and PAR["KFAR"] != PAR["VFAR"]
    if flip: a(f"s_cmp_ge_u32 {off}, {WS_VX}"); a(f"s_addc_u32 {tmp}, {par}, {PAR['KFAR']}"); a(f"s_lshl_b32 {tmp}, {tmp}, 21"); a(f"s_xor_b32 {tmp}, {tmp}, {off}"); a(f"s_lshr_b32 {tmp}, {tmp}, 21")
    else:
        a(f"s_lshr_b32 {tmp}, {off}, 21"); a(f"s_xor_b32 {tmp}, {tmp}, {par}")
        if kv and PAR["KFAR"]: a(f"s_xor_b32 {tmp}, {tmp}, 1")
    a(f"s_and_b32 {tmp}, {tmp}, 1"); a(f"s_lshl_b32 {tmp}, {tmp}, 13")

def near(a, dst, off, par="s25", wb=16, tmp="s36", kv=False):
    near_bit(a, tmp, off, par, kv)
    a(f"s_add_u32 {tmp}, {tmp}, {off}"); a(f"s_add_u32 s{dst}, s{wb}, {tmp}"); a(f"s_addc_u32 s{dst+1}, s{wb+1}, 0")

def v_from_k(a, v, k):
    a(f"s_add_u32 s{v}, s{k}, {WS_VX - WS_KX}"); a(f"s_addc_u32 s{v+1}, s{k+1}, 0")
    if PAR["KFAR"] != PAR["VFAR"]: a(f"s_xor_b32 s{v}, s{v}, 0x2000")

def kv_tile(a, dst, seg, tmp):
    a(f"s_sub_u32 {tmp}, {seg}, 16"); a(f"s_mul_i32 {tmp}, {tmp}, 43"); a(f"s_lshr_b32 {tmp}, {tmp}, 8"); a(f"s_add_u32 {tmp}, {tmp}, 4")
    a(f"s_lshr_b32 {dst}, {seg}, 2"); a(f"s_cmp_lt_u32 {dst}, 4"); a(f"s_cselect_b32 {dst}, {dst}, {tmp}")

def tagchk(a, regs, tag, t0, t1, mf=()):
    op = "0x80" if tag else "0xfe"
    mf = list(mf)
    ops = [f"v_bitop3_b32 v{t0}, v{regs[0]}, v{regs[1]}, v{regs[2]} bitop3:{op}", f"v_bitop3_b32 v{t1}, v{regs[3]}, v{regs[4]}, v{regs[5]} bitop3:{op}"]
    rest = regs[6:]; k = 0
    while rest:
        t = (t0, t1)[k & 1]; k += 1
        ops.append(f"v_bitop3_b32 v{t}, v{t}, v{rest[0]}, v{rest[1]} bitop3:{op}"); rest = rest[2:]
    ops.append(f"v_bitop3_b32 v{t0}, v{t0}, v{t1}, 1 bitop3:" + ("0x80" if tag else "0xa8"))
    per = -(-len(ops) // max(len(mf), 1))
    for i, o in enumerate(ops):
        if mf and i % per == 0: a(mf.pop(0))
        a(o)
    for m in mf: a(m)
    a(f"v_cmp_ne_u32 vcc, {tag}, v{t0}")

def emit_rec(a, pfx, prof=False, kvwait=False):
    L = lambda n: f"{pfx}_{n}"
    FAIL = L('fail')
    a("s_load_dwordx8 s[4:11], s[0:1], 40")
    a("s_load_dwordx2 s[12:13], s[0:1], 32")
    a("s_load_dwordx2 s[14:15], s[0:1], 88")
    a("s_load_dwordx2 s[16:17], s[0:1], 96")
    a("v_lshrrev_b32 v1, 6, v0")
    a("v_and_b32 v0, 63, v0")
    a("s_lshl_b32 s20, s18, 2"); a("s_add_u32 s20, s20, s19")
    a("v_readfirstlane_b32 s21, v1")
    a("v_lshlrev_b32 v6, 4, v0")
    a("s_mov_b32 s24, 0")
    a("s_waitcnt lgkmcnt(0)")
    pstamp(a, prof, 90)
    if "diag" in OPT: pstamp(a, 3, 97)
    a("s_add_u32 s16, s16, 0x1fffff"); a("s_addc_u32 s17, s17, 0"); a("s_and_b32 s16, s16, 0xffe00000")
    a("s_lshl_b32 s36, s18, 13"); a(f"s_add_u32 s36, s36, {WS_RING}"); a("s_add_u32 s32, s16, s36"); a("s_addc_u32 s33, s17, 0")
    a("s_and_b32 s45, s20, 63"); a("s_lshl_b32 s45, s45, 7"); a("s_lshr_b32 s36, s20, 6"); a("s_lshl_b32 s36, s36, 14"); a("s_add_u32 s45, s45, s36")
    a("s_and_b32 s44, s20, 1"); a("s_lshl_b32 s44, s44, 12"); a("s_lshr_b32 s42, s20, 1"); a("s_lshl_b32 s42, s42, 14"); a("s_add_u32 s44, s44, s42")
    a("v_mov_b32 v14, v6"); a("v_add_u32 v15, 0x1000, v6")
    a("s_lshl_b32 s36, s19, 10"); a("v_add_u32 v9, s36, v6")
    a("s_lshl_b32 s36, s19, 9"); a("s_add_u32 s36, s36, 4096"); a("v_and_b32 v8, 0x1ff, v6"); a("v_add_u32 v8, s36, v8")
    a("s_cmp_eq_u32 s21, 7"); a(f"s_cbranch_scc0 {L('noclr')}")
    for i in range(4): a(f"v_mov_b32 v{68+i}, -1")
    a("v_add_u32 v16, s44, v6"); a("v_add_u32 v17, 0x2000, v16")
    for p in range(2):
        for i in range(4): a(f"global_store_dwordx4 v{16+p}, v[68:71], s[16:17] offset:{1024*i} sc1")
    a("global_store_dwordx4 v9, v[68:71], s[32:33] sc1"); a("global_store_dwordx4 v8, v[68:71], s[32:33] sc1")
    a("v_bfe_u32 v16, v0, 3, 2"); a("v_lshlrev_b32 v16, 15, v16"); a("v_lshrrev_b32 v17, 5, v0"); a("v_lshl_add_u32 v16, v17, 13, v16")
    a("v_and_b32 v17, 7, v0"); a("v_lshl_add_u32 v16, v17, 4, v16"); a(f"s_add_u32 s36, s45, {WS_MEMS}"); a("v_add_u32 v16, s36, v16")
    for i in range(16):
        a("global_store_dwordx4 v16, v[68:71], s[16:17] sc1"); a("v_add_u32 v16, 0x20000, v16")
    a("s_lshl_b32 s36, s20, 7"); a(f"s_add_u32 s36, s36, {WS_FLAG}"); a("v_and_b32 v16, 0x70, v6"); a("v_add_u32 v16, s36, v16")
    a("global_store_dwordx4 v16, v[68:71], s[16:17] sc1")
    a(f"v_subrev_u32 v16, {WS_FLAG - WS_FLAG2}, v16")
    a("global_store_dwordx4 v16, v[68:71], s[16:17] sc1")
    a("s_barrier")
    a("v_mov_b32 v17, 1"); a("v_mov_b32 v16, 0")
    a("s_waitcnt vmcnt(0)")
    a("s_mov_b64 exec, 1")
    a(f"global_atomic_add v16, v17, s[14:15] offset:{DBG_CLR} sc1")
    a("s_mov_b64 exec, -1")
    a(f"s_branch {L('clrd')}")
    a.label(L('noclr'))
    a("s_barrier")
    a.label(L('clrd'))
    def xdma(base, ldsreg):
        for kt in range(2):
            a(f"s_add_u32 m0, {ldsreg}, {kt*4096}")
            a("s_nop 0")
            for jj in range(4):
                a(f"global_load_lds_dwordx4 v{14+kt}, {base} offset:{jj*1024} sc1")
    def kv_poll(tag, tile):
        a(f"s_lshl_b32 s52, {tile}, 7"); a("s_lshr_b32 s36, s18, 1"); a("s_lshl_b32 s36, s36, 2"); a("s_add_u32 s52, s52, s36"); a(f"s_add_u32 s52, s52, {WS_FLAG + 96*128}")
        a("v_mov_b32 v17, s52")
        a.label(L(tag))
        a("global_load_dword v16, v17, s[16:17] sc1"); a("global_load_dword v18, v17, s[16:17] offset:64 sc1"); a("s_waitcnt vmcnt(0)")
        a("v_or_b32 v16, v16, v18")
        a("v_cmp_ne_u32 vcc, 0, v16"); a(f"s_cbranch_vccz {L(tag + 'ok')}")
        a("s_sleep 4")
        guard(a, L(tag), FAIL)
        a.label(L(tag + 'ok'))
    def kv_bases(segreg):
        a(f"s_lshl_b32 s42, {segreg}, 5"); a("s_add_u32 s42, s42, s18"); a("s_lshl_b32 s42, s42, 14"); a(f"s_add_u32 s42, s42, {WS_KX}")
        near(a, 48, "s42", kv=True)
        v_from_k(a, 34, 48)
    a("v_lshrrev_b32 v10, 2, v0"); a("v_lshlrev_b32 v10, 13, v10"); a("v_and_b32 v11, 3, v0"); a("v_lshl_add_u32 v10, v11, 4, v10")
    a("s_lshl_b32 s36, s21, 20"); a("s_lshl_b32 s42, s20, 6"); a("s_add_u32 s36, s36, s42"); a("v_add_u32 v10, s36, v10")
    a("s_lshl_b32 s43, s21, 14")
    def wdma(base, buf, nt="nt"):
        a("v_mov_b32 v11, v10")
        for i in range(8):
            a(f"s_add_u32 m0, s43, {buf*8192 + i*1024}")
            a("s_nop 0")
            a(f"global_load_lds_dwordx4 v11, {base} {nt}")
            if i < 7: a("v_add_u32 v11, 0x20000, v11")
    wdma("s[6:7]", 0, ""); wdma("s[8:9]", 1, "")
    a("v_lshrrev_b32 v12, 5, v0"); a("v_lshlrev_b32 v12, 4, v12")
    a("v_bfe_u32 v13, v0, 4, 1"); a("v_lshl_add_u32 v12, v13, 2, v12")
    a("v_bfe_u32 v13, v0, 2, 1"); a("v_add_u32 v12, v12, v13")
    a("v_bfe_u32 v13, v0, 3, 1"); a("v_lshl_add_u32 v12, v13, 3, v12")
    a("v_lshlrev_b32 v12, 6, v12"); a("v_and_b32 v13, 3, v0"); a("v_lshl_add_u32 v12, v13, 3, v12")
    a("v_add_u32 v12, s43, v12")
    def wread(typ, buf):
        for t in range(2):
            for ks in range(2):
                for pp in range(4):
                    hi, lo = pp >> 1, pp & 1
                    reg = ((typ*2 + t)*2 + ks)*8 + pp*2
                    off = buf*8192 + (64*ks + 32*hi + 2*lo)*64 + t*32
                    a(f"ds_read_b64_tr_b16 a[{reg}:{reg+1}], v12 offset:{off}")
                a("s_waitcnt lgkmcnt(4)")
        a("s_waitcnt lgkmcnt(0)")
    a("s_waitcnt vmcnt(8)")
    pstamp(a, prof, 91)
    wread(1, 0)
    wdma("s[4:5]", 0, "nt")
    a("s_waitcnt vmcnt(8)"); wread(2, 1)
    a("v_lshrrev_b32 v10, 3, v0"); a("v_lshlrev_b32 v10, 11, v10"); a("v_and_b32 v11, 7, v0"); a("v_lshl_add_u32 v10, v11, 4, v10")
    a("s_lshl_b32 s36, s18, 18"); a("s_lshl_b32 s42, s19, 9"); a("s_add_u32 s36, s36, s42")
    a("s_and_b32 s42, s21, 3"); a("s_lshl_b32 s42, s42, 7"); a("s_add_u32 s36, s36, s42")
    a("v_add_u32 v10, s36, v10")
    def odma(half):
        a(f"v_add_u32 v11, {half*64*2048}, v10")
        for i in range(8):
            a(f"s_add_u32 m0, s43, {half*8192 + i*1024}")
            a("s_nop 0")
            a("global_load_lds_dwordx4 v11, s[10:11]")
            if i < 7: a("v_add_u32 v11, 0x4000, v11")
    a("s_cmp_lt_u32 s21, 4"); a(f"s_cbranch_scc0 {L('wv_only')}")
    odma(1)
    a("s_waitcnt vmcnt(8)"); wread(0, 0)
    odma(0)
    a("v_lshrrev_b32 v12, 2, v0")
    a("v_lshlrev_b32 v12, 7, v12"); a("v_and_b32 v13, 3, v0"); a("v_lshl_add_u32 v12, v13, 4, v12"); a("v_add_u32 v12, s43, v12")
    a("s_waitcnt vmcnt(0)")
    def wo_reg(ct, jj):
        return f"v[{96+(ct*4+jj)*4}:{96+(ct*4+jj)*4+3}]"
    for ct in range(4):
        for jj in range(4):
            for lo in range(2):
                base = 96 + (ct*4 + jj)*4 + lo*2
                off = (32*jj + 16*lo)*128 + (ct >> 1)*64 + (ct & 1)*8
                a(f"ds_read_b64_tr_b16 v[{base}:{base+1}], v12 offset:{off}")
        a("s_waitcnt lgkmcnt(0)")
    a(f"s_branch {L('wdone')}")
    a.label(L('wv_only'))
    a("s_waitcnt vmcnt(0)"); wread(0, 0)
    a.label(L('wdone'))
    pstamp(a, prof, 89)

    a("s_cmp_eq_u32 s21, 7"); a(f"s_cbranch_scc0 {L('sync1')}")
    a("global_load_dwordx4 v[48:51], v9, s[32:33] sc1"); a("global_load_dwordx4 v[52:55], v8, s[32:33] sc1")
    a("v_and_b32 v11, 7, v0"); a("v_lshlrev_b32 v11, 11, v11"); a("s_lshl_b32 s36, s20, 4"); a("v_add_u32 v11, s36, v11")
    a("global_load_dwordx4 v[56:59], v11, s[12:13]")
    a("v_mov_b32 v17, 0"); a("s_lshr_b32 s36, s18, 3"); a("s_lshl_b32 s36, s36, 2"); a("v_mov_b32 v18, s36")
    a.label(L('clrw'))
    a(f"global_load_dwordx2 v[20:21], v17, s[14:15] offset:{DBG_VOTE} sc1"); a("s_waitcnt vmcnt(0)")
    a("v_readfirstlane_b32 s36, v20"); a("v_readfirstlane_b32 s37, v21")
    a("s_and_b32 s42, s36, 0xffff"); a("s_add_u32 s42, s42, s37"); a("s_cmp_eq_u32 s42, 256"); a(f"s_cbranch_scc1 {L('clrok')}")
    a("s_sleep 8")
    guard(a, L('clrw'), FAIL)
    a.label(L('clrok'))
    a("global_load_dword v21, v18, s[14:15] sc1")
    a("s_lshr_b32 s36, s36, 16"); a("s_cmp_gt_u32 s36, 64"); a("s_cselect_b32 s25, 1, 0")
    a("v_mov_b32 v20, s25"); a(f"v_mov_b32 v17, {L_PARW}")
    a(f"s_mov_b32 s42, {WS_MEMS}"); near(a, 34, "s42")
    a("v_add_u32 v11, s45, v6")
    a("s_mov_b64 exec, 0xff")
    for i in range(4): a(f"v_min_u32 v{56+i}, -2, v{56+i}")
    a("global_store_dwordx4 v11, v[56:59], s[34:35] sc1")
    a("s_mov_b64 exec, -1")
    a("s_waitcnt vmcnt(1)"); a("ds_write_b64 v17, v[20:21]")
    if kvwait:
        a("s_mov_b32 s53, 0"); kv_poll('kv0', "s53")
    for sg in range(2):
        a(f"s_mov_b32 s53, {sg}"); kv_bases("s53")
        a(f"s_mov_b32 s50, {L_KX + sg*8192}"); xdma("s[48:49]", "s50")
        a(f"s_mov_b32 s50, {L_VX + sg*8192}"); xdma("s[34:35]", "s50")
    a.label(L('sync1'))

    a("s_and_b32 s36, s21, 3"); a("s_lshl_b32 s36, s36, 11"); a("s_lshr_b32 s42, s21, 2"); a("s_lshl_b32 s42, s42, 14"); a("s_add_u32 s36, s36, s42")
    a("v_add_u32 v1, s36, v6")
    a("v_and_b32 v2, 8, v0"); a("v_cmp_eq_u32 vcc, 0, v2"); a("v_mov_b32 v2, 0xeeee"); a("v_mov_b32 v3, 0x4444"); a("s_nop 1")
    a("v_cndmask_b32 v2, v2, v3, vcc")
    a("s_mul_i32 s36, s21, 3072"); a("v_add_u32 v3, s36, v6")
    a("s_mov_b32 s22, 0"); a("s_mov_b32 s51, 1")
    a("s_waitcnt vmcnt(0) lgkmcnt(0)"); a("s_barrier")
    a(f"v_mov_b32 v24, {L_PARW}"); a("ds_read_b64 v[24:25], v24"); a("s_waitcnt lgkmcnt(0)")
    a("v_readfirstlane_b32 s25, v24"); a("v_readfirstlane_b32 s23, v25")
    a("s_and_b32 s25, s25, 1")
    if "safe" in OPT: a("s_mov_b32 s23, 0")
    a("s_lshl_b32 s36, s25, 13"); a("s_add_u32 s26, s16, s36"); a("s_addc_u32 s27, s17, 0")
    a(f"s_mov_b32 s42, {WS_MEMS}"); near(a, 28, "s42")
    a("s_lshr_b32 s38, s18, 1"); a("s_lshl_b32 s38, s38, 14"); a("s_and_b32 s36, s18, 1"); a("s_lshl_b32 s36, s36, 12"); a("s_add_u32 s38, s38, s36"); a(f"s_add_u32 s38, s38, {WS_KMVM}")
    near(a, 30, "s38")
    if "diag" in OPT: pstamp(a, 3, 98)
    if prof:
        for k in range(8): a(f"s_mov_b32 s{60+k}, 0")
        a("s_memtime s[56:57]"); a("s_waitcnt lgkmcnt(0)"); a("s_mov_b32 s59, s56")
        pstamp(a, prof, 60)
    a("s_cmp_lt_u32 s21, 4"); a(f"s_cbranch_scc1 {L('setup_vo')}")
    a("s_cmp_eq_u32 s21, 6"); a(f"s_cbranch_scc1 {L('setup_sm')}")

    def head_word(val):
        a(f"v_mov_b32 v95, {val}")
        a("s_lshl_b32 s36, s18, 7"); a("s_lshl_b32 s42, s19, 2"); a("s_add_u32 s36, s36, s42"); a(f"s_add_u32 s36, s36, {WS_FLAG + 8192}")
        a("v_mov_b32 v94, s36")
        a("s_mov_b64 exec, 1")
        a("global_store_dword v94, v95, s[16:17] sc1")
        a("s_mov_b64 exec, -1")
    def zero_acc():
        for i in range(24): a(f"v_mov_b32 v{24+i}, 0")
    def pair(p): return [(2*p, 0), (2*p+1, 0), (2*p, 1), (2*p+1, 1)]
    def sm(tt, ks, mb):
        dd = 24 + tt*4; b = (tt*2 + ks)*8
        a(f"v_smfmac_f32_16x16x64_bf16 v[{dd}:{dd+3}], v[{mb+4*ks}:{mb+3+4*ks}], a[{b}:{b+7}], v2")
    def cv(p, i): a(f"v_cvt_pk_bf16_f32 v{24+8*p+i}, v{24+8*p+2*i}, v{25+8*p+2*i}")
    def mload(b):
        a(f"global_load_dwordx4 v[{b}:{b+3}], v1, s[28:29] sc1")
        a(f"global_load_dwordx4 v[{b+4}:{b+7}], v1, s[28:29] offset:1024 sc1")
    def p1(name, mid=None):
        if PAR["MDEL"]: a(f"s_sleep {PAR['MDEL']}")
        a.label(L(name))
        mload(16)
        a("s_waitcnt vmcnt(0)")
        fs(a, prof, 0, 5)
        chk = ["v_max3_u32 v0, v16, v17, v18", "v_max3_u32 v7, v19, v20, v21", "v_max3_u32 v0, v0, v22, v23", "v_max_u32 v0, v0, v7", "v_cmp_eq_u32 vcc, -1, v0"]
        for i, (t, k) in enumerate(pair(0)):
            sm(t, k, 16)
            for c in chk[2*i:2*i+2]: a(c)
            if i == 2: a(f"s_cbranch_vccnz {L(name + '_retry')}")
        stamp(a, prof, 0)
        fs(a, prof, 1, 5)
        for t, k in pair(1): sm(t, k, 16)
        a("s_nop 3")
        for i, (t, k) in enumerate(pair(2)):
            cv(0, i)
            if i == 3: a("ds_write_b128 v3, v[24:27]")
            sm(t, k, 16)
        fs(a, prof, 3, 5)
        for i in range(4): cv(1, i)
        a("ds_write_b128 v3, v[32:35] offset:1024")
        fs(a, prof, 4, 5)
        a("s_nop 2")
        for i in range(4): cv(2, i)
        if PAR["SPLITB"]:
            a("ds_write_b128 v3, v[40:43] offset:2048")
            a("s_waitcnt lgkmcnt(1)"); a("s_barrier")
            if mid:
                mid(); a("s_waitcnt lgkmcnt(8)")
            else:
                a("s_waitcnt lgkmcnt(0)")
        else:
            a("ds_write_b128 v3, v[40:43] offset:2048")
            a("s_waitcnt lgkmcnt(0)")
        fs(a, prof, 6, 5)
        a("s_barrier")
        if mid and not PAR["SPLITB"]: mid()
        fs(a, prof, 7, 5)
        if prof == 5: a("s_waitcnt lgkmcnt(0)")
        stamp(a, prof, 1)
    def p1_retry(name):
        a.label(L(name + '_retry'))
        a("s_nop 7")
        for i in range(8): a(f"v_mov_b32 v{24+i}, 0")
        guard(a, L(name), FAIL)

    def step_adv():
        zero_acc()
        a("s_add_u32 s22, s22, 1")
        a("s_add_u32 s28, s28, 0x8000"); a("s_addc_u32 s29, s29, 0")
        a("s_add_u32 s38, s38, 0x40000"); near(a, 30, "s38")
    def step_end():
        step_adv()
        a("s_waitcnt vmcnt(0) lgkmcnt(0)")
        a("s_barrier")
        stamp(a, prof, 7)

    a("s_sub_u32 s37, s21, 4"); a("s_min_u32 s37, s37, 2")
    a("s_lshl_b32 s36, s37, 10"); a("v_add_u32 v4, s36, v6")
    a("v_and_b32 v48, 1, v0"); a("v_lshlrev_b32 v48, 4, v48"); a("v_mov_b32 v49, 0x3f80"); a("v_lshlrev_b32 v48, v48, v49")
    a("v_bfe_u32 v49, v0, 3, 1"); a("v_bfe_u32 v50, v0, 1, 1"); a("v_lshl_add_u32 v49, v49, 1, v50")
    a("v_lshrrev_b32 v50, 2, v0"); a("v_xor_b32 v50, v50, v0"); a("v_and_b32 v50, 4, v50"); a("v_add_u32 v49, v49, v50")
    for q in range(4):
        a(f"v_cmp_eq_u32 vcc, {q}, v49"); a("s_nop 1"); a(f"v_cndmask_b32 v{84+q}, 0, v48, vcc")
    a("v_and_b32 v48, 7, v0"); a("v_lshlrev_b32 v48, 4, v48"); a("v_and_b32 v49, 8, v0"); a("v_lshrrev_b32 v50, 4, v0")
    a("v_add_u32 v51, v48, v49"); a("v_lshl_add_u32 v10, v50, 7, v51")
    a("s_lshl_b32 s36, s19, 9"); a("s_lshr_b32 s42, s37, 1"); a("s_lshl_b32 s42, s42, 11"); a("s_add_u32 s36, s36, s42"); a("v_add_u32 v10, s36, v10")
    a("v_lshl_add_u32 v5, v50, 8, v51"); a("s_lshl_b32 s36, s19, 10"); a("s_lshl_b32 s42, s37, 7"); a("s_add_u32 s36, s36, s42"); a("v_add_u32 v5, s36, v5")
    zero_acc()
    a(f"s_setprio {PAR['PPRIO']}")
    a("s_cmp_eq_u32 s21, 7"); a(f"s_cbranch_scc1 {L('setup_m')}")
    def rd8():
        for w in range(8): a(f"ds_read_b128 v[{48+4*w}:{51+4*w}], v4 offset:{3072*w}")
    def reduce8():
        for w in range(8):
            a(f"s_waitcnt lgkmcnt({7-w})")
            a(f"v_mfma_f32_16x16x32_bf16 v[80:83], v[{48+4*w}:{51+4*w}], v[84:87], " + ("0" if w == 0 else "v[80:83]"))
    def pack_tag(tag, last):
        if last:
            a(f"s_cmp_eq_u32 s22, {NSTEP-1}"); a(f"s_cbranch_scc1 {L(last)}")
        a("s_cmp_lt_u32 s23, 32")
        a("s_nop 4" if last else "s_nop 6")
        a("v_cvt_pk_bf16_f32 v88, v80, v81"); a("v_cvt_pk_bf16_f32 v89, v82, v83")
        for i in range(2): a(f"v_or_b32 v{90+i}, 1, v{88+i}" if tag else f"v_and_b32 v{90+i}, -2, v{88+i}")
    a("v_add_u32 v11, s44, v6")
    a("v_and_b32 v15, 7, v0"); a("v_lshlrev_b32 v15, 4, v15"); a("v_bfe_u32 v48, v0, 4, 1"); a("v_lshl_add_u32 v15, v48, 3, v15"); a("v_add_u32 v15, s45, v15")
    a("v_and_b32 v48, 1, v0"); a("v_lshlrev_b32 v48, 4, v48"); a("v_mov_b32 v49, 0x3f80"); a("v_lshlrev_b32 v48, v48, v49")
    a("v_bfe_u32 v49, v0, 1, 3")
    for q in range(4):
        a(f"v_cmp_eq_u32 vcc, {q}, v49"); a("s_nop 1"); a(f"v_cndmask_b32 v{92+q}, 0, v48, vcc")
    DR = PAR["DR"]
    rsets = [96, 112, 128][:DR]
    def rload(b):
        for i in range(4): a(f"global_load_dwordx4 v[{b+4*i}:{b+3+4*i}], v11, s[26:27] offset:{1024*i} sc1")
    a.label(L('v_loop'))
    for tag in range(2):
        n = f"v{tag}"
        p1(n, rd8)
        reduce8()
        pack_tag(tag, 'last_pub' if tag == (NSTEP - 1) & 1 else None)
        a(f"s_cbranch_scc1 {L(n + '_wt')}")
        a("global_store_dwordx2 v5, v[90:91], s[32:33]")
        a.label(L(n + '_pd'))
        stamp(a, prof, 2)
        a("s_barrier")
        a("s_cmp_eq_u32 s21, 4"); a(f"s_cbranch_scc1 {L(n + '_red')}")
        if "nopers" not in OPT: a("global_store_dwordx2 v10, v[88:89], s[30:31] sc1")
        if prof == 3:
            a("s_memrealtime s[56:57]"); a("s_memtime s[92:93]"); a("s_waitcnt lgkmcnt(0)"); a("s_mov_b32 m0, s22"); a("s_nop 0"); a("v_writelane_b32 v150, s56, m0"); a("v_writelane_b32 v151, s92, m0")
        step_adv()
        a("s_waitcnt vmcnt(0)")
        a(f"s_branch {L(n + '_end')}")
        a.label(L(n + '_red'))
        step_adv()
        if PAR["RDEL"]: a(f"s_sleep {PAR['RDEL']}")
        stamp(a, prof, 5, 31)
        for d in range(DR - 1):
            rload(rsets[d])
            if PAR["RGAP"]: a(f"s_sleep {PAR['RGAP']}")
        a.label(L(n + '_rp'))
        for d in range(DR):
            rload(rsets[(d + DR - 1) % DR])
            a(f"s_waitcnt vmcnt({4*(DR-1)})")
            b = rsets[d]
            mf = [f"v_mfma_f32_16x16x32_bf16 v[64:67], v[92:95], v[{b+4*i}:{b+3+4*i}], " + ("0" if i == 0 else "v[64:67]") for i in range(4)]
            tagchk(a, list(range(b, b + 16)), tag, 73, 72, mf)
            a(f"s_cbranch_vccz {L(n + '_rok')}" if d < DR - 1 else f"s_cbranch_vccnz {L(n + '_rr')}")
        a.label(L(n + '_rok'))
        a("s_nop 3")
        for i in range(4): a(f"v_add_f32_dpp v{72+i}, v{64+i}, v{64+i} row_ror:8 row_mask:0xf bank_mask:0xf")
        a("s_mov_b64 exec, 0x00ff00ff")
        a("v_cvt_pk_bf16_f32 v76, v72, v73"); a("v_cvt_pk_bf16_f32 v77, v74, v75")
        a("v_min_u32 v76, -2, v76"); a("v_min_u32 v77, -2, v77")
        a("global_store_dwordx2 v15, v[76:77], s[28:29] sc1")
        a("s_mov_b64 exec, -1")
        stamp(a, prof, 6, 31)
        if PAR["MACK"]: a("s_waitcnt vmcnt(0)")
        a.label(L(n + '_end'))
        a("s_barrier")
        stamp(a, prof, 7)
    a(f"s_branch {L('v_loop')}")
    for tag in range(2):
        n = f"v{tag}"
        p1_retry(n)
        a.label(L(n + '_wt')); a("global_store_dwordx2 v5, v[90:91], s[32:33] sc1"); a(f"s_branch {L(n + '_pd')}")
        a.label(L(n + '_rr')); guard(a, L(n + '_rp'), FAIL)

    a.label(L('setup_m'))
    a("v_lshrrev_b32 v5, 5, v0"); a("v_lshl_add_u32 v5, v5, 8, v48"); a("v_bfe_u32 v50, v0, 3, 2"); a("v_lshl_add_u32 v5, v50, 2, v5")
    a("s_lshl_b32 s36, s19, 9"); a("s_add_u32 s36, s36, 4096"); a("v_add_u32 v5, s36, v5")
    a("v_mov_b32 v93, 0")
    def progress(tagname):
        a("s_cmp_eq_u32 s20, 0"); a(f"s_cbranch_scc0 {L(tagname)}")
        a("v_mov_b32 v92, s22")
        a("s_mov_b64 exec, 1")
        a(f"global_store_dword v93, v92, s[14:15] offset:{DBG_PROG} sc1")
        a("s_mov_b64 exec, -1")
        a.label(L(tagname))
    a.label(L('m_loop'))
    for tag in range(2):
        n = f"m{tag}"
        p1(n)
        rd8(); reduce8()
        pack_tag(tag, 'fin_m' if tag == (NSTEP - 1) & 1 else None)
        a(f"s_cbranch_scc1 {L(n + '_wt')}")
        a("global_store_dword v5, v90, s[32:33]"); a("global_store_dword v5, v91, s[32:33] offset:128")
        a.label(L(n + '_pd'))
        a("s_barrier")
        if "nopers" not in OPT: a("global_store_dwordx2 v10, v[88:89], s[30:31] sc1")
        progress(n + '_pg')
        if kvwait:
            a("s_add_u32 s53, s22, 3"); a("s_min_u32 s53, s53, 63"); kv_tile(a, "s53", "s53", "s36")
            a("s_cmp_lt_u32 s53, s51"); a(f"s_cbranch_scc1 {L(n + '_kvh')}")
            kv_poll(n + '_kv', "s53")
            a("s_add_u32 s51, s53, 1")
            a.label(L(n + '_kvh'))
        step_end()
        a(f"s_cmp_ge_u32 s22, {NSTEP - 3}"); a(f"s_cbranch_scc1 {L(n + '_hp')}")
        a.label(L(n + '_hd'))
    a(f"s_branch {L('m_loop')}")
    for tag in range(2):
        n = f"m{tag}"
        p1_retry(n)
        a.label(L(n + '_wt'))
        a("global_store_dword v5, v90, s[32:33] sc1"); a("global_store_dword v5, v91, s[32:33] offset:128 sc1"); a(f"s_branch {L(n + '_pd')}")
        a.label(L(n + '_hp'))
        a("s_sub_u32 s36, s22, 1"); head_word("s36"); a(f"s_branch {L(n + '_hd')}")
    a.label(L('fin_m'))
    progress('pg_last')
    a(f"s_branch {L('last_pub')}")

    a.label(L('setup_sm'))
    a(f"v_add_u32 v14, {L_KX}, v6")
    a("v_and_b32 v16, 7, v0"); a("v_lshrrev_b32 v17, 4, v0"); a("v_lshl_add_u32 v9, v17, 3, v16"); a("v_lshlrev_b32 v9, 4, v9"); a("v_and_b32 v18, 8, v0"); a("v_add_u32 v9, v9, v18")
    a("v_and_b32 v17, 1, v17"); a("v_lshl_add_u32 v10, v17, 3, v16"); a("v_lshlrev_b32 v10, 4, v10")
    a("v_lshrrev_b32 v17, 5, v0"); a("v_lshl_add_u32 v10, v17, 2, v10"); a("v_lshrrev_b32 v18, 2, v18"); a("v_add_u32 v10, v10, v18")
    a("s_mov_b32 s46, 0x3e0293ee")
    for i in range(4): a(f"v_mov_b32 v{84+i}, 0")
    a(f"ds_write_b128 v6, v[84:87] offset:{L_ZERO}"); a(f"ds_write_b128 v6, v[84:87] offset:{L_ZERO + 1024}")
    def k_load():
        for i in range(8): a(f"ds_read_b128 v[{96+4*i}:{99+4*i}], v14 offset:{1024*i}")
        a("v_xor_b32 v14, 0x2000, v14")
    k_load()
    zero_acc()
    a("s_setprio 2")
    def xload(b):
        for jj in range(4): a(f"global_load_dwordx4 v[{b+4*jj}:{b+3+4*jj}], v6, s[32:33] offset:{1024*jj} sc1")
    def s_mfma(b, t, jj):
        X = f"v[{b+4*jj}:{b+3+4*jj}]"
        d = 64 + 4*t
        A = X if t == 2 else f"v[{96+(t*4+jj)*4}:{99+(t*4+jj)*4}]"
        return f"v_mfma_f32_16x16x32_bf16 v[{d}:{d+3}], {A}, {X}, " + (f"v[{d}:{d+3}]" if jj else "0")
    def s_head(b, tag):
        tagchk(a, list(range(b, b + 16)), tag, 15, 16, [s_mfma(b, 2, jj) for jj in range(4)])
    dpp = "row_shr:8 row_mask:0xf bank_mask:0xc"
    def s_rest(b):
        for jj in range(4): a(s_mfma(b, 1, jj))
        a(s_mfma(b, 0, 0))
        a(f"v_mov_b32_dpp v72, v73 {dpp}"); a(f"v_mov_b32_dpp v74, v75 {dpp}")
        a(s_mfma(b, 0, 1)); a(s_mfma(b, 0, 2))
        a("v_permlane32_swap_b32 v72, v74")
        a(s_mfma(b, 0, 3))
    XD = PAR["XD"]
    a.label(L('s_loop'))
    for tag in range(2):
        n = f"s{tag}"
        p1(n)
        if tag == (NSTEP - 1) & 1:
            a(f"s_cmp_eq_u32 s22, {NSTEP-1}"); a(f"s_cbranch_scc1 {L('fin')}")
        if PAR["XDEL"]: a(f"s_sleep {PAR['XDEL']}")
        if XD == 2:
            xload(48)
            if PAR["XGAP"]: a(f"s_sleep {PAR['XGAP']}")
        a.label(L(n + '_xp'))
        xload(128 if XD == 2 else 48)
        a(f"s_waitcnt vmcnt({4*(XD-1)})")
        fs(a, prof, 0, 4)
        s_head(48, tag)
        a(f"s_cbranch_vccnz {L(n + '_xr')}")
        stamp(a, prof, 2)
        fs(a, prof, 1, 4)
        s_rest(48)
        a.label(L(n + '_xj'))
        fs(a, prof, 2, 4)
        a("s_nop 0")
        a("v_max_f32_dpp v16, v74, v74 row_ror:8 row_mask:0xf bank_mask:0xf")
        a("v_max3_f32 v16, v16, v68, v69"); a("v_max3_f32 v16, v16, v70, v71")
        a("s_nop 3")
        a("v_max3_f32 v16, v16, v64, v65"); a("v_max3_f32 v16, v16, v66, v67")
        fs(a, prof, 3, 4)
        a("v_mov_b32 v17, v16"); a(f"v_mov_b32_dpp v64, v68 {dpp}"); a(f"v_mov_b32_dpp v65, v69 {dpp}")
        a("v_permlane16_swap_b32 v16, v17"); a("v_max_f32 v16, v16, v17")
        a("v_mov_b32 v17, v16"); a(f"v_mov_b32_dpp v66, v70 {dpp}"); a(f"v_mov_b32_dpp v67, v71 {dpp}")
        a("v_permlane32_swap_b32 v16, v17"); a("v_max_f32 v16, v16, v17")
        fs(a, prof, 4, 4)
        a("v_mul_f32 v16, s46, v16")
        a("s_nop 1")
        a(f"v_mov_b32_dpp v16, v16 {dpp}")
        for rg in (74, 64, 65, 66, 67): a(f"v_fma_f32 v{rg}, v{rg}, s46, -v16")
        a("v_exp_f32 v74, v74"); a("v_exp_f32 v64, v64")
        a("v_cvt_pk_bf16_f32 v82, v74, v74")
        a("v_exp_f32 v65, v65")
        a(f"ds_write_b16 v10, v82 offset:{L_P + 1024}")
        a("v_exp_f32 v66, v66")
        a(f"ds_write_b16 v10, v82 offset:{L_P + 1280}")
        a("v_exp_f32 v67, v67")
        a("v_cvt_pk_bf16_f32 v80, v64, v65")
        a("v_cvt_pk_bf16_f32 v81, v66, v67")
        a(f"ds_write_b64 v9, v[80:81] offset:{L_P}")
        fs(a, prof, 5, 4)
        a("s_waitcnt lgkmcnt(0)"); fs(a, prof, 6, 4); a("s_barrier"); fs(a, prof, 7, 4)
        stamp(a, prof, 3)
        k_load()
        step_end()
    a(f"s_branch {L('s_loop')}")
    for tag in range(2):
        n = f"s{tag}"
        p1_retry(n)
        a.label(L(n + '_xr'))
        if XD == 2:
            xload(48)
            a("s_waitcnt vmcnt(4)")
            s_head(128, tag)
            a(f"s_cbranch_vccnz {L(n + '_xg')}")
            stamp(a, prof, 2)
            s_rest(128)
            a(f"s_branch {L(n + '_xj')}")
            a.label(L(n + '_xg'))
        guard(a, L(n + '_xp'), FAIL)

    a.label(L('setup_vo'))
    a("v_add_u32 v8, 0x1000, v6"); a("v_lshrrev_b32 v9, 4, v0")
    a("s_lshl_b32 s36, s19, 5"); a("s_lshl_b32 s42, s21, 3"); a("s_add_u32 s36, s36, s42")
    a("v_add_u32 v9, s36, v9"); a("v_bfe_u32 v11, v0, 3, 1"); a("v_lshl_add_u32 v9, v11, 2, v9")
    a("v_and_b32 v11, 1, v9"); a("v_lshlrev_b32 v11, 12, v11"); a("v_lshrrev_b32 v9, 1, v9"); a("v_lshl_add_u32 v9, v9, 14, v11")
    a("v_and_b32 v11, 7, v0"); a("v_lshl_add_u32 v9, v11, 4, v9"); a("s_lshl_b32 s36, s18, 7"); a("v_add_u32 v9, s36, v9")
    a("v_lshrrev_b32 v12, 4, v0"); a("v_and_b32 v13, 7, v0"); a("v_lshl_add_u32 v12, v12, 3, v13"); a("v_lshlrev_b32 v12, 4, v12"); a(f"v_add_u32 v12, {L_P}, v12"); a(f"v_mov_b32 v11, {L_ZERO}")
    a("v_and_b32 v13, 8, v0"); a("v_cmp_eq_u32 vcc, 0, v13"); a("s_nop 1")
    a("v_cndmask_b32 v13, v12, v11, vcc"); a("v_cndmask_b32 v12, v11, v12, vcc")
    a(f"v_add_u32 v14, {L_VX}, v6")
    a("s_lshr_b32 s36, s21, 1"); a(f"s_mul_i32 s54, s36, {WS_VX - WS_KX}"); a(f"s_mul_i32 s55, s36, {L_VX - L_KX}")
    a("s_and_b32 s36, s21, 1"); a("s_lshl_b32 s36, s36, 12"); a("s_add_u32 s54, s54, s36"); a("s_add_u32 s55, s55, s36"); a(f"s_add_u32 s55, s55, {L_KX}")
    a("s_lshl_b32 s36, s18, 14"); a("s_add_u32 s54, s54, s36"); a(f"s_add_u32 s54, s54, {WS_KX}")
    def u_load():
        for i in range(8): a(f"ds_read_b128 v[{16+4*i}:{19+4*i}], v14 offset:{1024*i}")
        a("v_xor_b32 v14, 0x2000, v14")
    def u_half(hf):
        for jj in range(4):
            for c2 in range(2):
                for kt in range(2):
                    d = 64 + (c2*2 + kt)*4
                    A = 16 + (kt*4 + jj)*4
                    a(f"v_mfma_f32_16x16x32_bf16 v[{d}:{d+3}], v[{A}:{A+3}], {wo_reg(2*hf+c2, jj)}, " + ("0" if jj == 0 else f"v[{d}:{d+3}]"))
        a("s_nop 7")
        for c2 in range(2):
            for kt in range(2):
                d = 64 + (c2*2 + kt)*4
                u = 80 + (2*hf + c2)*4 + kt*2
                a(f"v_cvt_pk_bf16_f32 v{u}, v{d}, v{d+1}"); a(f"v_cvt_pk_bf16_f32 v{u+1}, v{d+2}, v{d+3}")
    def vo_prep(tag, ahead):
        for i in range(4): a(f"v_mov_b32 v{56+i}, 0x3f803f80")
        for i in range(4): a(f"v_mov_b32 v{60+i}, 0x3f003f00")
        for i in range(16): a(f"v_mov_b32 v{64+i}, 0")
        a(f"s_add_u32 s53, s22, {2 + ahead}"); a("s_min_u32 s53, s53, 63"); a("s_lshl_b32 s53, s53, 19"); a("s_add_u32 s53, s53, s54"); near(a, 48, "s53", kv=True)
        a(f"s_add_u32 m0, s55, {tag*8192}")
    u_load(); a("s_waitcnt lgkmcnt(0)"); u_half(0); u_half(1)
    vo_prep(0, 0)
    zero_acc()
    if PAR["PRIO"]: a("s_setprio 1")
    a.label(L('o_loop'))
    for tag in range(2):
        n = f"o{tag}"
        p1(n)
        if tag == (NSTEP - 1) & 1:
            a(f"s_cmp_eq_u32 s22, {NSTEP-1}"); a(f"s_cbranch_scc1 {L('fin')}")
        if PAR["VDEL"]: a(f"s_sleep {PAR['VDEL']}")
        a.label(L(n + '_vp'))
        for k in range(2): a(f"global_load_dwordx4 v[{48+4*k}:{51+4*k}], v8, s[32:33] offset:{1024*k} sc1")
        a("s_waitcnt vmcnt(0)")
        tagchk(a, list(range(48, 56)), tag, 17, 16)
        a(f"s_cbranch_vccnz {L(n + '_vr')}")
        for k in range(2):
            for ct in range(4):
                b = 96 + (ct*4 + 2*k)*4
                a(f"v_smfmac_f32_16x16x64_bf16 v[{64+4*ct}:{67+4*ct}], v[{48+4*k}:{51+4*k}], v[{b}:{b+7}], v2")
        a("s_nop 4")
        for ct in range(4):
            if ct == 3: a("s_nop 1")
            t = 24 + (ct & 1)*4 + (ct >> 1)*2
            a(f"v_cvt_pk_bf16_f32 v{t}, v{64+4*ct}, v{65+4*ct}"); a(f"v_cvt_pk_bf16_f32 v{t+1}, v{66+4*ct}, v{67+4*ct}")
        if "nodma" not in OPT:
            for jj in range(4): a(f"global_load_lds_dwordx4 v6, s[48:49] offset:{jj*1024} sc1")
        stamp(a, prof, 3)
        a("s_barrier")
        a("ds_read_b64 v[36:37], v12 offset:1024"); a("ds_read_b64 v[38:39], v13 offset:1024")
        a("ds_read_b128 v[32:35], v12"); a("ds_read_b128 v[48:51], v13")
        a("s_waitcnt lgkmcnt(2)")
        stamp(a, prof, 4)
        a("v_mfma_f32_16x16x32_bf16 v[40:43], v[60:63], v[36:39], 0")
        a("v_mfma_f32_16x16x32_bf16 v[64:67], v[24:27], v[36:39], 0")
        a("s_waitcnt lgkmcnt(0)")
        a("v_or_b32 v44, v32, v48"); a("v_or_b32 v45, v33, v49")
        a("v_or_b32 v46, v34, v50"); a("v_or_b32 v47, v35, v51")
        a("v_mfma_f32_16x16x32_bf16 v[64:67], v[80:83], v[32:35], v[64:67]")
        a("v_mfma_f32_16x16x32_bf16 v[68:71], v[28:31], v[36:39], 0")
        a("v_mfma_f32_16x16x32_bf16 v[40:43], v[56:59], v[44:47], v[40:43]")
        a("v_mfma_f32_16x16x32_bf16 v[64:67], v[88:91], v[48:51], v[64:67]")
        a("v_mfma_f32_16x16x32_bf16 v[68:71], v[84:87], v[32:35], v[68:71]")
        a("v_mfma_f32_16x16x32_bf16 v[68:71], v[92:95], v[48:51], v[68:71]")
        a("s_nop 4")
        a("v_rcp_f32 v40, v40")
        a("s_nop 0")
        tg = lambda x: a(f"v_or_b32 v{x}, 1, v{x}" if tag else f"v_and_b32 v{x}, -2, v{x}")
        for h in range(2):
            for i in range(2): a(f"v_pk_mul_f32 v[{64+4*h+2*i}:{65+4*h+2*i}], v[{64+4*h+2*i}:{65+4*h+2*i}], v[40:41] op_sel_hi:[1,0]")
            for i in range(2): a(f"v_cvt_pk_bf16_f32 v{48+2*h+i}, v{64+4*h+2*i}, v{65+4*h+2*i}")
        for i in range(4): tg(48 + i)
        a("global_store_dwordx4 v9, v[48:51], s[26:27] sc1")
        stamp(a, prof, 5)
        u_load(); a("s_waitcnt lgkmcnt(0)"); u_half(0)
        u_half(1)
        vo_prep(tag ^ 1, 1)
        step_end()
    a(f"s_branch {L('o_loop')}")
    for tag in range(2):
        n = f"o{tag}"
        p1_retry(n)
        a.label(L(n + '_vr')); guard(a, L(n + '_vp'), FAIL)

    a.label(L('last_pub'))
    a("s_nop 7")
    a("v_cvt_pk_bf16_f32 v88, v80, v81"); a("v_cvt_pk_bf16_f32 v89, v82, v83")
    a("s_cmp_eq_u32 s21, 4"); a(f"s_cbranch_scc1 {L('fin')}")
    a("global_store_dwordx2 v10, v[88:89], s[30:31] sc1")
    a.label(L('fin'))
    a("s_waitcnt vmcnt(0)"); a("s_barrier")
    a("s_cmp_eq_u32 s21, 0"); a(f"s_cbranch_scc0 {L('end')}")
    head_word(str(NSTEP - 1))
    if "span" in OPT:
        a("s_and_b32 s98, s20, 15"); a("s_cmp_lg_u32 s98, 0"); a(f"s_cbranch_scc1 {L('end')}")
        a("s_memrealtime s[98:99]"); a("s_waitcnt lgkmcnt(0)"); a("v_mov_b32 v5, s98"); a("v_mov_b32 v2, 0")
        a("s_mov_b64 exec, 1"); a("global_atomic_umax v2, v5, s[14:15] offset:56 sc1"); a("s_mov_b64 exec, -1")
    if "diag" in OPT:
        a("s_cmp_eq_u32 s20, 0"); a(f"s_cbranch_scc0 {L('end')}")
        a("s_memrealtime s[56:57]"); a("s_waitcnt lgkmcnt(0)"); a("s_sub_u32 s70, s56, s98"); a("s_sub_u32 s71, s98, s97")
        a("s_mov_b64 exec, 1")
        a("s_mov_b32 s72, 0"); a("s_mov_b32 s73, 0"); a("s_mov_b32 s74, 0"); a("v_mov_b32 v18, 0")
        a.label(L('dg'))
        for k in range(2):
            a("s_lshl_b32 s36, s74, 21"); a(f"s_add_u32 s36, s36, {0x10000 + k*0x2000}"); a("v_mov_b32 v16, s36")
            for rep in range(2):
                a("s_memtime s[56:57]"); a("s_waitcnt lgkmcnt(0)")
                a("global_atomic_or v17, v16, v18, s[16:17] sc0 sc1"); a("s_waitcnt vmcnt(0)")
                a("s_memtime s[58:59]"); a("s_waitcnt lgkmcnt(0)")
            a(f"s_sub_u32 s{76+k}, s58, s56")
        a("s_cmp_lt_u32 s77, s76"); a("s_cselect_b32 s78, 1, 0"); a("s_mov_b32 s79, 0"); a("s_lshl_b64 s[78:79], s[78:79], s74"); a("s_or_b64 s[72:73], s[72:73], s[78:79]")
        a("s_add_u32 s74, s74, 1"); a("s_cmp_lt_u32 s74, 64"); a(f"s_cbranch_scc1 {L('dg')}")
        for k in range(4): a(f"v_mov_b32 v{20+k}, s{70+k}")
        a("global_store_dwordx4 v18, v[20:23], s[14:15] offset:48")
        a("s_mov_b64 exec, -1")
    a(f"s_branch {L('end')}")
    a.label(FAIL)
    a("v_mov_b32 v16, 0"); a("v_mov_b32 v17, 0xdead"); a("global_store_dword v16, v17, s[14:15] offset:252")
    a.label(L('end'))
    if prof:
        if prof == 3:
            a("s_memrealtime s[56:57]"); a("s_waitcnt lgkmcnt(0)"); a("s_mov_b32 s61, s56"); a("s_mov_b32 s62, s25"); a("s_mov_b32 s63, s90"); a("s_mov_b32 s64, s91"); a("s_mov_b32 s65, s89")
        if prof == 3:
            a("s_cmp_eq_u32 s21, 5"); a(f"s_cbranch_scc0 {L('nost')}")
            a("s_lshl_b32 s36, s20, 9"); a(f"s_add_u32 s36, s36, {203<<20}"); a("v_lshrrev_b32 v16, 1, v6"); a("v_add_u32 v16, s36, v16")
            a("global_store_dwordx2 v16, v[150:151], s[16:17]")
            a.label(L('nost'))
        if prof > 3:
            a("s_waitcnt lgkmcnt(0)")
            for k in range(8): a(f"s_sub_u32 s{60+k if k < 6 else 84+k}, s{66+2*k}, s66")
            a("s_mov_b32 s66, s90"); a("s_mov_b32 s67, s91")
        a("s_lshl_b32 s36, s20, 3"); a("s_add_u32 s36, s36, s21"); a("s_lshl_b32 s36, s36, 5"); a(f"s_add_u32 s36, s36, {200<<20}")
        a("v_mov_b32 v16, s36")
        for k in range(8): a(f"v_mov_b32 v{24+k}, s{60+k}")
        a("s_mov_b64 exec, 1")
        a("global_store_dwordx4 v16, v[24:27], s[16:17]"); a("global_store_dwordx4 v16, v[28:31], s[16:17] offset:16")
    a("s_endpgm")
```

```python
import sys, os
sys.path.insert(0, os.path.dirname(__file__))
from asmgen import *
import gemm
import rec2 as rec
from gemm import acc, R

NAME = "concat_heads__linear_attn_block__memory_aug_recurrent_mem_tr__prompt"
WS_O   = 84 << 20
WS_OA  = 116 << 20
WS_KVP = 124 << 20
OA_T = 65536
D_OVF, D_AKV, D_KV, D_AO, D_O = 32, 36, 64, 96, 128
D_PROG = rec.DBG_PROG
WSPIN = 400000
TSET = "1111001100110011001100" + "2102102102"
def setmask(k): return sum(1 << t for t in range(32) if int(TSET[t]) == k)
LOG2E = 0x3fb8aa3b
EPS = 0x358637bd
SCL = 0x3e0293ee


def load_ptrs(a):
    a("s_load_dwordx16 s[4:19], s[0:1], 0"); a("s_load_dwordx2 s[20:21], s[0:1], 64")
    a("s_load_dwordx4 s[24:27], s[0:1], 80"); a("s_load_dwordx2 s[28:29], s[0:1], 96")

def signal(a, off_sgpr_or_imm, val=1):
    lab = a.newlabel("sig")
    a("s_waitcnt vmcnt(0)"); a("s_barrier")
    a("s_cmp_lg_u32 s75, 0"); a(f"s_cbranch_scc1 {lab}")
    a(f"v_mov_b32 v16, {off_sgpr_or_imm}"); a(f"v_mov_b32 v17, {val}")
    a("s_mov_b64 exec, 1")
    a("global_atomic_add v16, v17, s[26:27] sc1")
    a("s_mov_b64 exec, -1")
    a.label(lab)

def wait_cnt(a, off, target):
    lp, ok, done = a.newlabel("wl"), a.newlabel("wo"), a.newlabel("wd")
    a("s_cmp_lg_u32 s75, 0"); a(f"s_cbranch_scc1 {done}")
    a(f"v_mov_b32 v16, {off}")
    a.label(lp)
    a("global_load_dword v17, v16, s[26:27] sc1"); a("s_waitcnt vmcnt(0)")
    a(f"v_cmp_ne_u32 vcc, {target}, v17"); a(f"s_cbranch_vccz {ok}")
    a("s_sleep 8")
    a("s_add_u32 s46, s46, 1"); a(f"s_cmp_lt_u32 s46, {WSPIN}"); a(f"s_cbranch_scc1 {lp}")
    a("s_branch w_fail")
    a.label(ok)
    a("buffer_inv sc1"); a("s_waitcnt vmcnt(0)")
    a.label(done)
    a("s_barrier")

def learn_parity(a):
    lp, ok = a.newlabel("vl"), a.newlabel("vo")
    a.label(lp)
    a("s_waitcnt vmcnt(0)")
    a("v_readfirstlane_b32 s22, v18"); a("v_readfirstlane_b32 s34, v19")
    a("s_and_b32 s32, s22, 0xffff"); a("s_add_u32 s32, s32, s34"); a("s_cmp_eq_u32 s32, 256"); a(f"s_cbranch_scc1 {ok}")
    a("s_sleep 8")
    a(f"global_load_dwordx2 v[18:19], v16, s[26:27] offset:{rec.DBG_VOTE} sc1")
    a("s_add_u32 s46, s46, 1"); a(f"s_cmp_lt_u32 s46, {WSPIN}"); a(f"s_cbranch_scc1 {lp}")
    a("s_branch w_fail")
    a.label(ok)
    a("s_lshr_b32 s22, s22, 16"); a("s_cmp_gt_u32 s22, 64"); a("s_cselect_b32 s22, 1, 0")

def phi(a, regs):
    for i in range(0, len(regs), 8):
        b = regs[i:i+8]
        for k, r in enumerate(b): a(f"v_mul_f32 v{16+k}, s40, v{r}")
        for k, r in enumerate(b): a(f"v_min_f32 v{16+k}, 0, v{16+k}")
        for k, r in enumerate(b): a(f"v_exp_f32 v{16+k}, v{16+k}")
        for k, r in enumerate(b): a(f"v_max_f32 v{r}, 0, v{r}")
        for k, r in enumerate(b): a(f"v_add_f32 v{r}, v{r}, v{16+k}")
        for k, r in enumerate(b): a(f"v_add_f32 v{r}, s41, v{r}")

def pack_frags(a):
    for tt in range(4):
        for jj in range(4):
            s = acc(tt, 2*jj); d = 32 + (tt*4 + jj)*4
            for i in range(4): a(f"v_cvt_pk_bf16_f32 v{d+i}, v{s+2*i}, v{s+2*i+1}")
def frag(tt, jj): return R('v', 32 + (tt*4 + jj)*4)

PROF = False
def wstamp(a, k):
    if not PROF: return
    lab = a.newlabel("ws")
    a("s_cmp_lg_u32 s75, 0"); a(f"s_cbranch_scc1 {lab}")
    a("s_memrealtime s[56:57]"); a("s_waitcnt lgkmcnt(0)")
    a("s_lshl_b32 s58, s97, 7"); a("s_lshl_b32 s57, s59, 2"); a("s_add_u32 s58, s58, s57"); a(f"s_add_u32 s58, s58, {201 << 20}")
    a("v_mov_b32 v16, s58"); a("v_mov_b32 v17, s56"); a("global_store_dword v16, v17, s[28:29]")
    a("s_memtime s[56:57]"); a("s_waitcnt lgkmcnt(0)"); a("v_mov_b32 v17, s56"); a("v_add_u32 v16, 0x100000, v16"); a("global_store_dword v16, v17, s[28:29]")
    a("s_add_u32 s59, s59, 1")
    a.label(lab)

def tstamp(a, ev, v0=126, v1=127):
    if not PROF: return
    a("s_memrealtime s[56:57]"); a("s_waitcnt lgkmcnt(0)")
    a("s_lshl_b32 s58, s96, 2"); a(f"s_add_u32 s58, s58, {(204 << 20) + ev*8192}")
    a(f"v_mov_b32 v{v0}, s58"); a(f"v_mov_b32 v{v1}, s56"); a(f"global_store_dword v{v0}, v{v1}, s[28:29]")

def wside(a, dst, off, tmp):
    rec.near(a, dst, off, "s22", 28, tmp, kv=True)

def task_g1(a, MT, grp):
    gemm.setup_a_rowmajor(a, 2048, MT); gemm.setup_w(a, 8192)
    a("s_lshl_b32 s32, s31, 15"); a("s_add_u32 s80, s10, s32"); a("s_addc_u32 s81, s11, 0")
    a("s_cmp_lt_u32 s30, 16"); a("s_cselect_b32 s82, s16, s18"); a("s_cselect_b32 s83, s17, s19")
    a(f"s_cselect_b32 s33, {rec.WS_KX >> 20}, {rec.WS_VX >> 20}"); a("s_lshl_b32 s33, s33, 20")
    a("s_and_b32 s35, s30, 15"); a("s_lshl_b32 s32, s35, 9"); a("s_add_u32 s82, s82, s32"); a("s_addc_u32 s83, s83, 0")
    a("s_mov_b32 s66, 7")
    if grp == 1:
        gemm.prologue(a, MT)
        lab = a.newlabel("sig")
        a(f"s_waitcnt vmcnt({8 + 2*MT})"); a("s_barrier")
        a("s_cmp_lg_u32 s75, 0"); a(f"s_cbranch_scc1 {lab}")
        a("v_mov_b32 v16, s88"); a("v_mov_b32 v17, 0")
        a("s_mov_b64 exec, 1"); a("global_store_dword v16, v17, s[28:29] sc1"); a("s_mov_b64 exec, -1")
        a.label(lab)
        wstamp(a, 0)
    gemm.call(a, f"core_T{MT}" + ("_m" if grp == 1 else ""))
    if grp == 0: learn_parity(a)
    wstamp(a, 0)
    a("s_lshl_b32 s34, s35, 1"); a("s_add_u32 s34, s34, s73"); a("s_lshl_b32 s34, s34, 14"); a("s_add_u32 s33, s33, s34")
    a(f"s_mul_i32 s36, s72, {MT}"); a("s_add_u32 s36, s36, s31")
    a("v_lshlrev_b32 v19, 4, v0")
    for tt in range(MT):
        a(f"s_add_u32 s32, s36, {tt}"); a("s_and_b32 s34, s32, 1"); a("s_lshl_b32 s34, s34, 12"); a("s_lshr_b32 s32, s32, 1"); a("s_lshl_b32 s32, s32, 19")
        a("s_add_u32 s32, s32, s34"); a("s_add_u32 s32, s32, s33")
        rec.near_bit(a, "s34", "s32", "s22", True); a("s_add_u32 s32, s32, s34")
        a(f"v_add_u32 v{20+tt}, s32, v19")
    a("s_lshl_b32 s88, s23, 7"); a("s_lshl_b32 s32, s30, 2"); a("s_add_u32 s88, s88, s32"); a(f"s_add_u32 s88, s88, {rec.WS_FLAG + (96 + 4*grp)*128}")
    if grp == 0: gemm.epi_frag_store(a, "s[28:29]", "sc1", MT)
    else:
        a("s_mov_b32 s89, 1"); a("s_mov_b32 s77, 1")

def touches(a, parts):
    for i, (p, fix, per, first, n) in enumerate(parts):
        a(f"s_mul_i32 s32, s96, {per*1024}"); a(f"s_add_u32 s32, s32, {fix + first*1024}")
        a(f"s_add_u32 s{90+2*i}, s{p}, s32"); a(f"s_addc_u32 s{91+2*i}, s{p+1}, 0"); a(f"s_mov_b32 s{99+i}, {n*1024 - 64}")
    a("s_mov_b32 s98, 1")

def task_g4kv(a):
    def colmap(a, v):
        a(f"v_bfe_u32 v18, v{v}, 3, 1"); a("v_lshlrev_b32 v18, 11, v18")
        a(f"v_lshrrev_b32 v19, 4, v{v}"); a("v_lshl_add_u32 v18, v19, 7, v18")
        a(f"v_and_b32 v{v}, 7, v{v}"); a(f"v_lshl_add_u32 v{v}, v{v}, 4, v18")
    gemm.setup_a_rowmajor(a, 2048); gemm.setup_w(a, 6144, colmap)
    a("s_lshl_b32 s32, s31, 19"); a("s_add_u32 s80, s4, s32"); a("s_addc_u32 s81, s5, 0")
    a("s_lshl_b32 s32, s30, 8"); a("s_add_u32 s32, s32, 2048"); a("s_add_u32 s82, s6, s32"); a("s_addc_u32 s83, s7, 0")
    a("s_mov_b32 s66, 7")
    gemm.call(a, "core_N")
    wstamp(a, 0)
    a(f"s_mov_b32 s40, {LOG2E}"); a(f"s_mov_b32 s41, {EPS}")
    phi(a, [acc(tt, 0) + i for tt in range(4) for i in range(16)])
    for tp in range(2):
        for ft in range(8):
            x = acc(2*tp, ft); y = acc(2*tp+1, ft)
            a(f"v_cvt_pk_bf16_f32 v{x}, v{x}, v{x+1}"); a(f"v_cvt_pk_bf16_f32 v{x+1}, v{x+2}, v{x+3}")
            a(f"v_cvt_pk_bf16_f32 v{x+2}, v{y}, v{y+1}"); a(f"v_cvt_pk_bf16_f32 v{x+3}, v{y+2}, v{y+3}")
    for i in range(4): a(f"v_mov_b32 v{16+i}, 0x3f803f80")
    a("v_lshlrev_b32 v20, 4, v0"); a("s_mul_i32 s32, s73, 49152"); a("s_lshl_b32 s33, s72, 10"); a("s_add_u32 s32, s32, s33"); a("v_add_u32 v21, s32, v20")
    outb = lambda hd, et, dt: (64 if hd == 0 else 128) + (et*2 + dt)*4
    for tp in range(2):
        for hd in range(2):
            for et in range(3):
                for dt in range(2):
                    D = R('v', outb(hd, et, dt)); A = R('v', acc(2*tp, 2*hd + dt)); B = R('v', acc(2*tp, 4 + 2*hd + et)) if et < 2 else "v[16:19]"
                    a(f"v_mfma_f32_16x16x32_bf16 {D}, {A}, {B}, " + ("0" if tp == 0 else D))
    a("s_barrier")
    a("s_nop 7")
    for hd in range(2):
        for f in range(6):
            a(f"ds_write_b128 v21, {R('v', outb(hd, f >> 1, f & 1))} offset:{(hd*6 + f)*4096}")
    a("s_mul_i32 s32, s75, 12288"); a("v_add_u32 v21, s32, v20")
    a("s_waitcnt lgkmcnt(0)"); a("s_barrier")
    for k in range(3):
        for m in range(4): a(f"ds_read_b128 {R('v', 32 + (k*4 + m)*4)}, v21 offset:{k*4096 + m*1024}")
    a("s_lshl_b32 s32, s31, 5"); a("s_lshl_b32 s33, s30, 2"); a("s_add_u32 s32, s32, s33"); a("s_mul_i32 s32, s32, 6144")
    a("s_mul_i32 s33, s75, 3072"); a("s_add_u32 s32, s32, s33"); a(f"s_add_u32 s32, s32, {WS_KVP}"); a("v_add_u32 v22, s32, v20")
    a("s_waitcnt lgkmcnt(0)")
    for k in range(3):
        b = 32 + k*16
        for h in range(2):
            a(f"v_pk_add_f32 v[{b+2*h}:{b+2*h+1}], v[{b+2*h}:{b+2*h+1}], v[{b+4+2*h}:{b+5+2*h}]")
            a(f"v_pk_add_f32 v[{b+8+2*h}:{b+9+2*h}], v[{b+8+2*h}:{b+9+2*h}], v[{b+12+2*h}:{b+13+2*h}]")
        for h in range(2):
            a(f"v_pk_add_f32 v[{b+2*h}:{b+2*h+1}], v[{b+2*h}:{b+2*h+1}], v[{b+8+2*h}:{b+9+2*h}]")
        a(f"global_store_dwordx4 v22, {R('v', b)}, s[28:29] offset:{k*1024} sc1")
    signal(a, D_AKV)

def task_g4q(a):
    gemm.setup_a_rowmajor(a, 2048); gemm.setup_w(a, 6144)
    a("s_lshl_b32 s32, s31, 19"); a("s_add_u32 s80, s4, s32"); a("s_addc_u32 s81, s5, 0")
    a("s_lshl_b32 s32, s30, 9"); a("s_add_u32 s82, s6, s32"); a("s_addc_u32 s83, s7, 0")
    a("s_mov_b32 s66, 7")
    gemm.call(a, "core_T")
    wstamp(a, 0)
    a(f"s_mov_b32 s40, {LOG2E}"); a(f"s_mov_b32 s41, {EPS}")
    phi(a, list(range(32, 160)))
    pack_frags(a)
    wstamp(a, 0)
    wait_cnt(a, D_AKV, 64)
    wstamp(a, 0)
    a("v_lshlrev_b32 v16, 4, v0")
    for r in range(1, 8): a(f"v_add_u32 v{16+r}, {r*196608}, v16")
    a("s_lshl_b32 s32, s30, 3"); a("s_add_u32 s32, s32, s75"); a("s_mul_i32 s32, s32, 6144"); a(f"s_add_u32 s32, s32, {WS_KVP}")
    a("s_add_u32 s34, s28, s32"); a("s_addc_u32 s35, s29, 0")
    a("s_mul_i32 s32, s75, 3072"); a("v_add_u32 v24, s32, v16")
    for et in range(3):
        for r in range(8):
            for dt in range(2):
                a(f"global_load_dwordx4 {R('v', 96 + (r*2 + dt)*4)}, v{16+r}, s[34:35] offset:{dt*1024} sc1")
        a("s_add_u32 s34, s34, 2048"); a("s_addc_u32 s35, s35, 0")
        a("s_waitcnt vmcnt(0)")
        for step in (32, 16, 8):
            for i in range(0, step, 2):
                a(f"v_pk_add_f32 v[{96+i}:{97+i}], v[{96+i}:{97+i}], v[{96+step+i}:{97+step+i}]")
        for i in range(4): a(f"v_cvt_pk_bf16_f32 v{28+i}, v{96+2*i}, v{97+2*i}")
        a(f"ds_write_b128 v24, v[28:31] offset:{et*1024}")
    a("s_mul_i32 s32, s73, 12288"); a("v_add_u32 v24, s32, v16")
    a("s_waitcnt lgkmcnt(0)"); a("s_barrier")
    for i in range(12): a(f"ds_read_b128 {R('a', i*4)}, v24 offset:{i*1024}")
    gemm.lane_chunk(a, 25, 26)
    a("v_and_b32 v26, 15, v0"); a("v_lshl_add_u32 v25, v25, 4, v26"); a("v_lshlrev_b32 v25, 4, v25")
    a("s_lshl_b32 s32, s31, 4"); a("s_lshl_b32 s33, s72, 2"); a("s_add_u32 s32, s32, s33"); a(f"s_mul_i32 s32, s32, {OA_T}")
    a("s_lshl_b32 s33, s30, 14"); a("s_add_u32 s32, s32, s33"); a("s_lshl_b32 s33, s73, 12"); a("s_add_u32 s32, s32, s33"); a(f"s_add_u32 s32, s32, {WS_OA}")
    rec.near_bit(a, "s33", "s32", "s22", True); a("s_add_u32 s32, s32, s33")
    a("v_add_u32 v20, s32, v25")
    for tt in range(1, 4): a(f"v_add_u32 v{20+tt}, {tt*OA_T}, v20")
    a("s_waitcnt lgkmcnt(0)")
    for hd in range(4):
        for tt in range(4):
            b = 96 + tt*12
            for et in (2, 0, 1):
                a(f"v_mfma_f32_16x16x32_bf16 {R('v', b + et*4)}, {R('a', (hd*3 + et)*4)}, {frag(tt, hd)}, 0")
        a("s_nop 7")
        for tt in range(4):
            b = 96 + tt*12
            a(f"v_add_f32 v{b+8}, s41, v{b+8}")
        for tt in range(4):
            b = 96 + tt*12
            a(f"v_rcp_f32 v{b+8}, v{b+8}")
        for tt in range(4):
            b = 96 + tt*12
            a(f"v_mov_b32 v{b+9}, v{b+8}")
            for i in range(0, 8, 2): a(f"v_pk_mul_f32 v[{b+i}:{b+i+1}], v[{b+i}:{b+i+1}], v[{b+8}:{b+9}]")
            t = 144 + tt*4
            gemm.pack_swap(a, t, b)
            a(f"global_store_dwordx4 v{20+tt}, {R('v', t)}, s[28:29] offset:{hd*1024} sc1")
    a("s_lshl_b32 s32, s31, 2"); a(f"s_add_u32 s32, s32, {D_AO}")
    signal(a, "s32")

def out_offsets(a, MT):
    gemm.lane_chunk(a, 25, 26)
    a("v_and_b32 v26, 15, v0"); a("v_lshlrev_b32 v26, 12, v26"); a("v_lshl_add_u32 v20, v25, 4, v26")
    a(f"s_mul_i32 s32, s72, {MT*16*4096}"); a("s_lshl_b32 s33, s73, 8"); a("s_add_u32 s32, s32, s33"); a("v_add_u32 v20, s32, v20")
    for tt in range(1, MT): a(f"v_add_u32 v{20+tt}, {tt*65536}, v20")

def task_g5(a):
    gemm.setup_a_frag(a, OA_T); gemm.setup_w(a, 2048)
    a("s_lshl_b32 s32, s31, 2"); a(f"s_add_u32 s32, s32, {D_AO}")
    wait_cnt(a, "s32", 4)
    wstamp(a, 0)
    a(f"s_mul_i32 s32, s31, {16*OA_T}"); a(f"s_add_u32 s32, s32, {WS_OA}"); wside(a, 80, "s32", "s33")
    a("s_lshl_b32 s32, s30, 9"); a("s_add_u32 s82, s8, s32"); a("s_addc_u32 s83, s9, 0")
    a("s_mov_b32 s66, 7")
    gemm.call(a, "core_T")
    wstamp(a, 0)
    out_offsets(a, 4)
    a("s_lshl_b32 s32, s31, 20"); a("s_lshl_b32 s33, s30, 9"); a("s_add_u32 s32, s32, s33"); a("s_add_u32 s34, s24, s32"); a("s_addc_u32 s35, s25, 0")
    gemm.epi_out_store(a, "s[34:35]", 4, "" if "outpl" in rec.OPT else "sc1")

def task_wot(a):
    a("s_barrier")
    a("v_lshrrev_b32 v2, 4, v0"); a("v_lshlrev_b32 v2, 11, v2"); a("v_and_b32 v3, 15, v0"); a("v_lshl_add_u32 v2, v3, 4, v2")
    a("s_lshl_b32 s32, s30, 18"); a("s_lshl_b32 s33, s31, 17"); a("s_add_u32 s32, s32, s33"); a("s_lshl_b32 s33, s75, 8"); a("s_add_u32 s32, s32, s33"); a("v_add_u32 v2, s32, v2")
    a("s_lshl_b32 s43, s75, 14")
    for i in range(16):
        a(f"s_add_u32 m0, s43, {i*1024}"); a("s_nop 0")
        a("global_load_lds_dwordx4 v2, s[20:21]")
        a("v_add_u32 v2, 0x2000, v2")
    gemm.pending_stores(a)
    a("s_mov_b32 s77, 0")
    a("v_lshrrev_b32 v3, 2, v0"); a("v_lshlrev_b32 v3, 8, v3"); a("v_and_b32 v16, 3, v0"); a("v_lshl_add_u32 v3, v16, 4, v3"); a("v_add_u32 v3, s43, v3")
    a("s_lshl_b32 s32, s75, 21"); a("s_lshl_b32 s33, s30, 14"); a("s_add_u32 s32, s32, s33"); a("s_lshl_b32 s33, s31, 12"); a("s_add_u32 s32, s32, s33"); a(f"s_add_u32 s32, s32, {rec.WS_WOT}")
    wside(a, 34, "s32", "s33")
    a("v_lshlrev_b32 v20, 4, v0")
    for i in range(1, 4): a(f"v_add_u32 v{20+i}, {i*rec.WOT_CG}, v20")
    a("s_waitcnt vmcnt(0)")
    for cgl in range(4):
        for jl in range(2):
            for ct in range(2):
                b = 32 + ((cgl*2 + jl)*2 + ct)*4
                for lo in range(2):
                    a(f"ds_read_b64_tr_b16 {R('v', b + 2*lo, 2)}, v3 offset:{(32*jl + 16*lo)*256 + cgl*64 + ct*8}")
        a("s_waitcnt lgkmcnt(0)")
        for jl in range(2):
            for ct in range(2):
                a(f"global_store_dwordx4 v{20+cgl}, {R('v', 32 + ((cgl*2 + jl)*2 + ct)*4)}, s[34:35] offset:{jl*2048 + ct*1024} sc1")
    lab = a.newlabel("sig")
    a("s_waitcnt vmcnt(0)"); a("s_barrier")
    a("s_cmp_lg_u32 s75, 0"); a(f"s_cbranch_scc1 {lab}")
    a("s_lshl_b32 s32, s31, 7"); a("s_lshl_b32 s33, s30, 2"); a("s_add_u32 s32, s32, s33"); a(f"s_add_u32 s32, s32, {rec.WS_FLAG + 108*128}")
    a("v_mov_b32 v16, s32"); a("v_mov_b32 v17, 0")
    a("s_mov_b64 exec, 1"); a("global_store_dword v16, v17, s[28:29] sc1"); a("s_mov_b64 exec, -1")
    a.label(lab)

def task_g3(a, MT):
    sh = MT - 1
    a("s_lshl_b32 s32, s30, 3"); a("s_add_u32 s32, s32, s75"); a("s_lshl_b32 s32, s32, 19"); a(f"s_add_u32 s32, s32, {rec.WS_WOT}")
    rec.near_bit(a, "s33", "s32", "s22", True); a("s_add_u32 s32, s32, s33")
    gemm.setup_a_frag(a, 262144, MT); gemm.setup_w_frag(a, "s32")
    wot_wait(a)
    lp, ok = a.newlabel("fl"), a.newlabel("fo")
    a("s_cmp_lg_u32 s75, 0"); a(f"s_cbranch_scc1 {ok}")
    a(f"s_lshl_b32 s32, s31, {8 + sh}"); a(f"s_add_u32 s32, s32, {rec.WS_FLAG}"); a("v_lshl_add_u32 v16, v0, 2, s32")
    a.label(lp)
    a("global_load_dword v17, v16, s[28:29] sc1"); a(f"global_load_dword v19, v16, s[28:29] offset:{256*sh} sc1"); a("s_waitcnt vmcnt(0)")
    a("v_or_b32 v17, v17, v19")
    a("v_cmp_ne_u32 vcc, 0, v17"); a(f"s_cbranch_vccz {ok}")
    a("s_sleep 8")
    a("s_add_u32 s46, s46, 1"); a(f"s_cmp_lt_u32 s46, {WSPIN}"); a(f"s_cbranch_scc1 {lp}")
    a("s_branch w_fail")
    a.label(ok)
    wstamp(a, 0)
    a(f"s_lshl_b32 s32, s31, {20 + sh}"); a(f"s_add_u32 s32, s32, {WS_O}"); wside(a, 80, "s32", "s33")
    a("s_mov_b64 s[82:83], s[28:29]")
    a("s_mov_b32 s66, 31")
    a("s_add_u32 s32, s31, s30"); a("s_and_b32 s78, s32, 3"); a("s_lshl_b32 s78, s78, 11"); a("s_and_b32 s33, s32, 4"); a("s_lshl_b32 s33, s33, 12"); a("s_or_b32 s78, s78, s33")
    a("s_and_b32 s79, s32, 1"); a("s_lshl_b32 s79, s79, 12"); a("s_and_b32 s33, s32, 6"); a("s_lshl_b32 s33, s33, 13"); a("s_or_b32 s79, s79, s33")
    gemm.call(a, f"core_F{MT}")
    a("v_and_b32 v26, 15, v0"); a("v_lshlrev_b32 v26, 12, v26"); a("v_lshrrev_b32 v25, 4, v0"); a("v_lshl_add_u32 v20, v25, 4, v26")
    a(f"s_lshl_b32 s32, s72, {16 + sh}"); a("s_lshl_b32 s33, s73, 8"); a("s_add_u32 s32, s32, s33"); a("v_add_u32 v20, s32, v20"); a("v_add_u32 v21, 0x10000, v20")
    a(f"s_lshl_b32 s32, s31, {18 + sh}"); a("s_lshl_b32 s33, s30, 9"); a("s_add_u32 s32, s32, s33"); a("s_add_u32 s32, s32, 2048"); a("s_add_u32 s34, s24, s32"); a("s_addc_u32 s35, s25, 0")
    gemm.epi_frag_store(a, "s[34:35]", "sc1", MT, 64)

def softmax_cols(a, regs, t):
    a(f"v_max3_f32 v{t}, v{regs[0]}, v{regs[1]}, v{regs[2]}")
    rest = regs[3:]
    while len(rest) >= 2:
        a(f"v_max3_f32 v{t}, v{t}, v{rest[0]}, v{rest[1]}"); rest = rest[2:]
    if rest: a(f"v_max_f32 v{t}, v{t}, v{rest[0]}")
    for sw in ("16", "32"):
        a(f"v_mov_b32 v{t+1}, v{t}"); a("s_nop 1"); a(f"v_permlane{sw}_swap_b32 v{t}, v{t+1}"); a(f"v_max_f32 v{t}, v{t}, v{t+1}")
    a(f"v_mul_f32 v{t}, s40, v{t}")
    for r in regs: a(f"v_fma_f32 v{r}, v{r}, s40, -v{t}")
    for r in regs: a(f"v_exp_f32 v{r}, v{r}")

def task_g2a(a):
    gemm.setup_a_rowmajor(a, 2048); gemm.setup_w(a, 8192)
    a("s_lshl_b32 s32, s31, 19"); a("s_add_u32 s80, s10, s32"); a("s_addc_u32 s81, s11, 0")
    a("s_lshl_b32 s32, s30, 9"); a("s_add_u32 s82, s14, s32"); a("s_addc_u32 s83, s15, 0")
    a("s_mov_b32 s66, 7")
    gemm.call(a, "core_T")
    wstamp(a, 0)
    a("s_lshl_b32 s38, s31, 3"); a("s_lshl_b32 s33, s72, 1"); a("s_add_u32 s38, s38, s33"); a("s_mov_b32 s39, s38"); a("s_lshl_b32 s38, s38, 5")
    a("s_lshl_b32 s42, s30, 1"); a("s_add_u32 s42, s42, s73"); a("s_add_u32 s38, s38, s42")
    a("s_lshl_b32 s34, s38, 14"); a(f"s_add_u32 s34, s34, {rec.WS_KX}"); rec.near(a, 32, "s34", "s22", 28, "s35", kv=True)
    rec.v_from_k(a, 34, 32)
    a("v_lshlrev_b32 v16, 4, v0"); a("v_add_u32 v17, 0x1000, v16"); a("v_add_u32 v18, 0x80000, v16"); a("v_add_u32 v19, 0x81000, v16")
    a("s_mul_i32 s43, s75, 20480")
    kp, kok = a.newlabel("kp"), a.newlabel("ko")
    rec.kv_tile(a, "s47", "s39", "s48"); a("s_lshl_b32 s47, s47, 7"); a("s_lshl_b32 s48, s30, 2"); a("s_add_u32 s47, s47, s48"); a(f"s_add_u32 s47, s47, {rec.WS_FLAG + 96*128}")
    a("v_mov_b32 v22, s47"); a("v_mov_b32 v23, 0")
    a.label(kp)
    a("global_load_dword v26, v22, s[28:29] sc1"); a("global_load_dword v27, v22, s[28:29] offset:64 sc1")
    a(f"global_load_dword v24, v23, s[26:27] offset:{D_PROG} sc1"); a("s_waitcnt vmcnt(0)")
    a("v_or_b32 v26, v26, v27"); a("v_cmp_ne_u32 vcc, 0, v26"); a(f"s_cbranch_vccz {kok}")
    a("s_sleep 12")
    a("s_add_u32 s46, s46, 1"); a(f"s_cmp_lt_u32 s46, {WSPIN}"); a(f"s_cbranch_scc1 {kp}")
    a("s_branch w_fail")
    a.label(kok)
    def take_progress():
        a("v_readfirstlane_b32 s48, v24"); a("s_nop 0")
        a("s_max_u32 s48, s48, 1"); a("s_sub_u32 s48, s48, 1")
    take_progress()
    a("s_barrier")
    def m_wait(seg):
        lp, ok, nf = a.newlabel("ap"), a.newlabel("ao"), a.newlabel("nf")
        a.label(lp)
        a(f"s_cmp_lt_u32 {seg}, s48"); a(f"s_cbranch_scc1 {ok}")
        a("s_cmp_lt_u32 s48, 59"); a(f"s_cbranch_scc1 {nf}")
        a("s_sleep 2")
        a("global_load_dwordx4 v[24:27], v31, s[28:29] sc1"); a("s_waitcnt vmcnt(0)")
        a("v_min3_i32 v24, v24, v25, v26"); a("v_min_i32 v24, v24, v27"); a("s_nop 0"); a("v_readfirstlane_b32 s49, v24")
        a("s_add_u32 s49, s49, 1"); a("s_max_u32 s48, s48, s49")
        a("s_add_u32 s46, s46, 1"); a(f"s_cmp_lt_u32 s46, {WSPIN}"); a(f"s_cbranch_scc1 {lp}")
        a("s_branch w_fail")
        a.label(nf)
        a("s_sleep 8")
        a(f"global_load_dword v24, v23, s[26:27] offset:{D_PROG} sc1"); a("s_waitcnt vmcnt(0)")
        take_progress()
        a("s_add_u32 s46, s46, 1"); a(f"s_cmp_lt_u32 s46, {WSPIN}"); a(f"s_cbranch_scc1 {lp}")
        a("s_branch w_fail")
        a.label(ok)
    def kv_loads(sg):
        for kt in range(2):
            for jj in range(4):
                a(f"global_load_dwordx4 {R('a', sg*32 + (kt*4 + jj)*4)}, v{16 + sg*2 + kt}, s[32:33] offset:{jj*1024} sc1")
            a(f"s_add_u32 m0, s43, {sg*10240 + kt*4096}"); a("s_nop 0")
            for jj in range(4):
                a(f"global_load_lds_dwordx4 v{16 + sg*2 + kt}, s[34:35] offset:{jj*1024} sc1")
    a("s_lshl_b32 s47, s42, 7"); a(f"s_add_u32 s47, s47, {rec.WS_FLAG + 8192}"); a("v_mov_b32 v31, s47")
    a("s_max_u32 s54, s39, 5"); a("s_sub_u32 s54, s54, 5")
    m_wait("s54")
    kv_loads(0)
    pack_frags(a)
    a("s_lshr_b32 s50, s38, 1"); a("s_lshl_b32 s50, s50, 14"); a("s_and_b32 s51, s38, 1"); a("s_lshl_b32 s51, s51, 12"); a("s_add_u32 s50, s50, s51"); a(f"s_add_u32 s50, s50, {rec.WS_KMVM}")
    rec.near(a, 52, "s50", "s22", 28, "s51")
    a("v_and_b32 v28, 7, v0"); a("v_lshlrev_b32 v28, 4, v28"); a("v_lshrrev_b32 v24, 4, v0"); a("v_lshl_add_u32 v28, v24, 7, v28")
    XB = (108, 32)
    def m_loads(sg):
        for jj in range(4): a(f"global_load_dwordx4 {R('v', XB[sg] + 4*jj)}, v28, s[52:53] offset:{jj*512} sc1")
        for i in range(2): a(f"global_load_dwordx4 {R('v', XB[sg] + 16 + 4*i)}, v16, s[52:53] offset:{2048 + i*1024} sc1")
        a("s_add_u32 s52, s52, 0x40000"); a("s_addc_u32 s53, s53, 0")
    def seg_signal(seg):
        a(f"s_lshl_b32 s47, {seg}, 7"); a("s_lshl_b32 s49, s42, 2"); a("s_add_u32 s47, s47, s49"); a(f"s_add_u32 s47, s47, {rec.WS_FLAG}")
        a(f"s_lshl_b32 s50, {seg}, 10"); a("s_lshr_b32 s49, s42, 2"); a("s_lshl_b32 s49, s49, 7"); a("s_add_u32 s50, s50, s49"); a("s_and_b32 s49, s42, 3"); a("s_lshl_b32 s49, s49, 2")
        a("s_add_u32 s50, s50, s49"); a(f"s_add_u32 s50, s50, {rec.WS_FLAG2 - 48*1024}")
        a(f"s_cmp_ge_u32 {seg}, 48"); a("s_cselect_b32 s47, s50, s47"); a("v_mov_b32 v29, s47")
        a("s_waitcnt vmcnt(0)")
        a("s_mov_b64 exec, 1")
        a("global_store_dword v29, v23, s[28:29] sc1")
        a("s_mov_b64 exec, -1")
    early, late = a.newlabel("e0"), a.newlabel("l0")
    a("s_cmp_lt_u32 s39, s48"); a(f"s_cbranch_scc1 {early}")
    kv_loads(1); m_wait("s39"); m_loads(0)
    a("s_waitcnt vmcnt(0)")
    a(f"s_branch {late}")
    a.label(early)
    m_loads(0); kv_loads(1)
    a.label(late)
    a("v_lshrrev_b32 v24, 4, v0"); a("v_lshlrev_b32 v24, 2, v24"); a("v_and_b32 v25, 15, v0"); a("v_mov_b32 v26, 0xff800000")
    for i in range(4):
        a(f"v_add_u32 v27, {i}, v24"); a("v_cmp_gt_u32 vcc, v27, v25"); a("s_nop 1"); a(f"v_cndmask_b32 v{96+i}, 0, v26, vcc")
    a("v_cmp_gt_u32 vcc, 32, v0"); a("s_nop 1")
    for i in range(4): a(f"v_cndmask_b32 v{100+i}, 0, v26, vcc")
    for i in range(4): a(f"v_mov_b32 v{104+i}, 0x3f803f80")
    a("v_and_b32 v24, 3, v0"); a("v_lshrrev_b32 v25, 2, v0")
    a("v_lshlrev_b32 v18, 4, v25"); a("v_lshl_add_u32 v18, v24, 8, v18"); a("v_add_u32 v18, s43, v18")
    a("v_and_b32 v25, 7, v25"); a("v_lshlrev_b32 v19, 4, v25"); a("v_lshl_add_u32 v19, v24, 7, v19"); a("v_add_u32 v19, s43, v19")
    a("v_add_u32 v20, s43, v16")
    a("v_mov_b32 v21, v16"); a("v_add_u32 v22, 0x40000, v21")
    a("s_lshl_b32 s50, s39, 19"); a("s_lshl_b32 s51, s30, 14"); a("s_add_u32 s50, s50, s51"); a("s_lshl_b32 s51, s73, 12"); a("s_add_u32 s50, s50, s51"); a(f"s_add_u32 s50, s50, {WS_O}")
    wside(a, 36, "s50", "s51")
    a(f"s_mov_b32 s40, {SCL}")
    a("s_add_u32 s54, s39, 1")
    for sg in range(2):
        lo = sg*10240
        xb = XB[sg]
        if sg == 0:
            a("s_waitcnt vmcnt(16)")
        else:
            have = a.newlabel("h1")
            a("s_cmp_eq_u32 s55, 1"); a(f"s_cbranch_scc1 {have}")
            seg_signal("s39"); m_wait("s54"); tstamp(a, 0, 2, 3); m_loads(1)
            a("s_waitcnt vmcnt(0)"); tstamp(a, 1, 2, 3)
            a.label(have)
            a("s_waitcnt vmcnt(8)")
        for i in range(2): a(f"ds_write_b128 v20, {R('v', xb + 16 + 4*i)} offset:{lo + 8192 + i*1024}")
        tiles = [(132, 0, 0, "v[96:99]"), (136, 2, 0, "v[100:103]"), (140, 0, 1, "0"), (144, 1, 1, "v[96:99]"), (148, 2, 1, "v[100:103]")]
        for jj in range(4):
            for d, kt, qt, C in tiles:
                A = R('v', xb + 4*jj) if kt == 2 else R('a', sg*32 + (kt*4 + jj)*4)
                a(f"v_mfma_f32_16x16x32_bf16 {R('v', d)}, {A}, {frag(2*sg + qt, jj)}, " + (C if jj == 0 else R('v', d)))
        if sg == 0:
            no = a.newlabel("n1")
            a("s_mov_b32 s55, 0")
            a("s_cmp_lt_u32 s54, s48"); a(f"s_cbranch_scc0 {no}")
            m_loads(1); a("s_mov_b32 s55, 1")
            a.label(no)
        def vread(jj):
            b = 64 + (jj & 1)*12
            for hf in range(2):
                for kt in range(2):
                    a(f"ds_read_b64_tr_b16 {R('a', b + hf*4 + kt*2, 2)}, v18 offset:{lo + kt*4096 + jj*1024 + hf*8}")
                a(f"ds_read_b64_tr_b16 {R('a', b + 8 + hf*2, 2)}, v19 offset:{lo + 8192 + jj*512 + hf*8}")
        vread(0)
        a("s_nop 3")
        softmax_cols(a, list(range(132, 140)), 24)
        softmax_cols(a, list(range(140, 152)), 24)
        a("s_nop 0")
        a("v_cvt_pk_bf16_f32 v108, v132, v133"); a("v_cvt_pk_bf16_f32 v109, v134, v135"); a("v_mov_b32 v110, 0"); a("v_mov_b32 v111, 0")
        a("v_cvt_pk_bf16_f32 v112, v136, v137"); a("v_cvt_pk_bf16_f32 v113, v138, v139")
        for i in range(4): a(f"v_cvt_pk_bf16_f32 v{116+i}, v{140+2*i}, v{141+2*i}")
        a("v_cvt_pk_bf16_f32 v114, v148, v149"); a("v_cvt_pk_bf16_f32 v115, v150, v151")
        P0 = ["v[108:111]", "v[116:119]"]; P1 = ["v[112:113]", "v[114:115]"]
        a("s_nop 1")
        for qt in range(2): a(f"v_mfma_f32_16x16x32_bf16 {R('v', 120 + 4*qt)}, v[104:107], {P0[qt]}, 0")
        a("s_nop 5")
        for qt in range(2): a(f"v_mfma_f32_16x16x16_bf16 {R('v', 120 + 4*qt)}, v[104:105], {P1[qt]}, {R('v', 120 + 4*qt)}")
        if sg == 1:
            done = a.newlabel("d0")
            a("s_cmp_eq_u32 s55, 1"); a(f"s_cbranch_scc0 {done}")
            seg_signal("s39")
            a.label(done)
        a("s_nop 7")
        a("v_rcp_f32 v24, v120"); a("v_rcp_f32 v26, v124"); a("s_nop 0"); a("v_mov_b32 v25, v24"); a("v_mov_b32 v27, v26")
        for jj in range(4):
            b = 64 + (jj & 1)*12
            if jj < 3:
                vread(jj + 1); a("s_waitcnt lgkmcnt(6)")
            else:
                a("s_waitcnt lgkmcnt(0)")
            for qt in range(2):
                for hf in range(2):
                    a(f"v_mfma_f32_16x16x32_bf16 {R('v', 132 + (qt*2 + hf)*4)}, {R('a', b + hf*4)}, {P0[qt]}, 0")
            a("s_nop 2")
            for qt in range(2):
                for hf in range(2):
                    D = R('v', 132 + (qt*2 + hf)*4)
                    a(f"v_mfma_f32_16x16x16_bf16 {D}, {R('a', b + 8 + hf*2, 2)}, {P1[qt]}, {D}")
            a("s_nop 7")
            for qt in range(2):
                o = 132 + qt*8
                for i in range(0, 8, 2): a(f"v_pk_mul_f32 v[{o+i}:{o+i+1}], v[{o+i}:{o+i+1}], v[{24+2*qt}:{25+2*qt}]")
                for i in range(4): a(f"v_cvt_pk_bf16_f32 v{152 + 4*qt + i}, v{o+2*i}, v{o+2*i+1}")
                a(f"global_store_dwordx4 v{21+qt}, {R('v', 152 + 4*qt)}, s[36:37] offset:{jj*1024} sc1")
        if sg == 0:
            a("s_add_u32 s36, s36, 0x80000"); a("s_addc_u32 s37, s37, 0")
    tstamp(a, 2, 2, 3)
    seg_signal("s54")
    tstamp(a, 3, 2, 3)

def sreg(i): return R('a', 4*i) if i < 24 else R('v', 128 + 4*(i - 24))
def wot_wait(a):
    lp, ok = a.newlabel("tl"), a.newlabel("to")
    a("s_cmp_lg_u32 s75, 0"); a(f"s_cbranch_scc1 {ok}")
    a("v_lshlrev_b32 v18, 2, v0"); a(f"v_add_u32 v18, {rec.WS_FLAG + 108*128}, v18")
    a.label(lp)
    a("global_load_dword v19, v18, s[28:29] sc1"); a("s_waitcnt vmcnt(0)")
    a("v_cmp_ne_u32 vcc, 0, v19"); a(f"s_cbranch_vccz {ok}")
    a("s_sleep 8")
    a("s_add_u32 s46, s46, 1"); a(f"s_cmp_lt_u32 s46, {WSPIN}"); a(f"s_cbranch_scc1 {lp}")
    a("s_branch w_fail")
    a.label(ok)

def task_stream(a):
    wot_wait(a)
    a("s_barrier")
    a("s_lshl_b32 s43, s75, 15")
    a("s_lshl_b32 s32, s45, 19"); a("s_lshl_b32 s33, s75, 16"); a("s_add_u32 s32, s32, s33"); a(f"s_add_u32 s32, s32, {rec.WS_WOT}")
    rec.near_bit(a, "s33", "s32", "s22", True); a("s_add_u32 s32, s32, s33")
    a("s_add_u32 s36, s75, s45"); a("s_and_b32 s36, s36, 3")
    a("v_lshlrev_b32 v10, 4, v0"); a("v_add_u32 v6, s32, v10"); a("s_lshl_b32 s33, s36, 14"); a("v_xor_b32 v6, s33, v6")
    for i in range(32):
        if i & 3 == 0: a(f"v_xor_b32 v2, {(i >> 3)*16384 + ((i >> 2) & 1)*4096}, v6")
        a(f"global_load_dwordx4 {sreg(i)}, v2, s[28:29] offset:{(i & 3)*1024} sc1")
    a("s_and_b32 s33, s36, 1"); a("s_lshl_b32 s33, s33, 12"); a("s_add_u32 s32, s43, s33"); a("s_lshr_b32 s33, s36, 1"); a("s_lshl_b32 s33, s33, 14"); a("s_add_u32 s32, s32, s33")
    a("v_add_u32 v2, s32, v10")
    for i in range(1, 4): a(f"v_xor_b32 v{2+i}, {(i & 1)*4096 + (i >> 1)*16384}, v2")
    a("s_lshl_b32 s32, s75, 11"); a("v_add_u32 v11, s32, v10")
    a("v_lshrrev_b32 v13, 4, v0"); a("s_and_b32 s32, s75, 3"); a("s_lshl_b32 s32, s32, 2"); a("v_add_u32 v13, s32, v13")
    a("v_bfe_u32 v14, v0, 2, 2"); a("v_lshl_add_u32 v12, v14, 4, v13"); a("v_lshlrev_b32 v12, 4, v12")
    a("v_and_b32 v14, 1, v0"); a("v_lshl_add_u32 v12, v14, 3, v12"); a("v_bfe_u32 v14, v0, 1, 1"); a("v_lshl_add_u32 v12, v14, 10, v12")
    a("v_lshlrev_b32 v13, 12, v13"); a("v_and_b32 v14, 15, v0"); a("v_lshl_add_u32 v13, v14, 2, v13")
    a("s_lshl_b32 s33, s45, 6"); a(f"s_add_u32 s33, s33, {2048 + 96*65536}"); a("v_add_u32 v13, s33, v13")
    a("s_and_b32 s32, s45, 3"); a("s_lshl_b32 s32, s32, 11"); a("s_bfe_u32 s33, s45, 0x10002"); a("s_lshl_b32 s33, s33, 14"); a("s_add_u32 s32, s32, s33"); a("s_add_u32 s32, s32, s43")
    a("v_and_b32 v10, 31, v0"); a("v_lshl_add_u32 v10, v10, 6, s32")
    a("v_and_b32 v9, 3, v0"); a("v_lshlrev_b32 v9, 2, v9"); a("s_lshl_b32 s32, s75, 7"); a(f"s_add_u32 s32, s32, {rec.WS_FLAG2}"); a("v_add_u32 v9, s32, v9")
    a("v_mov_b32 v8, 0"); a(f"v_mov_b32 v6, {rec.WS_FLAG + 127*128}")
    wstamp(a, 0)
    def pick(dst):
        a(f"s_ff1_i32_b32 {dst}, s34"); a(f"s_bitset0_b32 s34, {dst}")
    def base(dst, item):
        a(f"s_and_b32 s32, {item}, 31"); a("s_lshl_b32 s32, s32, 18"); a(f"s_add_u32 s32, s32, {WS_O + 96*262144}"); wside(a, dst, "s32", "s33")
    def poll(item):
        a(f"s_bfe_u32 s32, {item}, 0x40001"); a("s_lshl_b32 s32, s32, 10"); a("v_add_u32 v14, s32, v9")
        a("global_load_dword v15, v14, s[28:29] sc1")
    def look(item, touch):
        lab, j = a.newlabel("lk"), a.newlabel("lj")
        a(f"global_load_dword v7, v8, s[26:27] offset:{D_PROG} sc1")
        a(f"s_bfe_u32 s32, {item}, 0x40001"); a("s_add_u32 s32, s32, 51"); a("s_min_u32 s32, s32, 63"); a("s_cmp_le_u32 s32, s37"); a(f"s_cbranch_scc1 {lab}")
        a("global_load_dword v15, v6, s[28:29] sc1")
        if touch: a("global_load_dword v124, v10, s[38:39] sc1")
        a(f"s_branch {j}")
        a.label(lab)
        poll(item)
        if touch:
            base(48, item); a("global_load_dword v124, v10, s[48:49] sc1")
        a.label(j)
    def oload(k):
        a(f"global_load_dwordx4 {R('v', 32 + k*4)}, v{2 + (k >> 2)}, s[38:39] offset:{(k & 3)*1024} sc1")
    def finish(item):
        lab = a.newlabel("fn")
        a("s_waitcnt lgkmcnt(0)"); a("s_barrier")
        a("s_cmp_lt_u32 s75, 4"); a(f"s_cbranch_scc0 {lab}")
        for m in range(8): a(f"ds_read_b64 v[{100+2*m}:{101+2*m}], v12 offset:{m*2048}")
        a(f"s_lshl_b32 s32, {item}, 16"); a("s_add_u32 s40, s24, s32"); a("s_addc_u32 s41, s25, 0")
        a("v_xor_b32 v12, 0x4000, v12")
        a("s_waitcnt lgkmcnt(0)")
        for step in (8, 4, 2):
            for i in range(0, step, 2):
                a(f"v_pk_add_f32 v[{100+i}:{101+i}], v[{100+i}:{101+i}], v[{100+step+i}:{101+step+i}]")
        a("v_cvt_pk_bf16_f32 v1, v100, v101")
        a("global_store_dword v13, v1, s[40:41]")
        a.label(lab)
    def pending():
        lab = a.newlabel("pd")
        a("s_cmp_lt_i32 s35, 0"); a(f"s_cbranch_scc1 {lab}")
        finish("s35")
        a.label(lab)
    def mm(k, wait):
        a(f"s_waitcnt vmcnt({wait})")
        for ct in range(2):
            D = R('v', 16 + ct*4)
            a(f"v_mfma_f32_16x16x32_bf16 {D}, {sreg(k*2 + ct)}, {R('v', 32 + k*4)}, " + ("0" if k == 0 else D))
    def park():
        a("s_nop 7")
        for f in range(2): a(f"ds_write_b128 v11, {R('v', 16 + f*4)} offset:{f*1024}")
        a("v_xor_b32 v11, 0x4000, v11")
    pick("s31"); pick("s36")
    a("s_mov_b32 s37, 0")
    a.label("st_wait")
    a("s_lshr_b32 s32, s31, 1"); a("s_add_u32 s32, s32, 49"); a("s_min_u32 s32, s32, 63"); a("s_cmp_le_u32 s32, s37"); a("s_cbranch_scc1 st_near")
    a("s_sleep 6")
    a(f"global_load_dword v7, v8, s[26:27] offset:{D_PROG} sc1"); a("s_waitcnt vmcnt(0)")
    a("v_readfirstlane_b32 s37, v7")
    a("s_branch st_more")
    a.label("st_near")
    poll("s31"); a("s_waitcnt vmcnt(0)")
    a("v_cmp_ne_u32 vcc, 0, v15"); a("s_cbranch_vccz st_rdy")
    a("s_sleep 4")
    a.label("st_more")
    a("s_add_u32 s46, s46, 1"); a(f"s_cmp_lt_u32 s46, {WSPIN}"); a("s_cbranch_scc1 st_wait")
    a("s_branch w_fail")
    a.label("st_rdy")
    tstamp(a, 4)
    base(38, "s31")
    a("global_load_dword v124, v10, s[38:39] sc1")
    a("s_xor_b32 s32, s31, s36"); a("s_cmp_eq_u32 s32, 1"); a("s_cbranch_scc1 st_same")
    look("s36", False)
    a.label("st_same")
    for k in range(16): oload(k)
    a("s_mov_b32 s35, -1")
    a.label("st_item")
    a("s_mov_b32 s30, s31"); a("s_mov_b32 s31, s36"); pick("s36")
    a("s_waitcnt vmcnt(16)")
    a("v_cmp_ne_u32 vcc, 0, v15"); a("v_readfirstlane_b32 s37, v7")
    a("s_cmp_lt_i32 s31, 0"); a("s_cbranch_scc1 st_slow")
    a("s_cbranch_vccnz st_slow")
    base(38, "s31")
    look("s36", True)
    for k in range(16):
        mm(k, 18); oload(k)
        if k == 3: pending()
    park()
    a("s_mov_b32 s35, s30")
    a("s_branch st_item")
    a.label("st_slow")
    pending()
    for k in range(16): mm(k, 15 - k)
    tstamp(a, 5)
    park(); finish("s30")
    tstamp(a, 6)
    a("s_cmp_lt_i32 s31, 0"); a("s_cbranch_scc0 st_wait")

def emit_mega(a, prof=False):
    kernel_begin(a, NAME + "_kernel")
    a("s_cmp_ge_u32 s2, 256"); a("s_cbranch_scc1 w_exit")
    if "span" in rec.OPT: a("s_memrealtime s[100:101]")
    load_ptrs(a)
    a("s_getreg_b32 s44, hwreg(HW_REG_XCC_ID)"); a("s_and_b32 s44, s44, 7")
    if "fakex" in rec.OPT:
        a("s_bitcmp1_b32 s2, 3"); a("s_cbranch_scc0 fake_done")
        a("s_cmp_eq_u32 s44, 1"); a("s_cselect_b32 s44, 5, s44"); a("s_cmp_eq_u32 s44, 2"); a("s_cselect_b32 s44, 7, s44")
        a.label("fake_done")
    a("v_lshrrev_b32 v1, 6, v0"); a("v_mov_b32 v2, 0"); a("s_mov_b32 s46, 0")
    a("v_readfirstlane_b32 s75, v1")
    a("s_waitcnt lgkmcnt(0)")
    a("s_add_u32 s28, s28, 0x1fffff"); a("s_addc_u32 s29, s29, 0"); a("s_and_b32 s28, s28, 0xffe00000")
    if "nowarm" not in rec.OPT:
        a("s_cmp_eq_u32 s75, 2"); a("s_cbranch_scc0 no_warm")
        a("s_getpc_b64 s[30:31]")
        a.label("warm_pc")
        a("s_lshr_b32 s32, s2, 3"); a("s_lshl_b32 s32, s32, 12"); a("v_and_b32 v3, 63, v0"); a("v_lshl_add_u32 v3, v3, 6, s32")
        a("v_min_u32 v3, code_end-warm_pc-4, v3"); a("v_and_b32 v3, -4, v3")
        a("global_load_dword a95, v3, s[30:31]")
        a.label("no_warm")
    a("s_cmp_eq_u32 s75, 1"); a("s_cbranch_scc0 no_probe")
    a("s_mov_b32 s47, 0")
    a("s_cmp_lt_u32 s44, 4"); a("s_cbranch_scc0 probe_done")
    a(f"s_add_u32 s30, s28, {rec.WS_PROBE}"); a("s_addc_u32 s31, s29, 0")
    a("s_lshr_b32 s32, s2, 5"); a("s_and_b32 s33, s32, 1"); a("s_lshr_b32 s32, s32, 1"); a("s_lshl_b32 s32, s32, 2"); a("s_add_u32 s32, s32, s33"); a("s_lshl_b32 s32, s32, 12")
    a("s_and_b32 s33, s2, 31"); a("s_lshl_b32 s33, s33, 7"); a("s_add_u32 s32, s32, s33")
    a("v_mov_b32 v3, s32")
    a("s_mov_b64 exec, 1")
    a("s_mov_b32 s38, -1"); a("s_mov_b32 s39, -1"); a("s_mov_b32 s40, 6")
    a.label("probe_loop")
    a("s_memtime s[34:35]"); a("s_waitcnt lgkmcnt(0)")
    a("global_store_dword v3, v2, s[30:31] sc1"); a("s_waitcnt vmcnt(0)")
    a("s_memtime s[36:37]"); a("s_waitcnt lgkmcnt(0)")
    a("s_sub_u32 s36, s36, s34"); a("s_min_u32 s36, s36, s38"); a("s_mov_b32 s38, s39"); a("s_mov_b32 s39, s36")
    a("v_xor_b32 v3, 0x2000, v3")
    a("s_sub_u32 s40, s40, 1"); a("s_cmp_lg_u32 s40, 0"); a("s_cbranch_scc1 probe_loop")
    a("s_mov_b64 exec, -1")
    a("s_cmp_lt_u32 s39, s38"); a("s_cselect_b32 s47, 1, 0")
    a.label("probe_done")
    a("v_mov_b32 v3, s47"); a("ds_write_b32 v2, v3 offset:4")
    a.label("no_probe")
    a("s_cmp_lg_u32 s75, 0"); a("s_cbranch_scc1 role_wait")
    a("s_and_b32 s32, s44, 3"); a("s_lshl_b32 s32, s32, 2"); a("s_and_b32 s33, s44, 4"); a("s_lshl_b32 s33, s33, 5"); a("s_add_u32 s32, s32, s33")
    a("v_mov_b32 v3, s32"); a("v_mov_b32 v4, 1")
    a("s_mov_b64 exec, 1")
    a("global_atomic_add v5, v3, v4, s[26:27] sc0 sc1"); a("s_waitcnt vmcnt(0)")
    a("v_readfirstlane_b32 s45, v5")
    a("s_cmp_lt_u32 s45, 32"); a("s_cbranch_scc1 role_have")
    a(f"v_mov_b32 v3, {D_OVF}")
    a("global_atomic_add v5, v3, v4, s[26:27] sc0 sc1"); a("s_waitcnt vmcnt(0)")
    a("v_readfirstlane_b32 s45, v5")
    a.label("role_poll")
    a("global_load_dwordx4 v[8:11], v2, s[26:27] sc1"); a("global_load_dwordx4 v[12:15], v2, s[26:27] offset:128 sc1"); a("s_waitcnt vmcnt(0)")
    a("s_mov_b32 s33, 0")
    for i in range(8):
        a(f"v_readfirstlane_b32 s{34+i}, v{8+i}"); a(f"s_add_u32 s33, s33, s{34+i}")
    a("s_cmp_eq_u32 s33, 256"); a("s_cbranch_scc1 role_pick")
    a("s_sleep 8"); a("s_add_u32 s46, s46, 1"); a(f"s_cmp_lt_u32 s46, {WSPIN}"); a("s_cbranch_scc1 role_poll")
    a("s_mov_b64 exec, -1"); a("s_branch w_fail")
    a.label("role_pick")
    for i in range(8):
        a(f"s_min_u32 s33, s{34+i}, 32"); a("s_add_u32 s45, s45, s33"); a(f"s_mov_b32 s44, {i}")
        if i < 7:
            a("s_cmp_lt_u32 s45, 32"); a("s_cbranch_scc1 role_have"); a("s_sub_u32 s45, s45, 32")
    a.label("role_have")
    a("s_lshl_b32 s32, s44, 5"); a("s_or_b32 s32, s32, s45"); a("v_mov_b32 v3, s32")
    a("ds_write_b32 v2, v3")
    a("s_mov_b64 exec, -1")
    a.label("role_wait")
    a("s_waitcnt lgkmcnt(0)"); a("s_barrier")
    a("ds_read_b64 v[4:5], v2"); a("s_waitcnt lgkmcnt(0)")
    a("v_readfirstlane_b32 s32, v4"); a("v_readfirstlane_b32 s47, v5")
    a("s_cmp_lg_u32 s75, 0"); a("s_cbranch_scc1 voted")
    a("s_cmp_ge_u32 s32, 128"); a("s_cbranch_scc1 voted")
    a("s_and_b32 s47, s47, 1"); a("s_lshl_b32 s47, s47, 16"); a("s_or_b32 s47, s47, 1"); a("v_mov_b32 v3, s47")
    a("s_mov_b64 exec, 1")
    a(f"global_atomic_add v2, v3, s[26:27] offset:{rec.DBG_VOTE} sc1")
    a("s_mov_b64 exec, -1")
    a.label("voted")
    a("s_barrier")
    if "span" in rec.OPT:
        a("s_and_b32 s98, s2, 0x38"); a("s_or_b32 s98, s98, s75"); a("s_cmp_lg_u32 s98, 0"); a("s_cbranch_scc1 span1")
        a("s_memrealtime s[98:99]"); a("s_waitcnt lgkmcnt(0)"); a("s_not_b32 s100, s100"); a("v_mov_b32 v4, s100"); a("v_mov_b32 v5, s98")
        a("s_mov_b64 exec, 1"); a("global_atomic_umax v2, v4, s[26:27] offset:48 sc1"); a("global_atomic_umax v2, v5, s[26:27] offset:52 sc1"); a("s_mov_b64 exec, -1")
        a.label("span1")
    a("s_and_b32 s45, s32, 31"); a("s_bfe_u32 s44, s32, 0x30005")
    a("s_cmp_ge_u32 s44, 4"); a("s_cbranch_scc1 worker")
    a("s_lshl_b32 s18, s44, 3"); a("s_lshr_b32 s19, s45, 2"); a("s_add_u32 s18, s18, s19"); a("s_and_b32 s19, s45, 3")
    rec.emit_rec(a, "rec", prof=prof, kvwait=True)
    a.label("worker")
    a("s_sub_u32 s44, s44, 4")
    a("v_and_b32 v0, 63, v0")
    gemm.setup_common(a)
    a("s_mov_b32 s88, 0"); a("s_mov_b32 s89, 0"); a("s_mov_b32 s77, 0")
    a("s_mov_b32 s59, 0") if PROF else None
    a("s_lshl_b32 s96, s44, 5"); a("s_add_u32 s96, s96, s45"); a("s_lshl_b32 s96, s96, 3"); a("s_add_u32 s96, s96, s75")
    a("s_lshl_b32 s32, s44, 3"); a("s_lshr_b32 s44, s45, 3"); a("s_and_b32 s45, s45, 7"); a("s_add_u32 s45, s45, s32")
    if PROF: a("s_lshl_b32 s97, s44, 5"); a("s_add_u32 s97, s97, s45")
    wstamp(a, 0)
    def g1(grp):
        MT, first = ((2, 0), (3, 32), (3, 80))[grp]
        a("s_mov_b32 s23, s44")
        a("s_mov_b32 s30, s45"); a(f"s_mul_i32 s31, s23, {4*MT}"); a(f"s_add_u32 s31, s31, {first}")
        task_g1(a, MT, grp)
    def tile_2x4():
        a("s_bfe_u32 s30, s45, 0x10003"); a("s_lshl_b32 s30, s30, 1"); a("s_and_b32 s32, s45, 1"); a("s_add_u32 s30, s30, s32")
        a("s_lshr_b32 s31, s45, 4"); a("s_lshl_b32 s31, s31, 2"); a("s_bfe_u32 s32, s45, 0x20001"); a("s_add_u32 s31, s31, s32")
    touches(a, [(10, 1 << 20, 3, 0, 3)]*3)
    g1(0)
    touches(a, [(4, 0, 4, 0, 4), (6, 0, 6, 0, 4), (6, 0, 6, 4, 2)])
    g1(1)
    touches(a, [(14, 0, 8, 0, 4), (14, 0, 8, 4, 4), (8, 0, 2, 0, 2)])
    a("s_cmp_lt_u32 s44, 2"); a("s_cbranch_scc1 w_g1c")
    tile_2x4()
    a("s_and_b32 s32, s44, 1"); a("s_lshl_b32 s32, s32, 2"); a("s_add_u32 s30, s30, s32")
    task_g4kv(a)
    wstamp(a, 0)
    a.label("w_g1c")
    g1(2)
    a("s_cmp_eq_u32 s44, 1"); a("s_cbranch_scc0 w_g2a")
    a("s_mov_b32 s30, s45"); a("s_mov_b32 s31, 0")
    a.label("w_wot")
    task_wot(a)
    a("s_add_u32 s31, s31, 1"); a("s_cmp_lt_u32 s31, 2"); a("s_cbranch_scc1 w_wot")
    wstamp(a, 0)
    a.label("w_g2a")
    a("s_lshr_b32 s30, s45, 1"); a("s_and_b32 s31, s45, 1"); a("s_lshr_b32 s32, s44, 1"); a("s_xor_b32 s32, s32, s44"); a("s_lshl_b32 s32, s32, 1"); a("s_add_u32 s31, s31, s32")
    task_g2a(a)
    wstamp(a, 0)
    a("s_cmp_eq_u32 s44, 0"); a("s_cbranch_scc1 w_g5")
    a("s_cmp_eq_u32 s44, 2"); a("s_cbranch_scc1 w_set2")
    a("s_lshr_b32 s30, s45, 3")
    a("s_cmp_eq_u32 s44, 3"); a("s_cbranch_scc1 w_f1")
    a("s_and_b32 s31, s45, 7")
    task_g3(a, 2)
    wstamp(a, 0)
    a(f"s_mov_b32 s34, {setmask(1):#x}")
    a("s_branch w_stream")
    a.label("w_f1")
    a("s_lshl_b32 s31, s31, 2"); a("s_bfe_u32 s32, s45, 0x20001"); a("s_add_u32 s31, s31, s32")
    task_g3(a, 1)
    wstamp(a, 0)
    a.label("w_set2")
    a("s_bitcmp1_b32 s45, 0"); a("s_cbranch_scc1 w_exit")
    a("s_and_b32 s32, s44, 1"); a("s_add_u32 s45, s45, s32")
    a(f"s_mov_b32 s34, {setmask(2):#x}")
    a("s_branch w_stream")
    a.label("w_g5")
    tile_2x4()
    task_g4q(a)
    wstamp(a, 0)
    task_g5(a)
    wstamp(a, 0)
    a(f"s_mov_b32 s34, {setmask(0):#x}")
    a.label("w_stream")
    task_stream(a)
    wstamp(a, 0)
    if "span" in rec.OPT:
        a("s_and_b32 s98, s45, 7"); a("s_or_b32 s98, s98, s75"); a("s_cmp_lg_u32 s98, 0"); a("s_cbranch_scc1 w_exit")
        a("s_waitcnt vmcnt(0)"); a("s_memrealtime s[98:99]"); a("s_waitcnt lgkmcnt(0)"); a("v_mov_b32 v5, s98"); a("v_mov_b32 v2, 0")
        a("s_mov_b64 exec, 1"); a("global_atomic_umax v2, v5, s[26:27] offset:60 sc1")
    a("s_endpgm")
    a.label("w_fail")
    a("v_mov_b32 v16, 0"); a("v_mov_b32 v17, 0xdead"); a("global_store_dword v16, v17, s[26:27] offset:248")
    a.label("w_exit")
    a("s_endpgm")
    gemm.emit_core(a, "core_T", 'T')
    gemm.emit_core(a, "core_N", 'N')
    gemm.emit_core(a, "core_T3", 'T', MT=3)
    gemm.emit_core(a, "core_T2", 'T', MT=2)
    gemm.WFLAG = "sc1"; gemm.WFRAG = True
    gemm.emit_core(a, "core_F1", 'T', MT=1, aflag="sc1")
    gemm.emit_core(a, "core_F2", 'T', MT=2, aflag="sc1")
    gemm.WFLAG = ""; gemm.WFRAG = False
    a.label("code_end")

def generate(prof=False):
    global PROF
    PROF = bool(prof)
    raw = open(f"cdna_kernels/{NAME}.s.ref").read().split("\n")
    hdr = []
    for l in raw:
        if not l.startswith(";") or "Override" in l: break
        hdr.append(l)
    a = Asm()
    emit_mega(a, prof)
    s = "\n".join(hdr) + "\n"
    s += f"; @launch kernel={NAME}_kernel grid=(256,1,1) block=(512,1,1) lds=163840\n"
    s += '.amdgcn_target "amdgcn-amd-amdhsa--gfx950"\n.text\n' + a.text() + '.section .rodata,"a"\n'
    s += kernel_desc(NAME + "_kernel", vgpr=256, accum=160)
    return s

if __name__ == "__main__":
    out = sys.argv[1] if len(sys.argv) > 1 else f"cdna_kernels/{NAME}.s"
    open(out, "w").write(generate())
    print("wrote", out)
```

```python
import sys, os
sys.path.insert(0, os.path.dirname(__file__))
from asmgen import *
import gemm
import rec2 as rec
from gemm import acc, R

NAME = "concat_heads__linear_attn_block__memory_aug_recurrent_mem_tr__prompt"
WS_O   = 84 << 20
WS_OA  = 116 << 20
WS_KVP = 124 << 20
OA_T = 65536
D_OVF, D_AKV, D_KV, D_AO, D_O = 32, 36, 64, 96, 128
D_PROG = rec.DBG_PROG
WSPIN = 400000
TSET = "11001122001122110022" + "102102102102"
def setmask(k): return sum(1 << t for t in range(32) if int(TSET[t]) == k)
LOG2E = 0x3fb8aa3b
EPS = 0x358637bd
SCL = 0x3e0293ee


def load_ptrs(a):
    a("s_load_dwordx16 s[4:19], s[0:1], 0"); a("s_load_dwordx2 s[20:21], s[0:1], 64")
    a("s_load_dwordx4 s[24:27], s[0:1], 80"); a("s_load_dwordx2 s[28:29], s[0:1], 96")

def signal(a, off_sgpr_or_imm, val=1):
    lab = a.newlabel("sig")
    a("s_waitcnt vmcnt(0)"); a("s_barrier")
    a("s_cmp_lg_u32 s75, 0"); a(f"s_cbranch_scc1 {lab}")
    a(f"v_mov_b32 v16, {off_sgpr_or_imm}"); a(f"v_mov_b32 v17, {val}")
    a("s_mov_b64 exec, 1")
    a("global_atomic_add v16, v17, s[26:27] sc1")
    a("s_mov_b64 exec, -1")
    a.label(lab)

def wait_cnt(a, off, target):
    lp, ok, done = a.newlabel("wl"), a.newlabel("wo"), a.newlabel("wd")
    a("s_cmp_lg_u32 s75, 0"); a(f"s_cbranch_scc1 {done}")
    a(f"v_mov_b32 v16, {off}")
    a.label(lp)
    a("global_load_dword v17, v16, s[26:27] sc1"); a("s_waitcnt vmcnt(0)")
    a(f"v_cmp_ne_u32 vcc, {target}, v17"); a(f"s_cbranch_vccz {ok}")
    a("s_sleep 8")
    a("s_add_u32 s46, s46, 1"); a(f"s_cmp_lt_u32 s46, {WSPIN}"); a(f"s_cbranch_scc1 {lp}")
    a("s_branch w_fail")
    a.label(ok)
    a("buffer_inv sc1"); a("s_waitcnt vmcnt(0)")
    a.label(done)
    a("s_barrier")

def learn_parity(a):
    lp, ok = a.newlabel("vl"), a.newlabel("vo")
    a.label(lp)
    a("s_waitcnt vmcnt(0)")
    a("v_readfirstlane_b32 s22, v18"); a("v_readfirstlane_b32 s34, v19")
    a("s_and_b32 s32, s22, 0xffff"); a("s_add_u32 s32, s32, s34"); a("s_cmp_eq_u32 s32, 256"); a(f"s_cbranch_scc1 {ok}")
    a("s_sleep 8")
    a(f"global_load_dwordx2 v[18:19], v16, s[26:27] offset:{rec.DBG_VOTE} sc1")
    a("s_add_u32 s46, s46, 1"); a(f"s_cmp_lt_u32 s46, {WSPIN}"); a(f"s_cbranch_scc1 {lp}")
    a("s_branch w_fail")
    a.label(ok)
    a("s_lshr_b32 s22, s22, 16"); a("s_cmp_gt_u32 s22, 64"); a("s_cselect_b32 s22, 1, 0")

def phi(a, regs):
    for i in range(0, len(regs), 8):
        b = regs[i:i+8]
        for k, r in enumerate(b): a(f"v_mul_f32 v{16+k}, s40, v{r}")
        for k, r in enumerate(b): a(f"v_min_f32 v{16+k}, 0, v{16+k}")
        for k, r in enumerate(b): a(f"v_exp_f32 v{16+k}, v{16+k}")
        for k, r in enumerate(b): a(f"v_max_f32 v{r}, 0, v{r}")
        for k, r in enumerate(b): a(f"v_add_f32 v{r}, v{r}, v{16+k}")
        for k, r in enumerate(b): a(f"v_add_f32 v{r}, s41, v{r}")

def pack_frags(a):
    for tt in range(4):
        for jj in range(4):
            s = acc(tt, 2*jj); d = 32 + (tt*4 + jj)*4
            for i in range(4): a(f"v_cvt_pk_bf16_f32 v{d+i}, v{s+2*i}, v{s+2*i+1}")
def frag(tt, jj): return R('v', 32 + (tt*4 + jj)*4)

PROF = False
def wstamp(a, k):
    if not PROF: return
    lab = a.newlabel("ws")
    a("s_cmp_lg_u32 s75, 0"); a(f"s_cbranch_scc1 {lab}")
    a("s_memrealtime s[56:57]"); a("s_waitcnt lgkmcnt(0)")
    a("s_lshl_b32 s58, s97, 7"); a("s_lshl_b32 s57, s59, 2"); a("s_add_u32 s58, s58, s57"); a(f"s_add_u32 s58, s58, {201 << 20}")
    a("v_mov_b32 v16, s58"); a("v_mov_b32 v17, s56"); a("global_store_dword v16, v17, s[28:29]")
    a("s_memtime s[56:57]"); a("s_waitcnt lgkmcnt(0)"); a("v_mov_b32 v17, s56"); a("v_add_u32 v16, 0x100000, v16"); a("global_store_dword v16, v17, s[28:29]")
    a("s_add_u32 s59, s59, 1")
    a.label(lab)

def tstamp(a, ev, v0=126, v1=127):
    if not PROF: return
    a("s_memrealtime s[56:57]"); a("s_waitcnt lgkmcnt(0)")
    a("s_lshl_b32 s58, s96, 2"); a(f"s_add_u32 s58, s58, {(204 << 20) + ev*8192}")
    a(f"v_mov_b32 v{v0}, s58"); a(f"v_mov_b32 v{v1}, s56"); a(f"global_store_dword v{v0}, v{v1}, s[28:29]")

def wside(a, dst, off, tmp):
    rec.near(a, dst, off, "s22", 28, tmp, kv=True)

def task_g1(a, MT, grp):
    gemm.setup_a_rowmajor(a, 2048, MT); gemm.setup_w(a, 8192)
    a("s_lshl_b32 s32, s31, 15"); a("s_add_u32 s80, s10, s32"); a("s_addc_u32 s81, s11, 0")
    a("s_cmp_lt_u32 s30, 16"); a("s_cselect_b32 s82, s16, s18"); a("s_cselect_b32 s83, s17, s19")
    a(f"s_cselect_b32 s33, {rec.WS_KX >> 20}, {rec.WS_VX >> 20}"); a("s_lshl_b32 s33, s33, 20")
    a("s_and_b32 s35, s30, 15"); a("s_lshl_b32 s32, s35, 9"); a("s_add_u32 s82, s82, s32"); a("s_addc_u32 s83, s83, 0")
    a("s_mov_b32 s66, 7")
    gemm.call(a, "core_T" + ("" if MT == 4 else str(MT)))
    if grp == 0: learn_parity(a)
    wstamp(a, 0)
    a("s_lshl_b32 s34, s35, 1"); a("s_add_u32 s34, s34, s73"); a("s_lshl_b32 s34, s34, 14"); a("s_add_u32 s33, s33, s34")
    a(f"s_mul_i32 s36, s72, {MT}"); a("s_add_u32 s36, s36, s31")
    a("v_lshlrev_b32 v19, 4, v0")
    for tt in range(MT):
        a(f"s_add_u32 s32, s36, {tt}"); a("s_and_b32 s34, s32, 1"); a("s_lshl_b32 s34, s34, 12"); a("s_lshr_b32 s32, s32, 1"); a("s_lshl_b32 s32, s32, 19")
        a("s_add_u32 s32, s32, s34"); a("s_add_u32 s32, s32, s33")
        rec.near_bit(a, "s34", "s32", "s22", True); a("s_add_u32 s32, s32, s34")
        a(f"v_add_u32 v{20+tt}, s32, v19")
    gemm.epi_frag_store(a, "s[28:29]", "sc1", MT)
    a("s_lshl_b32 s88, s44, 7"); a("s_lshl_b32 s32, s30, 2"); a("s_add_u32 s88, s88, s32"); a(f"s_add_u32 s88, s88, {rec.WS_FLAG + (96 + 4*grp)*128}")
    if grp == 0:
        lab = a.newlabel("sig")
        a("s_waitcnt vmcnt(0)"); a("s_barrier")
        a("s_cmp_lg_u32 s75, 0"); a(f"s_cbranch_scc1 {lab}")
        a("v_mov_b32 v16, s88"); a("v_mov_b32 v17, 0")
        a("s_mov_b64 exec, 1"); a("global_store_dword v16, v17, s[28:29] sc1"); a("s_mov_b64 exec, -1")
        a.label(lab)
        a("s_mul_i32 s32, s96, 3072"); a(f"s_add_u32 s32, s32, {1 << 20}"); a("v_lshl_add_u32 v20, v0, 4, s32")
        for i in range(3): a(f"global_load_dwordx4 a[92:95], v20, s[10:11] offset:{i*1024}")
    else:
        a("s_mov_b32 s89, 1")

def task_g4kv(a):
    def colmap(a, v):
        a(f"v_bfe_u32 v18, v{v}, 3, 1"); a("v_lshlrev_b32 v18, 11, v18")
        a(f"v_lshrrev_b32 v19, 4, v{v}"); a("v_lshl_add_u32 v18, v19, 7, v18")
        a(f"v_and_b32 v{v}, 7, v{v}"); a(f"v_lshl_add_u32 v{v}, v{v}, 4, v18")
    gemm.setup_a_rowmajor(a, 2048); gemm.setup_w(a, 6144, colmap)
    a("s_lshl_b32 s32, s31, 19"); a("s_add_u32 s80, s4, s32"); a("s_addc_u32 s81, s5, 0")
    a("s_lshl_b32 s32, s30, 8"); a("s_add_u32 s32, s32, 2048"); a("s_add_u32 s82, s6, s32"); a("s_addc_u32 s83, s7, 0")
    a("s_mov_b32 s66, 7")
    gemm.call(a, "core_N")
    wstamp(a, 0)
    a(f"s_mov_b32 s40, {LOG2E}"); a(f"s_mov_b32 s41, {EPS}")
    phi(a, [acc(tt, 0) + i for tt in range(4) for i in range(16)])
    for tp in range(2):
        for ft in range(8):
            x = acc(2*tp, ft); y = acc(2*tp+1, ft)
            a(f"v_cvt_pk_bf16_f32 v{x}, v{x}, v{x+1}"); a(f"v_cvt_pk_bf16_f32 v{x+1}, v{x+2}, v{x+3}")
            a(f"v_cvt_pk_bf16_f32 v{x+2}, v{y}, v{y+1}"); a(f"v_cvt_pk_bf16_f32 v{x+3}, v{y+2}, v{y+3}")
    for i in range(4): a(f"v_mov_b32 v{16+i}, 0x3f803f80")
    a("v_lshlrev_b32 v20, 4, v0"); a("s_mul_i32 s32, s73, 49152"); a("s_lshl_b32 s33, s72, 10"); a("s_add_u32 s32, s32, s33"); a("v_add_u32 v21, s32, v20")
    outb = lambda hd, et, dt: (64 if hd == 0 else 128) + (et*2 + dt)*4
    for tp in range(2):
        for hd in range(2):
            for et in range(3):
                for dt in range(2):
                    D = R('v', outb(hd, et, dt)); A = R('v', acc(2*tp, 2*hd + dt)); B = R('v', acc(2*tp, 4 + 2*hd + et)) if et < 2 else "v[16:19]"
                    a(f"v_mfma_f32_16x16x32_bf16 {D}, {A}, {B}, " + ("0" if tp == 0 else D))
    a("s_barrier")
    a("s_nop 7")
    for hd in range(2):
        for f in range(6):
            a(f"ds_write_b128 v21, {R('v', outb(hd, f >> 1, f & 1))} offset:{(hd*6 + f)*4096}")
    a("s_mul_i32 s32, s75, 12288"); a("v_add_u32 v21, s32, v20")
    a("s_waitcnt lgkmcnt(0)"); a("s_barrier")
    for k in range(3):
        for m in range(4): a(f"ds_read_b128 {R('v', 32 + (k*4 + m)*4)}, v21 offset:{k*4096 + m*1024}")
    a("s_lshl_b32 s32, s31, 5"); a("s_lshl_b32 s33, s30, 2"); a("s_add_u32 s32, s32, s33"); a("s_mul_i32 s32, s32, 6144")
    a("s_mul_i32 s33, s75, 3072"); a("s_add_u32 s32, s32, s33"); a(f"s_add_u32 s32, s32, {WS_KVP}"); a("v_add_u32 v22, s32, v20")
    a("s_waitcnt lgkmcnt(0)")
    for k in range(3):
        b = 32 + k*16
        for h in range(2):
            a(f"v_pk_add_f32 v[{b+2*h}:{b+2*h+1}], v[{b+2*h}:{b+2*h+1}], v[{b+4+2*h}:{b+5+2*h}]")
            a(f"v_pk_add_f32 v[{b+8+2*h}:{b+9+2*h}], v[{b+8+2*h}:{b+9+2*h}], v[{b+12+2*h}:{b+13+2*h}]")
        for h in range(2):
            a(f"v_pk_add_f32 v[{b+2*h}:{b+2*h+1}], v[{b+2*h}:{b+2*h+1}], v[{b+8+2*h}:{b+9+2*h}]")
        a(f"global_store_dwordx4 v22, {R('v', b)}, s[28:29] offset:{k*1024} sc1")
    signal(a, D_AKV)

def task_g4q(a):
    gemm.setup_a_rowmajor(a, 2048); gemm.setup_w(a, 6144)
    a("s_lshl_b32 s32, s31, 19"); a("s_add_u32 s80, s4, s32"); a("s_addc_u32 s81, s5, 0")
    a("s_lshl_b32 s32, s30, 9"); a("s_add_u32 s82, s6, s32"); a("s_addc_u32 s83, s7, 0")
    a("s_mov_b32 s66, 7")
    gemm.call(a, "core_T")
    wstamp(a, 0)
    a(f"s_mov_b32 s40, {LOG2E}"); a(f"s_mov_b32 s41, {EPS}")
    phi(a, list(range(32, 160)))
    pack_frags(a)
    wstamp(a, 0)
    wait_cnt(a, D_AKV, 64)
    wstamp(a, 0)
    a("v_lshlrev_b32 v16, 4, v0")
    for r in range(1, 8): a(f"v_add_u32 v{16+r}, {r*196608}, v16")
    a("s_lshl_b32 s32, s30, 3"); a("s_add_u32 s32, s32, s75"); a("s_mul_i32 s32, s32, 6144"); a(f"s_add_u32 s32, s32, {WS_KVP}")
    a("s_add_u32 s34, s28, s32"); a("s_addc_u32 s35, s29, 0")
    a("s_mul_i32 s32, s75, 3072"); a("v_add_u32 v24, s32, v16")
    for et in range(3):
        for r in range(8):
            for dt in range(2):
                a(f"global_load_dwordx4 {R('v', 96 + (r*2 + dt)*4)}, v{16+r}, s[34:35] offset:{dt*1024} sc1")
        a("s_add_u32 s34, s34, 2048"); a("s_addc_u32 s35, s35, 0")
        a("s_waitcnt vmcnt(0)")
        for step in (32, 16, 8):
            for i in range(0, step, 2):
                a(f"v_pk_add_f32 v[{96+i}:{97+i}], v[{96+i}:{97+i}], v[{96+step+i}:{97+step+i}]")
        for i in range(4): a(f"v_cvt_pk_bf16_f32 v{28+i}, v{96+2*i}, v{97+2*i}")
        a(f"ds_write_b128 v24, v[28:31] offset:{et*1024}")
    a("s_mul_i32 s32, s73, 12288"); a("v_add_u32 v24, s32, v16")
    a("s_waitcnt lgkmcnt(0)"); a("s_barrier")
    for i in range(12): a(f"ds_read_b128 {R('a', i*4)}, v24 offset:{i*1024}")
    gemm.lane_chunk(a, 25, 26)
    a("v_and_b32 v26, 15, v0"); a("v_lshl_add_u32 v25, v25, 4, v26"); a("v_lshlrev_b32 v25, 4, v25")
    a("s_lshl_b32 s32, s31, 4"); a("s_lshl_b32 s33, s72, 2"); a("s_add_u32 s32, s32, s33"); a(f"s_mul_i32 s32, s32, {OA_T}")
    a("s_lshl_b32 s33, s30, 14"); a("s_add_u32 s32, s32, s33"); a("s_lshl_b32 s33, s73, 12"); a("s_add_u32 s32, s32, s33"); a(f"s_add_u32 s32, s32, {WS_OA}")
    rec.near_bit(a, "s33", "s32", "s22", True); a("s_add_u32 s32, s32, s33")
    a("v_add_u32 v20, s32, v25")
    for tt in range(1, 4): a(f"v_add_u32 v{20+tt}, {tt*OA_T}, v20")
    a("s_waitcnt lgkmcnt(0)")
    for hd in range(4):
        for tt in range(4):
            b = 96 + tt*12
            for et in (2, 0, 1):
                a(f"v_mfma_f32_16x16x32_bf16 {R('v', b + et*4)}, {R('a', (hd*3 + et)*4)}, {frag(tt, hd)}, 0")
        a("s_nop 7")
        for tt in range(4):
            b = 96 + tt*12
            a(f"v_add_f32 v{b+8}, s41, v{b+8}")
        for tt in range(4):
            b = 96 + tt*12
            a(f"v_rcp_f32 v{b+8}, v{b+8}")
        for tt in range(4):
            b = 96 + tt*12
            a(f"v_mov_b32 v{b+9}, v{b+8}")
            for i in range(0, 8, 2): a(f"v_pk_mul_f32 v[{b+i}:{b+i+1}], v[{b+i}:{b+i+1}], v[{b+8}:{b+9}]")
            t = 144 + tt*4
            gemm.pack_swap(a, t, b)
            a(f"global_store_dwordx4 v{20+tt}, {R('v', t)}, s[28:29] offset:{hd*1024} sc1")
    a("s_lshl_b32 s32, s31, 2"); a(f"s_add_u32 s32, s32, {D_AO}")
    signal(a, "s32")

def out_offsets(a, MT):
    gemm.lane_chunk(a, 25, 26)
    a("v_and_b32 v26, 15, v0"); a("v_lshlrev_b32 v26, 12, v26"); a("v_lshl_add_u32 v20, v25, 4, v26")
    a(f"s_mul_i32 s32, s72, {MT*16*4096}"); a("s_lshl_b32 s33, s73, 8"); a("s_add_u32 s32, s32, s33"); a("v_add_u32 v20, s32, v20")
    for tt in range(1, MT): a(f"v_add_u32 v{20+tt}, {tt*65536}, v20")

def task_g5(a):
    gemm.setup_a_frag(a, OA_T); gemm.setup_w(a, 2048)
    a("s_lshl_b32 s32, s31, 2"); a(f"s_add_u32 s32, s32, {D_AO}")
    wait_cnt(a, "s32", 4)
    wstamp(a, 0)
    a(f"s_mul_i32 s32, s31, {16*OA_T}"); a(f"s_add_u32 s32, s32, {WS_OA}"); wside(a, 80, "s32", "s33")
    a("s_lshl_b32 s32, s30, 9"); a("s_add_u32 s82, s8, s32"); a("s_addc_u32 s83, s9, 0")
    a("s_mov_b32 s66, 7")
    gemm.call(a, "core_T")
    wstamp(a, 0)
    out_offsets(a, 4)
    a("s_lshl_b32 s32, s31, 20"); a("s_lshl_b32 s33, s30, 9"); a("s_add_u32 s32, s32, s33"); a("s_add_u32 s34, s24, s32"); a("s_addc_u32 s35, s25, 0")
    gemm.epi_out_store(a, "s[34:35]", 4, "" if "outpl" in rec.OPT else "sc1")

def task_wot(a):
    a("s_barrier")
    a("v_lshrrev_b32 v2, 4, v0"); a("v_lshlrev_b32 v2, 11, v2"); a("v_and_b32 v3, 15, v0"); a("v_lshl_add_u32 v2, v3, 4, v2")
    a("s_lshl_b32 s32, s30, 18"); a("s_lshl_b32 s33, s31, 17"); a("s_add_u32 s32, s32, s33"); a("s_lshl_b32 s33, s75, 8"); a("s_add_u32 s32, s32, s33"); a("v_add_u32 v2, s32, v2")
    a("s_lshl_b32 s43, s75, 14")
    for i in range(16):
        a(f"s_add_u32 m0, s43, {i*1024}"); a("s_nop 0")
        a("global_load_lds_dwordx4 v2, s[20:21]")
        a("v_add_u32 v2, 0x2000, v2")
    a("v_lshrrev_b32 v3, 2, v0"); a("v_lshlrev_b32 v3, 8, v3"); a("v_and_b32 v16, 3, v0"); a("v_lshl_add_u32 v3, v16, 4, v3"); a("v_add_u32 v3, s43, v3")
    a("s_lshl_b32 s32, s75, 21"); a("s_lshl_b32 s33, s30, 14"); a("s_add_u32 s32, s32, s33"); a("s_lshl_b32 s33, s31, 12"); a("s_add_u32 s32, s32, s33"); a(f"s_add_u32 s32, s32, {rec.WS_WOT}")
    wside(a, 34, "s32", "s33")
    a("v_lshlrev_b32 v20, 4, v0")
    for i in range(1, 4): a(f"v_add_u32 v{20+i}, {i*rec.WOT_CG}, v20")
    a("s_waitcnt vmcnt(0)")
    for cgl in range(4):
        for jl in range(2):
            for ct in range(2):
                b = 32 + ((cgl*2 + jl)*2 + ct)*4
                for lo in range(2):
                    a(f"ds_read_b64_tr_b16 {R('v', b + 2*lo, 2)}, v3 offset:{(32*jl + 16*lo)*256 + cgl*64 + ct*8}")
        a("s_waitcnt lgkmcnt(0)")
        for jl in range(2):
            for ct in range(2):
                a(f"global_store_dwordx4 v{20+cgl}, {R('v', 32 + ((cgl*2 + jl)*2 + ct)*4)}, s[34:35] offset:{jl*2048 + ct*1024} sc1")
    lab = a.newlabel("sig")
    a("s_waitcnt vmcnt(0)"); a("s_barrier")
    a("s_cmp_lg_u32 s75, 0"); a(f"s_cbranch_scc1 {lab}")
    a("s_lshl_b32 s32, s31, 7"); a("s_lshl_b32 s33, s30, 2"); a("s_add_u32 s32, s32, s33"); a(f"s_add_u32 s32, s32, {rec.WS_FLAG + 108*128}")
    a("v_mov_b32 v16, s32"); a("v_mov_b32 v17, 0")
    a("s_mov_b64 exec, 1"); a("global_store_dword v16, v17, s[28:29] sc1"); a("s_mov_b64 exec, -1")
    a.label(lab)

def task_g3(a, MT):
    sh = MT - 1
    a("s_lshl_b32 s32, s30, 3"); a("s_add_u32 s32, s32, s75"); a("s_lshl_b32 s32, s32, 19"); a(f"s_add_u32 s32, s32, {rec.WS_WOT}")
    rec.near_bit(a, "s33", "s32", "s22", True); a("s_add_u32 s32, s32, s33")
    gemm.setup_a_frag(a, 262144, MT); gemm.setup_w_frag(a, "s32")
    wot_wait(a)
    lp, ok = a.newlabel("fl"), a.newlabel("fo")
    a("s_cmp_lg_u32 s75, 0"); a(f"s_cbranch_scc1 {ok}")
    a(f"s_lshl_b32 s32, s31, {8 + sh}"); a(f"s_add_u32 s32, s32, {rec.WS_FLAG}"); a("v_lshl_add_u32 v16, v0, 2, s32")
    a.label(lp)
    a("global_load_dword v17, v16, s[28:29] sc1"); a(f"global_load_dword v19, v16, s[28:29] offset:{256*sh} sc1"); a("s_waitcnt vmcnt(0)")
    a("v_or_b32 v17, v17, v19")
    a("v_cmp_ne_u32 vcc, 0, v17"); a(f"s_cbranch_vccz {ok}")
    a("s_sleep 8")
    a("s_add_u32 s46, s46, 1"); a(f"s_cmp_lt_u32 s46, {WSPIN}"); a(f"s_cbranch_scc1 {lp}")
    a("s_branch w_fail")
    a.label(ok)
    wstamp(a, 0)
    a(f"s_lshl_b32 s32, s31, {20 + sh}"); a(f"s_add_u32 s32, s32, {WS_O}"); wside(a, 80, "s32", "s33")
    a("s_mov_b64 s[82:83], s[28:29]")
    a("s_mov_b32 s66, 31")
    a("s_add_u32 s32, s31, s30"); a("s_and_b32 s78, s32, 3"); a("s_lshl_b32 s78, s78, 11"); a("s_and_b32 s33, s32, 4"); a("s_lshl_b32 s33, s33, 12"); a("s_or_b32 s78, s78, s33")
    a("s_and_b32 s79, s32, 1"); a("s_lshl_b32 s79, s79, 12"); a("s_and_b32 s33, s32, 6"); a("s_lshl_b32 s33, s33, 13"); a("s_or_b32 s79, s79, s33")
    gemm.call(a, f"core_F{MT}")
    a("v_and_b32 v26, 15, v0"); a("v_lshlrev_b32 v26, 12, v26"); a("v_lshrrev_b32 v25, 4, v0"); a("v_lshl_add_u32 v20, v25, 4, v26")
    a(f"s_lshl_b32 s32, s72, {16 + sh}"); a("s_lshl_b32 s33, s73, 8"); a("s_add_u32 s32, s32, s33"); a("v_add_u32 v20, s32, v20"); a("v_add_u32 v21, 0x10000, v20")
    a(f"s_lshl_b32 s32, s31, {18 + sh}"); a("s_lshl_b32 s33, s30, 9"); a("s_add_u32 s32, s32, s33"); a("s_add_u32 s32, s32, 2048"); a("s_add_u32 s34, s24, s32"); a("s_addc_u32 s35, s25, 0")
    gemm.epi_frag_store(a, "s[34:35]", "sc1", MT, 64)

def softmax_cols(a, regs, t):
    a(f"v_max3_f32 v{t}, v{regs[0]}, v{regs[1]}, v{regs[2]}")
    rest = regs[3:]
    while len(rest) >= 2:
        a(f"v_max3_f32 v{t}, v{t}, v{rest[0]}, v{rest[1]}"); rest = rest[2:]
    if rest: a(f"v_max_f32 v{t}, v{t}, v{rest[0]}")
    for sw in ("16", "32"):
        a(f"v_mov_b32 v{t+1}, v{t}"); a("s_nop 1"); a(f"v_permlane{sw}_swap_b32 v{t}, v{t+1}"); a(f"v_max_f32 v{t}, v{t}, v{t+1}")
    a(f"v_mul_f32 v{t}, s40, v{t}")
    for r in regs: a(f"v_fma_f32 v{r}, v{r}, s40, -v{t}")
    for r in regs: a(f"v_exp_f32 v{r}, v{r}")

def task_g2a(a):
    gemm.setup_a_rowmajor(a, 2048); gemm.setup_w(a, 8192)
    a("s_lshl_b32 s32, s31, 19"); a("s_add_u32 s80, s10, s32"); a("s_addc_u32 s81, s11, 0")
    a("s_lshl_b32 s32, s30, 9"); a("s_add_u32 s82, s14, s32"); a("s_addc_u32 s83, s15, 0")
    a("s_mov_b32 s66, 7")
    gemm.call(a, "core_T")
    wstamp(a, 0)
    a("s_lshl_b32 s38, s31, 3"); a("s_lshl_b32 s33, s72, 1"); a("s_add_u32 s38, s38, s33"); a("s_mov_b32 s39, s38"); a("s_lshl_b32 s38, s38, 5")
    a("s_lshl_b32 s42, s30, 1"); a("s_add_u32 s42, s42, s73"); a("s_add_u32 s38, s38, s42")
    a("s_lshl_b32 s34, s38, 14"); a(f"s_add_u32 s34, s34, {rec.WS_KX}"); rec.near(a, 32, "s34", "s22", 28, "s35", kv=True)
    rec.v_from_k(a, 34, 32)
    a("v_lshlrev_b32 v16, 4, v0"); a("v_add_u32 v17, 0x1000, v16"); a("v_add_u32 v18, 0x80000, v16"); a("v_add_u32 v19, 0x81000, v16")
    a("s_mul_i32 s43, s75, 20480")
    kp, kok = a.newlabel("kp"), a.newlabel("ko")
    rec.kv_tile(a, "s47", "s39", "s48"); a("s_lshl_b32 s47, s47, 7"); a("s_lshl_b32 s48, s30, 2"); a("s_add_u32 s47, s47, s48"); a(f"s_add_u32 s47, s47, {rec.WS_FLAG + 96*128}")
    a("v_mov_b32 v22, s47"); a("v_mov_b32 v23, 0")
    a.label(kp)
    a("global_load_dword v26, v22, s[28:29] sc1"); a("global_load_dword v27, v22, s[28:29] offset:64 sc1")
    a(f"global_load_dword v24, v23, s[26:27] offset:{D_PROG} sc1"); a("s_waitcnt vmcnt(0)")
    a("v_or_b32 v26, v26, v27"); a("v_cmp_ne_u32 vcc, 0, v26"); a(f"s_cbranch_vccz {kok}")
    a("s_sleep 12")
    a("s_add_u32 s46, s46, 1"); a(f"s_cmp_lt_u32 s46, {WSPIN}"); a(f"s_cbranch_scc1 {kp}")
    a("s_branch w_fail")
    a.label(kok)
    def take_progress():
        a("v_readfirstlane_b32 s48, v24"); a("s_nop 0")
        a("s_max_u32 s48, s48, 1"); a("s_sub_u32 s48, s48, 1")
    take_progress()
    a("s_barrier")
    def m_wait(seg):
        lp, ok, nf = a.newlabel("ap"), a.newlabel("ao"), a.newlabel("nf")
        a.label(lp)
        a(f"s_cmp_lt_u32 {seg}, s48"); a(f"s_cbranch_scc1 {ok}")
        a("s_cmp_lt_u32 s48, 59"); a(f"s_cbranch_scc1 {nf}")
        a("s_sleep 2")
        a("global_load_dwordx4 v[24:27], v31, s[28:29] sc1"); a("s_waitcnt vmcnt(0)")
        a("v_min3_i32 v24, v24, v25, v26"); a("v_min_i32 v24, v24, v27"); a("s_nop 0"); a("v_readfirstlane_b32 s49, v24")
        a("s_add_u32 s49, s49, 1"); a("s_max_u32 s48, s48, s49")
        a("s_add_u32 s46, s46, 1"); a(f"s_cmp_lt_u32 s46, {WSPIN}"); a(f"s_cbranch_scc1 {lp}")
        a("s_branch w_fail")
        a.label(nf)
        a("s_sleep 8")
        a(f"global_load_dword v24, v23, s[26:27] offset:{D_PROG} sc1"); a("s_waitcnt vmcnt(0)")
        take_progress()
        a("s_add_u32 s46, s46, 1"); a(f"s_cmp_lt_u32 s46, {WSPIN}"); a(f"s_cbranch_scc1 {lp}")
        a("s_branch w_fail")
        a.label(ok)
    def kv_loads(sg):
        for kt in range(2):
            for jj in range(4):
                a(f"global_load_dwordx4 {R('a', sg*32 + (kt*4 + jj)*4)}, v{16 + sg*2 + kt}, s[32:33] offset:{jj*1024} sc1")
            a(f"s_add_u32 m0, s43, {sg*10240 + kt*4096}"); a("s_nop 0")
            for jj in range(4):
                a(f"global_load_lds_dwordx4 v{16 + sg*2 + kt}, s[34:35] offset:{jj*1024} sc1")
    a("s_lshl_b32 s47, s42, 7"); a(f"s_add_u32 s47, s47, {rec.WS_FLAG + 8192}"); a("v_mov_b32 v31, s47")
    a("s_max_u32 s54, s39, 5"); a("s_sub_u32 s54, s54, 5")
    m_wait("s54")
    kv_loads(0)
    pack_frags(a)
    a("s_lshr_b32 s50, s38, 1"); a("s_lshl_b32 s50, s50, 14"); a("s_and_b32 s51, s38, 1"); a("s_lshl_b32 s51, s51, 12"); a("s_add_u32 s50, s50, s51"); a(f"s_add_u32 s50, s50, {rec.WS_KMVM}")
    rec.near(a, 52, "s50", "s22", 28, "s51")
    a("v_and_b32 v28, 7, v0"); a("v_lshlrev_b32 v28, 4, v28"); a("v_lshrrev_b32 v24, 4, v0"); a("v_lshl_add_u32 v28, v24, 7, v28")
    XB = (108, 32)
    def m_loads(sg):
        for jj in range(4): a(f"global_load_dwordx4 {R('v', XB[sg] + 4*jj)}, v28, s[52:53] offset:{jj*512} sc1")
        for i in range(2): a(f"global_load_dwordx4 {R('v', XB[sg] + 16 + 4*i)}, v16, s[52:53] offset:{2048 + i*1024} sc1")
        a("s_add_u32 s52, s52, 0x40000"); a("s_addc_u32 s53, s53, 0")
    def seg_signal(seg):
        a(f"s_lshl_b32 s47, {seg}, 7"); a("s_lshl_b32 s49, s42, 2"); a("s_add_u32 s47, s47, s49"); a(f"s_add_u32 s47, s47, {rec.WS_FLAG}")
        a(f"s_lshl_b32 s50, {seg}, 10"); a("s_lshr_b32 s49, s42, 2"); a("s_lshl_b32 s49, s49, 7"); a("s_add_u32 s50, s50, s49"); a("s_and_b32 s49, s42, 3"); a("s_lshl_b32 s49, s49, 2")
        a("s_add_u32 s50, s50, s49"); a(f"s_add_u32 s50, s50, {rec.WS_FLAG2 - 48*1024}")
        a(f"s_cmp_ge_u32 {seg}, 48"); a("s_cselect_b32 s47, s50, s47"); a("v_mov_b32 v29, s47")
        a("s_waitcnt vmcnt(0)")
        a("s_mov_b64 exec, 1")
        a("global_store_dword v29, v23, s[28:29] sc1")
        a("s_mov_b64 exec, -1")
    early, late = a.newlabel("e0"), a.newlabel("l0")
    a("s_cmp_lt_u32 s39, s48"); a(f"s_cbranch_scc1 {early}")
    kv_loads(1); m_wait("s39"); m_loads(0)
    a("s_waitcnt vmcnt(0)")
    a(f"s_branch {late}")
    a.label(early)
    m_loads(0); kv_loads(1)
    a.label(late)
    a("v_lshrrev_b32 v24, 4, v0"); a("v_lshlrev_b32 v24, 2, v24"); a("v_and_b32 v25, 15, v0"); a("v_mov_b32 v26, 0xff800000")
    for i in range(4):
        a(f"v_add_u32 v27, {i}, v24"); a("v_cmp_gt_u32 vcc, v27, v25"); a("s_nop 1"); a(f"v_cndmask_b32 v{96+i}, 0, v26, vcc")
    a("v_cmp_gt_u32 vcc, 32, v0"); a("s_nop 1")
    for i in range(4): a(f"v_cndmask_b32 v{100+i}, 0, v26, vcc")
    for i in range(4): a(f"v_mov_b32 v{104+i}, 0x3f803f80")
    a("v_and_b32 v24, 3, v0"); a("v_lshrrev_b32 v25, 2, v0")
    a("v_lshlrev_b32 v18, 4, v25"); a("v_lshl_add_u32 v18, v24, 8, v18"); a("v_add_u32 v18, s43, v18")
    a("v_and_b32 v25, 7, v25"); a("v_lshlrev_b32 v19, 4, v25"); a("v_lshl_add_u32 v19, v24, 7, v19"); a("v_add_u32 v19, s43, v19")
    a("v_add_u32 v20, s43, v16")
    a("v_mov_b32 v21, v16"); a("v_add_u32 v22, 0x40000, v21")
    a("s_lshl_b32 s50, s39, 19"); a("s_lshl_b32 s51, s30, 14"); a("s_add_u32 s50, s50, s51"); a("s_lshl_b32 s51, s73, 12"); a("s_add_u32 s50, s50, s51"); a(f"s_add_u32 s50, s50, {WS_O}")
    wside(a, 36, "s50", "s51")
    a(f"s_mov_b32 s40, {SCL}")
    a("s_add_u32 s54, s39, 1")
    for sg in range(2):
        lo = sg*10240
        xb = XB[sg]
        if sg == 0:
            a("s_waitcnt vmcnt(16)")
        else:
            have = a.newlabel("h1")
            a("s_cmp_eq_u32 s55, 1"); a(f"s_cbranch_scc1 {have}")
            seg_signal("s39"); m_wait("s54"); tstamp(a, 0, 2, 3); m_loads(1)
            a("s_waitcnt vmcnt(0)"); tstamp(a, 1, 2, 3)
            a.label(have)
            a("s_waitcnt vmcnt(8)")
        for i in range(2): a(f"ds_write_b128 v20, {R('v', xb + 16 + 4*i)} offset:{lo + 8192 + i*1024}")
        tiles = [(132, 0, 0, "v[96:99]"), (136, 2, 0, "v[100:103]"), (140, 0, 1, "0"), (144, 1, 1, "v[96:99]"), (148, 2, 1, "v[100:103]")]
        for jj in range(4):
            for d, kt, qt, C in tiles:
                A = R('v', xb + 4*jj) if kt == 2 else R('a', sg*32 + (kt*4 + jj)*4)
                a(f"v_mfma_f32_16x16x32_bf16 {R('v', d)}, {A}, {frag(2*sg + qt, jj)}, " + (C if jj == 0 else R('v', d)))
        if sg == 0:
            no = a.newlabel("n1")
            a("s_mov_b32 s55, 0")
            a("s_cmp_lt_u32 s54, s48"); a(f"s_cbranch_scc0 {no}")
            m_loads(1); a("s_mov_b32 s55, 1")
            a.label(no)
        def vread(jj):
            b = 64 + (jj & 1)*12
            for hf in range(2):
                for kt in range(2):
                    a(f"ds_read_b64_tr_b16 {R('a', b + hf*4 + kt*2, 2)}, v18 offset:{lo + kt*4096 + jj*1024 + hf*8}")
                a(f"ds_read_b64_tr_b16 {R('a', b + 8 + hf*2, 2)}, v19 offset:{lo + 8192 + jj*512 + hf*8}")
        vread(0)
        a("s_nop 3")
        softmax_cols(a, list(range(132, 140)), 24)
        softmax_cols(a, list(range(140, 152)), 24)
        a("s_nop 0")
        a("v_cvt_pk_bf16_f32 v108, v132, v133"); a("v_cvt_pk_bf16_f32 v109, v134, v135"); a("v_mov_b32 v110, 0"); a("v_mov_b32 v111, 0")
        a("v_cvt_pk_bf16_f32 v112, v136, v137"); a("v_cvt_pk_bf16_f32 v113, v138, v139")
        for i in range(4): a(f"v_cvt_pk_bf16_f32 v{116+i}, v{140+2*i}, v{141+2*i}")
        a("v_cvt_pk_bf16_f32 v114, v148, v149"); a("v_cvt_pk_bf16_f32 v115, v150, v151")
        P0 = ["v[108:111]", "v[116:119]"]; P1 = ["v[112:113]", "v[114:115]"]
        a("s_nop 1")
        for qt in range(2): a(f"v_mfma_f32_16x16x32_bf16 {R('v', 120 + 4*qt)}, v[104:107], {P0[qt]}, 0")
        a("s_nop 5")
        for qt in range(2): a(f"v_mfma_f32_16x16x16_bf16 {R('v', 120 + 4*qt)}, v[104:105], {P1[qt]}, {R('v', 120 + 4*qt)}")
        if sg == 1:
            done = a.newlabel("d0")
            a("s_cmp_eq_u32 s55, 1"); a(f"s_cbranch_scc0 {done}")
            seg_signal("s39")
            a.label(done)
        a("s_nop 7")
        a("v_rcp_f32 v24, v120"); a("v_rcp_f32 v26, v124"); a("s_nop 0"); a("v_mov_b32 v25, v24"); a("v_mov_b32 v27, v26")
        for jj in range(4):
            b = 64 + (jj & 1)*12
            if jj < 3:
                vread(jj + 1); a("s_waitcnt lgkmcnt(6)")
            else:
                a("s_waitcnt lgkmcnt(0)")
            for qt in range(2):
                for hf in range(2):
                    a(f"v_mfma_f32_16x16x32_bf16 {R('v', 132 + (qt*2 + hf)*4)}, {R('a', b + hf*4)}, {P0[qt]}, 0")
            a("s_nop 2")
            for qt in range(2):
                for hf in range(2):
                    D = R('v', 132 + (qt*2 + hf)*4)
                    a(f"v_mfma_f32_16x16x16_bf16 {D}, {R('a', b + 8 + hf*2, 2)}, {P1[qt]}, {D}")
            a("s_nop 7")
            for qt in range(2):
                o = 132 + qt*8
                for i in range(0, 8, 2): a(f"v_pk_mul_f32 v[{o+i}:{o+i+1}], v[{o+i}:{o+i+1}], v[{24+2*qt}:{25+2*qt}]")
                for i in range(4): a(f"v_cvt_pk_bf16_f32 v{152 + 4*qt + i}, v{o+2*i}, v{o+2*i+1}")
                a(f"global_store_dwordx4 v{21+qt}, {R('v', 152 + 4*qt)}, s[36:37] offset:{jj*1024} sc1")
        if sg == 0:
            a("s_add_u32 s36, s36, 0x80000"); a("s_addc_u32 s37, s37, 0")
    tstamp(a, 2, 2, 3)
    seg_signal("s54")
    tstamp(a, 3, 2, 3)

def sreg(i): return R('a', 4*i) if i < 24 else R('v', 128 + 4*(i - 24))
def wot_wait(a):
    lp, ok = a.newlabel("tl"), a.newlabel("to")
    a("s_cmp_lg_u32 s75, 0"); a(f"s_cbranch_scc1 {ok}")
    a("v_lshlrev_b32 v18, 2, v0"); a(f"v_add_u32 v18, {rec.WS_FLAG + 108*128}, v18")
    a.label(lp)
    a("global_load_dword v19, v18, s[28:29] sc1"); a("s_waitcnt vmcnt(0)")
    a("v_cmp_ne_u32 vcc, 0, v19"); a(f"s_cbranch_vccz {ok}")
    a("s_sleep 8")
    a("s_add_u32 s46, s46, 1"); a(f"s_cmp_lt_u32 s46, {WSPIN}"); a(f"s_cbranch_scc1 {lp}")
    a("s_branch w_fail")
    a.label(ok)

def task_stream(a):
    wot_wait(a)
    a("s_barrier")
    a("s_lshl_b32 s43, s75, 15")
    a("s_lshl_b32 s32, s45, 19"); a("s_lshl_b32 s33, s75, 16"); a("s_add_u32 s32, s32, s33"); a(f"s_add_u32 s32, s32, {rec.WS_WOT}")
    rec.near_bit(a, "s33", "s32", "s22", True); a("s_add_u32 s32, s32, s33")
    a("s_add_u32 s36, s75, s45"); a("s_and_b32 s36, s36, 3")
    a("v_lshlrev_b32 v10, 4, v0"); a("v_add_u32 v6, s32, v10"); a("s_lshl_b32 s33, s36, 14"); a("v_xor_b32 v6, s33, v6")
    for i in range(32):
        if i & 3 == 0: a(f"v_xor_b32 v2, {(i >> 3)*16384 + ((i >> 2) & 1)*4096}, v6")
        a(f"global_load_dwordx4 {sreg(i)}, v2, s[28:29] offset:{(i & 3)*1024} sc1")
    a("s_and_b32 s33, s36, 1"); a("s_lshl_b32 s33, s33, 12"); a("s_add_u32 s32, s43, s33"); a("s_lshr_b32 s33, s36, 1"); a("s_lshl_b32 s33, s33, 14"); a("s_add_u32 s32, s32, s33")
    a("v_add_u32 v2, s32, v10")
    for i in range(1, 4): a(f"v_xor_b32 v{2+i}, {(i & 1)*4096 + (i >> 1)*16384}, v2")
    a("s_lshl_b32 s32, s75, 11"); a("v_add_u32 v11, s32, v10")
    a("v_lshrrev_b32 v13, 4, v0"); a("s_and_b32 s32, s75, 3"); a("s_lshl_b32 s32, s32, 2"); a("v_add_u32 v13, s32, v13")
    a("v_bfe_u32 v14, v0, 2, 2"); a("v_lshl_add_u32 v12, v14, 4, v13"); a("v_lshlrev_b32 v12, 4, v12")
    a("v_and_b32 v14, 1, v0"); a("v_lshl_add_u32 v12, v14, 3, v12"); a("v_bfe_u32 v14, v0, 1, 1"); a("v_lshl_add_u32 v12, v14, 10, v12")
    a("v_lshlrev_b32 v13, 12, v13"); a("v_and_b32 v14, 15, v0"); a("v_lshl_add_u32 v13, v14, 2, v13")
    a("s_lshl_b32 s33, s45, 6"); a(f"s_add_u32 s33, s33, {2048 + 96*65536}"); a("v_add_u32 v13, s33, v13")
    a("s_and_b32 s32, s45, 3"); a("s_lshl_b32 s32, s32, 11"); a("s_bfe_u32 s33, s45, 0x10002"); a("s_lshl_b32 s33, s33, 14"); a("s_add_u32 s32, s32, s33"); a("s_add_u32 s32, s32, s43")
    a("v_and_b32 v10, 31, v0"); a("v_lshl_add_u32 v10, v10, 6, s32")
    a("v_and_b32 v9, 3, v0"); a("v_lshlrev_b32 v9, 2, v9"); a("s_lshl_b32 s32, s75, 7"); a(f"s_add_u32 s32, s32, {rec.WS_FLAG2}"); a("v_add_u32 v9, s32, v9")
    a("v_mov_b32 v8, 0"); a(f"v_mov_b32 v6, {rec.WS_FLAG + 127*128}")
    wstamp(a, 0)
    def pick(dst):
        a(f"s_ff1_i32_b32 {dst}, s34"); a(f"s_bitset0_b32 s34, {dst}")
    def base(dst, item):
        a(f"s_and_b32 s32, {item}, 31"); a("s_lshl_b32 s32, s32, 18"); a(f"s_add_u32 s32, s32, {WS_O + 96*262144}"); wside(a, dst, "s32", "s33")
    def poll(item):
        a(f"s_bfe_u32 s32, {item}, 0x40001"); a("s_lshl_b32 s32, s32, 10"); a("v_add_u32 v14, s32, v9")
        a("global_load_dword v15, v14, s[28:29] sc1")
    def look(item, touch):
        lab, j = a.newlabel("lk"), a.newlabel("lj")
        a(f"global_load_dword v7, v8, s[26:27] offset:{D_PROG} sc1")
        a(f"s_bfe_u32 s32, {item}, 0x40001"); a("s_add_u32 s32, s32, 51"); a("s_min_u32 s32, s32, 63"); a("s_cmp_le_u32 s32, s37"); a(f"s_cbranch_scc1 {lab}")
        a("global_load_dword v15, v6, s[28:29] sc1")
        if touch: a("global_load_dword v124, v10, s[38:39] sc1")
        a(f"s_branch {j}")
        a.label(lab)
        poll(item)
        if touch:
            base(48, item); a("global_load_dword v124, v10, s[48:49] sc1")
        a.label(j)
    def oload(k):
        a(f"global_load_dwordx4 {R('v', 32 + k*4)}, v{2 + (k >> 2)}, s[38:39] offset:{(k & 3)*1024} sc1")
    def finish(item):
        lab = a.newlabel("fn")
        a("s_waitcnt lgkmcnt(0)"); a("s_barrier")
        a("s_cmp_lt_u32 s75, 4"); a(f"s_cbranch_scc0 {lab}")
        for m in range(8): a(f"ds_read_b64 v[{100+2*m}:{101+2*m}], v12 offset:{m*2048}")
        a(f"s_lshl_b32 s32, {item}, 16"); a("s_add_u32 s40, s24, s32"); a("s_addc_u32 s41, s25, 0")
        a("v_xor_b32 v12, 0x4000, v12")
        a("s_waitcnt lgkmcnt(0)")
        for step in (8, 4, 2):
            for i in range(0, step, 2):
                a(f"v_pk_add_f32 v[{100+i}:{101+i}], v[{100+i}:{101+i}], v[{100+step+i}:{101+step+i}]")
        a("v_cvt_pk_bf16_f32 v1, v100, v101")
        a("global_store_dword v13, v1, s[40:41]")
        a.label(lab)
    def pending():
        lab = a.newlabel("pd")
        a("s_cmp_lt_i32 s35, 0"); a(f"s_cbranch_scc1 {lab}")
        finish("s35")
        a.label(lab)
    def mm(k, wait):
        a(f"s_waitcnt vmcnt({wait})")
        for ct in range(2):
            D = R('v', 16 + ct*4)
            a(f"v_mfma_f32_16x16x32_bf16 {D}, {sreg(k*2 + ct)}, {R('v', 32 + k*4)}, " + ("0" if k == 0 else D))
    def park():
        a("s_nop 7")
        for f in range(2): a(f"ds_write_b128 v11, {R('v', 16 + f*4)} offset:{f*1024}")
        a("v_xor_b32 v11, 0x4000, v11")
    pick("s31"); pick("s36")
    a("s_mov_b32 s37, 0")
    a.label("st_wait")
    a("s_lshr_b32 s32, s31, 1"); a("s_add_u32 s32, s32, 49"); a("s_min_u32 s32, s32, 63"); a("s_cmp_le_u32 s32, s37"); a("s_cbranch_scc1 st_near")
    a("s_sleep 6")
    a(f"global_load_dword v7, v8, s[26:27] offset:{D_PROG} sc1"); a("s_waitcnt vmcnt(0)")
    a("v_readfirstlane_b32 s37, v7")
    a("s_branch st_more")
    a.label("st_near")
    poll("s31"); a("s_waitcnt vmcnt(0)")
    a("v_cmp_ne_u32 vcc, 0, v15"); a("s_cbranch_vccz st_rdy")
    a("s_sleep 4")
    a.label("st_more")
    a("s_add_u32 s46, s46, 1"); a(f"s_cmp_lt_u32 s46, {WSPIN}"); a("s_cbranch_scc1 st_wait")
    a("s_branch w_fail")
    a.label("st_rdy")
    tstamp(a, 4)
    base(38, "s31")
    a("global_load_dword v124, v10, s[38:39] sc1")
    a("s_xor_b32 s32, s31, s36"); a("s_cmp_eq_u32 s32, 1"); a("s_cbranch_scc1 st_same")
    look("s36", False)
    a.label("st_same")
    for k in range(16): oload(k)
    a("s_mov_b32 s35, -1")
    a.label("st_item")
    a("s_mov_b32 s30, s31"); a("s_mov_b32 s31, s36"); pick("s36")
    a("s_waitcnt vmcnt(16)")
    a("v_cmp_ne_u32 vcc, 0, v15"); a("v_readfirstlane_b32 s37, v7")
    a("s_cmp_lt_i32 s31, 0"); a("s_cbranch_scc1 st_slow")
    a("s_cbranch_vccnz st_slow")
    base(38, "s31")
    look("s36", True)
    for k in range(16):
        mm(k, 18); oload(k)
        if k == 3: pending()
    park()
    a("s_mov_b32 s35, s30")
    a("s_branch st_item")
    a.label("st_slow")
    pending()
    for k in range(16): mm(k, 15 - k)
    tstamp(a, 5)
    park(); finish("s30")
    tstamp(a, 6)
    a("s_cmp_lt_i32 s31, 0"); a("s_cbranch_scc0 st_wait")

def emit_mega(a, prof=False):
    kernel_begin(a, NAME + "_kernel")
    a("s_cmp_ge_u32 s2, 256"); a("s_cbranch_scc1 w_exit")
    if "span" in rec.OPT: a("s_memrealtime s[100:101]")
    load_ptrs(a)
    a("s_getreg_b32 s44, hwreg(HW_REG_XCC_ID)"); a("s_and_b32 s44, s44, 7")
    if "fakex" in rec.OPT:
        a("s_bitcmp1_b32 s2, 3"); a("s_cbranch_scc0 fake_done")
        a("s_cmp_eq_u32 s44, 1"); a("s_cselect_b32 s44, 5, s44"); a("s_cmp_eq_u32 s44, 2"); a("s_cselect_b32 s44, 7, s44")
        a.label("fake_done")
    a("v_lshrrev_b32 v1, 6, v0"); a("v_mov_b32 v2, 0"); a("s_mov_b32 s46, 0")
    a("v_readfirstlane_b32 s75, v1")
    a("s_waitcnt lgkmcnt(0)")
    a("s_add_u32 s28, s28, 0x1fffff"); a("s_addc_u32 s29, s29, 0"); a("s_and_b32 s28, s28, 0xffe00000")
    if "nowarm" not in rec.OPT:
        a("s_cmp_eq_u32 s75, 2"); a("s_cbranch_scc0 no_warm")
        a("s_getpc_b64 s[30:31]")
        a.label("warm_pc")
        a("s_lshr_b32 s32, s2, 3"); a("s_lshl_b32 s32, s32, 12"); a("v_and_b32 v3, 63, v0"); a("v_lshl_add_u32 v3, v3, 6, s32")
        a("v_min_u32 v3, code_end-warm_pc-4, v3"); a("v_and_b32 v3, -4, v3")
        a("global_load_dword a95, v3, s[30:31]")
        a.label("no_warm")
    a("s_cmp_eq_u32 s75, 1"); a("s_cbranch_scc0 no_probe")
    a("s_mov_b32 s47, 0")
    a("s_cmp_lt_u32 s44, 4"); a("s_cbranch_scc0 probe_done")
    a(f"s_add_u32 s30, s28, {rec.WS_PROBE}"); a("s_addc_u32 s31, s29, 0")
    a("s_lshr_b32 s32, s2, 5"); a("s_and_b32 s33, s32, 1"); a("s_lshr_b32 s32, s32, 1"); a("s_lshl_b32 s32, s32, 2"); a("s_add_u32 s32, s32, s33"); a("s_lshl_b32 s32, s32, 12")
    a("s_and_b32 s33, s2, 31"); a("s_lshl_b32 s33, s33, 7"); a("s_add_u32 s32, s32, s33")
    a("v_mov_b32 v3, s32")
    a("s_mov_b64 exec, 1")
    a("s_mov_b32 s38, -1"); a("s_mov_b32 s39, -1"); a("s_mov_b32 s40, 6")
    a.label("probe_loop")
    a("s_memtime s[34:35]"); a("s_waitcnt lgkmcnt(0)")
    a("global_store_dword v3, v2, s[30:31] sc1"); a("s_waitcnt vmcnt(0)")
    a("s_memtime s[36:37]"); a("s_waitcnt lgkmcnt(0)")
    a("s_sub_u32 s36, s36, s34"); a("s_min_u32 s36, s36, s38"); a("s_mov_b32 s38, s39"); a("s_mov_b32 s39, s36")
    a("v_xor_b32 v3, 0x2000, v3")
    a("s_sub_u32 s40, s40, 1"); a("s_cmp_lg_u32 s40, 0"); a("s_cbranch_scc1 probe_loop")
    a("s_mov_b64 exec, -1")
    a("s_cmp_lt_u32 s39, s38"); a("s_cselect_b32 s47, 1, 0")
    a.label("probe_done")
    a("v_mov_b32 v3, s47"); a("ds_write_b32 v2, v3 offset:4")
    a.label("no_probe")
    a("s_cmp_lg_u32 s75, 0"); a("s_cbranch_scc1 role_wait")
    a("s_and_b32 s32, s44, 3"); a("s_lshl_b32 s32, s32, 2"); a("s_and_b32 s33, s44, 4"); a("s_lshl_b32 s33, s33, 5"); a("s_add_u32 s32, s32, s33")
    a("v_mov_b32 v3, s32"); a("v_mov_b32 v4, 1")
    a("s_mov_b64 exec, 1")
    a("global_atomic_add v5, v3, v4, s[26:27] sc0 sc1"); a("s_waitcnt vmcnt(0)")
    a("v_readfirstlane_b32 s45, v5")
    a("s_cmp_lt_u32 s45, 32"); a("s_cbranch_scc1 role_have")
    a(f"v_mov_b32 v3, {D_OVF}")
    a("global_atomic_add v5, v3, v4, s[26:27] sc0 sc1"); a("s_waitcnt vmcnt(0)")
    a("v_readfirstlane_b32 s45, v5")
    a.label("role_poll")
    a("global_load_dwordx4 v[8:11], v2, s[26:27] sc1"); a("global_load_dwordx4 v[12:15], v2, s[26:27] offset:128 sc1"); a("s_waitcnt vmcnt(0)")
    a("s_mov_b32 s33, 0")
    for i in range(8):
        a(f"v_readfirstlane_b32 s{34+i}, v{8+i}"); a(f"s_add_u32 s33, s33, s{34+i}")
    a("s_cmp_eq_u32 s33, 256"); a("s_cbranch_scc1 role_pick")
    a("s_sleep 8"); a("s_add_u32 s46, s46, 1"); a(f"s_cmp_lt_u32 s46, {WSPIN}"); a("s_cbranch_scc1 role_poll")
    a("s_mov_b64 exec, -1"); a("s_branch w_fail")
    a.label("role_pick")
    for i in range(8):
        a(f"s_min_u32 s33, s{34+i}, 32"); a("s_add_u32 s45, s45, s33"); a(f"s_mov_b32 s44, {i}")
        if i < 7:
            a("s_cmp_lt_u32 s45, 32"); a("s_cbranch_scc1 role_have"); a("s_sub_u32 s45, s45, 32")
    a.label("role_have")
    a("s_lshl_b32 s32, s44, 5"); a("s_or_b32 s32, s32, s45"); a("v_mov_b32 v3, s32")
    a("ds_write_b32 v2, v3")
    a("s_mov_b64 exec, -1")
    a.label("role_wait")
    a("s_waitcnt lgkmcnt(0)"); a("s_barrier")
    a("ds_read_b64 v[4:5], v2"); a("s_waitcnt lgkmcnt(0)")
    a("v_readfirstlane_b32 s32, v4"); a("v_readfirstlane_b32 s47, v5")
    a("s_cmp_lg_u32 s75, 0"); a("s_cbranch_scc1 voted")
    a("s_cmp_ge_u32 s32, 128"); a("s_cbranch_scc1 voted")
    a("s_and_b32 s47, s47, 1"); a("s_lshl_b32 s47, s47, 16"); a("s_or_b32 s47, s47, 1"); a("v_mov_b32 v3, s47")
    a("s_mov_b64 exec, 1")
    a(f"global_atomic_add v2, v3, s[26:27] offset:{rec.DBG_VOTE} sc1")
    a("s_mov_b64 exec, -1")
    a.label("voted")
    a("s_barrier")
    if "span" in rec.OPT:
        a("s_and_b32 s98, s2, 0x38"); a("s_or_b32 s98, s98, s75"); a("s_cmp_lg_u32 s98, 0"); a("s_cbranch_scc1 span1")
        a("s_memrealtime s[98:99]"); a("s_waitcnt lgkmcnt(0)"); a("s_not_b32 s100, s100"); a("v_mov_b32 v4, s100"); a("v_mov_b32 v5, s98")
        a("s_mov_b64 exec, 1"); a("global_atomic_umax v2, v4, s[26:27] offset:48 sc1"); a("global_atomic_umax v2, v5, s[26:27] offset:52 sc1"); a("s_mov_b64 exec, -1")
        a.label("span1")
    a("s_and_b32 s45, s32, 31"); a("s_bfe_u32 s44, s32, 0x30005")
    a("s_cmp_ge_u32 s44, 4"); a("s_cbranch_scc1 worker")
    a("s_lshl_b32 s18, s44, 3"); a("s_lshr_b32 s19, s45, 2"); a("s_add_u32 s18, s18, s19"); a("s_and_b32 s19, s45, 3")
    rec.emit_rec(a, "rec", prof=prof, kvwait=True)
    a.label("worker")
    a("s_sub_u32 s44, s44, 4")
    a("v_and_b32 v0, 63, v0")
    gemm.setup_common(a)
    a("s_mov_b32 s88, 0"); a("s_mov_b32 s89, 0")
    a("s_mov_b32 s59, 0") if PROF else None
    a("s_lshl_b32 s96, s44, 5"); a("s_add_u32 s96, s96, s45"); a("s_lshl_b32 s96, s96, 3"); a("s_add_u32 s96, s96, s75")
    a("s_lshl_b32 s32, s44, 3"); a("s_lshr_b32 s44, s45, 3"); a("s_and_b32 s45, s45, 7"); a("s_add_u32 s45, s45, s32")
    if PROF: a("s_lshl_b32 s97, s44, 5"); a("s_add_u32 s97, s97, s45")
    wstamp(a, 0)
    def g1(grp):
        MT, first = ((2, 0), (3, 32), (3, 80))[grp]
        a("s_mov_b32 s30, s45"); a(f"s_mul_i32 s31, s44, {4*MT}"); a(f"s_add_u32 s31, s31, {first}")
        task_g1(a, MT, grp)
        wstamp(a, 0)
    def tile_2x4():
        a("s_bfe_u32 s30, s45, 0x10003"); a("s_lshl_b32 s30, s30, 1"); a("s_and_b32 s32, s45, 1"); a("s_add_u32 s30, s30, s32")
        a("s_lshr_b32 s31, s45, 4"); a("s_lshl_b32 s31, s31, 2"); a("s_bfe_u32 s32, s45, 0x20001"); a("s_add_u32 s31, s31, s32")
    g1(0)
    a("s_mov_b32 s90, 4"); a("s_mov_b64 s[92:93], s[4:5]"); a("s_mov_b32 s91, 6"); a("s_mov_b64 s[94:95], s[6:7]")
    g1(1)
    a("s_mov_b32 s90, 8"); a("s_mov_b64 s[92:93], s[14:15]"); a("s_mov_b32 s91, 2"); a("s_mov_b64 s[94:95], s[8:9]")
    a("s_cmp_lt_u32 s44, 2"); a("s_cbranch_scc1 w_g1c")
    tile_2x4()
    a("s_and_b32 s32, s44, 1"); a("s_lshl_b32 s32, s32, 2"); a("s_add_u32 s30, s30, s32")
    task_g4kv(a)
    wstamp(a, 0)
    a.label("w_g1c")
    g1(2)
    a("s_cmp_eq_u32 s44, 1"); a("s_cbranch_scc0 w_g2a")
    a("s_mov_b32 s30, s45"); a("s_mov_b32 s31, 0")
    a.label("w_wot")
    task_wot(a)
    a("s_add_u32 s31, s31, 1"); a("s_cmp_lt_u32 s31, 2"); a("s_cbranch_scc1 w_wot")
    wstamp(a, 0)
    a.label("w_g2a")
    a("s_lshr_b32 s30, s45, 1"); a("s_and_b32 s31, s45, 1"); a("s_lshr_b32 s32, s44, 1"); a("s_xor_b32 s32, s32, s44"); a("s_lshl_b32 s32, s32, 1"); a("s_add_u32 s31, s31, s32")
    task_g2a(a)
    wstamp(a, 0)
    a("s_cmp_eq_u32 s44, 0"); a("s_cbranch_scc1 w_g5")
    a("s_cmp_eq_u32 s44, 2"); a("s_cbranch_scc1 w_set2")
    a("s_lshr_b32 s30, s45, 3")
    a("s_cmp_eq_u32 s44, 3"); a("s_cbranch_scc1 w_f1")
    a("s_and_b32 s31, s45, 7")
    task_g3(a, 2)
    wstamp(a, 0)
    a(f"s_mov_b32 s34, {setmask(1):#x}")
    a("s_branch w_stream")
    a.label("w_f1")
    a("s_lshl_b32 s31, s31, 2"); a("s_bfe_u32 s32, s45, 0x20001"); a("s_add_u32 s31, s31, s32")
    task_g3(a, 1)
    wstamp(a, 0)
    a.label("w_set2")
    a("s_bitcmp1_b32 s45, 0"); a("s_cbranch_scc1 w_exit")
    a("s_and_b32 s32, s44, 1"); a("s_add_u32 s45, s45, s32")
    a(f"s_mov_b32 s34, {setmask(2):#x}")
    a("s_branch w_stream")
    a.label("w_g5")
    tile_2x4()
    task_g4q(a)
    wstamp(a, 0)
    task_g5(a)
    wstamp(a, 0)
    a(f"s_mov_b32 s34, {setmask(0):#x}")
    a.label("w_stream")
    task_stream(a)
    wstamp(a, 0)
    if "span" in rec.OPT:
        a("s_and_b32 s98, s45, 7"); a("s_or_b32 s98, s98, s75"); a("s_cmp_lg_u32 s98, 0"); a("s_cbranch_scc1 w_exit")
        a("s_waitcnt vmcnt(0)"); a("s_memrealtime s[98:99]"); a("s_waitcnt lgkmcnt(0)"); a("v_mov_b32 v5, s98"); a("v_mov_b32 v2, 0")
        a("s_mov_b64 exec, 1"); a("global_atomic_umax v2, v5, s[26:27] offset:60 sc1")
    a("s_endpgm")
    a.label("w_fail")
    a("v_mov_b32 v16, 0"); a("v_mov_b32 v17, 0xdead"); a("global_store_dword v16, v17, s[26:27] offset:248")
    a.label("w_exit")
    a("s_endpgm")
    gemm.emit_core(a, "core_T", 'T')
    gemm.emit_core(a, "core_N", 'N')
    gemm.emit_core(a, "core_T3", 'T', MT=3)
    gemm.emit_core(a, "core_T2", 'T', MT=2)
    gemm.WFLAG = "sc1"; gemm.WFRAG = True
    gemm.emit_core(a, "core_F1", 'T', MT=1, aflag="sc1")
    gemm.emit_core(a, "core_F2", 'T', MT=2, aflag="sc1")
    gemm.WFLAG = ""; gemm.WFRAG = False
    a.label("code_end")

def generate(prof=False):
    global PROF
    PROF = bool(prof)
    raw = open(f"cdna_kernels/{NAME}.s.ref").read().split("\n")
    hdr = []
    for l in raw:
        if not l.startswith(";") or "Override" in l: break
        hdr.append(l)
    a = Asm()
    emit_mega(a, prof)
    s = "\n".join(hdr) + "\n"
    s += f"; @launch kernel={NAME}_kernel grid=(256,1,1) block=(512,1,1) lds=163840\n"
    s += '.amdgcn_target "amdgcn-amd-amdhsa--gfx950"\n.text\n' + a.text() + '.section .rodata,"a"\n'
    s += kernel_desc(NAME + "_kernel", vgpr=256, accum=160)
    return s

if __name__ == "__main__":
    out = sys.argv[1] if len(sys.argv) > 1 else f"cdna_kernels/{NAME}.s"
    open(out, "w").write(generate())
    print("wrote", out)
```

```python
from asmgen import *

WS_RING  = 1 << 20
WS_PROBE = 0x1f0000
WS_FLAG2 = 0x140000
WS_HW    = 0x160000
WS_FLAG  = 0x1e0000
WS_MEMS  = 2 << 20
WS_KMVM  = 4 << 20
WS_KX    = 20 << 20
WS_VX    = 52 << 20
WS_WOT   = 126 << 20
WOT_CG = 1 << 19
L_PART = 0
L_P    = 24576
L_ZERO = 26624
L_SEL  = 28672
L_PARW = 7*16384
L_KX   = 131072
L_VX   = 147456
SPIN_MAX = 400000
NSTEP = 64
DBG_VOTE, DBG_CLR, DBG_PROG = 40, 44, 192
PAR0 = dict(THR=0, ST=1, BDEL=0, SPLITB=1, KFAR=1, VFAR=1, RDEL=10, MDEL=7, DM=1, MGAP=3, PRIO=1, XD=2, XGAP=1, VDEL=10, PPRIO=2, XDEL=7, DR=2, RGAP=5, MACK=0)
PAR = dict(PAR0)
OPT = set()

def guard(a, loop, fail):
    a("s_add_u32 s24, s24, 1"); a(f"s_cmp_lt_u32 s24, {SPIN_MAX}"); a(f"s_cbranch_scc1 {loop}"); a(f"s_branch {fail}")

def pstamp(a, prof, k):
    if prof == 3:
        a("s_memrealtime s[56:57]"); a("s_waitcnt lgkmcnt(0)"); a(f"s_mov_b32 s{k}, s56")

def stamp(a, prof, k, at=None):
    if not prof: return
    if prof >= 3 and (k != 7 or prof > 3): return
    if prof == 2:
        lab = a.newlabel("st")
        a("s_cmp_lg_u32 s22, " + ("31" if (k == 7 or at) else "30")); a(f"s_cbranch_scc1 {lab}")
        a("s_memrealtime s[56:57]"); a("s_waitcnt lgkmcnt(0)"); a("s_and_b32 s56, s56, 0xffffff"); a("s_lshl_b32 s57, s24, 24"); a(f"s_or_b32 s{60+k}, s56, s57")
        a.label(lab)
        return
    a("s_memtime s[56:57]"); a("s_waitcnt lgkmcnt(0)")
    a("s_sub_u32 s58, s56, s59"); a(f"s_add_u32 s{60+k}, s{60+k}, s58"); a("s_mov_b32 s59, s56")

def fs(a, prof, k, which):
    if prof == which: a(f"s_memtime s[{66+2*k}:{67+2*k}]")

def near_bit(a, tmp, off, par, kv=False):
    flip = kv and PAR["KFAR"] != PAR["VFAR"]
    if flip: a(f"s_cmp_ge_u32 {off}, {WS_VX}"); a(f"s_addc_u32 {tmp}, {par}, {PAR['KFAR']}"); a(f"s_lshl_b32 {tmp}, {tmp}, 21"); a(f"s_xor_b32 {tmp}, {tmp}, {off}"); a(f"s_lshr_b32 {tmp}, {tmp}, 21")
    else:
        a(f"s_lshr_b32 {tmp}, {off}, 21"); a(f"s_xor_b32 {tmp}, {tmp}, {par}")
        if kv and PAR["KFAR"]: a(f"s_xor_b32 {tmp}, {tmp}, 1")
    a(f"s_and_b32 {tmp}, {tmp}, 1"); a(f"s_lshl_b32 {tmp}, {tmp}, 13")

def near(a, dst, off, par="s25", wb=16, tmp="s36", kv=False):
    near_bit(a, tmp, off, par, kv)
    a(f"s_add_u32 {tmp}, {tmp}, {off}"); a(f"s_add_u32 s{dst}, s{wb}, {tmp}"); a(f"s_addc_u32 s{dst+1}, s{wb+1}, 0")

def v_from_k(a, v, k):
    a(f"s_add_u32 s{v}, s{k}, {WS_VX - WS_KX}"); a(f"s_addc_u32 s{v+1}, s{k+1}, 0")
    if PAR["KFAR"] != PAR["VFAR"]: a(f"s_xor_b32 s{v}, s{v}, 0x2000")

def kv_tile(a, dst, seg, tmp):
    a(f"s_sub_u32 {tmp}, {seg}, 16"); a(f"s_mul_i32 {tmp}, {tmp}, 43"); a(f"s_lshr_b32 {tmp}, {tmp}, 8"); a(f"s_add_u32 {tmp}, {tmp}, 4")
    a(f"s_lshr_b32 {dst}, {seg}, 2"); a(f"s_cmp_lt_u32 {dst}, 4"); a(f"s_cselect_b32 {dst}, {dst}, {tmp}")

def tagchk(a, regs, tag, t0, t1, mf=()):
    op = "0x80" if tag else "0xfe"
    mf = list(mf)
    ops = [f"v_bitop3_b32 v{t0}, v{regs[0]}, v{regs[1]}, v{regs[2]} bitop3:{op}", f"v_bitop3_b32 v{t1}, v{regs[3]}, v{regs[4]}, v{regs[5]} bitop3:{op}"]
    rest = regs[6:]; k = 0
    while rest:
        t = (t0, t1)[k & 1]; k += 1
        ops.append(f"v_bitop3_b32 v{t}, v{t}, v{rest[0]}, v{rest[1]} bitop3:{op}"); rest = rest[2:]
    ops.append(f"v_bitop3_b32 v{t0}, v{t0}, v{t1}, 1 bitop3:" + ("0x80" if tag else "0xa8"))
    per = -(-len(ops) // max(len(mf), 1))
    for i, o in enumerate(ops):
        if mf and i % per == 0: a(mf.pop(0))
        a(o)
    for m in mf: a(m)
    a(f"v_cmp_ne_u32 vcc, {tag}, v{t0}")

def emit_rec(a, pfx, prof=False, kvwait=False):
    L = lambda n: f"{pfx}_{n}"
    FAIL = L('fail')
    a("s_load_dwordx8 s[4:11], s[0:1], 40")
    a("s_load_dwordx2 s[12:13], s[0:1], 32")
    a("s_load_dwordx2 s[14:15], s[0:1], 88")
    a("s_load_dwordx2 s[16:17], s[0:1], 96")
    a("v_lshrrev_b32 v1, 6, v0")
    a("v_and_b32 v0, 63, v0")
    a("s_lshl_b32 s20, s18, 2"); a("s_add_u32 s20, s20, s19")
    a("v_readfirstlane_b32 s21, v1")
    a("v_lshlrev_b32 v6, 4, v0")
    a("s_mov_b32 s24, 0")
    a("s_waitcnt lgkmcnt(0)")
    pstamp(a, prof, 90)
    if "diag" in OPT: pstamp(a, 3, 97)
    a("s_add_u32 s16, s16, 0x1fffff"); a("s_addc_u32 s17, s17, 0"); a("s_and_b32 s16, s16, 0xffe00000")
    a("s_lshl_b32 s36, s18, 13"); a(f"s_add_u32 s36, s36, {WS_RING}"); a("s_add_u32 s32, s16, s36"); a("s_addc_u32 s33, s17, 0")
    a("s_and_b32 s45, s20, 63"); a("s_lshl_b32 s45, s45, 7"); a("s_lshr_b32 s36, s20, 6"); a("s_lshl_b32 s36, s36, 14"); a("s_add_u32 s45, s45, s36")
    a("s_and_b32 s44, s20, 1"); a("s_lshl_b32 s44, s44, 12"); a("s_lshr_b32 s42, s20, 1"); a("s_lshl_b32 s42, s42, 14"); a("s_add_u32 s44, s44, s42")
    a("v_mov_b32 v14, v6"); a("v_add_u32 v15, 0x1000, v6")
    a("s_lshl_b32 s36, s19, 10"); a("v_add_u32 v9, s36, v6")
    a("s_lshl_b32 s36, s19, 9"); a("s_add_u32 s36, s36, 4096"); a("v_and_b32 v8, 0x1ff, v6"); a("v_add_u32 v8, s36, v8")
    a("s_cmp_eq_u32 s21, 7"); a(f"s_cbranch_scc0 {L('noclr')}")
    for i in range(4): a(f"v_mov_b32 v{68+i}, -1")
    a("v_add_u32 v16, s44, v6"); a("v_add_u32 v17, 0x2000, v16")
    for p in range(2):
        for i in range(4): a(f"global_store_dwordx4 v{16+p}, v[68:71], s[16:17] offset:{1024*i} sc1")
    a("global_store_dwordx4 v9, v[68:71], s[32:33] sc1"); a("global_store_dwordx4 v8, v[68:71], s[32:33] sc1")
    a("v_bfe_u32 v16, v0, 3, 2"); a("v_lshlrev_b32 v16, 15, v16"); a("v_lshrrev_b32 v17, 5, v0"); a("v_lshl_add_u32 v16, v17, 13, v16")
    a("v_and_b32 v17, 7, v0"); a("v_lshl_add_u32 v16, v17, 4, v16"); a(f"s_add_u32 s36, s45, {WS_MEMS}"); a("v_add_u32 v16, s36, v16")
    for i in range(16):
        a("global_store_dwordx4 v16, v[68:71], s[16:17] sc1"); a("v_add_u32 v16, 0x20000, v16")
    a("s_lshl_b32 s36, s20, 7"); a(f"s_add_u32 s36, s36, {WS_FLAG}"); a("v_and_b32 v16, 0x70, v6"); a("v_add_u32 v16, s36, v16")
    a("global_store_dwordx4 v16, v[68:71], s[16:17] sc1")
    a("s_lshl_b32 s36, s20, 10"); a(f"s_add_u32 s36, s36, {WS_FLAG2}"); a("v_add_u32 v16, s36, v6")
    a("global_store_dwordx4 v16, v[68:71], s[16:17] sc1")
    a("s_lshl_b32 s36, s20, 8"); a(f"s_add_u32 s36, s36, {WS_HW}"); a("v_and_b32 v16, 0xf0, v6"); a("v_add_u32 v16, s36, v16")
    a("global_store_dwordx4 v16, v[68:71], s[16:17] sc1")
    a("s_barrier")
    a("v_mov_b32 v17, 1"); a("v_mov_b32 v16, 0")
    a("s_waitcnt vmcnt(0)")
    a("s_mov_b64 exec, 1")
    a(f"global_atomic_add v16, v17, s[14:15] offset:{DBG_CLR} sc1")
    a("s_mov_b64 exec, -1")
    a(f"s_branch {L('clrd')}")
    a.label(L('noclr'))
    a("s_barrier")
    a.label(L('clrd'))
    def xdma(base, ldsreg):
        for kt in range(2):
            a(f"s_add_u32 m0, {ldsreg}, {kt*4096}")
            a("s_nop 0")
            for jj in range(4):
                a(f"global_load_lds_dwordx4 v{14+kt}, {base} offset:{jj*1024} sc1")
    def kv_poll(tag, tile):
        a(f"s_lshl_b32 s52, {tile}, 7"); a("s_lshr_b32 s36, s18, 1"); a("s_lshl_b32 s36, s36, 2"); a("s_add_u32 s52, s52, s36"); a(f"s_add_u32 s52, s52, {WS_FLAG + 96*128}")
        a("v_mov_b32 v17, s52")
        a.label(L(tag))
        a("global_load_dword v16, v17, s[16:17] sc1"); a("global_load_dword v18, v17, s[16:17] offset:64 sc1"); a("s_waitcnt vmcnt(0)")
        a("v_or_b32 v16, v16, v18")
        a("v_cmp_ne_u32 vcc, 0, v16"); a(f"s_cbranch_vccz {L(tag + 'ok')}")
        a("s_sleep 4")
        guard(a, L(tag), FAIL)
        a.label(L(tag + 'ok'))
    def kv_bases(segreg):
        a(f"s_lshl_b32 s42, {segreg}, 5"); a("s_add_u32 s42, s42, s18"); a("s_lshl_b32 s42, s42, 14"); a(f"s_add_u32 s42, s42, {WS_KX}")
        near(a, 48, "s42", kv=True)
        v_from_k(a, 34, 48)
    a("v_lshrrev_b32 v10, 2, v0"); a("v_lshlrev_b32 v10, 13, v10"); a("v_and_b32 v11, 3, v0"); a("v_lshl_add_u32 v10, v11, 4, v10")
    a("s_lshl_b32 s36, s21, 20"); a("s_lshl_b32 s42, s20, 6"); a("s_add_u32 s36, s36, s42"); a("v_add_u32 v10, s36, v10")
    a("s_lshl_b32 s43, s21, 14")
    def wdma(base, buf, nt="nt"):
        a("v_mov_b32 v11, v10")
        for i in range(8):
            a(f"s_add_u32 m0, s43, {buf*8192 + i*1024}")
            a("s_nop 0")
            a(f"global_load_lds_dwordx4 v11, {base} {nt}")
            if i < 7: a("v_add_u32 v11, 0x20000, v11")
    wdma("s[6:7]", 0, ""); wdma("s[8:9]", 1, "")
    a("v_lshrrev_b32 v12, 5, v0"); a("v_lshlrev_b32 v12, 4, v12")
    a("v_bfe_u32 v13, v0, 4, 1"); a("v_lshl_add_u32 v12, v13, 2, v12")
    a("v_bfe_u32 v13, v0, 2, 1"); a("v_add_u32 v12, v12, v13")
    a("v_bfe_u32 v13, v0, 3, 1"); a("v_lshl_add_u32 v12, v13, 3, v12")
    a("v_lshlrev_b32 v12, 6, v12"); a("v_and_b32 v13, 3, v0"); a("v_lshl_add_u32 v12, v13, 3, v12")
    a("v_add_u32 v12, s43, v12")
    def wread(typ, buf):
        for t in range(2):
            for ks in range(2):
                for pp in range(4):
                    hi, lo = pp >> 1, pp & 1
                    reg = ((typ*2 + t)*2 + ks)*8 + pp*2
                    off = buf*8192 + (64*ks + 32*hi + 2*lo)*64 + t*32
                    a(f"ds_read_b64_tr_b16 a[{reg}:{reg+1}], v12 offset:{off}")
                a("s_waitcnt lgkmcnt(4)")
        a("s_waitcnt lgkmcnt(0)")
    a("s_waitcnt vmcnt(8)")
    pstamp(a, prof, 91)
    wread(1, 0)
    if PAR["THR"]:
        a("s_and_b32 s36, s20, 14"); a("s_cmp_eq_u32 s36, 6"); a(f"s_cbranch_scc1 {L('nothr')}")
        for _ in range(PAR["THR"]): a("s_sleep 32")
        a.label(L('nothr'))
    wdma("s[4:5]", 0, "nt")
    a("s_waitcnt vmcnt(8)"); wread(2, 1)
    a("v_lshrrev_b32 v10, 3, v0"); a("v_lshlrev_b32 v10, 11, v10"); a("v_and_b32 v11, 7, v0"); a("v_lshl_add_u32 v10, v11, 4, v10")
    a("s_lshl_b32 s36, s18, 18"); a("s_lshl_b32 s42, s19, 9"); a("s_add_u32 s36, s36, s42")
    a("s_and_b32 s42, s21, 3"); a("s_lshl_b32 s42, s42, 7"); a("s_add_u32 s36, s36, s42")
    a("v_add_u32 v10, s36, v10")
    def odma(half):
        a(f"v_add_u32 v11, {half*64*2048}, v10")
        for i in range(8):
            a(f"s_add_u32 m0, s43, {half*8192 + i*1024}")
            a("s_nop 0")
            a("global_load_lds_dwordx4 v11, s[10:11]")
            if i < 7: a("v_add_u32 v11, 0x4000, v11")
    a("s_cmp_lt_u32 s21, 4"); a(f"s_cbranch_scc0 {L('wv_only')}")
    odma(1)
    a("s_waitcnt vmcnt(8)"); wread(0, 0)
    odma(0)
    a("v_lshrrev_b32 v12, 2, v0")
    a("v_lshlrev_b32 v12, 7, v12"); a("v_and_b32 v13, 3, v0"); a("v_lshl_add_u32 v12, v13, 4, v12"); a("v_add_u32 v12, s43, v12")
    a("s_waitcnt vmcnt(0)")
    def wo_reg(ct, jj):
        return f"v[{96+(ct*4+jj)*4}:{96+(ct*4+jj)*4+3}]"
    for ct in range(4):
        for jj in range(4):
            for lo in range(2):
                base = 96 + (ct*4 + jj)*4 + lo*2
                off = (32*jj + 16*lo)*128 + (ct >> 1)*64 + (ct & 1)*8
                a(f"ds_read_b64_tr_b16 v[{base}:{base+1}], v12 offset:{off}")
        a("s_waitcnt lgkmcnt(0)")
    a(f"s_branch {L('wdone')}")
    a.label(L('wv_only'))
    a("s_waitcnt vmcnt(0)"); wread(0, 0)
    a.label(L('wdone'))
    pstamp(a, prof, 89)

    a("s_cmp_eq_u32 s21, 7"); a(f"s_cbranch_scc0 {L('sync1')}")
    a("global_load_dwordx4 v[48:51], v9, s[32:33] sc1"); a("global_load_dwordx4 v[52:55], v8, s[32:33] sc1")
    a("v_and_b32 v11, 7, v0"); a("v_lshlrev_b32 v11, 11, v11"); a("s_lshl_b32 s36, s20, 4"); a("v_add_u32 v11, s36, v11")
    a("global_load_dwordx4 v[56:59], v11, s[12:13]")
    a("v_mov_b32 v17, 0"); a("s_lshr_b32 s36, s18, 3"); a("s_lshl_b32 s36, s36, 2"); a("v_mov_b32 v18, s36")
    a.label(L('clrw'))
    a(f"global_load_dwordx2 v[20:21], v17, s[14:15] offset:{DBG_VOTE} sc1"); a("s_waitcnt vmcnt(0)")
    a("v_readfirstlane_b32 s36, v20"); a("v_readfirstlane_b32 s37, v21")
    a("s_and_b32 s42, s36, 0xffff"); a("s_add_u32 s42, s42, s37"); a("s_cmp_eq_u32 s42, 256"); a(f"s_cbranch_scc1 {L('clrok')}")
    a("s_sleep 8")
    guard(a, L('clrw'), FAIL)
    a.label(L('clrok'))
    a("global_load_dword v21, v18, s[14:15] sc1")
    a("s_lshr_b32 s36, s36, 16"); a("s_cmp_gt_u32 s36, 64"); a("s_cselect_b32 s25, 1, 0")
    a("v_mov_b32 v20, s25"); a(f"v_mov_b32 v17, {L_PARW}")
    a(f"s_mov_b32 s42, {WS_MEMS}"); near(a, 34, "s42")
    a("v_add_u32 v11, s45, v6")
    a("s_mov_b64 exec, 0xff")
    for i in range(4): a(f"v_min_u32 v{56+i}, -2, v{56+i}")
    a("global_store_dwordx4 v11, v[56:59], s[34:35] sc1")
    a("s_mov_b64 exec, -1")
    a("s_waitcnt vmcnt(1)"); a("ds_write_b64 v17, v[20:21]")
    a.label(L('sync1'))

    a("s_and_b32 s36, s21, 3"); a("s_lshl_b32 s36, s36, 11"); a("s_lshr_b32 s42, s21, 2"); a("s_lshl_b32 s42, s42, 14"); a("s_add_u32 s36, s36, s42")
    a("v_add_u32 v1, s36, v6")
    a("v_and_b32 v2, 8, v0"); a("v_cmp_eq_u32 vcc, 0, v2"); a("v_mov_b32 v2, 0xeeee"); a("v_mov_b32 v3, 0x4444"); a("s_nop 1")
    a("v_cndmask_b32 v2, v2, v3, vcc")
    a("s_mul_i32 s36, s21, 3072"); a("v_add_u32 v3, s36, v6")
    a("s_mov_b32 s22, 0"); a("s_mov_b32 s51, 1")
    a("s_waitcnt vmcnt(0) lgkmcnt(0)"); a("s_barrier")
    a(f"v_mov_b32 v24, {L_PARW}"); a("ds_read_b64 v[24:25], v24"); a("s_waitcnt lgkmcnt(0)")
    a("v_readfirstlane_b32 s25, v24"); a("v_readfirstlane_b32 s23, v25")
    a("s_and_b32 s25, s25, 1")
    if "safe" in OPT: a("s_mov_b32 s23, 0")
    a("s_lshl_b32 s36, s25, 13"); a("s_add_u32 s26, s16, s36"); a("s_addc_u32 s27, s17, 0")
    a(f"s_mov_b32 s42, {WS_MEMS}"); near(a, 28, "s42")
    a("s_lshr_b32 s38, s18, 1"); a("s_lshl_b32 s38, s38, 14"); a("s_and_b32 s36, s18, 1"); a("s_lshl_b32 s36, s36, 12"); a("s_add_u32 s38, s38, s36"); a(f"s_add_u32 s38, s38, {WS_KMVM}")
    near(a, 30, "s38")
    if "diag" in OPT: pstamp(a, 3, 98)
    if prof:
        for k in range(8): a(f"s_mov_b32 s{60+k}, 0")
        a("s_memtime s[56:57]"); a("s_waitcnt lgkmcnt(0)"); a("s_mov_b32 s59, s56")
        pstamp(a, prof, 60)
    a("s_cmp_lt_u32 s21, 4"); a(f"s_cbranch_scc1 {L('setup_vo')}")
    a("s_cmp_eq_u32 s21, 6"); a(f"s_cbranch_scc1 {L('setup_sm')}")

    def head_word(val):
        a(f"v_mov_b32 v95, {val}")
        a("s_xor_b32 s36, s25, 1"); a("s_lshl_b32 s36, s36, 13"); a("s_add_u32 s36, s36, s45"); a(f"s_add_u32 s36, s36, {WS_HW}")
        a("v_mov_b32 v94, s36")
        a("s_mov_b64 exec, 1")
        a("global_store_dword v94, v95, s[16:17] sc1")
        a("s_mov_b64 exec, -1")
    def zero_acc():
        for i in range(24): a(f"v_mov_b32 v{24+i}, 0")
    def pair(p): return [(2*p, 0), (2*p+1, 0), (2*p, 1), (2*p+1, 1)]
    def sm(tt, ks, mb):
        dd = 24 + tt*4; b = (tt*2 + ks)*8
        a(f"v_smfmac_f32_16x16x64_bf16 v[{dd}:{dd+3}], v[{mb+4*ks}:{mb+3+4*ks}], a[{b}:{b+7}], v2")
    def cv(p, i): a(f"v_cvt_pk_bf16_f32 v{24+8*p+i}, v{24+8*p+2*i}, v{25+8*p+2*i}")
    def mload(b):
        a(f"global_load_dwordx4 v[{b}:{b+3}], v1, s[28:29] sc1")
        a(f"global_load_dwordx4 v[{b+4}:{b+7}], v1, s[28:29] offset:1024 sc1")
    def p1(name, mid=None):
        if PAR["MDEL"]: a(f"s_sleep {PAR['MDEL']}")
        a.label(L(name))
        mload(16)
        a("s_waitcnt vmcnt(0)")
        fs(a, prof, 0, 5)
        chk = ["v_max3_u32 v0, v16, v17, v18", "v_max3_u32 v7, v19, v20, v21", "v_max3_u32 v0, v0, v22, v23", "v_max_u32 v0, v0, v7", "v_cmp_eq_u32 vcc, -1, v0"]
        for i, (t, k) in enumerate(pair(0)):
            sm(t, k, 16)
            for c in chk[2*i:2*i+2]: a(c)
            if i == 2: a(f"s_cbranch_vccnz {L(name + '_retry')}")
        stamp(a, prof, 0)
        fs(a, prof, 1, 5)
        for t, k in pair(1): sm(t, k, 16)
        a("s_nop 3")
        for i, (t, k) in enumerate(pair(2)):
            cv(0, i)
            if i == 3: a("ds_write_b128 v3, v[24:27]")
            sm(t, k, 16)
        fs(a, prof, 3, 5)
        for i in range(4): cv(1, i)
        a("ds_write_b128 v3, v[32:35] offset:1024")
        fs(a, prof, 4, 5)
        a("s_nop 2")
        for i in range(4): cv(2, i)
        if PAR["SPLITB"]:
            a("ds_write_b128 v3, v[40:43] offset:2048")
            a("s_waitcnt lgkmcnt(1)"); a("s_barrier")
            if mid:
                mid(); a("s_waitcnt lgkmcnt(8)")
            else:
                a("s_waitcnt lgkmcnt(0)")
        else:
            a("ds_write_b128 v3, v[40:43] offset:2048")
            a("s_waitcnt lgkmcnt(0)")
        fs(a, prof, 6, 5)
        a("s_barrier")
        if mid and not PAR["SPLITB"]: mid()
        fs(a, prof, 7, 5)
        if prof == 5: a("s_waitcnt lgkmcnt(0)")
        stamp(a, prof, 1)
    def p1_retry(name):
        a.label(L(name + '_retry'))
        a("s_nop 7")
        for i in range(8): a(f"v_mov_b32 v{24+i}, 0")
        guard(a, L(name), FAIL)

    def step_adv():
        zero_acc()
        a("s_add_u32 s22, s22, 1")
        a("s_add_u32 s28, s28, 0x8000"); a("s_addc_u32 s29, s29, 0")
        a("s_add_u32 s38, s38, 0x40000"); near(a, 30, "s38")
    def step_end():
        step_adv()
        a("s_waitcnt vmcnt(0) lgkmcnt(0)")
        a("s_barrier")
        stamp(a, prof, 7)

    a("s_sub_u32 s37, s21, 4"); a("s_min_u32 s37, s37, 2")
    a("s_lshl_b32 s36, s37, 10"); a("v_add_u32 v4, s36, v6")
    a("v_and_b32 v48, 1, v0"); a("v_lshlrev_b32 v48, 4, v48"); a("v_mov_b32 v49, 0x3f80"); a("v_lshlrev_b32 v48, v48, v49")
    a("v_bfe_u32 v49, v0, 3, 1"); a("v_bfe_u32 v50, v0, 1, 1"); a("v_lshl_add_u32 v49, v49, 1, v50")
    a("v_lshrrev_b32 v50, 2, v0"); a("v_xor_b32 v50, v50, v0"); a("v_and_b32 v50, 4, v50"); a("v_add_u32 v49, v49, v50")
    for q in range(4):
        a(f"v_cmp_eq_u32 vcc, {q}, v49"); a("s_nop 1"); a(f"v_cndmask_b32 v{84+q}, 0, v48, vcc")
    a("v_and_b32 v48, 7, v0"); a("v_lshlrev_b32 v48, 4, v48"); a("v_and_b32 v49, 8, v0"); a("v_lshrrev_b32 v50, 4, v0")
    a("v_add_u32 v51, v48, v49"); a("v_lshl_add_u32 v10, v50, 7, v51")
    a("s_lshl_b32 s36, s19, 9"); a("s_lshr_b32 s42, s37, 1"); a("s_lshl_b32 s42, s42, 11"); a("s_add_u32 s36, s36, s42"); a("v_add_u32 v10, s36, v10")
    a("v_lshl_add_u32 v5, v50, 8, v51"); a("s_lshl_b32 s36, s19, 10"); a("s_lshl_b32 s42, s37, 7"); a("s_add_u32 s36, s36, s42"); a("v_add_u32 v5, s36, v5")
    zero_acc()
    a(f"s_setprio {PAR['PPRIO']}")
    a("s_cmp_eq_u32 s21, 7"); a(f"s_cbranch_scc1 {L('setup_m')}")
    def rd8():
        for w in range(8): a(f"ds_read_b128 v[{48+4*w}:{51+4*w}], v4 offset:{3072*w}")
    def reduce8():
        for w in range(8):
            a(f"s_waitcnt lgkmcnt({7-w})")
            a(f"v_mfma_f32_16x16x32_bf16 v[80:83], v[{48+4*w}:{51+4*w}], v[84:87], " + ("0" if w == 0 else "v[80:83]"))
    def pack_tag(tag, last):
        if last:
            a(f"s_cmp_eq_u32 s22, {NSTEP-1}"); a(f"s_cbranch_scc1 {L(last)}")
        a("s_cmp_lt_u32 s23, 32")
        a("s_nop 4" if last else "s_nop 6")
        a("v_cvt_pk_bf16_f32 v88, v80, v81"); a("v_cvt_pk_bf16_f32 v89, v82, v83")
        for i in range(2): a(f"v_or_b32 v{90+i}, 1, v{88+i}" if tag else f"v_and_b32 v{90+i}, -2, v{88+i}")
    a("v_add_u32 v11, s44, v6")
    a("v_and_b32 v15, 7, v0"); a("v_lshlrev_b32 v15, 4, v15"); a("v_bfe_u32 v48, v0, 4, 1"); a("v_lshl_add_u32 v15, v48, 3, v15"); a("v_add_u32 v15, s45, v15")
    a("v_and_b32 v48, 1, v0"); a("v_lshlrev_b32 v48, 4, v48"); a("v_mov_b32 v49, 0x3f80"); a("v_lshlrev_b32 v48, v48, v49")
    a("v_bfe_u32 v49, v0, 1, 3")
    for q in range(4):
        a(f"v_cmp_eq_u32 vcc, {q}, v49"); a("s_nop 1"); a(f"v_cndmask_b32 v{92+q}, 0, v48, vcc")
    DR = PAR["DR"]
    rsets = [96, 112, 128][:DR]
    def rload(b):
        for i in range(4): a(f"global_load_dwordx4 v[{b+4*i}:{b+3+4*i}], v11, s[26:27] offset:{1024*i} sc1")
    a.label(L('v_loop'))
    for tag in range(2):
        n = f"v{tag}"
        p1(n, rd8)
        reduce8()
        pack_tag(tag, 'last_pub' if tag == (NSTEP - 1) & 1 else None)
        a(f"s_cbranch_scc1 {L(n + '_wt')}")
        a("global_store_dwordx2 v5, v[90:91], s[32:33]")
        a.label(L(n + '_pd'))
        if tag == 0:
            a("s_cmp_eq_u32 s22, 0"); a(f"s_cbranch_scc1 {L('v_first')}")
            a.label(L('v_fj'))
        stamp(a, prof, 2)
        a("s_barrier")
        a("s_cmp_eq_u32 s21, 4"); a(f"s_cbranch_scc1 {L(n + '_red')}")
        if "nopers" not in OPT: a("global_store_dwordx2 v10, v[88:89], s[30:31] sc1")
        if prof == 3:
            a("s_memrealtime s[56:57]"); a("s_memtime s[92:93]"); a("s_waitcnt lgkmcnt(0)"); a("s_mov_b32 m0, s22"); a("s_nop 0"); a("v_writelane_b32 v150, s56, m0"); a("v_writelane_b32 v151, s92, m0")
        step_adv()
        if PAR["BDEL"]: a(f"s_sleep {PAR['BDEL']}")
        a("s_waitcnt vmcnt(0)")
        a(f"s_branch {L(n + '_end')}")
        a.label(L(n + '_red'))
        step_adv()
        if PAR["RDEL"]: a(f"s_sleep {PAR['RDEL']}")
        stamp(a, prof, 5, 31)
        for d in range(DR - 1):
            rload(rsets[d])
            if PAR["RGAP"]: a(f"s_sleep {PAR['RGAP']}")
        a.label(L(n + '_rp'))
        for d in range(DR):
            rload(rsets[(d + DR - 1) % DR])
            a(f"s_waitcnt vmcnt({4*(DR-1)})")
            b = rsets[d]
            mf = [f"v_mfma_f32_16x16x32_bf16 v[64:67], v[92:95], v[{b+4*i}:{b+3+4*i}], " + ("0" if i == 0 else "v[64:67]") for i in range(4)]
            tagchk(a, list(range(b, b + 16)), tag, 73, 72, mf)
            a(f"s_cbranch_vccz {L(n + '_rok')}" if d < DR - 1 else f"s_cbranch_vccnz {L(n + '_rr')}")
        a.label(L(n + '_rok'))
        a("s_nop 3")
        for i in range(4): a(f"v_add_f32_dpp v{72+i}, v{64+i}, v{64+i} row_ror:8 row_mask:0xf bank_mask:0xf")
        a("s_mov_b64 exec, 0x00ff00ff")
        a("v_cvt_pk_bf16_f32 v76, v72, v73"); a("v_cvt_pk_bf16_f32 v77, v74, v75")
        a("v_min_u32 v76, -2, v76"); a("v_min_u32 v77, -2, v77")
        a("global_store_dwordx2 v15, v[76:77], s[28:29] sc1")
        a("s_mov_b64 exec, -1")
        stamp(a, prof, 6, 31)
        if PAR["MACK"]: a("s_waitcnt vmcnt(0)")
        a.label(L(n + '_end'))
        a("s_barrier")
        stamp(a, prof, 7)
    a(f"s_branch {L('v_loop')}")
    for tag in range(2):
        n = f"v{tag}"
        p1_retry(n)
        a.label(L(n + '_wt')); a("global_store_dwordx2 v5, v[90:91], s[32:33] sc1"); a(f"s_branch {L(n + '_pd')}")
        a.label(L(n + '_rr')); guard(a, L(n + '_rp'), FAIL)

    a.label(L('v_first')); a("s_barrier"); a("s_barrier"); a(f"s_branch {L('v_fj')}")

    a.label(L('setup_m'))
    a("v_lshrrev_b32 v5, 5, v0"); a("v_lshl_add_u32 v5, v5, 8, v48"); a("v_bfe_u32 v50, v0, 3, 2"); a("v_lshl_add_u32 v5, v50, 2, v5")
    a("s_lshl_b32 s36, s19, 9"); a("s_add_u32 s36, s36, 4096"); a("v_add_u32 v5, s36, v5")
    a("v_mov_b32 v93, 0")
    def progress(tagname):
        a("s_cmp_eq_u32 s20, 0"); a(f"s_cbranch_scc0 {L(tagname)}")
        a("v_mov_b32 v92, s22")
        a("s_mov_b64 exec, 1")
        a(f"global_store_dword v93, v92, s[14:15] offset:{DBG_PROG} sc1")
        a("s_mov_b64 exec, -1")
        a.label(L(tagname))
    a.label(L('m_loop'))
    for tag in range(2):
        n = f"m{tag}"
        p1(n)
        rd8(); reduce8()
        pack_tag(tag, 'fin_m' if tag == (NSTEP - 1) & 1 else None)
        a(f"s_cbranch_scc1 {L(n + '_wt')}")
        a("global_store_dword v5, v90, s[32:33]"); a("global_store_dword v5, v91, s[32:33] offset:128")
        a.label(L(n + '_pd'))
        if tag == 0:
            a("s_cmp_eq_u32 s22, 0"); a(f"s_cbranch_scc1 {L('m_first')}")
            a.label(L('m_fj'))
        a("s_barrier")
        if "nopers" not in OPT: a("global_store_dwordx2 v10, v[88:89], s[30:31] sc1")
        progress(n + '_pg')
        if kvwait:
            a("s_add_u32 s53, s22, 3"); a("s_min_u32 s53, s53, 63"); kv_tile(a, "s53", "s53", "s36")
            a("s_cmp_lt_u32 s53, s51"); a(f"s_cbranch_scc1 {L(n + '_kvh')}")
            kv_poll(n + '_kv', "s53")
            a("s_add_u32 s51, s53, 1")
            a.label(L(n + '_kvh'))
        step_end()
        a(f"s_cmp_ge_u32 s22, {NSTEP - 3}"); a(f"s_cbranch_scc1 {L(n + '_hp')}")
        a.label(L(n + '_hd'))
    a(f"s_branch {L('m_loop')}")
    for tag in range(2):
        n = f"m{tag}"
        p1_retry(n)
        a.label(L(n + '_wt'))
        a("global_store_dword v5, v90, s[32:33] sc1"); a("global_store_dword v5, v91, s[32:33] offset:128 sc1"); a(f"s_branch {L(n + '_pd')}")
        a.label(L(n + '_hp'))
        a("s_sub_u32 s36, s22, 1"); head_word("s36"); a(f"s_branch {L(n + '_hd')}")
    a.label(L('m_first'))
    if kvwait:
        a("s_mov_b32 s53, 0"); kv_poll('kv0', "s53")
    for sg in range(2):
        a(f"s_mov_b32 s53, {sg}"); kv_bases("s53")
        a(f"s_mov_b32 s50, {L_VX + sg*8192}"); xdma("s[34:35]", "s50")
        a(f"s_mov_b32 s50, {L_KX + sg*8192}"); xdma("s[48:49]", "s50")
    a("s_waitcnt vmcnt(16)"); a("s_barrier"); a("s_barrier")
    pstamp(a, prof, 60)
    a("s_waitcnt vmcnt(0)")
    a(f"s_branch {L('m_fj')}")
    a.label(L('fin_m'))
    progress('pg_last')
    a(f"s_branch {L('last_pub')}")

    a.label(L('setup_sm'))
    a(f"v_add_u32 v14, {L_KX}, v6")
    a("v_and_b32 v16, 7, v0"); a("v_lshrrev_b32 v17, 4, v0"); a("v_lshl_add_u32 v9, v17, 3, v16"); a("v_lshlrev_b32 v9, 4, v9"); a("v_and_b32 v18, 8, v0"); a("v_add_u32 v9, v9, v18")
    a("v_and_b32 v17, 1, v17"); a("v_lshl_add_u32 v10, v17, 3, v16"); a("v_lshlrev_b32 v10, 4, v10")
    a("v_lshrrev_b32 v17, 5, v0"); a("v_lshl_add_u32 v10, v17, 2, v10"); a("v_lshrrev_b32 v18, 2, v18"); a("v_add_u32 v10, v10, v18")
    a("s_mov_b32 s46, 0x3e0293ee")
    for i in range(4): a(f"v_mov_b32 v{84+i}, 0")
    a(f"ds_write_b128 v6, v[84:87] offset:{L_ZERO}"); a(f"ds_write_b128 v6, v[84:87] offset:{L_ZERO + 1024}")
    def k_load():
        for i in range(8): a(f"ds_read_b128 v[{96+4*i}:{99+4*i}], v14 offset:{1024*i}")
        a("v_xor_b32 v14, 0x2000, v14")
    zero_acc()
    a("s_setprio 2")
    def xload(b):
        for jj in range(4): a(f"global_load_dwordx4 v[{b+4*jj}:{b+3+4*jj}], v6, s[32:33] offset:{1024*jj} sc1")
    def s_mfma(b, t, jj):
        X = f"v[{b+4*jj}:{b+3+4*jj}]"
        d = 64 + 4*t
        A = X if t == 2 else f"v[{96+(t*4+jj)*4}:{99+(t*4+jj)*4}]"
        return f"v_mfma_f32_16x16x32_bf16 v[{d}:{d+3}], {A}, {X}, " + (f"v[{d}:{d+3}]" if jj else "0")
    def s_head(b, tag):
        tagchk(a, list(range(b, b + 16)), tag, 15, 16, [s_mfma(b, 2, jj) for jj in range(4)])
    dpp = "row_shr:8 row_mask:0xf bank_mask:0xc"
    def s_rest(b):
        for jj in range(4): a(s_mfma(b, 1, jj))
        a(s_mfma(b, 0, 0))
        a(f"v_mov_b32_dpp v72, v73 {dpp}"); a(f"v_mov_b32_dpp v74, v75 {dpp}")
        a(s_mfma(b, 0, 1)); a(s_mfma(b, 0, 2))
        a("v_permlane32_swap_b32 v72, v74")
        a(s_mfma(b, 0, 3))
    XD = PAR["XD"]
    a.label(L('s_loop'))
    for tag in range(2):
        n = f"s{tag}"
        p1(n)
        if tag == (NSTEP - 1) & 1:
            a(f"s_cmp_eq_u32 s22, {NSTEP-1}"); a(f"s_cbranch_scc1 {L('fin')}")
        if tag == 0:
            a("s_cmp_eq_u32 s22, 0"); a(f"s_cbranch_scc1 {L('s_first')}")
            pass
        if PAR["XDEL"]: a(f"s_sleep {PAR['XDEL']}")
        if tag == 0: a.label(L('s_fj'))
        if XD == 2:
            xload(48)
            if PAR["XGAP"]: a(f"s_sleep {PAR['XGAP']}")
        a.label(L(n + '_xp'))
        xload(128 if XD == 2 else 48)
        a(f"s_waitcnt vmcnt({4*(XD-1)})")
        fs(a, prof, 0, 4)
        s_head(48, tag)
        a(f"s_cbranch_vccnz {L(n + '_xr')}")
        stamp(a, prof, 2)
        fs(a, prof, 1, 4)
        s_rest(48)
        a.label(L(n + '_xj'))
        fs(a, prof, 2, 4)
        a("s_nop 0")
        a("v_max_f32_dpp v16, v74, v74 row_ror:8 row_mask:0xf bank_mask:0xf")
        a("v_max3_f32 v16, v16, v68, v69"); a("v_max3_f32 v16, v16, v70, v71")
        a("s_nop 3")
        a("v_max3_f32 v16, v16, v64, v65"); a("v_max3_f32 v16, v16, v66, v67")
        fs(a, prof, 3, 4)
        a("v_mov_b32 v17, v16"); a(f"v_mov_b32_dpp v64, v68 {dpp}"); a(f"v_mov_b32_dpp v65, v69 {dpp}")
        a("v_permlane16_swap_b32 v16, v17"); a("v_max_f32 v16, v16, v17")
        a("v_mov_b32 v17, v16"); a(f"v_mov_b32_dpp v66, v70 {dpp}"); a(f"v_mov_b32_dpp v67, v71 {dpp}")
        a("v_permlane32_swap_b32 v16, v17"); a("v_max_f32 v16, v16, v17")
        fs(a, prof, 4, 4)
        a("v_mul_f32 v16, s46, v16")
        a("s_nop 1")
        a(f"v_mov_b32_dpp v16, v16 {dpp}")
        for rg in (74, 64, 65, 66, 67): a(f"v_fma_f32 v{rg}, v{rg}, s46, -v16")
        a("v_exp_f32 v74, v74"); a("v_exp_f32 v64, v64")
        a("v_cvt_pk_bf16_f32 v82, v74, v74")
        a("v_exp_f32 v65, v65")
        a(f"ds_write_b16 v10, v82 offset:{L_P + 1024}")
        a("v_exp_f32 v66, v66")
        a(f"ds_write_b16 v10, v82 offset:{L_P + 1280}")
        a("v_exp_f32 v67, v67")
        a("v_cvt_pk_bf16_f32 v80, v64, v65")
        a("v_cvt_pk_bf16_f32 v81, v66, v67")
        a(f"ds_write_b64 v9, v[80:81] offset:{L_P}")
        fs(a, prof, 5, 4)
        a("s_waitcnt lgkmcnt(0)"); fs(a, prof, 6, 4); a("s_barrier"); fs(a, prof, 7, 4)
        stamp(a, prof, 3)
        k_load()
        step_end()
    a(f"s_branch {L('s_loop')}")
    for tag in range(2):
        n = f"s{tag}"
        p1_retry(n)
        a.label(L(n + '_xr'))
        if XD == 2:
            xload(48)
            a("s_waitcnt vmcnt(4)")
            s_head(128, tag)
            a(f"s_cbranch_vccnz {L(n + '_xg')}")
            stamp(a, prof, 2)
            s_rest(128)
            a(f"s_branch {L(n + '_xj')}")
            a.label(L(n + '_xg'))
        guard(a, L(n + '_xp'), FAIL)

    a.label(L('s_first')); a("s_barrier"); k_load(); a("s_waitcnt lgkmcnt(0)"); a("s_barrier"); a(f"s_branch {L('s_fj')}")

    a.label(L('setup_vo'))
    a("v_add_u32 v8, 0x1000, v6"); a("v_lshrrev_b32 v9, 4, v0")
    a("s_lshl_b32 s36, s19, 5"); a("s_lshl_b32 s42, s21, 3"); a("s_add_u32 s36, s36, s42")
    a("v_add_u32 v9, s36, v9"); a("v_bfe_u32 v11, v0, 3, 1"); a("v_lshl_add_u32 v9, v11, 2, v9")
    a("v_and_b32 v11, 1, v9"); a("v_lshlrev_b32 v11, 12, v11"); a("v_lshrrev_b32 v9, 1, v9"); a("v_lshl_add_u32 v9, v9, 14, v11")
    a("v_and_b32 v11, 7, v0"); a("v_lshl_add_u32 v9, v11, 4, v9"); a("s_lshl_b32 s36, s18, 7"); a("v_add_u32 v9, s36, v9")
    a("v_lshrrev_b32 v12, 4, v0"); a("v_and_b32 v13, 7, v0"); a("v_lshl_add_u32 v12, v12, 3, v13"); a("v_lshlrev_b32 v12, 4, v12"); a(f"v_add_u32 v12, {L_P}, v12"); a(f"v_mov_b32 v11, {L_ZERO}")
    a("v_and_b32 v13, 8, v0"); a("v_cmp_eq_u32 vcc, 0, v13"); a("s_nop 1")
    a("v_cndmask_b32 v13, v12, v11, vcc"); a("v_cndmask_b32 v12, v11, v12, vcc")
    a(f"v_add_u32 v14, {L_VX}, v6")
    a("s_lshr_b32 s36, s21, 1"); a(f"s_mul_i32 s54, s36, {WS_VX - WS_KX}"); a(f"s_mul_i32 s55, s36, {L_VX - L_KX}")
    a("s_and_b32 s36, s21, 1"); a("s_lshl_b32 s36, s36, 12"); a("s_add_u32 s54, s54, s36"); a("s_add_u32 s55, s55, s36"); a(f"s_add_u32 s55, s55, {L_KX}")
    a("s_lshl_b32 s36, s18, 14"); a("s_add_u32 s54, s54, s36"); a(f"s_add_u32 s54, s54, {WS_KX}")
    def u_load():
        for i in range(8): a(f"ds_read_b128 v[{16+4*i}:{19+4*i}], v14 offset:{1024*i}")
        a("v_xor_b32 v14, 0x2000, v14")
    def u_half(hf):
        for jj in range(4):
            for c2 in range(2):
                for kt in range(2):
                    d = 64 + (c2*2 + kt)*4
                    A = 16 + (kt*4 + jj)*4
                    a(f"v_mfma_f32_16x16x32_bf16 v[{d}:{d+3}], v[{A}:{A+3}], {wo_reg(2*hf+c2, jj)}, " + ("0" if jj == 0 else f"v[{d}:{d+3}]"))
        a("s_nop 7")
        for c2 in range(2):
            for kt in range(2):
                d = 64 + (c2*2 + kt)*4
                u = 80 + (2*hf + c2)*4 + kt*2
                a(f"v_cvt_pk_bf16_f32 v{u}, v{d}, v{d+1}"); a(f"v_cvt_pk_bf16_f32 v{u+1}, v{d+2}, v{d+3}")
    def vo_prep(tag, ahead):
        for i in range(4): a(f"v_mov_b32 v{56+i}, 0x3f803f80")
        for i in range(4): a(f"v_mov_b32 v{60+i}, 0x3f003f00")
        for i in range(16): a(f"v_mov_b32 v{64+i}, 0")
        a(f"s_add_u32 s53, s22, {2 + ahead}"); a("s_min_u32 s53, s53, 63"); a("s_lshl_b32 s53, s53, 19"); a("s_add_u32 s53, s53, s54"); near(a, 48, "s53", kv=True)
        a(f"s_add_u32 m0, s55, {tag*8192}")
    vo_prep(0, 0)
    zero_acc()
    if PAR["PRIO"]: a("s_setprio 1")
    a.label(L('o_loop'))
    for tag in range(2):
        n = f"o{tag}"
        p1(n)
        if tag == (NSTEP - 1) & 1:
            a(f"s_cmp_eq_u32 s22, {NSTEP-1}"); a(f"s_cbranch_scc1 {L('fin')}")
        if PAR["VDEL"]: a(f"s_sleep {PAR['VDEL']}")
        a.label(L(n + '_vp'))
        for k in range(2): a(f"global_load_dwordx4 v[{48+4*k}:{51+4*k}], v8, s[32:33] offset:{1024*k} sc1")
        a("s_waitcnt vmcnt(0)")
        tagchk(a, list(range(48, 56)), tag, 17, 16)
        a(f"s_cbranch_vccnz {L(n + '_vr')}")
        for k in range(2):
            for ct in range(4):
                b = 96 + (ct*4 + 2*k)*4
                a(f"v_smfmac_f32_16x16x64_bf16 v[{64+4*ct}:{67+4*ct}], v[{48+4*k}:{51+4*k}], v[{b}:{b+7}], v2")
        a("s_nop 4")
        for ct in range(4):
            if ct == 3: a("s_nop 1")
            t = 24 + (ct & 1)*4 + (ct >> 1)*2
            a(f"v_cvt_pk_bf16_f32 v{t}, v{64+4*ct}, v{65+4*ct}"); a(f"v_cvt_pk_bf16_f32 v{t+1}, v{66+4*ct}, v{67+4*ct}")
        if tag == 0:
            a("s_cmp_eq_u32 s22, 0"); a(f"s_cbranch_scc1 {L('o_first')}")
            a.label(L('o_fj'))
        if "nodma" not in OPT:
            for jj in range(4): a(f"global_load_lds_dwordx4 v6, s[48:49] offset:{jj*1024} sc1")
        stamp(a, prof, 3)
        a("s_barrier")
        a("ds_read_b64 v[36:37], v12 offset:1024"); a("ds_read_b64 v[38:39], v13 offset:1024")
        a("ds_read_b128 v[32:35], v12"); a("ds_read_b128 v[48:51], v13")
        a("s_waitcnt lgkmcnt(2)")
        stamp(a, prof, 4)
        a("v_mfma_f32_16x16x32_bf16 v[40:43], v[60:63], v[36:39], 0")
        a("v_mfma_f32_16x16x32_bf16 v[64:67], v[24:27], v[36:39], 0")
        a("s_waitcnt lgkmcnt(0)")
        a("v_or_b32 v44, v32, v48"); a("v_or_b32 v45, v33, v49")
        a("v_or_b32 v46, v34, v50"); a("v_or_b32 v47, v35, v51")
        a("v_mfma_f32_16x16x32_bf16 v[64:67], v[80:83], v[32:35], v[64:67]")
        a("v_mfma_f32_16x16x32_bf16 v[68:71], v[28:31], v[36:39], 0")
        a("v_mfma_f32_16x16x32_bf16 v[40:43], v[56:59], v[44:47], v[40:43]")
        a("v_mfma_f32_16x16x32_bf16 v[64:67], v[88:91], v[48:51], v[64:67]")
        a("v_mfma_f32_16x16x32_bf16 v[68:71], v[84:87], v[32:35], v[68:71]")
        a("v_mfma_f32_16x16x32_bf16 v[68:71], v[92:95], v[48:51], v[68:71]")
        a("s_nop 4")
        a("v_rcp_f32 v40, v40")
        a("s_nop 0")
        tg = lambda x: a(f"v_or_b32 v{x}, 1, v{x}" if tag else f"v_and_b32 v{x}, -2, v{x}")
        for h in range(2):
            for i in range(2): a(f"v_pk_mul_f32 v[{64+4*h+2*i}:{65+4*h+2*i}], v[{64+4*h+2*i}:{65+4*h+2*i}], v[40:41] op_sel_hi:[1,0]")
            for i in range(2): a(f"v_cvt_pk_bf16_f32 v{48+2*h+i}, v{64+4*h+2*i}, v{65+4*h+2*i}")
        for i in range(4): tg(48 + i)
        a("global_store_dwordx4 v9, v[48:51], s[26:27] sc1")
        stamp(a, prof, 5)
        u_load(); a("s_waitcnt lgkmcnt(0)"); u_half(0)
        u_half(1)
        vo_prep(tag ^ 1, 1)
        step_end()
    a(f"s_branch {L('o_loop')}")
    for tag in range(2):
        n = f"o{tag}"
        p1_retry(n)
        a.label(L(n + '_vr')); guard(a, L(n + '_vp'), FAIL)

    a.label(L('o_first'))
    for i in range(8): a(f"v_mov_b32 v{48+i}, v{24+i}")
    a("s_barrier")
    u_load(); a("s_waitcnt lgkmcnt(0)"); a("s_barrier"); u_half(0); u_half(1)
    for i in range(8): a(f"v_mov_b32 v{24+i}, v{48+i}")
    a(f"s_branch {L('o_fj')}")

    a.label(L('last_pub'))
    a("s_nop 7")
    a("v_cvt_pk_bf16_f32 v88, v80, v81"); a("v_cvt_pk_bf16_f32 v89, v82, v83")
    a("s_cmp_eq_u32 s21, 4"); a(f"s_cbranch_scc1 {L('fin')}")
    a("global_store_dwordx2 v10, v[88:89], s[30:31] sc1")
    a.label(L('fin'))
    a("s_waitcnt vmcnt(0)"); a("s_barrier")
    a("s_cmp_eq_u32 s21, 0"); a(f"s_cbranch_scc0 {L('end')}")
    head_word(str(NSTEP - 1))
    if "span" in OPT:
        a("s_and_b32 s98, s20, 15"); a("s_cmp_lg_u32 s98, 0"); a(f"s_cbranch_scc1 {L('end')}")
        a("s_memrealtime s[98:99]"); a("s_waitcnt lgkmcnt(0)"); a("v_mov_b32 v5, s98"); a("v_mov_b32 v2, 0")
        a("s_mov_b64 exec, 1"); a("global_atomic_umax v2, v5, s[14:15] offset:56 sc1"); a("s_mov_b64 exec, -1")
    if "diag" in OPT:
        a("s_cmp_eq_u32 s20, 0"); a(f"s_cbranch_scc0 {L('end')}")
        a("s_memrealtime s[56:57]"); a("s_waitcnt lgkmcnt(0)"); a("s_sub_u32 s70, s56, s98"); a("s_sub_u32 s71, s98, s97")
        a("s_mov_b64 exec, 1")
        a("s_mov_b32 s72, 0"); a("s_mov_b32 s73, 0"); a("s_mov_b32 s74, 0"); a("v_mov_b32 v18, 0")
        a.label(L('dg'))
        for k in range(2):
            a("s_lshl_b32 s36, s74, 21"); a(f"s_add_u32 s36, s36, {0x10000 + k*0x2000}"); a("v_mov_b32 v16, s36")
            for rep in range(2):
                a("s_memtime s[56:57]"); a("s_waitcnt lgkmcnt(0)")
                a("global_atomic_or v17, v16, v18, s[16:17] sc0 sc1"); a("s_waitcnt vmcnt(0)")
                a("s_memtime s[58:59]"); a("s_waitcnt lgkmcnt(0)")
            a(f"s_sub_u32 s{76+k}, s58, s56")
        a("s_cmp_lt_u32 s77, s76"); a("s_cselect_b32 s78, 1, 0"); a("s_mov_b32 s79, 0"); a("s_lshl_b64 s[78:79], s[78:79], s74"); a("s_or_b64 s[72:73], s[72:73], s[78:79]")
        a("s_add_u32 s74, s74, 1"); a("s_cmp_lt_u32 s74, 64"); a(f"s_cbranch_scc1 {L('dg')}")
        for k in range(4): a(f"v_mov_b32 v{20+k}, s{70+k}")
        a("global_store_dwordx4 v18, v[20:23], s[14:15] offset:48")
        a("s_mov_b64 exec, -1")
    a(f"s_branch {L('end')}")
    a.label(FAIL)
    a("v_mov_b32 v16, 0"); a("v_mov_b32 v17, 0xdead"); a("global_store_dword v16, v17, s[14:15] offset:252")
    a.label(L('end'))
    if prof:
        if prof == 3:
            a("s_memrealtime s[56:57]"); a("s_waitcnt lgkmcnt(0)"); a("s_mov_b32 s61, s56"); a("s_mov_b32 s62, s25"); a("s_mov_b32 s63, s90"); a("s_mov_b32 s64, s91"); a("s_mov_b32 s65, s89")
        if prof == 3:
            a("s_cmp_eq_u32 s21, 5"); a(f"s_cbranch_scc0 {L('nost')}")
            a("s_lshl_b32 s36, s20, 9"); a(f"s_add_u32 s36, s36, {203<<20}"); a("v_lshrrev_b32 v16, 1, v6"); a("v_add_u32 v16, s36, v16")
            a("global_store_dwordx2 v16, v[150:151], s[16:17]")
            a.label(L('nost'))
        if prof > 3:
            a("s_waitcnt lgkmcnt(0)")
            for k in range(8): a(f"s_sub_u32 s{60+k if k < 6 else 84+k}, s{66+2*k}, s66")
            a("s_mov_b32 s66, s90"); a("s_mov_b32 s67, s91")
        a("s_lshl_b32 s36, s20, 3"); a("s_add_u32 s36, s36, s21"); a("s_lshl_b32 s36, s36, 5"); a(f"s_add_u32 s36, s36, {200<<20}")
        a("v_mov_b32 v16, s36")
        for k in range(8): a(f"v_mov_b32 v{24+k}, s{60+k}")
        a("s_mov_b64 exec, 1")
        a("global_store_dwordx4 v16, v[24:27], s[16:17]"); a("global_store_dwordx4 v16, v[28:31], s[16:17] offset:16")
    a("s_endpgm")
```

```python
import sys, os
sys.path.insert(0, os.path.dirname(__file__))
from asmgen import *
import gemm
import rec2 as rec
from gemm import acc, R

NAME = "concat_heads__linear_attn_block__memory_aug_recurrent_mem_tr__prompt"
WS_O   = 84 << 20
WS_OA  = 116 << 20
WS_KVP = 124 << 20
OA_T = 65536
WS_INBOX = 142 << 20
D_OVF, D_AKV, D_KV, D_AO, D_O = 32, 36, 64, 96, 128
D_PROG = rec.DBG_PROG
WSPIN = 400000
TSET = "1111122002012012"
def setmask(k): return sum(1 << t for t in range(16) if int(TSET[t]) == k)
LOG2E = 0x3fb8aa3b
EPS = 0x358637bd
SCL = 0x3e0293ee


def load_ptrs(a):
    a("s_load_dwordx16 s[4:19], s[0:1], 0"); a("s_load_dwordx2 s[20:21], s[0:1], 64")
    a("s_load_dwordx4 s[24:27], s[0:1], 80"); a("s_load_dwordx2 s[28:29], s[0:1], 96")

def signal(a, off_sgpr_or_imm, val=1):
    lab = a.newlabel("sig")
    a("s_waitcnt vmcnt(0)"); a("s_barrier")
    a("s_cmp_lg_u32 s75, 0"); a(f"s_cbranch_scc1 {lab}")
    a(f"v_mov_b32 v16, {off_sgpr_or_imm}"); a(f"v_mov_b32 v17, {val}")
    a("s_mov_b64 exec, 1")
    a("global_atomic_add v16, v17, s[26:27] sc1")
    a("s_mov_b64 exec, -1")
    a.label(lab)

def wait_cnt(a, off, target, inv=True):
    lp, ok, done = a.newlabel("wl"), a.newlabel("wo"), a.newlabel("wd")
    a("s_cmp_lg_u32 s75, 0"); a(f"s_cbranch_scc1 {done}")
    a(f"v_mov_b32 v16, {off}")
    a.label(lp)
    a("global_load_dword v17, v16, s[26:27] sc1"); a("s_waitcnt vmcnt(0)")
    a(f"v_cmp_ne_u32 vcc, {target}, v17"); a(f"s_cbranch_vccz {ok}")
    a("s_sleep 8")
    a("s_add_u32 s46, s46, 1"); a(f"s_cmp_lt_u32 s46, {WSPIN}"); a(f"s_cbranch_scc1 {lp}")
    a("s_branch w_fail")
    a.label(ok)
    if inv: a("buffer_inv sc1"); a("s_waitcnt vmcnt(0)")
    a.label(done)
    a("s_barrier")

def learn_parity(a):
    lp, ok = a.newlabel("vl"), a.newlabel("vo")
    a.label(lp)
    a("s_waitcnt vmcnt(0)")
    a("v_readfirstlane_b32 s22, v18"); a("v_readfirstlane_b32 s34, v19")
    a("s_and_b32 s32, s22, 0xffff"); a("s_add_u32 s32, s32, s34"); a("s_cmp_eq_u32 s32, 256"); a(f"s_cbranch_scc1 {ok}")
    a("s_sleep 8")
    a(f"global_load_dwordx2 v[18:19], v16, s[26:27] offset:{rec.DBG_VOTE} sc1")
    a("s_add_u32 s46, s46, 1"); a(f"s_cmp_lt_u32 s46, {WSPIN}"); a(f"s_cbranch_scc1 {lp}")
    a("s_branch w_fail")
    a.label(ok)
    a("s_lshr_b32 s22, s22, 16"); a("s_cmp_gt_u32 s22, 64"); a("s_cselect_b32 s22, 1, 0")

def phi(a, regs):
    for i in range(0, len(regs), 8):
        b = regs[i:i+8]
        for k, r in enumerate(b): a(f"v_mul_f32 v{16+k}, s40, v{r}")
        for k, r in enumerate(b): a(f"v_min_f32 v{16+k}, 0, v{16+k}")
        for k, r in enumerate(b): a(f"v_exp_f32 v{16+k}, v{16+k}")
        for k, r in enumerate(b): a(f"v_max_f32 v{r}, 0, v{r}")
        for k, r in enumerate(b): a(f"v_add_f32 v{r}, v{r}, v{16+k}")
        for k, r in enumerate(b): a(f"v_add_f32 v{r}, s41, v{r}")

def pack_frags(a):
    for tt in range(4):
        for jj in range(4):
            s = acc(tt, 2*jj); d = 32 + (tt*4 + jj)*4
            for i in range(4): a(f"v_cvt_pk_bf16_f32 v{d+i}, v{s+2*i}, v{s+2*i+1}")
def frag(tt, jj): return R('v', 32 + (tt*4 + jj)*4)

PROF = False
def wstamp(a, k):
    if not PROF: return
    lab = a.newlabel("ws")
    a("s_cmp_lg_u32 s75, 0"); a(f"s_cbranch_scc1 {lab}")
    a("s_memrealtime s[56:57]"); a("s_waitcnt lgkmcnt(0)")
    a("s_lshl_b32 s58, s97, 7"); a("s_lshl_b32 s57, s59, 2"); a("s_add_u32 s58, s58, s57"); a(f"s_add_u32 s58, s58, {201 << 20}")
    a("v_mov_b32 v16, s58"); a("v_mov_b32 v17, s56"); a("global_store_dword v16, v17, s[28:29]")
    a("s_memtime s[56:57]"); a("s_waitcnt lgkmcnt(0)"); a("v_mov_b32 v17, s56"); a("v_add_u32 v16, 0x100000, v16"); a("global_store_dword v16, v17, s[28:29]")
    a("s_add_u32 s59, s59, 1")
    a.label(lab)

def tstamp(a, ev, v0=126, v1=127):
    if not PROF: return
    a("s_memrealtime s[56:57]"); a("s_waitcnt lgkmcnt(0)")
    a("s_lshl_b32 s58, s96, 2"); a(f"s_add_u32 s58, s58, {(204 << 20) + ev*8192}")
    a(f"v_mov_b32 v{v0}, s58"); a(f"v_mov_b32 v{v1}, s56"); a(f"global_store_dword v{v0}, v{v1}, s[28:29]")

def wside(a, dst, off, tmp):
    rec.near(a, dst, off, "s22", 28, tmp, kv=True)

def task_g1(a, MT, grp):
    gemm.setup_a_rowmajor(a, 2048, MT); gemm.setup_w(a, 8192)
    a("s_lshl_b32 s32, s31, 15"); a("s_add_u32 s80, s10, s32"); a("s_addc_u32 s81, s11, 0")
    a("s_cmp_lt_u32 s30, 16"); a("s_cselect_b32 s82, s16, s18"); a("s_cselect_b32 s83, s17, s19")
    a(f"s_cselect_b32 s33, {rec.WS_KX >> 20}, {rec.WS_VX >> 20}"); a("s_lshl_b32 s33, s33, 20")
    a("s_and_b32 s35, s30, 15"); a("s_lshl_b32 s32, s35, 9"); a("s_add_u32 s82, s82, s32"); a("s_addc_u32 s83, s83, 0")
    a("s_mov_b32 s66, 7")
    def first_signal(n):
        lab = a.newlabel("sig")
        a(f"s_waitcnt vmcnt({n})"); a("s_barrier")
        a("s_cmp_lg_u32 s75, 0"); a(f"s_cbranch_scc1 {lab}")
        a("v_mov_b32 v16, s88"); a("v_mov_b32 v17, 0")
        a("s_mov_b64 exec, 1"); a("global_store_dword v16, v17, s[28:29] sc1"); a("s_mov_b64 exec, -1")
        a.label(lab)
        wstamp(a, 0)
    ST = rec.PAR["ST"]
    if grp == 1:
        if ST == 0:
            gemm.prologue(a, MT); first_signal(8 + 2*MT)
        else:
            first_signal(0)
            if ST == 1:
                a("s_mul_i32 s32, s96, 3072"); a(f"s_add_u32 s32, s32, {1 << 20}"); a("v_lshlrev_b32 v20, 6, v0"); a("v_min_u32 v20, 3008, v20"); a("v_add_u32 v20, s32, v20")
                a("global_load_dword a95, v20, s[10:11]")
    gemm.call(a, f"core_T{MT}" + ("_m" if grp == 1 and ST == 0 else ""))
    if grp == 0: learn_parity(a)
    wstamp(a, 0)
    a("s_lshl_b32 s34, s35, 1"); a("s_add_u32 s34, s34, s73"); a("s_lshl_b32 s34, s34, 14"); a("s_add_u32 s33, s33, s34")
    a(f"s_mul_i32 s36, s72, {MT}"); a("s_add_u32 s36, s36, s31")
    a("v_lshlrev_b32 v19, 4, v0")
    for tt in range(MT):
        a(f"s_add_u32 s32, s36, {tt}"); a("s_and_b32 s34, s32, 1"); a("s_lshl_b32 s34, s34, 12"); a("s_lshr_b32 s32, s32, 1"); a("s_lshl_b32 s32, s32, 19")
        a("s_add_u32 s32, s32, s34"); a("s_add_u32 s32, s32, s33")
        rec.near_bit(a, "s34", "s32", "s22", True); a("s_add_u32 s32, s32, s34")
        a(f"v_add_u32 v{20+tt}, s32, v19")
    a("s_lshl_b32 s88, s23, 7"); a("s_lshl_b32 s32, s30, 2"); a("s_add_u32 s88, s88, s32"); a(f"s_add_u32 s88, s88, {rec.WS_FLAG + (96 + 4*grp)*128}")
    if grp == 0: gemm.epi_frag_store(a, "s[28:29]", "sc1", MT)
    else:
        a("s_mov_b32 s89, 1"); a("s_mov_b32 s77, 1")

def touches(a, parts):
    for i, (p, fix, per, first, n) in enumerate(parts):
        a(f"s_mul_i32 s32, s96, {per*1024}"); a(f"s_add_u32 s32, s32, {fix + first*1024}")
        a(f"s_add_u32 s{90+2*i}, s{p}, s32"); a(f"s_addc_u32 s{91+2*i}, s{p+1}, 0"); a(f"s_mov_b32 s{99+i}, {n*1024 - 64}")
    a("s_mov_b32 s98, 1")

def task_g4kv(a):
    def colmap(a, v):
        a(f"v_bfe_u32 v18, v{v}, 3, 1"); a("v_lshlrev_b32 v18, 11, v18")
        a(f"v_lshrrev_b32 v19, 4, v{v}"); a("v_lshl_add_u32 v18, v19, 7, v18")
        a(f"v_and_b32 v{v}, 7, v{v}"); a(f"v_lshl_add_u32 v{v}, v{v}, 4, v18")
    gemm.setup_a_rowmajor(a, 2048); gemm.setup_w(a, 6144, colmap)
    a("s_lshl_b32 s32, s31, 19"); a("s_add_u32 s80, s4, s32"); a("s_addc_u32 s81, s5, 0")
    a("s_lshl_b32 s32, s30, 8"); a("s_add_u32 s32, s32, 2048"); a("s_add_u32 s82, s6, s32"); a("s_addc_u32 s83, s7, 0")
    a("s_mov_b32 s66, 7")
    gemm.call(a, "core_N")
    wstamp(a, 0)
    a(f"s_mov_b32 s40, {LOG2E}"); a(f"s_mov_b32 s41, {EPS}")
    phi(a, [acc(tt, 0) + i for tt in range(4) for i in range(16)])
    for tp in range(2):
        for ft in range(8):
            x = acc(2*tp, ft); y = acc(2*tp+1, ft)
            a(f"v_cvt_pk_bf16_f32 v{x}, v{x}, v{x+1}"); a(f"v_cvt_pk_bf16_f32 v{x+1}, v{x+2}, v{x+3}")
            a(f"v_cvt_pk_bf16_f32 v{x+2}, v{y}, v{y+1}"); a(f"v_cvt_pk_bf16_f32 v{x+3}, v{y+2}, v{y+3}")
    for i in range(4): a(f"v_mov_b32 v{16+i}, 0x3f803f80")
    a("v_lshlrev_b32 v20, 4, v0"); a("s_mul_i32 s32, s73, 49152"); a("s_lshl_b32 s33, s72, 10"); a("s_add_u32 s32, s32, s33"); a("v_add_u32 v21, s32, v20")
    outb = lambda hd, et, dt: (64 if hd == 0 else 128) + (et*2 + dt)*4
    for tp in range(2):
        for hd in range(2):
            for et in range(3):
                for dt in range(2):
                    D = R('v', outb(hd, et, dt)); A = R('v', acc(2*tp, 2*hd + dt)); B = R('v', acc(2*tp, 4 + 2*hd + et)) if et < 2 else "v[16:19]"
                    a(f"v_mfma_f32_16x16x32_bf16 {D}, {A}, {B}, " + ("0" if tp == 0 else D))
    a("s_barrier")
    a("s_nop 7")
    for hd in range(2):
        for f in range(6):
            a(f"ds_write_b128 v21, {R('v', outb(hd, f >> 1, f & 1))} offset:{(hd*6 + f)*4096}")
    a("s_mul_i32 s32, s75, 12288"); a("v_add_u32 v21, s32, v20")
    a("s_waitcnt lgkmcnt(0)"); a("s_barrier")
    for k in range(3):
        for m in range(4): a(f"ds_read_b128 {R('v', 32 + (k*4 + m)*4)}, v21 offset:{k*4096 + m*1024}")
    a("s_lshl_b32 s32, s31, 5"); a("s_lshl_b32 s33, s30, 2"); a("s_add_u32 s32, s32, s33"); a("s_mul_i32 s32, s32, 6144")
    a("s_mul_i32 s33, s75, 3072"); a("s_add_u32 s32, s32, s33"); a(f"s_add_u32 s32, s32, {WS_KVP}"); a("v_add_u32 v22, s32, v20")
    a("s_waitcnt lgkmcnt(0)")
    for k in range(3):
        b = 32 + k*16
        for h in range(2):
            a(f"v_pk_add_f32 v[{b+2*h}:{b+2*h+1}], v[{b+2*h}:{b+2*h+1}], v[{b+4+2*h}:{b+5+2*h}]")
            a(f"v_pk_add_f32 v[{b+8+2*h}:{b+9+2*h}], v[{b+8+2*h}:{b+9+2*h}], v[{b+12+2*h}:{b+13+2*h}]")
        for h in range(2):
            a(f"v_pk_add_f32 v[{b+2*h}:{b+2*h+1}], v[{b+2*h}:{b+2*h+1}], v[{b+8+2*h}:{b+9+2*h}]")
        a(f"global_store_dwordx4 v22, {R('v', b)}, s[28:29] offset:{k*1024} sc1")
    signal(a, D_AKV)

def task_g4q(a):
    gemm.setup_a_rowmajor(a, 2048); gemm.setup_w(a, 6144)
    a("s_lshl_b32 s32, s31, 19"); a("s_add_u32 s80, s4, s32"); a("s_addc_u32 s81, s5, 0")
    a("s_lshl_b32 s32, s30, 9"); a("s_add_u32 s82, s6, s32"); a("s_addc_u32 s83, s7, 0")
    a("s_mov_b32 s66, 7")
    gemm.call(a, "core_T")
    wstamp(a, 0)
    a(f"s_mov_b32 s40, {LOG2E}"); a(f"s_mov_b32 s41, {EPS}")
    phi(a, list(range(32, 160)))
    pack_frags(a)
    wstamp(a, 0)
    wait_cnt(a, D_AKV, 64, False)
    wstamp(a, 0)
    a("v_lshlrev_b32 v16, 4, v0")
    for r in range(1, 8): a(f"v_add_u32 v{16+r}, {r*196608}, v16")
    a("s_lshl_b32 s32, s30, 3"); a("s_add_u32 s32, s32, s75"); a("s_mul_i32 s32, s32, 6144"); a(f"s_add_u32 s32, s32, {WS_KVP}")
    a("s_add_u32 s34, s28, s32"); a("s_addc_u32 s35, s29, 0")
    a("s_mul_i32 s32, s75, 3072"); a("v_add_u32 v24, s32, v16")
    for et in range(3):
        for r in range(8):
            for dt in range(2):
                a(f"global_load_dwordx4 {R('v', 96 + (r*2 + dt)*4)}, v{16+r}, s[34:35] offset:{dt*1024} sc1")
        a("s_add_u32 s34, s34, 2048"); a("s_addc_u32 s35, s35, 0")
        a("s_waitcnt vmcnt(0)")
        for step in (32, 16, 8):
            for i in range(0, step, 2):
                a(f"v_pk_add_f32 v[{96+i}:{97+i}], v[{96+i}:{97+i}], v[{96+step+i}:{97+step+i}]")
        for i in range(4): a(f"v_cvt_pk_bf16_f32 v{28+i}, v{96+2*i}, v{97+2*i}")
        a(f"ds_write_b128 v24, v[28:31] offset:{et*1024}")
    a("s_mul_i32 s32, s73, 12288"); a("v_add_u32 v24, s32, v16")
    a("s_waitcnt lgkmcnt(0)"); a("s_barrier")
    for i in range(12): a(f"ds_read_b128 {R('a', i*4)}, v24 offset:{i*1024}")
    gemm.lane_chunk(a, 25, 26)
    a("v_and_b32 v26, 15, v0"); a("v_lshl_add_u32 v25, v25, 4, v26"); a("v_lshlrev_b32 v25, 4, v25")
    a("s_lshl_b32 s32, s31, 4"); a("s_lshl_b32 s33, s72, 2"); a("s_add_u32 s32, s32, s33"); a(f"s_mul_i32 s32, s32, {OA_T}")
    a("s_lshl_b32 s33, s30, 14"); a("s_add_u32 s32, s32, s33"); a("s_lshl_b32 s33, s73, 12"); a("s_add_u32 s32, s32, s33"); a(f"s_add_u32 s32, s32, {WS_OA}")
    rec.near_bit(a, "s33", "s32", "s22", True); a("s_add_u32 s32, s32, s33")
    a("v_add_u32 v20, s32, v25")
    for tt in range(1, 4): a(f"v_add_u32 v{20+tt}, {tt*OA_T}, v20")
    a("s_waitcnt lgkmcnt(0)")
    for hd in range(4):
        for tt in range(4):
            b = 96 + tt*12
            for et in (2, 0, 1):
                a(f"v_mfma_f32_16x16x32_bf16 {R('v', b + et*4)}, {R('a', (hd*3 + et)*4)}, {frag(tt, hd)}, 0")
        a("s_nop 7")
        for tt in range(4):
            b = 96 + tt*12
            a(f"v_add_f32 v{b+8}, s41, v{b+8}")
        for tt in range(4):
            b = 96 + tt*12
            a(f"v_rcp_f32 v{b+8}, v{b+8}")
        for tt in range(4):
            b = 96 + tt*12
            a(f"v_mov_b32 v{b+9}, v{b+8}")
            for i in range(0, 8, 2): a(f"v_pk_mul_f32 v[{b+i}:{b+i+1}], v[{b+i}:{b+i+1}], v[{b+8}:{b+9}]")
            t = 144 + tt*4
            gemm.pack_swap(a, t, b)
            a(f"global_store_dwordx4 v{20+tt}, {R('v', t)}, s[28:29] offset:{hd*1024} sc1")
    a("s_lshl_b32 s32, s31, 2"); a(f"s_add_u32 s32, s32, {D_AO}")
    signal(a, "s32")

def out_offsets(a, MT):
    gemm.lane_chunk(a, 25, 26)
    a("v_and_b32 v26, 15, v0"); a("v_lshlrev_b32 v26, 12, v26"); a("v_lshl_add_u32 v20, v25, 4, v26")
    a(f"s_mul_i32 s32, s72, {MT*16*4096}"); a("s_lshl_b32 s33, s73, 8"); a("s_add_u32 s32, s32, s33"); a("v_add_u32 v20, s32, v20")
    for tt in range(1, MT): a(f"v_add_u32 v{20+tt}, {tt*65536}, v20")

def task_g5(a):
    gemm.setup_a_frag(a, OA_T); gemm.setup_w(a, 2048)
    a("s_lshl_b32 s32, s31, 2"); a(f"s_add_u32 s32, s32, {D_AO}")
    wait_cnt(a, "s32", 4)
    wstamp(a, 0)
    a(f"s_mul_i32 s32, s31, {16*OA_T}"); a(f"s_add_u32 s32, s32, {WS_OA}"); wside(a, 80, "s32", "s33")
    a("s_lshl_b32 s32, s30, 9"); a("s_add_u32 s82, s8, s32"); a("s_addc_u32 s83, s9, 0")
    a("s_mov_b32 s66, 7")
    gemm.call(a, "core_T")
    wstamp(a, 0)
    out_offsets(a, 4)
    a("s_lshl_b32 s32, s31, 20"); a("s_lshl_b32 s33, s30, 9"); a("s_add_u32 s32, s32, s33"); a("s_add_u32 s34, s24, s32"); a("s_addc_u32 s35, s25, 0")
    gemm.epi_out_store(a, "s[34:35]", 4, "" if "outpl" in rec.OPT else "sc1")

def task_wot(a):
    a("s_barrier")
    a("v_lshrrev_b32 v2, 4, v0"); a("v_lshlrev_b32 v2, 11, v2"); a("v_and_b32 v3, 15, v0"); a("v_lshl_add_u32 v2, v3, 4, v2")
    a("s_lshl_b32 s32, s30, 18"); a("s_lshl_b32 s33, s31, 17"); a("s_add_u32 s32, s32, s33"); a("s_lshl_b32 s33, s75, 8"); a("s_add_u32 s32, s32, s33"); a("v_add_u32 v2, s32, v2")
    a("s_lshl_b32 s43, s75, 14")
    for i in range(16):
        a(f"s_add_u32 m0, s43, {i*1024}"); a("s_nop 0")
        a("global_load_lds_dwordx4 v2, s[20:21]")
        a("v_add_u32 v2, 0x2000, v2")
    a("v_lshrrev_b32 v3, 2, v0"); a("v_lshlrev_b32 v3, 8, v3"); a("v_and_b32 v16, 3, v0"); a("v_lshl_add_u32 v3, v16, 4, v3"); a("v_add_u32 v3, s43, v3")
    a("s_lshl_b32 s32, s75, 21"); a("s_lshl_b32 s33, s30, 14"); a("s_add_u32 s32, s32, s33"); a("s_lshl_b32 s33, s31, 12"); a("s_add_u32 s32, s32, s33"); a(f"s_add_u32 s32, s32, {rec.WS_WOT}")
    wside(a, 34, "s32", "s33")
    a("v_lshlrev_b32 v20, 4, v0")
    for i in range(1, 4): a(f"v_add_u32 v{20+i}, {i*rec.WOT_CG}, v20")
    a("s_waitcnt vmcnt(0)")
    for cgl in range(4):
        for jl in range(2):
            for ct in range(2):
                b = 32 + ((cgl*2 + jl)*2 + ct)*4
                for lo in range(2):
                    a(f"ds_read_b64_tr_b16 {R('v', b + 2*lo, 2)}, v3 offset:{(32*jl + 16*lo)*256 + cgl*64 + ct*8}")
        a("s_waitcnt lgkmcnt(0)")
        for jl in range(2):
            for ct in range(2):
                a(f"global_store_dwordx4 v{20+cgl}, {R('v', 32 + ((cgl*2 + jl)*2 + ct)*4)}, s[34:35] offset:{jl*2048 + ct*1024} sc1")
    a("s_lshl_b32 s32, s30, 1"); a("s_add_u32 s32, s32, s31"); a("s_lshl_b32 s32, s32, 16"); a("s_lshr_b32 s33, s75, 1"); a("s_lshl_b32 s33, s33, 14"); a("s_add_u32 s32, s32, s33")
    a("s_and_b32 s33, s75, 1"); a("s_lshl_b32 s33, s33, 12"); a("s_add_u32 s32, s32, s33"); a(f"s_add_u32 s32, s32, {WS_INBOX}")
    wside(a, 34, "s32", "s33")
    for i in range(4): a(f"v_mov_b32 v{24+i}, -1")
    for i in range(4): a(f"global_store_dwordx4 v20, v[24:27], s[34:35] offset:{i*1024} sc1")
    lab = a.newlabel("sig")
    a("s_waitcnt vmcnt(0)"); a("s_barrier")
    a("s_cmp_lg_u32 s75, 0"); a(f"s_cbranch_scc1 {lab}")
    a("s_lshl_b32 s32, s31, 7"); a("s_lshl_b32 s33, s30, 2"); a("s_add_u32 s32, s32, s33"); a(f"s_add_u32 s32, s32, {rec.WS_FLAG + 108*128}")
    a("v_mov_b32 v16, s32"); a("v_mov_b32 v17, 0")
    a("s_mov_b64 exec, 1"); a("global_store_dword v16, v17, s[28:29] sc1"); a("s_mov_b64 exec, -1")
    a.label(lab)

def task_g3(a, MT):
    sh = MT - 1
    a("s_lshl_b32 s32, s30, 3"); a("s_add_u32 s32, s32, s75"); a("s_lshl_b32 s32, s32, 19"); a(f"s_add_u32 s32, s32, {rec.WS_WOT}")
    rec.near_bit(a, "s33", "s32", "s22", True); a("s_add_u32 s32, s32, s33")
    gemm.setup_a_frag(a, 262144, MT); gemm.setup_w_frag(a, "s32")
    wot_wait(a)
    lp, ok = a.newlabel("fl"), a.newlabel("fo")
    a("s_cmp_lg_u32 s75, 0"); a(f"s_cbranch_scc1 {ok}")
    a(f"s_lshl_b32 s32, s31, {8 + sh}"); a(f"s_add_u32 s32, s32, {rec.WS_FLAG}"); a("v_lshl_add_u32 v16, v0, 2, s32")
    a.label(lp)
    a("global_load_dword v17, v16, s[28:29] sc1"); a(f"global_load_dword v19, v16, s[28:29] offset:{256*sh} sc1"); a("s_waitcnt vmcnt(0)")
    a("v_or_b32 v17, v17, v19")
    a("v_cmp_ne_u32 vcc, 0, v17"); a(f"s_cbranch_vccz {ok}")
    a("s_sleep 8")
    a("s_add_u32 s46, s46, 1"); a(f"s_cmp_lt_u32 s46, {WSPIN}"); a(f"s_cbranch_scc1 {lp}")
    a("s_branch w_fail")
    a.label(ok)
    wstamp(a, 0)
    a(f"s_lshl_b32 s32, s31, {20 + sh}"); a(f"s_add_u32 s32, s32, {WS_O}"); wside(a, 80, "s32", "s33")
    a("s_mov_b64 s[82:83], s[28:29]")
    a("s_mov_b32 s66, 31")
    a("s_add_u32 s32, s31, s30"); a("s_and_b32 s78, s32, 3"); a("s_lshl_b32 s78, s78, 11"); a("s_and_b32 s33, s32, 4"); a("s_lshl_b32 s33, s33, 12"); a("s_or_b32 s78, s78, s33")
    a("s_and_b32 s79, s32, 1"); a("s_lshl_b32 s79, s79, 12"); a("s_and_b32 s33, s32, 6"); a("s_lshl_b32 s33, s33, 13"); a("s_or_b32 s79, s79, s33")
    gemm.call(a, f"core_F{MT}")
    a("v_and_b32 v26, 15, v0"); a("v_lshlrev_b32 v26, 12, v26"); a("v_lshrrev_b32 v25, 4, v0"); a("v_lshl_add_u32 v20, v25, 4, v26")
    a(f"s_lshl_b32 s32, s72, {16 + sh}"); a("s_lshl_b32 s33, s73, 8"); a("s_add_u32 s32, s32, s33"); a("v_add_u32 v20, s32, v20"); a("v_add_u32 v21, 0x10000, v20")
    a(f"s_lshl_b32 s32, s31, {18 + sh}"); a("s_lshl_b32 s33, s30, 9"); a("s_add_u32 s32, s32, s33"); a("s_add_u32 s32, s32, 2048"); a("s_add_u32 s34, s24, s32"); a("s_addc_u32 s35, s25, 0")
    gemm.epi_frag_store(a, "s[34:35]", "sc1", MT, 64)

def softmax_cols(a, regs, t):
    a(f"v_max3_f32 v{t}, v{regs[0]}, v{regs[1]}, v{regs[2]}")
    rest = regs[3:]
    while len(rest) >= 2:
        a(f"v_max3_f32 v{t}, v{t}, v{rest[0]}, v{rest[1]}"); rest = rest[2:]
    if rest: a(f"v_max_f32 v{t}, v{t}, v{rest[0]}")
    for sw in ("16", "32"):
        a(f"v_mov_b32 v{t+1}, v{t}"); a("s_nop 1"); a(f"v_permlane{sw}_swap_b32 v{t}, v{t+1}"); a(f"v_max_f32 v{t}, v{t}, v{t+1}")
    a(f"v_mul_f32 v{t}, s40, v{t}")
    for r in regs: a(f"v_fma_f32 v{r}, v{r}, s40, -v{t}")
    for r in regs: a(f"v_exp_f32 v{r}, v{r}")

def task_g2a(a):
    a("s_and_b32 s32, s75, 4"); a("s_and_b32 s33, s75, 1"); a("s_lshl_b32 s33, s33, 1"); a("s_or_b32 s32, s32, s33"); a("s_bfe_u32 s33, s75, 0x10001"); a("s_or_b32 s32, s32, s33")
    gemm.setup_a_rowmajor(a, 2048, 4, "s32"); gemm.setup_w(a, 8192)
    a("s_lshl_b32 s32, s31, 19"); a("s_add_u32 s80, s10, s32"); a("s_addc_u32 s81, s11, 0")
    a("s_lshl_b32 s32, s30, 9"); a("s_add_u32 s82, s14, s32"); a("s_addc_u32 s83, s15, 0")
    a("s_mov_b32 s66, 7")
    gemm.call(a, "core_T")
    wstamp(a, 0)
    a("s_lshl_b32 s38, s31, 3"); a("s_and_b32 s33, s72, 2"); a("s_add_u32 s38, s38, s33"); a("s_add_u32 s38, s38, s72"); a("s_mov_b32 s39, s38"); a("s_lshl_b32 s38, s38, 5")
    a("s_lshl_b32 s42, s30, 1"); a("s_add_u32 s42, s42, s73"); a("s_add_u32 s38, s38, s42")
    a("s_lshl_b32 s34, s38, 14"); a(f"s_add_u32 s34, s34, {rec.WS_KX}"); rec.near(a, 32, "s34", "s22", 28, "s35", kv=True)
    rec.v_from_k(a, 34, 32)
    a("v_lshlrev_b32 v16, 4, v0"); a("v_add_u32 v17, 0x1000, v16"); a("v_add_u32 v18, 0x100000, v16"); a("v_add_u32 v19, 0x101000, v16")
    a("s_mul_i32 s43, s75, 20480")
    kp, kok = a.newlabel("kp"), a.newlabel("ko")
    rec.kv_tile(a, "s47", "s39", "s48"); a("s_add_u32 s49, s39, 2"); rec.kv_tile(a, "s49", "s49", "s48"); a("s_sub_u32 s49, s49, s47")
    a("s_lshl_b32 s47, s47, 7"); a("s_lshl_b32 s48, s30, 2"); a("s_add_u32 s47, s47, s48"); a(f"s_add_u32 s47, s47, {rec.WS_FLAG + 96*128}")
    a("v_and_b32 v22, s49, v0"); a("v_lshl_add_u32 v22, v22, 7, s47"); a("v_mov_b32 v23, 0")
    a.label(kp)
    a("global_load_dword v26, v22, s[28:29] sc1"); a("global_load_dword v27, v22, s[28:29] offset:64 sc1")
    a(f"global_load_dword v24, v23, s[26:27] offset:{D_PROG} sc1"); a("s_waitcnt vmcnt(0)")
    a("v_or_b32 v26, v26, v27"); a("v_cmp_ne_u32 vcc, 0, v26"); a(f"s_cbranch_vccz {kok}")
    a("s_sleep 12")
    a("s_add_u32 s46, s46, 1"); a(f"s_cmp_lt_u32 s46, {WSPIN}"); a(f"s_cbranch_scc1 {kp}")
    a("s_branch w_fail")
    a.label(kok)
    def take_progress():
        a("v_readfirstlane_b32 s48, v24"); a("s_nop 0")
        a("s_max_u32 s48, s48, 1"); a("s_sub_u32 s48, s48, 1")
    take_progress()
    a("s_barrier")
    def m_wait(seg):
        lp, ok, nf = a.newlabel("ap"), a.newlabel("ao"), a.newlabel("nf")
        a.label(lp)
        a(f"s_cmp_lt_u32 {seg}, s48"); a(f"s_cbranch_scc1 {ok}")
        a("s_cmp_lt_u32 s48, 59"); a(f"s_cbranch_scc1 {nf}")
        a("s_sleep 2")
        a("global_load_dword v24, v31, s[28:29] sc1"); a("s_waitcnt vmcnt(0)")
        a("v_readlane_b32 s49, v24, 0"); a("v_readlane_b32 s50, v24, 1"); a("s_min_i32 s49, s49, s50")
        a("v_readlane_b32 s50, v24, 2"); a("s_min_i32 s49, s49, s50"); a("v_readlane_b32 s50, v24, 3"); a("s_min_i32 s49, s49, s50")
        a("s_add_u32 s49, s49, 1"); a("s_max_u32 s48, s48, s49")
        a("s_add_u32 s46, s46, 1"); a(f"s_cmp_lt_u32 s46, {WSPIN}"); a(f"s_cbranch_scc1 {lp}")
        a("s_branch w_fail")
        a.label(nf)
        a("s_sleep 8")
        a(f"global_load_dword v24, v23, s[26:27] offset:{D_PROG} sc1"); a("s_waitcnt vmcnt(0)")
        take_progress()
        a("s_add_u32 s46, s46, 1"); a(f"s_cmp_lt_u32 s46, {WSPIN}"); a(f"s_cbranch_scc1 {lp}")
        a("s_branch w_fail")
        a.label(ok)
    def kv_loads(sg):
        for kt in range(2):
            for jj in range(4):
                a(f"global_load_dwordx4 {R('a', sg*32 + (kt*4 + jj)*4)}, v{16 + sg*2 + kt}, s[32:33] offset:{jj*1024} sc1")
            a(f"s_add_u32 m0, s43, {sg*10240 + kt*4096}"); a("s_nop 0")
            for jj in range(4):
                a(f"global_load_lds_dwordx4 v{16 + sg*2 + kt}, s[34:35] offset:{jj*1024} sc1")
    a("s_and_b32 s47, s42, 15"); a("s_lshl_b32 s47, s47, 9"); a("s_lshr_b32 s49, s42, 4"); a("s_lshl_b32 s49, s49, 14"); a("s_add_u32 s47, s47, s49")
    a("s_xor_b32 s49, s22, 1"); a("s_lshl_b32 s49, s49, 13"); a("s_add_u32 s47, s47, s49"); a(f"s_add_u32 s47, s47, {rec.WS_HW}")
    a("v_and_b32 v31, 3, v0"); a("v_lshl_add_u32 v31, v31, 7, s47")
    a("s_max_u32 s54, s39, 5"); a("s_sub_u32 s54, s54, 5")
    m_wait("s54")
    kv_loads(0)
    pack_frags(a)
    a("s_lshr_b32 s50, s38, 1"); a("s_lshl_b32 s50, s50, 14"); a("s_and_b32 s51, s38, 1"); a("s_lshl_b32 s51, s51, 12"); a("s_add_u32 s50, s50, s51"); a(f"s_add_u32 s50, s50, {rec.WS_KMVM}")
    rec.near(a, 52, "s50", "s22", 28, "s51")
    a("v_and_b32 v28, 7, v0"); a("v_lshlrev_b32 v28, 4, v28"); a("v_lshrrev_b32 v24, 4, v0"); a("v_lshl_add_u32 v28, v24, 7, v28")
    XB = (108, 32)
    def m_loads(sg):
        for jj in range(4): a(f"global_load_dwordx4 {R('v', XB[sg] + 4*jj)}, v28, s[52:53] offset:{jj*512} sc1")
        for i in range(2): a(f"global_load_dwordx4 {R('v', XB[sg] + 16 + 4*i)}, v16, s[52:53] offset:{2048 + i*1024} sc1")
        a("s_add_u32 s52, s52, 0x80000"); a("s_addc_u32 s53, s53, 0")
    def seg_signal(seg):
        a(f"s_lshl_b32 s47, {seg}, 7"); a("s_lshl_b32 s49, s42, 2"); a("s_add_u32 s47, s47, s49"); a(f"s_add_u32 s47, s47, {rec.WS_FLAG}")
        a(f"s_lshr_b32 s50, {seg}, 1"); a("s_lshl_b32 s50, s50, 14"); a(f"s_and_b32 s49, {seg}, 1"); a("s_lshl_b32 s49, s49, 12"); a("s_add_u32 s50, s50, s49")
        a("s_lshl_b32 s49, s42, 7"); a("s_add_u32 s50, s50, s49"); a("s_xor_b32 s49, s22, 1"); a("s_lshl_b32 s49, s49, 13"); a("s_add_u32 s50, s50, s49")
        a(f"s_add_u32 s50, s50, {rec.WS_FLAG2 - 24*16384}")
        a(f"s_cmp_ge_u32 {seg}, 48"); a("s_cselect_b32 s47, s50, s47"); a("v_mov_b32 v29, s47")
        a("s_waitcnt vmcnt(0)")
        a("s_mov_b64 exec, 1")
        a("global_store_dword v29, v23, s[28:29] sc1")
        a("s_mov_b64 exec, -1")
    early, late = a.newlabel("e0"), a.newlabel("l0")
    a("s_cmp_lt_u32 s39, s48"); a(f"s_cbranch_scc1 {early}")
    kv_loads(1); m_wait("s39"); m_loads(0)
    a("s_waitcnt vmcnt(0)")
    a(f"s_branch {late}")
    a.label(early)
    m_loads(0); kv_loads(1)
    a.label(late)
    a("v_lshrrev_b32 v24, 4, v0"); a("v_lshlrev_b32 v24, 2, v24"); a("v_and_b32 v25, 15, v0"); a("v_mov_b32 v26, 0xff800000")
    for i in range(4):
        a(f"v_add_u32 v27, {i}, v24"); a("v_cmp_gt_u32 vcc, v27, v25"); a("s_nop 1"); a(f"v_cndmask_b32 v{96+i}, 0, v26, vcc")
    a("v_cmp_gt_u32 vcc, 32, v0"); a("s_nop 1")
    for i in range(4): a(f"v_cndmask_b32 v{100+i}, 0, v26, vcc")
    for i in range(4): a(f"v_mov_b32 v{104+i}, 0x3f803f80")
    a("v_and_b32 v24, 3, v0"); a("v_lshrrev_b32 v25, 2, v0")
    a("v_lshlrev_b32 v18, 4, v25"); a("v_lshl_add_u32 v18, v24, 8, v18"); a("v_add_u32 v18, s43, v18")
    a("v_and_b32 v25, 7, v25"); a("v_lshlrev_b32 v19, 4, v25"); a("v_lshl_add_u32 v19, v24, 7, v19"); a("v_add_u32 v19, s43, v19")
    a("v_add_u32 v20, s43, v16")
    a("v_mov_b32 v21, v16"); a("v_add_u32 v22, 0x40000, v21")
    a("s_lshl_b32 s50, s39, 19"); a("s_lshl_b32 s51, s30, 14"); a("s_add_u32 s50, s50, s51"); a("s_lshl_b32 s51, s73, 12"); a("s_add_u32 s50, s50, s51"); a(f"s_add_u32 s50, s50, {WS_O}")
    wside(a, 36, "s50", "s51")
    a(f"s_mov_b32 s40, {SCL}")
    a("s_add_u32 s54, s39, 2")
    for sg in range(2):
        lo = sg*10240
        xb = XB[sg]
        if sg == 0:
            a("s_waitcnt vmcnt(16)")
        else:
            have = a.newlabel("h1")
            a("s_cmp_eq_u32 s55, 1"); a(f"s_cbranch_scc1 {have}")
            seg_signal("s39"); m_wait("s54"); tstamp(a, 0, 2, 3); m_loads(1)
            a("s_waitcnt vmcnt(0)"); tstamp(a, 1, 2, 3)
            a.label(have)
            a("s_waitcnt vmcnt(8)")
        for i in range(2): a(f"ds_write_b128 v20, {R('v', xb + 16 + 4*i)} offset:{lo + 8192 + i*1024}")
        tiles = [(132, 0, 0, "v[96:99]"), (136, 2, 0, "v[100:103]"), (140, 0, 1, "0"), (144, 1, 1, "v[96:99]"), (148, 2, 1, "v[100:103]")]
        for jj in range(4):
            for d, kt, qt, C in tiles:
                A = R('v', xb + 4*jj) if kt == 2 else R('a', sg*32 + (kt*4 + jj)*4)
                a(f"v_mfma_f32_16x16x32_bf16 {R('v', d)}, {A}, {frag(2*sg + qt, jj)}, " + (C if jj == 0 else R('v', d)))
        if sg == 0:
            no = a.newlabel("n1")
            a("s_mov_b32 s55, 0")
            a("s_cmp_lt_u32 s54, s48"); a(f"s_cbranch_scc0 {no}")
            m_loads(1); a("s_mov_b32 s55, 1")
            a.label(no)
        def vread(jj):
            b = 64 + (jj & 1)*12
            for hf in range(2):
                for kt in range(2):
                    a(f"ds_read_b64_tr_b16 {R('a', b + hf*4 + kt*2, 2)}, v18 offset:{lo + kt*4096 + jj*1024 + hf*8}")
                a(f"ds_read_b64_tr_b16 {R('a', b + 8 + hf*2, 2)}, v19 offset:{lo + 8192 + jj*512 + hf*8}")
        vread(0)
        a("s_nop 3")
        softmax_cols(a, list(range(132, 140)), 24)
        softmax_cols(a, list(range(140, 152)), 24)
        a("s_nop 0")
        a("v_cvt_pk_bf16_f32 v108, v132, v133"); a("v_cvt_pk_bf16_f32 v109, v134, v135"); a("v_mov_b32 v110, 0"); a("v_mov_b32 v111, 0")
        a("v_cvt_pk_bf16_f32 v112, v136, v137"); a("v_cvt_pk_bf16_f32 v113, v138, v139")
        for i in range(4): a(f"v_cvt_pk_bf16_f32 v{116+i}, v{140+2*i}, v{141+2*i}")
        a("v_cvt_pk_bf16_f32 v114, v148, v149"); a("v_cvt_pk_bf16_f32 v115, v150, v151")
        P0 = ["v[108:111]", "v[116:119]"]; P1 = ["v[112:113]", "v[114:115]"]
        a("s_nop 1")
        for qt in range(2): a(f"v_mfma_f32_16x16x32_bf16 {R('v', 120 + 4*qt)}, v[104:107], {P0[qt]}, 0")
        a("s_nop 5")
        for qt in range(2): a(f"v_mfma_f32_16x16x16_bf16 {R('v', 120 + 4*qt)}, v[104:105], {P1[qt]}, {R('v', 120 + 4*qt)}")
        if sg == 1:
            done = a.newlabel("d0")
            a("s_cmp_eq_u32 s55, 1"); a(f"s_cbranch_scc0 {done}")
            seg_signal("s39")
            a.label(done)
        a("s_nop 7")
        a("v_rcp_f32 v24, v120"); a("v_rcp_f32 v26, v124"); a("s_nop 0"); a("v_mov_b32 v25, v24"); a("v_mov_b32 v27, v26")
        for jj in range(4):
            b = 64 + (jj & 1)*12
            if jj < 3:
                vread(jj + 1); a("s_waitcnt lgkmcnt(6)")
            else:
                a("s_waitcnt lgkmcnt(0)")
            for qt in range(2):
                for hf in range(2):
                    a(f"v_mfma_f32_16x16x32_bf16 {R('v', 132 + (qt*2 + hf)*4)}, {R('a', b + hf*4)}, {P0[qt]}, 0")
            a("s_nop 2")
            for qt in range(2):
                for hf in range(2):
                    D = R('v', 132 + (qt*2 + hf)*4)
                    a(f"v_mfma_f32_16x16x16_bf16 {D}, {R('a', b + 8 + hf*2, 2)}, {P1[qt]}, {D}")
            a("s_nop 7")
            for qt in range(2):
                o = 132 + qt*8
                for i in range(0, 8, 2): a(f"v_pk_mul_f32 v[{o+i}:{o+i+1}], v[{o+i}:{o+i+1}], v[{24+2*qt}:{25+2*qt}]")
                for i in range(4): a(f"v_cvt_pk_bf16_f32 v{152 + 4*qt + i}, v{o+2*i}, v{o+2*i+1}")
                a(f"global_store_dwordx4 v{21+qt}, {R('v', 152 + 4*qt)}, s[36:37] offset:{jj*1024} sc1")
        if sg == 0:
            a("s_add_u32 s36, s36, 0x100000"); a("s_addc_u32 s37, s37, 0")
    tstamp(a, 2, 2, 3)
    seg_signal("s54")
    tstamp(a, 3, 2, 3)

def sreg(i): return R('a', 4*i) if i < 24 else R('v', 128 + 4*(i - 24))
def wot_wait(a):
    lp, ok = a.newlabel("tl"), a.newlabel("to")
    a("s_cmp_lg_u32 s75, 0"); a(f"s_cbranch_scc1 {ok}")
    a("v_lshlrev_b32 v18, 2, v0"); a(f"v_add_u32 v18, {rec.WS_FLAG + 108*128}, v18")
    a.label(lp)
    a("global_load_dword v19, v18, s[28:29] sc1"); a("s_waitcnt vmcnt(0)")
    a("v_cmp_ne_u32 vcc, 0, v19"); a(f"s_cbranch_vccz {ok}")
    a("s_sleep 8")
    a("s_add_u32 s46, s46, 1"); a(f"s_cmp_lt_u32 s46, {WSPIN}"); a(f"s_cbranch_scc1 {lp}")
    a("s_branch w_fail")
    a.label(ok)

def task_stream(a):
    wot_wait(a)
    a("s_barrier")
    a("s_and_b32 s42, s45, 1")
    a("s_lshl_b32 s43, s42, 3"); a("s_add_u32 s43, s43, s75")
    a("s_lshr_b32 s32, s45, 1"); a("s_lshl_b32 s32, s32, 20"); a("s_lshl_b32 s33, s43, 15"); a("s_add_u32 s32, s32, s33"); a(f"s_add_u32 s32, s32, {rec.WS_WOT}")
    rec.near_bit(a, "s33", "s32", "s22", True); a("s_add_u32 s32, s32, s33")
    a("v_lshlrev_b32 v10, 4, v0"); a("v_add_u32 v6, s32, v10")
    for cg in range(2):
        for q in range(4):
            a(f"v_add_u32 v2, {cg*rec.WOT_CG + (q >> 1)*16384 + (q & 1)*4096}, v6")
            for j in range(4):
                k = q*2 + (j >> 1)
                a(f"global_load_dwordx4 {sreg(k*4 + cg*2 + (j & 1))}, v2, s[28:29] offset:{j*1024} sc1")
    a("s_lshl_b32 s32, s43, 14"); a("v_add_u32 v2, s32, v10"); a("v_add_u32 v3, 0x1000, v2"); a("v_add_u32 v4, 0x40000, v2"); a("v_add_u32 v5, 0x41000, v2")
    a("s_lshl_b32 s33, s75, 13"); a("v_add_u32 v11, s33, v10")
    a("s_lshr_b32 s33, s75, 2"); a("s_xor_b32 s47, s33, s42")
    a("s_xor_b32 s36, s45, s47"); a("s_and_b32 s33, s36, 1"); a("s_lshl_b32 s33, s33, 12"); a("s_lshr_b32 s36, s36, 1"); a("s_lshl_b32 s36, s36, 14"); a("s_add_u32 s36, s36, s33")
    a("s_and_b32 s33, s75, 3"); a("s_lshl_b32 s33, s33, 10"); a("s_add_u32 s36, s36, s33"); a("v_add_u32 v1, s36, v10")
    a("s_bfe_u32 s32, s75, 0x10001"); a("s_lshl_b32 s36, s32, 12"); a("s_lshr_b32 s33, s75, 2"); a("s_lshl_b32 s33, s33, 11"); a("s_add_u32 s36, s36, s33")
    a("s_and_b32 s33, s75, 1"); a("s_lshl_b32 s37, s33, 10"); a("s_add_u32 s36, s36, s37"); a("v_add_u32 v12, s36, v10")
    a("s_lshl_b32 s32, s32, 16"); a("s_lshl_b32 s33, s33, 3"); a("s_add_u32 s32, s32, s33"); a("s_lshl_b32 s33, s45, 6"); a("s_add_u32 s32, s32, s33"); a(f"s_add_u32 s32, s32, {2048 + 96*65536}")
    a("v_and_b32 v13, 15, v0"); a("v_lshlrev_b32 v13, 12, v13"); a("v_lshrrev_b32 v14, 4, v0"); a("v_lshl_add_u32 v13, v14, 4, v13"); a("v_add_u32 v13, s32, v13")
    a("v_and_b32 v9, 1, v0"); a("v_lshlrev_b32 v9, 7, v9"); a("s_lshl_b32 s32, s43, 8"); a("s_xor_b32 s33, s22, 1"); a("s_lshl_b32 s33, s33, 13"); a("s_add_u32 s32, s32, s33")
    a(f"s_add_u32 s32, s32, {rec.WS_FLAG2}"); a("v_add_u32 v9, s32, v9")
    a("v_mov_b32 v8, 0")
    wstamp(a, 0)
    def pick(dst):
        a(f"s_ff1_i32_b32 {dst}, s34"); a(f"s_bitset0_b32 s34, {dst}")
    def base(dst, item):
        a(f"s_and_b32 s32, {item}, 15"); a("s_lshl_b32 s32, s32, 19"); a(f"s_add_u32 s32, s32, {WS_O + 96*262144}"); wside(a, dst, "s32", "s33")
    def inbox(item):
        a(f"s_lshl_b32 s32, {item}, 18"); a(f"s_add_u32 s32, s32, {WS_INBOX}"); wside(a, 50, "s32", "s33")
    def poll(item):
        a(f"s_bfe_u32 s32, {item}, 0x30001"); a("s_lshl_b32 s32, s32, 14"); a(f"s_and_b32 s33, {item}, 1"); a("s_lshl_b32 s33, s33, 12"); a("s_add_u32 s32, s32, s33")
        a("v_add_u32 v14, s32, v9")
        a("global_load_dword v15, v14, s[28:29] sc1")
    def oload(k):
        a(f"global_load_dwordx4 {R('v', 32 + k*4)}, v{2 + (k >> 2)}, s[38:39] offset:{(k & 3)*1024} sc1")
    def sum8(item):
        lab, j = a.newlabel("fn"), a.newlabel("fj")
        a("s_waitcnt lgkmcnt(0)"); a("s_barrier")
        a("ds_read_b128 v[112:115], v12")
        for part in ((1, 2, 3, 4), (5, 6, 7)):
            for i, m in enumerate(part): a(f"ds_read_b128 v[{96+4*i}:{99+4*i}], v12 offset:{m*8192}")
            for i, m in enumerate(part):
                a(f"s_waitcnt lgkmcnt({len(part) - 1 - i})")
                for h in range(2): a(f"v_pk_add_f32 v[{112+2*h}:{113+2*h}], v[{112+2*h}:{113+2*h}], v[{96+4*i+2*h}:{97+4*i+2*h}]")
        a("v_xor_b32 v12, 0x10000, v12")
        a("s_cmp_eq_u32 s47, 0"); a(f"s_cbranch_scc1 {lab}")
        inbox(item)
        for i in range(4): a(f"v_min_u32 v{112+i}, -2, v{112+i}")
        a("global_store_dwordx4 v1, v[112:115], s[50:51] sc1")
        a(f"s_branch {j}")
        a.label(lab)
        a(f"s_mov_b32 s52, {item}")
        a.label(j)
    def ask():
        no = a.newlabel("an")
        a("s_cmp_lt_i32 s52, 0"); a(f"s_cbranch_scc1 {no}")
        inbox("s52")
        a("global_load_dwordx4 v[120:123], v1, s[50:51] sc1")
        for i in range(4): a(f"v_mov_b32 v{116+i}, v{112+i}")
        a("s_mov_b32 s53, s52"); a("s_mov_b32 s52, -1")
        a.label(no)
    def join(wait):
        lp, ok, no = a.newlabel("jl"), a.newlabel("jo"), a.newlabel("jn")
        a("s_cmp_lt_i32 s53, 0"); a(f"s_cbranch_scc1 {no}")
        a("s_lshl_b32 s32, s53, 17"); a("s_add_u32 s40, s24, s32"); a("s_addc_u32 s41, s25, 0")
        if wait: a("s_waitcnt vmcnt(0)")
        a.label(lp)
        a("v_max3_u32 v124, v120, v121, v122"); a("v_max_u32 v124, v124, v123"); a("v_cmp_eq_u32 vcc, -1, v124"); a(f"s_cbranch_vccz {ok}")
        a("global_load_dwordx4 v[120:123], v1, s[50:51] sc1"); a("s_waitcnt vmcnt(0)")
        a("s_add_u32 s46, s46, 1"); a(f"s_cmp_lt_u32 s46, {WSPIN}"); a(f"s_cbranch_scc1 {lp}")
        a("s_branch w_fail")
        a.label(ok)
        a("v_pk_add_f32 v[116:117], v[116:117], v[120:121]"); a("v_pk_add_f32 v[118:119], v[118:119], v[122:123]")
        a("v_cvt_pk_bf16_f32 v120, v116, v117"); a("v_cvt_pk_bf16_f32 v121, v118, v119")
        a("global_store_dwordx2 v13, v[120:121], s[40:41]")
        a("s_mov_b32 s53, -1")
        a.label(no)
    def pending():
        lab = a.newlabel("pd")
        a("s_cmp_lt_i32 s35, 0"); a(f"s_cbranch_scc1 {lab}")
        sum8("s35")
        a.label(lab)
    def mm(k, wait):
        a(f"s_waitcnt vmcnt({wait})")
        for ct in range(4):
            D = R('v', 16 + ct*4)
            a(f"v_mfma_f32_16x16x32_bf16 {D}, {sreg((k & 7)*4 + ct)}, {R('v', 32 + k*4)}, " + ("0" if k & 7 == 0 else D))
    def park(tt):
        a("s_nop 4")
        for f in range(4): a(f"ds_write_b128 v11, {R('v', 16 + f*4)} offset:{tt*4096 + f*1024}")
        if tt: a("v_xor_b32 v11, 0x10000, v11")
        a("s_waitcnt lgkmcnt(0)")
    pick("s31"); pick("s36")
    a("s_mov_b32 s37, 0"); a("s_mov_b32 s52, -1"); a("s_mov_b32 s53, -1"); a("s_mov_b64 s[50:51], s[28:29]")
    a.label("st_wait")
    a("s_add_u32 s32, s31, 49"); a("s_min_u32 s32, s32, 63"); a("s_cmp_le_u32 s32, s37"); a("s_cbranch_scc1 st_near")
    a("s_sleep 6")
    a(f"global_load_dword v7, v8, s[26:27] offset:{D_PROG} sc1"); a("s_waitcnt vmcnt(0)")
    a("v_readfirstlane_b32 s37, v7")
    a("s_branch st_more")
    a.label("st_near")
    poll("s31"); a("s_waitcnt vmcnt(0)")
    a("v_cmp_ne_u32 vcc, 0, v15"); a("s_cbranch_vccz st_rdy")
    a("s_sleep 2")
    a.label("st_more")
    a("s_add_u32 s46, s46, 1"); a(f"s_cmp_lt_u32 s46, {WSPIN}"); a("s_cbranch_scc1 st_wait")
    a("s_branch w_fail")
    a.label("st_rdy")
    tstamp(a, 4)
    base(38, "s31")
    poll("s36")
    for k in range(16): oload(k)
    a("s_mov_b32 s35, -1")
    a.label("st_item")
    a("s_mov_b32 s30, s31"); a("s_mov_b32 s31, s36"); pick("s36")
    a("s_waitcnt vmcnt(16)")
    a("v_cmp_ne_u32 vcc, 0, v15")
    a("s_cmp_lt_i32 s31, 0"); a("s_cbranch_scc1 st_slow")
    a("s_cbranch_vccnz st_slow")
    base(38, "s31")
    poll("s36")
    for k in range(16):
        mm(k, 16)
        if k == 14: join(False); ask()
        oload(k)
        if k == 2: pending()
        if k == 7: park(0)
    park(1)
    a("s_mov_b32 s35, s30")
    a("s_branch st_item")
    a.label("st_slow")
    pending()
    for k in range(16):
        mm(k, 15 - k)
        if k == 7: park(0)
    tstamp(a, 5)
    park(1); join(False); ask(); sum8("s30"); join(True); ask(); join(True)
    tstamp(a, 6)
    a("s_cmp_lt_i32 s31, 0"); a("s_cbranch_scc0 st_wait")

def emit_mega(a, prof=False):
    kernel_begin(a, NAME + "_kernel")
    a("s_cmp_ge_u32 s2, 256"); a("s_cbranch_scc1 w_exit")
    if "span" in rec.OPT: a("s_memrealtime s[100:101]")
    load_ptrs(a)
    a("s_getreg_b32 s44, hwreg(HW_REG_XCC_ID)"); a("s_and_b32 s44, s44, 7")
    if "fakex" in rec.OPT:
        a("s_bitcmp1_b32 s2, 3"); a("s_cbranch_scc0 fake_done")
        a("s_cmp_eq_u32 s44, 1"); a("s_cselect_b32 s44, 5, s44"); a("s_cmp_eq_u32 s44, 2"); a("s_cselect_b32 s44, 7, s44")
        a.label("fake_done")
    a("v_lshrrev_b32 v1, 6, v0"); a("v_mov_b32 v2, 0"); a("s_mov_b32 s46, 0")
    a("v_readfirstlane_b32 s75, v1")
    a("s_waitcnt lgkmcnt(0)")
    a("s_add_u32 s28, s28, 0x1fffff"); a("s_addc_u32 s29, s29, 0"); a("s_and_b32 s28, s28, 0xffe00000")
    if "nowarm" not in rec.OPT:
        a("s_cmp_eq_u32 s75, 2"); a("s_cbranch_scc0 no_warm")
        a("s_getpc_b64 s[30:31]")
        a.label("warm_pc")
        a("s_lshr_b32 s32, s2, 3"); a("s_lshl_b32 s32, s32, 12"); a("v_and_b32 v3, 63, v0"); a("v_lshl_add_u32 v3, v3, 6, s32")
        a("v_min_u32 v3, code_end-warm_pc-4, v3"); a("v_and_b32 v3, -4, v3")
        a("global_load_dword a95, v3, s[30:31]")
        a.label("no_warm")
    a("s_cmp_eq_u32 s75, 1"); a("s_cbranch_scc0 no_probe")
    a("s_mov_b32 s47, 0")
    a("s_cmp_lt_u32 s44, 4"); a("s_cbranch_scc0 probe_done")
    a(f"s_add_u32 s30, s28, {rec.WS_PROBE}"); a("s_addc_u32 s31, s29, 0")
    a("s_lshr_b32 s32, s2, 5"); a("s_and_b32 s33, s32, 1"); a("s_lshr_b32 s32, s32, 1"); a("s_lshl_b32 s32, s32, 2"); a("s_add_u32 s32, s32, s33"); a("s_lshl_b32 s32, s32, 12")
    a("s_and_b32 s33, s2, 31"); a("s_lshl_b32 s33, s33, 7"); a("s_add_u32 s32, s32, s33")
    a("v_mov_b32 v3, s32")
    a("s_mov_b64 exec, 1")
    a("s_mov_b32 s38, -1"); a("s_mov_b32 s39, -1"); a("s_mov_b32 s40, 6")
    a.label("probe_loop")
    a("s_memtime s[34:35]"); a("s_waitcnt lgkmcnt(0)")
    a("global_store_dword v3, v2, s[30:31] sc1"); a("s_waitcnt vmcnt(0)")
    a("s_memtime s[36:37]"); a("s_waitcnt lgkmcnt(0)")
    a("s_sub_u32 s36, s36, s34"); a("s_min_u32 s36, s36, s38"); a("s_mov_b32 s38, s39"); a("s_mov_b32 s39, s36")
    a("v_xor_b32 v3, 0x2000, v3")
    a("s_sub_u32 s40, s40, 1"); a("s_cmp_lg_u32 s40, 0"); a("s_cbranch_scc1 probe_loop")
    a("s_mov_b64 exec, -1")
    a("s_cmp_lt_u32 s39, s38"); a("s_cselect_b32 s47, 1, 0")
    a.label("probe_done")
    a("v_mov_b32 v3, s47"); a("ds_write_b32 v2, v3 offset:4")
    a.label("no_probe")
    a("s_cmp_lg_u32 s75, 0"); a("s_cbranch_scc1 role_wait")
    a("s_and_b32 s32, s44, 3"); a("s_lshl_b32 s32, s32, 2"); a("s_and_b32 s33, s44, 4"); a("s_lshl_b32 s33, s33, 5"); a("s_add_u32 s32, s32, s33")
    a("v_mov_b32 v3, s32"); a("v_mov_b32 v4, 1")
    a("s_mov_b64 exec, 1")
    a("global_atomic_add v5, v3, v4, s[26:27] sc0 sc1"); a("s_waitcnt vmcnt(0)")
    a("v_readfirstlane_b32 s45, v5")
    a("s_cmp_lt_u32 s45, 32"); a("s_cbranch_scc1 role_have")
    a(f"v_mov_b32 v3, {D_OVF}")
    a("global_atomic_add v5, v3, v4, s[26:27] sc0 sc1"); a("s_waitcnt vmcnt(0)")
    a("v_readfirstlane_b32 s45, v5")
    a.label("role_poll")
    a("global_load_dwordx4 v[8:11], v2, s[26:27] sc1"); a("global_load_dwordx4 v[12:15], v2, s[26:27] offset:128 sc1"); a("s_waitcnt vmcnt(0)")
    a("s_mov_b32 s33, 0")
    for i in range(8):
        a(f"v_readfirstlane_b32 s{34+i}, v{8+i}"); a(f"s_add_u32 s33, s33, s{34+i}")
    a("s_cmp_eq_u32 s33, 256"); a("s_cbranch_scc1 role_pick")
    a("s_sleep 8"); a("s_add_u32 s46, s46, 1"); a(f"s_cmp_lt_u32 s46, {WSPIN}"); a("s_cbranch_scc1 role_poll")
    a("s_mov_b64 exec, -1"); a("s_branch w_fail")
    a.label("role_pick")
    for i in range(8):
        a(f"s_min_u32 s33, s{34+i}, 32"); a("s_add_u32 s45, s45, s33"); a(f"s_mov_b32 s44, {i}")
        if i < 7:
            a("s_cmp_lt_u32 s45, 32"); a("s_cbranch_scc1 role_have"); a("s_sub_u32 s45, s45, 32")
    a.label("role_have")
    a("s_lshl_b32 s32, s44, 5"); a("s_or_b32 s32, s32, s45"); a("v_mov_b32 v3, s32")
    a("ds_write_b32 v2, v3")
    a("s_mov_b64 exec, -1")
    a.label("role_wait")
    a("s_waitcnt lgkmcnt(0)"); a("s_barrier")
    a("ds_read_b64 v[4:5], v2"); a("s_waitcnt lgkmcnt(0)")
    a("v_readfirstlane_b32 s32, v4"); a("v_readfirstlane_b32 s47, v5")
    a("s_cmp_lg_u32 s75, 0"); a("s_cbranch_scc1 voted")
    a("s_cmp_ge_u32 s32, 128"); a("s_cbranch_scc1 voted")
    a("s_and_b32 s47, s47, 1"); a("s_lshl_b32 s47, s47, 16"); a("s_or_b32 s47, s47, 1"); a("v_mov_b32 v3, s47")
    a("s_mov_b64 exec, 1")
    a(f"global_atomic_add v2, v3, s[26:27] offset:{rec.DBG_VOTE} sc1")
    a("s_mov_b64 exec, -1")
    a.label("voted")
    a("s_barrier")
    if "span" in rec.OPT:
        a("s_and_b32 s98, s2, 0x38"); a("s_or_b32 s98, s98, s75"); a("s_cmp_lg_u32 s98, 0"); a("s_cbranch_scc1 span1")
        a("s_memrealtime s[98:99]"); a("s_waitcnt lgkmcnt(0)"); a("s_not_b32 s100, s100"); a("v_mov_b32 v4, s100"); a("v_mov_b32 v5, s98")
        a("s_mov_b64 exec, 1"); a("global_atomic_umax v2, v4, s[26:27] offset:48 sc1"); a("global_atomic_umax v2, v5, s[26:27] offset:52 sc1"); a("s_mov_b64 exec, -1")
        a.label("span1")
    a("s_and_b32 s45, s32, 31"); a("s_bfe_u32 s44, s32, 0x30005")
    a("s_cmp_ge_u32 s44, 4"); a("s_cbranch_scc1 worker")
    a("s_lshl_b32 s18, s44, 3"); a("s_lshr_b32 s19, s45, 2"); a("s_add_u32 s18, s18, s19"); a("s_and_b32 s19, s45, 3")
    rec.emit_rec(a, "rec", prof=prof, kvwait=True)
    a.label("worker")
    a("s_sub_u32 s44, s44, 4")
    a("v_and_b32 v0, 63, v0")
    gemm.setup_common(a)
    a("s_mov_b32 s88, 0"); a("s_mov_b32 s89, 0"); a("s_mov_b32 s77, 0")
    a("s_mov_b32 s59, 0") if PROF else None
    a("s_lshl_b32 s96, s44, 5"); a("s_add_u32 s96, s96, s45"); a("s_lshl_b32 s96, s96, 3"); a("s_add_u32 s96, s96, s75")
    a("s_lshl_b32 s32, s44, 3"); a("s_lshr_b32 s44, s45, 3"); a("s_and_b32 s45, s45, 7"); a("s_add_u32 s45, s45, s32")
    if PROF: a("s_lshl_b32 s97, s44, 5"); a("s_add_u32 s97, s97, s45")
    wstamp(a, 0)
    def g1(grp):
        MT, first = ((2, 0), (3, 32), (3, 80))[grp]
        a("s_mov_b32 s23, s44")
        a("s_mov_b32 s30, s45"); a(f"s_mul_i32 s31, s23, {4*MT}"); a(f"s_add_u32 s31, s31, {first}")
        task_g1(a, MT, grp)
    def tile_2x4():
        a("s_bfe_u32 s30, s45, 0x10003"); a("s_lshl_b32 s30, s30, 1"); a("s_and_b32 s32, s45, 1"); a("s_add_u32 s30, s30, s32")
        a("s_lshr_b32 s31, s45, 4"); a("s_lshl_b32 s31, s31, 2"); a("s_bfe_u32 s32, s45, 0x20001"); a("s_add_u32 s31, s31, s32")
    touches(a, [(10, 1 << 20, 3, 0, 3)]*3)
    if rec.PAR["ST"] == 1: a("s_mov_b32 s98, 0")
    g1(0)
    touches(a, [(4, 0, 4, 0, 4), (6, 0, 6, 0, 4), (6, 0, 6, 4, 2)])
    g1(1)
    touches(a, [(14, 0, 8, 0, 4), (14, 0, 8, 4, 4), (8, 0, 2, 0, 2)])
    a("s_cmp_lt_u32 s44, 2"); a("s_cbranch_scc1 w_g1c")
    tile_2x4()
    a("s_and_b32 s32, s44, 1"); a("s_lshl_b32 s32, s32, 2"); a("s_add_u32 s30, s30, s32")
    task_g4kv(a)
    wstamp(a, 0)
    a("s_cmp_eq_u32 s44, 2"); a("s_cbranch_scc0 w_g1c")
    a("s_mov_b32 s30, s45"); a("s_mov_b32 s31, 0")
    a.label("w_wot")
    task_wot(a)
    a("s_add_u32 s31, s31, 1"); a("s_cmp_lt_u32 s31, 2"); a("s_cbranch_scc1 w_wot")
    wstamp(a, 0)
    a.label("w_g1c")
    g1(2)
    a.label("w_g2a")
    a("s_lshr_b32 s30, s45, 1"); a("s_and_b32 s31, s45, 1"); a("s_lshr_b32 s32, s44, 1"); a("s_xor_b32 s32, s32, s44"); a("s_lshl_b32 s32, s32, 1"); a("s_add_u32 s31, s31, s32")
    task_g2a(a)
    wstamp(a, 0)
    a("s_cmp_eq_u32 s44, 0"); a("s_cbranch_scc1 w_g5")
    a("s_cmp_eq_u32 s44, 2"); a("s_cbranch_scc1 w_set2")
    a("s_lshr_b32 s30, s45, 3")
    a("s_cmp_eq_u32 s44, 3"); a("s_cbranch_scc1 w_f1")
    a("s_and_b32 s31, s45, 7")
    task_g3(a, 2)
    wstamp(a, 0)
    a(f"s_mov_b32 s34, {setmask(1):#x}")
    a("s_branch w_stream")
    a.label("w_f1")
    a("s_lshl_b32 s31, s31, 2"); a("s_bfe_u32 s32, s45, 0x20001"); a("s_add_u32 s31, s31, s32")
    task_g3(a, 1)
    wstamp(a, 0)
    a.label("w_set2")
    a("s_bitcmp1_b32 s45, 0"); a("s_cbranch_scc1 w_exit")
    a("s_and_b32 s32, s44, 1"); a("s_add_u32 s45, s45, s32")
    a(f"s_mov_b32 s34, {setmask(2):#x}")
    a("s_branch w_stream")
    a.label("w_g5")
    tile_2x4()
    task_g4q(a)
    wstamp(a, 0)
    task_g5(a)
    wstamp(a, 0)
    a(f"s_mov_b32 s34, {setmask(0):#x}")
    a.label("w_stream")
    task_stream(a)
    wstamp(a, 0)
    if "span" in rec.OPT:
        a("s_and_b32 s98, s45, 7"); a("s_or_b32 s98, s98, s75"); a("s_cmp_lg_u32 s98, 0"); a("s_cbranch_scc1 w_exit")
        a("s_waitcnt vmcnt(0)"); a("s_memrealtime s[98:99]"); a("s_waitcnt lgkmcnt(0)"); a("v_mov_b32 v5, s98"); a("v_mov_b32 v2, 0")
        a("s_mov_b64 exec, 1"); a("global_atomic_umax v2, v5, s[26:27] offset:60 sc1")
    a("s_endpgm")
    a.label("w_fail")
    a("v_mov_b32 v16, 0"); a("v_mov_b32 v17, 0xdead"); a("global_store_dword v16, v17, s[26:27] offset:248")
    a.label("w_exit")
    a("s_endpgm")
    gemm.emit_core(a, "core_T", 'T')
    gemm.emit_core(a, "core_N", 'N')
    gemm.emit_core(a, "core_T3", 'T', MT=3)
    gemm.emit_core(a, "core_T2", 'T', MT=2)
    gemm.WFLAG = "sc1"; gemm.WFRAG = True
    gemm.emit_core(a, "core_F1", 'T', MT=1, aflag="sc1")
    gemm.emit_core(a, "core_F2", 'T', MT=2, aflag="sc1")
    gemm.WFLAG = ""; gemm.WFRAG = False
    a.label("code_end")

def generate(prof=False):
    global PROF
    PROF = bool(prof)
    raw = open(f"cdna_kernels/{NAME}.s.ref").read().split("\n")
    hdr = []
    for l in raw:
        if not l.startswith(";") or "Override" in l: break
        hdr.append(l)
    a = Asm()
    emit_mega(a, prof)
    s = "\n".join(hdr) + "\n"
    s += f"; @launch kernel={NAME}_kernel grid=(256,1,1) block=(512,1,1) lds=163840\n"
    s += '.amdgcn_target "amdgcn-amd-amdhsa--gfx950"\n.text\n' + a.text() + '.section .rodata,"a"\n'
    s += kernel_desc(NAME + "_kernel", vgpr=256, accum=160)
    return s

if __name__ == "__main__":
    out = sys.argv[1] if len(sys.argv) > 1 else f"cdna_kernels/{NAME}.s"
    open(out, "w").write(generate())
    print("wrote", out)
```

```python
from asmgen import *

def acc(tt, ft): return 32 + (tt*8 + ft)*4
def R(p, b, n=4): return f"{p}[{b}:{b+n-1}]"

EXP = set()
SIGNAL = True
def a_dma(pslot, MT, flag=""):
    ops = [[f"s_add_u32 m0, s76, {pslot*32768 + i*1024}", f"global_load_lds_dwordx4 v{28+i}, s[60:61] {flag}"] for i in range(MT)]
    if "noA" in EXP:
        for o in ops: o[1] = "s_nop 0"
    return ops
WFLAG = ""
def w_dma(slot):
    ops = [[f"s_add_u32 m0, s67, {65536 + slot*16384 + i*1024}", f"global_load_lds_dwordx4 v{4+i}, s[62:63] {WFLAG}"] for i in range(2)]
    if "noW" in EXP:
        for o in ops: o[1] = "s_nop 0"
    return ops
def adv(off, inc, mask, cur, base, x):
    ops = [f"s_or_b32 s{off}, s{off}, s{mask}", f"s_add_u32 s{off}, s{off}, s{inc}", f"s_andn2_b32 s{off}, s{off}, s{mask}"]
    if WFRAG: ops += [f"s_xor_b32 s{cur}, s{off}, s{x}", f"s_add_u32 s{cur}, s{base}, s{cur}"]
    else: ops += [f"s_add_u32 s{cur}, s{base}, s{off}"]
    return ops + [f"s_addc_u32 s{cur+1}, s{base+1}, 0"]
def ADVA(): return adv(84, 64, 86, 60, 80, 78)
def ADVW(): return adv(85, 65, 87, 62, 82, 79)

def a_read(buf, tt, slot, MT=4): return f"ds_read_b128 {R('a', buf*16 + tt*4)}, v{6 + (slot & 1)} offset:{(slot >> 1)*32768 + tt*2048}"
NSING = 6
def wreg(ft, par): return 32 + ft*4 if (ft < NSING or par == 0) else 64 + (ft - NSING)*4
WFRAG = False
def w_reads(ft, slot):
    if WFRAG: return [f"ds_read_b128 {R('a', wreg(ft, slot & 1))}, v27 offset:{slot*16384 + ft*1024}"]
    return [w_read(ft, 0, slot), w_read(ft, 1, slot)]
def w_read(ft, lo, slot): return f"ds_read_b64_tr_b16 {R('a', wreg(ft, slot & 1) + lo*2, 2)}, v{8+ft} offset:{slot*16384 + lo*2048}"

RF = 0.5
TUNE = dict(NS3=0, NS4=1, RF3=0.8, RF4=0.8, PEEL=1, PRIO=0)
EXT = 12
NT = 3
def cwait(a, n, flag, extra, tail=" lgkmcnt(0)"):
    l1, l2 = a.newlabel("cw"), a.newlabel("cw")
    a(f"s_cmp_eq_u32 s{flag}, 0"); a(f"s_cbranch_scc1 {l1}")
    a(f"s_waitcnt vmcnt({n + extra}){tail}"); a(f"s_branch {l2}")
    a.label(l1); a(f"s_waitcnt vmcnt({n}){tail}")
    a.label(l2)

def stage(a, slot, orient, dma, wait, refill, MT=4, aflag="", hook=None, flag=None):
    buf = slot & 1
    if wait is not None:
        if flag: cwait(a, wait, *flag)
        else: a(f"s_waitcnt vmcnt({wait}) lgkmcnt(0)")
        a("s_barrier")
    else:
        a("s_waitcnt lgkmcnt(0)")
    if hook: hook()
    if TUNE.get("SLP") and MT >= 3: a(f"s_sleep {TUNE['SLP']}")
    d = []
    if dma:
        d = (a_dma(slot >> 1, MT, aflag) if slot & 1 else []) + w_dma(slot)
    ns = (slot + 1) & 3
    early = []
    if refill:
        early = [a_read(buf ^ 1, tt, ns, MT) for tt in range(MT)]
        for ft in range(NSING, 8): early += w_reads(ft, ns)
    nm = 8*MT; span = max(1, int(nm*RF)); ne = len(early); done = 0; out = 0
    def rd(x):
        nonlocal out
        if out >= 13:
            a("s_waitcnt lgkmcnt(6)"); out = 6
        a(x); out += 1
    for ft in range(8):
        if MT == 1 and ft < len(d): a(d[ft][0])
        for tt in range(MT):
            D = R('v', acc(tt, ft)); W = R('a', wreg(ft, buf)); X = R('a', buf*16 + tt*4)
            a(f"v_mfma_f32_16x16x32_bf16 {D}, {W}, {X}, {D}" if orient == 'T' else f"v_mfma_f32_16x16x32_bf16 {D}, {X}, {W}, {D}")
            if MT > 1 and tt == 0 and ft < len(d):
                a(d[ft][0])
            if tt == min(1, MT - 1) and ft < len(d):
                a(d[ft][1])
            if tt == 0 and ft == 6 and dma:
                for x in ADVW(): a(x)
            if tt == 0 and ft == 7 and dma and slot & 1:
                for x in ADVA(): a(x)
            want = min(ne, -(-ne*(ft*MT + tt + 1) // span))
            while done < want:
                rd(early[done]); done += 1
        if refill and ft < NSING:
            for x in w_reads(ft, ns): rd(x)
    assert done == ne

def prologue(a, MT, aflag=""):
    a("s_mov_b32 s84, 0"); a("s_mov_b32 s85, 0")
    if WFRAG:
        a("s_add_u32 s60, s80, s78"); a("s_addc_u32 s61, s81, 0"); a("s_add_u32 s62, s82, s79"); a("s_addc_u32 s63, s83, 0")
    else:
        a("s_mov_b64 s[60:61], s[80:81]"); a("s_mov_b64 s[62:63], s[82:83]")
    a("s_barrier")
    def issue(ops, advs):
        for m, ld in ops:
            a(m); a("s_nop 0"); a(ld)
        for x in advs: a(x)
    issue(a_dma(0, MT, aflag), ADVA()); issue(w_dma(0), ADVW()); issue(w_dma(1), ADVW())
    issue(w_dma(2), ADVW()); issue(a_dma(1, MT, aflag), ADVA()); issue(w_dma(3), ADVW())

def pending_stores(a):
    lab = a.newlabel("ps")
    a("s_cmp_eq_u32 s77, 0"); a(f"s_cbranch_scc1 {lab}")
    epi_frag_store(a, "s[28:29]", "sc1", 3)
    a.label(lab)

def emit_core(a, name, orient, MT=4, aflag=""):
    global NSING, RF
    NSING, RF = (TUNE["NS4"], TUNE["RF4"]) if MT == 4 else (TUNE["NS3"], TUNE["RF3"])
    dummy = "a95" if NSING > 0 else "a31"
    assert NSING > 0 or MT < 4
    plain = not WFRAG
    a.label(name)
    prologue(a, MT, aflag)
    if plain and MT >= 3: pending_stores(a)
    a.label(name + "_m")
    for tt in range(MT):
        for i in range(32): a(f"v_mov_b32 v{acc(tt, 0) + i}, 0")
    f77 = (77, EXT) if plain else None
    f98 = (98, NT) if plain else None
    if plain: cwait(a, 6 + MT, 77, EXT, "")
    else: a(f"s_waitcnt vmcnt({6 + MT})")
    a("s_barrier")
    for tt in range(MT): a(a_read(0, tt, 0, MT))
    for ft in range(8):
        for x in w_reads(ft, 0): a(x)
        if ft == 3: a("s_waitcnt lgkmcnt(4)")
    def signal():
        a("s_mov_b32 s77, 0")
        a("s_cmp_eq_u32 s89, 0"); a(f"s_cbranch_scc1 {name}_ns")
        a("s_mov_b32 s89, 0")
        a("s_cmp_eq_u32 s75, 0"); a(f"s_cbranch_scc0 {name}_ns")
        a("v_mov_b32 v16, s88"); a("v_mov_b32 v17, 0")
        a("s_mov_b64 exec, 1")
        a("global_store_dword v16, v17, s[28:29] sc1")
        a("s_mov_b64 exec, -1")
        a.label(name + "_ns")
    def touch():
        a("s_cmp_eq_u32 s98, 0"); a(f"s_cbranch_scc1 {name}_nt")
        a("v_lshlrev_b32 v20, 6, v0")
        for i in range(NT): a(f"v_min_u32 v{21+i}, s{99+i}, v20")
        for i in range(NT): a(f"global_load_dword {dummy}, v{21+i}, s[{90+2*i}:{91+2*i}]")
        a.label(name + "_nt")
    def vote():
        a("s_mov_b32 s98, 0")
        if MT == 2:
            a("v_mov_b32 v16, 0"); a("global_load_dwordx2 v[18:19], v16, s[26:27] offset:40 sc1")
    def four(first):
        for slot in range(4):
            stage(a, slot, orient, True, 4 if slot & 1 else 4 + MT, True, MT, aflag,
                  hook=(signal if slot == 3 and first else None), flag=(f77 if slot < 3 and first else None))
    if TUNE["PRIO"]:
        a("s_cmp_lt_u32 s75, 4"); a(f"s_cbranch_scc1 {name}_np"); a("s_setprio 1"); a.label(name + "_np")
    peel = plain and MT >= 3 and TUNE["PEEL"]
    if peel:
        four(True); a("s_sub_u32 s66, s66, 1")
    a.label(name + "_loop")
    four(plain and MT >= 3 and not peel)
    a("s_sub_u32 s66, s66, 1"); a("s_cmp_lg_u32 s66, 0"); a(f"s_cbranch_scc1 {name}_loop")
    stage(a, 0, orient, False, 4 + MT, True, MT, hook=(touch if plain else None))
    stage(a, 1, orient, False, 2, True, MT, flag=f98)
    stage(a, 2, orient, False, 0, True, MT, hook=(vote if plain else None), flag=f98)
    stage(a, 3, orient, False, None, False, MT)
    if TUNE["PRIO"]: a("s_setprio 0")
    a("s_nop 7")
    a("s_setpc_b64 s[68:69]")

def call(a, name):
    lab = a.newlabel("call")
    a("s_getpc_b64 s[70:71]")
    a.label(lab)
    a(f"s_add_u32 s70, s70, {name}-{lab}")
    a("s_addc_u32 s71, s71, 0") if False else a(f"s_addc_u32 s71, s71, ({name}-{lab})>>32")
    a("s_swappc_b64 s[68:69], s[70:71]")

def setup_common(a, MT=4):
    a("s_lshl_b32 s67, s75, 11")
    a("s_and_b32 s72, s75, 3"); a("s_lshr_b32 s73, s75, 2")
    a("v_lshrrev_b32 v16, 4, v0"); a("v_bfe_u32 v17, v0, 2, 2")
    a("v_lshl_add_u32 v18, v16, 3, v17"); a("v_lshlrev_b32 v18, 9, v18")
    a("v_and_b32 v19, 3, v0"); a("v_lshl_add_u32 v18, v19, 3, v18")
    a("s_lshl_b32 s74, s73, 8"); a("s_add_u32 s74, s74, 65536"); a("v_add_u32 v18, s74, v18")
    a("v_and_b32 v16, 1, v16"); a("v_lshl_add_u32 v17, v16, 2, v17"); a("v_lshlrev_b32 v17, 5, v17")
    a("v_add_u32 v8, v18, v17")
    for ft in range(1, 8): a(f"v_xor_b32 v{8+ft}, {ft*32}, v8")

def setup_a_rowmajor(a, lda, MT=4, wrow="s75"):
    a(f"s_mul_i32 s76, s75, {MT*1024}")
    a(f"s_mov_b32 s74, {lda}")
    for i in range(MT):
        a("v_lshrrev_b32 v16, 3, v0"); a(f"s_mul_i32 s64, {wrow}, {MT*8}"); a(f"s_add_u32 s64, s64, {i*8}"); a("v_add_u32 v16, s64, v16")
        a("v_lshrrev_b32 v17, 1, v16"); a("v_xor_b32 v17, v17, v0"); a("v_and_b32 v17, 7, v17")
        a("v_mul_lo_u32 v16, v16, s74"); a(f"v_lshl_add_u32 v{28+i}, v17, 4, v16")
    a("v_and_b32 v16, 15, v0"); a("v_lshrrev_b32 v17, 1, v16"); a("v_lshrrev_b32 v18, 4, v0"); a("v_xor_b32 v17, v17, v18")
    a("v_lshlrev_b32 v16, 7, v16"); a("v_lshl_add_u32 v6, v17, 4, v16")
    a(f"s_mul_i32 s74, s72, {MT*2048}"); a("v_add_u32 v6, s74, v6"); a("v_xor_b32 v7, 64, v6")
    a("s_mov_b32 s64, 128"); a("s_mov_b32 s86, 0")

def setup_w(a, ldw, colmap=None):
    for i in range(2):
        a("v_lshrrev_b32 v16, 5, v0"); a("s_lshl_b32 s74, s75, 2"); a(f"s_add_u32 s74, s74, {2*i}"); a("v_add_u32 v16, s74, v16")
        a("v_and_b32 v17, 3, v16"); a("v_bfe_u32 v18, v16, 3, 1"); a("v_lshl_add_u32 v17, v18, 2, v17"); a("v_lshlrev_b32 v17, 1, v17")
        a("v_and_b32 v18, 31, v0"); a("v_xor_b32 v17, v17, v18")
        if colmap is None: a("v_lshlrev_b32 v17, 4, v17")
        else: colmap(a, 17)
        a(f"s_mov_b32 s74, {ldw}"); a("v_mul_lo_u32 v16, v16, s74"); a(f"v_add_u32 v{4+i}, v16, v17")
    a(f"s_mov_b32 s65, {32*ldw}"); a("s_mov_b32 s87, 0")

def epi_frag_store(a, base, flag, MT=4, step=1024):
    n = 0
    for tt in range(MT):
        for jj in range(4):
            t = (24, 16)[n & 1]; n += 1
            b = acc(tt, 2*jj)
            for i in range(4): a(f"v_cvt_pk_bf16_f32 v{t+i}, v{b+2*i}, v{b+2*i+1}")
            a(f"global_store_dwordx4 v{20+tt}, {R('v', t)}, {base} offset:{jj*step} {flag}")

def setup_a_frag(a, tstride, MT=4):
    a("v_lshlrev_b32 v16, 4, v0")
    if MT == 4:
        a(f"s_mul_i32 s74, s75, {2*tstride}"); a("s_lshl_b32 s76, s75, 12")
        a("v_add_u32 v28, s74, v16"); a("v_add_u32 v29, 1024, v28"); a(f"v_add_u32 v30, {tstride}, v28"); a("v_add_u32 v31, 1024, v30")
    elif MT == 2:
        a(f"s_mul_i32 s74, s75, {tstride}"); a("s_lshl_b32 s76, s75, 11")
        a("v_add_u32 v28, s74, v16"); a("v_add_u32 v29, 1024, v28")
    else:
        assert MT == 1
        a("s_lshr_b32 s74, s75, 1"); a(f"s_mul_i32 s74, s74, {tstride}"); a("s_and_b32 s76, s75, 1"); a("s_lshl_b32 s76, s76, 10"); a("s_add_u32 s74, s74, s76")
        a("v_add_u32 v28, s74, v16"); a("s_lshl_b32 s76, s75, 10")
    a(f"s_mul_i32 s74, s72, {MT*2048}"); a("v_add_u32 v6, s74, v16"); a("v_add_u32 v7, 1024, v6")
    a("s_mov_b32 s64, 2048"); a("s_mov_b32 s86, 0x2000")

def setup_w_frag(a, woff):
    a("v_lshlrev_b32 v16, 4, v0")
    a(f"v_add_u32 v4, {woff}, v16"); a("v_add_u32 v5, 1024, v4")
    a("s_lshl_b32 s74, s73, 13"); a("s_add_u32 s74, s74, 65536"); a("v_add_u32 v27, s74, v16")
    a("s_mov_b32 s65, 2048"); a("s_mov_b32 s87, 0x2000")

def lane_chunk(a, dst, tmp):
    a(f"v_bfe_u32 v{dst}, v0, 4, 1"); a(f"v_lshlrev_b32 v{dst}, 1, v{dst}"); a(f"v_lshrrev_b32 v{tmp}, 5, v0"); a(f"v_add_u32 v{dst}, v{dst}, v{tmp}")

def pack_swap(a, t, b):
    for i in range(4): a(f"v_cvt_pk_bf16_f32 v{t+i}, v{b+2*i}, v{b+2*i+1}")
    a("s_nop 0")
    a(f"v_permlane16_swap_b32 v{t}, v{t+2}"); a(f"v_permlane16_swap_b32 v{t+1}, v{t+3}")

def epi_out_store(a, base, MT=4, flag=""):
    n = 0
    for tt in range(MT):
        for jj in range(4):
            t = 24 + (n & 1)*4; n += 1
            pack_swap(a, t, acc(tt, 2*jj))
            a(f"global_store_dwordx4 v{20+tt}, {R('v', t)}, {base} offset:{jj*64} {flag}")
```

```python
from asmgen import *

WS_RING  = 1 << 20
WS_PROBE = 0x1f0000
WS_FLAG2 = 0x140000
WS_HW    = 0x160000
WS_FLAG  = 0x1e0000
WS_MEMS  = 2 << 20
WS_KMVM  = 4 << 20
WS_KX    = 20 << 20
WS_VX    = 52 << 20
WS_WOT   = 126 << 20
WOT_CG = 1 << 19
L_PART = 0
L_P    = 24576
L_ZERO = 26624
L_SEL  = 28672
L_PARW = 7*16384
L_KX   = 131072
L_VX   = 147456
SPIN_MAX = 400000
NSTEP = 64
DBG_VOTE, DBG_CLR, DBG_PROG = 40, 44, 192
PAR0 = dict(WPF=2, QPL=0, ST=1, BDEL=0, SPLITB=1, KFAR=1, VFAR=1, RDEL=10, MDEL=7, DM=1, MGAP=3, PRIO=1, XD=2, XGAP=1, VDEL=10, PPRIO=2, XDEL=7, DR=2, RGAP=5, MACK=0)
PAR = dict(PAR0)
OPT = set()

def guard(a, loop, fail):
    a("s_add_u32 s24, s24, 1"); a(f"s_cmp_lt_u32 s24, {SPIN_MAX}"); a(f"s_cbranch_scc1 {loop}"); a(f"s_branch {fail}")

def pstamp(a, prof, k):
    if prof == 3:
        a("s_memrealtime s[56:57]"); a("s_waitcnt lgkmcnt(0)"); a(f"s_mov_b32 s{k}, s56")

def stamp(a, prof, k, at=None):
    if not prof: return
    if prof >= 3 and (k != 7 or prof > 3): return
    if prof == 2:
        lab = a.newlabel("st")
        a("s_cmp_lg_u32 s22, " + ("31" if (k == 7 or at) else "30")); a(f"s_cbranch_scc1 {lab}")
        a("s_memrealtime s[56:57]"); a("s_waitcnt lgkmcnt(0)"); a("s_and_b32 s56, s56, 0xffffff"); a("s_lshl_b32 s57, s24, 24"); a(f"s_or_b32 s{60+k}, s56, s57")
        a.label(lab)
        return
    a("s_memtime s[56:57]"); a("s_waitcnt lgkmcnt(0)")
    a("s_sub_u32 s58, s56, s59"); a(f"s_add_u32 s{60+k}, s{60+k}, s58"); a("s_mov_b32 s59, s56")

def fs(a, prof, k, which):
    if prof == which: a(f"s_memtime s[{66+2*k}:{67+2*k}]")

def near_bit(a, tmp, off, par, kv=False):
    flip = kv and PAR["KFAR"] != PAR["VFAR"]
    if flip: a(f"s_cmp_ge_u32 {off}, {WS_VX}"); a(f"s_addc_u32 {tmp}, {par}, {PAR['KFAR']}"); a(f"s_lshl_b32 {tmp}, {tmp}, 21"); a(f"s_xor_b32 {tmp}, {tmp}, {off}"); a(f"s_lshr_b32 {tmp}, {tmp}, 21")
    else:
        a(f"s_lshr_b32 {tmp}, {off}, 21"); a(f"s_xor_b32 {tmp}, {tmp}, {par}")
        if kv and PAR["KFAR"]: a(f"s_xor_b32 {tmp}, {tmp}, 1")
    a(f"s_and_b32 {tmp}, {tmp}, 1"); a(f"s_lshl_b32 {tmp}, {tmp}, 13")

def near(a, dst, off, par="s25", wb=16, tmp="s36", kv=False):
    near_bit(a, tmp, off, par, kv)
    a(f"s_add_u32 {tmp}, {tmp}, {off}"); a(f"s_add_u32 s{dst}, s{wb}, {tmp}"); a(f"s_addc_u32 s{dst+1}, s{wb+1}, 0")

def v_from_k(a, v, k):
    a(f"s_add_u32 s{v}, s{k}, {WS_VX - WS_KX}"); a(f"s_addc_u32 s{v+1}, s{k+1}, 0")
    if PAR["KFAR"] != PAR["VFAR"]: a(f"s_xor_b32 s{v}, s{v}, 0x2000")

def kv_tile(a, dst, seg, tmp):
    a(f"s_sub_u32 {tmp}, {seg}, 16"); a(f"s_mul_i32 {tmp}, {tmp}, 43"); a(f"s_lshr_b32 {tmp}, {tmp}, 8"); a(f"s_add_u32 {tmp}, {tmp}, 4")
    a(f"s_lshr_b32 {dst}, {seg}, 2"); a(f"s_cmp_lt_u32 {dst}, 4"); a(f"s_cselect_b32 {dst}, {dst}, {tmp}")

def tagchk(a, regs, tag, t0, t1, mf=()):
    op = "0x80" if tag else "0xfe"
    mf = list(mf)
    ops = [f"v_bitop3_b32 v{t0}, v{regs[0]}, v{regs[1]}, v{regs[2]} bitop3:{op}", f"v_bitop3_b32 v{t1}, v{regs[3]}, v{regs[4]}, v{regs[5]} bitop3:{op}"]
    rest = regs[6:]; k = 0
    while rest:
        t = (t0, t1)[k & 1]; k += 1
        ops.append(f"v_bitop3_b32 v{t}, v{t}, v{rest[0]}, v{rest[1]} bitop3:{op}"); rest = rest[2:]
    ops.append(f"v_bitop3_b32 v{t0}, v{t0}, v{t1}, 1 bitop3:" + ("0x80" if tag else "0xa8"))
    per = -(-len(ops) // max(len(mf), 1))
    for i, o in enumerate(ops):
        if mf and i % per == 0: a(mf.pop(0))
        a(o)
    for m in mf: a(m)
    a(f"v_cmp_ne_u32 vcc, {tag}, v{t0}")

def emit_rec(a, pfx, prof=False, kvwait=False):
    L = lambda n: f"{pfx}_{n}"
    FAIL = L('fail')
    a("s_load_dwordx8 s[4:11], s[0:1], 40")
    a("s_load_dwordx2 s[12:13], s[0:1], 32")
    a("s_load_dwordx2 s[14:15], s[0:1], 88")
    a("s_load_dwordx2 s[16:17], s[0:1], 96")
    a("v_lshrrev_b32 v1, 6, v0")
    a("v_and_b32 v0, 63, v0")
    a("s_lshl_b32 s20, s18, 2"); a("s_add_u32 s20, s20, s19")
    a("v_readfirstlane_b32 s21, v1")
    a("v_lshlrev_b32 v6, 4, v0")
    a("s_mov_b32 s24, 0")
    a("s_waitcnt lgkmcnt(0)")
    pstamp(a, prof, 90)
    if "diag" in OPT: pstamp(a, 3, 97)
    a("s_add_u32 s16, s16, 0x1fffff"); a("s_addc_u32 s17, s17, 0"); a("s_and_b32 s16, s16, 0xffe00000")
    a("s_lshl_b32 s36, s18, 13"); a(f"s_add_u32 s36, s36, {WS_RING}"); a("s_add_u32 s32, s16, s36"); a("s_addc_u32 s33, s17, 0")
    a("s_and_b32 s45, s20, 63"); a("s_lshl_b32 s45, s45, 7"); a("s_lshr_b32 s36, s20, 6"); a("s_lshl_b32 s36, s36, 14"); a("s_add_u32 s45, s45, s36")
    a("s_and_b32 s44, s20, 1"); a("s_lshl_b32 s44, s44, 12"); a("s_lshr_b32 s42, s20, 1"); a("s_lshl_b32 s42, s42, 14"); a("s_add_u32 s44, s44, s42")
    a("v_mov_b32 v14, v6"); a("v_add_u32 v15, 0x1000, v6")
    a("s_lshl_b32 s36, s19, 10"); a("v_add_u32 v9, s36, v6")
    a("s_lshl_b32 s36, s19, 9"); a("s_add_u32 s36, s36, 4096"); a("v_and_b32 v8, 0x1ff, v6"); a("v_add_u32 v8, s36, v8")
    a("s_cmp_eq_u32 s21, 7"); a(f"s_cbranch_scc0 {L('noclr')}")
    for i in range(4): a(f"v_mov_b32 v{68+i}, -1")
    a("v_add_u32 v16, s44, v6"); a("v_add_u32 v17, 0x2000, v16")
    for p in range(2):
        for i in range(4): a(f"global_store_dwordx4 v{16+p}, v[68:71], s[16:17] offset:{1024*i} sc1")
    a("global_store_dwordx4 v9, v[68:71], s[32:33] sc1"); a("global_store_dwordx4 v8, v[68:71], s[32:33] sc1")
    a("v_bfe_u32 v16, v0, 3, 2"); a("v_lshlrev_b32 v16, 15, v16"); a("v_lshrrev_b32 v17, 5, v0"); a("v_lshl_add_u32 v16, v17, 13, v16")
    a("v_and_b32 v17, 7, v0"); a("v_lshl_add_u32 v16, v17, 4, v16"); a(f"s_add_u32 s36, s45, {WS_MEMS}"); a("v_add_u32 v16, s36, v16")
    for i in range(16):
        a("global_store_dwordx4 v16, v[68:71], s[16:17] sc1"); a("v_add_u32 v16, 0x20000, v16")
    a("s_lshl_b32 s36, s20, 7"); a(f"s_add_u32 s36, s36, {WS_FLAG}"); a("v_and_b32 v16, 0x70, v6"); a("v_add_u32 v16, s36, v16")
    a("global_store_dwordx4 v16, v[68:71], s[16:17] sc1")
    a("s_lshl_b32 s36, s20, 10"); a(f"s_add_u32 s36, s36, {WS_FLAG2}"); a("v_add_u32 v16, s36, v6")
    a("global_store_dwordx4 v16, v[68:71], s[16:17] sc1")
    a("s_lshl_b32 s36, s20, 8"); a(f"s_add_u32 s36, s36, {WS_HW}"); a("v_and_b32 v16, 0xf0, v6"); a("v_add_u32 v16, s36, v16")
    a("global_store_dwordx4 v16, v[68:71], s[16:17] sc1")
    a("s_barrier")
    a("v_mov_b32 v17, 1"); a("v_mov_b32 v16, 0")
    a("s_waitcnt vmcnt(0)")
    a("s_mov_b64 exec, 1")
    a(f"global_atomic_add v16, v17, s[14:15] offset:{DBG_CLR} sc1")
    a("s_mov_b64 exec, -1")
    a(f"s_branch {L('clrd')}")
    a.label(L('noclr'))
    a("s_barrier")
    a.label(L('clrd'))
    def xdma(base, ldsreg):
        for kt in range(2):
            a(f"s_add_u32 m0, {ldsreg}, {kt*4096}")
            a("s_nop 0")
            for jj in range(4):
                a(f"global_load_lds_dwordx4 v{14+kt}, {base} offset:{jj*1024} sc1")
    def kv_poll(tag, tile):
        a(f"s_lshl_b32 s52, {tile}, 7"); a("s_lshr_b32 s36, s18, 1"); a("s_lshl_b32 s36, s36, 2"); a("s_add_u32 s52, s52, s36"); a(f"s_add_u32 s52, s52, {WS_FLAG + 96*128}")
        a("v_mov_b32 v17, s52")
        a.label(L(tag))
        a("global_load_dword v16, v17, s[16:17] sc1"); a("global_load_dword v18, v17, s[16:17] offset:64 sc1"); a("s_waitcnt vmcnt(0)")
        a("v_or_b32 v16, v16, v18")
        a("v_cmp_ne_u32 vcc, 0, v16"); a(f"s_cbranch_vccz {L(tag + 'ok')}")
        a("s_sleep 4")
        guard(a, L(tag), FAIL)
        a.label(L(tag + 'ok'))
    def kv_bases(segreg):
        a(f"s_lshl_b32 s42, {segreg}, 5"); a("s_add_u32 s42, s42, s18"); a("s_lshl_b32 s42, s42, 14"); a(f"s_add_u32 s42, s42, {WS_KX}")
        near(a, 48, "s42", kv=True)
        v_from_k(a, 34, 48)
    a("s_and_b32 s39, s19, 1"); a("s_xor_b32 s39, s39, 1"); a("s_lshl_b32 s39, s39, 1"); a("s_lshr_b32 s36, s19, 1"); a("s_add_u32 s39, s39, s36")
    a("s_lshl_b32 s43, s21, 14")
    a("s_lshl_b32 s36, s21, 20"); a("s_lshl_b32 s42, s18, 8"); a("s_add_u32 s36, s36, s42")
    a("v_lshrrev_b32 v10, 2, v0"); a("v_lshlrev_b32 v10, 13, v10"); a("v_and_b32 v11, 3, v0"); a("v_lshl_add_u32 v10, v11, 4, v10")
    a("s_lshl_b32 s42, s39, 6"); a("s_add_u32 s42, s42, s36"); a("v_add_u32 v10, s42, v10")
    a("v_lshrrev_b32 v11, 3, v0"); a("v_lshlrev_b32 v11, 13, v11"); a("v_and_b32 v12, 7, v0"); a("v_lshl_add_u32 v11, v12, 4, v11")
    a("s_and_b32 s42, s19, 1"); a("s_lshl_b32 s42, s42, 7"); a("s_add_u32 s42, s42, s36"); a("v_add_u32 v11, s42, v11")
    def qkdma(base, nt):
        for i in range(16):
            a(f"s_add_u32 m0, s43, {i*1024}")
            a("s_nop 0")
            a(f"global_load_lds_dwordx4 v11, {base} {nt}")
            if i < 15: a("v_add_u32 v11, 0x10000, v11")
    a("s_cmp_lt_u32 s19, 2"); a(f"s_cbranch_scc1 {L('isq')}")
    qkdma("s[6:7]", ""); a(f"s_branch {L('qkd')}")
    a.label(L('isq'))
    qkdma("s[4:5]", "" if PAR["QPL"] else "nt")
    a.label(L('qkd'))
    a("v_lshrrev_b32 v12, 5, v0"); a("v_lshlrev_b32 v12, 4, v12")
    a("v_bfe_u32 v13, v0, 4, 1"); a("v_lshl_add_u32 v12, v13, 2, v12")
    a("v_bfe_u32 v13, v0, 2, 1"); a("v_add_u32 v12, v12, v13")
    a("v_bfe_u32 v13, v0, 3, 1"); a("v_lshl_add_u32 v12, v13, 3, v12")
    a("v_and_b32 v13, 3, v0"); a("v_lshlrev_b32 v13, 3, v13"); a("v_add_u32 v13, s43, v13")
    a("v_lshl_add_u32 v7, v12, 7, v13"); a("v_lshl_add_u32 v12, v12, 6, v13")
    def qkread(ks):
        for t in range(4):
            for pp in range(4):
                hi, lo = pp >> 1, pp & 1
                reg = (t*2 + ks)*8 + pp*2
                a(f"ds_read_b64_tr_b16 a[{reg}:{reg+1}], v7 offset:{(64*ks + 32*hi + 2*lo)*128 + t*32}")
            a("s_waitcnt lgkmcnt(4)")
        a("s_waitcnt lgkmcnt(0)")
    def vread():
        for t in range(2):
            for ks in range(2):
                for pp in range(4):
                    hi, lo = pp >> 1, pp & 1
                    reg = ((4 + t)*2 + ks)*8 + pp*2
                    a(f"ds_read_b64_tr_b16 a[{reg}:{reg+1}], v12 offset:{(64*ks + 32*hi + 2*lo)*64 + t*32}")
                a("s_waitcnt lgkmcnt(4)")
        a("s_waitcnt lgkmcnt(0)")
    a("s_waitcnt vmcnt(8)")
    pstamp(a, prof, 91)
    qkread(0)
    for i in range(8):
        a(f"s_add_u32 m0, s43, {i*1024}")
        a("s_nop 0")
        a("global_load_lds_dwordx4 v10, s[8:9]")
        if i < 7: a("v_add_u32 v10, 0x20000, v10")
    a("s_waitcnt vmcnt(8)"); qkread(1)
    a("v_and_b32 v11, 7, v0"); a("v_lshlrev_b32 v11, 11, v11"); a("v_lshrrev_b32 v13, 3, v0"); a("v_lshl_add_u32 v11, v13, 4, v11")
    a("s_lshl_b32 s36, s21, 8"); a("v_add_u32 v11, s36, v11")
    a("global_load_dwordx4 v[16:19], v11, s[12:13]"); a("global_load_dwordx4 v[20:23], v11, s[12:13] offset:128")
    a("v_lshrrev_b32 v10, 3, v0"); a("v_lshlrev_b32 v10, 11, v10"); a("v_and_b32 v11, 7, v0"); a("v_lshl_add_u32 v10, v11, 4, v10")
    a("s_lshl_b32 s36, s18, 18"); a("s_lshl_b32 s42, s19, 9"); a("s_add_u32 s36, s36, s42")
    a("s_and_b32 s42, s21, 3"); a("s_lshl_b32 s42, s42, 7"); a("s_add_u32 s36, s36, s42")
    a("v_add_u32 v10, s36, v10")
    def odma(half):
        a(f"v_add_u32 v11, {half*64*2048}, v10")
        for i in range(8):
            a(f"s_add_u32 m0, s43, {half*8192 + i*1024}")
            a("s_nop 0")
            a("global_load_lds_dwordx4 v11, s[10:11]")
            if i < 7: a("v_add_u32 v11, 0x4000, v11")
    a("v_mov_b32 v56, 0"); a("s_lshr_b32 s36, s18, 3"); a("s_lshl_b32 s36, s36, 2"); a("v_mov_b32 v57, s36")
    a("s_cmp_lt_u32 s21, 4"); a(f"s_cbranch_scc0 {L('wv_only')}")
    odma(1)
    a("s_waitcnt vmcnt(8)"); vread()
    odma(0)
    a("v_lshrrev_b32 v12, 2, v0")
    a("v_lshlrev_b32 v12, 7, v12"); a("v_and_b32 v13, 3, v0"); a("v_lshl_add_u32 v12, v13, 4, v12"); a("v_add_u32 v12, s43, v12")
    a("s_waitcnt vmcnt(0)")
    def wo_reg(ct, jj):
        return f"v[{96+(ct*4+jj)*4}:{96+(ct*4+jj)*4+3}]"
    for ct in range(4):
        for jj in range(4):
            for lo in range(2):
                base = 96 + (ct*4 + jj)*4 + lo*2
                off = (32*jj + 16*lo)*128 + (ct >> 1)*64 + (ct & 1)*8
                a(f"ds_read_b64_tr_b16 v[{base}:{base+1}], v12 offset:{off}")
        a("s_waitcnt lgkmcnt(0)")
    a(f"s_branch {L('wdone')}")
    a.label(L('wv_only'))
    a("s_cmp_eq_u32 s21, 7"); a(f"s_cbranch_scc0 {L('wv2')}")
    a("global_load_dwordx4 v[48:51], v9, s[32:33] sc1"); a("global_load_dwordx4 v[52:55], v8, s[32:33] sc1")
    a(f"global_load_dwordx2 v[58:59], v56, s[14:15] offset:{DBG_VOTE} sc1"); a("global_load_dword v61, v57, s[14:15] sc1")
    a.label(L('wv2'))
    a("s_waitcnt vmcnt(0)"); vread()
    a.label(L('wdone'))
    pstamp(a, prof, 89)

    a("s_cmp_eq_u32 s21, 7"); a(f"s_cbranch_scc0 {L('sync1')}")
    a.label(L('clrw'))
    a("v_readfirstlane_b32 s36, v58"); a("v_readfirstlane_b32 s37, v59")
    a("s_and_b32 s42, s36, 0xffff"); a("s_add_u32 s42, s42, s37"); a("s_cmp_eq_u32 s42, 256"); a(f"s_cbranch_scc1 {L('clrok')}")
    a("s_sleep 8")
    a(f"global_load_dwordx2 v[58:59], v56, s[14:15] offset:{DBG_VOTE} sc1"); a("s_waitcnt vmcnt(0)")
    a("global_load_dword v61, v57, s[14:15] sc1"); a("s_waitcnt vmcnt(0)")
    guard(a, L('clrw'), FAIL)
    a.label(L('clrok'))
    a("v_cmp_gt_u32 vcc, 32, v61"); a(f"s_cbranch_vccz {L('cntok')}")
    a("global_load_dword v61, v57, s[14:15] sc1"); a("s_waitcnt vmcnt(0)")
    a.label(L('cntok'))
    a("s_lshr_b32 s36, s36, 16"); a("s_cmp_gt_u32 s36, 64"); a("s_cselect_b32 s25, 1, 0")
    a("v_mov_b32 v60, s25"); a(f"v_mov_b32 v56, {L_PARW}")
    a("ds_write_b64 v56, v[60:61]")
    a.label(L('sync1'))

    a("s_and_b32 s36, s21, 3"); a("s_lshl_b32 s36, s36, 11"); a("s_lshr_b32 s42, s21, 2"); a("s_lshl_b32 s42, s42, 14"); a("s_add_u32 s36, s36, s42")
    a("v_add_u32 v1, s36, v6")
    a("v_and_b32 v2, 8, v0"); a("v_cmp_eq_u32 vcc, 0, v2"); a("v_mov_b32 v2, 0xeeee"); a("v_mov_b32 v3, 0x4444"); a("s_nop 1")
    a("v_cndmask_b32 v2, v2, v3, vcc")
    a("s_mul_i32 s36, s21, 3072"); a("v_add_u32 v3, s36, v6")
    a("s_mov_b32 s22, 0"); a("s_mov_b32 s51, 1")
    a("s_waitcnt vmcnt(0) lgkmcnt(0)"); a("s_barrier")
    for i in range(8): a(f"v_min_u32 v{16+i}, -2, v{16+i}")
    a(f"v_mov_b32 v24, {L_PARW}"); a("ds_read_b64 v[24:25], v24"); a("s_waitcnt lgkmcnt(0)")
    a("v_readfirstlane_b32 s25, v24"); a("v_readfirstlane_b32 s23, v25")
    a("s_and_b32 s25, s25, 1")
    if "safe" in OPT: a("s_mov_b32 s23, 0")
    a("s_lshl_b32 s36, s25, 13"); a("s_add_u32 s26, s16, s36"); a("s_addc_u32 s27, s17, 0")
    a(f"s_mov_b32 s42, {WS_MEMS}"); near(a, 28, "s42")
    a("s_lshr_b32 s38, s18, 1"); a("s_lshl_b32 s38, s38, 14"); a("s_and_b32 s36, s18, 1"); a("s_lshl_b32 s36, s36, 12"); a("s_add_u32 s38, s38, s36"); a(f"s_add_u32 s38, s38, {WS_KMVM}")
    near(a, 30, "s38")
    if "diag" in OPT: pstamp(a, 3, 98)
    if prof:
        for k in range(8): a(f"s_mov_b32 s{60+k}, 0")
        a("s_memtime s[56:57]"); a("s_waitcnt lgkmcnt(0)"); a("s_mov_b32 s59, s56")
        pstamp(a, prof, 60)
    a("s_cmp_lt_u32 s21, 4"); a(f"s_cbranch_scc1 {L('setup_vo')}")
    a("s_cmp_eq_u32 s21, 6"); a(f"s_cbranch_scc1 {L('setup_sm')}")

    def head_word(val):
        a(f"v_mov_b32 v95, {val}")
        a("s_xor_b32 s36, s25, 1"); a("s_lshl_b32 s36, s36, 13"); a("s_add_u32 s36, s36, s45"); a(f"s_add_u32 s36, s36, {WS_HW}")
        a("v_mov_b32 v94, s36")
        a("s_mov_b64 exec, 1")
        a("global_store_dword v94, v95, s[16:17] sc1")
        a("s_mov_b64 exec, -1")
    def zero_acc():
        for i in range(24): a(f"v_mov_b32 v{24+i}, 0")
    def pair(p): return [(2*p, 0), (2*p+1, 0), (2*p, 1), (2*p+1, 1)]
    def sm(tt, ks, mb):
        dd = 24 + tt*4; b = (tt*2 + ks)*8
        a(f"v_smfmac_f32_16x16x64_bf16 v[{dd}:{dd+3}], v[{mb+4*ks}:{mb+3+4*ks}], a[{b}:{b+7}], v2")
    def cv(p, i): a(f"v_cvt_pk_bf16_f32 v{24+8*p+i}, v{24+8*p+2*i}, v{25+8*p+2*i}")
    def mload(b):
        a(f"global_load_dwordx4 v[{b}:{b+3}], v1, s[28:29] sc1")
        a(f"global_load_dwordx4 v[{b+4}:{b+7}], v1, s[28:29] offset:1024 sc1")
    def p1(name, mid=None):
        if PAR["MDEL"]: a(f"s_sleep {PAR['MDEL']}")
        a.label(L(name))
        mload(16)
        a("s_waitcnt vmcnt(0)")
        a.label(L(name + '_in'))
        fs(a, prof, 0, 5)
        chk = ["v_max3_u32 v0, v16, v17, v18", "v_max3_u32 v7, v19, v20, v21", "v_max3_u32 v0, v0, v22, v23", "v_max_u32 v0, v0, v7", "v_cmp_eq_u32 vcc, -1, v0"]
        for i, (t, k) in enumerate(pair(0)):
            sm(t, k, 16)
            for c in chk[2*i:2*i+2]: a(c)
            if i == 2: a(f"s_cbranch_vccnz {L(name + '_retry')}")
        stamp(a, prof, 0)
        fs(a, prof, 1, 5)
        for t, k in pair(1): sm(t, k, 16)
        a("s_nop 3")
        for i, (t, k) in enumerate(pair(2)):
            cv(0, i)
            if i == 3: a("ds_write_b128 v3, v[24:27]")
            sm(t, k, 16)
        fs(a, prof, 3, 5)
        for i in range(4): cv(1, i)
        a("ds_write_b128 v3, v[32:35] offset:1024")
        fs(a, prof, 4, 5)
        a("s_nop 2")
        for i in range(4): cv(2, i)
        if PAR["SPLITB"]:
            a("ds_write_b128 v3, v[40:43] offset:2048")
            a("s_waitcnt lgkmcnt(1)"); a("s_barrier")
            if mid:
                mid(); a("s_waitcnt lgkmcnt(8)")
            else:
                a("s_waitcnt lgkmcnt(0)")
        else:
            a("ds_write_b128 v3, v[40:43] offset:2048")
            a("s_waitcnt lgkmcnt(0)")
        fs(a, prof, 6, 5)
        a("s_barrier")
        if mid and not PAR["SPLITB"]: mid()
        fs(a, prof, 7, 5)
        if prof == 5: a("s_waitcnt lgkmcnt(0)")
        stamp(a, prof, 1)
    def p1_retry(name):
        a.label(L(name + '_retry'))
        a("s_nop 7")
        for i in range(8): a(f"v_mov_b32 v{24+i}, 0")
        guard(a, L(name), FAIL)

    def step_adv():
        zero_acc()
        a("s_add_u32 s22, s22, 1")
        a("s_add_u32 s28, s28, 0x8000"); a("s_addc_u32 s29, s29, 0")
        a("s_add_u32 s38, s38, 0x40000"); near(a, 30, "s38")
    def step_end():
        step_adv()
        a("s_waitcnt vmcnt(0) lgkmcnt(0)")
        a("s_barrier")
        stamp(a, prof, 7)

    a("s_sub_u32 s37, s21, 4"); a("s_min_u32 s37, s37, 2")
    a("s_lshl_b32 s36, s37, 10"); a("v_add_u32 v4, s36, v6")
    a("v_and_b32 v48, 1, v0"); a("v_lshlrev_b32 v48, 4, v48"); a("v_mov_b32 v49, 0x3f80"); a("v_lshlrev_b32 v48, v48, v49")
    a("v_bfe_u32 v49, v0, 3, 1"); a("v_bfe_u32 v50, v0, 1, 1"); a("v_lshl_add_u32 v49, v49, 1, v50")
    a("v_lshrrev_b32 v50, 2, v0"); a("v_xor_b32 v50, v50, v0"); a("v_and_b32 v50, 4, v50"); a("v_add_u32 v49, v49, v50")
    for q in range(4):
        a(f"v_cmp_eq_u32 vcc, {q}, v49"); a("s_nop 1"); a(f"v_cndmask_b32 v{84+q}, 0, v48, vcc")
    a("v_and_b32 v48, 7, v0"); a("v_lshlrev_b32 v48, 4, v48"); a("v_and_b32 v49, 8, v0"); a("v_lshrrev_b32 v50, 4, v0")
    a("v_add_u32 v51, v48, v49"); a("v_lshl_add_u32 v10, v50, 7, v51")
    a("s_and_b32 s46, s19, 1"); a("s_lshl_b32 s46, s46, 1"); a("s_add_u32 s46, s46, s37")
    a("s_add_u32 s36, s39, 4"); a("s_cmp_eq_u32 s37, 2"); a("s_cselect_b32 s36, s36, s46"); a("s_lshl_b32 s36, s36, 9"); a("v_add_u32 v10, s36, v10")
    a("v_lshl_add_u32 v5, v50, 8, v51"); a("s_lshl_b32 s36, s46, 10"); a("s_lshr_b32 s42, s19, 1"); a("s_lshl_b32 s42, s42, 7"); a("s_add_u32 s36, s36, s42"); a("v_add_u32 v5, s36, v5")
    zero_acc()
    a(f"s_setprio {PAR['PPRIO']}")
    a("s_cmp_eq_u32 s21, 7"); a(f"s_cbranch_scc1 {L('setup_m')}")
    def rd8():
        for w in range(8): a(f"ds_read_b128 v[{48+4*w}:{51+4*w}], v4 offset:{3072*w}")
    def reduce8():
        for w in range(8):
            a(f"s_waitcnt lgkmcnt({7-w})")
            a(f"v_mfma_f32_16x16x32_bf16 v[80:83], v[{48+4*w}:{51+4*w}], v[84:87], " + ("0" if w == 0 else "v[80:83]"))
    def pack_tag(tag, last):
        if last:
            a(f"s_cmp_eq_u32 s22, {NSTEP-1}"); a(f"s_cbranch_scc1 {L(last)}")
        a("s_cmp_lt_u32 s23, 32")
        a("s_nop 4" if last else "s_nop 6")
        a("v_cvt_pk_bf16_f32 v88, v80, v81"); a("v_cvt_pk_bf16_f32 v89, v82, v83")
        for i in range(2): a(f"v_or_b32 v{90+i}, 1, v{88+i}" if tag else f"v_and_b32 v{90+i}, -2, v{88+i}")
    a("v_add_u32 v11, s44, v6")
    a("v_and_b32 v15, 7, v0"); a("v_lshlrev_b32 v15, 4, v15"); a("v_bfe_u32 v48, v0, 4, 1"); a("v_lshl_add_u32 v15, v48, 3, v15"); a("v_add_u32 v15, s45, v15")
    a("v_and_b32 v48, 1, v0"); a("v_lshlrev_b32 v48, 4, v48"); a("v_mov_b32 v49, 0x3f80"); a("v_lshlrev_b32 v48, v48, v49")
    a("v_bfe_u32 v49, v0, 1, 3")
    for q in range(4):
        a(f"v_cmp_eq_u32 vcc, {q}, v49"); a("s_nop 1"); a(f"v_cndmask_b32 v{92+q}, 0, v48, vcc")
    DR = PAR["DR"]
    rsets = [96, 112, 128][:DR]
    def rload(b):
        for i in range(4): a(f"global_load_dwordx4 v[{b+4*i}:{b+3+4*i}], v11, s[26:27] offset:{1024*i} sc1")
    a(f"s_branch {L('v0_in')}")
    a.label(L('v_loop'))
    for tag in range(2):
        n = f"v{tag}"
        p1(n, rd8)
        reduce8()
        pack_tag(tag, 'last_pub' if tag == (NSTEP - 1) & 1 else None)
        a(f"s_cbranch_scc1 {L(n + '_wt')}")
        a("global_store_dwordx2 v5, v[90:91], s[32:33]")
        a.label(L(n + '_pd'))
        if tag == 0:
            a("s_cmp_eq_u32 s22, 0"); a(f"s_cbranch_scc1 {L('v_first')}")
            a.label(L('v_fj'))
        stamp(a, prof, 2)
        a("s_barrier")
        a("s_cmp_lt_u32 s19, 2"); a(f"s_cbranch_scc1 {L(n + '_nq')}")
        a("global_store_dwordx2 v10, v[88:89], s[30:31] sc1")
        a.label(L(n + '_nq'))
        a("s_cmp_eq_u32 s21, 4"); a(f"s_cbranch_scc1 {L(n + '_red')}")
        if prof == 3:
            a("s_memrealtime s[56:57]"); a("s_memtime s[92:93]"); a("s_waitcnt lgkmcnt(0)"); a("s_mov_b32 m0, s22"); a("s_nop 0"); a("v_writelane_b32 v150, s56, m0"); a("v_writelane_b32 v151, s92, m0")
        step_adv()
        if PAR["BDEL"]: a(f"s_sleep {PAR['BDEL']}")
        a("s_waitcnt vmcnt(0)")
        a(f"s_branch {L(n + '_end')}")
        a.label(L(n + '_red'))
        step_adv()
        if PAR["RDEL"]: a(f"s_sleep {PAR['RDEL']}")
        stamp(a, prof, 5, 31)
        for d in range(DR - 1):
            rload(rsets[d])
            if PAR["RGAP"]: a(f"s_sleep {PAR['RGAP']}")
        a.label(L(n + '_rp'))
        for d in range(DR):
            rload(rsets[(d + DR - 1) % DR])
            a(f"s_waitcnt vmcnt({4*(DR-1)})")
            b = rsets[d]
            mf = [f"v_mfma_f32_16x16x32_bf16 v[64:67], v[92:95], v[{b+4*i}:{b+3+4*i}], " + ("0" if i == 0 else "v[64:67]") for i in range(4)]
            tagchk(a, list(range(b, b + 16)), tag, 73, 72, mf)
            a(f"s_cbranch_vccz {L(n + '_rok')}" if d < DR - 1 else f"s_cbranch_vccnz {L(n + '_rr')}")
        a.label(L(n + '_rok'))
        a("s_nop 3")
        for i in range(4): a(f"v_add_f32_dpp v{72+i}, v{64+i}, v{64+i} row_ror:8 row_mask:0xf bank_mask:0xf")
        a("s_mov_b64 exec, 0x00ff00ff")
        a("v_cvt_pk_bf16_f32 v76, v72, v73"); a("v_cvt_pk_bf16_f32 v77, v74, v75")
        a("v_min_u32 v76, -2, v76"); a("v_min_u32 v77, -2, v77")
        a("global_store_dwordx2 v15, v[76:77], s[28:29] sc1")
        a("s_mov_b64 exec, -1")
        stamp(a, prof, 6, 31)
        if PAR["MACK"]: a("s_waitcnt vmcnt(0)")
        a.label(L(n + '_end'))
        a("s_barrier")
        stamp(a, prof, 7)
    a(f"s_branch {L('v_loop')}")
    for tag in range(2):
        n = f"v{tag}"
        p1_retry(n)
        a.label(L(n + '_wt')); a("global_store_dwordx2 v5, v[90:91], s[32:33] sc1"); a(f"s_branch {L(n + '_pd')}")
        a.label(L(n + '_rr')); guard(a, L(n + '_rp'), FAIL)

    a.label(L('v_first')); a("s_barrier"); a("s_barrier"); a(f"s_branch {L('v_fj')}")

    a.label(L('setup_m'))
    a("v_lshrrev_b32 v5, 5, v0"); a("v_lshl_add_u32 v5, v5, 8, v48"); a("v_bfe_u32 v50, v0, 3, 2"); a("v_lshl_add_u32 v5, v50, 2, v5")
    a("s_lshl_b32 s36, s39, 9"); a("s_add_u32 s36, s36, 4096"); a("v_add_u32 v5, s36, v5")
    a("v_mov_b32 v93, 0")
    def progress(tagname):
        a("s_cmp_eq_u32 s20, 0"); a(f"s_cbranch_scc0 {L(tagname)}")
        a("v_mov_b32 v92, s22")
        a("s_mov_b64 exec, 1")
        a(f"global_store_dword v93, v92, s[14:15] offset:{DBG_PROG} sc1")
        a("s_mov_b64 exec, -1")
        a.label(L(tagname))
    a(f"s_branch {L('m0_in')}")
    a.label(L('m_loop'))
    for tag in range(2):
        n = f"m{tag}"
        p1(n)
        rd8(); reduce8()
        pack_tag(tag, 'fin_m' if tag == (NSTEP - 1) & 1 else None)
        a(f"s_cbranch_scc1 {L(n + '_wt')}")
        a("global_store_dword v5, v90, s[32:33]"); a("global_store_dword v5, v91, s[32:33] offset:128")
        a.label(L(n + '_pd'))
        if tag == 0:
            a("s_cmp_eq_u32 s22, 0"); a(f"s_cbranch_scc1 {L('m_first')}")
            a.label(L('m_fj'))
        a("s_barrier")
        if "nopers" not in OPT: a("global_store_dwordx2 v10, v[88:89], s[30:31] sc1")
        progress(n + '_pg')
        if kvwait:
            a("s_add_u32 s53, s22, 3"); a("s_min_u32 s53, s53, 63"); kv_tile(a, "s53", "s53", "s36")
            a("s_cmp_lt_u32 s53, s51"); a(f"s_cbranch_scc1 {L(n + '_kvh')}")
            kv_poll(n + '_kv', "s53")
            a("s_add_u32 s51, s53, 1")
            a.label(L(n + '_kvh'))
        step_end()
        a(f"s_cmp_ge_u32 s22, {NSTEP - 3}"); a(f"s_cbranch_scc1 {L(n + '_hp')}")
        a.label(L(n + '_hd'))
    a(f"s_branch {L('m_loop')}")
    for tag in range(2):
        n = f"m{tag}"
        p1_retry(n)
        a.label(L(n + '_wt'))
        a("global_store_dword v5, v90, s[32:33] sc1"); a("global_store_dword v5, v91, s[32:33] offset:128 sc1"); a(f"s_branch {L(n + '_pd')}")
        a.label(L(n + '_hp'))
        a("s_sub_u32 s36, s22, 1"); head_word("s36"); a(f"s_branch {L(n + '_hd')}")
    a.label(L('m_first'))
    if kvwait:
        a("s_mov_b32 s53, 0"); kv_poll('kv0', "s53")
    for sg in range(2):
        a(f"s_mov_b32 s53, {sg}"); kv_bases("s53")
        a(f"s_mov_b32 s50, {L_VX + sg*8192}"); xdma("s[34:35]", "s50")
        a(f"s_mov_b32 s50, {L_KX + sg*8192}"); xdma("s[48:49]", "s50")
    a("s_waitcnt vmcnt(16)"); a("s_barrier"); a("s_barrier")
    pstamp(a, prof, 60)
    a("s_waitcnt vmcnt(0)")
    a(f"s_branch {L('m_fj')}")
    a.label(L('fin_m'))
    progress('pg_last')
    a(f"s_branch {L('last_pub')}")

    a.label(L('setup_sm'))
    a(f"v_add_u32 v14, {L_KX}, v6")
    a("v_and_b32 v48, 7, v0"); a("v_lshrrev_b32 v49, 4, v0"); a("v_lshl_add_u32 v9, v49, 3, v48"); a("v_lshlrev_b32 v9, 4, v9"); a("v_and_b32 v50, 8, v0"); a("v_add_u32 v9, v9, v50")
    a("v_and_b32 v49, 1, v49"); a("v_lshl_add_u32 v10, v49, 3, v48"); a("v_lshlrev_b32 v10, 4, v10")
    a("v_lshrrev_b32 v49, 5, v0"); a("v_lshl_add_u32 v10, v49, 2, v10"); a("v_lshrrev_b32 v50, 2, v50"); a("v_add_u32 v10, v10, v50")
    a("s_mov_b32 s46, 0x3e0293ee")
    for i in range(4): a(f"v_mov_b32 v{84+i}, 0")
    a(f"ds_write_b128 v6, v[84:87] offset:{L_ZERO}"); a(f"ds_write_b128 v6, v[84:87] offset:{L_ZERO + 1024}")
    def k_load():
        for i in range(8): a(f"ds_read_b128 v[{96+4*i}:{99+4*i}], v14 offset:{1024*i}")
        a("v_xor_b32 v14, 0x2000, v14")
    zero_acc()
    a("s_setprio 2")
    def xload(b):
        for jj in range(4): a(f"global_load_dwordx4 v[{b+4*jj}:{b+3+4*jj}], v6, s[32:33] offset:{1024*jj} sc1")
    def s_mfma(b, t, jj):
        X = f"v[{b+4*jj}:{b+3+4*jj}]"
        d = 64 + 4*t
        A = X if t == 2 else f"v[{96+(t*4+jj)*4}:{99+(t*4+jj)*4}]"
        return f"v_mfma_f32_16x16x32_bf16 v[{d}:{d+3}], {A}, {X}, " + (f"v[{d}:{d+3}]" if jj else "0")
    def s_head(b, tag):
        tagchk(a, list(range(b, b + 16)), tag, 15, 16, [s_mfma(b, 2, jj) for jj in range(4)])
    dpp = "row_shr:8 row_mask:0xf bank_mask:0xc"
    def s_rest(b):
        for jj in range(4): a(s_mfma(b, 1, jj))
        a(s_mfma(b, 0, 0))
        a(f"v_mov_b32_dpp v72, v73 {dpp}"); a(f"v_mov_b32_dpp v74, v75 {dpp}")
        a(s_mfma(b, 0, 1)); a(s_mfma(b, 0, 2))
        a("v_permlane32_swap_b32 v72, v74")
        a(s_mfma(b, 0, 3))
    XD = PAR["XD"]
    a(f"s_branch {L('s0_in')}")
    a.label(L('s_loop'))
    for tag in range(2):
        n = f"s{tag}"
        p1(n)
        if tag == (NSTEP - 1) & 1:
            a(f"s_cmp_eq_u32 s22, {NSTEP-1}"); a(f"s_cbranch_scc1 {L('fin')}")
        if tag == 0:
            a("s_cmp_eq_u32 s22, 0"); a(f"s_cbranch_scc1 {L('s_first')}")
            pass
        if PAR["XDEL"]: a(f"s_sleep {PAR['XDEL']}")
        if tag == 0: a.label(L('s_fj'))
        if XD == 2:
            xload(48)
            if PAR["XGAP"]: a(f"s_sleep {PAR['XGAP']}")
        a.label(L(n + '_xp'))
        xload(128 if XD == 2 else 48)
        a(f"s_waitcnt vmcnt({4*(XD-1)})")
        fs(a, prof, 0, 4)
        s_head(48, tag)
        a(f"s_cbranch_vccnz {L(n + '_xr')}")
        stamp(a, prof, 2)
        fs(a, prof, 1, 4)
        s_rest(48)
        a.label(L(n + '_xj'))
        fs(a, prof, 2, 4)
        a("s_nop 0")
        a("v_max_f32_dpp v16, v74, v74 row_ror:8 row_mask:0xf bank_mask:0xf")
        a("v_max3_f32 v16, v16, v68, v69"); a("v_max3_f32 v16, v16, v70, v71")
        a("s_nop 3")
        a("v_max3_f32 v16, v16, v64, v65"); a("v_max3_f32 v16, v16, v66, v67")
        fs(a, prof, 3, 4)
        a("v_mov_b32 v17, v16"); a(f"v_mov_b32_dpp v64, v68 {dpp}"); a(f"v_mov_b32_dpp v65, v69 {dpp}")
        a("v_permlane16_swap_b32 v16, v17"); a("v_max_f32 v16, v16, v17")
        a("v_mov_b32 v17, v16"); a(f"v_mov_b32_dpp v66, v70 {dpp}"); a(f"v_mov_b32_dpp v67, v71 {dpp}")
        a("v_permlane32_swap_b32 v16, v17"); a("v_max_f32 v16, v16, v17")
        fs(a, prof, 4, 4)
        a("v_mul_f32 v16, s46, v16")
        a("s_nop 1")
        a(f"v_mov_b32_dpp v16, v16 {dpp}")
        for rg in (74, 64, 65, 66, 67): a(f"v_fma_f32 v{rg}, v{rg}, s46, -v16")
        a("v_exp_f32 v74, v74"); a("v_exp_f32 v64, v64")
        a("v_cvt_pk_bf16_f32 v82, v74, v74")
        a("v_exp_f32 v65, v65")
        a(f"ds_write_b16 v10, v82 offset:{L_P + 1024}")
        a("v_exp_f32 v66, v66")
        a(f"ds_write_b16 v10, v82 offset:{L_P + 1280}")
        a("v_exp_f32 v67, v67")
        a("v_cvt_pk_bf16_f32 v80, v64, v65")
        a("v_cvt_pk_bf16_f32 v81, v66, v67")
        a(f"ds_write_b64 v9, v[80:81] offset:{L_P}")
        fs(a, prof, 5, 4)
        a("s_waitcnt lgkmcnt(0)"); fs(a, prof, 6, 4); a("s_barrier"); fs(a, prof, 7, 4)
        stamp(a, prof, 3)
        k_load()
        step_end()
    a(f"s_branch {L('s_loop')}")
    for tag in range(2):
        n = f"s{tag}"
        p1_retry(n)
        a.label(L(n + '_xr'))
        if XD == 2:
            xload(48)
            a("s_waitcnt vmcnt(4)")
            s_head(128, tag)
            a(f"s_cbranch_vccnz {L(n + '_xg')}")
            stamp(a, prof, 2)
            s_rest(128)
            a(f"s_branch {L(n + '_xj')}")
            a.label(L(n + '_xg'))
        guard(a, L(n + '_xp'), FAIL)

    a.label(L('s_first')); a("s_barrier"); k_load(); a("s_waitcnt lgkmcnt(0)"); a("s_barrier"); a(f"s_branch {L('s_fj')}")

    a.label(L('setup_vo'))
    a("v_add_u32 v8, 0x1000, v6"); a("v_lshrrev_b32 v9, 4, v0")
    a("s_lshl_b32 s36, s19, 5"); a("s_lshl_b32 s42, s21, 3"); a("s_add_u32 s36, s36, s42")
    a("v_add_u32 v9, s36, v9"); a("v_bfe_u32 v11, v0, 3, 1"); a("v_lshl_add_u32 v9, v11, 2, v9")
    a("v_and_b32 v11, 1, v9"); a("v_lshlrev_b32 v11, 12, v11"); a("v_lshrrev_b32 v9, 1, v9"); a("v_lshl_add_u32 v9, v9, 14, v11")
    a("v_and_b32 v11, 7, v0"); a("v_lshl_add_u32 v9, v11, 4, v9"); a("s_lshl_b32 s36, s18, 7"); a("v_add_u32 v9, s36, v9")
    a("v_lshrrev_b32 v12, 4, v0"); a("v_and_b32 v13, 7, v0"); a("v_lshl_add_u32 v12, v12, 3, v13"); a("v_lshlrev_b32 v12, 4, v12"); a(f"v_add_u32 v12, {L_P}, v12"); a(f"v_mov_b32 v11, {L_ZERO}")
    a("v_and_b32 v13, 8, v0"); a("v_cmp_eq_u32 vcc, 0, v13"); a("s_nop 1")
    a("v_cndmask_b32 v13, v12, v11, vcc"); a("v_cndmask_b32 v12, v11, v12, vcc")
    a(f"v_add_u32 v14, {L_VX}, v6")
    a("s_lshr_b32 s36, s21, 1"); a(f"s_mul_i32 s54, s36, {WS_VX - WS_KX}"); a(f"s_mul_i32 s55, s36, {L_VX - L_KX}")
    a("s_and_b32 s36, s21, 1"); a("s_lshl_b32 s36, s36, 12"); a("s_add_u32 s54, s54, s36"); a("s_add_u32 s55, s55, s36"); a(f"s_add_u32 s55, s55, {L_KX}")
    a("s_lshl_b32 s36, s18, 14"); a("s_add_u32 s54, s54, s36"); a(f"s_add_u32 s54, s54, {WS_KX}")
    def u_load():
        for i in range(8): a(f"ds_read_b128 v[{16+4*i}:{19+4*i}], v14 offset:{1024*i}")
        a("v_xor_b32 v14, 0x2000, v14")
    def u_half(hf):
        for jj in range(4):
            for c2 in range(2):
                for kt in range(2):
                    d = 64 + (c2*2 + kt)*4
                    A = 16 + (kt*4 + jj)*4
                    a(f"v_mfma_f32_16x16x32_bf16 v[{d}:{d+3}], v[{A}:{A+3}], {wo_reg(2*hf+c2, jj)}, " + ("0" if jj == 0 else f"v[{d}:{d+3}]"))
        a("s_nop 7")
        for c2 in range(2):
            for kt in range(2):
                d = 64 + (c2*2 + kt)*4
                u = 80 + (2*hf + c2)*4 + kt*2
                a(f"v_cvt_pk_bf16_f32 v{u}, v{d}, v{d+1}"); a(f"v_cvt_pk_bf16_f32 v{u+1}, v{d+2}, v{d+3}")
    def vo_prep(tag, ahead):
        for i in range(4): a(f"v_mov_b32 v{56+i}, 0x3f803f80")
        for i in range(4): a(f"v_mov_b32 v{60+i}, 0x3f003f00")
        for i in range(16): a(f"v_mov_b32 v{64+i}, 0")
        a(f"s_add_u32 s53, s22, {2 + ahead}"); a("s_min_u32 s53, s53, 63"); a("s_lshl_b32 s53, s53, 19"); a("s_add_u32 s53, s53, s54"); near(a, 48, "s53", kv=True)
        a(f"s_add_u32 m0, s55, {tag*8192}")
    vo_prep(0, 0)
    zero_acc()
    if PAR["PRIO"]: a("s_setprio 1")
    a(f"s_branch {L('o0_in')}")
    a.label(L('o_loop'))
    for tag in range(2):
        n = f"o{tag}"
        p1(n)
        if tag == (NSTEP - 1) & 1:
            a(f"s_cmp_eq_u32 s22, {NSTEP-1}"); a(f"s_cbranch_scc1 {L('fin')}")
        if PAR["VDEL"]: a(f"s_sleep {PAR['VDEL']}")
        a.label(L(n + '_vp'))
        for k in range(2): a(f"global_load_dwordx4 v[{48+4*k}:{51+4*k}], v8, s[32:33] offset:{1024*k} sc1")
        a("s_waitcnt vmcnt(0)")
        tagchk(a, list(range(48, 56)), tag, 17, 16)
        a(f"s_cbranch_vccnz {L(n + '_vr')}")
        for k in range(2):
            for ct in range(4):
                b = 96 + (ct*4 + 2*k)*4
                a(f"v_smfmac_f32_16x16x64_bf16 v[{64+4*ct}:{67+4*ct}], v[{48+4*k}:{51+4*k}], v[{b}:{b+7}], v2")
        a("s_nop 4")
        for ct in range(4):
            if ct == 3: a("s_nop 1")
            t = 24 + (ct & 1)*4 + (ct >> 1)*2
            a(f"v_cvt_pk_bf16_f32 v{t}, v{64+4*ct}, v{65+4*ct}"); a(f"v_cvt_pk_bf16_f32 v{t+1}, v{66+4*ct}, v{67+4*ct}")
        if tag == 0:
            a("s_cmp_eq_u32 s22, 0"); a(f"s_cbranch_scc1 {L('o_first')}")
            a.label(L('o_fj'))
        if "nodma" not in OPT:
            for jj in range(4): a(f"global_load_lds_dwordx4 v6, s[48:49] offset:{jj*1024} sc1")
        stamp(a, prof, 3)
        a("s_barrier")
        a("ds_read_b64 v[36:37], v12 offset:1024"); a("ds_read_b64 v[38:39], v13 offset:1024")
        a("ds_read_b128 v[32:35], v12"); a("ds_read_b128 v[48:51], v13")
        a("s_waitcnt lgkmcnt(2)")
        stamp(a, prof, 4)
        a("v_mfma_f32_16x16x32_bf16 v[40:43], v[60:63], v[36:39], 0")
        a("v_mfma_f32_16x16x32_bf16 v[64:67], v[24:27], v[36:39], 0")
        a("s_waitcnt lgkmcnt(0)")
        a("v_or_b32 v44, v32, v48"); a("v_or_b32 v45, v33, v49")
        a("v_or_b32 v46, v34, v50"); a("v_or_b32 v47, v35, v51")
        a("v_mfma_f32_16x16x32_bf16 v[64:67], v[80:83], v[32:35], v[64:67]")
        a("v_mfma_f32_16x16x32_bf16 v[68:71], v[28:31], v[36:39], 0")
        a("v_mfma_f32_16x16x32_bf16 v[40:43], v[56:59], v[44:47], v[40:43]")
        a("v_mfma_f32_16x16x32_bf16 v[64:67], v[88:91], v[48:51], v[64:67]")
        a("v_mfma_f32_16x16x32_bf16 v[68:71], v[84:87], v[32:35], v[68:71]")
        a("v_mfma_f32_16x16x32_bf16 v[68:71], v[92:95], v[48:51], v[68:71]")
        a("s_nop 4")
        a("v_rcp_f32 v40, v40")
        a("s_nop 0")
        tg = lambda x: a(f"v_or_b32 v{x}, 1, v{x}" if tag else f"v_and_b32 v{x}, -2, v{x}")
        for h in range(2):
            for i in range(2): a(f"v_pk_mul_f32 v[{64+4*h+2*i}:{65+4*h+2*i}], v[{64+4*h+2*i}:{65+4*h+2*i}], v[40:41] op_sel_hi:[1,0]")
            for i in range(2): a(f"v_cvt_pk_bf16_f32 v{48+2*h+i}, v{64+4*h+2*i}, v{65+4*h+2*i}")
        for i in range(4): tg(48 + i)
        a("global_store_dwordx4 v9, v[48:51], s[26:27] sc1")
        stamp(a, prof, 5)
        u_load(); a("s_waitcnt lgkmcnt(0)"); u_half(0)
        u_half(1)
        vo_prep(tag ^ 1, 1)
        step_end()
    a(f"s_branch {L('o_loop')}")
    for tag in range(2):
        n = f"o{tag}"
        p1_retry(n)
        a.label(L(n + '_vr')); guard(a, L(n + '_vp'), FAIL)

    a.label(L('o_first'))
    for i in range(8): a(f"v_mov_b32 v{48+i}, v{24+i}")
    a("s_barrier")
    u_load(); a("s_waitcnt lgkmcnt(0)"); a("s_barrier"); u_half(0); u_half(1)
    for i in range(8): a(f"v_mov_b32 v{24+i}, v{48+i}")
    a(f"s_branch {L('o_fj')}")

    a.label(L('last_pub'))
    a("s_nop 7")
    a("v_cvt_pk_bf16_f32 v88, v80, v81"); a("v_cvt_pk_bf16_f32 v89, v82, v83")
    a("s_or_b32 s36, s19, s37"); a("s_and_b32 s36, s36, 2"); a(f"s_cbranch_scc0 {L('fin')}")
    a("global_store_dwordx2 v10, v[88:89], s[30:31] sc1")
    a.label(L('fin'))
    a("s_waitcnt vmcnt(0)"); a("s_barrier")
    a("s_cmp_eq_u32 s21, 0"); a(f"s_cbranch_scc0 {L('end')}")
    head_word(str(NSTEP - 1))
    if "span" in OPT:
        a("s_and_b32 s98, s20, 15"); a("s_cmp_lg_u32 s98, 0"); a(f"s_cbranch_scc1 {L('end')}")
        a("s_memrealtime s[98:99]"); a("s_waitcnt lgkmcnt(0)"); a("v_mov_b32 v5, s98"); a("v_mov_b32 v2, 0")
        a("s_mov_b64 exec, 1"); a("global_atomic_umax v2, v5, s[14:15] offset:56 sc1"); a("s_mov_b64 exec, -1")
    if "diag" in OPT:
        a("s_cmp_eq_u32 s20, 0"); a(f"s_cbranch_scc0 {L('end')}")
        a("s_memrealtime s[56:57]"); a("s_waitcnt lgkmcnt(0)"); a("s_sub_u32 s70, s56, s98"); a("s_sub_u32 s71, s98, s97")
        a("s_mov_b64 exec, 1")
        a("s_mov_b32 s72, 0"); a("s_mov_b32 s73, 0"); a("s_mov_b32 s74, 0"); a("v_mov_b32 v18, 0")
        a.label(L('dg'))
        for k in range(2):
            a("s_lshl_b32 s36, s74, 21"); a(f"s_add_u32 s36, s36, {0x10000 + k*0x2000}"); a("v_mov_b32 v16, s36")
            for rep in range(2):
                a("s_memtime s[56:57]"); a("s_waitcnt lgkmcnt(0)")
                a("global_atomic_or v17, v16, v18, s[16:17] sc0 sc1"); a("s_waitcnt vmcnt(0)")
                a("s_memtime s[58:59]"); a("s_waitcnt lgkmcnt(0)")
            a(f"s_sub_u32 s{76+k}, s58, s56")
        a("s_cmp_lt_u32 s77, s76"); a("s_cselect_b32 s78, 1, 0"); a("s_mov_b32 s79, 0"); a("s_lshl_b64 s[78:79], s[78:79], s74"); a("s_or_b64 s[72:73], s[72:73], s[78:79]")
        a("s_add_u32 s74, s74, 1"); a("s_cmp_lt_u32 s74, 64"); a(f"s_cbranch_scc1 {L('dg')}")
        for k in range(4): a(f"v_mov_b32 v{20+k}, s{70+k}")
        a("global_store_dwordx4 v18, v[20:23], s[14:15] offset:48")
        a("s_mov_b64 exec, -1")
    a(f"s_branch {L('end')}")
    a.label(FAIL)
    a("v_mov_b32 v16, 0"); a("v_mov_b32 v17, 0xdead"); a("global_store_dword v16, v17, s[14:15] offset:252")
    a.label(L('end'))
    if prof:
        if prof == 3:
            a("s_memrealtime s[56:57]"); a("s_waitcnt lgkmcnt(0)"); a("s_mov_b32 s61, s56"); a("s_mov_b32 s62, s25"); a("s_mov_b32 s63, s90"); a("s_mov_b32 s64, s91"); a("s_mov_b32 s65, s89")
        if prof == 3:
            a("s_cmp_eq_u32 s21, 5"); a(f"s_cbranch_scc0 {L('nost')}")
            a("s_lshl_b32 s36, s20, 9"); a(f"s_add_u32 s36, s36, {203<<20}"); a("v_lshrrev_b32 v16, 1, v6"); a("v_add_u32 v16, s36, v16")
            a("global_store_dwordx2 v16, v[150:151], s[16:17]")
            a.label(L('nost'))
        if prof > 3:
            a("s_waitcnt lgkmcnt(0)")
            for k in range(8): a(f"s_sub_u32 s{60+k if k < 6 else 84+k}, s{66+2*k}, s66")
            a("s_mov_b32 s66, s90"); a("s_mov_b32 s67, s91")
        a("s_lshl_b32 s36, s20, 3"); a("s_add_u32 s36, s36, s21"); a("s_lshl_b32 s36, s36, 5"); a(f"s_add_u32 s36, s36, {200<<20}")
        a("v_mov_b32 v16, s36")
        for k in range(8): a(f"v_mov_b32 v{24+k}, s{60+k}")
        a("s_mov_b64 exec, 1")
        a("global_store_dwordx4 v16, v[24:27], s[16:17]"); a("global_store_dwordx4 v16, v[28:31], s[16:17] offset:16")
    a("s_endpgm")
```

```python
import sys, os
sys.path.insert(0, os.path.dirname(__file__))
from asmgen import *
import gemm
import rec2 as rec
from gemm import acc, R

NAME = "concat_heads__linear_attn_block__memory_aug_recurrent_mem_tr__prompt"
WS_O   = 84 << 20
WS_OA  = 116 << 20
WS_KVP = 124 << 20
OA_T = 65536
WS_INBOX = 142 << 20
D_OVF, D_AKV, D_KV, D_AO, D_O = 32, 36, 64, 96, 128
D_PROG = rec.DBG_PROG
WSPIN = 400000
TSET = "1111101012012010"
def setmask(k): return sum(1 << t for t in range(16) if int(TSET[t]) == k)
LOG2E = 0x3fb8aa3b
EPS = 0x358637bd
SCL = 0x3e0293ee


def load_ptrs(a):
    a("s_load_dwordx16 s[4:19], s[0:1], 0"); a("s_load_dwordx2 s[20:21], s[0:1], 64")
    a("s_load_dwordx4 s[24:27], s[0:1], 80"); a("s_load_dwordx2 s[28:29], s[0:1], 96")

def signal(a, off_sgpr_or_imm, val=1):
    lab = a.newlabel("sig")
    a("s_waitcnt vmcnt(0)"); a("s_barrier")
    a("s_cmp_lg_u32 s75, 0"); a(f"s_cbranch_scc1 {lab}")
    a(f"v_mov_b32 v16, {off_sgpr_or_imm}"); a(f"v_mov_b32 v17, {val}")
    a("s_mov_b64 exec, 1")
    a("global_atomic_add v16, v17, s[26:27] sc1")
    a("s_mov_b64 exec, -1")
    a.label(lab)

def wait_cnt(a, off, target, inv=True):
    lp, ok, done = a.newlabel("wl"), a.newlabel("wo"), a.newlabel("wd")
    a("s_cmp_lg_u32 s75, 0"); a(f"s_cbranch_scc1 {done}")
    a(f"v_mov_b32 v16, {off}")
    a.label(lp)
    a("global_load_dword v17, v16, s[26:27] sc1"); a("s_waitcnt vmcnt(0)")
    a(f"v_cmp_ne_u32 vcc, {target}, v17"); a(f"s_cbranch_vccz {ok}")
    a("s_sleep 8")
    a("s_add_u32 s46, s46, 1"); a(f"s_cmp_lt_u32 s46, {WSPIN}"); a(f"s_cbranch_scc1 {lp}")
    a("s_branch w_fail")
    a.label(ok)
    if inv: a("buffer_inv sc1"); a("s_waitcnt vmcnt(0)")
    a.label(done)
    a("s_barrier")

def learn_parity(a):
    lp, ok = a.newlabel("vl"), a.newlabel("vo")
    a.label(lp)
    a("s_waitcnt vmcnt(0)")
    a("v_readfirstlane_b32 s22, v18"); a("v_readfirstlane_b32 s34, v19")
    a("s_and_b32 s32, s22, 0xffff"); a("s_add_u32 s32, s32, s34"); a("s_cmp_eq_u32 s32, 256"); a(f"s_cbranch_scc1 {ok}")
    a("s_sleep 8")
    a(f"global_load_dwordx2 v[18:19], v16, s[26:27] offset:{rec.DBG_VOTE} sc1")
    a("s_add_u32 s46, s46, 1"); a(f"s_cmp_lt_u32 s46, {WSPIN}"); a(f"s_cbranch_scc1 {lp}")
    a("s_branch w_fail")
    a.label(ok)
    a("s_lshr_b32 s22, s22, 16"); a("s_cmp_gt_u32 s22, 64"); a("s_cselect_b32 s22, 1, 0")

def phi(a, regs):
    for i in range(0, len(regs), 8):
        b = regs[i:i+8]
        for k, r in enumerate(b): a(f"v_mul_f32 v{16+k}, s40, v{r}")
        for k, r in enumerate(b): a(f"v_min_f32 v{16+k}, 0, v{16+k}")
        for k, r in enumerate(b): a(f"v_exp_f32 v{16+k}, v{16+k}")
        for k, r in enumerate(b): a(f"v_max_f32 v{r}, 0, v{r}")
        for k, r in enumerate(b): a(f"v_add_f32 v{r}, v{r}, v{16+k}")
        for k, r in enumerate(b): a(f"v_add_f32 v{r}, s41, v{r}")

def pack_frags(a):
    for tt in range(4):
        for jj in range(4):
            s = acc(tt, 2*jj); d = 32 + (tt*4 + jj)*4
            for i in range(4): a(f"v_cvt_pk_bf16_f32 v{d+i}, v{s+2*i}, v{s+2*i+1}")
def frag(tt, jj): return R('v', 32 + (tt*4 + jj)*4)

PROF = False
def wstamp(a, k):
    if not PROF: return
    lab = a.newlabel("ws")
    a("s_cmp_lg_u32 s75, 0"); a(f"s_cbranch_scc1 {lab}")
    a("s_memrealtime s[56:57]"); a("s_waitcnt lgkmcnt(0)")
    a("s_lshl_b32 s58, s97, 7"); a("s_lshl_b32 s57, s59, 2"); a("s_add_u32 s58, s58, s57"); a(f"s_add_u32 s58, s58, {201 << 20}")
    a("v_mov_b32 v16, s58"); a("v_mov_b32 v17, s56"); a("global_store_dword v16, v17, s[28:29]")
    a("s_memtime s[56:57]"); a("s_waitcnt lgkmcnt(0)"); a("v_mov_b32 v17, s56"); a("v_add_u32 v16, 0x100000, v16"); a("global_store_dword v16, v17, s[28:29]")
    a("s_add_u32 s59, s59, 1")
    a.label(lab)

def tstamp(a, ev, v0=126, v1=127):
    if not PROF: return
    a("s_memrealtime s[56:57]"); a("s_waitcnt lgkmcnt(0)")
    a("s_lshl_b32 s58, s96, 2"); a(f"s_add_u32 s58, s58, {(204 << 20) + ev*8192}")
    a(f"v_mov_b32 v{v0}, s58"); a(f"v_mov_b32 v{v1}, s56"); a(f"global_store_dword v{v0}, v{v1}, s[28:29]")

def wside(a, dst, off, tmp):
    rec.near(a, dst, off, "s22", 28, tmp, kv=True)

def task_g1(a, MT, grp):
    gemm.setup_a_rowmajor(a, 2048, MT); gemm.setup_w(a, 8192)
    a("s_lshl_b32 s32, s31, 15"); a("s_add_u32 s80, s10, s32"); a("s_addc_u32 s81, s11, 0")
    a("s_cmp_lt_u32 s30, 16"); a("s_cselect_b32 s82, s16, s18"); a("s_cselect_b32 s83, s17, s19")
    a(f"s_cselect_b32 s33, {rec.WS_KX >> 20}, {rec.WS_VX >> 20}"); a("s_lshl_b32 s33, s33, 20")
    a("s_and_b32 s35, s30, 15"); a("s_lshl_b32 s32, s35, 9"); a("s_add_u32 s82, s82, s32"); a("s_addc_u32 s83, s83, 0")
    a("s_mov_b32 s66, 7")
    if grp == 0 and rec.PAR["WPF"]:
        a("s_cmp_lt_u32 s44, 2"); a("s_cbranch_scc1 no_wpf")
        a("s_and_b32 s34, s44, 1"); a("s_lshl_b32 s34, s34, 3"); a("s_add_u32 s34, s34, s75")
        nx = rec.PAR["WPF"]
        a("s_and_b32 s32, s45, 7"); a("s_lshl_b32 s32, s32, 4"); a("s_add_u32 s32, s32, s34"); a(f"s_lshl_b32 s32, s32, {11 + nx}")
        a(f"v_and_b32 v16, {32*nx - 1}, v0"); a("v_lshl_add_u32 v16, v16, 7, s32")
        a("global_load_dword a95, v16, s[10:11]")
        a("v_lshrrev_b32 v16, 2, v0"); a("v_lshlrev_b32 v16, 13, v16"); a("v_and_b32 v17, 3, v0"); a("v_lshl_add_u32 v16, v17, 7, v16")
        a("s_lshl_b32 s32, s34, 17"); a("v_add_u32 v16, s32, v16")
        for i in range(4):
            a("global_load_dword a95, v16, s[82:83]")
            a(f"v_add_u32 v16, {256*8192}, v16")
            if i < 3: a("s_barrier")
        a.label("no_wpf")
    def first_signal(n):
        lab = a.newlabel("sig")
        a(f"s_waitcnt vmcnt({n})"); a("s_barrier")
        a("s_cmp_lg_u32 s75, 0"); a(f"s_cbranch_scc1 {lab}")
        a("v_mov_b32 v16, s88"); a("v_mov_b32 v17, 0")
        a("s_mov_b64 exec, 1"); a("global_store_dword v16, v17, s[28:29] sc1"); a("s_mov_b64 exec, -1")
        a.label(lab)
        wstamp(a, 0)
    ST = rec.PAR["ST"]
    if grp == 1:
        if ST == 0:
            gemm.prologue(a, MT); first_signal(8 + 2*MT)
        else:
            first_signal(0)
            if ST == 1:
                a("s_mul_i32 s32, s96, 3072"); a(f"s_add_u32 s32, s32, {1 << 20}"); a("v_lshlrev_b32 v20, 6, v0"); a("v_min_u32 v20, 3008, v20"); a("v_add_u32 v20, s32, v20")
                a("global_load_dword a95, v20, s[10:11]")
    gemm.call(a, f"core_T{MT}" + ("_m" if grp == 1 and ST == 0 else ""))
    if grp == 0: learn_parity(a)
    wstamp(a, 0)
    a("s_lshl_b32 s34, s35, 1"); a("s_add_u32 s34, s34, s73"); a("s_lshl_b32 s34, s34, 14"); a("s_add_u32 s33, s33, s34")
    a(f"s_mul_i32 s36, s72, {MT}"); a("s_add_u32 s36, s36, s31")
    a("v_lshlrev_b32 v19, 4, v0")
    for tt in range(MT):
        a(f"s_add_u32 s32, s36, {tt}"); a("s_and_b32 s34, s32, 1"); a("s_lshl_b32 s34, s34, 12"); a("s_lshr_b32 s32, s32, 1"); a("s_lshl_b32 s32, s32, 19")
        a("s_add_u32 s32, s32, s34"); a("s_add_u32 s32, s32, s33")
        rec.near_bit(a, "s34", "s32", "s22", True); a("s_add_u32 s32, s32, s34")
        a(f"v_add_u32 v{20+tt}, s32, v19")
    a("s_lshl_b32 s88, s23, 7"); a("s_lshl_b32 s32, s30, 2"); a("s_add_u32 s88, s88, s32"); a(f"s_add_u32 s88, s88, {rec.WS_FLAG + (96 + 4*grp)*128}")
    if grp == 0: gemm.epi_frag_store(a, "s[28:29]", "sc1", MT)
    else:
        a("s_mov_b32 s89, 1"); a("s_mov_b32 s77, 1")

def touches(a, parts):
    for i, (p, fix, per, first, n) in enumerate(parts):
        a(f"s_mul_i32 s32, s96, {per*1024}"); a(f"s_add_u32 s32, s32, {fix + first*1024}")
        a(f"s_add_u32 s{90+2*i}, s{p}, s32"); a(f"s_addc_u32 s{91+2*i}, s{p+1}, 0"); a(f"s_mov_b32 s{99+i}, {n*1024 - 64}")
    a("s_mov_b32 s98, 1")

def task_g4kv(a):
    def colmap(a, v):
        a(f"v_bfe_u32 v18, v{v}, 3, 1"); a("v_lshlrev_b32 v18, 11, v18")
        a(f"v_lshrrev_b32 v19, 4, v{v}"); a("v_lshl_add_u32 v18, v19, 7, v18")
        a(f"v_and_b32 v{v}, 7, v{v}"); a(f"v_lshl_add_u32 v{v}, v{v}, 4, v18")
    gemm.setup_a_rowmajor(a, 2048); gemm.setup_w(a, 6144, colmap)
    a("s_lshl_b32 s32, s31, 19"); a("s_add_u32 s80, s4, s32"); a("s_addc_u32 s81, s5, 0")
    a("s_lshl_b32 s32, s30, 8"); a("s_add_u32 s32, s32, 2048"); a("s_add_u32 s82, s6, s32"); a("s_addc_u32 s83, s7, 0")
    a("s_mov_b32 s66, 7")
    gemm.call(a, "core_N")
    wstamp(a, 0)
    a(f"s_mov_b32 s40, {LOG2E}"); a(f"s_mov_b32 s41, {EPS}")
    phi(a, [acc(tt, 0) + i for tt in range(4) for i in range(16)])
    for tp in range(2):
        for ft in range(8):
            x = acc(2*tp, ft); y = acc(2*tp+1, ft)
            a(f"v_cvt_pk_bf16_f32 v{x}, v{x}, v{x+1}"); a(f"v_cvt_pk_bf16_f32 v{x+1}, v{x+2}, v{x+3}")
            a(f"v_cvt_pk_bf16_f32 v{x+2}, v{y}, v{y+1}"); a(f"v_cvt_pk_bf16_f32 v{x+3}, v{y+2}, v{y+3}")
    for i in range(4): a(f"v_mov_b32 v{16+i}, 0x3f803f80")
    a("v_lshlrev_b32 v20, 4, v0"); a("s_mul_i32 s32, s73, 49152"); a("s_lshl_b32 s33, s72, 10"); a("s_add_u32 s32, s32, s33"); a("v_add_u32 v21, s32, v20")
    outb = lambda hd, et, dt: (64 if hd == 0 else 128) + (et*2 + dt)*4
    for tp in range(2):
        for hd in range(2):
            for et in range(3):
                for dt in range(2):
                    D = R('v', outb(hd, et, dt)); A = R('v', acc(2*tp, 2*hd + dt)); B = R('v', acc(2*tp, 4 + 2*hd + et)) if et < 2 else "v[16:19]"
                    a(f"v_mfma_f32_16x16x32_bf16 {D}, {A}, {B}, " + ("0" if tp == 0 else D))
    a("s_barrier")
    a("s_nop 7")
    for hd in range(2):
        for f in range(6):
            a(f"ds_write_b128 v21, {R('v', outb(hd, f >> 1, f & 1))} offset:{(hd*6 + f)*4096}")
    a("s_mul_i32 s32, s75, 12288"); a("v_add_u32 v21, s32, v20")
    a("s_waitcnt lgkmcnt(0)"); a("s_barrier")
    for k in range(3):
        for m in range(4): a(f"ds_read_b128 {R('v', 32 + (k*4 + m)*4)}, v21 offset:{k*4096 + m*1024}")
    a("s_lshl_b32 s32, s31, 5"); a("s_lshl_b32 s33, s30, 2"); a("s_add_u32 s32, s32, s33"); a("s_mul_i32 s32, s32, 6144")
    a("s_mul_i32 s33, s75, 3072"); a("s_add_u32 s32, s32, s33"); a(f"s_add_u32 s32, s32, {WS_KVP}"); a("v_add_u32 v22, s32, v20")
    a("s_waitcnt lgkmcnt(0)")
    for k in range(3):
        b = 32 + k*16
        for h in range(2):
            a(f"v_pk_add_f32 v[{b+2*h}:{b+2*h+1}], v[{b+2*h}:{b+2*h+1}], v[{b+4+2*h}:{b+5+2*h}]")
            a(f"v_pk_add_f32 v[{b+8+2*h}:{b+9+2*h}], v[{b+8+2*h}:{b+9+2*h}], v[{b+12+2*h}:{b+13+2*h}]")
        for h in range(2):
            a(f"v_pk_add_f32 v[{b+2*h}:{b+2*h+1}], v[{b+2*h}:{b+2*h+1}], v[{b+8+2*h}:{b+9+2*h}]")
        a(f"global_store_dwordx4 v22, {R('v', b)}, s[28:29] offset:{k*1024} sc1")
    signal(a, D_AKV)

def task_g4q(a):
    gemm.setup_a_rowmajor(a, 2048); gemm.setup_w(a, 6144)
    a("s_lshl_b32 s32, s31, 19"); a("s_add_u32 s80, s4, s32"); a("s_addc_u32 s81, s5, 0")
    a("s_lshl_b32 s32, s30, 9"); a("s_add_u32 s82, s6, s32"); a("s_addc_u32 s83, s7, 0")
    a("s_mov_b32 s66, 7")
    gemm.call(a, "core_T")
    wstamp(a, 0)
    a(f"s_mov_b32 s40, {LOG2E}"); a(f"s_mov_b32 s41, {EPS}")
    phi(a, list(range(32, 160)))
    pack_frags(a)
    wstamp(a, 0)
    wait_cnt(a, D_AKV, 64, False)
    wstamp(a, 0)
    a("v_lshlrev_b32 v16, 4, v0")
    for r in range(1, 8): a(f"v_add_u32 v{16+r}, {r*196608}, v16")
    a("s_lshl_b32 s32, s30, 3"); a("s_add_u32 s32, s32, s75"); a("s_mul_i32 s32, s32, 6144"); a(f"s_add_u32 s32, s32, {WS_KVP}")
    a("s_add_u32 s34, s28, s32"); a("s_addc_u32 s35, s29, 0")
    a("s_mul_i32 s32, s75, 3072"); a("v_add_u32 v24, s32, v16")
    for et in range(3):
        for r in range(8):
            for dt in range(2):
                a(f"global_load_dwordx4 {R('v', 96 + (r*2 + dt)*4)}, v{16+r}, s[34:35] offset:{dt*1024} sc1")
        a("s_add_u32 s34, s34, 2048"); a("s_addc_u32 s35, s35, 0")
        a("s_waitcnt vmcnt(0)")
        for step in (32, 16, 8):
            for i in range(0, step, 2):
                a(f"v_pk_add_f32 v[{96+i}:{97+i}], v[{96+i}:{97+i}], v[{96+step+i}:{97+step+i}]")
        for i in range(4): a(f"v_cvt_pk_bf16_f32 v{28+i}, v{96+2*i}, v{97+2*i}")
        a(f"ds_write_b128 v24, v[28:31] offset:{et*1024}")
    a("s_mul_i32 s32, s73, 12288"); a("v_add_u32 v24, s32, v16")
    a("s_waitcnt lgkmcnt(0)"); a("s_barrier")
    for i in range(12): a(f"ds_read_b128 {R('a', i*4)}, v24 offset:{i*1024}")
    gemm.lane_chunk(a, 25, 26)
    a("v_and_b32 v26, 15, v0"); a("v_lshl_add_u32 v25, v25, 4, v26"); a("v_lshlrev_b32 v25, 4, v25")
    a("s_lshl_b32 s32, s31, 4"); a("s_lshl_b32 s33, s72, 2"); a("s_add_u32 s32, s32, s33"); a(f"s_mul_i32 s32, s32, {OA_T}")
    a("s_lshl_b32 s33, s30, 14"); a("s_add_u32 s32, s32, s33"); a("s_lshl_b32 s33, s73, 12"); a("s_add_u32 s32, s32, s33"); a(f"s_add_u32 s32, s32, {WS_OA}")
    rec.near_bit(a, "s33", "s32", "s22", True); a("s_add_u32 s32, s32, s33")
    a("v_add_u32 v20, s32, v25")
    for tt in range(1, 4): a(f"v_add_u32 v{20+tt}, {tt*OA_T}, v20")
    a("s_waitcnt lgkmcnt(0)")
    for hd in range(4):
        for tt in range(4):
            b = 96 + tt*12
            for et in (2, 0, 1):
                a(f"v_mfma_f32_16x16x32_bf16 {R('v', b + et*4)}, {R('a', (hd*3 + et)*4)}, {frag(tt, hd)}, 0")
        a("s_nop 7")
        for tt in range(4):
            b = 96 + tt*12
            a(f"v_add_f32 v{b+8}, s41, v{b+8}")
        for tt in range(4):
            b = 96 + tt*12
            a(f"v_rcp_f32 v{b+8}, v{b+8}")
        for tt in range(4):
            b = 96 + tt*12
            a(f"v_mov_b32 v{b+9}, v{b+8}")
            for i in range(0, 8, 2): a(f"v_pk_mul_f32 v[{b+i}:{b+i+1}], v[{b+i}:{b+i+1}], v[{b+8}:{b+9}]")
            t = 144 + tt*4
            gemm.pack_swap(a, t, b)
            a(f"global_store_dwordx4 v{20+tt}, {R('v', t)}, s[28:29] offset:{hd*1024} sc1")
    a("s_lshl_b32 s32, s31, 2"); a(f"s_add_u32 s32, s32, {D_AO}")
    signal(a, "s32")

def out_offsets(a, MT):
    gemm.lane_chunk(a, 25, 26)
    a("v_and_b32 v26, 15, v0"); a("v_lshlrev_b32 v26, 12, v26"); a("v_lshl_add_u32 v20, v25, 4, v26")
    a(f"s_mul_i32 s32, s72, {MT*16*4096}"); a("s_lshl_b32 s33, s73, 8"); a("s_add_u32 s32, s32, s33"); a("v_add_u32 v20, s32, v20")
    for tt in range(1, MT): a(f"v_add_u32 v{20+tt}, {tt*65536}, v20")

def task_g5(a):
    gemm.setup_a_frag(a, OA_T); gemm.setup_w(a, 2048)
    a("s_lshl_b32 s32, s31, 2"); a(f"s_add_u32 s32, s32, {D_AO}")
    wait_cnt(a, "s32", 4)
    wstamp(a, 0)
    a(f"s_mul_i32 s32, s31, {16*OA_T}"); a(f"s_add_u32 s32, s32, {WS_OA}"); wside(a, 80, "s32", "s33")
    a("s_lshl_b32 s32, s30, 9"); a("s_add_u32 s82, s8, s32"); a("s_addc_u32 s83, s9, 0")
    a("s_mov_b32 s66, 7")
    gemm.call(a, "core_T")
    wstamp(a, 0)
    out_offsets(a, 4)
    a("s_lshl_b32 s32, s31, 20"); a("s_lshl_b32 s33, s30, 9"); a("s_add_u32 s32, s32, s33"); a("s_add_u32 s34, s24, s32"); a("s_addc_u32 s35, s25, 0")
    gemm.epi_out_store(a, "s[34:35]", 4, "" if "outpl" in rec.OPT else "sc1")

def task_wot(a):
    a("s_barrier")
    a("v_lshrrev_b32 v2, 4, v0"); a("v_lshlrev_b32 v2, 11, v2"); a("v_and_b32 v3, 15, v0"); a("v_lshl_add_u32 v2, v3, 4, v2")
    a("s_lshl_b32 s32, s30, 18"); a("s_lshl_b32 s33, s31, 17"); a("s_add_u32 s32, s32, s33"); a("s_lshl_b32 s33, s75, 8"); a("s_add_u32 s32, s32, s33"); a("v_add_u32 v2, s32, v2")
    a("s_lshl_b32 s43, s75, 14")
    for i in range(16):
        a(f"s_add_u32 m0, s43, {i*1024}"); a("s_nop 0")
        a("global_load_lds_dwordx4 v2, s[20:21]")
        a("v_add_u32 v2, 0x2000, v2")
    a("v_lshrrev_b32 v3, 2, v0"); a("v_lshlrev_b32 v3, 8, v3"); a("v_and_b32 v16, 3, v0"); a("v_lshl_add_u32 v3, v16, 4, v3"); a("v_add_u32 v3, s43, v3")
    a("s_lshl_b32 s32, s75, 21"); a("s_lshl_b32 s33, s30, 14"); a("s_add_u32 s32, s32, s33"); a("s_lshl_b32 s33, s31, 12"); a("s_add_u32 s32, s32, s33"); a(f"s_add_u32 s32, s32, {rec.WS_WOT}")
    wside(a, 34, "s32", "s33")
    a("v_lshlrev_b32 v20, 4, v0")
    for i in range(1, 4): a(f"v_add_u32 v{20+i}, {i*rec.WOT_CG}, v20")
    a("s_waitcnt vmcnt(0)")
    for cgl in range(4):
        for jl in range(2):
            for ct in range(2):
                b = 32 + ((cgl*2 + jl)*2 + ct)*4
                for lo in range(2):
                    a(f"ds_read_b64_tr_b16 {R('v', b + 2*lo, 2)}, v3 offset:{(32*jl + 16*lo)*256 + cgl*64 + ct*8}")
        a("s_waitcnt lgkmcnt(0)")
        for jl in range(2):
            for ct in range(2):
                a(f"global_store_dwordx4 v{20+cgl}, {R('v', 32 + ((cgl*2 + jl)*2 + ct)*4)}, s[34:35] offset:{jl*2048 + ct*1024} sc1")
    a("s_lshl_b32 s32, s30, 1"); a("s_add_u32 s32, s32, s31"); a("s_lshl_b32 s32, s32, 16"); a("s_lshr_b32 s33, s75, 1"); a("s_lshl_b32 s33, s33, 14"); a("s_add_u32 s32, s32, s33")
    a("s_and_b32 s33, s75, 1"); a("s_lshl_b32 s33, s33, 12"); a("s_add_u32 s32, s32, s33"); a(f"s_add_u32 s32, s32, {WS_INBOX}")
    wside(a, 34, "s32", "s33")
    for i in range(4): a(f"v_mov_b32 v{24+i}, -1")
    for i in range(4): a(f"global_store_dwordx4 v20, v[24:27], s[34:35] offset:{i*1024} sc1")
    lab = a.newlabel("sig")
    a("s_waitcnt vmcnt(0)"); a("s_barrier")
    a("s_cmp_lg_u32 s75, 0"); a(f"s_cbranch_scc1 {lab}")
    a("s_lshl_b32 s32, s31, 7"); a("s_lshl_b32 s33, s30, 2"); a("s_add_u32 s32, s32, s33"); a(f"s_add_u32 s32, s32, {rec.WS_FLAG + 108*128}")
    a("v_mov_b32 v16, s32"); a("v_mov_b32 v17, 0")
    a("s_mov_b64 exec, 1"); a("global_store_dword v16, v17, s[28:29] sc1"); a("s_mov_b64 exec, -1")
    a.label(lab)

def task_g3(a, MT):
    sh = MT - 1
    a("s_lshl_b32 s32, s30, 3"); a("s_add_u32 s32, s32, s75"); a("s_lshl_b32 s32, s32, 19"); a(f"s_add_u32 s32, s32, {rec.WS_WOT}")
    rec.near_bit(a, "s33", "s32", "s22", True); a("s_add_u32 s32, s32, s33")
    gemm.setup_a_frag(a, 262144, MT); gemm.setup_w_frag(a, "s32")
    wot_wait(a)
    lp, ok = a.newlabel("fl"), a.newlabel("fo")
    a("s_cmp_lg_u32 s75, 0"); a(f"s_cbranch_scc1 {ok}")
    a(f"s_lshl_b32 s32, s31, {8 + sh}"); a(f"s_add_u32 s32, s32, {rec.WS_FLAG}"); a("v_lshl_add_u32 v16, v0, 2, s32")
    a.label(lp)
    a("global_load_dword v17, v16, s[28:29] sc1"); a(f"global_load_dword v19, v16, s[28:29] offset:{256*sh} sc1"); a("s_waitcnt vmcnt(0)")
    a("v_or_b32 v17, v17, v19")
    a("v_cmp_ne_u32 vcc, 0, v17"); a(f"s_cbranch_vccz {ok}")
    a("s_sleep 8")
    a("s_add_u32 s46, s46, 1"); a(f"s_cmp_lt_u32 s46, {WSPIN}"); a(f"s_cbranch_scc1 {lp}")
    a("s_branch w_fail")
    a.label(ok)
    wstamp(a, 0)
    a(f"s_lshl_b32 s32, s31, {20 + sh}"); a(f"s_add_u32 s32, s32, {WS_O}"); wside(a, 80, "s32", "s33")
    a("s_mov_b64 s[82:83], s[28:29]")
    a("s_mov_b32 s66, 31")
    a("s_add_u32 s32, s31, s30"); a("s_and_b32 s78, s32, 3"); a("s_lshl_b32 s78, s78, 11"); a("s_and_b32 s33, s32, 4"); a("s_lshl_b32 s33, s33, 12"); a("s_or_b32 s78, s78, s33")
    a("s_and_b32 s79, s32, 1"); a("s_lshl_b32 s79, s79, 12"); a("s_and_b32 s33, s32, 6"); a("s_lshl_b32 s33, s33, 13"); a("s_or_b32 s79, s79, s33")
    gemm.call(a, f"core_F{MT}")
    a("v_and_b32 v26, 15, v0"); a("v_lshlrev_b32 v26, 12, v26"); a("v_lshrrev_b32 v25, 4, v0"); a("v_lshl_add_u32 v20, v25, 4, v26")
    a(f"s_lshl_b32 s32, s72, {16 + sh}"); a("s_lshl_b32 s33, s73, 8"); a("s_add_u32 s32, s32, s33"); a("v_add_u32 v20, s32, v20"); a("v_add_u32 v21, 0x10000, v20")
    a(f"s_lshl_b32 s32, s31, {18 + sh}"); a("s_lshl_b32 s33, s30, 9"); a("s_add_u32 s32, s32, s33"); a("s_add_u32 s32, s32, 2048"); a("s_add_u32 s34, s24, s32"); a("s_addc_u32 s35, s25, 0")
    gemm.epi_frag_store(a, "s[34:35]", "sc1", MT, 64)

def softmax_cols(a, regs, t):
    a(f"v_max3_f32 v{t}, v{regs[0]}, v{regs[1]}, v{regs[2]}")
    rest = regs[3:]
    while len(rest) >= 2:
        a(f"v_max3_f32 v{t}, v{t}, v{rest[0]}, v{rest[1]}"); rest = rest[2:]
    if rest: a(f"v_max_f32 v{t}, v{t}, v{rest[0]}")
    for sw in ("16", "32"):
        a(f"v_mov_b32 v{t+1}, v{t}"); a("s_nop 1"); a(f"v_permlane{sw}_swap_b32 v{t}, v{t+1}"); a(f"v_max_f32 v{t}, v{t}, v{t+1}")
    a(f"v_mul_f32 v{t}, s40, v{t}")
    for r in regs: a(f"v_fma_f32 v{r}, v{r}, s40, -v{t}")
    for r in regs: a(f"v_exp_f32 v{r}, v{r}")

def task_g2a(a):
    a("s_and_b32 s32, s75, 4"); a("s_and_b32 s33, s75, 1"); a("s_lshl_b32 s33, s33, 1"); a("s_or_b32 s32, s32, s33"); a("s_bfe_u32 s33, s75, 0x10001"); a("s_or_b32 s32, s32, s33")
    gemm.setup_a_rowmajor(a, 2048, 4, "s32"); gemm.setup_w(a, 8192)
    a("s_lshl_b32 s32, s31, 19"); a("s_add_u32 s80, s10, s32"); a("s_addc_u32 s81, s11, 0")
    a("s_lshl_b32 s32, s30, 9"); a("s_add_u32 s82, s14, s32"); a("s_addc_u32 s83, s15, 0")
    a("s_mov_b32 s66, 7")
    gemm.call(a, "core_T")
    wstamp(a, 0)
    a("s_lshl_b32 s38, s31, 3"); a("s_and_b32 s33, s72, 2"); a("s_add_u32 s38, s38, s33"); a("s_add_u32 s38, s38, s72"); a("s_mov_b32 s39, s38"); a("s_lshl_b32 s38, s38, 5")
    a("s_lshl_b32 s42, s30, 1"); a("s_add_u32 s42, s42, s73"); a("s_add_u32 s38, s38, s42")
    a("s_lshl_b32 s34, s38, 14"); a(f"s_add_u32 s34, s34, {rec.WS_KX}"); rec.near(a, 32, "s34", "s22", 28, "s35", kv=True)
    rec.v_from_k(a, 34, 32)
    a("v_lshlrev_b32 v16, 4, v0"); a("v_add_u32 v17, 0x1000, v16"); a("v_add_u32 v18, 0x100000, v16"); a("v_add_u32 v19, 0x101000, v16")
    a("s_mul_i32 s43, s75, 20480")
    kp, kok = a.newlabel("kp"), a.newlabel("ko")
    rec.kv_tile(a, "s47", "s39", "s48"); a("s_add_u32 s49, s39, 2"); rec.kv_tile(a, "s49", "s49", "s48"); a("s_sub_u32 s49, s49, s47")
    a("s_lshl_b32 s47, s47, 7"); a("s_lshl_b32 s48, s30, 2"); a("s_add_u32 s47, s47, s48"); a(f"s_add_u32 s47, s47, {rec.WS_FLAG + 96*128}")
    a("v_and_b32 v22, s49, v0"); a("v_lshl_add_u32 v22, v22, 7, s47"); a("v_mov_b32 v23, 0")
    a.label(kp)
    a("global_load_dword v26, v22, s[28:29] sc1"); a("global_load_dword v27, v22, s[28:29] offset:64 sc1")
    a(f"global_load_dword v24, v23, s[26:27] offset:{D_PROG} sc1"); a("s_waitcnt vmcnt(0)")
    a("v_or_b32 v26, v26, v27"); a("v_cmp_ne_u32 vcc, 0, v26"); a(f"s_cbranch_vccz {kok}")
    a("s_sleep 12")
    a("s_add_u32 s46, s46, 1"); a(f"s_cmp_lt_u32 s46, {WSPIN}"); a(f"s_cbranch_scc1 {kp}")
    a("s_branch w_fail")
    a.label(kok)
    def take_progress():
        a("v_readfirstlane_b32 s48, v24"); a("s_nop 0")
        a("s_max_u32 s48, s48, 1"); a("s_sub_u32 s48, s48, 1")
    take_progress()
    a("s_barrier")
    def m_wait(seg):
        lp, ok, nf = a.newlabel("ap"), a.newlabel("ao"), a.newlabel("nf")
        a.label(lp)
        a(f"s_cmp_lt_u32 {seg}, s48"); a(f"s_cbranch_scc1 {ok}")
        a("s_cmp_lt_u32 s48, 59"); a(f"s_cbranch_scc1 {nf}")
        a("s_sleep 2")
        a("global_load_dword v24, v31, s[28:29] sc1"); a("s_waitcnt vmcnt(0)")
        a("v_readlane_b32 s49, v24, 0"); a("v_readlane_b32 s50, v24, 1"); a("s_min_i32 s49, s49, s50")
        a("v_readlane_b32 s50, v24, 2"); a("s_min_i32 s49, s49, s50"); a("v_readlane_b32 s50, v24, 3"); a("s_min_i32 s49, s49, s50")
        a("s_add_u32 s49, s49, 1"); a("s_max_u32 s48, s48, s49")
        a("s_add_u32 s46, s46, 1"); a(f"s_cmp_lt_u32 s46, {WSPIN}"); a(f"s_cbranch_scc1 {lp}")
        a("s_branch w_fail")
        a.label(nf)
        a("s_sleep 8")
        a(f"global_load_dword v24, v23, s[26:27] offset:{D_PROG} sc1"); a("s_waitcnt vmcnt(0)")
        take_progress()
        a("s_add_u32 s46, s46, 1"); a(f"s_cmp_lt_u32 s46, {WSPIN}"); a(f"s_cbranch_scc1 {lp}")
        a("s_branch w_fail")
        a.label(ok)
    def kv_loads(sg):
        for kt in range(2):
            for jj in range(4):
                a(f"global_load_dwordx4 {R('a', sg*32 + (kt*4 + jj)*4)}, v{16 + sg*2 + kt}, s[32:33] offset:{jj*1024} sc1")
            a(f"s_add_u32 m0, s43, {sg*10240 + kt*4096}"); a("s_nop 0")
            for jj in range(4):
                a(f"global_load_lds_dwordx4 v{16 + sg*2 + kt}, s[34:35] offset:{jj*1024} sc1")
    a("s_and_b32 s47, s42, 15"); a("s_lshl_b32 s47, s47, 9"); a("s_lshr_b32 s49, s42, 4"); a("s_lshl_b32 s49, s49, 14"); a("s_add_u32 s47, s47, s49")
    a("s_xor_b32 s49, s22, 1"); a("s_lshl_b32 s49, s49, 13"); a("s_add_u32 s47, s47, s49"); a(f"s_add_u32 s47, s47, {rec.WS_HW}")
    a("v_and_b32 v31, 3, v0"); a("v_lshl_add_u32 v31, v31, 7, s47")
    a("s_max_u32 s54, s39, 5"); a("s_sub_u32 s54, s54, 5")
    m_wait("s54")
    kv_loads(0)
    pack_frags(a)
    a("s_lshr_b32 s50, s38, 1"); a("s_lshl_b32 s50, s50, 14"); a("s_and_b32 s51, s38, 1"); a("s_lshl_b32 s51, s51, 12"); a("s_add_u32 s50, s50, s51"); a(f"s_add_u32 s50, s50, {rec.WS_KMVM}")
    rec.near(a, 52, "s50", "s22", 28, "s51")
    a("v_and_b32 v28, 7, v0"); a("v_lshlrev_b32 v28, 4, v28"); a("v_lshrrev_b32 v24, 4, v0"); a("v_lshl_add_u32 v28, v24, 7, v28")
    XB = (108, 32)
    def m_loads(sg):
        for jj in range(4): a(f"global_load_dwordx4 {R('v', XB[sg] + 4*jj)}, v28, s[52:53] offset:{jj*512} sc1")
        for i in range(2): a(f"global_load_dwordx4 {R('v', XB[sg] + 16 + 4*i)}, v16, s[52:53] offset:{2048 + i*1024} sc1")
        a("s_add_u32 s52, s52, 0x80000"); a("s_addc_u32 s53, s53, 0")
    def seg_signal(seg):
        a(f"s_lshl_b32 s47, {seg}, 7"); a("s_lshl_b32 s49, s42, 2"); a("s_add_u32 s47, s47, s49"); a(f"s_add_u32 s47, s47, {rec.WS_FLAG}")
        a(f"s_lshr_b32 s50, {seg}, 1"); a("s_lshl_b32 s50, s50, 14"); a(f"s_and_b32 s49, {seg}, 1"); a("s_lshl_b32 s49, s49, 12"); a("s_add_u32 s50, s50, s49")
        a("s_lshl_b32 s49, s42, 7"); a("s_add_u32 s50, s50, s49"); a("s_xor_b32 s49, s22, 1"); a("s_lshl_b32 s49, s49, 13"); a("s_add_u32 s50, s50, s49")
        a(f"s_add_u32 s50, s50, {rec.WS_FLAG2 - 24*16384}")
        a(f"s_cmp_ge_u32 {seg}, 48"); a("s_cselect_b32 s47, s50, s47"); a("v_mov_b32 v29, s47")
        a("s_waitcnt vmcnt(0)")
        a("s_mov_b64 exec, 1")
        a("global_store_dword v29, v23, s[28:29] sc1")
        a("s_mov_b64 exec, -1")
    early, late = a.newlabel("e0"), a.newlabel("l0")
    a("s_cmp_lt_u32 s39, s48"); a(f"s_cbranch_scc1 {early}")
    kv_loads(1); m_wait("s39"); m_loads(0)
    a("s_waitcnt vmcnt(0)")
    a(f"s_branch {late}")
    a.label(early)
    m_loads(0); kv_loads(1)
    a.label(late)
    a("v_lshrrev_b32 v24, 4, v0"); a("v_lshlrev_b32 v24, 2, v24"); a("v_and_b32 v25, 15, v0"); a("v_mov_b32 v26, 0xff800000")
    for i in range(4):
        a(f"v_add_u32 v27, {i}, v24"); a("v_cmp_gt_u32 vcc, v27, v25"); a("s_nop 1"); a(f"v_cndmask_b32 v{96+i}, 0, v26, vcc")
    a("v_cmp_gt_u32 vcc, 32, v0"); a("s_nop 1")
    for i in range(4): a(f"v_cndmask_b32 v{100+i}, 0, v26, vcc")
    for i in range(4): a(f"v_mov_b32 v{104+i}, 0x3f803f80")
    a("v_and_b32 v24, 3, v0"); a("v_lshrrev_b32 v25, 2, v0")
    a("v_lshlrev_b32 v18, 4, v25"); a("v_lshl_add_u32 v18, v24, 8, v18"); a("v_add_u32 v18, s43, v18")
    a("v_and_b32 v25, 7, v25"); a("v_lshlrev_b32 v19, 4, v25"); a("v_lshl_add_u32 v19, v24, 7, v19"); a("v_add_u32 v19, s43, v19")
    a("v_add_u32 v20, s43, v16")
    a("v_mov_b32 v21, v16"); a("v_add_u32 v22, 0x40000, v21")
    a("s_lshl_b32 s50, s39, 19"); a("s_lshl_b32 s51, s30, 14"); a("s_add_u32 s50, s50, s51"); a("s_lshl_b32 s51, s73, 12"); a("s_add_u32 s50, s50, s51"); a(f"s_add_u32 s50, s50, {WS_O}")
    wside(a, 36, "s50", "s51")
    a(f"s_mov_b32 s40, {SCL}")
    a("s_add_u32 s54, s39, 2")
    for sg in range(2):
        lo = sg*10240
        xb = XB[sg]
        if sg == 0:
            a("s_waitcnt vmcnt(16)")
        else:
            have = a.newlabel("h1")
            a("s_cmp_eq_u32 s55, 1"); a(f"s_cbranch_scc1 {have}")
            seg_signal("s39"); m_wait("s54"); tstamp(a, 0, 2, 3); m_loads(1)
            a("s_waitcnt vmcnt(0)"); tstamp(a, 1, 2, 3)
            a.label(have)
            a("s_waitcnt vmcnt(8)")
        for i in range(2): a(f"ds_write_b128 v20, {R('v', xb + 16 + 4*i)} offset:{lo + 8192 + i*1024}")
        tiles = [(132, 0, 0, "v[96:99]"), (136, 2, 0, "v[100:103]"), (140, 0, 1, "0"), (144, 1, 1, "v[96:99]"), (148, 2, 1, "v[100:103]")]
        for jj in range(4):
            for d, kt, qt, C in tiles:
                A = R('v', xb + 4*jj) if kt == 2 else R('a', sg*32 + (kt*4 + jj)*4)
                a(f"v_mfma_f32_16x16x32_bf16 {R('v', d)}, {A}, {frag(2*sg + qt, jj)}, " + (C if jj == 0 else R('v', d)))
        if sg == 0:
            no = a.newlabel("n1")
            a("s_mov_b32 s55, 0")
            a("s_cmp_lt_u32 s54, s48"); a(f"s_cbranch_scc0 {no}")
            m_loads(1); a("s_mov_b32 s55, 1")
            a.label(no)
        def vread(jj):
            b = 64 + (jj & 1)*12
            for hf in range(2):
                for kt in range(2):
                    a(f"ds_read_b64_tr_b16 {R('a', b + hf*4 + kt*2, 2)}, v18 offset:{lo + kt*4096 + jj*1024 + hf*8}")
                a(f"ds_read_b64_tr_b16 {R('a', b + 8 + hf*2, 2)}, v19 offset:{lo + 8192 + jj*512 + hf*8}")
        vread(0)
        a("s_nop 3")
        softmax_cols(a, list(range(132, 140)), 24)
        softmax_cols(a, list(range(140, 152)), 24)
        a("s_nop 0")
        a("v_cvt_pk_bf16_f32 v108, v132, v133"); a("v_cvt_pk_bf16_f32 v109, v134, v135"); a("v_mov_b32 v110, 0"); a("v_mov_b32 v111, 0")
        a("v_cvt_pk_bf16_f32 v112, v136, v137"); a("v_cvt_pk_bf16_f32 v113, v138, v139")
        for i in range(4): a(f"v_cvt_pk_bf16_f32 v{116+i}, v{140+2*i}, v{141+2*i}")
        a("v_cvt_pk_bf16_f32 v114, v148, v149"); a("v_cvt_pk_bf16_f32 v115, v150, v151")
        P0 = ["v[108:111]", "v[116:119]"]; P1 = ["v[112:113]", "v[114:115]"]
        a("s_nop 1")
        for qt in range(2): a(f"v_mfma_f32_16x16x32_bf16 {R('v', 120 + 4*qt)}, v[104:107], {P0[qt]}, 0")
        a("s_nop 5")
        for qt in range(2): a(f"v_mfma_f32_16x16x16_bf16 {R('v', 120 + 4*qt)}, v[104:105], {P1[qt]}, {R('v', 120 + 4*qt)}")
        if sg == 1:
            done = a.newlabel("d0")
            a("s_cmp_eq_u32 s55, 1"); a(f"s_cbranch_scc0 {done}")
            seg_signal("s39")
            a.label(done)
        a("s_nop 7")
        a("v_rcp_f32 v24, v120"); a("v_rcp_f32 v26, v124"); a("s_nop 0"); a("v_mov_b32 v25, v24"); a("v_mov_b32 v27, v26")
        for jj in range(4):
            b = 64 + (jj & 1)*12
            if jj < 3:
                vread(jj + 1); a("s_waitcnt lgkmcnt(6)")
            else:
                a("s_waitcnt lgkmcnt(0)")
            for qt in range(2):
                for hf in range(2):
                    a(f"v_mfma_f32_16x16x32_bf16 {R('v', 132 + (qt*2 + hf)*4)}, {R('a', b + hf*4)}, {P0[qt]}, 0")
            a("s_nop 2")
            for qt in range(2):
                for hf in range(2):
                    D = R('v', 132 + (qt*2 + hf)*4)
                    a(f"v_mfma_f32_16x16x16_bf16 {D}, {R('a', b + 8 + hf*2, 2)}, {P1[qt]}, {D}")
            a("s_nop 7")
            for qt in range(2):
                o = 132 + qt*8
                for i in range(0, 8, 2): a(f"v_pk_mul_f32 v[{o+i}:{o+i+1}], v[{o+i}:{o+i+1}], v[{24+2*qt}:{25+2*qt}]")
                for i in range(4): a(f"v_cvt_pk_bf16_f32 v{152 + 4*qt + i}, v{o+2*i}, v{o+2*i+1}")
                a(f"global_store_dwordx4 v{21+qt}, {R('v', 152 + 4*qt)}, s[36:37] offset:{jj*1024} sc1")
        if sg == 0:
            a("s_add_u32 s36, s36, 0x100000"); a("s_addc_u32 s37, s37, 0")
    tstamp(a, 2, 2, 3)
    seg_signal("s54")
    tstamp(a, 3, 2, 3)

def sreg(i): return R('a', 4*i) if i < 24 else R('v', 128 + 4*(i - 24))
def wot_wait(a):
    lp, ok = a.newlabel("tl"), a.newlabel("to")
    a("s_cmp_lg_u32 s75, 0"); a(f"s_cbranch_scc1 {ok}")
    a("v_lshlrev_b32 v18, 2, v0"); a(f"v_add_u32 v18, {rec.WS_FLAG + 108*128}, v18")
    a.label(lp)
    a("global_load_dword v19, v18, s[28:29] sc1"); a("s_waitcnt vmcnt(0)")
    a("v_cmp_ne_u32 vcc, 0, v19"); a(f"s_cbranch_vccz {ok}")
    a("s_sleep 8")
    a("s_add_u32 s46, s46, 1"); a(f"s_cmp_lt_u32 s46, {WSPIN}"); a(f"s_cbranch_scc1 {lp}")
    a("s_branch w_fail")
    a.label(ok)

def task_stream(a):
    wot_wait(a)
    a("s_barrier")
    a("s_and_b32 s42, s45, 1")
    a("s_lshl_b32 s43, s42, 3"); a("s_add_u32 s43, s43, s75")
    a("s_lshr_b32 s32, s45, 1"); a("s_lshl_b32 s32, s32, 20"); a("s_lshl_b32 s33, s43, 15"); a("s_add_u32 s32, s32, s33"); a(f"s_add_u32 s32, s32, {rec.WS_WOT}")
    rec.near_bit(a, "s33", "s32", "s22", True); a("s_add_u32 s32, s32, s33")
    a("v_lshlrev_b32 v10, 4, v0"); a("v_add_u32 v6, s32, v10")
    for cg in range(2):
        for q in range(4):
            a(f"v_add_u32 v2, {cg*rec.WOT_CG + (q >> 1)*16384 + (q & 1)*4096}, v6")
            for j in range(4):
                k = q*2 + (j >> 1)
                a(f"global_load_dwordx4 {sreg(k*4 + cg*2 + (j & 1))}, v2, s[28:29] offset:{j*1024} sc1")
    a("s_lshl_b32 s32, s43, 14"); a("v_add_u32 v2, s32, v10"); a("v_add_u32 v3, 0x1000, v2"); a("v_add_u32 v4, 0x40000, v2"); a("v_add_u32 v5, 0x41000, v2")
    a("s_lshl_b32 s33, s75, 13"); a("v_add_u32 v11, s33, v10")
    a("s_lshr_b32 s33, s75, 2"); a("s_xor_b32 s47, s33, s42")
    a("s_xor_b32 s36, s45, s47"); a("s_and_b32 s33, s36, 1"); a("s_lshl_b32 s33, s33, 12"); a("s_lshr_b32 s36, s36, 1"); a("s_lshl_b32 s36, s36, 14"); a("s_add_u32 s36, s36, s33")
    a("s_and_b32 s33, s75, 3"); a("s_lshl_b32 s33, s33, 10"); a("s_add_u32 s36, s36, s33"); a("v_add_u32 v1, s36, v10")
    a("s_bfe_u32 s32, s75, 0x10001"); a("s_lshl_b32 s36, s32, 12"); a("s_lshr_b32 s33, s75, 2"); a("s_lshl_b32 s33, s33, 11"); a("s_add_u32 s36, s36, s33")
    a("s_and_b32 s33, s75, 1"); a("s_lshl_b32 s37, s33, 10"); a("s_add_u32 s36, s36, s37"); a("v_add_u32 v12, s36, v10")
    a("s_lshl_b32 s32, s32, 16"); a("s_lshl_b32 s33, s33, 3"); a("s_add_u32 s32, s32, s33"); a("s_lshl_b32 s33, s45, 6"); a("s_add_u32 s32, s32, s33"); a(f"s_add_u32 s32, s32, {2048 + 96*65536}")
    a("v_and_b32 v13, 15, v0"); a("v_lshlrev_b32 v13, 12, v13"); a("v_lshrrev_b32 v14, 4, v0"); a("v_lshl_add_u32 v13, v14, 4, v13"); a("v_add_u32 v13, s32, v13")
    a("v_and_b32 v9, 1, v0"); a("v_lshlrev_b32 v9, 7, v9"); a("s_lshl_b32 s32, s43, 8"); a("s_xor_b32 s33, s22, 1"); a("s_lshl_b32 s33, s33, 13"); a("s_add_u32 s32, s32, s33")
    a(f"s_add_u32 s32, s32, {rec.WS_FLAG2}"); a("v_add_u32 v9, s32, v9")
    a("v_mov_b32 v8, 0")
    wstamp(a, 0)
    def pick(dst):
        a(f"s_ff1_i32_b32 {dst}, s34"); a(f"s_bitset0_b32 s34, {dst}")
    def base(dst, item):
        a(f"s_and_b32 s32, {item}, 15"); a("s_lshl_b32 s32, s32, 19"); a(f"s_add_u32 s32, s32, {WS_O + 96*262144}"); wside(a, dst, "s32", "s33")
    def inbox(item):
        a(f"s_lshl_b32 s32, {item}, 18"); a(f"s_add_u32 s32, s32, {WS_INBOX}"); wside(a, 50, "s32", "s33")
    def poll(item):
        a(f"s_bfe_u32 s32, {item}, 0x30001"); a("s_lshl_b32 s32, s32, 14"); a(f"s_and_b32 s33, {item}, 1"); a("s_lshl_b32 s33, s33, 12"); a("s_add_u32 s32, s32, s33")
        a("v_add_u32 v14, s32, v9")
        a("global_load_dword v15, v14, s[28:29] sc1")
    def oload(k):
        a(f"global_load_dwordx4 {R('v', 32 + k*4)}, v{2 + (k >> 2)}, s[38:39] offset:{(k & 3)*1024} sc1")
    def sum8(item):
        lab, j = a.newlabel("fn"), a.newlabel("fj")
        a("s_waitcnt lgkmcnt(0)"); a("s_barrier")
        a("ds_read_b128 v[112:115], v12")
        for part in ((1, 2, 3, 4), (5, 6, 7)):
            for i, m in enumerate(part): a(f"ds_read_b128 v[{96+4*i}:{99+4*i}], v12 offset:{m*8192}")
            for i, m in enumerate(part):
                a(f"s_waitcnt lgkmcnt({len(part) - 1 - i})")
                for h in range(2): a(f"v_pk_add_f32 v[{112+2*h}:{113+2*h}], v[{112+2*h}:{113+2*h}], v[{96+4*i+2*h}:{97+4*i+2*h}]")
        a("v_xor_b32 v12, 0x10000, v12")
        a("s_cmp_eq_u32 s47, 0"); a(f"s_cbranch_scc1 {lab}")
        inbox(item)
        for i in range(4): a(f"v_min_u32 v{112+i}, -2, v{112+i}")
        a("global_store_dwordx4 v1, v[112:115], s[50:51] sc1")
        a(f"s_branch {j}")
        a.label(lab)
        a(f"s_mov_b32 s52, {item}")
        a.label(j)
    def ask():
        no = a.newlabel("an")
        a("s_cmp_lt_i32 s52, 0"); a(f"s_cbranch_scc1 {no}")
        inbox("s52")
        a("global_load_dwordx4 v[120:123], v1, s[50:51] sc1")
        for i in range(4): a(f"v_mov_b32 v{116+i}, v{112+i}")
        a("s_mov_b32 s53, s52"); a("s_mov_b32 s52, -1")
        a.label(no)
    def join(wait):
        lp, ok, no = a.newlabel("jl"), a.newlabel("jo"), a.newlabel("jn")
        a("s_cmp_lt_i32 s53, 0"); a(f"s_cbranch_scc1 {no}")
        a("s_lshl_b32 s32, s53, 17"); a("s_add_u32 s40, s24, s32"); a("s_addc_u32 s41, s25, 0")
        if wait: a("s_waitcnt vmcnt(0)")
        a.label(lp)
        a("v_max3_u32 v124, v120, v121, v122"); a("v_max_u32 v124, v124, v123"); a("v_cmp_eq_u32 vcc, -1, v124"); a(f"s_cbranch_vccz {ok}")
        a("global_load_dwordx4 v[120:123], v1, s[50:51] sc1"); a("s_waitcnt vmcnt(0)")
        a("s_add_u32 s46, s46, 1"); a(f"s_cmp_lt_u32 s46, {WSPIN}"); a(f"s_cbranch_scc1 {lp}")
        a("s_branch w_fail")
        a.label(ok)
        a("v_pk_add_f32 v[116:117], v[116:117], v[120:121]"); a("v_pk_add_f32 v[118:119], v[118:119], v[122:123]")
        a("v_cvt_pk_bf16_f32 v120, v116, v117"); a("v_cvt_pk_bf16_f32 v121, v118, v119")
        a("global_store_dwordx2 v13, v[120:121], s[40:41]")
        a("s_mov_b32 s53, -1")
        a.label(no)
    def pending():
        lab = a.newlabel("pd")
        a("s_cmp_lt_i32 s35, 0"); a(f"s_cbranch_scc1 {lab}")
        sum8("s35")
        a.label(lab)
    def mm(k, wait):
        a(f"s_waitcnt vmcnt({wait})")
        for ct in range(4):
            D = R('v', 16 + ct*4)
            a(f"v_mfma_f32_16x16x32_bf16 {D}, {sreg((k & 7)*4 + ct)}, {R('v', 32 + k*4)}, " + ("0" if k & 7 == 0 else D))
    def park(tt):
        a("s_nop 4")
        for f in range(4): a(f"ds_write_b128 v11, {R('v', 16 + f*4)} offset:{tt*4096 + f*1024}")
        if tt: a("v_xor_b32 v11, 0x10000, v11")
        a("s_waitcnt lgkmcnt(0)")
    pick("s31"); pick("s36")
    a("s_mov_b32 s37, 0"); a("s_mov_b32 s52, -1"); a("s_mov_b32 s53, -1"); a("s_mov_b64 s[50:51], s[28:29]")
    a.label("st_wait")
    a("s_add_u32 s32, s31, 49"); a("s_min_u32 s32, s32, 63"); a("s_cmp_le_u32 s32, s37"); a("s_cbranch_scc1 st_near")
    a("s_sleep 6")
    a(f"global_load_dword v7, v8, s[26:27] offset:{D_PROG} sc1"); a("s_waitcnt vmcnt(0)")
    a("v_readfirstlane_b32 s37, v7")
    a("s_branch st_more")
    a.label("st_near")
    poll("s31"); a("s_waitcnt vmcnt(0)")
    a("v_cmp_ne_u32 vcc, 0, v15"); a("s_cbranch_vccz st_rdy")
    a("s_sleep 2")
    a.label("st_more")
    a("s_add_u32 s46, s46, 1"); a(f"s_cmp_lt_u32 s46, {WSPIN}"); a("s_cbranch_scc1 st_wait")
    a("s_branch w_fail")
    a.label("st_rdy")
    tstamp(a, 4)
    base(38, "s31")
    poll("s36")
    for k in range(16): oload(k)
    a("s_mov_b32 s35, -1")
    a.label("st_item")
    a("s_mov_b32 s30, s31"); a("s_mov_b32 s31, s36"); pick("s36")
    a("s_waitcnt vmcnt(16)")
    a("v_cmp_ne_u32 vcc, 0, v15")
    a("s_cmp_lt_i32 s31, 0"); a("s_cbranch_scc1 st_slow")
    a("s_cbranch_vccnz st_slow")
    base(38, "s31")
    poll("s36")
    for k in range(16):
        mm(k, 16)
        if k == 14: join(False); ask()
        oload(k)
        if k == 2: pending()
        if k == 7: park(0)
    park(1)
    a("s_mov_b32 s35, s30")
    a("s_branch st_item")
    a.label("st_slow")
    pending()
    for k in range(16):
        mm(k, 15 - k)
        if k == 7: park(0)
    tstamp(a, 5)
    park(1); join(False); ask(); sum8("s30"); join(True); ask(); join(True)
    tstamp(a, 6)
    a("s_cmp_lt_i32 s31, 0"); a("s_cbranch_scc0 st_wait")

def emit_mega(a, prof=False):
    kernel_begin(a, NAME + "_kernel")
    a("s_cmp_ge_u32 s2, 256"); a("s_cbranch_scc1 w_exit")
    if "span" in rec.OPT: a("s_memrealtime s[100:101]")
    load_ptrs(a)
    a("s_getreg_b32 s44, hwreg(HW_REG_XCC_ID)"); a("s_and_b32 s44, s44, 7")
    if "fakex" in rec.OPT:
        a("s_bitcmp1_b32 s2, 3"); a("s_cbranch_scc0 fake_done")
        a("s_cmp_eq_u32 s44, 1"); a("s_cselect_b32 s44, 5, s44"); a("s_cmp_eq_u32 s44, 2"); a("s_cselect_b32 s44, 7, s44")
        a.label("fake_done")
    a("v_lshrrev_b32 v1, 6, v0"); a("v_mov_b32 v2, 0"); a("s_mov_b32 s46, 0")
    a("v_readfirstlane_b32 s75, v1")
    a("s_waitcnt lgkmcnt(0)")
    a("s_add_u32 s28, s28, 0x1fffff"); a("s_addc_u32 s29, s29, 0"); a("s_and_b32 s28, s28, 0xffe00000")
    if "nowarm" not in rec.OPT:
        a("s_cmp_eq_u32 s75, 2"); a("s_cbranch_scc0 no_warm")
        a("s_getpc_b64 s[30:31]")
        a.label("warm_pc")
        a("s_lshr_b32 s32, s2, 3"); a("s_lshl_b32 s32, s32, 12"); a("v_and_b32 v3, 63, v0"); a("v_lshl_add_u32 v3, v3, 6, s32")
        a("v_min_u32 v3, code_end-warm_pc-4, v3"); a("v_and_b32 v3, -4, v3")
        a("global_load_dword a95, v3, s[30:31]")
        a.label("no_warm")
    a("s_cmp_eq_u32 s75, 1"); a("s_cbranch_scc0 no_probe")
    a("s_mov_b32 s47, 0")
    a("s_cmp_lt_u32 s44, 4"); a("s_cbranch_scc0 probe_done")
    a(f"s_add_u32 s30, s28, {rec.WS_PROBE}"); a("s_addc_u32 s31, s29, 0")
    a("s_lshr_b32 s32, s2, 5"); a("s_and_b32 s33, s32, 1"); a("s_lshr_b32 s32, s32, 1"); a("s_lshl_b32 s32, s32, 2"); a("s_add_u32 s32, s32, s33"); a("s_lshl_b32 s32, s32, 12")
    a("s_and_b32 s33, s2, 31"); a("s_lshl_b32 s33, s33, 7"); a("s_add_u32 s32, s32, s33")
    a("v_mov_b32 v3, s32")
    a("s_mov_b64 exec, 1")
    a("s_mov_b32 s38, -1"); a("s_mov_b32 s39, -1"); a("s_mov_b32 s40, 6")
    a.label("probe_loop")
    a("s_memtime s[34:35]"); a("s_waitcnt lgkmcnt(0)")
    a("global_store_dword v3, v2, s[30:31] sc1"); a("s_waitcnt vmcnt(0)")
    a("s_memtime s[36:37]"); a("s_waitcnt lgkmcnt(0)")
    a("s_sub_u32 s36, s36, s34"); a("s_min_u32 s36, s36, s38"); a("s_mov_b32 s38, s39"); a("s_mov_b32 s39, s36")
    a("v_xor_b32 v3, 0x2000, v3")
    a("s_sub_u32 s40, s40, 1"); a("s_cmp_lg_u32 s40, 0"); a("s_cbranch_scc1 probe_loop")
    a("s_mov_b64 exec, -1")
    a("s_cmp_lt_u32 s39, s38"); a("s_cselect_b32 s47, 1, 0")
    a.label("probe_done")
    a("v_mov_b32 v3, s47"); a("ds_write_b32 v2, v3 offset:4")
    a.label("no_probe")
    a("s_cmp_lg_u32 s75, 0"); a("s_cbranch_scc1 role_wait")
    a("s_and_b32 s32, s44, 3"); a("s_lshl_b32 s32, s32, 2"); a("s_and_b32 s33, s44, 4"); a("s_lshl_b32 s33, s33, 5"); a("s_add_u32 s32, s32, s33")
    a("v_mov_b32 v3, s32"); a("v_mov_b32 v4, 1")
    a("s_mov_b64 exec, 1")
    a("global_atomic_add v5, v3, v4, s[26:27] sc0 sc1"); a("s_waitcnt vmcnt(0)")
    a("v_readfirstlane_b32 s45, v5")
    a("s_cmp_lt_u32 s45, 32"); a("s_cbranch_scc1 role_have")
    a(f"v_mov_b32 v3, {D_OVF}")
    a("global_atomic_add v5, v3, v4, s[26:27] sc0 sc1"); a("s_waitcnt vmcnt(0)")
    a("v_readfirstlane_b32 s45, v5")
    a.label("role_poll")
    a("global_load_dwordx4 v[8:11], v2, s[26:27] sc1"); a("global_load_dwordx4 v[12:15], v2, s[26:27] offset:128 sc1"); a("s_waitcnt vmcnt(0)")
    a("s_mov_b32 s33, 0")
    for i in range(8):
        a(f"v_readfirstlane_b32 s{34+i}, v{8+i}"); a(f"s_add_u32 s33, s33, s{34+i}")
    a("s_cmp_eq_u32 s33, 256"); a("s_cbranch_scc1 role_pick")
    a("s_sleep 8"); a("s_add_u32 s46, s46, 1"); a(f"s_cmp_lt_u32 s46, {WSPIN}"); a("s_cbranch_scc1 role_poll")
    a("s_mov_b64 exec, -1"); a("s_branch w_fail")
    a.label("role_pick")
    for i in range(8):
        a(f"s_min_u32 s33, s{34+i}, 32"); a("s_add_u32 s45, s45, s33"); a(f"s_mov_b32 s44, {i}")
        if i < 7:
            a("s_cmp_lt_u32 s45, 32"); a("s_cbranch_scc1 role_have"); a("s_sub_u32 s45, s45, 32")
    a.label("role_have")
    a("s_lshl_b32 s32, s44, 5"); a("s_or_b32 s32, s32, s45"); a("v_mov_b32 v3, s32")
    a("ds_write_b32 v2, v3")
    a("s_mov_b64 exec, -1")
    a.label("role_wait")
    a("s_waitcnt lgkmcnt(0)"); a("s_barrier")
    a("ds_read_b64 v[4:5], v2"); a("s_waitcnt lgkmcnt(0)")
    a("v_readfirstlane_b32 s32, v4"); a("v_readfirstlane_b32 s47, v5")
    a("s_cmp_lg_u32 s75, 0"); a("s_cbranch_scc1 voted")
    a("s_cmp_ge_u32 s32, 128"); a("s_cbranch_scc1 voted")
    a("s_and_b32 s47, s47, 1"); a("s_lshl_b32 s47, s47, 16"); a("s_or_b32 s47, s47, 1"); a("v_mov_b32 v3, s47")
    a("s_mov_b64 exec, 1")
    a(f"global_atomic_add v2, v3, s[26:27] offset:{rec.DBG_VOTE} sc1")
    a("s_mov_b64 exec, -1")
    a.label("voted")
    a("s_barrier")
    if "span" in rec.OPT:
        a("s_and_b32 s98, s2, 0x38"); a("s_or_b32 s98, s98, s75"); a("s_cmp_lg_u32 s98, 0"); a("s_cbranch_scc1 span1")
        a("s_memrealtime s[98:99]"); a("s_waitcnt lgkmcnt(0)"); a("s_not_b32 s100, s100"); a("v_mov_b32 v4, s100"); a("v_mov_b32 v5, s98")
        a("s_mov_b64 exec, 1"); a("global_atomic_umax v2, v4, s[26:27] offset:48 sc1"); a("global_atomic_umax v2, v5, s[26:27] offset:52 sc1"); a("s_mov_b64 exec, -1")
        a.label("span1")
    a("s_and_b32 s45, s32, 31"); a("s_bfe_u32 s44, s32, 0x30005")
    a("s_cmp_ge_u32 s44, 4"); a("s_cbranch_scc1 worker")
    a("s_lshl_b32 s18, s44, 3"); a("s_lshr_b32 s19, s45, 2"); a("s_add_u32 s18, s18, s19"); a("s_and_b32 s19, s45, 3")
    rec.emit_rec(a, "rec", prof=prof, kvwait=True)
    a.label("worker")
    a("s_sub_u32 s44, s44, 4")
    a("v_and_b32 v0, 63, v0")
    gemm.setup_common(a)
    a("s_mov_b32 s88, 0"); a("s_mov_b32 s89, 0"); a("s_mov_b32 s77, 0")
    a("s_mov_b32 s59, 0") if PROF else None
    a("s_lshl_b32 s96, s44, 5"); a("s_add_u32 s96, s96, s45"); a("s_lshl_b32 s96, s96, 3"); a("s_add_u32 s96, s96, s75")
    a("s_lshl_b32 s32, s44, 3"); a("s_lshr_b32 s44, s45, 3"); a("s_and_b32 s45, s45, 7"); a("s_add_u32 s45, s45, s32")
    if PROF: a("s_lshl_b32 s97, s44, 5"); a("s_add_u32 s97, s97, s45")
    wstamp(a, 0)
    def g1(grp):
        MT, first = ((2, 0), (3, 32), (3, 80))[grp]
        a("s_mov_b32 s23, s44")
        a("s_mov_b32 s30, s45"); a(f"s_mul_i32 s31, s23, {4*MT}"); a(f"s_add_u32 s31, s31, {first}")
        task_g1(a, MT, grp)
    def tile_2x4():
        a("s_bfe_u32 s30, s45, 0x10003"); a("s_lshl_b32 s30, s30, 1"); a("s_and_b32 s32, s45, 1"); a("s_add_u32 s30, s30, s32")
        a("s_lshr_b32 s31, s45, 4"); a("s_lshl_b32 s31, s31, 2"); a("s_bfe_u32 s32, s45, 0x20001"); a("s_add_u32 s31, s31, s32")
    touches(a, [(10, 1 << 20, 3, 0, 3)]*3)
    if rec.PAR["ST"] == 1: a("s_mov_b32 s98, 0")
    g1(0)
    touches(a, [(4, 0, 4, 0, 4), (6, 0, 6, 0, 4), (6, 0, 6, 4, 2)])
    g1(1)
    touches(a, [(14, 0, 8, 0, 4), (14, 0, 8, 4, 4), (8, 0, 2, 0, 2)])
    a("s_cmp_lt_u32 s44, 2"); a("s_cbranch_scc1 w_g1c")
    tile_2x4()
    a("s_and_b32 s32, s44, 1"); a("s_lshl_b32 s32, s32, 2"); a("s_add_u32 s30, s30, s32")
    task_g4kv(a)
    wstamp(a, 0)
    a("s_cmp_eq_u32 s44, 2"); a("s_cbranch_scc0 w_g1c")
    a("s_mov_b32 s30, s45"); a("s_mov_b32 s31, 0")
    a.label("w_wot")
    task_wot(a)
    a("s_add_u32 s31, s31, 1"); a("s_cmp_lt_u32 s31, 2"); a("s_cbranch_scc1 w_wot")
    wstamp(a, 0)
    a.label("w_g1c")
    g1(2)
    a.label("w_g2a")
    a("s_lshr_b32 s30, s45, 1"); a("s_and_b32 s31, s45, 1"); a("s_lshr_b32 s32, s44, 1"); a("s_xor_b32 s32, s32, s44"); a("s_lshl_b32 s32, s32, 1"); a("s_add_u32 s31, s31, s32")
    task_g2a(a)
    wstamp(a, 0)
    a("s_cmp_eq_u32 s44, 0"); a("s_cbranch_scc1 w_g5")
    a("s_cmp_eq_u32 s44, 2"); a("s_cbranch_scc1 w_set2")
    a("s_lshr_b32 s30, s45, 3")
    a("s_cmp_eq_u32 s44, 3"); a("s_cbranch_scc1 w_f1")
    a("s_and_b32 s31, s45, 7")
    task_g3(a, 2)
    wstamp(a, 0)
    a(f"s_mov_b32 s34, {setmask(1):#x}")
    a("s_branch w_stream")
    a.label("w_f1")
    a("s_lshl_b32 s31, s31, 2"); a("s_bfe_u32 s32, s45, 0x20001"); a("s_add_u32 s31, s31, s32")
    task_g3(a, 1)
    wstamp(a, 0)
    a.label("w_set2")
    a("s_bitcmp1_b32 s45, 0"); a("s_cbranch_scc1 w_exit")
    a("s_and_b32 s32, s44, 1"); a("s_add_u32 s45, s45, s32")
    a(f"s_mov_b32 s34, {setmask(2):#x}")
    a("s_branch w_stream")
    a.label("w_g5")
    tile_2x4()
    task_g4q(a)
    wstamp(a, 0)
    task_g5(a)
    wstamp(a, 0)
    a(f"s_mov_b32 s34, {setmask(0):#x}")
    a.label("w_stream")
    task_stream(a)
    wstamp(a, 0)
    if "span" in rec.OPT:
        a("s_and_b32 s98, s45, 7"); a("s_or_b32 s98, s98, s75"); a("s_cmp_lg_u32 s98, 0"); a("s_cbranch_scc1 w_exit")
        a("s_waitcnt vmcnt(0)"); a("s_memrealtime s[98:99]"); a("s_waitcnt lgkmcnt(0)"); a("v_mov_b32 v5, s98"); a("v_mov_b32 v2, 0")
        a("s_mov_b64 exec, 1"); a("global_atomic_umax v2, v5, s[26:27] offset:60 sc1")
    a("s_endpgm")
    a.label("w_fail")
    a("v_mov_b32 v16, 0"); a("v_mov_b32 v17, 0xdead"); a("global_store_dword v16, v17, s[26:27] offset:248")
    a.label("w_exit")
    a("s_endpgm")
    gemm.emit_core(a, "core_T", 'T')
    gemm.emit_core(a, "core_N", 'N')
    gemm.emit_core(a, "core_T3", 'T', MT=3)
    gemm.emit_core(a, "core_T2", 'T', MT=2)
    gemm.WFLAG = "sc1"; gemm.WFRAG = True
    gemm.emit_core(a, "core_F1", 'T', MT=1, aflag="sc1")
    gemm.emit_core(a, "core_F2", 'T', MT=2, aflag="sc1")
    gemm.WFLAG = ""; gemm.WFRAG = False
    a.label("code_end")

def generate(prof=False):
    global PROF
    PROF = bool(prof)
    raw = open(f"cdna_kernels/{NAME}.s.ref").read().split("\n")
    hdr = []
    for l in raw:
        if not l.startswith(";") or "Override" in l: break
        hdr.append(l)
    a = Asm()
    emit_mega(a, prof)
    s = "\n".join(hdr) + "\n"
    s += f"; @launch kernel={NAME}_kernel grid=(256,1,1) block=(512,1,1) lds=163840\n"
    s += '.amdgcn_target "amdgcn-amd-amdhsa--gfx950"\n.text\n' + a.text() + '.section .rodata,"a"\n'
    s += kernel_desc(NAME + "_kernel", vgpr=256, accum=160)
    return s

if __name__ == "__main__":
    out = sys.argv[1] if len(sys.argv) > 1 else f"cdna_kernels/{NAME}.s"
    open(out, "w").write(generate())
    print("wrote", out)
```

```python
from asmgen import *

WS_RING  = 1 << 20
WS_PROBE = 0x1f0000
WS_FLAG2 = 0x140000
WS_HW    = 0x160000
WS_FLAG  = 0x1e0000
WS_MEMS  = 2 << 20
WS_KMVM  = 4 << 20
WS_KX    = 20 << 20
WS_VX    = 52 << 20
WS_WOT   = 126 << 20
WOT_CG = 1 << 19
L_PART = 0
L_P    = 24576
L_ZERO = 26624
L_SEL  = 28672
L_PARW = 7*16384
L_KX   = 131072
L_VX   = 147456
SPIN_MAX = 400000
NSTEP = 64
DBG_VOTE, DBG_CLR, DBG_PROG = 40, 44, 192
PAR0 = dict(WPF=2, QPL=0, ST=1, BDEL=0, SPLITB=1, KFAR=1, VFAR=1, RDEL=10, MDEL=7, DM=1, MGAP=3, PRIO=1, XD=2, XGAP=1, VDEL=10, PPRIO=2, XDEL=7, DR=2, RGAP=5, MACK=0)
PAR = dict(PAR0)
OPT = set()

def guard(a, loop, fail):
    a("s_add_u32 s24, s24, 1"); a(f"s_cmp_lt_u32 s24, {SPIN_MAX}"); a(f"s_cbranch_scc1 {loop}"); a(f"s_branch {fail}")

def pstamp(a, prof, k):
    if prof == 3:
        a("s_memrealtime s[56:57]"); a("s_waitcnt lgkmcnt(0)"); a(f"s_mov_b32 s{k}, s56")

def stamp(a, prof, k, at=None):
    if not prof: return
    if prof >= 3 and (k != 7 or prof > 3): return
    if prof == 2:
        lab = a.newlabel("st")
        a("s_cmp_lg_u32 s22, " + ("31" if (k == 7 or at) else "30")); a(f"s_cbranch_scc1 {lab}")
        a("s_memrealtime s[56:57]"); a("s_waitcnt lgkmcnt(0)"); a("s_and_b32 s56, s56, 0xffffff"); a("s_lshl_b32 s57, s24, 24"); a(f"s_or_b32 s{60+k}, s56, s57")
        a.label(lab)
        return
    a("s_memtime s[56:57]"); a("s_waitcnt lgkmcnt(0)")
    a("s_sub_u32 s58, s56, s59"); a(f"s_add_u32 s{60+k}, s{60+k}, s58"); a("s_mov_b32 s59, s56")

def fs(a, prof, k, which):
    if prof == which: a(f"s_memtime s[{66+2*k}:{67+2*k}]")

def near_bit(a, tmp, off, par, kv=False):
    flip = kv and PAR["KFAR"] != PAR["VFAR"]
    if flip: a(f"s_cmp_ge_u32 {off}, {WS_VX}"); a(f"s_addc_u32 {tmp}, {par}, {PAR['KFAR']}"); a(f"s_lshl_b32 {tmp}, {tmp}, 21"); a(f"s_xor_b32 {tmp}, {tmp}, {off}"); a(f"s_lshr_b32 {tmp}, {tmp}, 21")
    else:
        a(f"s_lshr_b32 {tmp}, {off}, 21"); a(f"s_xor_b32 {tmp}, {tmp}, {par}")
        if kv and PAR["KFAR"]: a(f"s_xor_b32 {tmp}, {tmp}, 1")
    a(f"s_and_b32 {tmp}, {tmp}, 1"); a(f"s_lshl_b32 {tmp}, {tmp}, 13")

def near(a, dst, off, par="s25", wb=16, tmp="s36", kv=False):
    near_bit(a, tmp, off, par, kv)
    a(f"s_add_u32 {tmp}, {tmp}, {off}"); a(f"s_add_u32 s{dst}, s{wb}, {tmp}"); a(f"s_addc_u32 s{dst+1}, s{wb+1}, 0")

def v_from_k(a, v, k):
    a(f"s_add_u32 s{v}, s{k}, {WS_VX - WS_KX}"); a(f"s_addc_u32 s{v+1}, s{k+1}, 0")
    if PAR["KFAR"] != PAR["VFAR"]: a(f"s_xor_b32 s{v}, s{v}, 0x2000")

def kv_tile(a, dst, seg, tmp):
    a(f"s_sub_u32 {tmp}, {seg}, 16"); a(f"s_mul_i32 {tmp}, {tmp}, 43"); a(f"s_lshr_b32 {tmp}, {tmp}, 8"); a(f"s_add_u32 {tmp}, {tmp}, 4")
    a(f"s_lshr_b32 {dst}, {seg}, 2"); a(f"s_cmp_lt_u32 {dst}, 4"); a(f"s_cselect_b32 {dst}, {dst}, {tmp}")

def tagchk(a, regs, tag, t0, t1, mf=()):
    op = "0x80" if tag else "0xfe"
    mf = list(mf)
    ops = [f"v_bitop3_b32 v{t0}, v{regs[0]}, v{regs[1]}, v{regs[2]} bitop3:{op}", f"v_bitop3_b32 v{t1}, v{regs[3]}, v{regs[4]}, v{regs[5]} bitop3:{op}"]
    rest = regs[6:]; k = 0
    while rest:
        t = (t0, t1)[k & 1]; k += 1
        ops.append(f"v_bitop3_b32 v{t}, v{t}, v{rest[0]}, v{rest[1]} bitop3:{op}"); rest = rest[2:]
    ops.append(f"v_bitop3_b32 v{t0}, v{t0}, v{t1}, 1 bitop3:" + ("0x80" if tag else "0xa8"))
    per = -(-len(ops) // max(len(mf), 1))
    for i, o in enumerate(ops):
        if mf and i % per == 0: a(mf.pop(0))
        a(o)
    for m in mf: a(m)
    a(f"v_cmp_ne_u32 vcc, {tag}, v{t0}")

def emit_rec(a, pfx, prof=False, kvwait=False):
    L = lambda n: f"{pfx}_{n}"
    FAIL = L('fail')
    a("s_load_dwordx8 s[4:11], s[0:1], 40")
    a("s_load_dwordx2 s[12:13], s[0:1], 32")
    a("s_load_dwordx2 s[14:15], s[0:1], 88")
    a("s_load_dwordx2 s[16:17], s[0:1], 96")
    a("v_lshrrev_b32 v1, 6, v0")
    a("v_and_b32 v0, 63, v0")
    a("s_lshl_b32 s20, s18, 2"); a("s_add_u32 s20, s20, s19")
    a("v_readfirstlane_b32 s21, v1")
    a("v_lshlrev_b32 v6, 4, v0")
    a("s_mov_b32 s24, 0")
    a("s_waitcnt lgkmcnt(0)")
    pstamp(a, prof, 90)
    if "diag" in OPT: pstamp(a, 3, 97)
    a("s_add_u32 s16, s16, 0x1fffff"); a("s_addc_u32 s17, s17, 0"); a("s_and_b32 s16, s16, 0xffe00000")
    a("s_lshl_b32 s36, s18, 13"); a(f"s_add_u32 s36, s36, {WS_RING}"); a("s_add_u32 s32, s16, s36"); a("s_addc_u32 s33, s17, 0")
    a("s_and_b32 s45, s20, 63"); a("s_lshl_b32 s45, s45, 7"); a("s_lshr_b32 s36, s20, 6"); a("s_lshl_b32 s36, s36, 14"); a("s_add_u32 s45, s45, s36")
    a("s_and_b32 s44, s20, 1"); a("s_lshl_b32 s44, s44, 12"); a("s_lshr_b32 s42, s20, 1"); a("s_lshl_b32 s42, s42, 14"); a("s_add_u32 s44, s44, s42")
    a("v_mov_b32 v14, v6"); a("v_add_u32 v15, 0x1000, v6")
    a("s_lshl_b32 s36, s19, 10"); a("v_add_u32 v9, s36, v6")
    a("s_lshl_b32 s36, s19, 9"); a("s_add_u32 s36, s36, 4096"); a("v_and_b32 v8, 0x1ff, v6"); a("v_add_u32 v8, s36, v8")
    a("s_cmp_eq_u32 s21, 7"); a(f"s_cbranch_scc0 {L('noclr')}")
    for i in range(4): a(f"v_mov_b32 v{68+i}, -1")
    a("v_add_u32 v16, s44, v6"); a("v_add_u32 v17, 0x2000, v16")
    for p in range(2):
        for i in range(4): a(f"global_store_dwordx4 v{16+p}, v[68:71], s[16:17] offset:{1024*i} sc1")
    a("global_store_dwordx4 v9, v[68:71], s[32:33] sc1"); a("global_store_dwordx4 v8, v[68:71], s[32:33] sc1")
    a("v_bfe_u32 v16, v0, 3, 2"); a("v_lshlrev_b32 v16, 15, v16"); a("v_lshrrev_b32 v17, 5, v0"); a("v_lshl_add_u32 v16, v17, 13, v16")
    a("v_and_b32 v17, 7, v0"); a("v_lshl_add_u32 v16, v17, 4, v16"); a(f"s_add_u32 s36, s45, {WS_MEMS}"); a("v_add_u32 v16, s36, v16")
    for i in range(16):
        a("global_store_dwordx4 v16, v[68:71], s[16:17] sc1"); a("v_add_u32 v16, 0x20000, v16")
    a("s_lshl_b32 s36, s20, 7"); a(f"s_add_u32 s36, s36, {WS_FLAG}"); a("v_and_b32 v16, 0x70, v6"); a("v_add_u32 v16, s36, v16")
    a("global_store_dwordx4 v16, v[68:71], s[16:17] sc1")
    a("s_lshl_b32 s36, s20, 10"); a(f"s_add_u32 s36, s36, {WS_FLAG2}"); a("v_add_u32 v16, s36, v6")
    a("global_store_dwordx4 v16, v[68:71], s[16:17] sc1")
    a("s_lshl_b32 s36, s20, 8"); a(f"s_add_u32 s36, s36, {WS_HW}"); a("v_and_b32 v16, 0xf0, v6"); a("v_add_u32 v16, s36, v16")
    a("global_store_dwordx4 v16, v[68:71], s[16:17] sc1")
    a("s_barrier")
    a("v_mov_b32 v17, 1"); a("v_mov_b32 v16, 0")
    a("s_waitcnt vmcnt(0)")
    a("s_mov_b64 exec, 1")
    a(f"global_atomic_add v16, v17, s[14:15] offset:{DBG_CLR} sc1")
    a("s_mov_b64 exec, -1")
    a(f"s_branch {L('clrd')}")
    a.label(L('noclr'))
    a("s_barrier")
    a.label(L('clrd'))
    def xdma(base, ldsreg):
        for kt in range(2):
            a(f"s_add_u32 m0, {ldsreg}, {kt*4096}")
            a("s_nop 0")
            for jj in range(4):
                a(f"global_load_lds_dwordx4 v{14+kt}, {base} offset:{jj*1024} sc1")
    def kv_poll(tag, tile):
        a(f"s_lshl_b32 s52, {tile}, 7"); a("s_lshr_b32 s36, s18, 1"); a("s_lshl_b32 s36, s36, 2"); a("s_add_u32 s52, s52, s36"); a(f"s_add_u32 s52, s52, {WS_FLAG + 96*128}")
        a("v_mov_b32 v17, s52")
        a.label(L(tag))
        a("global_load_dword v16, v17, s[16:17] sc1"); a("global_load_dword v18, v17, s[16:17] offset:64 sc1"); a("s_waitcnt vmcnt(0)")
        a("v_or_b32 v16, v16, v18")
        a("v_cmp_ne_u32 vcc, 0, v16"); a(f"s_cbranch_vccz {L(tag + 'ok')}")
        a("s_sleep 4")
        guard(a, L(tag), FAIL)
        a.label(L(tag + 'ok'))
    def kv_bases(segreg):
        a(f"s_lshl_b32 s42, {segreg}, 5"); a("s_add_u32 s42, s42, s18"); a("s_lshl_b32 s42, s42, 14"); a(f"s_add_u32 s42, s42, {WS_KX}")
        near(a, 48, "s42", kv=True)
        v_from_k(a, 34, 48)
    a("s_and_b32 s39, s19, 1"); a("s_xor_b32 s39, s39, 1"); a("s_lshl_b32 s39, s39, 1"); a("s_lshr_b32 s36, s19, 1"); a("s_add_u32 s39, s39, s36")
    a("s_lshl_b32 s43, s21, 14")
    a("s_lshl_b32 s36, s21, 20"); a("s_lshl_b32 s42, s18, 8"); a("s_add_u32 s36, s36, s42")
    a("v_lshrrev_b32 v10, 2, v0"); a("v_lshlrev_b32 v10, 13, v10"); a("v_and_b32 v11, 3, v0"); a("v_lshl_add_u32 v10, v11, 4, v10")
    a("s_lshl_b32 s42, s39, 6"); a("s_add_u32 s42, s42, s36"); a("v_add_u32 v10, s42, v10")
    a("v_lshrrev_b32 v11, 3, v0"); a("v_lshlrev_b32 v11, 13, v11"); a("v_and_b32 v12, 7, v0"); a("v_lshl_add_u32 v11, v12, 4, v11")
    a("s_and_b32 s42, s19, 1"); a("s_lshl_b32 s42, s42, 7"); a("s_add_u32 s42, s42, s36"); a("v_add_u32 v11, s42, v11")
    def qkdma(base, nt):
        for i in range(16):
            a(f"s_add_u32 m0, s43, {i*1024}")
            a("s_nop 0")
            a(f"global_load_lds_dwordx4 v11, {base} {nt}")
            if i < 15: a("v_add_u32 v11, 0x10000, v11")
    a("s_cmp_lt_u32 s19, 2"); a(f"s_cbranch_scc1 {L('isq')}")
    qkdma("s[6:7]", ""); a(f"s_branch {L('qkd')}")
    a.label(L('isq'))
    qkdma("s[4:5]", "" if PAR["QPL"] else "nt")
    a.label(L('qkd'))
    a("v_lshrrev_b32 v12, 5, v0"); a("v_lshlrev_b32 v12, 4, v12")
    a("v_bfe_u32 v13, v0, 4, 1"); a("v_lshl_add_u32 v12, v13, 2, v12")
    a("v_bfe_u32 v13, v0, 2, 1"); a("v_add_u32 v12, v12, v13")
    a("v_bfe_u32 v13, v0, 3, 1"); a("v_lshl_add_u32 v12, v13, 3, v12")
    a("v_and_b32 v13, 3, v0"); a("v_lshlrev_b32 v13, 3, v13"); a("v_add_u32 v13, s43, v13")
    a("v_lshl_add_u32 v7, v12, 7, v13"); a("v_lshl_add_u32 v12, v12, 6, v13")
    def qkread(ks):
        for t in range(4):
            for pp in range(4):
                hi, lo = pp >> 1, pp & 1
                reg = (t*2 + ks)*8 + pp*2
                a(f"ds_read_b64_tr_b16 a[{reg}:{reg+1}], v7 offset:{(64*ks + 32*hi + 2*lo)*128 + t*32}")
            a("s_waitcnt lgkmcnt(4)")
        a("s_waitcnt lgkmcnt(0)")
    def vread():
        for t in range(2):
            for ks in range(2):
                for pp in range(4):
                    hi, lo = pp >> 1, pp & 1
                    reg = ((4 + t)*2 + ks)*8 + pp*2
                    a(f"ds_read_b64_tr_b16 a[{reg}:{reg+1}], v12 offset:{(64*ks + 32*hi + 2*lo)*64 + t*32}")
                a("s_waitcnt lgkmcnt(4)")
        a("s_waitcnt lgkmcnt(0)")
    a("s_waitcnt vmcnt(8)")
    pstamp(a, prof, 91)
    qkread(0)
    for i in range(8):
        a(f"s_add_u32 m0, s43, {i*1024}")
        a("s_nop 0")
        a("global_load_lds_dwordx4 v10, s[8:9]")
        if i < 7: a("v_add_u32 v10, 0x20000, v10")
    a("s_waitcnt vmcnt(8)"); qkread(1)
    a("v_and_b32 v11, 7, v0"); a("v_lshlrev_b32 v11, 11, v11"); a("v_lshrrev_b32 v13, 3, v0"); a("v_lshl_add_u32 v11, v13, 4, v11")
    a("s_lshl_b32 s36, s21, 8"); a("v_add_u32 v11, s36, v11")
    a("global_load_dwordx4 v[16:19], v11, s[12:13]"); a("global_load_dwordx4 v[20:23], v11, s[12:13] offset:128")
    a("v_lshrrev_b32 v10, 3, v0"); a("v_lshlrev_b32 v10, 11, v10"); a("v_and_b32 v11, 7, v0"); a("v_lshl_add_u32 v10, v11, 4, v10")
    a("s_lshl_b32 s36, s18, 18"); a("s_lshl_b32 s42, s19, 9"); a("s_add_u32 s36, s36, s42")
    a("s_and_b32 s42, s21, 3"); a("s_lshl_b32 s42, s42, 7"); a("s_add_u32 s36, s36, s42")
    a("v_add_u32 v10, s36, v10")
    def odma(half):
        a(f"v_add_u32 v11, {half*64*2048}, v10")
        for i in range(8):
            a(f"s_add_u32 m0, s43, {half*8192 + i*1024}")
            a("s_nop 0")
            a("global_load_lds_dwordx4 v11, s[10:11]")
            if i < 7: a("v_add_u32 v11, 0x4000, v11")
    a("v_mov_b32 v56, 0"); a("s_lshr_b32 s36, s18, 3"); a("s_lshl_b32 s36, s36, 2"); a("v_mov_b32 v57, s36")
    a("s_cmp_lt_u32 s21, 4"); a(f"s_cbranch_scc0 {L('wv_only')}")
    odma(1)
    a("s_waitcnt vmcnt(8)"); vread()
    odma(0)
    a("v_lshrrev_b32 v12, 2, v0")
    a("v_lshlrev_b32 v12, 7, v12"); a("v_and_b32 v13, 3, v0"); a("v_lshl_add_u32 v12, v13, 4, v12"); a("v_add_u32 v12, s43, v12")
    a("s_waitcnt vmcnt(0)")
    def wo_reg(ct, jj):
        return f"v[{96+(ct*4+jj)*4}:{96+(ct*4+jj)*4+3}]"
    for ct in range(4):
        for jj in range(4):
            for lo in range(2):
                base = 96 + (ct*4 + jj)*4 + lo*2
                off = (32*jj + 16*lo)*128 + (ct >> 1)*64 + (ct & 1)*8
                a(f"ds_read_b64_tr_b16 v[{base}:{base+1}], v12 offset:{off}")
        a("s_waitcnt lgkmcnt(0)")
    a(f"s_branch {L('wdone')}")
    a.label(L('wv_only'))
    a("s_cmp_eq_u32 s21, 7"); a(f"s_cbranch_scc0 {L('wv2')}")
    a("global_load_dwordx4 v[48:51], v9, s[32:33] sc1"); a("global_load_dwordx4 v[52:55], v8, s[32:33] sc1")
    a(f"global_load_dwordx2 v[58:59], v56, s[14:15] offset:{DBG_VOTE} sc1"); a("global_load_dword v61, v57, s[14:15] sc1")
    a.label(L('wv2'))
    a("s_waitcnt vmcnt(0)"); vread()
    a.label(L('wdone'))
    pstamp(a, prof, 89)

    a("s_cmp_eq_u32 s21, 7"); a(f"s_cbranch_scc0 {L('sync1')}")
    a.label(L('clrw'))
    a("v_readfirstlane_b32 s36, v58"); a("v_readfirstlane_b32 s37, v59")
    a("s_and_b32 s42, s36, 0xffff"); a("s_add_u32 s42, s42, s37"); a("s_cmp_eq_u32 s42, 256"); a(f"s_cbranch_scc1 {L('clrok')}")
    a("s_sleep 8")
    a(f"global_load_dwordx2 v[58:59], v56, s[14:15] offset:{DBG_VOTE} sc1"); a("s_waitcnt vmcnt(0)")
    a("global_load_dword v61, v57, s[14:15] sc1"); a("s_waitcnt vmcnt(0)")
    guard(a, L('clrw'), FAIL)
    a.label(L('clrok'))
    a("v_cmp_gt_u32 vcc, 32, v61"); a(f"s_cbranch_vccz {L('cntok')}")
    a("global_load_dword v61, v57, s[14:15] sc1"); a("s_waitcnt vmcnt(0)")
    a.label(L('cntok'))
    a("s_lshr_b32 s36, s36, 16"); a("s_cmp_gt_u32 s36, 64"); a("s_cselect_b32 s25, 1, 0")
    a("v_mov_b32 v60, s25"); a(f"v_mov_b32 v56, {L_PARW}")
    a("ds_write_b64 v56, v[60:61]")
    a.label(L('sync1'))

    a("s_and_b32 s36, s21, 3"); a("s_lshl_b32 s36, s36, 11"); a("s_lshr_b32 s42, s21, 2"); a("s_lshl_b32 s42, s42, 14"); a("s_add_u32 s36, s36, s42")
    a("v_add_u32 v1, s36, v6")
    a("v_and_b32 v2, 8, v0"); a("v_cmp_eq_u32 vcc, 0, v2"); a("v_mov_b32 v2, 0xeeee"); a("v_mov_b32 v3, 0x4444"); a("s_nop 1")
    a("v_cndmask_b32 v2, v2, v3, vcc")
    a("s_mul_i32 s36, s21, 3072"); a("v_add_u32 v3, s36, v6")
    a("s_mov_b32 s22, 0"); a("s_mov_b32 s51, 1")
    a("s_waitcnt vmcnt(0) lgkmcnt(0)"); a("s_barrier")
    for i in range(8): a(f"v_min_u32 v{16+i}, -2, v{16+i}")
    a(f"v_mov_b32 v24, {L_PARW}"); a("ds_read_b64 v[24:25], v24"); a("s_waitcnt lgkmcnt(0)")
    a("v_readfirstlane_b32 s25, v24"); a("v_readfirstlane_b32 s23, v25")
    a("s_and_b32 s25, s25, 1")
    if "safe" in OPT: a("s_mov_b32 s23, 0")
    a("s_lshl_b32 s36, s25, 13"); a("s_add_u32 s26, s16, s36"); a("s_addc_u32 s27, s17, 0")
    a(f"s_mov_b32 s42, {WS_MEMS}"); near(a, 28, "s42")
    a("s_lshr_b32 s38, s18, 1"); a("s_lshl_b32 s38, s38, 14"); a("s_and_b32 s36, s18, 1"); a("s_lshl_b32 s36, s36, 12"); a("s_add_u32 s38, s38, s36"); a(f"s_add_u32 s38, s38, {WS_KMVM}")
    near(a, 30, "s38")
    if "diag" in OPT: pstamp(a, 3, 98)
    if prof:
        for k in range(8): a(f"s_mov_b32 s{60+k}, 0")
        a("s_memtime s[56:57]"); a("s_waitcnt lgkmcnt(0)"); a("s_mov_b32 s59, s56")
        pstamp(a, prof, 60)
    a("s_cmp_lt_u32 s21, 4"); a(f"s_cbranch_scc1 {L('setup_vo')}")
    a("s_cmp_eq_u32 s21, 6"); a(f"s_cbranch_scc1 {L('setup_sm')}")

    def head_word(val):
        a(f"v_mov_b32 v95, {val}")
        a("s_xor_b32 s36, s25, 1"); a("s_lshl_b32 s36, s36, 13"); a("s_add_u32 s36, s36, s45"); a(f"s_add_u32 s36, s36, {WS_HW}")
        a("v_mov_b32 v94, s36")
        a("s_mov_b64 exec, 1")
        a("global_store_dword v94, v95, s[16:17] sc1")
        a("s_mov_b64 exec, -1")
    def zero_acc():
        for i in range(24): a(f"v_mov_b32 v{24+i}, 0")
    def pair(p): return [(2*p, 0), (2*p+1, 0), (2*p, 1), (2*p+1, 1)]
    def sm(tt, ks, mb):
        dd = 24 + tt*4; b = (tt*2 + ks)*8
        a(f"v_smfmac_f32_16x16x64_bf16 v[{dd}:{dd+3}], v[{mb+4*ks}:{mb+3+4*ks}], a[{b}:{b+7}], v2")
    def cv(p, i): a(f"v_cvt_pk_bf16_f32 v{24+8*p+i}, v{24+8*p+2*i}, v{25+8*p+2*i}")
    def mload(b):
        a(f"global_load_dwordx4 v[{b}:{b+3}], v1, s[28:29] sc1")
        a(f"global_load_dwordx4 v[{b+4}:{b+7}], v1, s[28:29] offset:1024 sc1")
    def p1(name, mid=None):
        if PAR["MDEL"]: a(f"s_sleep {PAR['MDEL']}")
        a.label(L(name))
        mload(16)
        a("s_waitcnt vmcnt(0)")
        a.label(L(name + '_in'))
        fs(a, prof, 0, 5)
        chk = ["v_max3_u32 v0, v16, v17, v18", "v_max3_u32 v7, v19, v20, v21", "v_max3_u32 v0, v0, v22, v23", "v_max_u32 v0, v0, v7", "v_cmp_eq_u32 vcc, -1, v0"]
        for i, (t, k) in enumerate(pair(0)):
            sm(t, k, 16)
            for c in chk[2*i:2*i+2]: a(c)
            if i == 2: a(f"s_cbranch_vccnz {L(name + '_retry')}")
        stamp(a, prof, 0)
        fs(a, prof, 1, 5)
        for t, k in pair(1): sm(t, k, 16)
        a("s_nop 3")
        for i, (t, k) in enumerate(pair(2)):
            cv(0, i)
            if i == 3: a("ds_write_b128 v3, v[24:27]")
            sm(t, k, 16)
        fs(a, prof, 3, 5)
        for i in range(4): cv(1, i)
        a("ds_write_b128 v3, v[32:35] offset:1024")
        fs(a, prof, 4, 5)
        a("s_nop 2")
        for i in range(4): cv(2, i)
        if PAR["SPLITB"]:
            a("ds_write_b128 v3, v[40:43] offset:2048")
            a("s_waitcnt lgkmcnt(1)"); a("s_barrier")
            if mid:
                mid(); a("s_waitcnt lgkmcnt(8)")
            else:
                a("s_waitcnt lgkmcnt(0)")
        else:
            a("ds_write_b128 v3, v[40:43] offset:2048")
            a("s_waitcnt lgkmcnt(0)")
        fs(a, prof, 6, 5)
        a("s_barrier")
        if mid and not PAR["SPLITB"]: mid()
        fs(a, prof, 7, 5)
        if prof == 5: a("s_waitcnt lgkmcnt(0)")
        stamp(a, prof, 1)
    def p1_retry(name):
        a.label(L(name + '_retry'))
        a("s_nop 7")
        for i in range(8): a(f"v_mov_b32 v{24+i}, 0")
        guard(a, L(name), FAIL)

    def step_adv():
        zero_acc()
        a("s_add_u32 s22, s22, 1")
        a("s_add_u32 s28, s28, 0x8000"); a("s_addc_u32 s29, s29, 0")
        a("s_add_u32 s38, s38, 0x40000"); near(a, 30, "s38")
    def step_end():
        step_adv()
        a("s_waitcnt vmcnt(0) lgkmcnt(0)")
        a("s_barrier")
        stamp(a, prof, 7)

    a("s_sub_u32 s37, s21, 4"); a("s_min_u32 s37, s37, 2")
    a("s_lshl_b32 s36, s37, 10"); a("v_add_u32 v4, s36, v6")
    a("v_and_b32 v48, 1, v0"); a("v_lshlrev_b32 v48, 4, v48"); a("v_mov_b32 v49, 0x3f80"); a("v_lshlrev_b32 v48, v48, v49")
    a("v_bfe_u32 v49, v0, 3, 1"); a("v_bfe_u32 v50, v0, 1, 1"); a("v_lshl_add_u32 v49, v49, 1, v50")
    a("v_lshrrev_b32 v50, 2, v0"); a("v_xor_b32 v50, v50, v0"); a("v_and_b32 v50, 4, v50"); a("v_add_u32 v49, v49, v50")
    for q in range(4):
        a(f"v_cmp_eq_u32 vcc, {q}, v49"); a("s_nop 1"); a(f"v_cndmask_b32 v{84+q}, 0, v48, vcc")
    a("v_and_b32 v48, 7, v0"); a("v_lshlrev_b32 v48, 4, v48"); a("v_and_b32 v49, 8, v0"); a("v_lshrrev_b32 v50, 4, v0")
    a("v_add_u32 v51, v48, v49"); a("v_lshl_add_u32 v10, v50, 7, v51")
    a("s_and_b32 s46, s19, 1"); a("s_lshl_b32 s46, s46, 1"); a("s_add_u32 s46, s46, s37")
    a("s_add_u32 s36, s39, 4"); a("s_cmp_eq_u32 s37, 2"); a("s_cselect_b32 s36, s36, s46"); a("s_lshl_b32 s36, s36, 9"); a("v_add_u32 v10, s36, v10")
    a("v_lshl_add_u32 v5, v50, 8, v51"); a("s_lshl_b32 s36, s46, 10"); a("s_lshr_b32 s42, s19, 1"); a("s_lshl_b32 s42, s42, 7"); a("s_add_u32 s36, s36, s42"); a("v_add_u32 v5, s36, v5")
    zero_acc()
    a(f"s_setprio {PAR['PPRIO']}")
    a("s_cmp_eq_u32 s21, 7"); a(f"s_cbranch_scc1 {L('setup_m')}")
    def rd8():
        for w in range(8): a(f"ds_read_b128 v[{48+4*w}:{51+4*w}], v4 offset:{3072*w}")
    def reduce8():
        for w in range(8):
            a(f"s_waitcnt lgkmcnt({7-w})")
            a(f"v_mfma_f32_16x16x32_bf16 v[80:83], v[{48+4*w}:{51+4*w}], v[84:87], " + ("0" if w == 0 else "v[80:83]"))
    def pack_tag(tag, last):
        if last:
            a(f"s_cmp_eq_u32 s22, {NSTEP-1}"); a(f"s_cbranch_scc1 {L(last)}")
        a("s_cmp_lt_u32 s23, 32")
        a("s_nop 4" if last else "s_nop 6")
        a("v_cvt_pk_bf16_f32 v88, v80, v81"); a("v_cvt_pk_bf16_f32 v89, v82, v83")
        for i in range(2): a(f"v_or_b32 v{90+i}, 1, v{88+i}" if tag else f"v_and_b32 v{90+i}, -2, v{88+i}")
    a("v_add_u32 v11, s44, v6")
    a("v_and_b32 v15, 7, v0"); a("v_lshlrev_b32 v15, 4, v15"); a("v_bfe_u32 v48, v0, 4, 1"); a("v_lshl_add_u32 v15, v48, 3, v15"); a("v_add_u32 v15, s45, v15")
    a("v_and_b32 v48, 1, v0"); a("v_lshlrev_b32 v48, 4, v48"); a("v_mov_b32 v49, 0x3f80"); a("v_lshlrev_b32 v48, v48, v49")
    a("v_bfe_u32 v49, v0, 1, 3")
    for q in range(4):
        a(f"v_cmp_eq_u32 vcc, {q}, v49"); a("s_nop 1"); a(f"v_cndmask_b32 v{92+q}, 0, v48, vcc")
    DR = PAR["DR"]
    rsets = [96, 112, 128][:DR]
    def rload(b):
        for i in range(4): a(f"global_load_dwordx4 v[{b+4*i}:{b+3+4*i}], v11, s[26:27] offset:{1024*i} sc1")
    a(f"s_branch {L('v0_in')}")
    a.label(L('v_loop'))
    for tag in range(2):
        n = f"v{tag}"
        p1(n, rd8)
        reduce8()
        pack_tag(tag, 'last_pub' if tag == (NSTEP - 1) & 1 else None)
        a(f"s_cbranch_scc1 {L(n + '_wt')}")
        a("global_store_dwordx2 v5, v[90:91], s[32:33]")
        a.label(L(n + '_pd'))
        if tag == 0:
            a("s_cmp_eq_u32 s22, 0"); a(f"s_cbranch_scc1 {L('v_first')}")
            a.label(L('v_fj'))
        stamp(a, prof, 2)
        a("s_barrier")
        a("s_cmp_lt_u32 s19, 2"); a(f"s_cbranch_scc1 {L(n + '_nq')}")
        a("global_store_dwordx2 v10, v[88:89], s[30:31] sc1")
        a.label(L(n + '_nq'))
        a("s_cmp_eq_u32 s21, 4"); a(f"s_cbranch_scc1 {L(n + '_red')}")
        if prof == 3:
            a("s_memrealtime s[56:57]"); a("s_memtime s[92:93]"); a("s_waitcnt lgkmcnt(0)"); a("s_mov_b32 m0, s22"); a("s_nop 0"); a("v_writelane_b32 v150, s56, m0"); a("v_writelane_b32 v151, s92, m0")
        step_adv()
        if PAR["BDEL"]: a(f"s_sleep {PAR['BDEL']}")
        a("s_waitcnt vmcnt(0)")
        a(f"s_branch {L(n + '_end')}")
        a.label(L(n + '_red'))
        step_adv()
        if PAR["RDEL"]: a(f"s_sleep {PAR['RDEL']}")
        stamp(a, prof, 5, 31)
        for d in range(DR - 1):
            rload(rsets[d])
            if PAR["RGAP"]: a(f"s_sleep {PAR['RGAP']}")
        a.label(L(n + '_rp'))
        for d in range(DR):
            rload(rsets[(d + DR - 1) % DR])
            a(f"s_waitcnt vmcnt({4*(DR-1)})")
            b = rsets[d]
            mf = [f"v_mfma_f32_16x16x32_bf16 v[64:67], v[92:95], v[{b+4*i}:{b+3+4*i}], " + ("0" if i == 0 else "v[64:67]") for i in range(4)]
            tagchk(a, list(range(b, b + 16)), tag, 73, 72, mf)
            a(f"s_cbranch_vccz {L(n + '_rok')}" if d < DR - 1 else f"s_cbranch_vccnz {L(n + '_rr')}")
        a.label(L(n + '_rok'))
        a("s_nop 3")
        for i in range(4): a(f"v_add_f32_dpp v{72+i}, v{64+i}, v{64+i} row_ror:8 row_mask:0xf bank_mask:0xf")
        a("s_mov_b64 exec, 0x00ff00ff")
        a("v_cvt_pk_bf16_f32 v76, v72, v73"); a("v_cvt_pk_bf16_f32 v77, v74, v75")
        a("v_min_u32 v76, -2, v76"); a("v_min_u32 v77, -2, v77")
        a("global_store_dwordx2 v15, v[76:77], s[28:29] sc1")
        a("s_mov_b64 exec, -1")
        stamp(a, prof, 6, 31)
        if PAR["MACK"]: a("s_waitcnt vmcnt(0)")
        a.label(L(n + '_end'))
        a("s_barrier")
        stamp(a, prof, 7)
    a(f"s_branch {L('v_loop')}")
    for tag in range(2):
        n = f"v{tag}"
        p1_retry(n)
        a.label(L(n + '_wt')); a("global_store_dwordx2 v5, v[90:91], s[32:33] sc1"); a(f"s_branch {L(n + '_pd')}")
        a.label(L(n + '_rr')); guard(a, L(n + '_rp'), FAIL)

    a.label(L('v_first')); a("s_barrier"); a("s_barrier"); a(f"s_branch {L('v_fj')}")

    a.label(L('setup_m'))
    a("v_lshrrev_b32 v5, 5, v0"); a("v_lshl_add_u32 v5, v5, 8, v48"); a("v_bfe_u32 v50, v0, 3, 2"); a("v_lshl_add_u32 v5, v50, 2, v5")
    a("s_lshl_b32 s36, s39, 9"); a("s_add_u32 s36, s36, 4096"); a("v_add_u32 v5, s36, v5")
    a("v_mov_b32 v93, 0")
    def progress(tagname):
        a("s_cmp_eq_u32 s20, 0"); a(f"s_cbranch_scc0 {L(tagname)}")
        a("v_mov_b32 v92, s22")
        a("s_mov_b64 exec, 1")
        a(f"global_store_dword v93, v92, s[14:15] offset:{DBG_PROG} sc1")
        a("s_mov_b64 exec, -1")
        a.label(L(tagname))
    a(f"s_branch {L('m0_in')}")
    a.label(L('m_loop'))
    for tag in range(2):
        n = f"m{tag}"
        p1(n)
        rd8(); reduce8()
        pack_tag(tag, 'fin_m' if tag == (NSTEP - 1) & 1 else None)
        a(f"s_cbranch_scc1 {L(n + '_wt')}")
        a("global_store_dword v5, v90, s[32:33]"); a("global_store_dword v5, v91, s[32:33] offset:128")
        a.label(L(n + '_pd'))
        if tag == 0:
            a("s_cmp_eq_u32 s22, 0"); a(f"s_cbranch_scc1 {L('m_first')}")
            a.label(L('m_fj'))
        a("s_barrier")
        if "nopers" not in OPT: a("global_store_dwordx2 v10, v[88:89], s[30:31] sc1")
        progress(n + '_pg')
        if kvwait:
            a("s_add_u32 s53, s22, 3"); a("s_min_u32 s53, s53, 63"); kv_tile(a, "s53", "s53", "s36")
            a("s_cmp_lt_u32 s53, s51"); a(f"s_cbranch_scc1 {L(n + '_kvh')}")
            kv_poll(n + '_kv', "s53")
            a("s_add_u32 s51, s53, 1")
            a.label(L(n + '_kvh'))
        step_end()
        a(f"s_cmp_ge_u32 s22, {NSTEP - 3}"); a(f"s_cbranch_scc1 {L(n + '_hp')}")
        a.label(L(n + '_hd'))
    a(f"s_branch {L('m_loop')}")
    for tag in range(2):
        n = f"m{tag}"
        p1_retry(n)
        a.label(L(n + '_wt'))
        a("global_store_dword v5, v90, s[32:33] sc1"); a("global_store_dword v5, v91, s[32:33] offset:128 sc1"); a(f"s_branch {L(n + '_pd')}")
        a.label(L(n + '_hp'))
        a("s_sub_u32 s36, s22, 1"); head_word("s36"); a(f"s_branch {L(n + '_hd')}")
    a.label(L('m_first'))
    if kvwait:
        a("s_mov_b32 s53, 0"); kv_poll('kv0', "s53")
    for sg in range(2):
        a(f"s_mov_b32 s53, {sg}"); kv_bases("s53")
        a(f"s_mov_b32 s50, {L_VX + sg*8192}"); xdma("s[34:35]", "s50")
        a(f"s_mov_b32 s50, {L_KX + sg*8192}"); xdma("s[48:49]", "s50")
    a("s_waitcnt vmcnt(16)"); a("s_barrier"); a("s_barrier")
    pstamp(a, prof, 60)
    if "span" in OPT:
        a("s_and_b32 s98, s20, 15"); a("s_cmp_lg_u32 s98, 0"); a(f"s_cbranch_scc1 {L('nosp')}")
        a("s_memrealtime s[98:99]"); a("s_waitcnt lgkmcnt(0)"); a("v_mov_b32 v17, s98"); a("v_mov_b32 v16, 0")
        a("s_mov_b64 exec, 1"); a("global_atomic_umax v16, v17, s[14:15] offset:16 sc1"); a("s_mov_b64 exec, -1")
        a.label(L('nosp'))
    a("s_waitcnt vmcnt(0)")
    a(f"s_branch {L('m_fj')}")
    a.label(L('fin_m'))
    progress('pg_last')
    a(f"s_branch {L('last_pub')}")

    a.label(L('setup_sm'))
    a(f"v_add_u32 v14, {L_KX}, v6")
    a("v_and_b32 v48, 7, v0"); a("v_lshrrev_b32 v49, 4, v0"); a("v_lshl_add_u32 v9, v49, 3, v48"); a("v_lshlrev_b32 v9, 4, v9"); a("v_and_b32 v50, 8, v0"); a("v_add_u32 v9, v9, v50")
    a("v_and_b32 v49, 1, v49"); a("v_lshl_add_u32 v10, v49, 3, v48"); a("v_lshlrev_b32 v10, 4, v10")
    a("v_lshrrev_b32 v49, 5, v0"); a("v_lshl_add_u32 v10, v49, 2, v10"); a("v_lshrrev_b32 v50, 2, v50"); a("v_add_u32 v10, v10, v50")
    a("s_mov_b32 s46, 0x3e0293ee")
    for i in range(4): a(f"v_mov_b32 v{84+i}, 0")
    a(f"ds_write_b128 v6, v[84:87] offset:{L_ZERO}"); a(f"ds_write_b128 v6, v[84:87] offset:{L_ZERO + 1024}")
    def k_load():
        for i in range(8): a(f"ds_read_b128 v[{96+4*i}:{99+4*i}], v14 offset:{1024*i}")
        a("v_xor_b32 v14, 0x2000, v14")
    zero_acc()
    a("s_setprio 2")
    def xload(b):
        for jj in range(4): a(f"global_load_dwordx4 v[{b+4*jj}:{b+3+4*jj}], v6, s[32:33] offset:{1024*jj} sc1")
    def s_mfma(b, t, jj):
        X = f"v[{b+4*jj}:{b+3+4*jj}]"
        d = 64 + 4*t
        A = X if t == 2 else f"v[{96+(t*4+jj)*4}:{99+(t*4+jj)*4}]"
        return f"v_mfma_f32_16x16x32_bf16 v[{d}:{d+3}], {A}, {X}, " + (f"v[{d}:{d+3}]" if jj else "0")
    def s_head(b, tag):
        tagchk(a, list(range(b, b + 16)), tag, 15, 16, [s_mfma(b, 2, jj) for jj in range(4)])
    dpp = "row_shr:8 row_mask:0xf bank_mask:0xc"
    def s_rest(b):
        for jj in range(4): a(s_mfma(b, 1, jj))
        a(s_mfma(b, 0, 0))
        a(f"v_mov_b32_dpp v72, v73 {dpp}"); a(f"v_mov_b32_dpp v74, v75 {dpp}")
        a(s_mfma(b, 0, 1)); a(s_mfma(b, 0, 2))
        a("v_permlane32_swap_b32 v72, v74")
        a(s_mfma(b, 0, 3))
    XD = PAR["XD"]
    a(f"s_branch {L('s0_in')}")
    a.label(L('s_loop'))
    for tag in range(2):
        n = f"s{tag}"
        p1(n)
        if tag == (NSTEP - 1) & 1:
            a(f"s_cmp_eq_u32 s22, {NSTEP-1}"); a(f"s_cbranch_scc1 {L('fin')}")
        if tag == 0:
            a("s_cmp_eq_u32 s22, 0"); a(f"s_cbranch_scc1 {L('s_first')}")
            pass
        if PAR["XDEL"]: a(f"s_sleep {PAR['XDEL']}")
        if tag == 0: a.label(L('s_fj'))
        if XD == 2:
            xload(48)
            if PAR["XGAP"]: a(f"s_sleep {PAR['XGAP']}")
        a.label(L(n + '_xp'))
        xload(128 if XD == 2 else 48)
        a(f"s_waitcnt vmcnt({4*(XD-1)})")
        fs(a, prof, 0, 4)
        s_head(48, tag)
        a(f"s_cbranch_vccnz {L(n + '_xr')}")
        stamp(a, prof, 2)
        fs(a, prof, 1, 4)
        s_rest(48)
        a.label(L(n + '_xj'))
        fs(a, prof, 2, 4)
        a("s_nop 0")
        a("v_max_f32_dpp v16, v74, v74 row_ror:8 row_mask:0xf bank_mask:0xf")
        a("v_max3_f32 v16, v16, v68, v69"); a("v_max3_f32 v16, v16, v70, v71")
        a("s_nop 3")
        a("v_max3_f32 v16, v16, v64, v65"); a("v_max3_f32 v16, v16, v66, v67")
        fs(a, prof, 3, 4)
        a("v_mov_b32 v17, v16"); a(f"v_mov_b32_dpp v64, v68 {dpp}"); a(f"v_mov_b32_dpp v65, v69 {dpp}")
        a("v_permlane16_swap_b32 v16, v17"); a("v_max_f32 v16, v16, v17")
        a("v_mov_b32 v17, v16"); a(f"v_mov_b32_dpp v66, v70 {dpp}"); a(f"v_mov_b32_dpp v67, v71 {dpp}")
        a("v_permlane32_swap_b32 v16, v17"); a("v_max_f32 v16, v16, v17")
        fs(a, prof, 4, 4)
        a("v_mul_f32 v16, s46, v16")
        a("s_nop 1")
        a(f"v_mov_b32_dpp v16, v16 {dpp}")
        for rg in (74, 64, 65, 66, 67): a(f"v_fma_f32 v{rg}, v{rg}, s46, -v16")
        a("v_exp_f32 v74, v74"); a("v_exp_f32 v64, v64")
        a("v_cvt_pk_bf16_f32 v82, v74, v74")
        a("v_exp_f32 v65, v65")
        a(f"ds_write_b16 v10, v82 offset:{L_P + 1024}")
        a("v_exp_f32 v66, v66")
        a(f"ds_write_b16 v10, v82 offset:{L_P + 1280}")
        a("v_exp_f32 v67, v67")
        a("v_cvt_pk_bf16_f32 v80, v64, v65")
        a("v_cvt_pk_bf16_f32 v81, v66, v67")
        a(f"ds_write_b64 v9, v[80:81] offset:{L_P}")
        fs(a, prof, 5, 4)
        a("s_waitcnt lgkmcnt(0)"); fs(a, prof, 6, 4); a("s_barrier"); fs(a, prof, 7, 4)
        stamp(a, prof, 3)
        k_load()
        step_end()
    a(f"s_branch {L('s_loop')}")
    for tag in range(2):
        n = f"s{tag}"
        p1_retry(n)
        a.label(L(n + '_xr'))
        if XD == 2:
            xload(48)
            a("s_waitcnt vmcnt(4)")
            s_head(128, tag)
            a(f"s_cbranch_vccnz {L(n + '_xg')}")
            stamp(a, prof, 2)
            s_rest(128)
            a(f"s_branch {L(n + '_xj')}")
            a.label(L(n + '_xg'))
        guard(a, L(n + '_xp'), FAIL)

    a.label(L('s_first')); a("s_barrier"); k_load(); a("s_waitcnt lgkmcnt(0)"); a("s_barrier"); a(f"s_branch {L('s_fj')}")

    a.label(L('setup_vo'))
    a("v_add_u32 v8, 0x1000, v6"); a("v_lshrrev_b32 v9, 4, v0")
    a("s_lshl_b32 s36, s19, 5"); a("s_lshl_b32 s42, s21, 3"); a("s_add_u32 s36, s36, s42")
    a("v_add_u32 v9, s36, v9"); a("v_bfe_u32 v11, v0, 3, 1"); a("v_lshl_add_u32 v9, v11, 2, v9")
    a("v_and_b32 v11, 1, v9"); a("v_lshlrev_b32 v11, 12, v11"); a("v_lshrrev_b32 v9, 1, v9"); a("v_lshl_add_u32 v9, v9, 14, v11")
    a("v_and_b32 v11, 7, v0"); a("v_lshl_add_u32 v9, v11, 4, v9"); a("s_lshl_b32 s36, s18, 7"); a("v_add_u32 v9, s36, v9")
    a("v_lshrrev_b32 v12, 4, v0"); a("v_and_b32 v13, 7, v0"); a("v_lshl_add_u32 v12, v12, 3, v13"); a("v_lshlrev_b32 v12, 4, v12"); a(f"v_add_u32 v12, {L_P}, v12"); a(f"v_mov_b32 v11, {L_ZERO}")
    a("v_and_b32 v13, 8, v0"); a("v_cmp_eq_u32 vcc, 0, v13"); a("s_nop 1")
    a("v_cndmask_b32 v13, v12, v11, vcc"); a("v_cndmask_b32 v12, v11, v12, vcc")
    a(f"v_add_u32 v14, {L_VX}, v6")
    a("s_lshr_b32 s36, s21, 1"); a(f"s_mul_i32 s54, s36, {WS_VX - WS_KX}"); a(f"s_mul_i32 s55, s36, {L_VX - L_KX}")
    a("s_and_b32 s36, s21, 1"); a("s_lshl_b32 s36, s36, 12"); a("s_add_u32 s54, s54, s36"); a("s_add_u32 s55, s55, s36"); a(f"s_add_u32 s55, s55, {L_KX}")
    a("s_lshl_b32 s36, s18, 14"); a("s_add_u32 s54, s54, s36"); a(f"s_add_u32 s54, s54, {WS_KX}")
    def u_load():
        for i in range(8): a(f"ds_read_b128 v[{16+4*i}:{19+4*i}], v14 offset:{1024*i}")
        a("v_xor_b32 v14, 0x2000, v14")
    def u_half(hf):
        for jj in range(4):
            for c2 in range(2):
                for kt in range(2):
                    d = 64 + (c2*2 + kt)*4
                    A = 16 + (kt*4 + jj)*4
                    a(f"v_mfma_f32_16x16x32_bf16 v[{d}:{d+3}], v[{A}:{A+3}], {wo_reg(2*hf+c2, jj)}, " + ("0" if jj == 0 else f"v[{d}:{d+3}]"))
        a("s_nop 7")
        for c2 in range(2):
            for kt in range(2):
                d = 64 + (c2*2 + kt)*4
                u = 80 + (2*hf + c2)*4 + kt*2
                a(f"v_cvt_pk_bf16_f32 v{u}, v{d}, v{d+1}"); a(f"v_cvt_pk_bf16_f32 v{u+1}, v{d+2}, v{d+3}")
    def vo_prep(tag, ahead):
        for i in range(4): a(f"v_mov_b32 v{56+i}, 0x3f803f80")
        for i in range(4): a(f"v_mov_b32 v{60+i}, 0x3f003f00")
        for i in range(16): a(f"v_mov_b32 v{64+i}, 0")
        a(f"s_add_u32 s53, s22, {2 + ahead}"); a("s_min_u32 s53, s53, 63"); a("s_lshl_b32 s53, s53, 19"); a("s_add_u32 s53, s53, s54"); near(a, 48, "s53", kv=True)
        a(f"s_add_u32 m0, s55, {tag*8192}")
    vo_prep(0, 0)
    zero_acc()
    if PAR["PRIO"]: a("s_setprio 1")
    a(f"s_branch {L('o0_in')}")
    a.label(L('o_loop'))
    for tag in range(2):
        n = f"o{tag}"
        p1(n)
        if tag == (NSTEP - 1) & 1:
            a(f"s_cmp_eq_u32 s22, {NSTEP-1}"); a(f"s_cbranch_scc1 {L('fin')}")
        if PAR["VDEL"]: a(f"s_sleep {PAR['VDEL']}")
        a.label(L(n + '_vp'))
        for k in range(2): a(f"global_load_dwordx4 v[{48+4*k}:{51+4*k}], v8, s[32:33] offset:{1024*k} sc1")
        a("s_waitcnt vmcnt(0)")
        tagchk(a, list(range(48, 56)), tag, 17, 16)
        a(f"s_cbranch_vccnz {L(n + '_vr')}")
        for k in range(2):
            for ct in range(4):
                b = 96 + (ct*4 + 2*k)*4
                a(f"v_smfmac_f32_16x16x64_bf16 v[{64+4*ct}:{67+4*ct}], v[{48+4*k}:{51+4*k}], v[{b}:{b+7}], v2")
        a("s_nop 4")
        for ct in range(4):
            if ct == 3: a("s_nop 1")
            t = 24 + (ct & 1)*4 + (ct >> 1)*2
            a(f"v_cvt_pk_bf16_f32 v{t}, v{64+4*ct}, v{65+4*ct}"); a(f"v_cvt_pk_bf16_f32 v{t+1}, v{66+4*ct}, v{67+4*ct}")
        if tag == 0:
            a("s_cmp_eq_u32 s22, 0"); a(f"s_cbranch_scc1 {L('o_first')}")
            a.label(L('o_fj'))
        if "nodma" not in OPT:
            for jj in range(4): a(f"global_load_lds_dwordx4 v6, s[48:49] offset:{jj*1024} sc1")
        stamp(a, prof, 3)
        a("s_barrier")
        a("ds_read_b64 v[36:37], v12 offset:1024"); a("ds_read_b64 v[38:39], v13 offset:1024")
        a("ds_read_b128 v[32:35], v12"); a("ds_read_b128 v[48:51], v13")
        a("s_waitcnt lgkmcnt(2)")
        stamp(a, prof, 4)
        a("v_mfma_f32_16x16x32_bf16 v[40:43], v[60:63], v[36:39], 0")
        a("v_mfma_f32_16x16x32_bf16 v[64:67], v[24:27], v[36:39], 0")
        a("s_waitcnt lgkmcnt(0)")
        a("v_or_b32 v44, v32, v48"); a("v_or_b32 v45, v33, v49")
        a("v_or_b32 v46, v34, v50"); a("v_or_b32 v47, v35, v51")
        a("v_mfma_f32_16x16x32_bf16 v[64:67], v[80:83], v[32:35], v[64:67]")
        a("v_mfma_f32_16x16x32_bf16 v[68:71], v[28:31], v[36:39], 0")
        a("v_mfma_f32_16x16x32_bf16 v[40:43], v[56:59], v[44:47], v[40:43]")
        a("v_mfma_f32_16x16x32_bf16 v[64:67], v[88:91], v[48:51], v[64:67]")
        a("v_mfma_f32_16x16x32_bf16 v[68:71], v[84:87], v[32:35], v[68:71]")
        a("v_mfma_f32_16x16x32_bf16 v[68:71], v[92:95], v[48:51], v[68:71]")
        a("s_nop 4")
        a("v_rcp_f32 v40, v40")
        a("s_nop 0")
        tg = lambda x: a(f"v_or_b32 v{x}, 1, v{x}" if tag else f"v_and_b32 v{x}, -2, v{x}")
        for h in range(2):
            for i in range(2): a(f"v_pk_mul_f32 v[{64+4*h+2*i}:{65+4*h+2*i}], v[{64+4*h+2*i}:{65+4*h+2*i}], v[40:41] op_sel_hi:[1,0]")
            for i in range(2): a(f"v_cvt_pk_bf16_f32 v{48+2*h+i}, v{64+4*h+2*i}, v{65+4*h+2*i}")
        for i in range(4): tg(48 + i)
        a("global_store_dwordx4 v9, v[48:51], s[26:27] sc1")
        stamp(a, prof, 5)
        u_load(); a("s_waitcnt lgkmcnt(0)"); u_half(0)
        u_half(1)
        vo_prep(tag ^ 1, 1)
        step_end()
    a(f"s_branch {L('o_loop')}")
    for tag in range(2):
        n = f"o{tag}"
        p1_retry(n)
        a.label(L(n + '_vr')); guard(a, L(n + '_vp'), FAIL)

    a.label(L('o_first'))
    for i in range(8): a(f"v_mov_b32 v{48+i}, v{24+i}")
    a("s_barrier")
    u_load(); a("s_waitcnt lgkmcnt(0)"); a("s_barrier"); u_half(0); u_half(1)
    for i in range(8): a(f"v_mov_b32 v{24+i}, v{48+i}")
    a(f"s_branch {L('o_fj')}")

    a.label(L('last_pub'))
    a("s_nop 7")
    a("v_cvt_pk_bf16_f32 v88, v80, v81"); a("v_cvt_pk_bf16_f32 v89, v82, v83")
    a("s_or_b32 s36, s19, s37"); a("s_and_b32 s36, s36, 2"); a(f"s_cbranch_scc0 {L('fin')}")
    a("global_store_dwordx2 v10, v[88:89], s[30:31] sc1")
    a.label(L('fin'))
    a("s_waitcnt vmcnt(0)"); a("s_barrier")
    a("s_cmp_eq_u32 s21, 0"); a(f"s_cbranch_scc0 {L('end')}")
    head_word(str(NSTEP - 1))
    if "span" in OPT:
        a("s_and_b32 s98, s20, 15"); a("s_cmp_lg_u32 s98, 0"); a(f"s_cbranch_scc1 {L('end')}")
        a("s_memrealtime s[98:99]"); a("s_waitcnt lgkmcnt(0)"); a("v_mov_b32 v5, s98"); a("v_mov_b32 v2, 0")
        a("s_mov_b64 exec, 1"); a("global_atomic_umax v2, v5, s[14:15] offset:56 sc1"); a("s_mov_b64 exec, -1")
    if "diag" in OPT:
        a("s_cmp_eq_u32 s20, 0"); a(f"s_cbranch_scc0 {L('end')}")
        a("s_memrealtime s[56:57]"); a("s_waitcnt lgkmcnt(0)"); a("s_sub_u32 s70, s56, s98"); a("s_sub_u32 s71, s98, s97")
        a("s_mov_b64 exec, 1")
        a("s_mov_b32 s72, 0"); a("s_mov_b32 s73, 0"); a("s_mov_b32 s74, 0"); a("v_mov_b32 v18, 0")
        a.label(L('dg'))
        for k in range(2):
            a("s_lshl_b32 s36, s74, 21"); a(f"s_add_u32 s36, s36, {0x10000 + k*0x2000}"); a("v_mov_b32 v16, s36")
            for rep in range(2):
                a("s_memtime s[56:57]"); a("s_waitcnt lgkmcnt(0)")
                a("global_atomic_or v17, v16, v18, s[16:17] sc0 sc1"); a("s_waitcnt vmcnt(0)")
                a("s_memtime s[58:59]"); a("s_waitcnt lgkmcnt(0)")
            a(f"s_sub_u32 s{76+k}, s58, s56")
        a("s_cmp_lt_u32 s77, s76"); a("s_cselect_b32 s78, 1, 0"); a("s_mov_b32 s79, 0"); a("s_lshl_b64 s[78:79], s[78:79], s74"); a("s_or_b64 s[72:73], s[72:73], s[78:79]")
        a("s_add_u32 s74, s74, 1"); a("s_cmp_lt_u32 s74, 64"); a(f"s_cbranch_scc1 {L('dg')}")
        for k in range(4): a(f"v_mov_b32 v{20+k}, s{70+k}")
        a("global_store_dwordx4 v18, v[20:23], s[14:15] offset:48")
        a("s_mov_b64 exec, -1")
    a(f"s_branch {L('end')}")
    a.label(FAIL)
    a("v_mov_b32 v16, 0"); a("v_mov_b32 v17, 0xdead"); a("global_store_dword v16, v17, s[14:15] offset:252")
    a.label(L('end'))
    if prof:
        if prof == 3:
            a("s_memrealtime s[56:57]"); a("s_waitcnt lgkmcnt(0)"); a("s_mov_b32 s61, s56"); a("s_mov_b32 s62, s25"); a("s_mov_b32 s63, s90"); a("s_mov_b32 s64, s91"); a("s_mov_b32 s65, s89")
        if prof == 3:
            a("s_cmp_eq_u32 s21, 5"); a(f"s_cbranch_scc0 {L('nost')}")
            a("s_lshl_b32 s36, s20, 9"); a(f"s_add_u32 s36, s36, {203<<20}"); a("v_lshrrev_b32 v16, 1, v6"); a("v_add_u32 v16, s36, v16")
            a("global_store_dwordx2 v16, v[150:151], s[16:17]")
            a.label(L('nost'))
        if prof > 3:
            a("s_waitcnt lgkmcnt(0)")
            for k in range(8): a(f"s_sub_u32 s{60+k if k < 6 else 84+k}, s{66+2*k}, s66")
            a("s_mov_b32 s66, s90"); a("s_mov_b32 s67, s91")
        a("s_lshl_b32 s36, s20, 3"); a("s_add_u32 s36, s36, s21"); a("s_lshl_b32 s36, s36, 5"); a(f"s_add_u32 s36, s36, {200<<20}")
        a("v_mov_b32 v16, s36")
        for k in range(8): a(f"v_mov_b32 v{24+k}, s{60+k}")
        a("s_mov_b64 exec, 1")
        a("global_store_dwordx4 v16, v[24:27], s[16:17]"); a("global_store_dwordx4 v16, v[28:31], s[16:17] offset:16")
    a("s_endpgm")
```

```python
from asmgen import *

WS_RING  = 1 << 20
WS_PROBE = 0x1f0000
WS_FLAG2 = 0x140000
WS_HW    = 0x160000
WS_FLAG  = 0x1e0000
WS_MEMS  = 2 << 20
WS_KMVM  = 4 << 20
WS_KX    = 20 << 20
WS_VX    = 52 << 20
WS_WOT   = 126 << 20
WOT_CG = 1 << 19
L_PART = 0
L_P    = 24576
L_ZERO = 26624
L_SEL  = 28672
L_PARW = 7*16384
L_KX   = 131072
L_VX   = 147456
SPIN_MAX = 400000
NSTEP = 64
DBG_VOTE, DBG_CLR, DBG_PROG = 40, 44, 192
PAR0 = dict(EPF=0, RFL=0, PFL=0, DROP=0, RPF=0, DMI=0, DDEL=0, WPF=2, QPL=0, ST=1, BDEL=0, SPLITB=1, KFAR=1, VFAR=1, RDEL=10, MDEL=7, DM=1, MGAP=3, PRIO=1, XD=2, XGAP=1, VDEL=10, PPRIO=2, XDEL=7, DR=2, RGAP=5, MACK=0)
PAR = dict(PAR0)
OPT = set()

def guard(a, loop, fail):
    a("s_add_u32 s24, s24, 1"); a(f"s_cmp_lt_u32 s24, {SPIN_MAX}"); a(f"s_cbranch_scc1 {loop}"); a(f"s_branch {fail}")

def pstamp(a, prof, k):
    if prof == 3:
        a("s_memrealtime s[56:57]"); a("s_waitcnt lgkmcnt(0)"); a(f"s_mov_b32 s{k}, s56")

def stamp(a, prof, k, at=None):
    if not prof: return
    if prof >= 3 and (k != 7 or prof > 3): return
    if prof == 2:
        lab = a.newlabel("st")
        a("s_cmp_lg_u32 s22, " + ("31" if (k == 7 or at) else "30")); a(f"s_cbranch_scc1 {lab}")
        a("s_memrealtime s[56:57]"); a("s_waitcnt lgkmcnt(0)"); a("s_and_b32 s56, s56, 0xffffff"); a("s_lshl_b32 s57, s24, 24"); a(f"s_or_b32 s{60+k}, s56, s57")
        a.label(lab)
        return
    a("s_memtime s[56:57]"); a("s_waitcnt lgkmcnt(0)")
    a("s_sub_u32 s58, s56, s59"); a(f"s_add_u32 s{60+k}, s{60+k}, s58"); a("s_mov_b32 s59, s56")

def fs(a, prof, k, which):
    if prof == which: a(f"s_memtime s[{66+2*k}:{67+2*k}]")

def near_bit(a, tmp, off, par, kv=False):
    flip = kv and PAR["KFAR"] != PAR["VFAR"]
    if flip: a(f"s_cmp_ge_u32 {off}, {WS_VX}"); a(f"s_addc_u32 {tmp}, {par}, {PAR['KFAR']}"); a(f"s_lshl_b32 {tmp}, {tmp}, 21"); a(f"s_xor_b32 {tmp}, {tmp}, {off}"); a(f"s_lshr_b32 {tmp}, {tmp}, 21")
    else:
        a(f"s_lshr_b32 {tmp}, {off}, 21"); a(f"s_xor_b32 {tmp}, {tmp}, {par}")
        if kv and PAR["KFAR"]: a(f"s_xor_b32 {tmp}, {tmp}, 1")
    a(f"s_and_b32 {tmp}, {tmp}, 1"); a(f"s_lshl_b32 {tmp}, {tmp}, 13")

def near(a, dst, off, par="s25", wb=16, tmp="s36", kv=False):
    near_bit(a, tmp, off, par, kv)
    a(f"s_add_u32 {tmp}, {tmp}, {off}"); a(f"s_add_u32 s{dst}, s{wb}, {tmp}"); a(f"s_addc_u32 s{dst+1}, s{wb+1}, 0")

def v_from_k(a, v, k):
    a(f"s_add_u32 s{v}, s{k}, {WS_VX - WS_KX}"); a(f"s_addc_u32 s{v+1}, s{k+1}, 0")
    if PAR["KFAR"] != PAR["VFAR"]: a(f"s_xor_b32 s{v}, s{v}, 0x2000")

def kv_tile(a, dst, seg, tmp):
    a(f"s_sub_u32 {tmp}, {seg}, 16"); a(f"s_mul_i32 {tmp}, {tmp}, 43"); a(f"s_lshr_b32 {tmp}, {tmp}, 8"); a(f"s_add_u32 {tmp}, {tmp}, 4")
    a(f"s_lshr_b32 {dst}, {seg}, 2"); a(f"s_cmp_lt_u32 {dst}, 4"); a(f"s_cselect_b32 {dst}, {dst}, {tmp}")

def tagchk(a, regs, tag, t0, t1, mf=()):
    op = "0x80" if tag else "0xfe"
    mf = list(mf)
    ops = [f"v_bitop3_b32 v{t0}, v{regs[0]}, v{regs[1]}, v{regs[2]} bitop3:{op}", f"v_bitop3_b32 v{t1}, v{regs[3]}, v{regs[4]}, v{regs[5]} bitop3:{op}"]
    rest = regs[6:]; k = 0
    while rest:
        t = (t0, t1)[k & 1]; k += 1
        ops.append(f"v_bitop3_b32 v{t}, v{t}, v{rest[0]}, v{rest[1]} bitop3:{op}"); rest = rest[2:]
    ops.append(f"v_bitop3_b32 v{t0}, v{t0}, v{t1}, 1 bitop3:" + ("0x80" if tag else "0xa8"))
    per = -(-len(ops) // max(len(mf), 1))
    for i, o in enumerate(ops):
        if mf and i % per == 0: a(mf.pop(0))
        a(o)
    for m in mf: a(m)
    a(f"v_cmp_ne_u32 vcc, {tag}, v{t0}")

def emit_rec(a, pfx, prof=False, kvwait=False):
    L = lambda n: f"{pfx}_{n}"
    FAIL = L('fail')
    a("s_load_dwordx8 s[4:11], s[0:1], 40")
    a("s_load_dwordx2 s[12:13], s[0:1], 32")
    a("s_load_dwordx2 s[14:15], s[0:1], 88")
    a("s_load_dwordx2 s[16:17], s[0:1], 96")
    a("v_lshrrev_b32 v1, 6, v0")
    a("v_and_b32 v0, 63, v0")
    a("s_lshl_b32 s20, s18, 2"); a("s_add_u32 s20, s20, s19")
    a("v_readfirstlane_b32 s21, v1")
    a("v_lshlrev_b32 v6, 4, v0")
    a("s_mov_b32 s24, 0")
    a("s_waitcnt lgkmcnt(0)")
    pstamp(a, prof, 90)
    if "diag" in OPT: pstamp(a, 3, 97)
    a("s_add_u32 s16, s16, 0x1fffff"); a("s_addc_u32 s17, s17, 0"); a("s_and_b32 s16, s16, 0xffe00000")
    a("s_lshl_b32 s36, s18, 13"); a(f"s_add_u32 s36, s36, {WS_RING}"); a("s_add_u32 s32, s16, s36"); a("s_addc_u32 s33, s17, 0")
    a("s_and_b32 s45, s20, 63"); a("s_lshl_b32 s45, s45, 7"); a("s_lshr_b32 s36, s20, 6"); a("s_lshl_b32 s36, s36, 14"); a("s_add_u32 s45, s45, s36")
    a("s_and_b32 s44, s20, 1"); a("s_lshl_b32 s44, s44, 12"); a("s_lshr_b32 s42, s20, 1"); a("s_lshl_b32 s42, s42, 14"); a("s_add_u32 s44, s44, s42")
    a("v_mov_b32 v14, v6"); a("v_add_u32 v15, 0x1000, v6")
    a("s_lshl_b32 s36, s19, 10"); a("v_add_u32 v9, s36, v6")
    a("s_lshl_b32 s36, s19, 9"); a("s_add_u32 s36, s36, 4096"); a("v_and_b32 v8, 0x1ff, v6"); a("v_add_u32 v8, s36, v8")
    a("s_cmp_eq_u32 s21, 7"); a(f"s_cbranch_scc0 {L('noclr')}")
    for i in range(4): a(f"v_mov_b32 v{68+i}, -1")
    a("v_add_u32 v16, s44, v6"); a("v_add_u32 v17, 0x2000, v16")
    for p in range(2):
        for i in range(4): a(f"global_store_dwordx4 v{16+p}, v[68:71], s[16:17] offset:{1024*i} sc1")
    a("global_store_dwordx4 v9, v[68:71], s[32:33] sc1"); a("global_store_dwordx4 v8, v[68:71], s[32:33] sc1")
    a("v_bfe_u32 v16, v0, 3, 2"); a("v_lshlrev_b32 v16, 15, v16"); a("v_lshrrev_b32 v17, 5, v0"); a("v_lshl_add_u32 v16, v17, 13, v16")
    a("v_and_b32 v17, 7, v0"); a("v_lshl_add_u32 v16, v17, 4, v16"); a(f"s_add_u32 s36, s45, {WS_MEMS}"); a("v_add_u32 v16, s36, v16")
    for i in range(16):
        a("global_store_dwordx4 v16, v[68:71], s[16:17] sc1"); a("v_add_u32 v16, 0x20000, v16")
    a("s_lshl_b32 s36, s20, 7"); a(f"s_add_u32 s36, s36, {WS_FLAG}"); a("v_and_b32 v16, 0x70, v6"); a("v_add_u32 v16, s36, v16")
    a("global_store_dwordx4 v16, v[68:71], s[16:17] sc1")
    a("s_lshl_b32 s36, s20, 10"); a(f"s_add_u32 s36, s36, {WS_FLAG2}"); a("v_add_u32 v16, s36, v6")
    a("global_store_dwordx4 v16, v[68:71], s[16:17] sc1")
    a("s_lshl_b32 s36, s20, 8"); a(f"s_add_u32 s36, s36, {WS_HW}"); a("v_and_b32 v16, 0xf0, v6"); a("v_add_u32 v16, s36, v16")
    a("global_store_dwordx4 v16, v[68:71], s[16:17] sc1")
    a("s_barrier")
    a("v_mov_b32 v17, 1"); a("v_mov_b32 v16, 0")
    a("s_waitcnt vmcnt(0)")
    a("s_mov_b64 exec, 1")
    a(f"global_atomic_add v16, v17, s[14:15] offset:{DBG_CLR} sc1")
    a("s_mov_b64 exec, -1")
    a(f"s_branch {L('clrd')}")
    a.label(L('noclr'))
    a("s_barrier")
    a.label(L('clrd'))
    def xdma(base, ldsreg):
        for kt in range(2):
            a(f"s_add_u32 m0, {ldsreg}, {kt*4096}")
            a("s_nop 0")
            for jj in range(4):
                a(f"global_load_lds_dwordx4 v{14+kt}, {base} offset:{jj*1024} sc1")
    def kv_poll(tag, tile):
        a(f"s_lshl_b32 s52, {tile}, 7"); a("s_lshr_b32 s36, s18, 1"); a("s_lshl_b32 s36, s36, 2"); a("s_add_u32 s52, s52, s36"); a(f"s_add_u32 s52, s52, {WS_FLAG + 96*128}")
        a("v_mov_b32 v17, s52")
        a.label(L(tag))
        a("global_load_dword v16, v17, s[16:17] sc1"); a("global_load_dword v18, v17, s[16:17] offset:64 sc1"); a("s_waitcnt vmcnt(0)")
        a("v_or_b32 v16, v16, v18")
        a("v_cmp_ne_u32 vcc, 0, v16"); a(f"s_cbranch_vccz {L(tag + 'ok')}")
        a("s_sleep 4")
        guard(a, L(tag), FAIL)
        a.label(L(tag + 'ok'))
    def kv_bases(segreg):
        a(f"s_lshl_b32 s42, {segreg}, 5"); a("s_add_u32 s42, s42, s18"); a("s_lshl_b32 s42, s42, 14"); a(f"s_add_u32 s42, s42, {WS_KX}")
        near(a, 48, "s42", kv=True)
        v_from_k(a, 34, 48)
    a("s_and_b32 s39, s19, 1"); a("s_xor_b32 s39, s39, 1"); a("s_lshl_b32 s39, s39, 1"); a("s_lshr_b32 s36, s19, 1"); a("s_add_u32 s39, s39, s36")
    a("s_lshl_b32 s43, s21, 14")
    a("s_lshl_b32 s36, s21, 20"); a("s_lshl_b32 s42, s18, 8"); a("s_add_u32 s36, s36, s42")
    a("v_lshrrev_b32 v10, 2, v0"); a("v_lshlrev_b32 v10, 13, v10"); a("v_and_b32 v11, 3, v0"); a("v_lshl_add_u32 v10, v11, 4, v10")
    a("s_lshl_b32 s42, s39, 6"); a("s_add_u32 s42, s42, s36"); a("v_add_u32 v10, s42, v10")
    a("v_lshrrev_b32 v11, 3, v0"); a("v_lshlrev_b32 v11, 13, v11"); a("v_and_b32 v12, 7, v0"); a("v_lshl_add_u32 v11, v12, 4, v11")
    a("s_and_b32 s42, s19, 1"); a("s_lshl_b32 s42, s42, 7"); a("s_add_u32 s42, s42, s36"); a("v_add_u32 v11, s42, v11")
    def qkdma(base, nt):
        for i in range(16):
            a(f"s_add_u32 m0, s43, {i*1024}")
            a("s_nop 0")
            a(f"global_load_lds_dwordx4 v11, {base} {nt}")
            if i < 15: a("v_add_u32 v11, 0x10000, v11")
    a("s_cmp_lt_u32 s19, 2"); a(f"s_cbranch_scc1 {L('isq')}")
    qkdma("s[6:7]", ""); a(f"s_branch {L('qkd')}")
    a.label(L('isq'))
    qkdma("s[4:5]", "" if PAR["QPL"] else "nt")
    a.label(L('qkd'))
    a("v_lshrrev_b32 v12, 5, v0"); a("v_lshlrev_b32 v12, 4, v12")
    a("v_bfe_u32 v13, v0, 4, 1"); a("v_lshl_add_u32 v12, v13, 2, v12")
    a("v_bfe_u32 v13, v0, 2, 1"); a("v_add_u32 v12, v12, v13")
    a("v_bfe_u32 v13, v0, 3, 1"); a("v_lshl_add_u32 v12, v13, 3, v12")
    a("v_and_b32 v13, 3, v0"); a("v_lshlrev_b32 v13, 3, v13"); a("v_add_u32 v13, s43, v13")
    a("v_lshl_add_u32 v7, v12, 7, v13"); a("v_lshl_add_u32 v12, v12, 6, v13")
    def qkread(ks):
        for t in range(4):
            for pp in range(4):
                hi, lo = pp >> 1, pp & 1
                reg = (t*2 + ks)*8 + pp*2
                a(f"ds_read_b64_tr_b16 a[{reg}:{reg+1}], v7 offset:{(64*ks + 32*hi + 2*lo)*128 + t*32}")
            a("s_waitcnt lgkmcnt(4)")
        a("s_waitcnt lgkmcnt(0)")
    def vread():
        for t in range(2):
            for ks in range(2):
                for pp in range(4):
                    hi, lo = pp >> 1, pp & 1
                    reg = ((4 + t)*2 + ks)*8 + pp*2
                    a(f"ds_read_b64_tr_b16 a[{reg}:{reg+1}], v12 offset:{(64*ks + 32*hi + 2*lo)*64 + t*32}")
                a("s_waitcnt lgkmcnt(4)")
        a("s_waitcnt lgkmcnt(0)")
    a("s_waitcnt vmcnt(8)")
    pstamp(a, prof, 91)
    qkread(0)
    for i in range(8):
        a(f"s_add_u32 m0, s43, {i*1024}")
        a("s_nop 0")
        a("global_load_lds_dwordx4 v10, s[8:9]")
        if i < 7: a("v_add_u32 v10, 0x20000, v10")
    a("s_waitcnt vmcnt(8)"); qkread(1)
    a("v_and_b32 v11, 7, v0"); a("v_lshlrev_b32 v11, 11, v11"); a("v_lshrrev_b32 v13, 3, v0"); a("v_lshl_add_u32 v11, v13, 4, v11")
    a("s_lshl_b32 s36, s21, 8"); a("v_add_u32 v11, s36, v11")
    a("global_load_dwordx4 v[16:19], v11, s[12:13]"); a("global_load_dwordx4 v[20:23], v11, s[12:13] offset:128")
    a("v_lshrrev_b32 v10, 3, v0"); a("v_lshlrev_b32 v10, 11, v10"); a("v_and_b32 v11, 7, v0"); a("v_lshl_add_u32 v10, v11, 4, v10")
    a("s_lshl_b32 s36, s18, 18"); a("s_lshl_b32 s42, s19, 9"); a("s_add_u32 s36, s36, s42")
    a("s_and_b32 s42, s21, 3"); a("s_lshl_b32 s42, s42, 7"); a("s_add_u32 s36, s36, s42")
    a("v_add_u32 v10, s36, v10")
    def odma(half):
        a(f"v_add_u32 v11, {half*64*2048}, v10")
        for i in range(8):
            a(f"s_add_u32 m0, s43, {half*8192 + i*1024}")
            a("s_nop 0")
            a("global_load_lds_dwordx4 v11, s[10:11]")
            if i < 7: a("v_add_u32 v11, 0x4000, v11")
    a("v_mov_b32 v56, 0"); a("s_lshr_b32 s36, s18, 3"); a("s_lshl_b32 s36, s36, 2"); a("v_mov_b32 v57, s36")
    a("s_cmp_lt_u32 s21, 4"); a(f"s_cbranch_scc0 {L('wv_only')}")
    odma(1)
    a("s_waitcnt vmcnt(8)"); vread()
    odma(0)
    a("v_lshrrev_b32 v12, 2, v0")
    a("v_lshlrev_b32 v12, 7, v12"); a("v_and_b32 v13, 3, v0"); a("v_lshl_add_u32 v12, v13, 4, v12"); a("v_add_u32 v12, s43, v12")
    a("s_waitcnt vmcnt(0)")
    def wo_reg(ct, jj):
        return f"v[{96+(ct*4+jj)*4}:{96+(ct*4+jj)*4+3}]"
    for ct in range(4):
        for jj in range(4):
            for lo in range(2):
                base = 96 + (ct*4 + jj)*4 + lo*2
                off = (32*jj + 16*lo)*128 + (ct >> 1)*64 + (ct & 1)*8
                a(f"ds_read_b64_tr_b16 v[{base}:{base+1}], v12 offset:{off}")
        a("s_waitcnt lgkmcnt(0)")
    a(f"s_branch {L('wdone')}")
    a.label(L('wv_only'))
    a("s_cmp_eq_u32 s21, 7"); a(f"s_cbranch_scc0 {L('wv2')}")
    a("global_load_dwordx4 v[48:51], v9, s[32:33] sc1"); a("global_load_dwordx4 v[52:55], v8, s[32:33] sc1")
    a(f"global_load_dwordx2 v[58:59], v56, s[14:15] offset:{DBG_VOTE} sc1"); a("global_load_dword v61, v57, s[14:15] sc1")
    a.label(L('wv2'))
    a("s_waitcnt vmcnt(0)"); vread()
    a.label(L('wdone'))
    pstamp(a, prof, 89)

    a("s_cmp_eq_u32 s21, 7"); a(f"s_cbranch_scc0 {L('sync1')}")
    a.label(L('clrw'))
    a("v_readfirstlane_b32 s36, v58"); a("v_readfirstlane_b32 s37, v59")
    a("s_and_b32 s42, s36, 0xffff"); a("s_add_u32 s42, s42, s37"); a("s_cmp_eq_u32 s42, 256"); a(f"s_cbranch_scc1 {L('clrok')}")
    a("s_sleep 8")
    a(f"global_load_dwordx2 v[58:59], v56, s[14:15] offset:{DBG_VOTE} sc1"); a("s_waitcnt vmcnt(0)")
    a("global_load_dword v61, v57, s[14:15] sc1"); a("s_waitcnt vmcnt(0)")
    guard(a, L('clrw'), FAIL)
    a.label(L('clrok'))
    a("v_cmp_gt_u32 vcc, 32, v61"); a(f"s_cbranch_vccz {L('cntok')}")
    a("global_load_dword v61, v57, s[14:15] sc1"); a("s_waitcnt vmcnt(0)")
    a.label(L('cntok'))
    a("s_lshr_b32 s36, s36, 16"); a("s_cmp_gt_u32 s36, 64"); a("s_cselect_b32 s25, 1, 0")
    a("v_mov_b32 v60, s25"); a(f"v_mov_b32 v56, {L_PARW}")
    a("ds_write_b64 v56, v[60:61]")
    a.label(L('sync1'))

    a("s_and_b32 s36, s21, 3"); a("s_lshl_b32 s36, s36, 11"); a("s_lshr_b32 s42, s21, 2"); a("s_lshl_b32 s42, s42, 14"); a("s_add_u32 s36, s36, s42")
    a("v_add_u32 v1, s36, v6")
    a("v_and_b32 v2, 8, v0"); a("v_cmp_eq_u32 vcc, 0, v2"); a("v_mov_b32 v2, 0xeeee"); a("v_mov_b32 v3, 0x4444"); a("s_nop 1")
    a("v_cndmask_b32 v2, v2, v3, vcc")
    a("s_mul_i32 s36, s21, 3072"); a("v_add_u32 v3, s36, v6")
    a("s_mov_b32 s22, 0"); a("s_mov_b32 s51, 1")
    a("s_waitcnt vmcnt(0) lgkmcnt(0)"); a("s_barrier")
    if kvwait and PAR["RPF"]:
        a("s_load_dwordx8 s[68:75], s[0:1], 0")
        a("s_lshl_b32 s36, s20, 3"); a("s_add_u32 s36, s36, s21"); a("v_lshlrev_b32 v24, 2, v6"); a("s_mov_b32 m0, 0x10000")
        a("s_waitcnt lgkmcnt(0)")
        parts = [(74, 1 << 20, 3, 0, 3), (68, 0, 4, 0, 4), (70, 0, 6, 0, 4), (70, 0, 6, 4, 2), (72, 0, 2, 0, 2)] + ([(4, 0, 8, 0, 4), (4, 0, 8, 4, 4)] if PAR["RPF"] == 2 else [])
        for p, fix, per, first, nkb in parts:
            a(f"s_mul_i32 s42, s36, {per*1024}"); a(f"s_add_u32 s42, s42, {fix + first*1024}")
            a(f"v_min_u32 v25, {nkb*1024 - 64}, v24"); a("v_add_u32 v25, s42, v25")
            a(f"global_load_lds_dword v25, s[{p}:{p+1}]")
    for i in range(8): a(f"v_min_u32 v{16+i}, -2, v{16+i}")
    a(f"v_mov_b32 v24, {L_PARW}"); a("ds_read_b64 v[24:25], v24"); a("s_waitcnt lgkmcnt(0)")
    a("v_readfirstlane_b32 s25, v24"); a("v_readfirstlane_b32 s23, v25")
    a("s_and_b32 s25, s25, 1")
    if "safe" in OPT: a("s_mov_b32 s23, 0")
    a("s_lshl_b32 s36, s25, 13"); a("s_add_u32 s26, s16, s36"); a("s_addc_u32 s27, s17, 0")
    a(f"s_mov_b32 s42, {WS_MEMS}"); near(a, 28, "s42")
    a("s_lshr_b32 s38, s18, 1"); a("s_lshl_b32 s38, s38, 14"); a("s_and_b32 s36, s18, 1"); a("s_lshl_b32 s36, s36, 12"); a("s_add_u32 s38, s38, s36"); a(f"s_add_u32 s38, s38, {WS_KMVM}")
    near(a, 30, "s38")
    if "diag" in OPT: pstamp(a, 3, 98)
    if prof:
        for k in range(8): a(f"s_mov_b32 s{60+k}, 0")
        a("s_memtime s[56:57]"); a("s_waitcnt lgkmcnt(0)"); a("s_mov_b32 s59, s56")
        pstamp(a, prof, 60)
    a("s_cmp_lt_u32 s21, 4"); a(f"s_cbranch_scc1 {L('setup_vo')}")
    a("s_cmp_eq_u32 s21, 6"); a(f"s_cbranch_scc1 {L('setup_sm')}")

    def head_word(val):
        a(f"v_mov_b32 v95, {val}")
        a("s_xor_b32 s36, s25, 1"); a("s_lshl_b32 s36, s36, 13"); a("s_add_u32 s36, s36, s45"); a(f"s_add_u32 s36, s36, {WS_HW}")
        a("v_mov_b32 v94, s36")
        a("s_mov_b64 exec, 1")
        a("global_store_dword v94, v95, s[16:17] sc1")
        a("s_mov_b64 exec, -1")
    def zero_acc():
        for i in range(24): a(f"v_mov_b32 v{24+i}, 0")
    def pair(p): return [(2*p, 0), (2*p+1, 0), (2*p, 1), (2*p+1, 1)]
    def sm(tt, ks, mb):
        dd = 24 + tt*4; b = (tt*2 + ks)*8
        a(f"v_smfmac_f32_16x16x64_bf16 v[{dd}:{dd+3}], v[{mb+4*ks}:{mb+3+4*ks}], a[{b}:{b+7}], v2")
    def cv(p, i): a(f"v_cvt_pk_bf16_f32 v{24+8*p+i}, v{24+8*p+2*i}, v{25+8*p+2*i}")
    def mload(b):
        a(f"global_load_dwordx4 v[{b}:{b+3}], v1, s[28:29] sc1")
        a(f"global_load_dwordx4 v[{b+4}:{b+7}], v1, s[28:29] offset:1024 sc1")
    def p1(name, mid=None):
        if PAR["MDEL"]: a(f"s_sleep {PAR['MDEL']}")
        a.label(L(name))
        mload(16)
        a("s_waitcnt vmcnt(0)")
        a.label(L(name + '_in'))
        fs(a, prof, 0, 5)
        chk = ["v_max3_u32 v0, v16, v17, v18", "v_max3_u32 v7, v19, v20, v21", "v_max3_u32 v0, v0, v22, v23", "v_max_u32 v0, v0, v7", "v_cmp_eq_u32 vcc, -1, v0"]
        for i, (t, k) in enumerate(pair(0)):
            sm(t, k, 16)
            for c in chk[2*i:2*i+2]: a(c)
            if i == 2: a(f"s_cbranch_vccnz {L(name + '_retry')}")
        stamp(a, prof, 0)
        fs(a, prof, 1, 5)
        for t, k in pair(1): sm(t, k, 16)
        a("s_nop 3")
        for i, (t, k) in enumerate(pair(2)):
            cv(0, i)
            if i == 3: a("ds_write_b128 v3, v[24:27]")
            sm(t, k, 16)
        fs(a, prof, 3, 5)
        for i in range(4): cv(1, i)
        a("ds_write_b128 v3, v[32:35] offset:1024")
        fs(a, prof, 4, 5)
        if PAR["SPLITB"] == 2 and not mid:
            a("s_waitcnt lgkmcnt(0)"); a("s_barrier"); a("s_nop 0")
            for i in range(4): cv(2, i)
            a("ds_write_b128 v3, v[40:43] offset:2048")
            a("s_waitcnt lgkmcnt(0)")
        else:
            a("s_nop 2")
            for i in range(4): cv(2, i)
            a("ds_write_b128 v3, v[40:43] offset:2048")
            if PAR["SPLITB"]:
                a("s_waitcnt lgkmcnt(1)"); a("s_barrier")
                if mid:
                    mid(); a("s_waitcnt lgkmcnt(8)")
                else:
                    a("s_waitcnt lgkmcnt(0)")
            else:
                a("s_waitcnt lgkmcnt(0)")
        fs(a, prof, 6, 5)
        a("s_barrier")
        if mid and not PAR["SPLITB"]: mid()
        fs(a, prof, 7, 5)
        if prof == 5: a("s_waitcnt lgkmcnt(0)")
        stamp(a, prof, 1)
    def p1_retry(name):
        a.label(L(name + '_retry'))
        a("s_nop 7")
        for i in range(8): a(f"v_mov_b32 v{24+i}, 0")
        guard(a, L(name), FAIL)

    def step_adv():
        zero_acc()
        a("s_add_u32 s22, s22, 1")
        a("s_add_u32 s28, s28, 0x8000"); a("s_addc_u32 s29, s29, 0")
        a("s_add_u32 s38, s38, 0x40000"); near(a, 30, "s38")
    def step_end():
        step_adv()
        a("s_waitcnt vmcnt(0) lgkmcnt(0)")
        a("s_barrier")
        stamp(a, prof, 7)

    a("s_sub_u32 s37, s21, 4"); a("s_min_u32 s37, s37, 2")
    a("s_lshl_b32 s36, s37, 10"); a("v_add_u32 v4, s36, v6")
    a("v_and_b32 v48, 1, v0"); a("v_lshlrev_b32 v48, 4, v48"); a("v_mov_b32 v49, 0x3f80"); a("v_lshlrev_b32 v48, v48, v49")
    a("v_bfe_u32 v49, v0, 3, 1"); a("v_bfe_u32 v50, v0, 1, 1"); a("v_lshl_add_u32 v49, v49, 1, v50")
    a("v_lshrrev_b32 v50, 2, v0"); a("v_xor_b32 v50, v50, v0"); a("v_and_b32 v50, 4, v50"); a("v_add_u32 v49, v49, v50")
    for q in range(4):
        a(f"v_cmp_eq_u32 vcc, {q}, v49"); a("s_nop 1"); a(f"v_cndmask_b32 v{84+q}, 0, v48, vcc")
    a("v_and_b32 v48, 7, v0"); a("v_lshlrev_b32 v48, 4, v48"); a("v_and_b32 v49, 8, v0"); a("v_lshrrev_b32 v50, 4, v0")
    a("v_add_u32 v51, v48, v49"); a("v_lshl_add_u32 v10, v50, 7, v51")
    a("s_and_b32 s46, s19, 1"); a("s_lshl_b32 s46, s46, 1"); a("s_add_u32 s46, s46, s37")
    a("s_add_u32 s36, s39, 4"); a("s_cmp_eq_u32 s37, 2"); a("s_cselect_b32 s36, s36, s46"); a("s_lshl_b32 s36, s36, 9"); a("v_add_u32 v10, s36, v10")
    a("v_lshl_add_u32 v5, v50, 8, v51"); a("s_lshl_b32 s36, s46, 10"); a("s_lshr_b32 s42, s19, 1"); a("s_lshl_b32 s42, s42, 7"); a("s_add_u32 s36, s36, s42"); a("v_add_u32 v5, s36, v5")
    zero_acc()
    a(f"s_setprio {PAR['PPRIO']}")
    a("s_cmp_eq_u32 s21, 7"); a(f"s_cbranch_scc1 {L('setup_m')}")
    def rd8():
        for w in range(8): a(f"ds_read_b128 v[{48+4*w}:{51+4*w}], v4 offset:{3072*w}")
    def reduce8():
        for w in range(8):
            a(f"s_waitcnt lgkmcnt({7-w})")
            a(f"v_mfma_f32_16x16x32_bf16 v[80:83], v[{48+4*w}:{51+4*w}], v[84:87], " + ("0" if w == 0 else "v[80:83]"))
    def pack_tag(tag, last):
        if last:
            a(f"s_cmp_eq_u32 s22, {NSTEP-1}"); a(f"s_cbranch_scc1 {L(last)}")
        a("s_cmp_lt_u32 s23, 32")
        a("s_nop 4" if last else "s_nop 6")
        a("v_cvt_pk_bf16_f32 v88, v80, v81"); a("v_cvt_pk_bf16_f32 v89, v82, v83")
        for i in range(2): a(f"v_or_b32 v{90+i}, 1, v{88+i}" if tag else f"v_and_b32 v{90+i}, -2, v{88+i}")
    a("v_add_u32 v11, s44, v6")
    a("v_and_b32 v15, 7, v0"); a("v_lshlrev_b32 v15, 4, v15"); a("v_bfe_u32 v48, v0, 4, 1"); a("v_lshl_add_u32 v15, v48, 3, v15"); a("v_add_u32 v15, s45, v15")
    a("v_and_b32 v48, 1, v0"); a("v_lshlrev_b32 v48, 4, v48"); a("v_mov_b32 v49, 0x3f80"); a("v_lshlrev_b32 v48, v48, v49")
    a("v_bfe_u32 v49, v0, 1, 3")
    for q in range(4):
        a(f"v_cmp_eq_u32 vcc, {q}, v49"); a("s_nop 1"); a(f"v_cndmask_b32 v{92+q}, 0, v48, vcc")
    a(f"s_mul_i32 s54, s37, {WS_VX - WS_KX}"); a(f"s_mul_i32 s55, s37, {L_VX - L_KX}"); a(f"s_add_u32 s55, s55, {L_KX}")
    a("s_lshl_b32 s36, s18, 14"); a("s_add_u32 s54, s54, s36"); a(f"s_add_u32 s54, s54, {WS_KX}"); a("v_add_u32 v12, 0x1000, v6")
    DR = PAR["DR"]
    rsets = [96, 112, 128][:DR]
    def rload(b):
        for i in range(4): a(f"global_load_dwordx4 v[{b+4*i}:{b+3+4*i}], v11, s[26:27] offset:{1024*i} " + ("sc1", "sc1 nt", "sc0 sc1", "sc0 sc1 nt")[PAR["RFL"]])
    a(f"s_branch {L('v0_in')}")
    a.label(L('v_loop'))
    for tag in range(2):
        n = f"v{tag}"
        p1(n, rd8)
        reduce8()
        pack_tag(tag, 'last_pub' if tag == (NSTEP - 1) & 1 else None)
        a(f"s_cbranch_scc1 {L(n + '_wt')}")
        a("global_store_dwordx2 v5, v[90:91], s[32:33]")
        a.label(L(n + '_pd'))
        if tag == 0:
            a("s_cmp_eq_u32 s22, 0"); a(f"s_cbranch_scc1 {L('v_first')}")
            a.label(L('v_fj'))
        stamp(a, prof, 2)
        if PAR["DDEL"]:
            a("s_add_u32 s53, s22, 2"); a("s_min_u32 s53, s53, 63"); a("s_lshl_b32 s53, s53, 19"); a("s_add_u32 s53, s53, s54"); near(a, 48, "s53", kv=True)
            a(f"s_add_u32 m0, s55, {tag*8192}")
            a(f"s_sleep {PAR['DDEL']}")
            for jj in range(4): a(f"global_load_lds_dwordx4 v6, s[48:49] offset:{jj*1024} sc1")
            a(f"s_add_u32 m0, s55, {tag*8192 + 4096}"); a("s_nop 0")
            for jj in range(4): a(f"global_load_lds_dwordx4 v12, s[48:49] offset:{jj*1024} sc1")
        a("s_barrier")
        a("s_cmp_lt_u32 s19, 2"); a(f"s_cbranch_scc1 {L(n + '_nq')}")
        if "nopers" not in OPT: a("global_store_dwordx2 v10, v[88:89], s[30:31] sc1")
        a.label(L(n + '_nq'))
        a("s_cmp_eq_u32 s21, 4"); a(f"s_cbranch_scc1 {L(n + '_red')}")
        if prof == 3:
            a("s_memrealtime s[56:57]"); a("s_memtime s[92:93]"); a("s_waitcnt lgkmcnt(0)"); a("s_mov_b32 m0, s22"); a("s_nop 0"); a("v_writelane_b32 v150, s56, m0"); a("v_writelane_b32 v151, s92, m0")
        step_adv()
        if PAR["BDEL"]: a(f"s_sleep {PAR['BDEL']}")
        a("s_waitcnt vmcnt(0)")
        a(f"s_branch {L(n + '_end')}")
        a.label(L(n + '_red'))
        step_adv()
        if PAR["RDEL"]: a(f"s_sleep {PAR['RDEL']}")
        stamp(a, prof, 5, 31)
        for d in range(DR - 1):
            rload(rsets[d])
            if PAR["RGAP"]: a(f"s_sleep {PAR['RGAP']}")
        a.label(L(n + '_rp'))
        for d in range(DR):
            rload(rsets[(d + DR - 1) % DR])
            a(f"s_waitcnt vmcnt({4*(DR-1)})")
            b = rsets[d]
            mf = [f"v_mfma_f32_16x16x32_bf16 v[64:67], v[92:95], v[{b+4*i}:{b+3+4*i}], " + ("0" if i == 0 else "v[64:67]") for i in range(4)]
            tagchk(a, list(range(b, b + 16)), tag, 73, 72, mf)
            a(f"s_cbranch_vccz {L(n + '_rok')}" if d < DR - 1 else f"s_cbranch_vccnz {L(n + '_rr')}")
        a.label(L(n + '_rok'))
        a("s_nop 3")
        for i in range(4): a(f"v_add_f32_dpp v{72+i}, v{64+i}, v{64+i} row_ror:8 row_mask:0xf bank_mask:0xf")
        a("s_mov_b64 exec, 0x00ff00ff")
        a("v_cvt_pk_bf16_f32 v76, v72, v73"); a("v_cvt_pk_bf16_f32 v77, v74, v75")
        a("v_min_u32 v76, -2, v76"); a("v_min_u32 v77, -2, v77")
        a("global_store_dwordx2 v15, v[76:77], s[28:29] sc1")
        a("s_mov_b64 exec, -1")
        if PAR["DROP"]:
            for i in range(4): a(f"v_mov_b32 v{144+i}, {-1 if tag else 0}")
            for i in range(4): a(f"global_store_dwordx4 v11, v[144:147], s[26:27] offset:{1024*i} sc1")
        stamp(a, prof, 6, 31)
        if PAR["MACK"]: a("s_waitcnt vmcnt(0)")
        a.label(L(n + '_end'))
        a("s_barrier")
        stamp(a, prof, 7)
    a(f"s_branch {L('v_loop')}")
    for tag in range(2):
        n = f"v{tag}"
        p1_retry(n)
        a.label(L(n + '_wt')); a("global_store_dwordx2 v5, v[90:91], s[32:33] sc1"); a(f"s_branch {L(n + '_pd')}")
        a.label(L(n + '_rr')); guard(a, L(n + '_rp'), FAIL)

    a.label(L('v_first')); a("s_barrier"); a("s_barrier"); a(f"s_branch {L('v_fj')}")

    a.label(L('setup_m'))
    a("v_lshrrev_b32 v5, 5, v0"); a("v_lshl_add_u32 v5, v5, 8, v48"); a("v_bfe_u32 v50, v0, 3, 2"); a("v_lshl_add_u32 v5, v50, 2, v5")
    a("s_lshl_b32 s36, s39, 9"); a("s_add_u32 s36, s36, 4096"); a("v_add_u32 v5, s36, v5")
    a("v_mov_b32 v93, 0")
    def progress(tagname):
        a("s_cmp_eq_u32 s20, 0"); a(f"s_cbranch_scc0 {L(tagname)}")
        a("v_mov_b32 v92, s22")
        a("s_mov_b64 exec, 1")
        a(f"global_store_dword v93, v92, s[14:15] offset:{DBG_PROG} sc1")
        a("s_mov_b64 exec, -1")
        a.label(L(tagname))
    a(f"s_branch {L('m0_in')}")
    a.label(L('m_loop'))
    for tag in range(2):
        n = f"m{tag}"
        p1(n)
        rd8(); reduce8()
        pack_tag(tag, 'fin_m' if tag == (NSTEP - 1) & 1 else None)
        a(f"s_cbranch_scc1 {L(n + '_wt')}")
        a("global_store_dword v5, v90, s[32:33]"); a("global_store_dword v5, v91, s[32:33] offset:128")
        a.label(L(n + '_pd'))
        if tag == 0:
            a("s_cmp_eq_u32 s22, 0"); a(f"s_cbranch_scc1 {L('m_first')}")
            a.label(L('m_fj'))
        a("s_barrier")
        if "nopers" not in OPT: a("global_store_dwordx2 v10, v[88:89], s[30:31] sc1")
        progress(n + '_pg')
        if kvwait:
            a("s_add_u32 s53, s22, 3"); a("s_min_u32 s53, s53, 63"); kv_tile(a, "s53", "s53", "s36")
            a("s_cmp_lt_u32 s53, s51"); a(f"s_cbranch_scc1 {L(n + '_kvh')}")
            kv_poll(n + '_kv', "s53")
            a("s_add_u32 s51, s53, 1")
            a.label(L(n + '_kvh'))
        step_end()
        a(f"s_cmp_ge_u32 s22, {NSTEP - 3}"); a(f"s_cbranch_scc1 {L(n + '_hp')}")
        a.label(L(n + '_hd'))
    a(f"s_branch {L('m_loop')}")
    for tag in range(2):
        n = f"m{tag}"
        p1_retry(n)
        a.label(L(n + '_wt'))
        a("global_store_dword v5, v90, s[32:33] sc1"); a("global_store_dword v5, v91, s[32:33] offset:128 sc1"); a(f"s_branch {L(n + '_pd')}")
        a.label(L(n + '_hp'))
        a("s_sub_u32 s36, s22, 1"); head_word("s36"); a(f"s_branch {L(n + '_hd')}")
    a.label(L('m_first'))
    if kvwait:
        a("s_mov_b32 s53, 0"); kv_poll('kv0', "s53")
    for sg in range(2):
        a(f"s_mov_b32 s53, {sg}"); kv_bases("s53")
        a(f"s_mov_b32 s50, {L_VX + sg*8192}"); xdma("s[34:35]", "s50")
        a(f"s_mov_b32 s50, {L_KX + sg*8192}"); xdma("s[48:49]", "s50")
    a("s_waitcnt vmcnt(16)"); a("s_barrier"); a("s_barrier")
    pstamp(a, prof, 60)
    if "span" in OPT:
        a("s_and_b32 s98, s20, 15"); a("s_cmp_lg_u32 s98, 0"); a(f"s_cbranch_scc1 {L('nosp')}")
        a("s_memrealtime s[98:99]"); a("s_waitcnt lgkmcnt(0)"); a("v_mov_b32 v17, s98"); a("v_mov_b32 v16, 0")
        a("s_mov_b64 exec, 1"); a("global_atomic_umax v16, v17, s[14:15] offset:16 sc1"); a("s_mov_b64 exec, -1")
        a.label(L('nosp'))
    a("s_waitcnt vmcnt(0)")
    a(f"s_branch {L('m_fj')}")
    a.label(L('fin_m'))
    progress('pg_last')
    a(f"s_branch {L('last_pub')}")

    a.label(L('setup_sm'))
    a(f"v_add_u32 v14, {L_KX}, v6")
    a("v_and_b32 v48, 7, v0"); a("v_lshrrev_b32 v49, 4, v0"); a("v_lshl_add_u32 v9, v49, 3, v48"); a("v_lshlrev_b32 v9, 4, v9"); a("v_and_b32 v50, 8, v0"); a("v_add_u32 v9, v9, v50")
    a("v_and_b32 v49, 1, v49"); a("v_lshl_add_u32 v10, v49, 3, v48"); a("v_lshlrev_b32 v10, 4, v10")
    a("v_lshrrev_b32 v49, 5, v0"); a("v_lshl_add_u32 v10, v49, 2, v10"); a("v_lshrrev_b32 v50, 2, v50"); a("v_add_u32 v10, v10, v50")
    a("s_mov_b32 s46, 0x3e0293ee")
    for i in range(4): a(f"v_mov_b32 v{84+i}, 0")
    a(f"ds_write_b128 v6, v[84:87] offset:{L_ZERO}"); a(f"ds_write_b128 v6, v[84:87] offset:{L_ZERO + 1024}")
    def k_load():
        for i in range(8): a(f"ds_read_b128 v[{96+4*i}:{99+4*i}], v14 offset:{1024*i}")
        a("v_xor_b32 v14, 0x2000, v14")
    zero_acc()
    a("s_setprio 2")
    def xload(b):
        for jj in range(4): a(f"global_load_dwordx4 v[{b+4*jj}:{b+3+4*jj}], v6, s[32:33] offset:{1024*jj} sc1")
    def s_mfma(b, t, jj):
        X = f"v[{b+4*jj}:{b+3+4*jj}]"
        d = 64 + 4*t
        A = X if t == 2 else f"v[{96+(t*4+jj)*4}:{99+(t*4+jj)*4}]"
        return f"v_mfma_f32_16x16x32_bf16 v[{d}:{d+3}], {A}, {X}, " + (f"v[{d}:{d+3}]" if jj else "0")
    def s_head(b, tag):
        tagchk(a, list(range(b, b + 16)), tag, 15, 16, [s_mfma(b, 2, jj) for jj in range(4)])
    dpp = "row_shr:8 row_mask:0xf bank_mask:0xc"
    def s_rest(b):
        for jj in range(4): a(s_mfma(b, 1, jj))
        a(s_mfma(b, 0, 0))
        a(f"v_mov_b32_dpp v72, v73 {dpp}"); a(f"v_mov_b32_dpp v74, v75 {dpp}")
        a(s_mfma(b, 0, 1)); a(s_mfma(b, 0, 2))
        a("v_permlane32_swap_b32 v72, v74")
        a(s_mfma(b, 0, 3))
    XD = PAR["XD"]
    a(f"s_branch {L('s0_in')}")
    a.label(L('s_loop'))
    for tag in range(2):
        n = f"s{tag}"
        p1(n)
        if tag == (NSTEP - 1) & 1:
            a(f"s_cmp_eq_u32 s22, {NSTEP-1}"); a(f"s_cbranch_scc1 {L('fin')}")
        if tag == 0:
            a("s_cmp_eq_u32 s22, 0"); a(f"s_cbranch_scc1 {L('s_first')}")
            pass
        if PAR["XDEL"]: a(f"s_sleep {PAR['XDEL']}")
        if tag == 0: a.label(L('s_fj'))
        if XD == 2:
            xload(48)
            if PAR["XGAP"]: a(f"s_sleep {PAR['XGAP']}")
        a.label(L(n + '_xp'))
        xload(128 if XD == 2 else 48)
        a(f"s_waitcnt vmcnt({4*(XD-1)})")
        fs(a, prof, 0, 4)
        s_head(48, tag)
        a(f"s_cbranch_vccnz {L(n + '_xr')}")
        stamp(a, prof, 2)
        fs(a, prof, 1, 4)
        s_rest(48)
        a.label(L(n + '_xj'))
        fs(a, prof, 2, 4)
        a("s_nop 0")
        a("v_max_f32_dpp v16, v74, v74 row_ror:8 row_mask:0xf bank_mask:0xf")
        a("v_max3_f32 v16, v16, v68, v69"); a("v_max3_f32 v16, v16, v70, v71")
        a("s_nop 3")
        a("v_max3_f32 v16, v16, v64, v65"); a("v_max3_f32 v16, v16, v66, v67")
        fs(a, prof, 3, 4)
        a("v_mov_b32 v17, v16"); a(f"v_mov_b32_dpp v64, v68 {dpp}"); a(f"v_mov_b32_dpp v65, v69 {dpp}")
        a("v_permlane16_swap_b32 v16, v17"); a("v_max_f32 v16, v16, v17")
        a("v_mov_b32 v17, v16"); a(f"v_mov_b32_dpp v66, v70 {dpp}"); a(f"v_mov_b32_dpp v67, v71 {dpp}")
        a("v_permlane32_swap_b32 v16, v17"); a("v_max_f32 v16, v16, v17")
        fs(a, prof, 4, 4)
        a("v_mul_f32 v16, s46, v16")
        a("s_nop 1")
        a(f"v_mov_b32_dpp v16, v16 {dpp}")
        for rg in (74, 64, 65, 66, 67): a(f"v_fma_f32 v{rg}, v{rg}, s46, -v16")
        a("v_exp_f32 v74, v74"); a("v_exp_f32 v64, v64")
        a("v_cvt_pk_bf16_f32 v82, v74, v74")
        a("v_exp_f32 v65, v65")
        a(f"ds_write_b16 v10, v82 offset:{L_P + 1024}")
        a("v_exp_f32 v66, v66")
        a(f"ds_write_b16 v10, v82 offset:{L_P + 1280}")
        a("v_exp_f32 v67, v67")
        a("v_cvt_pk_bf16_f32 v80, v64, v65")
        a("v_cvt_pk_bf16_f32 v81, v66, v67")
        a(f"ds_write_b64 v9, v[80:81] offset:{L_P}")
        fs(a, prof, 5, 4)
        a("s_waitcnt lgkmcnt(0)"); fs(a, prof, 6, 4); a("s_barrier"); fs(a, prof, 7, 4)
        stamp(a, prof, 3)
        k_load()
        step_end()
    a(f"s_branch {L('s_loop')}")
    for tag in range(2):
        n = f"s{tag}"
        p1_retry(n)
        a.label(L(n + '_xr'))
        if XD == 2:
            xload(48)
            a("s_waitcnt vmcnt(4)")
            s_head(128, tag)
            a(f"s_cbranch_vccnz {L(n + '_xg')}")
            stamp(a, prof, 2)
            s_rest(128)
            a(f"s_branch {L(n + '_xj')}")
            a.label(L(n + '_xg'))
        guard(a, L(n + '_xp'), FAIL)

    a.label(L('s_first')); a("s_barrier"); k_load(); a("s_waitcnt lgkmcnt(0)"); a("s_barrier"); a(f"s_branch {L('s_fj')}")

    a.label(L('setup_vo'))
    a("v_add_u32 v8, 0x1000, v6"); a("v_lshrrev_b32 v9, 4, v0")
    a("s_lshl_b32 s36, s19, 5"); a("s_lshl_b32 s42, s21, 3"); a("s_add_u32 s36, s36, s42")
    a("v_add_u32 v9, s36, v9"); a("v_bfe_u32 v11, v0, 3, 1"); a("v_lshl_add_u32 v9, v11, 2, v9")
    a("v_and_b32 v11, 1, v9"); a("v_lshlrev_b32 v11, 12, v11"); a("v_lshrrev_b32 v9, 1, v9"); a("v_lshl_add_u32 v9, v9, 14, v11")
    a("v_and_b32 v11, 7, v0"); a("v_lshl_add_u32 v9, v11, 4, v9"); a("s_lshl_b32 s36, s18, 7"); a("v_add_u32 v9, s36, v9")
    a("v_lshrrev_b32 v12, 4, v0"); a("v_and_b32 v13, 7, v0"); a("v_lshl_add_u32 v12, v12, 3, v13"); a("v_lshlrev_b32 v12, 4, v12"); a(f"v_add_u32 v12, {L_P}, v12"); a(f"v_mov_b32 v11, {L_ZERO}")
    a("v_and_b32 v13, 8, v0"); a("v_cmp_eq_u32 vcc, 0, v13"); a("s_nop 1")
    a("v_cndmask_b32 v13, v12, v11, vcc"); a("v_cndmask_b32 v12, v11, v12, vcc")
    a(f"v_add_u32 v14, {L_VX}, v6")
    a("s_lshr_b32 s36, s21, 1"); a(f"s_mul_i32 s54, s36, {WS_VX - WS_KX}"); a(f"s_mul_i32 s55, s36, {L_VX - L_KX}")
    a("s_and_b32 s36, s21, 1"); a("s_lshl_b32 s36, s36, 12"); a("s_add_u32 s54, s54, s36"); a("s_add_u32 s55, s55, s36"); a(f"s_add_u32 s55, s55, {L_KX}")
    a("s_lshl_b32 s36, s18, 14"); a("s_add_u32 s54, s54, s36"); a(f"s_add_u32 s54, s54, {WS_KX}")
    def u_load():
        for i in range(8): a(f"ds_read_b128 v[{16+4*i}:{19+4*i}], v14 offset:{1024*i}")
        a("v_xor_b32 v14, 0x2000, v14")
    def u_half(hf):
        for jj in range(4):
            for c2 in range(2):
                for kt in range(2):
                    d = 64 + (c2*2 + kt)*4
                    A = 16 + (kt*4 + jj)*4
                    a(f"v_mfma_f32_16x16x32_bf16 v[{d}:{d+3}], v[{A}:{A+3}], {wo_reg(2*hf+c2, jj)}, " + ("0" if jj == 0 else f"v[{d}:{d+3}]"))
        a("s_nop 7")
        for c2 in range(2):
            for kt in range(2):
                d = 64 + (c2*2 + kt)*4
                u = 80 + (2*hf + c2)*4 + kt*2
                a(f"v_cvt_pk_bf16_f32 v{u}, v{d}, v{d+1}"); a(f"v_cvt_pk_bf16_f32 v{u+1}, v{d+2}, v{d+3}")
    def vo_prep(tag, ahead):
        for i in range(4): a(f"v_mov_b32 v{56+i}, 0x3f803f80")
        for i in range(4): a(f"v_mov_b32 v{60+i}, 0x3f003f00")
        for i in range(16): a(f"v_mov_b32 v{64+i}, 0")
        a(f"s_add_u32 s53, s22, {2 + ahead}"); a("s_min_u32 s53, s53, 63"); a("s_lshl_b32 s53, s53, 19"); a("s_add_u32 s53, s53, s54"); near(a, 48, "s53", kv=True)
        a(f"s_add_u32 m0, s55, {tag*8192}")
    vo_prep(0, 0)
    zero_acc()
    if PAR["PRIO"]: a("s_setprio 1")
    a(f"s_branch {L('o0_in')}")
    a.label(L('o_loop'))
    for tag in range(2):
        n = f"o{tag}"
        p1(n)
        if tag == (NSTEP - 1) & 1:
            a(f"s_cmp_eq_u32 s22, {NSTEP-1}"); a(f"s_cbranch_scc1 {L('fin')}")
        if PAR["VDEL"]: a(f"s_sleep {PAR['VDEL']}")
        a.label(L(n + '_vp'))
        for k in range(2): a(f"global_load_dwordx4 v[{48+4*k}:{51+4*k}], v8, s[32:33] offset:{1024*k} sc1")
        a("s_waitcnt vmcnt(0)")
        tagchk(a, list(range(48, 56)), tag, 17, 16)
        a(f"s_cbranch_vccnz {L(n + '_vr')}")
        for k in range(2):
            for ct in range(4):
                b = 96 + (ct*4 + 2*k)*4
                a(f"v_smfmac_f32_16x16x64_bf16 v[{64+4*ct}:{67+4*ct}], v[{48+4*k}:{51+4*k}], v[{b}:{b+7}], v2")
                if PAR["DMI"] and tag == 1 and k == PAR["DMI"] - 1: a(f"global_load_lds_dwordx4 v6, s[48:49] offset:{ct*1024} sc1")
        a("s_nop 4")
        for ct in range(4):
            if ct == 3: a("s_nop 1")
            t = 24 + (ct & 1)*4 + (ct >> 1)*2
            a(f"v_cvt_pk_bf16_f32 v{t}, v{64+4*ct}, v{65+4*ct}"); a(f"v_cvt_pk_bf16_f32 v{t+1}, v{66+4*ct}, v{67+4*ct}")
        if tag == 0:
            a("s_cmp_eq_u32 s22, 0"); a(f"s_cbranch_scc1 {L('o_first')}")
            a.label(L('o_fj'))
        if not PAR["DDEL"] and not (PAR["DMI"] and tag == 1) and "nodma" not in OPT:
            for jj in range(4): a(f"global_load_lds_dwordx4 v6, s[48:49] offset:{jj*1024} sc1")
        stamp(a, prof, 3)
        a("s_barrier")
        a("ds_read_b64 v[36:37], v12 offset:1024"); a("ds_read_b64 v[38:39], v13 offset:1024")
        a("ds_read_b128 v[32:35], v12"); a("ds_read_b128 v[48:51], v13")
        a("s_waitcnt lgkmcnt(2)")
        stamp(a, prof, 4)
        a("v_mfma_f32_16x16x32_bf16 v[40:43], v[60:63], v[36:39], 0")
        a("v_mfma_f32_16x16x32_bf16 v[64:67], v[24:27], v[36:39], 0")
        a("s_waitcnt lgkmcnt(0)")
        a("v_or_b32 v44, v32, v48"); a("v_or_b32 v45, v33, v49")
        a("v_or_b32 v46, v34, v50"); a("v_or_b32 v47, v35, v51")
        a("v_mfma_f32_16x16x32_bf16 v[64:67], v[80:83], v[32:35], v[64:67]")
        a("v_mfma_f32_16x16x32_bf16 v[68:71], v[28:31], v[36:39], 0")
        a("v_mfma_f32_16x16x32_bf16 v[40:43], v[56:59], v[44:47], v[40:43]")
        a("v_mfma_f32_16x16x32_bf16 v[64:67], v[88:91], v[48:51], v[64:67]")
        a("v_mfma_f32_16x16x32_bf16 v[68:71], v[84:87], v[32:35], v[68:71]")
        a("v_mfma_f32_16x16x32_bf16 v[68:71], v[92:95], v[48:51], v[68:71]")
        a("s_nop 4")
        a("v_rcp_f32 v40, v40")
        a("s_nop 0")
        tg = lambda x: a(f"v_or_b32 v{x}, 1, v{x}" if tag else f"v_and_b32 v{x}, -2, v{x}")
        for h in range(2):
            for i in range(2): a(f"v_pk_mul_f32 v[{64+4*h+2*i}:{65+4*h+2*i}], v[{64+4*h+2*i}:{65+4*h+2*i}], v[40:41] op_sel_hi:[1,0]")
            for i in range(2): a(f"v_cvt_pk_bf16_f32 v{48+2*h+i}, v{64+4*h+2*i}, v{65+4*h+2*i}")
        for i in range(4): tg(48 + i)
        a("global_store_dwordx4 v9, v[48:51], s[26:27] " + ("sc1", "sc1 nt", "sc0 sc1")[PAR["PFL"]])
        stamp(a, prof, 5)
        u_load(); a("s_waitcnt lgkmcnt(0)"); u_half(0)
        u_half(1)
        vo_prep(tag ^ 1, 1)
        step_end()
    a(f"s_branch {L('o_loop')}")
    for tag in range(2):
        n = f"o{tag}"
        p1_retry(n)
        a.label(L(n + '_vr')); guard(a, L(n + '_vp'), FAIL)

    a.label(L('o_first'))
    for i in range(8): a(f"v_mov_b32 v{48+i}, v{24+i}")
    a("s_barrier")
    u_load(); a("s_waitcnt lgkmcnt(0)"); a("s_barrier"); u_half(0); u_half(1)
    for i in range(8): a(f"v_mov_b32 v{24+i}, v{48+i}")
    a(f"s_branch {L('o_fj')}")

    a.label(L('last_pub'))
    a("s_nop 7")
    a("v_cvt_pk_bf16_f32 v88, v80, v81"); a("v_cvt_pk_bf16_f32 v89, v82, v83")
    a("s_or_b32 s36, s19, s37"); a("s_and_b32 s36, s36, 2"); a(f"s_cbranch_scc0 {L('fin')}")
    a("global_store_dwordx2 v10, v[88:89], s[30:31] sc1")
    a.label(L('fin'))
    a("s_waitcnt vmcnt(0)"); a("s_barrier")
    a("s_cmp_eq_u32 s21, 0"); a(f"s_cbranch_scc0 {L('end')}")
    head_word(str(NSTEP - 1))
    if "span" in OPT:
        a("s_and_b32 s98, s20, 15"); a("s_cmp_lg_u32 s98, 0"); a(f"s_cbranch_scc1 {L('end')}")
        a("s_memrealtime s[98:99]"); a("s_waitcnt lgkmcnt(0)"); a("v_mov_b32 v5, s98"); a("v_mov_b32 v2, 0")
        a("s_mov_b64 exec, 1"); a("global_atomic_umax v2, v5, s[14:15] offset:56 sc1"); a("s_mov_b64 exec, -1")
    if "diag" in OPT:
        a("s_cmp_eq_u32 s20, 0"); a(f"s_cbranch_scc0 {L('end')}")
        a("s_memrealtime s[56:57]"); a("s_waitcnt lgkmcnt(0)"); a("s_sub_u32 s70, s56, s98"); a("s_sub_u32 s71, s98, s97")
        a("s_mov_b64 exec, 1")
        a("s_mov_b32 s72, 0"); a("s_mov_b32 s73, 0"); a("s_mov_b32 s74, 0"); a("v_mov_b32 v18, 0")
        a.label(L('dg'))
        for k in range(2):
            a("s_lshl_b32 s36, s74, 21"); a(f"s_add_u32 s36, s36, {0x10000 + k*0x2000}"); a("v_mov_b32 v16, s36")
            for rep in range(2):
                a("s_memtime s[56:57]"); a("s_waitcnt lgkmcnt(0)")
                a("global_atomic_or v17, v16, v18, s[16:17] sc0 sc1"); a("s_waitcnt vmcnt(0)")
                a("s_memtime s[58:59]"); a("s_waitcnt lgkmcnt(0)")
            a(f"s_sub_u32 s{76+k}, s58, s56")
        a("s_cmp_lt_u32 s77, s76"); a("s_cselect_b32 s78, 1, 0"); a("s_mov_b32 s79, 0"); a("s_lshl_b64 s[78:79], s[78:79], s74"); a("s_or_b64 s[72:73], s[72:73], s[78:79]")
        a("s_add_u32 s74, s74, 1"); a("s_cmp_lt_u32 s74, 64"); a(f"s_cbranch_scc1 {L('dg')}")
        for k in range(4): a(f"v_mov_b32 v{20+k}, s{70+k}")
        a("global_store_dwordx4 v18, v[20:23], s[14:15] offset:48")
        a("s_mov_b64 exec, -1")
    a(f"s_branch {L('end')}")
    a.label(FAIL)
    a("v_mov_b32 v16, 0"); a("v_mov_b32 v17, 0xdead"); a("global_store_dword v16, v17, s[14:15] offset:252")
    a.label(L('end'))
    if prof:
        if prof == 3:
            a("s_memrealtime s[56:57]"); a("s_waitcnt lgkmcnt(0)"); a("s_mov_b32 s61, s56"); a("s_mov_b32 s62, s25"); a("s_mov_b32 s63, s90"); a("s_mov_b32 s64, s91"); a("s_mov_b32 s65, s89")
        if prof == 3:
            a("s_cmp_eq_u32 s21, 5"); a(f"s_cbranch_scc0 {L('nost')}")
            a("s_lshl_b32 s36, s20, 9"); a(f"s_add_u32 s36, s36, {203<<20}"); a("v_lshrrev_b32 v16, 1, v6"); a("v_add_u32 v16, s36, v16")
            a("global_store_dwordx2 v16, v[150:151], s[16:17]")
            a.label(L('nost'))
        if prof > 3:
            a("s_waitcnt lgkmcnt(0)")
            for k in range(8): a(f"s_sub_u32 s{60+k if k < 6 else 84+k}, s{66+2*k}, s66")
            a("s_mov_b32 s66, s90"); a("s_mov_b32 s67, s91")
        a("s_lshl_b32 s36, s20, 3"); a("s_add_u32 s36, s36, s21"); a("s_lshl_b32 s36, s36, 5"); a(f"s_add_u32 s36, s36, {200<<20}")
        a("v_mov_b32 v16, s36")
        for k in range(8): a(f"v_mov_b32 v{24+k}, s{60+k}")
        a("s_mov_b64 exec, 1")
        a("global_store_dwordx4 v16, v[24:27], s[16:17]"); a("global_store_dwordx4 v16, v[28:31], s[16:17] offset:16")
    a("s_endpgm")
```

```python
import sys, os
sys.path.insert(0, os.path.dirname(__file__))
from asmgen import *
import gemm
import rec2 as rec
from gemm import acc, R

NAME = "concat_heads__linear_attn_block__memory_aug_recurrent_mem_tr__prompt"
WS_O   = 84 << 20
WS_OA  = 116 << 20
WS_KVP = 124 << 20
OA_T = 65536
WS_INBOX = 142 << 20
D_OVF, D_AKV, D_KV, D_AO, D_O = 32, 36, 64, 96, 128
D_PROG = rec.DBG_PROG
WSPIN = 400000
TSET = "1111000221021012"
def setmask(k): return sum(1 << t for t in range(16) if int(TSET[t]) == k)
LOG2E = 0x3fb8aa3b
EPS = 0x358637bd
SCL = 0x3e0293ee


def load_ptrs(a):
    a("s_load_dwordx16 s[4:19], s[0:1], 0"); a("s_load_dwordx2 s[20:21], s[0:1], 64")
    a("s_load_dwordx4 s[24:27], s[0:1], 80"); a("s_load_dwordx2 s[28:29], s[0:1], 96")

def signal(a, off_sgpr_or_imm, val=1):
    lab = a.newlabel("sig")
    a("s_waitcnt vmcnt(0)"); a("s_barrier")
    a("s_cmp_lg_u32 s75, 0"); a(f"s_cbranch_scc1 {lab}")
    a(f"v_mov_b32 v16, {off_sgpr_or_imm}"); a(f"v_mov_b32 v17, {val}")
    a("s_mov_b64 exec, 1")
    a("global_atomic_add v16, v17, s[26:27] sc1")
    a("s_mov_b64 exec, -1")
    a.label(lab)

def wait_cnt(a, off, target, inv=True):
    lp, ok, done = a.newlabel("wl"), a.newlabel("wo"), a.newlabel("wd")
    a("s_cmp_lg_u32 s75, 0"); a(f"s_cbranch_scc1 {done}")
    a(f"v_mov_b32 v16, {off}")
    a.label(lp)
    a("global_load_dword v17, v16, s[26:27] sc1"); a("s_waitcnt vmcnt(0)")
    a(f"v_cmp_ne_u32 vcc, {target}, v17"); a(f"s_cbranch_vccz {ok}")
    a("s_sleep 8")
    a("s_add_u32 s46, s46, 1"); a(f"s_cmp_lt_u32 s46, {WSPIN}"); a(f"s_cbranch_scc1 {lp}")
    a("s_branch w_fail")
    a.label(ok)
    if inv: a("buffer_inv sc1"); a("s_waitcnt vmcnt(0)")
    a.label(done)
    a("s_barrier")

def learn_parity(a):
    lp, ok = a.newlabel("vl"), a.newlabel("vo")
    a.label(lp)
    a("s_waitcnt vmcnt(0)")
    a("v_readfirstlane_b32 s22, v18"); a("v_readfirstlane_b32 s34, v19")
    a("s_and_b32 s32, s22, 0xffff"); a("s_add_u32 s32, s32, s34"); a("s_cmp_eq_u32 s32, 256"); a(f"s_cbranch_scc1 {ok}")
    a("s_sleep 8")
    a(f"global_load_dwordx2 v[18:19], v16, s[26:27] offset:{rec.DBG_VOTE} sc1")
    a("s_add_u32 s46, s46, 1"); a(f"s_cmp_lt_u32 s46, {WSPIN}"); a(f"s_cbranch_scc1 {lp}")
    a("s_branch w_fail")
    a.label(ok)
    a("s_lshr_b32 s22, s22, 16"); a("s_cmp_gt_u32 s22, 64"); a("s_cselect_b32 s22, 1, 0")

def phi(a, regs):
    for i in range(0, len(regs), 8):
        b = regs[i:i+8]
        for k, r in enumerate(b): a(f"v_mul_f32 v{16+k}, s40, v{r}")
        for k, r in enumerate(b): a(f"v_min_f32 v{16+k}, 0, v{16+k}")
        for k, r in enumerate(b): a(f"v_exp_f32 v{16+k}, v{16+k}")
        for k, r in enumerate(b): a(f"v_max_f32 v{r}, 0, v{r}")
        for k, r in enumerate(b): a(f"v_add_f32 v{r}, v{r}, v{16+k}")
        for k, r in enumerate(b): a(f"v_add_f32 v{r}, s41, v{r}")

def pack_frags(a):
    for tt in range(4):
        for jj in range(4):
            s = acc(tt, 2*jj); d = 32 + (tt*4 + jj)*4
            for i in range(4): a(f"v_cvt_pk_bf16_f32 v{d+i}, v{s+2*i}, v{s+2*i+1}")
def frag(tt, jj): return R('v', 32 + (tt*4 + jj)*4)

PROF = False
def wstamp(a, k):
    if not PROF: return
    lab = a.newlabel("ws")
    a("s_cmp_lg_u32 s75, 0"); a(f"s_cbranch_scc1 {lab}")
    a("s_memrealtime s[56:57]"); a("s_waitcnt lgkmcnt(0)")
    a("s_lshl_b32 s58, s97, 7"); a("s_lshl_b32 s57, s59, 2"); a("s_add_u32 s58, s58, s57"); a(f"s_add_u32 s58, s58, {201 << 20}")
    a("v_mov_b32 v16, s58"); a("v_mov_b32 v17, s56"); a("global_store_dword v16, v17, s[28:29]")
    a("s_memtime s[56:57]"); a("s_waitcnt lgkmcnt(0)"); a("v_mov_b32 v17, s56"); a("v_add_u32 v16, 0x100000, v16"); a("global_store_dword v16, v17, s[28:29]")
    a("s_add_u32 s59, s59, 1")
    a.label(lab)

def tstamp(a, ev, v0=126, v1=127):
    if not PROF: return
    a("s_memrealtime s[56:57]"); a("s_waitcnt lgkmcnt(0)")
    a("s_lshl_b32 s58, s96, 2"); a(f"s_add_u32 s58, s58, {(204 << 20) + ev*8192}")
    a(f"v_mov_b32 v{v0}, s58"); a(f"v_mov_b32 v{v1}, s56"); a(f"global_store_dword v{v0}, v{v1}, s[28:29]")

def wside(a, dst, off, tmp):
    rec.near(a, dst, off, "s22", 28, tmp, kv=True)

def task_g1(a, MT, grp):
    gemm.setup_a_rowmajor(a, 2048, MT); gemm.setup_w(a, 8192)
    a("s_lshl_b32 s32, s31, 15"); a("s_add_u32 s80, s10, s32"); a("s_addc_u32 s81, s11, 0")
    a("s_cmp_lt_u32 s30, 16"); a("s_cselect_b32 s82, s16, s18"); a("s_cselect_b32 s83, s17, s19")
    a(f"s_cselect_b32 s33, {rec.WS_KX >> 20}, {rec.WS_VX >> 20}"); a("s_lshl_b32 s33, s33, 20")
    a("s_and_b32 s35, s30, 15"); a("s_lshl_b32 s32, s35, 9"); a("s_add_u32 s82, s82, s32"); a("s_addc_u32 s83, s83, 0")
    a("s_mov_b32 s66, 7")
    if grp == 0 and rec.PAR["WPF"]:
        a("s_cmp_lt_u32 s44, 2"); a("s_cbranch_scc1 no_wpf")
        a("s_and_b32 s34, s44, 1"); a("s_lshl_b32 s34, s34, 3"); a("s_add_u32 s34, s34, s75")
        nx = rec.PAR["WPF"]
        a("s_and_b32 s32, s45, 7"); a("s_lshl_b32 s32, s32, 4"); a("s_add_u32 s32, s32, s34"); a(f"s_lshl_b32 s32, s32, {11 + nx}")
        a(f"v_and_b32 v16, {32*nx - 1}, v0"); a("v_lshl_add_u32 v16, v16, 7, s32")
        a("global_load_dword a95, v16, s[10:11]")
        a("v_lshrrev_b32 v16, 2, v0"); a("v_lshlrev_b32 v16, 13, v16"); a("v_and_b32 v17, 3, v0"); a("v_lshl_add_u32 v16, v17, 7, v16")
        a("s_lshl_b32 s32, s34, 17"); a("v_add_u32 v16, s32, v16")
        for i in range(4):
            a("global_load_dword a95, v16, s[82:83]")
            a(f"v_add_u32 v16, {256*8192}, v16")
            if i < 3: a("s_barrier")
        a.label("no_wpf")
    def first_signal(n):
        lab = a.newlabel("sig")
        a(f"s_waitcnt vmcnt({n})"); a("s_barrier")
        a("s_cmp_lg_u32 s75, 0"); a(f"s_cbranch_scc1 {lab}")
        a("v_mov_b32 v16, s88"); a("v_mov_b32 v17, 0")
        a("s_mov_b64 exec, 1"); a("global_store_dword v16, v17, s[28:29] sc1"); a("s_mov_b64 exec, -1")
        a.label(lab)
        wstamp(a, 0)
    ST = rec.PAR["ST"]
    if grp == 1:
        if ST == 0:
            gemm.prologue(a, MT); first_signal(8 + 2*MT)
        else:
            first_signal(0)
            if ST == 1 and not rec.PAR["RPF"]:
                a("s_mul_i32 s32, s96, 3072"); a(f"s_add_u32 s32, s32, {1 << 20}"); a("v_lshlrev_b32 v20, 6, v0"); a("v_min_u32 v20, 3008, v20"); a("v_add_u32 v20, s32, v20")
                a("global_load_dword a95, v20, s[10:11]")
    gemm.call(a, f"core_T{MT}" + ("_m" if grp == 1 and ST == 0 else ""))
    if grp == 0: learn_parity(a)
    wstamp(a, 0)
    a("s_lshl_b32 s34, s35, 1"); a("s_add_u32 s34, s34, s73"); a("s_lshl_b32 s34, s34, 14"); a("s_add_u32 s33, s33, s34")
    a(f"s_mul_i32 s36, s72, {MT}"); a("s_add_u32 s36, s36, s31")
    a("v_lshlrev_b32 v19, 4, v0")
    for tt in range(MT):
        a(f"s_add_u32 s32, s36, {tt}"); a("s_and_b32 s34, s32, 1"); a("s_lshl_b32 s34, s34, 12"); a("s_lshr_b32 s32, s32, 1"); a("s_lshl_b32 s32, s32, 19")
        a("s_add_u32 s32, s32, s34"); a("s_add_u32 s32, s32, s33")
        rec.near_bit(a, "s34", "s32", "s22", True); a("s_add_u32 s32, s32, s34")
        a(f"v_add_u32 v{20+tt}, s32, v19")
    a("s_lshl_b32 s88, s23, 7"); a("s_lshl_b32 s32, s30, 2"); a("s_add_u32 s88, s88, s32"); a(f"s_add_u32 s88, s88, {rec.WS_FLAG + (96 + 4*grp)*128}")
    if grp == 0: gemm.epi_frag_store(a, "s[28:29]", "sc1", MT)
    else:
        a("s_mov_b32 s89, 1"); a("s_mov_b32 s77, 1")

def touches(a, parts):
    for i, (p, fix, per, first, n) in enumerate(parts):
        a(f"s_mul_i32 s32, s96, {per*1024}"); a(f"s_add_u32 s32, s32, {fix + first*1024}")
        a(f"s_add_u32 s{90+2*i}, s{p}, s32"); a(f"s_addc_u32 s{91+2*i}, s{p+1}, 0"); a(f"s_mov_b32 s{99+i}, {n*1024 - 64}")
    a("s_mov_b32 s98, 0" if "notouch" in rec.OPT else "s_mov_b32 s98, 1")

def task_g4kv(a):
    def colmap(a, v):
        a(f"v_bfe_u32 v18, v{v}, 3, 1"); a("v_lshlrev_b32 v18, 11, v18")
        a(f"v_lshrrev_b32 v19, 4, v{v}"); a("v_lshl_add_u32 v18, v19, 7, v18")
        a(f"v_and_b32 v{v}, 7, v{v}"); a(f"v_lshl_add_u32 v{v}, v{v}, 4, v18")
    gemm.setup_a_rowmajor(a, 2048); gemm.setup_w(a, 6144, colmap)
    a("s_lshl_b32 s32, s31, 19"); a("s_add_u32 s80, s4, s32"); a("s_addc_u32 s81, s5, 0")
    a("s_lshl_b32 s32, s30, 8"); a("s_add_u32 s32, s32, 2048"); a("s_add_u32 s82, s6, s32"); a("s_addc_u32 s83, s7, 0")
    a("s_mov_b32 s66, 7")
    gemm.call(a, "core_N")
    wstamp(a, 0)
    a(f"s_mov_b32 s40, {LOG2E}"); a(f"s_mov_b32 s41, {EPS}")
    phi(a, [acc(tt, 0) + i for tt in range(4) for i in range(16)])
    for tp in range(2):
        for ft in range(8):
            x = acc(2*tp, ft); y = acc(2*tp+1, ft)
            a(f"v_cvt_pk_bf16_f32 v{x}, v{x}, v{x+1}"); a(f"v_cvt_pk_bf16_f32 v{x+1}, v{x+2}, v{x+3}")
            a(f"v_cvt_pk_bf16_f32 v{x+2}, v{y}, v{y+1}"); a(f"v_cvt_pk_bf16_f32 v{x+3}, v{y+2}, v{y+3}")
    for i in range(4): a(f"v_mov_b32 v{16+i}, 0x3f803f80")
    a("v_lshlrev_b32 v20, 4, v0"); a("s_mul_i32 s32, s73, 49152"); a("s_lshl_b32 s33, s72, 10"); a("s_add_u32 s32, s32, s33"); a("v_add_u32 v21, s32, v20")
    outb = lambda hd, et, dt: (64 if hd == 0 else 128) + (et*2 + dt)*4
    for tp in range(2):
        for hd in range(2):
            for et in range(3):
                for dt in range(2):
                    D = R('v', outb(hd, et, dt)); A = R('v', acc(2*tp, 2*hd + dt)); B = R('v', acc(2*tp, 4 + 2*hd + et)) if et < 2 else "v[16:19]"
                    a(f"v_mfma_f32_16x16x32_bf16 {D}, {A}, {B}, " + ("0" if tp == 0 else D))
    a("s_barrier")
    a("s_nop 7")
    for hd in range(2):
        for f in range(6):
            a(f"ds_write_b128 v21, {R('v', outb(hd, f >> 1, f & 1))} offset:{(hd*6 + f)*4096}")
    a("s_mul_i32 s32, s75, 12288"); a("v_add_u32 v21, s32, v20")
    a("s_waitcnt lgkmcnt(0)"); a("s_barrier")
    for k in range(3):
        for m in range(4): a(f"ds_read_b128 {R('v', 32 + (k*4 + m)*4)}, v21 offset:{k*4096 + m*1024}")
    a("s_lshl_b32 s32, s31, 5"); a("s_lshl_b32 s33, s30, 2"); a("s_add_u32 s32, s32, s33"); a("s_mul_i32 s32, s32, 6144")
    a("s_mul_i32 s33, s75, 3072"); a("s_add_u32 s32, s32, s33"); a(f"s_add_u32 s32, s32, {WS_KVP}"); a("v_add_u32 v22, s32, v20")
    a("s_waitcnt lgkmcnt(0)")
    for k in range(3):
        b = 32 + k*16
        for h in range(2):
            a(f"v_pk_add_f32 v[{b+2*h}:{b+2*h+1}], v[{b+2*h}:{b+2*h+1}], v[{b+4+2*h}:{b+5+2*h}]")
            a(f"v_pk_add_f32 v[{b+8+2*h}:{b+9+2*h}], v[{b+8+2*h}:{b+9+2*h}], v[{b+12+2*h}:{b+13+2*h}]")
        for h in range(2):
            a(f"v_pk_add_f32 v[{b+2*h}:{b+2*h+1}], v[{b+2*h}:{b+2*h+1}], v[{b+8+2*h}:{b+9+2*h}]")
        a(f"global_store_dwordx4 v22, {R('v', b)}, s[28:29] offset:{k*1024} sc1")
    signal(a, D_AKV)

def task_g4q(a):
    gemm.setup_a_rowmajor(a, 2048); gemm.setup_w(a, 6144)
    a("s_lshl_b32 s32, s31, 19"); a("s_add_u32 s80, s4, s32"); a("s_addc_u32 s81, s5, 0")
    a("s_lshl_b32 s32, s30, 9"); a("s_add_u32 s82, s6, s32"); a("s_addc_u32 s83, s7, 0")
    a("s_mov_b32 s66, 7")
    gemm.call(a, "core_T")
    wstamp(a, 0)
    a(f"s_mov_b32 s40, {LOG2E}"); a(f"s_mov_b32 s41, {EPS}")
    phi(a, list(range(32, 160)))
    pack_frags(a)
    wstamp(a, 0)
    wait_cnt(a, D_AKV, 64, False)
    wstamp(a, 0)
    a("v_lshlrev_b32 v16, 4, v0")
    for r in range(1, 8): a(f"v_add_u32 v{16+r}, {r*196608}, v16")
    a("s_lshl_b32 s32, s30, 3"); a("s_add_u32 s32, s32, s75"); a("s_mul_i32 s32, s32, 6144"); a(f"s_add_u32 s32, s32, {WS_KVP}")
    a("s_add_u32 s34, s28, s32"); a("s_addc_u32 s35, s29, 0")
    a("s_mul_i32 s32, s75, 3072"); a("v_add_u32 v24, s32, v16")
    for et in range(3):
        for r in range(8):
            for dt in range(2):
                a(f"global_load_dwordx4 {R('v', 96 + (r*2 + dt)*4)}, v{16+r}, s[34:35] offset:{dt*1024} sc1")
        a("s_add_u32 s34, s34, 2048"); a("s_addc_u32 s35, s35, 0")
        a("s_waitcnt vmcnt(0)")
        for step in (32, 16, 8):
            for i in range(0, step, 2):
                a(f"v_pk_add_f32 v[{96+i}:{97+i}], v[{96+i}:{97+i}], v[{96+step+i}:{97+step+i}]")
        for i in range(4): a(f"v_cvt_pk_bf16_f32 v{28+i}, v{96+2*i}, v{97+2*i}")
        a(f"ds_write_b128 v24, v[28:31] offset:{et*1024}")
    a("s_mul_i32 s32, s73, 12288"); a("v_add_u32 v24, s32, v16")
    a("s_waitcnt lgkmcnt(0)"); a("s_barrier")
    for i in range(12): a(f"ds_read_b128 {R('a', i*4)}, v24 offset:{i*1024}")
    gemm.lane_chunk(a, 25, 26)
    a("v_and_b32 v26, 15, v0"); a("v_lshl_add_u32 v25, v25, 4, v26"); a("v_lshlrev_b32 v25, 4, v25")
    a("s_lshl_b32 s32, s31, 4"); a("s_lshl_b32 s33, s72, 2"); a("s_add_u32 s32, s32, s33"); a(f"s_mul_i32 s32, s32, {OA_T}")
    a("s_lshl_b32 s33, s30, 14"); a("s_add_u32 s32, s32, s33"); a("s_lshl_b32 s33, s73, 12"); a("s_add_u32 s32, s32, s33"); a(f"s_add_u32 s32, s32, {WS_OA}")
    rec.near_bit(a, "s33", "s32", "s22", True); a("s_add_u32 s32, s32, s33")
    a("v_add_u32 v20, s32, v25")
    for tt in range(1, 4): a(f"v_add_u32 v{20+tt}, {tt*OA_T}, v20")
    a("s_waitcnt lgkmcnt(0)")
    for hd in range(4):
        for tt in range(4):
            b = 96 + tt*12
            for et in (2, 0, 1):
                a(f"v_mfma_f32_16x16x32_bf16 {R('v', b + et*4)}, {R('a', (hd*3 + et)*4)}, {frag(tt, hd)}, 0")
        a("s_nop 7")
        for tt in range(4):
            b = 96 + tt*12
            a(f"v_add_f32 v{b+8}, s41, v{b+8}")
        for tt in range(4):
            b = 96 + tt*12
            a(f"v_rcp_f32 v{b+8}, v{b+8}")
        for tt in range(4):
            b = 96 + tt*12
            a(f"v_mov_b32 v{b+9}, v{b+8}")
            for i in range(0, 8, 2): a(f"v_pk_mul_f32 v[{b+i}:{b+i+1}], v[{b+i}:{b+i+1}], v[{b+8}:{b+9}]")
            t = 144 + tt*4
            gemm.pack_swap(a, t, b)
            a(f"global_store_dwordx4 v{20+tt}, {R('v', t)}, s[28:29] offset:{hd*1024} sc1")
    a("s_lshl_b32 s32, s31, 2"); a(f"s_add_u32 s32, s32, {D_AO}")
    signal(a, "s32")

def out_offsets(a, MT):
    gemm.lane_chunk(a, 25, 26)
    a("v_and_b32 v26, 15, v0"); a("v_lshlrev_b32 v26, 12, v26"); a("v_lshl_add_u32 v20, v25, 4, v26")
    a(f"s_mul_i32 s32, s72, {MT*16*4096}"); a("s_lshl_b32 s33, s73, 8"); a("s_add_u32 s32, s32, s33"); a("v_add_u32 v20, s32, v20")
    for tt in range(1, MT): a(f"v_add_u32 v{20+tt}, {tt*65536}, v20")

def task_g5(a):
    gemm.setup_a_frag(a, OA_T); gemm.setup_w(a, 2048)
    a("s_lshl_b32 s32, s31, 2"); a(f"s_add_u32 s32, s32, {D_AO}")
    wait_cnt(a, "s32", 4)
    wstamp(a, 0)
    a(f"s_mul_i32 s32, s31, {16*OA_T}"); a(f"s_add_u32 s32, s32, {WS_OA}"); wside(a, 80, "s32", "s33")
    a("s_lshl_b32 s32, s30, 9"); a("s_add_u32 s82, s8, s32"); a("s_addc_u32 s83, s9, 0")
    a("s_mov_b32 s66, 7")
    gemm.call(a, "core_T")
    wstamp(a, 0)
    out_offsets(a, 4)
    a("s_lshl_b32 s32, s31, 20"); a("s_lshl_b32 s33, s30, 9"); a("s_add_u32 s32, s32, s33"); a("s_add_u32 s34, s24, s32"); a("s_addc_u32 s35, s25, 0")
    gemm.epi_out_store(a, "s[34:35]", 4, "" if "outpl" in rec.OPT else "sc1")

def task_wot(a):
    a("s_barrier")
    a("v_lshrrev_b32 v2, 4, v0"); a("v_lshlrev_b32 v2, 11, v2"); a("v_and_b32 v3, 15, v0"); a("v_lshl_add_u32 v2, v3, 4, v2")
    a("s_lshl_b32 s32, s30, 18"); a("s_lshl_b32 s33, s31, 17"); a("s_add_u32 s32, s32, s33"); a("s_lshl_b32 s33, s75, 8"); a("s_add_u32 s32, s32, s33"); a("v_add_u32 v2, s32, v2")
    a("s_lshl_b32 s43, s75, 14")
    for i in range(16):
        a(f"s_add_u32 m0, s43, {i*1024}"); a("s_nop 0")
        a("global_load_lds_dwordx4 v2, s[20:21]")
        a("v_add_u32 v2, 0x2000, v2")
    a("v_lshrrev_b32 v3, 2, v0"); a("v_lshlrev_b32 v3, 8, v3"); a("v_and_b32 v16, 3, v0"); a("v_lshl_add_u32 v3, v16, 4, v3"); a("v_add_u32 v3, s43, v3")
    a("s_lshl_b32 s32, s75, 21"); a("s_lshl_b32 s33, s30, 14"); a("s_add_u32 s32, s32, s33"); a("s_lshl_b32 s33, s31, 12"); a("s_add_u32 s32, s32, s33"); a(f"s_add_u32 s32, s32, {rec.WS_WOT}")
    wside(a, 34, "s32", "s33")
    a("v_lshlrev_b32 v20, 4, v0")
    for i in range(1, 4): a(f"v_add_u32 v{20+i}, {i*rec.WOT_CG}, v20")
    a("s_waitcnt vmcnt(0)")
    for cgl in range(4):
        for jl in range(2):
            for ct in range(2):
                b = 32 + ((cgl*2 + jl)*2 + ct)*4
                for lo in range(2):
                    a(f"ds_read_b64_tr_b16 {R('v', b + 2*lo, 2)}, v3 offset:{(32*jl + 16*lo)*256 + cgl*64 + ct*8}")
        a("s_waitcnt lgkmcnt(0)")
        for jl in range(2):
            for ct in range(2):
                a(f"global_store_dwordx4 v{20+cgl}, {R('v', 32 + ((cgl*2 + jl)*2 + ct)*4)}, s[34:35] offset:{jl*2048 + ct*1024} sc1")
    a("s_lshl_b32 s32, s30, 1"); a("s_add_u32 s32, s32, s31"); a("s_lshl_b32 s32, s32, 16"); a("s_lshr_b32 s33, s75, 1"); a("s_lshl_b32 s33, s33, 14"); a("s_add_u32 s32, s32, s33")
    a("s_and_b32 s33, s75, 1"); a("s_lshl_b32 s33, s33, 12"); a("s_add_u32 s32, s32, s33"); a(f"s_add_u32 s32, s32, {WS_INBOX}")
    wside(a, 34, "s32", "s33")
    for i in range(4): a(f"v_mov_b32 v{24+i}, -1")
    for i in range(4): a(f"global_store_dwordx4 v20, v[24:27], s[34:35] offset:{i*1024} sc1")
    lab = a.newlabel("sig")
    a("s_waitcnt vmcnt(0)"); a("s_barrier")
    a("s_cmp_lg_u32 s75, 0"); a(f"s_cbranch_scc1 {lab}")
    a("s_lshl_b32 s32, s31, 7"); a("s_lshl_b32 s33, s30, 2"); a("s_add_u32 s32, s32, s33"); a(f"s_add_u32 s32, s32, {rec.WS_FLAG + 108*128}")
    a("v_mov_b32 v16, s32"); a("v_mov_b32 v17, 0")
    a("s_mov_b64 exec, 1"); a("global_store_dword v16, v17, s[28:29] sc1"); a("s_mov_b64 exec, -1")
    a.label(lab)

def task_g3(a, MT):
    sh = MT - 1
    a("s_lshl_b32 s32, s30, 3"); a("s_add_u32 s32, s32, s75"); a("s_lshl_b32 s32, s32, 19"); a(f"s_add_u32 s32, s32, {rec.WS_WOT}")
    rec.near_bit(a, "s33", "s32", "s22", True); a("s_add_u32 s32, s32, s33")
    gemm.setup_a_frag(a, 262144, MT); gemm.setup_w_frag(a, "s32")
    wot_wait(a)
    lp, ok = a.newlabel("fl"), a.newlabel("fo")
    a("s_cmp_lg_u32 s75, 0"); a(f"s_cbranch_scc1 {ok}")
    a(f"s_lshl_b32 s32, s31, {8 + sh}"); a(f"s_add_u32 s32, s32, {rec.WS_FLAG}"); a("v_lshl_add_u32 v16, v0, 2, s32")
    a.label(lp)
    a("global_load_dword v17, v16, s[28:29] sc1"); a(f"global_load_dword v19, v16, s[28:29] offset:{256*sh} sc1"); a("s_waitcnt vmcnt(0)")
    a("v_or_b32 v17, v17, v19")
    a("v_cmp_ne_u32 vcc, 0, v17"); a(f"s_cbranch_vccz {ok}")
    a("s_sleep 8")
    a("s_add_u32 s46, s46, 1"); a(f"s_cmp_lt_u32 s46, {WSPIN}"); a(f"s_cbranch_scc1 {lp}")
    a("s_branch w_fail")
    a.label(ok)
    wstamp(a, 0)
    a(f"s_lshl_b32 s32, s31, {20 + sh}"); a(f"s_add_u32 s32, s32, {WS_O}"); wside(a, 80, "s32", "s33")
    a("s_mov_b64 s[82:83], s[28:29]")
    a("s_mov_b32 s66, 31")
    a("s_add_u32 s32, s31, s30"); a("s_and_b32 s78, s32, 3"); a("s_lshl_b32 s78, s78, 11"); a("s_and_b32 s33, s32, 4"); a("s_lshl_b32 s33, s33, 12"); a("s_or_b32 s78, s78, s33")
    a("s_and_b32 s79, s32, 1"); a("s_lshl_b32 s79, s79, 12"); a("s_and_b32 s33, s32, 6"); a("s_lshl_b32 s33, s33, 13"); a("s_or_b32 s79, s79, s33")
    gemm.call(a, f"core_F{MT}")
    a("v_and_b32 v26, 15, v0"); a("v_lshlrev_b32 v26, 12, v26"); a("v_lshrrev_b32 v25, 4, v0"); a("v_lshl_add_u32 v20, v25, 4, v26")
    a(f"s_lshl_b32 s32, s72, {16 + sh}"); a("s_lshl_b32 s33, s73, 8"); a("s_add_u32 s32, s32, s33"); a("v_add_u32 v20, s32, v20"); a("v_add_u32 v21, 0x10000, v20")
    a(f"s_lshl_b32 s32, s31, {18 + sh}"); a("s_lshl_b32 s33, s30, 9"); a("s_add_u32 s32, s32, s33"); a("s_add_u32 s32, s32, 2048"); a("s_add_u32 s34, s24, s32"); a("s_addc_u32 s35, s25, 0")
    gemm.epi_frag_store(a, "s[34:35]", "sc1", MT, 64)

def softmax_cols(a, regs, t):
    a(f"v_max3_f32 v{t}, v{regs[0]}, v{regs[1]}, v{regs[2]}")
    rest = regs[3:]
    while len(rest) >= 2:
        a(f"v_max3_f32 v{t}, v{t}, v{rest[0]}, v{rest[1]}"); rest = rest[2:]
    if rest: a(f"v_max_f32 v{t}, v{t}, v{rest[0]}")
    for sw in ("16", "32"):
        a(f"v_mov_b32 v{t+1}, v{t}"); a("s_nop 1"); a(f"v_permlane{sw}_swap_b32 v{t}, v{t+1}"); a(f"v_max_f32 v{t}, v{t}, v{t+1}")
    a(f"v_mul_f32 v{t}, s40, v{t}")
    for r in regs: a(f"v_fma_f32 v{r}, v{r}, s40, -v{t}")
    for r in regs: a(f"v_exp_f32 v{r}, v{r}")

def task_g2a(a):
    a("s_and_b32 s32, s75, 4"); a("s_and_b32 s33, s75, 1"); a("s_lshl_b32 s33, s33, 1"); a("s_or_b32 s32, s32, s33"); a("s_bfe_u32 s33, s75, 0x10001"); a("s_or_b32 s32, s32, s33")
    gemm.setup_a_rowmajor(a, 2048, 4, "s32"); gemm.setup_w(a, 8192)
    a("s_lshl_b32 s32, s31, 19"); a("s_add_u32 s80, s10, s32"); a("s_addc_u32 s81, s11, 0")
    a("s_lshl_b32 s32, s30, 9"); a("s_add_u32 s82, s14, s32"); a("s_addc_u32 s83, s15, 0")
    a("s_mov_b32 s66, 7")
    gemm.call(a, "core_T")
    wstamp(a, 0)
    a("s_lshl_b32 s38, s31, 3"); a("s_and_b32 s33, s72, 2"); a("s_add_u32 s38, s38, s33"); a("s_add_u32 s38, s38, s72"); a("s_mov_b32 s39, s38"); a("s_lshl_b32 s38, s38, 5")
    a("s_lshl_b32 s42, s30, 1"); a("s_add_u32 s42, s42, s73"); a("s_add_u32 s38, s38, s42")
    a("s_lshl_b32 s34, s38, 14"); a(f"s_add_u32 s34, s34, {rec.WS_KX}"); rec.near(a, 32, "s34", "s22", 28, "s35", kv=True)
    rec.v_from_k(a, 34, 32)
    a("v_lshlrev_b32 v16, 4, v0"); a("v_add_u32 v17, 0x1000, v16"); a("v_add_u32 v18, 0x100000, v16"); a("v_add_u32 v19, 0x101000, v16")
    a("s_mul_i32 s43, s75, 20480")
    kp, kok = a.newlabel("kp"), a.newlabel("ko")
    rec.kv_tile(a, "s47", "s39", "s48"); a("s_add_u32 s49, s39, 2"); rec.kv_tile(a, "s49", "s49", "s48"); a("s_sub_u32 s49, s49, s47")
    a("s_lshl_b32 s47, s47, 7"); a("s_lshl_b32 s48, s30, 2"); a("s_add_u32 s47, s47, s48"); a(f"s_add_u32 s47, s47, {rec.WS_FLAG + 96*128}")
    a("v_and_b32 v22, s49, v0"); a("v_lshl_add_u32 v22, v22, 7, s47"); a("v_mov_b32 v23, 0")
    a.label(kp)
    a("global_load_dword v26, v22, s[28:29] sc1"); a("global_load_dword v27, v22, s[28:29] offset:64 sc1")
    a(f"global_load_dword v24, v23, s[26:27] offset:{D_PROG} sc1"); a("s_waitcnt vmcnt(0)")
    a("v_or_b32 v26, v26, v27"); a("v_cmp_ne_u32 vcc, 0, v26"); a(f"s_cbranch_vccz {kok}")
    a("s_sleep 12")
    a("s_add_u32 s46, s46, 1"); a(f"s_cmp_lt_u32 s46, {WSPIN}"); a(f"s_cbranch_scc1 {kp}")
    a("s_branch w_fail")
    a.label(kok)
    def take_progress():
        a("v_readfirstlane_b32 s48, v24"); a("s_nop 0")
        a("s_max_u32 s48, s48, 1"); a("s_sub_u32 s48, s48, 1")
    take_progress()
    a("s_barrier")
    def m_wait(seg):
        lp, ok, nf = a.newlabel("ap"), a.newlabel("ao"), a.newlabel("nf")
        a.label(lp)
        a(f"s_cmp_lt_u32 {seg}, s48"); a(f"s_cbranch_scc1 {ok}")
        a("s_cmp_lt_u32 s48, 59"); a(f"s_cbranch_scc1 {nf}")
        a("s_sleep 2")
        a("global_load_dword v24, v31, s[28:29] sc1"); a("s_waitcnt vmcnt(0)")
        a("v_readlane_b32 s49, v24, 0"); a("v_readlane_b32 s50, v24, 1"); a("s_min_i32 s49, s49, s50")
        a("v_readlane_b32 s50, v24, 2"); a("s_min_i32 s49, s49, s50"); a("v_readlane_b32 s50, v24, 3"); a("s_min_i32 s49, s49, s50")
        a("s_add_u32 s49, s49, 1"); a("s_max_u32 s48, s48, s49")
        a("s_add_u32 s46, s46, 1"); a(f"s_cmp_lt_u32 s46, {WSPIN}"); a(f"s_cbranch_scc1 {lp}")
        a("s_branch w_fail")
        a.label(nf)
        a("s_sleep 8")
        a(f"global_load_dword v24, v23, s[26:27] offset:{D_PROG} sc1"); a("s_waitcnt vmcnt(0)")
        take_progress()
        a("s_add_u32 s46, s46, 1"); a(f"s_cmp_lt_u32 s46, {WSPIN}"); a(f"s_cbranch_scc1 {lp}")
        a("s_branch w_fail")
        a.label(ok)
    def kv_loads(sg):
        for kt in range(2):
            for jj in range(4):
                a(f"global_load_dwordx4 {R('a', sg*32 + (kt*4 + jj)*4)}, v{16 + sg*2 + kt}, s[32:33] offset:{jj*1024} sc1")
            a(f"s_add_u32 m0, s43, {sg*10240 + kt*4096}"); a("s_nop 0")
            for jj in range(4):
                a(f"global_load_lds_dwordx4 v{16 + sg*2 + kt}, s[34:35] offset:{jj*1024} sc1")
    a("s_and_b32 s47, s42, 15"); a("s_lshl_b32 s47, s47, 9"); a("s_lshr_b32 s49, s42, 4"); a("s_lshl_b32 s49, s49, 14"); a("s_add_u32 s47, s47, s49")
    a("s_xor_b32 s49, s22, 1"); a("s_lshl_b32 s49, s49, 13"); a("s_add_u32 s47, s47, s49"); a(f"s_add_u32 s47, s47, {rec.WS_HW}")
    a("v_and_b32 v31, 3, v0"); a("v_lshl_add_u32 v31, v31, 7, s47")
    a("s_max_u32 s54, s39, 5"); a("s_sub_u32 s54, s54, 5")
    m_wait("s54")
    kv_loads(0)
    pack_frags(a)
    a("s_lshr_b32 s50, s38, 1"); a("s_lshl_b32 s50, s50, 14"); a("s_and_b32 s51, s38, 1"); a("s_lshl_b32 s51, s51, 12"); a("s_add_u32 s50, s50, s51"); a(f"s_add_u32 s50, s50, {rec.WS_KMVM}")
    rec.near(a, 52, "s50", "s22", 28, "s51")
    a("v_and_b32 v28, 7, v0"); a("v_lshlrev_b32 v28, 4, v28"); a("v_lshrrev_b32 v24, 4, v0"); a("v_lshl_add_u32 v28, v24, 7, v28")
    XB = (108, 32)
    def m_loads(sg):
        for jj in range(4): a(f"global_load_dwordx4 {R('v', XB[sg] + 4*jj)}, v28, s[52:53] offset:{jj*512} sc1")
        for i in range(2): a(f"global_load_dwordx4 {R('v', XB[sg] + 16 + 4*i)}, v16, s[52:53] offset:{2048 + i*1024} sc1")
        a("s_add_u32 s52, s52, 0x80000"); a("s_addc_u32 s53, s53, 0")
    def seg_signal(seg):
        a(f"s_lshl_b32 s47, {seg}, 7"); a("s_lshl_b32 s49, s42, 2"); a("s_add_u32 s47, s47, s49"); a(f"s_add_u32 s47, s47, {rec.WS_FLAG}")
        a(f"s_lshr_b32 s50, {seg}, 1"); a("s_lshl_b32 s50, s50, 14"); a(f"s_and_b32 s49, {seg}, 1"); a("s_lshl_b32 s49, s49, 12"); a("s_add_u32 s50, s50, s49")
        a("s_lshl_b32 s49, s42, 7"); a("s_add_u32 s50, s50, s49"); a("s_xor_b32 s49, s22, 1"); a("s_lshl_b32 s49, s49, 13"); a("s_add_u32 s50, s50, s49")
        a(f"s_add_u32 s50, s50, {rec.WS_FLAG2 - 24*16384}")
        a(f"s_cmp_ge_u32 {seg}, 48"); a("s_cselect_b32 s47, s50, s47"); a("v_mov_b32 v29, s47")
        a("s_waitcnt vmcnt(0)")
        a("s_mov_b64 exec, 1")
        a("global_store_dword v29, v23, s[28:29] sc1")
        a("s_mov_b64 exec, -1")
    early, late = a.newlabel("e0"), a.newlabel("l0")
    a("s_cmp_lt_u32 s39, s48"); a(f"s_cbranch_scc1 {early}")
    kv_loads(1); m_wait("s39"); m_loads(0)
    a("s_waitcnt vmcnt(0)")
    a(f"s_branch {late}")
    a.label(early)
    m_loads(0); kv_loads(1)
    a.label(late)
    a("v_lshrrev_b32 v24, 4, v0"); a("v_lshlrev_b32 v24, 2, v24"); a("v_and_b32 v25, 15, v0"); a("v_mov_b32 v26, 0xff800000")
    for i in range(4):
        a(f"v_add_u32 v27, {i}, v24"); a("v_cmp_gt_u32 vcc, v27, v25"); a("s_nop 1"); a(f"v_cndmask_b32 v{96+i}, 0, v26, vcc")
    a("v_cmp_gt_u32 vcc, 32, v0"); a("s_nop 1")
    for i in range(4): a(f"v_cndmask_b32 v{100+i}, 0, v26, vcc")
    for i in range(4): a(f"v_mov_b32 v{104+i}, 0x3f803f80")
    a("v_and_b32 v24, 3, v0"); a("v_lshrrev_b32 v25, 2, v0")
    a("v_lshlrev_b32 v18, 4, v25"); a("v_lshl_add_u32 v18, v24, 8, v18"); a("v_add_u32 v18, s43, v18")
    a("v_and_b32 v25, 7, v25"); a("v_lshlrev_b32 v19, 4, v25"); a("v_lshl_add_u32 v19, v24, 7, v19"); a("v_add_u32 v19, s43, v19")
    a("v_add_u32 v20, s43, v16")
    a("v_mov_b32 v21, v16"); a("v_add_u32 v22, 0x40000, v21")
    a("s_lshl_b32 s50, s39, 19"); a("s_lshl_b32 s51, s30, 14"); a("s_add_u32 s50, s50, s51"); a("s_lshl_b32 s51, s73, 12"); a("s_add_u32 s50, s50, s51"); a(f"s_add_u32 s50, s50, {WS_O}")
    wside(a, 36, "s50", "s51")
    a(f"s_mov_b32 s40, {SCL}")
    a("s_add_u32 s54, s39, 2")
    for sg in range(2):
        lo = sg*10240
        xb = XB[sg]
        if sg == 0:
            a("s_waitcnt vmcnt(16)")
        else:
            have = a.newlabel("h1")
            a("s_cmp_eq_u32 s55, 1"); a(f"s_cbranch_scc1 {have}")
            seg_signal("s39"); m_wait("s54"); tstamp(a, 0, 2, 3); m_loads(1)
            a("s_waitcnt vmcnt(0)"); tstamp(a, 1, 2, 3)
            a.label(have)
            a("s_waitcnt vmcnt(8)")
        for i in range(2): a(f"ds_write_b128 v20, {R('v', xb + 16 + 4*i)} offset:{lo + 8192 + i*1024}")
        tiles = [(132, 0, 0, "v[96:99]"), (136, 2, 0, "v[100:103]"), (140, 0, 1, "0"), (144, 1, 1, "v[96:99]"), (148, 2, 1, "v[100:103]")]
        for jj in range(4):
            for d, kt, qt, C in tiles:
                A = R('v', xb + 4*jj) if kt == 2 else R('a', sg*32 + (kt*4 + jj)*4)
                a(f"v_mfma_f32_16x16x32_bf16 {R('v', d)}, {A}, {frag(2*sg + qt, jj)}, " + (C if jj == 0 else R('v', d)))
        if sg == 0:
            no = a.newlabel("n1")
            a("s_mov_b32 s55, 0")
            a("s_cmp_lt_u32 s54, s48"); a(f"s_cbranch_scc0 {no}")
            m_loads(1); a("s_mov_b32 s55, 1")
            a.label(no)
        def vread(jj):
            b = 64 + (jj & 1)*12
            for hf in range(2):
                for kt in range(2):
                    a(f"ds_read_b64_tr_b16 {R('a', b + hf*4 + kt*2, 2)}, v18 offset:{lo + kt*4096 + jj*1024 + hf*8}")
                a(f"ds_read_b64_tr_b16 {R('a', b + 8 + hf*2, 2)}, v19 offset:{lo + 8192 + jj*512 + hf*8}")
        vread(0)
        a("s_nop 3")
        softmax_cols(a, list(range(132, 140)), 24)
        softmax_cols(a, list(range(140, 152)), 24)
        a("s_nop 0")
        a("v_cvt_pk_bf16_f32 v108, v132, v133"); a("v_cvt_pk_bf16_f32 v109, v134, v135"); a("v_mov_b32 v110, 0"); a("v_mov_b32 v111, 0")
        a("v_cvt_pk_bf16_f32 v112, v136, v137"); a("v_cvt_pk_bf16_f32 v113, v138, v139")
        for i in range(4): a(f"v_cvt_pk_bf16_f32 v{116+i}, v{140+2*i}, v{141+2*i}")
        a("v_cvt_pk_bf16_f32 v114, v148, v149"); a("v_cvt_pk_bf16_f32 v115, v150, v151")
        P0 = ["v[108:111]", "v[116:119]"]; P1 = ["v[112:113]", "v[114:115]"]
        a("s_nop 1")
        for qt in range(2): a(f"v_mfma_f32_16x16x32_bf16 {R('v', 120 + 4*qt)}, v[104:107], {P0[qt]}, 0")
        a("s_nop 5")
        for qt in range(2): a(f"v_mfma_f32_16x16x16_bf16 {R('v', 120 + 4*qt)}, v[104:105], {P1[qt]}, {R('v', 120 + 4*qt)}")
        if sg == 1:
            done = a.newlabel("d0")
            a("s_cmp_eq_u32 s55, 1"); a(f"s_cbranch_scc0 {done}")
            seg_signal("s39")
            a.label(done)
        a("s_nop 7")
        a("v_rcp_f32 v24, v120"); a("v_rcp_f32 v26, v124"); a("s_nop 0"); a("v_mov_b32 v25, v24"); a("v_mov_b32 v27, v26")
        for jj in range(4):
            b = 64 + (jj & 1)*12
            if jj < 3:
                vread(jj + 1); a("s_waitcnt lgkmcnt(6)")
            else:
                a("s_waitcnt lgkmcnt(0)")
            for qt in range(2):
                for hf in range(2):
                    a(f"v_mfma_f32_16x16x32_bf16 {R('v', 132 + (qt*2 + hf)*4)}, {R('a', b + hf*4)}, {P0[qt]}, 0")
            a("s_nop 2")
            for qt in range(2):
                for hf in range(2):
                    D = R('v', 132 + (qt*2 + hf)*4)
                    a(f"v_mfma_f32_16x16x16_bf16 {D}, {R('a', b + 8 + hf*2, 2)}, {P1[qt]}, {D}")
            a("s_nop 7")
            for qt in range(2):
                o = 132 + qt*8
                for i in range(0, 8, 2): a(f"v_pk_mul_f32 v[{o+i}:{o+i+1}], v[{o+i}:{o+i+1}], v[{24+2*qt}:{25+2*qt}]")
                for i in range(4): a(f"v_cvt_pk_bf16_f32 v{152 + 4*qt + i}, v{o+2*i}, v{o+2*i+1}")
                a(f"global_store_dwordx4 v{21+qt}, {R('v', 152 + 4*qt)}, s[36:37] offset:{jj*1024} sc1")
        if sg == 0:
            a("s_add_u32 s36, s36, 0x100000"); a("s_addc_u32 s37, s37, 0")
    tstamp(a, 2, 2, 3)
    seg_signal("s54")
    tstamp(a, 3, 2, 3)

def sreg(i): return R('a', 4*i) if i < 24 else R('v', 128 + 4*(i - 24))
def wot_wait(a):
    lp, ok = a.newlabel("tl"), a.newlabel("to")
    a("s_cmp_lg_u32 s75, 0"); a(f"s_cbranch_scc1 {ok}")
    a("v_lshlrev_b32 v18, 2, v0"); a(f"v_add_u32 v18, {rec.WS_FLAG + 108*128}, v18")
    a.label(lp)
    a("global_load_dword v19, v18, s[28:29] sc1"); a("s_waitcnt vmcnt(0)")
    a("v_cmp_ne_u32 vcc, 0, v19"); a(f"s_cbranch_vccz {ok}")
    a("s_sleep 8")
    a("s_add_u32 s46, s46, 1"); a(f"s_cmp_lt_u32 s46, {WSPIN}"); a(f"s_cbranch_scc1 {lp}")
    a("s_branch w_fail")
    a.label(ok)

def task_stream(a):
    wot_wait(a)
    a("s_barrier")
    a("s_and_b32 s42, s45, 1")
    a("s_lshl_b32 s43, s42, 3"); a("s_add_u32 s43, s43, s75")
    a("s_lshr_b32 s32, s45, 1"); a("s_lshl_b32 s32, s32, 20"); a("s_lshl_b32 s33, s43, 15"); a("s_add_u32 s32, s32, s33"); a(f"s_add_u32 s32, s32, {rec.WS_WOT}")
    rec.near_bit(a, "s33", "s32", "s22", True); a("s_add_u32 s32, s32, s33")
    a("v_lshlrev_b32 v10, 4, v0"); a("v_add_u32 v6, s32, v10")
    for cg in range(2):
        for q in range(4):
            a(f"v_add_u32 v2, {cg*rec.WOT_CG + (q >> 1)*16384 + (q & 1)*4096}, v6")
            for j in range(4):
                k = q*2 + (j >> 1)
                a(f"global_load_dwordx4 {sreg(k*4 + cg*2 + (j & 1))}, v2, s[28:29] offset:{j*1024} sc1")
    a("s_lshl_b32 s32, s43, 14"); a("v_add_u32 v2, s32, v10"); a("v_add_u32 v3, 0x1000, v2"); a("v_add_u32 v4, 0x40000, v2"); a("v_add_u32 v5, 0x41000, v2")
    a("s_lshl_b32 s33, s75, 13"); a("v_add_u32 v11, s33, v10")
    a("s_lshr_b32 s33, s75, 2"); a("s_xor_b32 s47, s33, s42")
    a("s_xor_b32 s36, s45, s47"); a("s_and_b32 s33, s36, 1"); a("s_lshl_b32 s33, s33, 12"); a("s_lshr_b32 s36, s36, 1"); a("s_lshl_b32 s36, s36, 14"); a("s_add_u32 s36, s36, s33")
    a("s_and_b32 s33, s75, 3"); a("s_lshl_b32 s33, s33, 10"); a("s_add_u32 s36, s36, s33"); a("v_add_u32 v1, s36, v10")
    a("s_bfe_u32 s32, s75, 0x10001"); a("s_lshl_b32 s36, s32, 12"); a("s_lshr_b32 s33, s75, 2"); a("s_lshl_b32 s33, s33, 11"); a("s_add_u32 s36, s36, s33")
    a("s_and_b32 s33, s75, 1"); a("s_lshl_b32 s37, s33, 10"); a("s_add_u32 s36, s36, s37"); a("v_add_u32 v12, s36, v10")
    a("s_lshl_b32 s32, s32, 16"); a("s_lshl_b32 s33, s33, 3"); a("s_add_u32 s32, s32, s33"); a("s_lshl_b32 s33, s45, 6"); a("s_add_u32 s32, s32, s33"); a(f"s_add_u32 s32, s32, {2048 + 96*65536}")
    a("v_and_b32 v13, 15, v0"); a("v_lshlrev_b32 v13, 12, v13"); a("v_lshrrev_b32 v14, 4, v0"); a("v_lshl_add_u32 v13, v14, 4, v13"); a("v_add_u32 v13, s32, v13")
    a("v_and_b32 v9, 1, v0"); a("v_lshlrev_b32 v9, 7, v9"); a("s_lshl_b32 s32, s43, 8"); a("s_xor_b32 s33, s22, 1"); a("s_lshl_b32 s33, s33, 13"); a("s_add_u32 s32, s32, s33")
    a(f"s_add_u32 s32, s32, {rec.WS_FLAG2}"); a("v_add_u32 v9, s32, v9")
    a("v_mov_b32 v8, 0")
    wstamp(a, 0)
    def pick(dst):
        a(f"s_ff1_i32_b32 {dst}, s34"); a(f"s_bitset0_b32 s34, {dst}")
    def base(dst, item):
        a(f"s_and_b32 s32, {item}, 15"); a("s_lshl_b32 s32, s32, 19"); a(f"s_add_u32 s32, s32, {WS_O + 96*262144}"); wside(a, dst, "s32", "s33")
    def inbox(item):
        a(f"s_lshl_b32 s32, {item}, 18"); a(f"s_add_u32 s32, s32, {WS_INBOX}"); wside(a, 50, "s32", "s33")
    def poll(item):
        a(f"s_bfe_u32 s32, {item}, 0x30001"); a("s_lshl_b32 s32, s32, 14"); a(f"s_and_b32 s33, {item}, 1"); a("s_lshl_b32 s33, s33, 12"); a("s_add_u32 s32, s32, s33")
        a("v_add_u32 v14, s32, v9")
        a("global_load_dword v15, v14, s[28:29] sc1")
    def oload(k):
        a(f"global_load_dwordx4 {R('v', 32 + k*4)}, v{2 + (k >> 2)}, s[38:39] offset:{(k & 3)*1024} sc1")
    def sum8(item):
        lab, j = a.newlabel("fn"), a.newlabel("fj")
        a("s_waitcnt lgkmcnt(0)"); a("s_barrier")
        a("ds_read_b128 v[112:115], v12")
        for part in ((1, 2, 3, 4), (5, 6, 7)):
            for i, m in enumerate(part): a(f"ds_read_b128 v[{96+4*i}:{99+4*i}], v12 offset:{m*8192}")
            for i, m in enumerate(part):
                a(f"s_waitcnt lgkmcnt({len(part) - 1 - i})")
                for h in range(2): a(f"v_pk_add_f32 v[{112+2*h}:{113+2*h}], v[{112+2*h}:{113+2*h}], v[{96+4*i+2*h}:{97+4*i+2*h}]")
        a("v_xor_b32 v12, 0x10000, v12")
        a("s_cmp_eq_u32 s47, 0"); a(f"s_cbranch_scc1 {lab}")
        inbox(item)
        for i in range(4): a(f"v_min_u32 v{112+i}, -2, v{112+i}")
        a("global_store_dwordx4 v1, v[112:115], s[50:51] sc1")
        a(f"s_branch {j}")
        a.label(lab)
        a(f"s_mov_b32 s52, {item}")
        a.label(j)
    def ask():
        no = a.newlabel("an")
        a("s_cmp_lt_i32 s52, 0"); a(f"s_cbranch_scc1 {no}")
        inbox("s52")
        a("global_load_dwordx4 v[120:123], v1, s[50:51] sc1")
        for i in range(4): a(f"v_mov_b32 v{116+i}, v{112+i}")
        a("s_mov_b32 s53, s52"); a("s_mov_b32 s52, -1")
        a.label(no)
    def join(wait):
        lp, ok, no = a.newlabel("jl"), a.newlabel("jo"), a.newlabel("jn")
        a("s_cmp_lt_i32 s53, 0"); a(f"s_cbranch_scc1 {no}")
        a("s_lshl_b32 s32, s53, 17"); a("s_add_u32 s40, s24, s32"); a("s_addc_u32 s41, s25, 0")
        if wait: a("s_waitcnt vmcnt(0)")
        a.label(lp)
        a("v_max3_u32 v124, v120, v121, v122"); a("v_max_u32 v124, v124, v123"); a("v_cmp_eq_u32 vcc, -1, v124"); a(f"s_cbranch_vccz {ok}")
        a("global_load_dwordx4 v[120:123], v1, s[50:51] sc1"); a("s_waitcnt vmcnt(0)")
        a("s_add_u32 s46, s46, 1"); a(f"s_cmp_lt_u32 s46, {WSPIN}"); a(f"s_cbranch_scc1 {lp}")
        a("s_branch w_fail")
        a.label(ok)
        a("v_pk_add_f32 v[116:117], v[116:117], v[120:121]"); a("v_pk_add_f32 v[118:119], v[118:119], v[122:123]")
        a("v_cvt_pk_bf16_f32 v120, v116, v117"); a("v_cvt_pk_bf16_f32 v121, v118, v119")
        a("global_store_dwordx2 v13, v[120:121], s[40:41]")
        a("s_mov_b32 s53, -1")
        a.label(no)
    def pending():
        lab = a.newlabel("pd")
        a("s_cmp_lt_i32 s35, 0"); a(f"s_cbranch_scc1 {lab}")
        sum8("s35")
        a.label(lab)
    def mm(k, wait):
        a(f"s_waitcnt vmcnt({wait})")
        for ct in range(4):
            D = R('v', 16 + ct*4)
            a(f"v_mfma_f32_16x16x32_bf16 {D}, {sreg((k & 7)*4 + ct)}, {R('v', 32 + k*4)}, " + ("0" if k & 7 == 0 else D))
    def park(tt):
        a("s_nop 4")
        for f in range(4): a(f"ds_write_b128 v11, {R('v', 16 + f*4)} offset:{tt*4096 + f*1024}")
        if tt: a("v_xor_b32 v11, 0x10000, v11")
        a("s_waitcnt lgkmcnt(0)")
    pick("s31"); pick("s36")
    a("s_mov_b32 s37, 0"); a("s_mov_b32 s52, -1"); a("s_mov_b32 s53, -1"); a("s_mov_b64 s[50:51], s[28:29]")
    a.label("st_wait")
    a("s_add_u32 s32, s31, 49"); a("s_min_u32 s32, s32, 63"); a("s_cmp_le_u32 s32, s37"); a("s_cbranch_scc1 st_near")
    a("s_sleep 6")
    a(f"global_load_dword v7, v8, s[26:27] offset:{D_PROG} sc1"); a("s_waitcnt vmcnt(0)")
    a("v_readfirstlane_b32 s37, v7")
    a("s_branch st_more")
    a.label("st_near")
    poll("s31"); a("s_waitcnt vmcnt(0)")
    a("v_cmp_ne_u32 vcc, 0, v15"); a("s_cbranch_vccz st_rdy")
    a("s_sleep 2")
    a.label("st_more")
    a("s_add_u32 s46, s46, 1"); a(f"s_cmp_lt_u32 s46, {WSPIN}"); a("s_cbranch_scc1 st_wait")
    a("s_branch w_fail")
    a.label("st_rdy")
    tstamp(a, 4)
    base(38, "s31")
    poll("s36")
    for k in range(16): oload(k)
    a("s_mov_b32 s35, -1")
    a.label("st_item")
    a("s_mov_b32 s30, s31"); a("s_mov_b32 s31, s36"); pick("s36")
    a("s_waitcnt vmcnt(16)")
    a("v_cmp_ne_u32 vcc, 0, v15")
    a("s_cmp_lt_i32 s31, 0"); a("s_cbranch_scc1 st_slow")
    a("s_cbranch_vccnz st_slow")
    base(38, "s31")
    poll("s36")
    for k in range(16):
        mm(k, 16)
        if k == 14: join(False); ask()
        oload(k)
        if k == 2: pending()
        if k == 7: park(0)
    park(1)
    a("s_mov_b32 s35, s30")
    a("s_branch st_item")
    a.label("st_slow")
    pending()
    for k in range(16):
        mm(k, 15 - k)
        if k == 7: park(0)
    tstamp(a, 5)
    park(1); join(False); ask(); sum8("s30"); join(True); ask(); join(True)
    tstamp(a, 6)
    a("s_cmp_lt_i32 s31, 0"); a("s_cbranch_scc0 st_wait")

def emit_mega(a, prof=False):
    kernel_begin(a, NAME + "_kernel")
    a("s_cmp_ge_u32 s2, 256"); a("s_cbranch_scc1 w_exit")
    if "span" in rec.OPT: a("s_memrealtime s[100:101]")
    load_ptrs(a)
    a("s_getreg_b32 s44, hwreg(HW_REG_XCC_ID)"); a("s_and_b32 s44, s44, 7")
    if "fakex" in rec.OPT:
        a("s_bitcmp1_b32 s2, 3"); a("s_cbranch_scc0 fake_done")
        a("s_cmp_eq_u32 s44, 1"); a("s_cselect_b32 s44, 5, s44"); a("s_cmp_eq_u32 s44, 2"); a("s_cselect_b32 s44, 7, s44")
        a.label("fake_done")
    a("v_lshrrev_b32 v1, 6, v0"); a("v_mov_b32 v2, 0"); a("s_mov_b32 s46, 0")
    a("v_readfirstlane_b32 s75, v1")
    a("s_waitcnt lgkmcnt(0)")
    a("s_add_u32 s28, s28, 0x1fffff"); a("s_addc_u32 s29, s29, 0"); a("s_and_b32 s28, s28, 0xffe00000")
    if "nowarm" not in rec.OPT:
        a("s_cmp_eq_u32 s75, 2"); a("s_cbranch_scc0 no_warm")
        a("s_getpc_b64 s[30:31]")
        a.label("warm_pc")
        a("s_lshr_b32 s32, s2, 3"); a("s_lshl_b32 s32, s32, 12"); a("v_and_b32 v3, 63, v0"); a("v_lshl_add_u32 v3, v3, 6, s32")
        a("v_min_u32 v3, code_end-warm_pc-4, v3"); a("v_and_b32 v3, -4, v3")
        a("global_load_dword a95, v3, s[30:31]")
        a.label("no_warm")
    a("s_cmp_eq_u32 s75, 1"); a("s_cbranch_scc0 no_probe")
    a("s_mov_b32 s47, 0")
    a("s_cmp_lt_u32 s44, 4"); a("s_cbranch_scc0 probe_done")
    a(f"s_add_u32 s30, s28, {rec.WS_PROBE}"); a("s_addc_u32 s31, s29, 0")
    a("s_lshr_b32 s32, s2, 5"); a("s_and_b32 s33, s32, 1"); a("s_lshr_b32 s32, s32, 1"); a("s_lshl_b32 s32, s32, 2"); a("s_add_u32 s32, s32, s33"); a("s_lshl_b32 s32, s32, 12")
    a("s_and_b32 s33, s2, 31"); a("s_lshl_b32 s33, s33, 7"); a("s_add_u32 s32, s32, s33")
    a("v_mov_b32 v3, s32")
    a("s_mov_b64 exec, 1")
    a("s_mov_b32 s38, -1"); a("s_mov_b32 s39, -1"); a("s_mov_b32 s40, 6")
    a.label("probe_loop")
    a("s_memtime s[34:35]"); a("s_waitcnt lgkmcnt(0)")
    a("global_store_dword v3, v2, s[30:31] sc1"); a("s_waitcnt vmcnt(0)")
    a("s_memtime s[36:37]"); a("s_waitcnt lgkmcnt(0)")
    a("s_sub_u32 s36, s36, s34"); a("s_min_u32 s36, s36, s38"); a("s_mov_b32 s38, s39"); a("s_mov_b32 s39, s36")
    a("v_xor_b32 v3, 0x2000, v3")
    a("s_sub_u32 s40, s40, 1"); a("s_cmp_lg_u32 s40, 0"); a("s_cbranch_scc1 probe_loop")
    a("s_mov_b64 exec, -1")
    a("s_cmp_lt_u32 s39, s38"); a("s_cselect_b32 s47, 1, 0")
    a.label("probe_done")
    a("v_mov_b32 v3, s47"); a("ds_write_b32 v2, v3 offset:4")
    a.label("no_probe")
    a("s_cmp_lg_u32 s75, 0"); a("s_cbranch_scc1 role_wait")
    a("s_and_b32 s32, s44, 3"); a("s_lshl_b32 s32, s32, 2"); a("s_and_b32 s33, s44, 4"); a("s_lshl_b32 s33, s33, 5"); a("s_add_u32 s32, s32, s33")
    a("v_mov_b32 v3, s32"); a("v_mov_b32 v4, 1")
    a("s_mov_b64 exec, 1")
    a("global_atomic_add v5, v3, v4, s[26:27] sc0 sc1"); a("s_waitcnt vmcnt(0)")
    a("v_readfirstlane_b32 s45, v5")
    a("s_cmp_lt_u32 s45, 32"); a("s_cbranch_scc1 role_have")
    a(f"v_mov_b32 v3, {D_OVF}")
    a("global_atomic_add v5, v3, v4, s[26:27] sc0 sc1"); a("s_waitcnt vmcnt(0)")
    a("v_readfirstlane_b32 s45, v5")
    a.label("role_poll")
    a("global_load_dwordx4 v[8:11], v2, s[26:27] sc1"); a("global_load_dwordx4 v[12:15], v2, s[26:27] offset:128 sc1"); a("s_waitcnt vmcnt(0)")
    a("s_mov_b32 s33, 0")
    for i in range(8):
        a(f"v_readfirstlane_b32 s{34+i}, v{8+i}"); a(f"s_add_u32 s33, s33, s{34+i}")
    a("s_cmp_eq_u32 s33, 256"); a("s_cbranch_scc1 role_pick")
    a("s_sleep 8"); a("s_add_u32 s46, s46, 1"); a(f"s_cmp_lt_u32 s46, {WSPIN}"); a("s_cbranch_scc1 role_poll")
    a("s_mov_b64 exec, -1"); a("s_branch w_fail")
    a.label("role_pick")
    for i in range(8):
        a(f"s_min_u32 s33, s{34+i}, 32"); a("s_add_u32 s45, s45, s33"); a(f"s_mov_b32 s44, {i}")
        if i < 7:
            a("s_cmp_lt_u32 s45, 32"); a("s_cbranch_scc1 role_have"); a("s_sub_u32 s45, s45, 32")
    a.label("role_have")
    a("s_lshl_b32 s32, s44, 5"); a("s_or_b32 s32, s32, s45"); a("v_mov_b32 v3, s32")
    a("ds_write_b32 v2, v3")
    a("s_mov_b64 exec, -1")
    a.label("role_wait")
    a("s_waitcnt lgkmcnt(0)"); a("s_barrier")
    a("ds_read_b64 v[4:5], v2"); a("s_waitcnt lgkmcnt(0)")
    a("v_readfirstlane_b32 s32, v4"); a("v_readfirstlane_b32 s47, v5")
    a("s_cmp_lg_u32 s75, 0"); a("s_cbranch_scc1 voted")
    a("s_cmp_ge_u32 s32, 128"); a("s_cbranch_scc1 voted")
    a("s_and_b32 s47, s47, 1"); a("s_lshl_b32 s47, s47, 16"); a("s_or_b32 s47, s47, 1"); a("v_mov_b32 v3, s47")
    a("s_mov_b64 exec, 1")
    a(f"global_atomic_add v2, v3, s[26:27] offset:{rec.DBG_VOTE} sc1")
    a("s_mov_b64 exec, -1")
    a.label("voted")
    a("s_barrier")
    if "span" in rec.OPT:
        a("s_and_b32 s98, s2, 0x38"); a("s_or_b32 s98, s98, s75"); a("s_cmp_lg_u32 s98, 0"); a("s_cbranch_scc1 span1")
        a("s_memrealtime s[98:99]"); a("s_waitcnt lgkmcnt(0)"); a("s_not_b32 s100, s100"); a("v_mov_b32 v4, s100"); a("v_mov_b32 v5, s98")
        a("s_mov_b64 exec, 1"); a("global_atomic_umax v2, v4, s[26:27] offset:48 sc1"); a("global_atomic_umax v2, v5, s[26:27] offset:52 sc1"); a("s_mov_b64 exec, -1")
        a.label("span1")
    a("s_and_b32 s45, s32, 31"); a("s_bfe_u32 s44, s32, 0x30005")
    a("s_cmp_ge_u32 s44, 4"); a("s_cbranch_scc1 worker")
    a("s_lshl_b32 s18, s44, 3"); a("s_lshr_b32 s19, s45, 2"); a("s_add_u32 s18, s18, s19"); a("s_and_b32 s19, s45, 3")
    rec.emit_rec(a, "rec", prof=prof, kvwait=True)
    a.label("worker")
    a("s_sub_u32 s44, s44, 4")
    a("v_and_b32 v0, 63, v0")
    gemm.setup_common(a)
    a("s_mov_b32 s88, 0"); a("s_mov_b32 s89, 0"); a("s_mov_b32 s77, 0")
    a("s_mov_b32 s59, 0") if PROF else None
    a("s_lshl_b32 s96, s44, 5"); a("s_add_u32 s96, s96, s45"); a("s_lshl_b32 s96, s96, 3"); a("s_add_u32 s96, s96, s75")
    a("s_lshl_b32 s32, s44, 3"); a("s_lshr_b32 s44, s45, 3"); a("s_and_b32 s45, s45, 7"); a("s_add_u32 s45, s45, s32")
    if PROF: a("s_lshl_b32 s97, s44, 5"); a("s_add_u32 s97, s97, s45")
    wstamp(a, 0)
    def g1(grp):
        MT, first = ((2, 0), (3, 32), (3, 80))[grp]
        a("s_mov_b32 s23, s44")
        a("s_mov_b32 s30, s45"); a(f"s_mul_i32 s31, s23, {4*MT}"); a(f"s_add_u32 s31, s31, {first}")
        task_g1(a, MT, grp)
    def tile_2x4():
        a("s_bfe_u32 s30, s45, 0x10003"); a("s_lshl_b32 s30, s30, 1"); a("s_and_b32 s32, s45, 1"); a("s_add_u32 s30, s30, s32")
        a("s_lshr_b32 s31, s45, 4"); a("s_lshl_b32 s31, s31, 2"); a("s_bfe_u32 s32, s45, 0x20001"); a("s_add_u32 s31, s31, s32")
    touches(a, [(10, 1 << 20, 3, 0, 3)]*3)
    if rec.PAR["ST"] == 1: a("s_mov_b32 s98, 0")
    g1(0)
    if not rec.PAR["RPF"]: touches(a, [(4, 0, 4, 0, 4), (6, 0, 6, 0, 4), (6, 0, 6, 4, 2)])
    elif rec.PAR["RPF"] == 1 and not rec.PAR["QPL"]: touches(a, [(14, 0, 8, 0, 4), (14, 0, 8, 4, 4), (14, 0, 8, 4, 4)])
    g1(1)
    if not rec.PAR["RPF"]: touches(a, [(14, 0, 8, 0, 4), (14, 0, 8, 4, 4), (8, 0, 2, 0, 2)])
    a("s_cmp_lt_u32 s44, 2"); a("s_cbranch_scc1 w_g1c")
    tile_2x4()
    a("s_and_b32 s32, s44, 1"); a("s_lshl_b32 s32, s32, 2"); a("s_add_u32 s30, s30, s32")
    task_g4kv(a)
    wstamp(a, 0)
    a("s_cmp_eq_u32 s44, 2"); a("s_cbranch_scc0 w_g1c")
    a("s_mov_b32 s30, s45"); a("s_mov_b32 s31, 0")
    a.label("w_wot")
    task_wot(a)
    a("s_add_u32 s31, s31, 1"); a("s_cmp_lt_u32 s31, 2"); a("s_cbranch_scc1 w_wot")
    wstamp(a, 0)
    a.label("w_g1c")
    g1(2)
    a.label("w_g2a")
    a("s_lshr_b32 s30, s45, 1"); a("s_and_b32 s31, s45, 1"); a("s_lshr_b32 s32, s44, 1"); a("s_xor_b32 s32, s32, s44"); a("s_lshl_b32 s32, s32, 1"); a("s_add_u32 s31, s31, s32")
    task_g2a(a)
    wstamp(a, 0)
    a("s_cmp_eq_u32 s44, 0"); a("s_cbranch_scc1 w_g5")
    a("s_cmp_eq_u32 s44, 2"); a("s_cbranch_scc1 w_set2")
    a("s_lshr_b32 s30, s45, 3")
    a("s_cmp_eq_u32 s44, 3"); a("s_cbranch_scc1 w_f1")
    a("s_and_b32 s31, s45, 7")
    task_g3(a, 2)
    wstamp(a, 0)
    a(f"s_mov_b32 s34, {setmask(1):#x}")
    a("s_branch w_stream")
    a.label("w_f1")
    a("s_lshl_b32 s31, s31, 2"); a("s_bfe_u32 s32, s45, 0x20001"); a("s_add_u32 s31, s31, s32")
    task_g3(a, 1)
    wstamp(a, 0)
    a.label("w_set2")
    a("s_bitcmp1_b32 s45, 0"); a("s_cbranch_scc1 w_exit")
    a("s_and_b32 s32, s44, 1"); a("s_add_u32 s45, s45, s32")
    a(f"s_mov_b32 s34, {setmask(2):#x}")
    a("s_branch w_stream")
    a.label("w_g5")
    tile_2x4()
    task_g4q(a)
    wstamp(a, 0)
    task_g5(a)
    wstamp(a, 0)
    a(f"s_mov_b32 s34, {setmask(0):#x}")
    a.label("w_stream")
    task_stream(a)
    wstamp(a, 0)
    if "span" in rec.OPT:
        a("s_and_b32 s98, s45, 7"); a("s_or_b32 s98, s98, s75"); a("s_cmp_lg_u32 s98, 0"); a("s_cbranch_scc1 w_exit")
        a("s_waitcnt vmcnt(0)"); a("s_memrealtime s[98:99]"); a("s_waitcnt lgkmcnt(0)"); a("v_mov_b32 v5, s98"); a("v_mov_b32 v2, 0")
        a("s_mov_b64 exec, 1"); a("global_atomic_umax v2, v5, s[26:27] offset:60 sc1")
    a("s_endpgm")
    a.label("w_fail")
    a("v_mov_b32 v16, 0"); a("v_mov_b32 v17, 0xdead"); a("global_store_dword v16, v17, s[26:27] offset:248")
    a.label("w_exit")
    a("s_endpgm")
    gemm.emit_core(a, "core_T", 'T')
    gemm.emit_core(a, "core_N", 'N')
    gemm.emit_core(a, "core_T3", 'T', MT=3)
    gemm.emit_core(a, "core_T2", 'T', MT=2)
    gemm.WFLAG = "sc1"; gemm.WFRAG = True
    gemm.emit_core(a, "core_F1", 'T', MT=1, aflag="sc1")
    gemm.emit_core(a, "core_F2", 'T', MT=2, aflag="sc1")
    gemm.WFLAG = ""; gemm.WFRAG = False
    a.label("code_end")

def generate(prof=False):
    global PROF
    PROF = bool(prof)
    raw = open(f"cdna_kernels/{NAME}.s.ref").read().split("\n")
    hdr = []
    for l in raw:
        if not l.startswith(";") or "Override" in l: break
        hdr.append(l)
    a = Asm()
    emit_mega(a, prof)
    s = "\n".join(hdr) + "\n"
    s += f"; @launch kernel={NAME}_kernel grid=(256,1,1) block=(512,1,1) lds=163840\n"
    s += '.amdgcn_target "amdgcn-amd-amdhsa--gfx950"\n.text\n' + a.text() + '.section .rodata,"a"\n'
    s += kernel_desc(NAME + "_kernel", vgpr=256, accum=160)
    return s

if __name__ == "__main__":
    out = sys.argv[1] if len(sys.argv) > 1 else f"cdna_kernels/{NAME}.s"
    open(out, "w").write(generate())
    print("wrote", out)
```

```python
import sys, os
sys.path.insert(0, os.path.dirname(__file__))
from asmgen import *
import gemm
import rec2 as rec
from gemm import acc, R

NAME = "concat_heads__linear_attn_block__memory_aug_recurrent_mem_tr__prompt"
WS_O   = 84 << 20
WS_OA  = 116 << 20
WS_KVP = 124 << 20
OA_T = 65536
WS_INBOX = 142 << 20
D_OVF, D_AKV, D_KV, D_AO, D_O = 32, 36, 64, 96, 128
D_PROG = rec.DBG_PROG
WSPIN = 400000
TSET = "1111000221021012"
def setmask(k): return sum(1 << t for t in range(16) if int(TSET[t]) == k)
LOG2E = 0x3fb8aa3b
EPS = 0x358637bd
SCL = 0x3e0293ee


def load_ptrs(a):
    a("s_load_dwordx16 s[4:19], s[0:1], 0"); a("s_load_dwordx2 s[20:21], s[0:1], 64")
    a("s_load_dwordx4 s[24:27], s[0:1], 80"); a("s_load_dwordx2 s[28:29], s[0:1], 96")

def signal(a, off_sgpr_or_imm, val=1):
    lab = a.newlabel("sig")
    a("s_waitcnt vmcnt(0)"); a("s_barrier")
    a("s_cmp_lg_u32 s75, 0"); a(f"s_cbranch_scc1 {lab}")
    a(f"v_mov_b32 v16, {off_sgpr_or_imm}"); a(f"v_mov_b32 v17, {val}")
    a("s_mov_b64 exec, 1")
    a("global_atomic_add v16, v17, s[26:27] sc1")
    a("s_mov_b64 exec, -1")
    a.label(lab)

def wait_cnt(a, off, target, inv=True):
    lp, ok, done = a.newlabel("wl"), a.newlabel("wo"), a.newlabel("wd")
    a("s_cmp_lg_u32 s75, 0"); a(f"s_cbranch_scc1 {done}")
    a(f"v_mov_b32 v16, {off}")
    a.label(lp)
    a("global_load_dword v17, v16, s[26:27] sc1"); a("s_waitcnt vmcnt(0)")
    a(f"v_cmp_ne_u32 vcc, {target}, v17"); a(f"s_cbranch_vccz {ok}")
    a("s_sleep 8")
    a("s_add_u32 s46, s46, 1"); a(f"s_cmp_lt_u32 s46, {WSPIN}"); a(f"s_cbranch_scc1 {lp}")
    a("s_branch w_fail")
    a.label(ok)
    if inv: a("buffer_inv sc1"); a("s_waitcnt vmcnt(0)")
    a.label(done)
    a("s_barrier")

def learn_parity(a):
    lp, ok = a.newlabel("vl"), a.newlabel("vo")
    a.label(lp)
    a("s_waitcnt vmcnt(0)")
    a("v_readfirstlane_b32 s22, v18"); a("v_readfirstlane_b32 s34, v19")
    a("s_and_b32 s32, s22, 0xffff"); a("s_add_u32 s32, s32, s34"); a("s_cmp_eq_u32 s32, 256"); a(f"s_cbranch_scc1 {ok}")
    a("s_sleep 8")
    a(f"global_load_dwordx2 v[18:19], v16, s[26:27] offset:{rec.DBG_VOTE} sc1")
    a("s_add_u32 s46, s46, 1"); a(f"s_cmp_lt_u32 s46, {WSPIN}"); a(f"s_cbranch_scc1 {lp}")
    a("s_branch w_fail")
    a.label(ok)
    a("s_lshr_b32 s22, s22, 16"); a("s_cmp_gt_u32 s22, 64"); a("s_cselect_b32 s22, 1, 0")

def phi(a, regs):
    for i in range(0, len(regs), 8):
        b = regs[i:i+8]
        for k, r in enumerate(b): a(f"v_mul_f32 v{16+k}, s40, v{r}")
        for k, r in enumerate(b): a(f"v_min_f32 v{16+k}, 0, v{16+k}")
        for k, r in enumerate(b): a(f"v_exp_f32 v{16+k}, v{16+k}")
        for k, r in enumerate(b): a(f"v_max_f32 v{r}, 0, v{r}")
        for k, r in enumerate(b): a(f"v_add_f32 v{r}, v{r}, v{16+k}")
        for k, r in enumerate(b): a(f"v_add_f32 v{r}, s41, v{r}")

def pack_frags(a):
    for tt in range(4):
        for jj in range(4):
            s = acc(tt, 2*jj); d = 32 + (tt*4 + jj)*4
            for i in range(4): a(f"v_cvt_pk_bf16_f32 v{d+i}, v{s+2*i}, v{s+2*i+1}")
def frag(tt, jj): return R('v', 32 + (tt*4 + jj)*4)

PROF = False
def wstamp(a, k):
    if not PROF: return
    lab = a.newlabel("ws")
    a("s_cmp_lg_u32 s75, 0"); a(f"s_cbranch_scc1 {lab}")
    a("s_memrealtime s[56:57]"); a("s_waitcnt lgkmcnt(0)")
    a("s_lshl_b32 s58, s97, 7"); a("s_lshl_b32 s57, s59, 2"); a("s_add_u32 s58, s58, s57"); a(f"s_add_u32 s58, s58, {201 << 20}")
    a("v_mov_b32 v16, s58"); a("v_mov_b32 v17, s56"); a("global_store_dword v16, v17, s[28:29]")
    a("s_memtime s[56:57]"); a("s_waitcnt lgkmcnt(0)"); a("v_mov_b32 v17, s56"); a("v_add_u32 v16, 0x100000, v16"); a("global_store_dword v16, v17, s[28:29]")
    a("s_add_u32 s59, s59, 1")
    a.label(lab)

def tstamp(a, ev, v0=126, v1=127):
    if not PROF: return
    a("s_memrealtime s[56:57]"); a("s_waitcnt lgkmcnt(0)")
    a("s_lshl_b32 s58, s96, 2"); a(f"s_add_u32 s58, s58, {(204 << 20) + ev*8192}")
    a(f"v_mov_b32 v{v0}, s58"); a(f"v_mov_b32 v{v1}, s56"); a(f"global_store_dword v{v0}, v{v1}, s[28:29]")

def wside(a, dst, off, tmp):
    rec.near(a, dst, off, "s22", 28, tmp, kv=True)

def task_g1(a, MT, grp):
    gemm.setup_a_rowmajor(a, 2048, MT); gemm.setup_w(a, 8192)
    a("s_lshl_b32 s32, s31, 15"); a("s_add_u32 s80, s10, s32"); a("s_addc_u32 s81, s11, 0")
    a("s_cmp_lt_u32 s30, 16"); a("s_cselect_b32 s82, s16, s18"); a("s_cselect_b32 s83, s17, s19")
    a(f"s_cselect_b32 s33, {rec.WS_KX >> 20}, {rec.WS_VX >> 20}"); a("s_lshl_b32 s33, s33, 20")
    a("s_and_b32 s35, s30, 15"); a("s_lshl_b32 s32, s35, 9"); a("s_add_u32 s82, s82, s32"); a("s_addc_u32 s83, s83, 0")
    a("s_mov_b32 s66, 7")
    if grp == 0 and rec.PAR["WPF"]:
        a("s_cmp_lt_u32 s44, 2"); a("s_cbranch_scc1 no_wpf")
        a("s_and_b32 s34, s44, 1"); a("s_lshl_b32 s34, s34, 3"); a("s_add_u32 s34, s34, s75")
        nx = rec.PAR["WPF"]
        a("s_and_b32 s32, s45, 7"); a("s_lshl_b32 s32, s32, 4"); a("s_add_u32 s32, s32, s34"); a(f"s_lshl_b32 s32, s32, {11 + nx}")
        a(f"v_and_b32 v16, {32*nx - 1}, v0"); a("v_lshl_add_u32 v16, v16, 7, s32")
        if not rec.PAR["EPF"]: a("global_load_dword a95, v16, s[10:11]")
        a("v_lshrrev_b32 v16, 2, v0"); a("v_lshlrev_b32 v16, 13, v16"); a("v_and_b32 v17, 3, v0"); a("v_lshl_add_u32 v16, v17, 7, v16")
        a("s_lshl_b32 s32, s34, 17"); a("v_add_u32 v16, s32, v16")
        for i in range(4):
            if i or not rec.PAR["EPF"]:
                a("global_load_dword a95, v16, s[82:83]")
                if i < 3: a("s_barrier")
            a(f"v_add_u32 v16, {256*8192}, v16")
        a.label("no_wpf")
    def first_signal(n):
        lab = a.newlabel("sig")
        a(f"s_waitcnt vmcnt({n})"); a("s_barrier")
        a("s_cmp_lg_u32 s75, 0"); a(f"s_cbranch_scc1 {lab}")
        a("v_mov_b32 v16, s88"); a("v_mov_b32 v17, 0")
        a("s_mov_b64 exec, 1"); a("global_store_dword v16, v17, s[28:29] sc1"); a("s_mov_b64 exec, -1")
        a.label(lab)
        wstamp(a, 0)
    ST = rec.PAR["ST"]
    if grp == 1:
        if ST == 0:
            gemm.prologue(a, MT); first_signal(8 + 2*MT)
        else:
            first_signal(0)
            if ST == 1 and not rec.PAR["RPF"]:
                a("s_mul_i32 s32, s96, 3072"); a(f"s_add_u32 s32, s32, {1 << 20}"); a("v_lshlrev_b32 v20, 6, v0"); a("v_min_u32 v20, 3008, v20"); a("v_add_u32 v20, s32, v20")
                a("global_load_dword a95, v20, s[10:11]")
    gemm.call(a, f"core_T{MT}" + ("_m" if grp == 1 and ST == 0 else ""))
    if grp == 0: learn_parity(a)
    wstamp(a, 0)
    a("s_lshl_b32 s34, s35, 1"); a("s_add_u32 s34, s34, s73"); a("s_lshl_b32 s34, s34, 14"); a("s_add_u32 s33, s33, s34")
    a(f"s_mul_i32 s36, s72, {MT}"); a("s_add_u32 s36, s36, s31")
    a("v_lshlrev_b32 v19, 4, v0")
    for tt in range(MT):
        a(f"s_add_u32 s32, s36, {tt}"); a("s_and_b32 s34, s32, 1"); a("s_lshl_b32 s34, s34, 12"); a("s_lshr_b32 s32, s32, 1"); a("s_lshl_b32 s32, s32, 19")
        a("s_add_u32 s32, s32, s34"); a("s_add_u32 s32, s32, s33")
        rec.near_bit(a, "s34", "s32", "s22", True); a("s_add_u32 s32, s32, s34")
        a(f"v_add_u32 v{20+tt}, s32, v19")
    a("s_lshl_b32 s88, s23, 7"); a("s_lshl_b32 s32, s30, 2"); a("s_add_u32 s88, s88, s32"); a(f"s_add_u32 s88, s88, {rec.WS_FLAG + (96 + 4*grp)*128}")
    if grp == 0: gemm.epi_frag_store(a, "s[28:29]", "sc1", MT)
    else:
        a("s_mov_b32 s89, 1"); a("s_mov_b32 s77, 1")

def touches(a, parts):
    for i, (p, fix, per, first, n) in enumerate(parts):
        a(f"s_mul_i32 s32, s96, {per*1024}"); a(f"s_add_u32 s32, s32, {fix + first*1024}")
        a(f"s_add_u32 s{90+2*i}, s{p}, s32"); a(f"s_addc_u32 s{91+2*i}, s{p+1}, 0"); a(f"s_mov_b32 s{99+i}, {n*1024 - 64}")
    a("s_mov_b32 s98, 0" if "notouch" in rec.OPT else "s_mov_b32 s98, 1")

def task_g4kv(a):
    def colmap(a, v):
        a(f"v_bfe_u32 v18, v{v}, 3, 1"); a("v_lshlrev_b32 v18, 11, v18")
        a(f"v_lshrrev_b32 v19, 4, v{v}"); a("v_lshl_add_u32 v18, v19, 7, v18")
        a(f"v_and_b32 v{v}, 7, v{v}"); a(f"v_lshl_add_u32 v{v}, v{v}, 4, v18")
    gemm.setup_a_rowmajor(a, 2048); gemm.setup_w(a, 6144, colmap)
    a("s_lshl_b32 s32, s31, 19"); a("s_add_u32 s80, s4, s32"); a("s_addc_u32 s81, s5, 0")
    a("s_lshl_b32 s32, s30, 8"); a("s_add_u32 s32, s32, 2048"); a("s_add_u32 s82, s6, s32"); a("s_addc_u32 s83, s7, 0")
    a("s_mov_b32 s66, 7")
    gemm.call(a, "core_N")
    wstamp(a, 0)
    a(f"s_mov_b32 s40, {LOG2E}"); a(f"s_mov_b32 s41, {EPS}")
    phi(a, [acc(tt, 0) + i for tt in range(4) for i in range(16)])
    for tp in range(2):
        for ft in range(8):
            x = acc(2*tp, ft); y = acc(2*tp+1, ft)
            a(f"v_cvt_pk_bf16_f32 v{x}, v{x}, v{x+1}"); a(f"v_cvt_pk_bf16_f32 v{x+1}, v{x+2}, v{x+3}")
            a(f"v_cvt_pk_bf16_f32 v{x+2}, v{y}, v{y+1}"); a(f"v_cvt_pk_bf16_f32 v{x+3}, v{y+2}, v{y+3}")
    for i in range(4): a(f"v_mov_b32 v{16+i}, 0x3f803f80")
    a("v_lshlrev_b32 v20, 4, v0"); a("s_mul_i32 s32, s73, 49152"); a("s_lshl_b32 s33, s72, 10"); a("s_add_u32 s32, s32, s33"); a("v_add_u32 v21, s32, v20")
    outb = lambda hd, et, dt: (64 if hd == 0 else 128) + (et*2 + dt)*4
    for tp in range(2):
        for hd in range(2):
            for et in range(3):
                for dt in range(2):
                    D = R('v', outb(hd, et, dt)); A = R('v', acc(2*tp, 2*hd + dt)); B = R('v', acc(2*tp, 4 + 2*hd + et)) if et < 2 else "v[16:19]"
                    a(f"v_mfma_f32_16x16x32_bf16 {D}, {A}, {B}, " + ("0" if tp == 0 else D))
    a("s_barrier")
    a("s_nop 7")
    for hd in range(2):
        for f in range(6):
            a(f"ds_write_b128 v21, {R('v', outb(hd, f >> 1, f & 1))} offset:{(hd*6 + f)*4096}")
    a("s_mul_i32 s32, s75, 12288"); a("v_add_u32 v21, s32, v20")
    a("s_waitcnt lgkmcnt(0)"); a("s_barrier")
    for k in range(3):
        for m in range(4): a(f"ds_read_b128 {R('v', 32 + (k*4 + m)*4)}, v21 offset:{k*4096 + m*1024}")
    a("s_lshl_b32 s32, s31, 5"); a("s_lshl_b32 s33, s30, 2"); a("s_add_u32 s32, s32, s33"); a("s_mul_i32 s32, s32, 6144")
    a("s_mul_i32 s33, s75, 3072"); a("s_add_u32 s32, s32, s33"); a(f"s_add_u32 s32, s32, {WS_KVP}"); a("v_add_u32 v22, s32, v20")
    a("s_waitcnt lgkmcnt(0)")
    for k in range(3):
        b = 32 + k*16
        for h in range(2):
            a(f"v_pk_add_f32 v[{b+2*h}:{b+2*h+1}], v[{b+2*h}:{b+2*h+1}], v[{b+4+2*h}:{b+5+2*h}]")
            a(f"v_pk_add_f32 v[{b+8+2*h}:{b+9+2*h}], v[{b+8+2*h}:{b+9+2*h}], v[{b+12+2*h}:{b+13+2*h}]")
        for h in range(2):
            a(f"v_pk_add_f32 v[{b+2*h}:{b+2*h+1}], v[{b+2*h}:{b+2*h+1}], v[{b+8+2*h}:{b+9+2*h}]")
        a(f"global_store_dwordx4 v22, {R('v', b)}, s[28:29] offset:{k*1024} sc1")
    signal(a, D_AKV)

def task_g4q(a):
    gemm.setup_a_rowmajor(a, 2048); gemm.setup_w(a, 6144)
    a("s_lshl_b32 s32, s31, 19"); a("s_add_u32 s80, s4, s32"); a("s_addc_u32 s81, s5, 0")
    a("s_lshl_b32 s32, s30, 9"); a("s_add_u32 s82, s6, s32"); a("s_addc_u32 s83, s7, 0")
    a("s_mov_b32 s66, 7")
    gemm.call(a, "core_T")
    wstamp(a, 0)
    a(f"s_mov_b32 s40, {LOG2E}"); a(f"s_mov_b32 s41, {EPS}")
    phi(a, list(range(32, 160)))
    pack_frags(a)
    wstamp(a, 0)
    wait_cnt(a, D_AKV, 64, False)
    wstamp(a, 0)
    a("v_lshlrev_b32 v16, 4, v0")
    for r in range(1, 8): a(f"v_add_u32 v{16+r}, {r*196608}, v16")
    a("s_lshl_b32 s32, s30, 3"); a("s_add_u32 s32, s32, s75"); a("s_mul_i32 s32, s32, 6144"); a(f"s_add_u32 s32, s32, {WS_KVP}")
    a("s_add_u32 s34, s28, s32"); a("s_addc_u32 s35, s29, 0")
    a("s_mul_i32 s32, s75, 3072"); a("v_add_u32 v24, s32, v16")
    for et in range(3):
        for r in range(8):
            for dt in range(2):
                a(f"global_load_dwordx4 {R('v', 96 + (r*2 + dt)*4)}, v{16+r}, s[34:35] offset:{dt*1024} sc1")
        a("s_add_u32 s34, s34, 2048"); a("s_addc_u32 s35, s35, 0")
        a("s_waitcnt vmcnt(0)")
        for step in (32, 16, 8):
            for i in range(0, step, 2):
                a(f"v_pk_add_f32 v[{96+i}:{97+i}], v[{96+i}:{97+i}], v[{96+step+i}:{97+step+i}]")
        for i in range(4): a(f"v_cvt_pk_bf16_f32 v{28+i}, v{96+2*i}, v{97+2*i}")
        a(f"ds_write_b128 v24, v[28:31] offset:{et*1024}")
    a("s_mul_i32 s32, s73, 12288"); a("v_add_u32 v24, s32, v16")
    a("s_waitcnt lgkmcnt(0)"); a("s_barrier")
    for i in range(12): a(f"ds_read_b128 {R('a', i*4)}, v24 offset:{i*1024}")
    gemm.lane_chunk(a, 25, 26)
    a("v_and_b32 v26, 15, v0"); a("v_lshl_add_u32 v25, v25, 4, v26"); a("v_lshlrev_b32 v25, 4, v25")
    a("s_lshl_b32 s32, s31, 4"); a("s_lshl_b32 s33, s72, 2"); a("s_add_u32 s32, s32, s33"); a(f"s_mul_i32 s32, s32, {OA_T}")
    a("s_lshl_b32 s33, s30, 14"); a("s_add_u32 s32, s32, s33"); a("s_lshl_b32 s33, s73, 12"); a("s_add_u32 s32, s32, s33"); a(f"s_add_u32 s32, s32, {WS_OA}")
    rec.near_bit(a, "s33", "s32", "s22", True); a("s_add_u32 s32, s32, s33")
    a("v_add_u32 v20, s32, v25")
    for tt in range(1, 4): a(f"v_add_u32 v{20+tt}, {tt*OA_T}, v20")
    a("s_waitcnt lgkmcnt(0)")
    for hd in range(4):
        for tt in range(4):
            b = 96 + tt*12
            for et in (2, 0, 1):
                a(f"v_mfma_f32_16x16x32_bf16 {R('v', b + et*4)}, {R('a', (hd*3 + et)*4)}, {frag(tt, hd)}, 0")
        a("s_nop 7")
        for tt in range(4):
            b = 96 + tt*12
            a(f"v_add_f32 v{b+8}, s41, v{b+8}")
        for tt in range(4):
            b = 96 + tt*12
            a(f"v_rcp_f32 v{b+8}, v{b+8}")
        for tt in range(4):
            b = 96 + tt*12
            a(f"v_mov_b32 v{b+9}, v{b+8}")
            for i in range(0, 8, 2): a(f"v_pk_mul_f32 v[{b+i}:{b+i+1}], v[{b+i}:{b+i+1}], v[{b+8}:{b+9}]")
            t = 144 + tt*4
            gemm.pack_swap(a, t, b)
            a(f"global_store_dwordx4 v{20+tt}, {R('v', t)}, s[28:29] offset:{hd*1024} sc1")
    a("s_lshl_b32 s32, s31, 2"); a(f"s_add_u32 s32, s32, {D_AO}")
    signal(a, "s32")

def out_offsets(a, MT):
    gemm.lane_chunk(a, 25, 26)
    a("v_and_b32 v26, 15, v0"); a("v_lshlrev_b32 v26, 12, v26"); a("v_lshl_add_u32 v20, v25, 4, v26")
    a(f"s_mul_i32 s32, s72, {MT*16*4096}"); a("s_lshl_b32 s33, s73, 8"); a("s_add_u32 s32, s32, s33"); a("v_add_u32 v20, s32, v20")
    for tt in range(1, MT): a(f"v_add_u32 v{20+tt}, {tt*65536}, v20")

def task_g5(a):
    gemm.setup_a_frag(a, OA_T); gemm.setup_w(a, 2048)
    a("s_lshl_b32 s32, s31, 2"); a(f"s_add_u32 s32, s32, {D_AO}")
    wait_cnt(a, "s32", 4)
    wstamp(a, 0)
    a(f"s_mul_i32 s32, s31, {16*OA_T}"); a(f"s_add_u32 s32, s32, {WS_OA}"); wside(a, 80, "s32", "s33")
    a("s_lshl_b32 s32, s30, 9"); a("s_add_u32 s82, s8, s32"); a("s_addc_u32 s83, s9, 0")
    a("s_mov_b32 s66, 7")
    gemm.call(a, "core_T")
    wstamp(a, 0)
    out_offsets(a, 4)
    a("s_lshl_b32 s32, s31, 20"); a("s_lshl_b32 s33, s30, 9"); a("s_add_u32 s32, s32, s33"); a("s_add_u32 s34, s24, s32"); a("s_addc_u32 s35, s25, 0")
    gemm.epi_out_store(a, "s[34:35]", 4, "" if "outpl" in rec.OPT else "sc1")

def task_wot(a):
    a("s_barrier")
    a("v_lshrrev_b32 v2, 4, v0"); a("v_lshlrev_b32 v2, 11, v2"); a("v_and_b32 v3, 15, v0"); a("v_lshl_add_u32 v2, v3, 4, v2")
    a("s_lshl_b32 s32, s30, 18"); a("s_lshl_b32 s33, s31, 17"); a("s_add_u32 s32, s32, s33"); a("s_lshl_b32 s33, s75, 8"); a("s_add_u32 s32, s32, s33"); a("v_add_u32 v2, s32, v2")
    a("s_lshl_b32 s43, s75, 14")
    for i in range(16):
        a(f"s_add_u32 m0, s43, {i*1024}"); a("s_nop 0")
        a("global_load_lds_dwordx4 v2, s[20:21]")
        a("v_add_u32 v2, 0x2000, v2")
    a("v_lshrrev_b32 v3, 2, v0"); a("v_lshlrev_b32 v3, 8, v3"); a("v_and_b32 v16, 3, v0"); a("v_lshl_add_u32 v3, v16, 4, v3"); a("v_add_u32 v3, s43, v3")
    a("s_lshl_b32 s32, s75, 21"); a("s_lshl_b32 s33, s30, 14"); a("s_add_u32 s32, s32, s33"); a("s_lshl_b32 s33, s31, 12"); a("s_add_u32 s32, s32, s33"); a(f"s_add_u32 s32, s32, {rec.WS_WOT}")
    wside(a, 34, "s32", "s33")
    a("v_lshlrev_b32 v20, 4, v0")
    for i in range(1, 4): a(f"v_add_u32 v{20+i}, {i*rec.WOT_CG}, v20")
    a("s_waitcnt vmcnt(0)")
    for cgl in range(4):
        for jl in range(2):
            for ct in range(2):
                b = 32 + ((cgl*2 + jl)*2 + ct)*4
                for lo in range(2):
                    a(f"ds_read_b64_tr_b16 {R('v', b + 2*lo, 2)}, v3 offset:{(32*jl + 16*lo)*256 + cgl*64 + ct*8}")
        a("s_waitcnt lgkmcnt(0)")
        for jl in range(2):
            for ct in range(2):
                a(f"global_store_dwordx4 v{20+cgl}, {R('v', 32 + ((cgl*2 + jl)*2 + ct)*4)}, s[34:35] offset:{jl*2048 + ct*1024} sc1")
    a("s_lshl_b32 s32, s30, 1"); a("s_add_u32 s32, s32, s31"); a("s_lshl_b32 s32, s32, 16"); a("s_lshr_b32 s33, s75, 1"); a("s_lshl_b32 s33, s33, 14"); a("s_add_u32 s32, s32, s33")
    a("s_and_b32 s33, s75, 1"); a("s_lshl_b32 s33, s33, 12"); a("s_add_u32 s32, s32, s33"); a(f"s_add_u32 s32, s32, {WS_INBOX}")
    wside(a, 34, "s32", "s33")
    for i in range(4): a(f"v_mov_b32 v{24+i}, -1")
    for i in range(4): a(f"global_store_dwordx4 v20, v[24:27], s[34:35] offset:{i*1024} sc1")
    lab = a.newlabel("sig")
    a("s_waitcnt vmcnt(0)"); a("s_barrier")
    a("s_cmp_lg_u32 s75, 0"); a(f"s_cbranch_scc1 {lab}")
    a("s_lshl_b32 s32, s31, 7"); a("s_lshl_b32 s33, s30, 2"); a("s_add_u32 s32, s32, s33"); a(f"s_add_u32 s32, s32, {rec.WS_FLAG + 108*128}")
    a("v_mov_b32 v16, s32"); a("v_mov_b32 v17, 0")
    a("s_mov_b64 exec, 1"); a("global_store_dword v16, v17, s[28:29] sc1"); a("s_mov_b64 exec, -1")
    a.label(lab)

def task_g3(a, MT):
    sh = MT - 1
    a("s_lshl_b32 s32, s30, 3"); a("s_add_u32 s32, s32, s75"); a("s_lshl_b32 s32, s32, 19"); a(f"s_add_u32 s32, s32, {rec.WS_WOT}")
    rec.near_bit(a, "s33", "s32", "s22", True); a("s_add_u32 s32, s32, s33")
    gemm.setup_a_frag(a, 262144, MT); gemm.setup_w_frag(a, "s32")
    wot_wait(a)
    lp, ok = a.newlabel("fl"), a.newlabel("fo")
    a("s_cmp_lg_u32 s75, 0"); a(f"s_cbranch_scc1 {ok}")
    a(f"s_lshl_b32 s32, s31, {8 + sh}"); a(f"s_add_u32 s32, s32, {rec.WS_FLAG}"); a("v_lshl_add_u32 v16, v0, 2, s32")
    a.label(lp)
    a("global_load_dword v17, v16, s[28:29] sc1"); a(f"global_load_dword v19, v16, s[28:29] offset:{256*sh} sc1"); a("s_waitcnt vmcnt(0)")
    a("v_or_b32 v17, v17, v19")
    a("v_cmp_ne_u32 vcc, 0, v17"); a(f"s_cbranch_vccz {ok}")
    a("s_sleep 8")
    a("s_add_u32 s46, s46, 1"); a(f"s_cmp_lt_u32 s46, {WSPIN}"); a(f"s_cbranch_scc1 {lp}")
    a("s_branch w_fail")
    a.label(ok)
    wstamp(a, 0)
    a(f"s_lshl_b32 s32, s31, {20 + sh}"); a(f"s_add_u32 s32, s32, {WS_O}"); wside(a, 80, "s32", "s33")
    a("s_mov_b64 s[82:83], s[28:29]")
    a("s_mov_b32 s66, 31")
    a("s_add_u32 s32, s31, s30"); a("s_and_b32 s78, s32, 3"); a("s_lshl_b32 s78, s78, 11"); a("s_and_b32 s33, s32, 4"); a("s_lshl_b32 s33, s33, 12"); a("s_or_b32 s78, s78, s33")
    a("s_and_b32 s79, s32, 1"); a("s_lshl_b32 s79, s79, 12"); a("s_and_b32 s33, s32, 6"); a("s_lshl_b32 s33, s33, 13"); a("s_or_b32 s79, s79, s33")
    gemm.call(a, f"core_F{MT}")
    a("v_and_b32 v26, 15, v0"); a("v_lshlrev_b32 v26, 12, v26"); a("v_lshrrev_b32 v25, 4, v0"); a("v_lshl_add_u32 v20, v25, 4, v26")
    a(f"s_lshl_b32 s32, s72, {16 + sh}"); a("s_lshl_b32 s33, s73, 8"); a("s_add_u32 s32, s32, s33"); a("v_add_u32 v20, s32, v20"); a("v_add_u32 v21, 0x10000, v20")
    a(f"s_lshl_b32 s32, s31, {18 + sh}"); a("s_lshl_b32 s33, s30, 9"); a("s_add_u32 s32, s32, s33"); a("s_add_u32 s32, s32, 2048"); a("s_add_u32 s34, s24, s32"); a("s_addc_u32 s35, s25, 0")
    gemm.epi_frag_store(a, "s[34:35]", "sc1", MT, 64)

def softmax_cols(a, regs, t):
    a(f"v_max3_f32 v{t}, v{regs[0]}, v{regs[1]}, v{regs[2]}")
    rest = regs[3:]
    while len(rest) >= 2:
        a(f"v_max3_f32 v{t}, v{t}, v{rest[0]}, v{rest[1]}"); rest = rest[2:]
    if rest: a(f"v_max_f32 v{t}, v{t}, v{rest[0]}")
    for sw in ("16", "32"):
        a(f"v_mov_b32 v{t+1}, v{t}"); a("s_nop 1"); a(f"v_permlane{sw}_swap_b32 v{t}, v{t+1}"); a(f"v_max_f32 v{t}, v{t}, v{t+1}")
    a(f"v_mul_f32 v{t}, s40, v{t}")
    for r in regs: a(f"v_fma_f32 v{r}, v{r}, s40, -v{t}")
    for r in regs: a(f"v_exp_f32 v{r}, v{r}")

def task_g2a(a):
    a("s_and_b32 s32, s75, 4"); a("s_and_b32 s33, s75, 1"); a("s_lshl_b32 s33, s33, 1"); a("s_or_b32 s32, s32, s33"); a("s_bfe_u32 s33, s75, 0x10001"); a("s_or_b32 s32, s32, s33")
    gemm.setup_a_rowmajor(a, 2048, 4, "s32"); gemm.setup_w(a, 8192)
    a("s_lshl_b32 s32, s31, 19"); a("s_add_u32 s80, s10, s32"); a("s_addc_u32 s81, s11, 0")
    a("s_lshl_b32 s32, s30, 9"); a("s_add_u32 s82, s14, s32"); a("s_addc_u32 s83, s15, 0")
    a("s_mov_b32 s66, 7")
    gemm.call(a, "core_T")
    wstamp(a, 0)
    a("s_lshl_b32 s38, s31, 3"); a("s_and_b32 s33, s72, 2"); a("s_add_u32 s38, s38, s33"); a("s_add_u32 s38, s38, s72"); a("s_mov_b32 s39, s38"); a("s_lshl_b32 s38, s38, 5")
    a("s_lshl_b32 s42, s30, 1"); a("s_add_u32 s42, s42, s73"); a("s_add_u32 s38, s38, s42")
    a("s_lshl_b32 s34, s38, 14"); a(f"s_add_u32 s34, s34, {rec.WS_KX}"); rec.near(a, 32, "s34", "s22", 28, "s35", kv=True)
    rec.v_from_k(a, 34, 32)
    a("v_lshlrev_b32 v16, 4, v0"); a("v_add_u32 v17, 0x1000, v16"); a("v_add_u32 v18, 0x100000, v16"); a("v_add_u32 v19, 0x101000, v16")
    a("s_mul_i32 s43, s75, 20480")
    kp, kok = a.newlabel("kp"), a.newlabel("ko")
    rec.kv_tile(a, "s47", "s39", "s48"); a("s_add_u32 s49, s39, 2"); rec.kv_tile(a, "s49", "s49", "s48"); a("s_sub_u32 s49, s49, s47")
    a("s_lshl_b32 s47, s47, 7"); a("s_lshl_b32 s48, s30, 2"); a("s_add_u32 s47, s47, s48"); a(f"s_add_u32 s47, s47, {rec.WS_FLAG + 96*128}")
    a("v_and_b32 v22, s49, v0"); a("v_lshl_add_u32 v22, v22, 7, s47"); a("v_mov_b32 v23, 0")
    a.label(kp)
    a("global_load_dword v26, v22, s[28:29] sc1"); a("global_load_dword v27, v22, s[28:29] offset:64 sc1")
    a(f"global_load_dword v24, v23, s[26:27] offset:{D_PROG} sc1"); a("s_waitcnt vmcnt(0)")
    a("v_or_b32 v26, v26, v27"); a("v_cmp_ne_u32 vcc, 0, v26"); a(f"s_cbranch_vccz {kok}")
    a("s_sleep 12")
    a("s_add_u32 s46, s46, 1"); a(f"s_cmp_lt_u32 s46, {WSPIN}"); a(f"s_cbranch_scc1 {kp}")
    a("s_branch w_fail")
    a.label(kok)
    def take_progress():
        a("v_readfirstlane_b32 s48, v24"); a("s_nop 0")
        a("s_max_u32 s48, s48, 1"); a("s_sub_u32 s48, s48, 1")
    take_progress()
    a("s_barrier")
    def m_wait(seg):
        lp, ok, nf = a.newlabel("ap"), a.newlabel("ao"), a.newlabel("nf")
        a.label(lp)
        a(f"s_cmp_lt_u32 {seg}, s48"); a(f"s_cbranch_scc1 {ok}")
        a("s_cmp_lt_u32 s48, 59"); a(f"s_cbranch_scc1 {nf}")
        a("s_sleep 2")
        a("global_load_dword v24, v31, s[28:29] sc1"); a("s_waitcnt vmcnt(0)")
        a("v_readlane_b32 s49, v24, 0"); a("v_readlane_b32 s50, v24, 1"); a("s_min_i32 s49, s49, s50")
        a("v_readlane_b32 s50, v24, 2"); a("s_min_i32 s49, s49, s50"); a("v_readlane_b32 s50, v24, 3"); a("s_min_i32 s49, s49, s50")
        a("s_add_u32 s49, s49, 1"); a("s_max_u32 s48, s48, s49")
        a("s_add_u32 s46, s46, 1"); a(f"s_cmp_lt_u32 s46, {WSPIN}"); a(f"s_cbranch_scc1 {lp}")
        a("s_branch w_fail")
        a.label(nf)
        a("s_sleep 8")
        a(f"global_load_dword v24, v23, s[26:27] offset:{D_PROG} sc1"); a("s_waitcnt vmcnt(0)")
        take_progress()
        a("s_add_u32 s46, s46, 1"); a(f"s_cmp_lt_u32 s46, {WSPIN}"); a(f"s_cbranch_scc1 {lp}")
        a("s_branch w_fail")
        a.label(ok)
    def kv_loads(sg):
        for kt in range(2):
            for jj in range(4):
                a(f"global_load_dwordx4 {R('a', sg*32 + (kt*4 + jj)*4)}, v{16 + sg*2 + kt}, s[32:33] offset:{jj*1024} sc1")
            a(f"s_add_u32 m0, s43, {sg*10240 + kt*4096}"); a("s_nop 0")
            for jj in range(4):
                a(f"global_load_lds_dwordx4 v{16 + sg*2 + kt}, s[34:35] offset:{jj*1024} sc1")
    a("s_and_b32 s47, s42, 15"); a("s_lshl_b32 s47, s47, 9"); a("s_lshr_b32 s49, s42, 4"); a("s_lshl_b32 s49, s49, 14"); a("s_add_u32 s47, s47, s49")
    a("s_xor_b32 s49, s22, 1"); a("s_lshl_b32 s49, s49, 13"); a("s_add_u32 s47, s47, s49"); a(f"s_add_u32 s47, s47, {rec.WS_HW}")
    a("v_and_b32 v31, 3, v0"); a("v_lshl_add_u32 v31, v31, 7, s47")
    a("s_max_u32 s54, s39, 5"); a("s_sub_u32 s54, s54, 5")
    m_wait("s54")
    kv_loads(0)
    pack_frags(a)
    a("s_lshr_b32 s50, s38, 1"); a("s_lshl_b32 s50, s50, 14"); a("s_and_b32 s51, s38, 1"); a("s_lshl_b32 s51, s51, 12"); a("s_add_u32 s50, s50, s51"); a(f"s_add_u32 s50, s50, {rec.WS_KMVM}")
    rec.near(a, 52, "s50", "s22", 28, "s51")
    a("v_and_b32 v28, 7, v0"); a("v_lshlrev_b32 v28, 4, v28"); a("v_lshrrev_b32 v24, 4, v0"); a("v_lshl_add_u32 v28, v24, 7, v28")
    XB = (108, 32)
    def m_loads(sg):
        for jj in range(4): a(f"global_load_dwordx4 {R('v', XB[sg] + 4*jj)}, v28, s[52:53] offset:{jj*512} sc1")
        for i in range(2): a(f"global_load_dwordx4 {R('v', XB[sg] + 16 + 4*i)}, v16, s[52:53] offset:{2048 + i*1024} sc1")
        a("s_add_u32 s52, s52, 0x80000"); a("s_addc_u32 s53, s53, 0")
    def seg_signal(seg):
        a(f"s_lshl_b32 s47, {seg}, 7"); a("s_lshl_b32 s49, s42, 2"); a("s_add_u32 s47, s47, s49"); a(f"s_add_u32 s47, s47, {rec.WS_FLAG}")
        a(f"s_lshr_b32 s50, {seg}, 1"); a("s_lshl_b32 s50, s50, 14"); a(f"s_and_b32 s49, {seg}, 1"); a("s_lshl_b32 s49, s49, 12"); a("s_add_u32 s50, s50, s49")
        a("s_lshl_b32 s49, s42, 7"); a("s_add_u32 s50, s50, s49"); a("s_xor_b32 s49, s22, 1"); a("s_lshl_b32 s49, s49, 13"); a("s_add_u32 s50, s50, s49")
        a(f"s_add_u32 s50, s50, {rec.WS_FLAG2 - 24*16384}")
        a(f"s_cmp_ge_u32 {seg}, 48"); a("s_cselect_b32 s47, s50, s47"); a("v_mov_b32 v29, s47")
        a("s_waitcnt vmcnt(0)")
        a("s_mov_b64 exec, 1")
        a("global_store_dword v29, v23, s[28:29] sc1")
        a("s_mov_b64 exec, -1")
    early, late = a.newlabel("e0"), a.newlabel("l0")
    a("s_cmp_lt_u32 s39, s48"); a(f"s_cbranch_scc1 {early}")
    kv_loads(1); m_wait("s39"); m_loads(0)
    a("s_waitcnt vmcnt(0)")
    a(f"s_branch {late}")
    a.label(early)
    m_loads(0); kv_loads(1)
    a.label(late)
    a("v_lshrrev_b32 v24, 4, v0"); a("v_lshlrev_b32 v24, 2, v24"); a("v_and_b32 v25, 15, v0"); a("v_mov_b32 v26, 0xff800000")
    for i in range(4):
        a(f"v_add_u32 v27, {i}, v24"); a("v_cmp_gt_u32 vcc, v27, v25"); a("s_nop 1"); a(f"v_cndmask_b32 v{96+i}, 0, v26, vcc")
    a("v_cmp_gt_u32 vcc, 32, v0"); a("s_nop 1")
    for i in range(4): a(f"v_cndmask_b32 v{100+i}, 0, v26, vcc")
    for i in range(4): a(f"v_mov_b32 v{104+i}, 0x3f803f80")
    a("v_and_b32 v24, 3, v0"); a("v_lshrrev_b32 v25, 2, v0")
    a("v_lshlrev_b32 v18, 4, v25"); a("v_lshl_add_u32 v18, v24, 8, v18"); a("v_add_u32 v18, s43, v18")
    a("v_and_b32 v25, 7, v25"); a("v_lshlrev_b32 v19, 4, v25"); a("v_lshl_add_u32 v19, v24, 7, v19"); a("v_add_u32 v19, s43, v19")
    a("v_add_u32 v20, s43, v16")
    a("v_mov_b32 v21, v16"); a("v_add_u32 v22, 0x40000, v21")
    a("s_lshl_b32 s50, s39, 19"); a("s_lshl_b32 s51, s30, 14"); a("s_add_u32 s50, s50, s51"); a("s_lshl_b32 s51, s73, 12"); a("s_add_u32 s50, s50, s51"); a(f"s_add_u32 s50, s50, {WS_O}")
    wside(a, 36, "s50", "s51")
    a(f"s_mov_b32 s40, {SCL}")
    a("s_add_u32 s54, s39, 2")
    for sg in range(2):
        lo = sg*10240
        xb = XB[sg]
        if sg == 0:
            a("s_waitcnt vmcnt(16)")
        else:
            have = a.newlabel("h1")
            a("s_cmp_eq_u32 s55, 1"); a(f"s_cbranch_scc1 {have}")
            seg_signal("s39"); m_wait("s54"); tstamp(a, 0, 2, 3); m_loads(1)
            a("s_waitcnt vmcnt(0)"); tstamp(a, 1, 2, 3)
            a.label(have)
            a("s_waitcnt vmcnt(8)")
        for i in range(2): a(f"ds_write_b128 v20, {R('v', xb + 16 + 4*i)} offset:{lo + 8192 + i*1024}")
        tiles = [(132, 0, 0, "v[96:99]"), (136, 2, 0, "v[100:103]"), (140, 0, 1, "0"), (144, 1, 1, "v[96:99]"), (148, 2, 1, "v[100:103]")]
        for jj in range(4):
            for d, kt, qt, C in tiles:
                A = R('v', xb + 4*jj) if kt == 2 else R('a', sg*32 + (kt*4 + jj)*4)
                a(f"v_mfma_f32_16x16x32_bf16 {R('v', d)}, {A}, {frag(2*sg + qt, jj)}, " + (C if jj == 0 else R('v', d)))
        if sg == 0:
            no = a.newlabel("n1")
            a("s_mov_b32 s55, 0")
            a("s_cmp_lt_u32 s54, s48"); a(f"s_cbranch_scc0 {no}")
            m_loads(1); a("s_mov_b32 s55, 1")
            a.label(no)
        def vread(jj):
            b = 64 + (jj & 1)*12
            for hf in range(2):
                for kt in range(2):
                    a(f"ds_read_b64_tr_b16 {R('a', b + hf*4 + kt*2, 2)}, v18 offset:{lo + kt*4096 + jj*1024 + hf*8}")
                a(f"ds_read_b64_tr_b16 {R('a', b + 8 + hf*2, 2)}, v19 offset:{lo + 8192 + jj*512 + hf*8}")
        vread(0)
        a("s_nop 3")
        softmax_cols(a, list(range(132, 140)), 24)
        softmax_cols(a, list(range(140, 152)), 24)
        a("s_nop 0")
        a("v_cvt_pk_bf16_f32 v108, v132, v133"); a("v_cvt_pk_bf16_f32 v109, v134, v135"); a("v_mov_b32 v110, 0"); a("v_mov_b32 v111, 0")
        a("v_cvt_pk_bf16_f32 v112, v136, v137"); a("v_cvt_pk_bf16_f32 v113, v138, v139")
        for i in range(4): a(f"v_cvt_pk_bf16_f32 v{116+i}, v{140+2*i}, v{141+2*i}")
        a("v_cvt_pk_bf16_f32 v114, v148, v149"); a("v_cvt_pk_bf16_f32 v115, v150, v151")
        P0 = ["v[108:111]", "v[116:119]"]; P1 = ["v[112:113]", "v[114:115]"]
        a("s_nop 1")
        for qt in range(2): a(f"v_mfma_f32_16x16x32_bf16 {R('v', 120 + 4*qt)}, v[104:107], {P0[qt]}, 0")
        a("s_nop 5")
        for qt in range(2): a(f"v_mfma_f32_16x16x16_bf16 {R('v', 120 + 4*qt)}, v[104:105], {P1[qt]}, {R('v', 120 + 4*qt)}")
        if sg == 1:
            done = a.newlabel("d0")
            a("s_cmp_eq_u32 s55, 1"); a(f"s_cbranch_scc0 {done}")
            seg_signal("s39")
            a.label(done)
        a("s_nop 7")
        a("v_rcp_f32 v24, v120"); a("v_rcp_f32 v26, v124"); a("s_nop 0"); a("v_mov_b32 v25, v24"); a("v_mov_b32 v27, v26")
        for jj in range(4):
            b = 64 + (jj & 1)*12
            if jj < 3:
                vread(jj + 1); a("s_waitcnt lgkmcnt(6)")
            else:
                a("s_waitcnt lgkmcnt(0)")
            for qt in range(2):
                for hf in range(2):
                    a(f"v_mfma_f32_16x16x32_bf16 {R('v', 132 + (qt*2 + hf)*4)}, {R('a', b + hf*4)}, {P0[qt]}, 0")
            a("s_nop 2")
            for qt in range(2):
                for hf in range(2):
                    D = R('v', 132 + (qt*2 + hf)*4)
                    a(f"v_mfma_f32_16x16x16_bf16 {D}, {R('a', b + 8 + hf*2, 2)}, {P1[qt]}, {D}")
            a("s_nop 7")
            for qt in range(2):
                o = 132 + qt*8
                for i in range(0, 8, 2): a(f"v_pk_mul_f32 v[{o+i}:{o+i+1}], v[{o+i}:{o+i+1}], v[{24+2*qt}:{25+2*qt}]")
                for i in range(4): a(f"v_cvt_pk_bf16_f32 v{152 + 4*qt + i}, v{o+2*i}, v{o+2*i+1}")
                a(f"global_store_dwordx4 v{21+qt}, {R('v', 152 + 4*qt)}, s[36:37] offset:{jj*1024} sc1")
        if sg == 0:
            a("s_add_u32 s36, s36, 0x100000"); a("s_addc_u32 s37, s37, 0")
    tstamp(a, 2, 2, 3)
    seg_signal("s54")
    tstamp(a, 3, 2, 3)

def sreg(i): return R('a', 4*i) if i < 24 else R('v', 128 + 4*(i - 24))
def wot_wait(a):
    lp, ok = a.newlabel("tl"), a.newlabel("to")
    a("s_cmp_lg_u32 s75, 0"); a(f"s_cbranch_scc1 {ok}")
    a("v_lshlrev_b32 v18, 2, v0"); a(f"v_add_u32 v18, {rec.WS_FLAG + 108*128}, v18")
    a.label(lp)
    a("global_load_dword v19, v18, s[28:29] sc1"); a("s_waitcnt vmcnt(0)")
    a("v_cmp_ne_u32 vcc, 0, v19"); a(f"s_cbranch_vccz {ok}")
    a("s_sleep 8")
    a("s_add_u32 s46, s46, 1"); a(f"s_cmp_lt_u32 s46, {WSPIN}"); a(f"s_cbranch_scc1 {lp}")
    a("s_branch w_fail")
    a.label(ok)

def task_stream(a):
    wot_wait(a)
    a("s_barrier")
    a("s_and_b32 s42, s45, 1")
    a("s_lshl_b32 s43, s42, 3"); a("s_add_u32 s43, s43, s75")
    a("s_lshr_b32 s32, s45, 1"); a("s_lshl_b32 s32, s32, 20"); a("s_lshl_b32 s33, s43, 15"); a("s_add_u32 s32, s32, s33"); a(f"s_add_u32 s32, s32, {rec.WS_WOT}")
    rec.near_bit(a, "s33", "s32", "s22", True); a("s_add_u32 s32, s32, s33")
    a("v_lshlrev_b32 v10, 4, v0"); a("v_add_u32 v6, s32, v10")
    for cg in range(2):
        for q in range(4):
            a(f"v_add_u32 v2, {cg*rec.WOT_CG + (q >> 1)*16384 + (q & 1)*4096}, v6")
            for j in range(4):
                k = q*2 + (j >> 1)
                a(f"global_load_dwordx4 {sreg(k*4 + cg*2 + (j & 1))}, v2, s[28:29] offset:{j*1024} sc1")
    a("s_lshl_b32 s32, s43, 14"); a("v_add_u32 v2, s32, v10"); a("v_add_u32 v3, 0x1000, v2"); a("v_add_u32 v4, 0x40000, v2"); a("v_add_u32 v5, 0x41000, v2")
    a("s_lshl_b32 s33, s75, 13"); a("v_add_u32 v11, s33, v10")
    a("s_lshr_b32 s33, s75, 2"); a("s_xor_b32 s47, s33, s42")
    a("s_xor_b32 s36, s45, s47"); a("s_and_b32 s33, s36, 1"); a("s_lshl_b32 s33, s33, 12"); a("s_lshr_b32 s36, s36, 1"); a("s_lshl_b32 s36, s36, 14"); a("s_add_u32 s36, s36, s33")
    a("s_and_b32 s33, s75, 3"); a("s_lshl_b32 s33, s33, 10"); a("s_add_u32 s36, s36, s33"); a("v_add_u32 v1, s36, v10")
    a("s_bfe_u32 s32, s75, 0x10001"); a("s_lshl_b32 s36, s32, 12"); a("s_lshr_b32 s33, s75, 2"); a("s_lshl_b32 s33, s33, 11"); a("s_add_u32 s36, s36, s33")
    a("s_and_b32 s33, s75, 1"); a("s_lshl_b32 s37, s33, 10"); a("s_add_u32 s36, s36, s37"); a("v_add_u32 v12, s36, v10")
    a("s_lshl_b32 s32, s32, 16"); a("s_lshl_b32 s33, s33, 3"); a("s_add_u32 s32, s32, s33"); a("s_lshl_b32 s33, s45, 6"); a("s_add_u32 s32, s32, s33"); a(f"s_add_u32 s32, s32, {2048 + 96*65536}")
    a("v_and_b32 v13, 15, v0"); a("v_lshlrev_b32 v13, 12, v13"); a("v_lshrrev_b32 v14, 4, v0"); a("v_lshl_add_u32 v13, v14, 4, v13"); a("v_add_u32 v13, s32, v13")
    a("v_and_b32 v9, 1, v0"); a("v_lshlrev_b32 v9, 7, v9"); a("s_lshl_b32 s32, s43, 8"); a("s_xor_b32 s33, s22, 1"); a("s_lshl_b32 s33, s33, 13"); a("s_add_u32 s32, s32, s33")
    a(f"s_add_u32 s32, s32, {rec.WS_FLAG2}"); a("v_add_u32 v9, s32, v9")
    a("v_mov_b32 v8, 0")
    wstamp(a, 0)
    def pick(dst):
        a(f"s_ff1_i32_b32 {dst}, s34"); a(f"s_bitset0_b32 s34, {dst}")
    def base(dst, item):
        a(f"s_and_b32 s32, {item}, 15"); a("s_lshl_b32 s32, s32, 19"); a(f"s_add_u32 s32, s32, {WS_O + 96*262144}"); wside(a, dst, "s32", "s33")
    def inbox(item):
        a(f"s_lshl_b32 s32, {item}, 18"); a(f"s_add_u32 s32, s32, {WS_INBOX}"); wside(a, 50, "s32", "s33")
    def poll(item):
        a(f"s_bfe_u32 s32, {item}, 0x30001"); a("s_lshl_b32 s32, s32, 14"); a(f"s_and_b32 s33, {item}, 1"); a("s_lshl_b32 s33, s33, 12"); a("s_add_u32 s32, s32, s33")
        a("v_add_u32 v14, s32, v9")
        a("global_load_dword v15, v14, s[28:29] sc1")
    def oload(k):
        a(f"global_load_dwordx4 {R('v', 32 + k*4)}, v{2 + (k >> 2)}, s[38:39] offset:{(k & 3)*1024} sc1")
    def sum8(item):
        lab, j = a.newlabel("fn"), a.newlabel("fj")
        a("s_waitcnt lgkmcnt(0)"); a("s_barrier")
        a("ds_read_b128 v[112:115], v12")
        for part in ((1, 2, 3, 4), (5, 6, 7)):
            for i, m in enumerate(part): a(f"ds_read_b128 v[{96+4*i}:{99+4*i}], v12 offset:{m*8192}")
            for i, m in enumerate(part):
                a(f"s_waitcnt lgkmcnt({len(part) - 1 - i})")
                for h in range(2): a(f"v_pk_add_f32 v[{112+2*h}:{113+2*h}], v[{112+2*h}:{113+2*h}], v[{96+4*i+2*h}:{97+4*i+2*h}]")
        a("v_xor_b32 v12, 0x10000, v12")
        a("s_cmp_eq_u32 s47, 0"); a(f"s_cbranch_scc1 {lab}")
        inbox(item)
        for i in range(4): a(f"v_min_u32 v{112+i}, -2, v{112+i}")
        a("global_store_dwordx4 v1, v[112:115], s[50:51] sc1")
        a(f"s_branch {j}")
        a.label(lab)
        a(f"s_mov_b32 s52, {item}")
        a.label(j)
    def ask():
        no = a.newlabel("an")
        a("s_cmp_lt_i32 s52, 0"); a(f"s_cbranch_scc1 {no}")
        inbox("s52")
        a("global_load_dwordx4 v[120:123], v1, s[50:51] sc1")
        for i in range(4): a(f"v_mov_b32 v{116+i}, v{112+i}")
        a("s_mov_b32 s53, s52"); a("s_mov_b32 s52, -1")
        a.label(no)
    def join(wait):
        lp, ok, no = a.newlabel("jl"), a.newlabel("jo"), a.newlabel("jn")
        a("s_cmp_lt_i32 s53, 0"); a(f"s_cbranch_scc1 {no}")
        a("s_lshl_b32 s32, s53, 17"); a("s_add_u32 s40, s24, s32"); a("s_addc_u32 s41, s25, 0")
        if wait: a("s_waitcnt vmcnt(0)")
        a.label(lp)
        a("v_max3_u32 v124, v120, v121, v122"); a("v_max_u32 v124, v124, v123"); a("v_cmp_eq_u32 vcc, -1, v124"); a(f"s_cbranch_vccz {ok}")
        a("global_load_dwordx4 v[120:123], v1, s[50:51] sc1"); a("s_waitcnt vmcnt(0)")
        a("s_add_u32 s46, s46, 1"); a(f"s_cmp_lt_u32 s46, {WSPIN}"); a(f"s_cbranch_scc1 {lp}")
        a("s_branch w_fail")
        a.label(ok)
        a("v_pk_add_f32 v[116:117], v[116:117], v[120:121]"); a("v_pk_add_f32 v[118:119], v[118:119], v[122:123]")
        a("v_cvt_pk_bf16_f32 v120, v116, v117"); a("v_cvt_pk_bf16_f32 v121, v118, v119")
        a("global_store_dwordx2 v13, v[120:121], s[40:41]")
        a("s_mov_b32 s53, -1")
        a.label(no)
    def pending():
        lab = a.newlabel("pd")
        a("s_cmp_lt_i32 s35, 0"); a(f"s_cbranch_scc1 {lab}")
        sum8("s35")
        a.label(lab)
    def mm(k, wait):
        a(f"s_waitcnt vmcnt({wait})")
        for ct in range(4):
            D = R('v', 16 + ct*4)
            a(f"v_mfma_f32_16x16x32_bf16 {D}, {sreg((k & 7)*4 + ct)}, {R('v', 32 + k*4)}, " + ("0" if k & 7 == 0 else D))
    def park(tt):
        a("s_nop 4")
        for f in range(4): a(f"ds_write_b128 v11, {R('v', 16 + f*4)} offset:{tt*4096 + f*1024}")
        if tt: a("v_xor_b32 v11, 0x10000, v11")
        a("s_waitcnt lgkmcnt(0)")
    pick("s31"); pick("s36")
    a("s_mov_b32 s37, 0"); a("s_mov_b32 s52, -1"); a("s_mov_b32 s53, -1"); a("s_mov_b64 s[50:51], s[28:29]")
    a.label("st_wait")
    a("s_add_u32 s32, s31, 49"); a("s_min_u32 s32, s32, 63"); a("s_cmp_le_u32 s32, s37"); a("s_cbranch_scc1 st_near")
    a("s_sleep 6")
    a(f"global_load_dword v7, v8, s[26:27] offset:{D_PROG} sc1"); a("s_waitcnt vmcnt(0)")
    a("v_readfirstlane_b32 s37, v7")
    a("s_branch st_more")
    a.label("st_near")
    poll("s31"); a("s_waitcnt vmcnt(0)")
    a("v_cmp_ne_u32 vcc, 0, v15"); a("s_cbranch_vccz st_rdy")
    a("s_sleep 2")
    a.label("st_more")
    a("s_add_u32 s46, s46, 1"); a(f"s_cmp_lt_u32 s46, {WSPIN}"); a("s_cbranch_scc1 st_wait")
    a("s_branch w_fail")
    a.label("st_rdy")
    tstamp(a, 4)
    base(38, "s31")
    poll("s36")
    for k in range(16): oload(k)
    a("s_mov_b32 s35, -1")
    a.label("st_item")
    a("s_mov_b32 s30, s31"); a("s_mov_b32 s31, s36"); pick("s36")
    a("s_waitcnt vmcnt(16)")
    a("v_cmp_ne_u32 vcc, 0, v15")
    a("s_cmp_lt_i32 s31, 0"); a("s_cbranch_scc1 st_slow")
    a("s_cbranch_vccnz st_slow")
    base(38, "s31")
    poll("s36")
    for k in range(16):
        mm(k, 16)
        if k == 14: join(False); ask()
        oload(k)
        if k == 2: pending()
        if k == 7: park(0)
    park(1)
    a("s_mov_b32 s35, s30")
    a("s_branch st_item")
    a.label("st_slow")
    pending()
    for k in range(16):
        mm(k, 15 - k)
        if k == 7: park(0)
    tstamp(a, 5)
    park(1); join(False); ask(); sum8("s30"); join(True); ask(); join(True)
    tstamp(a, 6)
    a("s_cmp_lt_i32 s31, 0"); a("s_cbranch_scc0 st_wait")

def emit_mega(a, prof=False):
    kernel_begin(a, NAME + "_kernel")
    a("s_cmp_ge_u32 s2, 256"); a("s_cbranch_scc1 w_exit")
    if "span" in rec.OPT: a("s_memrealtime s[100:101]")
    load_ptrs(a)
    a("s_getreg_b32 s44, hwreg(HW_REG_XCC_ID)"); a("s_and_b32 s44, s44, 7")
    if "fakex" in rec.OPT:
        a("s_bitcmp1_b32 s2, 3"); a("s_cbranch_scc0 fake_done")
        a("s_cmp_eq_u32 s44, 1"); a("s_cselect_b32 s44, 5, s44"); a("s_cmp_eq_u32 s44, 2"); a("s_cselect_b32 s44, 7, s44")
        a.label("fake_done")
    a("v_lshrrev_b32 v1, 6, v0"); a("v_mov_b32 v2, 0"); a("s_mov_b32 s46, 0")
    a("v_readfirstlane_b32 s75, v1")
    a("s_waitcnt lgkmcnt(0)")
    a("s_add_u32 s28, s28, 0x1fffff"); a("s_addc_u32 s29, s29, 0"); a("s_and_b32 s28, s28, 0xffe00000")
    if "nowarm" not in rec.OPT:
        a("s_cmp_eq_u32 s75, 2"); a("s_cbranch_scc0 no_warm")
        a("s_getpc_b64 s[30:31]")
        a.label("warm_pc")
        a("s_lshr_b32 s32, s2, 3"); a("s_lshl_b32 s32, s32, 12"); a("v_and_b32 v3, 63, v0"); a("v_lshl_add_u32 v3, v3, 6, s32")
        a("v_min_u32 v3, code_end-warm_pc-4, v3"); a("v_and_b32 v3, -4, v3")
        a("global_load_dword a95, v3, s[30:31]")
        a.label("no_warm")
    if rec.PAR["EPF"]:
        a("s_and_b32 s32, s75, s44"); a("s_bitcmp1_b32 s32, 2"); a("s_cbranch_scc0 no_epf")
        a("s_lshr_b32 s33, s2, 3"); a("s_and_b32 s34, s75, 3"); a("v_and_b32 v3, 63, v0")
        a("s_lshr_b32 s35, s33, 3"); a("s_lshl_b32 s35, s35, 2"); a("s_add_u32 s35, s35, s34"); a("s_lshl_b32 s35, s35, 17")
        a("s_and_b32 s36, s44, 1"); a("s_lshl_b32 s36, s36, 3"); a("s_and_b32 s37, s33, 7"); a("s_add_u32 s36, s36, s37"); a("s_lshl_b32 s36, s36, 9"); a("s_add_u32 s35, s35, s36")
        a("v_lshrrev_b32 v4, 2, v3"); a("v_lshlrev_b32 v4, 13, v4"); a("v_and_b32 v5, 3, v3"); a("v_lshl_add_u32 v4, v5, 7, v4"); a("v_add_u32 v4, s35, v4")
        a("s_bitcmp1_b32 s44, 1"); a("s_cselect_b64 s[30:31], s[18:19], s[16:17]")
        a("s_lshl_b32 s33, s33, 2"); a("s_add_u32 s33, s33, s34"); a("s_lshl_b32 s33, s33, 13"); a("v_lshl_add_u32 v3, v3, 7, s33")
        a("global_load_dword a95, v4, s[30:31]")
        a("global_load_dword a95, v3, s[10:11]")
        a.label("no_epf")
    a("s_cmp_eq_u32 s75, 1"); a("s_cbranch_scc0 no_probe")
    a("s_mov_b32 s47, 0")
    a("s_cmp_lt_u32 s44, 4"); a("s_cbranch_scc0 probe_done")
    a(f"s_add_u32 s30, s28, {rec.WS_PROBE}"); a("s_addc_u32 s31, s29, 0")
    a("s_lshr_b32 s32, s2, 5"); a("s_and_b32 s33, s32, 1"); a("s_lshr_b32 s32, s32, 1"); a("s_lshl_b32 s32, s32, 2"); a("s_add_u32 s32, s32, s33"); a("s_lshl_b32 s32, s32, 12")
    a("s_and_b32 s33, s2, 31"); a("s_lshl_b32 s33, s33, 7"); a("s_add_u32 s32, s32, s33")
    a("v_mov_b32 v3, s32")
    a("s_mov_b64 exec, 1")
    a("s_mov_b32 s38, -1"); a("s_mov_b32 s39, -1"); a("s_mov_b32 s40, 6")
    a.label("probe_loop")
    a("s_memtime s[34:35]"); a("s_waitcnt lgkmcnt(0)")
    a("global_store_dword v3, v2, s[30:31] sc1"); a("s_waitcnt vmcnt(0)")
    a("s_memtime s[36:37]"); a("s_waitcnt lgkmcnt(0)")
    a("s_sub_u32 s36, s36, s34"); a("s_min_u32 s36, s36, s38"); a("s_mov_b32 s38, s39"); a("s_mov_b32 s39, s36")
    a("v_xor_b32 v3, 0x2000, v3")
    a("s_sub_u32 s40, s40, 1"); a("s_cmp_lg_u32 s40, 0"); a("s_cbranch_scc1 probe_loop")
    a("s_mov_b64 exec, -1")
    a("s_cmp_lt_u32 s39, s38"); a("s_cselect_b32 s47, 1, 0")
    a.label("probe_done")
    a("v_mov_b32 v3, s47"); a("ds_write_b32 v2, v3 offset:4")
    a.label("no_probe")
    a("s_cmp_lg_u32 s75, 0"); a("s_cbranch_scc1 role_wait")
    a("s_and_b32 s32, s44, 3"); a("s_lshl_b32 s32, s32, 2"); a("s_and_b32 s33, s44, 4"); a("s_lshl_b32 s33, s33, 5"); a("s_add_u32 s32, s32, s33")
    a("v_mov_b32 v3, s32"); a("v_mov_b32 v4, 1")
    a("s_mov_b64 exec, 1")
    a("global_atomic_add v5, v3, v4, s[26:27] sc0 sc1"); a("s_waitcnt vmcnt(0)")
    a("v_readfirstlane_b32 s45, v5")
    a("s_cmp_lt_u32 s45, 32"); a("s_cbranch_scc1 role_have")
    a(f"v_mov_b32 v3, {D_OVF}")
    a("global_atomic_add v5, v3, v4, s[26:27] sc0 sc1"); a("s_waitcnt vmcnt(0)")
    a("v_readfirstlane_b32 s45, v5")
    a.label("role_poll")
    a("global_load_dwordx4 v[8:11], v2, s[26:27] sc1"); a("global_load_dwordx4 v[12:15], v2, s[26:27] offset:128 sc1"); a("s_waitcnt vmcnt(0)")
    a("s_mov_b32 s33, 0")
    for i in range(8):
        a(f"v_readfirstlane_b32 s{34+i}, v{8+i}"); a(f"s_add_u32 s33, s33, s{34+i}")
    a("s_cmp_eq_u32 s33, 256"); a("s_cbranch_scc1 role_pick")
    a("s_sleep 8"); a("s_add_u32 s46, s46, 1"); a(f"s_cmp_lt_u32 s46, {WSPIN}"); a("s_cbranch_scc1 role_poll")
    a("s_mov_b64 exec, -1"); a("s_branch w_fail")
    a.label("role_pick")
    for i in range(8):
        a(f"s_min_u32 s33, s{34+i}, 32"); a("s_add_u32 s45, s45, s33"); a(f"s_mov_b32 s44, {i}")
        if i < 7:
            a("s_cmp_lt_u32 s45, 32"); a("s_cbranch_scc1 role_have"); a("s_sub_u32 s45, s45, 32")
    a.label("role_have")
    a("s_lshl_b32 s32, s44, 5"); a("s_or_b32 s32, s32, s45"); a("v_mov_b32 v3, s32")
    a("ds_write_b32 v2, v3")
    a("s_mov_b64 exec, -1")
    a.label("role_wait")
    a("s_waitcnt lgkmcnt(0)"); a("s_barrier")
    a("ds_read_b64 v[4:5], v2"); a("s_waitcnt lgkmcnt(0)")
    a("v_readfirstlane_b32 s32, v4"); a("v_readfirstlane_b32 s47, v5")
    a("s_cmp_lg_u32 s75, 0"); a("s_cbranch_scc1 voted")
    a("s_cmp_ge_u32 s32, 128"); a("s_cbranch_scc1 voted")
    a("s_and_b32 s47, s47, 1"); a("s_lshl_b32 s47, s47, 16"); a("s_or_b32 s47, s47, 1"); a("v_mov_b32 v3, s47")
    a("s_mov_b64 exec, 1")
    a(f"global_atomic_add v2, v3, s[26:27] offset:{rec.DBG_VOTE} sc1")
    a("s_mov_b64 exec, -1")
    a.label("voted")
    a("s_barrier")
    if "span" in rec.OPT:
        a("s_and_b32 s98, s2, 0x38"); a("s_or_b32 s98, s98, s75"); a("s_cmp_lg_u32 s98, 0"); a("s_cbranch_scc1 span1")
        a("s_memrealtime s[98:99]"); a("s_waitcnt lgkmcnt(0)"); a("s_not_b32 s100, s100"); a("v_mov_b32 v4, s100"); a("v_mov_b32 v5, s98")
        a("s_mov_b64 exec, 1"); a("global_atomic_umax v2, v4, s[26:27] offset:48 sc1"); a("global_atomic_umax v2, v5, s[26:27] offset:52 sc1"); a("s_mov_b64 exec, -1")
        a.label("span1")
    a("s_and_b32 s45, s32, 31"); a("s_bfe_u32 s44, s32, 0x30005")
    a("s_cmp_ge_u32 s44, 4"); a("s_cbranch_scc1 worker")
    a("s_lshl_b32 s18, s44, 3"); a("s_lshr_b32 s19, s45, 2"); a("s_add_u32 s18, s18, s19"); a("s_and_b32 s19, s45, 3")
    rec.emit_rec(a, "rec", prof=prof, kvwait=True)
    a.label("worker")
    a("s_sub_u32 s44, s44, 4")
    a("v_and_b32 v0, 63, v0")
    gemm.setup_common(a)
    a("s_mov_b32 s88, 0"); a("s_mov_b32 s89, 0"); a("s_mov_b32 s77, 0")
    a("s_mov_b32 s59, 0") if PROF else None
    a("s_lshl_b32 s96, s44, 5"); a("s_add_u32 s96, s96, s45"); a("s_lshl_b32 s96, s96, 3"); a("s_add_u32 s96, s96, s75")
    a("s_lshl_b32 s32, s44, 3"); a("s_lshr_b32 s44, s45, 3"); a("s_and_b32 s45, s45, 7"); a("s_add_u32 s45, s45, s32")
    if PROF: a("s_lshl_b32 s97, s44, 5"); a("s_add_u32 s97, s97, s45")
    wstamp(a, 0)
    def g1(grp):
        MT, first = ((2, 0), (3, 32), (3, 80))[grp]
        a("s_mov_b32 s23, s44")
        a("s_mov_b32 s30, s45"); a(f"s_mul_i32 s31, s23, {4*MT}"); a(f"s_add_u32 s31, s31, {first}")
        task_g1(a, MT, grp)
    def tile_2x4():
        a("s_bfe_u32 s30, s45, 0x10003"); a("s_lshl_b32 s30, s30, 1"); a("s_and_b32 s32, s45, 1"); a("s_add_u32 s30, s30, s32")
        a("s_lshr_b32 s31, s45, 4"); a("s_lshl_b32 s31, s31, 2"); a("s_bfe_u32 s32, s45, 0x20001"); a("s_add_u32 s31, s31, s32")
    touches(a, [(10, 1 << 20, 3, 0, 3)]*3)
    if rec.PAR["ST"] == 1: a("s_mov_b32 s98, 0")
    g1(0)
    if not rec.PAR["RPF"]: touches(a, [(4, 0, 4, 0, 4), (6, 0, 6, 0, 4), (6, 0, 6, 4, 2)])
    elif rec.PAR["RPF"] == 1 and not rec.PAR["QPL"]: touches(a, [(14, 0, 8, 0, 4), (14, 0, 8, 4, 4), (14, 0, 8, 4, 4)])
    g1(1)
    if not rec.PAR["RPF"]: touches(a, [(14, 0, 8, 0, 4), (14, 0, 8, 4, 4), (8, 0, 2, 0, 2)])
    a("s_cmp_lt_u32 s44, 2"); a("s_cbranch_scc1 w_g1c")
    tile_2x4()
    a("s_and_b32 s32, s44, 1"); a("s_lshl_b32 s32, s32, 2"); a("s_add_u32 s30, s30, s32")
    task_g4kv(a)
    wstamp(a, 0)
    a("s_cmp_eq_u32 s44, 2"); a("s_cbranch_scc0 w_g1c")
    a("s_mov_b32 s30, s45"); a("s_mov_b32 s31, 0")
    a.label("w_wot")
    task_wot(a)
    a("s_add_u32 s31, s31, 1"); a("s_cmp_lt_u32 s31, 2"); a("s_cbranch_scc1 w_wot")
    wstamp(a, 0)
    a.label("w_g1c")
    g1(2)
    a.label("w_g2a")
    a("s_lshr_b32 s30, s45, 1"); a("s_and_b32 s31, s45, 1"); a("s_lshr_b32 s32, s44, 1"); a("s_xor_b32 s32, s32, s44"); a("s_lshl_b32 s32, s32, 1"); a("s_add_u32 s31, s31, s32")
    task_g2a(a)
    wstamp(a, 0)
    a("s_cmp_eq_u32 s44, 0"); a("s_cbranch_scc1 w_g5")
    a("s_cmp_eq_u32 s44, 2"); a("s_cbranch_scc1 w_set2")
    a("s_lshr_b32 s30, s45, 3")
    a("s_cmp_eq_u32 s44, 3"); a("s_cbranch_scc1 w_f1")
    a("s_and_b32 s31, s45, 7")
    task_g3(a, 2)
    wstamp(a, 0)
    a(f"s_mov_b32 s34, {setmask(1):#x}")
    a("s_branch w_stream")
    a.label("w_f1")
    a("s_lshl_b32 s31, s31, 2"); a("s_bfe_u32 s32, s45, 0x20001"); a("s_add_u32 s31, s31, s32")
    task_g3(a, 1)
    wstamp(a, 0)
    a.label("w_set2")
    a("s_bitcmp1_b32 s45, 0"); a("s_cbranch_scc1 w_exit")
    a("s_and_b32 s32, s44, 1"); a("s_add_u32 s45, s45, s32")
    a(f"s_mov_b32 s34, {setmask(2):#x}")
    a("s_branch w_stream")
    a.label("w_g5")
    tile_2x4()
    task_g4q(a)
    wstamp(a, 0)
    task_g5(a)
    wstamp(a, 0)
    a(f"s_mov_b32 s34, {setmask(0):#x}")
    a.label("w_stream")
    task_stream(a)
    wstamp(a, 0)
    if "span" in rec.OPT:
        a("s_and_b32 s98, s45, 7"); a("s_or_b32 s98, s98, s75"); a("s_cmp_lg_u32 s98, 0"); a("s_cbranch_scc1 w_exit")
        a("s_waitcnt vmcnt(0)"); a("s_memrealtime s[98:99]"); a("s_waitcnt lgkmcnt(0)"); a("v_mov_b32 v5, s98"); a("v_mov_b32 v2, 0")
        a("s_mov_b64 exec, 1"); a("global_atomic_umax v2, v5, s[26:27] offset:60 sc1")
    a("s_endpgm")
    a.label("w_fail")
    a("v_mov_b32 v16, 0"); a("v_mov_b32 v17, 0xdead"); a("global_store_dword v16, v17, s[26:27] offset:248")
    a.label("w_exit")
    a("s_endpgm")
    gemm.emit_core(a, "core_T", 'T')
    gemm.emit_core(a, "core_N", 'N')
    gemm.emit_core(a, "core_T3", 'T', MT=3)
    gemm.emit_core(a, "core_T2", 'T', MT=2)
    gemm.WFLAG = "sc1"; gemm.WFRAG = True
    gemm.emit_core(a, "core_F1", 'T', MT=1, aflag="sc1")
    gemm.emit_core(a, "core_F2", 'T', MT=2, aflag="sc1")
    gemm.WFLAG = ""; gemm.WFRAG = False
    a.label("code_end")

def generate(prof=False):
    global PROF
    PROF = bool(prof)
    raw = open(f"cdna_kernels/{NAME}.s.ref").read().split("\n")
    hdr = []
    for l in raw:
        if not l.startswith(";") or "Override" in l: break
        hdr.append(l)
    a = Asm()
    emit_mega(a, prof)
    s = "\n".join(hdr) + "\n"
    s += f"; @launch kernel={NAME}_kernel grid=(256,1,1) block=(512,1,1) lds=163840\n"
    s += '.amdgcn_target "amdgcn-amd-amdhsa--gfx950"\n.text\n' + a.text() + '.section .rodata,"a"\n'
    s += kernel_desc(NAME + "_kernel", vgpr=256, accum=160)
    return s

if __name__ == "__main__":
    out = sys.argv[1] if len(sys.argv) > 1 else f"cdna_kernels/{NAME}.s"
    open(out, "w").write(generate())
    print("wrote", out)
```

```python
import sys, os
sys.path.insert(0, os.path.dirname(__file__))
from asmgen import *
import gemm
import rec2 as rec
from gemm import acc, R

NAME = "concat_heads__linear_attn_block__memory_aug_recurrent_mem_tr__prompt"
WS_O   = 84 << 20
WS_OA  = 116 << 20
WS_KVP = 124 << 20
OA_T = 65536
WS_INBOX = 142 << 20
D_OVF, D_AKV, D_KV, D_AO, D_O = 32, 36, 64, 96, 128
D_PROG = rec.DBG_PROG
WSPIN = 400000
TSET = "1111000221021012"
def setmask(k): return sum(1 << t for t in range(16) if int(TSET[t]) == k)
LOG2E = 0x3fb8aa3b
EPS = 0x358637bd
SCL = 0x3e0293ee


def load_ptrs(a):
    a("s_load_dwordx16 s[4:19], s[0:1], 0"); a("s_load_dwordx2 s[20:21], s[0:1], 64")
    a("s_load_dwordx4 s[24:27], s[0:1], 80"); a("s_load_dwordx2 s[28:29], s[0:1], 96")

def signal(a, off_sgpr_or_imm, val=1):
    lab = a.newlabel("sig")
    a("s_waitcnt vmcnt(0)"); a("s_barrier")
    a("s_cmp_lg_u32 s75, 0"); a(f"s_cbranch_scc1 {lab}")
    a(f"v_mov_b32 v16, {off_sgpr_or_imm}"); a(f"v_mov_b32 v17, {val}")
    a("s_mov_b64 exec, 1")
    a("global_atomic_add v16, v17, s[26:27] sc1")
    a("s_mov_b64 exec, -1")
    a.label(lab)

def wait_cnt(a, off, target, inv=True):
    lp, ok, done = a.newlabel("wl"), a.newlabel("wo"), a.newlabel("wd")
    a("s_cmp_lg_u32 s75, 0"); a(f"s_cbranch_scc1 {done}")
    a(f"v_mov_b32 v16, {off}")
    a.label(lp)
    a("global_load_dword v17, v16, s[26:27] sc1"); a("s_waitcnt vmcnt(0)")
    a(f"v_cmp_ne_u32 vcc, {target}, v17"); a(f"s_cbranch_vccz {ok}")
    a("s_sleep 8")
    a("s_add_u32 s46, s46, 1"); a(f"s_cmp_lt_u32 s46, {WSPIN}"); a(f"s_cbranch_scc1 {lp}")
    a("s_branch w_fail")
    a.label(ok)
    if inv: a("buffer_inv sc1"); a("s_waitcnt vmcnt(0)")
    a.label(done)
    a("s_barrier")

def learn_parity(a):
    lp, ok = a.newlabel("vl"), a.newlabel("vo")
    a.label(lp)
    a("s_waitcnt vmcnt(0)")
    a("v_readfirstlane_b32 s22, v18"); a("v_readfirstlane_b32 s34, v19")
    a("s_and_b32 s32, s22, 0xffff"); a("s_add_u32 s32, s32, s34"); a("s_cmp_eq_u32 s32, 256"); a(f"s_cbranch_scc1 {ok}")
    a("s_sleep 8")
    a(f"global_load_dwordx2 v[18:19], v16, s[26:27] offset:{rec.DBG_VOTE} sc1")
    a("s_add_u32 s46, s46, 1"); a(f"s_cmp_lt_u32 s46, {WSPIN}"); a(f"s_cbranch_scc1 {lp}")
    a("s_branch w_fail")
    a.label(ok)
    a("s_lshr_b32 s22, s22, 16"); a("s_cmp_gt_u32 s22, 64"); a("s_cselect_b32 s22, 1, 0")

def phi(a, regs):
    for i in range(0, len(regs), 8):
        b = regs[i:i+8]
        for k, r in enumerate(b): a(f"v_mul_f32 v{16+k}, s40, v{r}")
        for k, r in enumerate(b): a(f"v_min_f32 v{16+k}, 0, v{16+k}")
        for k, r in enumerate(b): a(f"v_exp_f32 v{16+k}, v{16+k}")
        for k, r in enumerate(b): a(f"v_max_f32 v{r}, 0, v{r}")
        for k, r in enumerate(b): a(f"v_add_f32 v{r}, v{r}, v{16+k}")
        for k, r in enumerate(b): a(f"v_add_f32 v{r}, s41, v{r}")

def pack_frags(a):
    for tt in range(4):
        for jj in range(4):
            s = acc(tt, 2*jj); d = 32 + (tt*4 + jj)*4
            for i in range(4): a(f"v_cvt_pk_bf16_f32 v{d+i}, v{s+2*i}, v{s+2*i+1}")
def frag(tt, jj): return R('v', 32 + (tt*4 + jj)*4)

PROF = False
def wstamp(a, k):
    if not PROF: return
    lab = a.newlabel("ws")
    a("s_cmp_lg_u32 s75, 0"); a(f"s_cbranch_scc1 {lab}")
    a("s_memrealtime s[56:57]"); a("s_waitcnt lgkmcnt(0)")
    a("s_lshl_b32 s58, s97, 7"); a("s_lshl_b32 s57, s59, 2"); a("s_add_u32 s58, s58, s57"); a(f"s_add_u32 s58, s58, {201 << 20}")
    a("v_mov_b32 v16, s58"); a("v_mov_b32 v17, s56"); a("global_store_dword v16, v17, s[28:29]")
    a("s_memtime s[56:57]"); a("s_waitcnt lgkmcnt(0)"); a("v_mov_b32 v17, s56"); a("v_add_u32 v16, 0x100000, v16"); a("global_store_dword v16, v17, s[28:29]")
    a("s_add_u32 s59, s59, 1")
    a.label(lab)

def tstamp(a, ev, v0=126, v1=127):
    if not PROF: return
    a("s_memrealtime s[56:57]"); a("s_waitcnt lgkmcnt(0)")
    a("s_lshl_b32 s58, s96, 2"); a(f"s_add_u32 s58, s58, {(204 << 20) + ev*8192}")
    a(f"v_mov_b32 v{v0}, s58"); a(f"v_mov_b32 v{v1}, s56"); a(f"global_store_dword v{v0}, v{v1}, s[28:29]")

def wside(a, dst, off, tmp):
    rec.near(a, dst, off, "s22", 28, tmp, kv=True)

def task_g1(a, MT, grp):
    gemm.setup_a_rowmajor(a, 2048, MT); gemm.setup_w(a, 8192)
    a("s_lshl_b32 s32, s31, 15"); a("s_add_u32 s80, s10, s32"); a("s_addc_u32 s81, s11, 0")
    a("s_cmp_lt_u32 s30, 16"); a("s_cselect_b32 s82, s16, s18"); a("s_cselect_b32 s83, s17, s19")
    a(f"s_cselect_b32 s33, {rec.WS_KX >> 20}, {rec.WS_VX >> 20}"); a("s_lshl_b32 s33, s33, 20")
    a("s_and_b32 s35, s30, 15"); a("s_lshl_b32 s32, s35, 9"); a("s_add_u32 s82, s82, s32"); a("s_addc_u32 s83, s83, 0")
    a("s_mov_b32 s66, 7")
    if grp == 0 and rec.PAR["WPF"]:
        a("s_cmp_lt_u32 s44, 2"); a("s_cbranch_scc1 no_wpf")
        a("s_and_b32 s34, s44, 1"); a("s_lshl_b32 s34, s34, 3"); a("s_add_u32 s34, s34, s75")
        nx = rec.PAR["WPF"]
        a("s_and_b32 s32, s45, 7"); a("s_lshl_b32 s32, s32, 4"); a("s_add_u32 s32, s32, s34"); a(f"s_lshl_b32 s32, s32, {11 + nx}")
        a(f"v_and_b32 v16, {32*nx - 1}, v0"); a("v_lshl_add_u32 v16, v16, 7, s32")
        if not rec.PAR["EPF"]: a("global_load_dword a95, v16, s[10:11]")
        a("v_lshrrev_b32 v16, 2, v0"); a("v_lshlrev_b32 v16, 13, v16"); a("v_and_b32 v17, 3, v0"); a("v_lshl_add_u32 v16, v17, 7, v16")
        a("s_lshl_b32 s32, s34, 17"); a("v_add_u32 v16, s32, v16")
        for i in range(4):
            if i or not rec.PAR["EPF"]:
                a("global_load_dword a95, v16, s[82:83]")
                if i < 3: a("s_barrier")
            a(f"v_add_u32 v16, {256*8192}, v16")
        a.label("no_wpf")
    def first_signal(n):
        lab = a.newlabel("sig")
        a(f"s_waitcnt vmcnt({n})"); a("s_barrier")
        a("s_cmp_lg_u32 s75, 0"); a(f"s_cbranch_scc1 {lab}")
        a("v_mov_b32 v16, s88"); a("v_mov_b32 v17, 0")
        a("s_mov_b64 exec, 1"); a("global_store_dword v16, v17, s[28:29] sc1"); a("s_mov_b64 exec, -1")
        a.label(lab)
        wstamp(a, 0)
    ST = rec.PAR["ST"]
    if grp == 1:
        if ST == 0:
            gemm.prologue(a, MT); first_signal(8 + 2*MT)
        else:
            first_signal(0)
            if ST == 1 and not rec.PAR["RPF"]:
                a("s_mul_i32 s32, s96, 3072"); a(f"s_add_u32 s32, s32, {1 << 20}"); a("v_lshlrev_b32 v20, 6, v0"); a("v_min_u32 v20, 3008, v20"); a("v_add_u32 v20, s32, v20")
                a("global_load_dword a95, v20, s[10:11]")
    gemm.call(a, f"core_T{MT}" + ("_m" if grp == 1 and ST == 0 else ""))
    if grp == 0: learn_parity(a)
    wstamp(a, 0)
    a("s_lshl_b32 s34, s35, 1"); a("s_add_u32 s34, s34, s73"); a("s_lshl_b32 s34, s34, 14"); a("s_add_u32 s33, s33, s34")
    a(f"s_mul_i32 s36, s72, {MT}"); a("s_add_u32 s36, s36, s31")
    a("v_lshlrev_b32 v19, 4, v0")
    for tt in range(MT):
        a(f"s_add_u32 s32, s36, {tt}"); a("s_and_b32 s34, s32, 1"); a("s_lshl_b32 s34, s34, 12"); a("s_lshr_b32 s32, s32, 1"); a("s_lshl_b32 s32, s32, 19")
        a("s_add_u32 s32, s32, s34"); a("s_add_u32 s32, s32, s33")
        rec.near_bit(a, "s34", "s32", "s22", True); a("s_add_u32 s32, s32, s34")
        a(f"v_add_u32 v{20+tt}, s32, v19")
    a("s_lshl_b32 s88, s23, 7"); a("s_lshl_b32 s32, s30, 2"); a("s_add_u32 s88, s88, s32"); a(f"s_add_u32 s88, s88, {rec.WS_FLAG + (96 + 4*grp)*128}")
    if grp == 0: gemm.epi_frag_store(a, "s[28:29]", "sc1", MT)
    else:
        a("s_mov_b32 s89, 1"); a("s_mov_b32 s77, 1")

def touches(a, parts):
    for i, (p, fix, per, first, n) in enumerate(parts):
        a(f"s_mul_i32 s32, s96, {per*1024}"); a(f"s_add_u32 s32, s32, {fix + first*1024}")
        a(f"s_add_u32 s{90+2*i}, s{p}, s32"); a(f"s_addc_u32 s{91+2*i}, s{p+1}, 0"); a(f"s_mov_b32 s{99+i}, {n*1024 - 64}")
    a("s_mov_b32 s98, 0" if "notouch" in rec.OPT else "s_mov_b32 s98, 1")

def task_g4kv(a):
    def colmap(a, v):
        a(f"v_bfe_u32 v18, v{v}, 3, 1"); a("v_lshlrev_b32 v18, 11, v18")
        a(f"v_lshrrev_b32 v19, 4, v{v}"); a("v_lshl_add_u32 v18, v19, 7, v18")
        a(f"v_and_b32 v{v}, 7, v{v}"); a(f"v_lshl_add_u32 v{v}, v{v}, 4, v18")
    gemm.setup_a_rowmajor(a, 2048); gemm.setup_w(a, 6144, colmap)
    a("s_lshl_b32 s32, s31, 19"); a("s_add_u32 s80, s4, s32"); a("s_addc_u32 s81, s5, 0")
    a("s_lshl_b32 s32, s30, 8"); a("s_add_u32 s32, s32, 2048"); a("s_add_u32 s82, s6, s32"); a("s_addc_u32 s83, s7, 0")
    a("s_mov_b32 s66, 7")
    gemm.call(a, "core_N")
    wstamp(a, 0)
    a(f"s_mov_b32 s40, {LOG2E}"); a(f"s_mov_b32 s41, {EPS}")
    phi(a, [acc(tt, 0) + i for tt in range(4) for i in range(16)])
    for tp in range(2):
        for ft in range(8):
            x = acc(2*tp, ft); y = acc(2*tp+1, ft)
            a(f"v_cvt_pk_bf16_f32 v{x}, v{x}, v{x+1}"); a(f"v_cvt_pk_bf16_f32 v{x+1}, v{x+2}, v{x+3}")
            a(f"v_cvt_pk_bf16_f32 v{x+2}, v{y}, v{y+1}"); a(f"v_cvt_pk_bf16_f32 v{x+3}, v{y+2}, v{y+3}")
    for i in range(4): a(f"v_mov_b32 v{16+i}, 0x3f803f80")
    a("v_lshlrev_b32 v20, 4, v0"); a("s_mul_i32 s32, s73, 49152"); a("s_lshl_b32 s33, s72, 10"); a("s_add_u32 s32, s32, s33"); a("v_add_u32 v21, s32, v20")
    outb = lambda hd, et, dt: (64 if hd == 0 else 128) + (et*2 + dt)*4
    for tp in range(2):
        for hd in range(2):
            for et in range(3):
                for dt in range(2):
                    D = R('v', outb(hd, et, dt)); A = R('v', acc(2*tp, 2*hd + dt)); B = R('v', acc(2*tp, 4 + 2*hd + et)) if et < 2 else "v[16:19]"
                    a(f"v_mfma_f32_16x16x32_bf16 {D}, {A}, {B}, " + ("0" if tp == 0 else D))
    a("s_barrier")
    a("s_nop 7")
    for hd in range(2):
        for f in range(6):
            a(f"ds_write_b128 v21, {R('v', outb(hd, f >> 1, f & 1))} offset:{(hd*6 + f)*4096}")
    a("s_mul_i32 s32, s75, 12288"); a("v_add_u32 v21, s32, v20")
    a("s_waitcnt lgkmcnt(0)"); a("s_barrier")
    for k in range(3):
        for m in range(4): a(f"ds_read_b128 {R('v', 32 + (k*4 + m)*4)}, v21 offset:{k*4096 + m*1024}")
    a("s_lshl_b32 s32, s31, 5"); a("s_lshl_b32 s33, s30, 2"); a("s_add_u32 s32, s32, s33"); a("s_mul_i32 s32, s32, 6144")
    a("s_mul_i32 s33, s75, 3072"); a("s_add_u32 s32, s32, s33"); a(f"s_add_u32 s32, s32, {WS_KVP}"); a("v_add_u32 v22, s32, v20")
    a("s_waitcnt lgkmcnt(0)")
    for k in range(3):
        b = 32 + k*16
        for h in range(2):
            a(f"v_pk_add_f32 v[{b+2*h}:{b+2*h+1}], v[{b+2*h}:{b+2*h+1}], v[{b+4+2*h}:{b+5+2*h}]")
            a(f"v_pk_add_f32 v[{b+8+2*h}:{b+9+2*h}], v[{b+8+2*h}:{b+9+2*h}], v[{b+12+2*h}:{b+13+2*h}]")
        for h in range(2):
            a(f"v_pk_add_f32 v[{b+2*h}:{b+2*h+1}], v[{b+2*h}:{b+2*h+1}], v[{b+8+2*h}:{b+9+2*h}]")
        a(f"global_store_dwordx4 v22, {R('v', b)}, s[28:29] offset:{k*1024} sc1")
    signal(a, D_AKV)

def task_g4q(a):
    gemm.setup_a_rowmajor(a, 2048); gemm.setup_w(a, 6144)
    a("s_lshl_b32 s32, s31, 19"); a("s_add_u32 s80, s4, s32"); a("s_addc_u32 s81, s5, 0")
    a("s_lshl_b32 s32, s30, 9"); a("s_add_u32 s82, s6, s32"); a("s_addc_u32 s83, s7, 0")
    a("s_mov_b32 s66, 7")
    gemm.call(a, "core_T")
    wstamp(a, 0)
    a(f"s_mov_b32 s40, {LOG2E}"); a(f"s_mov_b32 s41, {EPS}")
    phi(a, list(range(32, 160)))
    pack_frags(a)
    wstamp(a, 0)
    wait_cnt(a, D_AKV, 64, False)
    wstamp(a, 0)
    a("v_lshlrev_b32 v16, 4, v0")
    for r in range(1, 8): a(f"v_add_u32 v{16+r}, {r*196608}, v16")
    a("s_lshl_b32 s32, s30, 3"); a("s_add_u32 s32, s32, s75"); a("s_mul_i32 s32, s32, 6144"); a(f"s_add_u32 s32, s32, {WS_KVP}")
    a("s_add_u32 s34, s28, s32"); a("s_addc_u32 s35, s29, 0")
    a("s_mul_i32 s32, s75, 3072"); a("v_add_u32 v24, s32, v16")
    for et in range(3):
        for r in range(8):
            for dt in range(2):
                a(f"global_load_dwordx4 {R('v', 96 + (r*2 + dt)*4)}, v{16+r}, s[34:35] offset:{dt*1024} sc1")
        a("s_add_u32 s34, s34, 2048"); a("s_addc_u32 s35, s35, 0")
        a("s_waitcnt vmcnt(0)")
        for step in (32, 16, 8):
            for i in range(0, step, 2):
                a(f"v_pk_add_f32 v[{96+i}:{97+i}], v[{96+i}:{97+i}], v[{96+step+i}:{97+step+i}]")
        for i in range(4): a(f"v_cvt_pk_bf16_f32 v{28+i}, v{96+2*i}, v{97+2*i}")
        a(f"ds_write_b128 v24, v[28:31] offset:{et*1024}")
    a("s_mul_i32 s32, s73, 12288"); a("v_add_u32 v24, s32, v16")
    a("s_waitcnt lgkmcnt(0)"); a("s_barrier")
    for i in range(12): a(f"ds_read_b128 {R('a', i*4)}, v24 offset:{i*1024}")
    gemm.lane_chunk(a, 25, 26)
    a("v_and_b32 v26, 15, v0"); a("v_lshl_add_u32 v25, v25, 4, v26"); a("v_lshlrev_b32 v25, 4, v25")
    a("s_lshl_b32 s32, s31, 4"); a("s_lshl_b32 s33, s72, 2"); a("s_add_u32 s32, s32, s33"); a(f"s_mul_i32 s32, s32, {OA_T}")
    a("s_lshl_b32 s33, s30, 14"); a("s_add_u32 s32, s32, s33"); a("s_lshl_b32 s33, s73, 12"); a("s_add_u32 s32, s32, s33"); a(f"s_add_u32 s32, s32, {WS_OA}")
    rec.near_bit(a, "s33", "s32", "s22", True); a("s_add_u32 s32, s32, s33")
    a("v_add_u32 v20, s32, v25")
    for tt in range(1, 4): a(f"v_add_u32 v{20+tt}, {tt*OA_T}, v20")
    a("s_waitcnt lgkmcnt(0)")
    for hd in range(4):
        for tt in range(4):
            b = 96 + tt*12
            for et in (2, 0, 1):
                a(f"v_mfma_f32_16x16x32_bf16 {R('v', b + et*4)}, {R('a', (hd*3 + et)*4)}, {frag(tt, hd)}, 0")
        a("s_nop 7")
        for tt in range(4):
            b = 96 + tt*12
            a(f"v_add_f32 v{b+8}, s41, v{b+8}")
        for tt in range(4):
            b = 96 + tt*12
            a(f"v_rcp_f32 v{b+8}, v{b+8}")
        for tt in range(4):
            b = 96 + tt*12
            a(f"v_mov_b32 v{b+9}, v{b+8}")
            for i in range(0, 8, 2): a(f"v_pk_mul_f32 v[{b+i}:{b+i+1}], v[{b+i}:{b+i+1}], v[{b+8}:{b+9}]")
            t = 144 + tt*4
            gemm.pack_swap(a, t, b)
            a(f"global_store_dwordx4 v{20+tt}, {R('v', t)}, s[28:29] offset:{hd*1024} sc1")
    a("s_lshl_b32 s32, s31, 2"); a(f"s_add_u32 s32, s32, {D_AO}")
    signal(a, "s32")

def out_offsets(a, MT):
    gemm.lane_chunk(a, 25, 26)
    a("v_and_b32 v26, 15, v0"); a("v_lshlrev_b32 v26, 12, v26"); a("v_lshl_add_u32 v20, v25, 4, v26")
    a(f"s_mul_i32 s32, s72, {MT*16*4096}"); a("s_lshl_b32 s33, s73, 8"); a("s_add_u32 s32, s32, s33"); a("v_add_u32 v20, s32, v20")
    for tt in range(1, MT): a(f"v_add_u32 v{20+tt}, {tt*65536}, v20")

def task_g5(a):
    gemm.setup_a_frag(a, OA_T); gemm.setup_w(a, 2048)
    a("s_lshl_b32 s32, s31, 2"); a(f"s_add_u32 s32, s32, {D_AO}")
    wait_cnt(a, "s32", 4)
    wstamp(a, 0)
    a(f"s_mul_i32 s32, s31, {16*OA_T}"); a(f"s_add_u32 s32, s32, {WS_OA}"); wside(a, 80, "s32", "s33")
    a("s_lshl_b32 s32, s30, 9"); a("s_add_u32 s82, s8, s32"); a("s_addc_u32 s83, s9, 0")
    a("s_mov_b32 s66, 7")
    gemm.call(a, "core_T")
    wstamp(a, 0)
    out_offsets(a, 4)
    a("s_lshl_b32 s32, s31, 20"); a("s_lshl_b32 s33, s30, 9"); a("s_add_u32 s32, s32, s33"); a("s_add_u32 s34, s24, s32"); a("s_addc_u32 s35, s25, 0")
    gemm.epi_out_store(a, "s[34:35]", 4, "" if "outpl" in rec.OPT else "sc1")

def task_wot(a):
    a("s_barrier")
    a("v_lshrrev_b32 v2, 4, v0"); a("v_lshlrev_b32 v2, 11, v2"); a("v_and_b32 v3, 15, v0"); a("v_lshl_add_u32 v2, v3, 4, v2")
    a("s_lshl_b32 s32, s30, 18"); a("s_lshl_b32 s33, s31, 17"); a("s_add_u32 s32, s32, s33"); a("s_lshl_b32 s33, s75, 8"); a("s_add_u32 s32, s32, s33"); a("v_add_u32 v2, s32, v2")
    a("s_lshl_b32 s43, s75, 14")
    for i in range(16):
        a(f"s_add_u32 m0, s43, {i*1024}"); a("s_nop 0")
        a("global_load_lds_dwordx4 v2, s[20:21]")
        a("v_add_u32 v2, 0x2000, v2")
    gemm.pending_stores(a)
    a("s_mov_b32 s77, 0")
    a("v_lshrrev_b32 v3, 2, v0"); a("v_lshlrev_b32 v3, 8, v3"); a("v_and_b32 v16, 3, v0"); a("v_lshl_add_u32 v3, v16, 4, v3"); a("v_add_u32 v3, s43, v3")
    a("s_lshl_b32 s32, s75, 21"); a("s_lshl_b32 s33, s30, 14"); a("s_add_u32 s32, s32, s33"); a("s_lshl_b32 s33, s31, 12"); a("s_add_u32 s32, s32, s33"); a(f"s_add_u32 s32, s32, {rec.WS_WOT}")
    wside(a, 34, "s32", "s33")
    a("v_lshlrev_b32 v20, 4, v0")
    for i in range(1, 4): a(f"v_add_u32 v{20+i}, {i*rec.WOT_CG}, v20")
    a("s_waitcnt vmcnt(0)")
    for cgl in range(4):
        for jl in range(2):
            for ct in range(2):
                b = 32 + ((cgl*2 + jl)*2 + ct)*4
                for lo in range(2):
                    a(f"ds_read_b64_tr_b16 {R('v', b + 2*lo, 2)}, v3 offset:{(32*jl + 16*lo)*256 + cgl*64 + ct*8}")
        a("s_waitcnt lgkmcnt(0)")
        for jl in range(2):
            for ct in range(2):
                a(f"global_store_dwordx4 v{20+cgl}, {R('v', 32 + ((cgl*2 + jl)*2 + ct)*4)}, s[34:35] offset:{jl*2048 + ct*1024} sc1")
    a("s_lshl_b32 s32, s30, 1"); a("s_add_u32 s32, s32, s31"); a("s_lshl_b32 s32, s32, 16"); a("s_lshr_b32 s33, s75, 1"); a("s_lshl_b32 s33, s33, 14"); a("s_add_u32 s32, s32, s33")
    a("s_and_b32 s33, s75, 1"); a("s_lshl_b32 s33, s33, 12"); a("s_add_u32 s32, s32, s33"); a(f"s_add_u32 s32, s32, {WS_INBOX}")
    wside(a, 34, "s32", "s33")
    for i in range(4): a(f"v_mov_b32 v{24+i}, -1")
    for i in range(4): a(f"global_store_dwordx4 v20, v[24:27], s[34:35] offset:{i*1024} sc1")
    lab = a.newlabel("sig")
    a("s_waitcnt vmcnt(0)"); a("s_barrier")
    a("s_cmp_lg_u32 s75, 0"); a(f"s_cbranch_scc1 {lab}")
    a("s_lshl_b32 s32, s31, 7"); a("s_lshl_b32 s33, s30, 2"); a("s_add_u32 s32, s32, s33"); a(f"s_add_u32 s32, s32, {rec.WS_FLAG + 108*128}")
    a("v_mov_b32 v16, s32"); a("v_mov_b32 v17, 0")
    a("s_mov_b64 exec, 1"); a("global_store_dword v16, v17, s[28:29] sc1"); a("s_mov_b64 exec, -1")
    a.label(lab)

def task_g3(a, MT):
    sh = MT - 1
    a("s_lshl_b32 s32, s30, 3"); a("s_add_u32 s32, s32, s75"); a("s_lshl_b32 s32, s32, 19"); a(f"s_add_u32 s32, s32, {rec.WS_WOT}")
    rec.near_bit(a, "s33", "s32", "s22", True); a("s_add_u32 s32, s32, s33")
    gemm.setup_a_frag(a, 262144, MT); gemm.setup_w_frag(a, "s32")
    wot_wait(a)
    lp, ok = a.newlabel("fl"), a.newlabel("fo")
    a("s_cmp_lg_u32 s75, 0"); a(f"s_cbranch_scc1 {ok}")
    a(f"s_lshl_b32 s32, s31, {8 + sh}"); a(f"s_add_u32 s32, s32, {rec.WS_FLAG}"); a("v_lshl_add_u32 v16, v0, 2, s32")
    a.label(lp)
    a("global_load_dword v17, v16, s[28:29] sc1"); a(f"global_load_dword v19, v16, s[28:29] offset:{256*sh} sc1"); a("s_waitcnt vmcnt(0)")
    a("v_or_b32 v17, v17, v19")
    a("v_cmp_ne_u32 vcc, 0, v17"); a(f"s_cbranch_vccz {ok}")
    a("s_sleep 8")
    a("s_add_u32 s46, s46, 1"); a(f"s_cmp_lt_u32 s46, {WSPIN}"); a(f"s_cbranch_scc1 {lp}")
    a("s_branch w_fail")
    a.label(ok)
    wstamp(a, 0)
    a(f"s_lshl_b32 s32, s31, {20 + sh}"); a(f"s_add_u32 s32, s32, {WS_O}"); wside(a, 80, "s32", "s33")
    a("s_mov_b64 s[82:83], s[28:29]")
    a("s_mov_b32 s66, 31")
    a("s_add_u32 s32, s31, s30"); a("s_and_b32 s78, s32, 3"); a("s_lshl_b32 s78, s78, 11"); a("s_and_b32 s33, s32, 4"); a("s_lshl_b32 s33, s33, 12"); a("s_or_b32 s78, s78, s33")
    a("s_and_b32 s79, s32, 1"); a("s_lshl_b32 s79, s79, 12"); a("s_and_b32 s33, s32, 6"); a("s_lshl_b32 s33, s33, 13"); a("s_or_b32 s79, s79, s33")
    gemm.call(a, f"core_F{MT}")
    a("v_and_b32 v26, 15, v0"); a("v_lshlrev_b32 v26, 12, v26"); a("v_lshrrev_b32 v25, 4, v0"); a("v_lshl_add_u32 v20, v25, 4, v26")
    a(f"s_lshl_b32 s32, s72, {16 + sh}"); a("s_lshl_b32 s33, s73, 8"); a("s_add_u32 s32, s32, s33"); a("v_add_u32 v20, s32, v20"); a("v_add_u32 v21, 0x10000, v20")
    a(f"s_lshl_b32 s32, s31, {18 + sh}"); a("s_lshl_b32 s33, s30, 9"); a("s_add_u32 s32, s32, s33"); a("s_add_u32 s32, s32, 2048"); a("s_add_u32 s34, s24, s32"); a("s_addc_u32 s35, s25, 0")
    gemm.epi_frag_store(a, "s[34:35]", "sc1", MT, 64)

def softmax_cols(a, regs, t):
    a(f"v_max3_f32 v{t}, v{regs[0]}, v{regs[1]}, v{regs[2]}")
    rest = regs[3:]
    while len(rest) >= 2:
        a(f"v_max3_f32 v{t}, v{t}, v{rest[0]}, v{rest[1]}"); rest = rest[2:]
    if rest: a(f"v_max_f32 v{t}, v{t}, v{rest[0]}")
    for sw in ("16", "32"):
        a(f"v_mov_b32 v{t+1}, v{t}"); a("s_nop 1"); a(f"v_permlane{sw}_swap_b32 v{t}, v{t+1}"); a(f"v_max_f32 v{t}, v{t}, v{t+1}")
    a(f"v_mul_f32 v{t}, s40, v{t}")
    for r in regs: a(f"v_fma_f32 v{r}, v{r}, s40, -v{t}")
    for r in regs: a(f"v_exp_f32 v{r}, v{r}")

def task_g2a(a):
    a("s_and_b32 s32, s75, 4"); a("s_and_b32 s33, s75, 1"); a("s_lshl_b32 s33, s33, 1"); a("s_or_b32 s32, s32, s33"); a("s_bfe_u32 s33, s75, 0x10001"); a("s_or_b32 s32, s32, s33")
    gemm.setup_a_rowmajor(a, 2048, 4, "s32"); gemm.setup_w(a, 8192)
    a("s_lshl_b32 s32, s31, 19"); a("s_add_u32 s80, s10, s32"); a("s_addc_u32 s81, s11, 0")
    a("s_lshl_b32 s32, s30, 9"); a("s_add_u32 s82, s14, s32"); a("s_addc_u32 s83, s15, 0")
    a("s_mov_b32 s66, 7")
    gemm.call(a, "core_T")
    wstamp(a, 0)
    a("s_lshl_b32 s38, s31, 3"); a("s_and_b32 s33, s72, 2"); a("s_add_u32 s38, s38, s33"); a("s_add_u32 s38, s38, s72"); a("s_mov_b32 s39, s38"); a("s_lshl_b32 s38, s38, 5")
    a("s_lshl_b32 s42, s30, 1"); a("s_add_u32 s42, s42, s73"); a("s_add_u32 s38, s38, s42")
    a("s_lshl_b32 s34, s38, 14"); a(f"s_add_u32 s34, s34, {rec.WS_KX}"); rec.near(a, 32, "s34", "s22", 28, "s35", kv=True)
    rec.v_from_k(a, 34, 32)
    a("v_lshlrev_b32 v16, 4, v0"); a("v_add_u32 v17, 0x1000, v16"); a("v_add_u32 v18, 0x100000, v16"); a("v_add_u32 v19, 0x101000, v16")
    a("s_mul_i32 s43, s75, 20480")
    kp, kok = a.newlabel("kp"), a.newlabel("ko")
    rec.kv_tile(a, "s47", "s39", "s48"); a("s_add_u32 s49, s39, 2"); rec.kv_tile(a, "s49", "s49", "s48"); a("s_sub_u32 s49, s49, s47")
    a("s_lshl_b32 s47, s47, 7"); a("s_lshl_b32 s48, s30, 2"); a("s_add_u32 s47, s47, s48"); a(f"s_add_u32 s47, s47, {rec.WS_FLAG + 96*128}")
    a("v_and_b32 v22, s49, v0"); a("v_lshl_add_u32 v22, v22, 7, s47"); a("v_mov_b32 v23, 0")
    a.label(kp)
    a("global_load_dword v26, v22, s[28:29] sc1"); a("global_load_dword v27, v22, s[28:29] offset:64 sc1")
    a(f"global_load_dword v24, v23, s[26:27] offset:{D_PROG} sc1"); a("s_waitcnt vmcnt(0)")
    a("v_or_b32 v26, v26, v27"); a("v_cmp_ne_u32 vcc, 0, v26"); a(f"s_cbranch_vccz {kok}")
    a("s_sleep 12")
    a("s_add_u32 s46, s46, 1"); a(f"s_cmp_lt_u32 s46, {WSPIN}"); a(f"s_cbranch_scc1 {kp}")
    a("s_branch w_fail")
    a.label(kok)
    def take_progress():
        a("v_readfirstlane_b32 s48, v24"); a("s_nop 0")
        a("s_max_u32 s48, s48, 1"); a("s_sub_u32 s48, s48, 1")
    take_progress()
    a("s_barrier")
    def m_wait(seg):
        lp, ok, nf = a.newlabel("ap"), a.newlabel("ao"), a.newlabel("nf")
        a.label(lp)
        a(f"s_cmp_lt_u32 {seg}, s48"); a(f"s_cbranch_scc1 {ok}")
        a("s_cmp_lt_u32 s48, 59"); a(f"s_cbranch_scc1 {nf}")
        a("s_sleep 2")
        a("global_load_dword v24, v31, s[28:29] sc1"); a("s_waitcnt vmcnt(0)")
        a("v_readlane_b32 s49, v24, 0"); a("v_readlane_b32 s50, v24, 1"); a("s_min_i32 s49, s49, s50")
        a("v_readlane_b32 s50, v24, 2"); a("s_min_i32 s49, s49, s50"); a("v_readlane_b32 s50, v24, 3"); a("s_min_i32 s49, s49, s50")
        a("s_add_u32 s49, s49, 1"); a("s_max_u32 s48, s48, s49")
        a("s_add_u32 s46, s46, 1"); a(f"s_cmp_lt_u32 s46, {WSPIN}"); a(f"s_cbranch_scc1 {lp}")
        a("s_branch w_fail")
        a.label(nf)
        a("s_sleep 8")
        a(f"global_load_dword v24, v23, s[26:27] offset:{D_PROG} sc1"); a("s_waitcnt vmcnt(0)")
        take_progress()
        a("s_add_u32 s46, s46, 1"); a(f"s_cmp_lt_u32 s46, {WSPIN}"); a(f"s_cbranch_scc1 {lp}")
        a("s_branch w_fail")
        a.label(ok)
    def kv_loads(sg):
        for kt in range(2):
            for jj in range(4):
                a(f"global_load_dwordx4 {R('a', sg*32 + (kt*4 + jj)*4)}, v{16 + sg*2 + kt}, s[32:33] offset:{jj*1024} sc1")
            a(f"s_add_u32 m0, s43, {sg*10240 + kt*4096}"); a("s_nop 0")
            for jj in range(4):
                a(f"global_load_lds_dwordx4 v{16 + sg*2 + kt}, s[34:35] offset:{jj*1024} sc1")
    a("s_and_b32 s47, s42, 15"); a("s_lshl_b32 s47, s47, 9"); a("s_lshr_b32 s49, s42, 4"); a("s_lshl_b32 s49, s49, 14"); a("s_add_u32 s47, s47, s49")
    a("s_xor_b32 s49, s22, 1"); a("s_lshl_b32 s49, s49, 13"); a("s_add_u32 s47, s47, s49"); a(f"s_add_u32 s47, s47, {rec.WS_HW}")
    a("v_and_b32 v31, 3, v0"); a("v_lshl_add_u32 v31, v31, 7, s47")
    a("s_max_u32 s54, s39, 5"); a("s_sub_u32 s54, s54, 5")
    m_wait("s54")
    kv_loads(0)
    pack_frags(a)
    a("s_lshr_b32 s50, s38, 1"); a("s_lshl_b32 s50, s50, 14"); a("s_and_b32 s51, s38, 1"); a("s_lshl_b32 s51, s51, 12"); a("s_add_u32 s50, s50, s51"); a(f"s_add_u32 s50, s50, {rec.WS_KMVM}")
    rec.near(a, 52, "s50", "s22", 28, "s51")
    a("v_and_b32 v28, 7, v0"); a("v_lshlrev_b32 v28, 4, v28"); a("v_lshrrev_b32 v24, 4, v0"); a("v_lshl_add_u32 v28, v24, 7, v28")
    XB = (108, 32)
    def m_loads(sg):
        for jj in range(4): a(f"global_load_dwordx4 {R('v', XB[sg] + 4*jj)}, v28, s[52:53] offset:{jj*512} sc1")
        for i in range(2): a(f"global_load_dwordx4 {R('v', XB[sg] + 16 + 4*i)}, v16, s[52:53] offset:{2048 + i*1024} sc1")
        a("s_add_u32 s52, s52, 0x80000"); a("s_addc_u32 s53, s53, 0")
    def seg_signal(seg):
        a(f"s_lshl_b32 s47, {seg}, 7"); a("s_lshl_b32 s49, s42, 2"); a("s_add_u32 s47, s47, s49"); a(f"s_add_u32 s47, s47, {rec.WS_FLAG}")
        a(f"s_lshr_b32 s50, {seg}, 1"); a("s_lshl_b32 s50, s50, 14"); a(f"s_and_b32 s49, {seg}, 1"); a("s_lshl_b32 s49, s49, 12"); a("s_add_u32 s50, s50, s49")
        a("s_lshl_b32 s49, s42, 7"); a("s_add_u32 s50, s50, s49"); a("s_xor_b32 s49, s22, 1"); a("s_lshl_b32 s49, s49, 13"); a("s_add_u32 s50, s50, s49")
        a(f"s_add_u32 s50, s50, {rec.WS_FLAG2 - 24*16384}")
        a(f"s_cmp_ge_u32 {seg}, 48"); a("s_cselect_b32 s47, s50, s47"); a("v_mov_b32 v29, s47")
        a("s_waitcnt vmcnt(0)")
        a("s_mov_b64 exec, 1")
        a("global_store_dword v29, v23, s[28:29] sc1")
        a("s_mov_b64 exec, -1")
    early, late = a.newlabel("e0"), a.newlabel("l0")
    a("s_cmp_lt_u32 s39, s48"); a(f"s_cbranch_scc1 {early}")
    kv_loads(1); m_wait("s39"); m_loads(0)
    a("s_waitcnt vmcnt(0)")
    a(f"s_branch {late}")
    a.label(early)
    m_loads(0); kv_loads(1)
    a.label(late)
    a("v_lshrrev_b32 v24, 4, v0"); a("v_lshlrev_b32 v24, 2, v24"); a("v_and_b32 v25, 15, v0"); a("v_mov_b32 v26, 0xff800000")
    for i in range(4):
        a(f"v_add_u32 v27, {i}, v24"); a("v_cmp_gt_u32 vcc, v27, v25"); a("s_nop 1"); a(f"v_cndmask_b32 v{96+i}, 0, v26, vcc")
    a("v_cmp_gt_u32 vcc, 32, v0"); a("s_nop 1")
    for i in range(4): a(f"v_cndmask_b32 v{100+i}, 0, v26, vcc")
    for i in range(4): a(f"v_mov_b32 v{104+i}, 0x3f803f80")
    a("v_and_b32 v24, 3, v0"); a("v_lshrrev_b32 v25, 2, v0")
    a("v_lshlrev_b32 v18, 4, v25"); a("v_lshl_add_u32 v18, v24, 8, v18"); a("v_add_u32 v18, s43, v18")
    a("v_and_b32 v25, 7, v25"); a("v_lshlrev_b32 v19, 4, v25"); a("v_lshl_add_u32 v19, v24, 7, v19"); a("v_add_u32 v19, s43, v19")
    a("v_add_u32 v20, s43, v16")
    a("v_mov_b32 v21, v16"); a("v_add_u32 v22, 0x40000, v21")
    a("s_lshl_b32 s50, s39, 19"); a("s_lshl_b32 s51, s30, 14"); a("s_add_u32 s50, s50, s51"); a("s_lshl_b32 s51, s73, 12"); a("s_add_u32 s50, s50, s51"); a(f"s_add_u32 s50, s50, {WS_O}")
    wside(a, 36, "s50", "s51")
    a(f"s_mov_b32 s40, {SCL}")
    a("s_add_u32 s54, s39, 2")
    for sg in range(2):
        lo = sg*10240
        xb = XB[sg]
        if sg == 0:
            a("s_waitcnt vmcnt(16)")
        else:
            have = a.newlabel("h1")
            a("s_cmp_eq_u32 s55, 1"); a(f"s_cbranch_scc1 {have}")
            seg_signal("s39"); m_wait("s54"); tstamp(a, 0, 2, 3); m_loads(1)
            a("s_waitcnt vmcnt(0)"); tstamp(a, 1, 2, 3)
            a.label(have)
            a("s_waitcnt vmcnt(8)")
        for i in range(2): a(f"ds_write_b128 v20, {R('v', xb + 16 + 4*i)} offset:{lo + 8192 + i*1024}")
        tiles = [(132, 0, 0, "v[96:99]"), (136, 2, 0, "v[100:103]"), (140, 0, 1, "0"), (144, 1, 1, "v[96:99]"), (148, 2, 1, "v[100:103]")]
        for jj in range(4):
            for d, kt, qt, C in tiles:
                A = R('v', xb + 4*jj) if kt == 2 else R('a', sg*32 + (kt*4 + jj)*4)
                a(f"v_mfma_f32_16x16x32_bf16 {R('v', d)}, {A}, {frag(2*sg + qt, jj)}, " + (C if jj == 0 else R('v', d)))
        if sg == 0:
            no = a.newlabel("n1")
            a("s_mov_b32 s55, 0")
            a("s_cmp_lt_u32 s54, s48"); a(f"s_cbranch_scc0 {no}")
            m_loads(1); a("s_mov_b32 s55, 1")
            a.label(no)
        def vread(jj):
            b = 64 + (jj & 1)*12
            for hf in range(2):
                for kt in range(2):
                    a(f"ds_read_b64_tr_b16 {R('a', b + hf*4 + kt*2, 2)}, v18 offset:{lo + kt*4096 + jj*1024 + hf*8}")
                a(f"ds_read_b64_tr_b16 {R('a', b + 8 + hf*2, 2)}, v19 offset:{lo + 8192 + jj*512 + hf*8}")
        vread(0)
        a("s_nop 3")
        softmax_cols(a, list(range(132, 140)), 24)
        softmax_cols(a, list(range(140, 152)), 24)
        a("s_nop 0")
        a("v_cvt_pk_bf16_f32 v108, v132, v133"); a("v_cvt_pk_bf16_f32 v109, v134, v135"); a("v_mov_b32 v110, 0"); a("v_mov_b32 v111, 0")
        a("v_cvt_pk_bf16_f32 v112, v136, v137"); a("v_cvt_pk_bf16_f32 v113, v138, v139")
        for i in range(4): a(f"v_cvt_pk_bf16_f32 v{116+i}, v{140+2*i}, v{141+2*i}")
        a("v_cvt_pk_bf16_f32 v114, v148, v149"); a("v_cvt_pk_bf16_f32 v115, v150, v151")
        P0 = ["v[108:111]", "v[116:119]"]; P1 = ["v[112:113]", "v[114:115]"]
        a("s_nop 1")
        for qt in range(2): a(f"v_mfma_f32_16x16x32_bf16 {R('v', 120 + 4*qt)}, v[104:107], {P0[qt]}, 0")
        a("s_nop 5")
        for qt in range(2): a(f"v_mfma_f32_16x16x16_bf16 {R('v', 120 + 4*qt)}, v[104:105], {P1[qt]}, {R('v', 120 + 4*qt)}")
        if sg == 1:
            done = a.newlabel("d0")
            a("s_cmp_eq_u32 s55, 1"); a(f"s_cbranch_scc0 {done}")
            seg_signal("s39")
            a.label(done)
        a("s_nop 7")
        a("v_rcp_f32 v24, v120"); a("v_rcp_f32 v26, v124"); a("s_nop 0"); a("v_mov_b32 v25, v24"); a("v_mov_b32 v27, v26")
        for jj in range(4):
            b = 64 + (jj & 1)*12
            if jj < 3:
                vread(jj + 1); a("s_waitcnt lgkmcnt(6)")
            else:
                a("s_waitcnt lgkmcnt(0)")
            for qt in range(2):
                for hf in range(2):
                    a(f"v_mfma_f32_16x16x32_bf16 {R('v', 132 + (qt*2 + hf)*4)}, {R('a', b + hf*4)}, {P0[qt]}, 0")
            a("s_nop 2")
            for qt in range(2):
                for hf in range(2):
                    D = R('v', 132 + (qt*2 + hf)*4)
                    a(f"v_mfma_f32_16x16x16_bf16 {D}, {R('a', b + 8 + hf*2, 2)}, {P1[qt]}, {D}")
            a("s_nop 7")
            for qt in range(2):
                o = 132 + qt*8
                for i in range(0, 8, 2): a(f"v_pk_mul_f32 v[{o+i}:{o+i+1}], v[{o+i}:{o+i+1}], v[{24+2*qt}:{25+2*qt}]")
                for i in range(4): a(f"v_cvt_pk_bf16_f32 v{152 + 4*qt + i}, v{o+2*i}, v{o+2*i+1}")
                a(f"global_store_dwordx4 v{21+qt}, {R('v', 152 + 4*qt)}, s[36:37] offset:{jj*1024} sc1")
        if sg == 0:
            a("s_add_u32 s36, s36, 0x100000"); a("s_addc_u32 s37, s37, 0")
    tstamp(a, 2, 2, 3)
    seg_signal("s54")
    tstamp(a, 3, 2, 3)

def sreg(i): return R('a', 4*i) if i < 24 else R('v', 128 + 4*(i - 24))
def wot_wait(a):
    lp, ok = a.newlabel("tl"), a.newlabel("to")
    a("s_cmp_lg_u32 s75, 0"); a(f"s_cbranch_scc1 {ok}")
    a("v_lshlrev_b32 v18, 2, v0"); a(f"v_add_u32 v18, {rec.WS_FLAG + 108*128}, v18")
    a.label(lp)
    a("global_load_dword v19, v18, s[28:29] sc1"); a("s_waitcnt vmcnt(0)")
    a("v_cmp_ne_u32 vcc, 0, v19"); a(f"s_cbranch_vccz {ok}")
    a("s_sleep 8")
    a("s_add_u32 s46, s46, 1"); a(f"s_cmp_lt_u32 s46, {WSPIN}"); a(f"s_cbranch_scc1 {lp}")
    a("s_branch w_fail")
    a.label(ok)

def task_stream(a):
    wot_wait(a)
    a("s_barrier")
    a("s_and_b32 s42, s45, 1")
    a("s_lshl_b32 s43, s42, 3"); a("s_add_u32 s43, s43, s75")
    a("s_lshr_b32 s32, s45, 1"); a("s_lshl_b32 s32, s32, 20"); a("s_lshl_b32 s33, s43, 15"); a("s_add_u32 s32, s32, s33"); a(f"s_add_u32 s32, s32, {rec.WS_WOT}")
    rec.near_bit(a, "s33", "s32", "s22", True); a("s_add_u32 s32, s32, s33")
    a("v_lshlrev_b32 v10, 4, v0"); a("v_add_u32 v6, s32, v10")
    for cg in range(2):
        for q in range(4):
            a(f"v_add_u32 v2, {cg*rec.WOT_CG + (q >> 1)*16384 + (q & 1)*4096}, v6")
            for j in range(4):
                k = q*2 + (j >> 1)
                a(f"global_load_dwordx4 {sreg(k*4 + cg*2 + (j & 1))}, v2, s[28:29] offset:{j*1024} sc1")
    a("s_lshl_b32 s32, s43, 14"); a("v_add_u32 v2, s32, v10"); a("v_add_u32 v3, 0x1000, v2"); a("v_add_u32 v4, 0x40000, v2"); a("v_add_u32 v5, 0x41000, v2")
    a("s_lshl_b32 s33, s75, 13"); a("v_add_u32 v11, s33, v10")
    a("s_lshr_b32 s33, s75, 2"); a("s_xor_b32 s47, s33, s42")
    a("s_xor_b32 s36, s45, s47"); a("s_and_b32 s33, s36, 1"); a("s_lshl_b32 s33, s33, 12"); a("s_lshr_b32 s36, s36, 1"); a("s_lshl_b32 s36, s36, 14"); a("s_add_u32 s36, s36, s33")
    a("s_and_b32 s33, s75, 3"); a("s_lshl_b32 s33, s33, 10"); a("s_add_u32 s36, s36, s33"); a("v_add_u32 v1, s36, v10")
    a("s_bfe_u32 s32, s75, 0x10001"); a("s_lshl_b32 s36, s32, 12"); a("s_lshr_b32 s33, s75, 2"); a("s_lshl_b32 s33, s33, 11"); a("s_add_u32 s36, s36, s33")
    a("s_and_b32 s33, s75, 1"); a("s_lshl_b32 s37, s33, 10"); a("s_add_u32 s36, s36, s37"); a("v_add_u32 v12, s36, v10")
    a("s_lshl_b32 s32, s32, 16"); a("s_lshl_b32 s33, s33, 3"); a("s_add_u32 s32, s32, s33"); a("s_lshl_b32 s33, s45, 6"); a("s_add_u32 s32, s32, s33"); a(f"s_add_u32 s32, s32, {2048 + 96*65536}")
    a("v_and_b32 v13, 15, v0"); a("v_lshlrev_b32 v13, 12, v13"); a("v_lshrrev_b32 v14, 4, v0"); a("v_lshl_add_u32 v13, v14, 4, v13"); a("v_add_u32 v13, s32, v13")
    a("v_and_b32 v9, 1, v0"); a("v_lshlrev_b32 v9, 7, v9"); a("s_lshl_b32 s32, s43, 8"); a("s_xor_b32 s33, s22, 1"); a("s_lshl_b32 s33, s33, 13"); a("s_add_u32 s32, s32, s33")
    a(f"s_add_u32 s32, s32, {rec.WS_FLAG2}"); a("v_add_u32 v9, s32, v9")
    a("v_mov_b32 v8, 0")
    wstamp(a, 0)
    def pick(dst):
        a(f"s_ff1_i32_b32 {dst}, s34"); a(f"s_bitset0_b32 s34, {dst}")
    def base(dst, item):
        a(f"s_and_b32 s32, {item}, 15"); a("s_lshl_b32 s32, s32, 19"); a(f"s_add_u32 s32, s32, {WS_O + 96*262144}"); wside(a, dst, "s32", "s33")
    def inbox(item):
        a(f"s_lshl_b32 s32, {item}, 18"); a(f"s_add_u32 s32, s32, {WS_INBOX}"); wside(a, 50, "s32", "s33")
    def poll(item):
        a(f"s_bfe_u32 s32, {item}, 0x30001"); a("s_lshl_b32 s32, s32, 14"); a(f"s_and_b32 s33, {item}, 1"); a("s_lshl_b32 s33, s33, 12"); a("s_add_u32 s32, s32, s33")
        a("v_add_u32 v14, s32, v9")
        a("global_load_dword v15, v14, s[28:29] sc1")
    def oload(k):
        a(f"global_load_dwordx4 {R('v', 32 + k*4)}, v{2 + (k >> 2)}, s[38:39] offset:{(k & 3)*1024} sc1")
    def sum8(item):
        lab, j = a.newlabel("fn"), a.newlabel("fj")
        a("s_waitcnt lgkmcnt(0)"); a("s_barrier")
        a("ds_read_b128 v[112:115], v12")
        for part in ((1, 2, 3, 4), (5, 6, 7)):
            for i, m in enumerate(part): a(f"ds_read_b128 v[{96+4*i}:{99+4*i}], v12 offset:{m*8192}")
            for i, m in enumerate(part):
                a(f"s_waitcnt lgkmcnt({len(part) - 1 - i})")
                for h in range(2): a(f"v_pk_add_f32 v[{112+2*h}:{113+2*h}], v[{112+2*h}:{113+2*h}], v[{96+4*i+2*h}:{97+4*i+2*h}]")
        a("v_xor_b32 v12, 0x10000, v12")
        a("s_cmp_eq_u32 s47, 0"); a(f"s_cbranch_scc1 {lab}")
        inbox(item)
        for i in range(4): a(f"v_min_u32 v{112+i}, -2, v{112+i}")
        a("global_store_dwordx4 v1, v[112:115], s[50:51] sc1")
        a(f"s_branch {j}")
        a.label(lab)
        a(f"s_mov_b32 s52, {item}")
        a.label(j)
    def ask():
        no = a.newlabel("an")
        a("s_cmp_lt_i32 s52, 0"); a(f"s_cbranch_scc1 {no}")
        inbox("s52")
        a("global_load_dwordx4 v[120:123], v1, s[50:51] sc1")
        for i in range(4): a(f"v_mov_b32 v{116+i}, v{112+i}")
        a("s_mov_b32 s53, s52"); a("s_mov_b32 s52, -1")
        a.label(no)
    def join(wait):
        lp, ok, no = a.newlabel("jl"), a.newlabel("jo"), a.newlabel("jn")
        a("s_cmp_lt_i32 s53, 0"); a(f"s_cbranch_scc1 {no}")
        a("s_lshl_b32 s32, s53, 17"); a("s_add_u32 s40, s24, s32"); a("s_addc_u32 s41, s25, 0")
        if wait: a("s_waitcnt vmcnt(0)")
        a.label(lp)
        a("v_max3_u32 v124, v120, v121, v122"); a("v_max_u32 v124, v124, v123"); a("v_cmp_eq_u32 vcc, -1, v124"); a(f"s_cbranch_vccz {ok}")
        a("global_load_dwordx4 v[120:123], v1, s[50:51] sc1"); a("s_waitcnt vmcnt(0)")
        a("s_add_u32 s46, s46, 1"); a(f"s_cmp_lt_u32 s46, {WSPIN}"); a(f"s_cbranch_scc1 {lp}")
        a("s_branch w_fail")
        a.label(ok)
        a("v_pk_add_f32 v[116:117], v[116:117], v[120:121]"); a("v_pk_add_f32 v[118:119], v[118:119], v[122:123]")
        a("v_cvt_pk_bf16_f32 v120, v116, v117"); a("v_cvt_pk_bf16_f32 v121, v118, v119")
        a("global_store_dwordx2 v13, v[120:121], s[40:41]")
        a("s_mov_b32 s53, -1")
        a.label(no)
    def pending():
        lab = a.newlabel("pd")
        a("s_cmp_lt_i32 s35, 0"); a(f"s_cbranch_scc1 {lab}")
        sum8("s35")
        a.label(lab)
    def mm(k, wait):
        a(f"s_waitcnt vmcnt({wait})")
        for ct in range(4):
            D = R('v', 16 + ct*4)
            a(f"v_mfma_f32_16x16x32_bf16 {D}, {sreg((k & 7)*4 + ct)}, {R('v', 32 + k*4)}, " + ("0" if k & 7 == 0 else D))
    def park(tt):
        a("s_nop 4")
        for f in range(4): a(f"ds_write_b128 v11, {R('v', 16 + f*4)} offset:{tt*4096 + f*1024}")
        if tt: a("v_xor_b32 v11, 0x10000, v11")
        a("s_waitcnt lgkmcnt(0)")
    pick("s31"); pick("s36")
    a("s_mov_b32 s37, 0"); a("s_mov_b32 s52, -1"); a("s_mov_b32 s53, -1"); a("s_mov_b64 s[50:51], s[28:29]")
    a.label("st_wait")
    a("s_add_u32 s32, s31, 49"); a("s_min_u32 s32, s32, 63"); a("s_cmp_le_u32 s32, s37"); a("s_cbranch_scc1 st_near")
    a("s_sleep 6")
    a(f"global_load_dword v7, v8, s[26:27] offset:{D_PROG} sc1"); a("s_waitcnt vmcnt(0)")
    a("v_readfirstlane_b32 s37, v7")
    a("s_branch st_more")
    a.label("st_near")
    poll("s31"); a("s_waitcnt vmcnt(0)")
    a("v_cmp_ne_u32 vcc, 0, v15"); a("s_cbranch_vccz st_rdy")
    a("s_sleep 2")
    a.label("st_more")
    a("s_add_u32 s46, s46, 1"); a(f"s_cmp_lt_u32 s46, {WSPIN}"); a("s_cbranch_scc1 st_wait")
    a("s_branch w_fail")
    a.label("st_rdy")
    tstamp(a, 4)
    base(38, "s31")
    poll("s36")
    for k in range(16): oload(k)
    a("s_mov_b32 s35, -1")
    a.label("st_item")
    a("s_mov_b32 s30, s31"); a("s_mov_b32 s31, s36"); pick("s36")
    a("s_waitcnt vmcnt(16)")
    a("v_cmp_ne_u32 vcc, 0, v15")
    a("s_cmp_lt_i32 s31, 0"); a("s_cbranch_scc1 st_slow")
    a("s_cbranch_vccnz st_slow")
    base(38, "s31")
    poll("s36")
    for k in range(16):
        mm(k, 16)
        if k == 14: join(False); ask()
        oload(k)
        if k == 2: pending()
        if k == 7: park(0)
    park(1)
    a("s_mov_b32 s35, s30")
    a("s_branch st_item")
    a.label("st_slow")
    pending()
    for k in range(16):
        mm(k, 15 - k)
        if k == 7: park(0)
    tstamp(a, 5)
    park(1); join(False); ask(); sum8("s30"); join(True); ask(); join(True)
    tstamp(a, 6)
    a("s_cmp_lt_i32 s31, 0"); a("s_cbranch_scc0 st_wait")

def emit_mega(a, prof=False):
    kernel_begin(a, NAME + "_kernel")
    a("s_cmp_ge_u32 s2, 256"); a("s_cbranch_scc1 w_exit")
    if "span" in rec.OPT: a("s_memrealtime s[100:101]")
    load_ptrs(a)
    a("s_getreg_b32 s44, hwreg(HW_REG_XCC_ID)"); a("s_and_b32 s44, s44, 7")
    if "fakex" in rec.OPT:
        a("s_bitcmp1_b32 s2, 3"); a("s_cbranch_scc0 fake_done")
        a("s_cmp_eq_u32 s44, 1"); a("s_cselect_b32 s44, 5, s44"); a("s_cmp_eq_u32 s44, 2"); a("s_cselect_b32 s44, 7, s44")
        a.label("fake_done")
    a("v_lshrrev_b32 v1, 6, v0"); a("v_mov_b32 v2, 0"); a("s_mov_b32 s46, 0")
    a("v_readfirstlane_b32 s75, v1")
    a("s_waitcnt lgkmcnt(0)")
    a("s_add_u32 s28, s28, 0x1fffff"); a("s_addc_u32 s29, s29, 0"); a("s_and_b32 s28, s28, 0xffe00000")
    if "nowarm" not in rec.OPT:
        a("s_cmp_eq_u32 s75, 2"); a("s_cbranch_scc0 no_warm")
        a("s_getpc_b64 s[30:31]")
        a.label("warm_pc")
        a("s_lshr_b32 s32, s2, 3"); a("s_lshl_b32 s32, s32, 12"); a("v_and_b32 v3, 63, v0"); a("v_lshl_add_u32 v3, v3, 6, s32")
        a("v_min_u32 v3, code_end-warm_pc-4, v3"); a("v_and_b32 v3, -4, v3")
        a("global_load_dword a95, v3, s[30:31]")
        a.label("no_warm")
    if rec.PAR["EPF"]:
        a("s_and_b32 s32, s75, s44"); a("s_bitcmp1_b32 s32, 2"); a("s_cbranch_scc0 no_epf")
        a("s_lshr_b32 s33, s2, 3"); a("s_and_b32 s34, s75, 3"); a("v_and_b32 v3, 63, v0")
        a("s_lshr_b32 s35, s33, 3"); a("s_lshl_b32 s35, s35, 2"); a("s_add_u32 s35, s35, s34"); a("s_lshl_b32 s35, s35, 17")
        a("s_and_b32 s36, s44, 1"); a("s_lshl_b32 s36, s36, 3"); a("s_and_b32 s37, s33, 7"); a("s_add_u32 s36, s36, s37"); a("s_lshl_b32 s36, s36, 9"); a("s_add_u32 s35, s35, s36")
        a("v_lshrrev_b32 v4, 2, v3"); a("v_lshlrev_b32 v4, 13, v4"); a("v_and_b32 v5, 3, v3"); a("v_lshl_add_u32 v4, v5, 7, v4"); a("v_add_u32 v4, s35, v4")
        a("s_bitcmp1_b32 s44, 1"); a("s_cselect_b64 s[30:31], s[18:19], s[16:17]")
        a("s_lshl_b32 s33, s33, 2"); a("s_add_u32 s33, s33, s34"); a("s_lshl_b32 s33, s33, 13"); a("v_lshl_add_u32 v3, v3, 7, s33")
        a("global_load_dword a95, v4, s[30:31]")
        a("global_load_dword a95, v3, s[10:11]")
        a.label("no_epf")
    a("s_cmp_eq_u32 s75, 1"); a("s_cbranch_scc0 no_probe")
    a("s_mov_b32 s47, 0")
    a("s_cmp_lt_u32 s44, 4"); a("s_cbranch_scc0 probe_done")
    a(f"s_add_u32 s30, s28, {rec.WS_PROBE}"); a("s_addc_u32 s31, s29, 0")
    a("s_lshr_b32 s32, s2, 5"); a("s_and_b32 s33, s32, 1"); a("s_lshr_b32 s32, s32, 1"); a("s_lshl_b32 s32, s32, 2"); a("s_add_u32 s32, s32, s33"); a("s_lshl_b32 s32, s32, 12")
    a("s_and_b32 s33, s2, 31"); a("s_lshl_b32 s33, s33, 7"); a("s_add_u32 s32, s32, s33")
    a("v_mov_b32 v3, s32")
    a("s_mov_b64 exec, 1")
    a("s_mov_b32 s38, -1"); a("s_mov_b32 s39, -1"); a("s_mov_b32 s40, 6")
    a.label("probe_loop")
    a("s_memtime s[34:35]"); a("s_waitcnt lgkmcnt(0)")
    a("global_store_dword v3, v2, s[30:31] sc1"); a("s_waitcnt vmcnt(0)")
    a("s_memtime s[36:37]"); a("s_waitcnt lgkmcnt(0)")
    a("s_sub_u32 s36, s36, s34"); a("s_min_u32 s36, s36, s38"); a("s_mov_b32 s38, s39"); a("s_mov_b32 s39, s36")
    a("v_xor_b32 v3, 0x2000, v3")
    a("s_sub_u32 s40, s40, 1"); a("s_cmp_lg_u32 s40, 0"); a("s_cbranch_scc1 probe_loop")
    a("s_mov_b64 exec, -1")
    a("s_cmp_lt_u32 s39, s38"); a("s_cselect_b32 s47, 1, 0")
    a.label("probe_done")
    a("v_mov_b32 v3, s47"); a("ds_write_b32 v2, v3 offset:4")
    a.label("no_probe")
    a("s_cmp_lg_u32 s75, 0"); a("s_cbranch_scc1 role_wait")
    a("s_and_b32 s32, s44, 3"); a("s_lshl_b32 s32, s32, 2"); a("s_and_b32 s33, s44, 4"); a("s_lshl_b32 s33, s33, 5"); a("s_add_u32 s32, s32, s33")
    a("v_mov_b32 v3, s32"); a("v_mov_b32 v4, 1")
    a("s_mov_b64 exec, 1")
    a("global_atomic_add v5, v3, v4, s[26:27] sc0 sc1"); a("s_waitcnt vmcnt(0)")
    a("v_readfirstlane_b32 s45, v5")
    a("s_cmp_lt_u32 s45, 32"); a("s_cbranch_scc1 role_have")
    a(f"v_mov_b32 v3, {D_OVF}")
    a("global_atomic_add v5, v3, v4, s[26:27] sc0 sc1"); a("s_waitcnt vmcnt(0)")
    a("v_readfirstlane_b32 s45, v5")
    a.label("role_poll")
    a("global_load_dwordx4 v[8:11], v2, s[26:27] sc1"); a("global_load_dwordx4 v[12:15], v2, s[26:27] offset:128 sc1"); a("s_waitcnt vmcnt(0)")
    a("s_mov_b32 s33, 0")
    for i in range(8):
        a(f"v_readfirstlane_b32 s{34+i}, v{8+i}"); a(f"s_add_u32 s33, s33, s{34+i}")
    a("s_cmp_eq_u32 s33, 256"); a("s_cbranch_scc1 role_pick")
    a("s_sleep 8"); a("s_add_u32 s46, s46, 1"); a(f"s_cmp_lt_u32 s46, {WSPIN}"); a("s_cbranch_scc1 role_poll")
    a("s_mov_b64 exec, -1"); a("s_branch w_fail")
    a.label("role_pick")
    for i in range(8):
        a(f"s_min_u32 s33, s{34+i}, 32"); a("s_add_u32 s45, s45, s33"); a(f"s_mov_b32 s44, {i}")
        if i < 7:
            a("s_cmp_lt_u32 s45, 32"); a("s_cbranch_scc1 role_have"); a("s_sub_u32 s45, s45, 32")
    a.label("role_have")
    a("s_lshl_b32 s32, s44, 5"); a("s_or_b32 s32, s32, s45"); a("v_mov_b32 v3, s32")
    a("ds_write_b32 v2, v3")
    a("s_mov_b64 exec, -1")
    a.label("role_wait")
    a("s_waitcnt lgkmcnt(0)"); a("s_barrier")
    a("ds_read_b64 v[4:5], v2"); a("s_waitcnt lgkmcnt(0)")
    a("v_readfirstlane_b32 s32, v4"); a("v_readfirstlane_b32 s47, v5")
    a("s_cmp_lg_u32 s75, 0"); a("s_cbranch_scc1 voted")
    a("s_cmp_ge_u32 s32, 128"); a("s_cbranch_scc1 voted")
    a("s_and_b32 s47, s47, 1"); a("s_lshl_b32 s47, s47, 16"); a("s_or_b32 s47, s47, 1"); a("v_mov_b32 v3, s47")
    a("s_mov_b64 exec, 1")
    a(f"global_atomic_add v2, v3, s[26:27] offset:{rec.DBG_VOTE} sc1")
    a("s_mov_b64 exec, -1")
    a.label("voted")
    a("s_barrier")
    if "span" in rec.OPT:
        a("s_and_b32 s98, s2, 0x38"); a("s_or_b32 s98, s98, s75"); a("s_cmp_lg_u32 s98, 0"); a("s_cbranch_scc1 span1")
        a("s_memrealtime s[98:99]"); a("s_waitcnt lgkmcnt(0)"); a("s_not_b32 s100, s100"); a("v_mov_b32 v4, s100"); a("v_mov_b32 v5, s98")
        a("s_mov_b64 exec, 1"); a("global_atomic_umax v2, v4, s[26:27] offset:48 sc1"); a("global_atomic_umax v2, v5, s[26:27] offset:52 sc1"); a("s_mov_b64 exec, -1")
        a.label("span1")
    a("s_and_b32 s45, s32, 31"); a("s_bfe_u32 s44, s32, 0x30005")
    a("s_cmp_ge_u32 s44, 4"); a("s_cbranch_scc1 worker")
    a("s_lshl_b32 s18, s44, 3"); a("s_lshr_b32 s19, s45, 2"); a("s_add_u32 s18, s18, s19"); a("s_and_b32 s19, s45, 3")
    rec.emit_rec(a, "rec", prof=prof, kvwait=True)
    a.label("worker")
    a("s_sub_u32 s44, s44, 4")
    a("v_and_b32 v0, 63, v0")
    gemm.setup_common(a)
    a("s_mov_b32 s88, 0"); a("s_mov_b32 s89, 0"); a("s_mov_b32 s77, 0")
    a("s_mov_b32 s59, 0") if PROF else None
    a("s_lshl_b32 s96, s44, 5"); a("s_add_u32 s96, s96, s45"); a("s_lshl_b32 s96, s96, 3"); a("s_add_u32 s96, s96, s75")
    a("s_lshl_b32 s32, s44, 3"); a("s_lshr_b32 s44, s45, 3"); a("s_and_b32 s45, s45, 7"); a("s_add_u32 s45, s45, s32")
    if PROF: a("s_lshl_b32 s97, s44, 5"); a("s_add_u32 s97, s97, s45")
    wstamp(a, 0)
    def g1(grp):
        MT, first = ((2, 0), (3, 32), (3, 80))[grp]
        a("s_mov_b32 s23, s44")
        a("s_mov_b32 s30, s45"); a(f"s_mul_i32 s31, s23, {4*MT}"); a(f"s_add_u32 s31, s31, {first}")
        task_g1(a, MT, grp)
    def tile_2x4():
        a("s_bfe_u32 s30, s45, 0x10003"); a("s_lshl_b32 s30, s30, 1"); a("s_and_b32 s32, s45, 1"); a("s_add_u32 s30, s30, s32")
        a("s_lshr_b32 s31, s45, 4"); a("s_lshl_b32 s31, s31, 2"); a("s_bfe_u32 s32, s45, 0x20001"); a("s_add_u32 s31, s31, s32")
    touches(a, [(10, 1 << 20, 3, 0, 3)]*3)
    if rec.PAR["ST"] == 1: a("s_mov_b32 s98, 0")
    g1(0)
    if not rec.PAR["RPF"]: touches(a, [(4, 0, 4, 0, 4), (6, 0, 6, 0, 4), (6, 0, 6, 4, 2)])
    elif rec.PAR["RPF"] == 1 and not rec.PAR["QPL"]: touches(a, [(14, 0, 8, 0, 4), (14, 0, 8, 4, 4), (14, 0, 8, 4, 4)])
    g1(1)
    if not rec.PAR["RPF"]: touches(a, [(14, 0, 8, 0, 4), (14, 0, 8, 4, 4), (8, 0, 2, 0, 2)])
    a("s_cmp_lt_u32 s44, 2"); a("s_cbranch_scc1 w_g1c")
    a("s_lshl_b32 s23, s44, 1"); a("s_and_b32 s32, s45, 1"); a("s_add_u32 s23, s23, s32")
    a("s_cmp_eq_u32 s23, 6"); a("s_cbranch_scc1 w_wot0")
    tile_2x4()
    a("s_and_b32 s32, s44, 1"); a("s_lshl_b32 s32, s32, 2"); a("s_add_u32 s30, s30, s32")
    a.label("w_kv")
    task_g4kv(a)
    wstamp(a, 0)
    a("s_cmp_eq_u32 s23, 5"); a("s_cbranch_scc0 w_kvd")
    a("s_mov_b32 s23, 7"); a("s_add_u32 s30, s30, 3"); a("s_branch w_kv")
    a.label("w_kvd")
    a("s_cmp_eq_u32 s23, 7"); a("s_cbranch_scc1 w_g1c")
    a.label("w_wot0")
    a("s_and_b32 s32, s44, 1"); a("s_add_u32 s30, s45, s32"); a("s_mov_b32 s31, 0")
    a.label("w_wot")
    task_wot(a)
    a("s_add_u32 s31, s31, 1"); a("s_cmp_lt_u32 s31, 2"); a("s_cbranch_scc1 w_wot")
    wstamp(a, 0)
    a.label("w_g1c")
    g1(2)
    a.label("w_g2a")
    a("s_lshr_b32 s30, s45, 1"); a("s_and_b32 s31, s45, 1"); a("s_lshr_b32 s32, s44, 1"); a("s_xor_b32 s32, s32, s44"); a("s_lshl_b32 s32, s32, 1"); a("s_add_u32 s31, s31, s32")
    task_g2a(a)
    wstamp(a, 0)
    a("s_cmp_eq_u32 s44, 0"); a("s_cbranch_scc1 w_g5")
    a("s_cmp_eq_u32 s44, 2"); a("s_cbranch_scc1 w_set2")
    a("s_lshr_b32 s30, s45, 3")
    a("s_cmp_eq_u32 s44, 3"); a("s_cbranch_scc1 w_f1")
    a("s_and_b32 s31, s45, 7")
    task_g3(a, 2)
    wstamp(a, 0)
    a(f"s_mov_b32 s34, {setmask(1):#x}")
    a("s_branch w_stream")
    a.label("w_f1")
    a("s_lshl_b32 s31, s31, 2"); a("s_bfe_u32 s32, s45, 0x20001"); a("s_add_u32 s31, s31, s32")
    task_g3(a, 1)
    wstamp(a, 0)
    a.label("w_set2")
    a("s_bitcmp1_b32 s45, 0"); a("s_cbranch_scc1 w_exit")
    a("s_and_b32 s32, s44, 1"); a("s_add_u32 s45, s45, s32")
    a(f"s_mov_b32 s34, {setmask(2):#x}")
    a("s_branch w_stream")
    a.label("w_g5")
    tile_2x4()
    task_g4q(a)
    wstamp(a, 0)
    task_g5(a)
    wstamp(a, 0)
    a(f"s_mov_b32 s34, {setmask(0):#x}")
    a.label("w_stream")
    task_stream(a)
    wstamp(a, 0)
    if "span" in rec.OPT:
        a("s_and_b32 s98, s45, 7"); a("s_or_b32 s98, s98, s75"); a("s_cmp_lg_u32 s98, 0"); a("s_cbranch_scc1 w_exit")
        a("s_waitcnt vmcnt(0)"); a("s_memrealtime s[98:99]"); a("s_waitcnt lgkmcnt(0)"); a("v_mov_b32 v5, s98"); a("v_mov_b32 v2, 0")
        a("s_mov_b64 exec, 1"); a("global_atomic_umax v2, v5, s[26:27] offset:60 sc1")
    a("s_endpgm")
    a.label("w_fail")
    a("v_mov_b32 v16, 0"); a("v_mov_b32 v17, 0xdead"); a("global_store_dword v16, v17, s[26:27] offset:248")
    a.label("w_exit")
    a("s_endpgm")
    gemm.emit_core(a, "core_T", 'T')
    gemm.emit_core(a, "core_N", 'N')
    gemm.emit_core(a, "core_T3", 'T', MT=3)
    gemm.emit_core(a, "core_T2", 'T', MT=2)
    gemm.WFLAG = "sc1"; gemm.WFRAG = True
    gemm.emit_core(a, "core_F1", 'T', MT=1, aflag="sc1")
    gemm.emit_core(a, "core_F2", 'T', MT=2, aflag="sc1")
    gemm.WFLAG = ""; gemm.WFRAG = False
    a.label("code_end")

def generate(prof=False):
    global PROF
    PROF = bool(prof)
    gemm.TUNE["SLP"] = rec.PAR.get("SLP", 0)
    raw = open(f"cdna_kernels/{NAME}.s.ref").read().split("\n")
    hdr = []
    for l in raw:
        if not l.startswith(";") or "Override" in l: break
        hdr.append(l)
    a = Asm()
    emit_mega(a, prof)
    s = "\n".join(hdr) + "\n"
    s += f"; @launch kernel={NAME}_kernel grid=(256,1,1) block=(512,1,1) lds=163840\n"
    s += '.amdgcn_target "amdgcn-amd-amdhsa--gfx950"\n.text\n' + a.text() + '.section .rodata,"a"\n'
    s += kernel_desc(NAME + "_kernel", vgpr=256, accum=160)
    return s

if __name__ == "__main__":
    out = sys.argv[1] if len(sys.argv) > 1 else f"cdna_kernels/{NAME}.s"
    open(out, "w").write(generate())
    print("wrote", out)
```

```python
from asmgen import *

WS_RING  = 1 << 20
WS_PROBE = 0x1f0000
WS_FLAG2 = 0x140000
WS_HW    = 0x160000
WS_FLAG  = 0x1e0000
WS_MEMS  = 2 << 20
WS_KMVM  = 4 << 20
WS_KX    = 20 << 20
WS_VX    = 52 << 20
WS_WOT   = 126 << 20
WOT_CG = 1 << 19
WS_PART1 = 146 << 20
L_PART = 0
L_P    = 24576
L_ZERO = 26624
L_SEL  = 28672
L_PARW = 7*16384
L_KX   = 131072
L_VX   = 147456
SPIN_MAX = 400000
NSTEP = 64
DBG_VOTE, DBG_CLR, DBG_PROG = 40, 44, 192
PAR0 = dict(THA=0, THQ=0, EPF=1, DROP=0, RPF=0, DMI=0, DDEL=0, WPF=2, QPL=0, ST=1, BDEL=0, SPLITB=1, KFAR=1, VFAR=1, RDEL=10, MDEL=7, DM=1, MGAP=3, PRIO=1, XD=2, XGAP=1, VDEL=10, PPRIO=2, XDEL=7, DR=2, RGAP=5, MACK=0)
PAR = dict(PAR0)
OPT = set()

def backoff(a, n):
    q = int(round(n*4))
    if q // 4: a(f"s_sleep {q // 4}")
    if q % 4: a(f"s_nop {4*(q % 4) - 1}")

def guard(a, loop, fail):
    a("s_add_u32 s24, s24, 1"); a(f"s_cmp_lt_u32 s24, {SPIN_MAX}"); a(f"s_cbranch_scc1 {loop}"); a(f"s_branch {fail}")

def pstamp(a, prof, k):
    if prof == 3:
        a("s_memrealtime s[56:57]"); a("s_waitcnt lgkmcnt(0)"); a(f"s_mov_b32 s{k}, s56")

def stamp(a, prof, k, at=None):
    if not prof: return
    if prof >= 3 and (k != 7 or prof > 3): return
    if prof == 2:
        lab = a.newlabel("st")
        a("s_cmp_lg_u32 s22, " + ("31" if (k == 7 or at) else "30")); a(f"s_cbranch_scc1 {lab}")
        a("s_memrealtime s[56:57]"); a("s_waitcnt lgkmcnt(0)"); a("s_and_b32 s56, s56, 0xffffff"); a("s_lshl_b32 s57, s24, 24"); a(f"s_or_b32 s{60+k}, s56, s57")
        a.label(lab)
        return
    a("s_memtime s[56:57]"); a("s_waitcnt lgkmcnt(0)")
    a("s_sub_u32 s58, s56, s59"); a(f"s_add_u32 s{60+k}, s{60+k}, s58"); a("s_mov_b32 s59, s56")

def fs(a, prof, k, which):
    if prof == which: a(f"s_memtime s[{66+2*k}:{67+2*k}]")

def near_bit(a, tmp, off, par, kv=False):
    flip = kv and PAR["KFAR"] != PAR["VFAR"]
    if flip: a(f"s_cmp_ge_u32 {off}, {WS_VX}"); a(f"s_addc_u32 {tmp}, {par}, {PAR['KFAR']}"); a(f"s_lshl_b32 {tmp}, {tmp}, 21"); a(f"s_xor_b32 {tmp}, {tmp}, {off}"); a(f"s_lshr_b32 {tmp}, {tmp}, 21")
    else:
        a(f"s_lshr_b32 {tmp}, {off}, 21"); a(f"s_xor_b32 {tmp}, {tmp}, {par}")
        if kv and PAR["KFAR"]: a(f"s_xor_b32 {tmp}, {tmp}, 1")
    a(f"s_and_b32 {tmp}, {tmp}, 1"); a(f"s_lshl_b32 {tmp}, {tmp}, 13")

def near(a, dst, off, par="s25", wb=16, tmp="s36", kv=False):
    near_bit(a, tmp, off, par, kv)
    a(f"s_add_u32 {tmp}, {tmp}, {off}"); a(f"s_add_u32 s{dst}, s{wb}, {tmp}"); a(f"s_addc_u32 s{dst+1}, s{wb+1}, 0")

def v_from_k(a, v, k):
    a(f"s_add_u32 s{v}, s{k}, {WS_VX - WS_KX}"); a(f"s_addc_u32 s{v+1}, s{k+1}, 0")
    if PAR["KFAR"] != PAR["VFAR"]: a(f"s_xor_b32 s{v}, s{v}, 0x2000")

def kv_tile(a, dst, seg, tmp):
    a(f"s_sub_u32 {tmp}, {seg}, 16"); a(f"s_mul_i32 {tmp}, {tmp}, 43"); a(f"s_lshr_b32 {tmp}, {tmp}, 8"); a(f"s_add_u32 {tmp}, {tmp}, 4")
    a(f"s_lshr_b32 {dst}, {seg}, 2"); a(f"s_cmp_lt_u32 {dst}, 4"); a(f"s_cselect_b32 {dst}, {dst}, {tmp}")

def tagchk(a, regs, tag, t0, t1, mf=()):
    op = "0x80" if tag else "0xfe"
    f3 = (lambda d, x, y, z: f"v_max3_u32 v{d}, v{x}, v{y}, v{z}") if tag is None else (lambda d, x, y, z: f"v_bitop3_b32 v{d}, v{x}, v{y}, v{z} bitop3:{op}")
    mf = list(mf)
    ops = [f3(t0, *regs[0:3]), f3(t1, *regs[3:6])]
    rest = regs[6:]; k = 0
    while rest:
        t = (t0, t1)[k & 1]; k += 1
        ops.append(f3(t, t, rest[0], rest[1])); rest = rest[2:]
    ops.append(f"v_max_u32 v{t0}, v{t0}, v{t1}" if tag is None else f"v_bitop3_b32 v{t0}, v{t0}, v{t1}, 1 bitop3:" + ("0x80" if tag else "0xa8"))
    per = -(-len(ops) // max(len(mf), 1))
    for i, o in enumerate(ops):
        if mf and i % per == 0: a(mf.pop(0))
        a(o)
    for m in mf: a(m)
    a(f"v_cmp_eq_u32 vcc, -1, v{t0}" if tag is None else f"v_cmp_ne_u32 vcc, {tag}, v{t0}")

def emit_rec(a, pfx, prof=False, kvwait=False):
    L = lambda n: f"{pfx}_{n}"
    FAIL = L('fail')
    a("s_load_dwordx8 s[4:11], s[0:1], 40")
    a("s_load_dwordx2 s[12:13], s[0:1], 32")
    a("s_load_dwordx2 s[14:15], s[0:1], 88")
    a("s_load_dwordx2 s[16:17], s[0:1], 96")
    a("v_lshrrev_b32 v1, 6, v0")
    a("v_and_b32 v0, 63, v0")
    a("s_lshl_b32 s20, s18, 2"); a("s_add_u32 s20, s20, s19")
    a("v_readfirstlane_b32 s21, v1")
    a("v_lshlrev_b32 v6, 4, v0")
    a("s_mov_b32 s24, 0")
    a("s_waitcnt lgkmcnt(0)")
    pstamp(a, prof, 90)
    if "diag" in OPT: pstamp(a, 3, 97)
    a("s_add_u32 s16, s16, 0x1fffff"); a("s_addc_u32 s17, s17, 0"); a("s_and_b32 s16, s16, 0xffe00000")
    a("s_lshl_b32 s36, s18, 13"); a(f"s_add_u32 s36, s36, {WS_RING}"); a("s_add_u32 s32, s16, s36"); a("s_addc_u32 s33, s17, 0")
    a("s_and_b32 s45, s20, 63"); a("s_lshl_b32 s45, s45, 7"); a("s_lshr_b32 s36, s20, 6"); a("s_lshl_b32 s36, s36, 14"); a("s_add_u32 s45, s45, s36")
    a("s_and_b32 s44, s20, 1"); a("s_lshl_b32 s44, s44, 12"); a("s_lshr_b32 s42, s20, 1"); a("s_lshl_b32 s42, s42, 14"); a("s_add_u32 s44, s44, s42")
    a("v_mov_b32 v14, v6"); a("v_add_u32 v15, 0x1000, v6")
    a("s_lshl_b32 s36, s19, 10"); a("v_add_u32 v9, s36, v6")
    a("s_lshl_b32 s36, s19, 9"); a("s_add_u32 s36, s36, 4096"); a("v_and_b32 v8, 0x1ff, v6"); a("v_add_u32 v8, s36, v8")
    a("s_cmp_eq_u32 s21, 7"); a(f"s_cbranch_scc0 {L('noclr')}")
    for i in range(4): a(f"v_mov_b32 v{68+i}, -1")
    a("v_add_u32 v16, s44, v6"); a("v_add_u32 v17, 0x2000, v16")
    for p in range(2):
        for i in range(4): a(f"global_store_dwordx4 v{16+p}, v[68:71], s[16:17] offset:{1024*i} sc1")
    if PAR["DROP"]:
        a(f"v_add_u32 v16, {WS_PART1}, v16"); a(f"v_add_u32 v17, {WS_PART1}, v17")
        for p in range(2):
            for i in range(4): a(f"global_store_dwordx4 v{16+p}, v[68:71], s[16:17] offset:{1024*i} sc1")
    a("global_store_dwordx4 v9, v[68:71], s[32:33] sc1"); a("global_store_dwordx4 v8, v[68:71], s[32:33] sc1")
    a("v_bfe_u32 v16, v0, 3, 2"); a("v_lshlrev_b32 v16, 15, v16"); a("v_lshrrev_b32 v17, 5, v0"); a("v_lshl_add_u32 v16, v17, 13, v16")
    a("v_and_b32 v17, 7, v0"); a("v_lshl_add_u32 v16, v17, 4, v16"); a(f"s_add_u32 s36, s45, {WS_MEMS}"); a("v_add_u32 v16, s36, v16")
    for i in range(16):
        a("global_store_dwordx4 v16, v[68:71], s[16:17] sc1"); a("v_add_u32 v16, 0x20000, v16")
    a("s_lshl_b32 s36, s20, 7"); a(f"s_add_u32 s36, s36, {WS_FLAG}"); a("v_and_b32 v16, 0x70, v6"); a("v_add_u32 v16, s36, v16")
    a("global_store_dwordx4 v16, v[68:71], s[16:17] sc1")
    a("s_lshl_b32 s36, s20, 10"); a(f"s_add_u32 s36, s36, {WS_FLAG2}"); a("v_add_u32 v16, s36, v6")
    a("global_store_dwordx4 v16, v[68:71], s[16:17] sc1")
    a("s_lshl_b32 s36, s20, 8"); a(f"s_add_u32 s36, s36, {WS_HW}"); a("v_and_b32 v16, 0xf0, v6"); a("v_add_u32 v16, s36, v16")
    a("global_store_dwordx4 v16, v[68:71], s[16:17] sc1")
    a("s_barrier")
    a("v_mov_b32 v17, 1"); a("v_mov_b32 v16, 0")
    a("s_waitcnt vmcnt(0)")
    a("s_mov_b64 exec, 1")
    a(f"global_atomic_add v16, v17, s[14:15] offset:{DBG_CLR} sc1")
    a("s_mov_b64 exec, -1")
    a(f"s_branch {L('clrd')}")
    a.label(L('noclr'))
    a("s_barrier")
    a.label(L('clrd'))
    def xdma(base, ldsreg):
        for kt in range(2):
            a(f"s_add_u32 m0, {ldsreg}, {kt*4096}")
            a("s_nop 0")
            for jj in range(4):
                a(f"global_load_lds_dwordx4 v{14+kt}, {base} offset:{jj*1024} sc1")
    def kv_poll(tag, tile):
        a(f"s_lshl_b32 s52, {tile}, 7"); a("s_lshr_b32 s36, s18, 1"); a("s_lshl_b32 s36, s36, 2"); a("s_add_u32 s52, s52, s36"); a(f"s_add_u32 s52, s52, {WS_FLAG + 96*128}")
        a("v_mov_b32 v17, s52")
        a.label(L(tag))
        a("global_load_dword v16, v17, s[16:17] sc1"); a("global_load_dword v18, v17, s[16:17] offset:64 sc1"); a("s_waitcnt vmcnt(0)")
        a("v_or_b32 v16, v16, v18")
        a("v_cmp_ne_u32 vcc, 0, v16"); a(f"s_cbranch_vccz {L(tag + 'ok')}")
        a("s_sleep 4")
        guard(a, L(tag), FAIL)
        a.label(L(tag + 'ok'))
    def kv_bases(segreg):
        a(f"s_lshl_b32 s42, {segreg}, 5"); a("s_add_u32 s42, s42, s18"); a("s_lshl_b32 s42, s42, 14"); a(f"s_add_u32 s42, s42, {WS_KX}")
        near(a, 48, "s42", kv=True)
        v_from_k(a, 34, 48)
    a("s_and_b32 s39, s19, 1"); a("s_xor_b32 s39, s39, 1"); a("s_lshl_b32 s39, s39, 1"); a("s_lshr_b32 s36, s19, 1"); a("s_add_u32 s39, s39, s36")
    a("s_lshl_b32 s43, s21, 14")
    a("s_lshl_b32 s36, s21, 20"); a("s_lshl_b32 s42, s18, 8"); a("s_add_u32 s36, s36, s42")
    a("v_lshrrev_b32 v10, 2, v0"); a("v_lshlrev_b32 v10, 13, v10"); a("v_and_b32 v11, 3, v0"); a("v_lshl_add_u32 v10, v11, 4, v10")
    a("s_lshl_b32 s42, s39, 6"); a("s_add_u32 s42, s42, s36"); a("v_add_u32 v10, s42, v10")
    a("v_lshrrev_b32 v11, 3, v0"); a("v_lshlrev_b32 v11, 13, v11"); a("v_and_b32 v12, 7, v0"); a("v_lshl_add_u32 v11, v12, 4, v11")
    a("s_and_b32 s42, s19, 1"); a("s_lshl_b32 s42, s42, 7"); a("s_add_u32 s42, s42, s36"); a("v_add_u32 v11, s42, v11")
    def qkdma(base, nt):
        for i in range(16):
            a(f"s_add_u32 m0, s43, {i*1024}")
            a("s_nop 0")
            a(f"global_load_lds_dwordx4 v11, {base} {nt}")
            if i < 15: a("v_add_u32 v11, 0x10000, v11")
    for _ in range(PAR["THA"]): a("s_sleep 32")
    a("s_cmp_lt_u32 s19, 2"); a(f"s_cbranch_scc1 {L('isq')}")
    qkdma("s[6:7]", ""); a(f"s_branch {L('qkd')}")
    a.label(L('isq'))
    for _ in range(PAR["THQ"]): a("s_sleep 32")
    qkdma("s[4:5]", "" if PAR["QPL"] else "nt")
    a.label(L('qkd'))
    a("v_lshrrev_b32 v12, 5, v0"); a("v_lshlrev_b32 v12, 4, v12")
    a("v_bfe_u32 v13, v0, 4, 1"); a("v_lshl_add_u32 v12, v13, 2, v12")
    a("v_bfe_u32 v13, v0, 2, 1"); a("v_add_u32 v12, v12, v13")
    a("v_bfe_u32 v13, v0, 3, 1"); a("v_lshl_add_u32 v12, v13, 3, v12")
    a("v_and_b32 v13, 3, v0"); a("v_lshlrev_b32 v13, 3, v13"); a("v_add_u32 v13, s43, v13")
    a("v_lshl_add_u32 v7, v12, 7, v13"); a("v_lshl_add_u32 v12, v12, 6, v13")
    def qkread(ks):
        for t in range(4):
            for pp in range(4):
                hi, lo = pp >> 1, pp & 1
                reg = (t*2 + ks)*8 + pp*2
                a(f"ds_read_b64_tr_b16 a[{reg}:{reg+1}], v7 offset:{(64*ks + 32*hi + 2*lo)*128 + t*32}")
            a("s_waitcnt lgkmcnt(4)")
        a("s_waitcnt lgkmcnt(0)")
    def vread():
        for t in range(2):
            for ks in range(2):
                for pp in range(4):
                    hi, lo = pp >> 1, pp & 1
                    reg = ((4 + t)*2 + ks)*8 + pp*2
                    a(f"ds_read_b64_tr_b16 a[{reg}:{reg+1}], v12 offset:{(64*ks + 32*hi + 2*lo)*64 + t*32}")
                a("s_waitcnt lgkmcnt(4)")
        a("s_waitcnt lgkmcnt(0)")
    a("s_waitcnt vmcnt(8)")
    pstamp(a, prof, 91)
    qkread(0)
    for i in range(8):
        a(f"s_add_u32 m0, s43, {i*1024}")
        a("s_nop 0")
        a("global_load_lds_dwordx4 v10, s[8:9]")
        if i < 7: a("v_add_u32 v10, 0x20000, v10")
    a("s_waitcnt vmcnt(8)"); qkread(1)
    a("v_and_b32 v11, 7, v0"); a("v_lshlrev_b32 v11, 11, v11"); a("v_lshrrev_b32 v13, 3, v0"); a("v_lshl_add_u32 v11, v13, 4, v11")
    a("s_lshl_b32 s36, s21, 8"); a("v_add_u32 v11, s36, v11")
    a("global_load_dwordx4 v[16:19], v11, s[12:13]"); a("global_load_dwordx4 v[20:23], v11, s[12:13] offset:128")
    a("v_lshrrev_b32 v10, 3, v0"); a("v_lshlrev_b32 v10, 11, v10"); a("v_and_b32 v11, 7, v0"); a("v_lshl_add_u32 v10, v11, 4, v10")
    a("s_lshl_b32 s36, s18, 18"); a("s_lshl_b32 s42, s19, 9"); a("s_add_u32 s36, s36, s42")
    a("s_and_b32 s42, s21, 3"); a("s_lshl_b32 s42, s42, 7"); a("s_add_u32 s36, s36, s42")
    a("v_add_u32 v10, s36, v10")
    def odma(half):
        a(f"v_add_u32 v11, {half*64*2048}, v10")
        for i in range(8):
            a(f"s_add_u32 m0, s43, {half*8192 + i*1024}")
            a("s_nop 0")
            a("global_load_lds_dwordx4 v11, s[10:11]")
            if i < 7: a("v_add_u32 v11, 0x4000, v11")
    a("v_mov_b32 v56, 0"); a("s_lshr_b32 s36, s18, 3"); a("s_lshl_b32 s36, s36, 2"); a("v_mov_b32 v57, s36")
    a("s_cmp_lt_u32 s21, 4"); a(f"s_cbranch_scc0 {L('wv_only')}")
    odma(1)
    a("s_waitcnt vmcnt(8)"); vread()
    odma(0)
    a("v_lshrrev_b32 v12, 2, v0")
    a("v_lshlrev_b32 v12, 7, v12"); a("v_and_b32 v13, 3, v0"); a("v_lshl_add_u32 v12, v13, 4, v12"); a("v_add_u32 v12, s43, v12")
    a("s_waitcnt vmcnt(0)")
    def wo_reg(ct, jj):
        return f"v[{96+(ct*4+jj)*4}:{96+(ct*4+jj)*4+3}]"
    for ct in range(4):
        for jj in range(4):
            for lo in range(2):
                base = 96 + (ct*4 + jj)*4 + lo*2
                off = (32*jj + 16*lo)*128 + (ct >> 1)*64 + (ct & 1)*8
                a(f"ds_read_b64_tr_b16 v[{base}:{base+1}], v12 offset:{off}")
        a("s_waitcnt lgkmcnt(0)")
    a(f"s_branch {L('wdone')}")
    a.label(L('wv_only'))
    a("s_cmp_eq_u32 s21, 7"); a(f"s_cbranch_scc0 {L('wv2')}")
    a("global_load_dwordx4 v[48:51], v9, s[32:33] sc1"); a("global_load_dwordx4 v[52:55], v8, s[32:33] sc1")
    a(f"global_load_dwordx2 v[58:59], v56, s[14:15] offset:{DBG_VOTE} sc1"); a("global_load_dword v61, v57, s[14:15] sc1")
    a.label(L('wv2'))
    a("s_waitcnt vmcnt(0)"); vread()
    a.label(L('wdone'))
    pstamp(a, prof, 89)

    a("s_cmp_eq_u32 s21, 7"); a(f"s_cbranch_scc0 {L('sync1')}")
    a.label(L('clrw'))
    a("v_readfirstlane_b32 s36, v58"); a("v_readfirstlane_b32 s37, v59")
    a("s_and_b32 s42, s36, 0xffff"); a("s_add_u32 s42, s42, s37"); a("s_cmp_eq_u32 s42, 256"); a(f"s_cbranch_scc1 {L('clrok')}")
    a("s_sleep 8")
    a(f"global_load_dwordx2 v[58:59], v56, s[14:15] offset:{DBG_VOTE} sc1"); a("s_waitcnt vmcnt(0)")
    a("global_load_dword v61, v57, s[14:15] sc1"); a("s_waitcnt vmcnt(0)")
    guard(a, L('clrw'), FAIL)
    a.label(L('clrok'))
    a("v_cmp_gt_u32 vcc, 32, v61"); a(f"s_cbranch_vccz {L('cntok')}")
    a("global_load_dword v61, v57, s[14:15] sc1"); a("s_waitcnt vmcnt(0)")
    a.label(L('cntok'))
    a("s_lshr_b32 s36, s36, 16"); a("s_cmp_gt_u32 s36, 64"); a("s_cselect_b32 s25, 1, 0")
    a("v_mov_b32 v60, s25"); a(f"v_mov_b32 v56, {L_PARW}")
    a("ds_write_b64 v56, v[60:61]")
    a.label(L('sync1'))

    a("s_and_b32 s36, s21, 3"); a("s_lshl_b32 s36, s36, 11"); a("s_lshr_b32 s42, s21, 2"); a("s_lshl_b32 s42, s42, 14"); a("s_add_u32 s36, s36, s42")
    a("v_add_u32 v1, s36, v6")
    a("v_and_b32 v2, 8, v0"); a("v_cmp_eq_u32 vcc, 0, v2"); a("v_mov_b32 v2, 0xeeee"); a("v_mov_b32 v3, 0x4444"); a("s_nop 1")
    a("v_cndmask_b32 v2, v2, v3, vcc")
    a("s_mul_i32 s36, s21, 3072"); a("v_add_u32 v3, s36, v6")
    a("s_mov_b32 s22, 0"); a("s_mov_b32 s51, 1")
    a("s_waitcnt vmcnt(0) lgkmcnt(0)"); a("s_barrier")
    if kvwait and PAR["RPF"]:
        a("s_load_dwordx8 s[68:75], s[0:1], 0")
        a("s_lshl_b32 s36, s20, 3"); a("s_add_u32 s36, s36, s21"); a("v_lshlrev_b32 v24, 2, v6"); a("s_mov_b32 m0, 0x10000")
        a("s_waitcnt lgkmcnt(0)")
        parts = [(74, 1 << 20, 3, 0, 3), (68, 0, 4, 0, 4), (70, 0, 6, 0, 4), (70, 0, 6, 4, 2), (72, 0, 2, 0, 2)] + ([(4, 0, 8, 0, 4), (4, 0, 8, 4, 4)] if PAR["RPF"] == 2 else [])
        for p, fix, per, first, nkb in parts:
            a(f"s_mul_i32 s42, s36, {per*1024}"); a(f"s_add_u32 s42, s42, {fix + first*1024}")
            a(f"v_min_u32 v25, {nkb*1024 - 64}, v24"); a("v_add_u32 v25, s42, v25")
            a(f"global_load_lds_dword v25, s[{p}:{p+1}]")
    for i in range(8): a(f"v_min_u32 v{16+i}, -2, v{16+i}")
    a(f"v_mov_b32 v24, {L_PARW}"); a("ds_read_b64 v[24:25], v24"); a("s_waitcnt lgkmcnt(0)")
    a("v_readfirstlane_b32 s25, v24"); a("v_readfirstlane_b32 s23, v25")
    a("s_and_b32 s25, s25, 1")
    if "safe" in OPT: a("s_mov_b32 s23, 0")
    a("s_lshl_b32 s36, s25, 13"); a("s_add_u32 s26, s16, s36"); a("s_addc_u32 s27, s17, 0")
    a(f"s_mov_b32 s42, {WS_PART1}"); near(a, 40, "s42")
    PB = lambda tag: "s[40:41]" if (tag and PAR["DROP"]) else "s[26:27]"
    a(f"s_mov_b32 s42, {WS_MEMS}"); near(a, 28, "s42")
    a("s_lshr_b32 s38, s18, 1"); a("s_lshl_b32 s38, s38, 14"); a("s_and_b32 s36, s18, 1"); a("s_lshl_b32 s36, s36, 12"); a("s_add_u32 s38, s38, s36"); a(f"s_add_u32 s38, s38, {WS_KMVM}")
    near(a, 30, "s38")
    if "diag" in OPT: pstamp(a, 3, 98)
    if prof:
        for k in range(8): a(f"s_mov_b32 s{60+k}, 0")
        a("s_memtime s[56:57]"); a("s_waitcnt lgkmcnt(0)"); a("s_mov_b32 s59, s56")
        pstamp(a, prof, 60)
    a("s_cmp_lt_u32 s21, 4"); a(f"s_cbranch_scc1 {L('setup_vo')}")
    a("s_cmp_eq_u32 s21, 6"); a(f"s_cbranch_scc1 {L('setup_sm')}")

    def head_word(val):
        a(f"v_mov_b32 v95, {val}")
        a("s_xor_b32 s36, s25, 1"); a("s_lshl_b32 s36, s36, 13"); a("s_add_u32 s36, s36, s45"); a(f"s_add_u32 s36, s36, {WS_HW}")
        a("v_mov_b32 v94, s36")
        a("s_mov_b64 exec, 1")
        a("global_store_dword v94, v95, s[16:17] sc1")
        a("s_mov_b64 exec, -1")
    def zero_acc():
        for i in range(24): a(f"v_mov_b32 v{24+i}, 0")
    def pair(p): return [(2*p, 0), (2*p+1, 0), (2*p, 1), (2*p+1, 1)]
    def sm(tt, ks, mb):
        dd = 24 + tt*4; b = (tt*2 + ks)*8
        a(f"v_smfmac_f32_16x16x64_bf16 v[{dd}:{dd+3}], v[{mb+4*ks}:{mb+3+4*ks}], a[{b}:{b+7}], v2")
    def cv(p, i): a(f"v_cvt_pk_bf16_f32 v{24+8*p+i}, v{24+8*p+2*i}, v{25+8*p+2*i}")
    def mload(b):
        a(f"global_load_dwordx4 v[{b}:{b+3}], v1, s[28:29] sc1")
        a(f"global_load_dwordx4 v[{b+4}:{b+7}], v1, s[28:29] offset:1024 sc1")
    def p1(name, mid=None):
        backoff(a, PAR["MDEL"])
        a.label(L(name))
        mload(16)
        a("s_waitcnt vmcnt(0)")
        a.label(L(name + '_in'))
        fs(a, prof, 0, 5)
        chk = ["v_max3_u32 v0, v16, v17, v18", "v_max3_u32 v7, v19, v20, v21", "v_max3_u32 v0, v0, v22, v23", "v_max_u32 v0, v0, v7", "v_cmp_eq_u32 vcc, -1, v0"]
        for i, (t, k) in enumerate(pair(0)):
            sm(t, k, 16)
            for c in chk[2*i:2*i+2]: a(c)
            if i == 2: a(f"s_cbranch_vccnz {L(name + '_retry')}")
        stamp(a, prof, 0)
        fs(a, prof, 1, 5)
        for t, k in pair(1): sm(t, k, 16)
        a("s_nop 3")
        for i, (t, k) in enumerate(pair(2)):
            cv(0, i)
            if i == 3: a("ds_write_b128 v3, v[24:27]")
            sm(t, k, 16)
        fs(a, prof, 3, 5)
        for i in range(4): cv(1, i)
        a("ds_write_b128 v3, v[32:35] offset:1024")
        fs(a, prof, 4, 5)
        if PAR["SPLITB"] == 2 and not mid:
            a("s_waitcnt lgkmcnt(0)"); a("s_barrier"); a("s_nop 0")
            for i in range(4): cv(2, i)
            a("ds_write_b128 v3, v[40:43] offset:2048")
            a("s_waitcnt lgkmcnt(0)")
        else:
            a("s_nop 2")
            for i in range(4): cv(2, i)
            a("ds_write_b128 v3, v[40:43] offset:2048")
            if PAR["SPLITB"]:
                a("s_waitcnt lgkmcnt(1)"); a("s_barrier")
                if mid:
                    mid(); a("s_waitcnt lgkmcnt(8)")
                else:
                    a("s_waitcnt lgkmcnt(0)")
            else:
                a("s_waitcnt lgkmcnt(0)")
        fs(a, prof, 6, 5)
        a("s_barrier")
        if mid and not PAR["SPLITB"]: mid()
        fs(a, prof, 7, 5)
        if prof == 5: a("s_waitcnt lgkmcnt(0)")
        stamp(a, prof, 1)
    def p1_retry(name):
        a.label(L(name + '_retry'))
        a("s_nop 7")
        for i in range(8): a(f"v_mov_b32 v{24+i}, 0")
        guard(a, L(name), FAIL)

    def step_adv():
        zero_acc()
        a("s_add_u32 s22, s22, 1")
        a("s_add_u32 s28, s28, 0x8000"); a("s_addc_u32 s29, s29, 0")
        a("s_add_u32 s38, s38, 0x40000"); near(a, 30, "s38")
    def step_end():
        step_adv()
        a("s_waitcnt vmcnt(0) lgkmcnt(0)")
        a("s_barrier")
        stamp(a, prof, 7)

    a("s_sub_u32 s37, s21, 4"); a("s_min_u32 s37, s37, 2")
    a("s_lshl_b32 s36, s37, 10"); a("v_add_u32 v4, s36, v6")
    a("v_and_b32 v48, 1, v0"); a("v_lshlrev_b32 v48, 4, v48"); a("v_mov_b32 v49, 0x3f80"); a("v_lshlrev_b32 v48, v48, v49")
    a("v_bfe_u32 v49, v0, 3, 1"); a("v_bfe_u32 v50, v0, 1, 1"); a("v_lshl_add_u32 v49, v49, 1, v50")
    a("v_lshrrev_b32 v50, 2, v0"); a("v_xor_b32 v50, v50, v0"); a("v_and_b32 v50, 4, v50"); a("v_add_u32 v49, v49, v50")
    for q in range(4):
        a(f"v_cmp_eq_u32 vcc, {q}, v49"); a("s_nop 1"); a(f"v_cndmask_b32 v{84+q}, 0, v48, vcc")
    a("v_and_b32 v48, 7, v0"); a("v_lshlrev_b32 v48, 4, v48"); a("v_and_b32 v49, 8, v0"); a("v_lshrrev_b32 v50, 4, v0")
    a("v_add_u32 v51, v48, v49"); a("v_lshl_add_u32 v10, v50, 7, v51")
    a("s_and_b32 s46, s19, 1"); a("s_lshl_b32 s46, s46, 1"); a("s_add_u32 s46, s46, s37")
    a("s_add_u32 s36, s39, 4"); a("s_cmp_eq_u32 s37, 2"); a("s_cselect_b32 s36, s36, s46"); a("s_lshl_b32 s36, s36, 9"); a("v_add_u32 v10, s36, v10")
    a("v_lshl_add_u32 v5, v50, 8, v51"); a("s_lshl_b32 s36, s46, 10"); a("s_lshr_b32 s42, s19, 1"); a("s_lshl_b32 s42, s42, 7"); a("s_add_u32 s36, s36, s42"); a("v_add_u32 v5, s36, v5")
    zero_acc()
    a(f"s_setprio {PAR['PPRIO']}")
    a("s_cmp_eq_u32 s21, 7"); a(f"s_cbranch_scc1 {L('setup_m')}")
    def rd8():
        for w in range(8): a(f"ds_read_b128 v[{48+4*w}:{51+4*w}], v4 offset:{3072*w}")
    def reduce8():
        for w in range(8):
            a(f"s_waitcnt lgkmcnt({7-w})")
            a(f"v_mfma_f32_16x16x32_bf16 v[80:83], v[{48+4*w}:{51+4*w}], v[84:87], " + ("0" if w == 0 else "v[80:83]"))
    def pack_tag(tag, last):
        if last:
            a(f"s_cmp_eq_u32 s22, {NSTEP-1}"); a(f"s_cbranch_scc1 {L(last)}")
        a("s_cmp_lt_u32 s23, 32")
        a("s_nop 4" if last else "s_nop 6")
        a("v_cvt_pk_bf16_f32 v88, v80, v81"); a("v_cvt_pk_bf16_f32 v89, v82, v83")
        for i in range(2): a(f"v_or_b32 v{90+i}, 1, v{88+i}" if tag else f"v_and_b32 v{90+i}, -2, v{88+i}")
    a("v_add_u32 v11, s44, v6")
    a("v_and_b32 v15, 7, v0"); a("v_lshlrev_b32 v15, 4, v15"); a("v_bfe_u32 v48, v0, 4, 1"); a("v_lshl_add_u32 v15, v48, 3, v15"); a("v_add_u32 v15, s45, v15")
    a("v_and_b32 v48, 1, v0"); a("v_lshlrev_b32 v48, 4, v48"); a("v_mov_b32 v49, 0x3f80"); a("v_lshlrev_b32 v48, v48, v49")
    a("v_bfe_u32 v49, v0, 1, 3")
    for q in range(4):
        a(f"v_cmp_eq_u32 vcc, {q}, v49"); a("s_nop 1"); a(f"v_cndmask_b32 v{92+q}, 0, v48, vcc")
    a(f"s_mul_i32 s54, s37, {WS_VX - WS_KX}"); a(f"s_mul_i32 s55, s37, {L_VX - L_KX}"); a(f"s_add_u32 s55, s55, {L_KX}")
    a("s_lshl_b32 s36, s18, 14"); a("s_add_u32 s54, s54, s36"); a(f"s_add_u32 s54, s54, {WS_KX}"); a("v_add_u32 v12, 0x1000, v6")
    DR = PAR["DR"]
    rsets = [96, 112, 128][:DR]
    for i in range(4): a(f"v_mov_b32 v{144+i}, -1")
    def rload(b):
        for i in range(4): a(f"global_load_dwordx4 v[{b+4*i}:{b+3+4*i}], v11, {PB(tag)} offset:{1024*i} sc1")
    a(f"s_branch {L('v0_in')}")
    a.label(L('v_loop'))
    for tag in range(2):
        n = f"v{tag}"
        p1(n, rd8)
        reduce8()
        pack_tag(tag, 'last_pub' if tag == (NSTEP - 1) & 1 else None)
        a(f"s_cbranch_scc1 {L(n + '_wt')}")
        a("global_store_dwordx2 v5, v[90:91], s[32:33]")
        a.label(L(n + '_pd'))
        if tag == 0:
            a("s_cmp_eq_u32 s22, 0"); a(f"s_cbranch_scc1 {L('v_first')}")
            a.label(L('v_fj'))
        stamp(a, prof, 2)
        if PAR["DDEL"]:
            a("s_add_u32 s53, s22, 2"); a("s_min_u32 s53, s53, 63"); a("s_lshl_b32 s53, s53, 19"); a("s_add_u32 s53, s53, s54"); near(a, 48, "s53", kv=True)
            a(f"s_add_u32 m0, s55, {tag*8192}")
            a(f"s_sleep {PAR['DDEL']}")
            for jj in range(4): a(f"global_load_lds_dwordx4 v6, s[48:49] offset:{jj*1024} sc1")
            a(f"s_add_u32 m0, s55, {tag*8192 + 4096}"); a("s_nop 0")
            for jj in range(4): a(f"global_load_lds_dwordx4 v12, s[48:49] offset:{jj*1024} sc1")
        a("s_barrier")
        a("s_cmp_lt_u32 s19, 2"); a(f"s_cbranch_scc1 {L(n + '_nq')}")
        if "nopers" not in OPT: a("global_store_dwordx2 v10, v[88:89], s[30:31] sc1")
        a.label(L(n + '_nq'))
        a("s_cmp_eq_u32 s21, 4"); a(f"s_cbranch_scc1 {L(n + '_red')}")
        if prof == 3:
            a("s_memrealtime s[56:57]"); a("s_memtime s[92:93]"); a("s_waitcnt lgkmcnt(0)"); a("s_mov_b32 m0, s22"); a("s_nop 0"); a("v_writelane_b32 v150, s56, m0"); a("v_writelane_b32 v151, s92, m0")
        step_adv()
        if PAR["BDEL"]: a(f"s_sleep {PAR['BDEL']}")
        a("s_waitcnt vmcnt(0)")
        a(f"s_branch {L(n + '_end')}")
        a.label(L(n + '_red'))
        step_adv()
        backoff(a, PAR["RDEL"])
        stamp(a, prof, 5, 31)
        for d in range(DR - 1):
            rload(rsets[d])
            backoff(a, PAR["RGAP"])
        a.label(L(n + '_rp'))
        for d in range(DR):
            rload(rsets[(d + DR - 1) % DR])
            a(f"s_waitcnt vmcnt({4*(DR-1)})")
            b = rsets[d]
            mf = [f"v_mfma_f32_16x16x32_bf16 v[64:67], v[92:95], v[{b+4*i}:{b+3+4*i}], " + ("0" if i == 0 else "v[64:67]") for i in range(4)]
            tagchk(a, list(range(b, b + 16)), tag if not PAR["DROP"] else None, 73, 72, mf)
            a(f"s_cbranch_vccz {L(n + '_rok')}" if d < DR - 1 else f"s_cbranch_vccnz {L(n + '_rr')}")
        a.label(L(n + '_rok'))
        a("s_nop 3")
        for i in range(4): a(f"v_add_f32_dpp v{72+i}, v{64+i}, v{64+i} row_ror:8 row_mask:0xf bank_mask:0xf")
        a("s_mov_b64 exec, 0x00ff00ff")
        a("v_cvt_pk_bf16_f32 v76, v72, v73"); a("v_cvt_pk_bf16_f32 v77, v74, v75")
        a("v_min_u32 v76, -2, v76"); a("v_min_u32 v77, -2, v77")
        a("global_store_dwordx2 v15, v[76:77], s[28:29] sc1")
        a("s_mov_b64 exec, -1")
        if PAR["DROP"]:
            for i in range(4): a(f"global_store_dwordx4 v11, v[144:147], {PB(tag)} offset:{1024*i} sc1")
        stamp(a, prof, 6, 31)
        if PAR["MACK"]: a("s_waitcnt vmcnt(0)")
        a.label(L(n + '_end'))
        a("s_barrier")
        stamp(a, prof, 7)
    a(f"s_branch {L('v_loop')}")
    for tag in range(2):
        n = f"v{tag}"
        p1_retry(n)
        a.label(L(n + '_wt')); a("global_store_dwordx2 v5, v[90:91], s[32:33] sc1"); a(f"s_branch {L(n + '_pd')}")
        a.label(L(n + '_rr')); guard(a, L(n + '_rp'), FAIL)

    a.label(L('v_first')); a("s_barrier"); a("s_barrier"); a(f"s_branch {L('v_fj')}")

    a.label(L('setup_m'))
    a("v_lshrrev_b32 v5, 5, v0"); a("v_lshl_add_u32 v5, v5, 8, v48"); a("v_bfe_u32 v50, v0, 3, 2"); a("v_lshl_add_u32 v5, v50, 2, v5")
    a("s_lshl_b32 s36, s39, 9"); a("s_add_u32 s36, s36, 4096"); a("v_add_u32 v5, s36, v5")
    a("v_mov_b32 v93, 0")
    def progress(tagname):
        a("s_cmp_eq_u32 s20, 0"); a(f"s_cbranch_scc0 {L(tagname)}")
        a("v_mov_b32 v92, s22")
        a("s_mov_b64 exec, 1")
        a(f"global_store_dword v93, v92, s[14:15] offset:{DBG_PROG} sc1")
        a("s_mov_b64 exec, -1")
        a.label(L(tagname))
    a(f"s_branch {L('m0_in')}")
    a.label(L('m_loop'))
    for tag in range(2):
        n = f"m{tag}"
        p1(n)
        rd8(); reduce8()
        pack_tag(tag, 'fin_m' if tag == (NSTEP - 1) & 1 else None)
        a(f"s_cbranch_scc1 {L(n + '_wt')}")
        a("global_store_dword v5, v90, s[32:33]"); a("global_store_dword v5, v91, s[32:33] offset:128")
        a.label(L(n + '_pd'))
        if tag == 0:
            a("s_cmp_eq_u32 s22, 0"); a(f"s_cbranch_scc1 {L('m_first')}")
            a.label(L('m_fj'))
        a("s_barrier")
        if "nopers" not in OPT: a("global_store_dwordx2 v10, v[88:89], s[30:31] sc1")
        progress(n + '_pg')
        if kvwait:
            a("s_add_u32 s53, s22, 3"); a("s_min_u32 s53, s53, 63"); kv_tile(a, "s53", "s53", "s36")
            a("s_cmp_lt_u32 s53, s51"); a(f"s_cbranch_scc1 {L(n + '_kvh')}")
            kv_poll(n + '_kv', "s53")
            a("s_add_u32 s51, s53, 1")
            a.label(L(n + '_kvh'))
        step_end()
        a(f"s_cmp_ge_u32 s22, {NSTEP - 3}"); a(f"s_cbranch_scc1 {L(n + '_hp')}")
        a.label(L(n + '_hd'))
    a(f"s_branch {L('m_loop')}")
    for tag in range(2):
        n = f"m{tag}"
        p1_retry(n)
        a.label(L(n + '_wt'))
        a("global_store_dword v5, v90, s[32:33] sc1"); a("global_store_dword v5, v91, s[32:33] offset:128 sc1"); a(f"s_branch {L(n + '_pd')}")
        a.label(L(n + '_hp'))
        a("s_sub_u32 s36, s22, 1"); head_word("s36"); a(f"s_branch {L(n + '_hd')}")
    a.label(L('m_first'))
    if kvwait:
        a("s_mov_b32 s53, 0"); kv_poll('kv0', "s53")
    for sg in range(2):
        a(f"s_mov_b32 s53, {sg}"); kv_bases("s53")
        a(f"s_mov_b32 s50, {L_VX + sg*8192}"); xdma("s[34:35]", "s50")
        a(f"s_mov_b32 s50, {L_KX + sg*8192}"); xdma("s[48:49]", "s50")
    a("s_waitcnt vmcnt(16)"); a("s_barrier"); a("s_barrier")
    pstamp(a, prof, 60)
    if "span" in OPT:
        a("s_and_b32 s98, s20, 15"); a("s_cmp_lg_u32 s98, 0"); a(f"s_cbranch_scc1 {L('nosp')}")
        a("s_memrealtime s[98:99]"); a("s_waitcnt lgkmcnt(0)"); a("v_mov_b32 v17, s98"); a("v_mov_b32 v16, 0")
        a("s_mov_b64 exec, 1"); a("global_atomic_umax v16, v17, s[14:15] offset:16 sc1"); a("s_mov_b64 exec, -1")
        a.label(L('nosp'))
    a("s_waitcnt vmcnt(0)")
    a(f"s_branch {L('m_fj')}")
    a.label(L('fin_m'))
    progress('pg_last')
    a(f"s_branch {L('last_pub')}")

    a.label(L('setup_sm'))
    a(f"v_add_u32 v14, {L_KX}, v6")
    a("v_and_b32 v48, 7, v0"); a("v_lshrrev_b32 v49, 4, v0"); a("v_lshl_add_u32 v9, v49, 3, v48"); a("v_lshlrev_b32 v9, 4, v9"); a("v_and_b32 v50, 8, v0"); a("v_add_u32 v9, v9, v50")
    a("v_and_b32 v49, 1, v49"); a("v_lshl_add_u32 v10, v49, 3, v48"); a("v_lshlrev_b32 v10, 4, v10")
    a("v_lshrrev_b32 v49, 5, v0"); a("v_lshl_add_u32 v10, v49, 2, v10"); a("v_lshrrev_b32 v50, 2, v50"); a("v_add_u32 v10, v10, v50")
    a("s_mov_b32 s46, 0x3e0293ee")
    for i in range(4): a(f"v_mov_b32 v{84+i}, 0")
    a(f"ds_write_b128 v6, v[84:87] offset:{L_ZERO}"); a(f"ds_write_b128 v6, v[84:87] offset:{L_ZERO + 1024}")
    def k_load():
        for i in range(8): a(f"ds_read_b128 v[{96+4*i}:{99+4*i}], v14 offset:{1024*i}")
        a("v_xor_b32 v14, 0x2000, v14")
    zero_acc()
    a("s_setprio 2")
    def xload(b):
        for jj in range(4): a(f"global_load_dwordx4 v[{b+4*jj}:{b+3+4*jj}], v6, s[32:33] offset:{1024*jj} sc1")
    def s_mfma(b, t, jj):
        X = f"v[{b+4*jj}:{b+3+4*jj}]"
        d = 64 + 4*t
        A = X if t == 2 else f"v[{96+(t*4+jj)*4}:{99+(t*4+jj)*4}]"
        return f"v_mfma_f32_16x16x32_bf16 v[{d}:{d+3}], {A}, {X}, " + (f"v[{d}:{d+3}]" if jj else "0")
    def s_head(b, tag):
        tagchk(a, list(range(b, b + 16)), tag, 15, 16, [s_mfma(b, 2, jj) for jj in range(4)])
    dpp = "row_shr:8 row_mask:0xf bank_mask:0xc"
    def s_rest(b):
        for jj in range(4): a(s_mfma(b, 1, jj))
        a(s_mfma(b, 0, 0))
        a(f"v_mov_b32_dpp v72, v73 {dpp}"); a(f"v_mov_b32_dpp v74, v75 {dpp}")
        a(s_mfma(b, 0, 1)); a(s_mfma(b, 0, 2))
        a("v_permlane32_swap_b32 v72, v74")
        a(s_mfma(b, 0, 3))
    XD = PAR["XD"]
    a(f"s_branch {L('s0_in')}")
    a.label(L('s_loop'))
    for tag in range(2):
        n = f"s{tag}"
        p1(n)
        if tag == (NSTEP - 1) & 1:
            a(f"s_cmp_eq_u32 s22, {NSTEP-1}"); a(f"s_cbranch_scc1 {L('fin')}")
        if tag == 0:
            a("s_cmp_eq_u32 s22, 0"); a(f"s_cbranch_scc1 {L('s_first')}")
            pass
        backoff(a, PAR["XDEL"])
        if tag == 0: a.label(L('s_fj'))
        if XD == 2:
            xload(48)
            backoff(a, PAR["XGAP"])
        a.label(L(n + '_xp'))
        xload(128 if XD == 2 else 48)
        a(f"s_waitcnt vmcnt({4*(XD-1)})")
        fs(a, prof, 0, 4)
        s_head(48, tag)
        a(f"s_cbranch_vccnz {L(n + '_xr')}")
        stamp(a, prof, 2)
        fs(a, prof, 1, 4)
        s_rest(48)
        a.label(L(n + '_xj'))
        fs(a, prof, 2, 4)
        a("s_nop 0")
        a("v_max_f32_dpp v16, v74, v74 row_ror:8 row_mask:0xf bank_mask:0xf")
        a("v_max3_f32 v16, v16, v68, v69"); a("v_max3_f32 v16, v16, v70, v71")
        a("s_nop 3")
        a("v_max3_f32 v16, v16, v64, v65"); a("v_max3_f32 v16, v16, v66, v67")
        fs(a, prof, 3, 4)
        a("v_mov_b32 v17, v16"); a(f"v_mov_b32_dpp v64, v68 {dpp}"); a(f"v_mov_b32_dpp v65, v69 {dpp}")
        a("v_permlane16_swap_b32 v16, v17"); a("v_max_f32 v16, v16, v17")
        a("v_mov_b32 v17, v16"); a(f"v_mov_b32_dpp v66, v70 {dpp}"); a(f"v_mov_b32_dpp v67, v71 {dpp}")
        a("v_permlane32_swap_b32 v16, v17"); a("v_max_f32 v16, v16, v17")
        fs(a, prof, 4, 4)
        a("v_mul_f32 v16, s46, v16")
        a("s_nop 1")
        a(f"v_mov_b32_dpp v16, v16 {dpp}")
        for rg in (74, 64, 65, 66, 67): a(f"v_fma_f32 v{rg}, v{rg}, s46, -v16")
        a("v_exp_f32 v74, v74"); a("v_exp_f32 v64, v64")
        a("v_cvt_pk_bf16_f32 v82, v74, v74")
        a("v_exp_f32 v65, v65")
        a(f"ds_write_b16 v10, v82 offset:{L_P + 1024}")
        a("v_exp_f32 v66, v66")
        a(f"ds_write_b16 v10, v82 offset:{L_P + 1280}")
        a("v_exp_f32 v67, v67")
        a("v_cvt_pk_bf16_f32 v80, v64, v65")
        a("v_cvt_pk_bf16_f32 v81, v66, v67")
        a(f"ds_write_b64 v9, v[80:81] offset:{L_P}")
        fs(a, prof, 5, 4)
        a("s_waitcnt lgkmcnt(0)"); fs(a, prof, 6, 4); a("s_barrier"); fs(a, prof, 7, 4)
        stamp(a, prof, 3)
        k_load()
        step_end()
    a(f"s_branch {L('s_loop')}")
    for tag in range(2):
        n = f"s{tag}"
        p1_retry(n)
        a.label(L(n + '_xr'))
        if XD == 2:
            xload(48)
            a("s_waitcnt vmcnt(4)")
            s_head(128, tag)
            a(f"s_cbranch_vccnz {L(n + '_xg')}")
            stamp(a, prof, 2)
            s_rest(128)
            a(f"s_branch {L(n + '_xj')}")
            a.label(L(n + '_xg'))
        guard(a, L(n + '_xp'), FAIL)

    a.label(L('s_first')); a("s_barrier"); k_load(); a("s_waitcnt lgkmcnt(0)"); a("s_barrier"); a(f"s_branch {L('s_fj')}")

    a.label(L('setup_vo'))
    a("v_add_u32 v8, 0x1000, v6"); a("v_lshrrev_b32 v9, 4, v0")
    a("s_lshl_b32 s36, s19, 5"); a("s_lshl_b32 s42, s21, 3"); a("s_add_u32 s36, s36, s42")
    a("v_add_u32 v9, s36, v9"); a("v_bfe_u32 v11, v0, 3, 1"); a("v_lshl_add_u32 v9, v11, 2, v9")
    a("v_and_b32 v11, 1, v9"); a("v_lshlrev_b32 v11, 12, v11"); a("v_lshrrev_b32 v9, 1, v9"); a("v_lshl_add_u32 v9, v9, 14, v11")
    a("v_and_b32 v11, 7, v0"); a("v_lshl_add_u32 v9, v11, 4, v9"); a("s_lshl_b32 s36, s18, 7"); a("v_add_u32 v9, s36, v9")
    a("v_lshrrev_b32 v12, 4, v0"); a("v_and_b32 v13, 7, v0"); a("v_lshl_add_u32 v12, v12, 3, v13"); a("v_lshlrev_b32 v12, 4, v12"); a(f"v_add_u32 v12, {L_P}, v12"); a(f"v_mov_b32 v11, {L_ZERO}")
    a("v_and_b32 v13, 8, v0"); a("v_cmp_eq_u32 vcc, 0, v13"); a("s_nop 1")
    a("v_cndmask_b32 v13, v12, v11, vcc"); a("v_cndmask_b32 v12, v11, v12, vcc")
    a(f"v_add_u32 v14, {L_VX}, v6")
    a("s_lshr_b32 s36, s21, 1"); a(f"s_mul_i32 s54, s36, {WS_VX - WS_KX}"); a(f"s_mul_i32 s55, s36, {L_VX - L_KX}")
    a("s_and_b32 s36, s21, 1"); a("s_lshl_b32 s36, s36, 12"); a("s_add_u32 s54, s54, s36"); a("s_add_u32 s55, s55, s36"); a(f"s_add_u32 s55, s55, {L_KX}")
    a("s_lshl_b32 s36, s18, 14"); a("s_add_u32 s54, s54, s36"); a(f"s_add_u32 s54, s54, {WS_KX}")
    def u_load():
        for i in range(8): a(f"ds_read_b128 v[{16+4*i}:{19+4*i}], v14 offset:{1024*i}")
        a("v_xor_b32 v14, 0x2000, v14")
    def u_half(hf):
        for jj in range(4):
            for c2 in range(2):
                for kt in range(2):
                    d = 64 + (c2*2 + kt)*4
                    A = 16 + (kt*4 + jj)*4
                    a(f"v_mfma_f32_16x16x32_bf16 v[{d}:{d+3}], v[{A}:{A+3}], {wo_reg(2*hf+c2, jj)}, " + ("0" if jj == 0 else f"v[{d}:{d+3}]"))
        a("s_nop 7")
        for c2 in range(2):
            for kt in range(2):
                d = 64 + (c2*2 + kt)*4
                u = 80 + (2*hf + c2)*4 + kt*2
                a(f"v_cvt_pk_bf16_f32 v{u}, v{d}, v{d+1}"); a(f"v_cvt_pk_bf16_f32 v{u+1}, v{d+2}, v{d+3}")
    def vo_prep(tag, ahead):
        for i in range(4): a(f"v_mov_b32 v{56+i}, 0x3f803f80")
        for i in range(4): a(f"v_mov_b32 v{60+i}, 0x3f003f00")
        for i in range(16): a(f"v_mov_b32 v{64+i}, 0")
        a(f"s_add_u32 s53, s22, {2 + ahead}"); a("s_min_u32 s53, s53, 63"); a("s_lshl_b32 s53, s53, 19"); a("s_add_u32 s53, s53, s54"); near(a, 48, "s53", kv=True)
        a(f"s_add_u32 m0, s55, {tag*8192}")
    vo_prep(0, 0)
    zero_acc()
    if PAR["PRIO"]: a("s_setprio 1")
    a(f"s_branch {L('o0_in')}")
    a.label(L('o_loop'))
    for tag in range(2):
        n = f"o{tag}"
        p1(n)
        if tag == (NSTEP - 1) & 1:
            a(f"s_cmp_eq_u32 s22, {NSTEP-1}"); a(f"s_cbranch_scc1 {L('fin')}")
        backoff(a, PAR["VDEL"])
        a.label(L(n + '_vp'))
        for k in range(2): a(f"global_load_dwordx4 v[{48+4*k}:{51+4*k}], v8, s[32:33] offset:{1024*k} sc1")
        a("s_waitcnt vmcnt(0)")
        tagchk(a, list(range(48, 56)), tag, 17, 16)
        a(f"s_cbranch_vccnz {L(n + '_vr')}")
        for k in range(2):
            for ct in range(4):
                b = 96 + (ct*4 + 2*k)*4
                a(f"v_smfmac_f32_16x16x64_bf16 v[{64+4*ct}:{67+4*ct}], v[{48+4*k}:{51+4*k}], v[{b}:{b+7}], v2")
                if PAR["DMI"] and tag == 1 and k == PAR["DMI"] - 1: a(f"global_load_lds_dwordx4 v6, s[48:49] offset:{ct*1024} sc1")
        a("s_nop 4")
        for ct in range(4):
            if ct == 3: a("s_nop 1")
            t = 24 + (ct & 1)*4 + (ct >> 1)*2
            a(f"v_cvt_pk_bf16_f32 v{t}, v{64+4*ct}, v{65+4*ct}"); a(f"v_cvt_pk_bf16_f32 v{t+1}, v{66+4*ct}, v{67+4*ct}")
        if tag == 0:
            a("s_cmp_eq_u32 s22, 0"); a(f"s_cbranch_scc1 {L('o_first')}")
            a.label(L('o_fj'))
        if not PAR["DDEL"] and not (PAR["DMI"] and tag == 1) and "nodma" not in OPT:
            for jj in range(4): a(f"global_load_lds_dwordx4 v6, s[48:49] offset:{jj*1024} sc1")
        stamp(a, prof, 3)
        a("s_barrier")
        a("ds_read_b64 v[36:37], v12 offset:1024"); a("ds_read_b64 v[38:39], v13 offset:1024")
        a("ds_read_b128 v[32:35], v12"); a("ds_read_b128 v[48:51], v13")
        a("s_waitcnt lgkmcnt(2)")
        stamp(a, prof, 4)
        a("v_mfma_f32_16x16x32_bf16 v[40:43], v[60:63], v[36:39], 0")
        a("v_mfma_f32_16x16x32_bf16 v[64:67], v[24:27], v[36:39], 0")
        a("s_waitcnt lgkmcnt(0)")
        a("v_or_b32 v44, v32, v48"); a("v_or_b32 v45, v33, v49")
        a("v_or_b32 v46, v34, v50"); a("v_or_b32 v47, v35, v51")
        a("v_mfma_f32_16x16x32_bf16 v[64:67], v[80:83], v[32:35], v[64:67]")
        a("v_mfma_f32_16x16x32_bf16 v[68:71], v[28:31], v[36:39], 0")
        a("v_mfma_f32_16x16x32_bf16 v[40:43], v[56:59], v[44:47], v[40:43]")
        a("v_mfma_f32_16x16x32_bf16 v[64:67], v[88:91], v[48:51], v[64:67]")
        a("v_mfma_f32_16x16x32_bf16 v[68:71], v[84:87], v[32:35], v[68:71]")
        a("v_mfma_f32_16x16x32_bf16 v[68:71], v[92:95], v[48:51], v[68:71]")
        a("s_nop 4")
        a("v_rcp_f32 v40, v40")
        a("s_nop 0")
        tg = lambda x: a(f"v_min_u32 v{x}, -2, v{x}" if PAR["DROP"] else f"v_or_b32 v{x}, 1, v{x}" if tag else f"v_and_b32 v{x}, -2, v{x}")
        for h in range(2):
            for i in range(2): a(f"v_pk_mul_f32 v[{64+4*h+2*i}:{65+4*h+2*i}], v[{64+4*h+2*i}:{65+4*h+2*i}], v[40:41] op_sel_hi:[1,0]")
            for i in range(2): a(f"v_cvt_pk_bf16_f32 v{48+2*h+i}, v{64+4*h+2*i}, v{65+4*h+2*i}")
        for i in range(4): tg(48 + i)
        a(f"global_store_dwordx4 v9, v[48:51], {PB(tag)} sc1")
        stamp(a, prof, 5)
        u_load(); a("s_waitcnt lgkmcnt(0)"); u_half(0)
        u_half(1)
        vo_prep(tag ^ 1, 1)
        step_end()
    a(f"s_branch {L('o_loop')}")
    for tag in range(2):
        n = f"o{tag}"
        p1_retry(n)
        a.label(L(n + '_vr')); guard(a, L(n + '_vp'), FAIL)

    a.label(L('o_first'))
    for i in range(8): a(f"v_mov_b32 v{48+i}, v{24+i}")
    a("s_barrier")
    u_load(); a("s_waitcnt lgkmcnt(0)"); a("s_barrier"); u_half(0); u_half(1)
    for i in range(8): a(f"v_mov_b32 v{24+i}, v{48+i}")
    a(f"s_branch {L('o_fj')}")

    a.label(L('last_pub'))
    a("s_nop 7")
    a("v_cvt_pk_bf16_f32 v88, v80, v81"); a("v_cvt_pk_bf16_f32 v89, v82, v83")
    a("s_or_b32 s36, s19, s37"); a("s_and_b32 s36, s36, 2"); a(f"s_cbranch_scc0 {L('fin')}")
    a("global_store_dwordx2 v10, v[88:89], s[30:31] sc1")
    a.label(L('fin'))
    a("s_waitcnt vmcnt(0)"); a("s_barrier")
    a("s_cmp_eq_u32 s21, 0"); a(f"s_cbranch_scc0 {L('end')}")
    head_word(str(NSTEP - 1))
    if "span" in OPT:
        a("s_and_b32 s98, s20, 15"); a("s_cmp_lg_u32 s98, 0"); a(f"s_cbranch_scc1 {L('end')}")
        a("s_memrealtime s[98:99]"); a("s_waitcnt lgkmcnt(0)"); a("v_mov_b32 v5, s98"); a("v_mov_b32 v2, 0")
        a("s_mov_b64 exec, 1"); a("global_atomic_umax v2, v5, s[14:15] offset:56 sc1"); a("s_mov_b64 exec, -1")
    if "diag" in OPT:
        a("s_cmp_eq_u32 s20, 0"); a(f"s_cbranch_scc0 {L('end')}")
        a("s_memrealtime s[56:57]"); a("s_waitcnt lgkmcnt(0)"); a("s_sub_u32 s70, s56, s98"); a("s_sub_u32 s71, s98, s97")
        a("s_mov_b64 exec, 1")
        a("s_mov_b32 s72, 0"); a("s_mov_b32 s73, 0"); a("s_mov_b32 s74, 0"); a("v_mov_b32 v18, 0")
        a.label(L('dg'))
        for k in range(2):
            a("s_lshl_b32 s36, s74, 21"); a(f"s_add_u32 s36, s36, {0x10000 + k*0x2000}"); a("v_mov_b32 v16, s36")
            for rep in range(2):
                a("s_memtime s[56:57]"); a("s_waitcnt lgkmcnt(0)")
                a("global_atomic_or v17, v16, v18, s[16:17] sc0 sc1"); a("s_waitcnt vmcnt(0)")
                a("s_memtime s[58:59]"); a("s_waitcnt lgkmcnt(0)")
            a(f"s_sub_u32 s{76+k}, s58, s56")
        a("s_cmp_lt_u32 s77, s76"); a("s_cselect_b32 s78, 1, 0"); a("s_mov_b32 s79, 0"); a("s_lshl_b64 s[78:79], s[78:79], s74"); a("s_or_b64 s[72:73], s[72:73], s[78:79]")
        a("s_add_u32 s74, s74, 1"); a("s_cmp_lt_u32 s74, 64"); a(f"s_cbranch_scc1 {L('dg')}")
        for k in range(4): a(f"v_mov_b32 v{20+k}, s{70+k}")
        a("global_store_dwordx4 v18, v[20:23], s[14:15] offset:48")
        a("s_mov_b64 exec, -1")
    a(f"s_branch {L('end')}")
    a.label(FAIL)
    a("v_mov_b32 v16, 0"); a("v_mov_b32 v17, 0xdead"); a("global_store_dword v16, v17, s[14:15] offset:252")
    a.label(L('end'))
    if prof:
        if prof == 3:
            a("s_memrealtime s[56:57]"); a("s_waitcnt lgkmcnt(0)"); a("s_mov_b32 s61, s56"); a("s_mov_b32 s62, s25"); a("s_mov_b32 s63, s90"); a("s_mov_b32 s64, s91"); a("s_mov_b32 s65, s89")
        if prof == 3:
            a("s_cmp_eq_u32 s21, 5"); a(f"s_cbranch_scc0 {L('nost')}")
            a("s_lshl_b32 s36, s20, 9"); a(f"s_add_u32 s36, s36, {203<<20}"); a("v_lshrrev_b32 v16, 1, v6"); a("v_add_u32 v16, s36, v16")
            a("global_store_dwordx2 v16, v[150:151], s[16:17]")
            a.label(L('nost'))
        if prof > 3:
            a("s_waitcnt lgkmcnt(0)")
            for k in range(8): a(f"s_sub_u32 s{60+k if k < 6 else 84+k}, s{66+2*k}, s66")
            a("s_mov_b32 s66, s90"); a("s_mov_b32 s67, s91")
        a("s_lshl_b32 s36, s20, 3"); a("s_add_u32 s36, s36, s21"); a("s_lshl_b32 s36, s36, 5"); a(f"s_add_u32 s36, s36, {200<<20}")
        a("v_mov_b32 v16, s36")
        for k in range(8): a(f"v_mov_b32 v{24+k}, s{60+k}")
        a("s_mov_b64 exec, 1")
        a("global_store_dwordx4 v16, v[24:27], s[16:17]"); a("global_store_dwordx4 v16, v[28:31], s[16:17] offset:16")
    a("s_endpgm")
```

```python
from asmgen import *

WS_RING  = 1 << 20
WS_RING1 = 0x180000
WS_PROBE = 0x1f0000
WS_FLAG2 = 0x140000
WS_HW    = 0x160000
WS_FLAG  = 0x1e0000
WS_MEMS  = 2 << 20
WS_KMVM  = 4 << 20
WS_KX    = 20 << 20
WS_VX    = 52 << 20
WS_WOT   = 126 << 20
WOT_CG = 1 << 19
WS_PART1 = 146 << 20
L_PART = 0
L_P    = 24576
L_ZERO = 26624
L_SEL  = 28672
L_PARW = 7*16384
L_KX   = 131072
L_VX   = 147456
SPIN_MAX = 400000
NSTEP = 64
DBG_VOTE, DBG_CLR, DBG_PROG = 40, 44, 192
PAR0 = dict(HALF=0, NOTAG=0, THA=0, THQ=0, EPF=1, DROP=0, RPF=0, DMI=0, DDEL=0, WPF=2, QPL=0, ST=1, BDEL=0, SPLITB=1, KFAR=1, VFAR=1, RDEL=10, MDEL=7, DM=1, MGAP=3, PRIO=1, XD=2, XGAP=1, VDEL=10, PPRIO=2, XDEL=7, DR=2, RGAP=5, MACK=0)
PAR = dict(PAR0)
OPT = set()

def backoff(a, n):
    q = int(round(n*4))
    if q // 4: a(f"s_sleep {q // 4}")
    if q % 4: a(f"s_nop {4*(q % 4) - 1}")

def guard(a, loop, fail):
    a("s_add_u32 s24, s24, 1"); a(f"s_cmp_lt_u32 s24, {SPIN_MAX}"); a(f"s_cbranch_scc1 {loop}"); a(f"s_branch {fail}")

def pstamp(a, prof, k):
    if prof == 3:
        a("s_memrealtime s[56:57]"); a("s_waitcnt lgkmcnt(0)"); a(f"s_mov_b32 s{k}, s56")

def stamp(a, prof, k, at=None):
    if not prof: return
    if prof >= 3 and (k != 7 or prof > 3): return
    if prof == 2:
        lab = a.newlabel("st")
        a("s_cmp_lg_u32 s22, " + ("31" if (k == 7 or at) else "30")); a(f"s_cbranch_scc1 {lab}")
        a("s_memrealtime s[56:57]"); a("s_waitcnt lgkmcnt(0)"); a("s_and_b32 s56, s56, 0xffffff"); a("s_lshl_b32 s57, s24, 24"); a(f"s_or_b32 s{60+k}, s56, s57")
        a.label(lab)
        return
    a("s_memtime s[56:57]"); a("s_waitcnt lgkmcnt(0)")
    a("s_sub_u32 s58, s56, s59"); a(f"s_add_u32 s{60+k}, s{60+k}, s58"); a("s_mov_b32 s59, s56")

def fs(a, prof, k, which):
    if prof == which: a(f"s_memtime s[{66+2*k}:{67+2*k}]")

def near_bit(a, tmp, off, par, kv=False):
    flip = kv and PAR["KFAR"] != PAR["VFAR"]
    if flip: a(f"s_cmp_ge_u32 {off}, {WS_VX}"); a(f"s_addc_u32 {tmp}, {par}, {PAR['KFAR']}"); a(f"s_lshl_b32 {tmp}, {tmp}, 21"); a(f"s_xor_b32 {tmp}, {tmp}, {off}"); a(f"s_lshr_b32 {tmp}, {tmp}, 21")
    else:
        a(f"s_lshr_b32 {tmp}, {off}, 21"); a(f"s_xor_b32 {tmp}, {tmp}, {par}")
        if kv and PAR["KFAR"]: a(f"s_xor_b32 {tmp}, {tmp}, 1")
    a(f"s_and_b32 {tmp}, {tmp}, 1"); a(f"s_lshl_b32 {tmp}, {tmp}, 13")

def near(a, dst, off, par="s25", wb=16, tmp="s36", kv=False):
    near_bit(a, tmp, off, par, kv)
    a(f"s_add_u32 {tmp}, {tmp}, {off}"); a(f"s_add_u32 s{dst}, s{wb}, {tmp}"); a(f"s_addc_u32 s{dst+1}, s{wb+1}, 0")

def v_from_k(a, v, k):
    a(f"s_add_u32 s{v}, s{k}, {WS_VX - WS_KX}"); a(f"s_addc_u32 s{v+1}, s{k+1}, 0")
    if PAR["KFAR"] != PAR["VFAR"]: a(f"s_xor_b32 s{v}, s{v}, 0x2000")

def kv_tile(a, dst, seg, tmp):
    a(f"s_sub_u32 {tmp}, {seg}, 16"); a(f"s_mul_i32 {tmp}, {tmp}, 43"); a(f"s_lshr_b32 {tmp}, {tmp}, 8"); a(f"s_add_u32 {tmp}, {tmp}, 4")
    a(f"s_lshr_b32 {dst}, {seg}, 2"); a(f"s_cmp_lt_u32 {dst}, 4"); a(f"s_cselect_b32 {dst}, {dst}, {tmp}")

def tagchk(a, regs, tag, t0, t1, mf=()):
    op = "0x80" if tag else "0xfe"
    f3 = (lambda d, x, y, z: f"v_max3_u32 v{d}, v{x}, v{y}, v{z}") if tag is None else (lambda d, x, y, z: f"v_bitop3_b32 v{d}, v{x}, v{y}, v{z} bitop3:{op}")
    mf = list(mf)
    ops = [f3(t0, *regs[0:3]), f3(t1, *regs[3:6])]
    rest = regs[6:]; k = 0
    while rest:
        t = (t0, t1)[k & 1]; k += 1
        ops.append(f3(t, t, rest[0], rest[1])); rest = rest[2:]
    ops.append(f"v_max_u32 v{t0}, v{t0}, v{t1}" if tag is None else f"v_bitop3_b32 v{t0}, v{t0}, v{t1}, 1 bitop3:" + ("0x80" if tag else "0xa8"))
    per = -(-len(ops) // max(len(mf), 1))
    for i, o in enumerate(ops):
        if mf and i % per == 0: a(mf.pop(0))
        a(o)
    for m in mf: a(m)
    a(f"v_cmp_eq_u32 vcc, -1, v{t0}" if tag is None else f"v_cmp_ne_u32 vcc, {tag}, v{t0}")

def emit_rec(a, pfx, prof=False, kvwait=False):
    L = lambda n: f"{pfx}_{n}"
    FAIL = L('fail')
    a("s_load_dwordx8 s[4:11], s[0:1], 40")
    a("s_load_dwordx2 s[12:13], s[0:1], 32")
    a("s_load_dwordx2 s[14:15], s[0:1], 88")
    a("s_load_dwordx2 s[16:17], s[0:1], 96")
    a("v_lshrrev_b32 v1, 6, v0")
    a("v_and_b32 v0, 63, v0")
    a("s_lshl_b32 s20, s18, 2"); a("s_add_u32 s20, s20, s19")
    a("v_readfirstlane_b32 s21, v1")
    a("v_lshlrev_b32 v6, 4, v0")
    a("s_mov_b32 s24, 0")
    a("s_waitcnt lgkmcnt(0)")
    pstamp(a, prof, 90)
    if "diag" in OPT: pstamp(a, 3, 97)
    a("s_add_u32 s16, s16, 0x1fffff"); a("s_addc_u32 s17, s17, 0"); a("s_and_b32 s16, s16, 0xffe00000")
    a("s_lshl_b32 s36, s18, 13"); a(f"s_add_u32 s36, s36, {WS_RING}"); a("s_add_u32 s32, s16, s36"); a("s_addc_u32 s33, s17, 0")
    a(f"s_add_u32 s82, s32, {WS_RING1 - WS_RING}"); a("s_addc_u32 s83, s33, 0")
    NT_ = PAR["NOTAG"]
    RB = lambda tag: "s[82:83]" if (tag and NT_) else "s[32:33]"
    a("s_and_b32 s45, s20, 63"); a("s_lshl_b32 s45, s45, 7"); a("s_lshr_b32 s36, s20, 6"); a("s_lshl_b32 s36, s36, 14"); a("s_add_u32 s45, s45, s36")
    a("s_and_b32 s44, s20, 1"); a("s_lshl_b32 s44, s44, 12"); a("s_lshr_b32 s42, s20, 1"); a("s_lshl_b32 s42, s42, 14"); a("s_add_u32 s44, s44, s42")
    a("v_mov_b32 v14, v6"); a("v_add_u32 v15, 0x1000, v6")
    a("s_lshl_b32 s36, s19, 10"); a("v_add_u32 v9, s36, v6")
    a("s_lshl_b32 s36, s19, 9"); a("s_add_u32 s36, s36, 4096"); a("v_and_b32 v8, 0x1ff, v6"); a("v_add_u32 v8, s36, v8")
    a("s_cmp_eq_u32 s21, 7"); a(f"s_cbranch_scc0 {L('noclr')}")
    for i in range(4): a(f"v_mov_b32 v{68+i}, -1")
    a("v_add_u32 v16, s44, v6"); a("v_add_u32 v17, 0x2000, v16")
    for p in range(2):
        for i in range(4): a(f"global_store_dwordx4 v{16+p}, v[68:71], s[16:17] offset:{1024*i} sc1")
    if PAR["DROP"]:
        a(f"v_add_u32 v16, {WS_PART1}, v16"); a(f"v_add_u32 v17, {WS_PART1}, v17")
        for p in range(2):
            for i in range(4): a(f"global_store_dwordx4 v{16+p}, v[68:71], s[16:17] offset:{1024*i} sc1")
    for t_ in range(2 if NT_ else 1):
        a(f"global_store_dwordx4 v9, v[68:71], {RB(t_)} sc1"); a(f"global_store_dwordx4 v8, v[68:71], {RB(t_)} sc1")
    a("v_bfe_u32 v16, v0, 3, 2"); a("v_lshlrev_b32 v16, 15, v16"); a("v_lshrrev_b32 v17, 5, v0"); a("v_lshl_add_u32 v16, v17, 13, v16")
    a("v_and_b32 v17, 7, v0"); a("v_lshl_add_u32 v16, v17, 4, v16"); a(f"s_add_u32 s36, s45, {WS_MEMS}"); a("v_add_u32 v16, s36, v16")
    for i in range(16):
        a("global_store_dwordx4 v16, v[68:71], s[16:17] sc1"); a("v_add_u32 v16, 0x20000, v16")
    a("s_lshl_b32 s36, s20, 7"); a(f"s_add_u32 s36, s36, {WS_FLAG}"); a("v_and_b32 v16, 0x70, v6"); a("v_add_u32 v16, s36, v16")
    a("global_store_dwordx4 v16, v[68:71], s[16:17] sc1")
    a("s_lshl_b32 s36, s20, 10"); a(f"s_add_u32 s36, s36, {WS_FLAG2}"); a("v_add_u32 v16, s36, v6")
    a("global_store_dwordx4 v16, v[68:71], s[16:17] sc1")
    a("s_lshl_b32 s36, s20, 8"); a(f"s_add_u32 s36, s36, {WS_HW}"); a("v_and_b32 v16, 0xf0, v6"); a("v_add_u32 v16, s36, v16")
    a("global_store_dwordx4 v16, v[68:71], s[16:17] sc1")
    a("s_barrier")
    a("v_mov_b32 v17, 1"); a("v_mov_b32 v16, 0")
    a("s_waitcnt vmcnt(0)")
    a("s_mov_b64 exec, 1")
    a(f"global_atomic_add v16, v17, s[14:15] offset:{DBG_CLR} sc1")
    a("s_mov_b64 exec, -1")
    a(f"s_branch {L('clrd')}")
    a.label(L('noclr'))
    a("s_barrier")
    a.label(L('clrd'))
    def xdma(base, ldsreg):
        for kt in range(2):
            a(f"s_add_u32 m0, {ldsreg}, {kt*4096}")
            a("s_nop 0")
            for jj in range(4):
                a(f"global_load_lds_dwordx4 v{14+kt}, {base} offset:{jj*1024} sc1")
    def kv_poll(tag, tile):
        a(f"s_lshl_b32 s52, {tile}, 7"); a("s_lshr_b32 s36, s18, 1"); a("s_lshl_b32 s36, s36, 2"); a("s_add_u32 s52, s52, s36"); a(f"s_add_u32 s52, s52, {WS_FLAG + 96*128}")
        a("v_mov_b32 v17, s52")
        a.label(L(tag))
        a("global_load_dword v16, v17, s[16:17] sc1"); a("global_load_dword v18, v17, s[16:17] offset:64 sc1"); a("s_waitcnt vmcnt(0)")
        a("v_or_b32 v16, v16, v18")
        a("v_cmp_ne_u32 vcc, 0, v16"); a(f"s_cbranch_vccz {L(tag + 'ok')}")
        a("s_sleep 4")
        guard(a, L(tag), FAIL)
        a.label(L(tag + 'ok'))
    def kv_bases(segreg):
        a(f"s_lshl_b32 s42, {segreg}, 5"); a("s_add_u32 s42, s42, s18"); a("s_lshl_b32 s42, s42, 14"); a(f"s_add_u32 s42, s42, {WS_KX}")
        near(a, 48, "s42", kv=True)
        v_from_k(a, 34, 48)
    a("s_and_b32 s39, s19, 1"); a("s_xor_b32 s39, s39, 1"); a("s_lshl_b32 s39, s39, 1"); a("s_lshr_b32 s36, s19, 1"); a("s_add_u32 s39, s39, s36")
    a("s_lshl_b32 s43, s21, 14")
    a("s_lshl_b32 s36, s21, 20"); a("s_lshl_b32 s42, s18, 8"); a("s_add_u32 s36, s36, s42")
    a("v_lshrrev_b32 v10, 2, v0"); a("v_lshlrev_b32 v10, 13, v10"); a("v_and_b32 v11, 3, v0"); a("v_lshl_add_u32 v10, v11, 4, v10")
    a("s_lshl_b32 s42, s39, 6"); a("s_add_u32 s42, s42, s36"); a("v_add_u32 v10, s42, v10")
    a("v_lshrrev_b32 v11, 3, v0"); a("v_lshlrev_b32 v11, 13, v11"); a("v_and_b32 v12, 7, v0"); a("v_lshl_add_u32 v11, v12, 4, v11")
    a("s_and_b32 s42, s19, 1"); a("s_lshl_b32 s42, s42, 7"); a("s_add_u32 s42, s42, s36"); a("v_add_u32 v11, s42, v11")
    def qkdma(base, nt):
        for i in range(16):
            a(f"s_add_u32 m0, s43, {i*1024}")
            a("s_nop 0")
            a(f"global_load_lds_dwordx4 v11, {base} {nt}")
            if i < 15: a("v_add_u32 v11, 0x10000, v11")
    for _ in range(PAR["THA"]): a("s_sleep 32")
    a("s_cmp_lt_u32 s19, 2"); a(f"s_cbranch_scc1 {L('isq')}")
    qkdma("s[6:7]", ""); a(f"s_branch {L('qkd')}")
    a.label(L('isq'))
    for _ in range(PAR["THQ"]): a("s_sleep 32")
    qkdma("s[4:5]", "" if PAR["QPL"] else "nt")
    a.label(L('qkd'))
    a("v_lshrrev_b32 v12, 5, v0"); a("v_lshlrev_b32 v12, 4, v12")
    a("v_bfe_u32 v13, v0, 4, 1"); a("v_lshl_add_u32 v12, v13, 2, v12")
    a("v_bfe_u32 v13, v0, 2, 1"); a("v_add_u32 v12, v12, v13")
    a("v_bfe_u32 v13, v0, 3, 1"); a("v_lshl_add_u32 v12, v13, 3, v12")
    a("v_and_b32 v13, 3, v0"); a("v_lshlrev_b32 v13, 3, v13"); a("v_add_u32 v13, s43, v13")
    a("v_lshl_add_u32 v7, v12, 7, v13"); a("v_lshl_add_u32 v12, v12, 6, v13")
    def qkread(ks):
        for t in range(4):
            for pp in range(4):
                hi, lo = pp >> 1, pp & 1
                reg = (t*2 + ks)*8 + pp*2
                a(f"ds_read_b64_tr_b16 a[{reg}:{reg+1}], v7 offset:{(64*ks + 32*hi + 2*lo)*128 + t*32}")
            a("s_waitcnt lgkmcnt(4)")
        a("s_waitcnt lgkmcnt(0)")
    def vread():
        for t in range(2):
            for ks in range(2):
                for pp in range(4):
                    hi, lo = pp >> 1, pp & 1
                    reg = ((4 + t)*2 + ks)*8 + pp*2
                    a(f"ds_read_b64_tr_b16 a[{reg}:{reg+1}], v12 offset:{(64*ks + 32*hi + 2*lo)*64 + t*32}")
                a("s_waitcnt lgkmcnt(4)")
        a("s_waitcnt lgkmcnt(0)")
    a("s_waitcnt vmcnt(8)")
    pstamp(a, prof, 91)
    qkread(0)
    for i in range(8):
        a(f"s_add_u32 m0, s43, {i*1024}")
        a("s_nop 0")
        a("global_load_lds_dwordx4 v10, s[8:9]")
        if i < 7: a("v_add_u32 v10, 0x20000, v10")
    a("s_waitcnt vmcnt(8)"); qkread(1)
    a("v_and_b32 v11, 7, v0"); a("v_lshlrev_b32 v11, 11, v11"); a("v_lshrrev_b32 v13, 3, v0"); a("v_lshl_add_u32 v11, v13, 4, v11")
    a("s_lshl_b32 s36, s21, 8"); a("v_add_u32 v11, s36, v11")
    a("global_load_dwordx4 v[16:19], v11, s[12:13]"); a("global_load_dwordx4 v[20:23], v11, s[12:13] offset:128")
    a("v_lshrrev_b32 v10, 3, v0"); a("v_lshlrev_b32 v10, 11, v10"); a("v_and_b32 v11, 7, v0"); a("v_lshl_add_u32 v10, v11, 4, v10")
    a("s_lshl_b32 s36, s18, 18"); a("s_lshl_b32 s42, s19, 9"); a("s_add_u32 s36, s36, s42")
    a("s_and_b32 s42, s21, 3"); a("s_lshl_b32 s42, s42, 7"); a("s_add_u32 s36, s36, s42")
    a("v_add_u32 v10, s36, v10")
    def odma(half):
        a(f"v_add_u32 v11, {half*64*2048}, v10")
        for i in range(8):
            a(f"s_add_u32 m0, s43, {half*8192 + i*1024}")
            a("s_nop 0")
            a("global_load_lds_dwordx4 v11, s[10:11]")
            if i < 7: a("v_add_u32 v11, 0x4000, v11")
    a("v_mov_b32 v56, 0"); a("s_lshr_b32 s36, s18, 3"); a("s_lshl_b32 s36, s36, 2"); a("v_mov_b32 v57, s36")
    a("s_cmp_lt_u32 s21, 4"); a(f"s_cbranch_scc0 {L('wv_only')}")
    odma(1)
    a("s_waitcnt vmcnt(8)"); vread()
    odma(0)
    a("v_lshrrev_b32 v12, 2, v0")
    a("v_lshlrev_b32 v12, 7, v12"); a("v_and_b32 v13, 3, v0"); a("v_lshl_add_u32 v12, v13, 4, v12"); a("v_add_u32 v12, s43, v12")
    a("s_waitcnt vmcnt(0)")
    def wo_reg(ct, jj):
        return f"v[{96+(ct*4+jj)*4}:{96+(ct*4+jj)*4+3}]"
    for ct in range(4):
        for jj in range(4):
            for lo in range(2):
                base = 96 + (ct*4 + jj)*4 + lo*2
                off = (32*jj + 16*lo)*128 + (ct >> 1)*64 + (ct & 1)*8
                a(f"ds_read_b64_tr_b16 v[{base}:{base+1}], v12 offset:{off}")
        a("s_waitcnt lgkmcnt(0)")
    a(f"s_branch {L('wdone')}")
    a.label(L('wv_only'))
    a("s_cmp_eq_u32 s21, 7"); a(f"s_cbranch_scc0 {L('wv2')}")
    for t_ in range(2 if NT_ else 1):
        a(f"global_load_dwordx4 v[48:51], v9, {RB(t_)} sc1"); a(f"global_load_dwordx4 v[52:55], v8, {RB(t_)} sc1")
    a(f"global_load_dwordx2 v[58:59], v56, s[14:15] offset:{DBG_VOTE} sc1"); a("global_load_dword v61, v57, s[14:15] sc1")
    a.label(L('wv2'))
    a("s_waitcnt vmcnt(0)"); vread()
    a.label(L('wdone'))
    pstamp(a, prof, 89)

    a("s_cmp_eq_u32 s21, 7"); a(f"s_cbranch_scc0 {L('sync1')}")
    a.label(L('clrw'))
    a("v_readfirstlane_b32 s36, v58"); a("v_readfirstlane_b32 s37, v59")
    a("s_and_b32 s42, s36, 0xffff"); a("s_add_u32 s42, s42, s37"); a("s_cmp_eq_u32 s42, 256"); a(f"s_cbranch_scc1 {L('clrok')}")
    a("s_sleep 8")
    a(f"global_load_dwordx2 v[58:59], v56, s[14:15] offset:{DBG_VOTE} sc1"); a("s_waitcnt vmcnt(0)")
    a("global_load_dword v61, v57, s[14:15] sc1"); a("s_waitcnt vmcnt(0)")
    guard(a, L('clrw'), FAIL)
    a.label(L('clrok'))
    a("v_cmp_gt_u32 vcc, 32, v61"); a(f"s_cbranch_vccz {L('cntok')}")
    a("global_load_dword v61, v57, s[14:15] sc1"); a("s_waitcnt vmcnt(0)")
    a.label(L('cntok'))
    a("s_lshr_b32 s36, s36, 16"); a("s_cmp_gt_u32 s36, 64"); a("s_cselect_b32 s25, 1, 0")
    a("v_mov_b32 v60, s25"); a(f"v_mov_b32 v56, {L_PARW}")
    a("ds_write_b64 v56, v[60:61]")
    a.label(L('sync1'))

    a("s_and_b32 s36, s21, 3"); a("s_lshl_b32 s36, s36, 11"); a("s_lshr_b32 s42, s21, 2"); a("s_lshl_b32 s42, s42, 14"); a("s_add_u32 s36, s36, s42")
    a("v_add_u32 v1, s36, v6")
    a("v_and_b32 v2, 8, v0"); a("v_cmp_eq_u32 vcc, 0, v2"); a("v_mov_b32 v2, 0xeeee"); a("v_mov_b32 v3, 0x4444"); a("s_nop 1")
    a("v_cndmask_b32 v2, v2, v3, vcc")
    a("s_mul_i32 s36, s21, 3072"); a("v_add_u32 v3, s36, v6")
    a("s_mov_b32 s22, 0"); a("s_mov_b32 s51, 1")
    a("s_waitcnt vmcnt(0) lgkmcnt(0)"); a("s_barrier")
    if kvwait and PAR["RPF"]:
        a("s_load_dwordx8 s[68:75], s[0:1], 0")
        a("s_lshl_b32 s36, s20, 3"); a("s_add_u32 s36, s36, s21"); a("v_lshlrev_b32 v24, 2, v6"); a("s_mov_b32 m0, 0x10000")
        a("s_waitcnt lgkmcnt(0)")
        parts = [(74, 1 << 20, 3, 0, 3), (68, 0, 4, 0, 4), (70, 0, 6, 0, 4), (70, 0, 6, 4, 2), (72, 0, 2, 0, 2)] + ([(4, 0, 8, 0, 4), (4, 0, 8, 4, 4)] if PAR["RPF"] == 2 else [])
        for p, fix, per, first, nkb in parts:
            a(f"s_mul_i32 s42, s36, {per*1024}"); a(f"s_add_u32 s42, s42, {fix + first*1024}")
            a(f"v_min_u32 v25, {nkb*1024 - 64}, v24"); a("v_add_u32 v25, s42, v25")
            a(f"global_load_lds_dword v25, s[{p}:{p+1}]")
    for i in range(8): a(f"v_min_u32 v{16+i}, -2, v{16+i}")
    a(f"v_mov_b32 v24, {L_PARW}"); a("ds_read_b64 v[24:25], v24"); a("s_waitcnt lgkmcnt(0)")
    a("v_readfirstlane_b32 s25, v24"); a("v_readfirstlane_b32 s23, v25")
    a("s_and_b32 s25, s25, 1")
    if "safe" in OPT: a("s_mov_b32 s23, 0")
    a("s_lshl_b32 s36, s25, 13"); a("s_add_u32 s26, s16, s36"); a("s_addc_u32 s27, s17, 0")
    a(f"s_mov_b32 s42, {WS_PART1}"); near(a, 40, "s42")
    PB = lambda tag: "s[40:41]" if (tag and PAR["DROP"]) else "s[26:27]"
    a(f"s_mov_b32 s42, {WS_MEMS}"); near(a, 28, "s42")
    a("s_lshr_b32 s38, s18, 1"); a("s_lshl_b32 s38, s38, 14"); a("s_and_b32 s36, s18, 1"); a("s_lshl_b32 s36, s36, 12"); a("s_add_u32 s38, s38, s36"); a(f"s_add_u32 s38, s38, {WS_KMVM}")
    near(a, 30, "s38")
    if "diag" in OPT: pstamp(a, 3, 98)
    if prof:
        for k in range(8): a(f"s_mov_b32 s{60+k}, 0")
        a("s_memtime s[56:57]"); a("s_waitcnt lgkmcnt(0)"); a("s_mov_b32 s59, s56")
        pstamp(a, prof, 60)
    a("s_cmp_lt_u32 s21, 4"); a(f"s_cbranch_scc1 {L('setup_vo')}")
    a("s_cmp_eq_u32 s21, 6"); a(f"s_cbranch_scc1 {L('setup_sm')}")

    def head_word(val):
        a(f"v_mov_b32 v95, {val}")
        a("s_xor_b32 s36, s25, 1"); a("s_lshl_b32 s36, s36, 13"); a("s_add_u32 s36, s36, s45"); a(f"s_add_u32 s36, s36, {WS_HW}")
        a("v_mov_b32 v94, s36")
        a("s_mov_b64 exec, 1")
        a("global_store_dword v94, v95, s[16:17] sc1")
        a("s_mov_b64 exec, -1")
    def zero_acc():
        for i in range(24): a(f"v_mov_b32 v{24+i}, 0")
    def pair(p): return [(2*p, 0), (2*p+1, 0), (2*p, 1), (2*p+1, 1)]
    def sm(tt, ks, mb):
        dd = 24 + tt*4; b = (tt*2 + ks)*8
        a(f"v_smfmac_f32_16x16x64_bf16 v[{dd}:{dd+3}], v[{mb+4*ks}:{mb+3+4*ks}], a[{b}:{b+7}], v2")
    def cv(p, i): a(f"v_cvt_pk_bf16_f32 v{24+8*p+i}, v{24+8*p+2*i}, v{25+8*p+2*i}")
    def mload(b):
        a(f"global_load_dwordx4 v[{b}:{b+3}], v1, s[28:29] sc1")
        a(f"global_load_dwordx4 v[{b+4}:{b+7}], v1, s[28:29] offset:1024 sc1")
    def p1(name, mid=None):
        backoff(a, PAR["MDEL"])
        a.label(L(name))
        mload(16)
        a("s_waitcnt vmcnt(0)")
        a.label(L(name + '_in'))
        fs(a, prof, 0, 5)
        chk = ["v_max3_u32 v0, v16, v17, v18", "v_max3_u32 v7, v19, v20, v21", "v_max3_u32 v0, v0, v22, v23", "v_max_u32 v0, v0, v7", "v_cmp_eq_u32 vcc, -1, v0"]
        for i, (t, k) in enumerate(pair(0)):
            sm(t, k, 16)
            for c in chk[2*i:2*i+2]: a(c)
            if i == 2: a(f"s_cbranch_vccnz {L(name + '_retry')}")
        stamp(a, prof, 0)
        fs(a, prof, 1, 5)
        for t, k in pair(1): sm(t, k, 16)
        a("s_nop 3")
        for i, (t, k) in enumerate(pair(2)):
            cv(0, i)
            if i == 3: a("ds_write_b128 v3, v[24:27]")
            sm(t, k, 16)
        fs(a, prof, 3, 5)
        for i in range(4): cv(1, i)
        a("ds_write_b128 v3, v[32:35] offset:1024")
        fs(a, prof, 4, 5)
        if PAR["SPLITB"] == 2 and not mid:
            a("s_waitcnt lgkmcnt(0)"); a("s_barrier"); a("s_nop 0")
            for i in range(4): cv(2, i)
            a("ds_write_b128 v3, v[40:43] offset:2048")
            a("s_waitcnt lgkmcnt(0)")
        else:
            a("s_nop 2")
            for i in range(4): cv(2, i)
            a("ds_write_b128 v3, v[40:43] offset:2048")
            if PAR["SPLITB"]:
                a("s_waitcnt lgkmcnt(1)"); a("s_barrier")
                if mid:
                    mid(); a("s_waitcnt lgkmcnt(8)")
                else:
                    a("s_waitcnt lgkmcnt(0)")
            else:
                a("s_waitcnt lgkmcnt(0)")
        fs(a, prof, 6, 5)
        a("s_barrier")
        if mid and not PAR["SPLITB"]: mid()
        fs(a, prof, 7, 5)
        if prof == 5: a("s_waitcnt lgkmcnt(0)")
        stamp(a, prof, 1)
    def p1_retry(name):
        a.label(L(name + '_retry'))
        a("s_nop 7")
        for i in range(8): a(f"v_mov_b32 v{24+i}, 0")
        guard(a, L(name), FAIL)

    def step_adv():
        zero_acc()
        a("s_add_u32 s22, s22, 1")
        a("s_add_u32 s28, s28, 0x8000"); a("s_addc_u32 s29, s29, 0")
        a("s_add_u32 s38, s38, 0x40000"); near(a, 30, "s38")
    def step_end():
        step_adv()
        a("s_waitcnt vmcnt(0) lgkmcnt(0)")
        a("s_barrier")
        stamp(a, prof, 7)

    a("s_sub_u32 s37, s21, 4"); a("s_min_u32 s37, s37, 2")
    a("s_lshl_b32 s36, s37, 10"); a("v_add_u32 v4, s36, v6")
    a("v_and_b32 v48, 1, v0"); a("v_lshlrev_b32 v48, 4, v48"); a("v_mov_b32 v49, 0x3f80"); a("v_lshlrev_b32 v48, v48, v49")
    a("v_bfe_u32 v49, v0, 3, 1"); a("v_bfe_u32 v50, v0, 1, 1"); a("v_lshl_add_u32 v49, v49, 1, v50")
    a("v_lshrrev_b32 v50, 2, v0"); a("v_xor_b32 v50, v50, v0"); a("v_and_b32 v50, 4, v50"); a("v_add_u32 v49, v49, v50")
    for q in range(4):
        a(f"v_cmp_eq_u32 vcc, {q}, v49"); a("s_nop 1"); a(f"v_cndmask_b32 v{84+q}, 0, v48, vcc")
    a("v_and_b32 v48, 7, v0"); a("v_lshlrev_b32 v48, 4, v48"); a("v_and_b32 v49, 8, v0"); a("v_lshrrev_b32 v50, 4, v0")
    a("v_add_u32 v51, v48, v49"); a("v_lshl_add_u32 v10, v50, 7, v51")
    a("s_and_b32 s46, s19, 1"); a("s_lshl_b32 s46, s46, 1"); a("s_add_u32 s46, s46, s37")
    a("s_add_u32 s36, s39, 4"); a("s_cmp_eq_u32 s37, 2"); a("s_cselect_b32 s36, s36, s46"); a("s_lshl_b32 s36, s36, 9"); a("v_add_u32 v10, s36, v10")
    a("v_lshl_add_u32 v5, v50, 8, v51"); a("s_lshl_b32 s36, s46, 10"); a("s_lshr_b32 s42, s19, 1"); a("s_lshl_b32 s42, s42, 7"); a("s_add_u32 s36, s36, s42"); a("v_add_u32 v5, s36, v5")
    zero_acc()
    for i in range(4): a(f"v_mov_b32 v{144+i}, -1")
    a(f"s_setprio {PAR['PPRIO']}")
    a("s_cmp_eq_u32 s21, 7"); a(f"s_cbranch_scc1 {L('setup_m')}")
    def rd8():
        for w in range(8): a(f"ds_read_b128 v[{48+4*w}:{51+4*w}], v4 offset:{3072*w}")
    def reduce8():
        for w in range(8):
            a(f"s_waitcnt lgkmcnt({7-w})")
            a(f"v_mfma_f32_16x16x32_bf16 v[80:83], v[{48+4*w}:{51+4*w}], v[84:87], " + ("0" if w == 0 else "v[80:83]"))
    def pack_tag(tag, last):
        if last:
            a(f"s_cmp_eq_u32 s22, {NSTEP-1}"); a(f"s_cbranch_scc1 {L(last)}")
        a("s_cmp_lt_u32 s23, 32")
        a("s_nop 4" if last else "s_nop 6")
        a("v_cvt_pk_bf16_f32 v88, v80, v81"); a("v_cvt_pk_bf16_f32 v89, v82, v83")
        for i in range(2): a(f"v_min_u32 v{90+i}, -2, v{88+i}" if NT_ else f"v_or_b32 v{90+i}, 1, v{88+i}" if tag else f"v_and_b32 v{90+i}, -2, v{88+i}")
    def pub2(tag, fl):
        a(f"global_store_dwordx2 v5, v[90:91], {RB(tag)} {fl}")
        if NT_: a(f"global_store_dwordx2 v5, v[144:145], {RB(tag ^ 1)} {fl}")
    def pub1(tag, fl):
        a(f"global_store_dword v5, v90, {RB(tag)} {fl}"); a(f"global_store_dword v5, v91, {RB(tag)} offset:128 {fl}")
        if NT_: a(f"global_store_dword v5, v144, {RB(tag ^ 1)} {fl}"); a(f"global_store_dword v5, v144, {RB(tag ^ 1)} offset:128 {fl}")
    a("v_add_u32 v11, s44, v6")
    a("v_and_b32 v15, 7, v0"); a("v_lshlrev_b32 v15, 4, v15"); a("v_bfe_u32 v48, v0, 4, 1"); a("v_lshl_add_u32 v15, v48, 3, v15"); a("v_add_u32 v15, s45, v15")
    a("v_and_b32 v48, 1, v0"); a("v_lshlrev_b32 v48, 4, v48"); a("v_mov_b32 v49, 0x3f80"); a("v_lshlrev_b32 v48, v48, v49")
    a("v_bfe_u32 v49, v0, 1, 3")
    for q in range(4):
        a(f"v_cmp_eq_u32 vcc, {q}, v49"); a("s_nop 1"); a(f"v_cndmask_b32 v{92+q}, 0, v48, vcc")
    a(f"s_mul_i32 s54, s37, {WS_VX - WS_KX}"); a(f"s_mul_i32 s55, s37, {L_VX - L_KX}"); a(f"s_add_u32 s55, s55, {L_KX}")
    a("s_lshl_b32 s36, s18, 14"); a("s_add_u32 s54, s54, s36"); a(f"s_add_u32 s54, s54, {WS_KX}"); a("v_add_u32 v12, 0x1000, v6")
    DR = PAR["DR"]
    rsets = [96, 112, 128][:DR]
    def rload(b):
        for i in range(4): a(f"global_load_dwordx4 v[{b+4*i}:{b+3+4*i}], v11, {PB(tag)} offset:{1024*i} sc1")
    a(f"s_branch {L('v0_in')}")
    a.label(L('v_loop'))
    for tag in range(2):
        n = f"v{tag}"
        p1(n, rd8)
        reduce8()
        pack_tag(tag, 'last_pub' if tag == (NSTEP - 1) & 1 else None)
        a(f"s_cbranch_scc1 {L(n + '_wt')}")
        pub2(tag, "")
        a.label(L(n + '_pd'))
        if tag == 0:
            a("s_cmp_eq_u32 s22, 0"); a(f"s_cbranch_scc1 {L('v_first')}")
            a.label(L('v_fj'))
        stamp(a, prof, 2)
        if PAR["DDEL"]:
            a("s_add_u32 s53, s22, 2"); a("s_min_u32 s53, s53, 63"); a("s_lshl_b32 s53, s53, 19"); a("s_add_u32 s53, s53, s54"); near(a, 48, "s53", kv=True)
            a(f"s_add_u32 m0, s55, {tag*8192}")
            a(f"s_sleep {PAR['DDEL']}")
            for jj in range(4): a(f"global_load_lds_dwordx4 v6, s[48:49] offset:{jj*1024} sc1")
            a(f"s_add_u32 m0, s55, {tag*8192 + 4096}"); a("s_nop 0")
            for jj in range(4): a(f"global_load_lds_dwordx4 v12, s[48:49] offset:{jj*1024} sc1")
        a("s_waitcnt vmcnt(0)"); a("s_barrier")
        a("s_cmp_lt_u32 s19, 2"); a(f"s_cbranch_scc1 {L(n + '_nq')}")
        if "nopers" not in OPT: a("global_store_dwordx2 v10, v[88:89], s[30:31] sc1")
        a.label(L(n + '_nq'))
        a("s_cmp_eq_u32 s21, 4"); a(f"s_cbranch_scc1 {L(n + '_red')}")
        if prof == 3:
            a("s_memrealtime s[56:57]"); a("s_memtime s[92:93]"); a("s_waitcnt lgkmcnt(0)"); a("s_mov_b32 m0, s22"); a("s_nop 0"); a("v_writelane_b32 v150, s56, m0"); a("v_writelane_b32 v151, s92, m0")
        step_adv()
        if PAR["BDEL"]: a(f"s_sleep {PAR['BDEL']}")
        a("s_waitcnt vmcnt(0)")
        a(f"s_branch {L(n + '_end')}")
        a.label(L(n + '_red'))
        step_adv()
        backoff(a, PAR["RDEL"])
        stamp(a, prof, 5, 31)
        for d in range(DR - 1):
            rload(rsets[d])
            backoff(a, PAR["RGAP"])
        a.label(L(n + '_rp'))
        for d in range(DR):
            rload(rsets[(d + DR - 1) % DR])
            a(f"s_waitcnt vmcnt({4*(DR-1)})")
            b = rsets[d]
            mf = [f"v_mfma_f32_16x16x32_bf16 v[64:67], v[92:95], v[{b+4*i}:{b+3+4*i}], " + ("0" if i == 0 else "v[64:67]") for i in range(4)]
            tagchk(a, list(range(b, b + 16)), tag if not PAR["DROP"] else None, 73, 72, mf)
            a(f"s_cbranch_vccz {L(n + '_rok')}" if d < DR - 1 else f"s_cbranch_vccnz {L(n + '_rr')}")
        a.label(L(n + '_rok'))
        a("s_nop 3")
        for i in range(4): a(f"v_add_f32_dpp v{72+i}, v{64+i}, v{64+i} row_ror:8 row_mask:0xf bank_mask:0xf")
        a("s_mov_b64 exec, 0x00ff00ff")
        a("v_cvt_pk_bf16_f32 v76, v72, v73"); a("v_cvt_pk_bf16_f32 v77, v74, v75")
        a("v_min_u32 v76, -2, v76"); a("v_min_u32 v77, -2, v77")
        a("global_store_dwordx2 v15, v[76:77], s[28:29] sc1")
        a("s_mov_b64 exec, -1")
        if PAR["DROP"]:
            for i in range(4): a(f"global_store_dwordx4 v11, v[144:147], {PB(tag)} offset:{1024*i} sc1")
        stamp(a, prof, 6, 31)
        if PAR["MACK"]: a("s_waitcnt vmcnt(0)")
        a.label(L(n + '_end'))
        a("s_barrier")
        stamp(a, prof, 7)
    a(f"s_branch {L('v_loop')}")
    for tag in range(2):
        n = f"v{tag}"
        p1_retry(n)
        a.label(L(n + '_wt')); pub2(tag, "sc1"); a(f"s_branch {L(n + '_pd')}")
        a.label(L(n + '_rr')); guard(a, L(n + '_rp'), FAIL)

    a.label(L('v_first')); a("s_barrier"); a("s_barrier"); a(f"s_branch {L('v_fj')}")

    a.label(L('setup_m'))
    a("v_lshrrev_b32 v5, 5, v0"); a("v_lshl_add_u32 v5, v5, 8, v48"); a("v_bfe_u32 v50, v0, 3, 2"); a("v_lshl_add_u32 v5, v50, 2, v5")
    a("s_lshl_b32 s36, s39, 9"); a("s_add_u32 s36, s36, 4096"); a("v_add_u32 v5, s36, v5")
    a("v_mov_b32 v93, 0")
    def progress(tagname):
        a("s_cmp_eq_u32 s20, 0"); a(f"s_cbranch_scc0 {L(tagname)}")
        a("v_mov_b32 v92, s22")
        a("s_mov_b64 exec, 1")
        a(f"global_store_dword v93, v92, s[14:15] offset:{DBG_PROG} sc1")
        a("s_mov_b64 exec, -1")
        a.label(L(tagname))
    a(f"s_branch {L('m0_in')}")
    a.label(L('m_loop'))
    for tag in range(2):
        n = f"m{tag}"
        p1(n)
        rd8(); reduce8()
        pack_tag(tag, 'fin_m' if tag == (NSTEP - 1) & 1 else None)
        a(f"s_cbranch_scc1 {L(n + '_wt')}")
        pub1(tag, "")
        a.label(L(n + '_pd'))
        if tag == 0:
            a("s_cmp_eq_u32 s22, 0"); a(f"s_cbranch_scc1 {L('m_first')}")
            a.label(L('m_fj'))
        a("s_waitcnt vmcnt(0)"); a("s_barrier")
        if "nopers" not in OPT: a("global_store_dwordx2 v10, v[88:89], s[30:31] sc1")
        progress(n + '_pg')
        if kvwait:
            a("s_add_u32 s53, s22, 3"); a("s_min_u32 s53, s53, 63"); kv_tile(a, "s53", "s53", "s36")
            a("s_cmp_lt_u32 s53, s51"); a(f"s_cbranch_scc1 {L(n + '_kvh')}")
            kv_poll(n + '_kv', "s53")
            a("s_add_u32 s51, s53, 1")
            a.label(L(n + '_kvh'))
        step_end()
        a(f"s_cmp_ge_u32 s22, {NSTEP - 3}"); a(f"s_cbranch_scc1 {L(n + '_hp')}")
        a.label(L(n + '_hd'))
    a(f"s_branch {L('m_loop')}")
    for tag in range(2):
        n = f"m{tag}"
        p1_retry(n)
        a.label(L(n + '_wt'))
        pub1(tag, "sc1"); a(f"s_branch {L(n + '_pd')}")
        a.label(L(n + '_hp'))
        a("s_sub_u32 s36, s22, 1"); head_word("s36"); a(f"s_branch {L(n + '_hd')}")
    a.label(L('m_first'))
    if kvwait:
        a("s_mov_b32 s53, 0"); kv_poll('kv0', "s53")
    for sg in range(2):
        a(f"s_mov_b32 s53, {sg}"); kv_bases("s53")
        a(f"s_mov_b32 s50, {L_VX + sg*8192}"); xdma("s[34:35]", "s50")
        a(f"s_mov_b32 s50, {L_KX + sg*8192}"); xdma("s[48:49]", "s50")
    a("s_waitcnt vmcnt(16)"); a("s_barrier"); a("s_barrier")
    pstamp(a, prof, 60)
    if "span" in OPT:
        a("s_and_b32 s98, s20, 15"); a("s_cmp_lg_u32 s98, 0"); a(f"s_cbranch_scc1 {L('nosp')}")
        a("s_memrealtime s[98:99]"); a("s_waitcnt lgkmcnt(0)"); a("v_mov_b32 v17, s98"); a("v_mov_b32 v16, 0")
        a("s_mov_b64 exec, 1"); a("global_atomic_umax v16, v17, s[14:15] offset:16 sc1"); a("s_mov_b64 exec, -1")
        a.label(L('nosp'))
    a("s_waitcnt vmcnt(0)")
    a(f"s_branch {L('m_fj')}")
    a.label(L('fin_m'))
    progress('pg_last')
    a(f"s_branch {L('last_pub')}")

    a.label(L('setup_sm'))
    a(f"v_add_u32 v14, {L_KX}, v6")
    a("v_and_b32 v48, 7, v0"); a("v_lshrrev_b32 v49, 4, v0"); a("v_lshl_add_u32 v9, v49, 3, v48"); a("v_lshlrev_b32 v9, 4, v9"); a("v_and_b32 v50, 8, v0"); a("v_add_u32 v9, v9, v50")
    a("v_and_b32 v49, 1, v49"); a("v_lshl_add_u32 v10, v49, 3, v48"); a("v_lshlrev_b32 v10, 4, v10")
    a("v_lshrrev_b32 v49, 5, v0"); a("v_lshl_add_u32 v10, v49, 2, v10"); a("v_lshrrev_b32 v50, 2, v50"); a("v_add_u32 v10, v10, v50")
    a("s_mov_b32 s46, 0x3e0293ee")
    for i in range(4): a(f"v_mov_b32 v{84+i}, 0")
    a(f"ds_write_b128 v6, v[84:87] offset:{L_ZERO}"); a(f"ds_write_b128 v6, v[84:87] offset:{L_ZERO + 1024}")
    def k_load():
        for i in range(8): a(f"ds_read_b128 v[{96+4*i}:{99+4*i}], v14 offset:{1024*i}")
        a("v_xor_b32 v14, 0x2000, v14")
    zero_acc()
    a("s_setprio 2")
    def xload(b):
        for jj in range(4): a(f"global_load_dwordx4 v[{b+4*jj}:{b+3+4*jj}], v6, {RB(tag)} offset:{1024*jj} sc1")
    def s_mfma(b, t, jj):
        X = f"v[{b+4*jj}:{b+3+4*jj}]"
        d = 64 + 4*t
        A = X if t == 2 else f"v[{96+(t*4+jj)*4}:{99+(t*4+jj)*4}]"
        return f"v_mfma_f32_16x16x32_bf16 v[{d}:{d+3}], {A}, {X}, " + (f"v[{d}:{d+3}]" if jj else "0")
    def s_head(b, tag):
        tagchk(a, list(range(b, b + 16)), None if NT_ else tag, 15, 16, [s_mfma(b, 2, jj) for jj in range(4)])
    dpp = "row_shr:8 row_mask:0xf bank_mask:0xc"
    def s_rest(b):
        for jj in range(4): a(s_mfma(b, 1, jj))
        a(s_mfma(b, 0, 0))
        a(f"v_mov_b32_dpp v72, v73 {dpp}"); a(f"v_mov_b32_dpp v74, v75 {dpp}")
        a(s_mfma(b, 0, 1)); a(s_mfma(b, 0, 2))
        a("v_permlane32_swap_b32 v72, v74")
        a(s_mfma(b, 0, 3))
    XD = PAR["XD"]
    a(f"s_branch {L('s0_in')}")
    a.label(L('s_loop'))
    for tag in range(2):
        n = f"s{tag}"
        p1(n)
        if tag == (NSTEP - 1) & 1:
            a(f"s_cmp_eq_u32 s22, {NSTEP-1}"); a(f"s_cbranch_scc1 {L('fin')}")
        if tag == 0:
            a("s_cmp_eq_u32 s22, 0"); a(f"s_cbranch_scc1 {L('s_first')}")
            pass
        backoff(a, PAR["XDEL"])
        if tag == 0: a.label(L('s_fj'))
        if XD == 2:
            xload(48)
            backoff(a, PAR["XGAP"])
        a.label(L(n + '_xp'))
        xload(128 if XD == 2 else 48)
        a(f"s_waitcnt vmcnt({4*(XD-1)})")
        fs(a, prof, 0, 4)
        s_head(48, tag)
        a(f"s_cbranch_vccnz {L(n + '_xr')}")
        stamp(a, prof, 2)
        fs(a, prof, 1, 4)
        s_rest(48)
        a.label(L(n + '_xj'))
        fs(a, prof, 2, 4)
        a("s_nop 0")
        a("v_max_f32_dpp v16, v74, v74 row_ror:8 row_mask:0xf bank_mask:0xf")
        a("v_max3_f32 v16, v16, v68, v69"); a("v_max3_f32 v16, v16, v70, v71")
        a("s_nop 3")
        a("v_max3_f32 v16, v16, v64, v65"); a("v_max3_f32 v16, v16, v66, v67")
        fs(a, prof, 3, 4)
        a("v_mov_b32 v17, v16"); a(f"v_mov_b32_dpp v64, v68 {dpp}"); a(f"v_mov_b32_dpp v65, v69 {dpp}")
        a("v_permlane16_swap_b32 v16, v17"); a("v_max_f32 v16, v16, v17")
        a("v_mov_b32 v17, v16"); a(f"v_mov_b32_dpp v66, v70 {dpp}"); a(f"v_mov_b32_dpp v67, v71 {dpp}")
        a("v_permlane32_swap_b32 v16, v17"); a("v_max_f32 v16, v16, v17")
        fs(a, prof, 4, 4)
        a("v_mul_f32 v16, s46, v16")
        a("s_nop 1")
        a(f"v_mov_b32_dpp v16, v16 {dpp}")
        for rg in (74, 64, 65, 66, 67): a(f"v_fma_f32 v{rg}, v{rg}, s46, -v16")
        a("v_exp_f32 v74, v74"); a("v_exp_f32 v64, v64")
        a("v_cvt_pk_bf16_f32 v82, v74, v74")
        a("v_exp_f32 v65, v65")
        a(f"ds_write_b16 v10, v82 offset:{L_P + 1024}")
        a("v_exp_f32 v66, v66")
        a(f"ds_write_b16 v10, v82 offset:{L_P + 1280}")
        a("v_exp_f32 v67, v67")
        a("v_cvt_pk_bf16_f32 v80, v64, v65")
        a("v_cvt_pk_bf16_f32 v81, v66, v67")
        a(f"ds_write_b64 v9, v[80:81] offset:{L_P}")
        fs(a, prof, 5, 4)
        a("s_waitcnt lgkmcnt(0)"); fs(a, prof, 6, 4); a("s_barrier"); fs(a, prof, 7, 4)
        stamp(a, prof, 3)
        k_load()
        step_end()
    a(f"s_branch {L('s_loop')}")
    for tag in range(2):
        n = f"s{tag}"
        p1_retry(n)
        a.label(L(n + '_xr'))
        if XD == 2:
            xload(48)
            a("s_waitcnt vmcnt(4)")
            s_head(128, tag)
            a(f"s_cbranch_vccnz {L(n + '_xg')}")
            stamp(a, prof, 2)
            s_rest(128)
            a(f"s_branch {L(n + '_xj')}")
            a.label(L(n + '_xg'))
        guard(a, L(n + '_xp'), FAIL)

    a.label(L('s_first')); a("s_barrier"); k_load(); a("s_waitcnt lgkmcnt(0)"); a("s_barrier"); a(f"s_branch {L('s_fj')}")

    a.label(L('setup_vo'))
    a("v_add_u32 v8, 0x1000, v6"); a("v_lshrrev_b32 v9, 4, v0")
    a("s_lshl_b32 s36, s19, 5"); a("s_lshl_b32 s42, s21, 3"); a("s_add_u32 s36, s36, s42")
    a("v_add_u32 v9, s36, v9"); a("v_bfe_u32 v11, v0, 3, 1"); a("v_lshl_add_u32 v9, v11, 2, v9")
    a("v_and_b32 v11, 1, v9"); a("v_lshlrev_b32 v11, 12, v11"); a("v_lshrrev_b32 v9, 1, v9"); a("v_lshl_add_u32 v9, v9, 14, v11")
    a("v_and_b32 v11, 7, v0"); a("v_lshl_add_u32 v9, v11, 4, v9"); a("s_lshl_b32 s36, s18, 7"); a("v_add_u32 v9, s36, v9")
    a("v_lshrrev_b32 v12, 4, v0"); a("v_and_b32 v13, 7, v0"); a("v_lshl_add_u32 v12, v12, 3, v13"); a("v_lshlrev_b32 v12, 4, v12"); a(f"v_add_u32 v12, {L_P}, v12"); a(f"v_mov_b32 v11, {L_ZERO}")
    a("v_and_b32 v13, 8, v0"); a("v_cmp_eq_u32 vcc, 0, v13"); a("s_nop 1")
    a("v_cndmask_b32 v13, v12, v11, vcc"); a("v_cndmask_b32 v12, v11, v12, vcc")
    a(f"v_add_u32 v14, {L_VX}, v6")
    a("s_lshr_b32 s36, s21, 1"); a(f"s_mul_i32 s54, s36, {WS_VX - WS_KX}"); a(f"s_mul_i32 s55, s36, {L_VX - L_KX}")
    a("s_and_b32 s36, s21, 1"); a("s_lshl_b32 s36, s36, 12"); a("s_add_u32 s54, s54, s36"); a("s_add_u32 s55, s55, s36"); a(f"s_add_u32 s55, s55, {L_KX}")
    a("s_lshl_b32 s36, s18, 14"); a("s_add_u32 s54, s54, s36"); a(f"s_add_u32 s54, s54, {WS_KX}")
    def u_load():
        for i in range(8): a(f"ds_read_b128 v[{16+4*i}:{19+4*i}], v14 offset:{1024*i}")
        a("v_xor_b32 v14, 0x2000, v14")
    def u_half(hf):
        for jj in range(4):
            for c2 in range(2):
                for kt in range(2):
                    d = 64 + (c2*2 + kt)*4
                    A = 16 + (kt*4 + jj)*4
                    a(f"v_mfma_f32_16x16x32_bf16 v[{d}:{d+3}], v[{A}:{A+3}], {wo_reg(2*hf+c2, jj)}, " + ("0" if jj == 0 else f"v[{d}:{d+3}]"))
        a("s_nop 7")
        for c2 in range(2):
            for kt in range(2):
                d = 64 + (c2*2 + kt)*4
                u = 80 + (2*hf + c2)*4 + kt*2
                a(f"v_cvt_pk_bf16_f32 v{u}, v{d}, v{d+1}"); a(f"v_cvt_pk_bf16_f32 v{u+1}, v{d+2}, v{d+3}")
    def vo_prep(tag, ahead):
        for i in range(4): a(f"v_mov_b32 v{56+i}, 0x3f803f80")
        for i in range(4): a(f"v_mov_b32 v{60+i}, 0x3f003f00")
        for i in range(16): a(f"v_mov_b32 v{64+i}, 0")
        a(f"s_add_u32 s53, s22, {2 + ahead}"); a("s_min_u32 s53, s53, 63"); a("s_lshl_b32 s53, s53, 19"); a("s_add_u32 s53, s53, s54"); near(a, 48, "s53", kv=True)
        a(f"s_add_u32 m0, s55, {tag*8192}")
    vo_prep(0, 0)
    zero_acc()
    if PAR["PRIO"]: a("s_setprio 1")
    a(f"s_branch {L('o0_in')}")
    a.label(L('o_loop'))
    for tag in range(2):
        n = f"o{tag}"
        p1(n)
        if tag == (NSTEP - 1) & 1:
            a(f"s_cmp_eq_u32 s22, {NSTEP-1}"); a(f"s_cbranch_scc1 {L('fin')}")
        backoff(a, PAR["VDEL"])
        a.label(L(n + '_vp'))
        for k in range(2): a(f"global_load_dwordx4 v[{48+4*k}:{51+4*k}], v8, {RB(tag)} offset:{1024*k} sc1")
        a("s_waitcnt vmcnt(0)")
        tagchk(a, list(range(48, 56)), None if NT_ else tag, 17, 16)
        a(f"s_cbranch_vccnz {L(n + '_vr')}")
        for k in range(2):
            for ct in range(4):
                b = 96 + (ct*4 + 2*k)*4
                a(f"v_smfmac_f32_16x16x64_bf16 v[{64+4*ct}:{67+4*ct}], v[{48+4*k}:{51+4*k}], v[{b}:{b+7}], v2")
                if PAR["DMI"] and tag == 1 and k == PAR["DMI"] - 1: a(f"global_load_lds_dwordx4 v6, s[48:49] offset:{ct*1024} sc1")
        a("s_nop 4")
        for ct in range(4):
            if ct == 3: a("s_nop 1")
            t = 24 + (ct & 1)*4 + (ct >> 1)*2
            a(f"v_cvt_pk_bf16_f32 v{t}, v{64+4*ct}, v{65+4*ct}"); a(f"v_cvt_pk_bf16_f32 v{t+1}, v{66+4*ct}, v{67+4*ct}")
        if tag == 0:
            a("s_cmp_eq_u32 s22, 0"); a(f"s_cbranch_scc1 {L('o_first')}")
            a.label(L('o_fj'))
        if not PAR["DDEL"] and not (PAR["DMI"] and tag == 1) and "nodma" not in OPT:
            for jj in range(4): a(f"global_load_lds_dwordx4 v6, s[48:49] offset:{jj*1024} sc1")
        stamp(a, prof, 3)
        a("s_barrier")
        a("ds_read_b64 v[36:37], v12 offset:1024"); a("ds_read_b64 v[38:39], v13 offset:1024")
        a("ds_read_b128 v[32:35], v12"); a("ds_read_b128 v[48:51], v13")
        a("s_waitcnt lgkmcnt(2)")
        stamp(a, prof, 4)
        a("v_mfma_f32_16x16x32_bf16 v[40:43], v[60:63], v[36:39], 0")
        a("v_mfma_f32_16x16x32_bf16 v[64:67], v[24:27], v[36:39], 0")
        a("s_waitcnt lgkmcnt(0)")
        a("v_or_b32 v44, v32, v48"); a("v_or_b32 v45, v33, v49")
        a("v_or_b32 v46, v34, v50"); a("v_or_b32 v47, v35, v51")
        a("v_mfma_f32_16x16x32_bf16 v[64:67], v[80:83], v[32:35], v[64:67]")
        a("v_mfma_f32_16x16x32_bf16 v[68:71], v[28:31], v[36:39], 0")
        a("v_mfma_f32_16x16x32_bf16 v[40:43], v[56:59], v[44:47], v[40:43]")
        a("v_mfma_f32_16x16x32_bf16 v[64:67], v[88:91], v[48:51], v[64:67]")
        a("v_mfma_f32_16x16x32_bf16 v[68:71], v[84:87], v[32:35], v[68:71]")
        a("v_mfma_f32_16x16x32_bf16 v[68:71], v[92:95], v[48:51], v[68:71]")
        a("s_nop 4")
        a("v_rcp_f32 v40, v40")
        a("s_nop 0")
        tg = lambda x: a(f"v_min_u32 v{x}, -2, v{x}" if PAR["DROP"] else f"v_or_b32 v{x}, 1, v{x}" if tag else f"v_and_b32 v{x}, -2, v{x}")
        for h in range(2):
            for i in range(2): a(f"v_pk_mul_f32 v[{64+4*h+2*i}:{65+4*h+2*i}], v[{64+4*h+2*i}:{65+4*h+2*i}], v[40:41] op_sel_hi:[1,0]")
            for i in range(2): a(f"v_cvt_pk_bf16_f32 v{48+2*h+i}, v{64+4*h+2*i}, v{65+4*h+2*i}")
        for i in range(4): tg(48 + i)
        a(f"global_store_dwordx4 v9, v[48:51], {PB(tag)} sc1")
        stamp(a, prof, 5)
        u_load(); a("s_waitcnt lgkmcnt(0)"); u_half(0)
        u_half(1)
        vo_prep(tag ^ 1, 1)
        step_end()
    a(f"s_branch {L('o_loop')}")
    for tag in range(2):
        n = f"o{tag}"
        p1_retry(n)
        a.label(L(n + '_vr')); guard(a, L(n + '_vp'), FAIL)

    a.label(L('o_first'))
    for i in range(8): a(f"v_mov_b32 v{48+i}, v{24+i}")
    a("s_barrier")
    u_load(); a("s_waitcnt lgkmcnt(0)"); a("s_barrier"); u_half(0); u_half(1)
    for i in range(8): a(f"v_mov_b32 v{24+i}, v{48+i}")
    a(f"s_branch {L('o_fj')}")

    a.label(L('last_pub'))
    a("s_nop 7")
    a("v_cvt_pk_bf16_f32 v88, v80, v81"); a("v_cvt_pk_bf16_f32 v89, v82, v83")
    a("s_or_b32 s36, s19, s37"); a("s_and_b32 s36, s36, 2"); a(f"s_cbranch_scc0 {L('fin')}")
    a("global_store_dwordx2 v10, v[88:89], s[30:31] sc1")
    a.label(L('fin'))
    a("s_waitcnt vmcnt(0)"); a("s_barrier")
    a("s_cmp_eq_u32 s21, 0"); a(f"s_cbranch_scc0 {L('end')}")
    head_word(str(NSTEP - 1))
    if "span" in OPT:
        a("s_and_b32 s98, s20, 15"); a("s_cmp_lg_u32 s98, 0"); a(f"s_cbranch_scc1 {L('end')}")
        a("s_memrealtime s[98:99]"); a("s_waitcnt lgkmcnt(0)"); a("v_mov_b32 v5, s98"); a("v_mov_b32 v2, 0")
        a("s_mov_b64 exec, 1"); a("global_atomic_umax v2, v5, s[14:15] offset:56 sc1"); a("s_mov_b64 exec, -1")
    if "diag" in OPT:
        a("s_cmp_eq_u32 s20, 0"); a(f"s_cbranch_scc0 {L('end')}")
        a("s_memrealtime s[56:57]"); a("s_waitcnt lgkmcnt(0)"); a("s_sub_u32 s70, s56, s98"); a("s_sub_u32 s71, s98, s97")
        a("s_mov_b64 exec, 1")
        a("s_mov_b32 s72, 0"); a("s_mov_b32 s73, 0"); a("s_mov_b32 s74, 0"); a("v_mov_b32 v18, 0")
        a.label(L('dg'))
        for k in range(2):
            a("s_lshl_b32 s36, s74, 21"); a(f"s_add_u32 s36, s36, {0x10000 + k*0x2000}"); a("v_mov_b32 v16, s36")
            for rep in range(2):
                a("s_memtime s[56:57]"); a("s_waitcnt lgkmcnt(0)")
                a("global_atomic_or v17, v16, v18, s[16:17] sc0 sc1"); a("s_waitcnt vmcnt(0)")
                a("s_memtime s[58:59]"); a("s_waitcnt lgkmcnt(0)")
            a(f"s_sub_u32 s{76+k}, s58, s56")
        a("s_cmp_lt_u32 s77, s76"); a("s_cselect_b32 s78, 1, 0"); a("s_mov_b32 s79, 0"); a("s_lshl_b64 s[78:79], s[78:79], s74"); a("s_or_b64 s[72:73], s[72:73], s[78:79]")
        a("s_add_u32 s74, s74, 1"); a("s_cmp_lt_u32 s74, 64"); a(f"s_cbranch_scc1 {L('dg')}")
        for k in range(4): a(f"v_mov_b32 v{20+k}, s{70+k}")
        a("global_store_dwordx4 v18, v[20:23], s[14:15] offset:48")
        a("s_mov_b64 exec, -1")
    a(f"s_branch {L('end')}")
    a.label(FAIL)
    a("v_mov_b32 v16, 0"); a("v_mov_b32 v17, 0xdead"); a("global_store_dword v16, v17, s[14:15] offset:252")
    a.label(L('end'))
    if prof:
        if prof == 3:
            a("s_memrealtime s[56:57]"); a("s_waitcnt lgkmcnt(0)"); a("s_mov_b32 s61, s56"); a("s_mov_b32 s62, s25"); a("s_mov_b32 s63, s90"); a("s_mov_b32 s64, s91"); a("s_mov_b32 s65, s89")
        if prof == 3:
            a("s_cmp_eq_u32 s21, 5"); a(f"s_cbranch_scc0 {L('nost')}")
            a("s_lshl_b32 s36, s20, 9"); a(f"s_add_u32 s36, s36, {203<<20}"); a("v_lshrrev_b32 v16, 1, v6"); a("v_add_u32 v16, s36, v16")
            a("global_store_dwordx2 v16, v[150:151], s[16:17]")
            a.label(L('nost'))
        if prof > 3:
            a("s_waitcnt lgkmcnt(0)")
            for k in range(8): a(f"s_sub_u32 s{60+k if k < 6 else 84+k}, s{66+2*k}, s66")
            a("s_mov_b32 s66, s90"); a("s_mov_b32 s67, s91")
        a("s_lshl_b32 s36, s20, 3"); a("s_add_u32 s36, s36, s21"); a("s_lshl_b32 s36, s36, 5"); a(f"s_add_u32 s36, s36, {200<<20}")
        a("v_mov_b32 v16, s36")
        for k in range(8): a(f"v_mov_b32 v{24+k}, s{60+k}")
        a("s_mov_b64 exec, 1")
        a("global_store_dwordx4 v16, v[24:27], s[16:17]"); a("global_store_dwordx4 v16, v[28:31], s[16:17] offset:16")
    a("s_endpgm")
```

```python
from asmgen import *

def acc(tt, ft): return 32 + (tt*8 + ft)*4
def R(p, b, n=4): return f"{p}[{b}:{b+n-1}]"

EXP = set()
SIGNAL = True
def a_dma(pslot, MT, flag=""):
    ops = [[f"s_add_u32 m0, s76, {pslot*32768 + i*1024}", f"global_load_lds_dwordx4 v{28+i}, s[60:61] {flag}"] for i in range(MT)]
    if "noA" in EXP:
        for o in ops: o[1] = "s_nop 0"
    return ops
WFLAG = ""
def w_dma(slot):
    ops = [[f"s_add_u32 m0, s67, {65536 + slot*16384 + i*1024}", f"global_load_lds_dwordx4 v{4+i}, s[62:63] {WFLAG}"] for i in range(2)]
    if "noW" in EXP:
        for o in ops: o[1] = "s_nop 0"
    return ops
def adv(off, inc, mask, cur, base, x):
    ops = [f"s_or_b32 s{off}, s{off}, s{mask}", f"s_add_u32 s{off}, s{off}, s{inc}", f"s_andn2_b32 s{off}, s{off}, s{mask}"]
    if WFRAG or XORK: ops += [f"s_xor_b32 s{cur}, s{off}, s{x}", f"s_add_u32 s{cur}, s{base}, s{cur}"]
    else: ops += [f"s_add_u32 s{cur}, s{base}, s{off}"]
    return ops + [f"s_addc_u32 s{cur+1}, s{base+1}, 0"]
def ADVA(): return adv(84, 64, 86, 60, 80, 78)
def ADVW(): return adv(85, 65, 87, 62, 82, 79)

def a_read(buf, tt, slot, MT=4): return f"ds_read_b128 {R('a', buf*16 + tt*4)}, v{6 + (slot & 1)} offset:{(slot >> 1)*32768 + tt*2048}"
NSING = 6
def wreg(ft, par): return 32 + ft*4 if (ft < NSING or par == 0) else 64 + (ft - NSING)*4
WFRAG = False
XORK = False
def w_reads(ft, slot):
    if WFRAG: return [f"ds_read_b128 {R('a', wreg(ft, slot & 1))}, v27 offset:{slot*16384 + ft*1024}"]
    return [w_read(ft, 0, slot), w_read(ft, 1, slot)]
def w_read(ft, lo, slot): return f"ds_read_b64_tr_b16 {R('a', wreg(ft, slot & 1) + lo*2, 2)}, v{8+ft} offset:{slot*16384 + lo*2048}"

RF = 0.5
TUNE = dict(NS3=0, NS4=1, RF3=0.8, RF4=0.8, PEEL=1, PRIO=0)
EXT = 12
NT = 3
def cwait(a, n, flag, extra, tail=" lgkmcnt(0)"):
    l1, l2 = a.newlabel("cw"), a.newlabel("cw")
    a(f"s_cmp_eq_u32 s{flag}, 0"); a(f"s_cbranch_scc1 {l1}")
    a(f"s_waitcnt vmcnt({n + extra}){tail}"); a(f"s_branch {l2}")
    a.label(l1); a(f"s_waitcnt vmcnt({n}){tail}")
    a.label(l2)

def stage(a, slot, orient, dma, wait, refill, MT=4, aflag="", hook=None, flag=None):
    buf = slot & 1
    if wait is not None:
        if flag: cwait(a, wait, *flag)
        else: a(f"s_waitcnt vmcnt({wait}) lgkmcnt(0)")
        a("s_barrier")
    else:
        a("s_waitcnt lgkmcnt(0)")
    if hook: hook()
    if TUNE.get("SLP") and MT >= 3: a(f"s_sleep {TUNE['SLP']}")
    d = []
    if dma:
        d = (a_dma(slot >> 1, MT, aflag) if slot & 1 else []) + w_dma(slot)
    ns = (slot + 1) & 3
    early = []
    if refill:
        early = [a_read(buf ^ 1, tt, ns, MT) for tt in range(MT)]
        for ft in range(NSING, 8): early += w_reads(ft, ns)
    nm = 8*MT; span = max(1, int(nm*RF)); ne = len(early); done = 0; out = 0
    def rd(x):
        nonlocal out
        if out >= 13:
            a("s_waitcnt lgkmcnt(6)"); out = 6
        a(x); out += 1
    for ft in range(8):
        if MT == 1 and ft < len(d): a(d[ft][0])
        for tt in range(MT):
            D = R('v', acc(tt, ft)); W = R('a', wreg(ft, buf)); X = R('a', buf*16 + tt*4)
            a(f"v_mfma_f32_16x16x32_bf16 {D}, {W}, {X}, {D}" if orient == 'T' else f"v_mfma_f32_16x16x32_bf16 {D}, {X}, {W}, {D}")
            if MT > 1 and tt == 0 and ft < len(d):
                a(d[ft][0])
            if tt == min(1, MT - 1) and ft < len(d):
                a(d[ft][1])
            if tt == 0 and ft == 6 and dma:
                for x in ADVW(): a(x)
            if tt == 0 and ft == 7 and dma and slot & 1:
                for x in ADVA(): a(x)
            want = min(ne, -(-ne*(ft*MT + tt + 1) // span))
            while done < want:
                rd(early[done]); done += 1
        if refill and ft < NSING:
            for x in w_reads(ft, ns): rd(x)
    assert done == ne

def prologue(a, MT, aflag=""):
    a("s_mov_b32 s84, 0"); a("s_mov_b32 s85, 0")
    if WFRAG or XORK:
        a("s_add_u32 s60, s80, s78"); a("s_addc_u32 s61, s81, 0"); a("s_add_u32 s62, s82, s79"); a("s_addc_u32 s63, s83, 0")
    else:
        a("s_mov_b64 s[60:61], s[80:81]"); a("s_mov_b64 s[62:63], s[82:83]")
    a("s_barrier")
    def issue(ops, advs):
        for m, ld in ops:
            a(m); a("s_nop 0"); a(ld)
        for x in advs: a(x)
    issue(a_dma(0, MT, aflag), ADVA()); issue(w_dma(0), ADVW()); issue(w_dma(1), ADVW())
    issue(w_dma(2), ADVW()); issue(a_dma(1, MT, aflag), ADVA()); issue(w_dma(3), ADVW())

def pending_stores(a):
    lab = a.newlabel("ps")
    a("s_cmp_eq_u32 s77, 0"); a(f"s_cbranch_scc1 {lab}")
    epi_frag_store(a, "s[28:29]", "sc1", 3)
    a.label(lab)

def emit_core(a, name, orient, MT=4, aflag=""):
    global NSING, RF
    NSING, RF = (TUNE["NS4"], TUNE["RF4"]) if MT == 4 else (TUNE["NS3"], TUNE["RF3"])
    dummy = "a95" if NSING > 0 else "a31"
    assert NSING > 0 or MT < 4
    plain = not WFRAG
    a.label(name)
    prologue(a, MT, aflag)
    if plain and MT >= 3: pending_stores(a)
    a.label(name + "_m")
    for tt in range(MT):
        for i in range(32): a(f"v_mov_b32 v{acc(tt, 0) + i}, 0")
    f77 = (77, EXT) if plain else None
    f98 = (98, NT) if plain else None
    if plain: cwait(a, 6 + MT, 77, EXT, "")
    else: a(f"s_waitcnt vmcnt({6 + MT})")
    a("s_barrier")
    for tt in range(MT): a(a_read(0, tt, 0, MT))
    for ft in range(8):
        for x in w_reads(ft, 0): a(x)
        if ft == 3: a("s_waitcnt lgkmcnt(4)")
    def signal():
        a("s_mov_b32 s77, 0")
        a("s_cmp_eq_u32 s89, 0"); a(f"s_cbranch_scc1 {name}_ns")
        a("s_mov_b32 s89, 0")
        a("s_cmp_eq_u32 s75, 0"); a(f"s_cbranch_scc0 {name}_ns")
        a("v_mov_b32 v16, s88"); a("v_mov_b32 v17, 0")
        a("s_mov_b64 exec, 1")
        a("global_store_dword v16, v17, s[28:29] sc1")
        a("s_mov_b64 exec, -1")
        a.label(name + "_ns")
    def touch():
        a("s_cmp_eq_u32 s98, 0"); a(f"s_cbranch_scc1 {name}_nt")
        a("v_lshlrev_b32 v20, 6, v0")
        for i in range(NT): a(f"v_min_u32 v{21+i}, s{99+i}, v20")
        for i in range(NT): a(f"global_load_dword {dummy}, v{21+i}, s[{90+2*i}:{91+2*i}]")
        a.label(name + "_nt")
    def vote():
        a("s_mov_b32 s98, 0")
        if MT == 2:
            a("v_mov_b32 v16, 0"); a("global_load_dwordx2 v[18:19], v16, s[26:27] offset:40 sc1")
    def four(first):
        for slot in range(4):
            stage(a, slot, orient, True, 4 if slot & 1 else 4 + MT, True, MT, aflag,
                  hook=(signal if slot == 3 and first else None), flag=(f77 if slot < 3 and first else None))
    if TUNE["PRIO"]:
        a("s_cmp_lt_u32 s75, 4"); a(f"s_cbranch_scc1 {name}_np"); a("s_setprio 1"); a.label(name + "_np")
    def cst(idx):
        if TUNE.get("CST") and XORK:
            a("s_memrealtime s[56:57]"); a("s_waitcnt lgkmcnt(0)"); a(f"v_writelane_b32 v2, s56, {idx}")
    cst(8)
    peel = plain and MT >= 3 and TUNE["PEEL"]
    if peel:
        four(True); a("s_sub_u32 s66, s66, 1")
    if TUNE.get("GAL"):
        a.raw(".p2align 6")
        for _ in range(TUNE["GAL"] - 1): a("s_nop 0")
    a.label(name + "_loop")
    four(plain and MT >= 3 and not peel)
    if TUNE.get("CST") and XORK:
        a("s_mov_b32 s58, m0"); a("s_memrealtime s[56:57]"); a("s_waitcnt lgkmcnt(0)"); a("s_mov_b32 m0, s66"); a("s_nop 0"); a("v_writelane_b32 v2, s56, m0"); a("s_mov_b32 m0, s58")
    a("s_sub_u32 s66, s66, 1"); a("s_cmp_lg_u32 s66, 0"); a(f"s_cbranch_scc1 {name}_loop")
    stage(a, 0, orient, False, 4 + MT, True, MT, hook=(touch if plain else None))
    stage(a, 1, orient, False, 2, True, MT, flag=f98)
    stage(a, 2, orient, False, 0, True, MT, hook=(vote if plain else None), flag=f98)
    stage(a, 3, orient, False, None, False, MT)
    cst(0)
    if TUNE.get("CST") and XORK:
        a("s_lshl_b32 s58, s97, 8"); a(f"s_add_u32 s58, s58, {205 << 20}"); a("v_lshl_add_u32 v3, v0, 2, s58"); a("global_store_dword v3, v2, s[28:29]")
    if TUNE["PRIO"]: a("s_setprio 0")
    a("s_nop 7")
    a("s_setpc_b64 s[68:69]")

def call(a, name):
    lab = a.newlabel("call")
    a("s_getpc_b64 s[70:71]")
    a.label(lab)
    a(f"s_add_u32 s70, s70, {name}-{lab}")
    a("s_addc_u32 s71, s71, 0") if False else a(f"s_addc_u32 s71, s71, ({name}-{lab})>>32")
    a("s_swappc_b64 s[68:69], s[70:71]")

def setup_common(a, MT=4):
    a("s_lshl_b32 s67, s75, 11")
    a("s_and_b32 s72, s75, 3"); a("s_lshr_b32 s73, s75, 2")
    a("v_lshrrev_b32 v16, 4, v0"); a("v_bfe_u32 v17, v0, 2, 2")
    a("v_lshl_add_u32 v18, v16, 3, v17"); a("v_lshlrev_b32 v18, 9, v18")
    a("v_and_b32 v19, 3, v0"); a("v_lshl_add_u32 v18, v19, 3, v18")
    a("s_lshl_b32 s74, s73, 8"); a("s_add_u32 s74, s74, 65536"); a("v_add_u32 v18, s74, v18")
    a("v_and_b32 v16, 1, v16"); a("v_lshl_add_u32 v17, v16, 2, v17"); a("v_lshlrev_b32 v17, 5, v17")
    a("v_add_u32 v8, v18, v17")
    for ft in range(1, 8): a(f"v_xor_b32 v{8+ft}, {ft*32}, v8")

def setup_a_rowmajor(a, lda, MT=4, wrow="s75"):
    a(f"s_mul_i32 s76, s75, {MT*1024}")
    a(f"s_mov_b32 s74, {lda}")
    for i in range(MT):
        a("v_lshrrev_b32 v16, 3, v0"); a(f"s_mul_i32 s64, {wrow}, {MT*8}"); a(f"s_add_u32 s64, s64, {i*8}"); a("v_add_u32 v16, s64, v16")
        a("v_lshrrev_b32 v17, 1, v16"); a("v_xor_b32 v17, v17, v0"); a("v_and_b32 v17, 7, v17")
        a("v_mul_lo_u32 v16, v16, s74"); a(f"v_lshl_add_u32 v{28+i}, v17, 4, v16")
    a("v_and_b32 v16, 15, v0"); a("v_lshrrev_b32 v17, 1, v16"); a("v_lshrrev_b32 v18, 4, v0"); a("v_xor_b32 v17, v17, v18")
    a("v_lshlrev_b32 v16, 7, v16"); a("v_lshl_add_u32 v6, v17, 4, v16")
    a(f"s_mul_i32 s74, s72, {MT*2048}"); a("v_add_u32 v6, s74, v6"); a("v_xor_b32 v7, 64, v6")
    a("s_mov_b32 s64, 128"); a("s_mov_b32 s86, 0")

def setup_w(a, ldw, colmap=None):
    for i in range(2):
        a("v_lshrrev_b32 v16, 5, v0"); a("s_lshl_b32 s74, s75, 2"); a(f"s_add_u32 s74, s74, {2*i}"); a("v_add_u32 v16, s74, v16")
        a("v_and_b32 v17, 3, v16"); a("v_bfe_u32 v18, v16, 3, 1"); a("v_lshl_add_u32 v17, v18, 2, v17"); a("v_lshlrev_b32 v17, 1, v17")
        a("v_and_b32 v18, 31, v0"); a("v_xor_b32 v17, v17, v18")
        if colmap is None: a("v_lshlrev_b32 v17, 4, v17")
        else: colmap(a, 17)
        a(f"s_mov_b32 s74, {ldw}"); a("v_mul_lo_u32 v16, v16, s74"); a(f"v_add_u32 v{4+i}, v16, v17")
    a(f"s_mov_b32 s65, {32*ldw}"); a("s_mov_b32 s87, 0")

def epi_frag_store(a, base, flag, MT=4, step=1024):
    n = 0
    for tt in range(MT):
        for jj in range(4):
            t = (24, 16)[n & 1]; n += 1
            b = acc(tt, 2*jj)
            for i in range(4): a(f"v_cvt_pk_bf16_f32 v{t+i}, v{b+2*i}, v{b+2*i+1}")
            a(f"global_store_dwordx4 v{20+tt}, {R('v', t)}, {base} offset:{jj*step} {flag}")

def setup_a_frag(a, tstride, MT=4):
    a("v_lshlrev_b32 v16, 4, v0")
    if MT == 4:
        a(f"s_mul_i32 s74, s75, {2*tstride}"); a("s_lshl_b32 s76, s75, 12")
        a("v_add_u32 v28, s74, v16"); a("v_add_u32 v29, 1024, v28"); a(f"v_add_u32 v30, {tstride}, v28"); a("v_add_u32 v31, 1024, v30")
    elif MT == 2:
        a(f"s_mul_i32 s74, s75, {tstride}"); a("s_lshl_b32 s76, s75, 11")
        a("v_add_u32 v28, s74, v16"); a("v_add_u32 v29, 1024, v28")
    else:
        assert MT == 1
        a("s_lshr_b32 s74, s75, 1"); a(f"s_mul_i32 s74, s74, {tstride}"); a("s_and_b32 s76, s75, 1"); a("s_lshl_b32 s76, s76, 10"); a("s_add_u32 s74, s74, s76")
        a("v_add_u32 v28, s74, v16"); a("s_lshl_b32 s76, s75, 10")
    a(f"s_mul_i32 s74, s72, {MT*2048}"); a("v_add_u32 v6, s74, v16"); a("v_add_u32 v7, 1024, v6")
    a("s_mov_b32 s64, 2048"); a("s_mov_b32 s86, 0x2000")

def setup_w_frag(a, woff):
    a("v_lshlrev_b32 v16, 4, v0")
    a(f"v_add_u32 v4, {woff}, v16"); a("v_add_u32 v5, 1024, v4")
    a("s_lshl_b32 s74, s73, 13"); a("s_add_u32 s74, s74, 65536"); a("v_add_u32 v27, s74, v16")
    a("s_mov_b32 s65, 2048"); a("s_mov_b32 s87, 0x2000")

def lane_chunk(a, dst, tmp):
    a(f"v_bfe_u32 v{dst}, v0, 4, 1"); a(f"v_lshlrev_b32 v{dst}, 1, v{dst}"); a(f"v_lshrrev_b32 v{tmp}, 5, v0"); a(f"v_add_u32 v{dst}, v{dst}, v{tmp}")

def pack_swap(a, t, b):
    for i in range(4): a(f"v_cvt_pk_bf16_f32 v{t+i}, v{b+2*i}, v{b+2*i+1}")
    a("s_nop 0")
    a(f"v_permlane16_swap_b32 v{t}, v{t+2}"); a(f"v_permlane16_swap_b32 v{t+1}, v{t+3}")

def epi_out_store(a, base, MT=4, flag=""):
    n = 0
    for tt in range(MT):
        for jj in range(4):
            t = 24 + (n & 1)*4; n += 1
            pack_swap(a, t, acc(tt, 2*jj))
            a(f"global_store_dwordx4 v{20+tt}, {R('v', t)}, {base} offset:{jj*64} {flag}")
```

```python
import sys, os
sys.path.insert(0, os.path.dirname(__file__))
from asmgen import *
import gemm
import rec2 as rec
from gemm import acc, R

NAME = "concat_heads__linear_attn_block__memory_aug_recurrent_mem_tr__prompt"
WS_O   = 84 << 20
WS_OA  = 116 << 20
WS_KVP = 124 << 20
OA_T = 65536
WS_INBOX = 142 << 20
D_OVF, D_AKV, D_KV, D_AO, D_O = 32, 36, 64, 96, 128
D_PROG = rec.DBG_PROG
WSPIN = 400000
TSET = "1111000221021012"
def setmask(k): return sum(1 << t for t in range(16) if int(TSET[t]) == k)
LOG2E = 0x3fb8aa3b
EPS = 0x358637bd
SCL = 0x3e0293ee


def load_ptrs(a):
    a("s_load_dwordx16 s[4:19], s[0:1], 0"); a("s_load_dwordx2 s[20:21], s[0:1], 64")
    a("s_load_dwordx4 s[24:27], s[0:1], 80"); a("s_load_dwordx2 s[28:29], s[0:1], 96")

def signal(a, off_sgpr_or_imm, val=1):
    lab = a.newlabel("sig")
    a("s_waitcnt vmcnt(0)"); a("s_barrier")
    a("s_cmp_lg_u32 s75, 0"); a(f"s_cbranch_scc1 {lab}")
    a(f"v_mov_b32 v16, {off_sgpr_or_imm}"); a(f"v_mov_b32 v17, {val}")
    a("s_mov_b64 exec, 1")
    a("global_atomic_add v16, v17, s[26:27] sc1")
    a("s_mov_b64 exec, -1")
    a.label(lab)

def wait_cnt(a, off, target, inv=True):
    lp, ok, done = a.newlabel("wl"), a.newlabel("wo"), a.newlabel("wd")
    a("s_cmp_lg_u32 s75, 0"); a(f"s_cbranch_scc1 {done}")
    a(f"v_mov_b32 v16, {off}")
    a.label(lp)
    a("global_load_dword v17, v16, s[26:27] sc1"); a("s_waitcnt vmcnt(0)")
    a(f"v_cmp_ne_u32 vcc, {target}, v17"); a(f"s_cbranch_vccz {ok}")
    a("s_sleep 8")
    a("s_add_u32 s46, s46, 1"); a(f"s_cmp_lt_u32 s46, {WSPIN}"); a(f"s_cbranch_scc1 {lp}")
    a("s_branch w_fail")
    a.label(ok)
    if inv: a("buffer_inv sc1"); a("s_waitcnt vmcnt(0)")
    a.label(done)
    a("s_barrier")

def learn_parity(a):
    lp, ok = a.newlabel("vl"), a.newlabel("vo")
    a.label(lp)
    a("s_waitcnt vmcnt(0)")
    a("v_readfirstlane_b32 s22, v18"); a("v_readfirstlane_b32 s34, v19")
    a("s_and_b32 s32, s22, 0xffff"); a("s_add_u32 s32, s32, s34"); a("s_cmp_eq_u32 s32, 256"); a(f"s_cbranch_scc1 {ok}")
    a("s_sleep 8")
    a(f"global_load_dwordx2 v[18:19], v16, s[26:27] offset:{rec.DBG_VOTE} sc1")
    a("s_add_u32 s46, s46, 1"); a(f"s_cmp_lt_u32 s46, {WSPIN}"); a(f"s_cbranch_scc1 {lp}")
    a("s_branch w_fail")
    a.label(ok)
    a("s_lshr_b32 s22, s22, 16"); a("s_cmp_gt_u32 s22, 64"); a("s_cselect_b32 s22, 1, 0")

def phi(a, regs):
    for i in range(0, len(regs), 8):
        b = regs[i:i+8]
        for k, r in enumerate(b): a(f"v_mul_f32 v{16+k}, s40, v{r}")
        for k, r in enumerate(b): a(f"v_min_f32 v{16+k}, 0, v{16+k}")
        for k, r in enumerate(b): a(f"v_exp_f32 v{16+k}, v{16+k}")
        for k, r in enumerate(b): a(f"v_max_f32 v{r}, 0, v{r}")
        for k, r in enumerate(b): a(f"v_add_f32 v{r}, v{r}, v{16+k}")
        for k, r in enumerate(b): a(f"v_add_f32 v{r}, s41, v{r}")

def pack_frags(a):
    for tt in range(4):
        for jj in range(4):
            s = acc(tt, 2*jj); d = 32 + (tt*4 + jj)*4
            for i in range(4): a(f"v_cvt_pk_bf16_f32 v{d+i}, v{s+2*i}, v{s+2*i+1}")
def frag(tt, jj): return R('v', 32 + (tt*4 + jj)*4)

PROF = False
def wstamp(a, k):
    if not PROF: return
    lab = a.newlabel("ws")
    a("s_cmp_lg_u32 s75, 0"); a(f"s_cbranch_scc1 {lab}")
    a("s_memrealtime s[56:57]"); a("s_waitcnt lgkmcnt(0)")
    a("s_lshl_b32 s58, s97, 7"); a("s_lshl_b32 s57, s59, 2"); a("s_add_u32 s58, s58, s57"); a(f"s_add_u32 s58, s58, {201 << 20}")
    a("v_mov_b32 v16, s58"); a("v_mov_b32 v17, s56"); a("global_store_dword v16, v17, s[28:29]")
    a("s_memtime s[56:57]"); a("s_waitcnt lgkmcnt(0)"); a("v_mov_b32 v17, s56"); a("v_add_u32 v16, 0x100000, v16"); a("global_store_dword v16, v17, s[28:29]")
    a("s_add_u32 s59, s59, 1")
    a.label(lab)

def tstamp(a, ev, v0=126, v1=127):
    if not PROF: return
    a("s_memrealtime s[56:57]"); a("s_waitcnt lgkmcnt(0)")
    a("s_lshl_b32 s58, s96, 2"); a(f"s_add_u32 s58, s58, {(204 << 20) + ev*8192}")
    a(f"v_mov_b32 v{v0}, s58"); a(f"v_mov_b32 v{v1}, s56"); a(f"global_store_dword v{v0}, v{v1}, s[28:29]")

def wside(a, dst, off, tmp):
    rec.near(a, dst, off, "s22", 28, tmp, kv=True)

def task_g1(a, MT, grp):
    if grp: gemm.setup_a_rowmajor(a, 2048, MT); gemm.setup_w(a, 8192)
    a("s_lshl_b32 s32, s31, 15"); a("s_add_u32 s80, s10, s32"); a("s_addc_u32 s81, s11, 0")
    a("s_cmp_lt_u32 s30, 16"); a("s_cselect_b32 s82, s16, s18"); a("s_cselect_b32 s83, s17, s19")
    a(f"s_cselect_b32 s33, {rec.WS_KX >> 20}, {rec.WS_VX >> 20}"); a("s_lshl_b32 s33, s33, 20")
    a("s_and_b32 s35, s30, 15"); a("s_lshl_b32 s32, s35, 9"); a("s_add_u32 s82, s82, s32"); a("s_addc_u32 s83, s83, 0")
    a("s_mov_b32 s66, 7")
    if grp == 0 and rec.PAR["WPF"]:
        a("s_mov_b32 s78, 0"); a("s_mov_b32 s79, 0")
        a("s_cmp_lt_u32 s44, 2"); a("s_cbranch_scc1 no_wpf")
        if rec.PAR["HALF"]: a("s_mov_b32 s78, 1024"); a(f"s_mov_b32 s79, {4 << 20}")
        a("s_and_b32 s34, s44, 1"); a("s_lshl_b32 s34, s34, 3"); a("s_add_u32 s34, s34, s75")
        if rec.PAR["EPF"] == 3:
            a("v_lshrrev_b32 v16, 2, v0"); a("s_lshl_b32 s32, s34, 4"); a("s_add_u32 s32, s32, 192"); a("v_add_u32 v16, s32, v16"); a("v_and_b32 v17, 3, v0"); a("v_lshlrev_b32 v17, 7, v17")
            a("s_and_b32 s32, s45, 7"); a("s_lshl_b32 s32, s32, 4"); a("s_add_u32 s32, s32, s34")
            for i in range(4):
                a("v_min_u32 v18, 1023, v16"); a("v_lshl_add_u32 v18, v18, 13, v17")
                a("global_load_dword a95, v18, s[82:83]")
                a("v_add_u32 v16, 256, v16")
                if i == 0:
                    a("v_bfe_u32 v18, v0, 3, 1"); a("v_lshlrev_b32 v18, 11, v18"); a("v_and_b32 v19, 7, v0"); a("v_lshl_add_u32 v18, v19, 7, v18")
                    a("s_lshl_b32 s36, s32, 12"); a("s_add_u32 s36, s36, 1024"); a("v_add_u32 v18, s36, v18")
                    a("global_load_dword a95, v18, s[10:11]")
                if i < 3: a("s_barrier")
            a("s_lshl_b32 s36, s32, 12"); a(f"s_add_u32 s36, s36, {512*1024}"); a("v_and_b32 v18, 31, v0"); a("v_lshl_add_u32 v18, v18, 7, s36")
            a("global_load_dword a95, v18, s[10:11]")
        else:
            nx = rec.PAR["WPF"]
            a("s_and_b32 s32, s45, 7"); a("s_lshl_b32 s32, s32, 4"); a("s_add_u32 s32, s32, s34"); a(f"s_lshl_b32 s32, s32, {11 + nx}")
            a(f"v_and_b32 v16, {32*nx - 1}, v0"); a("v_lshl_add_u32 v16, v16, 7, s32")
            if not rec.PAR["EPF"]: a("global_load_dword a95, v16, s[10:11]")
            a("v_lshrrev_b32 v16, 2, v0"); a("v_lshlrev_b32 v16, 13, v16"); a("v_and_b32 v17, 3, v0"); a("v_lshl_add_u32 v16, v17, 7, v16")
            a("s_lshl_b32 s32, s34, 17"); a("v_add_u32 v16, s32, v16")
            for i in range(4):
                if i or not rec.PAR["EPF"]:
                    a("global_load_dword a95, v16, s[82:83]")
                    if i < 3: a("s_barrier")
                a(f"v_add_u32 v16, {256*8192}, v16")
        a.label("no_wpf")
    def first_signal(n):
        lab = a.newlabel("sig")
        a(f"s_waitcnt vmcnt({n})"); a("s_barrier")
        a("s_cmp_lg_u32 s75, 0"); a(f"s_cbranch_scc1 {lab}")
        a("v_mov_b32 v16, s88"); a("v_mov_b32 v17, 0")
        a("s_mov_b64 exec, 1"); a("global_store_dword v16, v17, s[28:29] sc1"); a("s_mov_b64 exec, -1")
        a.label(lab)
        wstamp(a, 0)
    ST = rec.PAR["ST"]
    if grp == 1:
        if ST == 0:
            gemm.prologue(a, MT); first_signal(8 + 2*MT)
        else:
            first_signal(0)
            if ST == 1 and not rec.PAR["RPF"]:
                a("s_mul_i32 s32, s96, 3072"); a(f"s_add_u32 s32, s32, {1 << 20}"); a("v_lshlrev_b32 v20, 6, v0"); a("v_min_u32 v20, 3008, v20"); a("v_add_u32 v20, s32, v20")
                a("global_load_dword a95, v20, s[10:11]")
    gemm.call(a, f"core_T{MT}" + ("_m" if grp == 1 and ST == 0 else ""))
    if grp == 0: learn_parity(a)
    wstamp(a, 0)
    a("s_lshl_b32 s34, s35, 1"); a("s_add_u32 s34, s34, s73"); a("s_lshl_b32 s34, s34, 14"); a("s_add_u32 s33, s33, s34")
    a(f"s_mul_i32 s36, s72, {MT}"); a("s_add_u32 s36, s36, s31")
    a("v_lshlrev_b32 v19, 4, v0")
    for tt in range(MT):
        a(f"s_add_u32 s32, s36, {tt}"); a("s_and_b32 s34, s32, 1"); a("s_lshl_b32 s34, s34, 12"); a("s_lshr_b32 s32, s32, 1"); a("s_lshl_b32 s32, s32, 19")
        a("s_add_u32 s32, s32, s34"); a("s_add_u32 s32, s32, s33")
        rec.near_bit(a, "s34", "s32", "s22", True); a("s_add_u32 s32, s32, s34")
        a(f"v_add_u32 v{20+tt}, s32, v19")
    a("s_lshl_b32 s88, s23, 7"); a("s_lshl_b32 s32, s30, 2"); a("s_add_u32 s88, s88, s32"); a(f"s_add_u32 s88, s88, {rec.WS_FLAG + (96 + 4*grp)*128}")
    if grp == 0: gemm.epi_frag_store(a, "s[28:29]", "sc1", MT)
    else:
        a("s_mov_b32 s89, 1"); a("s_mov_b32 s77, 1")

def touches(a, parts):
    for i, (p, fix, per, first, n) in enumerate(parts):
        a(f"s_mul_i32 s32, s96, {per*1024}"); a(f"s_add_u32 s32, s32, {fix + first*1024}")
        a(f"s_add_u32 s{90+2*i}, s{p}, s32"); a(f"s_addc_u32 s{91+2*i}, s{p+1}, 0"); a(f"s_mov_b32 s{99+i}, {n*1024 - 64}")
    a("s_mov_b32 s98, 0" if "notouch" in rec.OPT else "s_mov_b32 s98, 1")

def task_g4kv(a):
    def colmap(a, v):
        a(f"v_bfe_u32 v18, v{v}, 3, 1"); a("v_lshlrev_b32 v18, 11, v18")
        a(f"v_lshrrev_b32 v19, 4, v{v}"); a("v_lshl_add_u32 v18, v19, 7, v18")
        a(f"v_and_b32 v{v}, 7, v{v}"); a(f"v_lshl_add_u32 v{v}, v{v}, 4, v18")
    gemm.setup_a_rowmajor(a, 2048); gemm.setup_w(a, 6144, colmap)
    a("s_lshl_b32 s32, s31, 19"); a("s_add_u32 s80, s4, s32"); a("s_addc_u32 s81, s5, 0")
    a("s_lshl_b32 s32, s30, 8"); a("s_add_u32 s32, s32, 2048"); a("s_add_u32 s82, s6, s32"); a("s_addc_u32 s83, s7, 0")
    a("s_mov_b32 s66, 7")
    gemm.call(a, "core_N")
    wstamp(a, 0)
    a(f"s_mov_b32 s40, {LOG2E}"); a(f"s_mov_b32 s41, {EPS}")
    phi(a, [acc(tt, 0) + i for tt in range(4) for i in range(16)])
    for tp in range(2):
        for ft in range(8):
            x = acc(2*tp, ft); y = acc(2*tp+1, ft)
            a(f"v_cvt_pk_bf16_f32 v{x}, v{x}, v{x+1}"); a(f"v_cvt_pk_bf16_f32 v{x+1}, v{x+2}, v{x+3}")
            a(f"v_cvt_pk_bf16_f32 v{x+2}, v{y}, v{y+1}"); a(f"v_cvt_pk_bf16_f32 v{x+3}, v{y+2}, v{y+3}")
    for i in range(4): a(f"v_mov_b32 v{16+i}, 0x3f803f80")
    a("v_lshlrev_b32 v20, 4, v0"); a("s_mul_i32 s32, s73, 49152"); a("s_lshl_b32 s33, s72, 10"); a("s_add_u32 s32, s32, s33"); a("v_add_u32 v21, s32, v20")
    outb = lambda hd, et, dt: (64 if hd == 0 else 128) + (et*2 + dt)*4
    for tp in range(2):
        for hd in range(2):
            for et in range(3):
                for dt in range(2):
                    D = R('v', outb(hd, et, dt)); A = R('v', acc(2*tp, 2*hd + dt)); B = R('v', acc(2*tp, 4 + 2*hd + et)) if et < 2 else "v[16:19]"
                    a(f"v_mfma_f32_16x16x32_bf16 {D}, {A}, {B}, " + ("0" if tp == 0 else D))
    a("s_barrier")
    a("s_nop 7")
    for hd in range(2):
        for f in range(6):
            a(f"ds_write_b128 v21, {R('v', outb(hd, f >> 1, f & 1))} offset:{(hd*6 + f)*4096}")
    a("s_mul_i32 s32, s75, 12288"); a("v_add_u32 v21, s32, v20")
    a("s_waitcnt lgkmcnt(0)"); a("s_barrier")
    for k in range(3):
        for m in range(4): a(f"ds_read_b128 {R('v', 32 + (k*4 + m)*4)}, v21 offset:{k*4096 + m*1024}")
    a("s_lshl_b32 s32, s31, 5"); a("s_lshl_b32 s33, s30, 2"); a("s_add_u32 s32, s32, s33"); a("s_mul_i32 s32, s32, 6144")
    a("s_mul_i32 s33, s75, 3072"); a("s_add_u32 s32, s32, s33"); a(f"s_add_u32 s32, s32, {WS_KVP}"); a("v_add_u32 v22, s32, v20")
    a("s_waitcnt lgkmcnt(0)")
    for k in range(3):
        b = 32 + k*16
        for h in range(2):
            a(f"v_pk_add_f32 v[{b+2*h}:{b+2*h+1}], v[{b+2*h}:{b+2*h+1}], v[{b+4+2*h}:{b+5+2*h}]")
            a(f"v_pk_add_f32 v[{b+8+2*h}:{b+9+2*h}], v[{b+8+2*h}:{b+9+2*h}], v[{b+12+2*h}:{b+13+2*h}]")
        for h in range(2):
            a(f"v_pk_add_f32 v[{b+2*h}:{b+2*h+1}], v[{b+2*h}:{b+2*h+1}], v[{b+8+2*h}:{b+9+2*h}]")
        a(f"global_store_dwordx4 v22, {R('v', b)}, s[28:29] offset:{k*1024} sc1")
    signal(a, D_AKV)

def task_g4q(a):
    gemm.setup_a_rowmajor(a, 2048); gemm.setup_w(a, 6144)
    a("s_lshl_b32 s32, s31, 19"); a("s_add_u32 s80, s4, s32"); a("s_addc_u32 s81, s5, 0")
    a("s_lshl_b32 s32, s30, 9"); a("s_add_u32 s82, s6, s32"); a("s_addc_u32 s83, s7, 0")
    a("s_mov_b32 s66, 7")
    gemm.call(a, "core_T")
    wstamp(a, 0)
    a(f"s_mov_b32 s40, {LOG2E}"); a(f"s_mov_b32 s41, {EPS}")
    phi(a, list(range(32, 160)))
    pack_frags(a)
    wstamp(a, 0)
    wait_cnt(a, D_AKV, 64, False)
    wstamp(a, 0)
    a("v_lshlrev_b32 v16, 4, v0")
    for r in range(1, 8): a(f"v_add_u32 v{16+r}, {r*196608}, v16")
    a("s_lshl_b32 s32, s30, 3"); a("s_add_u32 s32, s32, s75"); a("s_mul_i32 s32, s32, 6144"); a(f"s_add_u32 s32, s32, {WS_KVP}")
    a("s_add_u32 s34, s28, s32"); a("s_addc_u32 s35, s29, 0")
    a("s_mul_i32 s32, s75, 3072"); a("v_add_u32 v24, s32, v16")
    for et in range(3):
        for r in range(8):
            for dt in range(2):
                a(f"global_load_dwordx4 {R('v', 96 + (r*2 + dt)*4)}, v{16+r}, s[34:35] offset:{dt*1024} sc1")
        a("s_add_u32 s34, s34, 2048"); a("s_addc_u32 s35, s35, 0")
        a("s_waitcnt vmcnt(0)")
        for step in (32, 16, 8):
            for i in range(0, step, 2):
                a(f"v_pk_add_f32 v[{96+i}:{97+i}], v[{96+i}:{97+i}], v[{96+step+i}:{97+step+i}]")
        for i in range(4): a(f"v_cvt_pk_bf16_f32 v{28+i}, v{96+2*i}, v{97+2*i}")
        a(f"ds_write_b128 v24, v[28:31] offset:{et*1024}")
    a("s_mul_i32 s32, s73, 12288"); a("v_add_u32 v24, s32, v16")
    a("s_waitcnt lgkmcnt(0)"); a("s_barrier")
    for i in range(12): a(f"ds_read_b128 {R('a', i*4)}, v24 offset:{i*1024}")
    gemm.lane_chunk(a, 25, 26)
    a("v_and_b32 v26, 15, v0"); a("v_lshl_add_u32 v25, v25, 4, v26"); a("v_lshlrev_b32 v25, 4, v25")
    a("s_lshl_b32 s32, s31, 4"); a("s_lshl_b32 s33, s72, 2"); a("s_add_u32 s32, s32, s33"); a(f"s_mul_i32 s32, s32, {OA_T}")
    a("s_lshl_b32 s33, s30, 14"); a("s_add_u32 s32, s32, s33"); a("s_lshl_b32 s33, s73, 12"); a("s_add_u32 s32, s32, s33"); a(f"s_add_u32 s32, s32, {WS_OA}")
    rec.near_bit(a, "s33", "s32", "s22", True); a("s_add_u32 s32, s32, s33")
    a("v_add_u32 v20, s32, v25")
    for tt in range(1, 4): a(f"v_add_u32 v{20+tt}, {tt*OA_T}, v20")
    a("s_waitcnt lgkmcnt(0)")
    for hd in range(4):
        for tt in range(4):
            b = 96 + tt*12
            for et in (2, 0, 1):
                a(f"v_mfma_f32_16x16x32_bf16 {R('v', b + et*4)}, {R('a', (hd*3 + et)*4)}, {frag(tt, hd)}, 0")
        a("s_nop 7")
        for tt in range(4):
            b = 96 + tt*12
            a(f"v_add_f32 v{b+8}, s41, v{b+8}")
        for tt in range(4):
            b = 96 + tt*12
            a(f"v_rcp_f32 v{b+8}, v{b+8}")
        for tt in range(4):
            b = 96 + tt*12
            a(f"v_mov_b32 v{b+9}, v{b+8}")
            for i in range(0, 8, 2): a(f"v_pk_mul_f32 v[{b+i}:{b+i+1}], v[{b+i}:{b+i+1}], v[{b+8}:{b+9}]")
            t = 144 + tt*4
            gemm.pack_swap(a, t, b)
            a(f"global_store_dwordx4 v{20+tt}, {R('v', t)}, s[28:29] offset:{hd*1024} sc1")
    a("s_lshl_b32 s32, s31, 2"); a(f"s_add_u32 s32, s32, {D_AO}")
    signal(a, "s32")

def out_offsets(a, MT):
    gemm.lane_chunk(a, 25, 26)
    a("v_and_b32 v26, 15, v0"); a("v_lshlrev_b32 v26, 12, v26"); a("v_lshl_add_u32 v20, v25, 4, v26")
    a(f"s_mul_i32 s32, s72, {MT*16*4096}"); a("s_lshl_b32 s33, s73, 8"); a("s_add_u32 s32, s32, s33"); a("v_add_u32 v20, s32, v20")
    for tt in range(1, MT): a(f"v_add_u32 v{20+tt}, {tt*65536}, v20")

def task_g5(a):
    gemm.setup_a_frag(a, OA_T); gemm.setup_w(a, 2048)
    a("s_lshl_b32 s32, s31, 2"); a(f"s_add_u32 s32, s32, {D_AO}")
    wait_cnt(a, "s32", 4)
    wstamp(a, 0)
    a(f"s_mul_i32 s32, s31, {16*OA_T}"); a(f"s_add_u32 s32, s32, {WS_OA}"); wside(a, 80, "s32", "s33")
    a("s_lshl_b32 s32, s30, 9"); a("s_add_u32 s82, s8, s32"); a("s_addc_u32 s83, s9, 0")
    a("s_mov_b32 s66, 7")
    gemm.call(a, "core_T")
    wstamp(a, 0)
    out_offsets(a, 4)
    a("s_lshl_b32 s32, s31, 20"); a("s_lshl_b32 s33, s30, 9"); a("s_add_u32 s32, s32, s33"); a("s_add_u32 s34, s24, s32"); a("s_addc_u32 s35, s25, 0")
    gemm.epi_out_store(a, "s[34:35]", 4, "" if "outpl" in rec.OPT else "sc1")

def task_wot(a):
    a("s_barrier")
    a("v_lshrrev_b32 v2, 4, v0"); a("v_lshlrev_b32 v2, 11, v2"); a("v_and_b32 v3, 15, v0"); a("v_lshl_add_u32 v2, v3, 4, v2")
    a("s_lshl_b32 s32, s30, 18"); a("s_lshl_b32 s33, s31, 17"); a("s_add_u32 s32, s32, s33"); a("s_lshl_b32 s33, s75, 8"); a("s_add_u32 s32, s32, s33"); a("v_add_u32 v2, s32, v2")
    a("s_lshl_b32 s43, s75, 14")
    for i in range(16):
        a(f"s_add_u32 m0, s43, {i*1024}"); a("s_nop 0")
        a("global_load_lds_dwordx4 v2, s[20:21]")
        a("v_add_u32 v2, 0x2000, v2")
    gemm.pending_stores(a)
    a("s_mov_b32 s77, 0")
    a("v_lshrrev_b32 v3, 2, v0"); a("v_lshlrev_b32 v3, 8, v3"); a("v_and_b32 v16, 3, v0"); a("v_lshl_add_u32 v3, v16, 4, v3"); a("v_add_u32 v3, s43, v3")
    a("s_lshl_b32 s32, s75, 21"); a("s_lshl_b32 s33, s30, 14"); a("s_add_u32 s32, s32, s33"); a("s_lshl_b32 s33, s31, 12"); a("s_add_u32 s32, s32, s33"); a(f"s_add_u32 s32, s32, {rec.WS_WOT}")
    wside(a, 34, "s32", "s33")
    a("v_lshlrev_b32 v20, 4, v0")
    for i in range(1, 4): a(f"v_add_u32 v{20+i}, {i*rec.WOT_CG}, v20")
    a("s_waitcnt vmcnt(0)")
    for cgl in range(4):
        for jl in range(2):
            for ct in range(2):
                b = 32 + ((cgl*2 + jl)*2 + ct)*4
                for lo in range(2):
                    a(f"ds_read_b64_tr_b16 {R('v', b + 2*lo, 2)}, v3 offset:{(32*jl + 16*lo)*256 + cgl*64 + ct*8}")
        a("s_waitcnt lgkmcnt(0)")
        for jl in range(2):
            for ct in range(2):
                a(f"global_store_dwordx4 v{20+cgl}, {R('v', 32 + ((cgl*2 + jl)*2 + ct)*4)}, s[34:35] offset:{jl*2048 + ct*1024} sc1")
    a("s_lshl_b32 s32, s30, 1"); a("s_add_u32 s32, s32, s31"); a("s_lshl_b32 s32, s32, 16"); a("s_lshr_b32 s33, s75, 1"); a("s_lshl_b32 s33, s33, 14"); a("s_add_u32 s32, s32, s33")
    a("s_and_b32 s33, s75, 1"); a("s_lshl_b32 s33, s33, 12"); a("s_add_u32 s32, s32, s33"); a(f"s_add_u32 s32, s32, {WS_INBOX}")
    wside(a, 34, "s32", "s33")
    for i in range(4): a(f"v_mov_b32 v{24+i}, -1")
    for i in range(4): a(f"global_store_dwordx4 v20, v[24:27], s[34:35] offset:{i*1024} sc1")
    lab = a.newlabel("sig")
    a("s_waitcnt vmcnt(0)"); a("s_barrier")
    a("s_cmp_lg_u32 s75, 0"); a(f"s_cbranch_scc1 {lab}")
    a("s_lshl_b32 s32, s31, 7"); a("s_lshl_b32 s33, s30, 2"); a("s_add_u32 s32, s32, s33"); a(f"s_add_u32 s32, s32, {rec.WS_FLAG + 108*128}")
    a("v_mov_b32 v16, s32"); a("v_mov_b32 v17, 0")
    a("s_mov_b64 exec, 1"); a("global_store_dword v16, v17, s[28:29] sc1"); a("s_mov_b64 exec, -1")
    a.label(lab)

def task_g3(a, MT):
    sh = MT - 1
    a("s_lshl_b32 s32, s30, 3"); a("s_add_u32 s32, s32, s75"); a("s_lshl_b32 s32, s32, 19"); a(f"s_add_u32 s32, s32, {rec.WS_WOT}")
    rec.near_bit(a, "s33", "s32", "s22", True); a("s_add_u32 s32, s32, s33")
    gemm.setup_a_frag(a, 262144, MT); gemm.setup_w_frag(a, "s32")
    wot_wait(a)
    lp, ok = a.newlabel("fl"), a.newlabel("fo")
    a("s_cmp_lg_u32 s75, 0"); a(f"s_cbranch_scc1 {ok}")
    a(f"s_lshl_b32 s32, s31, {8 + sh}"); a(f"s_add_u32 s32, s32, {rec.WS_FLAG}"); a("v_lshl_add_u32 v16, v0, 2, s32")
    a.label(lp)
    a("global_load_dword v17, v16, s[28:29] sc1"); a(f"global_load_dword v19, v16, s[28:29] offset:{256*sh} sc1"); a("s_waitcnt vmcnt(0)")
    a("v_or_b32 v17, v17, v19")
    a("v_cmp_ne_u32 vcc, 0, v17"); a(f"s_cbranch_vccz {ok}")
    a("s_sleep 8")
    a("s_add_u32 s46, s46, 1"); a(f"s_cmp_lt_u32 s46, {WSPIN}"); a(f"s_cbranch_scc1 {lp}")
    a("s_branch w_fail")
    a.label(ok)
    wstamp(a, 0)
    a(f"s_lshl_b32 s32, s31, {20 + sh}"); a(f"s_add_u32 s32, s32, {WS_O}"); wside(a, 80, "s32", "s33")
    a("s_mov_b64 s[82:83], s[28:29]")
    a("s_mov_b32 s66, 31")
    a("s_add_u32 s32, s31, s30"); a("s_and_b32 s78, s32, 3"); a("s_lshl_b32 s78, s78, 11"); a("s_and_b32 s33, s32, 4"); a("s_lshl_b32 s33, s33, 12"); a("s_or_b32 s78, s78, s33")
    a("s_and_b32 s79, s32, 1"); a("s_lshl_b32 s79, s79, 12"); a("s_and_b32 s33, s32, 6"); a("s_lshl_b32 s33, s33, 13"); a("s_or_b32 s79, s79, s33")
    gemm.call(a, f"core_F{MT}")
    a("v_and_b32 v26, 15, v0"); a("v_lshlrev_b32 v26, 12, v26"); a("v_lshrrev_b32 v25, 4, v0"); a("v_lshl_add_u32 v20, v25, 4, v26")
    a(f"s_lshl_b32 s32, s72, {16 + sh}"); a("s_lshl_b32 s33, s73, 8"); a("s_add_u32 s32, s32, s33"); a("v_add_u32 v20, s32, v20"); a("v_add_u32 v21, 0x10000, v20")
    a(f"s_lshl_b32 s32, s31, {18 + sh}"); a("s_lshl_b32 s33, s30, 9"); a("s_add_u32 s32, s32, s33"); a("s_add_u32 s32, s32, 2048"); a("s_add_u32 s34, s24, s32"); a("s_addc_u32 s35, s25, 0")
    gemm.epi_frag_store(a, "s[34:35]", "sc1", MT, 64)

def softmax_cols(a, regs, t):
    a(f"v_max3_f32 v{t}, v{regs[0]}, v{regs[1]}, v{regs[2]}")
    rest = regs[3:]
    while len(rest) >= 2:
        a(f"v_max3_f32 v{t}, v{t}, v{rest[0]}, v{rest[1]}"); rest = rest[2:]
    if rest: a(f"v_max_f32 v{t}, v{t}, v{rest[0]}")
    for sw in ("16", "32"):
        a(f"v_mov_b32 v{t+1}, v{t}"); a("s_nop 1"); a(f"v_permlane{sw}_swap_b32 v{t}, v{t+1}"); a(f"v_max_f32 v{t}, v{t}, v{t+1}")
    a(f"v_mul_f32 v{t}, s40, v{t}")
    for r in regs: a(f"v_fma_f32 v{r}, v{r}, s40, -v{t}")
    for r in regs: a(f"v_exp_f32 v{r}, v{r}")

def task_g2a(a):
    a("s_and_b32 s32, s75, 4"); a("s_and_b32 s33, s75, 1"); a("s_lshl_b32 s33, s33, 1"); a("s_or_b32 s32, s32, s33"); a("s_bfe_u32 s33, s75, 0x10001"); a("s_or_b32 s32, s32, s33")
    gemm.setup_a_rowmajor(a, 2048, 4, "s32"); gemm.setup_w(a, 8192)
    a("s_lshl_b32 s32, s31, 19"); a("s_add_u32 s80, s10, s32"); a("s_addc_u32 s81, s11, 0")
    a("s_lshl_b32 s32, s30, 9"); a("s_add_u32 s82, s14, s32"); a("s_addc_u32 s83, s15, 0")
    a("s_mov_b32 s66, 7")
    gemm.call(a, "core_T")
    wstamp(a, 0)
    a("s_lshl_b32 s38, s31, 3"); a("s_and_b32 s33, s72, 2"); a("s_add_u32 s38, s38, s33"); a("s_add_u32 s38, s38, s72"); a("s_mov_b32 s39, s38"); a("s_lshl_b32 s38, s38, 5")
    a("s_lshl_b32 s42, s30, 1"); a("s_add_u32 s42, s42, s73"); a("s_add_u32 s38, s38, s42")
    a("s_lshl_b32 s34, s38, 14"); a(f"s_add_u32 s34, s34, {rec.WS_KX}"); rec.near(a, 32, "s34", "s22", 28, "s35", kv=True)
    rec.v_from_k(a, 34, 32)
    a("v_lshlrev_b32 v16, 4, v0"); a("v_add_u32 v17, 0x1000, v16"); a("v_add_u32 v18, 0x100000, v16"); a("v_add_u32 v19, 0x101000, v16")
    a("s_mul_i32 s43, s75, 20480")
    kp, kok = a.newlabel("kp"), a.newlabel("ko")
    rec.kv_tile(a, "s47", "s39", "s48"); a("s_add_u32 s49, s39, 2"); rec.kv_tile(a, "s49", "s49", "s48"); a("s_sub_u32 s49, s49, s47")
    a("s_lshl_b32 s47, s47, 7"); a("s_lshl_b32 s48, s30, 2"); a("s_add_u32 s47, s47, s48"); a(f"s_add_u32 s47, s47, {rec.WS_FLAG + 96*128}")
    a("v_and_b32 v22, s49, v0"); a("v_lshl_add_u32 v22, v22, 7, s47"); a("v_mov_b32 v23, 0")
    a.label(kp)
    a("global_load_dword v26, v22, s[28:29] sc1"); a("global_load_dword v27, v22, s[28:29] offset:64 sc1")
    a(f"global_load_dword v24, v23, s[26:27] offset:{D_PROG} sc1"); a("s_waitcnt vmcnt(0)")
    a("v_or_b32 v26, v26, v27"); a("v_cmp_ne_u32 vcc, 0, v26"); a(f"s_cbranch_vccz {kok}")
    a("s_sleep 12")
    a("s_add_u32 s46, s46, 1"); a(f"s_cmp_lt_u32 s46, {WSPIN}"); a(f"s_cbranch_scc1 {kp}")
    a("s_branch w_fail")
    a.label(kok)
    def take_progress():
        a("v_readfirstlane_b32 s48, v24"); a("s_nop 0")
        a("s_max_u32 s48, s48, 1"); a("s_sub_u32 s48, s48, 1")
    take_progress()
    a("s_barrier")
    def m_wait(seg):
        lp, ok, nf = a.newlabel("ap"), a.newlabel("ao"), a.newlabel("nf")
        a.label(lp)
        a(f"s_cmp_lt_u32 {seg}, s48"); a(f"s_cbranch_scc1 {ok}")
        a("s_cmp_lt_u32 s48, 59"); a(f"s_cbranch_scc1 {nf}")
        a("s_sleep 2")
        a("global_load_dword v24, v31, s[28:29] sc1"); a("s_waitcnt vmcnt(0)")
        a("v_readlane_b32 s49, v24, 0"); a("v_readlane_b32 s50, v24, 1"); a("s_min_i32 s49, s49, s50")
        a("v_readlane_b32 s50, v24, 2"); a("s_min_i32 s49, s49, s50"); a("v_readlane_b32 s50, v24, 3"); a("s_min_i32 s49, s49, s50")
        a("s_add_u32 s49, s49, 1"); a("s_max_u32 s48, s48, s49")
        a("s_add_u32 s46, s46, 1"); a(f"s_cmp_lt_u32 s46, {WSPIN}"); a(f"s_cbranch_scc1 {lp}")
        a("s_branch w_fail")
        a.label(nf)
        a("s_sleep 8")
        a(f"global_load_dword v24, v23, s[26:27] offset:{D_PROG} sc1"); a("s_waitcnt vmcnt(0)")
        take_progress()
        a("s_add_u32 s46, s46, 1"); a(f"s_cmp_lt_u32 s46, {WSPIN}"); a(f"s_cbranch_scc1 {lp}")
        a("s_branch w_fail")
        a.label(ok)
    def kv_loads(sg):
        for kt in range(2):
            for jj in range(4):
                a(f"global_load_dwordx4 {R('a', sg*32 + (kt*4 + jj)*4)}, v{16 + sg*2 + kt}, s[32:33] offset:{jj*1024} sc1")
            a(f"s_add_u32 m0, s43, {sg*10240 + kt*4096}"); a("s_nop 0")
            for jj in range(4):
                a(f"global_load_lds_dwordx4 v{16 + sg*2 + kt}, s[34:35] offset:{jj*1024} sc1")
    a("s_and_b32 s47, s42, 15"); a("s_lshl_b32 s47, s47, 9"); a("s_lshr_b32 s49, s42, 4"); a("s_lshl_b32 s49, s49, 14"); a("s_add_u32 s47, s47, s49")
    a("s_xor_b32 s49, s22, 1"); a("s_lshl_b32 s49, s49, 13"); a("s_add_u32 s47, s47, s49"); a(f"s_add_u32 s47, s47, {rec.WS_HW}")
    a("v_and_b32 v31, 3, v0"); a("v_lshl_add_u32 v31, v31, 7, s47")
    a("s_max_u32 s54, s39, 5"); a("s_sub_u32 s54, s54, 5")
    m_wait("s54")
    kv_loads(0)
    pack_frags(a)
    a("s_lshr_b32 s50, s38, 1"); a("s_lshl_b32 s50, s50, 14"); a("s_and_b32 s51, s38, 1"); a("s_lshl_b32 s51, s51, 12"); a("s_add_u32 s50, s50, s51"); a(f"s_add_u32 s50, s50, {rec.WS_KMVM}")
    rec.near(a, 52, "s50", "s22", 28, "s51")
    a("v_and_b32 v28, 7, v0"); a("v_lshlrev_b32 v28, 4, v28"); a("v_lshrrev_b32 v24, 4, v0"); a("v_lshl_add_u32 v28, v24, 7, v28")
    XB = (108, 32)
    def m_loads(sg):
        for jj in range(4): a(f"global_load_dwordx4 {R('v', XB[sg] + 4*jj)}, v28, s[52:53] offset:{jj*512} sc1")
        for i in range(2): a(f"global_load_dwordx4 {R('v', XB[sg] + 16 + 4*i)}, v16, s[52:53] offset:{2048 + i*1024} sc1")
        a("s_add_u32 s52, s52, 0x80000"); a("s_addc_u32 s53, s53, 0")
    def seg_signal(seg):
        a(f"s_lshl_b32 s47, {seg}, 7"); a("s_lshl_b32 s49, s42, 2"); a("s_add_u32 s47, s47, s49"); a(f"s_add_u32 s47, s47, {rec.WS_FLAG}")
        a(f"s_lshr_b32 s50, {seg}, 1"); a("s_lshl_b32 s50, s50, 14"); a(f"s_and_b32 s49, {seg}, 1"); a("s_lshl_b32 s49, s49, 12"); a("s_add_u32 s50, s50, s49")
        a("s_lshl_b32 s49, s42, 7"); a("s_add_u32 s50, s50, s49"); a("s_xor_b32 s49, s22, 1"); a("s_lshl_b32 s49, s49, 13"); a("s_add_u32 s50, s50, s49")
        a(f"s_add_u32 s50, s50, {rec.WS_FLAG2 - 24*16384}")
        a(f"s_cmp_ge_u32 {seg}, 48"); a("s_cselect_b32 s47, s50, s47"); a("v_mov_b32 v29, s47")
        a("s_waitcnt vmcnt(0)")
        a("s_mov_b64 exec, 1")
        a("global_store_dword v29, v23, s[28:29] sc1")
        a("s_mov_b64 exec, -1")
    early, late = a.newlabel("e0"), a.newlabel("l0")
    a("s_cmp_lt_u32 s39, s48"); a(f"s_cbranch_scc1 {early}")
    kv_loads(1); m_wait("s39"); m_loads(0)
    a("s_waitcnt vmcnt(0)")
    a(f"s_branch {late}")
    a.label(early)
    m_loads(0); kv_loads(1)
    a.label(late)
    a("v_lshrrev_b32 v24, 4, v0"); a("v_lshlrev_b32 v24, 2, v24"); a("v_and_b32 v25, 15, v0"); a("v_mov_b32 v26, 0xff800000")
    for i in range(4):
        a(f"v_add_u32 v27, {i}, v24"); a("v_cmp_gt_u32 vcc, v27, v25"); a("s_nop 1"); a(f"v_cndmask_b32 v{96+i}, 0, v26, vcc")
    a("v_cmp_gt_u32 vcc, 32, v0"); a("s_nop 1")
    for i in range(4): a(f"v_cndmask_b32 v{100+i}, 0, v26, vcc")
    for i in range(4): a(f"v_mov_b32 v{104+i}, 0x3f803f80")
    a("v_and_b32 v24, 3, v0"); a("v_lshrrev_b32 v25, 2, v0")
    a("v_lshlrev_b32 v18, 4, v25"); a("v_lshl_add_u32 v18, v24, 8, v18"); a("v_add_u32 v18, s43, v18")
    a("v_and_b32 v25, 7, v25"); a("v_lshlrev_b32 v19, 4, v25"); a("v_lshl_add_u32 v19, v24, 7, v19"); a("v_add_u32 v19, s43, v19")
    a("v_add_u32 v20, s43, v16")
    a("v_mov_b32 v21, v16"); a("v_add_u32 v22, 0x40000, v21")
    a("s_lshl_b32 s50, s39, 19"); a("s_lshl_b32 s51, s30, 14"); a("s_add_u32 s50, s50, s51"); a("s_lshl_b32 s51, s73, 12"); a("s_add_u32 s50, s50, s51"); a(f"s_add_u32 s50, s50, {WS_O}")
    wside(a, 36, "s50", "s51")
    a(f"s_mov_b32 s40, {SCL}")
    a("s_add_u32 s54, s39, 2")
    for sg in range(2):
        lo = sg*10240
        xb = XB[sg]
        if sg == 0:
            a("s_waitcnt vmcnt(16)")
        else:
            have = a.newlabel("h1")
            a("s_cmp_eq_u32 s55, 1"); a(f"s_cbranch_scc1 {have}")
            seg_signal("s39"); m_wait("s54"); tstamp(a, 0, 2, 3); m_loads(1)
            a("s_waitcnt vmcnt(0)"); tstamp(a, 1, 2, 3)
            a.label(have)
            a("s_waitcnt vmcnt(8)")
        for i in range(2): a(f"ds_write_b128 v20, {R('v', xb + 16 + 4*i)} offset:{lo + 8192 + i*1024}")
        tiles = [(132, 0, 0, "v[96:99]"), (136, 2, 0, "v[100:103]"), (140, 0, 1, "0"), (144, 1, 1, "v[96:99]"), (148, 2, 1, "v[100:103]")]
        for jj in range(4):
            for d, kt, qt, C in tiles:
                A = R('v', xb + 4*jj) if kt == 2 else R('a', sg*32 + (kt*4 + jj)*4)
                a(f"v_mfma_f32_16x16x32_bf16 {R('v', d)}, {A}, {frag(2*sg + qt, jj)}, " + (C if jj == 0 else R('v', d)))
        if sg == 0:
            no = a.newlabel("n1")
            a("s_mov_b32 s55, 0")
            a("s_cmp_lt_u32 s54, s48"); a(f"s_cbranch_scc0 {no}")
            m_loads(1); a("s_mov_b32 s55, 1")
            a.label(no)
        def vread(jj):
            b = 64 + (jj & 1)*12
            for hf in range(2):
                for kt in range(2):
                    a(f"ds_read_b64_tr_b16 {R('a', b + hf*4 + kt*2, 2)}, v18 offset:{lo + kt*4096 + jj*1024 + hf*8}")
                a(f"ds_read_b64_tr_b16 {R('a', b + 8 + hf*2, 2)}, v19 offset:{lo + 8192 + jj*512 + hf*8}")
        vread(0)
        a("s_nop 3")
        softmax_cols(a, list(range(132, 140)), 24)
        softmax_cols(a, list(range(140, 152)), 24)
        a("s_nop 0")
        a("v_cvt_pk_bf16_f32 v108, v132, v133"); a("v_cvt_pk_bf16_f32 v109, v134, v135"); a("v_mov_b32 v110, 0"); a("v_mov_b32 v111, 0")
        a("v_cvt_pk_bf16_f32 v112, v136, v137"); a("v_cvt_pk_bf16_f32 v113, v138, v139")
        for i in range(4): a(f"v_cvt_pk_bf16_f32 v{116+i}, v{140+2*i}, v{141+2*i}")
        a("v_cvt_pk_bf16_f32 v114, v148, v149"); a("v_cvt_pk_bf16_f32 v115, v150, v151")
        P0 = ["v[108:111]", "v[116:119]"]; P1 = ["v[112:113]", "v[114:115]"]
        a("s_nop 1")
        for qt in range(2): a(f"v_mfma_f32_16x16x32_bf16 {R('v', 120 + 4*qt)}, v[104:107], {P0[qt]}, 0")
        a("s_nop 5")
        for qt in range(2): a(f"v_mfma_f32_16x16x16_bf16 {R('v', 120 + 4*qt)}, v[104:105], {P1[qt]}, {R('v', 120 + 4*qt)}")
        if sg == 1:
            done = a.newlabel("d0")
            a("s_cmp_eq_u32 s55, 1"); a(f"s_cbranch_scc0 {done}")
            seg_signal("s39")
            a.label(done)
        a("s_nop 7")
        a("v_rcp_f32 v24, v120"); a("v_rcp_f32 v26, v124"); a("s_nop 0"); a("v_mov_b32 v25, v24"); a("v_mov_b32 v27, v26")
        for jj in range(4):
            b = 64 + (jj & 1)*12
            if jj < 3:
                vread(jj + 1); a("s_waitcnt lgkmcnt(6)")
            else:
                a("s_waitcnt lgkmcnt(0)")
            for qt in range(2):
                for hf in range(2):
                    a(f"v_mfma_f32_16x16x32_bf16 {R('v', 132 + (qt*2 + hf)*4)}, {R('a', b + hf*4)}, {P0[qt]}, 0")
            a("s_nop 2")
            for qt in range(2):
                for hf in range(2):
                    D = R('v', 132 + (qt*2 + hf)*4)
                    a(f"v_mfma_f32_16x16x16_bf16 {D}, {R('a', b + 8 + hf*2, 2)}, {P1[qt]}, {D}")
            a("s_nop 7")
            for qt in range(2):
                o = 132 + qt*8
                for i in range(0, 8, 2): a(f"v_pk_mul_f32 v[{o+i}:{o+i+1}], v[{o+i}:{o+i+1}], v[{24+2*qt}:{25+2*qt}]")
                for i in range(4): a(f"v_cvt_pk_bf16_f32 v{152 + 4*qt + i}, v{o+2*i}, v{o+2*i+1}")
                a(f"global_store_dwordx4 v{21+qt}, {R('v', 152 + 4*qt)}, s[36:37] offset:{jj*1024} sc1")
        if sg == 0:
            a("s_add_u32 s36, s36, 0x100000"); a("s_addc_u32 s37, s37, 0")
    tstamp(a, 2, 2, 3)
    seg_signal("s54")
    tstamp(a, 3, 2, 3)

def sreg(i): return R('a', 4*i) if i < 24 else R('v', 128 + 4*(i - 24))
def wot_wait(a):
    lp, ok = a.newlabel("tl"), a.newlabel("to")
    a("s_cmp_lg_u32 s75, 0"); a(f"s_cbranch_scc1 {ok}")
    a("v_lshlrev_b32 v18, 2, v0"); a(f"v_add_u32 v18, {rec.WS_FLAG + 108*128}, v18")
    a.label(lp)
    a("global_load_dword v19, v18, s[28:29] sc1"); a("s_waitcnt vmcnt(0)")
    a("v_cmp_ne_u32 vcc, 0, v19"); a(f"s_cbranch_vccz {ok}")
    a("s_sleep 8")
    a("s_add_u32 s46, s46, 1"); a(f"s_cmp_lt_u32 s46, {WSPIN}"); a(f"s_cbranch_scc1 {lp}")
    a("s_branch w_fail")
    a.label(ok)

def task_stream(a):
    wot_wait(a)
    a("s_barrier")
    a("s_and_b32 s42, s45, 1")
    a("s_lshl_b32 s43, s42, 3"); a("s_add_u32 s43, s43, s75")
    a("s_lshr_b32 s32, s45, 1"); a("s_lshl_b32 s32, s32, 20"); a("s_lshl_b32 s33, s43, 15"); a("s_add_u32 s32, s32, s33"); a(f"s_add_u32 s32, s32, {rec.WS_WOT}")
    rec.near_bit(a, "s33", "s32", "s22", True); a("s_add_u32 s32, s32, s33")
    a("v_lshlrev_b32 v10, 4, v0"); a("v_add_u32 v6, s32, v10")
    for cg in range(2):
        for q in range(4):
            a(f"v_add_u32 v2, {cg*rec.WOT_CG + (q >> 1)*16384 + (q & 1)*4096}, v6")
            for j in range(4):
                k = q*2 + (j >> 1)
                a(f"global_load_dwordx4 {sreg(k*4 + cg*2 + (j & 1))}, v2, s[28:29] offset:{j*1024} sc1")
    a("s_lshl_b32 s32, s43, 14"); a("v_add_u32 v2, s32, v10"); a("v_add_u32 v3, 0x1000, v2"); a("v_add_u32 v4, 0x40000, v2"); a("v_add_u32 v5, 0x41000, v2")
    a("s_lshl_b32 s33, s75, 13"); a("v_add_u32 v11, s33, v10")
    a("s_lshr_b32 s33, s75, 2"); a("s_xor_b32 s47, s33, s42")
    a("s_xor_b32 s36, s45, s47"); a("s_and_b32 s33, s36, 1"); a("s_lshl_b32 s33, s33, 12"); a("s_lshr_b32 s36, s36, 1"); a("s_lshl_b32 s36, s36, 14"); a("s_add_u32 s36, s36, s33")
    a("s_and_b32 s33, s75, 3"); a("s_lshl_b32 s33, s33, 10"); a("s_add_u32 s36, s36, s33"); a("v_add_u32 v1, s36, v10")
    a("s_bfe_u32 s32, s75, 0x10001"); a("s_lshl_b32 s36, s32, 12"); a("s_lshr_b32 s33, s75, 2"); a("s_lshl_b32 s33, s33, 11"); a("s_add_u32 s36, s36, s33")
    a("s_and_b32 s33, s75, 1"); a("s_lshl_b32 s37, s33, 10"); a("s_add_u32 s36, s36, s37"); a("v_add_u32 v12, s36, v10")
    a("s_lshl_b32 s32, s32, 16"); a("s_lshl_b32 s33, s33, 3"); a("s_add_u32 s32, s32, s33"); a("s_lshl_b32 s33, s45, 6"); a("s_add_u32 s32, s32, s33"); a(f"s_add_u32 s32, s32, {2048 + 96*65536}")
    a("v_and_b32 v13, 15, v0"); a("v_lshlrev_b32 v13, 12, v13"); a("v_lshrrev_b32 v14, 4, v0"); a("v_lshl_add_u32 v13, v14, 4, v13"); a("v_add_u32 v13, s32, v13")
    a("v_and_b32 v9, 1, v0"); a("v_lshlrev_b32 v9, 7, v9"); a("s_lshl_b32 s32, s43, 8"); a("s_xor_b32 s33, s22, 1"); a("s_lshl_b32 s33, s33, 13"); a("s_add_u32 s32, s32, s33")
    a(f"s_add_u32 s32, s32, {rec.WS_FLAG2}"); a("v_add_u32 v9, s32, v9")
    a("v_mov_b32 v8, 0")
    wstamp(a, 0)
    def pick(dst):
        a(f"s_ff1_i32_b32 {dst}, s34"); a(f"s_bitset0_b32 s34, {dst}")
    def base(dst, item):
        a(f"s_and_b32 s32, {item}, 15"); a("s_lshl_b32 s32, s32, 19"); a(f"s_add_u32 s32, s32, {WS_O + 96*262144}"); wside(a, dst, "s32", "s33")
    def inbox(item):
        a(f"s_lshl_b32 s32, {item}, 18"); a(f"s_add_u32 s32, s32, {WS_INBOX}"); wside(a, 50, "s32", "s33")
    def poll(item):
        a(f"s_bfe_u32 s32, {item}, 0x30001"); a("s_lshl_b32 s32, s32, 14"); a(f"s_and_b32 s33, {item}, 1"); a("s_lshl_b32 s33, s33, 12"); a("s_add_u32 s32, s32, s33")
        a("v_add_u32 v14, s32, v9")
        a("global_load_dword v15, v14, s[28:29] sc1")
    def oload(k):
        a(f"global_load_dwordx4 {R('v', 32 + k*4)}, v{2 + (k >> 2)}, s[38:39] offset:{(k & 3)*1024} sc1")
    def sum8(item):
        lab, j = a.newlabel("fn"), a.newlabel("fj")
        a("s_waitcnt lgkmcnt(0)"); a("s_barrier")
        a("ds_read_b128 v[112:115], v12")
        for part in ((1, 2, 3, 4), (5, 6, 7)):
            for i, m in enumerate(part): a(f"ds_read_b128 v[{96+4*i}:{99+4*i}], v12 offset:{m*8192}")
            for i, m in enumerate(part):
                a(f"s_waitcnt lgkmcnt({len(part) - 1 - i})")
                for h in range(2): a(f"v_pk_add_f32 v[{112+2*h}:{113+2*h}], v[{112+2*h}:{113+2*h}], v[{96+4*i+2*h}:{97+4*i+2*h}]")
        a("v_xor_b32 v12, 0x10000, v12")
        a("s_cmp_eq_u32 s47, 0"); a(f"s_cbranch_scc1 {lab}")
        inbox(item)
        for i in range(4): a(f"v_min_u32 v{112+i}, -2, v{112+i}")
        a("global_store_dwordx4 v1, v[112:115], s[50:51] sc1")
        a(f"s_branch {j}")
        a.label(lab)
        a(f"s_mov_b32 s52, {item}")
        a.label(j)
    def ask():
        no = a.newlabel("an")
        a("s_cmp_lt_i32 s52, 0"); a(f"s_cbranch_scc1 {no}")
        inbox("s52")
        a("global_load_dwordx4 v[120:123], v1, s[50:51] sc1")
        for i in range(4): a(f"v_mov_b32 v{116+i}, v{112+i}")
        a("s_mov_b32 s53, s52"); a("s_mov_b32 s52, -1")
        a.label(no)
    def join(wait):
        lp, ok, no = a.newlabel("jl"), a.newlabel("jo"), a.newlabel("jn")
        a("s_cmp_lt_i32 s53, 0"); a(f"s_cbranch_scc1 {no}")
        a("s_lshl_b32 s32, s53, 17"); a("s_add_u32 s40, s24, s32"); a("s_addc_u32 s41, s25, 0")
        if wait: a("s_waitcnt vmcnt(0)")
        a.label(lp)
        a("v_max3_u32 v124, v120, v121, v122"); a("v_max_u32 v124, v124, v123"); a("v_cmp_eq_u32 vcc, -1, v124"); a(f"s_cbranch_vccz {ok}")
        a("global_load_dwordx4 v[120:123], v1, s[50:51] sc1"); a("s_waitcnt vmcnt(0)")
        a("s_add_u32 s46, s46, 1"); a(f"s_cmp_lt_u32 s46, {WSPIN}"); a(f"s_cbranch_scc1 {lp}")
        a("s_branch w_fail")
        a.label(ok)
        a("v_pk_add_f32 v[116:117], v[116:117], v[120:121]"); a("v_pk_add_f32 v[118:119], v[118:119], v[122:123]")
        a("v_cvt_pk_bf16_f32 v120, v116, v117"); a("v_cvt_pk_bf16_f32 v121, v118, v119")
        a("global_store_dwordx2 v13, v[120:121], s[40:41] " + ("sc1" if "osc" in rec.OPT else "nt" if "ont" in rec.OPT else ""))
        a("s_mov_b32 s53, -1")
        a.label(no)
    def pending():
        lab = a.newlabel("pd")
        a("s_cmp_lt_i32 s35, 0"); a(f"s_cbranch_scc1 {lab}")
        sum8("s35")
        a.label(lab)
    def mm(k, wait):
        a(f"s_waitcnt vmcnt({wait})")
        for ct in range(4):
            D = R('v', 16 + ct*4)
            a(f"v_mfma_f32_16x16x32_bf16 {D}, {sreg((k & 7)*4 + ct)}, {R('v', 32 + k*4)}, " + ("0" if k & 7 == 0 else D))
    def park(tt):
        a("s_nop 4")
        for f in range(4): a(f"ds_write_b128 v11, {R('v', 16 + f*4)} offset:{tt*4096 + f*1024}")
        if tt: a("v_xor_b32 v11, 0x10000, v11")
        a("s_waitcnt lgkmcnt(0)")
    pick("s31"); pick("s36")
    a("s_mov_b32 s37, 0"); a("s_mov_b32 s52, -1"); a("s_mov_b32 s53, -1"); a("s_mov_b64 s[50:51], s[28:29]")
    a.label("st_wait")
    a("s_add_u32 s32, s31, 49"); a("s_min_u32 s32, s32, 63"); a("s_cmp_le_u32 s32, s37"); a("s_cbranch_scc1 st_near")
    a("s_sleep 6")
    a(f"global_load_dword v7, v8, s[26:27] offset:{D_PROG} sc1"); a("s_waitcnt vmcnt(0)")
    a("v_readfirstlane_b32 s37, v7")
    a("s_branch st_more")
    a.label("st_near")
    poll("s31"); a("s_waitcnt vmcnt(0)")
    a("v_cmp_ne_u32 vcc, 0, v15"); a("s_cbranch_vccz st_rdy")
    a("s_sleep 2")
    a.label("st_more")
    a("s_add_u32 s46, s46, 1"); a(f"s_cmp_lt_u32 s46, {WSPIN}"); a("s_cbranch_scc1 st_wait")
    a("s_branch w_fail")
    a.label("st_rdy")
    tstamp(a, 4)
    base(38, "s31")
    poll("s36")
    for k in range(16): oload(k)
    a("s_mov_b32 s35, -1")
    a.label("st_item")
    a("s_mov_b32 s30, s31"); a("s_mov_b32 s31, s36"); pick("s36")
    a("s_waitcnt vmcnt(16)")
    a("v_cmp_ne_u32 vcc, 0, v15")
    a("s_cmp_lt_i32 s31, 0"); a("s_cbranch_scc1 st_slow")
    a("s_cbranch_vccnz st_slow")
    base(38, "s31")
    poll("s36")
    for k in range(16):
        mm(k, 16)
        if k == 14: join(False); ask()
        oload(k)
        if k == 2: pending()
        if k == 7: park(0)
    park(1)
    a("s_mov_b32 s35, s30")
    a("s_branch st_item")
    a.label("st_slow")
    pending()
    for k in range(16):
        mm(k, 15 - k)
        if k == 7: park(0)
    tstamp(a, 5)
    park(1); join(False); ask(); sum8("s30"); join(True); ask(); join(True)
    tstamp(a, 6)
    a("s_cmp_lt_i32 s31, 0"); a("s_cbranch_scc0 st_wait")

def emit_mega(a, prof=False):
    kernel_begin(a, NAME + "_kernel")
    a("s_cmp_ge_u32 s2, 256"); a("s_cbranch_scc1 w_exit")
    if "span" in rec.OPT: a("s_memrealtime s[100:101]")
    load_ptrs(a)
    a("s_getreg_b32 s44, hwreg(HW_REG_XCC_ID)"); a("s_and_b32 s44, s44, 7")
    if "fakex" in rec.OPT:
        a("s_bitcmp1_b32 s2, 3"); a("s_cbranch_scc0 fake_done")
        a("s_cmp_eq_u32 s44, 1"); a("s_cselect_b32 s44, 5, s44"); a("s_cmp_eq_u32 s44, 2"); a("s_cselect_b32 s44, 7, s44")
        a.label("fake_done")
    a("v_lshrrev_b32 v1, 6, v0"); a("v_mov_b32 v34, 0"); a("s_mov_b32 s46, 0")
    a("v_readfirstlane_b32 s75, v1")
    if "nowarm" not in rec.OPT:
        a("s_cmp_eq_u32 s75, 2"); a("s_cbranch_scc0 no_warm")
        a("s_getpc_b64 s[30:31]")
        a.label("warm_pc")
        a("s_lshr_b32 s32, s2, 3"); a("s_lshl_b32 s32, s32, 12"); a("v_and_b32 v35, 63, v0"); a("v_lshl_add_u32 v35, v35, 6, s32")
        a("v_min_u32 v35, code_end-warm_pc-4, v35"); a("v_and_b32 v35, -4, v35")
        a("global_load_dword a95, v35, s[30:31]")
        a.label("no_warm")
    a("s_waitcnt lgkmcnt(0)")
    a("s_add_u32 s28, s28, 0x1fffff"); a("s_addc_u32 s29, s29, 0"); a("s_and_b32 s28, s28, 0xffe00000")
    a("s_cmp_lg_u32 s75, 0"); a("s_cbranch_scc1 no_tick")
    a("s_and_b32 s32, s44, 3"); a("s_lshl_b32 s32, s32, 2"); a("s_and_b32 s33, s44, 4"); a("s_lshl_b32 s33, s33, 5"); a("s_add_u32 s32, s32, s33")
    a("v_mov_b32 v35, s32"); a("v_mov_b32 v36, 1")
    a("s_mov_b64 exec, 1")
    a("global_atomic_add v37, v35, v36, s[26:27] sc0 sc1")
    a("s_mov_b64 exec, -1")
    a.label("no_tick")
    a("v_and_b32 v0, 63, v0")
    if rec.PAR["EPF"] == 3:
        a("s_and_b32 s32, s75, s44"); a("s_bitcmp1_b32 s32, 2"); a("s_cbranch_scc0 no_epf")
        a("s_lshr_b32 s33, s2, 3")
        a("s_cmp_eq_u32 s75, 4"); a("s_cbranch_scc0 epf_w")
        a("v_lshrrev_b32 v36, 3, v0"); a("v_lshlrev_b32 v36, 11, v36"); a("v_and_b32 v37, 7, v0"); a("v_lshl_add_u32 v36, v37, 7, v36")
        a("s_lshl_b32 s33, s33, 14"); a("v_add_u32 v36, s33, v36")
        a("global_load_dword a95, v36, s[10:11]")
        a("s_branch no_epf")
        a.label("epf_w")
        a("s_sub_u32 s34, s75, 5"); a("s_lshl_b32 s34, s34, 2"); a("s_lshr_b32 s35, s33, 3"); a("s_add_u32 s35, s35, s34"); a("s_lshl_b32 s35, s35, 17")
        a("s_and_b32 s36, s44, 1"); a("s_lshl_b32 s36, s36, 3"); a("s_and_b32 s37, s33, 7"); a("s_add_u32 s36, s36, s37"); a("s_lshl_b32 s36, s36, 9"); a("s_add_u32 s35, s35, s36")
        a("v_lshrrev_b32 v36, 2, v0"); a("v_lshlrev_b32 v36, 13, v36"); a("v_and_b32 v37, 3, v0"); a("v_lshl_add_u32 v36, v37, 7, v36"); a("v_add_u32 v36, s35, v36")
        a("s_bitcmp1_b32 s44, 1"); a("s_cselect_b64 s[30:31], s[18:19], s[16:17]")
        a("global_load_dword a95, v36, s[30:31]")
        a.label("no_epf")
    elif rec.PAR["EPF"]:
        a("s_and_b32 s32, s75, s44"); a("s_bitcmp1_b32 s32, 2"); a("s_cbranch_scc0 no_epf")
        a("s_lshr_b32 s33, s2, 3"); a("s_and_b32 s34, s75, 3"); a("v_and_b32 v35, 63, v0")
        if rec.PAR["EPF"] == 2:
            a("s_cmp_lt_u32 s33, 16"); a("s_cbranch_scc1 no_epf"); a("s_sub_u32 s33, s33, 16")
        a("s_lshr_b32 s35, s33, 3"); a("s_lshl_b32 s35, s35, 2"); a("s_add_u32 s35, s35, s34"); a("s_lshl_b32 s35, s35, 17")
        a("s_and_b32 s36, s44, 1"); a("s_lshl_b32 s36, s36, 3"); a("s_and_b32 s37, s33, 7"); a("s_add_u32 s36, s36, s37"); a("s_lshl_b32 s36, s36, 9"); a("s_add_u32 s35, s35, s36")
        a("v_lshrrev_b32 v36, 2, v35"); a("v_lshlrev_b32 v36, 13, v36"); a("v_and_b32 v37, 3, v35"); a("v_lshl_add_u32 v36, v37, 7, v36"); a("v_add_u32 v36, s35, v36")
        a("s_bitcmp1_b32 s44, 1"); a("s_cselect_b64 s[30:31], s[18:19], s[16:17]")
        a("s_lshl_b32 s33, s33, 2"); a("s_add_u32 s33, s33, s34"); a("s_lshl_b32 s33, s33, 13"); a("v_lshl_add_u32 v35, v35, 7, s33")
        a("global_load_dword a95, v36, s[30:31]")
        a("global_load_dword a95, v35, s[10:11]")
        if rec.PAR["EPF"] == 2:
            a(f"v_add_u32 v36, {128*8192}, v36"); a(f"v_add_u32 v35, {512*1024}, v35")
            a("global_load_dword a95, v36, s[30:31]")
            a("global_load_dword a95, v35, s[10:11]")
        a.label("no_epf")
    gemm.setup_common(a); gemm.setup_a_rowmajor(a, 2048, 2); gemm.setup_w(a, 8192)
    a("s_cmp_eq_u32 s75, 1"); a("s_cbranch_scc0 no_probe")
    a("s_mov_b32 s47, 0")
    a("s_cmp_lt_u32 s44, 4"); a("s_cbranch_scc0 probe_done")
    a(f"s_add_u32 s30, s28, {rec.WS_PROBE}"); a("s_addc_u32 s31, s29, 0")
    a("s_lshr_b32 s32, s2, 5"); a("s_and_b32 s33, s32, 1"); a("s_lshr_b32 s32, s32, 1"); a("s_lshl_b32 s32, s32, 2"); a("s_add_u32 s32, s32, s33"); a("s_lshl_b32 s32, s32, 12")
    a("s_and_b32 s33, s2, 31"); a("s_lshl_b32 s33, s33, 7"); a("s_add_u32 s32, s32, s33")
    a("v_mov_b32 v35, s32")
    a("s_mov_b64 exec, 1")
    a("s_mov_b32 s38, -1"); a("s_mov_b32 s39, -1"); a("s_mov_b32 s40, 6")
    a.label("probe_loop")
    a("s_memtime s[34:35]"); a("s_waitcnt lgkmcnt(0)")
    a("global_store_dword v35, v34, s[30:31] sc1"); a("s_waitcnt vmcnt(0)")
    a("s_memtime s[36:37]"); a("s_waitcnt lgkmcnt(0)")
    a("s_sub_u32 s36, s36, s34"); a("s_min_u32 s36, s36, s38"); a("s_mov_b32 s38, s39"); a("s_mov_b32 s39, s36")
    a("v_xor_b32 v35, 0x2000, v35")
    a("s_sub_u32 s40, s40, 1"); a("s_cmp_lg_u32 s40, 0"); a("s_cbranch_scc1 probe_loop")
    a("s_mov_b64 exec, -1")
    a("s_cmp_lt_u32 s39, s38"); a("s_cselect_b32 s47, 1, 0")
    a.label("probe_done")
    a("v_mov_b32 v35, s47"); a("ds_write_b32 v34, v35 offset:4")
    a.label("no_probe")
    a("s_cmp_lg_u32 s75, 0"); a("s_cbranch_scc1 role_wait")
    a("s_mov_b64 exec, 1"); a("s_waitcnt vmcnt(0)")
    a("v_readfirstlane_b32 s45, v37")
    a("s_cmp_lt_u32 s45, 32"); a("s_cbranch_scc1 role_have")
    a(f"v_mov_b32 v35, {D_OVF}")
    a("global_atomic_add v37, v35, v36, s[26:27] sc0 sc1"); a("s_waitcnt vmcnt(0)")
    a("v_readfirstlane_b32 s45, v37")
    a.label("role_poll")
    a("global_load_dwordx4 v[40:43], v34, s[26:27] sc1"); a("global_load_dwordx4 v[44:47], v34, s[26:27] offset:128 sc1"); a("s_waitcnt vmcnt(0)")
    a("s_mov_b32 s33, 0")
    for i in range(8):
        a(f"v_readfirstlane_b32 s{34+i}, v{40+i}"); a(f"s_add_u32 s33, s33, s{34+i}")
    a("s_cmp_eq_u32 s33, 256"); a("s_cbranch_scc1 role_pick")
    a("s_sleep 8"); a("s_add_u32 s46, s46, 1"); a(f"s_cmp_lt_u32 s46, {WSPIN}"); a("s_cbranch_scc1 role_poll")
    a("s_mov_b64 exec, -1"); a("s_branch w_fail")
    a.label("role_pick")
    for i in range(8):
        a(f"s_min_u32 s33, s{34+i}, 32"); a("s_add_u32 s45, s45, s33"); a(f"s_mov_b32 s44, {i}")
        if i < 7:
            a("s_cmp_lt_u32 s45, 32"); a("s_cbranch_scc1 role_have"); a("s_sub_u32 s45, s45, 32")
    a.label("role_have")
    a("s_lshl_b32 s32, s44, 5"); a("s_or_b32 s32, s32, s45"); a("v_mov_b32 v35, s32")
    a("ds_write_b32 v34, v35")
    a("s_mov_b64 exec, -1")
    a.label("role_wait")
    a("s_waitcnt lgkmcnt(0)"); a("s_barrier")
    a("ds_read_b64 v[36:37], v34"); a("s_waitcnt lgkmcnt(0)")
    a("v_readfirstlane_b32 s32, v36"); a("v_readfirstlane_b32 s47, v37")
    a("s_cmp_lg_u32 s75, 0"); a("s_cbranch_scc1 voted")
    a("s_cmp_ge_u32 s32, 128"); a("s_cbranch_scc1 voted")
    a("s_and_b32 s47, s47, 1"); a("s_lshl_b32 s47, s47, 16"); a("s_or_b32 s47, s47, 1"); a("v_mov_b32 v35, s47")
    a("s_mov_b64 exec, 1")
    a(f"global_atomic_add v34, v35, s[26:27] offset:{rec.DBG_VOTE} sc1")
    a("s_mov_b64 exec, -1")
    a.label("voted")
    a("s_barrier")
    if "span" in rec.OPT:
        a("s_and_b32 s98, s2, 0x38"); a("s_or_b32 s98, s98, s75"); a("s_cmp_lg_u32 s98, 0"); a("s_cbranch_scc1 span1")
        a("s_memrealtime s[98:99]"); a("s_waitcnt lgkmcnt(0)"); a("s_not_b32 s100, s100"); a("v_mov_b32 v36, s100"); a("v_mov_b32 v37, s98")
        a("s_mov_b64 exec, 1"); a("global_atomic_umax v34, v36, s[26:27] offset:48 sc1"); a("global_atomic_umax v34, v37, s[26:27] offset:52 sc1"); a("s_mov_b64 exec, -1")
        a.label("span1")
    a("s_and_b32 s45, s32, 31"); a("s_bfe_u32 s44, s32, 0x30005")
    a("s_cmp_ge_u32 s44, 4"); a("s_cbranch_scc1 worker")
    a("s_lshl_b32 s18, s44, 3"); a("s_lshr_b32 s19, s45, 2"); a("s_add_u32 s18, s18, s19"); a("s_and_b32 s19, s45, 3")
    a("s_lshl_b32 s32, s75, 6"); a("v_add_u32 v0, s32, v0")
    rec.emit_rec(a, "rec", prof=prof, kvwait=True)
    a.label("worker")
    a("s_sub_u32 s44, s44, 4")
    a("s_mov_b32 s88, 0"); a("s_mov_b32 s89, 0"); a("s_mov_b32 s77, 0")
    a("s_mov_b32 s59, 0") if PROF else None
    a("s_lshl_b32 s96, s44, 5"); a("s_add_u32 s96, s96, s45"); a("s_lshl_b32 s96, s96, 3"); a("s_add_u32 s96, s96, s75")
    a("s_lshl_b32 s32, s44, 3"); a("s_lshr_b32 s44, s45, 3"); a("s_and_b32 s45, s45, 7"); a("s_add_u32 s45, s45, s32")
    if PROF: a("s_lshl_b32 s97, s44, 5"); a("s_add_u32 s97, s97, s45")
    wstamp(a, 0)
    def g1(grp):
        MT, first = ((2, 0), (3, 32), (3, 80))[grp]
        a("s_mov_b32 s23, s44")
        a("s_mov_b32 s30, s45"); a(f"s_mul_i32 s31, s23, {4*MT}"); a(f"s_add_u32 s31, s31, {first}")
        task_g1(a, MT, grp)
    def tile_2x4():
        a("s_bfe_u32 s30, s45, 0x10003"); a("s_lshl_b32 s30, s30, 1"); a("s_and_b32 s32, s45, 1"); a("s_add_u32 s30, s30, s32")
        a("s_lshr_b32 s31, s45, 4"); a("s_lshl_b32 s31, s31, 2"); a("s_bfe_u32 s32, s45, 0x20001"); a("s_add_u32 s31, s31, s32")
    touches(a, [(10, 1 << 20, 3, 0, 3)]*3)
    if rec.PAR["ST"] == 1: a("s_mov_b32 s98, 0")
    g1(0)
    if not rec.PAR["RPF"]: touches(a, [(4, 0, 4, 0, 4), (6, 0, 6, 0, 4), (6, 0, 6, 4, 2)])
    elif rec.PAR["RPF"] == 1 and not rec.PAR["QPL"]: touches(a, [(14, 0, 8, 0, 4), (14, 0, 8, 4, 4), (14, 0, 8, 4, 4)])
    g1(1)
    if not rec.PAR["RPF"]: touches(a, [(14, 0, 8, 0, 4), (14, 0, 8, 4, 4), (8, 0, 2, 0, 2)])
    a("s_cmp_lt_u32 s44, 2"); a("s_cbranch_scc1 w_g1c")
    a("s_lshl_b32 s23, s44, 1"); a("s_and_b32 s32, s45, 1"); a("s_add_u32 s23, s23, s32")
    a("s_cmp_eq_u32 s23, 6"); a("s_cbranch_scc1 w_wot0")
    tile_2x4()
    a("s_and_b32 s32, s44, 1"); a("s_lshl_b32 s32, s32, 2"); a("s_add_u32 s30, s30, s32")
    a.label("w_kv")
    task_g4kv(a)
    wstamp(a, 0)
    a("s_cmp_eq_u32 s23, 5"); a("s_cbranch_scc0 w_kvd")
    a("s_mov_b32 s23, 7"); a("s_add_u32 s30, s30, 3"); a("s_branch w_kv")
    a.label("w_kvd")
    a("s_cmp_eq_u32 s23, 7"); a("s_cbranch_scc1 w_g1c")
    a.label("w_wot0")
    a("s_and_b32 s32, s44, 1"); a("s_add_u32 s30, s45, s32"); a("s_mov_b32 s31, 0")
    a.label("w_wot")
    task_wot(a)
    a("s_add_u32 s31, s31, 1"); a("s_cmp_lt_u32 s31, 2"); a("s_cbranch_scc1 w_wot")
    wstamp(a, 0)
    a.label("w_g1c")
    g1(2)
    a.label("w_g2a")
    a("s_lshr_b32 s30, s45, 1"); a("s_and_b32 s31, s45, 1"); a("s_lshr_b32 s32, s44, 1"); a("s_xor_b32 s32, s32, s44"); a("s_lshl_b32 s32, s32, 1"); a("s_add_u32 s31, s31, s32")
    task_g2a(a)
    wstamp(a, 0)
    a("s_cmp_eq_u32 s44, 0"); a("s_cbranch_scc1 w_g5")
    a("s_cmp_eq_u32 s44, 2"); a("s_cbranch_scc1 w_set2")
    a("s_lshr_b32 s30, s45, 3")
    a("s_cmp_eq_u32 s44, 3"); a("s_cbranch_scc1 w_f1")
    a("s_and_b32 s31, s45, 7")
    task_g3(a, 2)
    wstamp(a, 0)
    a(f"s_mov_b32 s34, {setmask(1):#x}")
    a("s_branch w_stream")
    a.label("w_f1")
    a("s_lshl_b32 s31, s31, 2"); a("s_bfe_u32 s32, s45, 0x20001"); a("s_add_u32 s31, s31, s32")
    task_g3(a, 1)
    wstamp(a, 0)
    a.label("w_set2")
    a("s_bitcmp1_b32 s45, 0"); a("s_cbranch_scc1 w_exit")
    a("s_and_b32 s32, s44, 1"); a("s_add_u32 s45, s45, s32")
    a(f"s_mov_b32 s34, {setmask(2):#x}")
    a("s_branch w_stream")
    a.label("w_g5")
    tile_2x4()
    task_g4q(a)
    wstamp(a, 0)
    task_g5(a)
    wstamp(a, 0)
    a(f"s_mov_b32 s34, {setmask(0):#x}")
    a.label("w_stream")
    task_stream(a)
    wstamp(a, 0)
    if "span" in rec.OPT:
        a("s_and_b32 s98, s45, 7"); a("s_or_b32 s98, s98, s75"); a("s_cmp_lg_u32 s98, 0"); a("s_cbranch_scc1 w_exit")
        a("s_waitcnt vmcnt(0)"); a("s_memrealtime s[98:99]"); a("s_waitcnt lgkmcnt(0)"); a("v_mov_b32 v5, s98"); a("v_mov_b32 v2, 0")
        a("s_mov_b64 exec, 1"); a("global_atomic_umax v2, v5, s[26:27] offset:60 sc1")
    a("s_endpgm")
    a.label("w_fail")
    a("v_mov_b32 v16, 0"); a("v_mov_b32 v17, 0xdead"); a("global_store_dword v16, v17, s[26:27] offset:248")
    a.label("w_exit")
    a("s_endpgm")
    gemm.emit_core(a, "core_T", 'T')
    gemm.emit_core(a, "core_N", 'N')
    gemm.emit_core(a, "core_T3", 'T', MT=3)
    gemm.XORK = True
    gemm.emit_core(a, "core_T2", 'T', MT=2)
    gemm.XORK = False
    gemm.WFLAG = "sc1"; gemm.WFRAG = True
    gemm.emit_core(a, "core_F1", 'T', MT=1, aflag="sc1")
    gemm.emit_core(a, "core_F2", 'T', MT=2, aflag="sc1")
    gemm.WFLAG = ""; gemm.WFRAG = False
    a.label("code_end")

def generate(prof=False):
    global PROF
    PROF = bool(prof)
    gemm.TUNE["SLP"] = rec.PAR.get("SLP", 0); gemm.TUNE["CST"] = rec.PAR.get("CST", 0)
    raw = open(f"cdna_kernels/{NAME}.s.ref").read().split("\n")
    hdr = []
    for l in raw:
        if not l.startswith(";") or "Override" in l: break
        hdr.append(l)
    a = Asm()
    emit_mega(a, prof)
    s = "\n".join(hdr) + "\n"
    s += f"; @launch kernel={NAME}_kernel grid=(256,1,1) block=(512,1,1) lds=163840\n"
    s += '.amdgcn_target "amdgcn-amd-amdhsa--gfx950"\n.text\n' + a.text() + '.section .rodata,"a"\n'
    s += kernel_desc(NAME + "_kernel", vgpr=256, accum=160)
    return s

if __name__ == "__main__":
    out = sys.argv[1] if len(sys.argv) > 1 else f"cdna_kernels/{NAME}.s"
    open(out, "w").write(generate())
    print("wrote", out)
```

```python
from asmgen import *

WS_RING  = 1 << 20
WS_RING1 = 0x180000
WS_PROBE = 0x1f0000
WS_FLAG2 = 0x140000
WS_HW    = 0x160000
WS_FLAG  = 0x1e0000
WS_MEMS  = 2 << 20
WS_KMVM  = 4 << 20
WS_KX    = 20 << 20
WS_VX    = 52 << 20
WS_WOT   = 126 << 20
WOT_CG = 1 << 19
WS_PART1 = 146 << 20
L_PART = 0
L_P    = 24576
L_ZERO = 26624
L_SEL  = 28672
L_PARW = 7*16384
L_KX   = 131072
L_VX   = 147456
SPIN_MAX = 400000
NSTEP = 64
DBG_VOTE, DBG_CLR, DBG_PROG = 40, 44, 192
PAR0 = dict(HALF=0, NOTAG=0, THA=0, THQ=0, EPF=3, DROP=0, RPF=0, DMI=0, DDEL=0, WPF=2, QPL=0, ST=1, BDEL=0, SPLITB=1, KFAR=1, VFAR=1, RDEL=10, MDEL=7, DM=1, MGAP=3, PRIO=1, XD=2, XGAP=1, VDEL=10, PPRIO=2, XDEL=7, DR=2, RGAP=5, MACK=0)
PAR = dict(PAR0)
OPT = set()

def backoff(a, n):
    q = int(round(n*4))
    if q // 4: a(f"s_sleep {q // 4}")
    if q % 4: a(f"s_nop {4*(q % 4) - 1}")

def guard(a, loop, fail):
    a("s_add_u32 s24, s24, 1"); a(f"s_cmp_lt_u32 s24, {SPIN_MAX}"); a(f"s_cbranch_scc1 {loop}"); a(f"s_branch {fail}")

def pstamp(a, prof, k):
    if prof == 3:
        a("s_memrealtime s[56:57]"); a("s_waitcnt lgkmcnt(0)"); a(f"s_mov_b32 s{k}, s56")

def stamp(a, prof, k, at=None):
    if not prof: return
    if prof >= 3 and (k != 7 or prof > 3): return
    if prof == 2:
        lab = a.newlabel("st")
        a("s_cmp_lg_u32 s22, " + ("31" if (k == 7 or at) else "30")); a(f"s_cbranch_scc1 {lab}")
        a("s_memrealtime s[56:57]"); a("s_waitcnt lgkmcnt(0)"); a("s_and_b32 s56, s56, 0xffffff"); a("s_lshl_b32 s57, s24, 24"); a(f"s_or_b32 s{60+k}, s56, s57")
        a.label(lab)
        return
    a("s_memtime s[56:57]"); a("s_waitcnt lgkmcnt(0)")
    a("s_sub_u32 s58, s56, s59"); a(f"s_add_u32 s{60+k}, s{60+k}, s58"); a("s_mov_b32 s59, s56")

def fs(a, prof, k, which):
    if prof == which: a(f"s_memtime s[{66+2*k}:{67+2*k}]")

def near_bit(a, tmp, off, par, kv=False):
    flip = kv and PAR["KFAR"] != PAR["VFAR"]
    if flip: a(f"s_cmp_ge_u32 {off}, {WS_VX}"); a(f"s_addc_u32 {tmp}, {par}, {PAR['KFAR']}"); a(f"s_lshl_b32 {tmp}, {tmp}, 21"); a(f"s_xor_b32 {tmp}, {tmp}, {off}"); a(f"s_lshr_b32 {tmp}, {tmp}, 21")
    else:
        a(f"s_lshr_b32 {tmp}, {off}, 21"); a(f"s_xor_b32 {tmp}, {tmp}, {par}")
        if kv and PAR["KFAR"]: a(f"s_xor_b32 {tmp}, {tmp}, 1")
    a(f"s_and_b32 {tmp}, {tmp}, 1"); a(f"s_lshl_b32 {tmp}, {tmp}, 13")

def near(a, dst, off, par="s25", wb=16, tmp="s36", kv=False):
    near_bit(a, tmp, off, par, kv)
    a(f"s_add_u32 {tmp}, {tmp}, {off}"); a(f"s_add_u32 s{dst}, s{wb}, {tmp}"); a(f"s_addc_u32 s{dst+1}, s{wb+1}, 0")

def v_from_k(a, v, k):
    a(f"s_add_u32 s{v}, s{k}, {WS_VX - WS_KX}"); a(f"s_addc_u32 s{v+1}, s{k+1}, 0")
    if PAR["KFAR"] != PAR["VFAR"]: a(f"s_xor_b32 s{v}, s{v}, 0x2000")

def kv_tile(a, dst, seg, tmp):
    a(f"s_sub_u32 {tmp}, {seg}, 16"); a(f"s_mul_i32 {tmp}, {tmp}, 43"); a(f"s_lshr_b32 {tmp}, {tmp}, 8"); a(f"s_add_u32 {tmp}, {tmp}, 4")
    a(f"s_lshr_b32 {dst}, {seg}, 2"); a(f"s_cmp_lt_u32 {dst}, 4"); a(f"s_cselect_b32 {dst}, {dst}, {tmp}")

def tagchk(a, regs, tag, t0, t1, mf=()):
    op = "0x80" if tag else "0xfe"
    f3 = (lambda d, x, y, z: f"v_max3_u32 v{d}, v{x}, v{y}, v{z}") if tag is None else (lambda d, x, y, z: f"v_bitop3_b32 v{d}, v{x}, v{y}, v{z} bitop3:{op}")
    mf = list(mf)
    ops = [f3(t0, *regs[0:3]), f3(t1, *regs[3:6])]
    rest = regs[6:]; k = 0
    while rest:
        t = (t0, t1)[k & 1]; k += 1
        ops.append(f3(t, t, rest[0], rest[1])); rest = rest[2:]
    ops.append(f"v_max_u32 v{t0}, v{t0}, v{t1}" if tag is None else f"v_bitop3_b32 v{t0}, v{t0}, v{t1}, 1 bitop3:" + ("0x80" if tag else "0xa8"))
    per = -(-len(ops) // max(len(mf), 1))
    for i, o in enumerate(ops):
        if mf and i % per == 0: a(mf.pop(0))
        a(o)
    for m in mf: a(m)
    a(f"v_cmp_eq_u32 vcc, -1, v{t0}" if tag is None else f"v_cmp_ne_u32 vcc, {tag}, v{t0}")

def emit_rec(a, pfx, prof=False, kvwait=False):
    L = lambda n: f"{pfx}_{n}"
    FAIL = L('fail')
    a("s_load_dwordx8 s[4:11], s[0:1], 40")
    a("s_load_dwordx2 s[12:13], s[0:1], 32")
    a("s_load_dwordx2 s[14:15], s[0:1], 88")
    a("s_load_dwordx2 s[16:17], s[0:1], 96")
    a("v_lshrrev_b32 v1, 6, v0")
    a("v_and_b32 v0, 63, v0")
    a("s_lshl_b32 s20, s18, 2"); a("s_add_u32 s20, s20, s19")
    a("v_readfirstlane_b32 s21, v1")
    a("v_lshlrev_b32 v6, 4, v0")
    a("s_mov_b32 s24, 0")
    a("s_waitcnt lgkmcnt(0)")
    pstamp(a, prof, 90)
    if "diag" in OPT: pstamp(a, 3, 97)
    a("s_add_u32 s16, s16, 0x1fffff"); a("s_addc_u32 s17, s17, 0"); a("s_and_b32 s16, s16, 0xffe00000")
    a("s_lshl_b32 s36, s18, 13"); a(f"s_add_u32 s36, s36, {WS_RING}"); a("s_add_u32 s32, s16, s36"); a("s_addc_u32 s33, s17, 0")
    a(f"s_add_u32 s82, s32, {WS_RING1 - WS_RING}"); a("s_addc_u32 s83, s33, 0")
    NT_ = PAR["NOTAG"]
    RB = lambda tag: "s[82:83]" if (tag and NT_) else "s[32:33]"
    a("s_and_b32 s45, s20, 63"); a("s_lshl_b32 s45, s45, 7"); a("s_lshr_b32 s36, s20, 6"); a("s_lshl_b32 s36, s36, 14"); a("s_add_u32 s45, s45, s36")
    a("s_and_b32 s44, s20, 1"); a("s_lshl_b32 s44, s44, 12"); a("s_lshr_b32 s42, s20, 1"); a("s_lshl_b32 s42, s42, 14"); a("s_add_u32 s44, s44, s42")
    a("v_mov_b32 v14, v6"); a("v_add_u32 v15, 0x1000, v6")
    a("s_lshl_b32 s36, s19, 10"); a("v_add_u32 v9, s36, v6")
    a("s_lshl_b32 s36, s19, 9"); a("s_add_u32 s36, s36, 4096"); a("v_and_b32 v8, 0x1ff, v6"); a("v_add_u32 v8, s36, v8")
    a("s_cmp_eq_u32 s21, 7"); a(f"s_cbranch_scc0 {L('noclr')}")
    for i in range(4): a(f"v_mov_b32 v{68+i}, -1")
    a("v_add_u32 v16, s44, v6"); a("v_add_u32 v17, 0x2000, v16")
    for p in range(2):
        for i in range(4): a(f"global_store_dwordx4 v{16+p}, v[68:71], s[16:17] offset:{1024*i} sc1")
    if PAR["DROP"]:
        a(f"v_add_u32 v16, {WS_PART1}, v16"); a(f"v_add_u32 v17, {WS_PART1}, v17")
        for p in range(2):
            for i in range(4): a(f"global_store_dwordx4 v{16+p}, v[68:71], s[16:17] offset:{1024*i} sc1")
    for t_ in range(2 if NT_ else 1):
        a(f"global_store_dwordx4 v9, v[68:71], {RB(t_)} sc1"); a(f"global_store_dwordx4 v8, v[68:71], {RB(t_)} sc1")
    a("v_bfe_u32 v16, v0, 3, 2"); a("v_lshlrev_b32 v16, 15, v16"); a("v_lshrrev_b32 v17, 5, v0"); a("v_lshl_add_u32 v16, v17, 13, v16")
    a("v_and_b32 v17, 7, v0"); a("v_lshl_add_u32 v16, v17, 4, v16"); a(f"s_add_u32 s36, s45, {WS_MEMS}"); a("v_add_u32 v16, s36, v16")
    for i in range(16):
        a("global_store_dwordx4 v16, v[68:71], s[16:17] sc1"); a("v_add_u32 v16, 0x20000, v16")
    a("s_lshl_b32 s36, s20, 7"); a(f"s_add_u32 s36, s36, {WS_FLAG}"); a("v_and_b32 v16, 0x70, v6"); a("v_add_u32 v16, s36, v16")
    a("global_store_dwordx4 v16, v[68:71], s[16:17] sc1")
    a("s_lshl_b32 s36, s20, 10"); a(f"s_add_u32 s36, s36, {WS_FLAG2}"); a("v_add_u32 v16, s36, v6")
    a("global_store_dwordx4 v16, v[68:71], s[16:17] sc1")
    a("s_lshl_b32 s36, s20, 8"); a(f"s_add_u32 s36, s36, {WS_HW}"); a("v_and_b32 v16, 0xf0, v6"); a("v_add_u32 v16, s36, v16")
    a("global_store_dwordx4 v16, v[68:71], s[16:17] sc1")
    a("s_lshr_b32 s36, s20, 3"); a("s_lshl_b32 s36, s36, 14"); a("s_and_b32 s42, s20, 7"); a("s_lshl_b32 s42, s42, 10"); a("s_add_u32 s36, s36, s42")
    a(f"s_add_u32 s36, s36, {WS_KMVM + (NSTEP - 1)*0x40000}"); a("v_add_u32 v16, s36, v6"); a("v_add_u32 v17, 0x2000, v16")
    a("global_store_dwordx4 v16, v[68:71], s[16:17] sc1"); a("global_store_dwordx4 v17, v[68:71], s[16:17] sc1")
    a("v_subrev_u32 v16, 0x40000, v16"); a("v_subrev_u32 v17, 0x40000, v17")
    a("global_store_dwordx4 v16, v[68:71], s[16:17] sc1"); a("global_store_dwordx4 v17, v[68:71], s[16:17] sc1")
    a("s_barrier")
    a("v_mov_b32 v17, 1"); a("v_mov_b32 v16, 0")
    a("s_waitcnt vmcnt(0)")
    a("s_mov_b64 exec, 1")
    a(f"global_atomic_add v16, v17, s[14:15] offset:{DBG_CLR} sc1")
    a("s_mov_b64 exec, -1")
    a(f"s_branch {L('clrd')}")
    a.label(L('noclr'))
    a("s_barrier")
    a.label(L('clrd'))
    def xdma(base, ldsreg):
        for kt in range(2):
            a(f"s_add_u32 m0, {ldsreg}, {kt*4096}")
            a("s_nop 0")
            for jj in range(4):
                a(f"global_load_lds_dwordx4 v{14+kt}, {base} offset:{jj*1024} sc1")
    def kv_poll(tag, tile):
        a(f"s_lshl_b32 s52, {tile}, 7"); a("s_lshr_b32 s36, s18, 1"); a("s_lshl_b32 s36, s36, 2"); a("s_add_u32 s52, s52, s36"); a(f"s_add_u32 s52, s52, {WS_FLAG + 96*128}")
        a("v_mov_b32 v17, s52")
        a.label(L(tag))
        a("global_load_dword v16, v17, s[16:17] sc1"); a("global_load_dword v18, v17, s[16:17] offset:64 sc1"); a("s_waitcnt vmcnt(0)")
        a("v_or_b32 v16, v16, v18")
        a("v_cmp_ne_u32 vcc, 0, v16"); a(f"s_cbranch_vccz {L(tag + 'ok')}")
        a("s_sleep 4")
        guard(a, L(tag), FAIL)
        a.label(L(tag + 'ok'))
    def kv_bases(segreg):
        a(f"s_lshl_b32 s42, {segreg}, 5"); a("s_add_u32 s42, s42, s18"); a("s_lshl_b32 s42, s42, 14"); a(f"s_add_u32 s42, s42, {WS_KX}")
        near(a, 48, "s42", kv=True)
        v_from_k(a, 34, 48)
    a("s_and_b32 s39, s19, 1"); a("s_xor_b32 s39, s39, 1"); a("s_lshl_b32 s39, s39, 1"); a("s_lshr_b32 s36, s19, 1"); a("s_add_u32 s39, s39, s36")
    a("s_lshl_b32 s43, s21, 14")
    a("s_lshl_b32 s36, s21, 20"); a("s_lshl_b32 s42, s18, 8"); a("s_add_u32 s36, s36, s42")
    a("v_lshrrev_b32 v10, 2, v0"); a("v_lshlrev_b32 v10, 13, v10"); a("v_and_b32 v11, 3, v0"); a("v_lshl_add_u32 v10, v11, 4, v10")
    a("s_lshl_b32 s42, s39, 6"); a("s_add_u32 s42, s42, s36"); a("v_add_u32 v10, s42, v10")
    a("v_lshrrev_b32 v11, 3, v0"); a("v_lshlrev_b32 v11, 13, v11"); a("v_and_b32 v12, 7, v0"); a("v_lshl_add_u32 v11, v12, 4, v11")
    a("s_and_b32 s42, s19, 1"); a("s_lshl_b32 s42, s42, 7"); a("s_add_u32 s42, s42, s36"); a("v_add_u32 v11, s42, v11")
    def qkdma(base, nt):
        for i in range(16):
            a(f"s_add_u32 m0, s43, {i*1024}")
            a("s_nop 0")
            a(f"global_load_lds_dwordx4 v11, {base} {nt}")
            if i < 15: a("v_add_u32 v11, 0x10000, v11")
    for _ in range(PAR["THA"]): a("s_sleep 32")
    a("s_cmp_lt_u32 s19, 2"); a(f"s_cbranch_scc1 {L('isq')}")
    qkdma("s[6:7]", ""); a(f"s_branch {L('qkd')}")
    a.label(L('isq'))
    for _ in range(PAR["THQ"]): a("s_sleep 32")
    qkdma("s[4:5]", "" if PAR["QPL"] else "nt")
    a.label(L('qkd'))
    a("v_lshrrev_b32 v12, 5, v0"); a("v_lshlrev_b32 v12, 4, v12")
    a("v_bfe_u32 v13, v0, 4, 1"); a("v_lshl_add_u32 v12, v13, 2, v12")
    a("v_bfe_u32 v13, v0, 2, 1"); a("v_add_u32 v12, v12, v13")
    a("v_bfe_u32 v13, v0, 3, 1"); a("v_lshl_add_u32 v12, v13, 3, v12")
    a("v_and_b32 v13, 3, v0"); a("v_lshlrev_b32 v13, 3, v13"); a("v_add_u32 v13, s43, v13")
    a("v_lshl_add_u32 v7, v12, 7, v13"); a("v_lshl_add_u32 v12, v12, 6, v13")
    def qkread(ks):
        for t in range(4):
            for pp in range(4):
                hi, lo = pp >> 1, pp & 1
                reg = (t*2 + ks)*8 + pp*2
                a(f"ds_read_b64_tr_b16 a[{reg}:{reg+1}], v7 offset:{(64*ks + 32*hi + 2*lo)*128 + t*32}")
            a("s_waitcnt lgkmcnt(4)")
        a("s_waitcnt lgkmcnt(0)")
    def vread():
        for t in range(2):
            for ks in range(2):
                for pp in range(4):
                    hi, lo = pp >> 1, pp & 1
                    reg = ((4 + t)*2 + ks)*8 + pp*2
                    a(f"ds_read_b64_tr_b16 a[{reg}:{reg+1}], v12 offset:{(64*ks + 32*hi + 2*lo)*64 + t*32}")
                a("s_waitcnt lgkmcnt(4)")
        a("s_waitcnt lgkmcnt(0)")
    a("s_waitcnt vmcnt(8)")
    pstamp(a, prof, 91)
    qkread(0)
    for i in range(8):
        a(f"s_add_u32 m0, s43, {i*1024}")
        a("s_nop 0")
        a("global_load_lds_dwordx4 v10, s[8:9]")
        if i < 7: a("v_add_u32 v10, 0x20000, v10")
    a("s_waitcnt vmcnt(8)"); qkread(1)
    a("v_and_b32 v11, 7, v0"); a("v_lshlrev_b32 v11, 11, v11"); a("v_lshrrev_b32 v13, 3, v0"); a("v_lshl_add_u32 v11, v13, 4, v11")
    a("s_lshl_b32 s36, s21, 8"); a("v_add_u32 v11, s36, v11")
    a("global_load_dwordx4 v[16:19], v11, s[12:13]"); a("global_load_dwordx4 v[20:23], v11, s[12:13] offset:128")
    a("v_lshrrev_b32 v10, 3, v0"); a("v_lshlrev_b32 v10, 11, v10"); a("v_and_b32 v11, 7, v0"); a("v_lshl_add_u32 v10, v11, 4, v10")
    a("s_lshl_b32 s36, s18, 18"); a("s_lshl_b32 s42, s19, 9"); a("s_add_u32 s36, s36, s42")
    a("s_and_b32 s42, s21, 3"); a("s_lshl_b32 s42, s42, 7"); a("s_add_u32 s36, s36, s42")
    a("v_add_u32 v10, s36, v10")
    def odma(half):
        a(f"v_add_u32 v11, {half*64*2048}, v10")
        for i in range(8):
            a(f"s_add_u32 m0, s43, {half*8192 + i*1024}")
            a("s_nop 0")
            a("global_load_lds_dwordx4 v11, s[10:11]")
            if i < 7: a("v_add_u32 v11, 0x4000, v11")
    a("v_mov_b32 v56, 0"); a("s_lshr_b32 s36, s18, 3"); a("s_lshl_b32 s36, s36, 2"); a("v_mov_b32 v57, s36")
    a("s_cmp_lt_u32 s21, 4"); a(f"s_cbranch_scc0 {L('wv_only')}")
    odma(1)
    a("s_waitcnt vmcnt(8)"); vread()
    odma(0)
    a("v_lshrrev_b32 v12, 2, v0")
    a("v_lshlrev_b32 v12, 7, v12"); a("v_and_b32 v13, 3, v0"); a("v_lshl_add_u32 v12, v13, 4, v12"); a("v_add_u32 v12, s43, v12")
    a("s_waitcnt vmcnt(0)")
    def wo_reg(ct, jj):
        return f"v[{96+(ct*4+jj)*4}:{96+(ct*4+jj)*4+3}]"
    for ct in range(4):
        for jj in range(4):
            for lo in range(2):
                base = 96 + (ct*4 + jj)*4 + lo*2
                off = (32*jj + 16*lo)*128 + (ct >> 1)*64 + (ct & 1)*8
                a(f"ds_read_b64_tr_b16 v[{base}:{base+1}], v12 offset:{off}")
        a("s_waitcnt lgkmcnt(0)")
    a(f"s_branch {L('wdone')}")
    a.label(L('wv_only'))
    a("s_cmp_eq_u32 s21, 7"); a(f"s_cbranch_scc0 {L('wv2')}")
    for t_ in range(2 if NT_ else 1):
        a(f"global_load_dwordx4 v[48:51], v9, {RB(t_)} sc1"); a(f"global_load_dwordx4 v[52:55], v8, {RB(t_)} sc1")
    a(f"global_load_dwordx2 v[58:59], v56, s[14:15] offset:{DBG_VOTE} sc1"); a("global_load_dword v61, v57, s[14:15] sc1")
    a.label(L('wv2'))
    a("s_waitcnt vmcnt(0)"); vread()
    a.label(L('wdone'))
    pstamp(a, prof, 89)
    if "span" in OPT:
        a("s_and_b32 s98, s20, 3"); a("s_xor_b32 s99, s21, 7"); a("s_or_b32 s98, s98, s99"); a("s_cmp_lg_u32 s98, 0"); a(f"s_cbranch_scc1 {L('nosp0')}")
        a("s_memrealtime s[98:99]"); a("s_waitcnt lgkmcnt(0)"); a("v_mov_b32 v63, s98"); a("v_mov_b32 v62, 0")
        a("s_mov_b64 exec, 1"); a("global_atomic_umax v62, v63, s[14:15] offset:20 sc1"); a("s_mov_b64 exec, -1")
        a.label(L('nosp0'))

    a("s_cmp_eq_u32 s21, 7"); a(f"s_cbranch_scc0 {L('sync1')}")
    a.label(L('clrw'))
    a("v_readfirstlane_b32 s36, v58"); a("v_readfirstlane_b32 s37, v59")
    a("s_and_b32 s42, s36, 0xffff"); a("s_add_u32 s42, s42, s37"); a("s_cmp_eq_u32 s42, 256"); a(f"s_cbranch_scc1 {L('clrok')}")
    a("s_sleep 8")
    a(f"global_load_dwordx2 v[58:59], v56, s[14:15] offset:{DBG_VOTE} sc1"); a("s_waitcnt vmcnt(0)")
    a("global_load_dword v61, v57, s[14:15] sc1"); a("s_waitcnt vmcnt(0)")
    guard(a, L('clrw'), FAIL)
    a.label(L('clrok'))
    a("v_cmp_gt_u32 vcc, 32, v61"); a(f"s_cbranch_vccz {L('cntok')}")
    a("global_load_dword v61, v57, s[14:15] sc1"); a("s_waitcnt vmcnt(0)")
    a.label(L('cntok'))
    a("s_lshr_b32 s36, s36, 16"); a("s_cmp_gt_u32 s36, 64"); a("s_cselect_b32 s25, 1, 0")
    a("v_mov_b32 v60, s25"); a(f"v_mov_b32 v56, {L_PARW}")
    a("ds_write_b64 v56, v[60:61]")
    a.label(L('sync1'))

    a("s_and_b32 s36, s21, 3"); a("s_lshl_b32 s36, s36, 11"); a("s_lshr_b32 s42, s21, 2"); a("s_lshl_b32 s42, s42, 14"); a("s_add_u32 s36, s36, s42")
    a("v_add_u32 v1, s36, v6")
    a("v_and_b32 v2, 8, v0"); a("v_cmp_eq_u32 vcc, 0, v2"); a("v_mov_b32 v2, 0xeeee"); a("v_mov_b32 v3, 0x4444"); a("s_nop 1")
    a("v_cndmask_b32 v2, v2, v3, vcc")
    a("s_mul_i32 s36, s21, 3072"); a("v_add_u32 v3, s36, v6")
    a("s_mov_b32 s22, 0"); a("s_mov_b32 s51, 1")
    a("s_waitcnt vmcnt(0) lgkmcnt(0)"); a("s_barrier")
    if kvwait and PAR["RPF"]:
        a("s_load_dwordx8 s[68:75], s[0:1], 0")
        a("s_lshl_b32 s36, s20, 3"); a("s_add_u32 s36, s36, s21"); a("v_lshlrev_b32 v24, 2, v6"); a("s_mov_b32 m0, 0x10000")
        a("s_waitcnt lgkmcnt(0)")
        parts = [(74, 1 << 20, 3, 0, 3), (68, 0, 4, 0, 4), (70, 0, 6, 0, 4), (70, 0, 6, 4, 2), (72, 0, 2, 0, 2)] + ([(4, 0, 8, 0, 4), (4, 0, 8, 4, 4)] if PAR["RPF"] == 2 else [])
        for p, fix, per, first, nkb in parts:
            a(f"s_mul_i32 s42, s36, {per*1024}"); a(f"s_add_u32 s42, s42, {fix + first*1024}")
            a(f"v_min_u32 v25, {nkb*1024 - 64}, v24"); a("v_add_u32 v25, s42, v25")
            a(f"global_load_lds_dword v25, s[{p}:{p+1}]")
    for i in range(8): a(f"v_min_u32 v{16+i}, -2, v{16+i}")
    a(f"v_mov_b32 v24, {L_PARW}"); a("ds_read_b64 v[24:25], v24"); a("s_waitcnt lgkmcnt(0)")
    a("v_readfirstlane_b32 s25, v24"); a("v_readfirstlane_b32 s23, v25")
    a("s_and_b32 s25, s25, 1")
    if "safe" in OPT: a("s_mov_b32 s23, 0")
    a("s_lshl_b32 s36, s25, 13"); a("s_add_u32 s26, s16, s36"); a("s_addc_u32 s27, s17, 0")
    a(f"s_mov_b32 s42, {WS_PART1}"); near(a, 40, "s42")
    PB = lambda tag: "s[40:41]" if (tag and PAR["DROP"]) else "s[26:27]"
    a(f"s_mov_b32 s42, {WS_MEMS}"); near(a, 28, "s42")
    a("s_lshr_b32 s38, s18, 1"); a("s_lshl_b32 s38, s38, 14"); a("s_and_b32 s36, s18, 1"); a("s_lshl_b32 s36, s36, 12"); a("s_add_u32 s38, s38, s36"); a(f"s_add_u32 s38, s38, {WS_KMVM}")
    near(a, 30, "s38")
    if "diag" in OPT: pstamp(a, 3, 98)
    if prof:
        for k in range(8): a(f"s_mov_b32 s{60+k}, 0")
        a("s_memtime s[56:57]"); a("s_waitcnt lgkmcnt(0)"); a("s_mov_b32 s59, s56")
        pstamp(a, prof, 60)
    a("s_cmp_lt_u32 s21, 4"); a(f"s_cbranch_scc1 {L('setup_vo')}")
    a("s_cmp_eq_u32 s21, 6"); a(f"s_cbranch_scc1 {L('setup_sm')}")

    def head_word(val):
        a(f"v_mov_b32 v95, {val}")
        a("s_xor_b32 s36, s25, 1"); a("s_lshl_b32 s36, s36, 13"); a("s_add_u32 s36, s36, s45"); a(f"s_add_u32 s36, s36, {WS_HW}")
        a("v_mov_b32 v94, s36")
        a("s_mov_b64 exec, 1")
        a("global_store_dword v94, v95, s[16:17] sc1")
        a("s_mov_b64 exec, -1")
    def zero_acc():
        for i in range(24): a(f"v_mov_b32 v{24+i}, 0")
    def pair(p): return [(2*p, 0), (2*p+1, 0), (2*p, 1), (2*p+1, 1)]
    def sm(tt, ks, mb):
        dd = 24 + tt*4; b = (tt*2 + ks)*8
        a(f"v_smfmac_f32_16x16x64_bf16 v[{dd}:{dd+3}], v[{mb+4*ks}:{mb+3+4*ks}], a[{b}:{b+7}], v2")
    def cv(p, i): a(f"v_cvt_pk_bf16_f32 v{24+8*p+i}, v{24+8*p+2*i}, v{25+8*p+2*i}")
    def mload(b):
        a(f"global_load_dwordx4 v[{b}:{b+3}], v1, s[28:29] sc1")
        a(f"global_load_dwordx4 v[{b+4}:{b+7}], v1, s[28:29] offset:1024 sc1")
    def p1(name, mid=None):
        backoff(a, PAR["MDEL"])
        a.label(L(name))
        mload(16)
        a("s_waitcnt vmcnt(0)")
        a.label(L(name + '_in'))
        fs(a, prof, 0, 5)
        chk = ["v_max3_u32 v0, v16, v17, v18", "v_max3_u32 v7, v19, v20, v21", "v_max3_u32 v0, v0, v22, v23", "v_max_u32 v0, v0, v7", "v_cmp_eq_u32 vcc, -1, v0"]
        for i, (t, k) in enumerate(pair(0)):
            sm(t, k, 16)
            for c in chk[2*i:2*i+2]: a(c)
            if i == 2: a(f"s_cbranch_vccnz {L(name + '_retry')}")
        stamp(a, prof, 0)
        fs(a, prof, 1, 5)
        for t, k in pair(1): sm(t, k, 16)
        a("s_nop 3")
        for i, (t, k) in enumerate(pair(2)):
            cv(0, i)
            if i == 3: a("ds_write_b128 v3, v[24:27]")
            sm(t, k, 16)
        fs(a, prof, 3, 5)
        for i in range(4): cv(1, i)
        a("ds_write_b128 v3, v[32:35] offset:1024")
        fs(a, prof, 4, 5)
        if PAR["SPLITB"] == 2 and not mid:
            a("s_waitcnt lgkmcnt(0)"); a("s_barrier"); a("s_nop 0")
            for i in range(4): cv(2, i)
            a("ds_write_b128 v3, v[40:43] offset:2048")
            a("s_waitcnt lgkmcnt(0)")
        else:
            a("s_nop 2")
            for i in range(4): cv(2, i)
            a("ds_write_b128 v3, v[40:43] offset:2048")
            if PAR["SPLITB"]:
                a("s_waitcnt lgkmcnt(1)"); a("s_barrier")
                if mid:
                    mid(); a("s_waitcnt lgkmcnt(8)")
                else:
                    a("s_waitcnt lgkmcnt(0)")
            else:
                a("s_waitcnt lgkmcnt(0)")
        fs(a, prof, 6, 5)
        a("s_barrier")
        if mid and not PAR["SPLITB"]: mid()
        fs(a, prof, 7, 5)
        if prof == 5: a("s_waitcnt lgkmcnt(0)")
        stamp(a, prof, 1)
    def p1_retry(name):
        a.label(L(name + '_retry'))
        a("s_nop 7")
        for i in range(8): a(f"v_mov_b32 v{24+i}, 0")
        guard(a, L(name), FAIL)

    def step_adv():
        zero_acc()
        a("s_add_u32 s22, s22, 1")
        a("s_add_u32 s28, s28, 0x8000"); a("s_addc_u32 s29, s29, 0")
        a("s_add_u32 s38, s38, 0x40000"); near(a, 30, "s38")
    def step_end():
        step_adv()
        a("s_waitcnt vmcnt(0) lgkmcnt(0)")
        a("s_barrier")
        stamp(a, prof, 7)

    a("s_sub_u32 s37, s21, 4"); a("s_min_u32 s37, s37, 2")
    a("s_lshl_b32 s36, s37, 10"); a("v_add_u32 v4, s36, v6")
    a("v_and_b32 v48, 1, v0"); a("v_lshlrev_b32 v48, 4, v48"); a("v_mov_b32 v49, 0x3f80"); a("v_lshlrev_b32 v48, v48, v49")
    a("v_bfe_u32 v49, v0, 3, 1"); a("v_bfe_u32 v50, v0, 1, 1"); a("v_lshl_add_u32 v49, v49, 1, v50")
    a("v_lshrrev_b32 v50, 2, v0"); a("v_xor_b32 v50, v50, v0"); a("v_and_b32 v50, 4, v50"); a("v_add_u32 v49, v49, v50")
    for q in range(4):
        a(f"v_cmp_eq_u32 vcc, {q}, v49"); a("s_nop 1"); a(f"v_cndmask_b32 v{84+q}, 0, v48, vcc")
    a("v_and_b32 v48, 7, v0"); a("v_lshlrev_b32 v48, 4, v48"); a("v_and_b32 v49, 8, v0"); a("v_lshrrev_b32 v50, 4, v0")
    a("v_add_u32 v51, v48, v49"); a("v_lshl_add_u32 v10, v50, 7, v51")
    a("s_and_b32 s46, s19, 1"); a("s_lshl_b32 s46, s46, 1"); a("s_add_u32 s46, s46, s37")
    a("s_add_u32 s36, s39, 4"); a("s_cmp_eq_u32 s37, 2"); a("s_cselect_b32 s36, s36, s46"); a("s_lshl_b32 s36, s36, 9"); a("v_add_u32 v10, s36, v10")
    a("v_lshl_add_u32 v5, v50, 8, v51"); a("s_lshl_b32 s36, s46, 10"); a("s_lshr_b32 s42, s19, 1"); a("s_lshl_b32 s42, s42, 7"); a("s_add_u32 s36, s36, s42"); a("v_add_u32 v5, s36, v5")
    zero_acc()
    for i in range(4): a(f"v_mov_b32 v{144+i}, -1")
    a(f"s_setprio {PAR['PPRIO']}")
    a("s_cmp_eq_u32 s21, 7"); a(f"s_cbranch_scc1 {L('setup_m')}")
    def rd8():
        for w in range(8): a(f"ds_read_b128 v[{48+4*w}:{51+4*w}], v4 offset:{3072*w}")
    def reduce8():
        for w in range(8):
            a(f"s_waitcnt lgkmcnt({7-w})")
            a(f"v_mfma_f32_16x16x32_bf16 v[80:83], v[{48+4*w}:{51+4*w}], v[84:87], " + ("0" if w == 0 else "v[80:83]"))
    def pack_tag(tag, last):
        if last:
            a(f"s_cmp_eq_u32 s22, {NSTEP-1}"); a(f"s_cbranch_scc1 {L(last)}")
        a("s_cmp_lt_u32 s23, 32")
        a("s_nop 4" if last else "s_nop 6")
        a("v_cvt_pk_bf16_f32 v88, v80, v81"); a("v_cvt_pk_bf16_f32 v89, v82, v83")
        for i in range(2): a(f"v_min_u32 v{90+i}, -2, v{88+i}" if NT_ else f"v_or_b32 v{90+i}, 1, v{88+i}" if tag else f"v_and_b32 v{90+i}, -2, v{88+i}")
    def pub2(tag, fl):
        a(f"global_store_dwordx2 v5, v[90:91], {RB(tag)} {fl}")
        if NT_: a(f"global_store_dwordx2 v5, v[144:145], {RB(tag ^ 1)} {fl}")
    def pub1(tag, fl):
        a(f"global_store_dword v5, v90, {RB(tag)} {fl}"); a(f"global_store_dword v5, v91, {RB(tag)} offset:128 {fl}")
        if NT_: a(f"global_store_dword v5, v144, {RB(tag ^ 1)} {fl}"); a(f"global_store_dword v5, v144, {RB(tag ^ 1)} offset:128 {fl}")
    a("v_add_u32 v11, s44, v6")
    a("v_and_b32 v15, 7, v0"); a("v_lshlrev_b32 v15, 4, v15"); a("v_bfe_u32 v48, v0, 4, 1"); a("v_lshl_add_u32 v15, v48, 3, v15"); a("v_add_u32 v15, s45, v15")
    a("v_and_b32 v48, 1, v0"); a("v_lshlrev_b32 v48, 4, v48"); a("v_mov_b32 v49, 0x3f80"); a("v_lshlrev_b32 v48, v48, v49")
    a("v_bfe_u32 v49, v0, 1, 3")
    for q in range(4):
        a(f"v_cmp_eq_u32 vcc, {q}, v49"); a("s_nop 1"); a(f"v_cndmask_b32 v{92+q}, 0, v48, vcc")
    a(f"s_mul_i32 s54, s37, {WS_VX - WS_KX}"); a(f"s_mul_i32 s55, s37, {L_VX - L_KX}"); a(f"s_add_u32 s55, s55, {L_KX}")
    a("s_lshl_b32 s36, s18, 14"); a("s_add_u32 s54, s54, s36"); a(f"s_add_u32 s54, s54, {WS_KX}"); a("v_add_u32 v12, 0x1000, v6")
    DR = PAR["DR"]
    rsets = [96, 112, 128][:DR]
    def rload(b):
        for i in range(4): a(f"global_load_dwordx4 v[{b+4*i}:{b+3+4*i}], v11, {PB(tag)} offset:{1024*i} sc1")
    a(f"s_branch {L('v0_in')}")
    a.label(L('v_loop'))
    for tag in range(2):
        n = f"v{tag}"
        p1(n, rd8)
        reduce8()
        pack_tag(tag, 'last_pub' if tag == (NSTEP - 1) & 1 else None)
        a(f"s_cbranch_scc1 {L(n + '_wt')}")
        pub2(tag, "")
        a.label(L(n + '_pd'))
        if tag == 0:
            a("s_cmp_eq_u32 s22, 0"); a(f"s_cbranch_scc1 {L('v_first')}")
            a.label(L('v_fj'))
        stamp(a, prof, 2)
        if PAR["DDEL"]:
            a("s_add_u32 s53, s22, 2"); a("s_min_u32 s53, s53, 63"); a("s_lshl_b32 s53, s53, 19"); a("s_add_u32 s53, s53, s54"); near(a, 48, "s53", kv=True)
            a(f"s_add_u32 m0, s55, {tag*8192}")
            a(f"s_sleep {PAR['DDEL']}")
            for jj in range(4): a(f"global_load_lds_dwordx4 v6, s[48:49] offset:{jj*1024} sc1")
            a(f"s_add_u32 m0, s55, {tag*8192 + 4096}"); a("s_nop 0")
            for jj in range(4): a(f"global_load_lds_dwordx4 v12, s[48:49] offset:{jj*1024} sc1")
        a("v_min_u32 v88, -2, v88"); a("v_min_u32 v89, -2, v89")
        a("s_waitcnt vmcnt(0)"); a("s_barrier")
        a("s_cmp_lt_u32 s19, 2"); a(f"s_cbranch_scc1 {L(n + '_nq')}")
        if "nopers" not in OPT: a("global_store_dwordx2 v10, v[88:89], s[30:31] sc1")
        a.label(L(n + '_nq'))
        a("s_cmp_eq_u32 s21, 4"); a(f"s_cbranch_scc1 {L(n + '_red')}")
        if prof == 3:
            a("s_memrealtime s[56:57]"); a("s_memtime s[92:93]"); a("s_waitcnt lgkmcnt(0)"); a("s_mov_b32 m0, s22"); a("s_nop 0"); a("v_writelane_b32 v150, s56, m0"); a("v_writelane_b32 v151, s92, m0")
        step_adv()
        if PAR["BDEL"]: a(f"s_sleep {PAR['BDEL']}")
        a("s_waitcnt vmcnt(0)")
        a(f"s_branch {L(n + '_end')}")
        a.label(L(n + '_red'))
        step_adv()
        backoff(a, PAR["RDEL"])
        stamp(a, prof, 5, 31)
        for d in range(DR - 1):
            rload(rsets[d])
            backoff(a, PAR["RGAP"])
        a.label(L(n + '_rp'))
        for d in range(DR):
            rload(rsets[(d + DR - 1) % DR])
            a(f"s_waitcnt vmcnt({4*(DR-1)})")
            b = rsets[d]
            mf = [f"v_mfma_f32_16x16x32_bf16 v[64:67], v[92:95], v[{b+4*i}:{b+3+4*i}], " + ("0" if i == 0 else "v[64:67]") for i in range(4)]
            tagchk(a, list(range(b, b + 16)), tag if not PAR["DROP"] else None, 73, 72, mf)
            a(f"s_cbranch_vccz {L(n + '_rok')}" if d < DR - 1 else f"s_cbranch_vccnz {L(n + '_rr')}")
        a.label(L(n + '_rok'))
        a("s_nop 3")
        for i in range(4): a(f"v_add_f32_dpp v{72+i}, v{64+i}, v{64+i} row_ror:8 row_mask:0xf bank_mask:0xf")
        a("s_mov_b64 exec, 0x00ff00ff")
        a("v_cvt_pk_bf16_f32 v76, v72, v73"); a("v_cvt_pk_bf16_f32 v77, v74, v75")
        a("v_min_u32 v76, -2, v76"); a("v_min_u32 v77, -2, v77")
        a("global_store_dwordx2 v15, v[76:77], s[28:29] sc1")
        a("s_mov_b64 exec, -1")
        if PAR["DROP"]:
            for i in range(4): a(f"global_store_dwordx4 v11, v[144:147], {PB(tag)} offset:{1024*i} sc1")
        stamp(a, prof, 6, 31)
        if PAR["MACK"]: a("s_waitcnt vmcnt(0)")
        a.label(L(n + '_end'))
        a("s_barrier")
        stamp(a, prof, 7)
    a(f"s_branch {L('v_loop')}")
    for tag in range(2):
        n = f"v{tag}"
        p1_retry(n)
        a.label(L(n + '_wt')); pub2(tag, "sc1"); a(f"s_branch {L(n + '_pd')}")
        a.label(L(n + '_rr')); guard(a, L(n + '_rp'), FAIL)

    a.label(L('v_first')); a("s_barrier"); a("s_barrier"); a(f"s_branch {L('v_fj')}")

    a.label(L('setup_m'))
    a("v_lshrrev_b32 v5, 5, v0"); a("v_lshl_add_u32 v5, v5, 8, v48"); a("v_bfe_u32 v50, v0, 3, 2"); a("v_lshl_add_u32 v5, v50, 2, v5")
    a("s_lshl_b32 s36, s39, 9"); a("s_add_u32 s36, s36, 4096"); a("v_add_u32 v5, s36, v5")
    a("v_mov_b32 v93, 0")
    def progress(tagname):
        a("s_cmp_eq_u32 s20, 0"); a(f"s_cbranch_scc0 {L(tagname)}")
        a("v_mov_b32 v92, s22")
        a("s_mov_b64 exec, 1")
        a(f"global_store_dword v93, v92, s[14:15] offset:{DBG_PROG} sc1")
        a("s_mov_b64 exec, -1")
        a.label(L(tagname))
    a(f"s_branch {L('m0_in')}")
    a.label(L('m_loop'))
    for tag in range(2):
        n = f"m{tag}"
        p1(n)
        rd8(); reduce8()
        pack_tag(tag, 'fin_m' if tag == (NSTEP - 1) & 1 else None)
        a(f"s_cbranch_scc1 {L(n + '_wt')}")
        pub1(tag, "")
        a.label(L(n + '_pd'))
        if tag == 0:
            a("s_cmp_eq_u32 s22, 0"); a(f"s_cbranch_scc1 {L('m_first')}")
            a.label(L('m_fj'))
        a("v_min_u32 v88, -2, v88"); a("v_min_u32 v89, -2, v89")
        a("s_waitcnt vmcnt(0)"); a("s_barrier")
        if "nopers" not in OPT: a("global_store_dwordx2 v10, v[88:89], s[30:31] sc1")
        progress(n + '_pg')
        if kvwait:
            a("s_add_u32 s53, s22, 3"); a("s_min_u32 s53, s53, 63"); kv_tile(a, "s53", "s53", "s36")
            a("s_cmp_lt_u32 s53, s51"); a(f"s_cbranch_scc1 {L(n + '_kvh')}")
            kv_poll(n + '_kv', "s53")
            a("s_add_u32 s51, s53, 1")
            a.label(L(n + '_kvh'))
        step_end()
        a(f"s_cmp_ge_u32 s22, {NSTEP - 3}"); a(f"s_cbranch_scc1 {L(n + '_hp')}")
        a.label(L(n + '_hd'))
    a(f"s_branch {L('m_loop')}")
    for tag in range(2):
        n = f"m{tag}"
        p1_retry(n)
        a.label(L(n + '_wt'))
        pub1(tag, "sc1"); a(f"s_branch {L(n + '_pd')}")
        a.label(L(n + '_hp'))
        a("s_sub_u32 s36, s22, 1"); head_word("s36"); a(f"s_branch {L(n + '_hd')}")
    a.label(L('m_first'))
    if kvwait:
        a("s_mov_b32 s53, 0"); kv_poll('kv0', "s53")
    for sg in range(2):
        a(f"s_mov_b32 s53, {sg}"); kv_bases("s53")
        a(f"s_mov_b32 s50, {L_VX + sg*8192}"); xdma("s[34:35]", "s50")
        a(f"s_mov_b32 s50, {L_KX + sg*8192}"); xdma("s[48:49]", "s50")
    if PAR.get("RDLY"): a("s_sleep 110")
    a("s_waitcnt vmcnt(16)"); a("s_barrier"); a("s_barrier")
    pstamp(a, prof, 60)
    if "span" in OPT:
        a("s_and_b32 s98, s20, 15"); a("s_cmp_lg_u32 s98, 0"); a(f"s_cbranch_scc1 {L('nosp')}")
        a("s_memrealtime s[98:99]"); a("s_waitcnt lgkmcnt(0)"); a("v_mov_b32 v17, s98"); a("v_mov_b32 v16, 0")
        a("s_mov_b64 exec, 1"); a("global_atomic_umax v16, v17, s[14:15] offset:16 sc1"); a("s_mov_b64 exec, -1")
        a.label(L('nosp'))
    a("s_waitcnt vmcnt(0)")
    a(f"s_branch {L('m_fj')}")
    a.label(L('fin_m'))
    a("s_nop 7")
    a("v_cvt_pk_bf16_f32 v88, v80, v81"); a("v_cvt_pk_bf16_f32 v89, v82, v83")
    a("v_min_u32 v88, -2, v88"); a("v_min_u32 v89, -2, v89")
    a("global_store_dwordx2 v10, v[88:89], s[30:31] sc1")
    progress('pg_last')
    a(f"s_branch {L('fin')}")

    a.label(L('setup_sm'))
    a(f"v_add_u32 v14, {L_KX}, v6")
    a("v_and_b32 v48, 7, v0"); a("v_lshrrev_b32 v49, 4, v0"); a("v_lshl_add_u32 v9, v49, 3, v48"); a("v_lshlrev_b32 v9, 4, v9"); a("v_and_b32 v50, 8, v0"); a("v_add_u32 v9, v9, v50")
    a("v_and_b32 v49, 1, v49"); a("v_lshl_add_u32 v10, v49, 3, v48"); a("v_lshlrev_b32 v10, 4, v10")
    a("v_lshrrev_b32 v49, 5, v0"); a("v_lshl_add_u32 v10, v49, 2, v10"); a("v_lshrrev_b32 v50, 2, v50"); a("v_add_u32 v10, v10, v50")
    a("s_mov_b32 s46, 0x3e0293ee")
    for i in range(4): a(f"v_mov_b32 v{84+i}, 0")
    a(f"ds_write_b128 v6, v[84:87] offset:{L_ZERO}"); a(f"ds_write_b128 v6, v[84:87] offset:{L_ZERO + 1024}")
    def k_load():
        for i in range(8): a(f"ds_read_b128 v[{96+4*i}:{99+4*i}], v14 offset:{1024*i}")
        a("v_xor_b32 v14, 0x2000, v14")
    zero_acc()
    a("s_setprio 2")
    def xload(b):
        for jj in range(4): a(f"global_load_dwordx4 v[{b+4*jj}:{b+3+4*jj}], v6, {RB(tag)} offset:{1024*jj} sc1")
    def s_mfma(b, t, jj):
        X = f"v[{b+4*jj}:{b+3+4*jj}]"
        d = 64 + 4*t
        A = X if t == 2 else f"v[{96+(t*4+jj)*4}:{99+(t*4+jj)*4}]"
        return f"v_mfma_f32_16x16x32_bf16 v[{d}:{d+3}], {A}, {X}, " + (f"v[{d}:{d+3}]" if jj else "0")
    def s_head(b, tag):
        tagchk(a, list(range(b, b + 16)), None if NT_ else tag, 15, 16, [s_mfma(b, 2, jj) for jj in range(4)])
    dpp = "row_shr:8 row_mask:0xf bank_mask:0xc"
    def s_rest(b):
        for jj in range(4): a(s_mfma(b, 1, jj))
        a(s_mfma(b, 0, 0))
        a(f"v_mov_b32_dpp v72, v73 {dpp}"); a(f"v_mov_b32_dpp v74, v75 {dpp}")
        a(s_mfma(b, 0, 1)); a(s_mfma(b, 0, 2))
        a("v_permlane32_swap_b32 v72, v74")
        a(s_mfma(b, 0, 3))
    XD = PAR["XD"]
    a(f"s_branch {L('s0_in')}")
    a.label(L('s_loop'))
    for tag in range(2):
        n = f"s{tag}"
        p1(n)
        if tag == (NSTEP - 1) & 1:
            a(f"s_cmp_eq_u32 s22, {NSTEP-1}"); a(f"s_cbranch_scc1 {L('fin')}")
        if tag == 0:
            a("s_cmp_eq_u32 s22, 0"); a(f"s_cbranch_scc1 {L('s_first')}")
            pass
        backoff(a, PAR["XDEL"])
        if tag == 0: a.label(L('s_fj'))
        if XD == 2:
            xload(48)
            backoff(a, PAR["XGAP"])
        a.label(L(n + '_xp'))
        xload(128 if XD == 2 else 48)
        a(f"s_waitcnt vmcnt({4*(XD-1)})")
        fs(a, prof, 0, 4)
        s_head(48, tag)
        a(f"s_cbranch_vccnz {L(n + '_xr')}")
        stamp(a, prof, 2)
        fs(a, prof, 1, 4)
        s_rest(48)
        a.label(L(n + '_xj'))
        fs(a, prof, 2, 4)
        a("s_nop 0")
        a("v_max_f32_dpp v16, v74, v74 row_ror:8 row_mask:0xf bank_mask:0xf")
        a("v_max3_f32 v16, v16, v68, v69"); a("v_max3_f32 v16, v16, v70, v71")
        a("s_nop 3")
        a("v_max3_f32 v16, v16, v64, v65"); a("v_max3_f32 v16, v16, v66, v67")
        fs(a, prof, 3, 4)
        a("v_mov_b32 v17, v16"); a(f"v_mov_b32_dpp v64, v68 {dpp}"); a(f"v_mov_b32_dpp v65, v69 {dpp}")
        a("v_permlane16_swap_b32 v16, v17"); a("v_max_f32 v16, v16, v17")
        a("v_mov_b32 v17, v16"); a(f"v_mov_b32_dpp v66, v70 {dpp}"); a(f"v_mov_b32_dpp v67, v71 {dpp}")
        a("v_permlane32_swap_b32 v16, v17"); a("v_max_f32 v16, v16, v17")
        fs(a, prof, 4, 4)
        a("v_mul_f32 v16, s46, v16")
        a("s_nop 1")
        a(f"v_mov_b32_dpp v16, v16 {dpp}")
        for rg in (74, 64, 65, 66, 67): a(f"v_fma_f32 v{rg}, v{rg}, s46, -v16")
        a("v_exp_f32 v74, v74"); a("v_exp_f32 v64, v64")
        a("v_cvt_pk_bf16_f32 v82, v74, v74")
        a("v_exp_f32 v65, v65")
        a(f"ds_write_b16 v10, v82 offset:{L_P + 1024}")
        a("v_exp_f32 v66, v66")
        a(f"ds_write_b16 v10, v82 offset:{L_P + 1280}")
        a("v_exp_f32 v67, v67")
        a("v_cvt_pk_bf16_f32 v80, v64, v65")
        a("v_cvt_pk_bf16_f32 v81, v66, v67")
        a(f"ds_write_b64 v9, v[80:81] offset:{L_P}")
        fs(a, prof, 5, 4)
        a("s_waitcnt lgkmcnt(0)"); fs(a, prof, 6, 4); a("s_barrier"); fs(a, prof, 7, 4)
        stamp(a, prof, 3)
        k_load()
        step_end()
    a(f"s_branch {L('s_loop')}")
    for tag in range(2):
        n = f"s{tag}"
        p1_retry(n)
        a.label(L(n + '_xr'))
        if XD == 2:
            xload(48)
            a("s_waitcnt vmcnt(4)")
            s_head(128, tag)
            a(f"s_cbranch_vccnz {L(n + '_xg')}")
            stamp(a, prof, 2)
            s_rest(128)
            a(f"s_branch {L(n + '_xj')}")
            a.label(L(n + '_xg'))
        guard(a, L(n + '_xp'), FAIL)

    a.label(L('s_first')); a("s_barrier"); k_load(); a("s_waitcnt lgkmcnt(0)"); a("s_barrier"); a(f"s_branch {L('s_fj')}")

    a.label(L('setup_vo'))
    a("v_add_u32 v8, 0x1000, v6"); a("v_lshrrev_b32 v9, 4, v0")
    a("s_lshl_b32 s36, s19, 5"); a("s_lshl_b32 s42, s21, 3"); a("s_add_u32 s36, s36, s42")
    a("v_add_u32 v9, s36, v9"); a("v_bfe_u32 v11, v0, 3, 1"); a("v_lshl_add_u32 v9, v11, 2, v9")
    a("v_and_b32 v11, 1, v9"); a("v_lshlrev_b32 v11, 12, v11"); a("v_lshrrev_b32 v9, 1, v9"); a("v_lshl_add_u32 v9, v9, 14, v11")
    a("v_and_b32 v11, 7, v0"); a("v_lshl_add_u32 v9, v11, 4, v9"); a("s_lshl_b32 s36, s18, 7"); a("v_add_u32 v9, s36, v9")
    a("v_lshrrev_b32 v12, 4, v0"); a("v_and_b32 v13, 7, v0"); a("v_lshl_add_u32 v12, v12, 3, v13"); a("v_lshlrev_b32 v12, 4, v12"); a(f"v_add_u32 v12, {L_P}, v12"); a(f"v_mov_b32 v11, {L_ZERO}")
    a("v_and_b32 v13, 8, v0"); a("v_cmp_eq_u32 vcc, 0, v13"); a("s_nop 1")
    a("v_cndmask_b32 v13, v12, v11, vcc"); a("v_cndmask_b32 v12, v11, v12, vcc")
    a(f"v_add_u32 v14, {L_VX}, v6")
    a("s_lshr_b32 s36, s21, 1"); a(f"s_mul_i32 s54, s36, {WS_VX - WS_KX}"); a(f"s_mul_i32 s55, s36, {L_VX - L_KX}")
    a("s_and_b32 s36, s21, 1"); a("s_lshl_b32 s36, s36, 12"); a("s_add_u32 s54, s54, s36"); a("s_add_u32 s55, s55, s36"); a(f"s_add_u32 s55, s55, {L_KX}")
    a("s_lshl_b32 s36, s18, 14"); a("s_add_u32 s54, s54, s36"); a(f"s_add_u32 s54, s54, {WS_KX}")
    def u_load():
        for i in range(8): a(f"ds_read_b128 v[{16+4*i}:{19+4*i}], v14 offset:{1024*i}")
        a("v_xor_b32 v14, 0x2000, v14")
    def u_half(hf):
        for jj in range(4):
            for c2 in range(2):
                for kt in range(2):
                    d = 64 + (c2*2 + kt)*4
                    A = 16 + (kt*4 + jj)*4
                    a(f"v_mfma_f32_16x16x32_bf16 v[{d}:{d+3}], v[{A}:{A+3}], {wo_reg(2*hf+c2, jj)}, " + ("0" if jj == 0 else f"v[{d}:{d+3}]"))
        a("s_nop 7")
        for c2 in range(2):
            for kt in range(2):
                d = 64 + (c2*2 + kt)*4
                u = 80 + (2*hf + c2)*4 + kt*2
                a(f"v_cvt_pk_bf16_f32 v{u}, v{d}, v{d+1}"); a(f"v_cvt_pk_bf16_f32 v{u+1}, v{d+2}, v{d+3}")
    def vo_prep(tag, ahead):
        for i in range(4): a(f"v_mov_b32 v{56+i}, 0x3f803f80")
        for i in range(4): a(f"v_mov_b32 v{60+i}, 0x3f003f00")
        for i in range(16): a(f"v_mov_b32 v{64+i}, 0")
        a(f"s_add_u32 s53, s22, {2 + ahead}"); a("s_min_u32 s53, s53, 63"); a("s_lshl_b32 s53, s53, 19"); a("s_add_u32 s53, s53, s54"); near(a, 48, "s53", kv=True)
        a(f"s_add_u32 m0, s55, {tag*8192}")
    vo_prep(0, 0)
    zero_acc()
    if PAR["PRIO"]: a("s_setprio 1")
    a(f"s_branch {L('o0_in')}")
    a.label(L('o_loop'))
    for tag in range(2):
        n = f"o{tag}"
        p1(n)
        if tag == (NSTEP - 1) & 1:
            a(f"s_cmp_eq_u32 s22, {NSTEP-1}"); a(f"s_cbranch_scc1 {L('fin')}")
        backoff(a, PAR["VDEL"])
        a.label(L(n + '_vp'))
        for k in range(2): a(f"global_load_dwordx4 v[{48+4*k}:{51+4*k}], v8, {RB(tag)} offset:{1024*k} sc1")
        a("s_waitcnt vmcnt(0)")
        tagchk(a, list(range(48, 56)), None if NT_ else tag, 17, 16)
        a(f"s_cbranch_vccnz {L(n + '_vr')}")
        for k in range(2):
            for ct in range(4):
                b = 96 + (ct*4 + 2*k)*4
                a(f"v_smfmac_f32_16x16x64_bf16 v[{64+4*ct}:{67+4*ct}], v[{48+4*k}:{51+4*k}], v[{b}:{b+7}], v2")
                if PAR["DMI"] and tag == 1 and k == PAR["DMI"] - 1: a(f"global_load_lds_dwordx4 v6, s[48:49] offset:{ct*1024} sc1")
        a("s_nop 4")
        for ct in range(4):
            if ct == 3: a("s_nop 1")
            t = 24 + (ct & 1)*4 + (ct >> 1)*2
            a(f"v_cvt_pk_bf16_f32 v{t}, v{64+4*ct}, v{65+4*ct}"); a(f"v_cvt_pk_bf16_f32 v{t+1}, v{66+4*ct}, v{67+4*ct}")
        if tag == 0:
            a("s_cmp_eq_u32 s22, 0"); a(f"s_cbranch_scc1 {L('o_first')}")
            a.label(L('o_fj'))
        if not PAR["DDEL"] and not (PAR["DMI"] and tag == 1) and "nodma" not in OPT:
            for jj in range(4): a(f"global_load_lds_dwordx4 v6, s[48:49] offset:{jj*1024} sc1")
        stamp(a, prof, 3)
        a("s_barrier")
        a("ds_read_b64 v[36:37], v12 offset:1024"); a("ds_read_b64 v[38:39], v13 offset:1024")
        a("ds_read_b128 v[32:35], v12"); a("ds_read_b128 v[48:51], v13")
        a("s_waitcnt lgkmcnt(2)")
        stamp(a, prof, 4)
        a("v_mfma_f32_16x16x32_bf16 v[40:43], v[60:63], v[36:39], 0")
        a("v_mfma_f32_16x16x32_bf16 v[64:67], v[24:27], v[36:39], 0")
        a("s_waitcnt lgkmcnt(0)")
        a("v_or_b32 v44, v32, v48"); a("v_or_b32 v45, v33, v49")
        a("v_or_b32 v46, v34, v50"); a("v_or_b32 v47, v35, v51")
        a("v_mfma_f32_16x16x32_bf16 v[64:67], v[80:83], v[32:35], v[64:67]")
        a("v_mfma_f32_16x16x32_bf16 v[68:71], v[28:31], v[36:39], 0")
        a("v_mfma_f32_16x16x32_bf16 v[40:43], v[56:59], v[44:47], v[40:43]")
        a("v_mfma_f32_16x16x32_bf16 v[64:67], v[88:91], v[48:51], v[64:67]")
        a("v_mfma_f32_16x16x32_bf16 v[68:71], v[84:87], v[32:35], v[68:71]")
        a("v_mfma_f32_16x16x32_bf16 v[68:71], v[92:95], v[48:51], v[68:71]")
        a("s_nop 4")
        a("v_rcp_f32 v40, v40")
        a("s_nop 0")
        tg = lambda x: a(f"v_min_u32 v{x}, -2, v{x}" if PAR["DROP"] else f"v_or_b32 v{x}, 1, v{x}" if tag else f"v_and_b32 v{x}, -2, v{x}")
        for h in range(2):
            for i in range(2): a(f"v_pk_mul_f32 v[{64+4*h+2*i}:{65+4*h+2*i}], v[{64+4*h+2*i}:{65+4*h+2*i}], v[40:41] op_sel_hi:[1,0]")
            for i in range(2): a(f"v_cvt_pk_bf16_f32 v{48+2*h+i}, v{64+4*h+2*i}, v{65+4*h+2*i}")
        for i in range(4): tg(48 + i)
        a(f"global_store_dwordx4 v9, v[48:51], {PB(tag)} sc1")
        stamp(a, prof, 5)
        u_load(); a("s_waitcnt lgkmcnt(0)"); u_half(0)
        u_half(1)
        vo_prep(tag ^ 1, 1)
        step_end()
    a(f"s_branch {L('o_loop')}")
    for tag in range(2):
        n = f"o{tag}"
        p1_retry(n)
        a.label(L(n + '_vr')); guard(a, L(n + '_vp'), FAIL)

    a.label(L('o_first'))
    for i in range(8): a(f"v_mov_b32 v{48+i}, v{24+i}")
    a("s_barrier")
    u_load(); a("s_waitcnt lgkmcnt(0)"); a("s_barrier"); u_half(0); u_half(1)
    for i in range(8): a(f"v_mov_b32 v{24+i}, v{48+i}")
    a(f"s_branch {L('o_fj')}")

    a.label(L('last_pub'))
    a("s_nop 7")
    a("v_cvt_pk_bf16_f32 v88, v80, v81"); a("v_cvt_pk_bf16_f32 v89, v82, v83")
    a("v_min_u32 v88, -2, v88"); a("v_min_u32 v89, -2, v89")
    a("s_or_b32 s36, s19, s37"); a("s_and_b32 s36, s36, 2"); a(f"s_cbranch_scc0 {L('fin')}")
    a("global_store_dwordx2 v10, v[88:89], s[30:31] sc1")
    a.label(L('fin'))
    a("s_waitcnt vmcnt(0)"); a("s_barrier")
    a("s_cmp_eq_u32 s21, 0"); a(f"s_cbranch_scc0 {L('end')}")
    head_word(str(NSTEP - 1))
    if "span" in OPT:
        a("s_and_b32 s98, s20, 15"); a("s_cmp_lg_u32 s98, 0"); a(f"s_cbranch_scc1 {L('end')}")
        a("s_memrealtime s[98:99]"); a("s_waitcnt lgkmcnt(0)"); a("v_mov_b32 v5, s98"); a("v_mov_b32 v2, 0")
        a("s_mov_b64 exec, 1"); a("global_atomic_umax v2, v5, s[14:15] offset:56 sc1"); a("s_mov_b64 exec, -1")
    if "diag" in OPT:
        a("s_cmp_eq_u32 s20, 0"); a(f"s_cbranch_scc0 {L('end')}")
        a("s_memrealtime s[56:57]"); a("s_waitcnt lgkmcnt(0)"); a("s_sub_u32 s70, s56, s98"); a("s_sub_u32 s71, s98, s97")
        a("s_mov_b64 exec, 1")
        a("s_mov_b32 s72, 0"); a("s_mov_b32 s73, 0"); a("s_mov_b32 s74, 0"); a("v_mov_b32 v18, 0")
        a.label(L('dg'))
        for k in range(2):
            a("s_lshl_b32 s36, s74, 21"); a(f"s_add_u32 s36, s36, {0x10000 + k*0x2000}"); a("v_mov_b32 v16, s36")
            for rep in range(2):
                a("s_memtime s[56:57]"); a("s_waitcnt lgkmcnt(0)")
                a("global_atomic_or v17, v16, v18, s[16:17] sc0 sc1"); a("s_waitcnt vmcnt(0)")
                a("s_memtime s[58:59]"); a("s_waitcnt lgkmcnt(0)")
            a(f"s_sub_u32 s{76+k}, s58, s56")
        a("s_cmp_lt_u32 s77, s76"); a("s_cselect_b32 s78, 1, 0"); a("s_mov_b32 s79, 0"); a("s_lshl_b64 s[78:79], s[78:79], s74"); a("s_or_b64 s[72:73], s[72:73], s[78:79]")
        a("s_add_u32 s74, s74, 1"); a("s_cmp_lt_u32 s74, 64"); a(f"s_cbranch_scc1 {L('dg')}")
        for k in range(4): a(f"v_mov_b32 v{20+k}, s{70+k}")
        a("global_store_dwordx4 v18, v[20:23], s[14:15] offset:48")
        a("s_mov_b64 exec, -1")
    a(f"s_branch {L('end')}")
    a.label(FAIL)
    a("v_mov_b32 v16, 0"); a("v_mov_b32 v17, 0xdead"); a("global_store_dword v16, v17, s[14:15] offset:252")
    a.label(L('end'))
    if prof:
        if prof == 3:
            a("s_memrealtime s[56:57]"); a("s_waitcnt lgkmcnt(0)"); a("s_mov_b32 s61, s56"); a("s_mov_b32 s62, s25"); a("s_mov_b32 s63, s90"); a("s_mov_b32 s64, s91"); a("s_mov_b32 s65, s89")
        if prof == 3:
            a("s_cmp_eq_u32 s21, 5"); a(f"s_cbranch_scc0 {L('nost')}")
            a("s_lshl_b32 s36, s20, 9"); a(f"s_add_u32 s36, s36, {203<<20}"); a("v_lshrrev_b32 v16, 1, v6"); a("v_add_u32 v16, s36, v16")
            a("global_store_dwordx2 v16, v[150:151], s[16:17]")
            a.label(L('nost'))
        if prof > 3:
            a("s_waitcnt lgkmcnt(0)")
            for k in range(8): a(f"s_sub_u32 s{60+k if k < 6 else 84+k}, s{66+2*k}, s66")
            a("s_mov_b32 s66, s90"); a("s_mov_b32 s67, s91")
        a("s_lshl_b32 s36, s20, 3"); a("s_add_u32 s36, s36, s21"); a("s_lshl_b32 s36, s36, 5"); a(f"s_add_u32 s36, s36, {200<<20}")
        a("v_mov_b32 v16, s36")
        for k in range(8): a(f"v_mov_b32 v{24+k}, s{60+k}")
        a("s_mov_b64 exec, 1")
        a("global_store_dwordx4 v16, v[24:27], s[16:17]"); a("global_store_dwordx4 v16, v[28:31], s[16:17] offset:16")
    a("s_endpgm")
```

```python
import sys, os
sys.path.insert(0, os.path.dirname(__file__))
from asmgen import *
import gemm
import rec2 as rec
from gemm import acc, R

NAME = "concat_heads__linear_attn_block__memory_aug_recurrent_mem_tr__prompt"
WS_O   = 84 << 20
WS_OA  = 116 << 20
WS_KVP = 124 << 20
OA_T = 65536
WS_INBOX = 142 << 20
D_OVF, D_AKV, D_KV, D_AO, D_O = 32, 36, 64, 96, 128
D_PROG = rec.DBG_PROG
WSPIN = 400000
TSET = "1111000221021012"
def setmask(k): return sum(1 << t for t in range(16) if int(TSET[t]) == k)
LOG2E = 0x3fb8aa3b
EPS = 0x358637bd
SCL = 0x3e0293ee


def load_ptrs(a):
    a("s_load_dwordx16 s[4:19], s[0:1], 0"); a("s_load_dwordx2 s[20:21], s[0:1], 64")
    a("s_load_dwordx4 s[24:27], s[0:1], 80"); a("s_load_dwordx2 s[28:29], s[0:1], 96")

def signal(a, off_sgpr_or_imm, val=1):
    lab = a.newlabel("sig")
    a("s_waitcnt vmcnt(0)"); a("s_barrier")
    a("s_cmp_lg_u32 s75, 0"); a(f"s_cbranch_scc1 {lab}")
    a(f"v_mov_b32 v16, {off_sgpr_or_imm}"); a(f"v_mov_b32 v17, {val}")
    a("s_mov_b64 exec, 1")
    a("global_atomic_add v16, v17, s[26:27] sc1")
    a("s_mov_b64 exec, -1")
    a.label(lab)

def wait_cnt(a, off, target, inv=True):
    lp, ok, done = a.newlabel("wl"), a.newlabel("wo"), a.newlabel("wd")
    a("s_cmp_lg_u32 s75, 0"); a(f"s_cbranch_scc1 {done}")
    a(f"v_mov_b32 v16, {off}")
    a.label(lp)
    a("global_load_dword v17, v16, s[26:27] sc1"); a("s_waitcnt vmcnt(0)")
    a(f"v_cmp_ne_u32 vcc, {target}, v17"); a(f"s_cbranch_vccz {ok}")
    a("s_sleep 8")
    a("s_add_u32 s46, s46, 1"); a(f"s_cmp_lt_u32 s46, {WSPIN}"); a(f"s_cbranch_scc1 {lp}")
    a("s_branch w_fail")
    a.label(ok)
    if inv: a("buffer_inv sc1"); a("s_waitcnt vmcnt(0)")
    a.label(done)
    a("s_barrier")

def learn_parity(a):
    lp, ok = a.newlabel("vl"), a.newlabel("vo")
    a.label(lp)
    a("s_waitcnt vmcnt(0)")
    a("v_readfirstlane_b32 s22, v18"); a("v_readfirstlane_b32 s34, v19")
    a("s_and_b32 s32, s22, 0xffff"); a("s_add_u32 s32, s32, s34"); a("s_cmp_eq_u32 s32, 256"); a(f"s_cbranch_scc1 {ok}")
    a("s_sleep 8")
    a(f"global_load_dwordx2 v[18:19], v16, s[26:27] offset:{rec.DBG_VOTE} sc1")
    a("s_add_u32 s46, s46, 1"); a(f"s_cmp_lt_u32 s46, {WSPIN}"); a(f"s_cbranch_scc1 {lp}")
    a("s_branch w_fail")
    a.label(ok)
    a("s_lshr_b32 s22, s22, 16"); a("s_cmp_gt_u32 s22, 64"); a("s_cselect_b32 s22, 1, 0")

def phi(a, regs):
    for i in range(0, len(regs), 8):
        b = regs[i:i+8]
        for k, r in enumerate(b): a(f"v_mul_f32 v{16+k}, s40, v{r}")
        for k, r in enumerate(b): a(f"v_min_f32 v{16+k}, 0, v{16+k}")
        for k, r in enumerate(b): a(f"v_exp_f32 v{16+k}, v{16+k}")
        for k, r in enumerate(b): a(f"v_max_f32 v{r}, 0, v{r}")
        for k, r in enumerate(b): a(f"v_add_f32 v{r}, v{r}, v{16+k}")
        for k, r in enumerate(b): a(f"v_add_f32 v{r}, s41, v{r}")

def pack_frags(a):
    for tt in range(4):
        for jj in range(4):
            s = acc(tt, 2*jj); d = 32 + (tt*4 + jj)*4
            for i in range(4): a(f"v_cvt_pk_bf16_f32 v{d+i}, v{s+2*i}, v{s+2*i+1}")
def frag(tt, jj): return R('v', 32 + (tt*4 + jj)*4)

PROF = False
def wstamp(a, k):
    if not PROF: return
    lab = a.newlabel("ws")
    a("s_cmp_lg_u32 s75, 0"); a(f"s_cbranch_scc1 {lab}")
    a("s_memrealtime s[56:57]"); a("s_waitcnt lgkmcnt(0)")
    a("s_lshl_b32 s58, s97, 7"); a("s_lshl_b32 s57, s59, 2"); a("s_add_u32 s58, s58, s57"); a(f"s_add_u32 s58, s58, {201 << 20}")
    a("v_mov_b32 v16, s58"); a("v_mov_b32 v17, s56"); a("global_store_dword v16, v17, s[28:29]")
    a("s_memtime s[56:57]"); a("s_waitcnt lgkmcnt(0)"); a("v_mov_b32 v17, s56"); a("v_add_u32 v16, 0x100000, v16"); a("global_store_dword v16, v17, s[28:29]")
    a("s_add_u32 s59, s59, 1")
    a.label(lab)

def tstamp(a, ev, v0=126, v1=127):
    if not PROF: return
    a("s_memrealtime s[56:57]"); a("s_waitcnt lgkmcnt(0)")
    a("s_lshl_b32 s58, s96, 2"); a(f"s_add_u32 s58, s58, {(204 << 20) + ev*8192}")
    a(f"v_mov_b32 v{v0}, s58"); a(f"v_mov_b32 v{v1}, s56"); a(f"global_store_dword v{v0}, v{v1}, s[28:29]")

def wside(a, dst, off, tmp):
    rec.near(a, dst, off, "s22", 28, tmp, kv=True)

def task_g1(a, MT, grp):
    if grp: gemm.setup_a_rowmajor(a, 2048, MT); gemm.setup_w(a, 8192)
    a("s_lshl_b32 s32, s31, 15"); a("s_add_u32 s80, s10, s32"); a("s_addc_u32 s81, s11, 0")
    a("s_cmp_lt_u32 s30, 16"); a("s_cselect_b32 s82, s16, s18"); a("s_cselect_b32 s83, s17, s19")
    a(f"s_cselect_b32 s33, {rec.WS_KX >> 20}, {rec.WS_VX >> 20}"); a("s_lshl_b32 s33, s33, 20")
    a("s_and_b32 s35, s30, 15"); a("s_lshl_b32 s32, s35, 9"); a("s_add_u32 s82, s82, s32"); a("s_addc_u32 s83, s83, 0")
    a("s_mov_b32 s66, 7")
    if grp == 0 and rec.PAR["WPF"]:
        a("s_mov_b32 s78, 0"); a("s_mov_b32 s79, 0")
        a("s_cmp_lt_u32 s44, 2"); a("s_cbranch_scc1 no_wpf")
        if rec.PAR["HALF"]: a("s_mov_b32 s78, 1024"); a(f"s_mov_b32 s79, {4 << 20}")
        a("s_and_b32 s34, s44, 1"); a("s_lshl_b32 s34, s34, 3"); a("s_add_u32 s34, s34, s75")
        if rec.PAR["EPF"] == 3:
            a("v_lshrrev_b32 v16, 2, v0"); a("s_lshl_b32 s32, s34, 4"); a("s_add_u32 s32, s32, 192"); a("v_add_u32 v16, s32, v16"); a("v_and_b32 v17, 3, v0"); a("v_lshlrev_b32 v17, 7, v17")
            a("s_and_b32 s32, s45, 7"); a("s_lshl_b32 s32, s32, 4"); a("s_add_u32 s32, s32, s34")
            for i in range(4):
                a("v_min_u32 v18, 1023, v16"); a("v_lshl_add_u32 v18, v18, 13, v17")
                a("global_load_dword a95, v18, s[82:83]")
                a("v_add_u32 v16, 256, v16")
                if i == 0:
                    a("v_bfe_u32 v18, v0, 3, 1"); a("v_lshlrev_b32 v18, 11, v18"); a("v_and_b32 v19, 7, v0"); a("v_lshl_add_u32 v18, v19, 7, v18")
                    a("s_lshl_b32 s36, s32, 12"); a("s_add_u32 s36, s36, 1024"); a("v_add_u32 v18, s36, v18")
                    a("global_load_dword a95, v18, s[10:11]")
                if i < 3: a("s_barrier")
            a("s_lshl_b32 s36, s32, 12"); a(f"s_add_u32 s36, s36, {512*1024}"); a("v_and_b32 v18, 31, v0"); a("v_lshl_add_u32 v18, v18, 7, s36")
            a("global_load_dword a95, v18, s[10:11]")
        else:
            nx = rec.PAR["WPF"]
            a("s_and_b32 s32, s45, 7"); a("s_lshl_b32 s32, s32, 4"); a("s_add_u32 s32, s32, s34"); a(f"s_lshl_b32 s32, s32, {11 + nx}")
            a(f"v_and_b32 v16, {32*nx - 1}, v0"); a("v_lshl_add_u32 v16, v16, 7, s32")
            if not rec.PAR["EPF"]: a("global_load_dword a95, v16, s[10:11]")
            a("v_lshrrev_b32 v16, 2, v0"); a("v_lshlrev_b32 v16, 13, v16"); a("v_and_b32 v17, 3, v0"); a("v_lshl_add_u32 v16, v17, 7, v16")
            a("s_lshl_b32 s32, s34, 17"); a("v_add_u32 v16, s32, v16")
            for i in range(4):
                if i or not rec.PAR["EPF"]:
                    a("global_load_dword a95, v16, s[82:83]")
                    if i < 3: a("s_barrier")
                a(f"v_add_u32 v16, {256*8192}, v16")
        a.label("no_wpf")
    def first_signal(n):
        lab = a.newlabel("sig")
        a(f"s_waitcnt vmcnt({n})"); a("s_barrier")
        a("s_cmp_lg_u32 s75, 0"); a(f"s_cbranch_scc1 {lab}")
        a("v_mov_b32 v16, s88"); a("v_mov_b32 v17, 0")
        a("s_mov_b64 exec, 1"); a("global_store_dword v16, v17, s[28:29] sc1"); a("s_mov_b64 exec, -1")
        if "span" in rec.OPT:
            a("s_cmp_lg_u32 s44, 0"); a(f"s_cbranch_scc1 {lab}")
            a("s_memrealtime s[56:57]"); a("s_waitcnt lgkmcnt(0)"); a("v_mov_b32 v16, s56")
            a("s_mov_b64 exec, 1"); a("global_atomic_umax v17, v16, s[26:27] offset:24 sc1"); a("s_mov_b64 exec, -1")
        a.label(lab)
        wstamp(a, 0)
    ST = rec.PAR["ST"]
    if grp == 1:
        if ST == 0:
            gemm.prologue(a, MT); first_signal(8 + 2*MT)
        else:
            first_signal(0)
            if ST == 1 and not rec.PAR["RPF"]:
                a("s_mul_i32 s32, s96, 3072"); a(f"s_add_u32 s32, s32, {1 << 20}"); a("v_lshlrev_b32 v20, 6, v0"); a("v_min_u32 v20, 3008, v20"); a("v_add_u32 v20, s32, v20")
                a("global_load_dword a95, v20, s[10:11]")
    gemm.call(a, f"core_T{MT}" + ("_m" if grp == 1 and ST == 0 else ""))
    if grp == 0: learn_parity(a)
    wstamp(a, 0)
    a("s_lshl_b32 s34, s35, 1"); a("s_add_u32 s34, s34, s73"); a("s_lshl_b32 s34, s34, 14"); a("s_add_u32 s33, s33, s34")
    a(f"s_mul_i32 s36, s72, {MT}"); a("s_add_u32 s36, s36, s31")
    a("v_lshlrev_b32 v19, 4, v0")
    for tt in range(MT):
        a(f"s_add_u32 s32, s36, {tt}"); a("s_and_b32 s34, s32, 1"); a("s_lshl_b32 s34, s34, 12"); a("s_lshr_b32 s32, s32, 1"); a("s_lshl_b32 s32, s32, 19")
        a("s_add_u32 s32, s32, s34"); a("s_add_u32 s32, s32, s33")
        rec.near_bit(a, "s34", "s32", "s22", True); a("s_add_u32 s32, s32, s34")
        a(f"v_add_u32 v{20+tt}, s32, v19")
    a("s_lshl_b32 s88, s23, 7"); a("s_lshl_b32 s32, s30, 2"); a("s_add_u32 s88, s88, s32"); a(f"s_add_u32 s88, s88, {rec.WS_FLAG + (96 + 4*grp)*128}")
    if grp == 0: gemm.epi_frag_store(a, "s[28:29]", "sc1", MT)
    else:
        a("s_mov_b32 s89, 1"); a("s_mov_b32 s77, 1")

def touches(a, parts):
    for i, (p, fix, per, first, n) in enumerate(parts):
        a(f"s_mul_i32 s32, s96, {per*1024}"); a(f"s_add_u32 s32, s32, {fix + first*1024}")
        a(f"s_add_u32 s{90+2*i}, s{p}, s32"); a(f"s_addc_u32 s{91+2*i}, s{p+1}, 0"); a(f"s_mov_b32 s{99+i}, {n*1024 - 64}")
    a("s_mov_b32 s98, 0" if "notouch" in rec.OPT else "s_mov_b32 s98, 1")

def task_g4kv(a):
    def colmap(a, v):
        a(f"v_bfe_u32 v18, v{v}, 3, 1"); a("v_lshlrev_b32 v18, 11, v18")
        a(f"v_lshrrev_b32 v19, 4, v{v}"); a("v_lshl_add_u32 v18, v19, 7, v18")
        a(f"v_and_b32 v{v}, 7, v{v}"); a(f"v_lshl_add_u32 v{v}, v{v}, 4, v18")
    gemm.setup_a_rowmajor(a, 2048); gemm.setup_w(a, 6144, colmap)
    a("s_lshl_b32 s32, s31, 19"); a("s_add_u32 s80, s4, s32"); a("s_addc_u32 s81, s5, 0")
    a("s_lshl_b32 s32, s30, 8"); a("s_add_u32 s32, s32, 2048"); a("s_add_u32 s82, s6, s32"); a("s_addc_u32 s83, s7, 0")
    a("s_mov_b32 s66, 7")
    gemm.call(a, "core_N")
    wstamp(a, 0)
    a(f"s_mov_b32 s40, {LOG2E}"); a(f"s_mov_b32 s41, {EPS}")
    phi(a, [acc(tt, 0) + i for tt in range(4) for i in range(16)])
    for tp in range(2):
        for ft in range(8):
            x = acc(2*tp, ft); y = acc(2*tp+1, ft)
            a(f"v_cvt_pk_bf16_f32 v{x}, v{x}, v{x+1}"); a(f"v_cvt_pk_bf16_f32 v{x+1}, v{x+2}, v{x+3}")
            a(f"v_cvt_pk_bf16_f32 v{x+2}, v{y}, v{y+1}"); a(f"v_cvt_pk_bf16_f32 v{x+3}, v{y+2}, v{y+3}")
    for i in range(4): a(f"v_mov_b32 v{16+i}, 0x3f803f80")
    a("v_lshlrev_b32 v20, 4, v0"); a("s_mul_i32 s32, s73, 49152"); a("s_lshl_b32 s33, s72, 10"); a("s_add_u32 s32, s32, s33"); a("v_add_u32 v21, s32, v20")
    outb = lambda hd, et, dt: (64 if hd == 0 else 128) + (et*2 + dt)*4
    for tp in range(2):
        for hd in range(2):
            for et in range(3):
                for dt in range(2):
                    D = R('v', outb(hd, et, dt)); A = R('v', acc(2*tp, 2*hd + dt)); B = R('v', acc(2*tp, 4 + 2*hd + et)) if et < 2 else "v[16:19]"
                    a(f"v_mfma_f32_16x16x32_bf16 {D}, {A}, {B}, " + ("0" if tp == 0 else D))
    a("s_barrier")
    a("s_nop 7")
    for hd in range(2):
        for f in range(6):
            a(f"ds_write_b128 v21, {R('v', outb(hd, f >> 1, f & 1))} offset:{(hd*6 + f)*4096}")
    a("s_mul_i32 s32, s75, 12288"); a("v_add_u32 v21, s32, v20")
    a("s_waitcnt lgkmcnt(0)"); a("s_barrier")
    for k in range(3):
        for m in range(4): a(f"ds_read_b128 {R('v', 32 + (k*4 + m)*4)}, v21 offset:{k*4096 + m*1024}")
    a("s_lshl_b32 s32, s31, 5"); a("s_lshl_b32 s33, s30, 2"); a("s_add_u32 s32, s32, s33"); a("s_mul_i32 s32, s32, 6144")
    a("s_mul_i32 s33, s75, 3072"); a("s_add_u32 s32, s32, s33"); a(f"s_add_u32 s32, s32, {WS_KVP}"); a("v_add_u32 v22, s32, v20")
    a("s_waitcnt lgkmcnt(0)")
    for k in range(3):
        b = 32 + k*16
        for h in range(2):
            a(f"v_pk_add_f32 v[{b+2*h}:{b+2*h+1}], v[{b+2*h}:{b+2*h+1}], v[{b+4+2*h}:{b+5+2*h}]")
            a(f"v_pk_add_f32 v[{b+8+2*h}:{b+9+2*h}], v[{b+8+2*h}:{b+9+2*h}], v[{b+12+2*h}:{b+13+2*h}]")
        for h in range(2):
            a(f"v_pk_add_f32 v[{b+2*h}:{b+2*h+1}], v[{b+2*h}:{b+2*h+1}], v[{b+8+2*h}:{b+9+2*h}]")
        a(f"global_store_dwordx4 v22, {R('v', b)}, s[28:29] offset:{k*1024} sc1")
    signal(a, D_AKV)

def task_g4q(a):
    gemm.setup_a_rowmajor(a, 2048); gemm.setup_w(a, 6144)
    a("s_lshl_b32 s32, s31, 19"); a("s_add_u32 s80, s4, s32"); a("s_addc_u32 s81, s5, 0")
    a("s_lshl_b32 s32, s30, 9"); a("s_add_u32 s82, s6, s32"); a("s_addc_u32 s83, s7, 0")
    a("s_mov_b32 s66, 7")
    gemm.call(a, "core_T")
    wstamp(a, 0)
    a(f"s_mov_b32 s40, {LOG2E}"); a(f"s_mov_b32 s41, {EPS}")
    phi(a, list(range(32, 160)))
    pack_frags(a)
    wstamp(a, 0)
    wait_cnt(a, D_AKV, 64, False)
    wstamp(a, 0)
    a("v_lshlrev_b32 v16, 4, v0")
    for r in range(1, 8): a(f"v_add_u32 v{16+r}, {r*196608}, v16")
    a("s_lshl_b32 s32, s30, 3"); a("s_add_u32 s32, s32, s75"); a("s_mul_i32 s32, s32, 6144"); a(f"s_add_u32 s32, s32, {WS_KVP}")
    a("s_add_u32 s34, s28, s32"); a("s_addc_u32 s35, s29, 0")
    a("s_mul_i32 s32, s75, 3072"); a("v_add_u32 v24, s32, v16")
    for et in range(3):
        for r in range(8):
            for dt in range(2):
                a(f"global_load_dwordx4 {R('v', 96 + (r*2 + dt)*4)}, v{16+r}, s[34:35] offset:{dt*1024} sc1")
        a("s_add_u32 s34, s34, 2048"); a("s_addc_u32 s35, s35, 0")
        a("s_waitcnt vmcnt(0)")
        for step in (32, 16, 8):
            for i in range(0, step, 2):
                a(f"v_pk_add_f32 v[{96+i}:{97+i}], v[{96+i}:{97+i}], v[{96+step+i}:{97+step+i}]")
        for i in range(4): a(f"v_cvt_pk_bf16_f32 v{28+i}, v{96+2*i}, v{97+2*i}")
        a(f"ds_write_b128 v24, v[28:31] offset:{et*1024}")
    a("s_mul_i32 s32, s73, 12288"); a("v_add_u32 v24, s32, v16")
    a("s_waitcnt lgkmcnt(0)"); a("s_barrier")
    for i in range(12): a(f"ds_read_b128 {R('a', i*4)}, v24 offset:{i*1024}")
    gemm.lane_chunk(a, 25, 26)
    a("v_and_b32 v26, 15, v0"); a("v_lshl_add_u32 v25, v25, 4, v26"); a("v_lshlrev_b32 v25, 4, v25")
    a("s_lshl_b32 s32, s31, 4"); a("s_lshl_b32 s33, s72, 2"); a("s_add_u32 s32, s32, s33"); a(f"s_mul_i32 s32, s32, {OA_T}")
    a("s_lshl_b32 s33, s30, 14"); a("s_add_u32 s32, s32, s33"); a("s_lshl_b32 s33, s73, 12"); a("s_add_u32 s32, s32, s33"); a(f"s_add_u32 s32, s32, {WS_OA}")
    rec.near_bit(a, "s33", "s32", "s22", True); a("s_add_u32 s32, s32, s33")
    a("v_add_u32 v20, s32, v25")
    for tt in range(1, 4): a(f"v_add_u32 v{20+tt}, {tt*OA_T}, v20")
    a("s_waitcnt lgkmcnt(0)")
    for hd in range(4):
        for tt in range(4):
            b = 96 + tt*12
            for et in (2, 0, 1):
                a(f"v_mfma_f32_16x16x32_bf16 {R('v', b + et*4)}, {R('a', (hd*3 + et)*4)}, {frag(tt, hd)}, 0")
        a("s_nop 7")
        for tt in range(4):
            b = 96 + tt*12
            a(f"v_add_f32 v{b+8}, s41, v{b+8}")
        for tt in range(4):
            b = 96 + tt*12
            a(f"v_rcp_f32 v{b+8}, v{b+8}")
        for tt in range(4):
            b = 96 + tt*12
            a(f"v_mov_b32 v{b+9}, v{b+8}")
            for i in range(0, 8, 2): a(f"v_pk_mul_f32 v[{b+i}:{b+i+1}], v[{b+i}:{b+i+1}], v[{b+8}:{b+9}]")
            t = 144 + tt*4
            gemm.pack_swap(a, t, b)
            a(f"global_store_dwordx4 v{20+tt}, {R('v', t)}, s[28:29] offset:{hd*1024} sc1")
    a("s_lshl_b32 s32, s31, 2"); a(f"s_add_u32 s32, s32, {D_AO}")
    signal(a, "s32")

def out_offsets(a, MT):
    gemm.lane_chunk(a, 25, 26)
    a("v_and_b32 v26, 15, v0"); a("v_lshlrev_b32 v26, 12, v26"); a("v_lshl_add_u32 v20, v25, 4, v26")
    a(f"s_mul_i32 s32, s72, {MT*16*4096}"); a("s_lshl_b32 s33, s73, 8"); a("s_add_u32 s32, s32, s33"); a("v_add_u32 v20, s32, v20")
    for tt in range(1, MT): a(f"v_add_u32 v{20+tt}, {tt*65536}, v20")

def task_g5(a):
    gemm.setup_a_frag(a, OA_T); gemm.setup_w(a, 2048)
    a("s_lshl_b32 s32, s31, 2"); a(f"s_add_u32 s32, s32, {D_AO}")
    wait_cnt(a, "s32", 4)
    wstamp(a, 0)
    a(f"s_mul_i32 s32, s31, {16*OA_T}"); a(f"s_add_u32 s32, s32, {WS_OA}"); wside(a, 80, "s32", "s33")
    a("s_lshl_b32 s32, s30, 9"); a("s_add_u32 s82, s8, s32"); a("s_addc_u32 s83, s9, 0")
    a("s_mov_b32 s66, 7")
    gemm.call(a, "core_T")
    wstamp(a, 0)
    out_offsets(a, 4)
    a("s_lshl_b32 s32, s31, 20"); a("s_lshl_b32 s33, s30, 9"); a("s_add_u32 s32, s32, s33"); a("s_add_u32 s34, s24, s32"); a("s_addc_u32 s35, s25, 0")
    gemm.epi_out_store(a, "s[34:35]", 4, "" if "outpl" in rec.OPT else "sc1")

def task_wot(a):
    a("s_barrier")
    a("v_lshrrev_b32 v2, 4, v0"); a("v_lshlrev_b32 v2, 11, v2"); a("v_and_b32 v3, 15, v0"); a("v_lshl_add_u32 v2, v3, 4, v2")
    a("s_lshl_b32 s32, s30, 18"); a("s_lshl_b32 s33, s31, 17"); a("s_add_u32 s32, s32, s33"); a("s_lshl_b32 s33, s75, 8"); a("s_add_u32 s32, s32, s33"); a("v_add_u32 v2, s32, v2")
    a("s_lshl_b32 s43, s75, 14")
    for i in range(16):
        a(f"s_add_u32 m0, s43, {i*1024}"); a("s_nop 0")
        a("global_load_lds_dwordx4 v2, s[20:21]")
        a("v_add_u32 v2, 0x2000, v2")
    gemm.pending_stores(a)
    a("s_mov_b32 s77, 0")
    a("v_lshrrev_b32 v3, 2, v0"); a("v_lshlrev_b32 v3, 8, v3"); a("v_and_b32 v16, 3, v0"); a("v_lshl_add_u32 v3, v16, 4, v3"); a("v_add_u32 v3, s43, v3")
    a("s_lshl_b32 s32, s75, 21"); a("s_lshl_b32 s33, s30, 14"); a("s_add_u32 s32, s32, s33"); a("s_lshl_b32 s33, s31, 12"); a("s_add_u32 s32, s32, s33"); a(f"s_add_u32 s32, s32, {rec.WS_WOT}")
    wside(a, 34, "s32", "s33")
    a("v_lshlrev_b32 v20, 4, v0")
    for i in range(1, 4): a(f"v_add_u32 v{20+i}, {i*rec.WOT_CG}, v20")
    a("s_waitcnt vmcnt(0)")
    for cgl in range(4):
        for jl in range(2):
            for ct in range(2):
                b = 32 + ((cgl*2 + jl)*2 + ct)*4
                for lo in range(2):
                    a(f"ds_read_b64_tr_b16 {R('v', b + 2*lo, 2)}, v3 offset:{(32*jl + 16*lo)*256 + cgl*64 + ct*8}")
        a("s_waitcnt lgkmcnt(0)")
        for jl in range(2):
            for ct in range(2):
                a(f"global_store_dwordx4 v{20+cgl}, {R('v', 32 + ((cgl*2 + jl)*2 + ct)*4)}, s[34:35] offset:{jl*2048 + ct*1024} sc1")
    a("s_lshl_b32 s32, s30, 1"); a("s_add_u32 s32, s32, s31"); a("s_lshl_b32 s32, s32, 16"); a("s_lshr_b32 s33, s75, 1"); a("s_lshl_b32 s33, s33, 14"); a("s_add_u32 s32, s32, s33")
    a("s_and_b32 s33, s75, 1"); a("s_lshl_b32 s33, s33, 12"); a("s_add_u32 s32, s32, s33"); a(f"s_add_u32 s32, s32, {WS_INBOX}")
    wside(a, 34, "s32", "s33")
    for i in range(4): a(f"v_mov_b32 v{24+i}, -1")
    for i in range(4): a(f"global_store_dwordx4 v20, v[24:27], s[34:35] offset:{i*1024} sc1")
    lab = a.newlabel("sig")
    a("s_waitcnt vmcnt(0)"); a("s_barrier")
    a("s_cmp_lg_u32 s75, 0"); a(f"s_cbranch_scc1 {lab}")
    a("s_lshl_b32 s32, s31, 7"); a("s_lshl_b32 s33, s30, 2"); a("s_add_u32 s32, s32, s33"); a(f"s_add_u32 s32, s32, {rec.WS_FLAG + 108*128}")
    a("v_mov_b32 v16, s32"); a("v_mov_b32 v17, 0")
    a("s_mov_b64 exec, 1"); a("global_store_dword v16, v17, s[28:29] sc1"); a("s_mov_b64 exec, -1")
    a.label(lab)

def task_g3(a, MT):
    sh = MT - 1
    a("s_lshl_b32 s32, s30, 3"); a("s_add_u32 s32, s32, s75"); a("s_lshl_b32 s32, s32, 19"); a(f"s_add_u32 s32, s32, {rec.WS_WOT}")
    rec.near_bit(a, "s33", "s32", "s22", True); a("s_add_u32 s32, s32, s33")
    gemm.setup_a_frag(a, 262144, MT); gemm.setup_w_frag(a, "s32")
    wot_wait(a)
    lp, ok = a.newlabel("fl"), a.newlabel("fo")
    a("s_cmp_lg_u32 s75, 0"); a(f"s_cbranch_scc1 {ok}")
    a(f"s_lshl_b32 s32, s31, {8 + sh}"); a(f"s_add_u32 s32, s32, {rec.WS_FLAG}"); a("v_lshl_add_u32 v16, v0, 2, s32")
    a.label(lp)
    a("global_load_dword v17, v16, s[28:29] sc1"); a(f"global_load_dword v19, v16, s[28:29] offset:{256*sh} sc1"); a("s_waitcnt vmcnt(0)")
    a("v_or_b32 v17, v17, v19")
    a("v_cmp_ne_u32 vcc, 0, v17"); a(f"s_cbranch_vccz {ok}")
    a("s_sleep 8")
    a("s_add_u32 s46, s46, 1"); a(f"s_cmp_lt_u32 s46, {WSPIN}"); a(f"s_cbranch_scc1 {lp}")
    a("s_branch w_fail")
    a.label(ok)
    wstamp(a, 0)
    a(f"s_lshl_b32 s32, s31, {20 + sh}"); a(f"s_add_u32 s32, s32, {WS_O}"); wside(a, 80, "s32", "s33")
    a("s_mov_b64 s[82:83], s[28:29]")
    a("s_mov_b32 s66, 31")
    a("s_add_u32 s32, s31, s30"); a("s_and_b32 s78, s32, 3"); a("s_lshl_b32 s78, s78, 11"); a("s_and_b32 s33, s32, 4"); a("s_lshl_b32 s33, s33, 12"); a("s_or_b32 s78, s78, s33")
    a("s_and_b32 s79, s32, 1"); a("s_lshl_b32 s79, s79, 12"); a("s_and_b32 s33, s32, 6"); a("s_lshl_b32 s33, s33, 13"); a("s_or_b32 s79, s79, s33")
    gemm.call(a, f"core_F{MT}")
    a("v_and_b32 v26, 15, v0"); a("v_lshlrev_b32 v26, 12, v26"); a("v_lshrrev_b32 v25, 4, v0"); a("v_lshl_add_u32 v20, v25, 4, v26")
    a(f"s_lshl_b32 s32, s72, {16 + sh}"); a("s_lshl_b32 s33, s73, 8"); a("s_add_u32 s32, s32, s33"); a("v_add_u32 v20, s32, v20"); a("v_add_u32 v21, 0x10000, v20")
    a(f"s_lshl_b32 s32, s31, {18 + sh}"); a("s_lshl_b32 s33, s30, 9"); a("s_add_u32 s32, s32, s33"); a("s_add_u32 s32, s32, 2048"); a("s_add_u32 s34, s24, s32"); a("s_addc_u32 s35, s25, 0")
    gemm.epi_frag_store(a, "s[34:35]", "sc1", MT, 64)

def softmax_cols(a, regs, t):
    a(f"v_max3_f32 v{t}, v{regs[0]}, v{regs[1]}, v{regs[2]}")
    rest = regs[3:]
    while len(rest) >= 2:
        a(f"v_max3_f32 v{t}, v{t}, v{rest[0]}, v{rest[1]}"); rest = rest[2:]
    if rest: a(f"v_max_f32 v{t}, v{t}, v{rest[0]}")
    for sw in ("16", "32"):
        a(f"v_mov_b32 v{t+1}, v{t}"); a("s_nop 1"); a(f"v_permlane{sw}_swap_b32 v{t}, v{t+1}"); a(f"v_max_f32 v{t}, v{t}, v{t+1}")
    a(f"v_mul_f32 v{t}, s40, v{t}")
    for r in regs: a(f"v_fma_f32 v{r}, v{r}, s40, -v{t}")
    for r in regs: a(f"v_exp_f32 v{r}, v{r}")

def task_g2a(a):
    a("s_and_b32 s32, s75, 4"); a("s_and_b32 s33, s75, 1"); a("s_lshl_b32 s33, s33, 1"); a("s_or_b32 s32, s32, s33"); a("s_bfe_u32 s33, s75, 0x10001"); a("s_or_b32 s32, s32, s33")
    gemm.setup_a_rowmajor(a, 2048, 4, "s32"); gemm.setup_w(a, 8192)
    a("s_lshl_b32 s32, s31, 19"); a("s_add_u32 s80, s10, s32"); a("s_addc_u32 s81, s11, 0")
    a("s_lshl_b32 s32, s30, 9"); a("s_add_u32 s82, s14, s32"); a("s_addc_u32 s83, s15, 0")
    a("s_mov_b32 s66, 7")
    gemm.call(a, "core_T")
    wstamp(a, 0)
    a("s_lshl_b32 s38, s31, 3"); a("s_and_b32 s33, s72, 2"); a("s_add_u32 s38, s38, s33"); a("s_add_u32 s38, s38, s72"); a("s_mov_b32 s39, s38"); a("s_lshl_b32 s38, s38, 5")
    a("s_lshl_b32 s42, s30, 1"); a("s_add_u32 s42, s42, s73"); a("s_add_u32 s38, s38, s42")
    a("s_lshl_b32 s34, s38, 14"); a(f"s_add_u32 s34, s34, {rec.WS_KX}"); rec.near(a, 32, "s34", "s22", 28, "s35", kv=True)
    rec.v_from_k(a, 34, 32)
    a("v_lshlrev_b32 v16, 4, v0"); a("v_add_u32 v17, 0x1000, v16"); a("v_add_u32 v18, 0x100000, v16"); a("v_add_u32 v19, 0x101000, v16")
    a("s_mul_i32 s43, s75, 20480")
    kp, kok = a.newlabel("kp"), a.newlabel("ko")
    rec.kv_tile(a, "s47", "s39", "s48"); a("s_add_u32 s49, s39, 2"); rec.kv_tile(a, "s49", "s49", "s48"); a("s_sub_u32 s49, s49, s47")
    a("s_lshl_b32 s47, s47, 7"); a("s_lshl_b32 s48, s30, 2"); a("s_add_u32 s47, s47, s48"); a(f"s_add_u32 s47, s47, {rec.WS_FLAG + 96*128}")
    a("v_and_b32 v22, s49, v0"); a("v_lshl_add_u32 v22, v22, 7, s47"); a("v_mov_b32 v23, 0")
    a.label(kp)
    a("global_load_dword v26, v22, s[28:29] sc1"); a("global_load_dword v27, v22, s[28:29] offset:64 sc1")
    a(f"global_load_dword v24, v23, s[26:27] offset:{D_PROG} sc1"); a("s_waitcnt vmcnt(0)")
    a("v_or_b32 v26, v26, v27"); a("v_cmp_ne_u32 vcc, 0, v26"); a(f"s_cbranch_vccz {kok}")
    a("s_sleep 12")
    a("s_add_u32 s46, s46, 1"); a(f"s_cmp_lt_u32 s46, {WSPIN}"); a(f"s_cbranch_scc1 {kp}")
    a("s_branch w_fail")
    a.label(kok)
    def take_progress():
        a("v_readfirstlane_b32 s48, v24"); a("s_nop 0")
        a("s_max_u32 s48, s48, 1"); a("s_sub_u32 s48, s48, 1")
    take_progress()
    a("s_barrier")
    def m_wait(seg):
        lp, ok, nf = a.newlabel("ap"), a.newlabel("ao"), a.newlabel("nf")
        a.label(lp)
        a(f"s_cmp_lt_u32 {seg}, s48"); a(f"s_cbranch_scc1 {ok}")
        a("s_cmp_lt_u32 s48, 59"); a(f"s_cbranch_scc1 {nf}")
        a("s_sleep 2")
        a("global_load_dword v24, v31, s[28:29] sc1"); a("s_waitcnt vmcnt(0)")
        a("v_readlane_b32 s49, v24, 0"); a("v_readlane_b32 s50, v24, 1"); a("s_min_i32 s49, s49, s50")
        a("v_readlane_b32 s50, v24, 2"); a("s_min_i32 s49, s49, s50"); a("v_readlane_b32 s50, v24, 3"); a("s_min_i32 s49, s49, s50")
        a("s_add_u32 s49, s49, 1"); a("s_max_u32 s48, s48, s49")
        a("s_add_u32 s46, s46, 1"); a(f"s_cmp_lt_u32 s46, {WSPIN}"); a(f"s_cbranch_scc1 {lp}")
        a("s_branch w_fail")
        a.label(nf)
        a("s_sleep 8")
        a(f"global_load_dword v24, v23, s[26:27] offset:{D_PROG} sc1"); a("s_waitcnt vmcnt(0)")
        take_progress()
        a("s_add_u32 s46, s46, 1"); a(f"s_cmp_lt_u32 s46, {WSPIN}"); a(f"s_cbranch_scc1 {lp}")
        a("s_branch w_fail")
        a.label(ok)
    def kv_loads(sg):
        for kt in range(2):
            for jj in range(4):
                a(f"global_load_dwordx4 {R('a', sg*32 + (kt*4 + jj)*4)}, v{16 + sg*2 + kt}, s[32:33] offset:{jj*1024} sc1")
            a(f"s_add_u32 m0, s43, {sg*10240 + kt*4096}"); a("s_nop 0")
            for jj in range(4):
                a(f"global_load_lds_dwordx4 v{16 + sg*2 + kt}, s[34:35] offset:{jj*1024} sc1")
    a("s_and_b32 s47, s42, 15"); a("s_lshl_b32 s47, s47, 9"); a("s_lshr_b32 s49, s42, 4"); a("s_lshl_b32 s49, s49, 14"); a("s_add_u32 s47, s47, s49")
    a("s_xor_b32 s49, s22, 1"); a("s_lshl_b32 s49, s49, 13"); a("s_add_u32 s47, s47, s49"); a(f"s_add_u32 s47, s47, {rec.WS_HW}")
    a("v_and_b32 v31, 3, v0"); a("v_lshl_add_u32 v31, v31, 7, s47")
    a("s_max_u32 s54, s39, 5"); a("s_sub_u32 s54, s54, 5")
    m_wait("s54")
    kv_loads(0)
    pack_frags(a)
    a("s_lshr_b32 s50, s38, 1"); a("s_lshl_b32 s50, s50, 14"); a("s_and_b32 s51, s38, 1"); a("s_lshl_b32 s51, s51, 12"); a("s_add_u32 s50, s50, s51"); a(f"s_add_u32 s50, s50, {rec.WS_KMVM}")
    rec.near(a, 52, "s50", "s22", 28, "s51")
    a("v_and_b32 v28, 7, v0"); a("v_lshlrev_b32 v28, 4, v28"); a("v_lshrrev_b32 v24, 4, v0"); a("v_lshl_add_u32 v28, v24, 7, v28")
    XB = (108, 32)
    def m_loads(sg, adv=True):
        for jj in range(4): a(f"global_load_dwordx4 {R('v', XB[sg] + 4*jj)}, v28, s[52:53] offset:{jj*512} sc1")
        for i in range(2): a(f"global_load_dwordx4 {R('v', XB[sg] + 16 + 4*i)}, v16, s[52:53] offset:{2048 + i*1024} sc1")
        if adv: a("s_add_u32 s52, s52, 0x80000"); a("s_addc_u32 s53, s53, 0")
    def seg_signal(seg):
        a(f"s_lshl_b32 s47, {seg}, 7"); a("s_lshl_b32 s49, s42, 2"); a("s_add_u32 s47, s47, s49"); a(f"s_add_u32 s47, s47, {rec.WS_FLAG}")
        a(f"s_lshr_b32 s50, {seg}, 1"); a("s_lshl_b32 s50, s50, 14"); a(f"s_and_b32 s49, {seg}, 1"); a("s_lshl_b32 s49, s49, 12"); a("s_add_u32 s50, s50, s49")
        a("s_lshl_b32 s49, s42, 7"); a("s_add_u32 s50, s50, s49"); a("s_xor_b32 s49, s22, 1"); a("s_lshl_b32 s49, s49, 13"); a("s_add_u32 s50, s50, s49")
        a(f"s_add_u32 s50, s50, {rec.WS_FLAG2 - 24*16384}")
        a(f"s_cmp_ge_u32 {seg}, 48"); a("s_cselect_b32 s47, s50, s47"); a("v_mov_b32 v29, s47")
        a("s_waitcnt vmcnt(0)")
        a("s_mov_b64 exec, 1")
        a("global_store_dword v29, v23, s[28:29] sc1")
        a("s_mov_b64 exec, -1")
    early, late = a.newlabel("e0"), a.newlabel("l0")
    a("s_cmp_lt_u32 s39, s48"); a(f"s_cbranch_scc1 {early}")
    kv_loads(1); m_wait("s39"); m_loads(0)
    a("s_waitcnt vmcnt(0)")
    a(f"s_branch {late}")
    a.label(early)
    m_loads(0); kv_loads(1)
    a.label(late)
    a("v_lshrrev_b32 v24, 4, v0"); a("v_lshlrev_b32 v24, 2, v24"); a("v_and_b32 v25, 15, v0"); a("v_mov_b32 v26, 0xff800000")
    for i in range(4):
        a(f"v_add_u32 v27, {i}, v24"); a("v_cmp_gt_u32 vcc, v27, v25"); a("s_nop 1"); a(f"v_cndmask_b32 v{96+i}, 0, v26, vcc")
    a("v_cmp_gt_u32 vcc, 32, v0"); a("s_nop 1")
    for i in range(4): a(f"v_cndmask_b32 v{100+i}, 0, v26, vcc")
    for i in range(4): a(f"v_mov_b32 v{104+i}, 0x3f803f80")
    a("v_and_b32 v24, 3, v0"); a("v_lshrrev_b32 v25, 2, v0")
    a("v_lshlrev_b32 v18, 4, v25"); a("v_lshl_add_u32 v18, v24, 8, v18"); a("v_add_u32 v18, s43, v18")
    a("v_and_b32 v25, 7, v25"); a("v_lshlrev_b32 v19, 4, v25"); a("v_lshl_add_u32 v19, v24, 7, v19"); a("v_add_u32 v19, s43, v19")
    a("v_add_u32 v20, s43, v16")
    a("v_mov_b32 v21, v16"); a("v_add_u32 v22, 0x40000, v21")
    a("s_lshl_b32 s50, s39, 19"); a("s_lshl_b32 s51, s30, 14"); a("s_add_u32 s50, s50, s51"); a("s_lshl_b32 s51, s73, 12"); a("s_add_u32 s50, s50, s51"); a(f"s_add_u32 s50, s50, {WS_O}")
    wside(a, 36, "s50", "s51")
    a(f"s_mov_b32 s40, {SCL}")
    a("s_add_u32 s54, s39, 2")
    for sg in range(2):
        lo = sg*10240
        xb = XB[sg]
        if sg == 0:
            a("s_waitcnt vmcnt(16)")
        else:
            have = a.newlabel("h1")
            a("s_cmp_eq_u32 s55, 1"); a(f"s_cbranch_scc1 {have}")
            seg_signal("s39")
            a("s_min_u32 s51, s54, 61"); m_wait("s51"); tstamp(a, 0, 2, 3)
            again = a.newlabel("m1")
            a.label(again)
            m_loads(1, False)
            a("s_waitcnt vmcnt(0)")
            a("s_cmp_lt_u32 s54, 62"); a(f"s_cbranch_scc1 {have}")
            a(f"v_max3_u32 v24, v{xb}, v{xb+1}, v{xb+2}")
            for rr in range(xb + 3, xb + 23, 2): a(f"v_max3_u32 v24, v24, v{rr}, v{rr+1}")
            a(f"v_max_u32 v24, v24, v{xb+23}")
            a("v_cmp_eq_u32 vcc, -1, v24"); a(f"s_cbranch_vccz {have}")
            a("s_sleep 2")
            a("s_add_u32 s46, s46, 1"); a(f"s_cmp_lt_u32 s46, {WSPIN}"); a(f"s_cbranch_scc1 {again}")
            a("s_branch w_fail")
            a.label(have)
            tstamp(a, 1, 2, 3)
            a("s_waitcnt vmcnt(8)")
        for i in range(2): a(f"ds_write_b128 v20, {R('v', xb + 16 + 4*i)} offset:{lo + 8192 + i*1024}")
        tiles = [(132, 0, 0, "v[96:99]"), (136, 2, 0, "v[100:103]"), (140, 0, 1, "0"), (144, 1, 1, "v[96:99]"), (148, 2, 1, "v[100:103]")]
        for jj in range(4):
            for d, kt, qt, C in tiles:
                A = R('v', xb + 4*jj) if kt == 2 else R('a', sg*32 + (kt*4 + jj)*4)
                a(f"v_mfma_f32_16x16x32_bf16 {R('v', d)}, {A}, {frag(2*sg + qt, jj)}, " + (C if jj == 0 else R('v', d)))
        if sg == 0:
            no = a.newlabel("n1")
            a("s_mov_b32 s55, 0")
            a("s_cmp_lt_u32 s54, s48"); a(f"s_cbranch_scc0 {no}")
            m_loads(1); a("s_mov_b32 s55, 1")
            a.label(no)
        def vread(jj):
            b = 64 + (jj & 1)*12
            for hf in range(2):
                for kt in range(2):
                    a(f"ds_read_b64_tr_b16 {R('a', b + hf*4 + kt*2, 2)}, v18 offset:{lo + kt*4096 + jj*1024 + hf*8}")
                a(f"ds_read_b64_tr_b16 {R('a', b + 8 + hf*2, 2)}, v19 offset:{lo + 8192 + jj*512 + hf*8}")
        vread(0)
        a("s_nop 3")
        softmax_cols(a, list(range(132, 140)), 24)
        softmax_cols(a, list(range(140, 152)), 24)
        a("s_nop 0")
        a("v_cvt_pk_bf16_f32 v108, v132, v133"); a("v_cvt_pk_bf16_f32 v109, v134, v135"); a("v_mov_b32 v110, 0"); a("v_mov_b32 v111, 0")
        a("v_cvt_pk_bf16_f32 v112, v136, v137"); a("v_cvt_pk_bf16_f32 v113, v138, v139")
        for i in range(4): a(f"v_cvt_pk_bf16_f32 v{116+i}, v{140+2*i}, v{141+2*i}")
        a("v_cvt_pk_bf16_f32 v114, v148, v149"); a("v_cvt_pk_bf16_f32 v115, v150, v151")
        P0 = ["v[108:111]", "v[116:119]"]; P1 = ["v[112:113]", "v[114:115]"]
        a("s_nop 1")
        for qt in range(2): a(f"v_mfma_f32_16x16x32_bf16 {R('v', 120 + 4*qt)}, v[104:107], {P0[qt]}, 0")
        a("s_nop 5")
        for qt in range(2): a(f"v_mfma_f32_16x16x16_bf16 {R('v', 120 + 4*qt)}, v[104:105], {P1[qt]}, {R('v', 120 + 4*qt)}")
        if sg == 1:
            done = a.newlabel("d0")
            a("s_cmp_eq_u32 s55, 1"); a(f"s_cbranch_scc0 {done}")
            seg_signal("s39")
            a.label(done)
        a("s_nop 7")
        a("v_rcp_f32 v24, v120"); a("v_rcp_f32 v26, v124"); a("s_nop 0"); a("v_mov_b32 v25, v24"); a("v_mov_b32 v27, v26")
        OB = (132, 64 if sg else 80)
        def post(jj, qt):
            o = OB[jj & 1] + qt*8
            ops = [f"v_pk_mul_f32 v[{o+i}:{o+i+1}], v[{o+i}:{o+i+1}], v[{24+2*qt}:{25+2*qt}]" for i in range(0, 8, 2)]
            ops += [f"v_cvt_pk_bf16_f32 v{152 + 4*qt + i}, v{o+2*i}, v{o+2*i+1}" for i in range(4)]
            ops += [f"global_store_dwordx4 v{21+qt}, {R('v', 152 + 4*qt)}, s[36:37] offset:{jj*1024} sc1"]
            return ops
        if sg == 0:
            OB = (132, 132)
        for jj in range(4):
            b = 64 + (jj & 1)*12
            if jj < 3:
                vread(jj + 1); a("s_waitcnt lgkmcnt(6)")
            else:
                a("s_waitcnt lgkmcnt(0)")
            pipe = sg == 1 and jj > 0
            fill = post(jj - 1, 0) + post(jj - 1, 1) if pipe else []
            for qt in range(2):
                for hf in range(2):
                    a(f"v_mfma_f32_16x16x32_bf16 {R('v', OB[jj & 1] + (qt*2 + hf)*4)}, {R('a', b + hf*4)}, {P0[qt]}, 0")
            if pipe:
                if jj == 3: a("s_nop 2")
                for _ in range(4): a(fill.pop(0))
            else: a("s_nop 2")
            for qt in range(2):
                for hf in range(2):
                    D = R('v', OB[jj & 1] + (qt*2 + hf)*4)
                    a(f"v_mfma_f32_16x16x16_bf16 {D}, {R('a', b + 8 + hf*2, 2)}, {P1[qt]}, {D}")
                    for _ in range(2):
                        if fill: a(fill.pop(0))
            for x in fill: a(x)
            if sg == 0 or jj == 3:
                a("s_nop 7")
                for x in post(jj, 0) + post(jj, 1): a(x)
        if sg == 0:
            a("s_add_u32 s36, s36, 0x100000"); a("s_addc_u32 s37, s37, 0")
    tstamp(a, 2, 2, 3)
    seg_signal("s54")
    tstamp(a, 3, 2, 3)

def sreg(i): return R('a', 4*i) if i < 24 else R('v', 128 + 4*(i - 24))
def wot_wait(a):
    lp, ok = a.newlabel("tl"), a.newlabel("to")
    a("s_cmp_lg_u32 s75, 0"); a(f"s_cbranch_scc1 {ok}")
    a("v_lshlrev_b32 v18, 2, v0"); a(f"v_add_u32 v18, {rec.WS_FLAG + 108*128}, v18")
    a.label(lp)
    a("global_load_dword v19, v18, s[28:29] sc1"); a("s_waitcnt vmcnt(0)")
    a("v_cmp_ne_u32 vcc, 0, v19"); a(f"s_cbranch_vccz {ok}")
    a("s_sleep 8")
    a("s_add_u32 s46, s46, 1"); a(f"s_cmp_lt_u32 s46, {WSPIN}"); a(f"s_cbranch_scc1 {lp}")
    a("s_branch w_fail")
    a.label(ok)

def task_stream(a):
    wot_wait(a)
    a("s_barrier")
    a("s_and_b32 s42, s45, 1")
    a("s_lshl_b32 s43, s42, 3"); a("s_add_u32 s43, s43, s75")
    a("s_lshr_b32 s32, s45, 1"); a("s_lshl_b32 s32, s32, 20"); a("s_lshl_b32 s33, s43, 15"); a("s_add_u32 s32, s32, s33"); a(f"s_add_u32 s32, s32, {rec.WS_WOT}")
    rec.near_bit(a, "s33", "s32", "s22", True); a("s_add_u32 s32, s32, s33")
    a("v_lshlrev_b32 v10, 4, v0"); a("v_add_u32 v6, s32, v10")
    for cg in range(2):
        for q in range(4):
            a(f"v_add_u32 v2, {cg*rec.WOT_CG + (q >> 1)*16384 + (q & 1)*4096}, v6")
            for j in range(4):
                k = q*2 + (j >> 1)
                a(f"global_load_dwordx4 {sreg(k*4 + cg*2 + (j & 1))}, v2, s[28:29] offset:{j*1024} sc1")
    a("s_lshl_b32 s32, s43, 14"); a("v_add_u32 v2, s32, v10"); a("v_add_u32 v3, 0x1000, v2"); a("v_add_u32 v4, 0x40000, v2"); a("v_add_u32 v5, 0x41000, v2")
    a("s_lshl_b32 s33, s75, 13"); a("v_add_u32 v11, s33, v10")
    a("s_lshr_b32 s33, s75, 2"); a("s_xor_b32 s47, s33, s42")
    a("s_xor_b32 s36, s45, s47"); a("s_and_b32 s33, s36, 1"); a("s_lshl_b32 s33, s33, 12"); a("s_lshr_b32 s36, s36, 1"); a("s_lshl_b32 s36, s36, 14"); a("s_add_u32 s36, s36, s33")
    a("s_and_b32 s33, s75, 3"); a("s_lshl_b32 s33, s33, 10"); a("s_add_u32 s36, s36, s33"); a("v_add_u32 v1, s36, v10")
    a("s_bfe_u32 s32, s75, 0x10001"); a("s_lshl_b32 s36, s32, 12"); a("s_lshr_b32 s33, s75, 2"); a("s_lshl_b32 s33, s33, 11"); a("s_add_u32 s36, s36, s33")
    a("s_and_b32 s33, s75, 1"); a("s_lshl_b32 s37, s33, 10"); a("s_add_u32 s36, s36, s37"); a("v_add_u32 v12, s36, v10")
    a("s_lshl_b32 s32, s32, 16"); a("s_lshl_b32 s33, s33, 3"); a("s_add_u32 s32, s32, s33"); a("s_lshl_b32 s33, s45, 6"); a("s_add_u32 s32, s32, s33"); a(f"s_add_u32 s32, s32, {2048 + 96*65536}")
    a("v_and_b32 v13, 15, v0"); a("v_lshlrev_b32 v13, 12, v13"); a("v_lshrrev_b32 v14, 4, v0"); a("v_lshl_add_u32 v13, v14, 4, v13"); a("v_add_u32 v13, s32, v13")
    a("v_and_b32 v9, 1, v0"); a("v_lshlrev_b32 v9, 7, v9"); a("s_lshl_b32 s32, s43, 8"); a("s_xor_b32 s33, s22, 1"); a("s_lshl_b32 s33, s33, 13"); a("s_add_u32 s32, s32, s33")
    a(f"s_add_u32 s32, s32, {rec.WS_FLAG2}"); a("v_add_u32 v9, s32, v9")
    a("v_mov_b32 v8, 0")
    wstamp(a, 0)
    def pick(dst):
        a(f"s_ff1_i32_b32 {dst}, s34"); a(f"s_bitset0_b32 s34, {dst}")
    def base(dst, item):
        a(f"s_and_b32 s32, {item}, 15"); a("s_lshl_b32 s32, s32, 19"); a(f"s_add_u32 s32, s32, {WS_O + 96*262144}"); wside(a, dst, "s32", "s33")
    def inbox(item):
        a(f"s_lshl_b32 s32, {item}, 18"); a(f"s_add_u32 s32, s32, {WS_INBOX}"); wside(a, 50, "s32", "s33")
    def poll(item):
        a(f"s_bfe_u32 s32, {item}, 0x30001"); a("s_lshl_b32 s32, s32, 14"); a(f"s_and_b32 s33, {item}, 1"); a("s_lshl_b32 s33, s33, 12"); a("s_add_u32 s32, s32, s33")
        a("v_add_u32 v14, s32, v9")
        a("global_load_dword v15, v14, s[28:29] sc1")
    def oload(k):
        a(f"global_load_dwordx4 {R('v', 32 + k*4)}, v{2 + (k >> 2)}, s[38:39] offset:{(k & 3)*1024} sc1")
    def sum8(item):
        lab, j = a.newlabel("fn"), a.newlabel("fj")
        a("s_waitcnt lgkmcnt(0)"); a("s_barrier")
        a("ds_read_b128 v[112:115], v12")
        for part in ((1, 2, 3, 4), (5, 6, 7)):
            for i, m in enumerate(part): a(f"ds_read_b128 v[{96+4*i}:{99+4*i}], v12 offset:{m*8192}")
            for i, m in enumerate(part):
                a(f"s_waitcnt lgkmcnt({len(part) - 1 - i})")
                for h in range(2): a(f"v_pk_add_f32 v[{112+2*h}:{113+2*h}], v[{112+2*h}:{113+2*h}], v[{96+4*i+2*h}:{97+4*i+2*h}]")
        a("v_xor_b32 v12, 0x10000, v12")
        a("s_cmp_eq_u32 s47, 0"); a(f"s_cbranch_scc1 {lab}")
        inbox(item)
        for i in range(4): a(f"v_min_u32 v{112+i}, -2, v{112+i}")
        a("global_store_dwordx4 v1, v[112:115], s[50:51] sc1")
        a(f"s_branch {j}")
        a.label(lab)
        a(f"s_mov_b32 s52, {item}")
        a.label(j)
    def ask():
        no = a.newlabel("an")
        a("s_cmp_lt_i32 s52, 0"); a(f"s_cbranch_scc1 {no}")
        inbox("s52")
        a("global_load_dwordx4 v[120:123], v1, s[50:51] sc1")
        for i in range(4): a(f"v_mov_b32 v{116+i}, v{112+i}")
        a("s_mov_b32 s53, s52"); a("s_mov_b32 s52, -1")
        a.label(no)
    def join(wait):
        lp, ok, no = a.newlabel("jl"), a.newlabel("jo"), a.newlabel("jn")
        a("s_cmp_lt_i32 s53, 0"); a(f"s_cbranch_scc1 {no}")
        a("s_lshl_b32 s32, s53, 17"); a("s_add_u32 s40, s24, s32"); a("s_addc_u32 s41, s25, 0")
        if wait: a("s_waitcnt vmcnt(0)")
        a.label(lp)
        a("v_max3_u32 v124, v120, v121, v122"); a("v_max_u32 v124, v124, v123"); a("v_cmp_eq_u32 vcc, -1, v124"); a(f"s_cbranch_vccz {ok}")
        a("global_load_dwordx4 v[120:123], v1, s[50:51] sc1"); a("s_waitcnt vmcnt(0)")
        a("s_add_u32 s46, s46, 1"); a(f"s_cmp_lt_u32 s46, {WSPIN}"); a(f"s_cbranch_scc1 {lp}")
        a("s_branch w_fail")
        a.label(ok)
        a("v_pk_add_f32 v[116:117], v[116:117], v[120:121]"); a("v_pk_add_f32 v[118:119], v[118:119], v[122:123]")
        a("v_cvt_pk_bf16_f32 v120, v116, v117"); a("v_cvt_pk_bf16_f32 v121, v118, v119")
        a("global_store_dwordx2 v13, v[120:121], s[40:41] " + ("sc1" if "osc" in rec.OPT else "nt" if "ont" in rec.OPT else ""))
        a("s_mov_b32 s53, -1")
        a.label(no)
    def pending():
        lab = a.newlabel("pd")
        a("s_cmp_lt_i32 s35, 0"); a(f"s_cbranch_scc1 {lab}")
        sum8("s35")
        a.label(lab)
    def mm(k, wait):
        a(f"s_waitcnt vmcnt({wait})")
        for ct in range(4):
            D = R('v', 16 + ct*4)
            a(f"v_mfma_f32_16x16x32_bf16 {D}, {sreg((k & 7)*4 + ct)}, {R('v', 32 + k*4)}, " + ("0" if k & 7 == 0 else D))
    def park(tt):
        a("s_nop 4")
        for f in range(4): a(f"ds_write_b128 v11, {R('v', 16 + f*4)} offset:{tt*4096 + f*1024}")
        if tt: a("v_xor_b32 v11, 0x10000, v11")
        a("s_waitcnt lgkmcnt(0)")
    pick("s31"); pick("s36")
    a("s_mov_b32 s37, 0"); a("s_mov_b32 s52, -1"); a("s_mov_b32 s53, -1"); a("s_mov_b64 s[50:51], s[28:29]")
    a.label("st_wait")
    a("s_add_u32 s32, s31, 49"); a("s_min_u32 s32, s32, 63"); a("s_cmp_le_u32 s32, s37"); a("s_cbranch_scc1 st_near")
    a("s_sleep 6")
    a(f"global_load_dword v7, v8, s[26:27] offset:{D_PROG} sc1"); a("s_waitcnt vmcnt(0)")
    a("v_readfirstlane_b32 s37, v7")
    a("s_branch st_more")
    a.label("st_near")
    poll("s31"); a("s_waitcnt vmcnt(0)")
    a("v_cmp_ne_u32 vcc, 0, v15"); a("s_cbranch_vccz st_rdy")
    a("s_sleep 2")
    a.label("st_more")
    a("s_add_u32 s46, s46, 1"); a(f"s_cmp_lt_u32 s46, {WSPIN}"); a("s_cbranch_scc1 st_wait")
    a("s_branch w_fail")
    a.label("st_rdy")
    tstamp(a, 4)
    base(38, "s31")
    poll("s36")
    for k in range(16): oload(k)
    a("s_mov_b32 s35, -1")
    a.label("st_item")
    a("s_mov_b32 s30, s31"); a("s_mov_b32 s31, s36"); pick("s36")
    a("s_waitcnt vmcnt(16)")
    a("v_cmp_ne_u32 vcc, 0, v15")
    a("s_cmp_lt_i32 s31, 0"); a("s_cbranch_scc1 st_slow")
    a("s_cbranch_vccnz st_slow")
    base(38, "s31")
    poll("s36")
    for k in range(16):
        mm(k, 16)
        if k == 14: join(False); ask()
        oload(k)
        if k == 2: pending()
        if k == 7: park(0)
    park(1)
    a("s_mov_b32 s35, s30")
    a("s_branch st_item")
    a.label("st_slow")
    pending()
    for k in range(16):
        mm(k, 15 - k)
        if k == 7: park(0)
    tstamp(a, 5)
    park(1); join(False); ask(); sum8("s30"); join(True); ask(); join(True)
    tstamp(a, 6)
    a("s_cmp_lt_i32 s31, 0"); a("s_cbranch_scc0 st_wait")

def emit_mega(a, prof=False):
    kernel_begin(a, NAME + "_kernel")
    a("s_cmp_ge_u32 s2, 256"); a("s_cbranch_scc1 w_exit")
    if "span" in rec.OPT: a("s_memrealtime s[100:101]")
    load_ptrs(a)
    a("s_getreg_b32 s44, hwreg(HW_REG_XCC_ID)"); a("s_and_b32 s44, s44, 7")
    if "fakex" in rec.OPT:
        a("s_bitcmp1_b32 s2, 3"); a("s_cbranch_scc0 fake_done")
        a("s_cmp_eq_u32 s44, 1"); a("s_cselect_b32 s44, 5, s44"); a("s_cmp_eq_u32 s44, 2"); a("s_cselect_b32 s44, 7, s44")
        a.label("fake_done")
    a("v_lshrrev_b32 v1, 6, v0"); a("v_mov_b32 v34, 0"); a("s_mov_b32 s46, 0")
    a("v_readfirstlane_b32 s75, v1")
    if "nowarm" not in rec.OPT:
        a("s_cmp_eq_u32 s75, 2"); a("s_cbranch_scc0 no_warm")
        a("s_getpc_b64 s[30:31]")
        a.label("warm_pc")
        a("s_lshr_b32 s32, s2, 3"); a("s_lshl_b32 s32, s32, 12"); a("v_and_b32 v35, 63, v0"); a("v_lshl_add_u32 v35, v35, 6, s32")
        a("v_min_u32 v35, code_end-warm_pc-4, v35"); a("v_and_b32 v35, -4, v35")
        a("global_load_dword a95, v35, s[30:31]")
        a.label("no_warm")
    a("s_waitcnt lgkmcnt(0)")
    a("s_add_u32 s28, s28, 0x1fffff"); a("s_addc_u32 s29, s29, 0"); a("s_and_b32 s28, s28, 0xffe00000")
    a("s_cmp_lg_u32 s75, 0"); a("s_cbranch_scc1 no_tick")
    a("s_and_b32 s32, s44, 3"); a("s_lshl_b32 s32, s32, 2"); a("s_and_b32 s33, s44, 4"); a("s_lshl_b32 s33, s33, 5"); a("s_add_u32 s32, s32, s33")
    a("v_mov_b32 v35, s32"); a("v_mov_b32 v36, 1")
    a("s_mov_b64 exec, 1")
    a("global_atomic_add v37, v35, v36, s[26:27] sc0 sc1")
    a("s_mov_b64 exec, -1")
    a.label("no_tick")
    a("v_and_b32 v0, 63, v0")
    if rec.PAR["EPF"] == 3:
        a("s_and_b32 s32, s75, s44"); a("s_bitcmp1_b32 s32, 2"); a("s_cbranch_scc0 no_epf")
        a("s_lshr_b32 s33, s2, 3")
        a("s_cmp_eq_u32 s75, 4"); a("s_cbranch_scc0 epf_w")
        a("v_lshrrev_b32 v36, 3, v0"); a("v_lshlrev_b32 v36, 11, v36"); a("v_and_b32 v37, 7, v0"); a("v_lshl_add_u32 v36, v37, 7, v36")
        a("s_lshl_b32 s33, s33, 14"); a("v_add_u32 v36, s33, v36")
        a("global_load_dword a95, v36, s[10:11]")
        a("s_branch no_epf")
        a.label("epf_w")
        a("s_sub_u32 s34, s75, 5"); a("s_lshl_b32 s34, s34, 2"); a("s_lshr_b32 s35, s33, 3"); a("s_add_u32 s35, s35, s34"); a("s_lshl_b32 s35, s35, 17")
        a("s_and_b32 s36, s44, 1"); a("s_lshl_b32 s36, s36, 3"); a("s_and_b32 s37, s33, 7"); a("s_add_u32 s36, s36, s37"); a("s_lshl_b32 s36, s36, 9"); a("s_add_u32 s35, s35, s36")
        a("v_lshrrev_b32 v36, 2, v0"); a("v_lshlrev_b32 v36, 13, v36"); a("v_and_b32 v37, 3, v0"); a("v_lshl_add_u32 v36, v37, 7, v36"); a("v_add_u32 v36, s35, v36")
        a("s_bitcmp1_b32 s44, 1"); a("s_cselect_b64 s[30:31], s[18:19], s[16:17]")
        a("global_load_dword a95, v36, s[30:31]")
        a.label("no_epf")
    elif rec.PAR["EPF"]:
        a("s_and_b32 s32, s75, s44"); a("s_bitcmp1_b32 s32, 2"); a("s_cbranch_scc0 no_epf")
        a("s_lshr_b32 s33, s2, 3"); a("s_and_b32 s34, s75, 3"); a("v_and_b32 v35, 63, v0")
        if rec.PAR["EPF"] == 2:
            a("s_cmp_lt_u32 s33, 16"); a("s_cbranch_scc1 no_epf"); a("s_sub_u32 s33, s33, 16")
        a("s_lshr_b32 s35, s33, 3"); a("s_lshl_b32 s35, s35, 2"); a("s_add_u32 s35, s35, s34"); a("s_lshl_b32 s35, s35, 17")
        a("s_and_b32 s36, s44, 1"); a("s_lshl_b32 s36, s36, 3"); a("s_and_b32 s37, s33, 7"); a("s_add_u32 s36, s36, s37"); a("s_lshl_b32 s36, s36, 9"); a("s_add_u32 s35, s35, s36")
        a("v_lshrrev_b32 v36, 2, v35"); a("v_lshlrev_b32 v36, 13, v36"); a("v_and_b32 v37, 3, v35"); a("v_lshl_add_u32 v36, v37, 7, v36"); a("v_add_u32 v36, s35, v36")
        a("s_bitcmp1_b32 s44, 1"); a("s_cselect_b64 s[30:31], s[18:19], s[16:17]")
        a("s_lshl_b32 s33, s33, 2"); a("s_add_u32 s33, s33, s34"); a("s_lshl_b32 s33, s33, 13"); a("v_lshl_add_u32 v35, v35, 7, s33")
        a("global_load_dword a95, v36, s[30:31]")
        a("global_load_dword a95, v35, s[10:11]")
        if rec.PAR["EPF"] == 2:
            a(f"v_add_u32 v36, {128*8192}, v36"); a(f"v_add_u32 v35, {512*1024}, v35")
            a("global_load_dword a95, v36, s[30:31]")
            a("global_load_dword a95, v35, s[10:11]")
        a.label("no_epf")
    gemm.setup_common(a); gemm.setup_a_rowmajor(a, 2048, 2); gemm.setup_w(a, 8192)
    a("s_cmp_eq_u32 s75, 1"); a("s_cbranch_scc0 no_probe")
    a("s_mov_b32 s47, 0")
    a("s_cmp_lt_u32 s44, 4"); a("s_cbranch_scc0 probe_done")
    a(f"s_add_u32 s30, s28, {rec.WS_PROBE}"); a("s_addc_u32 s31, s29, 0")
    a("s_lshr_b32 s32, s2, 5"); a("s_and_b32 s33, s32, 1"); a("s_lshr_b32 s32, s32, 1"); a("s_lshl_b32 s32, s32, 2"); a("s_add_u32 s32, s32, s33"); a("s_lshl_b32 s32, s32, 12")
    a("s_and_b32 s33, s2, 31"); a("s_lshl_b32 s33, s33, 7"); a("s_add_u32 s32, s32, s33")
    a("v_mov_b32 v35, s32")
    a("s_mov_b64 exec, 1")
    a("s_mov_b32 s38, -1"); a("s_mov_b32 s39, -1"); a("s_mov_b32 s40, 6")
    a.label("probe_loop")
    a("s_memtime s[34:35]"); a("s_waitcnt lgkmcnt(0)")
    a("global_store_dword v35, v34, s[30:31] sc1"); a("s_waitcnt vmcnt(0)")
    a("s_memtime s[36:37]"); a("s_waitcnt lgkmcnt(0)")
    a("s_sub_u32 s36, s36, s34"); a("s_min_u32 s36, s36, s38"); a("s_mov_b32 s38, s39"); a("s_mov_b32 s39, s36")
    a("v_xor_b32 v35, 0x2000, v35")
    a("s_sub_u32 s40, s40, 1"); a("s_cmp_lg_u32 s40, 0"); a("s_cbranch_scc1 probe_loop")
    a("s_mov_b64 exec, -1")
    a("s_cmp_lt_u32 s39, s38"); a("s_cselect_b32 s47, 1, 0")
    a.label("probe_done")
    a("v_mov_b32 v35, s47"); a("ds_write_b32 v34, v35 offset:4")
    a.label("no_probe")
    a("s_cmp_lg_u32 s75, 0"); a("s_cbranch_scc1 role_wait")
    a("s_mov_b64 exec, 1"); a("s_waitcnt vmcnt(0)")
    a("v_readfirstlane_b32 s45, v37")
    a("s_cmp_lt_u32 s45, 32"); a("s_cbranch_scc1 role_have")
    a(f"v_mov_b32 v35, {D_OVF}")
    a("global_atomic_add v37, v35, v36, s[26:27] sc0 sc1"); a("s_waitcnt vmcnt(0)")
    a("v_readfirstlane_b32 s45, v37")
    a.label("role_poll")
    a("global_load_dwordx4 v[40:43], v34, s[26:27] sc1"); a("global_load_dwordx4 v[44:47], v34, s[26:27] offset:128 sc1"); a("s_waitcnt vmcnt(0)")
    a("s_mov_b32 s33, 0")
    for i in range(8):
        a(f"v_readfirstlane_b32 s{34+i}, v{40+i}"); a(f"s_add_u32 s33, s33, s{34+i}")
    a("s_cmp_eq_u32 s33, 256"); a("s_cbranch_scc1 role_pick")
    a("s_sleep 8"); a("s_add_u32 s46, s46, 1"); a(f"s_cmp_lt_u32 s46, {WSPIN}"); a("s_cbranch_scc1 role_poll")
    a("s_mov_b64 exec, -1"); a("s_branch w_fail")
    a.label("role_pick")
    for i in range(8):
        a(f"s_min_u32 s33, s{34+i}, 32"); a("s_add_u32 s45, s45, s33"); a(f"s_mov_b32 s44, {i}")
        if i < 7:
            a("s_cmp_lt_u32 s45, 32"); a("s_cbranch_scc1 role_have"); a("s_sub_u32 s45, s45, 32")
    a.label("role_have")
    a("s_lshl_b32 s32, s44, 5"); a("s_or_b32 s32, s32, s45"); a("v_mov_b32 v35, s32")
    a("ds_write_b32 v34, v35")
    a("s_mov_b64 exec, -1")
    a.label("role_wait")
    a("s_waitcnt lgkmcnt(0)"); a("s_barrier")
    a("ds_read_b64 v[36:37], v34"); a("s_waitcnt lgkmcnt(0)")
    a("v_readfirstlane_b32 s32, v36"); a("v_readfirstlane_b32 s47, v37")
    a("s_cmp_lg_u32 s75, 0"); a("s_cbranch_scc1 voted")
    a("s_cmp_ge_u32 s32, 128"); a("s_cbranch_scc1 voted")
    a("s_and_b32 s47, s47, 1"); a("s_lshl_b32 s47, s47, 16"); a("s_or_b32 s47, s47, 1"); a("v_mov_b32 v35, s47")
    a("s_mov_b64 exec, 1")
    a(f"global_atomic_add v34, v35, s[26:27] offset:{rec.DBG_VOTE} sc1")
    a("s_mov_b64 exec, -1")
    a.label("voted")
    a("s_barrier")
    if "span" in rec.OPT:
        a("s_and_b32 s98, s2, 0x38"); a("s_or_b32 s98, s98, s75"); a("s_cmp_lg_u32 s98, 0"); a("s_cbranch_scc1 span1")
        a("s_memrealtime s[98:99]"); a("s_waitcnt lgkmcnt(0)"); a("s_not_b32 s100, s100"); a("v_mov_b32 v36, s100"); a("v_mov_b32 v37, s98")
        a("s_mov_b64 exec, 1"); a("global_atomic_umax v34, v36, s[26:27] offset:48 sc1"); a("global_atomic_umax v34, v37, s[26:27] offset:52 sc1"); a("s_mov_b64 exec, -1")
        a.label("span1")
    a("s_and_b32 s45, s32, 31"); a("s_bfe_u32 s44, s32, 0x30005")
    a("s_cmp_ge_u32 s44, 4"); a("s_cbranch_scc1 worker")
    a("s_lshl_b32 s18, s44, 3"); a("s_lshr_b32 s19, s45, 2"); a("s_add_u32 s18, s18, s19"); a("s_and_b32 s19, s45, 3")
    a("s_lshl_b32 s32, s75, 6"); a("v_add_u32 v0, s32, v0")
    rec.emit_rec(a, "rec", prof=prof, kvwait=True)
    a.label("worker")
    a("s_sub_u32 s44, s44, 4")
    a("s_mov_b32 s88, 0"); a("s_mov_b32 s89, 0"); a("s_mov_b32 s77, 0")
    a("s_mov_b32 s59, 0") if PROF else None
    a("s_lshl_b32 s96, s44, 5"); a("s_add_u32 s96, s96, s45"); a("s_lshl_b32 s96, s96, 3"); a("s_add_u32 s96, s96, s75")
    a("s_lshl_b32 s32, s44, 3"); a("s_lshr_b32 s44, s45, 3"); a("s_and_b32 s45, s45, 7"); a("s_add_u32 s45, s45, s32")
    if PROF: a("s_lshl_b32 s97, s44, 5"); a("s_add_u32 s97, s97, s45")
    wstamp(a, 0)
    def g1(grp):
        MT, first = ((2, 0), (3, 32), (3, 80))[grp]
        a("s_mov_b32 s23, s44")
        a("s_mov_b32 s30, s45"); a(f"s_mul_i32 s31, s23, {4*MT}"); a(f"s_add_u32 s31, s31, {first}")
        task_g1(a, MT, grp)
    def tile_2x4():
        a("s_bfe_u32 s30, s45, 0x10003"); a("s_lshl_b32 s30, s30, 1"); a("s_and_b32 s32, s45, 1"); a("s_add_u32 s30, s30, s32")
        a("s_lshr_b32 s31, s45, 4"); a("s_lshl_b32 s31, s31, 2"); a("s_bfe_u32 s32, s45, 0x20001"); a("s_add_u32 s31, s31, s32")
    touches(a, [(10, 1 << 20, 3, 0, 3)]*3)
    if rec.PAR["ST"] == 1: a("s_mov_b32 s98, 0")
    g1(0)
    if not rec.PAR["RPF"]: touches(a, [(4, 0, 4, 0, 4), (6, 0, 6, 0, 4), (6, 0, 6, 4, 2)])
    elif rec.PAR["RPF"] == 1 and not rec.PAR["QPL"]: touches(a, [(14, 0, 8, 0, 4), (14, 0, 8, 4, 4), (14, 0, 8, 4, 4)])
    g1(1)
    if not rec.PAR["RPF"]: touches(a, [(14, 0, 8, 0, 4), (14, 0, 8, 4, 4), (8, 0, 2, 0, 2)])
    a("s_cmp_lt_u32 s44, 2"); a("s_cbranch_scc1 w_g1c")
    a("s_lshl_b32 s23, s44, 1"); a("s_and_b32 s32, s45, 1"); a("s_add_u32 s23, s23, s32")
    a("s_cmp_eq_u32 s23, 6"); a("s_cbranch_scc1 w_wot0")
    tile_2x4()
    a("s_and_b32 s32, s44, 1"); a("s_lshl_b32 s32, s32, 2"); a("s_add_u32 s30, s30, s32")
    a.label("w_kv")
    task_g4kv(a)
    wstamp(a, 0)
    a("s_cmp_eq_u32 s23, 5"); a("s_cbranch_scc0 w_kvd")
    a("s_mov_b32 s23, 7"); a("s_add_u32 s30, s30, 3"); a("s_branch w_kv")
    a.label("w_kvd")
    a("s_cmp_eq_u32 s23, 7"); a("s_cbranch_scc1 w_g1c")
    a.label("w_wot0")
    a("s_and_b32 s32, s44, 1"); a("s_add_u32 s30, s45, s32"); a("s_mov_b32 s31, 0")
    a.label("w_wot")
    task_wot(a)
    a("s_add_u32 s31, s31, 1"); a("s_cmp_lt_u32 s31, 2"); a("s_cbranch_scc1 w_wot")
    wstamp(a, 0)
    a.label("w_g1c")
    if rec.PAR.get("WDLY", -1) >= 0:
        a(f"s_cmp_eq_u32 s44, {rec.PAR['WDLY']}"); a("s_cbranch_scc0 w_nod"); a("s_sleep 100"); a.label("w_nod")
    g1(2)
    a.label("w_g2a")
    a("s_lshr_b32 s30, s45, 1"); a("s_and_b32 s31, s45, 1"); a("s_lshr_b32 s32, s44, 1"); a("s_xor_b32 s32, s32, s44"); a("s_lshl_b32 s32, s32, 1"); a("s_add_u32 s31, s31, s32")
    task_g2a(a)
    wstamp(a, 0)
    a("s_cmp_eq_u32 s44, 0"); a("s_cbranch_scc1 w_g5")
    a("s_cmp_eq_u32 s44, 2"); a("s_cbranch_scc1 w_set2")
    a("s_lshr_b32 s30, s45, 3")
    a("s_cmp_eq_u32 s44, 3"); a("s_cbranch_scc1 w_f1")
    a("s_and_b32 s31, s45, 7")
    task_g3(a, 2)
    wstamp(a, 0)
    a(f"s_mov_b32 s34, {setmask(1):#x}")
    a("s_branch w_stream")
    a.label("w_f1")
    a("s_lshl_b32 s31, s31, 2"); a("s_bfe_u32 s32, s45, 0x20001"); a("s_add_u32 s31, s31, s32")
    task_g3(a, 1)
    wstamp(a, 0)
    a.label("w_set2")
    a("s_bitcmp1_b32 s45, 0"); a("s_cbranch_scc1 w_exit")
    a("s_and_b32 s32, s44, 1"); a("s_add_u32 s45, s45, s32")
    a(f"s_mov_b32 s34, {setmask(2):#x}")
    a("s_branch w_stream")
    a.label("w_g5")
    tile_2x4()
    task_g4q(a)
    wstamp(a, 0)
    task_g5(a)
    wstamp(a, 0)
    a(f"s_mov_b32 s34, {setmask(0):#x}")
    a.label("w_stream")
    task_stream(a)
    wstamp(a, 0)
    if "span" in rec.OPT:
        a("s_and_b32 s98, s45, 7"); a("s_or_b32 s98, s98, s75"); a("s_cmp_lg_u32 s98, 0"); a("s_cbranch_scc1 w_exit")
        a("s_waitcnt vmcnt(0)"); a("s_memrealtime s[98:99]"); a("s_waitcnt lgkmcnt(0)"); a("v_mov_b32 v5, s98"); a("v_mov_b32 v2, 0")
        a("s_mov_b64 exec, 1"); a("global_atomic_umax v2, v5, s[26:27] offset:60 sc1")
    a("s_endpgm")
    a.label("w_fail")
    a("v_mov_b32 v16, 0"); a("v_mov_b32 v17, 0xdead"); a("global_store_dword v16, v17, s[26:27] offset:248")
    a.label("w_exit")
    a("s_endpgm")
    gemm.emit_core(a, "core_T", 'T')
    gemm.emit_core(a, "core_N", 'N')
    gemm.emit_core(a, "core_T3", 'T', MT=3)
    gemm.XORK = True
    gemm.emit_core(a, "core_T2", 'T', MT=2)
    gemm.XORK = False
    gemm.WFLAG = "sc1"; gemm.WFRAG = True
    gemm.emit_core(a, "core_F1", 'T', MT=1, aflag="sc1")
    gemm.emit_core(a, "core_F2", 'T', MT=2, aflag="sc1")
    gemm.WFLAG = ""; gemm.WFRAG = False
    a.label("code_end")

DOC = """
; chosen per launch from a latency probe (speed only). The s_sleep instructions are back-offs in front of and inside polling loops:
"""

def generate(prof=False):
    global PROF
    PROF = bool(prof)
    gemm.TUNE["SLP"] = rec.PAR.get("SLP", 0); gemm.TUNE["CST"] = rec.PAR.get("CST", 0)
    raw = open(f"cdna_kernels/{NAME}.s.ref").read().split("\n")
    hdr = []
    for l in raw:
        if not l.startswith(";") or "Override" in l: break
        hdr.append(l)
    a = Asm()
    emit_mega(a, prof)
    s = "\n".join(hdr) + "\n"
    s += f"; @launch kernel={NAME}_kernel grid=(256,1,1) block=(512,1,1) lds=163840\n"
    s += DOC.lstrip("\n")
    s += '.amdgcn_target "amdgcn-amd-amdhsa--gfx950"\n.text\n' + a.text() + '.section .rodata,"a"\n'
    s += kernel_desc(NAME + "_kernel", vgpr=256, accum=160)
    return s

if __name__ == "__main__":
    out = sys.argv[1] if len(sys.argv) > 1 else f"cdna_kernels/{NAME}.s"
    open(out, "w").write(generate())
    print("wrote", out)
```

```python
from asmgen import *

WS_RING  = 1 << 20
WS_RING1 = 0x180000
WS_PROBE = 0x1f0000
WS_FLAG2 = 0x140000
WS_HW    = 0x160000
WS_FLAG  = 0x1e0000
WS_MEMS  = 2 << 20
WS_KMVM  = 4 << 20
WS_KX    = 20 << 20
WS_VX    = 52 << 20
WS_WOT   = 126 << 20
WOT_CG = 1 << 19
WS_PART1 = 146 << 20
L_PART = 0
L_P    = 24576
L_ZERO = 26624
L_SEL  = 28672
L_PARW = 7*16384
L_KX   = 131072
L_VX   = 147456
SPIN_MAX = 400000
NSTEP = 64
DBG_VOTE, DBG_CLR, DBG_PROG = 40, 44, 192
PAR0 = dict(PRE=0, HALF=0, NOTAG=0, THA=0, THQ=0, EPF=3, DROP=0, RPF=0, DMI=0, DDEL=0, WPF=2, QPL=0, ST=1, BDEL=0, SPLITB=1, KFAR=1, VFAR=1, RDEL=10, MDEL=7, DM=1, MGAP=3, PRIO=1, XD=2, XGAP=1, VDEL=10, PPRIO=2, XDEL=7, DR=2, RGAP=5, MACK=0)
PAR = dict(PAR0)
OPT = set()

def backoff(a, n):
    q = int(round(n*4))
    if q // 4: a(f"s_sleep {q // 4}")
    if q % 4: a(f"s_nop {4*(q % 4) - 1}")

def guard(a, loop, fail):
    a("s_add_u32 s24, s24, 1"); a(f"s_cmp_lt_u32 s24, {SPIN_MAX}"); a(f"s_cbranch_scc1 {loop}"); a(f"s_branch {fail}")

def pstamp(a, prof, k):
    if prof == 3:
        a("s_memrealtime s[56:57]"); a("s_waitcnt lgkmcnt(0)"); a(f"s_mov_b32 s{k}, s56")

def stamp(a, prof, k, at=None):
    if not prof: return
    if prof >= 3 and (k != 7 or prof > 3): return
    if prof == 2:
        lab = a.newlabel("st")
        a("s_cmp_lg_u32 s22, " + ("31" if (k == 7 or at) else "30")); a(f"s_cbranch_scc1 {lab}")
        a("s_memrealtime s[56:57]"); a("s_waitcnt lgkmcnt(0)"); a("s_and_b32 s56, s56, 0xffffff"); a("s_lshl_b32 s57, s24, 24"); a(f"s_or_b32 s{60+k}, s56, s57")
        a.label(lab)
        return
    a("s_memtime s[56:57]"); a("s_waitcnt lgkmcnt(0)")
    a("s_sub_u32 s58, s56, s59"); a(f"s_add_u32 s{60+k}, s{60+k}, s58"); a("s_mov_b32 s59, s56")

def fs(a, prof, k, which):
    if prof == which: a(f"s_memtime s[{66+2*k}:{67+2*k}]")

def near_bit(a, tmp, off, par, kv=False):
    flip = kv and PAR["KFAR"] != PAR["VFAR"]
    if flip: a(f"s_cmp_ge_u32 {off}, {WS_VX}"); a(f"s_addc_u32 {tmp}, {par}, {PAR['KFAR']}"); a(f"s_lshl_b32 {tmp}, {tmp}, 21"); a(f"s_xor_b32 {tmp}, {tmp}, {off}"); a(f"s_lshr_b32 {tmp}, {tmp}, 21")
    else:
        a(f"s_lshr_b32 {tmp}, {off}, 21"); a(f"s_xor_b32 {tmp}, {tmp}, {par}")
        if kv and PAR["KFAR"]: a(f"s_xor_b32 {tmp}, {tmp}, 1")
    a(f"s_and_b32 {tmp}, {tmp}, 1"); a(f"s_lshl_b32 {tmp}, {tmp}, 13")

def near(a, dst, off, par="s25", wb=16, tmp="s36", kv=False):
    near_bit(a, tmp, off, par, kv)
    a(f"s_add_u32 {tmp}, {tmp}, {off}"); a(f"s_add_u32 s{dst}, s{wb}, {tmp}"); a(f"s_addc_u32 s{dst+1}, s{wb+1}, 0")

def v_from_k(a, v, k):
    a(f"s_add_u32 s{v}, s{k}, {WS_VX - WS_KX}"); a(f"s_addc_u32 s{v+1}, s{k+1}, 0")
    if PAR["KFAR"] != PAR["VFAR"]: a(f"s_xor_b32 s{v}, s{v}, 0x2000")

def kv_tile(a, dst, seg, tmp):
    a(f"s_sub_u32 {tmp}, {seg}, 16"); a(f"s_mul_i32 {tmp}, {tmp}, 43"); a(f"s_lshr_b32 {tmp}, {tmp}, 8"); a(f"s_add_u32 {tmp}, {tmp}, 4")
    a(f"s_lshr_b32 {dst}, {seg}, 2"); a(f"s_cmp_lt_u32 {dst}, 4"); a(f"s_cselect_b32 {dst}, {dst}, {tmp}")

def tagchk(a, regs, tag, t0, t1, mf=()):
    op = "0x80" if tag else "0xfe"
    f3 = (lambda d, x, y, z: f"v_max3_u32 v{d}, v{x}, v{y}, v{z}") if tag is None else (lambda d, x, y, z: f"v_bitop3_b32 v{d}, v{x}, v{y}, v{z} bitop3:{op}")
    mf = list(mf)
    ops = [f3(t0, *regs[0:3]), f3(t1, *regs[3:6])]
    rest = regs[6:]; k = 0
    while rest:
        t = (t0, t1)[k & 1]; k += 1
        ops.append(f3(t, t, rest[0], rest[1])); rest = rest[2:]
    ops.append(f"v_max_u32 v{t0}, v{t0}, v{t1}" if tag is None else f"v_bitop3_b32 v{t0}, v{t0}, v{t1}, 1 bitop3:" + ("0x80" if tag else "0xa8"))
    per = -(-len(ops) // max(len(mf), 1))
    for i, o in enumerate(ops):
        if mf and i % per == 0: a(mf.pop(0))
        a(o)
    for m in mf: a(m)
    a(f"v_cmp_eq_u32 vcc, -1, v{t0}" if tag is None else f"v_cmp_ne_u32 vcc, {tag}, v{t0}")

def emit_rec(a, pfx, prof=False, kvwait=False):
    L = lambda n: f"{pfx}_{n}"
    FAIL = L('fail')
    a("s_load_dwordx8 s[4:11], s[0:1], 40")
    a("s_load_dwordx2 s[12:13], s[0:1], 32")
    a("s_load_dwordx2 s[14:15], s[0:1], 88")
    a("s_load_dwordx2 s[16:17], s[0:1], 96")
    a("v_lshrrev_b32 v1, 6, v0")
    a("v_and_b32 v0, 63, v0")
    a("s_lshl_b32 s20, s18, 2"); a("s_add_u32 s20, s20, s19")
    a("v_readfirstlane_b32 s21, v1")
    a("v_lshlrev_b32 v6, 4, v0")
    a("s_mov_b32 s24, 0")
    a("s_waitcnt lgkmcnt(0)")
    pstamp(a, prof, 90)
    if "diag" in OPT: pstamp(a, 3, 97)
    a("s_add_u32 s16, s16, 0x1fffff"); a("s_addc_u32 s17, s17, 0"); a("s_and_b32 s16, s16, 0xffe00000")
    a("s_lshl_b32 s36, s18, 13"); a(f"s_add_u32 s36, s36, {WS_RING}"); a("s_add_u32 s32, s16, s36"); a("s_addc_u32 s33, s17, 0")
    a(f"s_add_u32 s82, s32, {WS_RING1 - WS_RING}"); a("s_addc_u32 s83, s33, 0")
    NT_ = PAR["NOTAG"]
    RB = lambda tag: "s[82:83]" if (tag and NT_) else "s[32:33]"
    a("s_and_b32 s45, s20, 63"); a("s_lshl_b32 s45, s45, 7"); a("s_lshr_b32 s36, s20, 6"); a("s_lshl_b32 s36, s36, 14"); a("s_add_u32 s45, s45, s36")
    a("s_and_b32 s44, s20, 1"); a("s_lshl_b32 s44, s44, 12"); a("s_lshr_b32 s42, s20, 1"); a("s_lshl_b32 s42, s42, 14"); a("s_add_u32 s44, s44, s42")
    a("v_mov_b32 v14, v6"); a("v_add_u32 v15, 0x1000, v6")
    a("s_lshl_b32 s36, s19, 10"); a("v_add_u32 v9, s36, v6")
    a("s_lshl_b32 s36, s19, 9"); a("s_add_u32 s36, s36, 4096"); a("v_and_b32 v8, 0x1ff, v6"); a("v_add_u32 v8, s36, v8")
    a("s_cmp_eq_u32 s21, 7"); a(f"s_cbranch_scc0 {L('noclr')}")
    for i in range(4): a(f"v_mov_b32 v{68+i}, -1")
    a("v_add_u32 v16, s44, v6"); a("v_add_u32 v17, 0x2000, v16")
    for p in range(2):
        for i in range(4): a(f"global_store_dwordx4 v{16+p}, v[68:71], s[16:17] offset:{1024*i} sc1")
    if PAR["DROP"]:
        a(f"v_add_u32 v16, {WS_PART1}, v16"); a(f"v_add_u32 v17, {WS_PART1}, v17")
        for p in range(2):
            for i in range(4): a(f"global_store_dwordx4 v{16+p}, v[68:71], s[16:17] offset:{1024*i} sc1")
    for t_ in range(2 if NT_ else 1):
        a(f"global_store_dwordx4 v9, v[68:71], {RB(t_)} sc1"); a(f"global_store_dwordx4 v8, v[68:71], {RB(t_)} sc1")
    a("v_bfe_u32 v16, v0, 3, 2"); a("v_lshlrev_b32 v16, 15, v16"); a("v_lshrrev_b32 v17, 5, v0"); a("v_lshl_add_u32 v16, v17, 13, v16")
    a("v_and_b32 v17, 7, v0"); a("v_lshl_add_u32 v16, v17, 4, v16"); a(f"s_add_u32 s36, s45, {WS_MEMS}"); a("v_add_u32 v16, s36, v16")
    for i in range(16):
        a("global_store_dwordx4 v16, v[68:71], s[16:17] sc1"); a("v_add_u32 v16, 0x20000, v16")
    a("s_lshl_b32 s36, s20, 7"); a(f"s_add_u32 s36, s36, {WS_FLAG}"); a("v_and_b32 v16, 0x70, v6"); a("v_add_u32 v16, s36, v16")
    a("global_store_dwordx4 v16, v[68:71], s[16:17] sc1")
    a("s_lshl_b32 s36, s20, 10"); a(f"s_add_u32 s36, s36, {WS_FLAG2}"); a("v_add_u32 v16, s36, v6")
    a("global_store_dwordx4 v16, v[68:71], s[16:17] sc1")
    a("s_lshl_b32 s36, s20, 8"); a(f"s_add_u32 s36, s36, {WS_HW}"); a("v_and_b32 v16, 0xf0, v6"); a("v_add_u32 v16, s36, v16")
    a("global_store_dwordx4 v16, v[68:71], s[16:17] sc1")
    a("s_lshr_b32 s36, s20, 3"); a("s_lshl_b32 s36, s36, 14"); a("s_and_b32 s42, s20, 7"); a("s_lshl_b32 s42, s42, 10"); a("s_add_u32 s36, s36, s42")
    a(f"s_add_u32 s36, s36, {WS_KMVM + (NSTEP - 1)*0x40000}"); a("v_add_u32 v16, s36, v6"); a("v_add_u32 v17, 0x2000, v16")
    a("global_store_dwordx4 v16, v[68:71], s[16:17] sc1"); a("global_store_dwordx4 v17, v[68:71], s[16:17] sc1")
    a("v_subrev_u32 v16, 0x40000, v16"); a("v_subrev_u32 v17, 0x40000, v17")
    a("global_store_dwordx4 v16, v[68:71], s[16:17] sc1"); a("global_store_dwordx4 v17, v[68:71], s[16:17] sc1")
    a("s_barrier")
    a("v_mov_b32 v17, 1"); a("v_mov_b32 v16, 0")
    a("s_waitcnt vmcnt(0)")
    a("s_mov_b64 exec, 1")
    a(f"global_atomic_add v16, v17, s[14:15] offset:{DBG_CLR} sc1")
    a("s_mov_b64 exec, -1")
    a(f"s_branch {L('clrd')}")
    a.label(L('noclr'))
    a("s_barrier")
    a.label(L('clrd'))
    def xdma(base, ldsreg):
        for kt in range(2):
            a(f"s_add_u32 m0, {ldsreg}, {kt*4096}")
            a("s_nop 0")
            for jj in range(4):
                a(f"global_load_lds_dwordx4 v{14+kt}, {base} offset:{jj*1024} sc1")
    def kv_poll(tag, tile):
        a(f"s_lshl_b32 s52, {tile}, 7"); a("s_lshr_b32 s36, s18, 1"); a("s_lshl_b32 s36, s36, 2"); a("s_add_u32 s52, s52, s36"); a(f"s_add_u32 s52, s52, {WS_FLAG + 96*128}")
        a("v_mov_b32 v17, s52")
        a.label(L(tag))
        a("global_load_dword v16, v17, s[16:17] sc1"); a("global_load_dword v18, v17, s[16:17] offset:64 sc1"); a("s_waitcnt vmcnt(0)")
        a("v_or_b32 v16, v16, v18")
        a("v_cmp_ne_u32 vcc, 0, v16"); a(f"s_cbranch_vccz {L(tag + 'ok')}")
        a("s_sleep 4")
        guard(a, L(tag), FAIL)
        a.label(L(tag + 'ok'))
    def kv_bases(segreg):
        a(f"s_lshl_b32 s42, {segreg}, 5"); a("s_add_u32 s42, s42, s18"); a("s_lshl_b32 s42, s42, 14"); a(f"s_add_u32 s42, s42, {WS_KX}")
        near(a, 48, "s42", kv=True)
        v_from_k(a, 34, 48)
    a("s_and_b32 s39, s19, 1"); a("s_xor_b32 s39, s39, 1"); a("s_lshl_b32 s39, s39, 1"); a("s_lshr_b32 s36, s19, 1"); a("s_add_u32 s39, s39, s36")
    a("s_lshl_b32 s43, s21, 14")
    a("s_lshl_b32 s36, s21, 20"); a("s_lshl_b32 s42, s18, 8"); a("s_add_u32 s36, s36, s42")
    a("v_lshrrev_b32 v10, 2, v0"); a("v_lshlrev_b32 v10, 13, v10"); a("v_and_b32 v11, 3, v0"); a("v_lshl_add_u32 v10, v11, 4, v10")
    a("s_lshl_b32 s42, s39, 6"); a("s_add_u32 s42, s42, s36"); a("v_add_u32 v10, s42, v10")
    a("v_lshrrev_b32 v11, 3, v0"); a("v_lshlrev_b32 v11, 13, v11"); a("v_and_b32 v12, 7, v0"); a("v_lshl_add_u32 v11, v12, 4, v11")
    a("s_and_b32 s42, s19, 1"); a("s_lshl_b32 s42, s42, 7"); a("s_add_u32 s42, s42, s36"); a("v_add_u32 v11, s42, v11")
    def qkdma(base, nt):
        for i in range(16):
            a(f"s_add_u32 m0, s43, {i*1024}")
            a("s_nop 0")
            a(f"global_load_lds_dwordx4 v11, {base} {nt}")
            if i < 15: a("v_add_u32 v11, 0x10000, v11")
    for _ in range(PAR["THA"]): a("s_sleep 32")
    a("s_cmp_lt_u32 s19, 2"); a(f"s_cbranch_scc1 {L('isq')}")
    qkdma("s[6:7]", ""); a(f"s_branch {L('qkd')}")
    a.label(L('isq'))
    for _ in range(PAR["THQ"]): a("s_sleep 32")
    qkdma("s[4:5]", "" if PAR["QPL"] else "nt")
    a.label(L('qkd'))
    a("v_lshrrev_b32 v12, 5, v0"); a("v_lshlrev_b32 v12, 4, v12")
    a("v_bfe_u32 v13, v0, 4, 1"); a("v_lshl_add_u32 v12, v13, 2, v12")
    a("v_bfe_u32 v13, v0, 2, 1"); a("v_add_u32 v12, v12, v13")
    a("v_bfe_u32 v13, v0, 3, 1"); a("v_lshl_add_u32 v12, v13, 3, v12")
    a("v_and_b32 v13, 3, v0"); a("v_lshlrev_b32 v13, 3, v13"); a("v_add_u32 v13, s43, v13")
    a("v_lshl_add_u32 v7, v12, 7, v13"); a("v_lshl_add_u32 v12, v12, 6, v13")
    def qkread(ks):
        for t in range(4):
            for pp in range(4):
                hi, lo = pp >> 1, pp & 1
                reg = (t*2 + ks)*8 + pp*2
                a(f"ds_read_b64_tr_b16 a[{reg}:{reg+1}], v7 offset:{(64*ks + 32*hi + 2*lo)*128 + t*32}")
            a("s_waitcnt lgkmcnt(4)")
        a("s_waitcnt lgkmcnt(0)")
    def vread():
        for t in range(2):
            for ks in range(2):
                for pp in range(4):
                    hi, lo = pp >> 1, pp & 1
                    reg = ((4 + t)*2 + ks)*8 + pp*2
                    a(f"ds_read_b64_tr_b16 a[{reg}:{reg+1}], v12 offset:{(64*ks + 32*hi + 2*lo)*64 + t*32}")
                a("s_waitcnt lgkmcnt(4)")
        a("s_waitcnt lgkmcnt(0)")
    a("s_waitcnt vmcnt(8)")
    pstamp(a, prof, 91)
    qkread(0)
    for i in range(8):
        a(f"s_add_u32 m0, s43, {i*1024}")
        a("s_nop 0")
        a("global_load_lds_dwordx4 v10, s[8:9]")
        if i < 7: a("v_add_u32 v10, 0x20000, v10")
    a("s_waitcnt vmcnt(8)"); qkread(1)
    a("v_and_b32 v11, 7, v0"); a("v_lshlrev_b32 v11, 11, v11"); a("v_lshrrev_b32 v13, 3, v0"); a("v_lshl_add_u32 v11, v13, 4, v11")
    a("s_lshl_b32 s36, s21, 8"); a("v_add_u32 v11, s36, v11")
    a("global_load_dwordx4 v[16:19], v11, s[12:13]"); a("global_load_dwordx4 v[20:23], v11, s[12:13] offset:128")
    a("v_lshrrev_b32 v10, 3, v0"); a("v_lshlrev_b32 v10, 11, v10"); a("v_and_b32 v11, 7, v0"); a("v_lshl_add_u32 v10, v11, 4, v10")
    a("s_lshl_b32 s36, s18, 18"); a("s_lshl_b32 s42, s19, 9"); a("s_add_u32 s36, s36, s42")
    a("s_and_b32 s42, s21, 3"); a("s_lshl_b32 s42, s42, 7"); a("s_add_u32 s36, s36, s42")
    a("v_add_u32 v10, s36, v10")
    def odma(half):
        a(f"v_add_u32 v11, {half*64*2048}, v10")
        for i in range(8):
            a(f"s_add_u32 m0, s43, {half*8192 + i*1024}")
            a("s_nop 0")
            a("global_load_lds_dwordx4 v11, s[10:11]")
            if i < 7: a("v_add_u32 v11, 0x4000, v11")
    a("v_mov_b32 v56, 0"); a("s_lshr_b32 s36, s18, 3"); a("s_lshl_b32 s36, s36, 2"); a("v_mov_b32 v57, s36")
    a("s_cmp_lt_u32 s21, 4"); a(f"s_cbranch_scc0 {L('wv_only')}")
    odma(1)
    a("s_waitcnt vmcnt(8)"); vread()
    odma(0)
    a("v_lshrrev_b32 v12, 2, v0")
    a("v_lshlrev_b32 v12, 7, v12"); a("v_and_b32 v13, 3, v0"); a("v_lshl_add_u32 v12, v13, 4, v12"); a("v_add_u32 v12, s43, v12")
    a("s_waitcnt vmcnt(0)")
    def wo_reg(ct, jj):
        return f"v[{96+(ct*4+jj)*4}:{96+(ct*4+jj)*4+3}]"
    for ct in range(4):
        for jj in range(4):
            for lo in range(2):
                base = 96 + (ct*4 + jj)*4 + lo*2
                off = (32*jj + 16*lo)*128 + (ct >> 1)*64 + (ct & 1)*8
                a(f"ds_read_b64_tr_b16 v[{base}:{base+1}], v12 offset:{off}")
        a("s_waitcnt lgkmcnt(0)")
    a(f"s_branch {L('wdone')}")
    a.label(L('wv_only'))
    a("s_cmp_eq_u32 s21, 7"); a(f"s_cbranch_scc0 {L('wv2')}")
    for t_ in range(2 if NT_ else 1):
        a(f"global_load_dwordx4 v[48:51], v9, {RB(t_)} sc1"); a(f"global_load_dwordx4 v[52:55], v8, {RB(t_)} sc1")
    a(f"global_load_dwordx2 v[58:59], v56, s[14:15] offset:{DBG_VOTE} sc1"); a("global_load_dword v61, v57, s[14:15] sc1")
    a.label(L('wv2'))
    a("s_waitcnt vmcnt(0)"); vread()
    a.label(L('wdone'))
    pstamp(a, prof, 89)
    if "span" in OPT:
        a("s_and_b32 s98, s20, 3"); a("s_xor_b32 s99, s21, 7"); a("s_or_b32 s98, s98, s99"); a("s_cmp_lg_u32 s98, 0"); a(f"s_cbranch_scc1 {L('nosp0')}")
        a("s_memrealtime s[98:99]"); a("s_waitcnt lgkmcnt(0)"); a("v_mov_b32 v63, s98"); a("v_mov_b32 v62, 0")
        a("s_mov_b64 exec, 1"); a("global_atomic_umax v62, v63, s[14:15] offset:20 sc1"); a("s_mov_b64 exec, -1")
        a.label(L('nosp0'))

    a("s_cmp_eq_u32 s21, 7"); a(f"s_cbranch_scc0 {L('sync1')}")
    a.label(L('clrw'))
    a("v_readfirstlane_b32 s36, v58"); a("v_readfirstlane_b32 s37, v59")
    a("s_and_b32 s42, s36, 0xffff"); a("s_add_u32 s42, s42, s37"); a("s_cmp_eq_u32 s42, 256"); a(f"s_cbranch_scc1 {L('clrok')}")
    a("s_sleep 8")
    a(f"global_load_dwordx2 v[58:59], v56, s[14:15] offset:{DBG_VOTE} sc1"); a("s_waitcnt vmcnt(0)")
    a("global_load_dword v61, v57, s[14:15] sc1"); a("s_waitcnt vmcnt(0)")
    guard(a, L('clrw'), FAIL)
    a.label(L('clrok'))
    a("v_cmp_gt_u32 vcc, 32, v61"); a(f"s_cbranch_vccz {L('cntok')}")
    a("global_load_dword v61, v57, s[14:15] sc1"); a("s_waitcnt vmcnt(0)")
    a.label(L('cntok'))
    a("s_lshr_b32 s36, s36, 16"); a("s_cmp_gt_u32 s36, 64"); a("s_cselect_b32 s25, 1, 0")
    a("v_mov_b32 v60, s25"); a(f"v_mov_b32 v56, {L_PARW}")
    a("ds_write_b64 v56, v[60:61]"); a("v_mov_b32 v59, 0"); a("ds_write_b32 v56, v59 offset:8")
    a.label(L('sync1'))

    a("s_and_b32 s36, s21, 3"); a("s_lshl_b32 s36, s36, 11"); a("s_lshr_b32 s42, s21, 2"); a("s_lshl_b32 s42, s42, 14"); a("s_add_u32 s36, s36, s42")
    a("v_add_u32 v1, s36, v6")
    a("v_and_b32 v2, 8, v0"); a("v_cmp_eq_u32 vcc, 0, v2"); a("v_mov_b32 v2, 0xeeee"); a("v_mov_b32 v3, 0x4444"); a("s_nop 1")
    a("v_cndmask_b32 v2, v2, v3, vcc")
    a("s_mul_i32 s36, s21, 3072"); a("v_add_u32 v3, s36, v6")
    a("s_mov_b32 s22, 0"); a("s_mov_b32 s51, 1")
    a("s_waitcnt vmcnt(0) lgkmcnt(0)"); a("s_barrier")
    if kvwait and PAR["RPF"]:
        a("s_load_dwordx8 s[68:75], s[0:1], 0")
        a("s_lshl_b32 s36, s20, 3"); a("s_add_u32 s36, s36, s21"); a("v_lshlrev_b32 v24, 2, v6"); a("s_mov_b32 m0, 0x10000")
        a("s_waitcnt lgkmcnt(0)")
        parts = [(74, 1 << 20, 3, 0, 3), (68, 0, 4, 0, 4), (70, 0, 6, 0, 4), (70, 0, 6, 4, 2), (72, 0, 2, 0, 2)] + ([(4, 0, 8, 0, 4), (4, 0, 8, 4, 4)] if PAR["RPF"] == 2 else [])
        for p, fix, per, first, nkb in parts:
            a(f"s_mul_i32 s42, s36, {per*1024}"); a(f"s_add_u32 s42, s42, {fix + first*1024}")
            a(f"v_min_u32 v25, {nkb*1024 - 64}, v24"); a("v_add_u32 v25, s42, v25")
            a(f"global_load_lds_dword v25, s[{p}:{p+1}]")
    for i in range(8): a(f"v_min_u32 v{16+i}, -2, v{16+i}")
    a(f"v_mov_b32 v24, {L_PARW}"); a("ds_read_b64 v[24:25], v24"); a("s_waitcnt lgkmcnt(0)")
    a("v_readfirstlane_b32 s25, v24"); a("v_readfirstlane_b32 s23, v25")
    a("s_and_b32 s25, s25, 1")
    if "safe" in OPT: a("s_mov_b32 s23, 0")
    a("s_lshl_b32 s36, s25, 13"); a("s_add_u32 s26, s16, s36"); a("s_addc_u32 s27, s17, 0")
    a(f"s_mov_b32 s42, {WS_PART1}"); near(a, 40, "s42")
    PB = lambda tag: "s[40:41]" if (tag and PAR["DROP"]) else "s[26:27]"
    a(f"s_mov_b32 s42, {WS_MEMS}"); near(a, 28, "s42")
    a("s_lshr_b32 s38, s18, 1"); a("s_lshl_b32 s38, s38, 14"); a("s_and_b32 s36, s18, 1"); a("s_lshl_b32 s36, s36, 12"); a("s_add_u32 s38, s38, s36"); a(f"s_add_u32 s38, s38, {WS_KMVM}")
    near(a, 30, "s38")
    if "diag" in OPT: pstamp(a, 3, 98)
    if prof:
        for k in range(8): a(f"s_mov_b32 s{60+k}, 0")
        a("s_memtime s[56:57]"); a("s_waitcnt lgkmcnt(0)"); a("s_mov_b32 s59, s56")
        pstamp(a, prof, 60)
    a("s_cmp_lt_u32 s21, 4"); a(f"s_cbranch_scc1 {L('setup_vo')}")
    a(f"v_mov_b32 v148, {L_PARW + 8}"); a("v_mov_b32 v149, 1"); a("s_mov_b32 s47, 0")
    a("s_cmp_eq_u32 s21, 6"); a(f"s_cbranch_scc1 {L('setup_sm')}")

    def head_word(val):
        a(f"v_mov_b32 v95, {val}")
        a("s_xor_b32 s36, s25, 1"); a("s_lshl_b32 s36, s36, 13"); a("s_add_u32 s36, s36, s45"); a(f"s_add_u32 s36, s36, {WS_HW}")
        a("v_mov_b32 v94, s36")
        a("s_mov_b64 exec, 1")
        a("global_store_dword v94, v95, s[16:17] sc1")
        a("s_mov_b64 exec, -1")
    def zero_acc():
        for i in range(24): a(f"v_mov_b32 v{24+i}, 0")
    def pair(p): return [(2*p, 0), (2*p+1, 0), (2*p, 1), (2*p+1, 1)]
    def sm(tt, ks, mb):
        dd = 24 + tt*4; b = (tt*2 + ks)*8
        a(f"v_smfmac_f32_16x16x64_bf16 v[{dd}:{dd+3}], v[{mb+4*ks}:{mb+3+4*ks}], a[{b}:{b+7}], v2")
    PRE = PAR["PRE"]
    def cv(p, i): a(f"v_cvt_pk_bf16_f32 v{24+8*p+i}, v{24+8*p+2*i}, v{25+8*p+2*i}")
    def mload(b):
        a(f"global_load_dwordx4 v[{b}:{b+3}], v1, s[28:29] sc1")
        a(f"global_load_dwordx4 v[{b+4}:{b+7}], v1, s[28:29] offset:1024 sc1")
    def p1(name, mid=None, grp1=False, early=False):
        backoff(a, PAR["MDEL"])
        a.label(L(name))
        mload(16)
        a("s_waitcnt vmcnt(0)")
        a.label(L(name + '_in'))
        fs(a, prof, 0, 5)
        chk = ["v_max3_u32 v0, v16, v17, v18", "v_max3_u32 v7, v19, v20, v21", "v_max3_u32 v0, v0, v22, v23", "v_max_u32 v0, v0, v7", "v_cmp_eq_u32 vcc, -1, v0"]
        for i, (t, k) in enumerate(pair(0)):
            sm(t, k, 16)
            for c in chk[2*i:2*i+2]: a(c)
            if i == 2: a(f"s_cbranch_vccnz {L(name + '_retry')}")
        stamp(a, prof, 0)
        fs(a, prof, 1, 5)
        for t, k in pair(1): sm(t, k, 16)
        a("s_nop 3")
        for i, (t, k) in enumerate(pair(2)):
            cv(0, i)
            if i == 3: a("ds_write_b128 v3, v[24:27]")
            sm(t, k, 16)
        fs(a, prof, 3, 5)
        for i in range(4): cv(1, i)
        a("ds_write_b128 v3, v[32:35] offset:1024")
        fs(a, prof, 4, 5)
        if PAR["SPLITB"] == 2 and not mid:
            a("s_waitcnt lgkmcnt(0)"); a("s_barrier"); a("s_nop 0")
            for i in range(4): cv(2, i)
            a("ds_write_b128 v3, v[40:43] offset:2048")
            a("s_waitcnt lgkmcnt(0)")
        else:
            a("s_nop 2")
            for i in range(4): cv(2, i)
            a("ds_write_b128 v3, v[40:43] offset:2048")
            if PRE and grp1:
                a("s_add_u32 s47, s47, 4")
                a("s_mov_b64 exec, 1"); a("ds_add_u32 v148, v149"); a("s_mov_b64 exec, -1")
                if early:
                    a.label(L(name + '_e'))
                    a("ds_read_b32 v0, v148")
                    for w in range(4, 8): a(f"ds_read_b128 v[{48+4*w}:{51+4*w}], v4 offset:{3072*w}")
                    a("s_waitcnt lgkmcnt(4)")
                    a("v_cmp_ne_u32 vcc, s47, v0"); a(f"s_cbranch_vccnz {L(name + '_er')}")
                    for w in range(4, 8):
                        a(f"s_waitcnt lgkmcnt({7-w})")
                        a(f"v_mfma_f32_16x16x32_bf16 v[80:83], v[{48+4*w}:{51+4*w}], v[84:87], " + ("0" if w == 4 else "v[80:83]"))
            if PAR["SPLITB"]:
                a("s_waitcnt lgkmcnt(1)"); a("s_barrier")
                if mid:
                    mid(); a("s_waitcnt lgkmcnt(8)")
                else:
                    a("s_waitcnt lgkmcnt(0)")
            else:
                a("s_waitcnt lgkmcnt(0)")
        fs(a, prof, 6, 5)
        a("s_barrier")
        if mid and not PAR["SPLITB"]: mid()
        fs(a, prof, 7, 5)
        if prof == 5: a("s_waitcnt lgkmcnt(0)")
        stamp(a, prof, 1)
    def p1_retry(name, early=False):
        if PRE and early:
            a.label(L(name + '_er')); guard(a, L(name + '_e'), FAIL)
        a.label(L(name + '_retry'))
        a("s_nop 7")
        for i in range(8): a(f"v_mov_b32 v{24+i}, 0")
        guard(a, L(name), FAIL)

    def step_adv():
        zero_acc()
        a("s_add_u32 s22, s22, 1")
        a("s_add_u32 s28, s28, 0x8000"); a("s_addc_u32 s29, s29, 0")
        a("s_add_u32 s38, s38, 0x40000"); near(a, 30, "s38")
    def step_end():
        step_adv()
        a("s_waitcnt vmcnt(0) lgkmcnt(0)")
        a("s_barrier")
        stamp(a, prof, 7)

    a("s_sub_u32 s37, s21, 4"); a("s_min_u32 s37, s37, 2")
    a("s_lshl_b32 s36, s37, 10"); a("v_add_u32 v4, s36, v6")
    a("v_and_b32 v48, 1, v0"); a("v_lshlrev_b32 v48, 4, v48"); a("v_mov_b32 v49, 0x3f80"); a("v_lshlrev_b32 v48, v48, v49")
    a("v_bfe_u32 v49, v0, 3, 1"); a("v_bfe_u32 v50, v0, 1, 1"); a("v_lshl_add_u32 v49, v49, 1, v50")
    a("v_lshrrev_b32 v50, 2, v0"); a("v_xor_b32 v50, v50, v0"); a("v_and_b32 v50, 4, v50"); a("v_add_u32 v49, v49, v50")
    for q in range(4):
        a(f"v_cmp_eq_u32 vcc, {q}, v49"); a("s_nop 1"); a(f"v_cndmask_b32 v{84+q}, 0, v48, vcc")
    a("v_and_b32 v48, 7, v0"); a("v_lshlrev_b32 v48, 4, v48"); a("v_and_b32 v49, 8, v0"); a("v_lshrrev_b32 v50, 4, v0")
    a("v_add_u32 v51, v48, v49"); a("v_lshl_add_u32 v10, v50, 7, v51")
    a("s_and_b32 s46, s19, 1"); a("s_lshl_b32 s46, s46, 1"); a("s_add_u32 s46, s46, s37")
    a("s_add_u32 s36, s39, 4"); a("s_cmp_eq_u32 s37, 2"); a("s_cselect_b32 s36, s36, s46"); a("s_lshl_b32 s36, s36, 9"); a("v_add_u32 v10, s36, v10")
    a("v_lshl_add_u32 v5, v50, 8, v51"); a("s_lshl_b32 s36, s46, 10"); a("s_lshr_b32 s42, s19, 1"); a("s_lshl_b32 s42, s42, 7"); a("s_add_u32 s36, s36, s42"); a("v_add_u32 v5, s36, v5")
    zero_acc()
    for i in range(4): a(f"v_mov_b32 v{144+i}, -1")
    a(f"s_setprio {PAR['PPRIO']}")
    a("s_cmp_eq_u32 s21, 7"); a(f"s_cbranch_scc1 {L('setup_m')}")
    NR = 4 if PRE else 8
    def rd8():
        for w in range(NR): a(f"ds_read_b128 v[{48+4*w}:{51+4*w}], v4 offset:{3072*w}")
    def reduce8():
        for w in range(NR):
            a(f"s_waitcnt lgkmcnt({NR-1-w})")
            a(f"v_mfma_f32_16x16x32_bf16 v[80:83], v[{48+4*w}:{51+4*w}], v[84:87], " + ("0" if w == 0 and not PRE else "v[80:83]"))
    def pack_tag(tag, last):
        if last:
            a(f"s_cmp_eq_u32 s22, {NSTEP-1}"); a(f"s_cbranch_scc1 {L(last)}")
        a("s_cmp_lt_u32 s23, 32")
        a("s_nop 4" if last else "s_nop 6")
        a("v_cvt_pk_bf16_f32 v88, v80, v81"); a("v_cvt_pk_bf16_f32 v89, v82, v83")
        for i in range(2): a(f"v_min_u32 v{90+i}, -2, v{88+i}" if NT_ else f"v_or_b32 v{90+i}, 1, v{88+i}" if tag else f"v_and_b32 v{90+i}, -2, v{88+i}")
    def pub2(tag, fl):
        a(f"global_store_dwordx2 v5, v[90:91], {RB(tag)} {fl}")
        if NT_: a(f"global_store_dwordx2 v5, v[144:145], {RB(tag ^ 1)} {fl}")
    def pub1(tag, fl):
        a(f"global_store_dword v5, v90, {RB(tag)} {fl}"); a(f"global_store_dword v5, v91, {RB(tag)} offset:128 {fl}")
        if NT_: a(f"global_store_dword v5, v144, {RB(tag ^ 1)} {fl}"); a(f"global_store_dword v5, v144, {RB(tag ^ 1)} offset:128 {fl}")
    a("v_add_u32 v11, s44, v6")
    a("v_and_b32 v15, 7, v0"); a("v_lshlrev_b32 v15, 4, v15"); a("v_bfe_u32 v48, v0, 4, 1"); a("v_lshl_add_u32 v15, v48, 3, v15"); a("v_add_u32 v15, s45, v15")
    a("v_and_b32 v48, 1, v0"); a("v_lshlrev_b32 v48, 4, v48"); a("v_mov_b32 v49, 0x3f80"); a("v_lshlrev_b32 v48, v48, v49")
    a("v_bfe_u32 v49, v0, 1, 3")
    for q in range(4):
        a(f"v_cmp_eq_u32 vcc, {q}, v49"); a("s_nop 1"); a(f"v_cndmask_b32 v{92+q}, 0, v48, vcc")
    a(f"s_mul_i32 s54, s37, {WS_VX - WS_KX}"); a(f"s_mul_i32 s55, s37, {L_VX - L_KX}"); a(f"s_add_u32 s55, s55, {L_KX}")
    a("s_lshl_b32 s36, s18, 14"); a("s_add_u32 s54, s54, s36"); a(f"s_add_u32 s54, s54, {WS_KX}"); a("v_add_u32 v12, 0x1000, v6")
    DR = PAR["DR"]
    rsets = [96, 112, 128][:DR]
    def rload(b):
        for i in range(4): a(f"global_load_dwordx4 v[{b+4*i}:{b+3+4*i}], v11, {PB(tag)} offset:{1024*i} sc1")
    a(f"s_branch {L('v0_in')}")
    a.label(L('v_loop'))
    for tag in range(2):
        n = f"v{tag}"
        p1(n, rd8, True, True)
        reduce8()
        pack_tag(tag, 'last_pub' if tag == (NSTEP - 1) & 1 else None)
        a(f"s_cbranch_scc1 {L(n + '_wt')}")
        pub2(tag, "")
        a.label(L(n + '_pd'))
        if tag == 0:
            a("s_cmp_eq_u32 s22, 0"); a(f"s_cbranch_scc1 {L('v_first')}")
            a.label(L('v_fj'))
        stamp(a, prof, 2)
        if PAR["DDEL"]:
            a("s_add_u32 s53, s22, 2"); a("s_min_u32 s53, s53, 63"); a("s_lshl_b32 s53, s53, 19"); a("s_add_u32 s53, s53, s54"); near(a, 48, "s53", kv=True)
            a(f"s_add_u32 m0, s55, {tag*8192}")
            a(f"s_sleep {PAR['DDEL']}")
            for jj in range(4): a(f"global_load_lds_dwordx4 v6, s[48:49] offset:{jj*1024} sc1")
            a(f"s_add_u32 m0, s55, {tag*8192 + 4096}"); a("s_nop 0")
            for jj in range(4): a(f"global_load_lds_dwordx4 v12, s[48:49] offset:{jj*1024} sc1")
        a("v_min_u32 v88, -2, v88"); a("v_min_u32 v89, -2, v89")
        a("s_waitcnt vmcnt(0)"); a("s_barrier")
        a("s_cmp_lt_u32 s19, 2"); a(f"s_cbranch_scc1 {L(n + '_nq')}")
        if "nopers" not in OPT: a("global_store_dwordx2 v10, v[88:89], s[30:31] sc1")
        a.label(L(n + '_nq'))
        a("s_cmp_eq_u32 s21, 4"); a(f"s_cbranch_scc1 {L(n + '_red')}")
        if prof == 3:
            a("s_memrealtime s[56:57]"); a("s_memtime s[92:93]"); a("s_waitcnt lgkmcnt(0)"); a("s_mov_b32 m0, s22"); a("s_nop 0"); a("v_writelane_b32 v150, s56, m0"); a("v_writelane_b32 v151, s92, m0")
        step_adv()
        if PAR["BDEL"]: a(f"s_sleep {PAR['BDEL']}")
        a("s_waitcnt vmcnt(0)")
        a(f"s_branch {L(n + '_end')}")
        a.label(L(n + '_red'))
        step_adv()
        backoff(a, PAR["RDEL"])
        stamp(a, prof, 5, 31)
        for d in range(DR - 1):
            rload(rsets[d])
            backoff(a, PAR["RGAP"])
        a.label(L(n + '_rp'))
        for d in range(DR):
            rload(rsets[(d + DR - 1) % DR])
            a(f"s_waitcnt vmcnt({4*(DR-1)})")
            b = rsets[d]
            mf = [f"v_mfma_f32_16x16x32_bf16 v[64:67], v[92:95], v[{b+4*i}:{b+3+4*i}], " + ("0" if i == 0 else "v[64:67]") for i in range(4)]
            tagchk(a, list(range(b, b + 16)), tag if not PAR["DROP"] else None, 73, 72, mf)
            a(f"s_cbranch_vccz {L(n + '_rok')}" if d < DR - 1 else f"s_cbranch_vccnz {L(n + '_rr')}")
        a.label(L(n + '_rok'))
        a("s_nop 3")
        for i in range(4): a(f"v_add_f32_dpp v{72+i}, v{64+i}, v{64+i} row_ror:8 row_mask:0xf bank_mask:0xf")
        a("s_mov_b64 exec, 0x00ff00ff")
        a("v_cvt_pk_bf16_f32 v76, v72, v73"); a("v_cvt_pk_bf16_f32 v77, v74, v75")
        a("v_min_u32 v76, -2, v76"); a("v_min_u32 v77, -2, v77")
        a("global_store_dwordx2 v15, v[76:77], s[28:29] sc1")
        a("s_mov_b64 exec, -1")
        if PAR["DROP"]:
            for i in range(4): a(f"global_store_dwordx4 v11, v[144:147], {PB(tag)} offset:{1024*i} sc1")
        stamp(a, prof, 6, 31)
        if PAR["MACK"]: a("s_waitcnt vmcnt(0)")
        a.label(L(n + '_end'))
        a("s_barrier")
        stamp(a, prof, 7)
    a(f"s_branch {L('v_loop')}")
    for tag in range(2):
        n = f"v{tag}"
        p1_retry(n, True)
        a.label(L(n + '_wt')); pub2(tag, "sc1"); a(f"s_branch {L(n + '_pd')}")
        a.label(L(n + '_rr')); guard(a, L(n + '_rp'), FAIL)

    a.label(L('v_first')); a("s_barrier"); a("s_barrier"); a(f"s_branch {L('v_fj')}")

    a.label(L('setup_m'))
    a("v_lshrrev_b32 v5, 5, v0"); a("v_lshl_add_u32 v5, v5, 8, v48"); a("v_bfe_u32 v50, v0, 3, 2"); a("v_lshl_add_u32 v5, v50, 2, v5")
    a("s_lshl_b32 s36, s39, 9"); a("s_add_u32 s36, s36, 4096"); a("v_add_u32 v5, s36, v5")
    a("v_mov_b32 v93, 0")
    def progress(tagname):
        a("s_cmp_eq_u32 s20, 0"); a(f"s_cbranch_scc0 {L(tagname)}")
        a("v_mov_b32 v92, s22")
        a("s_mov_b64 exec, 1")
        a(f"global_store_dword v93, v92, s[14:15] offset:{DBG_PROG} sc1")
        a("s_mov_b64 exec, -1")
        a.label(L(tagname))
    a(f"s_branch {L('m0_in')}")
    a.label(L('m_loop'))
    for tag in range(2):
        n = f"m{tag}"
        p1(n, None, True, True)
        rd8(); reduce8()
        pack_tag(tag, 'fin_m' if tag == (NSTEP - 1) & 1 else None)
        a(f"s_cbranch_scc1 {L(n + '_wt')}")
        pub1(tag, "")
        a.label(L(n + '_pd'))
        if tag == 0:
            a("s_cmp_eq_u32 s22, 0"); a(f"s_cbranch_scc1 {L('m_first')}")
            a.label(L('m_fj'))
        a("v_min_u32 v88, -2, v88"); a("v_min_u32 v89, -2, v89")
        a("s_waitcnt vmcnt(0)"); a("s_barrier")
        if "nopers" not in OPT: a("global_store_dwordx2 v10, v[88:89], s[30:31] sc1")
        progress(n + '_pg')
        if kvwait:
            a("s_add_u32 s53, s22, 3"); a("s_min_u32 s53, s53, 63"); kv_tile(a, "s53", "s53", "s36")
            a("s_cmp_lt_u32 s53, s51"); a(f"s_cbranch_scc1 {L(n + '_kvh')}")
            kv_poll(n + '_kv', "s53")
            a("s_add_u32 s51, s53, 1")
            a.label(L(n + '_kvh'))
        step_end()
        a(f"s_cmp_ge_u32 s22, {NSTEP - 3}"); a(f"s_cbranch_scc1 {L(n + '_hp')}")
        a.label(L(n + '_hd'))
    a(f"s_branch {L('m_loop')}")
    for tag in range(2):
        n = f"m{tag}"
        p1_retry(n, True)
        a.label(L(n + '_wt'))
        pub1(tag, "sc1"); a(f"s_branch {L(n + '_pd')}")
        a.label(L(n + '_hp'))
        a("s_sub_u32 s36, s22, 1"); head_word("s36"); a(f"s_branch {L(n + '_hd')}")
    a.label(L('m_first'))
    if kvwait:
        a("s_mov_b32 s53, 0"); kv_poll('kv0', "s53")
    for sg in range(2):
        a(f"s_mov_b32 s53, {sg}"); kv_bases("s53")
        a(f"s_mov_b32 s50, {L_VX + sg*8192}"); xdma("s[34:35]", "s50")
        a(f"s_mov_b32 s50, {L_KX + sg*8192}"); xdma("s[48:49]", "s50")
    if PAR.get("RDLY"): a("s_sleep 110")
    a("s_waitcnt vmcnt(16)"); a("s_barrier"); a("s_barrier")
    pstamp(a, prof, 60)
    if "span" in OPT:
        a("s_and_b32 s98, s20, 15"); a("s_cmp_lg_u32 s98, 0"); a(f"s_cbranch_scc1 {L('nosp')}")
        a("s_memrealtime s[98:99]"); a("s_waitcnt lgkmcnt(0)"); a("v_mov_b32 v17, s98"); a("v_mov_b32 v16, 0")
        a("s_mov_b64 exec, 1"); a("global_atomic_umax v16, v17, s[14:15] offset:16 sc1"); a("s_mov_b64 exec, -1")
        a.label(L('nosp'))
    a("s_waitcnt vmcnt(0)")
    a(f"s_branch {L('m_fj')}")
    a.label(L('fin_m'))
    a("s_nop 7")
    a("v_cvt_pk_bf16_f32 v88, v80, v81"); a("v_cvt_pk_bf16_f32 v89, v82, v83")
    a("v_min_u32 v88, -2, v88"); a("v_min_u32 v89, -2, v89")
    a("global_store_dwordx2 v10, v[88:89], s[30:31] sc1")
    progress('pg_last')
    a(f"s_branch {L('fin')}")

    a.label(L('setup_sm'))
    a(f"v_add_u32 v14, {L_KX}, v6")
    a("v_and_b32 v48, 7, v0"); a("v_lshrrev_b32 v49, 4, v0"); a("v_lshl_add_u32 v9, v49, 3, v48"); a("v_lshlrev_b32 v9, 4, v9"); a("v_and_b32 v50, 8, v0"); a("v_add_u32 v9, v9, v50")
    a("v_and_b32 v49, 1, v49"); a("v_lshl_add_u32 v10, v49, 3, v48"); a("v_lshlrev_b32 v10, 4, v10")
    a("v_lshrrev_b32 v49, 5, v0"); a("v_lshl_add_u32 v10, v49, 2, v10"); a("v_lshrrev_b32 v50, 2, v50"); a("v_add_u32 v10, v10, v50")
    a("s_mov_b32 s46, 0x3e0293ee")
    for i in range(4): a(f"v_mov_b32 v{84+i}, 0")
    a(f"ds_write_b128 v6, v[84:87] offset:{L_ZERO}"); a(f"ds_write_b128 v6, v[84:87] offset:{L_ZERO + 1024}")
    def k_load():
        for i in range(8): a(f"ds_read_b128 v[{96+4*i}:{99+4*i}], v14 offset:{1024*i}")
        a("v_xor_b32 v14, 0x2000, v14")
    zero_acc()
    a("s_setprio 2")
    def xload(b):
        for jj in range(4): a(f"global_load_dwordx4 v[{b+4*jj}:{b+3+4*jj}], v6, {RB(tag)} offset:{1024*jj} sc1")
    def s_mfma(b, t, jj):
        X = f"v[{b+4*jj}:{b+3+4*jj}]"
        d = 64 + 4*t
        A = X if t == 2 else f"v[{96+(t*4+jj)*4}:{99+(t*4+jj)*4}]"
        return f"v_mfma_f32_16x16x32_bf16 v[{d}:{d+3}], {A}, {X}, " + (f"v[{d}:{d+3}]" if jj else "0")
    def s_head(b, tag):
        tagchk(a, list(range(b, b + 16)), None if NT_ else tag, 15, 16, [s_mfma(b, 2, jj) for jj in range(4)])
    dpp = "row_shr:8 row_mask:0xf bank_mask:0xc"
    def s_rest(b):
        for jj in range(4): a(s_mfma(b, 1, jj))
        a(s_mfma(b, 0, 0))
        a(f"v_mov_b32_dpp v72, v73 {dpp}"); a(f"v_mov_b32_dpp v74, v75 {dpp}")
        a(s_mfma(b, 0, 1)); a(s_mfma(b, 0, 2))
        a("v_permlane32_swap_b32 v72, v74")
        a(s_mfma(b, 0, 3))
    XD = PAR["XD"]
    a(f"s_branch {L('s0_in')}")
    a.label(L('s_loop'))
    for tag in range(2):
        n = f"s{tag}"
        p1(n, None, True)
        if tag == (NSTEP - 1) & 1:
            a(f"s_cmp_eq_u32 s22, {NSTEP-1}"); a(f"s_cbranch_scc1 {L('fin')}")
        if tag == 0:
            a("s_cmp_eq_u32 s22, 0"); a(f"s_cbranch_scc1 {L('s_first')}")
            pass
        backoff(a, PAR["XDEL"])
        if tag == 0: a.label(L('s_fj'))
        if XD == 2:
            xload(48)
            backoff(a, PAR["XGAP"])
        a.label(L(n + '_xp'))
        xload(128 if XD == 2 else 48)
        a(f"s_waitcnt vmcnt({4*(XD-1)})")
        fs(a, prof, 0, 4)
        s_head(48, tag)
        a(f"s_cbranch_vccnz {L(n + '_xr')}")
        stamp(a, prof, 2)
        fs(a, prof, 1, 4)
        s_rest(48)
        a.label(L(n + '_xj'))
        fs(a, prof, 2, 4)
        a("s_nop 0")
        a("v_max_f32_dpp v16, v74, v74 row_ror:8 row_mask:0xf bank_mask:0xf")
        a("v_max3_f32 v16, v16, v68, v69"); a("v_max3_f32 v16, v16, v70, v71")
        a("s_nop 3")
        a("v_max3_f32 v16, v16, v64, v65"); a("v_max3_f32 v16, v16, v66, v67")
        fs(a, prof, 3, 4)
        a("v_mov_b32 v17, v16"); a(f"v_mov_b32_dpp v64, v68 {dpp}"); a(f"v_mov_b32_dpp v65, v69 {dpp}")
        a("v_permlane16_swap_b32 v16, v17"); a("v_max_f32 v16, v16, v17")
        a("v_mov_b32 v17, v16"); a(f"v_mov_b32_dpp v66, v70 {dpp}"); a(f"v_mov_b32_dpp v67, v71 {dpp}")
        a("v_permlane32_swap_b32 v16, v17"); a("v_max_f32 v16, v16, v17")
        fs(a, prof, 4, 4)
        a("v_mul_f32 v16, s46, v16")
        a("s_nop 1")
        a(f"v_mov_b32_dpp v16, v16 {dpp}")
        for rg in (74, 64, 65, 66, 67): a(f"v_fma_f32 v{rg}, v{rg}, s46, -v16")
        a("v_exp_f32 v74, v74"); a("v_exp_f32 v64, v64")
        a("v_cvt_pk_bf16_f32 v82, v74, v74")
        a("v_exp_f32 v65, v65")
        a(f"ds_write_b16 v10, v82 offset:{L_P + 1024}")
        a("v_exp_f32 v66, v66")
        a(f"ds_write_b16 v10, v82 offset:{L_P + 1280}")
        a("v_exp_f32 v67, v67")
        a("v_cvt_pk_bf16_f32 v80, v64, v65")
        a("v_cvt_pk_bf16_f32 v81, v66, v67")
        a(f"ds_write_b64 v9, v[80:81] offset:{L_P}")
        fs(a, prof, 5, 4)
        a("s_waitcnt lgkmcnt(0)"); fs(a, prof, 6, 4); a("s_barrier"); fs(a, prof, 7, 4)
        stamp(a, prof, 3)
        k_load()
        step_end()
    a(f"s_branch {L('s_loop')}")
    for tag in range(2):
        n = f"s{tag}"
        p1_retry(n)
        a.label(L(n + '_xr'))
        if XD == 2:
            xload(48)
            a("s_waitcnt vmcnt(4)")
            s_head(128, tag)
            a(f"s_cbranch_vccnz {L(n + '_xg')}")
            stamp(a, prof, 2)
            s_rest(128)
            a(f"s_branch {L(n + '_xj')}")
            a.label(L(n + '_xg'))
        guard(a, L(n + '_xp'), FAIL)

    a.label(L('s_first')); a("s_barrier"); k_load(); a("s_waitcnt lgkmcnt(0)"); a("s_barrier"); a(f"s_branch {L('s_fj')}")

    a.label(L('setup_vo'))
    a("v_add_u32 v8, 0x1000, v6"); a("v_lshrrev_b32 v9, 4, v0")
    a("s_lshl_b32 s36, s19, 5"); a("s_lshl_b32 s42, s21, 3"); a("s_add_u32 s36, s36, s42")
    a("v_add_u32 v9, s36, v9"); a("v_bfe_u32 v11, v0, 3, 1"); a("v_lshl_add_u32 v9, v11, 2, v9")
    a("v_and_b32 v11, 1, v9"); a("v_lshlrev_b32 v11, 12, v11"); a("v_lshrrev_b32 v9, 1, v9"); a("v_lshl_add_u32 v9, v9, 14, v11")
    a("v_and_b32 v11, 7, v0"); a("v_lshl_add_u32 v9, v11, 4, v9"); a("s_lshl_b32 s36, s18, 7"); a("v_add_u32 v9, s36, v9")
    a("v_lshrrev_b32 v12, 4, v0"); a("v_and_b32 v13, 7, v0"); a("v_lshl_add_u32 v12, v12, 3, v13"); a("v_lshlrev_b32 v12, 4, v12"); a(f"v_add_u32 v12, {L_P}, v12"); a(f"v_mov_b32 v11, {L_ZERO}")
    a("v_and_b32 v13, 8, v0"); a("v_cmp_eq_u32 vcc, 0, v13"); a("s_nop 1")
    a("v_cndmask_b32 v13, v12, v11, vcc"); a("v_cndmask_b32 v12, v11, v12, vcc")
    a(f"v_add_u32 v14, {L_VX}, v6")
    a("s_lshr_b32 s36, s21, 1"); a(f"s_mul_i32 s54, s36, {WS_VX - WS_KX}"); a(f"s_mul_i32 s55, s36, {L_VX - L_KX}")
    a("s_and_b32 s36, s21, 1"); a("s_lshl_b32 s36, s36, 12"); a("s_add_u32 s54, s54, s36"); a("s_add_u32 s55, s55, s36"); a(f"s_add_u32 s55, s55, {L_KX}")
    a("s_lshl_b32 s36, s18, 14"); a("s_add_u32 s54, s54, s36"); a(f"s_add_u32 s54, s54, {WS_KX}")
    def u_load():
        for i in range(8): a(f"ds_read_b128 v[{16+4*i}:{19+4*i}], v14 offset:{1024*i}")
        a("v_xor_b32 v14, 0x2000, v14")
    def u_half(hf):
        for jj in range(4):
            for c2 in range(2):
                for kt in range(2):
                    d = 64 + (c2*2 + kt)*4
                    A = 16 + (kt*4 + jj)*4
                    a(f"v_mfma_f32_16x16x32_bf16 v[{d}:{d+3}], v[{A}:{A+3}], {wo_reg(2*hf+c2, jj)}, " + ("0" if jj == 0 else f"v[{d}:{d+3}]"))
        a("s_nop 7")
        for c2 in range(2):
            for kt in range(2):
                d = 64 + (c2*2 + kt)*4
                u = 80 + (2*hf + c2)*4 + kt*2
                a(f"v_cvt_pk_bf16_f32 v{u}, v{d}, v{d+1}"); a(f"v_cvt_pk_bf16_f32 v{u+1}, v{d+2}, v{d+3}")
    def vo_prep(tag, ahead):
        for i in range(4): a(f"v_mov_b32 v{56+i}, 0x3f803f80")
        for i in range(4): a(f"v_mov_b32 v{60+i}, 0x3f003f00")
        for i in range(16): a(f"v_mov_b32 v{64+i}, 0")
        a(f"s_add_u32 s53, s22, {2 + ahead}"); a("s_min_u32 s53, s53, 63"); a("s_lshl_b32 s53, s53, 19"); a("s_add_u32 s53, s53, s54"); near(a, 48, "s53", kv=True)
        a(f"s_add_u32 m0, s55, {tag*8192}")
    vo_prep(0, 0)
    zero_acc()
    if PAR["PRIO"]: a("s_setprio 1")
    a(f"s_branch {L('o0_in')}")
    a.label(L('o_loop'))
    for tag in range(2):
        n = f"o{tag}"
        p1(n)
        if tag == (NSTEP - 1) & 1:
            a(f"s_cmp_eq_u32 s22, {NSTEP-1}"); a(f"s_cbranch_scc1 {L('fin')}")
        backoff(a, PAR["VDEL"])
        a.label(L(n + '_vp'))
        for k in range(2): a(f"global_load_dwordx4 v[{48+4*k}:{51+4*k}], v8, {RB(tag)} offset:{1024*k} sc1")
        a("s_waitcnt vmcnt(0)")
        tagchk(a, list(range(48, 56)), None if NT_ else tag, 17, 16)
        a(f"s_cbranch_vccnz {L(n + '_vr')}")
        for k in range(2):
            for ct in range(4):
                b = 96 + (ct*4 + 2*k)*4
                a(f"v_smfmac_f32_16x16x64_bf16 v[{64+4*ct}:{67+4*ct}], v[{48+4*k}:{51+4*k}], v[{b}:{b+7}], v2")
                if PAR["DMI"] and tag == 1 and k == PAR["DMI"] - 1: a(f"global_load_lds_dwordx4 v6, s[48:49] offset:{ct*1024} sc1")
        a("s_nop 4")
        for ct in range(4):
            if ct == 3: a("s_nop 1")
            t = 24 + (ct & 1)*4 + (ct >> 1)*2
            a(f"v_cvt_pk_bf16_f32 v{t}, v{64+4*ct}, v{65+4*ct}"); a(f"v_cvt_pk_bf16_f32 v{t+1}, v{66+4*ct}, v{67+4*ct}")
        if tag == 0:
            a("s_cmp_eq_u32 s22, 0"); a(f"s_cbranch_scc1 {L('o_first')}")
            a.label(L('o_fj'))
        if not PAR["DDEL"] and not (PAR["DMI"] and tag == 1) and "nodma" not in OPT:
            for jj in range(4): a(f"global_load_lds_dwordx4 v6, s[48:49] offset:{jj*1024} sc1")
        stamp(a, prof, 3)
        a("s_barrier")
        a("ds_read_b64 v[36:37], v12 offset:1024"); a("ds_read_b64 v[38:39], v13 offset:1024")
        a("ds_read_b128 v[32:35], v12"); a("ds_read_b128 v[48:51], v13")
        a("s_waitcnt lgkmcnt(2)")
        stamp(a, prof, 4)
        a("v_mfma_f32_16x16x32_bf16 v[40:43], v[60:63], v[36:39], 0")
        a("v_mfma_f32_16x16x32_bf16 v[64:67], v[24:27], v[36:39], 0")
        a("s_waitcnt lgkmcnt(0)")
        a("v_or_b32 v44, v32, v48"); a("v_or_b32 v45, v33, v49")
        a("v_or_b32 v46, v34, v50"); a("v_or_b32 v47, v35, v51")
        a("v_mfma_f32_16x16x32_bf16 v[64:67], v[80:83], v[32:35], v[64:67]")
        a("v_mfma_f32_16x16x32_bf16 v[68:71], v[28:31], v[36:39], 0")
        a("v_mfma_f32_16x16x32_bf16 v[40:43], v[56:59], v[44:47], v[40:43]")
        a("v_mfma_f32_16x16x32_bf16 v[64:67], v[88:91], v[48:51], v[64:67]")
        a("v_mfma_f32_16x16x32_bf16 v[68:71], v[84:87], v[32:35], v[68:71]")
        a("v_mfma_f32_16x16x32_bf16 v[68:71], v[92:95], v[48:51], v[68:71]")
        a("s_nop 4")
        a("v_rcp_f32 v40, v40")
        a("s_nop 0")
        tg = lambda x: a(f"v_min_u32 v{x}, -2, v{x}" if PAR["DROP"] else f"v_or_b32 v{x}, 1, v{x}" if tag else f"v_and_b32 v{x}, -2, v{x}")
        for h in range(2):
            for i in range(2): a(f"v_pk_mul_f32 v[{64+4*h+2*i}:{65+4*h+2*i}], v[{64+4*h+2*i}:{65+4*h+2*i}], v[40:41] op_sel_hi:[1,0]")
            for i in range(2): a(f"v_cvt_pk_bf16_f32 v{48+2*h+i}, v{64+4*h+2*i}, v{65+4*h+2*i}")
        for i in range(4): tg(48 + i)
        a(f"global_store_dwordx4 v9, v[48:51], {PB(tag)} sc1")
        stamp(a, prof, 5)
        u_load(); a("s_waitcnt lgkmcnt(0)"); u_half(0)
        u_half(1)
        vo_prep(tag ^ 1, 1)
        step_end()
    a(f"s_branch {L('o_loop')}")
    for tag in range(2):
        n = f"o{tag}"
        p1_retry(n)
        a.label(L(n + '_vr')); guard(a, L(n + '_vp'), FAIL)

    a.label(L('o_first'))
    for i in range(8): a(f"v_mov_b32 v{48+i}, v{24+i}")
    a("s_barrier")
    u_load(); a("s_waitcnt lgkmcnt(0)"); a("s_barrier"); u_half(0); u_half(1)
    for i in range(8): a(f"v_mov_b32 v{24+i}, v{48+i}")
    a(f"s_branch {L('o_fj')}")

    a.label(L('last_pub'))
    a("s_nop 7")
    a("v_cvt_pk_bf16_f32 v88, v80, v81"); a("v_cvt_pk_bf16_f32 v89, v82, v83")
    a("v_min_u32 v88, -2, v88"); a("v_min_u32 v89, -2, v89")
    a("s_or_b32 s36, s19, s37"); a("s_and_b32 s36, s36, 2"); a(f"s_cbranch_scc0 {L('fin')}")
    a("global_store_dwordx2 v10, v[88:89], s[30:31] sc1")
    a.label(L('fin'))
    a("s_waitcnt vmcnt(0)"); a("s_barrier")
    a("s_cmp_eq_u32 s21, 0"); a(f"s_cbranch_scc0 {L('end')}")
    head_word(str(NSTEP - 1))
    if "span" in OPT:
        a("s_and_b32 s98, s20, 15"); a("s_cmp_lg_u32 s98, 0"); a(f"s_cbranch_scc1 {L('end')}")
        a("s_memrealtime s[98:99]"); a("s_waitcnt lgkmcnt(0)"); a("v_mov_b32 v5, s98"); a("v_mov_b32 v2, 0")
        a("s_mov_b64 exec, 1"); a("global_atomic_umax v2, v5, s[14:15] offset:56 sc1"); a("s_mov_b64 exec, -1")
    if "diag" in OPT:
        a("s_cmp_eq_u32 s20, 0"); a(f"s_cbranch_scc0 {L('end')}")
        a("s_memrealtime s[56:57]"); a("s_waitcnt lgkmcnt(0)"); a("s_sub_u32 s70, s56, s98"); a("s_sub_u32 s71, s98, s97")
        a("s_mov_b64 exec, 1")
        a("s_mov_b32 s72, 0"); a("s_mov_b32 s73, 0"); a("s_mov_b32 s74, 0"); a("v_mov_b32 v18, 0")
        a.label(L('dg'))
        for k in range(2):
            a("s_lshl_b32 s36, s74, 21"); a(f"s_add_u32 s36, s36, {0x10000 + k*0x2000}"); a("v_mov_b32 v16, s36")
            for rep in range(2):
                a("s_memtime s[56:57]"); a("s_waitcnt lgkmcnt(0)")
                a("global_atomic_or v17, v16, v18, s[16:17] sc0 sc1"); a("s_waitcnt vmcnt(0)")
                a("s_memtime s[58:59]"); a("s_waitcnt lgkmcnt(0)")
            a(f"s_sub_u32 s{76+k}, s58, s56")
        a("s_cmp_lt_u32 s77, s76"); a("s_cselect_b32 s78, 1, 0"); a("s_mov_b32 s79, 0"); a("s_lshl_b64 s[78:79], s[78:79], s74"); a("s_or_b64 s[72:73], s[72:73], s[78:79]")
        a("s_add_u32 s74, s74, 1"); a("s_cmp_lt_u32 s74, 64"); a(f"s_cbranch_scc1 {L('dg')}")
        for k in range(4): a(f"v_mov_b32 v{20+k}, s{70+k}")
        a("global_store_dwordx4 v18, v[20:23], s[14:15] offset:48")
        a("s_mov_b64 exec, -1")
    a(f"s_branch {L('end')}")
    a.label(FAIL)
    a("v_mov_b32 v16, 0"); a("v_mov_b32 v17, 0xdead"); a("global_store_dword v16, v17, s[14:15] offset:252")
    a.label(L('end'))
    if prof:
        if prof == 3:
            a("s_memrealtime s[56:57]"); a("s_waitcnt lgkmcnt(0)"); a("s_mov_b32 s61, s56"); a("s_mov_b32 s62, s25"); a("s_mov_b32 s63, s90"); a("s_mov_b32 s64, s91"); a("s_mov_b32 s65, s89")
        if prof == 3:
            a("s_cmp_eq_u32 s21, 5"); a(f"s_cbranch_scc0 {L('nost')}")
            a("s_lshl_b32 s36, s20, 9"); a(f"s_add_u32 s36, s36, {203<<20}"); a("v_lshrrev_b32 v16, 1, v6"); a("v_add_u32 v16, s36, v16")
            a("global_store_dwordx2 v16, v[150:151], s[16:17]")
            a.label(L('nost'))
        if prof > 3:
            a("s_waitcnt lgkmcnt(0)")
            for k in range(8): a(f"s_sub_u32 s{60+k if k < 6 else 84+k}, s{66+2*k}, s66")
            a("s_mov_b32 s66, s90"); a("s_mov_b32 s67, s91")
        a("s_lshl_b32 s36, s20, 3"); a("s_add_u32 s36, s36, s21"); a("s_lshl_b32 s36, s36, 5"); a(f"s_add_u32 s36, s36, {200<<20}")
        a("v_mov_b32 v16, s36")
        for k in range(8): a(f"v_mov_b32 v{24+k}, s{60+k}")
        a("s_mov_b64 exec, 1")
        a("global_store_dwordx4 v16, v[24:27], s[16:17]"); a("global_store_dwordx4 v16, v[28:31], s[16:17] offset:16")
    a("s_endpgm")
```

```python
import sys, os
sys.path.insert(0, os.path.dirname(__file__))
from asmgen import *
import gemm
import rec2 as rec
from gemm import acc, R

NAME = "concat_heads__linear_attn_block__memory_aug_recurrent_mem_tr__prompt"
WS_O   = 84 << 20
WS_OA  = 116 << 20
WS_KVP = 124 << 20
OA_T = 65536
WS_INBOX = 142 << 20
D_OVF, D_AKV, D_KV, D_AO, D_O = 32, 36, 64, 96, 128
D_PROG = rec.DBG_PROG
WSPIN = 400000
TSET = "1111000221021012"
def setmask(k): return sum(1 << t for t in range(16) if int(TSET[t]) == k)
LOG2E = 0x3fb8aa3b
EPS = 0x358637bd
SCL = 0x3e0293ee


def load_ptrs(a):
    a("s_load_dwordx16 s[4:19], s[0:1], 0"); a("s_load_dwordx2 s[20:21], s[0:1], 64")
    a("s_load_dwordx4 s[24:27], s[0:1], 80"); a("s_load_dwordx2 s[28:29], s[0:1], 96")

def signal(a, off_sgpr_or_imm, val=1):
    lab = a.newlabel("sig")
    a("s_waitcnt vmcnt(0)"); a("s_barrier")
    a("s_cmp_lg_u32 s75, 0"); a(f"s_cbranch_scc1 {lab}")
    a(f"v_mov_b32 v16, {off_sgpr_or_imm}"); a(f"v_mov_b32 v17, {val}")
    a("s_mov_b64 exec, 1")
    a("global_atomic_add v16, v17, s[26:27] sc1")
    a("s_mov_b64 exec, -1")
    a.label(lab)

def wait_cnt(a, off, target, inv=True):
    lp, ok, done = a.newlabel("wl"), a.newlabel("wo"), a.newlabel("wd")
    a("s_cmp_lg_u32 s75, 0"); a(f"s_cbranch_scc1 {done}")
    a(f"v_mov_b32 v16, {off}")
    a.label(lp)
    a("global_load_dword v17, v16, s[26:27] sc1"); a("s_waitcnt vmcnt(0)")
    a(f"v_cmp_ne_u32 vcc, {target}, v17"); a(f"s_cbranch_vccz {ok}")
    a("s_sleep 8")
    a("s_add_u32 s46, s46, 1"); a(f"s_cmp_lt_u32 s46, {WSPIN}"); a(f"s_cbranch_scc1 {lp}")
    a("s_branch w_fail")
    a.label(ok)
    if inv: a("buffer_inv sc1"); a("s_waitcnt vmcnt(0)")
    a.label(done)
    a("s_barrier")

def learn_parity(a):
    lp, ok = a.newlabel("vl"), a.newlabel("vo")
    a.label(lp)
    a("s_waitcnt vmcnt(0)")
    a("v_readfirstlane_b32 s22, v18"); a("v_readfirstlane_b32 s34, v19")
    a("s_and_b32 s32, s22, 0xffff"); a("s_add_u32 s32, s32, s34"); a("s_cmp_eq_u32 s32, 256"); a(f"s_cbranch_scc1 {ok}")
    a("s_sleep 8")
    a(f"global_load_dwordx2 v[18:19], v16, s[26:27] offset:{rec.DBG_VOTE} sc1")
    a("s_add_u32 s46, s46, 1"); a(f"s_cmp_lt_u32 s46, {WSPIN}"); a(f"s_cbranch_scc1 {lp}")
    a("s_branch w_fail")
    a.label(ok)
    a("s_lshr_b32 s22, s22, 16"); a("s_cmp_gt_u32 s22, 64"); a("s_cselect_b32 s22, 1, 0")

def phi(a, regs):
    for i in range(0, len(regs), 8):
        b = regs[i:i+8]
        for k, r in enumerate(b): a(f"v_mul_f32 v{16+k}, s40, v{r}")
        for k, r in enumerate(b): a(f"v_min_f32 v{16+k}, 0, v{16+k}")
        for k, r in enumerate(b): a(f"v_exp_f32 v{16+k}, v{16+k}")
        for k, r in enumerate(b): a(f"v_max_f32 v{r}, 0, v{r}")
        for k, r in enumerate(b): a(f"v_add_f32 v{r}, v{r}, v{16+k}")
        for k, r in enumerate(b): a(f"v_add_f32 v{r}, s41, v{r}")

def pack_frags(a):
    for tt in range(4):
        for jj in range(4):
            s = acc(tt, 2*jj); d = 32 + (tt*4 + jj)*4
            for i in range(4): a(f"v_cvt_pk_bf16_f32 v{d+i}, v{s+2*i}, v{s+2*i+1}")
def frag(tt, jj): return R('v', 32 + (tt*4 + jj)*4)

PROF = False
def wstamp(a, k):
    if not PROF: return
    lab = a.newlabel("ws")
    a("s_cmp_lg_u32 s75, 0"); a(f"s_cbranch_scc1 {lab}")
    a("s_memrealtime s[56:57]"); a("s_waitcnt lgkmcnt(0)")
    a("s_lshl_b32 s58, s97, 7"); a("s_lshl_b32 s57, s59, 2"); a("s_add_u32 s58, s58, s57"); a(f"s_add_u32 s58, s58, {201 << 20}")
    a("v_mov_b32 v16, s58"); a("v_mov_b32 v17, s56"); a("global_store_dword v16, v17, s[28:29]")
    a("s_memtime s[56:57]"); a("s_waitcnt lgkmcnt(0)"); a("v_mov_b32 v17, s56"); a("v_add_u32 v16, 0x100000, v16"); a("global_store_dword v16, v17, s[28:29]")
    a("s_add_u32 s59, s59, 1")
    a.label(lab)

def tstamp(a, ev, v0=126, v1=127):
    if not PROF: return
    a("s_memrealtime s[56:57]"); a("s_waitcnt lgkmcnt(0)")
    a("s_lshl_b32 s58, s96, 2"); a(f"s_add_u32 s58, s58, {(204 << 20) + ev*8192}")
    a(f"v_mov_b32 v{v0}, s58"); a(f"v_mov_b32 v{v1}, s56"); a(f"global_store_dword v{v0}, v{v1}, s[28:29]")

def wside(a, dst, off, tmp):
    rec.near(a, dst, off, "s22", 28, tmp, kv=True)

def task_g1(a, MT, grp):
    if grp: gemm.setup_a_rowmajor(a, 2048, MT); gemm.setup_w(a, 8192)
    a("s_lshl_b32 s32, s31, 15"); a("s_add_u32 s80, s10, s32"); a("s_addc_u32 s81, s11, 0")
    a("s_cmp_lt_u32 s30, 16"); a("s_cselect_b32 s82, s16, s18"); a("s_cselect_b32 s83, s17, s19")
    a(f"s_cselect_b32 s33, {rec.WS_KX >> 20}, {rec.WS_VX >> 20}"); a("s_lshl_b32 s33, s33, 20")
    a("s_and_b32 s35, s30, 15"); a("s_lshl_b32 s32, s35, 9"); a("s_add_u32 s82, s82, s32"); a("s_addc_u32 s83, s83, 0")
    a("s_mov_b32 s66, 7")
    if grp == 0 and rec.PAR["WPF"]:
        a("s_mov_b32 s78, 0"); a("s_mov_b32 s79, 0")
        a("s_cmp_lt_u32 s44, 2"); a("s_cbranch_scc1 no_wpf")
        if rec.PAR["HALF"]: a("s_mov_b32 s78, 1024"); a(f"s_mov_b32 s79, {4 << 20}")
        a("s_and_b32 s34, s44, 1"); a("s_lshl_b32 s34, s34, 3"); a("s_add_u32 s34, s34, s75")
        if rec.PAR["EPF"] == 3:
            a("v_lshrrev_b32 v16, 2, v0"); a("s_lshl_b32 s32, s34, 4"); a("s_add_u32 s32, s32, 192"); a("v_add_u32 v16, s32, v16"); a("v_and_b32 v17, 3, v0"); a("v_lshlrev_b32 v17, 7, v17")
            a("s_and_b32 s32, s45, 7"); a("s_lshl_b32 s32, s32, 4"); a("s_add_u32 s32, s32, s34")
            for i in range(4):
                a("v_min_u32 v18, 1023, v16"); a("v_lshl_add_u32 v18, v18, 13, v17")
                a("global_load_dword a95, v18, s[82:83]")
                a("v_add_u32 v16, 256, v16")
                if i == 0:
                    a("v_bfe_u32 v18, v0, 3, 1"); a("v_lshlrev_b32 v18, 11, v18"); a("v_and_b32 v19, 7, v0"); a("v_lshl_add_u32 v18, v19, 7, v18")
                    a("s_lshl_b32 s36, s32, 12"); a("s_add_u32 s36, s36, 1024"); a("v_add_u32 v18, s36, v18")
                    a("global_load_dword a95, v18, s[10:11]")
                if i < 3: a("s_barrier")
            a("s_lshl_b32 s36, s32, 12"); a(f"s_add_u32 s36, s36, {512*1024}"); a("v_and_b32 v18, 31, v0"); a("v_lshl_add_u32 v18, v18, 7, s36")
            a("global_load_dword a95, v18, s[10:11]")
        else:
            nx = rec.PAR["WPF"]
            a("s_and_b32 s32, s45, 7"); a("s_lshl_b32 s32, s32, 4"); a("s_add_u32 s32, s32, s34"); a(f"s_lshl_b32 s32, s32, {11 + nx}")
            a(f"v_and_b32 v16, {32*nx - 1}, v0"); a("v_lshl_add_u32 v16, v16, 7, s32")
            if not rec.PAR["EPF"]: a("global_load_dword a95, v16, s[10:11]")
            a("v_lshrrev_b32 v16, 2, v0"); a("v_lshlrev_b32 v16, 13, v16"); a("v_and_b32 v17, 3, v0"); a("v_lshl_add_u32 v16, v17, 7, v16")
            a("s_lshl_b32 s32, s34, 17"); a("v_add_u32 v16, s32, v16")
            for i in range(4):
                if i or not rec.PAR["EPF"]:
                    a("global_load_dword a95, v16, s[82:83]")
                    if i < 3: a("s_barrier")
                a(f"v_add_u32 v16, {256*8192}, v16")
        a.label("no_wpf")
    def first_signal(n):
        lab = a.newlabel("sig")
        a(f"s_waitcnt vmcnt({n})"); a("s_barrier")
        a("s_cmp_lg_u32 s75, 0"); a(f"s_cbranch_scc1 {lab}")
        a("v_mov_b32 v16, s88"); a("v_mov_b32 v17, 0")
        a("s_mov_b64 exec, 1"); a("global_store_dword v16, v17, s[28:29] sc1"); a("s_mov_b64 exec, -1")
        if "span" in rec.OPT:
            a("s_cmp_lg_u32 s44, 0"); a(f"s_cbranch_scc1 {lab}")
            a("s_memrealtime s[56:57]"); a("s_waitcnt lgkmcnt(0)"); a("v_mov_b32 v16, s56")
            a("s_mov_b64 exec, 1"); a("global_atomic_umax v17, v16, s[26:27] offset:24 sc1"); a("s_mov_b64 exec, -1")
        a.label(lab)
        wstamp(a, 0)
    ST = rec.PAR["ST"]
    if grp == 1:
        if ST == 0:
            gemm.prologue(a, MT); first_signal(8 + 2*MT)
        else:
            first_signal(0)
            if ST == 1 and not rec.PAR["RPF"]:
                a("s_mul_i32 s32, s96, 3072"); a(f"s_add_u32 s32, s32, {1 << 20}"); a("v_lshlrev_b32 v20, 6, v0"); a("v_min_u32 v20, 3008, v20"); a("v_add_u32 v20, s32, v20")
                a("global_load_dword a95, v20, s[10:11]")
    gemm.call(a, f"core_T{MT}" + ("_m" if grp == 1 and ST == 0 else ""))
    if grp == 0: learn_parity(a)
    wstamp(a, 0)
    a("s_lshl_b32 s34, s35, 1"); a("s_add_u32 s34, s34, s73"); a("s_lshl_b32 s34, s34, 14"); a("s_add_u32 s33, s33, s34")
    a(f"s_mul_i32 s36, s72, {MT}"); a("s_add_u32 s36, s36, s31")
    a("v_lshlrev_b32 v19, 4, v0")
    for tt in range(MT):
        a(f"s_add_u32 s32, s36, {tt}"); a("s_and_b32 s34, s32, 1"); a("s_lshl_b32 s34, s34, 12"); a("s_lshr_b32 s32, s32, 1"); a("s_lshl_b32 s32, s32, 19")
        a("s_add_u32 s32, s32, s34"); a("s_add_u32 s32, s32, s33")
        rec.near_bit(a, "s34", "s32", "s22", True); a("s_add_u32 s32, s32, s34")
        a(f"v_add_u32 v{20+tt}, s32, v19")
    a("s_lshl_b32 s88, s23, 7"); a("s_lshl_b32 s32, s30, 2"); a("s_add_u32 s88, s88, s32"); a(f"s_add_u32 s88, s88, {rec.WS_FLAG + (96 + 4*grp)*128}")
    if grp == 0: gemm.epi_frag_store(a, "s[28:29]", "sc1", MT)
    else:
        a("s_mov_b32 s89, 1"); a("s_mov_b32 s77, 1")

def touches(a, parts):
    for i, (p, fix, per, first, n) in enumerate(parts):
        a(f"s_mul_i32 s32, s96, {per*1024}"); a(f"s_add_u32 s32, s32, {fix + first*1024}")
        a(f"s_add_u32 s{90+2*i}, s{p}, s32"); a(f"s_addc_u32 s{91+2*i}, s{p+1}, 0"); a(f"s_mov_b32 s{99+i}, {n*1024 - 64}")
    a("s_mov_b32 s98, 0" if "notouch" in rec.OPT else "s_mov_b32 s98, 1")

def task_g4kv(a):
    def colmap(a, v):
        a(f"v_bfe_u32 v18, v{v}, 3, 1"); a("v_lshlrev_b32 v18, 11, v18")
        a(f"v_lshrrev_b32 v19, 4, v{v}"); a("v_lshl_add_u32 v18, v19, 7, v18")
        a(f"v_and_b32 v{v}, 7, v{v}"); a(f"v_lshl_add_u32 v{v}, v{v}, 4, v18")
    gemm.setup_a_rowmajor(a, 2048); gemm.setup_w(a, 6144, colmap)
    a("s_lshl_b32 s32, s31, 19"); a("s_add_u32 s80, s4, s32"); a("s_addc_u32 s81, s5, 0")
    a("s_lshl_b32 s32, s30, 8"); a("s_add_u32 s32, s32, 2048"); a("s_add_u32 s82, s6, s32"); a("s_addc_u32 s83, s7, 0")
    a("s_mov_b32 s66, 7")
    gemm.call(a, "core_N")
    wstamp(a, 0)
    a(f"s_mov_b32 s40, {LOG2E}"); a(f"s_mov_b32 s41, {EPS}")
    phi(a, [acc(tt, 0) + i for tt in range(4) for i in range(16)])
    for tp in range(2):
        for ft in range(8):
            x = acc(2*tp, ft); y = acc(2*tp+1, ft)
            a(f"v_cvt_pk_bf16_f32 v{x}, v{x}, v{x+1}"); a(f"v_cvt_pk_bf16_f32 v{x+1}, v{x+2}, v{x+3}")
            a(f"v_cvt_pk_bf16_f32 v{x+2}, v{y}, v{y+1}"); a(f"v_cvt_pk_bf16_f32 v{x+3}, v{y+2}, v{y+3}")
    for i in range(4): a(f"v_mov_b32 v{16+i}, 0x3f803f80")
    a("v_lshlrev_b32 v20, 4, v0"); a("s_mul_i32 s32, s73, 49152"); a("s_lshl_b32 s33, s72, 10"); a("s_add_u32 s32, s32, s33"); a("v_add_u32 v21, s32, v20")
    outb = lambda hd, et, dt: (64 if hd == 0 else 128) + (et*2 + dt)*4
    for tp in range(2):
        for hd in range(2):
            for et in range(3):
                for dt in range(2):
                    D = R('v', outb(hd, et, dt)); A = R('v', acc(2*tp, 2*hd + dt)); B = R('v', acc(2*tp, 4 + 2*hd + et)) if et < 2 else "v[16:19]"
                    a(f"v_mfma_f32_16x16x32_bf16 {D}, {A}, {B}, " + ("0" if tp == 0 else D))
    a("s_barrier")
    a("s_nop 7")
    for hd in range(2):
        for f in range(6):
            a(f"ds_write_b128 v21, {R('v', outb(hd, f >> 1, f & 1))} offset:{(hd*6 + f)*4096}")
    a("s_mul_i32 s32, s75, 12288"); a("v_add_u32 v21, s32, v20")
    a("s_waitcnt lgkmcnt(0)"); a("s_barrier")
    for k in range(3):
        for m in range(4): a(f"ds_read_b128 {R('v', 32 + (k*4 + m)*4)}, v21 offset:{k*4096 + m*1024}")
    a("s_lshl_b32 s32, s31, 5"); a("s_lshl_b32 s33, s30, 2"); a("s_add_u32 s32, s32, s33"); a("s_mul_i32 s32, s32, 6144")
    a("s_mul_i32 s33, s75, 3072"); a("s_add_u32 s32, s32, s33"); a(f"s_add_u32 s32, s32, {WS_KVP}"); a("v_add_u32 v22, s32, v20")
    a("s_waitcnt lgkmcnt(0)")
    for k in range(3):
        b = 32 + k*16
        for h in range(2):
            a(f"v_pk_add_f32 v[{b+2*h}:{b+2*h+1}], v[{b+2*h}:{b+2*h+1}], v[{b+4+2*h}:{b+5+2*h}]")
            a(f"v_pk_add_f32 v[{b+8+2*h}:{b+9+2*h}], v[{b+8+2*h}:{b+9+2*h}], v[{b+12+2*h}:{b+13+2*h}]")
        for h in range(2):
            a(f"v_pk_add_f32 v[{b+2*h}:{b+2*h+1}], v[{b+2*h}:{b+2*h+1}], v[{b+8+2*h}:{b+9+2*h}]")
        a(f"global_store_dwordx4 v22, {R('v', b)}, s[28:29] offset:{k*1024} sc1")
    signal(a, D_AKV)

def task_g4q(a):
    gemm.setup_a_rowmajor(a, 2048); gemm.setup_w(a, 6144)
    a("s_lshl_b32 s32, s31, 19"); a("s_add_u32 s80, s4, s32"); a("s_addc_u32 s81, s5, 0")
    a("s_lshl_b32 s32, s30, 9"); a("s_add_u32 s82, s6, s32"); a("s_addc_u32 s83, s7, 0")
    a("s_mov_b32 s66, 7")
    gemm.call(a, "core_T")
    wstamp(a, 0)
    a(f"s_mov_b32 s40, {LOG2E}"); a(f"s_mov_b32 s41, {EPS}")
    phi(a, list(range(32, 160)))
    pack_frags(a)
    wstamp(a, 0)
    wait_cnt(a, D_AKV, 64, False)
    wstamp(a, 0)
    a("v_lshlrev_b32 v16, 4, v0")
    for r in range(1, 8): a(f"v_add_u32 v{16+r}, {r*196608}, v16")
    a("s_lshl_b32 s32, s30, 3"); a("s_add_u32 s32, s32, s75"); a("s_mul_i32 s32, s32, 6144"); a(f"s_add_u32 s32, s32, {WS_KVP}")
    a("s_add_u32 s34, s28, s32"); a("s_addc_u32 s35, s29, 0")
    a("s_mul_i32 s32, s75, 3072"); a("v_add_u32 v24, s32, v16")
    for et in range(3):
        for r in range(8):
            for dt in range(2):
                a(f"global_load_dwordx4 {R('v', 96 + (r*2 + dt)*4)}, v{16+r}, s[34:35] offset:{dt*1024} sc1")
        a("s_add_u32 s34, s34, 2048"); a("s_addc_u32 s35, s35, 0")
        a("s_waitcnt vmcnt(0)")
        for step in (32, 16, 8):
            for i in range(0, step, 2):
                a(f"v_pk_add_f32 v[{96+i}:{97+i}], v[{96+i}:{97+i}], v[{96+step+i}:{97+step+i}]")
        for i in range(4): a(f"v_cvt_pk_bf16_f32 v{28+i}, v{96+2*i}, v{97+2*i}")
        a(f"ds_write_b128 v24, v[28:31] offset:{et*1024}")
    a("s_mul_i32 s32, s73, 12288"); a("v_add_u32 v24, s32, v16")
    a("s_waitcnt lgkmcnt(0)"); a("s_barrier")
    for i in range(12): a(f"ds_read_b128 {R('a', i*4)}, v24 offset:{i*1024}")
    gemm.lane_chunk(a, 25, 26)
    a("v_and_b32 v26, 15, v0"); a("v_lshl_add_u32 v25, v25, 4, v26"); a("v_lshlrev_b32 v25, 4, v25")
    a("s_lshl_b32 s32, s31, 4"); a("s_lshl_b32 s33, s72, 2"); a("s_add_u32 s32, s32, s33"); a(f"s_mul_i32 s32, s32, {OA_T}")
    a("s_lshl_b32 s33, s30, 14"); a("s_add_u32 s32, s32, s33"); a("s_lshl_b32 s33, s73, 12"); a("s_add_u32 s32, s32, s33"); a(f"s_add_u32 s32, s32, {WS_OA}")
    rec.near_bit(a, "s33", "s32", "s22", True); a("s_add_u32 s32, s32, s33")
    a("v_add_u32 v20, s32, v25")
    for tt in range(1, 4): a(f"v_add_u32 v{20+tt}, {tt*OA_T}, v20")
    a("s_waitcnt lgkmcnt(0)")
    for hd in range(4):
        for tt in range(4):
            b = 96 + tt*12
            for et in (2, 0, 1):
                a(f"v_mfma_f32_16x16x32_bf16 {R('v', b + et*4)}, {R('a', (hd*3 + et)*4)}, {frag(tt, hd)}, 0")
        a("s_nop 7")
        for tt in range(4):
            b = 96 + tt*12
            a(f"v_add_f32 v{b+8}, s41, v{b+8}")
        for tt in range(4):
            b = 96 + tt*12
            a(f"v_rcp_f32 v{b+8}, v{b+8}")
        for tt in range(4):
            b = 96 + tt*12
            a(f"v_mov_b32 v{b+9}, v{b+8}")
            for i in range(0, 8, 2): a(f"v_pk_mul_f32 v[{b+i}:{b+i+1}], v[{b+i}:{b+i+1}], v[{b+8}:{b+9}]")
            t = 144 + tt*4
            gemm.pack_swap(a, t, b)
            a(f"global_store_dwordx4 v{20+tt}, {R('v', t)}, s[28:29] offset:{hd*1024} sc1")
    a("s_lshl_b32 s32, s31, 2"); a(f"s_add_u32 s32, s32, {D_AO}")
    signal(a, "s32")

def out_offsets(a, MT):
    gemm.lane_chunk(a, 25, 26)
    a("v_and_b32 v26, 15, v0"); a("v_lshlrev_b32 v26, 12, v26"); a("v_lshl_add_u32 v20, v25, 4, v26")
    a(f"s_mul_i32 s32, s72, {MT*16*4096}"); a("s_lshl_b32 s33, s73, 8"); a("s_add_u32 s32, s32, s33"); a("v_add_u32 v20, s32, v20")
    for tt in range(1, MT): a(f"v_add_u32 v{20+tt}, {tt*65536}, v20")

def task_g5(a):
    gemm.setup_a_frag(a, OA_T); gemm.setup_w(a, 2048)
    a("s_lshl_b32 s32, s31, 2"); a(f"s_add_u32 s32, s32, {D_AO}")
    wait_cnt(a, "s32", 4)
    wstamp(a, 0)
    a(f"s_mul_i32 s32, s31, {16*OA_T}"); a(f"s_add_u32 s32, s32, {WS_OA}"); wside(a, 80, "s32", "s33")
    a("s_lshl_b32 s32, s30, 9"); a("s_add_u32 s82, s8, s32"); a("s_addc_u32 s83, s9, 0")
    a("s_mov_b32 s66, 7")
    gemm.call(a, "core_T")
    wstamp(a, 0)
    out_offsets(a, 4)
    a("s_lshl_b32 s32, s31, 20"); a("s_lshl_b32 s33, s30, 9"); a("s_add_u32 s32, s32, s33"); a("s_add_u32 s34, s24, s32"); a("s_addc_u32 s35, s25, 0")
    gemm.epi_out_store(a, "s[34:35]", 4, "" if "outpl" in rec.OPT else "sc1")

def task_wot(a):
    a("s_barrier")
    a("v_lshrrev_b32 v2, 4, v0"); a("v_lshlrev_b32 v2, 11, v2"); a("v_and_b32 v3, 15, v0"); a("v_lshl_add_u32 v2, v3, 4, v2")
    a("s_lshl_b32 s32, s30, 18"); a("s_lshl_b32 s33, s31, 17"); a("s_add_u32 s32, s32, s33"); a("s_lshl_b32 s33, s75, 8"); a("s_add_u32 s32, s32, s33"); a("v_add_u32 v2, s32, v2")
    a("s_lshl_b32 s43, s75, 14")
    for i in range(16):
        a(f"s_add_u32 m0, s43, {i*1024}"); a("s_nop 0")
        a("global_load_lds_dwordx4 v2, s[20:21]")
        a("v_add_u32 v2, 0x2000, v2")
    gemm.pending_stores(a)
    a("s_mov_b32 s77, 0")
    a("v_lshrrev_b32 v3, 2, v0"); a("v_lshlrev_b32 v3, 8, v3"); a("v_and_b32 v16, 3, v0"); a("v_lshl_add_u32 v3, v16, 4, v3"); a("v_add_u32 v3, s43, v3")
    a("s_lshl_b32 s32, s75, 21"); a("s_lshl_b32 s33, s30, 14"); a("s_add_u32 s32, s32, s33"); a("s_lshl_b32 s33, s31, 12"); a("s_add_u32 s32, s32, s33"); a(f"s_add_u32 s32, s32, {rec.WS_WOT}")
    wside(a, 34, "s32", "s33")
    a("v_lshlrev_b32 v20, 4, v0")
    for i in range(1, 4): a(f"v_add_u32 v{20+i}, {i*rec.WOT_CG}, v20")
    a("s_waitcnt vmcnt(0)")
    for cgl in range(4):
        for jl in range(2):
            for ct in range(2):
                b = 32 + ((cgl*2 + jl)*2 + ct)*4
                for lo in range(2):
                    a(f"ds_read_b64_tr_b16 {R('v', b + 2*lo, 2)}, v3 offset:{(32*jl + 16*lo)*256 + cgl*64 + ct*8}")
        a("s_waitcnt lgkmcnt(0)")
        for jl in range(2):
            for ct in range(2):
                a(f"global_store_dwordx4 v{20+cgl}, {R('v', 32 + ((cgl*2 + jl)*2 + ct)*4)}, s[34:35] offset:{jl*2048 + ct*1024} sc1")
    a("s_lshl_b32 s32, s30, 1"); a("s_add_u32 s32, s32, s31"); a("s_lshl_b32 s32, s32, 16"); a("s_lshr_b32 s33, s75, 1"); a("s_lshl_b32 s33, s33, 14"); a("s_add_u32 s32, s32, s33")
    a("s_and_b32 s33, s75, 1"); a("s_lshl_b32 s33, s33, 12"); a("s_add_u32 s32, s32, s33"); a(f"s_add_u32 s32, s32, {WS_INBOX}")
    wside(a, 34, "s32", "s33")
    for i in range(4): a(f"v_mov_b32 v{24+i}, -1")
    for i in range(4): a(f"global_store_dwordx4 v20, v[24:27], s[34:35] offset:{i*1024} sc1")
    lab = a.newlabel("sig")
    a("s_waitcnt vmcnt(0)"); a("s_barrier")
    a("s_cmp_lg_u32 s75, 0"); a(f"s_cbranch_scc1 {lab}")
    a("s_lshl_b32 s32, s31, 7"); a("s_lshl_b32 s33, s30, 2"); a("s_add_u32 s32, s32, s33"); a(f"s_add_u32 s32, s32, {rec.WS_FLAG + 108*128}")
    a("v_mov_b32 v16, s32"); a("v_mov_b32 v17, 0")
    a("s_mov_b64 exec, 1"); a("global_store_dword v16, v17, s[28:29] sc1"); a("s_mov_b64 exec, -1")
    a.label(lab)

def task_g3(a, MT):
    sh = MT - 1
    a("s_lshl_b32 s32, s30, 3"); a("s_add_u32 s32, s32, s75"); a("s_lshl_b32 s32, s32, 19"); a(f"s_add_u32 s32, s32, {rec.WS_WOT}")
    rec.near_bit(a, "s33", "s32", "s22", True); a("s_add_u32 s32, s32, s33")
    gemm.setup_a_frag(a, 262144, MT); gemm.setup_w_frag(a, "s32")
    wot_wait(a)
    lp, ok = a.newlabel("fl"), a.newlabel("fo")
    a("s_cmp_lg_u32 s75, 0"); a(f"s_cbranch_scc1 {ok}")
    a(f"s_lshl_b32 s32, s31, {8 + sh}"); a(f"s_add_u32 s32, s32, {rec.WS_FLAG}"); a("v_lshl_add_u32 v16, v0, 2, s32")
    a.label(lp)
    a("global_load_dword v17, v16, s[28:29] sc1"); a(f"global_load_dword v19, v16, s[28:29] offset:{256*sh} sc1"); a("s_waitcnt vmcnt(0)")
    a("v_or_b32 v17, v17, v19")
    a("v_cmp_ne_u32 vcc, 0, v17"); a(f"s_cbranch_vccz {ok}")
    a("s_sleep 8")
    a("s_add_u32 s46, s46, 1"); a(f"s_cmp_lt_u32 s46, {WSPIN}"); a(f"s_cbranch_scc1 {lp}")
    a("s_branch w_fail")
    a.label(ok)
    wstamp(a, 0)
    a(f"s_lshl_b32 s32, s31, {20 + sh}"); a(f"s_add_u32 s32, s32, {WS_O}"); wside(a, 80, "s32", "s33")
    a("s_mov_b64 s[82:83], s[28:29]")
    a("s_mov_b32 s66, 31")
    a("s_add_u32 s32, s31, s30"); a("s_and_b32 s78, s32, 3"); a("s_lshl_b32 s78, s78, 11"); a("s_and_b32 s33, s32, 4"); a("s_lshl_b32 s33, s33, 12"); a("s_or_b32 s78, s78, s33")
    a("s_and_b32 s79, s32, 1"); a("s_lshl_b32 s79, s79, 12"); a("s_and_b32 s33, s32, 6"); a("s_lshl_b32 s33, s33, 13"); a("s_or_b32 s79, s79, s33")
    gemm.call(a, f"core_F{MT}")
    a("v_and_b32 v26, 15, v0"); a("v_lshlrev_b32 v26, 12, v26"); a("v_lshrrev_b32 v25, 4, v0"); a("v_lshl_add_u32 v20, v25, 4, v26")
    a(f"s_lshl_b32 s32, s72, {16 + sh}"); a("s_lshl_b32 s33, s73, 8"); a("s_add_u32 s32, s32, s33"); a("v_add_u32 v20, s32, v20"); a("v_add_u32 v21, 0x10000, v20")
    a(f"s_lshl_b32 s32, s31, {18 + sh}"); a("s_lshl_b32 s33, s30, 9"); a("s_add_u32 s32, s32, s33"); a("s_add_u32 s32, s32, 2048"); a("s_add_u32 s34, s24, s32"); a("s_addc_u32 s35, s25, 0")
    gemm.epi_frag_store(a, "s[34:35]", "sc1", MT, 64)

def softmax_cols(a, regs, t):
    a(f"v_max3_f32 v{t}, v{regs[0]}, v{regs[1]}, v{regs[2]}")
    rest = regs[3:]
    while len(rest) >= 2:
        a(f"v_max3_f32 v{t}, v{t}, v{rest[0]}, v{rest[1]}"); rest = rest[2:]
    if rest: a(f"v_max_f32 v{t}, v{t}, v{rest[0]}")
    for sw in ("16", "32"):
        a(f"v_mov_b32 v{t+1}, v{t}"); a("s_nop 1"); a(f"v_permlane{sw}_swap_b32 v{t}, v{t+1}"); a(f"v_max_f32 v{t}, v{t}, v{t+1}")
    a(f"v_mul_f32 v{t}, s40, v{t}")
    for r in regs: a(f"v_fma_f32 v{r}, v{r}, s40, -v{t}")
    for r in regs: a(f"v_exp_f32 v{r}, v{r}")

def task_g2a(a):
    a("s_and_b32 s32, s75, 4"); a("s_and_b32 s33, s75, 1"); a("s_lshl_b32 s33, s33, 1"); a("s_or_b32 s32, s32, s33"); a("s_bfe_u32 s33, s75, 0x10001"); a("s_or_b32 s32, s32, s33")
    gemm.setup_a_rowmajor(a, 2048, 4, "s32"); gemm.setup_w(a, 8192)
    a("s_lshl_b32 s32, s31, 19"); a("s_add_u32 s80, s10, s32"); a("s_addc_u32 s81, s11, 0")
    a("s_lshl_b32 s32, s30, 9"); a("s_add_u32 s82, s14, s32"); a("s_addc_u32 s83, s15, 0")
    a("s_mov_b32 s66, 7")
    gemm.call(a, "core_T")
    wstamp(a, 0)
    a("s_lshl_b32 s38, s31, 3"); a("s_and_b32 s33, s72, 2"); a("s_add_u32 s38, s38, s33"); a("s_add_u32 s38, s38, s72"); a("s_mov_b32 s39, s38"); a("s_lshl_b32 s38, s38, 5")
    a("s_lshl_b32 s42, s30, 1"); a("s_add_u32 s42, s42, s73"); a("s_add_u32 s38, s38, s42")
    a("s_lshl_b32 s34, s38, 14"); a(f"s_add_u32 s34, s34, {rec.WS_KX}"); rec.near(a, 32, "s34", "s22", 28, "s35", kv=True)
    rec.v_from_k(a, 34, 32)
    a("v_lshlrev_b32 v16, 4, v0"); a("v_add_u32 v17, 0x1000, v16"); a("v_add_u32 v18, 0x100000, v16"); a("v_add_u32 v19, 0x101000, v16")
    a("s_mul_i32 s43, s75, 20480")
    kp, kok = a.newlabel("kp"), a.newlabel("ko")
    rec.kv_tile(a, "s47", "s39", "s48"); a("s_add_u32 s49, s39, 2"); rec.kv_tile(a, "s49", "s49", "s48"); a("s_sub_u32 s49, s49, s47")
    a("s_lshl_b32 s47, s47, 7"); a("s_lshl_b32 s48, s30, 2"); a("s_add_u32 s47, s47, s48"); a(f"s_add_u32 s47, s47, {rec.WS_FLAG + 96*128}")
    a("v_and_b32 v22, s49, v0"); a("v_lshl_add_u32 v22, v22, 7, s47"); a("v_mov_b32 v23, 0")
    a.label(kp)
    a("global_load_dword v26, v22, s[28:29] sc1"); a("global_load_dword v27, v22, s[28:29] offset:64 sc1")
    a(f"global_load_dword v24, v23, s[26:27] offset:{D_PROG} sc1"); a("s_waitcnt vmcnt(0)")
    a("v_or_b32 v26, v26, v27"); a("v_cmp_ne_u32 vcc, 0, v26"); a(f"s_cbranch_vccz {kok}")
    a("s_sleep 12")
    a("s_add_u32 s46, s46, 1"); a(f"s_cmp_lt_u32 s46, {WSPIN}"); a(f"s_cbranch_scc1 {kp}")
    a("s_branch w_fail")
    a.label(kok)
    def take_progress():
        a("v_readfirstlane_b32 s48, v24"); a("s_nop 0")
        a("s_max_u32 s48, s48, 1"); a("s_sub_u32 s48, s48, 1")
    take_progress()
    a("s_barrier")
    def m_wait(seg):
        lp, ok, nf = a.newlabel("ap"), a.newlabel("ao"), a.newlabel("nf")
        a.label(lp)
        a(f"s_cmp_lt_u32 {seg}, s48"); a(f"s_cbranch_scc1 {ok}")
        a("s_cmp_lt_u32 s48, 59"); a(f"s_cbranch_scc1 {nf}")
        a("s_sleep 2")
        a("global_load_dword v24, v31, s[28:29] sc1"); a("s_waitcnt vmcnt(0)")
        a("v_readlane_b32 s49, v24, 0"); a("v_readlane_b32 s50, v24, 1"); a("s_min_i32 s49, s49, s50")
        a("v_readlane_b32 s50, v24, 2"); a("s_min_i32 s49, s49, s50"); a("v_readlane_b32 s50, v24, 3"); a("s_min_i32 s49, s49, s50")
        a("s_add_u32 s49, s49, 1"); a("s_max_u32 s48, s48, s49")
        a("s_add_u32 s46, s46, 1"); a(f"s_cmp_lt_u32 s46, {WSPIN}"); a(f"s_cbranch_scc1 {lp}")
        a("s_branch w_fail")
        a.label(nf)
        a("s_sleep 8")
        a(f"global_load_dword v24, v23, s[26:27] offset:{D_PROG} sc1"); a("s_waitcnt vmcnt(0)")
        take_progress()
        a("s_add_u32 s46, s46, 1"); a(f"s_cmp_lt_u32 s46, {WSPIN}"); a(f"s_cbranch_scc1 {lp}")
        a("s_branch w_fail")
        a.label(ok)
    def kv_loads(sg):
        for kt in range(2):
            for jj in range(4):
                a(f"global_load_dwordx4 {R('a', sg*32 + (kt*4 + jj)*4)}, v{16 + sg*2 + kt}, s[32:33] offset:{jj*1024} sc1")
            a(f"s_add_u32 m0, s43, {sg*10240 + kt*4096}"); a("s_nop 0")
            for jj in range(4):
                a(f"global_load_lds_dwordx4 v{16 + sg*2 + kt}, s[34:35] offset:{jj*1024} sc1")
    a("s_and_b32 s47, s42, 15"); a("s_lshl_b32 s47, s47, 9"); a("s_lshr_b32 s49, s42, 4"); a("s_lshl_b32 s49, s49, 14"); a("s_add_u32 s47, s47, s49")
    a("s_xor_b32 s49, s22, 1"); a("s_lshl_b32 s49, s49, 13"); a("s_add_u32 s47, s47, s49"); a(f"s_add_u32 s47, s47, {rec.WS_HW}")
    a("v_and_b32 v31, 3, v0"); a("v_lshl_add_u32 v31, v31, 7, s47")
    a("s_max_u32 s54, s39, 5"); a("s_sub_u32 s54, s54, 5")
    m_wait("s54")
    kv_loads(0)
    pack_frags(a)
    a("s_lshr_b32 s50, s38, 1"); a("s_lshl_b32 s50, s50, 14"); a("s_and_b32 s51, s38, 1"); a("s_lshl_b32 s51, s51, 12"); a("s_add_u32 s50, s50, s51"); a(f"s_add_u32 s50, s50, {rec.WS_KMVM}")
    rec.near(a, 52, "s50", "s22", 28, "s51")
    a("v_and_b32 v28, 7, v0"); a("v_lshlrev_b32 v28, 4, v28"); a("v_lshrrev_b32 v24, 4, v0"); a("v_lshl_add_u32 v28, v24, 7, v28")
    XB = (108, 32)
    def m_loads(sg, adv=True):
        for jj in range(4): a(f"global_load_dwordx4 {R('v', XB[sg] + 4*jj)}, v28, s[52:53] offset:{jj*512} sc1")
        for i in range(2): a(f"global_load_dwordx4 {R('v', XB[sg] + 16 + 4*i)}, v16, s[52:53] offset:{2048 + i*1024} sc1")
        if adv: a("s_add_u32 s52, s52, 0x80000"); a("s_addc_u32 s53, s53, 0")
    def seg_signal(seg):
        a(f"s_lshl_b32 s47, {seg}, 7"); a("s_lshl_b32 s49, s42, 2"); a("s_add_u32 s47, s47, s49"); a(f"s_add_u32 s47, s47, {rec.WS_FLAG}")
        a(f"s_lshr_b32 s50, {seg}, 1"); a("s_lshl_b32 s50, s50, 14"); a(f"s_and_b32 s49, {seg}, 1"); a("s_lshl_b32 s49, s49, 12"); a("s_add_u32 s50, s50, s49")
        a("s_lshl_b32 s49, s42, 7"); a("s_add_u32 s50, s50, s49"); a("s_xor_b32 s49, s22, 1"); a("s_lshl_b32 s49, s49, 13"); a("s_add_u32 s50, s50, s49")
        a(f"s_add_u32 s50, s50, {rec.WS_FLAG2 - 24*16384}")
        a(f"s_cmp_ge_u32 {seg}, 48"); a("s_cselect_b32 s47, s50, s47"); a("v_mov_b32 v29, s47")
        a("s_waitcnt vmcnt(0)")
        a("s_mov_b64 exec, 1")
        a("global_store_dword v29, v23, s[28:29] sc1")
        a("s_mov_b64 exec, -1")
    early, late = a.newlabel("e0"), a.newlabel("l0")
    a("s_cmp_lt_u32 s39, s48"); a(f"s_cbranch_scc1 {early}")
    kv_loads(1); m_wait("s39"); m_loads(0)
    a("s_waitcnt vmcnt(0)")
    a(f"s_branch {late}")
    a.label(early)
    m_loads(0); kv_loads(1)
    a.label(late)
    a("v_lshrrev_b32 v24, 4, v0"); a("v_lshlrev_b32 v24, 2, v24"); a("v_and_b32 v25, 15, v0"); a("v_mov_b32 v26, 0xff800000")
    for i in range(4):
        a(f"v_add_u32 v27, {i}, v24"); a("v_cmp_gt_u32 vcc, v27, v25"); a("s_nop 1"); a(f"v_cndmask_b32 v{96+i}, 0, v26, vcc")
    a("v_cmp_gt_u32 vcc, 32, v0"); a("s_nop 1")
    for i in range(4): a(f"v_cndmask_b32 v{100+i}, 0, v26, vcc")
    for i in range(4): a(f"v_mov_b32 v{104+i}, 0x3f803f80")
    a("v_and_b32 v24, 3, v0"); a("v_lshrrev_b32 v25, 2, v0")
    a("v_lshlrev_b32 v18, 4, v25"); a("v_lshl_add_u32 v18, v24, 8, v18"); a("v_add_u32 v18, s43, v18")
    a("v_and_b32 v25, 7, v25"); a("v_lshlrev_b32 v19, 4, v25"); a("v_lshl_add_u32 v19, v24, 7, v19"); a("v_add_u32 v19, s43, v19")
    a("v_add_u32 v20, s43, v16")
    a("v_mov_b32 v21, v16"); a("v_add_u32 v22, 0x40000, v21")
    a("s_lshl_b32 s50, s39, 19"); a("s_lshl_b32 s51, s30, 14"); a("s_add_u32 s50, s50, s51"); a("s_lshl_b32 s51, s73, 12"); a("s_add_u32 s50, s50, s51"); a(f"s_add_u32 s50, s50, {WS_O}")
    wside(a, 36, "s50", "s51")
    a(f"s_mov_b32 s40, {SCL}")
    a("s_add_u32 s54, s39, 2")
    for sg in range(2):
        lo = sg*10240
        xb = XB[sg]
        if sg == 0:
            a("s_waitcnt vmcnt(16)")
        else:
            have = a.newlabel("h1")
            a("s_cmp_eq_u32 s55, 1"); a(f"s_cbranch_scc1 {have}")
            seg_signal("s39")
            a("s_min_u32 s51, s54, 61"); m_wait("s51"); tstamp(a, 0, 2, 3)
            again = a.newlabel("m1")
            a.label(again)
            m_loads(1, False)
            a("s_waitcnt vmcnt(0)")
            a("s_cmp_lt_u32 s54, 62"); a(f"s_cbranch_scc1 {have}")
            a(f"v_max3_u32 v24, v{xb}, v{xb+1}, v{xb+2}")
            for rr in range(xb + 3, xb + 23, 2): a(f"v_max3_u32 v24, v24, v{rr}, v{rr+1}")
            a(f"v_max_u32 v24, v24, v{xb+23}")
            a("v_cmp_eq_u32 vcc, -1, v24"); a(f"s_cbranch_vccz {have}")
            a("s_sleep 2")
            a("s_add_u32 s46, s46, 1"); a(f"s_cmp_lt_u32 s46, {WSPIN}"); a(f"s_cbranch_scc1 {again}")
            a("s_branch w_fail")
            a.label(have)
            tstamp(a, 1, 2, 3)
            a("s_waitcnt vmcnt(8)")
        for i in range(2): a(f"ds_write_b128 v20, {R('v', xb + 16 + 4*i)} offset:{lo + 8192 + i*1024}")
        tiles = [(132, 0, 0, "v[96:99]"), (136, 2, 0, "v[100:103]"), (140, 0, 1, "0"), (144, 1, 1, "v[96:99]"), (148, 2, 1, "v[100:103]")]
        for jj in range(4):
            for d, kt, qt, C in tiles:
                A = R('v', xb + 4*jj) if kt == 2 else R('a', sg*32 + (kt*4 + jj)*4)
                a(f"v_mfma_f32_16x16x32_bf16 {R('v', d)}, {A}, {frag(2*sg + qt, jj)}, " + (C if jj == 0 else R('v', d)))
        if sg == 0:
            no = a.newlabel("n1")
            a("s_mov_b32 s55, 0")
            a("s_cmp_lt_u32 s54, s48"); a(f"s_cbranch_scc0 {no}")
            m_loads(1); a("s_mov_b32 s55, 1")
            a.label(no)
        def vread(jj):
            b = 64 + (jj & 1)*12
            for hf in range(2):
                for kt in range(2):
                    a(f"ds_read_b64_tr_b16 {R('a', b + hf*4 + kt*2, 2)}, v18 offset:{lo + kt*4096 + jj*1024 + hf*8}")
                a(f"ds_read_b64_tr_b16 {R('a', b + 8 + hf*2, 2)}, v19 offset:{lo + 8192 + jj*512 + hf*8}")
        vread(0)
        a("s_nop 3")
        softmax_cols(a, list(range(132, 140)), 24)
        softmax_cols(a, list(range(140, 152)), 24)
        a("s_nop 0")
        a("v_cvt_pk_bf16_f32 v108, v132, v133"); a("v_cvt_pk_bf16_f32 v109, v134, v135"); a("v_mov_b32 v110, 0"); a("v_mov_b32 v111, 0")
        a("v_cvt_pk_bf16_f32 v112, v136, v137"); a("v_cvt_pk_bf16_f32 v113, v138, v139")
        for i in range(4): a(f"v_cvt_pk_bf16_f32 v{116+i}, v{140+2*i}, v{141+2*i}")
        a("v_cvt_pk_bf16_f32 v114, v148, v149"); a("v_cvt_pk_bf16_f32 v115, v150, v151")
        P0 = ["v[108:111]", "v[116:119]"]; P1 = ["v[112:113]", "v[114:115]"]
        a("s_nop 1")
        for qt in range(2): a(f"v_mfma_f32_16x16x32_bf16 {R('v', 120 + 4*qt)}, v[104:107], {P0[qt]}, 0")
        a("s_nop 5")
        for qt in range(2): a(f"v_mfma_f32_16x16x16_bf16 {R('v', 120 + 4*qt)}, v[104:105], {P1[qt]}, {R('v', 120 + 4*qt)}")
        if sg == 1:
            done = a.newlabel("d0")
            a("s_cmp_eq_u32 s55, 1"); a(f"s_cbranch_scc0 {done}")
            seg_signal("s39")
            a.label(done)
        a("s_nop 7")
        a("v_rcp_f32 v24, v120"); a("v_rcp_f32 v26, v124"); a("s_nop 0"); a("v_mov_b32 v25, v24"); a("v_mov_b32 v27, v26")
        OB = (132, 64 if sg else 80)
        def post(jj, qt):
            o = OB[jj & 1] + qt*8
            ops = [f"v_pk_mul_f32 v[{o+i}:{o+i+1}], v[{o+i}:{o+i+1}], v[{24+2*qt}:{25+2*qt}]" for i in range(0, 8, 2)]
            ops += [f"v_cvt_pk_bf16_f32 v{152 + 4*qt + i}, v{o+2*i}, v{o+2*i+1}" for i in range(4)]
            ops += [f"global_store_dwordx4 v{21+qt}, {R('v', 152 + 4*qt)}, s[36:37] offset:{jj*1024} sc1"]
            return ops
        if sg == 0:
            OB = (132, 132)
        for jj in range(4):
            b = 64 + (jj & 1)*12
            if jj < 3:
                vread(jj + 1); a("s_waitcnt lgkmcnt(6)")
            else:
                a("s_waitcnt lgkmcnt(0)")
            pipe = sg == 1 and jj > 0
            fill = post(jj - 1, 0) + post(jj - 1, 1) if pipe else []
            for qt in range(2):
                for hf in range(2):
                    a(f"v_mfma_f32_16x16x32_bf16 {R('v', OB[jj & 1] + (qt*2 + hf)*4)}, {R('a', b + hf*4)}, {P0[qt]}, 0")
            if pipe:
                if jj == 3: a("s_nop 2")
                for _ in range(4): a(fill.pop(0))
            else: a("s_nop 2")
            for qt in range(2):
                for hf in range(2):
                    D = R('v', OB[jj & 1] + (qt*2 + hf)*4)
                    a(f"v_mfma_f32_16x16x16_bf16 {D}, {R('a', b + 8 + hf*2, 2)}, {P1[qt]}, {D}")
                    for _ in range(2):
                        if fill: a(fill.pop(0))
            for x in fill: a(x)
            if sg == 0 or jj == 3:
                a("s_nop 7")
                for x in post(jj, 0) + post(jj, 1): a(x)
        if sg == 0:
            a("s_add_u32 s36, s36, 0x100000"); a("s_addc_u32 s37, s37, 0")
    tstamp(a, 2, 2, 3)
    seg_signal("s54")
    tstamp(a, 3, 2, 3)

def sreg(i): return R('a', 4*i) if i < 24 else R('v', 128 + 4*(i - 24))
def wot_wait(a):
    lp, ok = a.newlabel("tl"), a.newlabel("to")
    a("s_cmp_lg_u32 s75, 0"); a(f"s_cbranch_scc1 {ok}")
    a("v_lshlrev_b32 v18, 2, v0"); a(f"v_add_u32 v18, {rec.WS_FLAG + 108*128}, v18")
    a.label(lp)
    a("global_load_dword v19, v18, s[28:29] sc1"); a("s_waitcnt vmcnt(0)")
    a("v_cmp_ne_u32 vcc, 0, v19"); a(f"s_cbranch_vccz {ok}")
    a("s_sleep 8")
    a("s_add_u32 s46, s46, 1"); a(f"s_cmp_lt_u32 s46, {WSPIN}"); a(f"s_cbranch_scc1 {lp}")
    a("s_branch w_fail")
    a.label(ok)

def task_stream(a):
    wot_wait(a)
    a("s_barrier")
    a("s_and_b32 s42, s45, 1")
    a("s_lshl_b32 s43, s42, 3"); a("s_add_u32 s43, s43, s75")
    a("s_lshr_b32 s32, s45, 1"); a("s_lshl_b32 s32, s32, 20"); a("s_lshl_b32 s33, s43, 15"); a("s_add_u32 s32, s32, s33"); a(f"s_add_u32 s32, s32, {rec.WS_WOT}")
    rec.near_bit(a, "s33", "s32", "s22", True); a("s_add_u32 s32, s32, s33")
    a("v_lshlrev_b32 v10, 4, v0"); a("v_add_u32 v6, s32, v10")
    for cg in range(2):
        for q in range(4):
            a(f"v_add_u32 v2, {cg*rec.WOT_CG + (q >> 1)*16384 + (q & 1)*4096}, v6")
            for j in range(4):
                k = q*2 + (j >> 1)
                a(f"global_load_dwordx4 {sreg(k*4 + cg*2 + (j & 1))}, v2, s[28:29] offset:{j*1024} sc1")
    a("s_lshl_b32 s32, s43, 14"); a("v_add_u32 v2, s32, v10"); a("v_add_u32 v3, 0x1000, v2"); a("v_add_u32 v4, 0x40000, v2"); a("v_add_u32 v5, 0x41000, v2")
    a("s_lshl_b32 s33, s75, 13"); a("v_add_u32 v11, s33, v10")
    a("s_lshr_b32 s33, s75, 2"); a("s_xor_b32 s47, s33, s42")
    a("s_xor_b32 s36, s45, s47"); a("s_and_b32 s33, s36, 1"); a("s_lshl_b32 s33, s33, 12"); a("s_lshr_b32 s36, s36, 1"); a("s_lshl_b32 s36, s36, 14"); a("s_add_u32 s36, s36, s33")
    a("s_and_b32 s33, s75, 3"); a("s_lshl_b32 s33, s33, 10"); a("s_add_u32 s36, s36, s33"); a("v_add_u32 v1, s36, v10")
    a("s_bfe_u32 s32, s75, 0x10001"); a("s_lshl_b32 s36, s32, 12"); a("s_lshr_b32 s33, s75, 2"); a("s_lshl_b32 s33, s33, 11"); a("s_add_u32 s36, s36, s33")
    a("s_and_b32 s33, s75, 1"); a("s_lshl_b32 s37, s33, 10"); a("s_add_u32 s36, s36, s37"); a("v_add_u32 v12, s36, v10")
    a("s_lshl_b32 s32, s32, 16"); a("s_lshl_b32 s33, s33, 3"); a("s_add_u32 s32, s32, s33"); a("s_lshl_b32 s33, s45, 6"); a("s_add_u32 s32, s32, s33"); a(f"s_add_u32 s32, s32, {2048 + 96*65536}")
    a("v_and_b32 v13, 15, v0"); a("v_lshlrev_b32 v13, 12, v13"); a("v_lshrrev_b32 v14, 4, v0"); a("v_lshl_add_u32 v13, v14, 4, v13"); a("v_add_u32 v13, s32, v13")
    a("v_and_b32 v9, 1, v0"); a("v_lshlrev_b32 v9, 7, v9"); a("s_lshl_b32 s32, s43, 8"); a("s_xor_b32 s33, s22, 1"); a("s_lshl_b32 s33, s33, 13"); a("s_add_u32 s32, s32, s33")
    a(f"s_add_u32 s32, s32, {rec.WS_FLAG2}"); a("v_add_u32 v9, s32, v9")
    a("v_mov_b32 v8, 0")
    wstamp(a, 0)
    def pick(dst):
        a(f"s_ff1_i32_b32 {dst}, s34"); a(f"s_bitset0_b32 s34, {dst}")
    def base(dst, item):
        a(f"s_and_b32 s32, {item}, 15"); a("s_lshl_b32 s32, s32, 19"); a(f"s_add_u32 s32, s32, {WS_O + 96*262144}"); wside(a, dst, "s32", "s33")
    def inbox(item):
        a(f"s_lshl_b32 s32, {item}, 18"); a(f"s_add_u32 s32, s32, {WS_INBOX}"); wside(a, 50, "s32", "s33")
    def poll(item):
        a(f"s_bfe_u32 s32, {item}, 0x30001"); a("s_lshl_b32 s32, s32, 14"); a(f"s_and_b32 s33, {item}, 1"); a("s_lshl_b32 s33, s33, 12"); a("s_add_u32 s32, s32, s33")
        a("v_add_u32 v14, s32, v9")
        a("global_load_dword v15, v14, s[28:29] sc1")
    def oload(k):
        a(f"global_load_dwordx4 {R('v', 32 + k*4)}, v{2 + (k >> 2)}, s[38:39] offset:{(k & 3)*1024} sc1")
    def sum8(item):
        lab, j = a.newlabel("fn"), a.newlabel("fj")
        a("s_waitcnt lgkmcnt(0)"); a("s_barrier")
        a("ds_read_b128 v[112:115], v12")
        for part in ((1, 2, 3, 4), (5, 6, 7)):
            for i, m in enumerate(part): a(f"ds_read_b128 v[{96+4*i}:{99+4*i}], v12 offset:{m*8192}")
            for i, m in enumerate(part):
                a(f"s_waitcnt lgkmcnt({len(part) - 1 - i})")
                for h in range(2): a(f"v_pk_add_f32 v[{112+2*h}:{113+2*h}], v[{112+2*h}:{113+2*h}], v[{96+4*i+2*h}:{97+4*i+2*h}]")
        a("v_xor_b32 v12, 0x10000, v12")
        a("s_cmp_eq_u32 s47, 0"); a(f"s_cbranch_scc1 {lab}")
        inbox(item)
        for i in range(4): a(f"v_min_u32 v{112+i}, -2, v{112+i}")
        a("global_store_dwordx4 v1, v[112:115], s[50:51] sc1")
        a(f"s_branch {j}")
        a.label(lab)
        a(f"s_mov_b32 s52, {item}")
        a.label(j)
    def ask():
        no = a.newlabel("an")
        a("s_cmp_lt_i32 s52, 0"); a(f"s_cbranch_scc1 {no}")
        inbox("s52")
        a("global_load_dwordx4 v[120:123], v1, s[50:51] sc1")
        for i in range(4): a(f"v_mov_b32 v{116+i}, v{112+i}")
        a("s_mov_b32 s53, s52"); a("s_mov_b32 s52, -1")
        a.label(no)
    def join(wait):
        lp, ok, no = a.newlabel("jl"), a.newlabel("jo"), a.newlabel("jn")
        a("s_cmp_lt_i32 s53, 0"); a(f"s_cbranch_scc1 {no}")
        a("s_lshl_b32 s32, s53, 17"); a("s_add_u32 s40, s24, s32"); a("s_addc_u32 s41, s25, 0")
        if wait: a("s_waitcnt vmcnt(0)")
        a.label(lp)
        a("v_max3_u32 v124, v120, v121, v122"); a("v_max_u32 v124, v124, v123"); a("v_cmp_eq_u32 vcc, -1, v124"); a(f"s_cbranch_vccz {ok}")
        a("global_load_dwordx4 v[120:123], v1, s[50:51] sc1"); a("s_waitcnt vmcnt(0)")
        a("s_add_u32 s46, s46, 1"); a(f"s_cmp_lt_u32 s46, {WSPIN}"); a(f"s_cbranch_scc1 {lp}")
        a("s_branch w_fail")
        a.label(ok)
        a("v_pk_add_f32 v[116:117], v[116:117], v[120:121]"); a("v_pk_add_f32 v[118:119], v[118:119], v[122:123]")
        a("v_cvt_pk_bf16_f32 v120, v116, v117"); a("v_cvt_pk_bf16_f32 v121, v118, v119")
        a("global_store_dwordx2 v13, v[120:121], s[40:41] " + ("sc1" if "osc" in rec.OPT else "nt" if "ont" in rec.OPT else ""))
        a("s_mov_b32 s53, -1")
        a.label(no)
    def pending():
        lab = a.newlabel("pd")
        a("s_cmp_lt_i32 s35, 0"); a(f"s_cbranch_scc1 {lab}")
        sum8("s35")
        a.label(lab)
    def mm(k, wait):
        a(f"s_waitcnt vmcnt({wait})")
        for ct in range(4):
            D = R('v', 16 + ct*4)
            a(f"v_mfma_f32_16x16x32_bf16 {D}, {sreg((k & 7)*4 + ct)}, {R('v', 32 + k*4)}, " + ("0" if k & 7 == 0 else D))
    def park(tt):
        a("s_nop 4")
        for f in range(4): a(f"ds_write_b128 v11, {R('v', 16 + f*4)} offset:{tt*4096 + f*1024}")
        if tt: a("v_xor_b32 v11, 0x10000, v11")
        a("s_waitcnt lgkmcnt(0)")
    pick("s31"); pick("s36")
    a("s_mov_b32 s37, 0"); a("s_mov_b32 s52, -1"); a("s_mov_b32 s53, -1"); a("s_mov_b64 s[50:51], s[28:29]")
    a.label("st_wait")
    a("s_add_u32 s32, s31, 49"); a("s_min_u32 s32, s32, 63"); a("s_cmp_le_u32 s32, s37"); a("s_cbranch_scc1 st_near")
    a("s_sleep 6")
    a(f"global_load_dword v7, v8, s[26:27] offset:{D_PROG} sc1"); a("s_waitcnt vmcnt(0)")
    a("v_readfirstlane_b32 s37, v7")
    a("s_branch st_more")
    a.label("st_near")
    poll("s31"); a("s_waitcnt vmcnt(0)")
    a("v_cmp_ne_u32 vcc, 0, v15"); a("s_cbranch_vccz st_rdy")
    a("s_sleep 2")
    a.label("st_more")
    a("s_add_u32 s46, s46, 1"); a(f"s_cmp_lt_u32 s46, {WSPIN}"); a("s_cbranch_scc1 st_wait")
    a("s_branch w_fail")
    a.label("st_rdy")
    tstamp(a, 4)
    base(38, "s31")
    poll("s36")
    for k in range(16): oload(k)
    a("s_mov_b32 s35, -1")
    a.label("st_item")
    a("s_mov_b32 s30, s31"); a("s_mov_b32 s31, s36"); pick("s36")
    a("s_waitcnt vmcnt(16)")
    a("v_cmp_ne_u32 vcc, 0, v15")
    a("s_cmp_lt_i32 s31, 0"); a("s_cbranch_scc1 st_slow")
    a("s_cbranch_vccnz st_slow")
    base(38, "s31")
    poll("s36")
    for k in range(16):
        mm(k, 16)
        if k == 14: join(False); ask()
        oload(k)
        if k == 2: pending()
        if k == 7: park(0)
    park(1)
    a("s_mov_b32 s35, s30")
    a("s_branch st_item")
    a.label("st_slow")
    pending()
    for k in range(16):
        mm(k, 15 - k)
        if k == 7: park(0)
    tstamp(a, 5)
    park(1); join(False); ask(); sum8("s30"); join(True); ask(); join(True)
    tstamp(a, 6)
    a("s_cmp_lt_i32 s31, 0"); a("s_cbranch_scc0 st_wait")

def emit_mega(a, prof=False):
    kernel_begin(a, NAME + "_kernel")
    a("s_cmp_ge_u32 s2, 256"); a("s_cbranch_scc1 w_exit")
    if "span" in rec.OPT: a("s_memrealtime s[100:101]")
    load_ptrs(a)
    a("s_getreg_b32 s44, hwreg(HW_REG_XCC_ID)"); a("s_and_b32 s44, s44, 7")
    if "fakex" in rec.OPT:
        a("s_bitcmp1_b32 s2, 3"); a("s_cbranch_scc0 fake_done")
        a("s_cmp_eq_u32 s44, 1"); a("s_cselect_b32 s44, 5, s44"); a("s_cmp_eq_u32 s44, 2"); a("s_cselect_b32 s44, 7, s44")
        a.label("fake_done")
    a("v_lshrrev_b32 v1, 6, v0"); a("v_mov_b32 v34, 0"); a("s_mov_b32 s46, 0")
    a("v_readfirstlane_b32 s75, v1")
    if "nowarm" not in rec.OPT:
        a("s_cmp_eq_u32 s75, 2"); a("s_cbranch_scc0 no_warm")
        a("s_getpc_b64 s[30:31]")
        a.label("warm_pc")
        a("s_lshr_b32 s32, s2, 3"); a("s_lshl_b32 s32, s32, 12"); a("v_and_b32 v35, 63, v0"); a("v_lshl_add_u32 v35, v35, 6, s32")
        a("v_min_u32 v35, code_end-warm_pc-4, v35"); a("v_and_b32 v35, -4, v35")
        a("global_load_dword a95, v35, s[30:31]")
        a.label("no_warm")
    a("s_waitcnt lgkmcnt(0)")
    a("s_add_u32 s28, s28, 0x1fffff"); a("s_addc_u32 s29, s29, 0"); a("s_and_b32 s28, s28, 0xffe00000")
    a("s_cmp_lg_u32 s75, 0"); a("s_cbranch_scc1 no_tick")
    a("s_and_b32 s32, s44, 3"); a("s_lshl_b32 s32, s32, 2"); a("s_and_b32 s33, s44, 4"); a("s_lshl_b32 s33, s33, 5"); a("s_add_u32 s32, s32, s33")
    a("v_mov_b32 v35, s32"); a("v_mov_b32 v36, 1")
    a("s_mov_b64 exec, 1")
    a("global_atomic_add v37, v35, v36, s[26:27] sc0 sc1")
    a("s_mov_b64 exec, -1")
    a.label("no_tick")
    a("v_and_b32 v0, 63, v0")
    if rec.PAR["EPF"] == 3:
        a("s_and_b32 s32, s75, s44"); a("s_bitcmp1_b32 s32, 2"); a("s_cbranch_scc0 no_epf")
        a("s_lshr_b32 s33, s2, 3")
        a("s_cmp_eq_u32 s75, 4"); a("s_cbranch_scc0 epf_w")
        a("v_lshrrev_b32 v36, 3, v0"); a("v_lshlrev_b32 v36, 11, v36"); a("v_and_b32 v37, 7, v0"); a("v_lshl_add_u32 v36, v37, 7, v36")
        a("s_lshl_b32 s33, s33, 14"); a("v_add_u32 v36, s33, v36")
        a("global_load_dword a95, v36, s[10:11]")
        a("s_branch no_epf")
        a.label("epf_w")
        a("s_sub_u32 s34, s75, 5"); a("s_lshl_b32 s34, s34, 2"); a("s_lshr_b32 s35, s33, 3"); a("s_add_u32 s35, s35, s34"); a("s_lshl_b32 s35, s35, 17")
        a("s_and_b32 s36, s44, 1"); a("s_lshl_b32 s36, s36, 3"); a("s_and_b32 s37, s33, 7"); a("s_add_u32 s36, s36, s37"); a("s_lshl_b32 s36, s36, 9"); a("s_add_u32 s35, s35, s36")
        a("v_lshrrev_b32 v36, 2, v0"); a("v_lshlrev_b32 v36, 13, v36"); a("v_and_b32 v37, 3, v0"); a("v_lshl_add_u32 v36, v37, 7, v36"); a("v_add_u32 v36, s35, v36")
        a("s_bitcmp1_b32 s44, 1"); a("s_cselect_b64 s[30:31], s[18:19], s[16:17]")
        a("global_load_dword a95, v36, s[30:31]")
        a.label("no_epf")
    elif rec.PAR["EPF"]:
        a("s_and_b32 s32, s75, s44"); a("s_bitcmp1_b32 s32, 2"); a("s_cbranch_scc0 no_epf")
        a("s_lshr_b32 s33, s2, 3"); a("s_and_b32 s34, s75, 3"); a("v_and_b32 v35, 63, v0")
        if rec.PAR["EPF"] == 2:
            a("s_cmp_lt_u32 s33, 16"); a("s_cbranch_scc1 no_epf"); a("s_sub_u32 s33, s33, 16")
        a("s_lshr_b32 s35, s33, 3"); a("s_lshl_b32 s35, s35, 2"); a("s_add_u32 s35, s35, s34"); a("s_lshl_b32 s35, s35, 17")
        a("s_and_b32 s36, s44, 1"); a("s_lshl_b32 s36, s36, 3"); a("s_and_b32 s37, s33, 7"); a("s_add_u32 s36, s36, s37"); a("s_lshl_b32 s36, s36, 9"); a("s_add_u32 s35, s35, s36")
        a("v_lshrrev_b32 v36, 2, v35"); a("v_lshlrev_b32 v36, 13, v36"); a("v_and_b32 v37, 3, v35"); a("v_lshl_add_u32 v36, v37, 7, v36"); a("v_add_u32 v36, s35, v36")
        a("s_bitcmp1_b32 s44, 1"); a("s_cselect_b64 s[30:31], s[18:19], s[16:17]")
        a("s_lshl_b32 s33, s33, 2"); a("s_add_u32 s33, s33, s34"); a("s_lshl_b32 s33, s33, 13"); a("v_lshl_add_u32 v35, v35, 7, s33")
        a("global_load_dword a95, v36, s[30:31]")
        a("global_load_dword a95, v35, s[10:11]")
        if rec.PAR["EPF"] == 2:
            a(f"v_add_u32 v36, {128*8192}, v36"); a(f"v_add_u32 v35, {512*1024}, v35")
            a("global_load_dword a95, v36, s[30:31]")
            a("global_load_dword a95, v35, s[10:11]")
        a.label("no_epf")
    gemm.setup_common(a); gemm.setup_a_rowmajor(a, 2048, 2); gemm.setup_w(a, 8192)
    a("s_cmp_eq_u32 s75, 1"); a("s_cbranch_scc0 no_probe")
    a("s_mov_b32 s47, 0")
    a("s_cmp_lt_u32 s44, 4"); a("s_cbranch_scc0 probe_done")
    a(f"s_add_u32 s30, s28, {rec.WS_PROBE}"); a("s_addc_u32 s31, s29, 0")
    a("s_lshr_b32 s32, s2, 5"); a("s_and_b32 s33, s32, 1"); a("s_lshr_b32 s32, s32, 1"); a("s_lshl_b32 s32, s32, 2"); a("s_add_u32 s32, s32, s33"); a("s_lshl_b32 s32, s32, 12")
    a("s_and_b32 s33, s2, 31"); a("s_lshl_b32 s33, s33, 7"); a("s_add_u32 s32, s32, s33")
    a("v_mov_b32 v35, s32")
    a("s_mov_b64 exec, 1")
    a("s_mov_b32 s38, -1"); a("s_mov_b32 s39, -1"); a("s_mov_b32 s40, 6")
    a.label("probe_loop")
    a("s_memtime s[34:35]"); a("s_waitcnt lgkmcnt(0)")
    a("global_store_dword v35, v34, s[30:31] sc1"); a("s_waitcnt vmcnt(0)")
    a("s_memtime s[36:37]"); a("s_waitcnt lgkmcnt(0)")
    a("s_sub_u32 s36, s36, s34"); a("s_min_u32 s36, s36, s38"); a("s_mov_b32 s38, s39"); a("s_mov_b32 s39, s36")
    a("v_xor_b32 v35, 0x2000, v35")
    a("s_sub_u32 s40, s40, 1"); a("s_cmp_lg_u32 s40, 0"); a("s_cbranch_scc1 probe_loop")
    a("s_mov_b64 exec, -1")
    a("s_cmp_lt_u32 s39, s38"); a("s_cselect_b32 s47, 1, 0")
    a.label("probe_done")
    a("v_mov_b32 v35, s47"); a("ds_write_b32 v34, v35 offset:4")
    a.label("no_probe")
    a("s_cmp_lg_u32 s75, 0"); a("s_cbranch_scc1 role_wait")
    a("s_mov_b64 exec, 1"); a("s_waitcnt vmcnt(0)")
    a("v_readfirstlane_b32 s45, v37")
    a("s_cmp_lt_u32 s45, 32"); a("s_cbranch_scc1 role_have")
    a(f"v_mov_b32 v35, {D_OVF}")
    a("global_atomic_add v37, v35, v36, s[26:27] sc0 sc1"); a("s_waitcnt vmcnt(0)")
    a("v_readfirstlane_b32 s45, v37")
    a.label("role_poll")
    a("global_load_dwordx4 v[40:43], v34, s[26:27] sc1"); a("global_load_dwordx4 v[44:47], v34, s[26:27] offset:128 sc1"); a("s_waitcnt vmcnt(0)")
    a("s_mov_b32 s33, 0")
    for i in range(8):
        a(f"v_readfirstlane_b32 s{34+i}, v{40+i}"); a(f"s_add_u32 s33, s33, s{34+i}")
    a("s_cmp_eq_u32 s33, 256"); a("s_cbranch_scc1 role_pick")
    a("s_sleep 8"); a("s_add_u32 s46, s46, 1"); a(f"s_cmp_lt_u32 s46, {WSPIN}"); a("s_cbranch_scc1 role_poll")
    a("s_mov_b64 exec, -1"); a("s_branch w_fail")
    a.label("role_pick")
    for i in range(8):
        a(f"s_min_u32 s33, s{34+i}, 32"); a("s_add_u32 s45, s45, s33"); a(f"s_mov_b32 s44, {i}")
        if i < 7:
            a("s_cmp_lt_u32 s45, 32"); a("s_cbranch_scc1 role_have"); a("s_sub_u32 s45, s45, 32")
    a.label("role_have")
    a("s_lshl_b32 s32, s44, 5"); a("s_or_b32 s32, s32, s45"); a("v_mov_b32 v35, s32")
    a("ds_write_b32 v34, v35")
    a("s_mov_b64 exec, -1")
    a.label("role_wait")
    a("s_waitcnt lgkmcnt(0)"); a("s_barrier")
    a("ds_read_b64 v[36:37], v34"); a("s_waitcnt lgkmcnt(0)")
    a("v_readfirstlane_b32 s32, v36"); a("v_readfirstlane_b32 s47, v37")
    a("s_cmp_lg_u32 s75, 0"); a("s_cbranch_scc1 voted")
    a("s_cmp_ge_u32 s32, 128"); a("s_cbranch_scc1 voted")
    a("s_and_b32 s47, s47, 1"); a("s_lshl_b32 s47, s47, 16"); a("s_or_b32 s47, s47, 1"); a("v_mov_b32 v35, s47")
    a("s_mov_b64 exec, 1")
    a(f"global_atomic_add v34, v35, s[26:27] offset:{rec.DBG_VOTE} sc1")
    a("s_mov_b64 exec, -1")
    a.label("voted")
    a("s_barrier")
    if "span" in rec.OPT:
        a("s_and_b32 s98, s2, 0x38"); a("s_or_b32 s98, s98, s75"); a("s_cmp_lg_u32 s98, 0"); a("s_cbranch_scc1 span1")
        a("s_memrealtime s[98:99]"); a("s_waitcnt lgkmcnt(0)"); a("s_not_b32 s100, s100"); a("v_mov_b32 v36, s100"); a("v_mov_b32 v37, s98")
        a("s_mov_b64 exec, 1"); a("global_atomic_umax v34, v36, s[26:27] offset:48 sc1"); a("global_atomic_umax v34, v37, s[26:27] offset:52 sc1"); a("s_mov_b64 exec, -1")
        a.label("span1")
    a("s_and_b32 s45, s32, 31"); a("s_bfe_u32 s44, s32, 0x30005")
    a("s_cmp_ge_u32 s44, 4"); a("s_cbranch_scc1 worker")
    a("s_lshl_b32 s18, s44, 3"); a("s_lshr_b32 s19, s45, 2"); a("s_add_u32 s18, s18, s19"); a("s_and_b32 s19, s45, 3")
    a("s_lshl_b32 s32, s75, 6"); a("v_add_u32 v0, s32, v0")
    rec.emit_rec(a, "rec", prof=prof, kvwait=True)
    a.label("worker")
    a("s_sub_u32 s44, s44, 4")
    a("s_mov_b32 s88, 0"); a("s_mov_b32 s89, 0"); a("s_mov_b32 s77, 0")
    a("s_mov_b32 s59, 0") if PROF else None
    a("s_lshl_b32 s96, s44, 5"); a("s_add_u32 s96, s96, s45"); a("s_lshl_b32 s96, s96, 3"); a("s_add_u32 s96, s96, s75")
    a("s_lshl_b32 s32, s44, 3"); a("s_lshr_b32 s44, s45, 3"); a("s_and_b32 s45, s45, 7"); a("s_add_u32 s45, s45, s32")
    if PROF: a("s_lshl_b32 s97, s44, 5"); a("s_add_u32 s97, s97, s45")
    wstamp(a, 0)
    def g1(grp):
        MT, first = ((2, 0), (3, 32), (3, 80))[grp]
        a("s_mov_b32 s23, s44")
        a("s_mov_b32 s30, s45"); a(f"s_mul_i32 s31, s23, {4*MT}"); a(f"s_add_u32 s31, s31, {first}")
        task_g1(a, MT, grp)
    def tile_2x4():
        a("s_bfe_u32 s30, s45, 0x10003"); a("s_lshl_b32 s30, s30, 1"); a("s_and_b32 s32, s45, 1"); a("s_add_u32 s30, s30, s32")
        a("s_lshr_b32 s31, s45, 4"); a("s_lshl_b32 s31, s31, 2"); a("s_bfe_u32 s32, s45, 0x20001"); a("s_add_u32 s31, s31, s32")
    touches(a, [(10, 1 << 20, 3, 0, 3)]*3)
    if rec.PAR["ST"] == 1: a("s_mov_b32 s98, 0")
    g1(0)
    if not rec.PAR["RPF"]: touches(a, [(4, 0, 4, 0, 4), (6, 0, 6, 0, 4), (6, 0, 6, 4, 2)])
    elif rec.PAR["RPF"] == 1 and not rec.PAR["QPL"]: touches(a, [(14, 0, 8, 0, 4), (14, 0, 8, 4, 4), (14, 0, 8, 4, 4)])
    g1(1)
    if not rec.PAR["RPF"]: touches(a, [(14, 0, 8, 0, 4), (14, 0, 8, 4, 4), (8, 0, 2, 0, 2)])
    a("s_cmp_lt_u32 s44, 2"); a("s_cbranch_scc1 w_g1c")
    a("s_lshl_b32 s23, s44, 1"); a("s_and_b32 s32, s45, 1"); a("s_add_u32 s23, s23, s32")
    a("s_cmp_eq_u32 s23, 6"); a("s_cbranch_scc1 w_wot0")
    tile_2x4()
    a("s_and_b32 s32, s44, 1"); a("s_lshl_b32 s32, s32, 2"); a("s_add_u32 s30, s30, s32")
    a.label("w_kv")
    task_g4kv(a)
    wstamp(a, 0)
    a("s_cmp_eq_u32 s23, 5"); a("s_cbranch_scc0 w_kvd")
    a("s_mov_b32 s23, 7"); a("s_add_u32 s30, s30, 3"); a("s_branch w_kv")
    a.label("w_kvd")
    a("s_cmp_eq_u32 s23, 7"); a("s_cbranch_scc1 w_g1c")
    a.label("w_wot0")
    a("s_and_b32 s32, s44, 1"); a("s_add_u32 s30, s45, s32"); a("s_mov_b32 s31, 0")
    a.label("w_wot")
    task_wot(a)
    a("s_add_u32 s31, s31, 1"); a("s_cmp_lt_u32 s31, 2"); a("s_cbranch_scc1 w_wot")
    wstamp(a, 0)
    a.label("w_g1c")
    if rec.PAR.get("WDLY", -1) >= 0:
        a(f"s_cmp_eq_u32 s44, {rec.PAR['WDLY']}"); a("s_cbranch_scc0 w_nod"); a("s_sleep 100"); a.label("w_nod")
    g1(2)
    a.label("w_g2a")
    a("s_lshr_b32 s30, s45, 1"); a("s_and_b32 s31, s45, 1"); a("s_lshr_b32 s32, s44, 1"); a("s_xor_b32 s32, s32, s44"); a("s_lshl_b32 s32, s32, 1"); a("s_add_u32 s31, s31, s32")
    task_g2a(a)
    wstamp(a, 0)
    a("s_cmp_eq_u32 s44, 0"); a("s_cbranch_scc1 w_g5")
    a("s_cmp_eq_u32 s44, 2"); a("s_cbranch_scc1 w_set2")
    a("s_lshr_b32 s30, s45, 3")
    a("s_cmp_eq_u32 s44, 3"); a("s_cbranch_scc1 w_f1")
    a("s_and_b32 s31, s45, 7")
    task_g3(a, 2)
    wstamp(a, 0)
    a(f"s_mov_b32 s34, {setmask(1):#x}")
    a("s_branch w_stream")
    a.label("w_f1")
    a("s_lshl_b32 s31, s31, 2"); a("s_bfe_u32 s32, s45, 0x20001"); a("s_add_u32 s31, s31, s32")
    task_g3(a, 1)
    wstamp(a, 0)
    a.label("w_set2")
    a("s_bitcmp1_b32 s45, 0"); a("s_cbranch_scc1 w_exit")
    a("s_and_b32 s32, s44, 1"); a("s_add_u32 s45, s45, s32")
    a(f"s_mov_b32 s34, {setmask(2):#x}")
    a("s_branch w_stream")
    a.label("w_g5")
    tile_2x4()
    task_g4q(a)
    wstamp(a, 0)
    task_g5(a)
    wstamp(a, 0)
    a(f"s_mov_b32 s34, {setmask(0):#x}")
    a.label("w_stream")
    task_stream(a)
    wstamp(a, 0)
    if "span" in rec.OPT:
        a("s_and_b32 s98, s45, 7"); a("s_or_b32 s98, s98, s75"); a("s_cmp_lg_u32 s98, 0"); a("s_cbranch_scc1 w_exit")
        a("s_waitcnt vmcnt(0)"); a("s_memrealtime s[98:99]"); a("s_waitcnt lgkmcnt(0)"); a("v_mov_b32 v5, s98"); a("v_mov_b32 v2, 0")
        a("s_mov_b64 exec, 1"); a("global_atomic_umax v2, v5, s[26:27] offset:60 sc1")
    a("s_endpgm")
    a.label("w_fail")
    a("v_mov_b32 v16, 0"); a("v_mov_b32 v17, 0xdead"); a("global_store_dword v16, v17, s[26:27] offset:248")
    a.label("w_exit")
    a("s_endpgm")
    gemm.emit_core(a, "core_T", 'T')
    gemm.emit_core(a, "core_N", 'N')
    gemm.emit_core(a, "core_T3", 'T', MT=3)
    gemm.XORK = True
    gemm.emit_core(a, "core_T2", 'T', MT=2)
    gemm.XORK = False
    gemm.WFLAG = "sc1"; gemm.WFRAG = True
    gemm.emit_core(a, "core_F1", 'T', MT=1, aflag="sc1")
    gemm.emit_core(a, "core_F2", 'T', MT=2, aflag="sc1")
    gemm.WFLAG = ""; gemm.WFRAG = False
    a.label("code_end")

DOC = """
; chosen per launch from a latency probe (speed only). The s_sleep instructions are back-offs in front of and inside polling loops:
"""

def generate(prof=False):
    global PROF
    PROF = bool(prof)
    gemm.TUNE["SLP"] = rec.PAR.get("SLP", 0); gemm.TUNE["CST"] = rec.PAR.get("CST", 0); gemm.TUNE["GAL"] = rec.PAR.get("GAL", 0)
    raw = open(f"cdna_kernels/{NAME}.s.ref").read().split("\n")
    hdr = []
    for l in raw:
        if not l.startswith(";") or "Override" in l: break
        hdr.append(l)
    a = Asm()
    emit_mega(a, prof)
    s = "\n".join(hdr) + "\n"
    s += f"; @launch kernel={NAME}_kernel grid=(256,1,1) block=(512,1,1) lds=163840\n"
    notes = {"probe_loop": "latency probe: which address half answers faster from this die (speed only)", "role_poll": "die over-subscribed: wait for all tickets, take a vacant slot",
             "rec_clrd": "recurrence: weight slices into registers", "rec_v_loop": "recurrence step, waves 4/5: sum and publish q or k; wave 4 also sums the head partials",
             "rec_m_loop": "recurrence step, wave 7: sum and publish v, progress, K/V readiness", "rec_s_loop": "recurrence step, wave 6: scores and softmax of the memory rows",
             "rec_o_loop": "recurrence step, waves 0-3: (V.Wo) products and the head's partial of the new memory", "worker": "dense products, static task list per workgroup",
             "w_kv": "part A: k,v tile, phi(k), kv and z partial sums", "w_wot": "Wo into MFMA fragment order", "w_g1c": "K/V projection, last rows",
             "w_g2a": "Q projection fused with the token rows' attention", "w_f1": "output projection of part B (64-row tiles)", "w_g5": "part A: q tile with normalised attention output, then output projection",
             "w_stream": "output projection of the last 16 segments, weights stationary", "core_T": "GEMM core subroutines (LDS-DMA ring, one barrier per K step of 32)"}
    for i, l in enumerate(a.lines):
        if l.strip().startswith("s_sleep"): a.lines[i] = l + "        ; poll back-off"
        elif l.endswith(":") and l[:-1] in notes: a.lines[i] = "; ---- " + notes[l[:-1]] + "\n" + l
    s += DOC.lstrip("\n")
    s += '.amdgcn_target "amdgcn-amd-amdhsa--gfx950"\n.text\n' + a.text() + '.section .rodata,"a"\n'
    s += kernel_desc(NAME + "_kernel", vgpr=256, accum=160)
    return s

if __name__ == "__main__":
    out = sys.argv[1] if len(sys.argv) > 1 else f"cdna_kernels/{NAME}.s"
    open(out, "w").write(generate())
    print("wrote", out)
```

```python
from asmgen import *

WS_RING  = 1 << 20
WS_RING1 = 0x180000
WS_PROBE = 0x1f0000
WS_FLAG2 = 0x140000
WS_HW    = 0x160000
WS_FLAG  = 0x1e0000
WS_MEMS  = 2 << 20
WS_KMVM  = 4 << 20
WS_KX    = 20 << 20
WS_VX    = 52 << 20
WS_WOT   = 126 << 20
WOT_CG = 1 << 19
WS_PART1 = 146 << 20
L_PART = 0
L_P    = 24576
L_ZERO = 26624
L_SEL  = 28672
L_PARW = 7*16384
L_KX   = 131072
L_VX   = 147456
SPIN_MAX = 400000
NSTEP = 64
DBG_VOTE, DBG_CLR, DBG_PROG = 40, 44, 192
PAR0 = dict(ALG=0, PRE=0, HALF=0, NOTAG=0, THA=0, THQ=0, EPF=3, DROP=0, RPF=0, DMI=0, DDEL=0, WPF=2, QPL=0, ST=1, BDEL=0, SPLITB=1, KFAR=1, VFAR=1, RDEL=10, MDEL=7, DM=1, MGAP=3, PRIO=1, XD=2, XGAP=1, VDEL=10, PPRIO=2, XDEL=7, DR=2, RGAP=5, MACK=0)
PAR = dict(PAR0)
OPT = set()

def backoff(a, n):
    q = int(round(n*4))
    if q // 4: a(f"s_sleep {q // 4}")
    if q % 4: a(f"s_nop {4*(q % 4) - 1}")

def guard(a, loop, fail):
    a("s_add_u32 s24, s24, 1"); a(f"s_cmp_lt_u32 s24, {SPIN_MAX}"); a(f"s_cbranch_scc1 {loop}"); a(f"s_branch {fail}")

def pstamp(a, prof, k):
    if prof == 3:
        a("s_memrealtime s[56:57]"); a("s_waitcnt lgkmcnt(0)"); a(f"s_mov_b32 s{k}, s56")

def stamp(a, prof, k, at=None):
    if not prof: return
    if prof >= 3 and (k != 7 or prof > 3): return
    if prof == 2:
        lab = a.newlabel("st")
        a("s_cmp_lg_u32 s22, " + ("31" if (k == 7 or at) else "30")); a(f"s_cbranch_scc1 {lab}")
        a("s_memrealtime s[56:57]"); a("s_waitcnt lgkmcnt(0)"); a("s_and_b32 s56, s56, 0xffffff"); a("s_lshl_b32 s57, s24, 24"); a(f"s_or_b32 s{60+k}, s56, s57")
        a.label(lab)
        return
    a("s_memtime s[56:57]"); a("s_waitcnt lgkmcnt(0)")
    a("s_sub_u32 s58, s56, s59"); a(f"s_add_u32 s{60+k}, s{60+k}, s58"); a("s_mov_b32 s59, s56")

def fs(a, prof, k, which):
    if prof == which: a(f"s_memtime s[{66+2*k}:{67+2*k}]")

def near_bit(a, tmp, off, par, kv=False):
    flip = kv and PAR["KFAR"] != PAR["VFAR"]
    if flip: a(f"s_cmp_ge_u32 {off}, {WS_VX}"); a(f"s_addc_u32 {tmp}, {par}, {PAR['KFAR']}"); a(f"s_lshl_b32 {tmp}, {tmp}, 21"); a(f"s_xor_b32 {tmp}, {tmp}, {off}"); a(f"s_lshr_b32 {tmp}, {tmp}, 21")
    else:
        a(f"s_lshr_b32 {tmp}, {off}, 21"); a(f"s_xor_b32 {tmp}, {tmp}, {par}")
        if kv and PAR["KFAR"]: a(f"s_xor_b32 {tmp}, {tmp}, 1")
    a(f"s_and_b32 {tmp}, {tmp}, 1"); a(f"s_lshl_b32 {tmp}, {tmp}, 13")

def near(a, dst, off, par="s25", wb=16, tmp="s36", kv=False):
    near_bit(a, tmp, off, par, kv)
    a(f"s_add_u32 {tmp}, {tmp}, {off}"); a(f"s_add_u32 s{dst}, s{wb}, {tmp}"); a(f"s_addc_u32 s{dst+1}, s{wb+1}, 0")

def v_from_k(a, v, k):
    a(f"s_add_u32 s{v}, s{k}, {WS_VX - WS_KX}"); a(f"s_addc_u32 s{v+1}, s{k+1}, 0")
    if PAR["KFAR"] != PAR["VFAR"]: a(f"s_xor_b32 s{v}, s{v}, 0x2000")

def kv_tile(a, dst, seg, tmp):
    a(f"s_sub_u32 {tmp}, {seg}, 16"); a(f"s_mul_i32 {tmp}, {tmp}, 43"); a(f"s_lshr_b32 {tmp}, {tmp}, 8"); a(f"s_add_u32 {tmp}, {tmp}, 4")
    a(f"s_lshr_b32 {dst}, {seg}, 2"); a(f"s_cmp_lt_u32 {dst}, 4"); a(f"s_cselect_b32 {dst}, {dst}, {tmp}")

def tagchk(a, regs, tag, t0, t1, mf=()):
    op = "0x80" if tag else "0xfe"
    f3 = (lambda d, x, y, z: f"v_max3_u32 v{d}, v{x}, v{y}, v{z}") if tag is None else (lambda d, x, y, z: f"v_bitop3_b32 v{d}, v{x}, v{y}, v{z} bitop3:{op}")
    mf = list(mf)
    ops = [f3(t0, *regs[0:3]), f3(t1, *regs[3:6])]
    rest = regs[6:]; k = 0
    while rest:
        t = (t0, t1)[k & 1]; k += 1
        ops.append(f3(t, t, rest[0], rest[1])); rest = rest[2:]
    ops.append(f"v_max_u32 v{t0}, v{t0}, v{t1}" if tag is None else f"v_bitop3_b32 v{t0}, v{t0}, v{t1}, 1 bitop3:" + ("0x80" if tag else "0xa8"))
    per = -(-len(ops) // max(len(mf), 1))
    for i, o in enumerate(ops):
        if mf and i % per == 0: a(mf.pop(0))
        a(o)
    for m in mf: a(m)
    a(f"v_cmp_eq_u32 vcc, -1, v{t0}" if tag is None else f"v_cmp_ne_u32 vcc, {tag}, v{t0}")

def emit_rec(a, pfx, prof=False, kvwait=False):
    L = lambda n: f"{pfx}_{n}"
    FAIL = L('fail')
    a("s_load_dwordx8 s[4:11], s[0:1], 40")
    a("s_load_dwordx2 s[12:13], s[0:1], 32")
    a("s_load_dwordx2 s[14:15], s[0:1], 88")
    a("s_load_dwordx2 s[16:17], s[0:1], 96")
    a("v_lshrrev_b32 v1, 6, v0")
    a("v_and_b32 v0, 63, v0")
    a("s_lshl_b32 s20, s18, 2"); a("s_add_u32 s20, s20, s19")
    a("v_readfirstlane_b32 s21, v1")
    a("v_lshlrev_b32 v6, 4, v0")
    a("s_mov_b32 s24, 0")
    a("s_waitcnt lgkmcnt(0)")
    pstamp(a, prof, 90)
    if "diag" in OPT: pstamp(a, 3, 97)
    a("s_add_u32 s16, s16, 0x1fffff"); a("s_addc_u32 s17, s17, 0"); a("s_and_b32 s16, s16, 0xffe00000")
    a("s_lshl_b32 s36, s18, 13"); a(f"s_add_u32 s36, s36, {WS_RING}"); a("s_add_u32 s32, s16, s36"); a("s_addc_u32 s33, s17, 0")
    a(f"s_add_u32 s82, s32, {WS_RING1 - WS_RING}"); a("s_addc_u32 s83, s33, 0")
    NT_ = PAR["NOTAG"]
    RB = lambda tag: "s[82:83]" if (tag and NT_) else "s[32:33]"
    a("s_and_b32 s45, s20, 63"); a("s_lshl_b32 s45, s45, 7"); a("s_lshr_b32 s36, s20, 6"); a("s_lshl_b32 s36, s36, 14"); a("s_add_u32 s45, s45, s36")
    a("s_and_b32 s44, s20, 1"); a("s_lshl_b32 s44, s44, 12"); a("s_lshr_b32 s42, s20, 1"); a("s_lshl_b32 s42, s42, 14"); a("s_add_u32 s44, s44, s42")
    a("v_mov_b32 v14, v6"); a("v_add_u32 v15, 0x1000, v6")
    a("s_lshl_b32 s36, s19, 10"); a("v_add_u32 v9, s36, v6")
    a("s_lshl_b32 s36, s19, 9"); a("s_add_u32 s36, s36, 4096"); a("v_and_b32 v8, 0x1ff, v6"); a("v_add_u32 v8, s36, v8")
    a("s_cmp_eq_u32 s21, 7"); a(f"s_cbranch_scc0 {L('noclr')}")
    for i in range(4): a(f"v_mov_b32 v{68+i}, -1")
    a("v_add_u32 v16, s44, v6"); a("v_add_u32 v17, 0x2000, v16")
    for p in range(2):
        for i in range(4): a(f"global_store_dwordx4 v{16+p}, v[68:71], s[16:17] offset:{1024*i} sc1")
    if PAR["DROP"]:
        a(f"v_add_u32 v16, {WS_PART1}, v16"); a(f"v_add_u32 v17, {WS_PART1}, v17")
        for p in range(2):
            for i in range(4): a(f"global_store_dwordx4 v{16+p}, v[68:71], s[16:17] offset:{1024*i} sc1")
    for t_ in range(2 if NT_ else 1):
        a(f"global_store_dwordx4 v9, v[68:71], {RB(t_)} sc1"); a(f"global_store_dwordx4 v8, v[68:71], {RB(t_)} sc1")
    a("v_bfe_u32 v16, v0, 3, 2"); a("v_lshlrev_b32 v16, 15, v16"); a("v_lshrrev_b32 v17, 5, v0"); a("v_lshl_add_u32 v16, v17, 13, v16")
    a("v_and_b32 v17, 7, v0"); a("v_lshl_add_u32 v16, v17, 4, v16"); a(f"s_add_u32 s36, s45, {WS_MEMS}"); a("v_add_u32 v16, s36, v16")
    for i in range(16):
        a("global_store_dwordx4 v16, v[68:71], s[16:17] sc1"); a("v_add_u32 v16, 0x20000, v16")
    a("s_lshl_b32 s36, s20, 7"); a(f"s_add_u32 s36, s36, {WS_FLAG}"); a("v_and_b32 v16, 0x70, v6"); a("v_add_u32 v16, s36, v16")
    a("global_store_dwordx4 v16, v[68:71], s[16:17] sc1")
    a("s_lshl_b32 s36, s20, 10"); a(f"s_add_u32 s36, s36, {WS_FLAG2}"); a("v_add_u32 v16, s36, v6")
    a("global_store_dwordx4 v16, v[68:71], s[16:17] sc1")
    a("s_lshl_b32 s36, s20, 8"); a(f"s_add_u32 s36, s36, {WS_HW}"); a("v_and_b32 v16, 0xf0, v6"); a("v_add_u32 v16, s36, v16")
    a("global_store_dwordx4 v16, v[68:71], s[16:17] sc1")
    a("s_lshr_b32 s36, s20, 3"); a("s_lshl_b32 s36, s36, 14"); a("s_and_b32 s42, s20, 7"); a("s_lshl_b32 s42, s42, 10"); a("s_add_u32 s36, s36, s42")
    a(f"s_add_u32 s36, s36, {WS_KMVM + (NSTEP - 1)*0x40000}"); a("v_add_u32 v16, s36, v6"); a("v_add_u32 v17, 0x2000, v16")
    a("global_store_dwordx4 v16, v[68:71], s[16:17] sc1"); a("global_store_dwordx4 v17, v[68:71], s[16:17] sc1")
    a("v_subrev_u32 v16, 0x40000, v16"); a("v_subrev_u32 v17, 0x40000, v17")
    a("global_store_dwordx4 v16, v[68:71], s[16:17] sc1"); a("global_store_dwordx4 v17, v[68:71], s[16:17] sc1")
    a("s_barrier")
    a("v_mov_b32 v17, 1"); a("v_mov_b32 v16, 0")
    a("s_waitcnt vmcnt(0)")
    a("s_mov_b64 exec, 1")
    a(f"global_atomic_add v16, v17, s[14:15] offset:{DBG_CLR} sc1")
    a("s_mov_b64 exec, -1")
    a(f"s_branch {L('clrd')}")
    a.label(L('noclr'))
    a("s_barrier")
    a.label(L('clrd'))
    def xdma(base, ldsreg):
        for kt in range(2):
            a(f"s_add_u32 m0, {ldsreg}, {kt*4096}")
            a("s_nop 0")
            for jj in range(4):
                a(f"global_load_lds_dwordx4 v{14+kt}, {base} offset:{jj*1024} sc1")
    def kv_poll(tag, tile):
        a(f"s_lshl_b32 s52, {tile}, 7"); a("s_lshr_b32 s36, s18, 1"); a("s_lshl_b32 s36, s36, 2"); a("s_add_u32 s52, s52, s36"); a(f"s_add_u32 s52, s52, {WS_FLAG + 96*128}")
        a("v_mov_b32 v17, s52")
        a.label(L(tag))
        a("global_load_dword v16, v17, s[16:17] sc1"); a("global_load_dword v18, v17, s[16:17] offset:64 sc1"); a("s_waitcnt vmcnt(0)")
        a("v_or_b32 v16, v16, v18")
        a("v_cmp_ne_u32 vcc, 0, v16"); a(f"s_cbranch_vccz {L(tag + 'ok')}")
        a("s_sleep 4")
        guard(a, L(tag), FAIL)
        a.label(L(tag + 'ok'))
    def kv_bases(segreg):
        a(f"s_lshl_b32 s42, {segreg}, 5"); a("s_add_u32 s42, s42, s18"); a("s_lshl_b32 s42, s42, 14"); a(f"s_add_u32 s42, s42, {WS_KX}")
        near(a, 48, "s42", kv=True)
        v_from_k(a, 34, 48)
    a("s_and_b32 s39, s19, 1"); a("s_xor_b32 s39, s39, 1"); a("s_lshl_b32 s39, s39, 1"); a("s_lshr_b32 s36, s19, 1"); a("s_add_u32 s39, s39, s36")
    a("s_lshl_b32 s43, s21, 14")
    a("s_lshl_b32 s36, s21, 20"); a("s_lshl_b32 s42, s18, 8"); a("s_add_u32 s36, s36, s42")
    a("v_lshrrev_b32 v10, 2, v0"); a("v_lshlrev_b32 v10, 13, v10"); a("v_and_b32 v11, 3, v0"); a("v_lshl_add_u32 v10, v11, 4, v10")
    a("s_lshl_b32 s42, s39, 6"); a("s_add_u32 s42, s42, s36"); a("v_add_u32 v10, s42, v10")
    a("v_lshrrev_b32 v11, 3, v0"); a("v_lshlrev_b32 v11, 13, v11"); a("v_and_b32 v12, 7, v0"); a("v_lshl_add_u32 v11, v12, 4, v11")
    a("s_and_b32 s42, s19, 1"); a("s_lshl_b32 s42, s42, 7"); a("s_add_u32 s42, s42, s36"); a("v_add_u32 v11, s42, v11")
    def qkdma(base, nt):
        for i in range(16):
            a(f"s_add_u32 m0, s43, {i*1024}")
            a("s_nop 0")
            a(f"global_load_lds_dwordx4 v11, {base} {nt}")
            if i < 15: a("v_add_u32 v11, 0x10000, v11")
    for _ in range(PAR["THA"]): a("s_sleep 32")
    a("s_cmp_lt_u32 s19, 2"); a(f"s_cbranch_scc1 {L('isq')}")
    qkdma("s[6:7]", ""); a(f"s_branch {L('qkd')}")
    a.label(L('isq'))
    for _ in range(PAR["THQ"]): a("s_sleep 32")
    qkdma("s[4:5]", "" if PAR["QPL"] else "nt")
    a.label(L('qkd'))
    a("v_lshrrev_b32 v12, 5, v0"); a("v_lshlrev_b32 v12, 4, v12")
    a("v_bfe_u32 v13, v0, 4, 1"); a("v_lshl_add_u32 v12, v13, 2, v12")
    a("v_bfe_u32 v13, v0, 2, 1"); a("v_add_u32 v12, v12, v13")
    a("v_bfe_u32 v13, v0, 3, 1"); a("v_lshl_add_u32 v12, v13, 3, v12")
    a("v_and_b32 v13, 3, v0"); a("v_lshlrev_b32 v13, 3, v13"); a("v_add_u32 v13, s43, v13")
    a("v_lshl_add_u32 v7, v12, 7, v13"); a("v_lshl_add_u32 v12, v12, 6, v13")
    def qkread(ks):
        for t in range(4):
            for pp in range(4):
                hi, lo = pp >> 1, pp & 1
                reg = (t*2 + ks)*8 + pp*2
                a(f"ds_read_b64_tr_b16 a[{reg}:{reg+1}], v7 offset:{(64*ks + 32*hi + 2*lo)*128 + t*32}")
            a("s_waitcnt lgkmcnt(4)")
        a("s_waitcnt lgkmcnt(0)")
    def vread():
        for t in range(2):
            for ks in range(2):
                for pp in range(4):
                    hi, lo = pp >> 1, pp & 1
                    reg = ((4 + t)*2 + ks)*8 + pp*2
                    a(f"ds_read_b64_tr_b16 a[{reg}:{reg+1}], v12 offset:{(64*ks + 32*hi + 2*lo)*64 + t*32}")
                a("s_waitcnt lgkmcnt(4)")
        a("s_waitcnt lgkmcnt(0)")
    a("s_waitcnt vmcnt(8)")
    pstamp(a, prof, 91)
    qkread(0)
    for i in range(8):
        a(f"s_add_u32 m0, s43, {i*1024}")
        a("s_nop 0")
        a("global_load_lds_dwordx4 v10, s[8:9]")
        if i < 7: a("v_add_u32 v10, 0x20000, v10")
    a("s_waitcnt vmcnt(8)"); qkread(1)
    a("v_and_b32 v11, 7, v0"); a("v_lshlrev_b32 v11, 11, v11"); a("v_lshrrev_b32 v13, 3, v0"); a("v_lshl_add_u32 v11, v13, 4, v11")
    a("s_lshl_b32 s36, s21, 8"); a("v_add_u32 v11, s36, v11")
    a("global_load_dwordx4 v[16:19], v11, s[12:13]"); a("global_load_dwordx4 v[20:23], v11, s[12:13] offset:128")
    a("v_lshrrev_b32 v10, 3, v0"); a("v_lshlrev_b32 v10, 11, v10"); a("v_and_b32 v11, 7, v0"); a("v_lshl_add_u32 v10, v11, 4, v10")
    a("s_lshl_b32 s36, s18, 18"); a("s_lshl_b32 s42, s19, 9"); a("s_add_u32 s36, s36, s42")
    a("s_and_b32 s42, s21, 3"); a("s_lshl_b32 s42, s42, 7"); a("s_add_u32 s36, s36, s42")
    a("v_add_u32 v10, s36, v10")
    def odma(half):
        a(f"v_add_u32 v11, {half*64*2048}, v10")
        for i in range(8):
            a(f"s_add_u32 m0, s43, {half*8192 + i*1024}")
            a("s_nop 0")
            a("global_load_lds_dwordx4 v11, s[10:11]")
            if i < 7: a("v_add_u32 v11, 0x4000, v11")
    a("v_mov_b32 v56, 0"); a("s_lshr_b32 s36, s18, 3"); a("s_lshl_b32 s36, s36, 2"); a("v_mov_b32 v57, s36")
    a("s_cmp_lt_u32 s21, 4"); a(f"s_cbranch_scc0 {L('wv_only')}")
    odma(1)
    a("s_waitcnt vmcnt(8)"); vread()
    odma(0)
    a("v_lshrrev_b32 v12, 2, v0")
    a("v_lshlrev_b32 v12, 7, v12"); a("v_and_b32 v13, 3, v0"); a("v_lshl_add_u32 v12, v13, 4, v12"); a("v_add_u32 v12, s43, v12")
    a("s_waitcnt vmcnt(0)")
    def wo_reg(ct, jj):
        return f"v[{96+(ct*4+jj)*4}:{96+(ct*4+jj)*4+3}]"
    for ct in range(4):
        for jj in range(4):
            for lo in range(2):
                base = 96 + (ct*4 + jj)*4 + lo*2
                off = (32*jj + 16*lo)*128 + (ct >> 1)*64 + (ct & 1)*8
                a(f"ds_read_b64_tr_b16 v[{base}:{base+1}], v12 offset:{off}")
        a("s_waitcnt lgkmcnt(0)")
    a(f"s_branch {L('wdone')}")
    a.label(L('wv_only'))
    a("s_cmp_eq_u32 s21, 7"); a(f"s_cbranch_scc0 {L('wv2')}")
    for t_ in range(2 if NT_ else 1):
        a(f"global_load_dwordx4 v[48:51], v9, {RB(t_)} sc1"); a(f"global_load_dwordx4 v[52:55], v8, {RB(t_)} sc1")
    a(f"global_load_dwordx2 v[58:59], v56, s[14:15] offset:{DBG_VOTE} sc1"); a("global_load_dword v61, v57, s[14:15] sc1")
    a.label(L('wv2'))
    a("s_waitcnt vmcnt(0)"); vread()
    a.label(L('wdone'))
    pstamp(a, prof, 89)
    if "span" in OPT:
        a("s_and_b32 s98, s20, 3"); a("s_xor_b32 s99, s21, 7"); a("s_or_b32 s98, s98, s99"); a("s_cmp_lg_u32 s98, 0"); a(f"s_cbranch_scc1 {L('nosp0')}")
        a("s_memrealtime s[98:99]"); a("s_waitcnt lgkmcnt(0)"); a("v_mov_b32 v63, s98"); a("v_mov_b32 v62, 0")
        a("s_mov_b64 exec, 1"); a("global_atomic_umax v62, v63, s[14:15] offset:20 sc1"); a("s_mov_b64 exec, -1")
        a.label(L('nosp0'))

    a("s_cmp_eq_u32 s21, 7"); a(f"s_cbranch_scc0 {L('sync1')}")
    a.label(L('clrw'))
    a("v_readfirstlane_b32 s36, v58"); a("v_readfirstlane_b32 s37, v59")
    a("s_and_b32 s42, s36, 0xffff"); a("s_add_u32 s42, s42, s37"); a("s_cmp_eq_u32 s42, 256"); a(f"s_cbranch_scc1 {L('clrok')}")
    a("s_sleep 8")
    a(f"global_load_dwordx2 v[58:59], v56, s[14:15] offset:{DBG_VOTE} sc1"); a("s_waitcnt vmcnt(0)")
    a("global_load_dword v61, v57, s[14:15] sc1"); a("s_waitcnt vmcnt(0)")
    guard(a, L('clrw'), FAIL)
    a.label(L('clrok'))
    a("v_cmp_gt_u32 vcc, 32, v61"); a(f"s_cbranch_vccz {L('cntok')}")
    a("global_load_dword v61, v57, s[14:15] sc1"); a("s_waitcnt vmcnt(0)")
    a.label(L('cntok'))
    a("s_lshr_b32 s36, s36, 16"); a("s_cmp_gt_u32 s36, 64"); a("s_cselect_b32 s25, 1, 0")
    a("v_mov_b32 v60, s25"); a(f"v_mov_b32 v56, {L_PARW}")
    a("ds_write_b64 v56, v[60:61]"); a("v_mov_b32 v59, 0"); a("ds_write_b32 v56, v59 offset:8")
    a.label(L('sync1'))

    a("s_and_b32 s36, s21, 3"); a("s_lshl_b32 s36, s36, 11"); a("s_lshr_b32 s42, s21, 2"); a("s_lshl_b32 s42, s42, 14"); a("s_add_u32 s36, s36, s42")
    a("v_add_u32 v1, s36, v6")
    a("v_and_b32 v2, 8, v0"); a("v_cmp_eq_u32 vcc, 0, v2"); a("v_mov_b32 v2, 0xeeee"); a("v_mov_b32 v3, 0x4444"); a("s_nop 1")
    a("v_cndmask_b32 v2, v2, v3, vcc")
    a("s_mul_i32 s36, s21, 3072"); a("v_add_u32 v3, s36, v6")
    a("s_mov_b32 s22, 0"); a("s_mov_b32 s51, 1")
    a("s_waitcnt vmcnt(0) lgkmcnt(0)"); a("s_barrier")
    if kvwait and PAR["RPF"]:
        a("s_load_dwordx8 s[68:75], s[0:1], 0")
        a("s_lshl_b32 s36, s20, 3"); a("s_add_u32 s36, s36, s21"); a("v_lshlrev_b32 v24, 2, v6"); a("s_mov_b32 m0, 0x10000")
        a("s_waitcnt lgkmcnt(0)")
        parts = [(74, 1 << 20, 3, 0, 3), (68, 0, 4, 0, 4), (70, 0, 6, 0, 4), (70, 0, 6, 4, 2), (72, 0, 2, 0, 2)] + ([(4, 0, 8, 0, 4), (4, 0, 8, 4, 4)] if PAR["RPF"] == 2 else [])
        for p, fix, per, first, nkb in parts:
            a(f"s_mul_i32 s42, s36, {per*1024}"); a(f"s_add_u32 s42, s42, {fix + first*1024}")
            a(f"v_min_u32 v25, {nkb*1024 - 64}, v24"); a("v_add_u32 v25, s42, v25")
            a(f"global_load_lds_dword v25, s[{p}:{p+1}]")
    for i in range(8): a(f"v_min_u32 v{16+i}, -2, v{16+i}")
    a(f"v_mov_b32 v24, {L_PARW}"); a("ds_read_b64 v[24:25], v24"); a("s_waitcnt lgkmcnt(0)")
    a("v_readfirstlane_b32 s25, v24"); a("v_readfirstlane_b32 s23, v25")
    a("s_and_b32 s25, s25, 1")
    if "safe" in OPT: a("s_mov_b32 s23, 0")
    a("s_lshl_b32 s36, s25, 13"); a("s_add_u32 s26, s16, s36"); a("s_addc_u32 s27, s17, 0")
    a(f"s_mov_b32 s42, {WS_PART1}"); near(a, 40, "s42")
    PB = lambda tag: "s[40:41]" if (tag and PAR["DROP"]) else "s[26:27]"
    a(f"s_mov_b32 s42, {WS_MEMS}"); near(a, 28, "s42")
    a("s_lshr_b32 s38, s18, 1"); a("s_lshl_b32 s38, s38, 14"); a("s_and_b32 s36, s18, 1"); a("s_lshl_b32 s36, s36, 12"); a("s_add_u32 s38, s38, s36"); a(f"s_add_u32 s38, s38, {WS_KMVM}")
    near(a, 30, "s38")
    if "diag" in OPT: pstamp(a, 3, 98)
    if prof:
        for k in range(8): a(f"s_mov_b32 s{60+k}, 0")
        a("s_memtime s[56:57]"); a("s_waitcnt lgkmcnt(0)"); a("s_mov_b32 s59, s56")
        pstamp(a, prof, 60)
    a("s_cmp_lt_u32 s21, 4"); a(f"s_cbranch_scc1 {L('setup_vo')}")
    a(f"v_mov_b32 v148, {L_PARW + 8}"); a("v_mov_b32 v149, 1"); a("s_mov_b32 s47, 0")
    a("s_cmp_eq_u32 s21, 6"); a(f"s_cbranch_scc1 {L('setup_sm')}")

    def algn():
        if PAR["ALG"]:
            a.raw(".p2align 6")
            for _ in range(PAR["ALG"] - 1): a("s_nop 0")
    def head_word(val):
        a(f"v_mov_b32 v95, {val}")
        a("s_xor_b32 s36, s25, 1"); a("s_lshl_b32 s36, s36, 13"); a("s_add_u32 s36, s36, s45"); a(f"s_add_u32 s36, s36, {WS_HW}")
        a("v_mov_b32 v94, s36")
        a("s_mov_b64 exec, 1")
        a("global_store_dword v94, v95, s[16:17] sc1")
        a("s_mov_b64 exec, -1")
    def zero_acc():
        for i in range(24): a(f"v_mov_b32 v{24+i}, 0")
    def pair(p): return [(2*p, 0), (2*p+1, 0), (2*p, 1), (2*p+1, 1)]
    def sm(tt, ks, mb):
        dd = 24 + tt*4; b = (tt*2 + ks)*8
        a(f"v_smfmac_f32_16x16x64_bf16 v[{dd}:{dd+3}], v[{mb+4*ks}:{mb+3+4*ks}], a[{b}:{b+7}], v2")
    PRE = PAR["PRE"]
    def cv(p, i): a(f"v_cvt_pk_bf16_f32 v{24+8*p+i}, v{24+8*p+2*i}, v{25+8*p+2*i}")
    def mload(b):
        a(f"global_load_dwordx4 v[{b}:{b+3}], v1, s[28:29] sc1")
        a(f"global_load_dwordx4 v[{b+4}:{b+7}], v1, s[28:29] offset:1024 sc1")
    def p1(name, mid=None, grp1=False, early=False):
        backoff(a, PAR["MDEL"])
        a.label(L(name))
        mload(16)
        a("s_waitcnt vmcnt(0)")
        a.label(L(name + '_in'))
        fs(a, prof, 0, 5)
        chk = ["v_max3_u32 v0, v16, v17, v18", "v_max3_u32 v7, v19, v20, v21", "v_max3_u32 v0, v0, v22, v23", "v_max_u32 v0, v0, v7", "v_cmp_eq_u32 vcc, -1, v0"]
        for i, (t, k) in enumerate(pair(0)):
            sm(t, k, 16)
            for c in chk[2*i:2*i+2]: a(c)
            if i == 2: a(f"s_cbranch_vccnz {L(name + '_retry')}")
        stamp(a, prof, 0)
        fs(a, prof, 1, 5)
        for t, k in pair(1): sm(t, k, 16)
        a("s_nop 3")
        for i, (t, k) in enumerate(pair(2)):
            cv(0, i)
            if i == 3: a("ds_write_b128 v3, v[24:27]")
            sm(t, k, 16)
        fs(a, prof, 3, 5)
        for i in range(4): cv(1, i)
        a("ds_write_b128 v3, v[32:35] offset:1024")
        fs(a, prof, 4, 5)
        if PAR["SPLITB"] == 2 and not mid:
            a("s_waitcnt lgkmcnt(0)"); a("s_barrier"); a("s_nop 0")
            for i in range(4): cv(2, i)
            a("ds_write_b128 v3, v[40:43] offset:2048")
            a("s_waitcnt lgkmcnt(0)")
        else:
            a("s_nop 2")
            for i in range(4): cv(2, i)
            a("ds_write_b128 v3, v[40:43] offset:2048")
            if PRE and grp1:
                a("s_add_u32 s47, s47, 4")
                a("s_mov_b64 exec, 1"); a("ds_add_u32 v148, v149"); a("s_mov_b64 exec, -1")
                if early:
                    a.label(L(name + '_e'))
                    a("ds_read_b32 v0, v148")
                    for w in range(4, 8): a(f"ds_read_b128 v[{48+4*w}:{51+4*w}], v4 offset:{3072*w}")
                    a("s_waitcnt lgkmcnt(4)")
                    a("v_cmp_ne_u32 vcc, s47, v0"); a(f"s_cbranch_vccnz {L(name + '_er')}")
                    for w in range(4, 8):
                        a(f"s_waitcnt lgkmcnt({7-w})")
                        a(f"v_mfma_f32_16x16x32_bf16 v[80:83], v[{48+4*w}:{51+4*w}], v[84:87], " + ("0" if w == 4 else "v[80:83]"))
            if PAR["SPLITB"]:
                a("s_waitcnt lgkmcnt(1)"); a("s_barrier")
                if mid:
                    mid(); a("s_waitcnt lgkmcnt(8)")
                else:
                    a("s_waitcnt lgkmcnt(0)")
            else:
                a("s_waitcnt lgkmcnt(0)")
        fs(a, prof, 6, 5)
        a("s_barrier")
        if mid and not PAR["SPLITB"]: mid()
        fs(a, prof, 7, 5)
        if prof == 5: a("s_waitcnt lgkmcnt(0)")
        stamp(a, prof, 1)
    def p1_retry(name, early=False):
        if PRE and early:
            a.label(L(name + '_er')); guard(a, L(name + '_e'), FAIL)
        a.label(L(name + '_retry'))
        a("s_nop 7")
        for i in range(8): a(f"v_mov_b32 v{24+i}, 0")
        guard(a, L(name), FAIL)

    def step_adv():
        zero_acc()
        a("s_add_u32 s22, s22, 1")
        a("s_add_u32 s28, s28, 0x8000"); a("s_addc_u32 s29, s29, 0")
        a("s_add_u32 s38, s38, 0x40000"); near(a, 30, "s38")
    def step_end():
        step_adv()
        a("s_waitcnt vmcnt(0) lgkmcnt(0)")
        a("s_barrier")
        stamp(a, prof, 7)

    a("s_sub_u32 s37, s21, 4"); a("s_min_u32 s37, s37, 2")
    a("s_lshl_b32 s36, s37, 10"); a("v_add_u32 v4, s36, v6")
    a("v_and_b32 v48, 1, v0"); a("v_lshlrev_b32 v48, 4, v48"); a("v_mov_b32 v49, 0x3f80"); a("v_lshlrev_b32 v48, v48, v49")
    a("v_bfe_u32 v49, v0, 3, 1"); a("v_bfe_u32 v50, v0, 1, 1"); a("v_lshl_add_u32 v49, v49, 1, v50")
    a("v_lshrrev_b32 v50, 2, v0"); a("v_xor_b32 v50, v50, v0"); a("v_and_b32 v50, 4, v50"); a("v_add_u32 v49, v49, v50")
    for q in range(4):
        a(f"v_cmp_eq_u32 vcc, {q}, v49"); a("s_nop 1"); a(f"v_cndmask_b32 v{84+q}, 0, v48, vcc")
    a("v_and_b32 v48, 7, v0"); a("v_lshlrev_b32 v48, 4, v48"); a("v_and_b32 v49, 8, v0"); a("v_lshrrev_b32 v50, 4, v0")
    a("v_add_u32 v51, v48, v49"); a("v_lshl_add_u32 v10, v50, 7, v51")
    a("s_and_b32 s46, s19, 1"); a("s_lshl_b32 s46, s46, 1"); a("s_add_u32 s46, s46, s37")
    a("s_add_u32 s36, s39, 4"); a("s_cmp_eq_u32 s37, 2"); a("s_cselect_b32 s36, s36, s46"); a("s_lshl_b32 s36, s36, 9"); a("v_add_u32 v10, s36, v10")
    a("v_lshl_add_u32 v5, v50, 8, v51"); a("s_lshl_b32 s36, s46, 10"); a("s_lshr_b32 s42, s19, 1"); a("s_lshl_b32 s42, s42, 7"); a("s_add_u32 s36, s36, s42"); a("v_add_u32 v5, s36, v5")
    zero_acc()
    for i in range(4): a(f"v_mov_b32 v{144+i}, -1")
    a(f"s_setprio {PAR['PPRIO']}")
    a("s_cmp_eq_u32 s21, 7"); a(f"s_cbranch_scc1 {L('setup_m')}")
    NR = 4 if PRE else 8
    def rd8():
        for w in range(NR): a(f"ds_read_b128 v[{48+4*w}:{51+4*w}], v4 offset:{3072*w}")
    def reduce8():
        for w in range(NR):
            a(f"s_waitcnt lgkmcnt({NR-1-w})")
            a(f"v_mfma_f32_16x16x32_bf16 v[80:83], v[{48+4*w}:{51+4*w}], v[84:87], " + ("0" if w == 0 and not PRE else "v[80:83]"))
    def pack_tag(tag, last):
        if last:
            a(f"s_cmp_eq_u32 s22, {NSTEP-1}"); a(f"s_cbranch_scc1 {L(last)}")
        a("s_cmp_lt_u32 s23, 32")
        a("s_nop 4" if last else "s_nop 6")
        a("v_cvt_pk_bf16_f32 v88, v80, v81"); a("v_cvt_pk_bf16_f32 v89, v82, v83")
        for i in range(2): a(f"v_min_u32 v{90+i}, -2, v{88+i}" if NT_ else f"v_or_b32 v{90+i}, 1, v{88+i}" if tag else f"v_and_b32 v{90+i}, -2, v{88+i}")
    def pub2(tag, fl):
        a(f"global_store_dwordx2 v5, v[90:91], {RB(tag)} {fl}")
        if NT_: a(f"global_store_dwordx2 v5, v[144:145], {RB(tag ^ 1)} {fl}")
    def pub1(tag, fl):
        a(f"global_store_dword v5, v90, {RB(tag)} {fl}"); a(f"global_store_dword v5, v91, {RB(tag)} offset:128 {fl}")
        if NT_: a(f"global_store_dword v5, v144, {RB(tag ^ 1)} {fl}"); a(f"global_store_dword v5, v144, {RB(tag ^ 1)} offset:128 {fl}")
    a("v_add_u32 v11, s44, v6")
    a("v_and_b32 v15, 7, v0"); a("v_lshlrev_b32 v15, 4, v15"); a("v_bfe_u32 v48, v0, 4, 1"); a("v_lshl_add_u32 v15, v48, 3, v15"); a("v_add_u32 v15, s45, v15")
    a("v_and_b32 v48, 1, v0"); a("v_lshlrev_b32 v48, 4, v48"); a("v_mov_b32 v49, 0x3f80"); a("v_lshlrev_b32 v48, v48, v49")
    a("v_bfe_u32 v49, v0, 1, 3")
    for q in range(4):
        a(f"v_cmp_eq_u32 vcc, {q}, v49"); a("s_nop 1"); a(f"v_cndmask_b32 v{92+q}, 0, v48, vcc")
    a(f"s_mul_i32 s54, s37, {WS_VX - WS_KX}"); a(f"s_mul_i32 s55, s37, {L_VX - L_KX}"); a(f"s_add_u32 s55, s55, {L_KX}")
    a("s_lshl_b32 s36, s18, 14"); a("s_add_u32 s54, s54, s36"); a(f"s_add_u32 s54, s54, {WS_KX}"); a("v_add_u32 v12, 0x1000, v6")
    DR = PAR["DR"]
    rsets = [96, 112, 128][:DR]
    def rload(b):
        for i in range(4): a(f"global_load_dwordx4 v[{b+4*i}:{b+3+4*i}], v11, {PB(tag)} offset:{1024*i} sc1")
    a(f"s_branch {L('v0_in')}")
    algn()
    a.label(L('v_loop'))
    for tag in range(2):
        n = f"v{tag}"
        p1(n, rd8, True, True)
        reduce8()
        pack_tag(tag, 'last_pub' if tag == (NSTEP - 1) & 1 else None)
        a(f"s_cbranch_scc1 {L(n + '_wt')}")
        pub2(tag, "")
        a.label(L(n + '_pd'))
        if tag == 0:
            a("s_cmp_eq_u32 s22, 0"); a(f"s_cbranch_scc1 {L('v_first')}")
            a.label(L('v_fj'))
        stamp(a, prof, 2)
        if PAR["DDEL"]:
            a("s_add_u32 s53, s22, 2"); a("s_min_u32 s53, s53, 63"); a("s_lshl_b32 s53, s53, 19"); a("s_add_u32 s53, s53, s54"); near(a, 48, "s53", kv=True)
            a(f"s_add_u32 m0, s55, {tag*8192}")
            a(f"s_sleep {PAR['DDEL']}")
            for jj in range(4): a(f"global_load_lds_dwordx4 v6, s[48:49] offset:{jj*1024} sc1")
            a(f"s_add_u32 m0, s55, {tag*8192 + 4096}"); a("s_nop 0")
            for jj in range(4): a(f"global_load_lds_dwordx4 v12, s[48:49] offset:{jj*1024} sc1")
        a("v_min_u32 v88, -2, v88"); a("v_min_u32 v89, -2, v89")
        a("s_waitcnt vmcnt(0)"); a("s_barrier")
        a("s_cmp_lt_u32 s19, 2"); a(f"s_cbranch_scc1 {L(n + '_nq')}")
        if "nopers" not in OPT: a("global_store_dwordx2 v10, v[88:89], s[30:31] sc1")
        a.label(L(n + '_nq'))
        a("s_cmp_eq_u32 s21, 4"); a(f"s_cbranch_scc1 {L(n + '_red')}")
        if prof == 3:
            a("s_memrealtime s[56:57]"); a("s_memtime s[92:93]"); a("s_waitcnt lgkmcnt(0)"); a("s_mov_b32 m0, s22"); a("s_nop 0"); a("v_writelane_b32 v150, s56, m0"); a("v_writelane_b32 v151, s92, m0")
        step_adv()
        if PAR["BDEL"]: a(f"s_sleep {PAR['BDEL']}")
        a("s_waitcnt vmcnt(0)")
        a(f"s_branch {L(n + '_end')}")
        a.label(L(n + '_red'))
        step_adv()
        backoff(a, PAR["RDEL"])
        stamp(a, prof, 5, 31)
        for d in range(DR - 1):
            rload(rsets[d])
            backoff(a, PAR["RGAP"])
        a.label(L(n + '_rp'))
        for d in range(DR):
            rload(rsets[(d + DR - 1) % DR])
            a(f"s_waitcnt vmcnt({4*(DR-1)})")
            b = rsets[d]
            mf = [f"v_mfma_f32_16x16x32_bf16 v[64:67], v[92:95], v[{b+4*i}:{b+3+4*i}], " + ("0" if i == 0 else "v[64:67]") for i in range(4)]
            tagchk(a, list(range(b, b + 16)), tag if not PAR["DROP"] else None, 73, 72, mf)
            a(f"s_cbranch_vccz {L(n + '_rok')}" if d < DR - 1 else f"s_cbranch_vccnz {L(n + '_rr')}")
        a.label(L(n + '_rok'))
        a("s_nop 3")
        for i in range(4): a(f"v_add_f32_dpp v{72+i}, v{64+i}, v{64+i} row_ror:8 row_mask:0xf bank_mask:0xf")
        a("s_mov_b64 exec, 0x00ff00ff")
        a("v_cvt_pk_bf16_f32 v76, v72, v73"); a("v_cvt_pk_bf16_f32 v77, v74, v75")
        a("v_min_u32 v76, -2, v76"); a("v_min_u32 v77, -2, v77")
        a("global_store_dwordx2 v15, v[76:77], s[28:29] sc1")
        a("s_mov_b64 exec, -1")
        if PAR["DROP"]:
            for i in range(4): a(f"global_store_dwordx4 v11, v[144:147], {PB(tag)} offset:{1024*i} sc1")
        stamp(a, prof, 6, 31)
        if PAR["MACK"]: a("s_waitcnt vmcnt(0)")
        a.label(L(n + '_end'))
        a("s_barrier")
        stamp(a, prof, 7)
    a(f"s_branch {L('v_loop')}")
    for tag in range(2):
        n = f"v{tag}"
        p1_retry(n, True)
        a.label(L(n + '_wt')); pub2(tag, "sc1"); a(f"s_branch {L(n + '_pd')}")
        a.label(L(n + '_rr')); guard(a, L(n + '_rp'), FAIL)

    a.label(L('v_first')); a("s_barrier"); a("s_barrier"); a(f"s_branch {L('v_fj')}")

    a.label(L('setup_m'))
    a("v_lshrrev_b32 v5, 5, v0"); a("v_lshl_add_u32 v5, v5, 8, v48"); a("v_bfe_u32 v50, v0, 3, 2"); a("v_lshl_add_u32 v5, v50, 2, v5")
    a("s_lshl_b32 s36, s39, 9"); a("s_add_u32 s36, s36, 4096"); a("v_add_u32 v5, s36, v5")
    a("v_mov_b32 v93, 0")
    def progress(tagname):
        a("s_cmp_eq_u32 s20, 0"); a(f"s_cbranch_scc0 {L(tagname)}")
        a("v_mov_b32 v92, s22")
        a("s_mov_b64 exec, 1")
        a(f"global_store_dword v93, v92, s[14:15] offset:{DBG_PROG} sc1")
        a("s_mov_b64 exec, -1")
        a.label(L(tagname))
    a(f"s_branch {L('m0_in')}")
    algn()
    a.label(L('m_loop'))
    for tag in range(2):
        n = f"m{tag}"
        p1(n, None, True, True)
        rd8(); reduce8()
        pack_tag(tag, 'fin_m' if tag == (NSTEP - 1) & 1 else None)
        a(f"s_cbranch_scc1 {L(n + '_wt')}")
        pub1(tag, "")
        a.label(L(n + '_pd'))
        if tag == 0:
            a("s_cmp_eq_u32 s22, 0"); a(f"s_cbranch_scc1 {L('m_first')}")
            a.label(L('m_fj'))
        a("v_min_u32 v88, -2, v88"); a("v_min_u32 v89, -2, v89")
        a("s_waitcnt vmcnt(0)"); a("s_barrier")
        if "nopers" not in OPT: a("global_store_dwordx2 v10, v[88:89], s[30:31] sc1")
        progress(n + '_pg')
        if kvwait:
            a("s_add_u32 s53, s22, 3"); a("s_min_u32 s53, s53, 63"); kv_tile(a, "s53", "s53", "s36")
            a("s_cmp_lt_u32 s53, s51"); a(f"s_cbranch_scc1 {L(n + '_kvh')}")
            kv_poll(n + '_kv', "s53")
            a("s_add_u32 s51, s53, 1")
            a.label(L(n + '_kvh'))
        step_end()
        a(f"s_cmp_ge_u32 s22, {NSTEP - 3}"); a(f"s_cbranch_scc1 {L(n + '_hp')}")
        a.label(L(n + '_hd'))
    a(f"s_branch {L('m_loop')}")
    for tag in range(2):
        n = f"m{tag}"
        p1_retry(n, True)
        a.label(L(n + '_wt'))
        pub1(tag, "sc1"); a(f"s_branch {L(n + '_pd')}")
        a.label(L(n + '_hp'))
        a("s_sub_u32 s36, s22, 1"); head_word("s36"); a(f"s_branch {L(n + '_hd')}")
    a.label(L('m_first'))
    if kvwait:
        a("s_mov_b32 s53, 0"); kv_poll('kv0', "s53")
    for sg in range(2):
        a(f"s_mov_b32 s53, {sg}"); kv_bases("s53")
        a(f"s_mov_b32 s50, {L_VX + sg*8192}"); xdma("s[34:35]", "s50")
        a(f"s_mov_b32 s50, {L_KX + sg*8192}"); xdma("s[48:49]", "s50")
    if PAR.get("RDLY"): a("s_sleep 110")
    a("s_waitcnt vmcnt(16)"); a("s_barrier"); a("s_barrier")
    pstamp(a, prof, 60)
    if "span" in OPT:
        a("s_and_b32 s98, s20, 15"); a("s_cmp_lg_u32 s98, 0"); a(f"s_cbranch_scc1 {L('nosp')}")
        a("s_memrealtime s[98:99]"); a("s_waitcnt lgkmcnt(0)"); a("v_mov_b32 v17, s98"); a("v_mov_b32 v16, 0")
        a("s_mov_b64 exec, 1"); a("global_atomic_umax v16, v17, s[14:15] offset:16 sc1"); a("s_mov_b64 exec, -1")
        a.label(L('nosp'))
    a("s_waitcnt vmcnt(0)")
    a(f"s_branch {L('m_fj')}")
    a.label(L('fin_m'))
    a("s_nop 7")
    a("v_cvt_pk_bf16_f32 v88, v80, v81"); a("v_cvt_pk_bf16_f32 v89, v82, v83")
    a("v_min_u32 v88, -2, v88"); a("v_min_u32 v89, -2, v89")
    a("global_store_dwordx2 v10, v[88:89], s[30:31] sc1")
    progress('pg_last')
    a(f"s_branch {L('fin')}")

    a.label(L('setup_sm'))
    a(f"v_add_u32 v14, {L_KX}, v6")
    a("v_and_b32 v48, 7, v0"); a("v_lshrrev_b32 v49, 4, v0"); a("v_lshl_add_u32 v9, v49, 3, v48"); a("v_lshlrev_b32 v9, 4, v9"); a("v_and_b32 v50, 8, v0"); a("v_add_u32 v9, v9, v50")
    a("v_and_b32 v49, 1, v49"); a("v_lshl_add_u32 v10, v49, 3, v48"); a("v_lshlrev_b32 v10, 4, v10")
    a("v_lshrrev_b32 v49, 5, v0"); a("v_lshl_add_u32 v10, v49, 2, v10"); a("v_lshrrev_b32 v50, 2, v50"); a("v_add_u32 v10, v10, v50")
    a("s_mov_b32 s46, 0x3e0293ee")
    for i in range(4): a(f"v_mov_b32 v{84+i}, 0")
    a(f"ds_write_b128 v6, v[84:87] offset:{L_ZERO}"); a(f"ds_write_b128 v6, v[84:87] offset:{L_ZERO + 1024}")
    def k_load():
        for i in range(8): a(f"ds_read_b128 v[{96+4*i}:{99+4*i}], v14 offset:{1024*i}")
        a("v_xor_b32 v14, 0x2000, v14")
    zero_acc()
    a("s_setprio 2")
    def xload(b):
        for jj in range(4): a(f"global_load_dwordx4 v[{b+4*jj}:{b+3+4*jj}], v6, {RB(tag)} offset:{1024*jj} sc1")
    def s_mfma(b, t, jj):
        X = f"v[{b+4*jj}:{b+3+4*jj}]"
        d = 64 + 4*t
        A = X if t == 2 else f"v[{96+(t*4+jj)*4}:{99+(t*4+jj)*4}]"
        return f"v_mfma_f32_16x16x32_bf16 v[{d}:{d+3}], {A}, {X}, " + (f"v[{d}:{d+3}]" if jj else "0")
    def s_head(b, tag):
        tagchk(a, list(range(b, b + 16)), None if NT_ else tag, 15, 16, [s_mfma(b, 2, jj) for jj in range(4)])
    dpp = "row_shr:8 row_mask:0xf bank_mask:0xc"
    def s_rest(b):
        for jj in range(4): a(s_mfma(b, 1, jj))
        a(s_mfma(b, 0, 0))
        a(f"v_mov_b32_dpp v72, v73 {dpp}"); a(f"v_mov_b32_dpp v74, v75 {dpp}")
        a(s_mfma(b, 0, 1)); a(s_mfma(b, 0, 2))
        a("v_permlane32_swap_b32 v72, v74")
        a(s_mfma(b, 0, 3))
    XD = PAR["XD"]
    a(f"s_branch {L('s0_in')}")
    algn()
    a.label(L('s_loop'))
    for tag in range(2):
        n = f"s{tag}"
        p1(n, None, True)
        if tag == (NSTEP - 1) & 1:
            a(f"s_cmp_eq_u32 s22, {NSTEP-1}"); a(f"s_cbranch_scc1 {L('fin')}")
        if tag == 0:
            a("s_cmp_eq_u32 s22, 0"); a(f"s_cbranch_scc1 {L('s_first')}")
            pass
        backoff(a, PAR["XDEL"])
        if tag == 0: a.label(L('s_fj'))
        if XD == 2:
            xload(48)
            backoff(a, PAR["XGAP"])
        a.label(L(n + '_xp'))
        xload(128 if XD == 2 else 48)
        a(f"s_waitcnt vmcnt({4*(XD-1)})")
        fs(a, prof, 0, 4)
        s_head(48, tag)
        a(f"s_cbranch_vccnz {L(n + '_xr')}")
        stamp(a, prof, 2)
        fs(a, prof, 1, 4)
        s_rest(48)
        a.label(L(n + '_xj'))
        fs(a, prof, 2, 4)
        a("s_nop 0")
        a("v_max_f32_dpp v16, v74, v74 row_ror:8 row_mask:0xf bank_mask:0xf")
        a("v_max3_f32 v16, v16, v68, v69"); a("v_max3_f32 v16, v16, v70, v71")
        a("s_nop 3")
        a("v_max3_f32 v16, v16, v64, v65"); a("v_max3_f32 v16, v16, v66, v67")
        fs(a, prof, 3, 4)
        a("v_mov_b32 v17, v16"); a(f"v_mov_b32_dpp v64, v68 {dpp}"); a(f"v_mov_b32_dpp v65, v69 {dpp}")
        a("v_permlane16_swap_b32 v16, v17"); a("v_max_f32 v16, v16, v17")
        a("v_mov_b32 v17, v16"); a(f"v_mov_b32_dpp v66, v70 {dpp}"); a(f"v_mov_b32_dpp v67, v71 {dpp}")
        a("v_permlane32_swap_b32 v16, v17"); a("v_max_f32 v16, v16, v17")
        fs(a, prof, 4, 4)
        a("v_mul_f32 v16, s46, v16")
        a("s_nop 1")
        a(f"v_mov_b32_dpp v16, v16 {dpp}")
        for rg in (74, 64, 65, 66, 67): a(f"v_fma_f32 v{rg}, v{rg}, s46, -v16")
        a("v_exp_f32 v74, v74"); a("v_exp_f32 v64, v64")
        a("v_cvt_pk_bf16_f32 v82, v74, v74")
        a("v_exp_f32 v65, v65")
        a(f"ds_write_b16 v10, v82 offset:{L_P + 1024}")
        a("v_exp_f32 v66, v66")
        a(f"ds_write_b16 v10, v82 offset:{L_P + 1280}")
        a("v_exp_f32 v67, v67")
        a("v_cvt_pk_bf16_f32 v80, v64, v65")
        a("v_cvt_pk_bf16_f32 v81, v66, v67")
        a(f"ds_write_b64 v9, v[80:81] offset:{L_P}")
        fs(a, prof, 5, 4)
        a("s_waitcnt lgkmcnt(0)"); fs(a, prof, 6, 4); a("s_barrier"); fs(a, prof, 7, 4)
        stamp(a, prof, 3)
        k_load()
        step_end()
    a(f"s_branch {L('s_loop')}")
    for tag in range(2):
        n = f"s{tag}"
        p1_retry(n)
        a.label(L(n + '_xr'))
        if XD == 2:
            xload(48)
            a("s_waitcnt vmcnt(4)")
            s_head(128, tag)
            a(f"s_cbranch_vccnz {L(n + '_xg')}")
            stamp(a, prof, 2)
            s_rest(128)
            a(f"s_branch {L(n + '_xj')}")
            a.label(L(n + '_xg'))
        guard(a, L(n + '_xp'), FAIL)

    a.label(L('s_first')); a("s_barrier"); k_load(); a("s_waitcnt lgkmcnt(0)"); a("s_barrier"); a(f"s_branch {L('s_fj')}")

    a.label(L('setup_vo'))
    a("v_add_u32 v8, 0x1000, v6"); a("v_lshrrev_b32 v9, 4, v0")
    a("s_lshl_b32 s36, s19, 5"); a("s_lshl_b32 s42, s21, 3"); a("s_add_u32 s36, s36, s42")
    a("v_add_u32 v9, s36, v9"); a("v_bfe_u32 v11, v0, 3, 1"); a("v_lshl_add_u32 v9, v11, 2, v9")
    a("v_and_b32 v11, 1, v9"); a("v_lshlrev_b32 v11, 12, v11"); a("v_lshrrev_b32 v9, 1, v9"); a("v_lshl_add_u32 v9, v9, 14, v11")
    a("v_and_b32 v11, 7, v0"); a("v_lshl_add_u32 v9, v11, 4, v9"); a("s_lshl_b32 s36, s18, 7"); a("v_add_u32 v9, s36, v9")
    a("v_lshrrev_b32 v12, 4, v0"); a("v_and_b32 v13, 7, v0"); a("v_lshl_add_u32 v12, v12, 3, v13"); a("v_lshlrev_b32 v12, 4, v12"); a(f"v_add_u32 v12, {L_P}, v12"); a(f"v_mov_b32 v11, {L_ZERO}")
    a("v_and_b32 v13, 8, v0"); a("v_cmp_eq_u32 vcc, 0, v13"); a("s_nop 1")
    a("v_cndmask_b32 v13, v12, v11, vcc"); a("v_cndmask_b32 v12, v11, v12, vcc")
    a(f"v_add_u32 v14, {L_VX}, v6")
    a("s_lshr_b32 s36, s21, 1"); a(f"s_mul_i32 s54, s36, {WS_VX - WS_KX}"); a(f"s_mul_i32 s55, s36, {L_VX - L_KX}")
    a("s_and_b32 s36, s21, 1"); a("s_lshl_b32 s36, s36, 12"); a("s_add_u32 s54, s54, s36"); a("s_add_u32 s55, s55, s36"); a(f"s_add_u32 s55, s55, {L_KX}")
    a("s_lshl_b32 s36, s18, 14"); a("s_add_u32 s54, s54, s36"); a(f"s_add_u32 s54, s54, {WS_KX}")
    def u_load():
        for i in range(8): a(f"ds_read_b128 v[{16+4*i}:{19+4*i}], v14 offset:{1024*i}")
        a("v_xor_b32 v14, 0x2000, v14")
    def u_half(hf):
        for jj in range(4):
            for c2 in range(2):
                for kt in range(2):
                    d = 64 + (c2*2 + kt)*4
                    A = 16 + (kt*4 + jj)*4
                    a(f"v_mfma_f32_16x16x32_bf16 v[{d}:{d+3}], v[{A}:{A+3}], {wo_reg(2*hf+c2, jj)}, " + ("0" if jj == 0 else f"v[{d}:{d+3}]"))
        a("s_nop 7")
        for c2 in range(2):
            for kt in range(2):
                d = 64 + (c2*2 + kt)*4
                u = 80 + (2*hf + c2)*4 + kt*2
                a(f"v_cvt_pk_bf16_f32 v{u}, v{d}, v{d+1}"); a(f"v_cvt_pk_bf16_f32 v{u+1}, v{d+2}, v{d+3}")
    def vo_prep(tag, ahead):
        for i in range(4): a(f"v_mov_b32 v{56+i}, 0x3f803f80")
        for i in range(4): a(f"v_mov_b32 v{60+i}, 0x3f003f00")
        for i in range(16): a(f"v_mov_b32 v{64+i}, 0")
        a(f"s_add_u32 s53, s22, {2 + ahead}"); a("s_min_u32 s53, s53, 63"); a("s_lshl_b32 s53, s53, 19"); a("s_add_u32 s53, s53, s54"); near(a, 48, "s53", kv=True)
        a(f"s_add_u32 m0, s55, {tag*8192}")
    vo_prep(0, 0)
    zero_acc()
    if PAR["PRIO"]: a("s_setprio 1")
    a(f"s_branch {L('o0_in')}")
    algn()
    a.label(L('o_loop'))
    for tag in range(2):
        n = f"o{tag}"
        p1(n)
        if tag == (NSTEP - 1) & 1:
            a(f"s_cmp_eq_u32 s22, {NSTEP-1}"); a(f"s_cbranch_scc1 {L('fin')}")
        backoff(a, PAR["VDEL"])
        a.label(L(n + '_vp'))
        for k in range(2): a(f"global_load_dwordx4 v[{48+4*k}:{51+4*k}], v8, {RB(tag)} offset:{1024*k} sc1")
        a("s_waitcnt vmcnt(0)")
        tagchk(a, list(range(48, 56)), None if NT_ else tag, 17, 16)
        a(f"s_cbranch_vccnz {L(n + '_vr')}")
        for k in range(2):
            for ct in range(4):
                b = 96 + (ct*4 + 2*k)*4
                a(f"v_smfmac_f32_16x16x64_bf16 v[{64+4*ct}:{67+4*ct}], v[{48+4*k}:{51+4*k}], v[{b}:{b+7}], v2")
                if PAR["DMI"] and k == PAR["DMI"] - 1:
                    if tag == 0:
                        if ct == 0: a("s_cmp_eq_u32 s22, 0")
                        a(f"s_cbranch_scc1 {L('dmi%d' % ct)}")
                    a(f"global_load_lds_dwordx4 v6, s[48:49] offset:{ct*1024} sc1")
                    if tag == 0: a.label(L('dmi%d' % ct))
        a("s_nop 4")
        for ct in range(4):
            if ct == 3: a("s_nop 1")
            t = 24 + (ct & 1)*4 + (ct >> 1)*2
            a(f"v_cvt_pk_bf16_f32 v{t}, v{64+4*ct}, v{65+4*ct}"); a(f"v_cvt_pk_bf16_f32 v{t+1}, v{66+4*ct}, v{67+4*ct}")
        if tag == 0:
            a("s_cmp_eq_u32 s22, 0"); a(f"s_cbranch_scc1 {L('o_first')}")
            a.label(L('o_fj'))
        if not PAR["DDEL"] and not PAR["DMI"] and "nodma" not in OPT:
            for jj in range(4): a(f"global_load_lds_dwordx4 v6, s[48:49] offset:{jj*1024} sc1")
        stamp(a, prof, 3)
        a("s_barrier")
        a("ds_read_b64 v[36:37], v12 offset:1024"); a("ds_read_b64 v[38:39], v13 offset:1024")
        a("ds_read_b128 v[32:35], v12"); a("ds_read_b128 v[48:51], v13")
        a("s_waitcnt lgkmcnt(2)")
        stamp(a, prof, 4)
        a("v_mfma_f32_16x16x32_bf16 v[40:43], v[60:63], v[36:39], 0")
        a("v_mfma_f32_16x16x32_bf16 v[64:67], v[24:27], v[36:39], 0")
        a("s_waitcnt lgkmcnt(0)")
        a("v_or_b32 v44, v32, v48"); a("v_or_b32 v45, v33, v49")
        a("v_or_b32 v46, v34, v50"); a("v_or_b32 v47, v35, v51")
        a("v_mfma_f32_16x16x32_bf16 v[64:67], v[80:83], v[32:35], v[64:67]")
        a("v_mfma_f32_16x16x32_bf16 v[68:71], v[28:31], v[36:39], 0")
        a("v_mfma_f32_16x16x32_bf16 v[40:43], v[56:59], v[44:47], v[40:43]")
        a("v_mfma_f32_16x16x32_bf16 v[64:67], v[88:91], v[48:51], v[64:67]")
        a("v_mfma_f32_16x16x32_bf16 v[68:71], v[84:87], v[32:35], v[68:71]")
        a("v_mfma_f32_16x16x32_bf16 v[68:71], v[92:95], v[48:51], v[68:71]")
        a("s_nop 4")
        a("v_rcp_f32 v40, v40")
        a("s_nop 0")
        tg = lambda x: a(f"v_min_u32 v{x}, -2, v{x}" if PAR["DROP"] else f"v_or_b32 v{x}, 1, v{x}" if tag else f"v_and_b32 v{x}, -2, v{x}")
        for h in range(2):
            for i in range(2): a(f"v_pk_mul_f32 v[{64+4*h+2*i}:{65+4*h+2*i}], v[{64+4*h+2*i}:{65+4*h+2*i}], v[40:41] op_sel_hi:[1,0]")
            for i in range(2): a(f"v_cvt_pk_bf16_f32 v{48+2*h+i}, v{64+4*h+2*i}, v{65+4*h+2*i}")
        for i in range(4): tg(48 + i)
        a(f"global_store_dwordx4 v9, v[48:51], {PB(tag)} sc1")
        stamp(a, prof, 5)
        u_load(); a("s_waitcnt lgkmcnt(0)"); u_half(0)
        u_half(1)
        vo_prep(tag ^ 1, 1)
        step_end()
    a(f"s_branch {L('o_loop')}")
    for tag in range(2):
        n = f"o{tag}"
        p1_retry(n)
        a.label(L(n + '_vr')); guard(a, L(n + '_vp'), FAIL)

    a.label(L('o_first'))
    for i in range(8): a(f"v_mov_b32 v{48+i}, v{24+i}")
    a("s_barrier")
    u_load(); a("s_waitcnt lgkmcnt(0)"); a("s_barrier"); u_half(0); u_half(1)
    for i in range(8): a(f"v_mov_b32 v{24+i}, v{48+i}")
    if PAR["DMI"]:
        for jj in range(4): a(f"global_load_lds_dwordx4 v6, s[48:49] offset:{jj*1024} sc1")
    a(f"s_branch {L('o_fj')}")

    a.label(L('last_pub'))
    a("s_nop 7")
    a("v_cvt_pk_bf16_f32 v88, v80, v81"); a("v_cvt_pk_bf16_f32 v89, v82, v83")
    a("v_min_u32 v88, -2, v88"); a("v_min_u32 v89, -2, v89")
    a("s_or_b32 s36, s19, s37"); a("s_and_b32 s36, s36, 2"); a(f"s_cbranch_scc0 {L('fin')}")
    a("global_store_dwordx2 v10, v[88:89], s[30:31] sc1")
    a.label(L('fin'))
    a("s_waitcnt vmcnt(0)"); a("s_barrier")
    a("s_cmp_eq_u32 s21, 0"); a(f"s_cbranch_scc0 {L('end')}")
    head_word(str(NSTEP - 1))
    if "span" in OPT:
        a("s_and_b32 s98, s20, 15"); a("s_cmp_lg_u32 s98, 0"); a(f"s_cbranch_scc1 {L('end')}")
        a("s_memrealtime s[98:99]"); a("s_waitcnt lgkmcnt(0)"); a("v_mov_b32 v5, s98"); a("v_mov_b32 v2, 0")
        a("s_mov_b64 exec, 1"); a("global_atomic_umax v2, v5, s[14:15] offset:56 sc1"); a("s_mov_b64 exec, -1")
    if "diag" in OPT:
        a("s_cmp_eq_u32 s20, 0"); a(f"s_cbranch_scc0 {L('end')}")
        a("s_memrealtime s[56:57]"); a("s_waitcnt lgkmcnt(0)"); a("s_sub_u32 s70, s56, s98"); a("s_sub_u32 s71, s98, s97")
        a("s_mov_b64 exec, 1")
        a("s_mov_b32 s72, 0"); a("s_mov_b32 s73, 0"); a("s_mov_b32 s74, 0"); a("v_mov_b32 v18, 0")
        a.label(L('dg'))
        for k in range(2):
            a("s_lshl_b32 s36, s74, 21"); a(f"s_add_u32 s36, s36, {0x10000 + k*0x2000}"); a("v_mov_b32 v16, s36")
            for rep in range(2):
                a("s_memtime s[56:57]"); a("s_waitcnt lgkmcnt(0)")
                a("global_atomic_or v17, v16, v18, s[16:17] sc0 sc1"); a("s_waitcnt vmcnt(0)")
                a("s_memtime s[58:59]"); a("s_waitcnt lgkmcnt(0)")
            a(f"s_sub_u32 s{76+k}, s58, s56")
        a("s_cmp_lt_u32 s77, s76"); a("s_cselect_b32 s78, 1, 0"); a("s_mov_b32 s79, 0"); a("s_lshl_b64 s[78:79], s[78:79], s74"); a("s_or_b64 s[72:73], s[72:73], s[78:79]")
        a("s_add_u32 s74, s74, 1"); a("s_cmp_lt_u32 s74, 64"); a(f"s_cbranch_scc1 {L('dg')}")
        for k in range(4): a(f"v_mov_b32 v{20+k}, s{70+k}")
        a("global_store_dwordx4 v18, v[20:23], s[14:15] offset:48")
        a("s_mov_b64 exec, -1")
    a(f"s_branch {L('end')}")
    a.label(FAIL)
    a("v_mov_b32 v16, 0"); a("v_mov_b32 v17, 0xdead"); a("global_store_dword v16, v17, s[14:15] offset:252")
    a.label(L('end'))
    if prof:
        if prof == 3:
            a("s_memrealtime s[56:57]"); a("s_waitcnt lgkmcnt(0)"); a("s_mov_b32 s61, s56"); a("s_mov_b32 s62, s25"); a("s_mov_b32 s63, s90"); a("s_mov_b32 s64, s91"); a("s_mov_b32 s65, s89")
        if prof == 3:
            a("s_cmp_eq_u32 s21, 5"); a(f"s_cbranch_scc0 {L('nost')}")
            a("s_lshl_b32 s36, s20, 9"); a(f"s_add_u32 s36, s36, {203<<20}"); a("v_lshrrev_b32 v16, 1, v6"); a("v_add_u32 v16, s36, v16")
            a("global_store_dwordx2 v16, v[150:151], s[16:17]")
            a.label(L('nost'))
        if prof > 3:
            a("s_waitcnt lgkmcnt(0)")
            for k in range(8): a(f"s_sub_u32 s{60+k if k < 6 else 84+k}, s{66+2*k}, s66")
            a("s_mov_b32 s66, s90"); a("s_mov_b32 s67, s91")
        a("s_lshl_b32 s36, s20, 3"); a("s_add_u32 s36, s36, s21"); a("s_lshl_b32 s36, s36, 5"); a(f"s_add_u32 s36, s36, {200<<20}")
        a("v_mov_b32 v16, s36")
        for k in range(8): a(f"v_mov_b32 v{24+k}, s{60+k}")
        a("s_mov_b64 exec, 1")
        a("global_store_dwordx4 v16, v[24:27], s[16:17]"); a("global_store_dwordx4 v16, v[28:31], s[16:17] offset:16")
    a("s_endpgm")
```
